```python
import torch

def _softmax(x, axis=-1):
    return torch.softmax(x, dim=axis)

def _gelu(x):
    return torch.nn.functional.gelu(x, approximate='tanh')

def _silu(x):
    return torch.nn.functional.silu(x)

def _sigmoid(x):
    return torch.sigmoid(x)

def _layernorm(x, axis=-1, eps=1e-05):
    m = x.mean(dim=axis, keepdim=True)
    v = x.var(dim=axis, keepdim=True, unbiased=False)
    return (x - m) / torch.sqrt(v + eps)

def _scatter_add(tgt, idx, src, axis=0):
    return tgt.clone().index_add_(axis, idx, src)

def _segment_sum(src, seg, n):
    out = torch.zeros((n,) + src.shape[1:], dtype=src.dtype)
    return out.index_add_(0, seg, src)

def _pad(x, pw):
    flat = tuple((v for pair in reversed(pw) for v in pair))
    return torch.nn.functional.pad(x, flat)
kernel_name = 'adaLN_cond__memory_aug_recurrent_mem_tr__glu_gated_bilinear__prompt'

def setup_inputs():

    _w = lambda a: (lambda t: t.to(torch.bfloat16) if t.is_floating_point() else t)(torch.as_tensor(a))

    def _A_setup():
        B, S, Dm = (1, 2048, 576)
        H, Dh = (32, 128)
        M, seg = (8, 32)
        seg = min(seg, S)
        S = S // seg * seg
        return {'x': _w((lambda *s: torch.randn(*s, dtype=torch.bfloat16) * 0.05)(B, S, Dm)), 'mem0': _w((lambda *s: torch.randn(*s, dtype=torch.bfloat16) * 0.8)(B, M, Dm)), 'Wq': _w((lambda *s: torch.randn(*s, dtype=torch.bfloat16) * 1.6)(Dm, H, Dh) * Dm ** (-0.5)), 'Wk': _w((lambda *s: torch.randn(*s, dtype=torch.bfloat16) * 1.6)(Dm, H, Dh) * Dm ** (-0.5)), 'Wv': _w((lambda *s: torch.randn(*s, dtype=torch.bfloat16) * 0.8)(Dm, H, Dh) * Dm ** (-0.5)), 'Wo': _w((lambda *s: torch.randn(*s, dtype=torch.bfloat16) * 0.8)(H, Dh, Dm) * (H * Dh) ** (-0.5)), 'seg_len': seg}
    _A_in = _A_setup()

    def _B_setup():
        B, S, D, F = (1, 2048, 576, 4608)
        return {'x': _w((lambda *s: torch.randn(*s, dtype=torch.bfloat16) * 0.05)(B, S, D)), 'w_gate': _w((lambda *s: torch.randn(*s, dtype=torch.bfloat16) * 0.8)(D, F) * D ** (-0.5)), 'w_up': _w((lambda *s: torch.randn(*s, dtype=torch.bfloat16) * 0.8)(D, F) * D ** (-0.5)), 'w_down': _w((lambda *s: torch.randn(*s, dtype=torch.bfloat16) * 0.8)(F, D) * F ** (-0.5))}
    _B_in = _B_setup()
    return {'A_x': _A_in['x'], 'A_mem0': _A_in['mem0'], 'A_Wq': _A_in['Wq'], 'A_Wk': _A_in['Wk'], 'A_Wv': _A_in['Wv'], 'A_Wo': _A_in['Wo'], 'A_seg_len': _A_in['seg_len'], 'B_x': _B_in['x'], 'B_w_gate': _B_in['w_gate'], 'B_w_up': _B_in['w_up'], 'B_w_down': _B_in['w_down'], 'c': _w((lambda *s: torch.randn(*s, dtype=torch.bfloat16) * 0.1)(1, 576) * 8.0), 'w_mod': _w((lambda *s: torch.randn(*s, dtype=torch.bfloat16) * 0.1)(576, 6 * 576) * 576 ** (-0.5) * 8.0)}

def reference(A_x, A_mem0, A_Wq, A_Wk, A_Wv, A_Wo, A_seg_len, B_x, B_w_gate, B_w_up, B_w_down, c, w_mod):

    def _A_ref(x, mem0, Wq, Wk, Wv, Wo, seg_len):
        B, S, Dm = x.shape
        H, Dh = (Wq.shape[1], Wq.shape[2])
        M = mem0.shape[1]
        scale = Dh ** (-0.5)
        n_seg = S // seg_len
        L = M + seg_len
        idx = torch.arange(L)
        mask = (idx[:, None] < M) | (idx[:, None] >= idx[None, :])
        mem = mem0
        outs = []
        for s in range(n_seg):
            xs = x[:, s * seg_len:(s + 1) * seg_len, :].clone()
            h = torch.concatenate([mem, xs], axis=1)
            q = torch.einsum('btd,dhe->bhte', h, Wq)
            k = torch.einsum('btd,dhe->bhte', h, Wk)
            v = torch.einsum('btd,dhe->bhte', h, Wv)
            scores = torch.einsum('bhqe,bhke->bhqk', q, k) * scale
            scores = torch.where(mask[None, None], scores, -1000000000.0)
            p = _softmax(scores, axis=-1)
            o = torch.einsum('bhqk,bhke->bhqe', p, v)
            o = torch.einsum('bhte,hed->btd', o, Wo)
            mem = o[:, :M, :].clone()
            outs.append(o[:, M:, :])
        return torch.concatenate(outs, axis=1)

    def _B_ref(x, w_gate, w_up, w_down):
        g = torch.einsum('bsd,df->bsf', x, w_gate)
        u = torch.einsum('bsd,df->bsf', x, w_up)
        h = g * u
        return torch.einsum('bsf,fd->bsd', h, w_down)
    x = A_x
    mod = (_silu(c) @ w_mod).reshape(c.shape[0], 6, 1, -1)
    sa, ca, ga, sb, cb, gb = (mod[:, 0].clone(), mod[:, 1].clone(), mod[:, 2].clone(), mod[:, 3].clone(), mod[:, 4].clone(), mod[:, 5].clone())
    h = _layernorm(x, axis=-1) * (1 + ca) + sa
    x = x + ga * _A_ref(h, A_mem0, A_Wq, A_Wk, A_Wv, A_Wo, A_seg_len)
    h = _layernorm(x, axis=-1) * (1 + cb) + sb
    x = x + gb * _B_ref(h, B_w_gate, B_w_up, B_w_down)
    return x
```

```python
class Asm:
    def __init__(self):
        self.lines = []
        self.lds = []
        self.vm = []
        self.uid = 0
    def __call__(self, s):
        for l in s.split("\n"):
            l = l.strip()
            if l:
                self.lines.append("    " + l)
    def c(self, s):
        self.lines.append("    ; " + s)
    def label(self, l):
        self.lines.append(l + ":")
    def new(self, p):
        self.uid += 1
        return "L_%s_%d" % (p, self.uid)
    def ds(self, s, tag=None):
        self(s)
        self.lds.append(tag)
    def wait_ds(self, tag=None):
        if tag is None:
            n = 0
        else:
            idx = [i for i, t in enumerate(self.lds) if t == tag]
            if not idx:
                return
            n = len(self.lds) - 1 - idx[-1]
        n = min(n, 15)
        self("s_waitcnt lgkmcnt(%d)" % n)
        self.lds = self.lds[len(self.lds) - n:] if n else []
    def vmem(self, s, tag=None):
        self(s)
        self.vm.append(tag)
    def wait_vm(self, tag=None):
        if tag is None:
            n = 0
        else:
            idx = [i for i, t in enumerate(self.vm) if t == tag]
            if not idx:
                return
            n = len(self.vm) - 1 - idx[-1]
        n = min(n, 63)
        self("s_waitcnt vmcnt(%d)" % n)
        self.vm = self.vm[len(self.vm) - n:] if n else []
    def text(self):
        return "\n".join(self.lines) + "\n"

def v(b, n=1):
    return "v%d" % b if n == 1 else "v[%d:%d]" % (b, b + n - 1)
def a(b, n=1):
    return "a%d" % b if n == 1 else "a[%d:%d]" % (b, b + n - 1)
def s(b, n=1):
    return "s%d" % b if n == 1 else "s[%d:%d]" % (b, b + n - 1)
def R(b, n=1):
    return v(b, n) if b < 256 else a(b - 256, n)
```

```python
import sys
from asmlib import *
from layout import *
import team
from team import *

def srd(A, d, karg_off, nbytes):
    A("s_load_dwordx2 %s, s[0:1], %d" % (s(d, 2), karg_off))
def srd_fin(A, d, nbytes):
    A("s_and_b32 %s, %s, 0xffff" % (s(d + 1), s(d + 1)))
    A("s_mov_b32 %s, %d" % (s(d + 2), nbytes))
    A("s_mov_b32 %s, 0x20000" % s(d + 3))

def kd(name, vg=512, acc=256):
    return """.section .rodata,"a"
.p2align 6
.amdhsa_kernel %s
  .amdhsa_next_free_vgpr %d
  .amdhsa_next_free_sgpr 102
  .amdhsa_accum_offset %d
  .amdhsa_group_segment_fixed_size 0
  .amdhsa_kernarg_size 128
  .amdhsa_user_sgpr_count 2
  .amdhsa_user_sgpr_kernarg_segment_ptr 1
  .amdhsa_system_sgpr_workgroup_id_x 1
  .amdhsa_float_denorm_mode_32 3
.end_amdhsa_kernel
.text
""" % (name, vg, acc)

def main(stamps, sc, spread):
    A = Asm()
    A.lines.append("; @launch kernel=rec_kernel grid=(256,1,1) block=(256,1,1) lds=163840")
    A.lines.append('.amdgcn_target "amdgcn-amd-amdhsa--gfx950"')
    A.lines.append(".text\n.globl rec_kernel\n.p2align 8\n.type rec_kernel,@function")
    A.label("rec_kernel")
    A("s_cmp_ge_u32 s2, 256")
    A("s_cbranch_scc1 L_end")
    bufs = [(sWS, 120, WS_BYTES), (sWQ, 16, 4718592), (sWK, 24, 4718592), (sWV, 32, 4718592), (sWO, 40, 4718592), (sM0, 8, 9216), (sDBG, 112, 256)]
    for d, o, n in bufs:
        srd(A, d, o, n)
    A("s_getreg_b32 s3, hwreg(HW_REG_XCC_ID)")
    A("s_and_b32 s3, s3, 15")
    A("v_lshrrev_b32 v1, 6, v0")
    A("v_and_b32 v0, 63, v0")
    A("v_readfirstlane_b32 %s, v1" % s(sW))
    A("s_waitcnt lgkmcnt(0)")
    for d, o, n in bufs:
        srd_fin(A, d, n)
    if spread:
        A("s_cmp_ge_u32 s2, 32")
        A("s_cbranch_scc1 L_end")
        A("s_mov_b32 %s, s2" % s(sCU))
    else:
        A("s_cmp_lg_u32 s3, 0")
        A("s_cbranch_scc1 L_end")
        A("v_mov_b32 v2, 0")
        A("s_cmp_lg_u32 %s, 0" % s(sW))
        A("s_cbranch_scc1 L_norank")
        A("s_mov_b64 exec, 1")
        A("v_mov_b32 v1, 1")
        A("buffer_atomic_add v1, off, %s, 0 sc0" % s(sDBG, 4))
        A("s_waitcnt vmcnt(0)")
        A("ds_write_b32 v2, v1")
        A("s_mov_b64 exec, -1")
        A.label("L_norank")
        A("s_waitcnt lgkmcnt(0)")
        A("s_barrier")
        A("ds_read_b32 v1, v2")
        A("s_waitcnt lgkmcnt(0)")
        A("v_readfirstlane_b32 %s, v1" % s(sCU))
        A("s_barrier")
        A("s_cmp_ge_u32 %s, 32" % s(sCU))
        A("s_cbranch_scc1 L_end")
    emit_team(A, stamps=stamps, sc=sc, opt=sys.argv)
    A.label("L_end")
    A("s_endpgm")
    return A.text() + kd("rec_kernel")

if __name__ == "__main__":
    out = sys.argv[1]
    open(out, "w").write(main("stamps" in sys.argv, "sc1" if "sc1" in sys.argv else "", "spread" in sys.argv))
```

```python
MB = 1 << 20
WS_BYTES = 268435456
WS_KV = 0
WS_Q = 32 * MB
WS_KM = 48 * MB
WS_PB = 60 * MB
PB_STRIDE = 512 * 1024
WS_MBX = 61 * MB
MBX_STRIDE = 16384
WS_WF = 62 * MB
WS_DBG = 67 * MB
WS_H = 68 * MB
WS_H2 = 71 * MB
WS_X1 = 74 * MB
WS_MOD = 77 * MB
WS_FL = 78 * MB
FL_H = WS_FL
FL_KV = WS_FL + 1024
FL_PUB = FL_KV + 8192
FL_PA = FL_PUB + 32768
FL_H2 = FL_PA + 8192
FL_PC = FL_H2 + 8192
FL_END = FL_PC + 16384
WS_PA = 80 * MB
PA_SEG = 32 * 16 * 1152
WS_PC = 120 * MB
PC_SEG = 36 * 36 * 1024
assert WS_PA + 64 * PA_SEG <= WS_PC and WS_PC + 64 * PC_SEG <= WS_BYTES
OOB = 0x40000000
DBG_XCC = 0
DBG_TEAM = 64
DBG_TMASK = 68
DBG_MOD = 128
```

```python
from asmlib import *
from layout import *
import struct, math

L_MEM, L_KX, L_F, L_O, L_SCR, L_W = 0, 9216, 17408, 21632, 23680, 24576
FSTR = 1056
L_FLAG = L_SCR + 892
L_WSTRIDE = 34816
vL16, vIdx, vWL, vFw, vOw, vPst, vRst, vSelV, vT0, vT1, vT2, vTmp = range(12)
VACC, QK, RING, LND = 12, 20, 36, 48
WREG0 = 72
KVSTEP = 32 * 16384
NSPILL = 17
sWS, sWQ, sWK, sWV, sWO, sM0, sDBG = 4, 8, 12, 16, 20, 24, 28
sCU, sW, sWC, sUnit, sStep, sBud = 32, 33, 34, 35, 36, 37
sP0, sP1, sP2, sRd, sX0, sX1, sX2, sKV, sKM, sPh, sWF, sC, sVX, sKXm = range(38, 52)
sL2a, sKVv, sKVt = 96, 97, 98
sPt = 8
sTagM = 100
sFlg, sFlgN, sOne = 17, 18, 20
sSel = 52
sT = 60
sStamp = 64

def f32bits(x):
    return struct.unpack("<I", struct.pack("<f", x))[0]

WO_ORDER = [0, 1, 2, 3, 4, 5, 6, 7, 8]
QK_CHAIN = [[('qk', 0, 0), ('qk', 3, 0), ('qk', 6, 0), ('qk', 8, 2)],
            [('qk', 0, 1), ('qk', 3, 1), ('qk', 6, 1), ('qk', 8, 3)],
            [('qk', 0, 2), ('qk', 5, 2), ('qk', 8, 1)]]
def GOF(j, w):
    if j == 8:
        return 8
    o = 2 * (1 - (w >> 1))
    return (j & 4) + (w, w ^ 1, o, o + 1)[j & 3]
WO_CHAIN = [[('o', 0), ('o', 8), ('o', 16)], [('o', 1), ('o', 9), ('o', 17)]]
L2KEY = ('qk', 5, 2)
def placement():
    spill, regs, slot, nxt = {}, {}, {}, {}
    nonreg = []
    for chains in (QK_CHAIN, WO_CHAIN):
        for si, ch in enumerate(chains):
            for i, k in enumerate(ch):
                slot[k] = si
                nxt[k] = ch[i + 1] if i + 1 < len(ch) else None
                if k != L2KEY:
                    nonreg.append(k)
    nonreg.append(L2KEY)
    assert len(nonreg) == NSPILL
    for i, k in enumerate(nonreg):
        spill[k] = i
    allk = [('qk', j, t) for j in range(9) for t in range(4)] + [('v', j, t) for j in range(9) for t in range(2)] + \
           [('o', n) for n in range(18)]
    r = WREG0
    for k in allk:
        if k not in spill:
            regs[k] = r
            r += 8
    assert r == 512, r
    return spill, regs, slot, nxt
SPILL, WREGS, SLOT, NXT = placement()

def emit_team(A, stamps=False, nsteps=64, sc="", hooks=None, opt=()):
    nst = [0]
    def stamp():
        if stamps:
            A("s_memtime %s" % s(sStamp + 2 * nst[0], 2))
            nst[0] += 1
    SC = " sc1"
    lane = 71
    t1, t2, t3, t4, t5, t6 = 64, 65, 66, 67, 68, 69
    vOffW, vOffO, vTrQK, vTrV, vTrO, vAd, vTr8, vAd2 = 56, 57, 58, 59, 60, 61, 62, 63
    vColQK, vColV = 54, 55
    A.c("=========== team setup ===========")
    if "tt" in opt:
        A("s_memtime s[90:91]")
        A("s_mov_b32 s87, 0")
        A("s_mov_b32 s88, 0")
        A("s_mov_b32 s89, 0")
    A("v_mov_b32 %s, v0" % v(lane))
    A("s_lshl_b32 %s, %s, 5" % (s(sT), s(sW)))
    A("s_add_u32 %s, %s, %s" % (s(sUnit), s(sT), s(sCU)))
    A("s_cmp_lt_u32 %s, 72" % s(sUnit))
    A("s_cselect_b32 %s, %s, -1" % (s(sUnit), s(sUnit)))
    A("v_lshlrev_b32 %s, 4, %s" % (v(vL16), v(lane)))
    A("v_and_b32 %s, 1, %s" % (v(t1), v(lane)))
    A("v_mul_u32_u24 %s, 0xaaaa, %s" % (v(t1), v(t1)))
    A("v_add_u32 %s, 0x4444, %s" % (v(vIdx), v(t1)))
    A("s_mul_i32 %s, %s, %d" % (s(sT), s(sW), L_WSTRIDE))
    A("s_add_u32 %s, %s, %d" % (s(sT), s(sT), L_W))
    A("v_add_u32 %s, %s, %s" % (v(vWL), s(sT), v(vL16)))
    A("s_add_u32 %s, %s, 32768" % (s(sVX), s(sT)))
    A("s_lshl_b32 %s, %s, 11" % (s(sKXm), s(sW)))
    A("s_add_u32 %s, %s, %d" % (s(sKXm), s(sKXm), L_KX))
    A("v_lshrrev_b32 %s, 4, %s" % (v(t2), v(lane)))
    A("v_bfe_u32 %s, %s, 2, 2" % (v(t3), v(lane)))
    A("v_and_b32 %s, 3, %s" % (v(t4), v(lane)))
    A("v_and_b32 %s, 1, %s" % (v(t1), v(t3)))
    A("v_mul_u32_u24 %s, %d, %s" % (v(vFw), FSTR, v(t1)))
    A("v_lshrrev_b32 %s, 1, %s" % (v(t1), v(t3)))
    A("v_lshl_add_u32 %s, %s, 8, %s" % (v(vFw), v(t1), v(vFw)))
    A("v_lshl_add_u32 %s, %s, 6, %s" % (v(vFw), v(t2), v(vFw)))
    A("v_lshl_add_u32 %s, %s, 2, %s" % (v(vFw), v(t4), v(vFw)))
    A("s_lshr_b32 %s, %s, 1" % (s(sT), s(sW)))
    A("s_and_b32 %s, %s, 1" % (s(sT + 1), s(sW)))
    A("s_mul_i32 %s, %s, %d" % (s(sT + 2), s(sT), 2 * FSTR))
    A("s_lshl_b32 %s, %s, 9" % (s(sT + 3), s(sT + 1)))
    A("s_add_u32 %s, %s, %s" % (s(sT + 2), s(sT + 2), s(sT + 3)))
    A("s_add_u32 %s, %s, %d" % (s(sT + 2), s(sT + 2), L_F))
    A("v_add_u32 %s, %s, %s" % (v(vFw), s(sT + 2), v(vFw)))
    A("v_and_b32 %s, 1, %s" % (v(t1), v(t4)))
    A("v_lshl_add_u32 %s, %s, 1, %s" % (v(t1), v(t3), v(t1)))
    A("v_lshlrev_b32 %s, 5, %s" % (v(t5), v(t1)))
    A("v_lshl_add_u32 %s, %s, 8, %s" % (v(t5), v(t2), v(t5)))
    A("s_lshl_b32 %s, %s, 10" % (s(sT + 2), s(sT)))
    A("s_lshl_b32 %s, %s, 4" % (s(sT + 3), s(sT + 1)))
    A("s_add_u32 %s, %s, %s" % (s(sT + 2), s(sT + 2), s(sT + 3)))
    A("s_add_u32 %s, %s, %d" % (s(sT + 2), s(sT + 2), L_O))
    A("v_add_u32 %s, %s, %s" % (v(t5), s(sT + 2), v(t5)))
    A("v_lshl_add_u32 %s, %s, 3, %s" % (v(t6), v(t2), v(t1)))
    A("v_lshlrev_b32 %s, 4, %s" % (v(t6), v(t6)))
    A("v_add_u32 %s, %d, %s" % (v(t6), L_SCR, v(t6)))
    A("v_cmp_le_u32 vcc, 2, %s" % v(t4))
    A("s_nop 1")
    A("v_cndmask_b32 %s, %s, %s, vcc" % (v(vOw), v(t6), v(t5)))
    A("v_lshrrev_b32 %s, 5, %s" % (v(t1), v(lane)))
    A("v_lshlrev_b32 %s, 12, %s" % (v(vPst), v(t1)))
    A("v_and_b32 %s, 31, %s" % (v(t1), v(lane)))
    A("v_lshl_add_u32 %s, %s, 2, %s" % (v(vPst), v(t1), v(vPst)))
    A("v_lshlrev_b32 %s, 6, %s" % (v(t5), v(t3)))
    A("v_lshl_add_u32 %s, %s, 3, %s" % (v(t5), v(t4), v(t5)))
    A("v_lshl_add_u32 %s, %s, 5, %s" % (v(t5), v(t2), v(t5)))
    A("s_lshl_b32 %s, %s, 7" % (s(sT + 2), s(sUnit)))
    A("s_and_b32 %s, %s, 0x3fff" % (s(sT + 2), s(sT + 2)))
    A("v_add_u32 %s, %s, %s" % (v(t5), s(sT + 2), v(t5)))
    A("v_and_b32 %s, 0x28, %s" % (v(t1), v(lane)))
    A("v_mov_b32 %s, 0x%x" % (v(t6), OOB))
    A("v_cmp_eq_u32 vcc, 0, %s" % v(t1))
    A("s_nop 1")
    A("v_cndmask_b32 %s, %s, %s, vcc" % (v(vRst), v(t6), v(t5)))
    A("s_mov_b32 %s, 0x11111111" % s(sTagM))
    A("s_mov_b32 %s, 0x11111111" % s(sTagM + 1))
    A("v_and_b32 %s, 1, %s" % (v(t1), v(t3)))
    A("v_lshlrev_b32 %s, 4, %s" % (v(t1), v(t1)))
    A("v_mov_b32 %s, 0x3f80" % v(t5))
    A("v_lshlrev_b32 %s, %s, %s" % (v(vSelV), v(t1), v(t5)))
    for u in range(4):
        m16 = (1 << u) | (1 << (u + 4))
        m32 = m16 | (m16 << 16)
        A("s_mov_b32 %s, 0x%x" % (s(sSel + 2 * u), m32))
        A("s_mov_b32 %s, 0x%x" % (s(sSel + 2 * u + 1), m32))
    A("s_lshl_b32 %s, %s, 10" % (s(sT + 2), s(sW)))
    A("v_add_u32 %s, %s, %s" % (v(vT0), s(sT + 2), v(vL16)))
    A("v_xor_b32 %s, 0x400, %s" % (v(vT1), v(vT0)))
    A("s_and_b32 %s, %s, 0x800" % (s(sT + 2), s(sT + 2)))
    A("s_xor_b32 %s, %s, 0x800" % (s(sT + 2), s(sT + 2)))
    A("v_add_u32 %s, %s, %s" % (v(vT2), s(sT + 2), v(vL16)))
    A("s_mov_b32 %s, 0" % s(sStep))
    A("s_mov_b32 %s, 0" % s(sPh))
    A("s_mov_b32 %s, 200000" % s(sBud))
    A("s_lshl_b32 %s, %s, 7" % (s(sT + 3), s(sCU)))
    A("s_add_u32 %s, %s, %d" % (s(sT + 3), s(sT + 3), WS_PB))
    A("s_lshl_b32 %s, %s, 13" % (s(sT + 2), s(sW)))
    A("s_add_u32 %s, %s, %s" % (s(sP0), s(sT + 2), s(sT + 3)))
    A("s_lshl_b32 %s, %s, 12" % (s(sT + 2), s(sUnit)))
    A("s_add_u32 %s, %s, %d" % (s(sRd), s(sT + 2), WS_PB))
    A("s_cmp_eq_u32 %s, -1" % s(sUnit))
    A("s_cselect_b32 %s, 0x%x, %s" % (s(sRd), OOB, s(sRd)))
    A("s_cselect_b32 %s, 0x%x, 0" % (s(sT + 2), OOB))
    A("v_or_b32 %s, %s, %s" % (v(vRst), s(sT + 2), v(vRst)))
    for i, r in enumerate((sX0, sX1, sX2)):
        A("s_mov_b32 %s, %d" % (s(r), WS_MBX + i * MBX_STRIDE))
    A("s_lshl_b32 %s, %s, 14" % (s(sKV), s(sCU)))
    A("s_lshl_b32 %s, %s, 11" % (s(sT + 2), s(sW)))
    A("s_add_u32 %s, %s, %s" % (s(sKV), s(sKV), s(sT + 2)))
    A("s_add_u32 %s, %s, %d" % (s(sKVv), s(sKV), WS_KV + 8192))
    A("s_lshl_b32 %s, %s, 14" % (s(sKVt), s(sCU)))
    A("s_and_b32 %s, %s, 1" % (s(sT + 2), s(sW)))
    A("s_lshl_b32 %s, %s, 13" % (s(sT + 2), s(sT + 2)))
    A("s_add_u32 %s, %s, %s" % (s(sKVt), s(sKVt), s(sT + 2)))
    A("s_add_u32 %s, %s, %d" % (s(sKVt), s(sKVt), WS_KV + 1 * KVSTEP))
    A("s_cmp_lt_u32 %s, 2" % s(sW))
    A("s_cselect_b32 %s, 0x%x, %s" % (s(sKVt), OOB, s(sKVt)))
    if WS_KV:
        A("s_add_u32 %s, %s, %d" % (s(sKV), s(sKV), WS_KV))
    A("s_lshl_b32 %s, %s, 12" % (s(sKM), s(sCU)))
    A("s_lshl_b32 %s, %s, 10" % (s(sT + 2), s(sW)))
    A("s_add_u32 %s, %s, %s" % (s(sKM), s(sKM), s(sT + 2)))
    A("s_add_u32 %s, %s, %d" % (s(sKM), s(sKM), WS_KM))
    A("s_lshl_b32 %s, %s, 2" % (s(sT + 2), s(sCU)))
    A("s_add_u32 %s, %s, %s" % (s(sT + 2), s(sT + 2), s(sW)))
    A("s_mul_i32 %s, %s, %d" % (s(sWF), s(sT + 2), 18 * 2048))
    A("s_add_u32 %s, %s, %d" % (s(sWF), s(sWF), WS_WF))
    A("s_add_u32 %s, %s, %d" % (s(sL2a), s(sWF), 16 * 2048))
    A("s_mov_b32 %s, 0x%x" % (s(sC), f32bits(128 ** -0.5 * math.log2(math.e))))

    for i in range(4):
        A("v_mov_b32 %s, -1" % v(40 + i))
    for i in range(4):
        A("buffer_store_dwordx4 %s, %s, %s, %s offen offset:%d%s" % (v(40, 4), v(vL16), s(sWS, 4), s(sRd), 1024 * i, SC))
    for so in (sX1, sX2):
        A("buffer_store_dwordx2 %s, %s, %s, %s offen%s" % (v(40, 2), v(vRst), s(sWS, 4), s(so), SC))
    A("v_lshl_add_u32 %s, %s, 1, %s" % (v(t5), v(t3), v(t2)))
    A("v_mul_u32_u24 %s, 1152, %s" % (v(t5), v(t5)))
    A("v_lshl_add_u32 %s, %s, 3, %s" % (v(t5), v(t4), v(t5)))
    A("s_and_b32 %s, %s, 1" % (s(sT + 2), s(sUnit)))
    A("s_mul_i32 %s, %s, 4608" % (s(sT + 2), s(sT + 2)))
    A("s_bfe_u32 %s, %s, 0x60001" % (s(sT + 3), s(sUnit)))
    A("s_lshl_b32 %s, %s, 5" % (s(sT + 3), s(sT + 3)))
    A("s_add_u32 %s, %s, %s" % (s(sT + 2), s(sT + 2), s(sT + 3)))
    A("buffer_load_dwordx2 %s, %s, %s, %s offen" % (v(44, 2), v(t5), s(sM0, 4), s(sT + 2)))
    A("s_waitcnt vmcnt(0)")
    A("buffer_store_dwordx2 %s, %s, %s, %s offen%s" % (v(44, 2), v(vRst), s(sWS, 4), s(sX0), SC))
    A("s_waitcnt vmcnt(0)")
    A("s_barrier")
    lskip = A.new("noarr")
    A("s_cmp_lg_u32 %s, 0" % s(sW))
    A("s_cbranch_scc1 %s" % lskip)
    A("s_mov_b64 exec, 1")
    A("v_mov_b32 %s, 1" % v(40))
    A("s_lshl_b32 %s, 1, s3" % s(sT + 2))
    A("v_mov_b32 %s, %s" % (v(41), s(sT + 2)))
    A("buffer_atomic_or %s, off, %s, 0 offset:%d sc0" % (v(41), s(sDBG, 4), DBG_TMASK))
    A("s_waitcnt vmcnt(0)")
    A("buffer_atomic_add %s, off, %s, 0 offset:%d" % (v(40), s(sDBG, 4), DBG_TEAM))
    A("s_mov_b64 exec, -1")
    A.label(lskip)

    A("v_lshlrev_b32 %s, 2, %s" % (v(t1), v(t2)))
    A("v_sub_u32 %s, %s, %s" % (v(t1), v(lane), v(t1)))
    A("v_and_b32 %s, 15, %s" % (v(t1), v(t1)))
    A("v_lshlrev_b32 %s, 4, %s" % (v(t1), v(t1)))
    A("v_lshl_add_u32 %s, %s, 13, %s" % (v(vOffW), v(t2), v(t1)))
    A("s_lshl_b32 %s, %s, 8" % (s(sT + 2), s(sCU)))
    A("s_lshl_b32 %s, %s, 17" % (s(sT + 3), s(sW)))
    A("s_add_u32 %s, %s, %s" % (s(sT + 2), s(sT + 2), s(sT + 3)))
    A("v_add_u32 %s, %s, %s" % (v(vOffW), s(sT + 2), v(vOffW)))
    A("v_lshrrev_b32 %s, 3, %s" % (v(t1), v(lane)))
    A("v_mul_u32_u24 %s, 1152, %s" % (v(vOffO), v(t1)))
    A("v_and_b32 %s, 7, %s" % (v(t1), v(lane)))
    A("v_lshl_add_u32 %s, %s, 4, %s" % (v(vOffO), v(t1), v(vOffO)))
    A("s_mul_i32 %s, %s, 147456" % (s(sT + 2), s(sCU)))
    A("s_mul_i32 %s, %s, %d" % (s(sT + 3), s(sW), 32 * 1152))
    A("s_add_u32 %s, %s, %s" % (s(sT + 2), s(sT + 2), s(sT + 3)))
    A("v_add_u32 %s, %s, %s" % (v(vOffO), s(sT + 2), v(vOffO)))
    A("s_lshl_b32 %s, %s, 2" % (s(sT + 2), s(sW)))
    A("v_add_u32 %s, %s, %s" % (v(vColQK), s(sT + 2), v(t4)))
    A("s_lshl_b32 %s, %s, 3" % (s(sT + 2), s(sT)))
    A("s_add_u32 %s, %s, %s" % (s(sT + 2), s(sT + 2), s(sT + 1)))
    A("v_lshl_add_u32 %s, %s, 1, %s" % (v(vColV), v(t4), s(sT + 2)))
    A("v_lshrrev_b32 %s, 1, %s" % (v(t5), v(t2)))
    A("v_lshlrev_b32 %s, 4, %s" % (v(t5), v(t5)))
    A("v_and_b32 %s, 1, %s" % (v(t6), v(t2)))
    A("v_lshl_add_u32 %s, %s, 2, %s" % (v(t5), v(t6), v(t5)))
    A("v_lshrrev_b32 %s, 1, %s" % (v(t6), v(t3)))
    A("v_lshl_add_u32 %s, %s, 3, %s" % (v(t5), v(t6), v(t5)))
    A("v_and_b32 %s, 1, %s" % (v(t6), v(t3)))
    A("v_add_u32 %s, %s, %s" % (v(t5), v(t5), v(t6)))
    A("v_lshlrev_b32 %s, 8, %s" % (v(vTr8), v(t5)))
    A("v_lshlrev_b32 %s, 7, %s" % (v(t5), v(t5)))
    A("v_lshl_add_u32 %s, %s, 3, %s" % (v(vTrO), v(t4), v(t5)))
    A("s_lshl_b32 %s, %s, 5" % (s(sT + 2), s(sW)))
    A("v_add_u32 %s, %s, %s" % (v(vTrO), s(sT + 2), v(vTrO)))
    for col in (vColQK, vColV):
        A("v_lshl_add_u32 %s, %s, 2, %s" % (v(col), v(t6), v(col)))
        A("v_and_b32 %s, 15, %s" % (v(col), v(col)))
        A("v_lshl_add_u32 %s, %s, 4, %s" % (v(col), v(col), v(vTr8)))
    A("s_lshl_b32 %s, %s, 12" % (s(sT), s(sW)))

    chunks = [(m, G) for G in range(9) for m in range(2)] + [(2, G) for G in range(9)] + [(3, G) for G in range(9)]
    NSLOT = 10
    def issue_chunk(c):
        m, G = chunks[c]
        slot = c % NSLOT
        for j in range(4):
            A("s_add_u32 m0, %s, %d" % (s(sT), slot * 16384 + j * 1024))
            if m < 3:
                A("s_mov_b32 %s, %d" % (s(sT + 2), (64 * G + 4 * j) * 8192))
                A.vmem("buffer_load_dwordx4 %s, %s, %s offen lds" % (v(vOffW), s((sWQ, sWK, sWV)[m], 4), s(sT + 2)), ('c', c))
            else:
                A("s_mov_b32 %s, %d" % (s(sT + 2), 8 * j * 1152 + 128 * G))
                A.vmem("buffer_load_dwordx4 %s, %s, %s offen lds" % (v(vOffO), s(sWO, 4), s(sT + 2)), ('c', c))
    TMPF = [12, 20, 28, 36, 44]
    tmpi = [0]
    def get_frag(key, addrs, imms):
        if key in WREGS:
            for q in range(4):
                A.ds("ds_read_b64_tr_b16 %s, %s offset:%d" % (R(WREGS[key] + 2 * q, 2), v(addrs[q & 1]), imms[q]))
            return None
        t = TMPF[tmpi[0] % len(TMPF)]
        tmpi[0] += 1
        for q in range(4):
            A.ds("ds_read_b64_tr_b16 %s, %s offset:%d" % (v(t + 2 * q, 2), v(addrs[q & 1]), imms[q]))
        return (t, SPILL[key])
    def do_spill(lst):
        for t, sp in lst:
            A("s_add_u32 %s, %s, %d" % (s(sT + 2), s(sWF), sp * 2048))
            A.vmem("buffer_store_dwordx4 %s, %s, %s, %s offen" % (v(t, 4), v(vL16), s(sWS, 4), s(sT + 2)), ('sp', t))
            A.vmem("buffer_store_dwordx4 %s, %s, %s, %s offen offset:1024" % (v(t + 4, 4), v(vL16), s(sWS, 4), s(sT + 2)), ('sp', t))

    ljoin = A.new("initjoin")
    lcls = [A.new("cls%d" % i) for i in range(4)]
    for i in (1, 2, 3):
        A("s_cmp_eq_u32 %s, %d" % (s(sW), i))
        A("s_cbranch_scc1 %s" % lcls[i])
    for wc in range(4):
        A.label(lcls[wc])
        A.vm, A.lds = ['x'], []
        tmpi[0] = 0
        for c in range(NSLOT - 1):
            issue_chunk(c)
        for c in range(27):
            m, G = chunks[c]
            A.wait_vm(('c', c))
            A("s_barrier")
            issue_chunk(c + NSLOT - 1)
            A("v_add_u32 %s, %d, %s" % (v(vAd), (c % NSLOT) * 16384, v(vColQK if m < 2 else vColV)))
            A("v_xor_b32 %s, 0x80, %s" % (v(vAd2), v(vAd)))
            addrs = (vAd, vAd2)
            rows = [32 * (q >> 1) + 2 * (q & 1) for q in range(4)]
            j = [GOF(jj, wc) for jj in range(9)].index(G)
            sp = []
            for t in range(2):
                key = ('qk', j, 2 * m + t) if m < 2 else ('v', j, t)
                r = get_frag(key, addrs, [rows[q] * 256 + 8 * t for q in range(4)])
                if r:
                    sp.append(r)
            A.wait_ds()
            do_spill(sp)
        if wc < 3:
            A("s_branch %s" % ljoin)
    A.label(ljoin)
    A("s_waitcnt vmcnt(0)")
    A("s_barrier")
    A.vm, A.lds = [], []
    for G in range(9):
        A("v_add_u32 %s, %d, %s" % (v(vAd), ((27 + G) % NSLOT) * 16384, v(vTrO)))
        sp = []
        for c2 in range(2):
            r = get_frag(('o', 2 * G + c2), (vAd, vAd), [(64 * c2 + 32 * (q >> 1) + 2 * (q & 1)) * 128 for q in range(4)])
            if r:
                sp.append(r)
        A.wait_ds()
        do_spill(sp)
    for G in range(9):
        A("s_add_u32 %s, %s, %d" % (s(sPt + G), s(sP0), G * 32768))
    A("s_mov_b32 %s, 0x%x" % (s(sFlg), OOB))
    A("s_lshl_b32 %s, %s, 4" % (s(sFlgN), s(sCU)))
    A("s_lshl_b32 %s, %s, 2" % (s(sT + 2), s(sW)))
    A("s_add_u32 %s, %s, %s" % (s(sFlgN), s(sFlgN), s(sT + 2)))
    A("s_add_u32 %s, %s, %d" % (s(sFlgN), s(sFlgN), FL_PUB))
    A("s_mov_b64 %s, 1" % s(sOne, 2))
    A("s_waitcnt vmcnt(0)")
    A("s_barrier")
    A.vm, A.lds = [], []
    A("s_mul_i32 %s, %s, %d" % (s(sT), s(sW), L_WSTRIDE))
    for i in range(32):
        A("s_add_u32 m0, %s, %d" % (s(sT), L_W + i * 1024))
        A("s_add_u32 %s, %s, %d" % (s(sT + 2), s(sWF), i * 1024))
        A("buffer_load_dwordx4 %s, %s, %s offen lds" % (v(vL16), s(sWS, 4), s(sT + 2)))
    def kv_dma():
        return ["s_mov_b32 m0, %s" % s(sKXm),
                "buffer_load_dwordx4 %s, %s, %s offen sc1 lds" % (v(vL16), s(sWS, 4), s(sKV)),
                "buffer_load_dwordx4 %s, %s, %s offen offset:1024 sc1 lds" % (v(vL16), s(sWS, 4), s(sKV)),
                "s_mov_b32 m0, %s" % s(sVX),
                "buffer_load_dwordx4 %s, %s, %s offen sc1 lds" % (v(vL16), s(sWS, 4), s(sKVv)),
                "buffer_load_dwordx4 %s, %s, %s offen offset:1024 sc1 lds" % (v(vL16), s(sWS, 4), s(sKVv))]
    def land(key, half=None):
        sp = SPILL[key]
        for hh in ((0, 1) if half is None else (half,)):
            if sp < 16:
                A.ds("ds_read_b128 %s, %s offset:%d" % (v(LND + 8 * SLOT[key] + 4 * hh, 4), v(vWL), sp * 2048 + 1024 * hh), key)
            else:
                A.vmem("buffer_load_dwordx4 %s, %s, %s, %s offen offset:%d" % (v(LND + 8 * SLOT[key] + 4 * hh, 4), v(vL16), s(sWS, 4), s(sL2a), 1024 * hh), key)
    def zero(lo, hi):
        for r in range(lo, hi, 2):
            A("v_mov_b64 %s, 0" % v(r, 2))
    KVINC = 0 if "samekv" in opt else KVSTEP
    if hooks and 'kv_wait0' in hooks:
        hooks['kv_wait0'](A)
    A("s_waitcnt vmcnt(0)")
    for ch in QK_CHAIN:
        land(ch[0])
    zero(QK, RING)
    lp, lo = A.new("tb"), A.new("tbok")
    A.label(lp)
    A("buffer_load_dword %s, off, %s, 0 offset:%d sc1" % (v(vTmp), s(sDBG, 4), DBG_TEAM))
    A("s_waitcnt vmcnt(0)")
    A("v_cmp_gt_u32 vcc, 32, %s" % v(vTmp))
    A("s_cbranch_vccz %s" % lo)
    A("s_sub_u32 %s, %s, 1" % (s(sBud), s(sBud)))
    A("s_cbranch_scc0 %s" % lp)
    A("s_mov_b32 %s, 0" % s(sBud))
    A.label(lo)
    A("buffer_load_dword %s, off, %s, 0 offset:%d sc1" % (v(vTmp), s(sDBG, 4), DBG_TMASK))
    A("s_waitcnt vmcnt(0) lgkmcnt(0)")
    A("v_readfirstlane_b32 %s, %s" % (s(sT), v(vTmp)))
    A("s_nop 3")
    A("s_bcnt1_i32_b32 %s, %s" % (s(sT), s(sT)))
    lslow = A.new("slow")
    A("s_cmp_lg_u32 %s, 1" % s(sT))
    A("s_cbranch_scc1 %s" % lslow)
    def loop(SC):
        lentry, lexit = A.new("entry"), A.new("exit")
        lok1, lnored, lb4 = A.new("ok1"), A.new("nored"), A.new("b4")
        ls1, ls1w, l1a = A.new("s1"), A.new("s1w"), A.new("p1a")
        ls1r, ls2r, ls2ok, ls3r, ls3ok, l1r = A.new("s1r"), A.new("s2r"), A.new("s2ok"), A.new("s3r"), A.new("s3ok"), A.new("p1r")
        A("s_branch %s" % ls1)

        def SM(acc, afr, breg):
            A("v_smfmac_f32_16x16x64_bf16 %s, %s, %s, %s" % (v(acc, 4), v(afr, 4), breg, v(vIdx)))
        def MF(d, a_, b_, c_):
            A("v_mfma_f32_16x16x32_bf16 %s, %s, %s, %s" % (v(d, 4), v(a_, 4), v(b_, 4), c_))
        def fragaddr(j):
            if j == 8:
                return vL16, 8192
            return (vT0, vT1, vT2, vT2)[j & 3], (j & 4) * 1024 + (1024 if (j & 3) == 3 else 0)
        def ringrd(j, slot):
            b, o = fragaddr(j)
            A.ds("ds_read_b128 %s, %s offset:%d" % (v(RING + 4 * slot, 4), v(b), L_MEM + o), ('ring', j))
        def mbload(dst, j):
            if j == 8:
                A("buffer_load_dwordx4 %s, %s, %s, %s offen sc1" % (v(dst, 4), v(vL16), s(sWS, 4), s(sX8)))
            else:
                A("buffer_load_dwordx4 %s, %s, %s, %s offen sc1" % (v(dst, 4), v(fragaddr(j)[0]), s(sWS, 4), s(sX4 if j & 4 else sX0)))
        def check(base, n):
            A("v_max3_u32 %s, %s, %s, %s" % (v(vTmp), v(base), v(base + 1), v(base + 2)))
            for i in range(3, n - 1, 2):
                A("v_max3_u32 %s, %s, %s, %s" % (v(vTmp), v(vTmp), v(base + i), v(base + i + 1)))
            A("v_max_u32 %s, %s, %s" % (v(vTmp), v(vTmp), v(base + n - 1)))
            A("v_cmp_eq_u32 vcc, -1, %s" % v(vTmp))
        def budget(lagain, lgiveup):
            A("s_sub_u32 %s, %s, 1" % (s(sBud), s(sBud)))
            A("s_cbranch_scc0 %s" % lagain)
            A("s_mov_b32 %s, 0" % s(sBud))
            A("s_branch %s" % lgiveup)
        PLA = [12, 16, 20, 24]
        RACC, SEL = 28, 32
        def poll1_issue(PL):
            for i in range(4):
                A("buffer_load_dwordx4 %s, %s, %s, %s offen offset:%d sc1" % (v(PL[i], 4), v(vL16), s(sWS, 4), s(sRd), 1024 * i))
        def wait_many(keys):
            idx = [i for i, t in enumerate(A.lds) if t in keys]
            if idx:
                A.wait_ds(A.lds[idx[-1]])
        def endstep():
            for ch in QK_CHAIN:
                land(ch[0])
            A("s_mov_b32 %s, %s" % (s(sT), s(sX0)))
            A("s_mov_b32 %s, %s" % (s(sX0), s(sX1)))
            A("s_mov_b32 %s, %s" % (s(sX1), s(sX2)))
            A("s_mov_b32 %s, %s" % (s(sX2), s(sT)))
        PUB = "" if "pubplain" in opt else " sc1"
        def optval(name, dflt):
            for o in opt:
                if o.startswith(name + "="):
                    return int(o.split("=")[1])
            return dflt
        LWAIT, S1DEPTH = optval("lwait", 3), optval("s1d", 2)
        sX4, sX8 = sP1, sP2
        F8 = RING + 4
        PLB = [LND, LND + 4, LND + 8, LND + 12]
        def reduce_body(PL, n_after):
            A("s_waitcnt vmcnt(%d)" % n_after)
            MF(RACC, SEL, PL[0], "0")
            A("v_bitop3_b32 %s, %s, %s, %s bitop3:0x7e" % (v(vTmp), v(PL[0]), v(PL[1]), s(sPh)))
            A("v_bitop3_b32 %s, %s, %s, %s bitop3:0x7e" % (v(45), v(PL[2]), v(PL[3]), s(sPh)))
            MF(RACC, SEL, PL[1], v(RACC, 4))
            A("v_bitop3_b32 %s, %s, %s, 1 bitop3:0xa8" % (v(vTmp), v(vTmp), v(45)))
            A("v_cmp_ne_u32 vcc, 0, %s" % v(vTmp))
            MF(RACC, SEL, PL[2], v(RACC, 4))
            MF(RACC, SEL, PL[3], v(RACC, 4))
        def mksel():
            for u in range(4):
                A("v_cndmask_b32 %s, 0, %s, %s" % (v(SEL + u), v(vSelV), s(sSel + 2 * u, 2)))
        def s1load(base):
            mbload(base, 0)
            mbload(base + 4, 1)
        def rotate():
            A("s_mov_b32 %s, %s" % (s(sT), s(sX0)))
            A("s_mov_b32 %s, %s" % (s(sX0), s(sX1)))
            A("s_mov_b32 %s, %s" % (s(sX1), s(sX2)))
            A("s_mov_b32 %s, %s" % (s(sX2), s(sT)))
            A("s_add_u32 %s, %s, 4096" % (s(sX4), s(sX0)))
            A("s_add_u32 %s, %s, 8192" % (s(sX8), s(sX0)))
        lgo1 = A.new("go1")
        A.label(lnored)
        A("s_cmp_eq_u32 %s, -1" % s(sUnit))
        A("s_waitcnt vmcnt(%d)" % LWAIT)
        A("s_cbranch_scc0 %s" % lgo1)
        rotate()
        for i in range(0, 8, 2):
            A("v_mov_b64 %s, -1" % v(RING + i, 2))
        if "noflag" in opt:
            A("s_waitcnt vmcnt(0)")
        else:
            lf = A.new("flag")
            A("v_mov_b32 %s, %d" % (v(46), L_FLAG))
            A.label(lf)
            A("ds_read_b32 %s, %s" % (v(vTmp), v(46)))
            A("s_waitcnt lgkmcnt(0)")
            A("v_cmp_eq_u32 vcc, %s, %s" % (s(sStep), v(vTmp)))
            A("s_cbranch_vccnz %s" % lb4)
            budget(lf, lb4)
        A("s_branch %s" % lb4)
        def s2load():
            mbload(VACC, 4)
            A("buffer_load_dword %s, %s, %s, %s offen sc1" % (v(VACC + 4), v(VACC + 5), s(sWS, 4), s(sX8)))
        def s2check():
            A("v_max3_u32 %s, %s, %s, %s" % (v(vTmp), v(VACC), v(VACC + 1), v(VACC + 2)))
            A("v_max3_u32 %s, %s, %s, %s" % (v(vTmp), v(vTmp), v(VACC + 3), v(VACC + 4)))
            A("v_cmp_eq_u32 vcc, -1, %s" % v(vTmp))
        A.label(ls2r)
        if "tt" in opt:
            A("s_add_u32 s88, s88, 1")
        s2load()
        A("s_waitcnt vmcnt(2)")
        s2check()
        A("s_cbranch_vccz %s_d" % ls2r)
        budget(ls2r, ls2r + "_d")
        A.label(ls2r + "_d")
        A("s_waitcnt vmcnt(0)")
        A("s_branch %s" % ls2ok)
        A.label(ls1)
        A("s_add_u32 %s, %s, 4096" % (s(sX4), s(sX0)))
        A("s_add_u32 %s, %s, 8192" % (s(sX8), s(sX0)))
        s1load(RING)
        A("v_lshrrev_b32 %s, 2, %s" % (v(VACC + 5), v(vT0)))
        A("s_waitcnt vmcnt(0)")
        A("s_branch %s" % ls1w)
        A(".p2align 6")
        A.label(ls1r)
        A("s_sub_u32 %s, %s, 1" % (s(sBud), s(sBud)))
        A("s_cbranch_scc1 %s_give" % ls1r)
        s1load(RING)
        A("s_waitcnt vmcnt(%d)" % S1DEPTH)
        A.label(ls1w)
        check(RING, 8)
        A("s_cbranch_vccnz %s" % ls1r)
        A.label(lentry)
        A.lds, A.vm = [], []
        if "tt" in opt:
            lt = A.new("tt")
            A("s_cmp_lg_u32 %s, 3" % s(sStep))
            A("s_cbranch_scc1 %s" % lt)
            A("s_memtime s[92:93]")
            A.label(lt)
        stamp()
        KXR = {(tl, ks): LND + 8 * (ks % 3) + 4 * tl for tl in range(2) for ks in range(4)}
        def kxrd(tl, ks):
            A.ds("ds_read_b128 %s, %s offset:%d" % (v(KXR[(tl, ks)], 4), v(vL16), L_KX + (4 * tl + ks) * 1024), ('kx', tl, ks))
        AREG = {0: RING, 1: RING + 4, 2: RING + 8, 3: RING, 4: VACC, 5: RING + 4, 6: RING + 8, 7: RING, 8: RING + 4}
        def Q(j, t):
            key = ('qk', j, t)
            SM(QK + 4 * t, AREG[j], R(WREGS[key], 8) if key in WREGS else v(LND + 8 * SLOT[key], 8))
        L = lambda j, t, hh: land(('qk', j, t), hh)
        def touch(o):
            if "notouch" not in opt:
                A.vmem("buffer_load_dword %s, %s, %s offen offset:%d sc1 lds" % (v(VACC + 6), s(sWS, 4), s(sKVt), o), 'touch')
        kd = kv_dma()
        A.ds("ds_write_b128 %s, %s offset:%d" % (v(vT0), v(RING, 4), L_MEM), 'w1')
        s2load()
        Q(0, 0); L(3, 0, 0)
        Q(0, 1); L(3, 0, 1)
        Q(0, 2); L(5, 2, 0)
        Q(0, 3); L(5, 2, 1)
        A.wait_ds('w1')
        Q(1, 0)
        A("s_barrier")
        ringrd(2, 2)
        stamp()
        Q(1, 1); L(3, 1, 0)
        Q(1, 2); L(3, 1, 1)
        if "mega" in opt:
            A("v_cndmask_b32 %s, 2.0, 0, %s" % (v(VACC + 7), s(sOne, 2)))
        if hooks and 'after_b1' in hooks:
            hooks['after_b1'](A)
        Q(1, 3); A(kd[0])
        A.wait_ds(('ring', 2))
        Q(2, 0); A("s_waitcnt vmcnt(4)")
        ringrd(3, 0)
        Q(2, 1); A("v_lshlrev_b32 %s, 3, %s" % (v(VACC + 6), v(vL16)))
        Q(2, 2); A("s_add_u32 %s, %s, 1" % (s(sStep), s(sStep)))
        Q(2, 3)
        if "mega" in opt:
            A.vmem("buffer_store_dword %s, %s, %s, %s offen sc1" % (v(vIdx), v(VACC + 7), s(sWS, 4), s(sFlg)), 'flag')
        A.wait_ds(('ring', 3))
        Q(3, 0); A("s_waitcnt vmcnt(%d)" % (3 if "mega" in opt else 2))
        s2check()
        Q(3, 1); L(6, 0, 0)
        Q(3, 2); L(6, 0, 1)
        A("s_cbranch_vccnz %s" % ls2r)
        A.label(ls2ok)
        A.ds("ds_write_b128 %s, %s offset:%d" % (v(vT0), v(VACC, 4), L_MEM + 4096), 'w2')
        Q(3, 3)
        A.ds("ds_write_b32 %s, %s offset:%d" % (v(VACC + 5), v(VACC + 4), L_MEM + 8192), 'w2')
        Q(4, 0); A.vmem(kd[1], 'kdma')
        Q(4, 1); L(6, 1, 0)
        Q(4, 2); L(6, 1, 1)
        A.wait_ds('w2')
        A("s_barrier")
        ringrd(5, 1)
        ringrd(6, 2)
        Q(4, 3); ringrd(7, 0)
        A.vmem(kd[2], 'kdma')
        A(kd[3])
        A.wait_ds(('ring', 5))
        Q(5, 0); A.vmem(kd[4], 'vdma')
        Q(5, 1); A.wait_vm(L2KEY)
        Q(5, 2); L(8, 1, 0)
        Q(5, 3); ringrd(8, 1)
        A.wait_ds(('ring', 7))
        Q(6, 0); A.vmem(kd[5], 'vdma')
        Q(6, 1); L(8, 1, 1)
        A("s_mov_b32 m0, %d" % (L_SCR + 512))
        Q(6, 2); L(8, 2, 0)
        if hooks and 'kv_wait' in hooks:
            hooks['kv_wait'](A)
        Q(6, 3); touch(0)
        Q(7, 0); L(8, 2, 1)
        Q(7, 1); L(8, 3, 0)
        Q(7, 2); L(8, 3, 1)
        Q(7, 3); A("v_mov_b64 %s, 0" % v(VACC, 2))
        A.wait_ds(('qk', 8, 1))
        Q(8, 0); A("v_mov_b64 %s, 0" % v(VACC + 2, 2))
        Q(8, 1); A("v_mov_b64 %s, 0" % v(VACC + 4, 2))
        A.wait_ds(('qk', 8, 3))
        Q(8, 2); A("v_mov_b64 %s, 0" % v(VACC + 6, 2))
        Q(8, 3); A("v_lshrrev_b32 %s, 2, %s" % (v(vTmp), v(vL16)))
        stamp()
        VA = {7: RING, 8: RING + 4, 6: RING + 8, 0: RING, 1: RING + 4, 2: RING + 8, 3: RING, 4: RING + 4, 5: RING + 8}
        def VS(j, t):
            A.wait_ds(('ring', j))
            SM(VACC + 4 * t, VA[j], R(WREGS[('v', j, t)], 8))
        VS(7, 0); A("s_add_u32 %s, %s, %d" % (s(sKVt), s(sKVt), KVINC))
        VS(7, 1); ringrd(0, 0)
        def fin(base):
            A("v_add_f32 %s, %s, %s" % (v(base), v(base), v(base + 1)))
            A("v_add_f32 %s, %s, %s" % (v(base + 2), v(base + 2), v(base + 3)))
            A("v_add_f32 %s, %s, %s" % (v(base + 4), v(base + 4), v(base + 5)))
            A("v_add_f32 %s, %s, %s" % (v(base + 6), v(base + 6), v(base + 7)))
            A("v_cvt_pk_bf16_f32 %s, %s, %s" % (v(base), v(base), v(base + 4)))
            A("v_cvt_pk_bf16_f32 %s, %s, %s" % (v(base + 1), v(base + 2), v(base + 6)))
        def finw(base):
            o = 8 if base == QK else 0
            A.ds("ds_write2_b32 %s, %s, %s offset0:%d offset1:%d" % (v(vFw), v(base), v(base + 1), o, o + 4), 'fw')
        def pub(reg, off):
            if "nopub" not in opt:
                A.vmem("buffer_store_dword %s, %s, %s, %s offen offset:%d%s" % (v(reg), v(vTmp), s(sWS, 4), s(sKM), off, PUB), 'pub')
        fin(QK)
        fin(QK + 8)
        finw(QK)
        finw(QK + 8)
        VS(8, 0); pub(QK + 8, 0)
        VS(8, 1); ringrd(1, 1)
        VS(6, 0); pub(QK + 9, 256)
        VS(6, 1); A.wait_vm('kdma')
        A.wait_ds('fw')
        A("s_barrier")
        for ks in range(4):
            A.ds("ds_read_b128 %s, %s offset:%d" % (v(QK + 4 * ks, 4), v(vL16), L_F + ks * FSTR), ('f', ks))
        ringrd(2, 2)
        stamp()
        VS(0, 0)
        if "mega" in opt:
            A("s_mov_b32 %s, %s" % (s(sFlg), s(sFlgN)))
        VS(0, 1); ringrd(3, 0)
        VS(1, 0)
        if "mega" in opt:
            A("s_add_u32 %s, %s, 512" % (s(sFlgN), s(sFlgN)))
        VS(1, 1); ringrd(4, 1)
        VS(2, 0); kxrd(0, 0)
        VS(2, 1); ringrd(5, 2)
        VS(3, 0); kxrd(1, 0)
        VS(3, 1); kxrd(0, 1)
        VS(4, 0); kxrd(1, 1)
        VS(4, 1); kxrd(0, 2)
        VS(5, 0); kxrd(1, 2)
        VS(5, 1)
        T1, T2, T0 = RING, RING + 4, RING + 8
        ONES, LACC, OACC = QK + 8, QK + 12, LND + 16
        def S(i, ks):
            d, a_ = ((T1, KXR[(0, ks)]), (T2, KXR[(1, ks)]), (T0, QK + 4 * ks))[i]
            MF(d, a_, QK + 4 * ks, "0" if ks == 0 else v(d, 4))
        def vfin(t, part):
            b = VACC + 4 * t
            if part == 0:
                A("v_add_f32 %s, %s, %s" % (v(b), v(b), v(b + 1)))
                A("v_add_f32 %s, %s, %s" % (v(b + 2), v(b + 2), v(b + 3)))
            else:
                A("v_cvt_pk_bf16_f32 %s, %s, %s" % (v(b), v(b), v(b + 2)))
                A("v_mov_b32 %s, 0" % v(b + 1))
        def vxrd(t):
            A.ds("ds_read_b128 %s, %s offset:%d" % (v(QK + 4 * t, 4), v(vWL), 32768 + t * 1024), 'vx')
        A.wait_ds(('kx', 1, 0))
        S(0, 0); kxrd(0, 3)
        S(1, 0); kxrd(1, 3)
        A.wait_vm('vdma')
        S(2, 0); vxrd(0)
        A.wait_ds(('kx', 1, 1))
        S(0, 1); A("s_cmp_eq_u32 %s, %d" % (s(sStep), nsteps))
        S(1, 1); land(('o', 1), 0)
        vfin(0, 0)
        S(2, 1); land(('o', 1), 1)
        vfin(0, 1)
        A.wait_ds(('kx', 1, 2))
        S(0, 2); vxrd(1)
        vfin(1, 0)
        S(1, 2); pub(VACC, 512)
        vfin(1, 1)
        S(2, 2); A.wait_ds(('kx', 1, 3))
        S(0, 3); pub(VACC + 4, 768)
        S(1, 3); land(('o', 0), 0)
        S(2, 3); land(('o', 0), 1)
        A("s_cbranch_scc1 %s" % lexit)
        A("s_add_u32 %s, %s, %d" % (s(sKM), s(sKM), 32 * 4096))
        A("v_mov_b32 %s, 0x3f803f80" % v(ONES))
        stamp()
        sv = [T1, T1 + 1, T1 + 2, T1 + 3, T2, T2 + 1, T2 + 2, T2 + 3, T0, T0 + 1]
        m1, m2 = OACC, OACC + 1
        A("v_max3_f32 %s, %s, %s, %s" % (v(m1), v(sv[0]), v(sv[1]), v(sv[2])))
        A("v_mov_b32 %s, 0x3f803f80" % v(ONES + 1))
        A("v_max3_f32 %s, %s, %s, %s" % (v(m1), v(m1), v(sv[3]), v(sv[4])))
        A("v_max3_f32 %s, %s, %s, %s" % (v(m1), v(m1), v(sv[5]), v(sv[6])))
        A("v_max3_f32 %s, %s, %s, %s" % (v(m1), v(m1), v(sv[7]), v(sv[8])))
        A("v_max_f32 %s, %s, %s" % (v(m2), v(m1), v(sv[9])))
        A("v_max_f32 %s, %s, %s" % (v(m1), v(m1), v(sv[9])))
        A("v_mov_b32 %s, 0x3f803f80" % v(ONES + 2))
        A("v_mov_b32 %s, 0x3f803f80" % v(ONES + 3))
        A("v_permlane32_swap_b32 %s, %s" % (v(m1), v(m2)))
        A("v_max_f32 %s, %s, %s" % (v(m1), v(m1), v(m2)))
        A("v_mov_b32 %s, %s" % (v(m2), v(m1)))
        A("s_nop 1")
        A("v_permlane16_swap_b32 %s, %s" % (v(m1), v(m2)))
        A("v_max_f32 %s, %s, %s" % (v(m1), v(m1), v(m2)))
        A("v_mul_f32 %s, %s, %s" % (v(m1), s(sC), v(m1)))
        for x in sv:
            A("v_fma_f32 %s, %s, %s, -%s" % (v(x), v(x), s(sC), v(m1)))
        P, Pm = T1, T0
        for x in sv[:8]:
            A("v_exp_f32 %s, %s" % (v(x), v(x)))
        A("v_cvt_pk_bf16_f32 %s, %s, %s" % (v(P), v(T1), v(T1 + 1)))
        A("v_cvt_pk_bf16_f32 %s, %s, %s" % (v(P + 1), v(T1 + 2), v(T1 + 3)))
        A("v_cvt_pk_bf16_f32 %s, %s, %s" % (v(P + 2), v(T2), v(T2 + 1)))
        A("v_cvt_pk_bf16_f32 %s, %s, %s" % (v(P + 3), v(T2 + 2), v(T2 + 3)))
        A("v_exp_f32 %s, %s" % (v(T0), v(T0)))
        A.wait_ds('vx')
        A("v_exp_f32 %s, %s" % (v(T0 + 1), v(T0 + 1)))
        MF(LACC, ONES, P, "0")
        A("v_cvt_pk_bf16_f32 %s, %s, %s" % (v(Pm), v(T0), v(T0 + 1)))
        A("v_mov_b32 %s, 0" % v(Pm + 1))
        MF(OACC, QK, P, "0")
        MF(OACC + 4, QK + 4, P, "0")
        A("v_mfma_f32_16x16x16_bf16 %s, %s, %s, %s" % (v(LACC, 4), v(ONES, 2), v(Pm, 2), v(LACC, 4)))
        for t in range(2):
            A("v_mfma_f32_16x16x16_bf16 %s, %s, %s, %s" % (v(OACC + 4 * t, 4), v(VACC + 4 * t, 2), v(Pm, 2), v(OACC + 4 * t, 4)))
        zero(12, 24)
        A("v_rcp_f32 %s, %s" % (v(vTmp), v(LACC)))
        A("v_mov_b64 %s, 0" % v(24, 2))
        for i in range(8):
            A("v_mul_f32 %s, %s, %s" % (v(OACC + i), v(OACC + i), v(vTmp)))
        OP = T2
        for i in range(4):
            A("v_cvt_pk_bf16_f32 %s, %s, %s" % (v(OP + i), v(OACC + 2 * i), v(OACC + 2 * i + 1)))
        A.ds("ds_write_b128 %s, %s" % (v(vOw), v(OP, 4)), 'ow')
        A("v_mov_b64 %s, -1" % v(36, 2))
        A("v_cndmask_b32 %s, 0, 1, %s" % (v(vTmp), s(sTagM, 2)))
        A.vmem("buffer_store_dwordx2 %s, %s, %s, %s offen%s" % (v(36, 2), v(vRst), s(sWS, 4), s(sX2), SC), 'rst')
        zero(26, 36)
        A.wait_ds('ow')
        A("s_barrier")
        OF = LND + 16
        for c2 in range(2):
            A.ds("ds_read_b128 %s, %s offset:%d" % (v(OF + 4 * c2, 4), v(vL16), L_O + c2 * 1024), ('of', c2))
        stamp()
        zero(36, 48)
        def wacc(tile):
            return 12 + 4 * tile
        def W(p, c2):
            key = ('o', 2 * p + c2)
            wait_many([('of', c2), key])
            SM(wacc(p), OF + 4 * c2, R(WREGS[key], 8) if key in WREGS else v(LND + 8 * SLOT[key], 8))
        def e1(tile):
            b = wacc(tile)
            A("v_add_f32 %s, %s, %s" % (v(b + 1), v(b), v(b + 1)))
            A("v_add_f32 %s, %s, %s" % (v(b + 3), v(b + 2), v(b + 3)))
        def e2(tile):
            b = wacc(tile)
            A("v_cvt_pk_bf16_f32 %s, %s, %s" % (v(b), v(b + 1), v(b + 3)))
            A("v_bfi_b32 %s, %s, %s, %s" % (v(b), v(vTmp), s(sPh), v(b)))
        def e3(tile):
            A("buffer_store_dword %s, %s, %s, %s offen%s" % (v(wacc(tile)), v(vPst), s(sWS, 4), s(sPt + tile), SC))
        LO = lambda n, hh: land(('o', n), hh)
        W(0, 0); LO(8, 0)
        W(0, 1); LO(8, 1)
        W(1, 0); LO(9, 0)
        W(1, 1); LO(9, 1)
        W(2, 0); A("s_add_u32 %s, %s, %d" % (s(sKV), s(sKV), KVINC))
        A("s_add_u32 %s, %s, %d" % (s(sKVv), s(sKVv), KVINC))
        e1(0)
        W(2, 1); e2(0)
        for p in range(3, 9):
            W(p, 0); e3(p - 3)
            if p == 5:
                LO(16, 0)
            e1(p - 2)
            W(p, 1)
            if p == 4:
                LO(16, 1)
            if p == 5:
                LO(17, 0)
            if p == 6:
                LO(17, 1)
            if p == 7:
                A("s_cmp_ge_u32 %s, 32" % s(sUnit))
            e2(p - 2)
        e3(6)
        e1(7); e2(7); e3(7)
        e1(8); e2(8); e3(8)
        A("s_cbranch_scc1 %s" % lnored)
        A.label(lgo1)
        poll1_issue(PLA)
        stamp()
        mksel()
        rotate()
        for i in range(0, 8, 2):
            A("v_mov_b64 %s, -1" % v(RING + i, 2))
        A("v_mov_b32 %s, %d" % (v(46), L_FLAG))
        A("v_mov_b32 %s, %s" % (v(47), s(sStep)))
        for i in range(optval("p1g", 0)):
            A("s_nop 7")
        if "p1one" in opt:
            reduce_body(PLA, 0)
            A("s_cbranch_vccz %s" % lok1)
            poll1_issue(PLA)
            A("s_nop 15")
        poll1_issue(PLB)
        A.label(l1a)
        reduce_body(PLA, 4)
        A("s_cbranch_vccz %s" % lok1)
        if "tt" in opt:
            A("s_add_u32 s87, s87, 1")
        poll1_issue(PLA)
        reduce_body(PLB, 4)
        A("s_cbranch_vccz %s" % lok1)
        if "tt" in opt:
            A("s_add_u32 s87, s87, 1")
        poll1_issue(PLB)
        A("s_sub_u32 %s, %s, 1" % (s(sBud), s(sBud)))
        A("s_cbranch_scc0 %s" % l1a)
        A("s_mov_b32 %s, 0" % s(sBud))
        A.label(lok1)
        A("ds_write_b32 %s, %s" % (v(46), v(47)))
        if "early1" in opt:
            s1load(RING)
            A("s_nop 3")
        else:
            A("s_nop 5")
        for i in range(4):
            A("v_add_f32_dpp %s, %s, %s row_ror:8 row_mask:0xf bank_mask:0xf" % (v(RACC + i), v(RACC + i), v(RACC + i)))
        A("v_cvt_pk_bf16_f32 %s, %s, %s" % (v(44), v(RACC), v(RACC + 1)))
        A("v_cvt_pk_bf16_f32 %s, %s, %s" % (v(45), v(RACC + 2), v(RACC + 3)))
        A("buffer_store_dwordx2 %s, %s, %s, %s offen%s" % (v(44, 2), v(vRst), s(sWS, 4), s(sX0), SC))
        stamp()
        A.label(lb4)
        s1load(RING)
        A("s_waitcnt vmcnt(%d)" % (5 if "early1" in opt else 3))
        for ch in QK_CHAIN:
            land(ch[0])
        zero(QK, RING)
        A("v_lshrrev_b32 %s, 2, %s" % (v(VACC + 5), v(vT0)))
        A("s_xor_b32 %s, %s, 1" % (s(sPh), s(sPh)))
        A("s_waitcnt lgkmcnt(0)")
        if stamps:
            ldump = A.new("dump")
            A("s_cmp_eq_u32 %s, 41" % s(sStep))
            A("s_cbranch_scc1 %s" % ldump)
            A("s_cmp_eq_u32 %s, 42" % s(sStep))
            A("s_cbranch_scc0 %s" % ls1w)
            A.label(ldump)
            for i in range(10):
                A("v_writelane_b32 %s, %s, %d" % (v(vTmp), s(sStamp + 2 * i), i))
            A("v_writelane_b32 %s, %s, %d" % (v(vTmp), s(sBud), 15))
            A("s_lshl_b32 %s, %s, 2" % (s(sT), s(sCU)))
            A("s_add_u32 %s, %s, %s" % (s(sT), s(sT), s(sW)))
            A("s_lshl_b32 %s, %s, 1" % (s(sT), s(sT)))
            A("s_add_u32 %s, %s, %s" % (s(sT), s(sT), s(sStep)))
            A("s_sub_u32 %s, %s, 41" % (s(sT), s(sT)))
            A("s_lshl_b32 %s, %s, 10" % (s(sT), s(sT)))
            A("s_add_u32 %s, %s, %d" % (s(sT), s(sT), WS_DBG))
            A("buffer_store_dword %s, %s, %s, %s offen" % (v(vTmp), v(vL16), s(sWS, 4), s(sT)))
            A("s_waitcnt vmcnt(0)")
        A("s_branch %s" % ls1w)
        A.label(ls1r + "_give")
        A("s_mov_b32 %s, 0" % s(sBud))
        A("s_branch %s" % lentry)
        A.label(lexit)
        if "mega" in opt:
            A("s_waitcnt vmcnt(0)")
            A("v_cndmask_b32 %s, 2.0, 0, %s" % (v(VACC + 7), s(sOne, 2)))
            A("buffer_store_dword %s, %s, %s, %s offen sc1" % (v(vIdx), v(VACC + 7), s(sWS, 4), s(sFlg)))
        if "tt" in opt:
            A("s_memtime s[94:95]")
            A("s_waitcnt lgkmcnt(0)")
            A("s_sub_u32 s94, s94, s92")
            A("s_sub_u32 s92, s92, s90")
            A("v_writelane_b32 %s, s92, 0" % v(vTmp))
            A("v_writelane_b32 %s, s94, 1" % v(vTmp))
            A("v_writelane_b32 %s, %s, 2" % (v(vTmp), s(sBud)))
            for i in range(3):
                A("v_writelane_b32 %s, s%d, %d" % (v(vTmp), 87 + i, 3 + i))
            A("s_lshl_b32 %s, %s, 2" % (s(sT), s(sCU)))
            A("s_add_u32 %s, %s, %s" % (s(sT), s(sT), s(sW)))
            A("s_lshl_b32 %s, %s, 10" % (s(sT), s(sT)))
            A("s_add_u32 %s, %s, %d" % (s(sT), s(sT), WS_DBG + (1 << 19)))
            A("buffer_store_dword %s, %s, %s, %s offen" % (v(vTmp), v(vL16), s(sWS, 4), s(sT)))
        A("s_waitcnt vmcnt(0)")

    loop(" sc1" if "forcesc1" in opt else "")
    A("s_endpgm")
    A.label(lslow)
    nst[0] = 0
    loop(" sc1")
```

```python
from asmlib import *
from layout import *
import struct, math

def f32bits(x):
    return struct.unpack("<I", struct.pack("<f", x))[0]

sWS, sW1, sW2, sW3, sWO, sXS, sDBG = 4, 8, 12, 16, 20, 24, 28
sWid, sW, sSl, sRep, sSeg, sBud = 32, 33, 34, 35, 36, 37
sA0 = 38
sT = 60
sMask = 64
sSel = 80
vL16, vLane, vG, vC, vX, vTmp, vFl = 0, 1, 2, 3, 4, 5, 6
NSLOT = 9
L_SCR = 147456

def build_srd(A, d, karg, nbytes):
    A("s_load_dwordx2 %s, s[0:1], %d" % (s(d, 2), karg))
    A("s_waitcnt lgkmcnt(0)")
    A("s_and_b32 %s, %s, 0xffff" % (s(d + 1), s(d + 1)))
    A("s_mov_b32 %s, %d" % (s(d + 2), nbytes))
    A("s_mov_b32 %s, 0x20000" % s(d + 3))

def wait_flags(A, voff, soff, srd=sWS, cmp_ge=None, imm=0):
    lp, ok = A.new("wf"), A.new("wfok")
    A.label(lp)
    if voff is None:
        A("buffer_load_dword %s, off, %s, %s offset:%d sc1" % (v(vTmp), s(srd, 4), soff, imm))
    else:
        A("buffer_load_dword %s, %s, %s, %s offen offset:%d sc1" % (v(vTmp), v(voff), s(srd, 4), soff, imm))
    A("s_waitcnt vmcnt(0)")
    if cmp_ge is None:
        A("v_cmp_eq_u32 vcc, 0, %s" % v(vTmp))
    else:
        A("v_cmp_gt_u32 vcc, %d, %s" % (cmp_ge, v(vTmp)))
    A("s_cbranch_vccz %s" % ok)
    A("s_sleep 2")
    A("s_sub_u32 %s, %s, 1" % (s(sBud), s(sBud)))
    A("s_cbranch_scc0 %s" % lp)
    A("s_mov_b32 %s, 0" % s(sBud))
    A.label(ok)
    A.vm = []

def set_flag(A, soff, wave0_only=True):
    sk = A.new("sf")
    if wave0_only:
        A("s_cmp_lg_u32 %s, 0" % s(sW))
        A("s_cbranch_scc1 %s" % sk)
    A("s_mov_b64 exec, 1")
    A("v_mov_b32 %s, 1" % v(vTmp))
    A("buffer_store_dword %s, off, %s, %s sc1" % (v(vTmp), s(sWS, 4), soff))
    A("s_mov_b64 exec, -1")
    A.label(sk)

def MF(A, d, a_, b_, c_):
    A("v_mfma_f32_16x16x32_bf16 %s, %s, %s, %s" % (d, a_, b_, c_))

def stage(A, chunks):
    A("s_lshl_b32 %s, %s, 12" % (s(sT), s(sW)))
    def issue(c):
        srd, voff, so, _ = chunks[c]
        for j in range(4):
            A("s_add_u32 m0, %s, %d" % (s(sT), (c % NSLOT) * 16384 + j * 1024))
            A("s_mov_b32 %s, %d" % (s(sT + 2), so[j]))
            A.vmem("buffer_load_dwordx4 %s, %s, %s offen lds" % (v(voff), s(srd, 4), s(sT + 2)), ('c', c))
    n = len(chunks)
    for c in range(min(NSLOT - 1, n)):
        issue(c)
    for c in range(n):
        A.wait_vm(('c', c))
        A("s_barrier")
        if c + NSLOT - 1 < n:
            issue(c + NSLOT - 1)
        chunks[c][3]((c % NSLOT) * 16384)
        A.wait_ds()
    A("s_barrier")

def wide_off(A, dst, t1, rowstride, s_extra):
    A("v_lshlrev_b32 %s, 2, %s" % (v(t1), v(vG)))
    A("v_sub_u32 %s, %s, %s" % (v(t1), v(vLane), v(t1)))
    A("v_and_b32 %s, 15, %s" % (v(t1), v(t1)))
    A("v_lshlrev_b32 %s, 4, %s" % (v(t1), v(t1)))
    A("v_mul_u32_u24 %s, %d, %s" % (v(dst), rowstride, v(vG)))
    A("v_add_u32 %s, %s, %s" % (v(dst), v(dst), v(t1)))
    A("s_mul_i32 %s, %s, %d" % (s(sT + 3), s(sW), 16 * rowstride))
    A("s_add_u32 %s, %s, %s" % (s(sT + 3), s(sT + 3), s_extra))
    A("v_add_u32 %s, %s, %s" % (v(dst), s(sT + 3), v(dst)))

def wide_tr(A, dst, t1, s_col, ccmul):
    A("v_mul_u32_u24 %s, %d, %s" % (v(t1), ccmul, v(vX)))
    A("v_lshl_add_u32 %s, %s, 2, %s" % (v(t1), v(vC), v(t1)))
    A("v_add_u32 %s, %s, %s" % (v(t1), s_col, v(t1)))
    A("v_and_b32 %s, 15, %s" % (v(t1), v(t1)))
    A("v_lshlrev_b32 %s, 4, %s" % (v(t1), v(t1)))
    A("v_lshl_add_u32 %s, %s, 3, %s" % (v(dst), v(vG), v(vC)))
    A("v_lshl_add_u32 %s, %s, 8, %s" % (v(dst), v(dst), v(t1)))

def tall_off(A, dst, t1, s_extra):
    A("v_lshrrev_b32 %s, 3, %s" % (v(t1), v(vLane)))
    A("v_mul_u32_u24 %s, 1152, %s" % (v(dst), v(t1)))
    A("v_and_b32 %s, 7, %s" % (v(t1), v(vLane)))
    A("v_lshl_add_u32 %s, %s, 4, %s" % (v(dst), v(t1), v(dst)))
    A("s_mul_i32 %s, %s, %d" % (s(sT + 3), s(sW), 32 * 1152))
    A("s_add_u32 %s, %s, %s" % (s(sT + 3), s(sT + 3), s_extra))
    A("v_add_u32 %s, %s, %s" % (v(dst), s(sT + 3), v(dst)))

def tall_tr(A, dst, kbshift):
    A("v_lshl_add_u32 %s, %s, %d, %s" % (v(dst), v(vG), kbshift, v(vC)))
    A("v_lshlrev_b32 %s, 7, %s" % (v(dst), v(dst)))
    A("v_lshl_add_u32 %s, %s, 3, %s" % (v(dst), v(vX), v(dst)))
    A("s_lshl_b32 %s, %s, 5" % (s(sT + 3), s(sW)))
    A("v_add_u32 %s, %s, %s" % (v(dst), s(sT + 3), v(dst)))

def tr2(A, reg, addr, imm0, imm1):
    A.ds("ds_read_b64_tr_b16 %s, %s offset:%d" % (R(reg, 2), v(addr), imm0))
    A.ds("ds_read_b64_tr_b16 %s, %s offset:%d" % (R(reg + 2, 2), v(addr), imm1))

def x_dma(A, vXo, sSrc, sM0):
    for i in range(9):
        A("s_add_u32 m0, %s, %d" % (s(sM0), 960 * i))
        A("s_nop 0")
        A.vmem("buffer_load_dwordx4 %s, %s, %s offen offset:%d sc1 lds" % (v(vXo), s(sWS, 4), s(sSrc), 64 * i), 'x')

def gemm576(A, vXa, LAND, wreg, acc, ntile, swap, mid=None):
    def rd(ks):
        for tt in range(2):
            A.ds("ds_read_b128 %s, %s offset:%d" % (v(LAND + 8 * (ks & 1) + 4 * tt, 4), v(vXa), (18 * tt + ks) * 1024), ('x', ks))
    rd(0)
    for ks in range(18):
        if ks + 1 < 18:
            rd(ks + 1)
        A.wait_ds(('x', ks))
        for t in range(ntile):
            for tt in range(2):
                x = v(LAND + 8 * (ks & 1) + 4 * tt, 4)
                w = R(wreg(t, ks), 4)
                d = v(acc(t, tt), 4)
                if swap(t):
                    MF(A, d, x, w, "0" if ks == 0 else d)
                else:
                    MF(A, d, w, x, "0" if ks == 0 else d)
        if mid and ks == 9:
            mid()

def wave_sum(A, r, t):
    for k in (8, 4, 2, 1):
        A("s_nop 1")
        A("v_add_f32_dpp %s, %s, %s row_ror:%d row_mask:0xf bank_mask:0xf" % (v(r), v(r), v(r), k))
    for op in ("v_permlane16_swap_b32", "v_permlane32_swap_b32"):
        A("v_mov_b32 %s, %s" % (v(t), v(r)))
        A("s_nop 1")
        A("%s %s, %s" % (op, v(r), v(t)))
        A("v_add_f32 %s, %s, %s" % (v(r), v(r), v(t)))

def rnd2(A, a, b):
    A("v_cvt_pk_bf16_f32 %s, %s, %s" % (v(b), v(a), v(b)))
    A("v_lshlrev_b32 %s, 16, %s" % (v(a), v(b)))
    A("v_and_b32 %s, 0xffff0000, %s" % (v(b), v(b)))
def rnd1(A, a):
    A("v_cvt_pk_bf16_f32 %s, %s, %s" % (v(a), v(a), v(a)))
    A("v_and_b32 %s, 0xffff0000, %s" % (v(a), v(a)))
def unpack(A, lo, hi, src):
    A("v_and_b32 %s, 0xffff0000, %s" % (v(hi), v(src))) if hi != src else None
    A("v_lshlrev_b32 %s, 16, %s" % (v(lo), v(src)))
    if hi == src:
        A("v_and_b32 %s, 0xffff0000, %s" % (v(hi), v(src)))

def row_offsets(A, vRow, vRow2, svalid, t):
    A("v_and_b32 %s, 7, %s" % (v(t), v(vLane)))
    A("v_lshlrev_b32 %s, 4, %s" % (v(vRow), v(t)))
    A("v_bfe_u32 %s, %s, 3, 1" % (v(t), v(vLane)))
    A("v_lshl_add_u32 %s, %s, 8, %s" % (v(vRow), v(t), v(vRow)))
    A("v_lshrrev_b32 %s, 1, %s" % (v(t), v(vG)))
    A("v_lshl_add_u32 %s, %s, 7, %s" % (v(vRow), v(t), v(vRow)))
    A("v_and_b32 %s, 1, %s" % (v(t), v(vG)))
    A("v_lshl_add_u32 %s, %s, 3, %s" % (v(vRow), v(t), v(vRow)))
    A("s_mov_b32 %s, 0x00ff00ff" % s(svalid))
    A("s_mov_b32 %s, 0" % s(svalid + 1))
    A("v_mov_b32 %s, 0x%x" % (v(t), OOB >> 1))
    A("v_cndmask_b32 %s, %s, %s, %s" % (v(vRow2), v(t), v(vRow), s(svalid, 2)))

def load_mod(A, dst, which, vRow, vRow2, t1, t2):
    A("v_lshlrev_b32 %s, 1, %s" % (v(t1), v(vRow)))
    A("v_lshlrev_b32 %s, 1, %s" % (v(t2), v(vRow2)))
    A("s_mov_b32 %s, %d" % (s(sT + 2), WS_MOD + which * 2304))
    for U in range(3):
        A.vmem("buffer_load_dwordx4 %s, %s, %s, %s offen offset:%d sc1" % (v(dst + 4 * U, 4), v(t1 if U < 2 else t2), s(sWS, 4), s(sT + 2), 1024 * U), 'mod')

def ln_stats(A, X, D, svalid, m, rs, t):
    A("v_add_f32 %s, %s, %s" % (v(m), v(X), v(X + 1)))
    for i in range(2, 12):
        A("v_add_f32 %s, %s, %s" % (v(m), v(m), v(X + i)))
    wave_sum(A, m, t)
    A("v_mul_f32 %s, 0x%x, %s" % (v(m), f32bits(1.0 / 576), v(m)))
    for i in range(12):
        A("v_sub_f32 %s, %s, %s" % (v(D + i), v(X + i), v(m)))
    A("v_mul_f32 %s, %s, %s" % (v(rs), v(D + 8), v(D + 8)))
    for i in range(9, 12):
        A("v_fmac_f32 %s, %s, %s" % (v(rs), v(D + i), v(D + i)))
    A("v_cndmask_b32 %s, 0, %s, %s" % (v(rs), v(rs), s(svalid, 2)))
    for i in range(8):
        A("v_fmac_f32 %s, %s, %s" % (v(rs), v(D + i), v(D + i)))
    wave_sum(A, rs, t)
    A("v_mul_f32 %s, 0x%x, %s" % (v(rs), f32bits(1.0 / 576), v(rs)))
    rnd2(A, m, rs)
    A("v_add_f32 %s, 0x%x, %s" % (v(rs), f32bits(1e-5), v(rs)))
    rnd1(A, rs)
    A("v_sqrt_f32 %s, %s" % (v(rs), v(rs)))
    A("s_nop 0")
    rnd1(A, rs)
    A("v_rcp_f32 %s, %s" % (v(rs), v(rs)))
    A("s_nop 0")

def ln_apply(A, X, m, rs, C1, SH, out):
    for i in range(12):
        A("v_sub_f32 %s, %s, %s" % (v(X + i), v(X + i), v(m)))
    for i in range(0, 12, 2):
        rnd2(A, X + i, X + i + 1)
    for i in range(12):
        A("v_mul_f32 %s, %s, %s" % (v(X + i), v(X + i), v(rs)))
    for i in range(0, 12, 2):
        rnd2(A, X + i, X + i + 1)
    for i in range(12):
        A("v_mul_f32 %s, %s, %s" % (v(X + i), v(X + i), v(C1 + i)))
    for i in range(0, 12, 2):
        rnd2(A, X + i, X + i + 1)
    for i in range(12):
        A("v_add_f32 %s, %s, %s" % (v(X + i), v(X + i), v(SH + i)))
    for i in range(6):
        A("v_cvt_pk_bf16_f32 %s, %s, %s" % (v(out + i), v(X + 2 * i), v(X + 2 * i + 1)))

def one_plus(A, C):
    for i in range(12):
        A("v_add_f32 %s, 1.0, %s" % (v(C + i), v(C + i)))
    for i in range(0, 12, 2):
        rnd2(A, C + i, C + i + 1)

def row_io(A, op, reg, vRow, vRow2, srd, soff, flags=""):
    for U in range(3):
        A.vmem("buffer_%s_dwordx2 %s, %s, %s, %s offen offset:%d%s" % (op, v(reg + 2 * U, 2), v(vRow if U < 2 else vRow2), s(srd, 4), soff, 512 * U, flags), 'row')

def sel_masks(A):
    for hi in range(2):
        for u in range(4):
            m16 = (3 << (2 * u)) << (8 * hi)
            m32 = m16 | (m16 << 16)
            A("s_mov_b32 %s, 0x%x" % (s(sSel + 8 * hi + 2 * u), m32))
            A("s_mov_b32 %s, 0x%x" % (s(sSel + 8 * hi + 2 * u + 1), m32))
def make_sel(A, dst, hi, t):
    A("v_and_b32 %s, 1, %s" % (v(t), v(vLane)))
    A("v_lshlrev_b32 %s, 4, %s" % (v(t), v(t)))
    A("v_mov_b32 %s, 0x3f80" % v(dst))
    A("v_lshlrev_b32 %s, %s, %s" % (v(t), v(t), v(dst)))
    for u in range(4):
        A("v_cndmask_b32 %s, 0, %s, %s" % (v(dst + u), v(t), s(sSel + 8 * hi + 2 * u, 2)))

def emit_worker(A, opt=()):
    A.c("=========== worker ===========")
    A("v_mov_b32 %s, v0" % v(vLane))
    A("v_lshlrev_b32 %s, 4, %s" % (v(vL16), v(vLane)))
    A("v_lshrrev_b32 %s, 4, %s" % (v(vG), v(vLane)))
    A("v_bfe_u32 %s, %s, 2, 2" % (v(vC), v(vLane)))
    A("v_and_b32 %s, 3, %s" % (v(vX), v(vLane)))
    A("s_mov_b32 %s, 400000" % s(sBud))
    sel_masks(A)
    build_srd(A, sXS, 0, 2359296)
    vRow, vRow2 = 7, 8
    sValid = sMask
    row_offsets(A, vRow, vRow2, sValid, vTmp)
    lmod, lpre_done = A.new("mod"), A.new("predone")
    XR = 16
    A("s_cmp_ge_u32 %s, 128" % s(sWid))
    A("s_cbranch_scc1 %s" % lmod)
    A("s_lshl_b32 %s, %s, 2" % (s(sT), s(sWid)))
    A("s_add_u32 %s, %s, %s" % (s(sT), s(sT), s(sW)))
    A("s_mul_i32 %s, %s, %d" % (s(sA0), s(sT), 4 * 1152))
    for r in range(4):
        A("s_add_u32 %s, %s, %d" % (s(sT), s(sA0), r * 1152))
        row_io(A, "load", XR + 6 * r, vRow, vRow2, sXS, s(sT))
    A("s_branch %s" % lpre_done)
    A.label(lmod)
    A("s_cmp_ge_u32 %s, 182" % s(sWid))
    A("s_cbranch_scc1 %s" % lpre_done)
    build_srd(A, sA0 + 2, 88, 1152)
    build_srd(A, sA0 + 6, 96, 3981312)
    sCs, sWm = sA0 + 2, sA0 + 6
    A("s_sub_u32 %s, %s, 128" % (s(sA0), s(sWid)))
    for i in range(4):
        A("v_mov_b32 %s, 0" % v(12 + i))
    A("s_lshl_b32 %s, %s, 2" % (s(sT), s(sA0)))
    A("s_add_u32 %s, %s, %s" % (s(sT), s(sT), s(sW)))
    A("s_lshl_b32 %s, %s, 10" % (s(sT), s(sT)))
    A("s_add_u32 %s, %s, %d" % (s(sT), s(sT), WS_FL))
    assert FL_END - WS_FL <= 54 * 4096
    A("buffer_store_dwordx4 %s, %s, %s, %s offen sc1" % (v(12, 4), v(vL16), s(sWS, 4), s(sT)))
    A("v_lshrrev_b32 %s, 3, %s" % (v(9), v(vLane)))
    A("s_mul_i32 %s, %s, 144" % (s(sT), s(sW)))
    A("v_add_u32 %s, %s, %s" % (v(9), s(sT), v(9)))
    A("v_lshlrev_b32 %s, 1, %s" % (v(10), v(9)))
    A("v_mul_u32_u24 %s, 6912, %s" % (v(9), v(9)))
    A("v_and_b32 %s, 7, %s" % (v(11), v(vLane)))
    A("v_lshl_add_u32 %s, %s, 4, %s" % (v(9), v(11), v(9)))
    A("s_lshl_b32 %s, %s, 7" % (s(sT), s(sA0)))
    CV, WV, ACC = 100, 120, 200
    for i in range(18):
        A("buffer_load_ushort %s, %s, %s, 0 offen offset:%d" % (v(CV + i), v(10), s(sCs, 4), 16 * i))
    for i in range(18):
        A("s_add_u32 %s, %s, %d" % (s(sT + 1), s(sT), i * 55296))
        A("buffer_load_dwordx4 %s, %s, %s, %s offen" % (v(WV + 4 * i, 4), v(9), s(sWm, 4), s(sT + 1)))
    A("s_waitcnt vmcnt(18)")
    for i in range(18):
        c = CV + i
        A("v_lshlrev_b32 %s, 16, %s" % (v(c), v(c)))
        A("v_mul_f32 %s, 0x%x, %s" % (v(12), f32bits(-math.log2(math.e)), v(c)))
        A("v_exp_f32 %s, %s" % (v(12), v(12)))
        A("s_nop 0")
        A("v_add_f32 %s, 1.0, %s" % (v(12), v(12)))
        A("v_rcp_f32 %s, %s" % (v(12), v(12)))
        A("s_nop 0")
        A("v_mul_f32 %s, %s, %s" % (v(c), v(c), v(12)))
        rnd1(A, c)
    for j in range(8):
        A("v_mov_b32 %s, 0" % v(ACC + j))
    A("s_waitcnt vmcnt(0)")
    for i in range(18):
        for j in range(4):
            unpack(A, 12, 13, WV + 4 * i + j)
            A("v_fmac_f32 %s, %s, %s" % (v(ACC + 2 * j), v(12), v(CV + i)))
            A("v_fmac_f32 %s, %s, %s" % (v(ACC + 2 * j + 1), v(13), v(CV + i)))
    for j in range(8):
        r = ACC + j
        A("s_nop 1")
        A("v_add_f32_dpp %s, %s, %s row_ror:8 row_mask:0xf bank_mask:0xf" % (v(r), v(r), v(r)))
        for op in ("v_permlane16_swap_b32", "v_permlane32_swap_b32"):
            A("v_mov_b32 %s, %s" % (v(12), v(r)))
            A("s_nop 1")
            A("%s %s, %s" % (op, v(r), v(12)))
            A("v_add_f32 %s, %s, %s" % (v(r), v(r), v(12)))
    A("s_lshl_b32 %s, %s, 8" % (s(sT + 1), s(sW)))
    A("s_add_u32 %s, %s, %d" % (s(sT + 1), s(sT + 1), L_SCR))
    A("v_lshlrev_b32 %s, 5, %s" % (v(11), v(11)))
    A("v_add_u32 %s, %s, %s" % (v(11), s(sT + 1), v(11)))
    A("ds_write_b128 %s, %s" % (v(11), v(ACC, 4)))
    A("ds_write_b128 %s, %s offset:16" % (v(11), v(ACC + 4, 4)))
    A("s_waitcnt lgkmcnt(0)")
    A("s_barrier")
    A("v_lshlrev_b32 %s, 2, %s" % (v(10), v(vLane)))
    A("v_add_u32 %s, %d, %s" % (v(11), L_SCR, v(10)))
    for i in range(4):
        A("ds_read_b32 %s, %s offset:%d" % (v(12 + i), v(11), 256 * i))
    A("s_waitcnt lgkmcnt(0)")
    A("v_add_f32 %s, %s, %s" % (v(12), v(12), v(13)))
    A("v_add_f32 %s, %s, %s" % (v(14), v(14), v(15)))
    A("v_add_f32 %s, %s, %s" % (v(12), v(12), v(14)))
    rnd1(A, 12)
    A("s_lshl_b32 %s, %s, 8" % (s(sT), s(sA0)))
    A("s_add_u32 %s, %s, %d" % (s(sT), s(sT), WS_MOD))
    sk = A.new("modw")
    A("s_cmp_lg_u32 %s, 0" % s(sW))
    A("s_cbranch_scc1 %s" % sk)
    A("buffer_store_dword %s, %s, %s, %s offen sc1" % (v(12), v(10), s(sWS, 4), s(sT)))
    A("s_waitcnt vmcnt(0)")
    A("s_mov_b64 exec, 1")
    A("v_mov_b32 %s, 1" % v(12))
    A("buffer_atomic_add %s, off, %s, 0 offset:%d" % (v(12), s(sDBG, 4), DBG_MOD))
    A("s_mov_b64 exec, -1")
    A.label(sk)
    A.label(lpre_done)

    A("s_mul_i32 %s, %s, 9363" % (s(sSl), s(sWid)))
    A("s_lshr_b32 %s, %s, 16" % (s(sSl), s(sSl)))
    A("s_mul_i32 %s, %s, 7" % (s(sT), s(sSl)))
    A("s_sub_u32 %s, %s, %s" % (s(sRep), s(sWid), s(sT)))
    vOffW, vTr, vAd = 9, 10, 11
    A("s_lshl_b32 %s, %s, 8" % (s(sT + 1), s(sSl)))
    wide_off(A, vOffW, vTmp, 8192, s(sT + 1))
    A("s_lshr_b32 %s, %s, 1" % (s(sT + 1), s(sW)))
    A("s_lshl_b32 %s, %s, 3" % (s(sT + 1), s(sT + 1)))
    A("s_and_b32 %s, %s, 1" % (s(sT + 2), s(sW)))
    A("s_add_u32 %s, %s, %s" % (s(sT + 1), s(sT + 1), s(sT + 2)))
    wide_tr(A, vTr, vTmp, s(sT + 1), 2)
    W0 = 80
    def wq(t, ks):
        return W0 + 4 * (6 * ks + t)
    def wide_chunks(mats, rowstride, wreg):
        out = []
        for G in range(9):
            for m, srd in enumerate(mats):
                def consume(base, m=m, G=G):
                    A("v_add_u32 %s, %d, %s" % (v(vAd), base, v(vTr)))
                    for k2 in range(2):
                        for t in range(2):
                            tr2(A, wreg(2 * m + t, 2 * G + k2), vAd, 32 * k2 * 256 + 8 * t, (32 * k2 + 4) * 256 + 8 * t)
                out.append((srd, vOffW, [(64 * G + 4 * j) * rowstride for j in range(4)], consume))
        return out
    A.vm, A.lds = ['old'] * 12, []
    stage(A, wide_chunks((sW1, sW2, sW3), 8192, wq))
    wait_flags(A, None, "0", srd=sDBG, cmp_ge=54, imm=DBG_MOD)
    lnoln = A.new("noln")
    A("s_cmp_ge_u32 %s, 128" % s(sWid))
    A("s_cbranch_scc1 %s" % lnoln)
    SH, C1, XF, DD = 40, 52, 64, 12
    load_mod(A, SH, 0, vRow, vRow2, 9, 10)
    load_mod(A, C1, 1, vRow, vRow2, 9, 10)
    A("s_waitcnt vmcnt(0)")
    one_plus(A, C1)
    for r in range(4):
        for i in range(6):
            unpack(A, XF + 2 * i, XF + 2 * i + 1, XR + 6 * r + i)
        m_, rs_ = 9, 10
        A("v_add_f32 %s, %s, %s" % (v(m_), v(XF), v(XF + 1)))
        for i in range(2, 12):
            A("v_add_f32 %s, %s, %s" % (v(m_), v(m_), v(XF + i)))
        wave_sum(A, m_, 11)
        A("v_mul_f32 %s, 0x%x, %s" % (v(m_), f32bits(1.0 / 576), v(m_)))
        order = [8, 9, 10, 11, 0, 1, 2, 3, 4, 5, 6, 7]
        for n_, i in enumerate(order):
            A("v_sub_f32 %s, %s, %s" % (v(76), v(XF + i), v(m_)))
            if n_ == 0:
                A("v_mul_f32 %s, %s, %s" % (v(rs_), v(76), v(76)))
            else:
                A("v_fmac_f32 %s, %s, %s" % (v(rs_), v(76), v(76)))
            if n_ == 3:
                A("v_cndmask_b32 %s, 0, %s, %s" % (v(rs_), v(rs_), s(sValid, 2)))
        wave_sum(A, rs_, 11)
        A("v_mul_f32 %s, 0x%x, %s" % (v(rs_), f32bits(1.0 / 576), v(rs_)))
        rnd2(A, m_, rs_)
        A("v_add_f32 %s, 0x%x, %s" % (v(rs_), f32bits(1e-5), v(rs_)))
        rnd1(A, rs_)
        A("v_sqrt_f32 %s, %s" % (v(rs_), v(rs_)))
        A("s_nop 0")
        rnd1(A, rs_)
        A("v_rcp_f32 %s, %s" % (v(rs_), v(rs_)))
        A("s_nop 0")
        ln_apply(A, XF, m_, rs_, C1, SH, XR + 6 * r)
        A("s_add_u32 %s, %s, %d" % (s(sT), s(sA0), WS_H + r * 1152))
        row_io(A, "store", XR + 6 * r, vRow, vRow2, sWS, s(sT), " sc1")
    A("s_waitcnt vmcnt(0)")
    A("s_barrier")
    A("s_lshl_b32 %s, %s, 2" % (s(sT), s(sWid)))
    A("s_add_u32 %s, %s, %d" % (s(sT), s(sT), FL_H))
    set_flag(A, s(sT))
    A.label(lnoln)
    A("v_lshlrev_b32 %s, 2, %s" % (v(vFl), v(vLane)))
    A("s_mov_b32 %s, %d" % (s(sT), FL_H))
    wait_flags(A, vFl, s(sT))
    wait_flags(A, vFl, s(sT), imm=256)
    vXo, vXa = 9, 10
    LAND, ACC = 16, 32
    sSrc, sM0x, sQo, sKo, sFlag, sBuf = sA0, sA0 + 1, sA0 + 2, sA0 + 3, sA0 + 4, sA0 + 5
    def xsetup():
        A("v_and_b32 %s, 15, %s" % (v(vTmp), v(vLane)))
        A("v_mul_u32_u24 %s, 1152, %s" % (v(vXo), v(vTmp)))
        A("v_lshl_add_u32 %s, %s, 4, %s" % (v(vXo), v(vG), v(vXo)))
        A("s_lshr_b32 %s, %s, 1" % (s(sT), s(sW)))
        A("s_mul_i32 %s, %s, 18432" % (s(sT), s(sT)))
        A("s_and_b32 %s, %s, 1" % (s(sT + 1), s(sW)))
        A("s_mul_i32 %s, %s, 576" % (s(sT + 1), s(sT + 1)))
        A("s_add_u32 %s, %s, %s" % (s(sT), s(sT), s(sT + 1)))
        A("v_add_u32 %s, %s, %s" % (v(vXo), s(sT), v(vXo)))
        A("s_mul_i32 %s, %s, 9216" % (s(sM0x), s(sW)))
    xsetup()
    A("s_mov_b32 %s, %s" % (s(sSeg), s(sRep)))
    A("s_mul_i32 %s, %s, 36864" % (s(sSrc), s(sSeg)))
    A("s_add_u32 %s, %s, %d" % (s(sSrc), s(sSrc), WS_H))
    A("v_mov_b32 %s, %s" % (v(vXa), v(vL16)))
    A("s_lshl_b32 %s, %s, 5" % (s(sT), s(sSeg)))
    A("s_add_u32 %s, %s, %s" % (s(sT), s(sT), s(sSl)))
    A("s_lshl_b32 %s, %s, 10" % (s(sT + 1), s(sW)))
    A("s_lshl_b32 %s, %s, 13" % (s(sQo), s(sT)))
    A("s_add_u32 %s, %s, %s" % (s(sQo), s(sQo), s(sT + 1)))
    A("s_add_u32 %s, %s, %d" % (s(sQo), s(sQo), WS_Q))
    A("s_lshl_b32 %s, %s, 14" % (s(sKo), s(sT)))
    A("s_add_u32 %s, %s, %s" % (s(sKo), s(sKo), s(sT + 1)))
    if WS_KV:
        A("s_add_u32 %s, %s, %d" % (s(sKo), s(sKo), WS_KV))
    A("s_mov_b32 %s, 0x%x" % (s(sFlag), OOB))
    A.vm = []
    x_dma(A, vXo, sSrc, sM0x)
    A("s_waitcnt vmcnt(0)")
    ltop, lend = A.new("qkv"), A.new("qkvend")
    A.label(ltop)
    A("s_waitcnt vmcnt(6)")
    A("s_barrier")
    A("s_xor_b32 %s, %s, 0x10000" % (s(sM0x), s(sM0x)))
    A("s_add_u32 %s, %s, %d" % (s(sSrc), s(sSrc), 7 * 36864))
    x_dma(A, vXo, sSrc, sM0x)
    def mid():
        A("s_waitcnt vmcnt(9)")
        A("s_barrier")
        set_flag(A, s(sFlag))
    A.lds = []
    gemm576(A, vXa, LAND, wq, lambda t, tt: ACC + 8 * t + 4 * tt, 6, lambda t: t >= 4, mid)
    A("v_xor_b32 %s, 0x10000, %s" % (v(vXa), v(vXa)))
    A("s_lshl_b32 %s, %s, 8" % (s(sFlag), s(sSl)))
    A("s_lshl_b32 %s, %s, 2" % (s(sT), s(sSeg)))
    A("s_add_u32 %s, %s, %s" % (s(sFlag), s(sFlag), s(sT)))
    A("s_add_u32 %s, %s, %d" % (s(sFlag), s(sFlag), FL_KV))
    A("s_add_u32 %s, %s, 4096" % (s(sT), s(sQo)))
    A("s_add_u32 %s, %s, 4096" % (s(sT + 1), s(sKo)))
    A("s_lshl_b32 %s, %s, 10" % (s(sT + 2), s(sW)))
    A("s_add_u32 %s, %s, %s" % (s(sT + 2), s(sT + 2), s(sKo)))
    A("s_add_u32 %s, %s, 8192" % (s(sT + 2), s(sT + 2)))
    for m in range(2):
        for tt in range(2):
            a0, a1 = ACC + 16 * m + 4 * tt, ACC + 16 * m + 8 + 4 * tt
            for x in range(4):
                A("v_cvt_pk_bf16_f32 %s, %s, %s" % (v(a0 + x), v(a0 + x), v(a1 + x)))
            so = (sQo, sT, sKo, sT + 1)[2 * m + tt]
            A("buffer_store_dwordx4 %s, %s, %s, %s offen sc1" % (v(a0, 4), v(vL16), s(sWS, 4), s(so)))
    for t in range(2):
        a0 = ACC + 32 + 8 * t
        A("v_cvt_pk_bf16_f32 %s, %s, %s" % (v(a0), v(a0), v(a0 + 1)))
        A("v_cvt_pk_bf16_f32 %s, %s, %s" % (v(a0 + 1), v(a0 + 2), v(a0 + 3)))
        A("v_cvt_pk_bf16_f32 %s, %s, %s" % (v(a0 + 2), v(a0 + 4), v(a0 + 5)))
        A("v_cvt_pk_bf16_f32 %s, %s, %s" % (v(a0 + 3), v(a0 + 6), v(a0 + 7)))
        A("buffer_store_dwordx4 %s, %s, %s, %s offen offset:%d sc1" % (v(a0, 4), v(vL16), s(sWS, 4), s(sT + 2), 1024 * t))
    A("s_add_u32 %s, %s, %d" % (s(sQo), s(sQo), 7 * 32 * 8192))
    A("s_add_u32 %s, %s, %d" % (s(sKo), s(sKo), 7 * 32 * 16384))
    A("s_add_u32 %s, %s, 7" % (s(sSeg), s(sSeg)))
    A("s_cmp_lt_u32 %s, 64" % s(sSeg))
    A("s_cbranch_scc1 %s" % ltop)
    A("s_waitcnt vmcnt(0)")
    A("s_barrier")
    set_flag(A, s(sFlag))
    if "p1only" in opt:
        return
    lC = A.new("roleC")
    A("s_cmp_ge_u32 %s, 80" % s(sWid))
    A("s_cbranch_scc1 %s" % lC)
    emit_roleA(A, vRow, vRow2, sValid, opt)
    A("s_endpgm")
    A.label(lC)
    emit_roleC(A, xsetup, wide_chunks, opt)

def emit_roleA(A, vRow, vRow2, sValid, opt):
    A.c("=========== role A: attention + Wo partial + LN2 ===========")
    A("s_mul_i32 %s, %s, 13108" % (s(sSl), s(sWid)))
    A("s_lshr_b32 %s, %s, 16" % (s(sSl), s(sSl)))
    A("s_mul_i32 %s, %s, 5" % (s(sT), s(sSl)))
    A("s_sub_u32 %s, %s, %s" % (s(sRep), s(sWid), s(sT)))
    vOff, vTr, vAd = 9, 10, 11
    A("s_mul_i32 %s, %s, %d" % (s(sT + 1), s(sSl), 2 * 147456))
    tall_off(A, vOff, vTmp, s(sT + 1))
    tall_tr(A, vTr, 4)
    W0 = 224
    def wo(G, K):
        return W0 + 4 * (8 * G + K)
    chunks = []
    for hd in range(2):
        for G in range(9):
            def consume(base, hd=hd, G=G):
                A("v_add_u32 %s, %d, %s" % (v(vAd), base, v(vTr)))
                for ks in range(4):
                    r0 = 64 * (ks >> 1) + 8 * (ks & 1)
                    tr2(A, wo(G, 4 * hd + ks), vAd, r0 * 128, (r0 + 4) * 128)
            chunks.append((sWO, vOff, [hd * 147456 + 8 * j * 1152 + 128 * G for j in range(4)], consume))
    A.vm, A.lds = ['old'] * 2, []
    stage(A, chunks)
    vKM, vL4, vOwr, vTw, vTrd, vPst, vPld, vNEG = 9, 10, 11, 12, 13, 14, 15, 16
    GA, SB, CB = 20, 32, 44
    SEL0, SEL1 = 56, 60
    QF, KX, VX, KM, VM = 64, 80, 112, 144, 160
    S_, OA = 176, 188
    WACC, LAND = 144, 216
    L_OT, L_PT = 0, 16384
    PSTR = 1168
    load_mod(A, GA, 2, vRow, vRow2, 17, 18)
    load_mod(A, SB, 3, vRow, vRow2, 17, 18)
    load_mod(A, CB, 4, vRow, vRow2, 17, 18)
    make_sel(A, SEL0, 0, vTmp)
    make_sel(A, SEL1, 1, vTmp)
    A("v_lshlrev_b32 %s, 2, %s" % (v(vL4), v(vLane)))
    A("v_lshrrev_b32 %s, 1, %s" % (v(vTmp), v(vG)))
    A("v_lshlrev_b32 %s, 10, %s" % (v(vKM), v(vTmp)))
    A("v_and_b32 %s, 1, %s" % (v(vTmp), v(vX)))
    A("v_lshl_add_u32 %s, %s, 8, %s" % (v(vKM), v(vTmp), v(vKM)))
    A("v_lshl_add_u32 %s, %s, 6, %s" % (v(vKM), v(vC), v(vKM)))
    A("v_and_b32 %s, 1, %s" % (v(vTmp), v(vG)))
    A("v_lshl_add_u32 %s, %s, 5, %s" % (v(vKM), v(vTmp), v(vKM)))
    A("s_and_b32 %s, %s, 1" % (s(sT), s(sW)))
    A("s_lshl_b32 %s, %s, 13" % (s(sT + 1), s(sT)))
    A("s_lshr_b32 %s, %s, 1" % (s(sT + 2), s(sW)))
    A("s_lshl_b32 %s, %s, 12" % (s(sT + 3), s(sT + 2)))
    A("s_add_u32 %s, %s, %s" % (s(sT + 1), s(sT + 1), s(sT + 3)))
    A("v_add_u32 %s, %s, %s" % (v(vOwr), s(sT + 1), v(vL16)))
    A("v_and_b32 %s, 15, %s" % (v(17), v(vLane)))
    A("s_lshl_b32 %s, %s, 4" % (s(sT + 1), s(sT)))
    A("v_add_u32 %s, %s, %s" % (v(17), s(sT + 1), v(17)))
    A("v_lshlrev_b32 %s, 2, %s" % (v(18), v(vG)))
    A("v_sub_u32 %s, %s, %s" % (v(17), v(17), v(18)))
    sCM = sA0 + 6
    for i in range(8):
        A("v_cmp_le_i32 %s, %d, %s" % (s(sCM + 2 * i, 2), 16 * (i >> 2) + (i & 3), v(17)))
    A("v_mov_b32 %s, 0x%x" % (v(vNEG), f32bits(-1e9)))
    A("v_and_b32 %s, 15, %s" % (v(vTmp), v(vLane)))
    A("v_mul_u32_u24 %s, %d, %s" % (v(vTw), PSTR, v(vTmp)))
    A("v_lshl_add_u32 %s, %s, 3, %s" % (v(vTw), v(vG), v(vTw)))
    A("s_lshl_b32 %s, %s, 5" % (s(sT + 1), s(sW)))
    A("s_add_u32 %s, %s, %d" % (s(sT + 1), s(sT + 1), L_PT))
    A("v_add_u32 %s, %s, %s" % (v(vTw), s(sT + 1), v(vTw)))
    A("v_lshrrev_b32 %s, 3, %s" % (v(17), v(vLane)))
    A("v_and_b32 %s, 7, %s" % (v(18), v(vLane)))
    A("v_lshlrev_b32 %s, 4, %s" % (v(18), v(18)))
    A("v_mul_u32_u24 %s, 1152, %s" % (v(vPld), v(17)))
    A("v_add_u32 %s, %s, %s" % (v(vPld), v(vPld), v(18)))
    A("s_lshl_b32 %s, %s, 3" % (s(sT + 1), s(sW)))
    A("v_add_u32 %s, %s, %s" % (v(17), s(sT + 1), v(17)))
    A("v_mul_u32_u24 %s, %d, %s" % (v(vTrd), PSTR, v(17)))
    A("v_add_u32 %s, %s, %s" % (v(vTrd), v(vTrd), v(18)))
    A("v_add_u32 %s, %d, %s" % (v(vTrd), L_PT, v(vTrd)))
    A("v_mul_u32_u24 %s, 18432, %s" % (v(vPst), v(17)))
    A("v_add_u32 %s, %s, %s" % (v(vPst), v(vPst), v(18)))
    A("s_mul_i32 %s, %s, 1152" % (s(sT + 1), s(sSl)))
    A("v_add_u32 %s, %s, %s" % (v(vPst), s(sT + 1), v(vPst)))
    A("s_waitcnt vmcnt(0)")
    one_plus(A, CB)
    sHead, sSH, sPAo, sRowo = sA0, sA0 + 1, sA0 + 2, sA0 + 3
    A("s_lshl_b32 %s, %s, 1" % (s(sHead), s(sSl)))
    A("s_lshr_b32 %s, %s, 1" % (s(sT), s(sW)))
    A("s_add_u32 %s, %s, %s" % (s(sHead), s(sHead), s(sT)))
    A("s_mov_b32 %s, %s" % (s(sSeg), s(sRep)))
    def prefetch():
        A("s_lshl_b32 %s, %s, 8" % (s(sT), s(sHead)))
        A("s_lshl_b32 %s, %s, 2" % (s(sT + 1), s(sSeg)))
        A("s_add_u32 %s, %s, %s" % (s(sT), s(sT), s(sT + 1)))
        A("s_add_u32 %s, %s, %d" % (s(sT), s(sT), FL_KV))
        wait_flags(A, None, s(sT))
        A("s_lshl_b32 %s, %s, 5" % (s(sSH), s(sSeg)))
        A("s_add_u32 %s, %s, %s" % (s(sSH), s(sSH), s(sHead)))
        A("s_lshl_b32 %s, %s, 13" % (s(sT), s(sSH)))
        A("s_and_b32 %s, %s, 1" % (s(sT + 1), s(sW)))
        A("s_lshl_b32 %s, %s, 12" % (s(sT + 1), s(sT + 1)))
        A("s_add_u32 %s, %s, %s" % (s(sT), s(sT), s(sT + 1)))
        A("s_add_u32 %s, %s, %d" % (s(sT), s(sT), WS_Q))
        for i in range(4):
            A("buffer_load_dwordx4 %s, %s, %s, %s offen offset:%d sc1" % (v(QF + 4 * i, 4), v(vL16), s(sWS, 4), s(sT), 1024 * i))
        A("s_lshl_b32 %s, %s, 14" % (s(sT), s(sSH)))
        if WS_KV:
            A("s_add_u32 %s, %s, %d" % (s(sT), s(sT), WS_KV))
        for b in range(4):
            for i in range(4):
                A("buffer_load_dwordx4 %s, %s, %s, %s offen offset:%d sc1" % (v(KX + 16 * b + 4 * i, 4), v(vL16), s(sWS, 4), s(sT), 1024 * i))
            if b < 3:
                A("s_add_u32 %s, %s, 4096" % (s(sT), s(sT)))
    prefetch()
    ltop = A.new("atop")
    A.label(ltop)
    A("s_lshl_b32 %s, %s, 4" % (s(sT), s(sSH)))
    A("s_add_u32 %s, %s, %d" % (s(sT), s(sT), FL_PUB))
    A("v_lshlrev_b32 %s, 2, %s" % (v(vFl), v(vX)))
    wait_flags(A, vFl, s(sT))
    A("s_lshl_b32 %s, %s, 12" % (s(sT), s(sSH)))
    A("s_add_u32 %s, %s, %d" % (s(sT), s(sT), WS_KM))
    for ks in range(4):
        A("buffer_load_dwordx4 %s, %s, %s, %s offen offset:%d sc1" % (v(KM + 4 * ks, 4), v(vKM), s(sWS, 4), s(sT), (ks >> 1) * 2048 + (ks & 1) * 16))
    for T in range(8):
        A("buffer_load_dword %s, %s, %s, %s offen offset:%d sc1" % (v(VM + 2 * T), v(vL4), s(sWS, 4), s(sT), (T >> 1) * 1024 + 512 + (T & 1) * 256))
    for T in range(8):
        A("v_mov_b32 %s, 0" % v(VM + 2 * T + 1))
    T1, T2, T0 = S_, S_ + 4, S_ + 8
    for ks in range(4):
        MF(A, v(T1, 4), v(KX + 4 * ks, 4), v(QF + 4 * ks, 4), "0" if ks == 0 else v(T1, 4))
        MF(A, v(T2, 4), v(KX + 16 + 4 * ks, 4), v(QF + 4 * ks, 4), "0" if ks == 0 else v(T2, 4))
    A("s_waitcnt vmcnt(8)")
    for ks in range(4):
        MF(A, v(T0, 4), v(KM + 4 * ks, 4), v(QF + 4 * ks, 4), "0" if ks == 0 else v(T0, 4))
    A("s_nop 7")
    sv = [S_ + i for i in range(10)]
    for i in range(0, 10, 2):
        rnd2(A, sv[i], sv[i + 1])
    for x in sv:
        A("v_mul_f32 %s, 0x%x, %s" % (v(x), f32bits(128 ** -0.5), v(x)))
    for i in range(0, 10, 2):
        rnd2(A, sv[i], sv[i + 1])
    for i in range(8):
        A("v_cndmask_b32 %s, %s, %s, %s" % (v(sv[i]), v(vNEG), v(sv[i]), s(sCM + 2 * i, 2)))
    m1, m2 = S_ + 10, S_ + 11
    A("v_max3_f32 %s, %s, %s, %s" % (v(m1), v(sv[0]), v(sv[1]), v(sv[2])))
    for i in (3, 5, 7):
        A("v_max3_f32 %s, %s, %s, %s" % (v(m1), v(m1), v(sv[i]), v(sv[i + 1])))
    A("v_max_f32 %s, %s, %s" % (v(m1), v(m1), v(sv[9])))
    def xl(op):
        for sw in ("v_permlane32_swap_b32", "v_permlane16_swap_b32"):
            A("v_mov_b32 %s, %s" % (v(m2), v(m1)))
            A("s_nop 1")
            A("%s %s, %s" % (sw, v(m1), v(m2)))
            A("%s %s, %s, %s" % (op, v(m1), v(m1), v(m2)))
    xl("v_max_f32")
    for x in sv:
        A("v_sub_f32 %s, %s, %s" % (v(x), v(x), v(m1)))
    for x in sv:
        A("v_mul_f32 %s, 0x%x, %s" % (v(x), f32bits(math.log2(math.e)), v(x)))
    for x in sv:
        A("v_exp_f32 %s, %s" % (v(x), v(x)))
    A("v_add_f32 %s, %s, %s" % (v(m1), v(sv[0]), v(sv[1])))
    for x in sv[2:]:
        A("v_add_f32 %s, %s, %s" % (v(m1), v(m1), v(x)))
    xl("v_add_f32")
    A("v_rcp_f32 %s, %s" % (v(m1), v(m1)))
    A("s_nop 0")
    for x in sv:
        A("v_mul_f32 %s, %s, %s" % (v(x), v(x), v(m1)))
    for i in range(4):
        A("v_cvt_pk_bf16_f32 %s, %s, %s" % (v(S_ + i), v(sv[2 * i]), v(sv[2 * i + 1])))
    A("v_cvt_pk_bf16_f32 %s, %s, %s" % (v(T0), v(T0), v(T0 + 1)))
    A("v_mov_b32 %s, 0" % v(T0 + 1))
    A("s_waitcnt vmcnt(0)")
    A("s_nop 0")
    for T in range(8):
        MF(A, v(OA + 4 * T, 4), v(VX + 4 * T, 4), v(S_, 4), "0")
    for T in range(8):
        A("v_mfma_f32_16x16x16_bf16 %s, %s, %s, %s" % (v(OA + 4 * T, 4), v(VM + 2 * T, 2), v(T0, 2), v(OA + 4 * T, 4)))
    A("s_nop 1")
    A.lds = []
    for c in range(4):
        b = OA + 8 * c
        if c == 3:
            A("s_nop 0")
        for i in range(4):
            A("v_cvt_pk_bf16_f32 %s, %s, %s" % (v(b + i), v(b + 2 * i), v(b + 2 * i + 1)))
        A.ds("ds_write_b128 %s, %s offset:%d" % (v(vOwr), v(b, 4), L_OT + 1024 * c))
    A.wait_ds()
    A("s_barrier")
    def rd(n):
        A.ds("ds_read_b128 %s, %s offset:%d" % (v(LAND + 4 * (n & 1), 4), v(vL16), L_OT + (n & 1) * 8192 + (n >> 1) * 1024), ('o', n))
    rd(0)
    rd(1)
    for n in range(16):
        K, tt = n >> 1, n & 1
        A.wait_ds(('o', n))
        for G in range(9):
            d = v(WACC + 8 * G + 4 * tt, 4)
            MF(A, d, R(wo(G, K), 4), v(LAND + 4 * tt, 4), "0" if K == 0 else d)
        if n + 2 < 16:
            rd(n + 2)
    for tt in range(2):
        for G in range(9):
            b = WACC + 8 * G + 4 * tt
            A("v_cvt_pk_bf16_f32 %s, %s, %s" % (v(b), v(b), v(b + 1)))
            A("v_cvt_pk_bf16_f32 %s, %s, %s" % (v(b + 1), v(b + 2), v(b + 3)))
            A.ds("ds_write_b64 %s, %s offset:%d" % (v(vTw), v(b, 2), tt * 16 * PSTR + 128 * G))
    A.wait_ds()
    A("s_barrier")
    A("s_mul_i32 %s, %s, %d" % (s(sPAo), s(sSeg), PA_SEG))
    A("s_add_u32 %s, %s, %d" % (s(sPAo), s(sPAo), WS_PA))
    for i in range(9):
        A.ds("ds_read_b128 %s, %s offset:%d" % (v(WACC + 4 * i, 4), v(vTrd), 128 * i), ('t', i))
    for i in range(9):
        A.wait_ds(('t', i))
        A("buffer_store_dwordx4 %s, %s, %s, %s offen offset:%d sc1" % (v(WACC + 4 * i, 4), v(vPst), s(sWS, 4), s(sPAo), 128 * i))
    A("s_waitcnt vmcnt(0)")
    A("s_barrier")
    A("s_lshl_b32 %s, %s, 7" % (s(sT), s(sSeg)))
    A("s_add_u32 %s, %s, %d" % (s(sA0 + 4), s(sT), FL_PA))
    A("s_lshl_b32 %s, %s, 2" % (s(sT + 1), s(sSl)))
    A("s_add_u32 %s, %s, %s" % (s(sT), s(sA0 + 4), s(sT + 1)))
    set_flag(A, s(sT))
    lnext = A.new("anext")
    A("s_cmp_ge_u32 %s, 2" % s(sW))
    A("s_cbranch_scc1 %s" % lnext)
    A("s_lshl_b32 %s, %s, 1" % (s(sA0 + 5), s(sSl)))
    A("s_add_u32 %s, %s, %s" % (s(sA0 + 5), s(sA0 + 5), s(sW)))
    A("s_lshl_b32 %s, %s, 5" % (s(sT), s(sSeg)))
    A("s_add_u32 %s, %s, %s" % (s(sT), s(sT), s(sA0 + 5)))
    A("s_mul_i32 %s, %s, 1152" % (s(sRowo), s(sT)))
    XR, PLD, RD, XF, DD = 216, 144, 176, 196, 144
    row_io(A, "load", XR, vRow, vRow2, sXS, s(sRowo))
    A("v_and_b32 %s, 15, %s" % (v(vFl), v(vLane)))
    A("v_lshlrev_b32 %s, 2, %s" % (v(vFl), v(vFl)))
    wait_flags(A, vFl, s(sA0 + 4))
    A("s_mul_i32 %s, %s, 18432" % (s(sT), s(sA0 + 5)))
    A("s_add_u32 %s, %s, %s" % (s(sT), s(sT), s(sPAo)))
    A("s_add_u32 %s, %s, 9216" % (s(sT + 1), s(sT)))
    LD = 64
    A.vm = []
    for i in range(9):
        for h in range(2):
            A.vmem("buffer_load_dwordx4 %s, %s, %s, %s offen offset:%d sc1" % (v(LD + 8 * i + 4 * h, 4), v(vPld), s(sWS, 4), s(sT + h), 128 * i), ('p', i))
    for i in range(9):
        A.wait_vm(('p', i))
        d = v(RD + 4 * (i >> 1), 4)
        sel = v(SEL1 if i & 1 else SEL0, 4)
        MF(A, d, sel, v(LD + 8 * i, 4), "0" if not (i & 1) else d)
        MF(A, d, sel, v(LD + 8 * i + 4, 4), d)
    for i in range(4):
        A("v_mov_b32 %s, 0" % v(XF + 8 + i))
    A("s_nop 3")
    for T in range(5):
        for jj in range(4):
            A("v_add_f32_dpp %s, %s, %s row_ror:8 row_mask:0xf bank_mask:0x%x" % (v(XF + 4 * (T >> 1) + jj), v(RD + 4 * T + jj), v(RD + 4 * T + jj), 0xc if T & 1 else 0x3))
    for i in range(0, 12, 2):
        rnd2(A, XF + i, XF + i + 1)
    for i in range(12):
        A("v_mul_f32 %s, %s, %s" % (v(XF + i), v(XF + i), v(GA + i)))
    for i in range(0, 12, 2):
        rnd2(A, XF + i, XF + i + 1)
    for i in range(6):
        unpack(A, DD, DD + 1, XR + i)
        A("v_add_f32 %s, %s, %s" % (v(XF + 2 * i), v(XF + 2 * i), v(DD)))
        A("v_add_f32 %s, %s, %s" % (v(XF + 2 * i + 1), v(XF + 2 * i + 1), v(DD + 1)))
        A("v_cvt_pk_bf16_f32 %s, %s, %s" % (v(XR + i), v(XF + 2 * i), v(XF + 2 * i + 1)))
        unpack(A, XF + 2 * i, XF + 2 * i + 1, XR + i)
    A("s_add_u32 %s, %s, %d" % (s(sT), s(sRowo), WS_X1))
    row_io(A, "store", XR, vRow, vRow2, sWS, s(sT), " sc1")
    ln_stats(A, XF, DD, sValid, 160, 161, 162)
    ln_apply(A, XF, 160, 161, CB, SB, 164)
    A("s_add_u32 %s, %s, %d" % (s(sT), s(sRowo), WS_H2))
    row_io(A, "store", 164, vRow, vRow2, sWS, s(sT), " sc1")
    A("s_waitcnt vmcnt(0)")
    A("s_lshl_b32 %s, %s, 7" % (s(sT), s(sSeg)))
    A("s_lshl_b32 %s, %s, 2" % (s(sT + 1), s(sA0 + 5)))
    A("s_add_u32 %s, %s, %s" % (s(sT), s(sT), s(sT + 1)))
    A("s_add_u32 %s, %s, %d" % (s(sT), s(sT), FL_H2))
    set_flag(A, s(sT), wave0_only=False)
    A.label(lnext)
    ldone = A.new("adone")
    A("s_add_u32 %s, %s, 5" % (s(sSeg), s(sSeg)))
    A("s_cmp_ge_u32 %s, 64" % s(sSeg))
    A("s_cbranch_scc1 %s" % ldone)
    prefetch()
    A("s_branch %s" % ltop)
    A.label(ldone)

def emit_roleC(A, xsetup, wide_chunks, opt):
    A.c("=========== role C: gate/up + down partial + output ===========")
    A("s_sub_u32 %s, %s, 80" % (s(sT), s(sWid)))
    A("s_lshr_b32 %s, %s, 2" % (s(sSl), s(sT)))
    A("s_and_b32 %s, %s, 3" % (s(sRep), s(sT)))
    build_srd(A, sW1, 64, 5308416)
    build_srd(A, sW2, 72, 5308416)
    build_srd(A, sW3, 80, 5308416)
    build_srd(A, sWO, 104, 2359296)
    vOffW, vTr, vAd, vOffD, vTrD = 9, 10, 11, 12, 13
    A("s_lshl_b32 %s, %s, 8" % (s(sT + 1), s(sSl)))
    wide_off(A, vOffW, vTmp, 9216, s(sT + 1))
    A("s_lshl_b32 %s, %s, 2" % (s(sT + 1), s(sW)))
    wide_tr(A, vTr, vTmp, s(sT + 1), 1)
    A("s_mul_i32 %s, %s, 147456" % (s(sT + 1), s(sSl)))
    tall_off(A, vOffD, vTmp, s(sT + 1))
    tall_tr(A, vTrD, 3)
    W0 = 80
    def wg(t, ks):
        return W0 + 4 * (4 * ks + t)
    def wd(G, ks):
        return W0 + 288 + 4 * (4 * G + ks)
    chunks = wide_chunks((sW1, sW2), 9216, wg)
    for G in range(9):
        def consume(base, G=G):
            A("v_add_u32 %s, %d, %s" % (v(vAd), base, v(vTrD)))
            for ks in range(4):
                tr2(A, wd(G, ks), vAd, 32 * ks * 128, (32 * ks + 4) * 128)
        chunks.append((sW3, vOffD, [8 * j * 1152 + 128 * G for j in range(4)], consume))
    A.vm, A.lds = ['old'] * 2, []
    stage(A, chunks)
    vXo = 9
    sSrc, sM0x = sA0, sA0 + 1
    xsetup()
    vHw, vRl, vOo = 7, 8, 3
    LAND, ACC, PK = 10, 26, 62
    L_HH = 40960
    A("s_lshl_b32 %s, %s, 10" % (s(sT), s(sW)))
    A("s_add_u32 %s, %s, %d" % (s(sT), s(sT), L_HH))
    A("v_add_u32 %s, %s, %s" % (v(vHw), s(sT), v(vL16)))
    A("v_and_b32 %s, 15, %s" % (v(vTmp), v(vLane)))
    A("v_lshlrev_b32 %s, 4, %s" % (v(vRl), v(vTmp)))
    A("v_lshl_add_u32 %s, %s, 10, %s" % (v(vRl), v(vG), v(vRl)))
    A("s_lshl_b32 %s, %s, 8" % (s(sT), s(sW)))
    A("v_add_u32 %s, %s, %s" % (v(vRl), s(sT), v(vRl)))
    A("v_mul_u32_u24 %s, 1152, %s" % (v(vOo), v(vLane)))
    A("s_lshl_b32 %s, %s, 5" % (s(sT), s(sSl)))
    A("s_lshl_b32 %s, %s, 3" % (s(sT + 1), s(sW)))
    A("s_add_u32 %s, %s, %s" % (s(sT), s(sT), s(sT + 1)))
    A("v_add_u32 %s, %s, %s" % (v(vOo), s(sT), v(vOo)))
    A("v_mov_b32 %s, 0x%x" % (v(vTmp), OOB))
    A("v_cmp_gt_u32 vcc, 32, %s" % v(vLane))
    A("s_nop 1")
    A("v_cndmask_b32 %s, %s, %s, vcc" % (v(vOo), v(vTmp), v(vOo)))
    A("s_lshl_b32 %s, %s, 1" % (s(sT), s(sT)))
    A("s_add_u32 %s, %s, %d" % (s(sT), s(sT), WS_MOD + 5 * 2304))
    A("buffer_load_dwordx4 %s, off, %s, %s sc1" % (v(ACC, 4), s(sWS, 4), s(sT)))
    A("s_waitcnt vmcnt(0)")
    sGB = sA0 + 8
    for i in range(4):
        A("v_readfirstlane_b32 %s, %s" % (s(sGB + i), v(ACC + i)))
    A("s_mov_b32 %s, %s" % (s(sSeg), s(sRep)))
    sPCo, sFl = sA0 + 2, sA0 + 3
    ltop = A.new("ctop")
    A.label(ltop)
    A("s_lshl_b32 %s, %s, 7" % (s(sT), s(sSeg)))
    A("s_add_u32 %s, %s, %d" % (s(sT), s(sT), FL_H2))
    A("v_and_b32 %s, 31, %s" % (v(vFl), v(vLane)))
    A("v_lshlrev_b32 %s, 2, %s" % (v(vFl), v(vFl)))
    wait_flags(A, vFl, s(sT))
    A("s_mul_i32 %s, %s, 36864" % (s(sA0 + 4), s(sSeg)))
    A("s_add_u32 %s, %s, %d" % (s(sSrc), s(sA0 + 4), WS_H2))
    x_dma(A, vXo, sSrc, sM0x)
    A("s_waitcnt vmcnt(0)")
    A("s_barrier")
    A.lds = []
    gemm576(A, vL16, LAND, wg, lambda t, tt: ACC + 8 * t + 4 * tt, 4, lambda t: False)
    A("s_nop 5")
    for tt in range(2):
        for t in range(2):
            g_, u_ = ACC + 8 * t + 4 * tt, ACC + 16 + 8 * t + 4 * tt
            for jj in range(4):
                rnd2(A, g_ + jj, u_ + jj)
                A("v_mul_f32 %s, %s, %s" % (v(g_ + jj), v(g_ + jj), v(u_ + jj)))
            A("v_cvt_pk_bf16_f32 %s, %s, %s" % (v(LAND + 4 * tt + 2 * t), v(g_), v(g_ + 1)))
            A("v_cvt_pk_bf16_f32 %s, %s, %s" % (v(LAND + 4 * tt + 2 * t + 1), v(g_ + 2), v(g_ + 3)))
        A.ds("ds_write_b128 %s, %s offset:%d" % (v(vHw), v(LAND + 4 * tt, 4), 4096 * tt))
    A.wait_ds()
    A("s_barrier")
    A("s_mul_i32 %s, %s, %d" % (s(sPCo), s(sSeg), PC_SEG))
    A("s_add_u32 %s, %s, %d" % (s(sPCo), s(sPCo), WS_PC))
    A("s_mul_i32 %s, %s, 36" % (s(sT), s(sW)))
    A("s_add_u32 %s, %s, %s" % (s(sT), s(sT), s(sSl)))
    A("s_lshl_b32 %s, %s, 10" % (s(sT), s(sT)))
    A("s_add_u32 %s, %s, %s" % (s(sT), s(sT), s(sPCo)))
    for tt in range(2):
        for ks in range(4):
            A.ds("ds_read_b128 %s, %s offset:%d" % (v(LAND + 4 * ks, 4), v(vL16), L_HH + 4096 * tt + 1024 * ks), ('h', ks))
        for ks in range(4):
            A.wait_ds(('h', ks))
            for G in range(9):
                d = v(ACC + 4 * G, 4)
                MF(A, d, R(wd(G, ks), 4), v(LAND + 4 * ks, 4), "0" if ks == 0 else d)
        for G in range(9):
            b = ACC + 4 * G
            if tt == 0:
                A("v_cvt_pk_bf16_f32 %s, %s, %s" % (v(PK + 2 * G), v(b), v(b + 1)))
                A("v_cvt_pk_bf16_f32 %s, %s, %s" % (v(PK + 2 * G + 1), v(b + 2), v(b + 3)))
            else:
                A("v_cvt_pk_bf16_f32 %s, %s, %s" % (v(b + 3), v(b + 2), v(b + 3)))
                A("v_cvt_pk_bf16_f32 %s, %s, %s" % (v(b + 2), v(b), v(b + 1)))
                A("v_mov_b64 %s, %s" % (v(b, 2), v(PK + 2 * G, 2)))
                A("buffer_store_dwordx4 %s, %s, %s, %s offen sc1" % (v(b, 4), v(vL16), s(sWS, 4), s(sT)))
                if G < 8:
                    A("s_add_u32 %s, %s, %d" % (s(sT), s(sT), 4 * 36 * 1024))
    A("s_add_u32 %s, %s, %d" % (s(sT), s(sA0 + 4), WS_X1))
    A("buffer_load_dwordx2 %s, %s, %s, %s offen sc1" % (v(LAND + 8, 2), v(vOo), s(sWS, 4), s(sT)))
    make_sel(A, LAND, 0, vTmp)
    A("s_waitcnt vmcnt(0)")
    A("s_barrier")
    A("s_lshl_b32 %s, %s, 8" % (s(sFl), s(sSeg)))
    A("s_add_u32 %s, %s, %d" % (s(sFl), s(sFl), FL_PC))
    A("s_lshl_b32 %s, %s, 2" % (s(sT), s(sSl)))
    A("s_add_u32 %s, %s, %s" % (s(sT), s(sT), s(sFl)))
    set_flag(A, s(sT))
    A("v_min_u32 %s, 35, %s" % (v(vFl), v(vLane)))
    A("v_lshlrev_b32 %s, 2, %s" % (v(vFl), v(vFl)))
    wait_flags(A, vFl, s(sFl))
    A("s_mul_i32 %s, %s, %d" % (s(sT), s(sSl), 36 * 1024))
    A("s_add_u32 %s, %s, %s" % (s(sT), s(sT), s(sPCo)))
    A.vm = []
    for i in range(9):
        A.vmem("buffer_load_dwordx4 %s, %s, %s, %s offen sc1" % (v(ACC + 4 * i, 4), v(vRl), s(sWS, 4), s(sT)), ('p', i))
        if i < 8:
            A("s_add_u32 %s, %s, 4096" % (s(sT), s(sT)))
    D = LAND + 4
    for i in range(9):
        A.wait_vm(('p', i))
        MF(A, v(D, 4), v(LAND, 4), v(ACC + 4 * i, 4), "0" if i == 0 else v(D, 4))
    unpack(A, LAND + 10, LAND + 11, LAND + 8)
    unpack(A, LAND + 12, LAND + 13, LAND + 9)
    A("s_nop 3")
    rnd2(A, D, D + 1)
    rnd2(A, D + 2, D + 3)
    for i in range(4):
        A("v_mul_f32 %s, %s, %s" % (v(D + i), s(sGB + i), v(D + i)))
    rnd2(A, D, D + 1)
    rnd2(A, D + 2, D + 3)
    for i in range(4):
        A("v_add_f32 %s, %s, %s" % (v(D + i), v(D + i), v(LAND + 10 + i)))
    A("v_cvt_pk_bf16_f32 %s, %s, %s" % (v(D), v(D), v(D + 1)))
    A("v_cvt_pk_bf16_f32 %s, %s, %s" % (v(D + 1), v(D + 2), v(D + 3)))
    A("buffer_store_dwordx2 %s, %s, %s, %s offen" % (v(D, 2), v(vOo), s(sWO, 4), s(sA0 + 4)))
    A("s_add_u32 %s, %s, 4" % (s(sSeg), s(sSeg)))
    A("s_cmp_lt_u32 %s, 64" % s(sSeg))
    A("s_cbranch_scc1 %s" % ltop)
```

```python
import sys
from asmlib import *
from layout import *
import team, worker
from gen_rec import kd

NAME = "adaLN_cond__memory_aug_recurrent_mem_tr__glu_gated_bilinear__prompt_kernel"
HDR = open("adaLN_cond__memory_aug_recurrent_mem_tr__glu_gated_bilinear__prompt.s.ref").read().split("; Override launch")[0]

def main(opt):
    A = Asm()
    as_list = "list" in opt
    A.lines.append(HDR.rstrip())
    if as_list:
        A.lines.append("; @launch kernel=%s grid=(256,1,1) block=(256,1,1) lds=163840" % NAME)
    else:
        A.lines.append("; @launch grid=(256,1,1) block=(256,1,1) lds=163840")
    A.lines.append('.amdgcn_target "amdgcn-amd-amdhsa--gfx950"')
    A.lines.append(".text\n.globl %s\n.p2align 8\n.type %s,@function" % (NAME, NAME))
    A.label(NAME)
    A("s_cmp_ge_u32 s2, 256")
    A("s_cbranch_scc1 L_end")
    if "empty" in opt:
        A("s_endpgm")
    T = team
    bufs = [(T.sWS, 120, WS_BYTES), (T.sWQ, 16, 4718592), (T.sWK, 24, 4718592), (T.sWV, 32, 4718592), (T.sWO, 40, 4718592), (T.sM0, 8, 9216), (T.sDBG, 112, 256)]
    for d, o, n in bufs:
        A("s_load_dwordx2 %s, s[0:1], %d" % (s(d, 2), o))
    A("s_getreg_b32 s3, hwreg(HW_REG_XCC_ID)")
    A("s_and_b32 s3, s3, 15")
    A("v_lshrrev_b32 v1, 6, v0")
    A("v_and_b32 v0, 63, v0")
    A("v_readfirstlane_b32 %s, v1" % s(T.sW))
    A("s_waitcnt lgkmcnt(0)")
    for d, o, n in bufs:
        A("s_and_b32 %s, %s, 0xffff" % (s(d + 1), s(d + 1)))
        A("s_mov_b32 %s, %d" % (s(d + 2), n))
        A("s_mov_b32 %s, 0x20000" % s(d + 3))
    A("v_mov_b32 v2, 0")
    A("s_cmp_lg_u32 %s, 0" % s(T.sW))
    A("s_cbranch_scc1 L_norank")
    if "fakexcc" in opt:
        A("s_lshr_b32 s60, s2, 5")
    else:
        A("s_and_b32 s60, s3, 7")
    A("s_mov_b32 s62, 8")
    A("s_mov_b64 exec, 1")
    A.label("L_claim")
    A("s_lshl_b32 s61, s60, 5")
    A("v_mov_b32 v1, 1")
    A("buffer_atomic_add v1, off, %s, s61 offset:%d sc0" % (s(T.sDBG, 4), DBG_XCC))
    A("s_waitcnt vmcnt(0)")
    A("v_readfirstlane_b32 s61, v1")
    A("s_nop 3")
    A("s_cmp_lt_u32 s61, 32")
    A("s_cbranch_scc1 L_got")
    A("s_add_u32 s60, s60, 1")
    A("s_and_b32 s60, s60, 7")
    A("s_sub_u32 s62, s62, 1")
    A("s_cmp_lg_u32 s62, 0")
    A("s_cbranch_scc1 L_claim")
    A("s_mov_b32 s60, 8")
    A.label("L_got")
    A("s_lshl_b32 s60, s60, 5")
    A("s_add_u32 s60, s60, s61")
    A("v_mov_b32 v1, s60")
    A("ds_write_b32 v2, v1")
    A("s_mov_b64 exec, -1")
    A.label("L_norank")
    A("s_waitcnt lgkmcnt(0)")
    A("s_barrier")
    A("ds_read_b32 v1, v2")
    A("s_waitcnt lgkmcnt(0)")
    A("v_readfirstlane_b32 %s, v1" % s(T.sCU))
    A("s_barrier")
    A("s_cmp_ge_u32 %s, 256" % s(T.sCU))
    A("s_cbranch_scc1 L_end")
    A("s_cmp_ge_u32 %s, 32" % s(T.sCU))
    A("s_cbranch_scc1 L_worker")
    def kv_wait0(A):
        for (voff, soff, srd, ge, imm) in ((None, "0", T.sDBG, None, DBG_MOD),):
            lp, ok = A.new("tw"), A.new("twok")
            A("v_lshrrev_b32 v12, 2, %s" % v(T.vL16))
            A("s_lshl_b32 %s, %s, 8" % (s(T.sT), s(T.sCU)))
            A("s_add_u32 %s, %s, %d" % (s(T.sT), s(T.sT), FL_KV))
            A.label(lp)
            if voff is None:
                A("buffer_load_dword %s, off, %s, 0 offset:%d sc1" % (v(T.vTmp), s(srd, 4), imm))
            else:
                A("buffer_load_dword %s, v12, %s, %s offen sc1" % (v(T.vTmp), s(srd, 4), soff))
            A("s_waitcnt vmcnt(0)")
            if ge:
                A("v_cmp_gt_u32 vcc, %d, %s" % (ge, v(T.vTmp)))
            else:
                A("v_cmp_eq_u32 vcc, 0, %s" % v(T.vTmp))
            A("s_cbranch_vccz %s" % ok)
            A("s_sleep 2")
            A("s_sub_u32 %s, %s, 1" % (s(T.sBud), s(T.sBud)))
            A("s_cbranch_scc0 %s" % lp)
            A("s_mov_b32 %s, 0" % s(T.sBud))
            A.label(ok)
    if "p1only" not in opt:
        team.emit_team(A, stamps="stamps" in opt, hooks={'kv_wait0': kv_wait0}, opt=list(opt) + ["mega", "prog", "mask"])
    A("s_endpgm")
    A.label("L_worker")
    A("s_sub_u32 %s, %s, 32" % (s(worker.sWid), s(T.sCU)))
    worker.emit_worker(A, opt)
    A.label("L_end")
    A("s_endpgm")
    return A.text() + kd(NAME)

if __name__ == "__main__":
    open(sys.argv[1], "w").write(main(sys.argv[2:]))
```

```python
MB = 1 << 20
WS_BYTES = 268435456
WS_KV = 0
WS_Q = 32 * MB
WS_KM = 48 * MB
WS_PB = 60 * MB
PB_STRIDE = 512 * 1024
WS_MBX = 61 * MB
MBX_STRIDE = 16384
WS_WF = 62 * MB
WS_DBG = 67 * MB
WS_H = 68 * MB
WS_H2 = 71 * MB
WS_X1 = 74 * MB
WS_MOD = 77 * MB
WS_FL = 78 * MB
FL_H = WS_FL
FL_KV = WS_FL + 1024
FL_PA = FL_KV + 8192
FL_H2 = FL_PA + 16384
FL_PC = FL_H2 + 16384
FL_PUB = FL_PC + 16384 + 4096
FL_END = FL_PUB + 64 * 32 * 128
WS_PA = 80 * MB
PA_SEG = 32 * 16 * 1152
WS_PC = 120 * MB
PC_SEG = 36 * 36 * 1024
assert WS_PA + 64 * PA_SEG <= WS_PC and WS_PC + 64 * PC_SEG <= WS_BYTES
OOB = 0x40000000
DBG_XCC = 0
DBG_TEAM = 16
DBG_MODC = 48
DBG_MOD = 144
```

```python
from asmlib import *
from layout import *
import struct, math

L_MEM, L_KX, L_F, L_O, L_SCR, L_W = 0, 9216, 17408, 21632, 23680, 24576
FSTR = 1056
L_FLAG = L_SCR + 892
L_WSTRIDE = 34816
vL16, vIdx, vWL, vFw, vOw, vPst, vRst, vSelV, vT0, vT1, vT2, vTmp = range(12)
VACC, QK, RING, LND = 12, 20, 36, 48
WREG0 = 72
KVSTEP = 32 * 16384
NSPILL = 17
sWS, sWQ, sWK, sWV, sWO, sM0, sDBG = 4, 8, 12, 16, 20, 24, 28
sCU, sW, sWC, sUnit, sStep, sBud = 32, 33, 34, 35, 36, 37
sP0, sP1, sP2, sRd, sX0, sX1, sX2, sKV, sKM, sPh, sWF, sC, sVX, sKXm = range(38, 52)
sL2a, sKVv, sKVt = 96, 97, 98
sPt = 8
sTagM = 100
sFlg, sFlgN, sOne, sKF, sRdy = 17, 18, 20, 19, 22
sSel = 52
sT = 60
sStamp = 64

def f32bits(x):
    return struct.unpack("<I", struct.pack("<f", x))[0]

WO_ORDER = [0, 1, 2, 3, 4, 5, 6, 7, 8]
QK_CHAIN = [[('qk', 0, 0), ('qk', 3, 0), ('qk', 6, 0), ('qk', 8, 2)],
            [('qk', 0, 1), ('qk', 3, 1), ('qk', 6, 1), ('qk', 8, 3)],
            [('qk', 0, 2), ('qk', 5, 2), ('qk', 8, 1)]]
def GOF(j, w):
    if j == 8:
        return 8
    o = 2 * (1 - (w >> 1))
    return (j & 4) + (w, w ^ 1, o, o + 1)[j & 3]
WO_CHAIN = [[('o', 0), ('o', 8), ('o', 16)], [('o', 1), ('o', 9), ('o', 17)]]
L2KEY = ('qk', 5, 2)
def placement():
    spill, regs, slot, nxt = {}, {}, {}, {}
    nonreg = []
    for chains in (QK_CHAIN, WO_CHAIN):
        for si, ch in enumerate(chains):
            for i, k in enumerate(ch):
                slot[k] = si
                nxt[k] = ch[i + 1] if i + 1 < len(ch) else None
                if k != L2KEY:
                    nonreg.append(k)
    nonreg.append(L2KEY)
    assert len(nonreg) == NSPILL
    for i, k in enumerate(nonreg):
        spill[k] = i
    allk = [('qk', j, t) for j in range(9) for t in range(4)] + [('v', j, t) for j in range(9) for t in range(2)] + \
           [('o', n) for n in range(18)]
    r = WREG0
    for k in allk:
        if k not in spill:
            regs[k] = r
            r += 8
    assert r == 512, r
    return spill, regs, slot, nxt
SPILL, WREGS, SLOT, NXT = placement()

def emit_team(A, stamps=False, nsteps=64, sc="", hooks=None, opt=()):
    nst = [0]
    def stamp():
        if stamps:
            A("s_memtime %s" % s(sStamp + 2 * nst[0], 2))
            nst[0] += 1
    SC = " sc1"
    lane = 71
    t1, t2, t3, t4, t5, t6 = 64, 65, 66, 67, 68, 69
    vOffW, vOffO, vTrQK, vTrV, vTrO, vAd, vTr8, vAd2 = 56, 57, 58, 59, 60, 61, 62, 63
    vColQK, vColV = 54, 55
    A.c("=========== team setup ===========")
    if "tt" in opt:
        A("s_memtime s[90:91]")
        A("s_memrealtime s[64:65]")
        A("s_mov_b32 s87, 0")
        A("s_mov_b32 s88, 0")
        A("s_mov_b32 s89, 0")
    A("v_mov_b32 %s, v0" % v(lane))
    A("s_lshl_b32 %s, %s, 5" % (s(sT), s(sW)))
    A("s_add_u32 %s, %s, %s" % (s(sUnit), s(sT), s(sCU)))
    A("s_cmp_lt_u32 %s, 72" % s(sUnit))
    A("s_cselect_b32 %s, %s, -1" % (s(sUnit), s(sUnit)))
    A("v_lshlrev_b32 %s, 4, %s" % (v(vL16), v(lane)))
    A("v_and_b32 %s, 1, %s" % (v(t1), v(lane)))
    A("v_mul_u32_u24 %s, 0xaaaa, %s" % (v(t1), v(t1)))
    A("v_add_u32 %s, 0x4444, %s" % (v(vIdx), v(t1)))
    A("s_mul_i32 %s, %s, %d" % (s(sT), s(sW), L_WSTRIDE))
    A("s_add_u32 %s, %s, %d" % (s(sT), s(sT), L_W))
    A("v_add_u32 %s, %s, %s" % (v(vWL), s(sT), v(vL16)))
    A("s_add_u32 %s, %s, 32768" % (s(sVX), s(sT)))
    A("s_lshl_b32 %s, %s, 11" % (s(sKXm), s(sW)))
    A("s_add_u32 %s, %s, %d" % (s(sKXm), s(sKXm), L_KX))
    A("v_lshrrev_b32 %s, 4, %s" % (v(t2), v(lane)))
    A("v_bfe_u32 %s, %s, 2, 2" % (v(t3), v(lane)))
    A("v_and_b32 %s, 3, %s" % (v(t4), v(lane)))
    A("v_and_b32 %s, 1, %s" % (v(t1), v(t3)))
    A("v_mul_u32_u24 %s, %d, %s" % (v(vFw), FSTR, v(t1)))
    A("v_lshrrev_b32 %s, 1, %s" % (v(t1), v(t3)))
    A("v_lshl_add_u32 %s, %s, 8, %s" % (v(vFw), v(t1), v(vFw)))
    A("v_lshl_add_u32 %s, %s, 6, %s" % (v(vFw), v(t2), v(vFw)))
    A("v_lshl_add_u32 %s, %s, 2, %s" % (v(vFw), v(t4), v(vFw)))
    A("s_lshr_b32 %s, %s, 1" % (s(sT), s(sW)))
    A("s_and_b32 %s, %s, 1" % (s(sT + 1), s(sW)))
    A("s_mul_i32 %s, %s, %d" % (s(sT + 2), s(sT), 2 * FSTR))
    A("s_lshl_b32 %s, %s, 9" % (s(sT + 3), s(sT + 1)))
    A("s_add_u32 %s, %s, %s" % (s(sT + 2), s(sT + 2), s(sT + 3)))
    A("s_add_u32 %s, %s, %d" % (s(sT + 2), s(sT + 2), L_F))
    A("v_add_u32 %s, %s, %s" % (v(vFw), s(sT + 2), v(vFw)))
    A("v_and_b32 %s, 1, %s" % (v(t1), v(t4)))
    A("v_lshl_add_u32 %s, %s, 1, %s" % (v(t1), v(t3), v(t1)))
    A("v_lshlrev_b32 %s, 5, %s" % (v(t5), v(t1)))
    A("v_lshl_add_u32 %s, %s, 8, %s" % (v(t5), v(t2), v(t5)))
    A("s_lshl_b32 %s, %s, 10" % (s(sT + 2), s(sT)))
    A("s_lshl_b32 %s, %s, 4" % (s(sT + 3), s(sT + 1)))
    A("s_add_u32 %s, %s, %s" % (s(sT + 2), s(sT + 2), s(sT + 3)))
    A("s_add_u32 %s, %s, %d" % (s(sT + 2), s(sT + 2), L_O))
    A("v_add_u32 %s, %s, %s" % (v(t5), s(sT + 2), v(t5)))
    A("v_lshl_add_u32 %s, %s, 3, %s" % (v(t6), v(t2), v(t1)))
    A("v_lshlrev_b32 %s, 4, %s" % (v(t6), v(t6)))
    A("v_add_u32 %s, %d, %s" % (v(t6), L_SCR, v(t6)))
    A("v_cmp_le_u32 vcc, 2, %s" % v(t4))
    A("s_nop 1")
    A("v_cndmask_b32 %s, %s, %s, vcc" % (v(vOw), v(t6), v(t5)))
    A("v_lshrrev_b32 %s, 5, %s" % (v(t1), v(lane)))
    A("v_lshlrev_b32 %s, 12, %s" % (v(vPst), v(t1)))
    A("v_and_b32 %s, 31, %s" % (v(t1), v(lane)))
    A("v_lshl_add_u32 %s, %s, 2, %s" % (v(vPst), v(t1), v(vPst)))
    A("v_lshlrev_b32 %s, 6, %s" % (v(t5), v(t3)))
    A("v_lshl_add_u32 %s, %s, 3, %s" % (v(t5), v(t4), v(t5)))
    A("v_lshl_add_u32 %s, %s, 5, %s" % (v(t5), v(t2), v(t5)))
    A("s_lshl_b32 %s, %s, 7" % (s(sT + 2), s(sUnit)))
    A("s_and_b32 %s, %s, 0x3fff" % (s(sT + 2), s(sT + 2)))
    A("v_add_u32 %s, %s, %s" % (v(t5), s(sT + 2), v(t5)))
    A("v_and_b32 %s, 0x28, %s" % (v(t1), v(lane)))
    A("v_mov_b32 %s, 0x%x" % (v(t6), OOB))
    A("v_cmp_eq_u32 vcc, 0, %s" % v(t1))
    A("s_nop 1")
    A("v_cndmask_b32 %s, %s, %s, vcc" % (v(vRst), v(t6), v(t5)))
    A("s_mov_b32 %s, 0x11111111" % s(sTagM))
    A("s_mov_b32 %s, 0x11111111" % s(sTagM + 1))
    A("v_and_b32 %s, 1, %s" % (v(t1), v(t3)))
    A("v_lshlrev_b32 %s, 4, %s" % (v(t1), v(t1)))
    A("v_mov_b32 %s, 0x3f80" % v(t5))
    A("v_lshlrev_b32 %s, %s, %s" % (v(vSelV), v(t1), v(t5)))
    for u in range(4):
        m16 = (1 << u) | (1 << (u + 4))
        m32 = m16 | (m16 << 16)
        A("s_mov_b32 %s, 0x%x" % (s(sSel + 2 * u), m32))
        A("s_mov_b32 %s, 0x%x" % (s(sSel + 2 * u + 1), m32))
    A("s_lshl_b32 %s, %s, 10" % (s(sT + 2), s(sW)))
    A("v_add_u32 %s, %s, %s" % (v(vT0), s(sT + 2), v(vL16)))
    A("v_xor_b32 %s, 0x400, %s" % (v(vT1), v(vT0)))
    A("s_and_b32 %s, %s, 0x800" % (s(sT + 2), s(sT + 2)))
    A("s_xor_b32 %s, %s, 0x800" % (s(sT + 2), s(sT + 2)))
    A("v_add_u32 %s, %s, %s" % (v(vT2), s(sT + 2), v(vL16)))
    A("s_mov_b32 %s, 0" % s(sStep))
    A("s_mov_b32 %s, 0" % s(sPh))
    A("s_mov_b32 %s, 200000" % s(sBud))
    A("s_lshl_b32 %s, %s, 7" % (s(sT + 3), s(sCU)))
    A("s_add_u32 %s, %s, %d" % (s(sT + 3), s(sT + 3), WS_PB))
    A("s_lshl_b32 %s, %s, 13" % (s(sT + 2), s(sW)))
    A("s_add_u32 %s, %s, %s" % (s(sP0), s(sT + 2), s(sT + 3)))
    A("s_lshl_b32 %s, %s, 12" % (s(sT + 2), s(sUnit)))
    A("s_add_u32 %s, %s, %d" % (s(sRd), s(sT + 2), WS_PB))
    A("s_cmp_eq_u32 %s, -1" % s(sUnit))
    A("s_cselect_b32 %s, 0x%x, %s" % (s(sRd), OOB, s(sRd)))
    A("s_cselect_b32 %s, 0x%x, 0" % (s(sT + 2), OOB))
    A("v_or_b32 %s, %s, %s" % (v(vRst), s(sT + 2), v(vRst)))
    for i, r in enumerate((sX0, sX1, sX2)):
        A("s_mov_b32 %s, %d" % (s(r), WS_MBX + i * MBX_STRIDE))
    A("s_lshl_b32 %s, %s, 14" % (s(sKV), s(sCU)))
    A("s_lshl_b32 %s, %s, 11" % (s(sT + 2), s(sW)))
    A("s_add_u32 %s, %s, %s" % (s(sKV), s(sKV), s(sT + 2)))
    A("s_add_u32 %s, %s, %d" % (s(sKVv), s(sKV), WS_KV + 8192))
    A("s_lshl_b32 %s, %s, 14" % (s(sKVt), s(sCU)))
    A("s_and_b32 %s, %s, 1" % (s(sT + 2), s(sW)))
    A("s_lshl_b32 %s, %s, 13" % (s(sT + 2), s(sT + 2)))
    A("s_add_u32 %s, %s, %s" % (s(sKVt), s(sKVt), s(sT + 2)))
    A("s_add_u32 %s, %s, %d" % (s(sKVt), s(sKVt), WS_KV + 1 * KVSTEP))
    A("s_cmp_lt_u32 %s, 2" % s(sW))
    A("s_cselect_b32 %s, 0x%x, %s" % (s(sKVt), OOB, s(sKVt)))
    if WS_KV:
        A("s_add_u32 %s, %s, %d" % (s(sKV), s(sKV), WS_KV))
    A("s_lshl_b32 %s, %s, 12" % (s(sKM), s(sCU)))
    A("s_lshl_b32 %s, %s, 10" % (s(sT + 2), s(sW)))
    A("s_add_u32 %s, %s, %s" % (s(sKM), s(sKM), s(sT + 2)))
    A("s_add_u32 %s, %s, %d" % (s(sKM), s(sKM), WS_KM))
    A("s_lshl_b32 %s, %s, 2" % (s(sT + 2), s(sCU)))
    A("s_add_u32 %s, %s, %s" % (s(sT + 2), s(sT + 2), s(sW)))
    A("s_mul_i32 %s, %s, %d" % (s(sWF), s(sT + 2), 18 * 2048))
    A("s_add_u32 %s, %s, %d" % (s(sWF), s(sWF), WS_WF))
    A("s_add_u32 %s, %s, %d" % (s(sL2a), s(sWF), 16 * 2048))
    A("s_mov_b32 %s, 0x%x" % (s(sC), f32bits(128 ** -0.5 * math.log2(math.e))))

    for i in range(4):
        A("v_mov_b32 %s, -1" % v(40 + i))
    for i in range(4):
        A("buffer_store_dwordx4 %s, %s, %s, %s offen offset:%d%s" % (v(40, 4), v(vL16), s(sWS, 4), s(sRd), 1024 * i, SC))
    for so in (sX1, sX2):
        A("buffer_store_dwordx2 %s, %s, %s, %s offen%s" % (v(40, 2), v(vRst), s(sWS, 4), s(so), SC))
    A("v_lshl_add_u32 %s, %s, 1, %s" % (v(t5), v(t3), v(t2)))
    A("v_mul_u32_u24 %s, 1152, %s" % (v(t5), v(t5)))
    A("v_lshl_add_u32 %s, %s, 3, %s" % (v(t5), v(t4), v(t5)))
    A("s_and_b32 %s, %s, 1" % (s(sT + 2), s(sUnit)))
    A("s_mul_i32 %s, %s, 4608" % (s(sT + 2), s(sT + 2)))
    A("s_bfe_u32 %s, %s, 0x60001" % (s(sT + 3), s(sUnit)))
    A("s_lshl_b32 %s, %s, 5" % (s(sT + 3), s(sT + 3)))
    A("s_add_u32 %s, %s, %s" % (s(sT + 2), s(sT + 2), s(sT + 3)))
    A("buffer_load_dwordx2 %s, %s, %s, %s offen" % (v(44, 2), v(t5), s(sM0, 4), s(sT + 2)))
    A("s_waitcnt vmcnt(0)")
    A("buffer_store_dwordx2 %s, %s, %s, %s offen%s" % (v(44, 2), v(vRst), s(sWS, 4), s(sX0), SC))
    A("s_waitcnt vmcnt(0)")
    A("s_barrier")
    lskip = A.new("noarr")
    A("s_cmp_lg_u32 %s, 0" % s(sW))
    A("s_cbranch_scc1 %s" % lskip)
    A("s_mov_b64 exec, 1")
    A("v_mov_b32 %s, 1" % v(40))
    A("s_lshl_b32 %s, 1, s3" % s(sT + 2))
    A("v_mov_b32 %s, %s" % (v(41), s(sT + 2)))
    A("buffer_atomic_or %s, off, %s, 0 offset:%d sc0" % (v(41), s(sDBG, 4), DBG_TMASK))
    A("s_waitcnt vmcnt(0)")
    A("buffer_atomic_add %s, off, %s, 0 offset:%d" % (v(40), s(sDBG, 4), DBG_TEAM))
    A("s_mov_b64 exec, -1")
    A.label(lskip)

    A("v_lshlrev_b32 %s, 2, %s" % (v(t1), v(t2)))
    A("v_sub_u32 %s, %s, %s" % (v(t1), v(lane), v(t1)))
    A("v_and_b32 %s, 15, %s" % (v(t1), v(t1)))
    A("v_lshlrev_b32 %s, 4, %s" % (v(t1), v(t1)))
    A("v_lshl_add_u32 %s, %s, 13, %s" % (v(vOffW), v(t2), v(t1)))
    A("s_lshl_b32 %s, %s, 8" % (s(sT + 2), s(sCU)))
    A("s_lshl_b32 %s, %s, 17" % (s(sT + 3), s(sW)))
    A("s_add_u32 %s, %s, %s" % (s(sT + 2), s(sT + 2), s(sT + 3)))
    A("v_add_u32 %s, %s, %s" % (v(vOffW), s(sT + 2), v(vOffW)))
    A("v_lshrrev_b32 %s, 3, %s" % (v(t1), v(lane)))
    A("v_mul_u32_u24 %s, 1152, %s" % (v(vOffO), v(t1)))
    A("v_and_b32 %s, 7, %s" % (v(t1), v(lane)))
    A("v_lshl_add_u32 %s, %s, 4, %s" % (v(vOffO), v(t1), v(vOffO)))
    A("s_mul_i32 %s, %s, 147456" % (s(sT + 2), s(sCU)))
    A("s_mul_i32 %s, %s, %d" % (s(sT + 3), s(sW), 32 * 1152))
    A("s_add_u32 %s, %s, %s" % (s(sT + 2), s(sT + 2), s(sT + 3)))
    A("v_add_u32 %s, %s, %s" % (v(vOffO), s(sT + 2), v(vOffO)))
    A("s_lshl_b32 %s, %s, 2" % (s(sT + 2), s(sW)))
    A("v_add_u32 %s, %s, %s" % (v(vColQK), s(sT + 2), v(t4)))
    A("s_lshl_b32 %s, %s, 3" % (s(sT + 2), s(sT)))
    A("s_add_u32 %s, %s, %s" % (s(sT + 2), s(sT + 2), s(sT + 1)))
    A("v_lshl_add_u32 %s, %s, 1, %s" % (v(vColV), v(t4), s(sT + 2)))
    A("v_lshrrev_b32 %s, 1, %s" % (v(t5), v(t2)))
    A("v_lshlrev_b32 %s, 4, %s" % (v(t5), v(t5)))
    A("v_and_b32 %s, 1, %s" % (v(t6), v(t2)))
    A("v_lshl_add_u32 %s, %s, 2, %s" % (v(t5), v(t6), v(t5)))
    A("v_lshrrev_b32 %s, 1, %s" % (v(t6), v(t3)))
    A("v_lshl_add_u32 %s, %s, 3, %s" % (v(t5), v(t6), v(t5)))
    A("v_and_b32 %s, 1, %s" % (v(t6), v(t3)))
    A("v_add_u32 %s, %s, %s" % (v(t5), v(t5), v(t6)))
    A("v_lshlrev_b32 %s, 8, %s" % (v(vTr8), v(t5)))
    A("v_lshlrev_b32 %s, 7, %s" % (v(t5), v(t5)))
    A("v_lshl_add_u32 %s, %s, 3, %s" % (v(vTrO), v(t4), v(t5)))
    A("s_lshl_b32 %s, %s, 5" % (s(sT + 2), s(sW)))
    A("v_add_u32 %s, %s, %s" % (v(vTrO), s(sT + 2), v(vTrO)))
    for col in (vColQK, vColV):
        A("v_lshl_add_u32 %s, %s, 2, %s" % (v(col), v(t6), v(col)))
        A("v_and_b32 %s, 15, %s" % (v(col), v(col)))
        A("v_lshl_add_u32 %s, %s, 4, %s" % (v(col), v(col), v(vTr8)))
    A("s_lshl_b32 %s, %s, 12" % (s(sT), s(sW)))

    chunks = [(m, G) for G in range(9) for m in range(2)] + [(2, G) for G in range(9)] + [(3, G) for G in range(9)]
    NSLOT = 10
    def issue_chunk(c):
        m, G = chunks[c]
        slot = c % NSLOT
        for j in range(4):
            A("s_add_u32 m0, %s, %d" % (s(sT), slot * 16384 + j * 1024))
            if m < 3:
                A("s_mov_b32 %s, %d" % (s(sT + 2), (64 * G + 4 * j) * 8192))
                A.vmem("buffer_load_dwordx4 %s, %s, %s offen lds" % (v(vOffW), s((sWQ, sWK, sWV)[m], 4), s(sT + 2)), ('c', c))
            else:
                A("s_mov_b32 %s, %d" % (s(sT + 2), 8 * j * 1152 + 128 * G))
                A.vmem("buffer_load_dwordx4 %s, %s, %s offen lds" % (v(vOffO), s(sWO, 4), s(sT + 2)), ('c', c))
    TMPF = [12, 20, 28, 36, 44]
    tmpi = [0]
    def get_frag(key, addrs, imms):
        if key in WREGS:
            for q in range(4):
                A.ds("ds_read_b64_tr_b16 %s, %s offset:%d" % (R(WREGS[key] + 2 * q, 2), v(addrs[q & 1]), imms[q]))
            return None
        t = TMPF[tmpi[0] % len(TMPF)]
        tmpi[0] += 1
        for q in range(4):
            A.ds("ds_read_b64_tr_b16 %s, %s offset:%d" % (v(t + 2 * q, 2), v(addrs[q & 1]), imms[q]))
        return (t, SPILL[key])
    def do_spill(lst):
        for t, sp in lst:
            A("s_add_u32 %s, %s, %d" % (s(sT + 2), s(sWF), sp * 2048))
            A.vmem("buffer_store_dwordx4 %s, %s, %s, %s offen" % (v(t, 4), v(vL16), s(sWS, 4), s(sT + 2)), ('sp', t))
            A.vmem("buffer_store_dwordx4 %s, %s, %s, %s offen offset:1024" % (v(t + 4, 4), v(vL16), s(sWS, 4), s(sT + 2)), ('sp', t))

    ljoin = A.new("initjoin")
    lcls = [A.new("cls%d" % i) for i in range(4)]
    for i in (1, 2, 3):
        A("s_cmp_eq_u32 %s, %d" % (s(sW), i))
        A("s_cbranch_scc1 %s" % lcls[i])
    for wc in range(4):
        A.label(lcls[wc])
        A.vm, A.lds = ['x'], []
        tmpi[0] = 0
        for c in range(NSLOT - 1):
            issue_chunk(c)
        for c in range(27):
            m, G = chunks[c]
            A.wait_vm(('c', c))
            A("s_barrier")
            issue_chunk(c + NSLOT - 1)
            A("v_add_u32 %s, %d, %s" % (v(vAd), (c % NSLOT) * 16384, v(vColQK if m < 2 else vColV)))
            A("v_xor_b32 %s, 0x80, %s" % (v(vAd2), v(vAd)))
            addrs = (vAd, vAd2)
            rows = [32 * (q >> 1) + 2 * (q & 1) for q in range(4)]
            j = [GOF(jj, wc) for jj in range(9)].index(G)
            sp = []
            for t in range(2):
                key = ('qk', j, 2 * m + t) if m < 2 else ('v', j, t)
                r = get_frag(key, addrs, [rows[q] * 256 + 8 * t for q in range(4)])
                if r:
                    sp.append(r)
            A.wait_ds()
            do_spill(sp)
        if wc < 3:
            A("s_branch %s" % ljoin)
    A.label(ljoin)
    A("s_waitcnt vmcnt(0)")
    A("s_barrier")
    A.vm, A.lds = [], []
    for G in range(9):
        A("v_add_u32 %s, %d, %s" % (v(vAd), ((27 + G) % NSLOT) * 16384, v(vTrO)))
        sp = []
        for c2 in range(2):
            r = get_frag(('o', 2 * G + c2), (vAd, vAd), [(64 * c2 + 32 * (q >> 1) + 2 * (q & 1)) * 128 for q in range(4)])
            if r:
                sp.append(r)
        A.wait_ds()
        do_spill(sp)
    for G in range(9):
        A("s_add_u32 %s, %s, %d" % (s(sPt + G), s(sP0), G * 32768))
    A("s_mov_b32 %s, 0x%x" % (s(sFlg), OOB))
    A("s_lshl_b32 %s, %s, 7" % (s(sFlgN), s(sCU)))
    A("s_add_u32 %s, %s, %d" % (s(sFlgN), s(sFlgN), FL_PUB))
    A("s_cmp_eq_u32 %s, 3" % s(sW))
    A("s_cselect_b32 %s, %s, 0x%x" % (s(sFlgN), s(sFlgN), OOB))
    A("s_mov_b64 %s, 1" % s(sOne, 2))
    A("s_lshl_b32 %s, %s, 8" % (s(sKF), s(sCU)))
    A("s_add_u32 %s, %s, %d" % (s(sKF), s(sKF), FL_KV))
    A("s_waitcnt vmcnt(0)")
    A("s_barrier")
    A.vm, A.lds = [], []
    A("s_mul_i32 %s, %s, %d" % (s(sT), s(sW), L_WSTRIDE))
    for i in range(32):
        A("s_add_u32 m0, %s, %d" % (s(sT), L_W + i * 1024))
        A("s_add_u32 %s, %s, %d" % (s(sT + 2), s(sWF), i * 1024))
        A("buffer_load_dwordx4 %s, %s, %s offen lds" % (v(vL16), s(sWS, 4), s(sT + 2)))
    def kv_dma():
        return ["s_mov_b32 m0, %s" % s(sKXm),
                "buffer_load_dwordx4 %s, %s, %s offen sc1 lds" % (v(vL16), s(sWS, 4), s(sKV)),
                "buffer_load_dwordx4 %s, %s, %s offen offset:1024 sc1 lds" % (v(vL16), s(sWS, 4), s(sKV)),
                "s_mov_b32 m0, %s" % s(sVX),
                "buffer_load_dwordx4 %s, %s, %s offen sc1 lds" % (v(vL16), s(sWS, 4), s(sKVv)),
                "buffer_load_dwordx4 %s, %s, %s offen offset:1024 sc1 lds" % (v(vL16), s(sWS, 4), s(sKVv))]
    def land(key, half=None):
        sp = SPILL[key]
        for hh in ((0, 1) if half is None else (half,)):
            if sp < 16:
                A.ds("ds_read_b128 %s, %s offset:%d" % (v(LND + 8 * SLOT[key] + 4 * hh, 4), v(vWL), sp * 2048 + 1024 * hh), key)
            else:
                A.vmem("buffer_load_dwordx4 %s, %s, %s, %s offen offset:%d" % (v(LND + 8 * SLOT[key] + 4 * hh, 4), v(vL16), s(sWS, 4), s(sL2a), 1024 * hh), key)
    def zero(lo, hi):
        for r in range(lo, hi, 2):
            A("v_mov_b64 %s, 0" % v(r, 2))
    KVINC = 0 if "samekv" in opt else KVSTEP
    def kv_refresh(lback):
        lp = A.new("kvr")
        A("v_lshrrev_b32 %s, 2, %s" % (v(VACC + 4), v(vL16)))
        A.label(lp)
        A("buffer_load_dword %s, %s, %s, %s offen sc1" % (v(vTmp), v(VACC + 4), s(sWS, 4), s(sKF)))
        A("s_waitcnt vmcnt(0)")
        A("v_cmp_ne_u32 %s, 0, %s" % (s(sRdy, 2), v(vTmp)))
        A("s_nop 3")
        A("s_bitcmp1_b64 %s, %s" % (s(sRdy, 2), s(sStep)))
        A("s_cbranch_scc1 %s" % lback)
        A("s_sub_u32 %s, %s, 1" % (s(sBud), s(sBud)))
        A("s_cbranch_scc0 %s" % lp)
        A("s_mov_b32 %s, 0" % s(sBud))
        A("s_branch %s" % lback)
    if "tt" in opt:
        A("s_memrealtime s[66:67]")
    if hooks and 'kv_wait0' in hooks:
        hooks['kv_wait0'](A)
        l0 = A.new("kv0")
        kv_refresh(l0)
        A.label(l0)
    if "tt" in opt:
        A("s_memrealtime s[68:69]")
    A("s_waitcnt vmcnt(0)")
    for ch in QK_CHAIN:
        land(ch[0])
    zero(QK, RING)
    lp, lo = A.new("tb"), A.new("tbok")
    A.label(lp)
    A("buffer_load_dword %s, off, %s, 0 offset:%d sc1" % (v(vTmp), s(sDBG, 4), DBG_TEAM))
    A("s_waitcnt vmcnt(0)")
    A("v_cmp_gt_u32 vcc, 32, %s" % v(vTmp))
    A("s_cbranch_vccz %s" % lo)
    A("s_sub_u32 %s, %s, 1" % (s(sBud), s(sBud)))
    A("s_cbranch_scc0 %s" % lp)
    A("s_mov_b32 %s, 0" % s(sBud))
    A.label(lo)
    A("buffer_load_dword %s, off, %s, 0 offset:%d sc1" % (v(vTmp), s(sDBG, 4), DBG_TMASK))
    A("s_waitcnt vmcnt(0) lgkmcnt(0)")
    A("v_readfirstlane_b32 %s, %s" % (s(sT), v(vTmp)))
    A("s_nop 3")
    A("s_bcnt1_i32_b32 %s, %s" % (s(sT), s(sT)))
    lslow = A.new("slow")
    A("s_cmp_lg_u32 %s, 1" % s(sT))
    A("s_cbranch_scc1 %s" % lslow)
    def loop(SC):
        lentry, lexit = A.new("entry"), A.new("exit")
        lok1, lnored, lb4 = A.new("ok1"), A.new("nored"), A.new("b4")
        ls1, ls1w, l1a = A.new("s1"), A.new("s1w"), A.new("p1a")
        ls1r, ls2r, ls2ok, ls3r, ls3ok, l1r = A.new("s1r"), A.new("s2r"), A.new("s2ok"), A.new("s3r"), A.new("s3ok"), A.new("p1r")
        A("s_branch %s" % ls1)

        def SM(acc, afr, breg):
            A("v_smfmac_f32_16x16x64_bf16 %s, %s, %s, %s" % (v(acc, 4), v(afr, 4), breg, v(vIdx)))
        def MF(d, a_, b_, c_):
            A("v_mfma_f32_16x16x32_bf16 %s, %s, %s, %s" % (v(d, 4), v(a_, 4), v(b_, 4), c_))
        def fragaddr(j):
            if j == 8:
                return vL16, 8192
            return (vT0, vT1, vT2, vT2)[j & 3], (j & 4) * 1024 + (1024 if (j & 3) == 3 else 0)
        def ringrd(j, slot):
            b, o = fragaddr(j)
            A.ds("ds_read_b128 %s, %s offset:%d" % (v(RING + 4 * slot, 4), v(b), L_MEM + o), ('ring', j))
        def mbload(dst, j):
            if j == 8:
                A("buffer_load_dwordx4 %s, %s, %s, %s offen sc1" % (v(dst, 4), v(vL16), s(sWS, 4), s(sX8)))
            else:
                A("buffer_load_dwordx4 %s, %s, %s, %s offen sc1" % (v(dst, 4), v(fragaddr(j)[0]), s(sWS, 4), s(sX4 if j & 4 else sX0)))
        def check(base, n):
            A("v_max3_u32 %s, %s, %s, %s" % (v(vTmp), v(base), v(base + 1), v(base + 2)))
            for i in range(3, n - 1, 2):
                A("v_max3_u32 %s, %s, %s, %s" % (v(vTmp), v(vTmp), v(base + i), v(base + i + 1)))
            A("v_max_u32 %s, %s, %s" % (v(vTmp), v(vTmp), v(base + n - 1)))
            A("v_cmp_eq_u32 vcc, -1, %s" % v(vTmp))
        def budget(lagain, lgiveup):
            A("s_sub_u32 %s, %s, 1" % (s(sBud), s(sBud)))
            A("s_cbranch_scc0 %s" % lagain)
            A("s_mov_b32 %s, 0" % s(sBud))
            A("s_branch %s" % lgiveup)
        PLA = [12, 16, 20, 24]
        RACC, SEL = 28, 32
        def poll1_issue(PL):
            for i in range(4):
                A("buffer_load_dwordx4 %s, %s, %s, %s offen offset:%d sc1" % (v(PL[i], 4), v(vL16), s(sWS, 4), s(sRd), 1024 * i))
        def wait_many(keys):
            idx = [i for i, t in enumerate(A.lds) if t in keys]
            if idx:
                A.wait_ds(A.lds[idx[-1]])
        def endstep():
            for ch in QK_CHAIN:
                land(ch[0])
            A("s_mov_b32 %s, %s" % (s(sT), s(sX0)))
            A("s_mov_b32 %s, %s" % (s(sX0), s(sX1)))
            A("s_mov_b32 %s, %s" % (s(sX1), s(sX2)))
            A("s_mov_b32 %s, %s" % (s(sX2), s(sT)))
        PUB = "" if "pubplain" in opt else " sc1"
        def optval(name, dflt):
            for o in opt:
                if o.startswith(name + "="):
                    return int(o.split("=")[1])
            return dflt
        LWAIT, S1DEPTH = optval("lwait", 3), optval("s1d", 2)
        sX4, sX8 = sP1, sP2
        F8 = RING + 4
        PLB = [LND, LND + 4, LND + 8, LND + 12]
        def reduce_body(PL, n_after):
            A("s_waitcnt vmcnt(%d)" % n_after)
            MF(RACC, SEL, PL[0], "0")
            A("v_bitop3_b32 %s, %s, %s, %s bitop3:0x7e" % (v(vTmp), v(PL[0]), v(PL[1]), s(sPh)))
            A("v_bitop3_b32 %s, %s, %s, %s bitop3:0x7e" % (v(45), v(PL[2]), v(PL[3]), s(sPh)))
            MF(RACC, SEL, PL[1], v(RACC, 4))
            A("v_bitop3_b32 %s, %s, %s, 1 bitop3:0xa8" % (v(vTmp), v(vTmp), v(45)))
            A("v_cmp_ne_u32 vcc, 0, %s" % v(vTmp))
            MF(RACC, SEL, PL[2], v(RACC, 4))
            MF(RACC, SEL, PL[3], v(RACC, 4))
        def mksel():
            for u in range(4):
                A("v_cndmask_b32 %s, 0, %s, %s" % (v(SEL + u), v(vSelV), s(sSel + 2 * u, 2)))
        def s1load(base):
            mbload(base, 0)
            mbload(base + 4, 1)
        def rotate():
            A("s_mov_b32 %s, %s" % (s(sT), s(sX0)))
            A("s_mov_b32 %s, %s" % (s(sX0), s(sX1)))
            A("s_mov_b32 %s, %s" % (s(sX1), s(sX2)))
            A("s_mov_b32 %s, %s" % (s(sX2), s(sT)))
            A("s_add_u32 %s, %s, 4096" % (s(sX4), s(sX0)))
            A("s_add_u32 %s, %s, 8192" % (s(sX8), s(sX0)))
        lgo1 = A.new("go1")
        lkvr, lkvok = A.new("kvrf"), A.new("kvok")
        if "mega" in opt:
            A.label(lkvr)
            kv_refresh(lkvok)
        A.label(lnored)
        A("s_cmp_eq_u32 %s, -1" % s(sUnit))
        A("s_waitcnt vmcnt(%d)" % LWAIT)
        A("s_cbranch_scc0 %s" % lgo1)
        rotate()
        for i in range(0, 8, 2):
            A("v_mov_b64 %s, -1" % v(RING + i, 2))
        if "noflag" in opt:
            A("s_waitcnt vmcnt(0)")
        else:
            lf = A.new("flag")
            A("v_mov_b32 %s, %d" % (v(46), L_FLAG))
            A.label(lf)
            A("ds_read_b32 %s, %s" % (v(vTmp), v(46)))
            A("s_waitcnt lgkmcnt(0)")
            A("v_cmp_eq_u32 vcc, %s, %s" % (s(sStep), v(vTmp)))
            A("s_cbranch_vccnz %s" % lb4)
            budget(lf, lb4)
        A("s_branch %s" % lb4)
        def s2load():
            mbload(VACC, 4)
            A("buffer_load_dword %s, %s, %s, %s offen sc1" % (v(VACC + 4), v(VACC + 5), s(sWS, 4), s(sX8)))
        def s2check():
            A("v_max3_u32 %s, %s, %s, %s" % (v(vTmp), v(VACC), v(VACC + 1), v(VACC + 2)))
            A("v_max3_u32 %s, %s, %s, %s" % (v(vTmp), v(vTmp), v(VACC + 3), v(VACC + 4)))
            A("v_cmp_eq_u32 vcc, -1, %s" % v(vTmp))
        A.label(ls2r)
        if "tt" in opt:
            A("s_add_u32 s88, s88, 1")
        s2load()
        A("s_waitcnt vmcnt(2)")
        s2check()
        A("s_cbranch_vccz %s_d" % ls2r)
        budget(ls2r, ls2r + "_d")
        A.label(ls2r + "_d")
        A("s_waitcnt vmcnt(0)")
        A("s_branch %s" % ls2ok)
        A.label(ls1)
        A("s_add_u32 %s, %s, 4096" % (s(sX4), s(sX0)))
        A("s_add_u32 %s, %s, 8192" % (s(sX8), s(sX0)))
        s1load(RING)
        A("v_lshrrev_b32 %s, 2, %s" % (v(VACC + 5), v(vT0)))
        A("s_waitcnt vmcnt(0)")
        A("s_branch %s" % ls1w)
        A(".p2align 6")
        A.label(ls1r)
        A("s_sub_u32 %s, %s, 1" % (s(sBud), s(sBud)))
        A("s_cbranch_scc1 %s_give" % ls1r)
        s1load(RING)
        A("s_waitcnt vmcnt(%d)" % S1DEPTH)
        A.label(ls1w)
        check(RING, 8)
        A("s_cbranch_vccnz %s" % ls1r)
        A.label(lentry)
        A.lds, A.vm = [], []
        if "tt" in opt:
            lt = A.new("tt")
            A("s_cmp_lg_u32 %s, 3" % s(sStep))
            A("s_cbranch_scc1 %s" % lt)
            A("s_memtime s[92:93]")
            A.label(lt)
        stamp()
        KXR = {(tl, ks): LND + 8 * (ks % 3) + 4 * tl for tl in range(2) for ks in range(4)}
        def kxrd(tl, ks):
            A.ds("ds_read_b128 %s, %s offset:%d" % (v(KXR[(tl, ks)], 4), v(vL16), L_KX + (4 * tl + ks) * 1024), ('kx', tl, ks))
        AREG = {0: RING, 1: RING + 4, 2: RING + 8, 3: RING, 4: VACC, 5: RING + 4, 6: RING + 8, 7: RING, 8: RING + 4}
        def Q(j, t):
            key = ('qk', j, t)
            SM(QK + 4 * t, AREG[j], R(WREGS[key], 8) if key in WREGS else v(LND + 8 * SLOT[key], 8))
        L = lambda j, t, hh: land(('qk', j, t), hh)
        def touch(o):
            if "notouch" not in opt:
                A.vmem("buffer_load_dword %s, %s, %s offen offset:%d sc1 lds" % (v(VACC + 6), s(sWS, 4), s(sKVt), o), 'touch')
        kd = kv_dma()
        A.ds("ds_write_b128 %s, %s offset:%d" % (v(vT0), v(RING, 4), L_MEM), 'w1')
        s2load()
        Q(0, 0); L(3, 0, 0)
        Q(0, 1); L(3, 0, 1)
        Q(0, 2); L(5, 2, 0)
        Q(0, 3); L(5, 2, 1)
        A.wait_ds('w1')
        Q(1, 0)
        A("s_barrier")
        ringrd(2, 2)
        stamp()
        Q(1, 1); L(3, 1, 0)
        Q(1, 2); L(3, 1, 1)
        if "mega" in opt:
            A("v_cndmask_b32 %s, 2.0, 0, %s" % (v(VACC + 7), s(sOne, 2)))
        if hooks and 'after_b1' in hooks:
            hooks['after_b1'](A)
        Q(1, 3); A(kd[0])
        A.wait_ds(('ring', 2))
        Q(2, 0); A("s_waitcnt vmcnt(4)")
        ringrd(3, 0)
        Q(2, 1); A("v_lshlrev_b32 %s, 3, %s" % (v(VACC + 6), v(vL16)))
        Q(2, 2); A("s_add_u32 %s, %s, 1" % (s(sStep), s(sStep)))
        Q(2, 3)
        A.wait_ds(('ring', 3))
        Q(3, 0); A("s_waitcnt vmcnt(2)")
        s2check()
        Q(3, 1); L(6, 0, 0)
        Q(3, 2); L(6, 0, 1)
        A("s_cbranch_vccnz %s" % ls2r)
        A.label(ls2ok)
        A.ds("ds_write_b128 %s, %s offset:%d" % (v(vT0), v(VACC, 4), L_MEM + 4096), 'w2')
        Q(3, 3)
        A.ds("ds_write_b32 %s, %s offset:%d" % (v(VACC + 5), v(VACC + 4), L_MEM + 8192), 'w2')
        Q(4, 0); A.vmem(kd[1], 'kdma')
        Q(4, 1); L(6, 1, 0)
        Q(4, 2); L(6, 1, 1)
        A.wait_ds('w2')
        A("s_barrier")
        ringrd(5, 1)
        ringrd(6, 2)
        Q(4, 3); ringrd(7, 0)
        A.vmem(kd[2], 'kdma')
        A(kd[3])
        A.wait_ds(('ring', 5))
        Q(5, 0); A.vmem(kd[4], 'vdma')
        Q(5, 1); A.wait_vm(L2KEY)
        if "mega" in opt:
            A("s_bitcmp1_b64 %s, %s" % (s(sRdy, 2), s(sStep)))
        Q(5, 2); L(8, 1, 0)
        Q(5, 3); ringrd(8, 1)
        A.wait_ds(('ring', 7))
        Q(6, 0); A.vmem(kd[5], 'vdma')
        Q(6, 1); L(8, 1, 1)
        A("s_mov_b32 m0, %d" % (L_SCR + 512))
        Q(6, 2); L(8, 2, 0)
        if "mega" in opt:
            A("s_cbranch_scc0 %s" % lkvr)
            A.label(lkvok)
        Q(6, 3); touch(0)
        Q(7, 0); L(8, 2, 1)
        Q(7, 1); L(8, 3, 0)
        Q(7, 2); L(8, 3, 1)
        Q(7, 3)
        if "mega" in opt:
            A.vmem("buffer_store_dword %s, %s, %s, %s offen sc1" % (v(vIdx), v(VACC + 7), s(sWS, 4), s(sFlg)), 'flag')
        A("v_mov_b64 %s, 0" % v(VACC, 2))
        A.wait_ds(('qk', 8, 1))
        Q(8, 0); A("v_mov_b64 %s, 0" % v(VACC + 2, 2))
        Q(8, 1); A("v_mov_b64 %s, 0" % v(VACC + 4, 2))
        A.wait_ds(('qk', 8, 3))
        Q(8, 2); A("v_mov_b64 %s, 0" % v(VACC + 6, 2))
        Q(8, 3); A("v_lshrrev_b32 %s, 2, %s" % (v(vTmp), v(vL16)))
        stamp()
        VA = {7: RING, 8: RING + 4, 6: RING + 8, 0: RING, 1: RING + 4, 2: RING + 8, 3: RING, 4: RING + 4, 5: RING + 8}
        def VS(j, t):
            A.wait_ds(('ring', j))
            SM(VACC + 4 * t, VA[j], R(WREGS[('v', j, t)], 8))
        VS(7, 0); A("s_add_u32 %s, %s, %d" % (s(sKVt), s(sKVt), KVINC))
        VS(7, 1); ringrd(0, 0)
        def fin(base):
            A("v_add_f32 %s, %s, %s" % (v(base), v(base), v(base + 1)))
            A("v_add_f32 %s, %s, %s" % (v(base + 2), v(base + 2), v(base + 3)))
            A("v_add_f32 %s, %s, %s" % (v(base + 4), v(base + 4), v(base + 5)))
            A("v_add_f32 %s, %s, %s" % (v(base + 6), v(base + 6), v(base + 7)))
            A("v_cvt_pk_bf16_f32 %s, %s, %s" % (v(base), v(base), v(base + 4)))
            A("v_cvt_pk_bf16_f32 %s, %s, %s" % (v(base + 1), v(base + 2), v(base + 6)))
        def finw(base):
            o = 8 if base == QK else 0
            A.ds("ds_write2_b32 %s, %s, %s offset0:%d offset1:%d" % (v(vFw), v(base), v(base + 1), o, o + 4), 'fw')
        def pub(reg, off):
            if "nopub" not in opt:
                A.vmem("buffer_store_dword %s, %s, %s, %s offen offset:%d%s" % (v(reg), v(vTmp), s(sWS, 4), s(sKM), off, PUB), 'pub')
        fin(QK)
        fin(QK + 8)
        finw(QK)
        finw(QK + 8)
        VS(8, 0); pub(QK + 8, 0)
        VS(8, 1); ringrd(1, 1)
        VS(6, 0); pub(QK + 9, 256)
        VS(6, 1); A.wait_vm('kdma')
        A.wait_ds('fw')
        A("s_barrier")
        for ks in range(4):
            A.ds("ds_read_b128 %s, %s offset:%d" % (v(QK + 4 * ks, 4), v(vL16), L_F + ks * FSTR), ('f', ks))
        ringrd(2, 2)
        stamp()
        VS(0, 0)
        if "mega" in opt:
            A("s_mov_b32 %s, %s" % (s(sFlg), s(sFlgN)))
        VS(0, 1); ringrd(3, 0)
        VS(1, 0)
        if "mega" in opt:
            A("s_add_u32 %s, %s, 4096" % (s(sFlgN), s(sFlgN)))
        VS(1, 1); ringrd(4, 1)
        VS(2, 0); kxrd(0, 0)
        VS(2, 1); ringrd(5, 2)
        VS(3, 0); kxrd(1, 0)
        VS(3, 1); kxrd(0, 1)
        VS(4, 0); kxrd(1, 1)
        VS(4, 1); kxrd(0, 2)
        VS(5, 0); kxrd(1, 2)
        VS(5, 1)
        T1, T2, T0 = RING, RING + 4, RING + 8
        ONES, LACC, OACC = QK + 8, QK + 12, LND + 16
        def S(i, ks):
            d, a_ = ((T1, KXR[(0, ks)]), (T2, KXR[(1, ks)]), (T0, QK + 4 * ks))[i]
            MF(d, a_, QK + 4 * ks, "0" if ks == 0 else v(d, 4))
        def vfin(t, part):
            b = VACC + 4 * t
            if part == 0:
                A("v_add_f32 %s, %s, %s" % (v(b), v(b), v(b + 1)))
                A("v_add_f32 %s, %s, %s" % (v(b + 2), v(b + 2), v(b + 3)))
            else:
                A("v_cvt_pk_bf16_f32 %s, %s, %s" % (v(b), v(b), v(b + 2)))
                A("v_mov_b32 %s, 0" % v(b + 1))
        def vxrd(t):
            A.ds("ds_read_b128 %s, %s offset:%d" % (v(QK + 4 * t, 4), v(vWL), 32768 + t * 1024), 'vx')
        A.wait_ds(('kx', 1, 0))
        S(0, 0); kxrd(0, 3)
        S(1, 0); kxrd(1, 3)
        A.wait_vm('vdma')
        S(2, 0); vxrd(0)
        A.wait_ds(('kx', 1, 1))
        S(0, 1); A("s_cmp_eq_u32 %s, %d" % (s(sStep), nsteps))
        S(1, 1); land(('o', 1), 0)
        vfin(0, 0)
        S(2, 1); land(('o', 1), 1)
        vfin(0, 1)
        A.wait_ds(('kx', 1, 2))
        S(0, 2); vxrd(1)
        vfin(1, 0)
        S(1, 2); pub(VACC, 512)
        vfin(1, 1)
        S(2, 2); A.wait_ds(('kx', 1, 3))
        S(0, 3); pub(VACC + 4, 768)
        S(1, 3); land(('o', 0), 0)
        S(2, 3); land(('o', 0), 1)
        A("s_cbranch_scc1 %s" % lexit)
        A("s_add_u32 %s, %s, %d" % (s(sKM), s(sKM), 32 * 4096))
        A("v_mov_b32 %s, 0x3f803f80" % v(ONES))
        stamp()
        sv = [T1, T1 + 1, T1 + 2, T1 + 3, T2, T2 + 1, T2 + 2, T2 + 3, T0, T0 + 1]
        m1, m2 = OACC, OACC + 1
        A("v_max3_f32 %s, %s, %s, %s" % (v(m1), v(sv[0]), v(sv[1]), v(sv[2])))
        A("v_mov_b32 %s, 0x3f803f80" % v(ONES + 1))
        A("v_max3_f32 %s, %s, %s, %s" % (v(m1), v(m1), v(sv[3]), v(sv[4])))
        A("v_max3_f32 %s, %s, %s, %s" % (v(m1), v(m1), v(sv[5]), v(sv[6])))
        A("v_max3_f32 %s, %s, %s, %s" % (v(m1), v(m1), v(sv[7]), v(sv[8])))
        A("v_max_f32 %s, %s, %s" % (v(m2), v(m1), v(sv[9])))
        A("v_max_f32 %s, %s, %s" % (v(m1), v(m1), v(sv[9])))
        A("v_mov_b32 %s, 0x3f803f80" % v(ONES + 2))
        A("v_mov_b32 %s, 0x3f803f80" % v(ONES + 3))
        A("v_permlane32_swap_b32 %s, %s" % (v(m1), v(m2)))
        A("v_max_f32 %s, %s, %s" % (v(m1), v(m1), v(m2)))
        A("v_mov_b32 %s, %s" % (v(m2), v(m1)))
        A("s_nop 1")
        A("v_permlane16_swap_b32 %s, %s" % (v(m1), v(m2)))
        A("v_max_f32 %s, %s, %s" % (v(m1), v(m1), v(m2)))
        A("v_mul_f32 %s, %s, %s" % (v(m1), s(sC), v(m1)))
        for x in sv:
            A("v_fma_f32 %s, %s, %s, -%s" % (v(x), v(x), s(sC), v(m1)))
        P, Pm = T1, T0
        for x in sv[:8]:
            A("v_exp_f32 %s, %s" % (v(x), v(x)))
        A("v_cvt_pk_bf16_f32 %s, %s, %s" % (v(P), v(T1), v(T1 + 1)))
        A("v_cvt_pk_bf16_f32 %s, %s, %s" % (v(P + 1), v(T1 + 2), v(T1 + 3)))
        A("v_cvt_pk_bf16_f32 %s, %s, %s" % (v(P + 2), v(T2), v(T2 + 1)))
        A("v_cvt_pk_bf16_f32 %s, %s, %s" % (v(P + 3), v(T2 + 2), v(T2 + 3)))
        A("v_exp_f32 %s, %s" % (v(T0), v(T0)))
        A.wait_ds('vx')
        A("v_exp_f32 %s, %s" % (v(T0 + 1), v(T0 + 1)))
        MF(LACC, ONES, P, "0")
        A("v_cvt_pk_bf16_f32 %s, %s, %s" % (v(Pm), v(T0), v(T0 + 1)))
        A("v_mov_b32 %s, 0" % v(Pm + 1))
        MF(OACC, QK, P, "0")
        MF(OACC + 4, QK + 4, P, "0")
        A("v_mfma_f32_16x16x16_bf16 %s, %s, %s, %s" % (v(LACC, 4), v(ONES, 2), v(Pm, 2), v(LACC, 4)))
        for t in range(2):
            A("v_mfma_f32_16x16x16_bf16 %s, %s, %s, %s" % (v(OACC + 4 * t, 4), v(VACC + 4 * t, 2), v(Pm, 2), v(OACC + 4 * t, 4)))
        zero(12, 24)
        A("v_rcp_f32 %s, %s" % (v(vTmp), v(LACC)))
        A("v_mov_b64 %s, 0" % v(24, 2))
        for i in range(8):
            A("v_mul_f32 %s, %s, %s" % (v(OACC + i), v(OACC + i), v(vTmp)))
        OP = T2
        for i in range(4):
            A("v_cvt_pk_bf16_f32 %s, %s, %s" % (v(OP + i), v(OACC + 2 * i), v(OACC + 2 * i + 1)))
        A.ds("ds_write_b128 %s, %s" % (v(vOw), v(OP, 4)), 'ow')
        A("v_mov_b64 %s, -1" % v(36, 2))
        A("v_cndmask_b32 %s, 0, 1, %s" % (v(vTmp), s(sTagM, 2)))
        A.vmem("buffer_store_dwordx2 %s, %s, %s, %s offen%s" % (v(36, 2), v(vRst), s(sWS, 4), s(sX2), SC), 'rst')
        zero(26, 36)
        A.wait_ds('ow')
        A("s_barrier")
        OF = LND + 16
        for c2 in range(2):
            A.ds("ds_read_b128 %s, %s offset:%d" % (v(OF + 4 * c2, 4), v(vL16), L_O + c2 * 1024), ('of', c2))
        stamp()
        zero(36, 48)
        def wacc(tile):
            return 12 + 4 * tile
        def W(p, c2):
            key = ('o', 2 * p + c2)
            wait_many([('of', c2), key])
            SM(wacc(p), OF + 4 * c2, R(WREGS[key], 8) if key in WREGS else v(LND + 8 * SLOT[key], 8))
        def e1(tile):
            b = wacc(tile)
            A("v_add_f32 %s, %s, %s" % (v(b + 1), v(b), v(b + 1)))
            A("v_add_f32 %s, %s, %s" % (v(b + 3), v(b + 2), v(b + 3)))
        def e2(tile):
            b = wacc(tile)
            A("v_cvt_pk_bf16_f32 %s, %s, %s" % (v(b), v(b + 1), v(b + 3)))
            A("v_bfi_b32 %s, %s, %s, %s" % (v(b), v(vTmp), s(sPh), v(b)))
        def e3(tile):
            A("buffer_store_dword %s, %s, %s, %s offen%s" % (v(wacc(tile)), v(vPst), s(sWS, 4), s(sPt + tile), SC))
        LO = lambda n, hh: land(('o', n), hh)
        W(0, 0); LO(8, 0)
        W(0, 1); LO(8, 1)
        W(1, 0); LO(9, 0)
        W(1, 1); LO(9, 1)
        W(2, 0); A("s_add_u32 %s, %s, %d" % (s(sKV), s(sKV), KVINC))
        A("s_add_u32 %s, %s, %d" % (s(sKVv), s(sKVv), KVINC))
        e1(0)
        W(2, 1); e2(0)
        for p in range(3, 9):
            W(p, 0); e3(p - 3)
            if p == 5:
                LO(16, 0)
            e1(p - 2)
            W(p, 1)
            if p == 4:
                LO(16, 1)
            if p == 5:
                LO(17, 0)
            if p == 6:
                LO(17, 1)
            if p == 7:
                A("s_cmp_ge_u32 %s, 32" % s(sUnit))
            e2(p - 2)
        e3(6)
        e1(7); e2(7); e3(7)
        e1(8); e2(8); e3(8)
        A("s_cbranch_scc1 %s" % lnored)
        A.label(lgo1)
        poll1_issue(PLA)
        stamp()
        mksel()
        rotate()
        for i in range(0, 8, 2):
            A("v_mov_b64 %s, -1" % v(RING + i, 2))
        A("v_mov_b32 %s, %d" % (v(46), L_FLAG))
        A("v_mov_b32 %s, %s" % (v(47), s(sStep)))
        for i in range(optval("p1g", 0)):
            A("s_nop 7")
        if "p1one" in opt:
            reduce_body(PLA, 0)
            A("s_cbranch_vccz %s" % lok1)
            poll1_issue(PLA)
            A("s_nop 15")
        poll1_issue(PLB)
        A.label(l1a)
        reduce_body(PLA, 4)
        A("s_cbranch_vccz %s" % lok1)
        if "tt" in opt:
            A("s_add_u32 s87, s87, 1")
        poll1_issue(PLA)
        reduce_body(PLB, 4)
        A("s_cbranch_vccz %s" % lok1)
        if "tt" in opt:
            A("s_add_u32 s87, s87, 1")
        poll1_issue(PLB)
        A("s_sub_u32 %s, %s, 1" % (s(sBud), s(sBud)))
        A("s_cbranch_scc0 %s" % l1a)
        A("s_mov_b32 %s, 0" % s(sBud))
        A.label(lok1)
        A("ds_write_b32 %s, %s" % (v(46), v(47)))
        if "early1" in opt:
            s1load(RING)
            A("s_nop 3")
        else:
            A("s_nop 5")
        for i in range(4):
            A("v_add_f32_dpp %s, %s, %s row_ror:8 row_mask:0xf bank_mask:0xf" % (v(RACC + i), v(RACC + i), v(RACC + i)))
        A("v_cvt_pk_bf16_f32 %s, %s, %s" % (v(44), v(RACC), v(RACC + 1)))
        A("v_cvt_pk_bf16_f32 %s, %s, %s" % (v(45), v(RACC + 2), v(RACC + 3)))
        A("buffer_store_dwordx2 %s, %s, %s, %s offen%s" % (v(44, 2), v(vRst), s(sWS, 4), s(sX0), SC))
        stamp()
        A.label(lb4)
        s1load(RING)
        A("s_waitcnt vmcnt(%d)" % (5 if "early1" in opt else 3))
        for ch in QK_CHAIN:
            land(ch[0])
        zero(QK, RING)
        A("v_lshrrev_b32 %s, 2, %s" % (v(VACC + 5), v(vT0)))
        A("s_xor_b32 %s, %s, 1" % (s(sPh), s(sPh)))
        A("s_waitcnt lgkmcnt(0)")
        if stamps:
            ldump = A.new("dump")
            A("s_cmp_eq_u32 %s, 41" % s(sStep))
            A("s_cbranch_scc1 %s" % ldump)
            A("s_cmp_eq_u32 %s, 42" % s(sStep))
            A("s_cbranch_scc0 %s" % ls1w)
            A.label(ldump)
            for i in range(10):
                A("v_writelane_b32 %s, %s, %d" % (v(vTmp), s(sStamp + 2 * i), i))
            A("v_writelane_b32 %s, %s, %d" % (v(vTmp), s(sBud), 15))
            A("s_lshl_b32 %s, %s, 2" % (s(sT), s(sCU)))
            A("s_add_u32 %s, %s, %s" % (s(sT), s(sT), s(sW)))
            A("s_lshl_b32 %s, %s, 1" % (s(sT), s(sT)))
            A("s_add_u32 %s, %s, %s" % (s(sT), s(sT), s(sStep)))
            A("s_sub_u32 %s, %s, 41" % (s(sT), s(sT)))
            A("s_lshl_b32 %s, %s, 10" % (s(sT), s(sT)))
            A("s_add_u32 %s, %s, %d" % (s(sT), s(sT), WS_DBG + (3 << 18 if "mega" in opt else 0)))
            A("buffer_store_dword %s, %s, %s, %s offen" % (v(vTmp), v(vL16), s(sWS, 4), s(sT)))
            A("s_waitcnt vmcnt(0)")
        A("s_branch %s" % ls1w)
        A.label(ls1r + "_give")
        A("s_mov_b32 %s, 0" % s(sBud))
        A("s_branch %s" % lentry)
        A.label(lexit)
        if "mega" in opt:
            A("s_waitcnt vmcnt(0)")
            A("s_barrier")
            A("v_cndmask_b32 %s, 2.0, 0, %s" % (v(VACC + 7), s(sOne, 2)))
            A("buffer_store_dword %s, %s, %s, %s offen sc1" % (v(vIdx), v(VACC + 7), s(sWS, 4), s(sFlg)))
        if "tt" in opt:
            A("s_memtime s[94:95]")
            A("s_memrealtime s[70:71]")
            A("s_waitcnt lgkmcnt(0)")
            A("s_sub_u32 s94, s94, s92")
            A("s_sub_u32 s92, s92, s90")
            A("v_writelane_b32 %s, s92, 0" % v(vTmp))
            A("v_writelane_b32 %s, s94, 1" % v(vTmp))
            A("v_writelane_b32 %s, %s, 2" % (v(vTmp), s(sBud)))
            for i in range(3):
                A("v_writelane_b32 %s, s%d, %d" % (v(vTmp), 87 + i, 3 + i))
            for i in range(4):
                A("v_writelane_b32 %s, s%d, %d" % (v(vTmp), 64 + 2 * i, 6 + i))
            A("s_lshl_b32 %s, %s, 2" % (s(sT), s(sCU)))
            A("s_add_u32 %s, %s, %s" % (s(sT), s(sT), s(sW)))
            A("s_lshl_b32 %s, %s, 10" % (s(sT), s(sT)))
            A("s_add_u32 %s, %s, %d" % (s(sT), s(sT), WS_DBG + (1 << 19)))
            A("buffer_store_dword %s, %s, %s, %s offen" % (v(vTmp), v(vL16), s(sWS, 4), s(sT)))
        A("s_waitcnt vmcnt(0)")

    loop(" sc1" if "forcesc1" in opt else "")
    A("s_endpgm")
    A.label(lslow)
    nst[0] = 0
    loop(" sc1")
```

```python
from asmlib import *
from layout import *
import struct, math

def f32bits(x):
    return struct.unpack("<I", struct.pack("<f", x))[0]

sWS, sW1, sW2, sW3, sWO, sXS, sDBG = 4, 8, 12, 16, 20, 24, 28
sWid, sW, sSl, sRep, sSeg, sBud = 32, 33, 34, 35, 36, 37
sA0 = 38
sT = 60
sMask = 64
sSel = 80
vL16, vLane, vG, vC, vX, vTmp, vFl = 0, 1, 2, 3, 4, 5, 6
NSLOT = 9
L_SCR = 147456

TS = {'on': False, 'reg': 15}
sTsI = 98
def ts(A, idx=None):
    if not TS['on'] or (TS.get('fine') and idx is None):
        return
    A("s_memrealtime s[96:97]")
    A("s_waitcnt lgkmcnt(0)")
    A.lds = []
    if idx is None:
        A("s_mov_b32 m0, %s" % s(sTsI))
        A("s_add_u32 %s, %s, 1" % (s(sTsI), s(sTsI)))
        A("v_writelane_b32 %s, s96, m0" % v(TS['reg']))
    else:
        A("v_writelane_b32 %s, s96, %d" % (v(TS['reg']), idx))
def fs(A, idx):
    if TS.get('fine'):
        A("s_memtime s[96:97]")
        A("s_waitcnt lgkmcnt(0)")
        A.lds = []
        A("v_writelane_b32 %s, s96, %d" % (v(TS['reg']), idx))
def ts_dump(A, part):
    if not TS['on']:
        return
    A("s_lshl_b32 s96, %s, 2" % s(sWid))
    A("s_add_u32 s96, s96, %s" % s(sW))
    A("s_lshl_b32 s96, s96, 9")
    A("s_add_u32 s96, s96, %d" % (WS_DBG + part * 256))
    A("v_lshlrev_b32 %s, 2, %s" % (v(vTmp), v(vLane)))
    A("buffer_store_dword %s, %s, %s, s96 offen" % (v(TS['reg']), v(vTmp), s(sWS, 4)))
    A("s_waitcnt vmcnt(0)")
    A("s_mov_b32 %s, 0" % s(sTsI))

def build_srd(A, d, karg, nbytes):
    A("s_load_dwordx2 %s, s[0:1], %d" % (s(d, 2), karg))
    A("s_waitcnt lgkmcnt(0)")
    A("s_and_b32 %s, %s, 0xffff" % (s(d + 1), s(d + 1)))
    A("s_mov_b32 %s, %d" % (s(d + 2), nbytes))
    A("s_mov_b32 %s, 0x20000" % s(d + 3))

def wait_flags(A, voff, soff, srd=sWS, cmp_ge=None, imm=0):
    lp, ok = A.new("wf"), A.new("wfok")
    A.label(lp)
    if voff is None:
        A("buffer_load_dword %s, off, %s, %s offset:%d sc1" % (v(vTmp), s(srd, 4), soff, imm))
    else:
        A("buffer_load_dword %s, %s, %s, %s offen offset:%d sc1" % (v(vTmp), v(voff), s(srd, 4), soff, imm))
    A("s_waitcnt vmcnt(0)")
    if cmp_ge is None:
        A("v_cmp_eq_u32 vcc, 0, %s" % v(vTmp))
    else:
        A("v_cmp_gt_u32 vcc, %d, %s" % (cmp_ge, v(vTmp)))
    A("s_cbranch_vccz %s" % ok)
    A("s_sleep 2")
    A("s_sub_u32 %s, %s, 1" % (s(sBud), s(sBud)))
    A("s_cbranch_scc0 %s" % lp)
    A("s_mov_b32 %s, 0" % s(sBud))
    A.label(ok)
    A.vm = []

def set_flag(A, soff, wave0_only=True):
    sk = A.new("sf")
    if wave0_only:
        A("s_cmp_lg_u32 %s, 0" % s(sW))
        A("s_cbranch_scc1 %s" % sk)
    A("s_mov_b64 exec, 1")
    A("v_mov_b32 %s, 1" % v(vTmp))
    A("buffer_store_dword %s, off, %s, %s sc1" % (v(vTmp), s(sWS, 4), soff))
    A("s_mov_b64 exec, -1")
    A.label(sk)

def arrive(A, soff, n, wave0_only=True):
    sk = A.new("ar")
    if wave0_only:
        A("s_cmp_lg_u32 %s, 0" % s(sW))
        A("s_cbranch_scc1 %s" % sk)
    A("s_mov_b64 exec, 1")
    A("v_mov_b32 %s, 1" % v(vTmp))
    A("buffer_atomic_add %s, off, %s, %s sc0" % (v(vTmp), s(sWS, 4), soff))
    A("s_waitcnt vmcnt(0)")
    A("v_cmpx_eq_u32 vcc, %d, %s" % (n - 1, v(vTmp)))
    A("s_cbranch_execz %s_x" % sk)
    A("buffer_store_dword %s, off, %s, %s offset:128 sc1" % (v(vTmp), s(sWS, 4), soff))
    A.label(sk + "_x")
    A("s_mov_b64 exec, -1")
    A.label(sk)

def MF(A, d, a_, b_, c_):
    A("v_mfma_f32_16x16x32_bf16 %s, %s, %s, %s" % (d, a_, b_, c_))

def stage(A, chunks):
    A("s_lshl_b32 %s, %s, 12" % (s(sT), s(sW)))
    def issue(c):
        srd, voff, so, _ = chunks[c]
        for j in range(4):
            A("s_add_u32 m0, %s, %d" % (s(sT), (c % NSLOT) * 16384 + j * 1024))
            A("s_mov_b32 %s, %d" % (s(sT + 2), so[j]))
            A.vmem("buffer_load_dwordx4 %s, %s, %s offen lds" % (v(voff), s(srd, 4), s(sT + 2)), ('c', c))
    n = len(chunks)
    for c in range(min(NSLOT - 1, n)):
        issue(c)
    for c in range(n):
        A.wait_vm(('c', c))
        A("s_barrier")
        if c + NSLOT - 1 < n:
            issue(c + NSLOT - 1)
        chunks[c][3]((c % NSLOT) * 16384)
        A.wait_ds()
    A("s_barrier")

def wide_off(A, dst, t1, rowstride, s_extra):
    A("v_lshlrev_b32 %s, 2, %s" % (v(t1), v(vG)))
    A("v_sub_u32 %s, %s, %s" % (v(t1), v(vLane), v(t1)))
    A("v_and_b32 %s, 15, %s" % (v(t1), v(t1)))
    A("v_lshlrev_b32 %s, 4, %s" % (v(t1), v(t1)))
    A("v_mul_u32_u24 %s, %d, %s" % (v(dst), rowstride, v(vG)))
    A("v_add_u32 %s, %s, %s" % (v(dst), v(dst), v(t1)))
    A("s_mul_i32 %s, %s, %d" % (s(sT + 3), s(sW), 16 * rowstride))
    A("s_add_u32 %s, %s, %s" % (s(sT + 3), s(sT + 3), s_extra))
    A("v_add_u32 %s, %s, %s" % (v(dst), s(sT + 3), v(dst)))

def wide_tr(A, dst, t1, s_col, ccmul):
    A("v_mul_u32_u24 %s, %d, %s" % (v(t1), ccmul, v(vX)))
    A("v_lshl_add_u32 %s, %s, 2, %s" % (v(t1), v(vC), v(t1)))
    A("v_add_u32 %s, %s, %s" % (v(t1), s_col, v(t1)))
    A("v_and_b32 %s, 15, %s" % (v(t1), v(t1)))
    A("v_lshlrev_b32 %s, 4, %s" % (v(t1), v(t1)))
    A("v_lshl_add_u32 %s, %s, 3, %s" % (v(dst), v(vG), v(vC)))
    A("v_lshl_add_u32 %s, %s, 8, %s" % (v(dst), v(dst), v(t1)))

def tall_off(A, dst, t1, s_extra):
    A("v_lshrrev_b32 %s, 3, %s" % (v(t1), v(vLane)))
    A("v_mul_u32_u24 %s, 1152, %s" % (v(dst), v(t1)))
    A("v_and_b32 %s, 7, %s" % (v(t1), v(vLane)))
    A("v_lshl_add_u32 %s, %s, 4, %s" % (v(dst), v(t1), v(dst)))
    A("s_mul_i32 %s, %s, %d" % (s(sT + 3), s(sW), 32 * 1152))
    A("s_add_u32 %s, %s, %s" % (s(sT + 3), s(sT + 3), s_extra))
    A("v_add_u32 %s, %s, %s" % (v(dst), s(sT + 3), v(dst)))

def tall_tr(A, dst, kbshift):
    A("v_lshl_add_u32 %s, %s, %d, %s" % (v(dst), v(vG), kbshift, v(vC)))
    A("v_lshlrev_b32 %s, 7, %s" % (v(dst), v(dst)))
    A("v_lshl_add_u32 %s, %s, 3, %s" % (v(dst), v(vX), v(dst)))
    A("s_lshl_b32 %s, %s, 5" % (s(sT + 3), s(sW)))
    A("v_add_u32 %s, %s, %s" % (v(dst), s(sT + 3), v(dst)))

def tr2(A, reg, addr, imm0, imm1):
    A.ds("ds_read_b64_tr_b16 %s, %s offset:%d" % (R(reg, 2), v(addr), imm0))
    A.ds("ds_read_b64_tr_b16 %s, %s offset:%d" % (R(reg + 2, 2), v(addr), imm1))

def x_dma(A, vXo, sSrc, sM0):
    for i in range(9):
        A("s_add_u32 m0, %s, %d" % (s(sM0), 960 * i))
        A("s_nop 0")
        A.vmem("buffer_load_dwordx4 %s, %s, %s offen offset:%d sc1 lds" % (v(vXo), s(sWS, 4), s(sSrc), 64 * i), 'x')

def gemm576(A, vXa, LAND, wreg, acc, ntile, swap, mid=None):
    def rd(ks):
        for tt in range(2):
            A.ds("ds_read_b128 %s, %s offset:%d" % (v(LAND + 8 * (ks & 1) + 4 * tt, 4), v(vXa), (18 * tt + ks) * 1024), ('x', ks))
    rd(0)
    for ks in range(18):
        if ks + 1 < 18:
            rd(ks + 1)
        A.wait_ds(('x', ks))
        for t in range(ntile):
            for tt in range(2):
                x = v(LAND + 8 * (ks & 1) + 4 * tt, 4)
                w = R(wreg(t, ks), 4)
                d = v(acc(t, tt), 4)
                if swap(t):
                    MF(A, d, x, w, "0" if ks == 0 else d)
                else:
                    MF(A, d, w, x, "0" if ks == 0 else d)
        if mid and ks == 9:
            mid()

def wave_sum(A, r, t):
    for k in (8, 4, 2, 1):
        A("s_nop 1")
        A("v_add_f32_dpp %s, %s, %s row_ror:%d row_mask:0xf bank_mask:0xf" % (v(r), v(r), v(r), k))
    for op in ("v_permlane16_swap_b32", "v_permlane32_swap_b32"):
        A("v_mov_b32 %s, %s" % (v(t), v(r)))
        A("s_nop 1")
        A("%s %s, %s" % (op, v(r), v(t)))
        A("v_add_f32 %s, %s, %s" % (v(r), v(r), v(t)))

def rnd2(A, a, b):
    A("v_cvt_pk_bf16_f32 %s, %s, %s" % (v(b), v(a), v(b)))
    A("v_lshlrev_b32 %s, 16, %s" % (v(a), v(b)))
    A("v_and_b32 %s, 0xffff0000, %s" % (v(b), v(b)))
def rnd1(A, a):
    A("v_cvt_pk_bf16_f32 %s, %s, %s" % (v(a), v(a), v(a)))
    A("v_and_b32 %s, 0xffff0000, %s" % (v(a), v(a)))
def unpack(A, lo, hi, src):
    A("v_and_b32 %s, 0xffff0000, %s" % (v(hi), v(src))) if hi != src else None
    A("v_lshlrev_b32 %s, 16, %s" % (v(lo), v(src)))
    if hi == src:
        A("v_and_b32 %s, 0xffff0000, %s" % (v(hi), v(src)))

def row_offsets(A, vRow, vRow2, svalid, t):
    A("v_and_b32 %s, 7, %s" % (v(t), v(vLane)))
    A("v_lshlrev_b32 %s, 4, %s" % (v(vRow), v(t)))
    A("v_bfe_u32 %s, %s, 3, 1" % (v(t), v(vLane)))
    A("v_lshl_add_u32 %s, %s, 8, %s" % (v(vRow), v(t), v(vRow)))
    A("v_lshrrev_b32 %s, 1, %s" % (v(t), v(vG)))
    A("v_lshl_add_u32 %s, %s, 7, %s" % (v(vRow), v(t), v(vRow)))
    A("v_and_b32 %s, 1, %s" % (v(t), v(vG)))
    A("v_lshl_add_u32 %s, %s, 3, %s" % (v(vRow), v(t), v(vRow)))
    A("s_mov_b32 %s, 0x00ff00ff" % s(svalid))
    A("s_mov_b32 %s, 0" % s(svalid + 1))
    A("v_mov_b32 %s, 0x%x" % (v(t), OOB >> 1))
    A("v_cndmask_b32 %s, %s, %s, %s" % (v(vRow2), v(t), v(vRow), s(svalid, 2)))

def load_mod(A, dst, which, vRow, vRow2, t1, t2):
    A("v_lshlrev_b32 %s, 1, %s" % (v(t1), v(vRow)))
    A("v_lshlrev_b32 %s, 1, %s" % (v(t2), v(vRow2)))
    A("s_mov_b32 %s, %d" % (s(sT + 2), WS_MOD + which * 2304))
    for U in range(3):
        A.vmem("buffer_load_dwordx4 %s, %s, %s, %s offen offset:%d sc1" % (v(dst + 4 * U, 4), v(t1 if U < 2 else t2), s(sWS, 4), s(sT + 2), 1024 * U), 'mod')

def ln_stats(A, X, D, svalid, m, rs, t):
    A("v_add_f32 %s, %s, %s" % (v(m), v(X), v(X + 1)))
    for i in range(2, 12):
        A("v_add_f32 %s, %s, %s" % (v(m), v(m), v(X + i)))
    wave_sum(A, m, t)
    A("v_mul_f32 %s, 0x%x, %s" % (v(m), f32bits(1.0 / 576), v(m)))
    for i in range(12):
        A("v_sub_f32 %s, %s, %s" % (v(D + i), v(X + i), v(m)))
    A("v_mul_f32 %s, %s, %s" % (v(rs), v(D + 8), v(D + 8)))
    for i in range(9, 12):
        A("v_fmac_f32 %s, %s, %s" % (v(rs), v(D + i), v(D + i)))
    A("v_cndmask_b32 %s, 0, %s, %s" % (v(rs), v(rs), s(svalid, 2)))
    for i in range(8):
        A("v_fmac_f32 %s, %s, %s" % (v(rs), v(D + i), v(D + i)))
    wave_sum(A, rs, t)
    A("v_mul_f32 %s, 0x%x, %s" % (v(rs), f32bits(1.0 / 576), v(rs)))
    rnd2(A, m, rs)
    A("v_add_f32 %s, 0x%x, %s" % (v(rs), f32bits(1e-5), v(rs)))
    rnd1(A, rs)
    A("v_sqrt_f32 %s, %s" % (v(rs), v(rs)))
    A("s_nop 0")
    rnd1(A, rs)
    A("v_rcp_f32 %s, %s" % (v(rs), v(rs)))
    A("s_nop 0")

def ln_apply(A, X, m, rs, C1, SH, out):
    for i in range(12):
        A("v_sub_f32 %s, %s, %s" % (v(X + i), v(X + i), v(m)))
    for i in range(0, 12, 2):
        rnd2(A, X + i, X + i + 1)
    for i in range(12):
        A("v_mul_f32 %s, %s, %s" % (v(X + i), v(X + i), v(rs)))
    for i in range(0, 12, 2):
        rnd2(A, X + i, X + i + 1)
    for i in range(12):
        A("v_mul_f32 %s, %s, %s" % (v(X + i), v(X + i), v(C1 + i)))
    for i in range(0, 12, 2):
        rnd2(A, X + i, X + i + 1)
    for i in range(12):
        A("v_add_f32 %s, %s, %s" % (v(X + i), v(X + i), v(SH + i)))
    for i in range(6):
        A("v_cvt_pk_bf16_f32 %s, %s, %s" % (v(out + i), v(X + 2 * i), v(X + 2 * i + 1)))

def one_plus(A, C):
    for i in range(12):
        A("v_add_f32 %s, 1.0, %s" % (v(C + i), v(C + i)))
    for i in range(0, 12, 2):
        rnd2(A, C + i, C + i + 1)

def row_io(A, op, reg, vRow, vRow2, srd, soff, flags=""):
    for U in range(3):
        A.vmem("buffer_%s_dwordx2 %s, %s, %s, %s offen offset:%d%s" % (op, v(reg + 2 * U, 2), v(vRow if U < 2 else vRow2), s(srd, 4), soff, 512 * U, flags), 'row')

def sel_masks(A):
    for hi in range(2):
        for u in range(4):
            m16 = (3 << (2 * u)) << (8 * hi)
            m32 = m16 | (m16 << 16)
            A("s_mov_b32 %s, 0x%x" % (s(sSel + 8 * hi + 2 * u), m32))
            A("s_mov_b32 %s, 0x%x" % (s(sSel + 8 * hi + 2 * u + 1), m32))
def make_sel(A, dst, hi, t):
    A("v_and_b32 %s, 1, %s" % (v(t), v(vLane)))
    A("v_lshlrev_b32 %s, 4, %s" % (v(t), v(t)))
    A("v_mov_b32 %s, 0x3f80" % v(dst))
    A("v_lshlrev_b32 %s, %s, %s" % (v(t), v(t), v(dst)))
    for u in range(4):
        A("v_cndmask_b32 %s, 0, %s, %s" % (v(dst + u), v(t), s(sSel + 8 * hi + 2 * u, 2)))

def emit_worker(A, opt=()):
    A.c("=========== worker ===========")
    A("v_mov_b32 %s, v0" % v(vLane))
    A("v_lshlrev_b32 %s, 4, %s" % (v(vL16), v(vLane)))
    A("v_lshrrev_b32 %s, 4, %s" % (v(vG), v(vLane)))
    A("v_bfe_u32 %s, %s, 2, 2" % (v(vC), v(vLane)))
    A("v_and_b32 %s, 3, %s" % (v(vX), v(vLane)))
    A("s_mov_b32 %s, 400000" % s(sBud))
    TS['on'], TS['reg'], TS['fine'] = "ts" in opt, 79, "fs" in opt
    ts(A, 0)
    sel_masks(A)
    build_srd(A, sXS, 0, 2359296)
    vRow, vRow2 = 7, 8
    sValid = sMask
    row_offsets(A, vRow, vRow2, sValid, vTmp)
    lmod, lpre_done = A.new("mod"), A.new("predone")
    XR = 16
    A("s_cmp_ge_u32 %s, 128" % s(sWid))
    A("s_cbranch_scc1 %s" % lmod)
    A("s_lshl_b32 %s, %s, 2" % (s(sT), s(sWid)))
    A("s_add_u32 %s, %s, %s" % (s(sT), s(sT), s(sW)))
    A("s_mul_i32 %s, %s, %d" % (s(sA0), s(sT), 4 * 1152))
    for r in range(4):
        A("s_add_u32 %s, %s, %d" % (s(sT), s(sA0), r * 1152))
        row_io(A, "load", XR + 6 * r, vRow, vRow2, sXS, s(sT))
    A("s_branch %s" % lpre_done)
    A.label(lmod)
    A("s_cmp_ge_u32 %s, 182" % s(sWid))
    A("s_cbranch_scc1 %s" % lpre_done)
    build_srd(A, sA0 + 2, 88, 1152)
    build_srd(A, sA0 + 6, 96, 3981312)
    sCs, sWm = sA0 + 2, sA0 + 6
    A("s_sub_u32 %s, %s, 128" % (s(sA0), s(sWid)))
    for i in range(4):
        A("v_mov_b32 %s, 0" % v(12 + i))
    A("s_lshl_b32 %s, %s, 2" % (s(sT), s(sA0)))
    A("s_add_u32 %s, %s, %s" % (s(sT), s(sT), s(sW)))
    A("s_lshl_b32 %s, %s, 11" % (s(sT), s(sT)))
    A("s_add_u32 %s, %s, %d" % (s(sT), s(sT), WS_FL))
    assert FL_END - WS_FL <= 54 * 8192
    A("buffer_store_dwordx4 %s, %s, %s, %s offen sc1" % (v(12, 4), v(vL16), s(sWS, 4), s(sT)))
    A("buffer_store_dwordx4 %s, %s, %s, %s offen offset:1024 sc1" % (v(12, 4), v(vL16), s(sWS, 4), s(sT)))
    A("v_lshrrev_b32 %s, 3, %s" % (v(9), v(vLane)))
    A("s_mul_i32 %s, %s, 144" % (s(sT), s(sW)))
    A("v_add_u32 %s, %s, %s" % (v(9), s(sT), v(9)))
    A("v_lshlrev_b32 %s, 1, %s" % (v(10), v(9)))
    A("v_mul_u32_u24 %s, 6912, %s" % (v(9), v(9)))
    A("v_and_b32 %s, 7, %s" % (v(11), v(vLane)))
    A("v_lshl_add_u32 %s, %s, 4, %s" % (v(9), v(11), v(9)))
    A("s_lshl_b32 %s, %s, 7" % (s(sT), s(sA0)))
    CV, WV, ACC = 100, 120, 200
    for i in range(18):
        A("buffer_load_ushort %s, %s, %s, 0 offen offset:%d" % (v(CV + i), v(10), s(sCs, 4), 16 * i))
    for i in range(18):
        A("s_add_u32 %s, %s, %d" % (s(sT + 1), s(sT), i * 55296))
        A("buffer_load_dwordx4 %s, %s, %s, %s offen" % (v(WV + 4 * i, 4), v(9), s(sWm, 4), s(sT + 1)))
    A("s_waitcnt vmcnt(18)")
    for i in range(18):
        c = CV + i
        A("v_lshlrev_b32 %s, 16, %s" % (v(c), v(c)))
        A("v_mul_f32 %s, 0x%x, %s" % (v(12), f32bits(-math.log2(math.e)), v(c)))
        A("v_exp_f32 %s, %s" % (v(12), v(12)))
        A("s_nop 0")
        A("v_add_f32 %s, 1.0, %s" % (v(12), v(12)))
        A("v_rcp_f32 %s, %s" % (v(12), v(12)))
        A("s_nop 0")
        A("v_mul_f32 %s, %s, %s" % (v(c), v(c), v(12)))
        rnd1(A, c)
    for j in range(8):
        A("v_mov_b32 %s, 0" % v(ACC + j))
    A("s_waitcnt vmcnt(0)")
    for i in range(18):
        for j in range(4):
            unpack(A, 12, 13, WV + 4 * i + j)
            A("v_fmac_f32 %s, %s, %s" % (v(ACC + 2 * j), v(12), v(CV + i)))
            A("v_fmac_f32 %s, %s, %s" % (v(ACC + 2 * j + 1), v(13), v(CV + i)))
    for j in range(8):
        r = ACC + j
        A("s_nop 1")
        A("v_add_f32_dpp %s, %s, %s row_ror:8 row_mask:0xf bank_mask:0xf" % (v(r), v(r), v(r)))
        for op in ("v_permlane16_swap_b32", "v_permlane32_swap_b32"):
            A("v_mov_b32 %s, %s" % (v(12), v(r)))
            A("s_nop 1")
            A("%s %s, %s" % (op, v(r), v(12)))
            A("v_add_f32 %s, %s, %s" % (v(r), v(r), v(12)))
    A("s_lshl_b32 %s, %s, 8" % (s(sT + 1), s(sW)))
    A("s_add_u32 %s, %s, %d" % (s(sT + 1), s(sT + 1), L_SCR))
    A("v_lshlrev_b32 %s, 5, %s" % (v(11), v(11)))
    A("v_add_u32 %s, %s, %s" % (v(11), s(sT + 1), v(11)))
    A("ds_write_b128 %s, %s" % (v(11), v(ACC, 4)))
    A("ds_write_b128 %s, %s offset:16" % (v(11), v(ACC + 4, 4)))
    A("s_waitcnt lgkmcnt(0)")
    A("s_barrier")
    A("v_lshlrev_b32 %s, 2, %s" % (v(10), v(vLane)))
    A("v_add_u32 %s, %d, %s" % (v(11), L_SCR, v(10)))
    for i in range(4):
        A("ds_read_b32 %s, %s offset:%d" % (v(12 + i), v(11), 256 * i))
    A("s_waitcnt lgkmcnt(0)")
    A("v_add_f32 %s, %s, %s" % (v(12), v(12), v(13)))
    A("v_add_f32 %s, %s, %s" % (v(14), v(14), v(15)))
    A("v_add_f32 %s, %s, %s" % (v(12), v(12), v(14)))
    rnd1(A, 12)
    A("s_lshl_b32 %s, %s, 8" % (s(sT), s(sA0)))
    A("s_add_u32 %s, %s, %d" % (s(sT), s(sT), WS_MOD))
    sk = A.new("modw")
    A("s_cmp_lg_u32 %s, 0" % s(sW))
    A("s_cbranch_scc1 %s" % sk)
    A("buffer_store_dword %s, %s, %s, %s offen sc1" % (v(12), v(10), s(sWS, 4), s(sT)))
    A("s_waitcnt vmcnt(0)")
    A("s_mov_b64 exec, 1")
    A("v_mov_b32 %s, 1" % v(12))
    A("buffer_atomic_add %s, off, %s, 0 offset:%d" % (v(12), s(sDBG, 4), DBG_MOD))
    A("s_mov_b64 exec, -1")
    A.label(sk)
    A.label(lpre_done)
    ts(A, 1)

    A("s_mul_i32 %s, %s, 9363" % (s(sSl), s(sWid)))
    A("s_lshr_b32 %s, %s, 16" % (s(sSl), s(sSl)))
    A("s_mul_i32 %s, %s, 7" % (s(sT), s(sSl)))
    A("s_sub_u32 %s, %s, %s" % (s(sRep), s(sWid), s(sT)))
    vOffW, vTr, vAd = 9, 10, 11
    A("s_lshl_b32 %s, %s, 8" % (s(sT + 1), s(sSl)))
    wide_off(A, vOffW, vTmp, 8192, s(sT + 1))
    A("s_lshr_b32 %s, %s, 1" % (s(sT + 1), s(sW)))
    A("s_lshl_b32 %s, %s, 3" % (s(sT + 1), s(sT + 1)))
    A("s_and_b32 %s, %s, 1" % (s(sT + 2), s(sW)))
    A("s_add_u32 %s, %s, %s" % (s(sT + 1), s(sT + 1), s(sT + 2)))
    wide_tr(A, vTr, vTmp, s(sT + 1), 2)
    W0 = 80
    def wq(t, ks):
        return W0 + 4 * (6 * ks + t)
    def wide_chunks(mats, rowstride, wreg):
        out = []
        for G in range(9):
            for m, srd in enumerate(mats):
                def consume(base, m=m, G=G):
                    A("v_add_u32 %s, %d, %s" % (v(vAd), base, v(vTr)))
                    for k2 in range(2):
                        for t in range(2):
                            tr2(A, wreg(2 * m + t, 2 * G + k2), vAd, 32 * k2 * 256 + 8 * t, (32 * k2 + 4) * 256 + 8 * t)
                out.append((srd, vOffW, [(64 * G + 4 * j) * rowstride for j in range(4)], consume))
        return out
    A.vm, A.lds = ['old'] * 12, []
    stage(A, wide_chunks((sW1, sW2, sW3), 8192, wq))
    ts(A, 2)
    wait_flags(A, None, "0", srd=sDBG, cmp_ge=54, imm=DBG_MOD)
    ts(A, 3)
    lnoln = A.new("noln")
    A("s_cmp_ge_u32 %s, 128" % s(sWid))
    A("s_cbranch_scc1 %s" % lnoln)
    SH, C1, XF, DD = 40, 52, 64, 12
    load_mod(A, SH, 0, vRow, vRow2, 9, 10)
    load_mod(A, C1, 1, vRow, vRow2, 9, 10)
    A("s_waitcnt vmcnt(0)")
    one_plus(A, C1)
    for r in range(4):
        for i in range(6):
            unpack(A, XF + 2 * i, XF + 2 * i + 1, XR + 6 * r + i)
        m_, rs_ = 9, 10
        A("v_add_f32 %s, %s, %s" % (v(m_), v(XF), v(XF + 1)))
        for i in range(2, 12):
            A("v_add_f32 %s, %s, %s" % (v(m_), v(m_), v(XF + i)))
        wave_sum(A, m_, 11)
        A("v_mul_f32 %s, 0x%x, %s" % (v(m_), f32bits(1.0 / 576), v(m_)))
        order = [8, 9, 10, 11, 0, 1, 2, 3, 4, 5, 6, 7]
        for n_, i in enumerate(order):
            A("v_sub_f32 %s, %s, %s" % (v(76), v(XF + i), v(m_)))
            if n_ == 0:
                A("v_mul_f32 %s, %s, %s" % (v(rs_), v(76), v(76)))
            else:
                A("v_fmac_f32 %s, %s, %s" % (v(rs_), v(76), v(76)))
            if n_ == 3:
                A("v_cndmask_b32 %s, 0, %s, %s" % (v(rs_), v(rs_), s(sValid, 2)))
        wave_sum(A, rs_, 11)
        A("v_mul_f32 %s, 0x%x, %s" % (v(rs_), f32bits(1.0 / 576), v(rs_)))
        rnd2(A, m_, rs_)
        A("v_add_f32 %s, 0x%x, %s" % (v(rs_), f32bits(1e-5), v(rs_)))
        rnd1(A, rs_)
        A("v_sqrt_f32 %s, %s" % (v(rs_), v(rs_)))
        A("s_nop 0")
        rnd1(A, rs_)
        A("v_rcp_f32 %s, %s" % (v(rs_), v(rs_)))
        A("s_nop 0")
        ln_apply(A, XF, m_, rs_, C1, SH, XR + 6 * r)
        A("s_add_u32 %s, %s, %d" % (s(sT), s(sA0), WS_H + r * 1152))
        row_io(A, "store", XR + 6 * r, vRow, vRow2, sWS, s(sT), " sc1")
    A("s_waitcnt vmcnt(0)")
    A("s_barrier")
    A("s_mov_b32 %s, %d" % (s(sT), FL_H))
    arrive(A, s(sT), 128)
    A.label(lnoln)
    ts(A, 4)
    if TS['on']:
        A("v_mov_b32 v15, v79")
        A("s_mov_b32 %s, 8" % s(sTsI))
        TS['reg'] = 15
    A("s_mov_b32 %s, %d" % (s(sT), FL_H))
    wait_flags(A, None, s(sT), imm=128)
    ts(A, 5)
    vXo, vXa = 9, 10
    LAND, ACC = 16, 32
    sSrc, sM0x, sQo, sKo, sFlag, sBuf = sA0, sA0 + 1, sA0 + 2, sA0 + 3, sA0 + 4, sA0 + 5
    def xsetup():
        A("v_and_b32 %s, 15, %s" % (v(vTmp), v(vLane)))
        A("v_mul_u32_u24 %s, 1152, %s" % (v(vXo), v(vTmp)))
        A("v_lshl_add_u32 %s, %s, 4, %s" % (v(vXo), v(vG), v(vXo)))
        A("s_lshr_b32 %s, %s, 1" % (s(sT), s(sW)))
        A("s_mul_i32 %s, %s, 18432" % (s(sT), s(sT)))
        A("s_and_b32 %s, %s, 1" % (s(sT + 1), s(sW)))
        A("s_mul_i32 %s, %s, 576" % (s(sT + 1), s(sT + 1)))
        A("s_add_u32 %s, %s, %s" % (s(sT), s(sT), s(sT + 1)))
        A("v_add_u32 %s, %s, %s" % (v(vXo), s(sT), v(vXo)))
        A("s_mul_i32 %s, %s, 9216" % (s(sM0x), s(sW)))
    xsetup()
    A("s_mov_b32 %s, %s" % (s(sSeg), s(sRep)))
    A("s_mul_i32 %s, %s, 36864" % (s(sSrc), s(sSeg)))
    A("s_add_u32 %s, %s, %d" % (s(sSrc), s(sSrc), WS_H))
    A("v_mov_b32 %s, %s" % (v(vXa), v(vL16)))
    A("s_lshl_b32 %s, %s, 5" % (s(sT), s(sSeg)))
    A("s_add_u32 %s, %s, %s" % (s(sT), s(sT), s(sSl)))
    A("s_lshl_b32 %s, %s, 10" % (s(sT + 1), s(sW)))
    A("s_lshl_b32 %s, %s, 13" % (s(sQo), s(sT)))
    A("s_add_u32 %s, %s, %s" % (s(sQo), s(sQo), s(sT + 1)))
    A("s_add_u32 %s, %s, %d" % (s(sQo), s(sQo), WS_Q))
    A("s_lshl_b32 %s, %s, 14" % (s(sKo), s(sT)))
    A("s_add_u32 %s, %s, %s" % (s(sKo), s(sKo), s(sT + 1)))
    if WS_KV:
        A("s_add_u32 %s, %s, %d" % (s(sKo), s(sKo), WS_KV))
    A("s_mov_b32 %s, 0x%x" % (s(sFlag), OOB))
    A.vm = []
    x_dma(A, vXo, sSrc, sM0x)
    A("s_waitcnt vmcnt(0)")
    ltop, lend = A.new("qkv"), A.new("qkvend")
    A.label(ltop)
    A("s_waitcnt vmcnt(6)")
    A("s_barrier")
    ts(A)
    fs(A, 20)
    A("s_xor_b32 %s, %s, 0x10000" % (s(sM0x), s(sM0x)))
    A("s_add_u32 %s, %s, %d" % (s(sSrc), s(sSrc), 7 * 36864))
    x_dma(A, vXo, sSrc, sM0x)
    def mid():
        A("s_waitcnt vmcnt(9)")
        A("s_barrier")
        set_flag(A, s(sFlag))
    fs(A, 21)
    A.lds = []
    gemm576(A, vXa, LAND, wq, lambda t, tt: ACC + 8 * t + 4 * tt, 6, lambda t: t >= 4, mid)
    fs(A, 22)
    A("v_xor_b32 %s, 0x10000, %s" % (v(vXa), v(vXa)))
    A("s_lshl_b32 %s, %s, 8" % (s(sFlag), s(sSl)))
    A("s_lshl_b32 %s, %s, 2" % (s(sT), s(sSeg)))
    A("s_add_u32 %s, %s, %s" % (s(sFlag), s(sFlag), s(sT)))
    A("s_add_u32 %s, %s, %d" % (s(sFlag), s(sFlag), FL_KV))
    A("s_add_u32 %s, %s, 4096" % (s(sT), s(sQo)))
    A("s_add_u32 %s, %s, 4096" % (s(sT + 1), s(sKo)))
    A("s_lshl_b32 %s, %s, 10" % (s(sT + 2), s(sW)))
    A("s_add_u32 %s, %s, %s" % (s(sT + 2), s(sT + 2), s(sKo)))
    A("s_add_u32 %s, %s, 8192" % (s(sT + 2), s(sT + 2)))
    for m in range(2):
        for tt in range(2):
            a0, a1 = ACC + 16 * m + 4 * tt, ACC + 16 * m + 8 + 4 * tt
            for x in range(4):
                A("v_cvt_pk_bf16_f32 %s, %s, %s" % (v(a0 + x), v(a0 + x), v(a1 + x)))
            so = (sQo, sT, sKo, sT + 1)[2 * m + tt]
            A("buffer_store_dwordx4 %s, %s, %s, %s offen sc1" % (v(a0, 4), v(vL16), s(sWS, 4), s(so)))
    for t in range(2):
        a0 = ACC + 32 + 8 * t
        A("v_cvt_pk_bf16_f32 %s, %s, %s" % (v(a0), v(a0), v(a0 + 1)))
        A("v_cvt_pk_bf16_f32 %s, %s, %s" % (v(a0 + 1), v(a0 + 2), v(a0 + 3)))
        A("v_cvt_pk_bf16_f32 %s, %s, %s" % (v(a0 + 2), v(a0 + 4), v(a0 + 5)))
        A("v_cvt_pk_bf16_f32 %s, %s, %s" % (v(a0 + 3), v(a0 + 6), v(a0 + 7)))
        A("buffer_store_dwordx4 %s, %s, %s, %s offen offset:%d sc1" % (v(a0, 4), v(vL16), s(sWS, 4), s(sT + 2), 1024 * t))
    fs(A, 23)
    A("s_add_u32 %s, %s, %d" % (s(sQo), s(sQo), 7 * 32 * 8192))
    A("s_add_u32 %s, %s, %d" % (s(sKo), s(sKo), 7 * 32 * 16384))
    A("s_add_u32 %s, %s, 7" % (s(sSeg), s(sSeg)))
    A("s_cmp_lt_u32 %s, 64" % s(sSeg))
    A("s_cbranch_scc1 %s" % ltop)
    A("s_waitcnt vmcnt(0)")
    A("s_barrier")
    set_flag(A, s(sFlag))
    ts(A, 6)
    ts_dump(A, 0)
    if "p1only" in opt:
        return
    lC = A.new("roleC")
    A("s_cmp_ge_u32 %s, 80" % s(sWid))
    A("s_cbranch_scc1 %s" % lC)
    lB = A.new("roleB")
    A("s_cmp_ge_u32 %s, 64" % s(sWid))
    A("s_cbranch_scc1 %s" % lB)
    emit_roleA(A, opt)
    A("s_endpgm")
    A.label(lB)
    emit_roleB(A, vRow, vRow2, sValid, opt)
    A("s_endpgm")
    A.label(lC)
    emit_roleC(A, xsetup, wide_chunks, opt)

def emit_roleA(A, opt):
    A.c("=========== role A: attention + Wo partial ===========")
    A("s_lshr_b32 %s, %s, 2" % (s(sSl), s(sWid)))
    A("s_and_b32 %s, %s, 3" % (s(sRep), s(sWid)))
    vOff, vTr, vAd = 9, 10, 11
    A("s_mul_i32 %s, %s, %d" % (s(sT + 1), s(sSl), 2 * 147456))
    tall_off(A, vOff, vTmp, s(sT + 1))
    tall_tr(A, vTr, 4)
    W0 = 224
    def wo(G, K):
        return W0 + 4 * (8 * G + K)
    chunks = []
    for hd in range(2):
        for G in range(9):
            def consume(base, hd=hd, G=G):
                A("v_add_u32 %s, %d, %s" % (v(vAd), base, v(vTr)))
                for ks in range(4):
                    r0 = 64 * (ks >> 1) + 8 * (ks & 1)
                    tr2(A, wo(G, 4 * hd + ks), vAd, r0 * 128, (r0 + 4) * 128)
            chunks.append((sWO, vOff, [hd * 147456 + 8 * j * 1152 + 128 * G for j in range(4)], consume))
    A.vm, A.lds = ['old'] * 2, []
    stage(A, chunks)
    TS['reg'] = 19
    ts(A)
    vKM, vL4, vOwr, vTw, vTrd, vPst, vPld, vNEG = 9, 10, 11, 12, 13, 14, 15, 16
    GA, SB, CB = 20, 32, 44
    SEL0, SEL1 = 56, 60
    QF, KX, VX, KM, VM = 64, 80, 112, 144, 160
    S_, OA = 176, 188
    WACC, LAND = 144, 216
    L_OT, L_PT = 0, 16384
    PSTR = 1168
    A("v_lshlrev_b32 %s, 2, %s" % (v(vL4), v(vLane)))
    A("v_lshrrev_b32 %s, 1, %s" % (v(vTmp), v(vG)))
    A("v_lshlrev_b32 %s, 10, %s" % (v(vKM), v(vTmp)))
    A("v_and_b32 %s, 1, %s" % (v(vTmp), v(vX)))
    A("v_lshl_add_u32 %s, %s, 8, %s" % (v(vKM), v(vTmp), v(vKM)))
    A("v_lshl_add_u32 %s, %s, 6, %s" % (v(vKM), v(vC), v(vKM)))
    A("v_and_b32 %s, 1, %s" % (v(vTmp), v(vG)))
    A("v_lshl_add_u32 %s, %s, 5, %s" % (v(vKM), v(vTmp), v(vKM)))
    A("s_and_b32 %s, %s, 1" % (s(sT), s(sW)))
    A("s_lshl_b32 %s, %s, 13" % (s(sT + 1), s(sT)))
    A("s_lshr_b32 %s, %s, 1" % (s(sT + 2), s(sW)))
    A("s_lshl_b32 %s, %s, 12" % (s(sT + 3), s(sT + 2)))
    A("s_add_u32 %s, %s, %s" % (s(sT + 1), s(sT + 1), s(sT + 3)))
    A("v_add_u32 %s, %s, %s" % (v(vOwr), s(sT + 1), v(vL16)))
    A("v_and_b32 %s, 15, %s" % (v(17), v(vLane)))
    A("s_lshl_b32 %s, %s, 4" % (s(sT + 1), s(sT)))
    A("v_add_u32 %s, %s, %s" % (v(17), s(sT + 1), v(17)))
    A("v_lshlrev_b32 %s, 2, %s" % (v(18), v(vG)))
    A("v_sub_u32 %s, %s, %s" % (v(17), v(17), v(18)))
    sCM = sA0 + 6
    for i in range(8):
        A("v_cmp_le_i32 %s, %d, %s" % (s(sCM + 2 * i, 2), 16 * (i >> 2) + (i & 3), v(17)))
    A("v_mov_b32 %s, 0x%x" % (v(vNEG), f32bits(-1e9)))
    A("v_and_b32 %s, 15, %s" % (v(vTmp), v(vLane)))
    A("v_mul_u32_u24 %s, %d, %s" % (v(vTw), PSTR, v(vTmp)))
    A("v_lshl_add_u32 %s, %s, 3, %s" % (v(vTw), v(vG), v(vTw)))
    A("s_lshl_b32 %s, %s, 5" % (s(sT + 1), s(sW)))
    A("s_add_u32 %s, %s, %d" % (s(sT + 1), s(sT + 1), L_PT))
    A("v_add_u32 %s, %s, %s" % (v(vTw), s(sT + 1), v(vTw)))
    A("v_lshrrev_b32 %s, 3, %s" % (v(17), v(vLane)))
    A("v_and_b32 %s, 7, %s" % (v(18), v(vLane)))
    A("v_lshlrev_b32 %s, 4, %s" % (v(18), v(18)))
    A("s_lshl_b32 %s, %s, 3" % (s(sT + 1), s(sW)))
    A("v_add_u32 %s, %s, %s" % (v(17), s(sT + 1), v(17)))
    A("v_mul_u32_u24 %s, %d, %s" % (v(vTrd), PSTR, v(17)))
    A("v_add_u32 %s, %s, %s" % (v(vTrd), v(vTrd), v(18)))
    A("v_add_u32 %s, %d, %s" % (v(vTrd), L_PT, v(vTrd)))
    A("v_mul_u32_u24 %s, 18432, %s" % (v(vPst), v(17)))
    A("v_add_u32 %s, %s, %s" % (v(vPst), v(vPst), v(18)))
    A("s_mul_i32 %s, %s, 1152" % (s(sT + 1), s(sSl)))
    A("v_add_u32 %s, %s, %s" % (v(vPst), s(sT + 1), v(vPst)))
    sHead, sSH, sPAo, sRowo = sA0, sA0 + 1, sA0 + 2, sA0 + 3
    A("s_lshl_b32 %s, %s, 1" % (s(sHead), s(sSl)))
    A("s_lshr_b32 %s, %s, 1" % (s(sT), s(sW)))
    A("s_add_u32 %s, %s, %s" % (s(sHead), s(sHead), s(sT)))
    A("s_mov_b32 %s, %s" % (s(sSeg), s(sRep)))
    A("s_lshl_b32 %s, %s, 8" % (s(sT), s(sHead)))
    A("s_add_u32 %s, %s, %d" % (s(sT), s(sT), FL_KV))
    wait_flags(A, vL4, s(sT))
    A("s_lshl_b32 %s, %s, 5" % (s(sSH), s(sSeg)))
    A("s_add_u32 %s, %s, %s" % (s(sSH), s(sSH), s(sHead)))
    def prefetch():
        A("s_lshl_b32 %s, %s, 13" % (s(sT), s(sSH)))
        A("s_and_b32 %s, %s, 1" % (s(sT + 1), s(sW)))
        A("s_lshl_b32 %s, %s, 12" % (s(sT + 1), s(sT + 1)))
        A("s_add_u32 %s, %s, %s" % (s(sT), s(sT), s(sT + 1)))
        A("s_add_u32 %s, %s, %d" % (s(sT), s(sT), WS_Q))
        for i in range(4):
            A("buffer_load_dwordx4 %s, %s, %s, %s offen offset:%d sc1" % (v(QF + 4 * i, 4), v(vL16), s(sWS, 4), s(sT), 1024 * i))
        A("s_lshl_b32 %s, %s, 14" % (s(sT), s(sSH)))
        if WS_KV:
            A("s_add_u32 %s, %s, %d" % (s(sT), s(sT), WS_KV))
        for b in range(4):
            for i in range(4):
                A("buffer_load_dwordx4 %s, %s, %s, %s offen offset:%d sc1" % (v(KX + 16 * b + 4 * i, 4), v(vL16), s(sWS, 4), s(sT), 1024 * i))
            if b < 3:
                A("s_add_u32 %s, %s, 4096" % (s(sT), s(sT)))
    prefetch()
    ltop = A.new("atop")
    A.label(ltop)
    A("s_lshl_b32 %s, %s, 7" % (s(sT), s(sSH)))
    A("s_add_u32 %s, %s, %d" % (s(sT), s(sT), FL_PUB))
    wait_flags(A, None, s(sT))
    ts(A)
    fs(A, 0)
    A("s_lshl_b32 %s, %s, 12" % (s(sT), s(sSH)))
    A("s_add_u32 %s, %s, %d" % (s(sT), s(sT), WS_KM))
    for ks in range(4):
        A("buffer_load_dwordx4 %s, %s, %s, %s offen offset:%d sc1" % (v(KM + 4 * ks, 4), v(vKM), s(sWS, 4), s(sT), (ks >> 1) * 2048 + (ks & 1) * 16))
    for T in range(8):
        A("buffer_load_dword %s, %s, %s, %s offen offset:%d sc1" % (v(VM + 2 * T), v(vL4), s(sWS, 4), s(sT), (T >> 1) * 1024 + 512 + (T & 1) * 256))
    for T in range(8):
        A("v_mov_b32 %s, 0" % v(VM + 2 * T + 1))
    T1, T2, T0 = S_, S_ + 4, S_ + 8
    for ks in range(4):
        MF(A, v(T1, 4), v(KX + 4 * ks, 4), v(QF + 4 * ks, 4), "0" if ks == 0 else v(T1, 4))
        MF(A, v(T2, 4), v(KX + 16 + 4 * ks, 4), v(QF + 4 * ks, 4), "0" if ks == 0 else v(T2, 4))
    A("s_waitcnt vmcnt(8)")
    fs(A, 1)
    for ks in range(4):
        MF(A, v(T0, 4), v(KM + 4 * ks, 4), v(QF + 4 * ks, 4), "0" if ks == 0 else v(T0, 4))
    A("s_nop 7")
    sv = [S_ + i for i in range(10)]
    for i in range(0, 10, 2):
        rnd2(A, sv[i], sv[i + 1])
    for x in sv:
        A("v_mul_f32 %s, 0x%x, %s" % (v(x), f32bits(128 ** -0.5), v(x)))
    for i in range(0, 10, 2):
        rnd2(A, sv[i], sv[i + 1])
    for i in range(8):
        A("v_cndmask_b32 %s, %s, %s, %s" % (v(sv[i]), v(vNEG), v(sv[i]), s(sCM + 2 * i, 2)))
    m1, m2 = S_ + 10, S_ + 11
    A("v_max3_f32 %s, %s, %s, %s" % (v(m1), v(sv[0]), v(sv[1]), v(sv[2])))
    for i in (3, 5, 7):
        A("v_max3_f32 %s, %s, %s, %s" % (v(m1), v(m1), v(sv[i]), v(sv[i + 1])))
    A("v_max_f32 %s, %s, %s" % (v(m1), v(m1), v(sv[9])))
    def xl(op):
        for sw in ("v_permlane32_swap_b32", "v_permlane16_swap_b32"):
            A("v_mov_b32 %s, %s" % (v(m2), v(m1)))
            A("s_nop 1")
            A("%s %s, %s" % (sw, v(m1), v(m2)))
            A("%s %s, %s, %s" % (op, v(m1), v(m1), v(m2)))
    xl("v_max_f32")
    for x in sv:
        A("v_sub_f32 %s, %s, %s" % (v(x), v(x), v(m1)))
    for x in sv:
        A("v_mul_f32 %s, 0x%x, %s" % (v(x), f32bits(math.log2(math.e)), v(x)))
    for x in sv:
        A("v_exp_f32 %s, %s" % (v(x), v(x)))
    A("v_add_f32 %s, %s, %s" % (v(m1), v(sv[0]), v(sv[1])))
    for x in sv[2:]:
        A("v_add_f32 %s, %s, %s" % (v(m1), v(m1), v(x)))
    xl("v_add_f32")
    A("v_rcp_f32 %s, %s" % (v(m1), v(m1)))
    A("s_nop 0")
    for x in sv:
        A("v_mul_f32 %s, %s, %s" % (v(x), v(x), v(m1)))
    for i in range(4):
        A("v_cvt_pk_bf16_f32 %s, %s, %s" % (v(S_ + i), v(sv[2 * i]), v(sv[2 * i + 1])))
    A("v_cvt_pk_bf16_f32 %s, %s, %s" % (v(T0), v(T0), v(T0 + 1)))
    A("v_mov_b32 %s, 0" % v(T0 + 1))
    A("s_waitcnt vmcnt(0)")
    A("s_nop 0")
    for T in range(8):
        MF(A, v(OA + 4 * T, 4), v(VX + 4 * T, 4), v(S_, 4), "0")
    for T in range(8):
        A("v_mfma_f32_16x16x16_bf16 %s, %s, %s, %s" % (v(OA + 4 * T, 4), v(VM + 2 * T, 2), v(T0, 2), v(OA + 4 * T, 4)))
    A("s_nop 1")
    A.lds = []
    for c in range(4):
        b = OA + 8 * c
        if c == 3:
            A("s_nop 0")
        for i in range(4):
            A("v_cvt_pk_bf16_f32 %s, %s, %s" % (v(b + i), v(b + 2 * i), v(b + 2 * i + 1)))
        A.ds("ds_write_b128 %s, %s offset:%d" % (v(vOwr), v(b, 4), L_OT + 1024 * c))
    fs(A, 2)
    lnp = A.new("nopf")
    A("s_add_u32 %s, %s, 128" % (s(sSH), s(sSH)))
    A("s_cmp_ge_u32 %s, 2048" % s(sSH))
    A("s_cbranch_scc1 %s" % lnp)
    prefetch()
    A.label(lnp)
    A.wait_ds()
    A("s_barrier")
    fs(A, 3)
    def rd(n):
        A.ds("ds_read_b128 %s, %s offset:%d" % (v(LAND + 4 * (n & 1), 4), v(vL16), L_OT + (n & 1) * 8192 + (n >> 1) * 1024), ('o', n))
    rd(0)
    rd(1)
    for n in range(16):
        K, tt = n >> 1, n & 1
        A.wait_ds(('o', n))
        for G in range(9):
            d = v(WACC + 8 * G + 4 * tt, 4)
            MF(A, d, R(wo(G, K), 4), v(LAND + 4 * tt, 4), "0" if K == 0 else d)
        if n + 2 < 16:
            rd(n + 2)
    fs(A, 4)
    for tt in range(2):
        for G in range(9):
            b = WACC + 8 * G + 4 * tt
            A("v_cvt_pk_bf16_f32 %s, %s, %s" % (v(b), v(b), v(b + 1)))
            A("v_cvt_pk_bf16_f32 %s, %s, %s" % (v(b + 1), v(b + 2), v(b + 3)))
            A.ds("ds_write_b64 %s, %s offset:%d" % (v(vTw), v(b, 2), tt * 16 * PSTR + 128 * G))
    A.wait_ds()
    A("s_barrier")
    fs(A, 5)
    A("s_mul_i32 %s, %s, %d" % (s(sPAo), s(sSeg), PA_SEG))
    A("s_add_u32 %s, %s, %d" % (s(sPAo), s(sPAo), WS_PA))
    for i in range(9):
        A.ds("ds_read_b128 %s, %s offset:%d" % (v(WACC + 4 * i, 4), v(vTrd), 128 * i), ('t', i))
    for i in range(9):
        A.wait_ds(('t', i))
        A("buffer_store_dwordx4 %s, %s, %s, %s offen offset:%d sc1" % (v(WACC + 4 * i, 4), v(vPst), s(sWS, 4), s(sPAo), 128 * i))
    fs(A, 6)
    A("s_waitcnt vmcnt(0)")
    A("s_barrier")
    fs(A, 7)
    A("s_lshl_b32 %s, %s, 8" % (s(sT), s(sSeg)))
    A("s_add_u32 %s, %s, %d" % (s(sT), s(sT), FL_PA))
    arrive(A, s(sT), 16)
    fs(A, 8)
    ts(A)
    A("s_add_u32 %s, %s, 4" % (s(sSeg), s(sSeg)))
    A("s_cmp_lt_u32 %s, 64" % s(sSeg))
    A("s_cbranch_scc1 %s" % ltop)
    ts_dump(A, 1)

def emit_roleB(A, vRow, vRow2, sValid, opt):
    A.c("=========== role B: reduce + residual + LN2, one row per wave ===========")
    TS['reg'] = 19
    GA, SB, CB = 20, 32, 44
    SEL0, SEL1 = 56, 60
    vPld = 15
    load_mod(A, GA, 2, vRow, vRow2, 17, 18)
    load_mod(A, SB, 3, vRow, vRow2, 17, 18)
    load_mod(A, CB, 4, vRow, vRow2, 17, 18)
    make_sel(A, SEL0, 0, vTmp)
    make_sel(A, SEL1, 1, vTmp)
    A("v_lshrrev_b32 %s, 3, %s" % (v(17), v(vLane)))
    A("v_and_b32 %s, 7, %s" % (v(18), v(vLane)))
    A("v_lshlrev_b32 %s, 4, %s" % (v(18), v(18)))
    A("v_mul_u32_u24 %s, 1152, %s" % (v(vPld), v(17)))
    A("v_add_u32 %s, %s, %s" % (v(vPld), v(vPld), v(18)))
    A("s_waitcnt vmcnt(0)")
    one_plus(A, CB)
    sRow, sRowo = sA0 + 5, sA0 + 3
    A("s_sub_u32 %s, %s, 64" % (s(sRow), s(sWid)))
    A("s_lshl_b32 %s, %s, 1" % (s(sRow), s(sRow)))
    A("s_and_b32 %s, %s, 1" % (s(sT), s(sW)))
    A("s_add_u32 %s, %s, %s" % (s(sRow), s(sRow), s(sT)))
    A("s_lshr_b32 %s, %s, 1" % (s(sSeg), s(sW)))
    A("v_and_b32 %s, 15, %s" % (v(vFl), v(vLane)))
    A("v_lshlrev_b32 %s, 2, %s" % (v(vFl), v(vFl)))
    ltop = A.new("btop")
    A.label(ltop)
    A("s_lshl_b32 %s, %s, 5" % (s(sT), s(sSeg)))
    A("s_add_u32 %s, %s, %s" % (s(sA0 + 2), s(sT), s(sRow)))
    A("s_mul_i32 %s, %s, 1152" % (s(sRowo), s(sA0 + 2)))
    XR, RD, XF, DD = 216, 176, 196, 144
    row_io(A, "load", XR, vRow, vRow2, sXS, s(sRowo))
    A("s_lshl_b32 %s, %s, 8" % (s(sT), s(sSeg)))
    A("s_add_u32 %s, %s, %d" % (s(sT), s(sT), FL_PA))
    wait_flags(A, None, s(sT), imm=128)
    ts(A)
    A("s_mul_i32 %s, %s, 18432" % (s(sT), s(sA0 + 2)))
    A("s_add_u32 %s, %s, %d" % (s(sT), s(sT), WS_PA))
    A("s_add_u32 %s, %s, 9216" % (s(sT + 1), s(sT)))
    LD = 64
    A.vm = []
    for i in range(9):
        for h in range(2):
            A.vmem("buffer_load_dwordx4 %s, %s, %s, %s offen offset:%d sc1" % (v(LD + 8 * i + 4 * h, 4), v(vPld), s(sWS, 4), s(sT + h), 128 * i), ('p', i))
    for i in range(9):
        A.wait_vm(('p', i))
        d = v(RD + 4 * (i >> 1), 4)
        sel = v(SEL1 if i & 1 else SEL0, 4)
        MF(A, d, sel, v(LD + 8 * i, 4), "0" if not (i & 1) else d)
        MF(A, d, sel, v(LD + 8 * i + 4, 4), d)
    for i in range(4):
        A("v_mov_b32 %s, 0" % v(XF + 8 + i))
    A("s_nop 3")
    for T in range(5):
        for jj in range(4):
            A("v_add_f32_dpp %s, %s, %s row_ror:8 row_mask:0xf bank_mask:0x%x" % (v(XF + 4 * (T >> 1) + jj), v(RD + 4 * T + jj), v(RD + 4 * T + jj), 0xc if T & 1 else 0x3))
    for i in range(0, 12, 2):
        rnd2(A, XF + i, XF + i + 1)
    for i in range(12):
        A("v_mul_f32 %s, %s, %s" % (v(XF + i), v(XF + i), v(GA + i)))
    for i in range(0, 12, 2):
        rnd2(A, XF + i, XF + i + 1)
    for i in range(6):
        unpack(A, DD, DD + 1, XR + i)
        A("v_add_f32 %s, %s, %s" % (v(XF + 2 * i), v(XF + 2 * i), v(DD)))
        A("v_add_f32 %s, %s, %s" % (v(XF + 2 * i + 1), v(XF + 2 * i + 1), v(DD + 1)))
        A("v_cvt_pk_bf16_f32 %s, %s, %s" % (v(XR + i), v(XF + 2 * i), v(XF + 2 * i + 1)))
        unpack(A, XF + 2 * i, XF + 2 * i + 1, XR + i)
    A("s_add_u32 %s, %s, %d" % (s(sT), s(sRowo), WS_X1))
    row_io(A, "store", XR, vRow, vRow2, sWS, s(sT), " sc1")
    ln_stats(A, XF, DD, sValid, 160, 161, 162)
    ln_apply(A, XF, 160, 161, CB, SB, 164)
    A("s_add_u32 %s, %s, %d" % (s(sT), s(sRowo), WS_H2))
    row_io(A, "store", 164, vRow, vRow2, sWS, s(sT), " sc1")
    A("s_waitcnt vmcnt(0)")
    A("s_lshl_b32 %s, %s, 8" % (s(sT), s(sSeg)))
    A("s_add_u32 %s, %s, %d" % (s(sT), s(sT), FL_H2))
    arrive(A, s(sT), 32, wave0_only=False)
    ts(A)
    A("s_add_u32 %s, %s, 2" % (s(sSeg), s(sSeg)))
    A("s_cmp_lt_u32 %s, 64" % s(sSeg))
    A("s_cbranch_scc1 %s" % ltop)
    ts_dump(A, 1)

def emit_roleC(A, xsetup, wide_chunks, opt):
    A.c("=========== role C: gate/up + down partial + output ===========")
    A("s_sub_u32 %s, %s, 80" % (s(sT), s(sWid)))
    A("s_lshr_b32 %s, %s, 2" % (s(sSl), s(sT)))
    A("s_and_b32 %s, %s, 3" % (s(sRep), s(sT)))
    build_srd(A, sW1, 64, 5308416)
    build_srd(A, sW2, 72, 5308416)
    build_srd(A, sW3, 80, 5308416)
    build_srd(A, sWO, 104, 2359296)
    vOffW, vTr, vAd, vOffD, vTrD = 9, 10, 11, 12, 13
    A("s_lshl_b32 %s, %s, 8" % (s(sT + 1), s(sSl)))
    wide_off(A, vOffW, vTmp, 9216, s(sT + 1))
    A("s_lshl_b32 %s, %s, 2" % (s(sT + 1), s(sW)))
    wide_tr(A, vTr, vTmp, s(sT + 1), 1)
    A("s_mul_i32 %s, %s, 147456" % (s(sT + 1), s(sSl)))
    tall_off(A, vOffD, vTmp, s(sT + 1))
    tall_tr(A, vTrD, 3)
    W0 = 80
    def wg(t, ks):
        return W0 + 4 * (4 * ks + t)
    def wd(G, ks):
        return W0 + 288 + 4 * (4 * G + ks)
    chunks = wide_chunks((sW1, sW2), 9216, wg)
    for G in range(9):
        def consume(base, G=G):
            A("v_add_u32 %s, %d, %s" % (v(vAd), base, v(vTrD)))
            for ks in range(4):
                tr2(A, wd(G, ks), vAd, 32 * ks * 128, (32 * ks + 4) * 128)
        chunks.append((sW3, vOffD, [8 * j * 1152 + 128 * G for j in range(4)], consume))
    A.vm, A.lds = ['old'] * 2, []
    stage(A, chunks)
    vXo = 9
    sSrc, sM0x = sA0, sA0 + 1
    xsetup()
    vHw, vRl, vOo = 7, 8, 3
    LAND, ACC, PK = 10, 26, 62
    L_HH = 40960
    A("s_lshl_b32 %s, %s, 10" % (s(sT), s(sW)))
    A("s_add_u32 %s, %s, %d" % (s(sT), s(sT), L_HH))
    A("v_add_u32 %s, %s, %s" % (v(vHw), s(sT), v(vL16)))
    A("v_and_b32 %s, 15, %s" % (v(vTmp), v(vLane)))
    A("v_lshlrev_b32 %s, 4, %s" % (v(vRl), v(vTmp)))
    A("v_lshl_add_u32 %s, %s, 10, %s" % (v(vRl), v(vG), v(vRl)))
    A("s_lshl_b32 %s, %s, 8" % (s(sT), s(sW)))
    A("v_add_u32 %s, %s, %s" % (v(vRl), s(sT), v(vRl)))
    A("v_mul_u32_u24 %s, 1152, %s" % (v(vOo), v(vLane)))
    A("s_lshl_b32 %s, %s, 5" % (s(sT), s(sSl)))
    A("s_lshl_b32 %s, %s, 3" % (s(sT + 1), s(sW)))
    A("s_add_u32 %s, %s, %s" % (s(sT), s(sT), s(sT + 1)))
    A("v_add_u32 %s, %s, %s" % (v(vOo), s(sT), v(vOo)))
    A("v_mov_b32 %s, 0x%x" % (v(vTmp), OOB))
    A("v_cmp_gt_u32 vcc, 32, %s" % v(vLane))
    A("s_nop 1")
    A("v_cndmask_b32 %s, %s, %s, vcc" % (v(vOo), v(vTmp), v(vOo)))
    A("s_lshl_b32 %s, %s, 1" % (s(sT), s(sT)))
    A("s_add_u32 %s, %s, %d" % (s(sT), s(sT), WS_MOD + 5 * 2304))
    A("buffer_load_dwordx4 %s, off, %s, %s sc1" % (v(ACC, 4), s(sWS, 4), s(sT)))
    A("s_waitcnt vmcnt(0)")
    sGB = sA0 + 8
    for i in range(4):
        A("v_readfirstlane_b32 %s, %s" % (s(sGB + i), v(ACC + i)))
    A("s_mov_b32 %s, %s" % (s(sSeg), s(sRep)))
    sPCo, sFl = sA0 + 2, sA0 + 3
    TS['reg'] = 4
    sPrev = sA0 + 5
    def reduce_out():
        A("s_mul_i32 %s, %s, 36864" % (s(sA0 + 6), s(sPrev)))
        A("s_add_u32 %s, %s, %d" % (s(sT), s(sA0 + 6), WS_X1))
        A("buffer_load_dwordx2 %s, %s, %s, %s offen sc1" % (v(LAND + 8, 2), v(vOo), s(sWS, 4), s(sT)))
        make_sel(A, LAND, 0, vTmp)
        A("s_lshl_b32 %s, %s, 8" % (s(sFl), s(sPrev)))
        A("s_add_u32 %s, %s, %d" % (s(sFl), s(sFl), FL_PC))
        wait_flags(A, None, s(sFl), imm=128)
        ts(A)
        A("s_mul_i32 %s, %s, %d" % (s(sT), s(sSl), 36 * 1024))
        A("s_add_u32 %s, %s, %s" % (s(sT), s(sT), s(sPCo)))
        A.vm = []
        for i in range(9):
            A.vmem("buffer_load_dwordx4 %s, %s, %s, %s offen sc1" % (v(ACC + 4 * i, 4), v(vRl), s(sWS, 4), s(sT)), ('p', i))
            if i < 8:
                A("s_add_u32 %s, %s, 4096" % (s(sT), s(sT)))
    def reduce_fin():
        D = LAND + 4
        for i in range(9):
            A.wait_vm(('p', i))
            MF(A, v(D, 4), v(LAND, 4), v(ACC + 4 * i, 4), "0" if i == 0 else v(D, 4))
        unpack(A, LAND + 10, LAND + 11, LAND + 8)
        unpack(A, LAND + 12, LAND + 13, LAND + 9)
        A("s_nop 3")
        rnd2(A, D, D + 1)
        rnd2(A, D + 2, D + 3)
        for i in range(4):
            A("v_mul_f32 %s, %s, %s" % (v(D + i), s(sGB + i), v(D + i)))
        rnd2(A, D, D + 1)
        rnd2(A, D + 2, D + 3)
        for i in range(4):
            A("v_add_f32 %s, %s, %s" % (v(D + i), v(D + i), v(LAND + 10 + i)))
        A("v_cvt_pk_bf16_f32 %s, %s, %s" % (v(D), v(D), v(D + 1)))
        A("v_cvt_pk_bf16_f32 %s, %s, %s" % (v(D + 1), v(D + 2), v(D + 3)))
        A("buffer_store_dwordx2 %s, %s, %s, %s offen" % (v(D, 2), v(vOo), s(sWO, 4), s(sA0 + 6)))
        ts(A)
    ltop, lfirst = A.new("ctop"), A.new("cfirst")
    def h2wait():
        A("s_lshl_b32 %s, %s, 8" % (s(sT), s(sSeg)))
        A("s_add_u32 %s, %s, %d" % (s(sT), s(sT), FL_H2))
        wait_flags(A, None, s(sT), imm=128)
        ts(A)
        fs(A, 0)
        A("s_mul_i32 %s, %s, 36864" % (s(sSrc), s(sSeg)))
        A("s_add_u32 %s, %s, %d" % (s(sSrc), s(sSrc), WS_H2))
        x_dma(A, vXo, sSrc, sM0x)
    A.label(ltop)
    h2wait()
    fs(A, 1)
    A("s_waitcnt vmcnt(0)")
    A("s_barrier")
    fs(A, 2)
    A.lds = []
    gemm576(A, vL16, LAND, wg, lambda t, tt: ACC + 8 * t + 4 * tt, 4, lambda t: False)
    fs(A, 3)
    A("s_nop 5")
    for tt in range(2):
        for t in range(2):
            g_, u_ = ACC + 8 * t + 4 * tt, ACC + 16 + 8 * t + 4 * tt
            for jj in range(4):
                rnd2(A, g_ + jj, u_ + jj)
                A("v_mul_f32 %s, %s, %s" % (v(g_ + jj), v(g_ + jj), v(u_ + jj)))
            A("v_cvt_pk_bf16_f32 %s, %s, %s" % (v(LAND + 4 * tt + 2 * t), v(g_), v(g_ + 1)))
            A("v_cvt_pk_bf16_f32 %s, %s, %s" % (v(LAND + 4 * tt + 2 * t + 1), v(g_ + 2), v(g_ + 3)))
        A.ds("ds_write_b128 %s, %s offset:%d" % (v(vHw), v(LAND + 4 * tt, 4), 4096 * tt))
    A.wait_ds()
    A("s_barrier")
    fs(A, 4)
    A("s_mul_i32 %s, %s, %d" % (s(sA0 + 4), s(sSeg), PC_SEG))
    A("s_add_u32 %s, %s, %d" % (s(sA0 + 4), s(sA0 + 4), WS_PC))
    A("s_mul_i32 %s, %s, 36" % (s(sT), s(sW)))
    A("s_add_u32 %s, %s, %s" % (s(sT), s(sT), s(sSl)))
    A("s_lshl_b32 %s, %s, 10" % (s(sT), s(sT)))
    A("s_add_u32 %s, %s, %s" % (s(sT), s(sT), s(sA0 + 4)))
    for tt in range(2):
        for ks in range(4):
            A.ds("ds_read_b128 %s, %s offset:%d" % (v(LAND + 4 * ks, 4), v(vL16), L_HH + 4096 * tt + 1024 * ks), ('h', ks))
        for ks in range(4):
            A.wait_ds(('h', ks))
            for G in range(9):
                d = v(ACC + 4 * G, 4)
                MF(A, d, R(wd(G, ks), 4), v(LAND + 4 * ks, 4), "0" if ks == 0 else d)
        for G in range(9):
            b = ACC + 4 * G
            if tt == 0:
                A("v_cvt_pk_bf16_f32 %s, %s, %s" % (v(PK + 2 * G), v(b), v(b + 1)))
                A("v_cvt_pk_bf16_f32 %s, %s, %s" % (v(PK + 2 * G + 1), v(b + 2), v(b + 3)))
            else:
                A("v_cvt_pk_bf16_f32 %s, %s, %s" % (v(b + 3), v(b + 2), v(b + 3)))
                A("v_cvt_pk_bf16_f32 %s, %s, %s" % (v(b + 2), v(b), v(b + 1)))
                A("v_mov_b64 %s, %s" % (v(b, 2), v(PK + 2 * G, 2)))
                A("buffer_store_dwordx4 %s, %s, %s, %s offen sc1" % (v(b, 4), v(vL16), s(sWS, 4), s(sT)))
                if G < 8:
                    A("s_add_u32 %s, %s, %d" % (s(sT), s(sT), 4 * 36 * 1024))
    fs(A, 5)
    A("s_waitcnt vmcnt(0)")
    A("s_barrier")
    fs(A, 6)
    A("s_lshl_b32 %s, %s, 8" % (s(sT), s(sSeg)))
    A("s_add_u32 %s, %s, %d" % (s(sT), s(sT), FL_PC))
    arrive(A, s(sT), 36)
    fs(A, 7)
    ts(A)
    A("s_cmp_lt_u32 %s, 4" % s(sSeg))
    A("s_cbranch_scc1 %s" % lfirst)
    reduce_out()
    reduce_fin()
    A.label(lfirst)
    A("s_mov_b32 %s, %s" % (s(sPrev), s(sSeg)))
    A("s_mov_b32 %s, %s" % (s(sPCo), s(sA0 + 4)))
    A("s_add_u32 %s, %s, 4" % (s(sSeg), s(sSeg)))
    A("s_cmp_lt_u32 %s, 64" % s(sSeg))
    A("s_cbranch_scc1 %s" % ltop)
    reduce_out()
    reduce_fin()
    ts_dump(A, 1)
```

```python
from asmlib import *
from layout import *
import struct, math

L_MEM, L_KX, L_F, L_O, L_SCR, L_W = 0, 9216, 17408, 21632, 23680, 24576
FSTR = 1056
L_FLAG = L_SCR + 892
L_WSTRIDE = 34816
vL16, vIdx, vWL, vFw, vOw, vPst, vRst, vSelV, vT0, vT1, vT2, vTmp = range(12)
VACC, QK, RING, LND = 12, 20, 36, 48
WREG0 = 72
KVSTEP = 32 * 16384
NSPILL = 17
sWS, sWQ, sWK, sWV, sWO, sM0, sDBG = 4, 8, 12, 16, 20, 24, 28
sCU, sW, sWC, sUnit, sStep, sBud = 32, 33, 34, 35, 36, 37
sP0, sP1, sP2, sRd, sX0, sX1, sX2, sKV, sKM, sPh, sWF, sC, sVX, sKXm = range(38, 52)
sL2a, sKVv, sKVt = 96, 97, 98
sPt = 8
sTagM = 100
sFlg, sFlgN, sOne, sKF, sRdy, sRdE = 17, 18, 20, 19, 22, 24
sSel = 52
sT = 60
sStamp = 64

def f32bits(x):
    return struct.unpack("<I", struct.pack("<f", x))[0]

WO_ORDER = [0, 1, 2, 3, 4, 5, 6, 7, 8]
QK_CHAIN = [[('qk', 0, 1), ('qk', 2, 0), ('qk', 4, 0), ('qk', 6, 0), ('qk', 7, 3)],
            [('qk', 0, 2), ('qk', 2, 1), ('qk', 4, 1), ('qk', 6, 1)],
            [('qk', 0, 0), ('v', 8, 1)]]
def GOF(j, w):
    if j == 8:
        return 8
    o = 2 * (1 - (w >> 1))
    return (j & 4) + (w, w ^ 1, o, o + 1)[j & 3]
WO_CHAIN = [[('o', 0), ('o', 8), ('o', 16)], [('o', 1), ('o', 9), ('o', 17)]]
L2KEY = ('v', 8, 1)
def placement():
    spill, regs, slot, nxt = {}, {}, {}, {}
    nonreg = []
    for chains in (QK_CHAIN, WO_CHAIN):
        for si, ch in enumerate(chains):
            for i, k in enumerate(ch):
                slot[k] = si
                nxt[k] = ch[i + 1] if i + 1 < len(ch) else None
                if k != L2KEY:
                    nonreg.append(k)
    nonreg.append(L2KEY)
    assert len(nonreg) == NSPILL
    for i, k in enumerate(nonreg):
        spill[k] = i
    allk = [('qk', j, t) for j in range(9) for t in range(4)] + [('v', j, t) for j in range(9) for t in range(2)] + \
           [('o', n) for n in range(18)]
    r = WREG0
    for k in allk:
        if k not in spill:
            regs[k] = r
            r += 8
    assert r == 512, r
    return spill, regs, slot, nxt
SPILL, WREGS, SLOT, NXT = placement()

def emit_team(A, stamps=False, nsteps=64, sc="", hooks=None, opt=()):
    nst = [0]
    def stamp():
        if stamps:
            if "rt" in opt and nst[0] in (2, 4):
                pass
            else:
                A("%s %s" % ("s_memrealtime" if "rt" in opt else "s_memtime", s(sStamp + 2 * nst[0], 2)))
            nst[0] += 1
    SC = " sc1"
    lane = 71
    t1, t2, t3, t4, t5, t6 = 64, 65, 66, 67, 68, 69
    vOffW, vOffO, vTrQK, vTrV, vTrO, vAd, vTr8, vAd2 = 56, 57, 58, 59, 60, 61, 62, 63
    vColQK, vColV = 54, 55
    A.c("=========== team setup ===========")
    if "tt" in opt:
        A("s_memtime s[90:91]")
        A("s_memrealtime s[64:65]")
        A("s_mov_b32 s87, 0")
        A("s_mov_b32 s88, 0")
        A("s_mov_b32 s89, 0")
    A("v_mov_b32 %s, v0" % v(lane))
    A("v_lshrrev_b32 %s, 4, %s" % (v(t2), v(lane)))
    A("v_lshlrev_b32 %s, 2, %s" % (v(t1), v(t2)))
    A("v_sub_u32 %s, %s, %s" % (v(t1), v(lane), v(t1)))
    A("v_and_b32 %s, 15, %s" % (v(t1), v(t1)))
    A("v_lshlrev_b32 %s, 4, %s" % (v(t1), v(t1)))
    A("v_lshl_add_u32 %s, %s, 13, %s" % (v(vOffW), v(t2), v(t1)))
    A("s_lshl_b32 %s, %s, 8" % (s(sT + 2), s(sCU)))
    A("s_lshl_b32 %s, %s, 17" % (s(sT + 3), s(sW)))
    A("s_add_u32 %s, %s, %s" % (s(sT + 2), s(sT + 2), s(sT + 3)))
    A("v_add_u32 %s, %s, %s" % (v(vOffW), s(sT + 2), v(vOffW)))
    A("v_lshrrev_b32 %s, 3, %s" % (v(t1), v(lane)))
    A("v_mul_u32_u24 %s, 1152, %s" % (v(vOffO), v(t1)))
    A("v_and_b32 %s, 7, %s" % (v(t1), v(lane)))
    A("v_lshl_add_u32 %s, %s, 4, %s" % (v(vOffO), v(t1), v(vOffO)))
    A("s_mul_i32 %s, %s, 147456" % (s(sT + 2), s(sCU)))
    A("s_mul_i32 %s, %s, %d" % (s(sT + 3), s(sW), 32 * 1152))
    A("s_add_u32 %s, %s, %s" % (s(sT + 2), s(sT + 2), s(sT + 3)))
    A("v_add_u32 %s, %s, %s" % (v(vOffO), s(sT + 2), v(vOffO)))
    sLW = 99
    RING0 = L_W + 14336
    A("s_mul_i32 %s, %s, %d" % (s(sLW), s(sW), L_WSTRIDE))
    chunks = [(3, G) for G in range(9)] + [(m, G) for G in range(9) for m in range(2)] + [(2, G) for G in (4, 5, 6, 7, 8, 0, 1, 2, 3)]
    VLAST = (1, 2, 3)
    NSLOT = 5
    NT = " nt" if "nt" in opt else ""
    def issue_chunk(c):
        m, G = chunks[c]
        slot = c % NSLOT
        for j in range(4):
            A("s_add_u32 m0, %s, %d" % (s(sLW), RING0 + slot * 4096 + j * 1024))
            if m < 3:
                A("s_mov_b32 %s, %d" % (s(sT + 2), (64 * G + 4 * j) * 8192))
                A.vmem("buffer_load_dwordx4 %s, %s, %s offen%s lds" % (v(vOffW), s((sWQ, sWK, sWV)[m], 4), s(sT + 2), NT), ('c', c))
            else:
                A("s_mov_b32 %s, %d" % (s(sT + 2), 8 * j * 1152 + 128 * G))
                A.vmem("buffer_load_dwordx4 %s, %s, %s offen%s lds" % (v(vOffO), s(sWO, 4), s(sT + 2), NT), ('c', c))
    A.vm, A.lds = [], []
    for c in range(NSLOT - 1):
        issue_chunk(c)
    A("s_lshl_b32 %s, %s, 5" % (s(sT), s(sW)))
    A("s_add_u32 %s, %s, %s" % (s(sUnit), s(sT), s(sCU)))
    A("s_cmp_lt_u32 %s, 72" % s(sUnit))
    A("s_cselect_b32 %s, %s, -1" % (s(sUnit), s(sUnit)))
    A("v_lshlrev_b32 %s, 4, %s" % (v(vL16), v(lane)))
    A("v_and_b32 %s, 1, %s" % (v(t1), v(lane)))
    A("v_mul_u32_u24 %s, 0xaaaa, %s" % (v(t1), v(t1)))
    A("v_add_u32 %s, 0x4444, %s" % (v(vIdx), v(t1)))
    A("s_mul_i32 %s, %s, %d" % (s(sT), s(sW), L_WSTRIDE))
    A("s_add_u32 %s, %s, %d" % (s(sT), s(sT), L_W))
    A("v_add_u32 %s, %s, %s" % (v(vWL), s(sT), v(vL16)))
    A("s_add_u32 %s, %s, 32768" % (s(sVX), s(sT)))
    A("s_lshl_b32 %s, %s, 11" % (s(sKXm), s(sW)))
    A("s_add_u32 %s, %s, %d" % (s(sKXm), s(sKXm), L_KX))
    A("v_lshrrev_b32 %s, 4, %s" % (v(t2), v(lane)))
    A("v_bfe_u32 %s, %s, 2, 2" % (v(t3), v(lane)))
    A("v_and_b32 %s, 3, %s" % (v(t4), v(lane)))
    A("v_and_b32 %s, 1, %s" % (v(t1), v(t3)))
    A("v_mul_u32_u24 %s, %d, %s" % (v(vFw), FSTR, v(t1)))
    A("v_lshrrev_b32 %s, 1, %s" % (v(t1), v(t3)))
    A("v_lshl_add_u32 %s, %s, 8, %s" % (v(vFw), v(t1), v(vFw)))
    A("v_lshl_add_u32 %s, %s, 6, %s" % (v(vFw), v(t2), v(vFw)))
    A("v_lshl_add_u32 %s, %s, 2, %s" % (v(vFw), v(t4), v(vFw)))
    A("s_lshr_b32 %s, %s, 1" % (s(sT), s(sW)))
    A("s_and_b32 %s, %s, 1" % (s(sT + 1), s(sW)))
    A("s_mul_i32 %s, %s, %d" % (s(sT + 2), s(sT), 2 * FSTR))
    A("s_lshl_b32 %s, %s, 9" % (s(sT + 3), s(sT + 1)))
    A("s_add_u32 %s, %s, %s" % (s(sT + 2), s(sT + 2), s(sT + 3)))
    A("s_add_u32 %s, %s, %d" % (s(sT + 2), s(sT + 2), L_F))
    A("v_add_u32 %s, %s, %s" % (v(vFw), s(sT + 2), v(vFw)))
    A("v_and_b32 %s, 1, %s" % (v(t1), v(t4)))
    A("v_lshl_add_u32 %s, %s, 1, %s" % (v(t1), v(t3), v(t1)))
    A("v_lshlrev_b32 %s, 5, %s" % (v(t5), v(t1)))
    A("v_lshl_add_u32 %s, %s, 8, %s" % (v(t5), v(t2), v(t5)))
    A("s_lshl_b32 %s, %s, 10" % (s(sT + 2), s(sT)))
    A("s_lshl_b32 %s, %s, 4" % (s(sT + 3), s(sT + 1)))
    A("s_add_u32 %s, %s, %s" % (s(sT + 2), s(sT + 2), s(sT + 3)))
    A("s_add_u32 %s, %s, %d" % (s(sT + 2), s(sT + 2), L_O))
    A("v_add_u32 %s, %s, %s" % (v(t5), s(sT + 2), v(t5)))
    A("v_lshl_add_u32 %s, %s, 3, %s" % (v(t6), v(t2), v(t1)))
    A("v_lshlrev_b32 %s, 4, %s" % (v(t6), v(t6)))
    A("v_add_u32 %s, %d, %s" % (v(t6), L_SCR, v(t6)))
    A("v_cmp_le_u32 vcc, 2, %s" % v(t4))
    A("s_nop 1")
    A("v_cndmask_b32 %s, %s, %s, vcc" % (v(vOw), v(t6), v(t5)))
    A("v_lshrrev_b32 %s, 5, %s" % (v(t1), v(lane)))
    A("v_lshlrev_b32 %s, 12, %s" % (v(vPst), v(t1)))
    A("v_and_b32 %s, 31, %s" % (v(t1), v(lane)))
    A("v_lshl_add_u32 %s, %s, 2, %s" % (v(vPst), v(t1), v(vPst)))
    A("v_lshlrev_b32 %s, 6, %s" % (v(t5), v(t3)))
    A("v_lshl_add_u32 %s, %s, 3, %s" % (v(t5), v(t4), v(t5)))
    A("v_lshl_add_u32 %s, %s, 5, %s" % (v(t5), v(t2), v(t5)))
    A("s_lshl_b32 %s, %s, 7" % (s(sT + 2), s(sUnit)))
    A("s_and_b32 %s, %s, 0x3fff" % (s(sT + 2), s(sT + 2)))
    A("v_add_u32 %s, %s, %s" % (v(t5), s(sT + 2), v(t5)))
    A("v_and_b32 %s, 0x28, %s" % (v(t1), v(lane)))
    A("v_mov_b32 %s, 0x%x" % (v(t6), OOB))
    A("v_cmp_eq_u32 vcc, 0, %s" % v(t1))
    A("s_nop 1")
    A("v_cndmask_b32 %s, %s, %s, vcc" % (v(vRst), v(t6), v(t5)))
    A("s_mov_b32 %s, 0x11111111" % s(sTagM))
    A("s_mov_b32 %s, 0x11111111" % s(sTagM + 1))
    A("v_and_b32 %s, 1, %s" % (v(t1), v(t3)))
    A("v_lshlrev_b32 %s, 4, %s" % (v(t1), v(t1)))
    A("v_mov_b32 %s, 0x3f80" % v(t5))
    A("v_lshlrev_b32 %s, %s, %s" % (v(vSelV), v(t1), v(t5)))
    for u in range(4):
        m16 = (1 << u) | (1 << (u + 4))
        m32 = m16 | (m16 << 16)
        A("s_mov_b32 %s, 0x%x" % (s(sSel + 2 * u), m32))
        A("s_mov_b32 %s, 0x%x" % (s(sSel + 2 * u + 1), m32))
    A("s_lshl_b32 %s, %s, 10" % (s(sT + 2), s(sW)))
    A("v_add_u32 %s, %s, %s" % (v(vT0), s(sT + 2), v(vL16)))
    A("v_xor_b32 %s, 0x400, %s" % (v(vT1), v(vT0)))
    A("s_and_b32 %s, %s, 0x800" % (s(sT + 2), s(sT + 2)))
    A("s_xor_b32 %s, %s, 0x800" % (s(sT + 2), s(sT + 2)))
    A("v_add_u32 %s, %s, %s" % (v(vT2), s(sT + 2), v(vL16)))
    A("s_mov_b32 %s, 0" % s(sStep))
    A("s_mov_b32 %s, 0" % s(sPh))
    A("s_mov_b32 %s, 200000" % s(sBud))
    A("s_lshl_b32 %s, %s, 7" % (s(sT + 3), s(sCU)))
    A("s_add_u32 %s, %s, %d" % (s(sT + 3), s(sT + 3), WS_PB))
    A("s_lshl_b32 %s, %s, 13" % (s(sT + 2), s(sW)))
    A("s_add_u32 %s, %s, %s" % (s(sP0), s(sT + 2), s(sT + 3)))
    A("s_lshl_b32 %s, %s, 12" % (s(sT + 2), s(sUnit)))
    A("s_add_u32 %s, %s, %d" % (s(sRd), s(sT + 2), WS_PB))
    A("s_cmp_eq_u32 %s, -1" % s(sUnit))
    A("s_cselect_b32 %s, 0x%x, %s" % (s(sRd), OOB, s(sRd)))
    A("s_cselect_b32 %s, 0x%x, 0" % (s(sT + 2), OOB))
    A("v_or_b32 %s, %s, %s" % (v(vRst), s(sT + 2), v(vRst)))
    for i, r in enumerate((sX0, sX1, sX2)):
        A("s_mov_b32 %s, %d" % (s(r), WS_MBX + i * MBX_STRIDE))
    A("s_lshl_b32 %s, %s, 14" % (s(sKV), s(sCU)))
    A("s_lshl_b32 %s, %s, 11" % (s(sT + 2), s(sW)))
    A("s_add_u32 %s, %s, %s" % (s(sKV), s(sKV), s(sT + 2)))
    A("s_add_u32 %s, %s, %d" % (s(sKVv), s(sKV), WS_KV + 8192))
    A("s_lshl_b32 %s, %s, 14" % (s(sKVt), s(sCU)))
    A("s_and_b32 %s, %s, 1" % (s(sT + 2), s(sW)))
    A("s_lshl_b32 %s, %s, 13" % (s(sT + 2), s(sT + 2)))
    A("s_add_u32 %s, %s, %s" % (s(sKVt), s(sKVt), s(sT + 2)))
    A("s_add_u32 %s, %s, %d" % (s(sKVt), s(sKVt), WS_KV + 1 * KVSTEP))
    A("s_cmp_lt_u32 %s, 2" % s(sW))
    A("s_cselect_b32 %s, 0x%x, %s" % (s(sKVt), OOB, s(sKVt)))
    if WS_KV:
        A("s_add_u32 %s, %s, %d" % (s(sKV), s(sKV), WS_KV))
    A("s_lshl_b32 %s, %s, 12" % (s(sKM), s(sCU)))
    A("s_lshl_b32 %s, %s, 10" % (s(sT + 2), s(sW)))
    A("s_add_u32 %s, %s, %s" % (s(sKM), s(sKM), s(sT + 2)))
    A("s_add_u32 %s, %s, %d" % (s(sKM), s(sKM), WS_KM))
    A("s_lshl_b32 %s, %s, 2" % (s(sT + 2), s(sCU)))
    A("s_add_u32 %s, %s, %s" % (s(sT + 2), s(sT + 2), s(sW)))
    A("s_mul_i32 %s, %s, %d" % (s(sWF), s(sT + 2), 18 * 2048))
    A("s_add_u32 %s, %s, %d" % (s(sWF), s(sWF), WS_WF))
    A("s_add_u32 %s, %s, %d" % (s(sL2a), s(sWF), 16 * 2048))
    A("s_mov_b32 %s, 0x%x" % (s(sC), f32bits(128 ** -0.5 * math.log2(math.e))))

    A("s_lshl_b32 %s, %s, 2" % (s(sT + 2), s(sW)))
    A("v_add_u32 %s, %s, %s" % (v(vColQK), s(sT + 2), v(t4)))
    A("s_lshl_b32 %s, %s, 3" % (s(sT + 2), s(sT)))
    A("s_add_u32 %s, %s, %s" % (s(sT + 2), s(sT + 2), s(sT + 1)))
    A("v_lshl_add_u32 %s, %s, 1, %s" % (v(vColV), v(t4), s(sT + 2)))
    A("v_and_b32 %s, 1, %s" % (v(t5), v(t2)))
    A("v_lshlrev_b32 %s, 2, %s" % (v(t5), v(t5)))
    A("v_lshrrev_b32 %s, 1, %s" % (v(t6), v(t3)))
    A("v_lshl_add_u32 %s, %s, 3, %s" % (v(t5), v(t6), v(t5)))
    A("v_and_b32 %s, 1, %s" % (v(t6), v(t3)))
    A("v_add_u32 %s, %s, %s" % (v(t5), v(t5), v(t6)))
    A("v_lshrrev_b32 %s, 1, %s" % (v(t1), v(t2)))
    A("v_lshl_add_u32 %s, %s, 4, %s" % (v(vTrO), v(t1), v(t5)))
    A("v_lshlrev_b32 %s, 7, %s" % (v(vTrO), v(vTrO)))
    A("v_lshl_add_u32 %s, %s, 3, %s" % (v(vTrO), v(t4), v(vTrO)))
    A("s_lshl_b32 %s, %s, 5" % (s(sT + 2), s(sW)))
    A("s_add_u32 %s, %s, %d" % (s(sT + 2), s(sT + 2), RING0))
    A("v_add_u32 %s, %s, %s" % (v(vTrO), s(sT + 2), v(vTrO)))
    A("v_mul_u32_u24 %s, %d, %s" % (v(t1), L_WSTRIDE, v(t1)))
    A("v_lshl_add_u32 %s, %s, 8, %s" % (v(t1), v(t5), v(t1)))
    A("v_add_u32 %s, %d, %s" % (v(t1), RING0, v(t1)))
    for col in (vColQK, vColV):
        A("v_lshl_add_u32 %s, %s, 2, %s" % (v(col), v(t6), v(col)))
        A("v_and_b32 %s, 15, %s" % (v(col), v(col)))
        A("v_lshl_add_u32 %s, %s, 4, %s" % (v(col), v(col), v(t1)))
    AD = [58, 59, 61, 62]
    def addr_wo():
        for i in range(4):
            A("v_add_u32 %s, %d, %s" % (v(AD[i]), i * L_WSTRIDE, v(vTrO)))
    def addr_wide(col):
        A("v_mov_b32 %s, %s" % (v(AD[0]), v(col)))
        A("v_xor_b32 %s, 0x80, %s" % (v(AD[1]), v(col)))
        A("v_add_u32 %s, %d, %s" % (v(AD[2]), 2 * L_WSTRIDE, v(AD[0])))
        A("v_add_u32 %s, %d, %s" % (v(AD[3]), 2 * L_WSTRIDE, v(AD[1])))
    TMPF = [12, 20]
    tmpi = [0]
    park = {}
    def get_frag(key, addrs, imms):
        out = None
        if key in WREGS:
            r = WREGS[key]
        elif SPILL[key] in park:
            r = park[SPILL[key]]
        else:
            r = TMPF[tmpi[0] % 2]
            tmpi[0] += 1
            out = (r, SPILL[key])
        for q in range(4):
            A.ds("ds_read_b64_tr_b16 %s, %s offset:%d" % (R(r + 2 * q, 2), v(addrs[q]), imms[q]))
        return out
    def put(r, idx):
        if idx < 16:
            for hh in range(2):
                A.ds("ds_write_b128 %s, %s offset:%d" % (v(vWL), R(r + 4 * hh, 4), idx * 2048 + hh * 1024))
        else:
            for hh in range(2):
                A.vmem("buffer_store_dwordx4 %s, %s, %s, %s offen offset:%d" % (v(r + 4 * hh, 4), v(vL16), s(sWS, 4), s(sL2a), 1024 * hh), 'sp')

    A("v_lshl_add_u32 %s, %s, 1, %s" % (v(t5), v(t3), v(t2)))
    A("v_mul_u32_u24 %s, 1152, %s" % (v(t5), v(t5)))
    A("v_lshl_add_u32 %s, %s, 3, %s" % (v(t5), v(t4), v(t5)))
    A("s_and_b32 %s, %s, 1" % (s(sT + 2), s(sUnit)))
    A("s_mul_i32 %s, %s, 4608" % (s(sT + 2), s(sT + 2)))
    A("s_bfe_u32 %s, %s, 0x60001" % (s(sT + 3), s(sUnit)))
    A("s_lshl_b32 %s, %s, 5" % (s(sT + 3), s(sT + 3)))
    A("s_add_u32 %s, %s, %s" % (s(sT + 2), s(sT + 2), s(sT + 3)))
    A.vmem("buffer_load_dwordx2 %s, %s, %s, %s offen" % (v(52, 2), v(t5), s(sM0, 4), s(sT + 2)), 'm0')
    for i in range(4):
        A("v_mov_b32 %s, -1" % v(64 + i))
    for i in range(4):
        A.vmem("buffer_store_dwordx4 %s, %s, %s, %s offen offset:%d%s" % (v(64, 4), v(vL16), s(sWS, 4), s(sRd), 1024 * i, SC), 'mb')
    for so in (sX1, sX2):
        A.vmem("buffer_store_dwordx2 %s, %s, %s, %s offen%s" % (v(64, 2), v(vRst), s(sWS, 4), s(so), SC), 'mb')
    vm0 = list(A.vm)
    ljoin = A.new("initjoin")
    lcls = [A.new("cls%d" % i) for i in range(4)]
    for i in (1, 2, 3):
        A("s_cmp_eq_u32 %s, %d" % (s(sW), i))
        A("s_cbranch_scc1 %s" % lcls[i])
    for wc in range(4):
        A.label(lcls[wc])
        A.vm, A.lds = list(vm0), []
        tmpi[0] = 0
        pos = [GOF(jj, wc) for jj in range(9)]
        park.clear()
        park.update({15: 28, 7: 36, 8: 44})
        for i, G in enumerate(VLAST):
            for t in range(2):
                park[9 + 2 * i + t] = WREGS[('v', pos.index(G), t)]
        flush = {32: (9, 10), 33: (11, 12), 34: (13, 14), 35: (15,)}
        for c in range(36):
            m, G = chunks[c]
            if c == 0:
                addr_wo()
            if c == 9:
                addr_wide(vColQK)
            if c == 27:
                addr_wide(vColV)
            A.wait_vm(('c', c))
            A("s_barrier")
            if c + NSLOT - 1 < 36:
                issue_chunk(c + NSLOT - 1)
            if c == NSLOT:
                A.vmem("buffer_store_dwordx2 %s, %s, %s, %s offen%s" % (v(52, 2), v(vRst), s(sWS, 4), s(sX0), SC), 'mb')
            if c == 20 and wc == 0:
                A("s_mov_b64 exec, 1")
                A("s_lshl_b32 %s, 1, s3" % s(sT + 2))
                A("s_lshl_b32 %s, %s, 8" % (s(sT + 2), s(sT + 2)))
                A("v_mov_b32 %s, %s" % (v(52), s(sT + 2)))
                A("v_mov_b32 %s, 1" % v(53))
                A.vmem("buffer_atomic_or %s, off, %s, 0 offset:%d" % (v(52), s(sDBG, 4), DBG_TEAM), 'at')
                A.vmem("buffer_atomic_add %s, off, %s, 0 offset:%d" % (v(53), s(sDBG, 4), DBG_TEAM), 'at')
                A("s_mov_b64 exec, -1")
            for idx in flush.get(c, ()):
                put(park[idx], idx)
            so = (c % NSLOT) * 4096
            sp = []
            if m == 3:
                for c2 in range(2):
                    sp.append(get_frag(('o', 2 * G + c2), [AD[2 * c2 + (q >> 1)] for q in range(4)], [so + 2 * (q & 1) * 128 for q in range(4)]))
            else:
                j = pos.index(G)
                for t in range(2):
                    key = ('qk', j, 2 * m + t) if m < 2 else ('v', j, t)
                    sp.append(get_frag(key, AD, [so + 2 * (q & 1) * 256 + 8 * t for q in range(4)]))
            A.wait_ds()
            for x in sp:
                if x:
                    put(*x)
        A("s_barrier")
        put(park[7], 7)
        put(park[8], 8)
        if wc < 3:
            A("s_branch %s" % ljoin)
    A.label(ljoin)
    for G in range(9):
        A("s_add_u32 %s, %s, %d" % (s(sPt + G), s(sP0), G * 32768))
    A("s_mov_b32 %s, 0x%x" % (s(sFlg), OOB))
    A("s_lshl_b32 %s, %s, 7" % (s(sFlgN), s(sCU)))
    A("s_add_u32 %s, %s, %d" % (s(sFlgN), s(sFlgN), FL_PUB))
    A("s_cmp_eq_u32 %s, 3" % s(sW))
    A("s_cselect_b32 %s, %s, 0x%x" % (s(sFlgN), s(sFlgN), OOB))
    A("s_mov_b64 %s, 1" % s(sOne, 2))
    A("s_cmp_lt_u32 %s, 32" % s(sUnit))
    A("s_cselect_b32 %s, %s, 0x%x" % (s(sRdE), s(sRd), OOB))
    A("s_lshl_b32 %s, %s, 8" % (s(sKF), s(sCU)))
    A("s_add_u32 %s, %s, %d" % (s(sKF), s(sKF), FL_KV))
    A("s_waitcnt vmcnt(0) lgkmcnt(0)")
    A.vm, A.lds = [], []

    def kv_dma():
        return ["s_mov_b32 m0, %s" % s(sKXm),
                "buffer_load_dwordx4 %s, %s, %s offen sc1 lds" % (v(vL16), s(sWS, 4), s(sKV)),
                "buffer_load_dwordx4 %s, %s, %s offen offset:1024 sc1 lds" % (v(vL16), s(sWS, 4), s(sKV)),
                "s_mov_b32 m0, %s" % s(sVX),
                "buffer_load_dwordx4 %s, %s, %s offen sc1 lds" % (v(vL16), s(sWS, 4), s(sKVv)),
                "buffer_load_dwordx4 %s, %s, %s offen offset:1024 sc1 lds" % (v(vL16), s(sWS, 4), s(sKVv))]
    def land(key, half=None):
        sp = SPILL[key]
        for hh in ((0, 1) if half is None else (half,)):
            if sp < 16:
                A.ds("ds_read_b128 %s, %s offset:%d" % (v(LND + 8 * SLOT[key] + 4 * hh, 4), v(vWL), sp * 2048 + 1024 * hh), key)
            else:
                A.vmem("buffer_load_dwordx4 %s, %s, %s, %s offen offset:%d" % (v(LND + 8 * SLOT[key] + 4 * hh, 4), v(vL16), s(sWS, 4), s(sL2a), 1024 * hh), key)
    def zero(lo, hi):
        for r in range(lo, hi, 2):
            A("v_mov_b64 %s, 0" % v(r, 2))
    KVINC = 0 if "samekv" in opt else KVSTEP
    NDMA = "ndma" in opt
    def kv_all():
        for i in range(2):
            A("s_mov_b32 m0, %d" % (L_KX + 4096 * i))
            A("s_add_u32 %s, %s, %d" % (s(sT + 2), s(sKV), 4096 * i))
            for j in range(4):
                A("buffer_load_dwordx4 %s, %s, %s offen offset:%d sc1 lds" % (v(vL16), s(sWS, 4), s(sT + 2), 1024 * j))
        for i in range(4):
            A("s_mov_b32 m0, %d" % (L_W + i * L_WSTRIDE + 32768))
            A("s_add_u32 %s, %s, %d" % (s(sT + 2), s(sKV), 8192 + 2048 * i))
            for j in range(2):
                A("buffer_load_dwordx4 %s, %s, %s offen offset:%d sc1 lds" % (v(vL16), s(sWS, 4), s(sT + 2), 1024 * j))
    def kv_refresh(lback):
        lp = A.new("kvr")
        A.label(lp)
        A("v_lshrrev_b32 %s, 2, %s" % (v(vTmp), v(vL16)))
        A("buffer_load_dword %s, %s, %s, %s offen sc1" % (v(vTmp), v(vTmp), s(sWS, 4), s(sKF)))
        A("s_waitcnt vmcnt(0)")
        A("v_cmp_ne_u32 %s, 0, %s" % (s(sRdy, 2), v(vTmp)))
        A("s_nop 3")
        A("s_bitcmp1_b64 %s, %s" % (s(sRdy, 2), s(sStep)))
        A("s_cbranch_scc1 %s" % lback)
        A("s_sub_u32 %s, %s, 1" % (s(sBud), s(sBud)))
        A("s_cbranch_scc0 %s" % lp)
        A("s_mov_b32 %s, 0" % s(sBud))
        A("s_branch %s" % lback)
    if "tt" in opt:
        A("s_memrealtime s[66:67]")
    if hooks and 'kv_wait0' in hooks:
        hooks['kv_wait0'](A)
        l0 = A.new("kv0")
        kv_refresh(l0)
        A.label(l0)
    if "tt" in opt:
        A("s_memrealtime s[68:69]")
    if NDMA:
        l3 = A.new("n3")
        A("s_lshl_b32 %s, %s, 14" % (s(sKV), s(sCU)))
        if WS_KV:
            A("s_add_u32 %s, %s, %d" % (s(sKV), s(sKV), WS_KV))
        A("s_add_u32 %s, %s, %d" % (s(sKVt), s(sKVt), KVSTEP))
        A("s_barrier")
        A("s_cmp_lg_u32 %s, 3" % s(sW))
        A("s_cbranch_scc1 %s" % l3)
        kv_all()
        A.label(l3)
    A("s_waitcnt vmcnt(0)")
    for ch in QK_CHAIN:
        land(ch[0])
    zero(VACC, RING)
    lp, lo = A.new("tb"), A.new("tbok")
    A.label(lp)
    A("buffer_load_dword %s, off, %s, 0 offset:%d sc1" % (v(vTmp), s(sDBG, 4), DBG_TEAM))
    A("s_waitcnt vmcnt(0)")
    A("v_readfirstlane_b32 %s, %s" % (s(sT), v(vTmp)))
    A("s_nop 3")
    A("s_bitcmp1_b32 %s, 5" % s(sT))
    A("s_cbranch_scc1 %s" % lo)
    A("s_sub_u32 %s, %s, 1" % (s(sBud), s(sBud)))
    A("s_cbranch_scc0 %s" % lp)
    A("s_mov_b32 %s, 0" % s(sBud))
    A.label(lo)
    A("s_waitcnt lgkmcnt(0)")
    A("s_lshr_b32 %s, %s, 8" % (s(sT), s(sT)))
    A("s_bcnt1_i32_b32 %s, %s" % (s(sT), s(sT)))
    lslow = A.new("slow")
    A("s_cmp_lg_u32 %s, 1" % s(sT))
    A("s_cbranch_scc1 %s" % lslow)
    def loop(SC):
        lentry, lexit = A.new("entry"), A.new("exit")
        lok1, lnored, lb4 = A.new("ok1"), A.new("nored"), A.new("b4")
        ls1, ls1w, l1a = A.new("s1"), A.new("s1w"), A.new("p1a")
        ls1r, ls2r, ls2ok, ls3r, ls3ok, l1r = A.new("s1r"), A.new("s2r"), A.new("s2ok"), A.new("s3r"), A.new("s3ok"), A.new("p1r")
        A("s_branch %s" % ls1)

        def SM(acc, afr, breg):
            A("v_smfmac_f32_16x16x64_bf16 %s, %s, %s, %s" % (v(acc, 4), v(afr, 4), breg, v(vIdx)))
        def MF(d, a_, b_, c_):
            A("v_mfma_f32_16x16x32_bf16 %s, %s, %s, %s" % (v(d, 4), v(a_, 4), v(b_, 4), c_))
        def fragaddr(j):
            if j == 8:
                return vL16, 8192
            return (vT0, vT1, vT2, vT2)[j & 3], (j & 4) * 1024 + (1024 if (j & 3) == 3 else 0)
        def ringrd(j, slot):
            b, o = fragaddr(j)
            A.ds("ds_read_b128 %s, %s offset:%d" % (v(RING + 4 * slot, 4), v(b), L_MEM + o), ('ring', j))
        def mbload(dst, j):
            if j == 8:
                A("buffer_load_dwordx4 %s, %s, %s, %s offen sc1" % (v(dst, 4), v(vL16), s(sWS, 4), s(sX8)))
            else:
                A("buffer_load_dwordx4 %s, %s, %s, %s offen sc1" % (v(dst, 4), v(fragaddr(j)[0]), s(sWS, 4), s(sX4 if j & 4 else sX0)))
        def check(base, n):
            A("v_max3_u32 %s, %s, %s, %s" % (v(vTmp), v(base), v(base + 1), v(base + 2)))
            for i in range(3, n - 1, 2):
                A("v_max3_u32 %s, %s, %s, %s" % (v(vTmp), v(vTmp), v(base + i), v(base + i + 1)))
            A("v_max_u32 %s, %s, %s" % (v(vTmp), v(vTmp), v(base + n - 1)))
            A("v_cmp_eq_u32 vcc, -1, %s" % v(vTmp))
        def budget(lagain, lgiveup):
            A("s_sub_u32 %s, %s, 1" % (s(sBud), s(sBud)))
            A("s_cbranch_scc0 %s" % lagain)
            A("s_mov_b32 %s, 0" % s(sBud))
            A("s_branch %s" % lgiveup)
        PLA = [12, 16, 20, 24]
        RACC, SEL = 28, 32
        def poll1_issue(PL, so=sRd, which=range(4)):
            for i in which:
                A("buffer_load_dwordx4 %s, %s, %s, %s offen offset:%d sc1" % (v(PL[i], 4), v(vL16), s(sWS, 4), s(so), 1024 * i))
        def wait_many(keys):
            idx = [i for i, t in enumerate(A.lds) if t in keys]
            if idx:
                A.wait_ds(A.lds[idx[-1]])
        def endstep():
            for ch in QK_CHAIN:
                land(ch[0])
            A("s_mov_b32 %s, %s" % (s(sT), s(sX0)))
            A("s_mov_b32 %s, %s" % (s(sX0), s(sX1)))
            A("s_mov_b32 %s, %s" % (s(sX1), s(sX2)))
            A("s_mov_b32 %s, %s" % (s(sX2), s(sT)))
        PUB = "" if "pubplain" in opt else " sc1"
        def optval(name, dflt):
            for o in opt:
                if o.startswith(name + "="):
                    return int(o.split("=")[1])
            return dflt
        LWAIT, S1DEPTH = optval("lwait", 3), optval("s1d", 2)
        sX4, sX8 = sP1, sP2
        F8 = RING + 4
        PLB = [LND, LND + 4, LND + 8, LND + 12]
        def reduce_body(PL, n_after):
            if "prog" in opt:
                A("s_waitcnt vmcnt(%d)" % (n_after + 3))
                MF(RACC, SEL, PL[0], "0")
                A("s_waitcnt vmcnt(%d)" % (n_after + 2))
                MF(RACC, SEL, PL[1], v(RACC, 4))
                A("v_bitop3_b32 %s, %s, %s, %s bitop3:0x7e" % (v(vTmp), v(PL[0]), v(PL[1]), s(sPh)))
                A("s_waitcnt vmcnt(%d)" % (n_after + 1))
                MF(RACC, SEL, PL[2], v(RACC, 4))
                A("s_waitcnt vmcnt(%d)" % n_after)
                MF(RACC, SEL, PL[3], v(RACC, 4))
                A("v_bitop3_b32 %s, %s, %s, %s bitop3:0x7e" % (v(45), v(PL[2]), v(PL[3]), s(sPh)))
                A("v_bitop3_b32 %s, %s, %s, 1 bitop3:0xa8" % (v(vTmp), v(vTmp), v(45)))
                A("v_cmp_ne_u32 vcc, 0, %s" % v(vTmp))
                return
            A("s_waitcnt vmcnt(%d)" % n_after)
            MF(RACC, SEL, PL[0], "0")
            A("v_bitop3_b32 %s, %s, %s, %s bitop3:0x7e" % (v(vTmp), v(PL[0]), v(PL[1]), s(sPh)))
            A("v_bitop3_b32 %s, %s, %s, %s bitop3:0x7e" % (v(45), v(PL[2]), v(PL[3]), s(sPh)))
            MF(RACC, SEL, PL[1], v(RACC, 4))
            A("v_bitop3_b32 %s, %s, %s, 1 bitop3:0xa8" % (v(vTmp), v(vTmp), v(45)))
            A("v_cmp_ne_u32 vcc, 0, %s" % v(vTmp))
            MF(RACC, SEL, PL[2], v(RACC, 4))
            MF(RACC, SEL, PL[3], v(RACC, 4))
        def mksel():
            for u in range(4):
                A("v_cndmask_b32 %s, 0, %s, %s" % (v(SEL + u), v(vSelV), s(sSel + 2 * u, 2)))
        def s1load(base):
            mbload(base, 0)
            mbload(base + 4, 1)
        def rotate():
            A("s_mov_b32 %s, %s" % (s(sT), s(sX0)))
            A("s_mov_b32 %s, %s" % (s(sX0), s(sX1)))
            A("s_mov_b32 %s, %s" % (s(sX1), s(sX2)))
            A("s_mov_b32 %s, %s" % (s(sX2), s(sT)))
            A("s_add_u32 %s, %s, 4096" % (s(sX4), s(sX0)))
            A("s_add_u32 %s, %s, 8192" % (s(sX8), s(sX0)))
        lgo1 = A.new("go1")
        lkvr, lkvok = A.new("kvrf"), A.new("kvok")
        if "mega" in opt:
            A.label(lkvr)
            kv_refresh(lkvok)
        A.label(lnored)
        A("s_cmp_eq_u32 %s, -1" % s(sUnit))
        A("s_cbranch_scc1 %s_n" % lnored)
        A("s_waitcnt vmcnt(%d)" % LWAIT)
        A("s_branch %s" % lgo1)
        A.label(lnored + "_n")
        rotate()
        for i in range(0, 8, 2):
            A("v_mov_b64 %s, -1" % v(RING + i, 2))
        if NDMA:
            l3 = A.new("n3l")
            A("s_cmp_lg_u32 %s, 3" % s(sW))
            A("s_cbranch_scc1 %s" % l3)
            kv_all()
            A.label(l3)
        if "noflag" in opt:
            A("s_waitcnt vmcnt(0)")
        else:
            lf = A.new("flag")
            A("v_mov_b32 %s, %d" % (v(46), L_FLAG))
            A.label(lf)
            A("ds_read_b32 %s, %s" % (v(vTmp), v(46)))
            A("s_waitcnt lgkmcnt(0)")
            A("v_cmp_eq_u32 vcc, %s, %s" % (s(sStep), v(vTmp)))
            A("s_cbranch_vccnz %s" % lb4)
            budget(lf, lb4)
        A("s_branch %s" % lb4)
        X2 = LND + 16
        def f8load():
            A("buffer_load_dword %s, %s, %s, %s offen sc1" % (v(X2 + 4), v(X2 + 5), s(sWS, 4), s(sX8)))
        def s2load():
            mbload(X2, 4)
            f8load()
        def s2check():
            A("v_max3_u32 %s, %s, %s, %s" % (v(vTmp), v(X2), v(X2 + 1), v(X2 + 2)))
            A("v_max3_u32 %s, %s, %s, %s" % (v(vTmp), v(vTmp), v(X2 + 3), v(X2 + 4)))
            A("v_cmp_eq_u32 vcc, -1, %s" % v(vTmp))
        A.label(ls2r)
        if "tt" in opt:
            A("s_add_u32 s88, s88, 1")
        s2load()
        A("s_waitcnt vmcnt(2)")
        s2check()
        A("s_cbranch_vccz %s_d" % ls2r)
        budget(ls2r, ls2r + "_d")
        A.label(ls2r + "_d")
        A("s_waitcnt vmcnt(0)")
        A("s_branch %s" % ls2ok)
        A.label(ls1)
        A("s_add_u32 %s, %s, 4096" % (s(sX4), s(sX0)))
        A("s_add_u32 %s, %s, 8192" % (s(sX8), s(sX0)))
        s1load(RING)
        A("s_waitcnt vmcnt(0)")
        A("s_branch %s" % ls1w)
        A(".p2align 6")
        A.label(ls1r)
        A("s_sub_u32 %s, %s, 1" % (s(sBud), s(sBud)))
        A("s_cbranch_scc1 %s_give" % ls1r)
        if "mask" in opt:
            A("s_mov_b64 exec, vcc")
        s1load(RING)
        if "mask" in opt:
            A("s_mov_b64 exec, -1")
        A("s_waitcnt vmcnt(%d)" % S1DEPTH)
        A.label(ls1w)
        check(RING, 8)
        A("s_cbranch_vccnz %s" % ls1r)
        A.label(lentry)
        A.lds, A.vm = [], []
        if "tt" in opt:
            lt = A.new("tt")
            A("s_cmp_lg_u32 %s, 3" % s(sStep))
            A("s_cbranch_scc1 %s" % lt)
            A("s_memtime s[92:93]")
            A.label(lt)
        if stamps and "rt" in opt:
            lq = A.new("q")
            A("s_memrealtime %s" % s(sStamp + 18, 2))
            A("s_cmp_lg_u32 %s, 41" % s(sStep))
            A("s_cbranch_scc1 %s" % lq)
            A("s_waitcnt lgkmcnt(0)")
            for i in range(10):
                A("v_writelane_b32 %s, %s, %d" % (v(vTmp), s(sStamp + 2 * i), i))
            A("s_lshl_b32 %s, %s, 2" % (s(sT), s(sCU)))
            A("s_add_u32 %s, %s, %s" % (s(sT), s(sT), s(sW)))
            A("s_lshl_b32 %s, %s, 11" % (s(sT), s(sT)))
            A("s_add_u32 %s, %s, %d" % (s(sT), s(sT), WS_DBG))
            A("buffer_store_dword %s, %s, %s, %s offen" % (v(vTmp), v(vL16), s(sWS, 4), s(sT)))
            A.label(lq)
        stamp()
        KXR = {(0, 0): LND, (0, 1): LND + 4, (0, 2): LND + 8, (0, 3): LND + 12, (1, 0): LND + 16, (1, 1): LND + 20, (1, 2): LND, (1, 3): LND + 4}
        def kxrd(tl, ks):
            A.ds("ds_read_b128 %s, %s offset:%d" % (v(KXR[(tl, ks)], 4), v(vL16), L_KX + (4 * tl + ks) * 1024), ('kx', tl, ks))
        AREG = {0: RING, 1: RING + 4, 2: RING + 8, 3: RING, 4: X2, 5: RING + 4, 6: RING + 8, 7: RING, 8: RING + 4}
        def Q(j, t):
            key = ('qk', j, t)
            SM(QK + 4 * t, AREG[j], R(WREGS[key], 8) if key in WREGS else v(LND + 8 * SLOT[key], 8))
        def VS(j, t, a_=None):
            key = ('v', j, t)
            SM(VACC + 4 * t, AREG[j] if a_ is None else a_, R(WREGS[key], 8) if key in WREGS else v(LND + 8 * SLOT[key], 8))
        L = lambda j, t, hh: land(('qk', j, t), hh)
        kd = kv_dma()
        mega = "mega" in opt
        ND = 0 if NDMA else 2
        def dma(i, tag):
            if not NDMA:
                A.vmem(kd[i], tag) if tag else A(kd[i])
        A.ds("ds_write_b128 %s, %s offset:%d" % (v(vT0), v(RING, 4), L_MEM), 'w1')
        Q(0, 0); mbload(X2, 4)
        Q(0, 1); A("v_lshrrev_b32 %s, 2, %s" % (v(X2 + 5), v(vT0)))
        Q(0, 2); f8load()
        Q(0, 3); L(2, 0, 0)
        VS(0, 0); L(2, 0, 1)
        A.wait_ds('w1')
        VS(0, 1)
        A("s_barrier")
        ringrd(2, 2)
        stamp()
        Q(1, 0); L(2, 1, 0)
        dma(0, None)
        Q(1, 1); L(2, 1, 1)
        Q(1, 2); dma(1, 'kdma')
        Q(1, 3); A("s_add_u32 %s, %s, 1" % (s(sStep), s(sStep)))
        VS(1, 0); dma(2, 'kdma')
        VS(1, 1); A("s_waitcnt vmcnt(%d)" % (2 + ND))
        ringrd(3, 0)
        A.wait_ds(('qk', 2, 1))
        Q(2, 0); L(4, 0, 0)
        Q(2, 1); L(4, 0, 1)
        Q(2, 2); L(4, 1, 0)
        Q(2, 3); L(4, 1, 1)
        VS(2, 0); dma(3, None)
        VS(2, 1)
        A.wait_ds(('ring', 3))
        Q(3, 0); A("s_waitcnt vmcnt(%d)" % ND)
        s2check()
        Q(3, 1)
        Q(3, 2)
        A("s_cbranch_vccnz %s" % ls2r)
        A.label(ls2ok)
        A.ds("ds_write_b128 %s, %s offset:%d" % (v(vT0), v(X2, 4), L_MEM + 4096), 'w2')
        Q(3, 3)
        A.ds("ds_write_b32 %s, %s offset:%d" % (v(X2 + 5), v(X2 + 4), L_MEM + 8192), 'w2')
        VS(3, 0); dma(4, 'vdma')
        VS(3, 1); dma(5, 'vdma')
        A.wait_ds(('qk', 4, 1))
        Q(4, 0); L(6, 0, 0)
        Q(4, 1)
        A("s_waitcnt vmcnt(%d) lgkmcnt(1)" % ND)
        A.vm, A.lds = A.vm[len(A.vm) - ND:], A.lds[-1:]
        A("s_barrier")
        ringrd(5, 1)
        Q(4, 2); ringrd(6, 2)
        Q(4, 3); ringrd(7, 0)
        VS(4, 0); L(6, 0, 1)
        VS(4, 1); L(6, 1, 0)
        A.wait_ds(('ring', 5))
        Q(5, 0); land(L2KEY, 0)
        Q(5, 1); land(L2KEY, 1)
        if mega:
            A("s_bitcmp1_b64 %s, %s" % (s(sRdy, 2), s(sStep)))
        Q(5, 2); L(6, 1, 1)
        A("s_mov_b32 m0, %d" % (L_SCR + 512))
        Q(5, 3); ringrd(8, 1)
        if mega:
            A("s_cbranch_scc0 %s" % lkvr)
            A.label(lkvok)
        A.wait_ds(('qk', 6, 0))
        Q(6, 0); L(7, 3, 0)
        A.wait_ds(('qk', 6, 1))
        Q(6, 1); L(7, 3, 1)
        A("v_lshlrev_b32 %s, 3, %s" % (v(vTmp), v(vL16)))
        Q(6, 2)
        if "notouch" not in opt:
            A.vmem("buffer_load_dword %s, %s, %s offen sc1 lds" % (v(vTmp), s(sWS, 4), s(sKVt)), 'touch')
        Q(6, 3); kxrd(0, 2)
        if mega:
            A("v_cndmask_b32 %s, 2.0, 0, %s" % (v(vTmp), s(sOne, 2)))
        Q(7, 0); kxrd(0, 3)
        Q(7, 1)
        if mega:
            A.vmem("buffer_store_dword %s, %s, %s, %s offen sc1" % (v(vIdx), v(vTmp), s(sWS, 4), s(sFlg)), 'flag')
        Q(7, 2); A("s_add_u32 %s, %s, %d" % (s(sKVt), s(sKVt), KVINC))
        A.wait_ds(('qk', 7, 3))
        Q(7, 3); kxrd(0, 0)
        Q(8, 0); kxrd(0, 1)
        Q(8, 1); A("s_mov_b32 %s, %s" % (s(sFlg), s(sFlgN)))
        Q(8, 2); A("v_lshrrev_b32 %s, 2, %s" % (v(vTmp), v(vL16)))
        Q(8, 3); A("s_add_u32 %s, %s, 4096" % (s(sFlgN), s(sFlgN)))
        stamp()
        VS(7, 0); A("s_cmp_eq_u32 %s, %d" % (s(sStep), nsteps))
        VS(7, 1); ringrd(5, 0)
        def fin(base):
            A("v_add_f32 %s, %s, %s" % (v(base), v(base), v(base + 1)))
            A("v_add_f32 %s, %s, %s" % (v(base + 2), v(base + 2), v(base + 3)))
            A("v_add_f32 %s, %s, %s" % (v(base + 4), v(base + 4), v(base + 5)))
            A("v_add_f32 %s, %s, %s" % (v(base + 6), v(base + 6), v(base + 7)))
            A("v_cvt_pk_bf16_f32 %s, %s, %s" % (v(base), v(base), v(base + 4)))
            A("v_cvt_pk_bf16_f32 %s, %s, %s" % (v(base + 1), v(base + 2), v(base + 6)))
        def finw(base):
            o = 8 if base == QK else 0
            A.ds("ds_write2_b32 %s, %s, %s offset0:%d offset1:%d" % (v(vFw), v(base), v(base + 1), o, o + 4), 'fw')
        def pub(reg, off):
            A.vmem("buffer_store_dword %s, %s, %s, %s offen offset:%d%s" % (v(reg), v(vTmp), s(sWS, 4), s(sKM), off, PUB), 'pub')
        fin(QK)
        fin(QK + 8)
        finw(QK)
        finw(QK + 8)
        A.wait_vm(L2KEY)
        VS(8, 1); pub(QK + 8, 0)
        VS(8, 0); kxrd(1, 0)
        VS(6, 1); kxrd(1, 1)
        VS(6, 0); pub(QK + 9, 256)
        A.wait_ds('fw')
        A("s_barrier")
        for ks in range(4):
            A.ds("ds_read_b128 %s, %s offset:%d" % (v(QK + 4 * ks, 4), v(vL16), L_F + ks * FSTR), ('f', ks))
        stamp()
        VS(5, 0, RING)
        VS(5, 1, RING)
        T1, T2, T0 = RING, RING + 4, RING + 8
        ONES, LACC, OACC = QK + 8, QK + 12, LND + 16
        def S(i, ks):
            d, a_ = ((T1, KXR[(0, ks)]), (T2, KXR[(1, ks)]), (T0, QK + 4 * ks))[i]
            MF(d, a_, QK + 4 * ks, "0" if ks == 0 else v(d, 4))
        def vfin(t, part):
            b = VACC + 4 * t
            if part == 0:
                A("v_add_f32 %s, %s, %s" % (v(b), v(b), v(b + 1)))
                A("v_add_f32 %s, %s, %s" % (v(b + 2), v(b + 2), v(b + 3)))
            else:
                A("v_cvt_pk_bf16_f32 %s, %s, %s" % (v(b), v(b), v(b + 2)))
                A("v_mov_b32 %s, 0" % v(b + 1))
        def vxrd(t):
            A.ds("ds_read_b128 %s, %s offset:%d" % (v(QK + 4 * t, 4), v(vWL), 32768 + t * 1024), 'vx')
        m1, m2 = T0 + 2, T0 + 3
        A.wait_ds(('f', 0))
        S(0, 0); A.wait_ds(('f', 1))
        S(0, 1); kxrd(1, 2)
        kxrd(1, 3)
        A.wait_ds(('f', 3))
        S(0, 2)
        S(0, 3); land(('o', 1), 0)
        land(('o', 1), 1)
        S(2, 0); vfin(0, 0)
        S(2, 1); vfin(0, 1)
        S(2, 2); vfin(1, 0)
        S(2, 3); pub(VACC, 512)
        vfin(1, 1)
        S(1, 0); vxrd(0)
        A("v_max3_f32 %s, %s, %s, %s" % (v(VACC + 2), v(T1), v(T1 + 1), v(T1 + 2)))
        S(1, 1); vxrd(1)
        A.wait_ds(('kx', 1, 3))
        S(1, 2); pub(VACC + 4, 768)
        A("v_max3_f32 %s, %s, %s, %s" % (v(m1), v(VACC + 2), v(T1 + 3), v(T0)))
        S(1, 3); land(('o', 0), 0)
        land(('o', 0), 1)
        A("s_cbranch_scc1 %s" % lexit)
        A("s_add_u32 %s, %s, %d" % (s(sKM), s(sKM), 32 * 4096))
        stamp()
        sv = [T1, T1 + 1, T1 + 2, T1 + 3, T2, T2 + 1, T2 + 2, T2 + 3, T0, T0 + 1]
        A("v_max_f32 %s, %s, %s" % (v(m1), v(m1), v(T0 + 1)))
        A("s_nop 0")
        A("v_mov_b32 %s, 0x3f803f80" % v(ONES))
        A("v_mov_b32 %s, 0x3f803f80" % v(ONES + 1))
        A("v_max3_f32 %s, %s, %s, %s" % (v(m1), v(m1), v(sv[4]), v(sv[5])))
        A("v_max3_f32 %s, %s, %s, %s" % (v(m2), v(m1), v(sv[6]), v(sv[7])))
        A("v_max3_f32 %s, %s, %s, %s" % (v(m1), v(m1), v(sv[6]), v(sv[7])))
        A("v_mov_b32 %s, 0x3f803f80" % v(ONES + 2))
        A("v_mov_b32 %s, 0x3f803f80" % v(ONES + 3))
        A("v_permlane32_swap_b32 %s, %s" % (v(m1), v(m2)))
        A("v_max_f32 %s, %s, %s" % (v(m1), v(m1), v(m2)))
        A("v_mov_b32 %s, %s" % (v(m2), v(m1)))
        A("s_nop 1")
        A("v_permlane16_swap_b32 %s, %s" % (v(m1), v(m2)))
        A("v_max_f32 %s, %s, %s" % (v(m1), v(m1), v(m2)))
        A("v_mul_f32 %s, %s, %s" % (v(m1), s(sC), v(m1)))
        for x in sv:
            A("v_fma_f32 %s, %s, %s, -%s" % (v(x), v(x), s(sC), v(m1)))
        P, Pm = T1, T0
        for x in sv[:8]:
            A("v_exp_f32 %s, %s" % (v(x), v(x)))
        A("v_cvt_pk_bf16_f32 %s, %s, %s" % (v(P), v(T1), v(T1 + 1)))
        A("v_cvt_pk_bf16_f32 %s, %s, %s" % (v(P + 1), v(T1 + 2), v(T1 + 3)))
        A("v_cvt_pk_bf16_f32 %s, %s, %s" % (v(P + 2), v(T2), v(T2 + 1)))
        A("v_cvt_pk_bf16_f32 %s, %s, %s" % (v(P + 3), v(T2 + 2), v(T2 + 3)))
        A("v_exp_f32 %s, %s" % (v(T0), v(T0)))
        A.wait_ds('vx')
        A("v_exp_f32 %s, %s" % (v(T0 + 1), v(T0 + 1)))
        MF(LACC, ONES, P, "0")
        A("v_cvt_pk_bf16_f32 %s, %s, %s" % (v(Pm), v(T0), v(T0 + 1)))
        A("v_mov_b32 %s, 0" % v(Pm + 1))
        MF(OACC, QK, P, "0")
        MF(OACC + 4, QK + 4, P, "0")
        A("v_mfma_f32_16x16x16_bf16 %s, %s, %s, %s" % (v(LACC, 4), v(ONES, 2), v(Pm, 2), v(LACC, 4)))
        for t in range(2):
            A("v_mfma_f32_16x16x16_bf16 %s, %s, %s, %s" % (v(OACC + 4 * t, 4), v(VACC + 4 * t, 2), v(Pm, 2), v(OACC + 4 * t, 4)))
        zero(12, 24)
        A("v_rcp_f32 %s, %s" % (v(vTmp), v(LACC)))
        A("v_mov_b64 %s, 0" % v(24, 2))
        for i in range(8):
            A("v_mul_f32 %s, %s, %s" % (v(OACC + i), v(OACC + i), v(vTmp)))
        OP = T2
        for i in range(4):
            A("v_cvt_pk_bf16_f32 %s, %s, %s" % (v(OP + i), v(OACC + 2 * i), v(OACC + 2 * i + 1)))
        A.ds("ds_write_b128 %s, %s" % (v(vOw), v(OP, 4)), 'ow')
        A("v_mov_b64 %s, -1" % v(36, 2))
        A("v_cndmask_b32 %s, 0, 1, %s" % (v(vTmp), s(sTagM, 2)))
        A.vmem("buffer_store_dwordx2 %s, %s, %s, %s offen%s" % (v(36, 2), v(vRst), s(sWS, 4), s(sX2), SC), 'rst')
        zero(26, 36)
        A.wait_ds('ow')
        A("s_barrier")
        OF = LND + 16
        for c2 in range(2):
            A.ds("ds_read_b128 %s, %s offset:%d" % (v(OF + 4 * c2, 4), v(vL16), L_O + c2 * 1024), ('of', c2))
        stamp()
        zero(36, 48)
        def wacc(tile):
            return 12 + 4 * tile
        def W(p, c2):
            key = ('o', 2 * p + c2)
            wait_many([('of', c2), key])
            SM(wacc(p), OF + 4 * c2, R(WREGS[key], 8) if key in WREGS else v(LND + 8 * SLOT[key], 8))
        def e1(tile):
            b = wacc(tile)
            A("v_add_f32 %s, %s, %s" % (v(b + 1), v(b), v(b + 1)))
            A("v_add_f32 %s, %s, %s" % (v(b + 3), v(b + 2), v(b + 3)))
        def e2(tile):
            b = wacc(tile)
            A("v_cvt_pk_bf16_f32 %s, %s, %s" % (v(b), v(b + 1), v(b + 3)))
            A("v_bfi_b32 %s, %s, %s, %s" % (v(b), v(vTmp), s(sPh), v(b)))
        def e3(tile):
            A("buffer_store_dword %s, %s, %s, %s offen%s" % (v(wacc(tile)), v(vPst), s(sWS, 4), s(sPt + tile), SC))
        LO = lambda n, hh: land(('o', n), hh)
        W(0, 0); LO(8, 0)
        W(0, 1); LO(8, 1)
        W(1, 0); LO(9, 0)
        W(1, 1); LO(9, 1)
        W(2, 0); A("s_add_u32 %s, %s, %d" % (s(sKV), s(sKV), KVINC))
        A("s_add_u32 %s, %s, %d" % (s(sKVv), s(sKVv), KVINC))
        e1(0)
        W(2, 1); e2(0)
        for p in range(3, 9):
            W(p, 0); e3(p - 3)
            if p == 5:
                LO(16, 0)
            e1(p - 2)
            W(p, 1)
            if p == 4:
                LO(16, 1)
            if p == 5:
                LO(17, 0)
            if p == 6:
                LO(17, 1)
            if p == 7:
                A("s_cmp_ge_u32 %s, 32" % s(sUnit))
            e2(p - 2)
        EP = optval("ep", 0)
        def wtail(early):
            if early and EP == 3:
                poll1_issue(PLA)
            e3(6)
            if early and EP == 2:
                poll1_issue(PLA)
            e1(7); e2(7); e3(7)
            if early and EP == 1:
                poll1_issue(PLA)
            e1(8); e2(8); e3(8)
            if stamps:
                A("s_memrealtime %s" % s(sStamp + 16, 2))
        if EP:
            lw = A.new("wt")
            A("s_cbranch_scc0 %s" % lw)
            wtail(False)
            A("s_branch %s" % lnored)
            A.label(lw)
            wtail(True)
        else:
            wtail(False)
            A("s_cbranch_scc1 %s" % lnored)
        def prep():
            mksel()
            rotate()
            for i in range(0, 8, 2):
                A("v_mov_b64 %s, -1" % v(RING + i, 2))
            A("v_mov_b32 %s, %d" % (v(46), L_FLAG))
            A("v_mov_b32 %s, %s" % (v(47), s(sStep)))
        l1b = A.new("p1b")
        if EP:
            if "eb2" in opt:
                prep()
                poll1_issue(PLB)
            else:
                poll1_issue(PLB)
                prep()
            reduce_body(PLA, 4 + EP)
            A("s_cbranch_vccz %s" % lok1)
            A("s_branch %s" % l1b)
        A.label(lgo1)
        poll1_issue(PLA)
        stamp()
        prep()
        poll1_issue(PLB)
        A.label(l1a)
        reduce_body(PLA, 4)
        A("s_cbranch_vccz %s" % lok1)
        A.label(l1b)
        if "tt" in opt:
            A("s_add_u32 s87, s87, 1")
        poll1_issue(PLA)
        reduce_body(PLB, 4)
        A("s_cbranch_vccz %s" % lok1)
        if "tt" in opt:
            A("s_add_u32 s87, s87, 1")
        poll1_issue(PLB)
        A("s_sub_u32 %s, %s, 1" % (s(sBud), s(sBud)))
        A("s_cbranch_scc0 %s" % l1a)
        A("s_mov_b32 %s, 0" % s(sBud))
        A.label(lok1)
        def finish(nop):
            A("s_nop %d" % nop)
            for i in range(4):
                A("v_add_f32_dpp %s, %s, %s row_ror:8 row_mask:0xf bank_mask:0xf" % (v(RACC + i), v(RACC + i), v(RACC + i)))
            A("v_cvt_pk_bf16_f32 %s, %s, %s" % (v(44), v(RACC), v(RACC + 1)))
            A("v_cvt_pk_bf16_f32 %s, %s, %s" % (v(45), v(RACC + 2), v(RACC + 3)))
            A("buffer_store_dwordx2 %s, %s, %s, %s offen%s" % (v(44, 2), v(vRst), s(sWS, 4), s(sX0), SC))
        if "lsep" in opt:
            le = A.new("efin")
            A("s_cmp_lt_u32 %s, 32" % s(sUnit))
            A("s_cbranch_scc1 %s" % le)
            s1load(RING)
            finish(0)
            A("s_waitcnt vmcnt(3)")
            for ch in QK_CHAIN:
                land(ch[0])
            zero(VACC, RING)
            A("s_xor_b32 %s, %s, 1" % (s(sPh), s(sPh)))
            if "l2nd" in opt:
                s1load(RING)
                A("s_waitcnt vmcnt(3) lgkmcnt(0)")
            else:
                A("s_waitcnt vmcnt(1) lgkmcnt(0)")
            A("s_branch %s" % ls1w)
            A.label(le)
            A("ds_write_b32 %s, %s" % (v(46), v(47)))
            finish(0)
        else:
            A("ds_write_b32 %s, %s" % (v(46), v(47)))
            finish(2)
        stamp()
        A.label(lb4)
        if "late" in opt:
            A("s_waitcnt vmcnt(1)")
        else:
            s1load(RING)
            A("s_waitcnt vmcnt(%d)" % (5 if "early1" in opt else 3))
        for ch in QK_CHAIN:
            land(ch[0])
        zero(VACC, RING)
        A("s_xor_b32 %s, %s, 1" % (s(sPh), s(sPh)))
        if "late" in opt:
            s1load(RING)
        if "first0" in opt:
            A("s_waitcnt vmcnt(0)")
        A("s_waitcnt lgkmcnt(0)")
        if stamps and "rt" not in opt:
            ldump = A.new("dump")
            A("s_cmp_eq_u32 %s, 41" % s(sStep))
            A("s_cbranch_scc1 %s" % ldump)
            A("s_cmp_eq_u32 %s, 42" % s(sStep))
            A("s_cbranch_scc0 %s" % ls1w)
            A.label(ldump)
            for i in range(10):
                A("v_writelane_b32 %s, %s, %d" % (v(vTmp), s(sStamp + 2 * i), i))
            A("v_writelane_b32 %s, %s, %d" % (v(vTmp), s(sBud), 15))
            A("s_lshl_b32 %s, %s, 2" % (s(sT), s(sCU)))
            A("s_add_u32 %s, %s, %s" % (s(sT), s(sT), s(sW)))
            A("s_lshl_b32 %s, %s, 1" % (s(sT), s(sT)))
            A("s_add_u32 %s, %s, %s" % (s(sT), s(sT), s(sStep)))
            A("s_sub_u32 %s, %s, 41" % (s(sT), s(sT)))
            A("s_lshl_b32 %s, %s, 10" % (s(sT), s(sT)))
            A("s_add_u32 %s, %s, %d" % (s(sT), s(sT), WS_DBG + (3 << 18 if "mega" in opt else 0)))
            A("buffer_store_dword %s, %s, %s, %s offen" % (v(vTmp), v(vL16), s(sWS, 4), s(sT)))
            A("s_waitcnt vmcnt(0)")
        A("s_branch %s" % ls1w)
        A.label(ls1r + "_give")
        A("s_mov_b32 %s, 0" % s(sBud))
        A("s_branch %s" % lentry)
        A.label(lexit)
        if "mega" in opt:
            A("s_waitcnt vmcnt(0)")
            A("s_barrier")
            A("v_cndmask_b32 %s, 2.0, 0, %s" % (v(vTmp), s(sOne, 2)))
            A("buffer_store_dword %s, %s, %s, %s offen sc1" % (v(vIdx), v(vTmp), s(sWS, 4), s(sFlg)))
        if "tt" in opt:
            A("s_memtime s[94:95]")
            A("s_memrealtime s[70:71]")
            A("s_waitcnt lgkmcnt(0)")
            A("s_sub_u32 s94, s94, s92")
            A("s_sub_u32 s92, s92, s90")
            A("v_writelane_b32 %s, s92, 0" % v(vTmp))
            A("v_writelane_b32 %s, s94, 1" % v(vTmp))
            A("v_writelane_b32 %s, %s, 2" % (v(vTmp), s(sBud)))
            for i in range(3):
                A("v_writelane_b32 %s, s%d, %d" % (v(vTmp), 87 + i, 3 + i))
            for i in range(4):
                A("v_writelane_b32 %s, s%d, %d" % (v(vTmp), 64 + 2 * i, 6 + i))
            A("s_lshl_b32 %s, %s, 2" % (s(sT), s(sCU)))
            A("s_add_u32 %s, %s, %s" % (s(sT), s(sT), s(sW)))
            A("s_lshl_b32 %s, %s, 10" % (s(sT), s(sT)))
            A("s_add_u32 %s, %s, %d" % (s(sT), s(sT), WS_DBG + (1 << 19)))
            A("buffer_store_dword %s, %s, %s, %s offen" % (v(vTmp), v(vL16), s(sWS, 4), s(sT)))
        A("s_waitcnt vmcnt(0)")

    loop(" sc1" if "forcesc1" in opt else "")
    A("s_endpgm")
    A.label(lslow)
    nst[0] = 0
    loop(" sc1")
```

```python
from asmlib import *
from layout import *
import struct, math

def f32bits(x):
    return struct.unpack("<I", struct.pack("<f", x))[0]

sWS, sW1, sW2, sW3, sWO, sXS, sDBG = 4, 8, 12, 16, 20, 24, 28
sWid, sW, sSl, sRep, sSeg, sBud = 32, 33, 34, 35, 36, 37
sA0 = 38
sT = 60
sMask = 64
sSel = 80
vL16, vLane, vG, vC, vX, vTmp, vFl = 0, 1, 2, 3, 4, 5, 6
NSLOT = 9
L_SCR = 147456

TS = {'on': False, 'reg': 15}
sTsI = 98
def ts(A, idx=None):
    if not TS['on'] or (TS.get('fine') and idx is None):
        return
    A("s_memrealtime s[96:97]")
    A("s_waitcnt lgkmcnt(0)")
    A.lds = []
    if idx is None:
        A("s_mov_b32 m0, %s" % s(sTsI))
        A("s_add_u32 %s, %s, 1" % (s(sTsI), s(sTsI)))
        A("v_writelane_b32 %s, s96, m0" % v(TS['reg']))
    else:
        A("v_writelane_b32 %s, s96, %d" % (v(TS['reg']), idx))
def fs(A, idx):
    if TS.get('fine'):
        A("s_memtime s[96:97]")
        A("s_waitcnt lgkmcnt(0)")
        A.lds = []
        A("v_writelane_b32 %s, s96, %d" % (v(TS['reg']), idx))
def ts_dump(A, part):
    if not TS['on']:
        return
    A("s_lshl_b32 s96, %s, 2" % s(sWid))
    A("s_add_u32 s96, s96, %s" % s(sW))
    A("s_lshl_b32 s96, s96, 9")
    A("s_add_u32 s96, s96, %d" % (WS_DBG + part * 256))
    A("v_lshlrev_b32 %s, 2, %s" % (v(vTmp), v(vLane)))
    A("buffer_store_dword %s, %s, %s, s96 offen" % (v(TS['reg']), v(vTmp), s(sWS, 4)))
    A("s_waitcnt vmcnt(0)")
    A("s_mov_b32 %s, 0" % s(sTsI))

def build_srd(A, d, karg, nbytes):
    A("s_load_dwordx2 %s, s[0:1], %d" % (s(d, 2), karg))
    A("s_waitcnt lgkmcnt(0)")
    A("s_and_b32 %s, %s, 0xffff" % (s(d + 1), s(d + 1)))
    A("s_mov_b32 %s, %d" % (s(d + 2), nbytes))
    A("s_mov_b32 %s, 0x20000" % s(d + 3))

def wait_flags(A, voff, soff, srd=sWS, cmp_ge=None, imm=0):
    lp, ok = A.new("wf"), A.new("wfok")
    A.label(lp)
    if voff is None:
        A("buffer_load_dword %s, off, %s, %s offset:%d sc1" % (v(vTmp), s(srd, 4), soff, imm))
    else:
        A("buffer_load_dword %s, %s, %s, %s offen offset:%d sc1" % (v(vTmp), v(voff), s(srd, 4), soff, imm))
    A("s_waitcnt vmcnt(0)")
    if cmp_ge is None:
        A("v_cmp_eq_u32 vcc, 0, %s" % v(vTmp))
    else:
        A("v_cmp_gt_u32 vcc, %d, %s" % (cmp_ge, v(vTmp)))
    A("s_cbranch_vccz %s" % ok)
    A("s_sleep 2")
    A("s_sub_u32 %s, %s, 1" % (s(sBud), s(sBud)))
    A("s_cbranch_scc0 %s" % lp)
    A("s_mov_b32 %s, 0" % s(sBud))
    A.label(ok)
    A.vm = []

def wait_ready(A, soff, n):
    if TS.get('cnt') and n != 128:
        wait_flags(A, None, soff, cmp_ge=n)
    else:
        wait_flags(A, None, soff, imm=128)

def set_flag(A, soff, wave0_only=True):
    sk = A.new("sf")
    if wave0_only:
        A("s_cmp_lg_u32 %s, 0" % s(sW))
        A("s_cbranch_scc1 %s" % sk)
    A("s_mov_b64 exec, 1")
    A("v_mov_b32 %s, 1" % v(vTmp))
    A("buffer_store_dword %s, off, %s, %s sc1" % (v(vTmp), s(sWS, 4), soff))
    A("s_mov_b64 exec, -1")
    A.label(sk)

def arrive(A, soff, n, wave0_only=True):
    sk = A.new("ar")
    if wave0_only:
        A("s_cmp_lg_u32 %s, 0" % s(sW))
        A("s_cbranch_scc1 %s" % sk)
    A("s_mov_b64 exec, 1")
    A("v_mov_b32 %s, 1" % v(vTmp))
    if TS.get('cnt') and n != 128:
        A("buffer_atomic_add %s, off, %s, %s" % (v(vTmp), s(sWS, 4), soff))
        A("s_mov_b64 exec, -1")
        A.label(sk)
        return
    A("buffer_atomic_add %s, off, %s, %s sc0" % (v(vTmp), s(sWS, 4), soff))
    A("s_waitcnt vmcnt(0)")
    A("v_cmpx_eq_u32 vcc, %d, %s" % (n - 1, v(vTmp)))
    A("s_cbranch_execz %s_x" % sk)
    A("buffer_store_dword %s, off, %s, %s offset:128 sc1" % (v(vTmp), s(sWS, 4), soff))
    A.label(sk + "_x")
    A("s_mov_b64 exec, -1")
    A.label(sk)

def MF(A, d, a_, b_, c_):
    A("v_mfma_f32_16x16x32_bf16 %s, %s, %s, %s" % (d, a_, b_, c_))

sLW = 99
def stage_issue(A, chunks, c):
    srd, voff, so, _ = chunks[c]
    for j in range(4):
        A("s_add_u32 m0, %s, %d" % (s(sLW), (c % NSLOT) * 16384 + j * 1024))
        A("s_mov_b32 %s, %d" % (s(sT + 2), so[j]))
        A.vmem("buffer_load_dwordx4 %s, %s, %s offen lds" % (v(voff), s(srd, 4), s(sT + 2)), ('c', c))
def stage_start(A, chunks):
    A("s_lshl_b32 %s, %s, 12" % (s(sLW), s(sW)))
    for c in range(min(NSLOT - 1, len(chunks))):
        stage_issue(A, chunks, c)
def stage(A, chunks, started=False):
    if not started:
        stage_start(A, chunks)
    n = len(chunks)
    for c in range(n):
        A.wait_vm(('c', c))
        A("s_barrier")
        if c + NSLOT - 1 < n:
            stage_issue(A, chunks, c + NSLOT - 1)
        chunks[c][3]((c % NSLOT) * 16384)
        A.wait_ds()
    A("s_barrier")

def wide_off(A, dst, t1, rowstride, s_extra):
    A("v_lshlrev_b32 %s, 2, %s" % (v(t1), v(vG)))
    A("v_sub_u32 %s, %s, %s" % (v(t1), v(vLane), v(t1)))
    A("v_and_b32 %s, 15, %s" % (v(t1), v(t1)))
    A("v_lshlrev_b32 %s, 4, %s" % (v(t1), v(t1)))
    A("v_mul_u32_u24 %s, %d, %s" % (v(dst), rowstride, v(vG)))
    A("v_add_u32 %s, %s, %s" % (v(dst), v(dst), v(t1)))
    A("s_mul_i32 %s, %s, %d" % (s(sT + 3), s(sW), 16 * rowstride))
    A("s_add_u32 %s, %s, %s" % (s(sT + 3), s(sT + 3), s_extra))
    A("v_add_u32 %s, %s, %s" % (v(dst), s(sT + 3), v(dst)))

def wide_tr(A, dst, t1, s_col, ccmul):
    A("v_mul_u32_u24 %s, %d, %s" % (v(t1), ccmul, v(vX)))
    A("v_lshl_add_u32 %s, %s, 2, %s" % (v(t1), v(vC), v(t1)))
    A("v_add_u32 %s, %s, %s" % (v(t1), s_col, v(t1)))
    A("v_and_b32 %s, 15, %s" % (v(t1), v(t1)))
    A("v_lshlrev_b32 %s, 4, %s" % (v(t1), v(t1)))
    A("v_lshl_add_u32 %s, %s, 3, %s" % (v(dst), v(vG), v(vC)))
    A("v_lshl_add_u32 %s, %s, 8, %s" % (v(dst), v(dst), v(t1)))

def tall_off(A, dst, t1, s_extra):
    A("v_lshrrev_b32 %s, 3, %s" % (v(t1), v(vLane)))
    A("v_mul_u32_u24 %s, 1152, %s" % (v(dst), v(t1)))
    A("v_and_b32 %s, 7, %s" % (v(t1), v(vLane)))
    A("v_lshl_add_u32 %s, %s, 4, %s" % (v(dst), v(t1), v(dst)))
    A("s_mul_i32 %s, %s, %d" % (s(sT + 3), s(sW), 32 * 1152))
    A("s_add_u32 %s, %s, %s" % (s(sT + 3), s(sT + 3), s_extra))
    A("v_add_u32 %s, %s, %s" % (v(dst), s(sT + 3), v(dst)))

def tall_tr(A, dst, kbshift):
    A("v_lshl_add_u32 %s, %s, %d, %s" % (v(dst), v(vG), kbshift, v(vC)))
    A("v_lshlrev_b32 %s, 7, %s" % (v(dst), v(dst)))
    A("v_lshl_add_u32 %s, %s, 3, %s" % (v(dst), v(vX), v(dst)))
    A("s_lshl_b32 %s, %s, 5" % (s(sT + 3), s(sW)))
    A("v_add_u32 %s, %s, %s" % (v(dst), s(sT + 3), v(dst)))

def tr2(A, reg, addr, imm0, imm1):
    A.ds("ds_read_b64_tr_b16 %s, %s offset:%d" % (R(reg, 2), v(addr), imm0))
    A.ds("ds_read_b64_tr_b16 %s, %s offset:%d" % (R(reg + 2, 2), v(addr), imm1))

def x_dma(A, vXo, sSrc, sM0):
    for i in range(9):
        A("s_add_u32 m0, %s, %d" % (s(sM0), 896 * i))
        A("s_nop 0")
        A.vmem("buffer_load_dwordx4 %s, %s, %s offen offset:%d sc1 lds" % (v(vXo), s(sWS, 4), s(sSrc), 128 * i), 'x')

def gemm576(A, vXa, LAND, wreg, acc, ntile, swap, mid=None):
    def rd(ks):
        for tt in range(2):
            A.ds("ds_read_b128 %s, %s offset:%d" % (v(LAND + 8 * (ks & 1) + 4 * tt, 4), v(vXa + (ks & 1)), 18432 * tt + (ks >> 1) * 1024), ('x', ks))
    rd(0)
    for ks in range(18):
        A.wait_ds(('x', ks))
        n = 0
        for t in range(ntile):
            for tt in range(2):
                x = v(LAND + 8 * (ks & 1) + 4 * tt, 4)
                w = R(wreg(t, ks), 4)
                d = v(acc(t, tt), 4)
                if swap(t):
                    MF(A, d, x, w, "0" if ks == 0 else d)
                else:
                    MF(A, d, w, x, "0" if ks == 0 else d)
                n += 1
                if n == 1 and ks + 1 < 18:
                    rd(ks + 1)
        if mid and ks == 4:
            mid()

def wave_sum(A, r, t):
    for k in (8, 4, 2, 1):
        A("s_nop 1")
        A("v_add_f32_dpp %s, %s, %s row_ror:%d row_mask:0xf bank_mask:0xf" % (v(r), v(r), v(r), k))
    for op in ("v_permlane16_swap_b32", "v_permlane32_swap_b32"):
        A("v_mov_b32 %s, %s" % (v(t), v(r)))
        A("s_nop 1")
        A("%s %s, %s" % (op, v(r), v(t)))
        A("v_add_f32 %s, %s, %s" % (v(r), v(r), v(t)))

def rnd2(A, a, b):
    A("v_cvt_pk_bf16_f32 %s, %s, %s" % (v(b), v(a), v(b)))
    A("v_lshlrev_b32 %s, 16, %s" % (v(a), v(b)))
    A("v_and_b32 %s, 0xffff0000, %s" % (v(b), v(b)))
def rnd1(A, a):
    A("v_cvt_pk_bf16_f32 %s, %s, %s" % (v(a), v(a), v(a)))
    A("v_and_b32 %s, 0xffff0000, %s" % (v(a), v(a)))
def unpack(A, lo, hi, src):
    A("v_and_b32 %s, 0xffff0000, %s" % (v(hi), v(src))) if hi != src else None
    A("v_lshlrev_b32 %s, 16, %s" % (v(lo), v(src)))
    if hi == src:
        A("v_and_b32 %s, 0xffff0000, %s" % (v(hi), v(src)))

def row_offsets(A, vRow, vRow2, svalid, t):
    A("v_and_b32 %s, 7, %s" % (v(t), v(vLane)))
    A("v_lshlrev_b32 %s, 4, %s" % (v(vRow), v(t)))
    A("v_bfe_u32 %s, %s, 3, 1" % (v(t), v(vLane)))
    A("v_lshl_add_u32 %s, %s, 8, %s" % (v(vRow), v(t), v(vRow)))
    A("v_lshrrev_b32 %s, 1, %s" % (v(t), v(vG)))
    A("v_lshl_add_u32 %s, %s, 7, %s" % (v(vRow), v(t), v(vRow)))
    A("v_and_b32 %s, 1, %s" % (v(t), v(vG)))
    A("v_lshl_add_u32 %s, %s, 3, %s" % (v(vRow), v(t), v(vRow)))
    A("s_mov_b32 %s, 0x00ff00ff" % s(svalid))
    A("s_mov_b32 %s, 0" % s(svalid + 1))
    A("v_mov_b32 %s, 0x%x" % (v(t), OOB >> 1))
    A("v_cndmask_b32 %s, %s, %s, %s" % (v(vRow2), v(t), v(vRow), s(svalid, 2)))

def load_mod(A, dst, which, vRow, vRow2, t1, t2):
    A("v_lshlrev_b32 %s, 1, %s" % (v(t1), v(vRow)))
    A("v_lshlrev_b32 %s, 1, %s" % (v(t2), v(vRow2)))
    A("s_mov_b32 %s, %d" % (s(sT + 2), WS_MOD + which * 2304))
    for U in range(3):
        A.vmem("buffer_load_dwordx4 %s, %s, %s, %s offen offset:%d sc1" % (v(dst + 4 * U, 4), v(t1 if U < 2 else t2), s(sWS, 4), s(sT + 2), 1024 * U), 'mod')

def ln_stats(A, X, D, svalid, m, rs, t):
    A("v_add_f32 %s, %s, %s" % (v(m), v(X), v(X + 1)))
    for i in range(2, 12):
        A("v_add_f32 %s, %s, %s" % (v(m), v(m), v(X + i)))
    wave_sum(A, m, t)
    A("v_mul_f32 %s, 0x%x, %s" % (v(m), f32bits(1.0 / 576), v(m)))
    for i in range(12):
        A("v_sub_f32 %s, %s, %s" % (v(D + i), v(X + i), v(m)))
    A("v_mul_f32 %s, %s, %s" % (v(rs), v(D + 8), v(D + 8)))
    for i in range(9, 12):
        A("v_fmac_f32 %s, %s, %s" % (v(rs), v(D + i), v(D + i)))
    A("v_cndmask_b32 %s, 0, %s, %s" % (v(rs), v(rs), s(svalid, 2)))
    for i in range(8):
        A("v_fmac_f32 %s, %s, %s" % (v(rs), v(D + i), v(D + i)))
    wave_sum(A, rs, t)
    A("v_mul_f32 %s, 0x%x, %s" % (v(rs), f32bits(1.0 / 576), v(rs)))
    rnd2(A, m, rs)
    A("v_add_f32 %s, 0x%x, %s" % (v(rs), f32bits(1e-5), v(rs)))
    rnd1(A, rs)
    A("v_sqrt_f32 %s, %s" % (v(rs), v(rs)))
    A("s_nop 0")
    rnd1(A, rs)
    A("v_rcp_f32 %s, %s" % (v(rs), v(rs)))
    A("s_nop 0")

def ln_apply(A, X, m, rs, C1, SH, out):
    for i in range(12):
        A("v_sub_f32 %s, %s, %s" % (v(X + i), v(X + i), v(m)))
    for i in range(0, 12, 2):
        rnd2(A, X + i, X + i + 1)
    for i in range(12):
        A("v_mul_f32 %s, %s, %s" % (v(X + i), v(X + i), v(rs)))
    for i in range(0, 12, 2):
        rnd2(A, X + i, X + i + 1)
    for i in range(12):
        A("v_mul_f32 %s, %s, %s" % (v(X + i), v(X + i), v(C1 + i)))
    for i in range(0, 12, 2):
        rnd2(A, X + i, X + i + 1)
    for i in range(12):
        A("v_add_f32 %s, %s, %s" % (v(X + i), v(X + i), v(SH + i)))
    for i in range(6):
        A("v_cvt_pk_bf16_f32 %s, %s, %s" % (v(out + i), v(X + 2 * i), v(X + 2 * i + 1)))

def one_plus(A, C):
    for i in range(12):
        A("v_add_f32 %s, 1.0, %s" % (v(C + i), v(C + i)))
    for i in range(0, 12, 2):
        rnd2(A, C + i, C + i + 1)

def row_io(A, op, reg, vRow, vRow2, srd, soff, flags=""):
    for U in range(3):
        A.vmem("buffer_%s_dwordx2 %s, %s, %s, %s offen offset:%d%s" % (op, v(reg + 2 * U, 2), v(vRow if U < 2 else vRow2), s(srd, 4), soff, 512 * U, flags), 'row')

def sel_masks(A):
    for hi in range(2):
        for u in range(4):
            m16 = (3 << (2 * u)) << (8 * hi)
            m32 = m16 | (m16 << 16)
            A("s_mov_b32 %s, 0x%x" % (s(sSel + 8 * hi + 2 * u), m32))
            A("s_mov_b32 %s, 0x%x" % (s(sSel + 8 * hi + 2 * u + 1), m32))
def make_sel(A, dst, hi, t):
    A("v_and_b32 %s, 1, %s" % (v(t), v(vLane)))
    A("v_lshlrev_b32 %s, 4, %s" % (v(t), v(t)))
    A("v_mov_b32 %s, 0x3f80" % v(dst))
    A("v_lshlrev_b32 %s, %s, %s" % (v(t), v(t), v(dst)))
    for u in range(4):
        A("v_cndmask_b32 %s, 0, %s, %s" % (v(dst + u), v(t), s(sSel + 8 * hi + 2 * u, 2)))

def emit_worker(A, opt=()):
    A.c("=========== worker ===========")
    A("v_mov_b32 %s, v0" % v(vLane))
    A("v_lshlrev_b32 %s, 4, %s" % (v(vL16), v(vLane)))
    A("v_lshrrev_b32 %s, 4, %s" % (v(vG), v(vLane)))
    A("v_bfe_u32 %s, %s, 2, 2" % (v(vC), v(vLane)))
    A("v_and_b32 %s, 3, %s" % (v(vX), v(vLane)))
    A("s_mov_b32 %s, 400000" % s(sBud))
    TS['on'], TS['reg'], TS['fine'] = "ts" in opt, 79, "fs" in opt
    TS['cnt'] = "cnt" in opt
    ts(A, 0)
    sel_masks(A)
    build_srd(A, sXS, 0, 2359296)
    vRow, vRow2 = 7, 8
    sValid = sMask
    row_offsets(A, vRow, vRow2, sValid, vTmp)
    A("s_mul_i32 %s, %s, 9363" % (s(sSl), s(sWid)))
    A("s_lshr_b32 %s, %s, 16" % (s(sSl), s(sSl)))
    A("s_mul_i32 %s, %s, 7" % (s(sT), s(sSl)))
    A("s_sub_u32 %s, %s, %s" % (s(sRep), s(sWid), s(sT)))
    vOffW, vTr, vAd = 77, 78, 11
    A("s_lshl_b32 %s, %s, 8" % (s(sT + 1), s(sSl)))
    wide_off(A, vOffW, vTmp, 8192, s(sT + 1))
    A("s_lshr_b32 %s, %s, 1" % (s(sT + 1), s(sW)))
    A("s_lshl_b32 %s, %s, 3" % (s(sT + 1), s(sT + 1)))
    A("s_and_b32 %s, %s, 1" % (s(sT + 2), s(sW)))
    A("s_add_u32 %s, %s, %s" % (s(sT + 1), s(sT + 1), s(sT + 2)))
    wide_tr(A, vTr, vTmp, s(sT + 1), 2)
    W0 = 80
    def wq(t, ks):
        return W0 + 4 * (6 * ks + t)
    def wide_chunks(mats, rowstride, wreg, vOffW=vOffW, vTr=vTr):
        out = []
        for G in range(9):
            for m, srd in enumerate(mats):
                def consume(base, m=m, G=G):
                    A("v_add_u32 %s, %d, %s" % (v(vAd), base, v(vTr)))
                    for k2 in range(2):
                        for t in range(2):
                            tr2(A, wreg(2 * m + t, 2 * G + k2), vAd, 32 * k2 * 256 + 8 * t, (32 * k2 + 4) * 256 + 8 * t)
                out.append((srd, vOffW, [(64 * G + 4 * j) * rowstride for j in range(4)], consume))
        return out
    qchunks = wide_chunks((sW1, sW2, sW3), 8192, wq)
    lmod, lpre_done, lidle = A.new("mod"), A.new("predone"), A.new("idle")
    XR = 16
    A("s_cmp_lt_u32 %s, 3" % s(sRep))
    A("s_cbranch_scc1 %s" % lmod)
    A("s_lshl_b32 %s, %s, 2" % (s(sT), s(sSl)))
    A("s_add_u32 %s, %s, %s" % (s(sT), s(sT), s(sRep)))
    A("s_sub_u32 %s, %s, 3" % (s(sT), s(sT)))
    A("s_lshl_b32 %s, %s, 2" % (s(sT), s(sT)))
    A("s_add_u32 %s, %s, %s" % (s(sT), s(sT), s(sW)))
    A("s_mul_i32 %s, %s, %d" % (s(sA0), s(sT), 4 * 1152))
    for r in range(4):
        A("s_add_u32 %s, %s, %d" % (s(sT), s(sA0), r * 1152))
        row_io(A, "load", XR + 6 * r, vRow, vRow2, sXS, s(sT))
    stage_start(A, qchunks)
    A("s_waitcnt vmcnt(%d)" % (4 * (NSLOT - 1)))
    SH, C1, XF = 40, 52, 100
    for r in range(4):
        for i in range(6):
            unpack(A, XF + 12 * r + 2 * i, XF + 12 * r + 2 * i + 1, XR + 6 * r + i)
        ln_stats(A, XF + 12 * r, 160, sValid, 64 + 2 * r, 65 + 2 * r, 11)
    wait_flags(A, None, "0", srd=sDBG, imm=DBG_MOD)
    load_mod(A, SH, 0, vRow, vRow2, 9, 10)
    load_mod(A, C1, 1, vRow, vRow2, 9, 10)
    A("s_waitcnt vmcnt(0)")
    one_plus(A, C1)
    for r in range(4):
        ln_apply(A, XF + 12 * r, 64 + 2 * r, 65 + 2 * r, C1, SH, XR + 6 * r)
        A("s_add_u32 %s, %s, %d" % (s(sT), s(sA0), WS_H + r * 1152))
        row_io(A, "store", XR + 6 * r, vRow, vRow2, sWS, s(sT), " sc1")
    A("s_waitcnt vmcnt(0)")
    A("s_barrier")
    A("s_mov_b32 %s, %d" % (s(sT), FL_H))
    arrive(A, s(sT), 128)
    A("s_branch %s" % lpre_done)

    A.label(lmod)
    A("s_cmp_eq_u32 %s, 0" % s(sRep))
    A("s_cbranch_scc1 %s" % lidle)
    A("s_cmp_ge_u32 %s, 27" % s(sSl))
    A("s_cbranch_scc1 %s" % lidle)
    build_srd(A, sA0 + 2, 88, 1152)
    build_srd(A, sA0 + 6, 96, 3981312)
    sCs, sWm = sA0 + 2, sA0 + 6
    A("s_lshl_b32 %s, %s, 1" % (s(sA0), s(sSl)))
    A("s_add_u32 %s, %s, %s" % (s(sA0), s(sA0), s(sRep)))
    A("s_sub_u32 %s, %s, 1" % (s(sA0), s(sA0)))
    for i in range(4):
        A("v_mov_b32 %s, 0" % v(12 + i))
    A("s_lshl_b32 %s, %s, 2" % (s(sT), s(sA0)))
    A("s_add_u32 %s, %s, %s" % (s(sT), s(sT), s(sW)))
    A("s_lshl_b32 %s, %s, 11" % (s(sT), s(sT)))
    A("s_add_u32 %s, %s, %d" % (s(sT), s(sT), WS_FL))
    assert FL_END - WS_FL <= 54 * 8192
    A("buffer_store_dwordx4 %s, %s, %s, %s offen sc1" % (v(12, 4), v(vL16), s(sWS, 4), s(sT)))
    A("buffer_store_dwordx4 %s, %s, %s, %s offen offset:1024 sc1" % (v(12, 4), v(vL16), s(sWS, 4), s(sT)))
    A("v_lshrrev_b32 %s, 3, %s" % (v(9), v(vLane)))
    A("s_mul_i32 %s, %s, 144" % (s(sT), s(sW)))
    A("v_add_u32 %s, %s, %s" % (v(9), s(sT), v(9)))
    A("v_lshlrev_b32 %s, 1, %s" % (v(10), v(9)))
    A("v_mul_u32_u24 %s, 6912, %s" % (v(9), v(9)))
    A("v_and_b32 %s, 7, %s" % (v(11), v(vLane)))
    A("v_lshl_add_u32 %s, %s, 4, %s" % (v(9), v(11), v(9)))
    A("s_lshl_b32 %s, %s, 7" % (s(sT), s(sA0)))
    CV, WV, ACC = 100, 120, 200
    for i in range(18):
        A("buffer_load_ushort %s, %s, %s, 0 offen offset:%d" % (v(CV + i), v(10), s(sCs, 4), 16 * i))
    for i in range(18):
        A("s_add_u32 %s, %s, %d" % (s(sT + 1), s(sT), i * 55296))
        A("buffer_load_dwordx4 %s, %s, %s, %s offen" % (v(WV + 4 * i, 4), v(9), s(sWm, 4), s(sT + 1)))
    A("s_waitcnt vmcnt(18)")
    for i in range(18):
        c = CV + i
        A("v_lshlrev_b32 %s, 16, %s" % (v(c), v(c)))
        A("v_mul_f32 %s, 0x%x, %s" % (v(12), f32bits(-math.log2(math.e)), v(c)))
        A("v_exp_f32 %s, %s" % (v(12), v(12)))
        A("s_nop 0")
        A("v_add_f32 %s, 1.0, %s" % (v(12), v(12)))
        A("v_rcp_f32 %s, %s" % (v(12), v(12)))
        A("s_nop 0")
        A("v_mul_f32 %s, %s, %s" % (v(c), v(c), v(12)))
        rnd1(A, c)
    for j in range(8):
        A("v_mov_b32 %s, 0" % v(ACC + j))
    A("s_waitcnt vmcnt(0)")
    for i in range(18):
        for j in range(4):
            unpack(A, 12, 13, WV + 4 * i + j)
            A("v_fmac_f32 %s, %s, %s" % (v(ACC + 2 * j), v(12), v(CV + i)))
            A("v_fmac_f32 %s, %s, %s" % (v(ACC + 2 * j + 1), v(13), v(CV + i)))
    for j in range(8):
        r = ACC + j
        A("s_nop 1")
        A("v_add_f32_dpp %s, %s, %s row_ror:8 row_mask:0xf bank_mask:0xf" % (v(r), v(r), v(r)))
        for op in ("v_permlane16_swap_b32", "v_permlane32_swap_b32"):
            A("v_mov_b32 %s, %s" % (v(12), v(r)))
            A("s_nop 1")
            A("%s %s, %s" % (op, v(r), v(12)))
            A("v_add_f32 %s, %s, %s" % (v(r), v(r), v(12)))
    A("s_lshl_b32 %s, %s, 8" % (s(sT + 1), s(sW)))
    A("s_add_u32 %s, %s, %d" % (s(sT + 1), s(sT + 1), L_SCR))
    A("v_lshlrev_b32 %s, 5, %s" % (v(11), v(11)))
    A("v_add_u32 %s, %s, %s" % (v(11), s(sT + 1), v(11)))
    A("ds_write_b128 %s, %s" % (v(11), v(ACC, 4)))
    A("ds_write_b128 %s, %s offset:16" % (v(11), v(ACC + 4, 4)))
    A("s_waitcnt lgkmcnt(0)")
    A("s_barrier")
    A("v_lshlrev_b32 %s, 2, %s" % (v(10), v(vLane)))
    A("v_add_u32 %s, %d, %s" % (v(11), L_SCR, v(10)))
    for i in range(4):
        A("ds_read_b32 %s, %s offset:%d" % (v(12 + i), v(11), 256 * i))
    A("s_waitcnt lgkmcnt(0)")
    A("v_add_f32 %s, %s, %s" % (v(12), v(12), v(13)))
    A("v_add_f32 %s, %s, %s" % (v(14), v(14), v(15)))
    A("v_add_f32 %s, %s, %s" % (v(12), v(12), v(14)))
    rnd1(A, 12)
    A("s_lshl_b32 %s, %s, 8" % (s(sT), s(sA0)))
    A("s_add_u32 %s, %s, %d" % (s(sT), s(sT), WS_MOD))
    sk = A.new("modw")
    A("s_cmp_lg_u32 %s, 0" % s(sW))
    A("s_cbranch_scc1 %s" % sk)
    A("buffer_store_dword %s, %s, %s, %s offen sc1" % (v(12), v(10), s(sWS, 4), s(sT)))
    A("s_waitcnt vmcnt(0)")
    A("s_mov_b64 exec, 1")
    A("v_mov_b32 %s, 1" % v(12))
    A("buffer_atomic_add %s, off, %s, 0 offset:%d sc0" % (v(12), s(sDBG, 4), DBG_MODC))
    A("s_waitcnt vmcnt(0)")
    A("v_cmpx_eq_u32 vcc, 53, %s" % v(12))
    A("s_cbranch_execz %s_x" % sk)
    A("buffer_store_dword %s, off, %s, 0 offset:%d sc1" % (v(12), s(sDBG, 4), DBG_MOD))
    A.label(sk + "_x")
    A("s_mov_b64 exec, -1")
    A.label(sk)
    A.label(lidle)
    stage_start(A, qchunks)
    A.label(lpre_done)
    ts(A, 1)

    A.vm, A.lds = [('c', c) for c in range(NSLOT - 1) for j in range(4)], []
    stage(A, qchunks, started=True)
    ts(A, 2)
    wait_flags(A, None, "0", srd=sDBG, imm=DBG_MOD)
    ts(A, 3)
    ts(A, 4)
    if TS['on']:
        A("v_mov_b32 v15, v79")
        A("s_mov_b32 %s, 8" % s(sTsI))
        TS['reg'] = 15
    A("s_mov_b32 %s, %d" % (s(sT), FL_H))
    wait_flags(A, None, s(sT), imm=128)
    ts(A, 5)
    vXo, vXa = 9, 10
    LAND, ACC = 16, 32
    sSrc, sM0x, sQo, sKo, sFlag, sBuf = sA0, sA0 + 1, sA0 + 2, sA0 + 3, sA0 + 4, sA0 + 5
    def xsetup(vXa):
        A("v_lshrrev_b32 %s, 3, %s" % (v(vTmp), v(vLane)))
        A("v_xor_b32 %s, %s, %s" % (v(vXa), v(vTmp), v(vLane)))
        A("v_and_b32 %s, 7, %s" % (v(vXa), v(vXa)))
        A("v_mul_u32_u24 %s, 1152, %s" % (v(vXo), v(vTmp)))
        A("v_lshl_add_u32 %s, %s, 4, %s" % (v(vXo), v(vXa), v(vXo)))
        A("s_mul_i32 %s, %s, 9216" % (s(sM0x), s(sW)))
        A("v_add_u32 %s, %s, %s" % (v(vXo), s(sM0x), v(vXo)))
        A("v_and_b32 %s, 7, %s" % (v(vTmp), v(vLane)))
        A("v_xor_b32 %s, %s, %s" % (v(vXa), v(vG), v(vTmp)))
        A("v_lshlrev_b32 %s, 4, %s" % (v(vXa), v(vXa)))
        A("v_lshl_add_u32 %s, %s, 7, %s" % (v(vXa), v(vTmp), v(vXa)))
        A("v_bfe_u32 %s, %s, 3, 1" % (v(vTmp), v(vLane)))
        A("v_mul_u32_u24 %s, 9216, %s" % (v(vTmp), v(vTmp)))
        A("v_add_u32 %s, %s, %s" % (v(vXa), v(vXa), v(vTmp)))
        A("v_xor_b32 %s, 64, %s" % (v(vXa + 1), v(vXa)))
    xsetup(vXa)
    A("s_mov_b32 %s, %s" % (s(sSeg), s(sRep)))
    A("s_mul_i32 %s, %s, 36864" % (s(sSrc), s(sSeg)))
    A("s_add_u32 %s, %s, %d" % (s(sSrc), s(sSrc), WS_H))
    A("s_lshl_b32 %s, %s, 5" % (s(sT), s(sSeg)))
    A("s_add_u32 %s, %s, %s" % (s(sT), s(sT), s(sSl)))
    A("s_lshl_b32 %s, %s, 10" % (s(sT + 1), s(sW)))
    A("s_lshl_b32 %s, %s, 13" % (s(sQo), s(sT)))
    A("s_add_u32 %s, %s, %s" % (s(sQo), s(sQo), s(sT + 1)))
    A("s_add_u32 %s, %s, %d" % (s(sQo), s(sQo), WS_Q))
    A("s_lshl_b32 %s, %s, 14" % (s(sKo), s(sT)))
    A("s_add_u32 %s, %s, %s" % (s(sKo), s(sKo), s(sT + 1)))
    if WS_KV:
        A("s_add_u32 %s, %s, %d" % (s(sKo), s(sKo), WS_KV))
    A("s_mov_b32 %s, 0x%x" % (s(sFlag), OOB))
    A.vm = []
    x_dma(A, vXo, sSrc, sM0x)
    A("s_waitcnt vmcnt(0)")
    ltop, lend = A.new("qkv"), A.new("qkvend")
    A.label(ltop)
    A("s_waitcnt vmcnt(6)")
    A("s_barrier")
    ts(A)
    fs(A, 20)
    A("s_xor_b32 %s, %s, 0x10000" % (s(sM0x), s(sM0x)))
    A("s_add_u32 %s, %s, %d" % (s(sSrc), s(sSrc), 7 * 36864))
    x_dma(A, vXo, sSrc, sM0x)
    def mid():
        A("s_waitcnt vmcnt(9)")
        A("s_barrier")
        set_flag(A, s(sFlag))
    fs(A, 21)
    A.lds = []
    gemm576(A, vXa, LAND, wq, lambda t, tt: ACC + 8 * t + 4 * tt, 6, lambda t: t >= 4, mid)
    fs(A, 22)
    A("v_xor_b32 %s, 0x10000, %s" % (v(vXa), v(vXa)))
    A("v_xor_b32 %s, 0x10000, %s" % (v(vXa + 1), v(vXa + 1)))
    A("s_lshl_b32 %s, %s, 8" % (s(sFlag), s(sSl)))
    A("s_lshl_b32 %s, %s, 2" % (s(sT), s(sSeg)))
    A("s_add_u32 %s, %s, %s" % (s(sFlag), s(sFlag), s(sT)))
    A("s_add_u32 %s, %s, %d" % (s(sFlag), s(sFlag), FL_KV))
    A("s_add_u32 %s, %s, 4096" % (s(sT), s(sQo)))
    A("s_add_u32 %s, %s, 4096" % (s(sT + 1), s(sKo)))
    A("s_lshl_b32 %s, %s, 10" % (s(sT + 2), s(sW)))
    A("s_add_u32 %s, %s, %s" % (s(sT + 2), s(sT + 2), s(sKo)))
    A("s_add_u32 %s, %s, 8192" % (s(sT + 2), s(sT + 2)))
    for m in range(2):
        for tt in range(2):
            a0, a1 = ACC + 16 * m + 4 * tt, ACC + 16 * m + 8 + 4 * tt
            for x in range(4):
                A("v_cvt_pk_bf16_f32 %s, %s, %s" % (v(a0 + x), v(a0 + x), v(a1 + x)))
            so = (sQo, sT, sKo, sT + 1)[2 * m + tt]
            A("buffer_store_dwordx4 %s, %s, %s, %s offen sc1" % (v(a0, 4), v(vL16), s(sWS, 4), s(so)))
    for t in range(2):
        a0 = ACC + 32 + 8 * t
        A("v_cvt_pk_bf16_f32 %s, %s, %s" % (v(a0), v(a0), v(a0 + 1)))
        A("v_cvt_pk_bf16_f32 %s, %s, %s" % (v(a0 + 1), v(a0 + 2), v(a0 + 3)))
        A("v_cvt_pk_bf16_f32 %s, %s, %s" % (v(a0 + 2), v(a0 + 4), v(a0 + 5)))
        A("v_cvt_pk_bf16_f32 %s, %s, %s" % (v(a0 + 3), v(a0 + 6), v(a0 + 7)))
        A("buffer_store_dwordx4 %s, %s, %s, %s offen offset:%d sc1" % (v(a0, 4), v(vL16), s(sWS, 4), s(sT + 2), 1024 * t))
    fs(A, 23)
    A("s_add_u32 %s, %s, %d" % (s(sQo), s(sQo), 7 * 32 * 8192))
    A("s_add_u32 %s, %s, %d" % (s(sKo), s(sKo), 7 * 32 * 16384))
    A("s_add_u32 %s, %s, 7" % (s(sSeg), s(sSeg)))
    A("s_cmp_lt_u32 %s, 64" % s(sSeg))
    A("s_cbranch_scc1 %s" % ltop)
    A("s_waitcnt vmcnt(0)")
    A("s_barrier")
    set_flag(A, s(sFlag))
    ts(A, 6)
    ts_dump(A, 0)
    if "p1only" in opt:
        return
    lC = A.new("roleC")
    A("s_cmp_ge_u32 %s, 80" % s(sWid))
    A("s_cbranch_scc1 %s" % lC)
    lB = A.new("roleB")
    A("s_cmp_ge_u32 %s, 64" % s(sWid))
    A("s_cbranch_scc1 %s" % lB)
    emit_roleA(A, opt)
    A("s_endpgm")
    A.label(lB)
    emit_roleB(A, vRow, vRow2, sValid, opt)
    A("s_endpgm")
    A.label(lC)
    emit_roleC(A, xsetup, wide_chunks, opt)

def emit_roleA(A, opt):
    A.c("=========== role A: attention + Wo partial ===========")
    A("s_lshr_b32 %s, %s, 2" % (s(sSl), s(sWid)))
    A("s_and_b32 %s, %s, 3" % (s(sRep), s(sWid)))
    vOff, vTr, vAd = 9, 10, 11
    A("s_mul_i32 %s, %s, %d" % (s(sT + 1), s(sSl), 2 * 147456))
    tall_off(A, vOff, vTmp, s(sT + 1))
    tall_tr(A, vTr, 4)
    W0 = 224
    def wo(G, K):
        return W0 + 4 * (8 * G + K)
    chunks = []
    for hd in range(2):
        for G in range(9):
            def consume(base, hd=hd, G=G):
                A("v_add_u32 %s, %d, %s" % (v(vAd), base, v(vTr)))
                for ks in range(4):
                    r0 = 64 * (ks >> 1) + 8 * (ks & 1)
                    tr2(A, wo(G, 4 * hd + ks), vAd, r0 * 128, (r0 + 4) * 128)
            chunks.append((sWO, vOff, [hd * 147456 + 8 * j * 1152 + 128 * G for j in range(4)], consume))
    A.vm, A.lds = ['old'] * 2, []
    stage(A, chunks)
    TS['reg'] = 19
    ts(A)
    vKM, vL4, vOwr, vTw, vTrd, vPst, vPld, vNEG = 9, 10, 11, 12, 13, 14, 15, 16
    GA, SB, CB = 20, 32, 44
    SEL0, SEL1 = 56, 60
    QF, KX, VX, KM, VM = 64, 80, 112, 144, 160
    S_, OA = 176, 188
    WACC, LAND = 144, 216
    L_OT, L_PT = 0, 16384
    PSTR = 1168
    A("v_lshlrev_b32 %s, 2, %s" % (v(vL4), v(vLane)))
    A("v_lshrrev_b32 %s, 1, %s" % (v(vTmp), v(vG)))
    A("v_lshlrev_b32 %s, 10, %s" % (v(vKM), v(vTmp)))
    A("v_and_b32 %s, 1, %s" % (v(vTmp), v(vX)))
    A("v_lshl_add_u32 %s, %s, 8, %s" % (v(vKM), v(vTmp), v(vKM)))
    A("v_lshl_add_u32 %s, %s, 6, %s" % (v(vKM), v(vC), v(vKM)))
    A("v_and_b32 %s, 1, %s" % (v(vTmp), v(vG)))
    A("v_lshl_add_u32 %s, %s, 5, %s" % (v(vKM), v(vTmp), v(vKM)))
    A("s_and_b32 %s, %s, 1" % (s(sT), s(sW)))
    A("s_lshl_b32 %s, %s, 13" % (s(sT + 1), s(sT)))
    A("s_lshr_b32 %s, %s, 1" % (s(sT + 2), s(sW)))
    A("s_lshl_b32 %s, %s, 12" % (s(sT + 3), s(sT + 2)))
    A("s_add_u32 %s, %s, %s" % (s(sT + 1), s(sT + 1), s(sT + 3)))
    A("v_add_u32 %s, %s, %s" % (v(vOwr), s(sT + 1), v(vL16)))
    A("v_and_b32 %s, 15, %s" % (v(17), v(vLane)))
    A("s_lshl_b32 %s, %s, 4" % (s(sT + 1), s(sT)))
    A("v_add_u32 %s, %s, %s" % (v(17), s(sT + 1), v(17)))
    A("v_lshlrev_b32 %s, 2, %s" % (v(18), v(vG)))
    A("v_sub_u32 %s, %s, %s" % (v(17), v(17), v(18)))
    sCM = sA0 + 6
    for i in range(8):
        A("v_cmp_le_i32 %s, %d, %s" % (s(sCM + 2 * i, 2), 16 * (i >> 2) + (i & 3), v(17)))
    A("v_mov_b32 %s, 0x%x" % (v(vNEG), f32bits(-1e9)))
    A("v_and_b32 %s, 15, %s" % (v(vTmp), v(vLane)))
    A("v_mul_u32_u24 %s, %d, %s" % (v(vTw), PSTR, v(vTmp)))
    A("v_lshl_add_u32 %s, %s, 3, %s" % (v(vTw), v(vG), v(vTw)))
    A("s_lshl_b32 %s, %s, 5" % (s(sT + 1), s(sW)))
    A("s_add_u32 %s, %s, %d" % (s(sT + 1), s(sT + 1), L_PT))
    A("v_add_u32 %s, %s, %s" % (v(vTw), s(sT + 1), v(vTw)))
    A("v_lshrrev_b32 %s, 3, %s" % (v(17), v(vLane)))
    A("v_and_b32 %s, 7, %s" % (v(18), v(vLane)))
    A("v_lshlrev_b32 %s, 4, %s" % (v(18), v(18)))
    A("s_lshl_b32 %s, %s, 3" % (s(sT + 1), s(sW)))
    A("v_add_u32 %s, %s, %s" % (v(17), s(sT + 1), v(17)))
    A("v_mul_u32_u24 %s, %d, %s" % (v(vTrd), PSTR, v(17)))
    A("v_add_u32 %s, %s, %s" % (v(vTrd), v(vTrd), v(18)))
    A("v_add_u32 %s, %d, %s" % (v(vTrd), L_PT, v(vTrd)))
    A("v_mul_u32_u24 %s, 18432, %s" % (v(vPst), v(17)))
    A("v_add_u32 %s, %s, %s" % (v(vPst), v(vPst), v(18)))
    A("s_mul_i32 %s, %s, 1152" % (s(sT + 1), s(sSl)))
    A("v_add_u32 %s, %s, %s" % (v(vPst), s(sT + 1), v(vPst)))
    sHead, sSH, sPAo, sRowo = sA0, sA0 + 1, sA0 + 2, sA0 + 3
    A("s_lshl_b32 %s, %s, 1" % (s(sHead), s(sSl)))
    A("s_lshr_b32 %s, %s, 1" % (s(sT), s(sW)))
    A("s_add_u32 %s, %s, %s" % (s(sHead), s(sHead), s(sT)))
    A("s_mov_b32 %s, %s" % (s(sSeg), s(sRep)))
    A("s_lshl_b32 %s, %s, 8" % (s(sT), s(sHead)))
    A("s_add_u32 %s, %s, %d" % (s(sT), s(sT), FL_KV))
    wait_flags(A, vL4, s(sT))
    A("s_lshl_b32 %s, %s, 5" % (s(sSH), s(sSeg)))
    A("s_add_u32 %s, %s, %s" % (s(sSH), s(sSH), s(sHead)))
    def prefetch():
        A("s_lshl_b32 %s, %s, 13" % (s(sT), s(sSH)))
        A("s_and_b32 %s, %s, 1" % (s(sT + 1), s(sW)))
        A("s_lshl_b32 %s, %s, 12" % (s(sT + 1), s(sT + 1)))
        A("s_add_u32 %s, %s, %s" % (s(sT), s(sT), s(sT + 1)))
        A("s_add_u32 %s, %s, %d" % (s(sT), s(sT), WS_Q))
        for i in range(4):
            A("buffer_load_dwordx4 %s, %s, %s, %s offen offset:%d sc1" % (v(QF + 4 * i, 4), v(vL16), s(sWS, 4), s(sT), 1024 * i))
        A("s_lshl_b32 %s, %s, 14" % (s(sT), s(sSH)))
        if WS_KV:
            A("s_add_u32 %s, %s, %d" % (s(sT), s(sT), WS_KV))
        for b in range(4):
            for i in range(4):
                A("buffer_load_dwordx4 %s, %s, %s, %s offen offset:%d sc1" % (v(KX + 16 * b + 4 * i, 4), v(vL16), s(sWS, 4), s(sT), 1024 * i))
            if b < 3:
                A("s_add_u32 %s, %s, 4096" % (s(sT), s(sT)))
    prefetch()
    ltop = A.new("atop")
    A.label(ltop)
    A("s_lshl_b32 %s, %s, 7" % (s(sT), s(sSH)))
    A("s_add_u32 %s, %s, %d" % (s(sT), s(sT), FL_PUB))
    wait_flags(A, None, s(sT))
    ts(A)
    fs(A, 0)
    A("s_lshl_b32 %s, %s, 12" % (s(sT), s(sSH)))
    A("s_add_u32 %s, %s, %d" % (s(sT), s(sT), WS_KM))
    for ks in range(4):
        A("buffer_load_dwordx4 %s, %s, %s, %s offen offset:%d sc1" % (v(KM + 4 * ks, 4), v(vKM), s(sWS, 4), s(sT), (ks >> 1) * 2048 + (ks & 1) * 16))
    for T in range(8):
        A("buffer_load_dword %s, %s, %s, %s offen offset:%d sc1" % (v(VM + 2 * T), v(vL4), s(sWS, 4), s(sT), (T >> 1) * 1024 + 512 + (T & 1) * 256))
    for T in range(8):
        A("v_mov_b32 %s, 0" % v(VM + 2 * T + 1))
    T1, T2, T0 = S_, S_ + 4, S_ + 8
    for ks in range(4):
        MF(A, v(T1, 4), v(KX + 4 * ks, 4), v(QF + 4 * ks, 4), "0" if ks == 0 else v(T1, 4))
        MF(A, v(T2, 4), v(KX + 16 + 4 * ks, 4), v(QF + 4 * ks, 4), "0" if ks == 0 else v(T2, 4))
    A("s_waitcnt vmcnt(8)")
    fs(A, 1)
    for ks in range(4):
        MF(A, v(T0, 4), v(KM + 4 * ks, 4), v(QF + 4 * ks, 4), "0" if ks == 0 else v(T0, 4))
    A("s_nop 7")
    sv = [S_ + i for i in range(10)]
    for i in range(0, 10, 2):
        rnd2(A, sv[i], sv[i + 1])
    for x in sv:
        A("v_mul_f32 %s, 0x%x, %s" % (v(x), f32bits(128 ** -0.5), v(x)))
    for i in range(0, 10, 2):
        rnd2(A, sv[i], sv[i + 1])
    for i in range(8):
        A("v_cndmask_b32 %s, %s, %s, %s" % (v(sv[i]), v(vNEG), v(sv[i]), s(sCM + 2 * i, 2)))
    m1, m2 = S_ + 10, S_ + 11
    A("v_max3_f32 %s, %s, %s, %s" % (v(m1), v(sv[0]), v(sv[1]), v(sv[2])))
    for i in (3, 5, 7):
        A("v_max3_f32 %s, %s, %s, %s" % (v(m1), v(m1), v(sv[i]), v(sv[i + 1])))
    A("v_max_f32 %s, %s, %s" % (v(m1), v(m1), v(sv[9])))
    def xl(op):
        for sw in ("v_permlane32_swap_b32", "v_permlane16_swap_b32"):
            A("v_mov_b32 %s, %s" % (v(m2), v(m1)))
            A("s_nop 1")
            A("%s %s, %s" % (sw, v(m1), v(m2)))
            A("%s %s, %s, %s" % (op, v(m1), v(m1), v(m2)))
    xl("v_max_f32")
    for x in sv:
        A("v_sub_f32 %s, %s, %s" % (v(x), v(x), v(m1)))
    for x in sv:
        A("v_mul_f32 %s, 0x%x, %s" % (v(x), f32bits(math.log2(math.e)), v(x)))
    for x in sv:
        A("v_exp_f32 %s, %s" % (v(x), v(x)))
    A("v_add_f32 %s, %s, %s" % (v(m1), v(sv[0]), v(sv[1])))
    for x in sv[2:]:
        A("v_add_f32 %s, %s, %s" % (v(m1), v(m1), v(x)))
    xl("v_add_f32")
    A("v_rcp_f32 %s, %s" % (v(m1), v(m1)))
    A("s_nop 0")
    for x in sv:
        A("v_mul_f32 %s, %s, %s" % (v(x), v(x), v(m1)))
    for i in range(4):
        A("v_cvt_pk_bf16_f32 %s, %s, %s" % (v(S_ + i), v(sv[2 * i]), v(sv[2 * i + 1])))
    A("v_cvt_pk_bf16_f32 %s, %s, %s" % (v(T0), v(T0), v(T0 + 1)))
    A("v_mov_b32 %s, 0" % v(T0 + 1))
    A("s_waitcnt vmcnt(0)")
    A("s_nop 0")
    for T in range(8):
        MF(A, v(OA + 4 * T, 4), v(VX + 4 * T, 4), v(S_, 4), "0")
    for T in range(8):
        A("v_mfma_f32_16x16x16_bf16 %s, %s, %s, %s" % (v(OA + 4 * T, 4), v(VM + 2 * T, 2), v(T0, 2), v(OA + 4 * T, 4)))
    A("s_nop 1")
    A.lds = []
    for c in range(4):
        b = OA + 8 * c
        if c == 3:
            A("s_nop 0")
        for i in range(4):
            A("v_cvt_pk_bf16_f32 %s, %s, %s" % (v(b + i), v(b + 2 * i), v(b + 2 * i + 1)))
        A.ds("ds_write_b128 %s, %s offset:%d" % (v(vOwr), v(b, 4), L_OT + 1024 * c))
    fs(A, 2)
    lnp = A.new("nopf")
    A("s_add_u32 %s, %s, 128" % (s(sSH), s(sSH)))
    A("s_cmp_ge_u32 %s, 2048" % s(sSH))
    A("s_cbranch_scc1 %s" % lnp)
    prefetch()
    A.label(lnp)
    A.wait_ds()
    A("s_barrier")
    fs(A, 3)
    def rd(n):
        A.ds("ds_read_b128 %s, %s offset:%d" % (v(LAND + 4 * (n & 1), 4), v(vL16), L_OT + (n & 1) * 8192 + (n >> 1) * 1024), ('o', n))
    rd(0)
    rd(1)
    for n in range(16):
        K, tt = n >> 1, n & 1
        A.wait_ds(('o', n))
        for G in range(9):
            d = v(WACC + 8 * G + 4 * tt, 4)
            MF(A, d, R(wo(G, K), 4), v(LAND + 4 * tt, 4), "0" if K == 0 else d)
        if n + 2 < 16:
            rd(n + 2)
    fs(A, 4)
    for tt in range(2):
        for G in range(9):
            b = WACC + 8 * G + 4 * tt
            A("v_cvt_pk_bf16_f32 %s, %s, %s" % (v(b), v(b), v(b + 1)))
            A("v_cvt_pk_bf16_f32 %s, %s, %s" % (v(b + 1), v(b + 2), v(b + 3)))
            A.ds("ds_write_b64 %s, %s offset:%d" % (v(vTw), v(b, 2), tt * 16 * PSTR + 128 * G))
    A.wait_ds()
    A("s_barrier")
    fs(A, 5)
    A("s_mul_i32 %s, %s, %d" % (s(sPAo), s(sSeg), PA_SEG))
    A("s_add_u32 %s, %s, %d" % (s(sPAo), s(sPAo), WS_PA))
    for i in range(9):
        A.ds("ds_read_b128 %s, %s offset:%d" % (v(WACC + 4 * i, 4), v(vTrd), 128 * i), ('t', i))
    for i in range(9):
        A.wait_ds(('t', i))
        A("buffer_store_dwordx4 %s, %s, %s, %s offen offset:%d sc1" % (v(WACC + 4 * i, 4), v(vPst), s(sWS, 4), s(sPAo), 128 * i))
    fs(A, 6)
    A("s_waitcnt vmcnt(0)")
    A("s_barrier")
    fs(A, 7)
    A("s_lshl_b32 %s, %s, 8" % (s(sT), s(sSeg)))
    A("s_add_u32 %s, %s, %d" % (s(sT), s(sT), FL_PA))
    arrive(A, s(sT), 16)
    fs(A, 8)
    ts(A)
    A("s_add_u32 %s, %s, 4" % (s(sSeg), s(sSeg)))
    A("s_cmp_lt_u32 %s, 64" % s(sSeg))
    A("s_cbranch_scc1 %s" % ltop)
    ts_dump(A, 1)

def emit_roleB(A, vRow, vRow2, sValid, opt):
    A.c("=========== role B: reduce + residual + LN2, one row per wave ===========")
    TS['reg'] = 19
    GA, SB, CB = 20, 32, 44
    SEL0, SEL1 = 56, 60
    vPld = 15
    load_mod(A, GA, 2, vRow, vRow2, 17, 18)
    load_mod(A, SB, 3, vRow, vRow2, 17, 18)
    load_mod(A, CB, 4, vRow, vRow2, 17, 18)
    make_sel(A, SEL0, 0, vTmp)
    make_sel(A, SEL1, 1, vTmp)
    A("v_lshrrev_b32 %s, 3, %s" % (v(17), v(vLane)))
    A("v_and_b32 %s, 7, %s" % (v(18), v(vLane)))
    A("v_lshlrev_b32 %s, 4, %s" % (v(18), v(18)))
    A("v_mul_u32_u24 %s, 1152, %s" % (v(vPld), v(17)))
    A("v_add_u32 %s, %s, %s" % (v(vPld), v(vPld), v(18)))
    A("s_waitcnt vmcnt(0)")
    one_plus(A, CB)
    sRow, sRowo = sA0 + 5, sA0 + 3
    A("s_sub_u32 %s, %s, 64" % (s(sRow), s(sWid)))
    A("s_lshl_b32 %s, %s, 1" % (s(sRow), s(sRow)))
    A("s_and_b32 %s, %s, 1" % (s(sT), s(sW)))
    A("s_add_u32 %s, %s, %s" % (s(sRow), s(sRow), s(sT)))
    A("s_lshr_b32 %s, %s, 1" % (s(sSeg), s(sW)))
    A("v_and_b32 %s, 15, %s" % (v(vFl), v(vLane)))
    A("v_lshlrev_b32 %s, 2, %s" % (v(vFl), v(vFl)))
    ltop = A.new("btop")
    A.label(ltop)
    A("s_lshl_b32 %s, %s, 5" % (s(sT), s(sSeg)))
    A("s_add_u32 %s, %s, %s" % (s(sA0 + 2), s(sT), s(sRow)))
    A("s_mul_i32 %s, %s, 1152" % (s(sRowo), s(sA0 + 2)))
    XR, RD, XF, DD = 216, 176, 196, 144
    row_io(A, "load", XR, vRow, vRow2, sXS, s(sRowo))
    A("s_lshl_b32 %s, %s, 8" % (s(sT), s(sSeg)))
    A("s_add_u32 %s, %s, %d" % (s(sT), s(sT), FL_PA))
    wait_ready(A, s(sT), 16)
    ts(A)
    A("s_mul_i32 %s, %s, 18432" % (s(sT), s(sA0 + 2)))
    A("s_add_u32 %s, %s, %d" % (s(sT), s(sT), WS_PA))
    A("s_add_u32 %s, %s, 9216" % (s(sT + 1), s(sT)))
    LD = 64
    A.vm = []
    for i in range(9):
        for h in range(2):
            A.vmem("buffer_load_dwordx4 %s, %s, %s, %s offen offset:%d sc1" % (v(LD + 8 * i + 4 * h, 4), v(vPld), s(sWS, 4), s(sT + h), 128 * i), ('p', i))
    for i in range(9):
        A.wait_vm(('p', i))
        d = v(RD + 4 * (i >> 1), 4)
        sel = v(SEL1 if i & 1 else SEL0, 4)
        MF(A, d, sel, v(LD + 8 * i, 4), "0" if not (i & 1) else d)
        MF(A, d, sel, v(LD + 8 * i + 4, 4), d)
    for i in range(4):
        A("v_mov_b32 %s, 0" % v(XF + 8 + i))
    A("s_nop 3")
    for T in range(5):
        for jj in range(4):
            A("v_add_f32_dpp %s, %s, %s row_ror:8 row_mask:0xf bank_mask:0x%x" % (v(XF + 4 * (T >> 1) + jj), v(RD + 4 * T + jj), v(RD + 4 * T + jj), 0xc if T & 1 else 0x3))
    for i in range(0, 12, 2):
        rnd2(A, XF + i, XF + i + 1)
    for i in range(12):
        A("v_mul_f32 %s, %s, %s" % (v(XF + i), v(XF + i), v(GA + i)))
    for i in range(0, 12, 2):
        rnd2(A, XF + i, XF + i + 1)
    for i in range(6):
        unpack(A, DD, DD + 1, XR + i)
        A("v_add_f32 %s, %s, %s" % (v(XF + 2 * i), v(XF + 2 * i), v(DD)))
        A("v_add_f32 %s, %s, %s" % (v(XF + 2 * i + 1), v(XF + 2 * i + 1), v(DD + 1)))
        A("v_cvt_pk_bf16_f32 %s, %s, %s" % (v(XR + i), v(XF + 2 * i), v(XF + 2 * i + 1)))
        unpack(A, XF + 2 * i, XF + 2 * i + 1, XR + i)
    A("s_add_u32 %s, %s, %d" % (s(sT), s(sRowo), WS_X1))
    row_io(A, "store", XR, vRow, vRow2, sWS, s(sT), " sc1")
    ln_stats(A, XF, DD, sValid, 160, 161, 162)
    ln_apply(A, XF, 160, 161, CB, SB, 164)
    A("s_add_u32 %s, %s, %d" % (s(sT), s(sRowo), WS_H2))
    row_io(A, "store", 164, vRow, vRow2, sWS, s(sT), " sc1")
    A("s_waitcnt vmcnt(0)")
    A("s_lshl_b32 %s, %s, 8" % (s(sT), s(sSeg)))
    A("s_add_u32 %s, %s, %d" % (s(sT), s(sT), FL_H2))
    arrive(A, s(sT), 32, wave0_only=False)
    ts(A)
    A("s_add_u32 %s, %s, 2" % (s(sSeg), s(sSeg)))
    A("s_cmp_lt_u32 %s, 64" % s(sSeg))
    A("s_cbranch_scc1 %s" % ltop)
    ts_dump(A, 1)

def emit_roleC(A, xsetup, wide_chunks, opt):
    A.c("=========== role C: gate/up + down partial + output ===========")
    A("s_sub_u32 %s, %s, 80" % (s(sT), s(sWid)))
    A("s_lshr_b32 %s, %s, 2" % (s(sSl), s(sT)))
    A("s_and_b32 %s, %s, 3" % (s(sRep), s(sT)))
    build_srd(A, sW1, 64, 5308416)
    build_srd(A, sW2, 72, 5308416)
    build_srd(A, sW3, 80, 5308416)
    build_srd(A, sWO, 104, 2359296)
    vOffW, vTr, vAd, vOffD, vTrD = 9, 10, 11, 12, 13
    A("s_lshl_b32 %s, %s, 8" % (s(sT + 1), s(sSl)))
    wide_off(A, vOffW, vTmp, 9216, s(sT + 1))
    A("s_lshl_b32 %s, %s, 2" % (s(sT + 1), s(sW)))
    wide_tr(A, vTr, vTmp, s(sT + 1), 1)
    A("s_mul_i32 %s, %s, 147456" % (s(sT + 1), s(sSl)))
    tall_off(A, vOffD, vTmp, s(sT + 1))
    tall_tr(A, vTrD, 3)
    W0 = 80
    def wg(t, ks):
        return W0 + 4 * (4 * ks + t)
    def wd(G, ks):
        return W0 + 288 + 4 * (4 * G + ks)
    chunks = wide_chunks((sW1, sW2), 9216, wg, vOffW, vTr)
    for G in range(9):
        def consume(base, G=G):
            A("v_add_u32 %s, %d, %s" % (v(vAd), base, v(vTrD)))
            for ks in range(4):
                tr2(A, wd(G, ks), vAd, 32 * ks * 128, (32 * ks + 4) * 128)
        chunks.append((sW3, vOffD, [8 * j * 1152 + 128 * G for j in range(4)], consume))
    A.vm, A.lds = ['old'] * 2, []
    stage(A, chunks)
    vXo = 9
    sSrc, sM0x = sA0, sA0 + 1
    vXa = 7
    xsetup(vXa)
    vHw, vRl, vOo = 6, 2, 3
    LAND, ACC, PK = 10, 26, 62
    L_HH = 40960
    A("s_lshl_b32 %s, %s, 10" % (s(sT), s(sW)))
    A("s_add_u32 %s, %s, %d" % (s(sT), s(sT), L_HH))
    A("v_add_u32 %s, %s, %s" % (v(vHw), s(sT), v(vL16)))
    A("v_and_b32 %s, 15, %s" % (v(vTmp), v(vLane)))
    A("v_lshlrev_b32 %s, 4, %s" % (v(vTmp), v(vTmp)))
    A("v_lshl_add_u32 %s, %s, 10, %s" % (v(vRl), v(vG), v(vTmp)))
    A("s_lshl_b32 %s, %s, 8" % (s(sT), s(sW)))
    A("v_add_u32 %s, %s, %s" % (v(vRl), s(sT), v(vRl)))
    A("v_mul_u32_u24 %s, 1152, %s" % (v(vOo), v(vLane)))
    A("s_lshl_b32 %s, %s, 5" % (s(sT), s(sSl)))
    A("s_lshl_b32 %s, %s, 3" % (s(sT + 1), s(sW)))
    A("s_add_u32 %s, %s, %s" % (s(sT), s(sT), s(sT + 1)))
    A("v_add_u32 %s, %s, %s" % (v(vOo), s(sT), v(vOo)))
    A("v_mov_b32 %s, 0x%x" % (v(vTmp), OOB))
    A("v_cmp_gt_u32 vcc, 32, %s" % v(vLane))
    A("s_nop 1")
    A("v_cndmask_b32 %s, %s, %s, vcc" % (v(vOo), v(vTmp), v(vOo)))
    A("s_lshl_b32 %s, %s, 1" % (s(sT), s(sT)))
    A("s_add_u32 %s, %s, %d" % (s(sT), s(sT), WS_MOD + 5 * 2304))
    A("buffer_load_dwordx4 %s, off, %s, %s sc1" % (v(ACC, 4), s(sWS, 4), s(sT)))
    A("s_waitcnt vmcnt(0)")
    sGB = sA0 + 8
    for i in range(4):
        A("v_readfirstlane_b32 %s, %s" % (s(sGB + i), v(ACC + i)))
    A("s_mov_b32 %s, %s" % (s(sSeg), s(sRep)))
    sPCo, sFl = sA0 + 2, sA0 + 3
    TS['reg'] = 4
    sPrev = sA0 + 5
    def reduce_out():
        A("s_mul_i32 %s, %s, 36864" % (s(sA0 + 6), s(sPrev)))
        A("s_add_u32 %s, %s, %d" % (s(sT), s(sA0 + 6), WS_X1))
        A("buffer_load_dwordx2 %s, %s, %s, %s offen sc1" % (v(LAND + 8, 2), v(vOo), s(sWS, 4), s(sT)))
        make_sel(A, LAND, 0, vTmp)
        A("s_lshl_b32 %s, %s, 8" % (s(sFl), s(sPrev)))
        A("s_add_u32 %s, %s, %d" % (s(sFl), s(sFl), FL_PC))
        wait_ready(A, s(sFl), 36)
        ts(A)
        A("s_mul_i32 %s, %s, %d" % (s(sT), s(sSl), 36 * 1024))
        A("s_add_u32 %s, %s, %s" % (s(sT), s(sT), s(sPCo)))
        A.vm = []
        for i in range(9):
            A.vmem("buffer_load_dwordx4 %s, %s, %s, %s offen sc1" % (v(ACC + 4 * i, 4), v(vRl), s(sWS, 4), s(sT)), ('p', i))
            if i < 8:
                A("s_add_u32 %s, %s, 4096" % (s(sT), s(sT)))
    def reduce_fin():
        D = LAND + 4
        for i in range(9):
            A.wait_vm(('p', i))
            MF(A, v(D, 4), v(LAND, 4), v(ACC + 4 * i, 4), "0" if i == 0 else v(D, 4))
        unpack(A, LAND + 10, LAND + 11, LAND + 8)
        unpack(A, LAND + 12, LAND + 13, LAND + 9)
        A("s_nop 3")
        rnd2(A, D, D + 1)
        rnd2(A, D + 2, D + 3)
        for i in range(4):
            A("v_mul_f32 %s, %s, %s" % (v(D + i), s(sGB + i), v(D + i)))
        rnd2(A, D, D + 1)
        rnd2(A, D + 2, D + 3)
        for i in range(4):
            A("v_add_f32 %s, %s, %s" % (v(D + i), v(D + i), v(LAND + 10 + i)))
        A("v_cvt_pk_bf16_f32 %s, %s, %s" % (v(D), v(D), v(D + 1)))
        A("v_cvt_pk_bf16_f32 %s, %s, %s" % (v(D + 1), v(D + 2), v(D + 3)))
        A("buffer_store_dwordx2 %s, %s, %s, %s offen%s" % (v(D, 2), v(vOo), s(sWO, 4), s(sA0 + 6), " sc1" if "outsc1" in opt else " nt" if "outnt" in opt else ""))
        ts(A)
    ltop, lfirst = A.new("ctop"), A.new("cfirst")
    def h2wait():
        A("s_lshl_b32 %s, %s, 8" % (s(sT), s(sSeg)))
        A("s_add_u32 %s, %s, %d" % (s(sT), s(sT), FL_H2))
        wait_ready(A, s(sT), 32)
        ts(A)
        fs(A, 0)
        A("s_mul_i32 %s, %s, 36864" % (s(sSrc), s(sSeg)))
        A("s_add_u32 %s, %s, %d" % (s(sSrc), s(sSrc), WS_H2))
        x_dma(A, vXo, sSrc, sM0x)
    A.label(ltop)
    h2wait()
    fs(A, 1)
    A("s_waitcnt vmcnt(0)")
    A("s_barrier")
    fs(A, 2)
    A.lds = []
    gemm576(A, vXa, LAND, wg, lambda t, tt: ACC + 8 * t + 4 * tt, 4, lambda t: False)
    fs(A, 3)
    A("s_nop 5")
    for tt in range(2):
        for t in range(2):
            g_, u_ = ACC + 8 * t + 4 * tt, ACC + 16 + 8 * t + 4 * tt
            for jj in range(4):
                rnd2(A, g_ + jj, u_ + jj)
                A("v_mul_f32 %s, %s, %s" % (v(g_ + jj), v(g_ + jj), v(u_ + jj)))
            A("v_cvt_pk_bf16_f32 %s, %s, %s" % (v(LAND + 4 * tt + 2 * t), v(g_), v(g_ + 1)))
            A("v_cvt_pk_bf16_f32 %s, %s, %s" % (v(LAND + 4 * tt + 2 * t + 1), v(g_ + 2), v(g_ + 3)))
        A.ds("ds_write_b128 %s, %s offset:%d" % (v(vHw), v(LAND + 4 * tt, 4), 4096 * tt))
    A.wait_ds()
    A("s_barrier")
    fs(A, 4)
    A("s_mul_i32 %s, %s, %d" % (s(sA0 + 4), s(sSeg), PC_SEG))
    A("s_add_u32 %s, %s, %d" % (s(sA0 + 4), s(sA0 + 4), WS_PC))
    A("s_mul_i32 %s, %s, 36" % (s(sT), s(sW)))
    A("s_add_u32 %s, %s, %s" % (s(sT), s(sT), s(sSl)))
    A("s_lshl_b32 %s, %s, 10" % (s(sT), s(sT)))
    A("s_add_u32 %s, %s, %s" % (s(sT), s(sT), s(sA0 + 4)))
    for tt in range(2):
        for ks in range(4):
            A.ds("ds_read_b128 %s, %s offset:%d" % (v(LAND + 4 * ks, 4), v(vL16), L_HH + 4096 * tt + 1024 * ks), ('h', ks))
        for ks in range(4):
            A.wait_ds(('h', ks))
            for G in range(9):
                d = v(ACC + 4 * G, 4)
                MF(A, d, R(wd(G, ks), 4), v(LAND + 4 * ks, 4), "0" if ks == 0 else d)
        for G in range(9):
            b = ACC + 4 * G
            if tt == 0:
                A("v_cvt_pk_bf16_f32 %s, %s, %s" % (v(PK + 2 * G), v(b), v(b + 1)))
                A("v_cvt_pk_bf16_f32 %s, %s, %s" % (v(PK + 2 * G + 1), v(b + 2), v(b + 3)))
            else:
                A("v_cvt_pk_bf16_f32 %s, %s, %s" % (v(b + 3), v(b + 2), v(b + 3)))
                A("v_cvt_pk_bf16_f32 %s, %s, %s" % (v(b + 2), v(b), v(b + 1)))
                A("v_mov_b64 %s, %s" % (v(b, 2), v(PK + 2 * G, 2)))
                A("buffer_store_dwordx4 %s, %s, %s, %s offen sc1" % (v(b, 4), v(vL16), s(sWS, 4), s(sT)))
                if G < 8:
                    A("s_add_u32 %s, %s, %d" % (s(sT), s(sT), 4 * 36 * 1024))
    fs(A, 5)
    A("s_waitcnt vmcnt(0)")
    A("s_barrier")
    fs(A, 6)
    A("s_lshl_b32 %s, %s, 8" % (s(sT), s(sSeg)))
    A("s_add_u32 %s, %s, %d" % (s(sT), s(sT), FL_PC))
    arrive(A, s(sT), 36)
    fs(A, 7)
    ts(A)
    A("s_cmp_lt_u32 %s, 4" % s(sSeg))
    A("s_cbranch_scc1 %s" % lfirst)
    reduce_out()
    reduce_fin()
    A.label(lfirst)
    A("s_mov_b32 %s, %s" % (s(sPrev), s(sSeg)))
    A("s_mov_b32 %s, %s" % (s(sPCo), s(sA0 + 4)))
    A("s_add_u32 %s, %s, 4" % (s(sSeg), s(sSeg)))
    A("s_cmp_lt_u32 %s, 64" % s(sSeg))
    A("s_cbranch_scc1 %s" % ltop)
    reduce_out()
    reduce_fin()
    ts_dump(A, 1)
```

```python
from asmlib import *
from layout import *
import struct, math

L_MEM, L_KX, L_F, L_O, L_SCR, L_W = 0, 9216, 17408, 21632, 23680, 24576
FSTR = 1056
L_FLAG = L_SCR + 892
L_WSTRIDE = 34816
vL16, vIdx, vWL, vFw, vOw, vPst, vRst, vSelV, vT0, vT1, vT2, vTmp = range(12)
VACC, QK, RING, LND = 12, 20, 36, 48
WREG0 = 72
KVSTEP = 32 * 16384
NSPILL = 17
sWS, sWQ, sWK, sWV, sWO, sM0, sDBG = 4, 8, 12, 16, 20, 24, 28
sCU, sW, sWC, sUnit, sStep, sBud = 32, 33, 34, 35, 36, 37
sP0, sP1, sP2, sRd, sX0, sX1, sX2, sKV, sKM, sPh, sWF, sC, sVX, sKXm = range(38, 52)
sL2a, sKVv, sKVt = 96, 97, 98
sPt = 8
sTagM = 100
sFlg, sFlgN, sOne, sKF, sRdy, sRdE = 17, 18, 20, 19, 22, 24
sSel = 52
sT = 60
sStamp = 64

def f32bits(x):
    return struct.unpack("<I", struct.pack("<f", x))[0]

WO_ORDER = [0, 1, 2, 3, 4, 5, 6, 7, 8]
QK_CHAIN = [[('qk', 0, 1), ('qk', 2, 0), ('qk', 4, 0), ('qk', 6, 0), ('qk', 7, 3)],
            [('qk', 0, 2), ('qk', 2, 1), ('qk', 4, 1), ('qk', 6, 1)],
            [('qk', 0, 0), ('v', 8, 1)]]
def GOF(j, w):
    if j == 8:
        return 8
    o = 2 * (1 - (w >> 1))
    return (j & 4) + (w, w ^ 1, o, o + 1)[j & 3]
WO_CHAIN = [[('o', 0), ('o', 8), ('o', 16)], [('o', 1), ('o', 9), ('o', 17)]]
L2KEY = ('v', 8, 1)
def placement():
    spill, regs, slot, nxt = {}, {}, {}, {}
    nonreg = []
    for chains in (QK_CHAIN, WO_CHAIN):
        for si, ch in enumerate(chains):
            for i, k in enumerate(ch):
                slot[k] = si
                nxt[k] = ch[i + 1] if i + 1 < len(ch) else None
                if k != L2KEY:
                    nonreg.append(k)
    nonreg.append(L2KEY)
    assert len(nonreg) == NSPILL
    for i, k in enumerate(nonreg):
        spill[k] = i
    allk = [('qk', j, t) for j in range(9) for t in range(4)] + [('v', j, t) for j in range(9) for t in range(2)] + \
           [('o', n) for n in range(18)]
    r = WREG0
    for k in allk:
        if k not in spill:
            regs[k] = r
            r += 8
    assert r == 512, r
    return spill, regs, slot, nxt
SPILL, WREGS, SLOT, NXT = placement()

def emit_team(A, stamps=False, nsteps=64, sc="", hooks=None, opt=()):
    nst = [0]
    def stamp():
        if stamps:
            if "rt" in opt and nst[0] in (2, 4):
                pass
            else:
                A("%s %s" % ("s_memrealtime" if "rt" in opt else "s_memtime", s(sStamp + 2 * nst[0], 2)))
            nst[0] += 1
    SC = " sc1"
    lane = 71
    t1, t2, t3, t4, t5, t6 = 64, 65, 66, 67, 68, 69
    vOffW, vOffO, vTrQK, vTrV, vTrO, vAd, vTr8, vAd2 = 56, 57, 58, 59, 60, 61, 62, 63
    vColQK, vColV = 54, 55
    A.c("=========== team setup ===========")
    if "tt" in opt:
        A("s_memtime s[90:91]")
        A("s_memrealtime s[64:65]")
        A("s_mov_b32 s87, 0")
        A("s_mov_b32 s88, 0")
        A("s_mov_b32 s89, 0")
    A("v_mov_b32 %s, v0" % v(lane))
    A("v_lshrrev_b32 %s, 4, %s" % (v(t2), v(lane)))
    A("v_lshlrev_b32 %s, 2, %s" % (v(t1), v(t2)))
    A("v_sub_u32 %s, %s, %s" % (v(t1), v(lane), v(t1)))
    A("v_and_b32 %s, 15, %s" % (v(t1), v(t1)))
    A("v_lshlrev_b32 %s, 4, %s" % (v(t1), v(t1)))
    A("v_lshl_add_u32 %s, %s, 13, %s" % (v(vOffW), v(t2), v(t1)))
    A("s_lshl_b32 %s, %s, 8" % (s(sT + 2), s(sCU)))
    A("s_lshl_b32 %s, %s, 17" % (s(sT + 3), s(sW)))
    A("s_add_u32 %s, %s, %s" % (s(sT + 2), s(sT + 2), s(sT + 3)))
    A("v_add_u32 %s, %s, %s" % (v(vOffW), s(sT + 2), v(vOffW)))
    A("v_lshrrev_b32 %s, 3, %s" % (v(t1), v(lane)))
    A("v_mul_u32_u24 %s, 1152, %s" % (v(vOffO), v(t1)))
    A("v_and_b32 %s, 7, %s" % (v(t1), v(lane)))
    A("v_lshl_add_u32 %s, %s, 4, %s" % (v(vOffO), v(t1), v(vOffO)))
    A("s_mul_i32 %s, %s, 147456" % (s(sT + 2), s(sCU)))
    A("s_mul_i32 %s, %s, %d" % (s(sT + 3), s(sW), 32 * 1152))
    A("s_add_u32 %s, %s, %s" % (s(sT + 2), s(sT + 2), s(sT + 3)))
    A("v_add_u32 %s, %s, %s" % (v(vOffO), s(sT + 2), v(vOffO)))
    sLW = 99
    RING0 = L_W + 14336
    A("s_mul_i32 %s, %s, %d" % (s(sLW), s(sW), L_WSTRIDE))
    chunks = [(3, G) for G in range(9)] + [(m, G) for G in range(9) for m in range(2)] + [(2, G) for G in (4, 5, 6, 7, 8, 0, 1, 2, 3)]
    VLAST = (1, 2, 3)
    NSLOT = 5
    NT = " nt" if "nt" in opt else ""
    def issue_chunk(c):
        m, G = chunks[c]
        slot = c % NSLOT
        for j in range(4):
            A("s_add_u32 m0, %s, %d" % (s(sLW), RING0 + slot * 4096 + j * 1024))
            if m < 3:
                A("s_mov_b32 %s, %d" % (s(sT + 2), (64 * G + 4 * j) * 8192))
                A.vmem("buffer_load_dwordx4 %s, %s, %s offen%s lds" % (v(vOffW), s((sWQ, sWK, sWV)[m], 4), s(sT + 2), NT), ('c', c))
            else:
                A("s_mov_b32 %s, %d" % (s(sT + 2), 8 * j * 1152 + 128 * G))
                A.vmem("buffer_load_dwordx4 %s, %s, %s offen%s lds" % (v(vOffO), s(sWO, 4), s(sT + 2), NT), ('c', c))
    A.vm, A.lds = [], []
    for c in range(NSLOT - 1):
        issue_chunk(c)
    A("s_lshl_b32 %s, %s, 5" % (s(sT), s(sW)))
    A("s_add_u32 %s, %s, %s" % (s(sUnit), s(sT), s(sCU)))
    A("s_cmp_lt_u32 %s, 72" % s(sUnit))
    A("s_cselect_b32 %s, %s, -1" % (s(sUnit), s(sUnit)))
    A("v_lshlrev_b32 %s, 4, %s" % (v(vL16), v(lane)))
    A("v_and_b32 %s, 1, %s" % (v(t1), v(lane)))
    A("v_mul_u32_u24 %s, 0xaaaa, %s" % (v(t1), v(t1)))
    A("v_add_u32 %s, 0x4444, %s" % (v(vIdx), v(t1)))
    A("s_mul_i32 %s, %s, %d" % (s(sT), s(sW), L_WSTRIDE))
    A("s_add_u32 %s, %s, %d" % (s(sT), s(sT), L_W))
    A("v_add_u32 %s, %s, %s" % (v(vWL), s(sT), v(vL16)))
    A("s_add_u32 %s, %s, 32768" % (s(sVX), s(sT)))
    A("s_lshl_b32 %s, %s, 11" % (s(sKXm), s(sW)))
    A("s_add_u32 %s, %s, %d" % (s(sKXm), s(sKXm), L_KX))
    A("v_lshrrev_b32 %s, 4, %s" % (v(t2), v(lane)))
    A("v_bfe_u32 %s, %s, 2, 2" % (v(t3), v(lane)))
    A("v_and_b32 %s, 3, %s" % (v(t4), v(lane)))
    A("v_and_b32 %s, 1, %s" % (v(t1), v(t3)))
    A("v_mul_u32_u24 %s, %d, %s" % (v(vFw), FSTR, v(t1)))
    A("v_lshrrev_b32 %s, 1, %s" % (v(t1), v(t3)))
    A("v_lshl_add_u32 %s, %s, 8, %s" % (v(vFw), v(t1), v(vFw)))
    A("v_lshl_add_u32 %s, %s, 6, %s" % (v(vFw), v(t2), v(vFw)))
    A("v_lshl_add_u32 %s, %s, 2, %s" % (v(vFw), v(t4), v(vFw)))
    A("s_lshr_b32 %s, %s, 1" % (s(sT), s(sW)))
    A("s_and_b32 %s, %s, 1" % (s(sT + 1), s(sW)))
    A("s_mul_i32 %s, %s, %d" % (s(sT + 2), s(sT), 2 * FSTR))
    A("s_lshl_b32 %s, %s, 9" % (s(sT + 3), s(sT + 1)))
    A("s_add_u32 %s, %s, %s" % (s(sT + 2), s(sT + 2), s(sT + 3)))
    A("s_add_u32 %s, %s, %d" % (s(sT + 2), s(sT + 2), L_F))
    A("v_add_u32 %s, %s, %s" % (v(vFw), s(sT + 2), v(vFw)))
    A("v_and_b32 %s, 1, %s" % (v(t1), v(t4)))
    A("v_lshl_add_u32 %s, %s, 1, %s" % (v(t1), v(t3), v(t1)))
    A("v_lshlrev_b32 %s, 5, %s" % (v(t5), v(t1)))
    A("v_lshl_add_u32 %s, %s, 8, %s" % (v(t5), v(t2), v(t5)))
    A("s_lshl_b32 %s, %s, 10" % (s(sT + 2), s(sT)))
    A("s_lshl_b32 %s, %s, 4" % (s(sT + 3), s(sT + 1)))
    A("s_add_u32 %s, %s, %s" % (s(sT + 2), s(sT + 2), s(sT + 3)))
    A("s_add_u32 %s, %s, %d" % (s(sT + 2), s(sT + 2), L_O))
    A("v_add_u32 %s, %s, %s" % (v(t5), s(sT + 2), v(t5)))
    A("v_lshl_add_u32 %s, %s, 3, %s" % (v(t6), v(t2), v(t1)))
    A("v_lshlrev_b32 %s, 4, %s" % (v(t6), v(t6)))
    A("v_add_u32 %s, %d, %s" % (v(t6), L_SCR, v(t6)))
    A("v_cmp_le_u32 vcc, 2, %s" % v(t4))
    A("s_nop 1")
    A("v_cndmask_b32 %s, %s, %s, vcc" % (v(vOw), v(t6), v(t5)))
    A("v_lshrrev_b32 %s, 5, %s" % (v(t1), v(lane)))
    A("v_lshlrev_b32 %s, 12, %s" % (v(vPst), v(t1)))
    A("v_and_b32 %s, 31, %s" % (v(t1), v(lane)))
    A("v_lshl_add_u32 %s, %s, 2, %s" % (v(vPst), v(t1), v(vPst)))
    A("v_lshlrev_b32 %s, 6, %s" % (v(t5), v(t3)))
    A("v_lshl_add_u32 %s, %s, 3, %s" % (v(t5), v(t4), v(t5)))
    A("v_lshl_add_u32 %s, %s, 5, %s" % (v(t5), v(t2), v(t5)))
    A("s_lshl_b32 %s, %s, 7" % (s(sT + 2), s(sUnit)))
    A("s_and_b32 %s, %s, 0x3fff" % (s(sT + 2), s(sT + 2)))
    A("v_add_u32 %s, %s, %s" % (v(t5), s(sT + 2), v(t5)))
    A("v_and_b32 %s, 0x28, %s" % (v(t1), v(lane)))
    A("v_mov_b32 %s, 0x%x" % (v(t6), OOB))
    A("v_cmp_eq_u32 vcc, 0, %s" % v(t1))
    A("s_nop 1")
    A("v_cndmask_b32 %s, %s, %s, vcc" % (v(vRst), v(t6), v(t5)))
    A("s_mov_b32 %s, 0x11111111" % s(sTagM))
    A("s_mov_b32 %s, 0x11111111" % s(sTagM + 1))
    A("v_and_b32 %s, 1, %s" % (v(t1), v(t3)))
    A("v_lshlrev_b32 %s, 4, %s" % (v(t1), v(t1)))
    A("v_mov_b32 %s, 0x3f80" % v(t5))
    A("v_lshlrev_b32 %s, %s, %s" % (v(vSelV), v(t1), v(t5)))
    for u in range(4):
        m16 = (1 << u) | (1 << (u + 4))
        m32 = m16 | (m16 << 16)
        A("s_mov_b32 %s, 0x%x" % (s(sSel + 2 * u), m32))
        A("s_mov_b32 %s, 0x%x" % (s(sSel + 2 * u + 1), m32))
    A("s_lshl_b32 %s, %s, 10" % (s(sT + 2), s(sW)))
    A("v_add_u32 %s, %s, %s" % (v(vT0), s(sT + 2), v(vL16)))
    A("v_xor_b32 %s, 0x400, %s" % (v(vT1), v(vT0)))
    A("s_and_b32 %s, %s, 0x800" % (s(sT + 2), s(sT + 2)))
    A("s_xor_b32 %s, %s, 0x800" % (s(sT + 2), s(sT + 2)))
    A("v_add_u32 %s, %s, %s" % (v(vT2), s(sT + 2), v(vL16)))
    A("s_mov_b32 %s, 0" % s(sStep))
    A("s_mov_b32 %s, 0" % s(sPh))
    A("s_mov_b32 %s, 200000" % s(sBud))
    A("s_lshl_b32 %s, %s, 7" % (s(sT + 3), s(sCU)))
    A("s_add_u32 %s, %s, %d" % (s(sT + 3), s(sT + 3), WS_PB))
    A("s_lshl_b32 %s, %s, 13" % (s(sT + 2), s(sW)))
    A("s_add_u32 %s, %s, %s" % (s(sP0), s(sT + 2), s(sT + 3)))
    A("s_lshl_b32 %s, %s, 12" % (s(sT + 2), s(sUnit)))
    A("s_add_u32 %s, %s, %d" % (s(sRd), s(sT + 2), WS_PB))
    A("s_cmp_eq_u32 %s, -1" % s(sUnit))
    A("s_cselect_b32 %s, 0x%x, %s" % (s(sRd), OOB, s(sRd)))
    A("s_cselect_b32 %s, 0x%x, 0" % (s(sT + 2), OOB))
    A("v_or_b32 %s, %s, %s" % (v(vRst), s(sT + 2), v(vRst)))
    for i, r in enumerate((sX0, sX1, sX2)):
        A("s_mov_b32 %s, %d" % (s(r), WS_MBX + i * MBX_STRIDE))
    A("s_lshl_b32 %s, %s, 14" % (s(sKV), s(sCU)))
    A("s_lshl_b32 %s, %s, 11" % (s(sT + 2), s(sW)))
    A("s_add_u32 %s, %s, %s" % (s(sKV), s(sKV), s(sT + 2)))
    A("s_add_u32 %s, %s, %d" % (s(sKVv), s(sKV), WS_KV + 8192))
    A("s_lshl_b32 %s, %s, 14" % (s(sKVt), s(sCU)))
    A("s_and_b32 %s, %s, 1" % (s(sT + 2), s(sW)))
    A("s_lshl_b32 %s, %s, 13" % (s(sT + 2), s(sT + 2)))
    A("s_add_u32 %s, %s, %s" % (s(sKVt), s(sKVt), s(sT + 2)))
    A("s_add_u32 %s, %s, %d" % (s(sKVt), s(sKVt), WS_KV + 1 * KVSTEP))
    A("s_cmp_lt_u32 %s, 2" % s(sW))
    A("s_cselect_b32 %s, 0x%x, %s" % (s(sKVt), OOB, s(sKVt)))
    if WS_KV:
        A("s_add_u32 %s, %s, %d" % (s(sKV), s(sKV), WS_KV))
    A("s_lshl_b32 %s, %s, 12" % (s(sKM), s(sCU)))
    A("s_lshl_b32 %s, %s, 10" % (s(sT + 2), s(sW)))
    A("s_add_u32 %s, %s, %s" % (s(sKM), s(sKM), s(sT + 2)))
    A("s_add_u32 %s, %s, %d" % (s(sKM), s(sKM), WS_KM))
    A("s_lshl_b32 %s, %s, 2" % (s(sT + 2), s(sCU)))
    A("s_add_u32 %s, %s, %s" % (s(sT + 2), s(sT + 2), s(sW)))
    A("s_mul_i32 %s, %s, %d" % (s(sWF), s(sT + 2), 18 * 2048))
    A("s_add_u32 %s, %s, %d" % (s(sWF), s(sWF), WS_WF))
    A("s_add_u32 %s, %s, %d" % (s(sL2a), s(sWF), 16 * 2048))
    A("s_mov_b32 %s, 0x%x" % (s(sC), f32bits(128 ** -0.5 * math.log2(math.e))))

    A("s_lshl_b32 %s, %s, 2" % (s(sT + 2), s(sW)))
    A("v_add_u32 %s, %s, %s" % (v(vColQK), s(sT + 2), v(t4)))
    A("s_lshl_b32 %s, %s, 3" % (s(sT + 2), s(sT)))
    A("s_add_u32 %s, %s, %s" % (s(sT + 2), s(sT + 2), s(sT + 1)))
    A("v_lshl_add_u32 %s, %s, 1, %s" % (v(vColV), v(t4), s(sT + 2)))
    A("v_and_b32 %s, 1, %s" % (v(t5), v(t2)))
    A("v_lshlrev_b32 %s, 2, %s" % (v(t5), v(t5)))
    A("v_lshrrev_b32 %s, 1, %s" % (v(t6), v(t3)))
    A("v_lshl_add_u32 %s, %s, 3, %s" % (v(t5), v(t6), v(t5)))
    A("v_and_b32 %s, 1, %s" % (v(t6), v(t3)))
    A("v_add_u32 %s, %s, %s" % (v(t5), v(t5), v(t6)))
    A("v_lshrrev_b32 %s, 1, %s" % (v(t1), v(t2)))
    A("v_lshl_add_u32 %s, %s, 4, %s" % (v(vTrO), v(t1), v(t5)))
    A("v_lshlrev_b32 %s, 7, %s" % (v(vTrO), v(vTrO)))
    A("v_lshl_add_u32 %s, %s, 3, %s" % (v(vTrO), v(t4), v(vTrO)))
    A("s_lshl_b32 %s, %s, 5" % (s(sT + 2), s(sW)))
    A("s_add_u32 %s, %s, %d" % (s(sT + 2), s(sT + 2), RING0))
    A("v_add_u32 %s, %s, %s" % (v(vTrO), s(sT + 2), v(vTrO)))
    A("v_mul_u32_u24 %s, %d, %s" % (v(t1), L_WSTRIDE, v(t1)))
    A("v_lshl_add_u32 %s, %s, 8, %s" % (v(t1), v(t5), v(t1)))
    A("v_add_u32 %s, %d, %s" % (v(t1), RING0, v(t1)))
    for col in (vColQK, vColV):
        A("v_lshl_add_u32 %s, %s, 2, %s" % (v(col), v(t6), v(col)))
        A("v_and_b32 %s, 15, %s" % (v(col), v(col)))
        A("v_lshl_add_u32 %s, %s, 4, %s" % (v(col), v(col), v(t1)))
    AD = [58, 59, 61, 62]
    def addr_wo():
        for i in range(4):
            A("v_add_u32 %s, %d, %s" % (v(AD[i]), i * L_WSTRIDE, v(vTrO)))
    def addr_wide(col):
        A("v_mov_b32 %s, %s" % (v(AD[0]), v(col)))
        A("v_xor_b32 %s, 0x80, %s" % (v(AD[1]), v(col)))
        A("v_add_u32 %s, %d, %s" % (v(AD[2]), 2 * L_WSTRIDE, v(AD[0])))
        A("v_add_u32 %s, %d, %s" % (v(AD[3]), 2 * L_WSTRIDE, v(AD[1])))
    TMPF = [12, 20]
    tmpi = [0]
    park = {}
    def get_frag(key, addrs, imms):
        out = None
        if key in WREGS:
            r = WREGS[key]
        elif SPILL[key] in park:
            r = park[SPILL[key]]
        else:
            r = TMPF[tmpi[0] % 2]
            tmpi[0] += 1
            out = (r, SPILL[key])
        for q in range(4):
            A.ds("ds_read_b64_tr_b16 %s, %s offset:%d" % (R(r + 2 * q, 2), v(addrs[q]), imms[q]))
        return out
    def put(r, idx):
        if idx < 16:
            for hh in range(2):
                A.ds("ds_write_b128 %s, %s offset:%d" % (v(vWL), R(r + 4 * hh, 4), idx * 2048 + hh * 1024))
        else:
            for hh in range(2):
                A.vmem("buffer_store_dwordx4 %s, %s, %s, %s offen offset:%d" % (v(r + 4 * hh, 4), v(vL16), s(sWS, 4), s(sL2a), 1024 * hh), 'sp')

    A("v_lshl_add_u32 %s, %s, 1, %s" % (v(t5), v(t3), v(t2)))
    A("v_mul_u32_u24 %s, 1152, %s" % (v(t5), v(t5)))
    A("v_lshl_add_u32 %s, %s, 3, %s" % (v(t5), v(t4), v(t5)))
    A("s_and_b32 %s, %s, 1" % (s(sT + 2), s(sUnit)))
    A("s_mul_i32 %s, %s, 4608" % (s(sT + 2), s(sT + 2)))
    A("s_bfe_u32 %s, %s, 0x60001" % (s(sT + 3), s(sUnit)))
    A("s_lshl_b32 %s, %s, 5" % (s(sT + 3), s(sT + 3)))
    A("s_add_u32 %s, %s, %s" % (s(sT + 2), s(sT + 2), s(sT + 3)))
    A.vmem("buffer_load_dwordx2 %s, %s, %s, %s offen" % (v(52, 2), v(t5), s(sM0, 4), s(sT + 2)), 'm0')
    for i in range(4):
        A("v_mov_b32 %s, -1" % v(64 + i))
    for i in range(4):
        A.vmem("buffer_store_dwordx4 %s, %s, %s, %s offen offset:%d%s" % (v(64, 4), v(vL16), s(sWS, 4), s(sRd), 1024 * i, SC), 'mb')
    for so in (sX1, sX2):
        A.vmem("buffer_store_dwordx2 %s, %s, %s, %s offen%s" % (v(64, 2), v(vRst), s(sWS, 4), s(so), SC), 'mb')
    vm0 = list(A.vm)
    ljoin = A.new("initjoin")
    lcls = [A.new("cls%d" % i) for i in range(4)]
    for i in (1, 2, 3):
        A("s_cmp_eq_u32 %s, %d" % (s(sW), i))
        A("s_cbranch_scc1 %s" % lcls[i])
    for wc in range(4):
        A.label(lcls[wc])
        A.vm, A.lds = list(vm0), []
        tmpi[0] = 0
        pos = [GOF(jj, wc) for jj in range(9)]
        park.clear()
        park.update({15: 28, 7: 36, 8: 44})
        for i, G in enumerate(VLAST):
            for t in range(2):
                park[9 + 2 * i + t] = WREGS[('v', pos.index(G), t)]
        flush = {32: (9, 10), 33: (11, 12), 34: (13, 14), 35: (15,)}
        for c in range(36):
            m, G = chunks[c]
            if c == 0:
                addr_wo()
            if c == 9:
                addr_wide(vColQK)
            if c == 27:
                addr_wide(vColV)
            A.wait_vm(('c', c))
            A("s_barrier")
            if c + NSLOT - 1 < 36:
                issue_chunk(c + NSLOT - 1)
            if c == NSLOT:
                A.vmem("buffer_store_dwordx2 %s, %s, %s, %s offen%s" % (v(52, 2), v(vRst), s(sWS, 4), s(sX0), SC), 'mb')
            if c == 20 and wc == 0:
                A("s_mov_b64 exec, 1")
                A("s_lshl_b32 %s, 1, s3" % s(sT + 2))
                A("s_lshl_b32 %s, %s, 8" % (s(sT + 2), s(sT + 2)))
                A("v_mov_b32 %s, %s" % (v(52), s(sT + 2)))
                A("v_mov_b32 %s, 1" % v(53))
                A.vmem("buffer_atomic_or %s, off, %s, 0 offset:%d" % (v(52), s(sDBG, 4), DBG_TEAM), 'at')
                A.vmem("buffer_atomic_add %s, off, %s, 0 offset:%d" % (v(53), s(sDBG, 4), DBG_TEAM), 'at')
                A("s_mov_b64 exec, -1")
            for idx in flush.get(c, ()):
                put(park[idx], idx)
            so = (c % NSLOT) * 4096
            sp = []
            if m == 3:
                for c2 in range(2):
                    sp.append(get_frag(('o', 2 * G + c2), [AD[2 * c2 + (q >> 1)] for q in range(4)], [so + 2 * (q & 1) * 128 for q in range(4)]))
            else:
                j = pos.index(G)
                for t in range(2):
                    key = ('qk', j, 2 * m + t) if m < 2 else ('v', j, t)
                    sp.append(get_frag(key, AD, [so + 2 * (q & 1) * 256 + 8 * t for q in range(4)]))
            A.wait_ds()
            for x in sp:
                if x:
                    put(*x)
        A("s_barrier")
        put(park[7], 7)
        put(park[8], 8)
        if wc < 3:
            A("s_branch %s" % ljoin)
    A.label(ljoin)
    for G in range(9):
        A("s_add_u32 %s, %s, %d" % (s(sPt + G), s(sP0), G * 32768))
    A("s_mov_b32 %s, 0x%x" % (s(sFlg), OOB))
    A("s_lshl_b32 %s, %s, 7" % (s(sFlgN), s(sCU)))
    A("s_add_u32 %s, %s, %d" % (s(sFlgN), s(sFlgN), FL_PUB))
    A("s_cmp_eq_u32 %s, 3" % s(sW))
    A("s_cselect_b32 %s, %s, 0x%x" % (s(sFlgN), s(sFlgN), OOB))
    A("s_mov_b64 %s, 1" % s(sOne, 2))
    A("s_cmp_lt_u32 %s, 32" % s(sUnit))
    A("s_cselect_b32 %s, %s, 0x%x" % (s(sRdE), s(sRd), OOB))
    A("s_lshl_b32 %s, %s, 8" % (s(sKF), s(sCU)))
    A("s_add_u32 %s, %s, %d" % (s(sKF), s(sKF), FL_KV))
    A("s_waitcnt vmcnt(0) lgkmcnt(0)")
    A.vm, A.lds = [], []

    def kv_dma():
        return ["s_mov_b32 m0, %s" % s(sKXm),
                "buffer_load_dwordx4 %s, %s, %s offen sc1 lds" % (v(vL16), s(sWS, 4), s(sKV)),
                "buffer_load_dwordx4 %s, %s, %s offen offset:1024 sc1 lds" % (v(vL16), s(sWS, 4), s(sKV)),
                "s_mov_b32 m0, %s" % s(sVX),
                "buffer_load_dwordx4 %s, %s, %s offen sc1 lds" % (v(vL16), s(sWS, 4), s(sKVv)),
                "buffer_load_dwordx4 %s, %s, %s offen offset:1024 sc1 lds" % (v(vL16), s(sWS, 4), s(sKVv))]
    def land(key, half=None):
        sp = SPILL[key]
        for hh in ((0, 1) if half is None else (half,)):
            if sp < 16:
                A.ds("ds_read_b128 %s, %s offset:%d" % (v(LND + 8 * SLOT[key] + 4 * hh, 4), v(vWL), sp * 2048 + 1024 * hh), key)
            else:
                A.vmem("buffer_load_dwordx4 %s, %s, %s, %s offen offset:%d" % (v(LND + 8 * SLOT[key] + 4 * hh, 4), v(vL16), s(sWS, 4), s(sL2a), 1024 * hh), key)
    def zero(lo, hi):
        for r in range(lo, hi, 2):
            A("v_mov_b64 %s, 0" % v(r, 2))
    KVINC = 0 if "samekv" in opt else KVSTEP
    NDMA = "ndma" in opt
    def kv_all():
        for i in range(2):
            A("s_mov_b32 m0, %d" % (L_KX + 4096 * i))
            A("s_add_u32 %s, %s, %d" % (s(sT + 2), s(sKV), 4096 * i))
            for j in range(4):
                A("buffer_load_dwordx4 %s, %s, %s offen offset:%d sc1 lds" % (v(vL16), s(sWS, 4), s(sT + 2), 1024 * j))
        for i in range(4):
            A("s_mov_b32 m0, %d" % (L_W + i * L_WSTRIDE + 32768))
            A("s_add_u32 %s, %s, %d" % (s(sT + 2), s(sKV), 8192 + 2048 * i))
            for j in range(2):
                A("buffer_load_dwordx4 %s, %s, %s offen offset:%d sc1 lds" % (v(vL16), s(sWS, 4), s(sT + 2), 1024 * j))
    def kv_refresh(lback):
        lp = A.new("kvr")
        A.label(lp)
        A("v_lshrrev_b32 %s, 2, %s" % (v(vTmp), v(vL16)))
        A("buffer_load_dword %s, %s, %s, %s offen sc1" % (v(vTmp), v(vTmp), s(sWS, 4), s(sKF)))
        A("s_waitcnt vmcnt(0)")
        A("v_cmp_ne_u32 %s, 0, %s" % (s(sRdy, 2), v(vTmp)))
        A("s_nop 3")
        A("s_bitcmp1_b64 %s, %s" % (s(sRdy, 2), s(sStep)))
        A("s_cbranch_scc1 %s" % lback)
        A("s_sub_u32 %s, %s, 1" % (s(sBud), s(sBud)))
        A("s_cbranch_scc0 %s" % lp)
        A("s_mov_b32 %s, 0" % s(sBud))
        A("s_branch %s" % lback)
    if "tt" in opt:
        A("s_memrealtime s[66:67]")
    if hooks and 'kv_wait0' in hooks:
        hooks['kv_wait0'](A)
        l0 = A.new("kv0")
        kv_refresh(l0)
        A.label(l0)
    if "tt" in opt:
        A("s_memrealtime s[68:69]")
    if NDMA:
        l3 = A.new("n3")
        A("s_lshl_b32 %s, %s, 14" % (s(sKV), s(sCU)))
        if WS_KV:
            A("s_add_u32 %s, %s, %d" % (s(sKV), s(sKV), WS_KV))
        A("s_add_u32 %s, %s, %d" % (s(sKVt), s(sKVt), KVSTEP))
        A("s_barrier")
        A("s_cmp_lg_u32 %s, 3" % s(sW))
        A("s_cbranch_scc1 %s" % l3)
        kv_all()
        A.label(l3)
    A("s_waitcnt vmcnt(0)")
    for ch in QK_CHAIN:
        land(ch[0])
    zero(VACC, RING)
    lp, lo = A.new("tb"), A.new("tbok")
    A.label(lp)
    A("buffer_load_dword %s, off, %s, 0 offset:%d sc1" % (v(vTmp), s(sDBG, 4), DBG_TEAM))
    A("s_waitcnt vmcnt(0)")
    A("v_readfirstlane_b32 %s, %s" % (s(sT), v(vTmp)))
    A("s_nop 3")
    A("s_bitcmp1_b32 %s, 5" % s(sT))
    A("s_cbranch_scc1 %s" % lo)
    A("s_sub_u32 %s, %s, 1" % (s(sBud), s(sBud)))
    A("s_cbranch_scc0 %s" % lp)
    A("s_mov_b32 %s, 0" % s(sBud))
    A.label(lo)
    A("s_waitcnt lgkmcnt(0)")
    A("s_lshr_b32 %s, %s, 8" % (s(sT), s(sT)))
    A("s_bcnt1_i32_b32 %s, %s" % (s(sT), s(sT)))
    lslow = A.new("slow")
    A("s_cmp_lg_u32 %s, 1" % s(sT))
    A("s_cbranch_scc1 %s" % lslow)
    def loop(SC):
        lentry, lexit = A.new("entry"), A.new("exit")
        lok1, lnored, lb4 = A.new("ok1"), A.new("nored"), A.new("b4")
        ls1, ls1w, l1a = A.new("s1"), A.new("s1w"), A.new("p1a")
        ls1r, ls2r, ls2ok, ls3r, ls3ok, l1r = A.new("s1r"), A.new("s2r"), A.new("s2ok"), A.new("s3r"), A.new("s3ok"), A.new("p1r")
        A("s_branch %s" % ls1)

        def SM(acc, afr, breg):
            A("v_smfmac_f32_16x16x64_bf16 %s, %s, %s, %s" % (v(acc, 4), v(afr, 4), breg, v(vIdx)))
        def MF(d, a_, b_, c_):
            A("v_mfma_f32_16x16x32_bf16 %s, %s, %s, %s" % (v(d, 4), v(a_, 4), v(b_, 4), c_))
        def fragaddr(j):
            if j == 8:
                return vL16, 8192
            return (vT0, vT1, vT2, vT2)[j & 3], (j & 4) * 1024 + (1024 if (j & 3) == 3 else 0)
        def ringrd(j, slot):
            b, o = fragaddr(j)
            A.ds("ds_read_b128 %s, %s offset:%d" % (v(RING + 4 * slot, 4), v(b), L_MEM + o), ('ring', j))
        def mbload(dst, j):
            if j == 8:
                A("buffer_load_dwordx4 %s, %s, %s, %s offen sc1" % (v(dst, 4), v(vL16), s(sWS, 4), s(sX8)))
            else:
                A("buffer_load_dwordx4 %s, %s, %s, %s offen sc1" % (v(dst, 4), v(fragaddr(j)[0]), s(sWS, 4), s(sX4 if j & 4 else sX0)))
        def check(base, n):
            A("v_max3_u32 %s, %s, %s, %s" % (v(vTmp), v(base), v(base + 1), v(base + 2)))
            for i in range(3, n - 1, 2):
                A("v_max3_u32 %s, %s, %s, %s" % (v(vTmp), v(vTmp), v(base + i), v(base + i + 1)))
            A("v_max_u32 %s, %s, %s" % (v(vTmp), v(vTmp), v(base + n - 1)))
            A("v_cmp_eq_u32 vcc, -1, %s" % v(vTmp))
        def budget(lagain, lgiveup):
            A("s_sub_u32 %s, %s, 1" % (s(sBud), s(sBud)))
            A("s_cbranch_scc0 %s" % lagain)
            A("s_mov_b32 %s, 0" % s(sBud))
            A("s_branch %s" % lgiveup)
        PLA = [12, 16, 20, 24]
        RACC, SEL = 28, 32
        def poll1_issue(PL, so=sRd, which=range(4)):
            for i in which:
                A("buffer_load_dwordx4 %s, %s, %s, %s offen offset:%d sc1" % (v(PL[i], 4), v(vL16), s(sWS, 4), s(so), 1024 * i))
        def wait_many(keys):
            idx = [i for i, t in enumerate(A.lds) if t in keys]
            if idx:
                A.wait_ds(A.lds[idx[-1]])
        def endstep():
            for ch in QK_CHAIN:
                land(ch[0])
            A("s_mov_b32 %s, %s" % (s(sT), s(sX0)))
            A("s_mov_b32 %s, %s" % (s(sX0), s(sX1)))
            A("s_mov_b32 %s, %s" % (s(sX1), s(sX2)))
            A("s_mov_b32 %s, %s" % (s(sX2), s(sT)))
        PUB = "" if "pubplain" in opt else " sc1"
        def optval(name, dflt):
            for o in opt:
                if o.startswith(name + "="):
                    return int(o.split("=")[1])
            return dflt
        LWAIT, S1DEPTH = optval("lwait", 3), optval("s1d", 2)
        sX4, sX8 = sP1, sP2
        F8 = RING + 4
        PLB = [LND, LND + 4, LND + 8, LND + 12]
        def reduce_body(PL, n_after):
            if "prog" in opt:
                A("s_waitcnt vmcnt(%d)" % (n_after + 3))
                MF(RACC, SEL, PL[0], "0")
                A("s_waitcnt vmcnt(%d)" % (n_after + 2))
                MF(RACC, SEL, PL[1], v(RACC, 4))
                A("v_bitop3_b32 %s, %s, %s, %s bitop3:0x7e" % (v(vTmp), v(PL[0]), v(PL[1]), s(sPh)))
                A("s_waitcnt vmcnt(%d)" % (n_after + 1))
                MF(RACC, SEL, PL[2], v(RACC, 4))
                A("s_waitcnt vmcnt(%d)" % n_after)
                MF(RACC, SEL, PL[3], v(RACC, 4))
                A("v_bitop3_b32 %s, %s, %s, %s bitop3:0x7e" % (v(45), v(PL[2]), v(PL[3]), s(sPh)))
                A("v_bitop3_b32 %s, %s, %s, 1 bitop3:0xa8" % (v(vTmp), v(vTmp), v(45)))
                A("v_cmp_ne_u32 vcc, 0, %s" % v(vTmp))
                return
            A("s_waitcnt vmcnt(%d)" % n_after)
            MF(RACC, SEL, PL[0], "0")
            A("v_bitop3_b32 %s, %s, %s, %s bitop3:0x7e" % (v(vTmp), v(PL[0]), v(PL[1]), s(sPh)))
            A("v_bitop3_b32 %s, %s, %s, %s bitop3:0x7e" % (v(45), v(PL[2]), v(PL[3]), s(sPh)))
            MF(RACC, SEL, PL[1], v(RACC, 4))
            A("v_bitop3_b32 %s, %s, %s, 1 bitop3:0xa8" % (v(vTmp), v(vTmp), v(45)))
            A("v_cmp_ne_u32 vcc, 0, %s" % v(vTmp))
            MF(RACC, SEL, PL[2], v(RACC, 4))
            MF(RACC, SEL, PL[3], v(RACC, 4))
        def mksel():
            for u in range(4):
                A("v_cndmask_b32 %s, 0, %s, %s" % (v(SEL + u), v(vSelV), s(sSel + 2 * u, 2)))
        def s1load(base):
            mbload(base, 0)
            mbload(base + 4, 1)
        def rotate():
            A("s_mov_b32 %s, %s" % (s(sT), s(sX0)))
            A("s_mov_b32 %s, %s" % (s(sX0), s(sX1)))
            A("s_mov_b32 %s, %s" % (s(sX1), s(sX2)))
            A("s_mov_b32 %s, %s" % (s(sX2), s(sT)))
            A("s_add_u32 %s, %s, 4096" % (s(sX4), s(sX0)))
            A("s_add_u32 %s, %s, 8192" % (s(sX8), s(sX0)))
        lgo1 = A.new("go1")
        lkvr, lkvok = A.new("kvrf"), A.new("kvok")
        if "mega" in opt:
            A.label(lkvr)
            kv_refresh(lkvok)
        A.label(lnored)
        A("s_cmp_eq_u32 %s, -1" % s(sUnit))
        A("s_cbranch_scc1 %s_n" % lnored)
        A("s_waitcnt vmcnt(%d)" % LWAIT)
        A("s_branch %s" % lgo1)
        A.label(lnored + "_n")
        rotate()
        for i in range(0, 8, 2):
            A("v_mov_b64 %s, -1" % v(RING + i, 2))
        if NDMA:
            l3 = A.new("n3l")
            A("s_cmp_lg_u32 %s, 3" % s(sW))
            A("s_cbranch_scc1 %s" % l3)
            kv_all()
            A.label(l3)
        if "noflag" in opt:
            A("s_waitcnt vmcnt(0)")
        else:
            lf = A.new("flag")
            A("v_mov_b32 %s, %d" % (v(46), L_FLAG))
            A.label(lf)
            A("ds_read_b32 %s, %s" % (v(vTmp), v(46)))
            A("s_waitcnt lgkmcnt(0)")
            A("v_cmp_eq_u32 vcc, %s, %s" % (s(sStep), v(vTmp)))
            A("s_cbranch_vccnz %s" % lb4)
            budget(lf, lb4)
        A("s_branch %s" % lb4)
        X2 = LND + 16
        def f8load():
            A("buffer_load_dword %s, %s, %s, %s offen sc1" % (v(X2 + 4), v(X2 + 5), s(sWS, 4), s(sX8)))
        def s2load():
            mbload(X2, 4)
            f8load()
        def s2check():
            A("v_max3_u32 %s, %s, %s, %s" % (v(vTmp), v(X2), v(X2 + 1), v(X2 + 2)))
            A("v_max3_u32 %s, %s, %s, %s" % (v(vTmp), v(vTmp), v(X2 + 3), v(X2 + 4)))
            A("v_cmp_eq_u32 vcc, -1, %s" % v(vTmp))
        A.label(ls2r)
        if "tt" in opt:
            A("s_add_u32 s88, s88, 1")
        s2load()
        A("s_waitcnt vmcnt(2)")
        s2check()
        A("s_cbranch_vccz %s_d" % ls2r)
        budget(ls2r, ls2r + "_d")
        A.label(ls2r + "_d")
        A("s_waitcnt vmcnt(0)")
        A("s_branch %s" % ls2ok)
        A.label(ls1)
        A("s_add_u32 %s, %s, 4096" % (s(sX4), s(sX0)))
        A("s_add_u32 %s, %s, 8192" % (s(sX8), s(sX0)))
        s1load(RING)
        A("s_waitcnt vmcnt(0)")
        A("s_branch %s" % ls1w)
        A(".p2align 6")
        A.label(ls1r)
        A("s_sub_u32 %s, %s, 1" % (s(sBud), s(sBud)))
        A("s_cbranch_scc1 %s_give" % ls1r)
        if "mask" in opt:
            A("s_mov_b64 exec, vcc")
        s1load(RING)
        if "mask" in opt:
            A("s_mov_b64 exec, -1")
        A("s_waitcnt vmcnt(%d)" % S1DEPTH)
        A.label(ls1w)
        check(RING, 8)
        A("s_cbranch_vccnz %s" % ls1r)
        A.label(lentry)
        A.lds, A.vm = [], []
        if "tt" in opt:
            lt = A.new("tt")
            A("s_cmp_lg_u32 %s, 3" % s(sStep))
            A("s_cbranch_scc1 %s" % lt)
            A("s_memtime s[92:93]")
            A.label(lt)
        if stamps and "rt" in opt:
            lq = A.new("q")
            A("s_memrealtime %s" % s(sStamp + 18, 2))
            A("s_cmp_lg_u32 %s, 41" % s(sStep))
            A("s_cbranch_scc1 %s" % lq)
            A("s_waitcnt lgkmcnt(0)")
            for i in range(10):
                A("v_writelane_b32 %s, %s, %d" % (v(vTmp), s(sStamp + 2 * i), i))
            A("s_lshl_b32 %s, %s, 2" % (s(sT), s(sCU)))
            A("s_add_u32 %s, %s, %s" % (s(sT), s(sT), s(sW)))
            A("s_lshl_b32 %s, %s, 11" % (s(sT), s(sT)))
            A("s_add_u32 %s, %s, %d" % (s(sT), s(sT), WS_DBG))
            A("buffer_store_dword %s, %s, %s, %s offen" % (v(vTmp), v(vL16), s(sWS, 4), s(sT)))
            A.label(lq)
        stamp()
        KXR = {(0, 0): LND, (0, 1): LND + 4, (0, 2): LND + 8, (0, 3): LND + 12, (1, 0): LND + 16, (1, 1): LND + 20, (1, 2): LND, (1, 3): LND + 4}
        def kxrd(tl, ks):
            A.ds("ds_read_b128 %s, %s offset:%d" % (v(KXR[(tl, ks)], 4), v(vL16), L_KX + (4 * tl + ks) * 1024), ('kx', tl, ks))
        AREG = {0: RING, 1: RING + 4, 2: RING + 8, 3: RING, 4: X2, 5: RING + 4, 6: RING + 8, 7: RING, 8: RING + 4}
        def Q(j, t):
            key = ('qk', j, t)
            SM(QK + 4 * t, AREG[j], R(WREGS[key], 8) if key in WREGS else v(LND + 8 * SLOT[key], 8))
        def VS(j, t, a_=None):
            key = ('v', j, t)
            SM(VACC + 4 * t, AREG[j] if a_ is None else a_, R(WREGS[key], 8) if key in WREGS else v(LND + 8 * SLOT[key], 8))
        L = lambda j, t, hh: land(('qk', j, t), hh)
        kd = kv_dma()
        mega = "mega" in opt
        ND = 0 if NDMA else 2
        def dma(i, tag):
            if not NDMA:
                A.vmem(kd[i], tag) if tag else A(kd[i])
        A.ds("ds_write_b128 %s, %s offset:%d" % (v(vT0), v(RING, 4), L_MEM), 'w1')
        Q(0, 0); mbload(X2, 4)
        Q(0, 1); A("v_lshrrev_b32 %s, 2, %s" % (v(X2 + 5), v(vT0)))
        Q(0, 2); f8load()
        Q(0, 3); L(2, 0, 0)
        VS(0, 0); L(2, 0, 1)
        A.wait_ds('w1')
        VS(0, 1)
        A("s_barrier")
        ringrd(2, 2)
        stamp()
        Q(1, 0); L(2, 1, 0)
        dma(0, None)
        Q(1, 1); L(2, 1, 1)
        Q(1, 2); dma(1, 'kdma')
        Q(1, 3); A("s_add_u32 %s, %s, 1" % (s(sStep), s(sStep)))
        VS(1, 0); dma(2, 'kdma')
        VS(1, 1); A("s_waitcnt vmcnt(%d)" % (2 + ND))
        ringrd(3, 0)
        A.wait_ds(('qk', 2, 1))
        Q(2, 0); L(4, 0, 0)
        Q(2, 1); L(4, 0, 1)
        Q(2, 2); L(4, 1, 0)
        Q(2, 3); L(4, 1, 1)
        VS(2, 0); dma(3, None)
        VS(2, 1)
        A.wait_ds(('ring', 3))
        Q(3, 0); A("s_waitcnt vmcnt(%d)" % ND)
        s2check()
        Q(3, 1)
        Q(3, 2)
        A("s_cbranch_vccnz %s" % ls2r)
        A.label(ls2ok)
        A.ds("ds_write_b128 %s, %s offset:%d" % (v(vT0), v(X2, 4), L_MEM + 4096), 'w2')
        Q(3, 3)
        A.ds("ds_write_b32 %s, %s offset:%d" % (v(X2 + 5), v(X2 + 4), L_MEM + 8192), 'w2')
        VS(3, 0); dma(4, 'vdma')
        VS(3, 1); dma(5, 'vdma')
        A.wait_ds(('qk', 4, 1))
        Q(4, 0); L(6, 0, 0)
        Q(4, 1)
        A("s_waitcnt vmcnt(%d) lgkmcnt(1)" % ND)
        A.vm, A.lds = A.vm[len(A.vm) - ND:], A.lds[-1:]
        A("s_barrier")
        ringrd(5, 1)
        Q(4, 2); ringrd(6, 2)
        Q(4, 3); ringrd(7, 0)
        VS(4, 0); L(6, 0, 1)
        VS(4, 1); L(6, 1, 0)
        A.wait_ds(('ring', 5))
        Q(5, 0); land(L2KEY, 0)
        Q(5, 1); land(L2KEY, 1)
        if mega:
            A("s_bitcmp1_b64 %s, %s" % (s(sRdy, 2), s(sStep)))
        Q(5, 2); L(6, 1, 1)
        A("s_mov_b32 m0, %d" % (L_SCR + 512))
        Q(5, 3); ringrd(8, 1)
        if mega:
            A("s_cbranch_scc0 %s" % lkvr)
            A.label(lkvok)
        A.wait_ds(('qk', 6, 0))
        Q(6, 0); L(7, 3, 0)
        A.wait_ds(('qk', 6, 1))
        Q(6, 1); L(7, 3, 1)
        A("v_lshlrev_b32 %s, 3, %s" % (v(vTmp), v(vL16)))
        Q(6, 2)
        if "notouch" not in opt:
            A.vmem("buffer_load_dword %s, %s, %s offen sc1 lds" % (v(vTmp), s(sWS, 4), s(sKVt)), 'touch')
        Q(6, 3); kxrd(0, 2)
        if mega:
            A("v_cndmask_b32 %s, 2.0, 0, %s" % (v(vTmp), s(sOne, 2)))
        Q(7, 0); kxrd(0, 3)
        Q(7, 1)
        if mega:
            A.vmem("buffer_store_dword %s, %s, %s, %s offen sc1" % (v(vIdx), v(vTmp), s(sWS, 4), s(sFlg)), 'flag')
        Q(7, 2); A("s_add_u32 %s, %s, %d" % (s(sKVt), s(sKVt), KVINC))
        A.wait_ds(('qk', 7, 3))
        Q(7, 3); kxrd(0, 0)
        Q(8, 0); kxrd(0, 1)
        Q(8, 1); A("s_mov_b32 %s, %s" % (s(sFlg), s(sFlgN)))
        Q(8, 2); A("v_lshrrev_b32 %s, 2, %s" % (v(vTmp), v(vL16)))
        Q(8, 3); A("s_add_u32 %s, %s, 4096" % (s(sFlgN), s(sFlgN)))
        stamp()
        VS(7, 0); A("s_cmp_eq_u32 %s, %d" % (s(sStep), nsteps))
        VS(7, 1); ringrd(5, 0)
        def fin(base):
            A("v_add_f32 %s, %s, %s" % (v(base), v(base), v(base + 1)))
            A("v_add_f32 %s, %s, %s" % (v(base + 2), v(base + 2), v(base + 3)))
            A("v_add_f32 %s, %s, %s" % (v(base + 4), v(base + 4), v(base + 5)))
            A("v_add_f32 %s, %s, %s" % (v(base + 6), v(base + 6), v(base + 7)))
            A("v_cvt_pk_bf16_f32 %s, %s, %s" % (v(base), v(base), v(base + 4)))
            A("v_cvt_pk_bf16_f32 %s, %s, %s" % (v(base + 1), v(base + 2), v(base + 6)))
        def finw(base):
            o = 8 if base == QK else 0
            A.ds("ds_write2_b32 %s, %s, %s offset0:%d offset1:%d" % (v(vFw), v(base), v(base + 1), o, o + 4), 'fw')
        def pub(reg, off):
            A.vmem("buffer_store_dword %s, %s, %s, %s offen offset:%d%s" % (v(reg), v(vTmp), s(sWS, 4), s(sKM), off, PUB), 'pub')
        fin(QK)
        fin(QK + 8)
        finw(QK)
        finw(QK + 8)
        A.wait_vm(L2KEY)
        VS(8, 1); pub(QK + 8, 0)
        VS(8, 0); kxrd(1, 0)
        VS(6, 1); kxrd(1, 1)
        VS(6, 0); pub(QK + 9, 256)
        A.wait_ds('fw')
        A("s_barrier")
        for ks in range(4):
            A.ds("ds_read_b128 %s, %s offset:%d" % (v(QK + 4 * ks, 4), v(vL16), L_F + ks * FSTR), ('f', ks))
        stamp()
        VS(5, 0, RING)
        VS(5, 1, RING)
        T1, T2, T0 = RING, RING + 4, RING + 8
        ONES, LACC, OACC = QK + 8, QK + 12, LND + 16
        def S(i, ks):
            d, a_ = ((T1, KXR[(0, ks)]), (T2, KXR[(1, ks)]), (T0, QK + 4 * ks))[i]
            MF(d, a_, QK + 4 * ks, "0" if ks == 0 else v(d, 4))
        def vfin(t, part):
            b = VACC + 4 * t
            if part == 0:
                A("v_add_f32 %s, %s, %s" % (v(b), v(b), v(b + 1)))
                A("v_add_f32 %s, %s, %s" % (v(b + 2), v(b + 2), v(b + 3)))
            else:
                A("v_cvt_pk_bf16_f32 %s, %s, %s" % (v(b), v(b), v(b + 2)))
                A("v_mov_b32 %s, 0" % v(b + 1))
        def vxrd(t):
            A.ds("ds_read_b128 %s, %s offset:%d" % (v(QK + 4 * t, 4), v(vWL), 32768 + t * 1024), 'vx')
        m1, m2 = T0 + 2, T0 + 3
        A.wait_ds(('f', 0))
        S(0, 0); A.wait_ds(('f', 1))
        S(0, 1); kxrd(1, 2)
        kxrd(1, 3)
        A.wait_ds(('f', 3))
        S(0, 2)
        S(0, 3); land(('o', 1), 0)
        land(('o', 1), 1)
        S(2, 0); vfin(0, 0)
        S(2, 1); vfin(0, 1)
        S(2, 2); vfin(1, 0)
        S(2, 3); pub(VACC, 512)
        vfin(1, 1)
        S(1, 0); vxrd(0)
        A("v_max3_f32 %s, %s, %s, %s" % (v(VACC + 2), v(T1), v(T1 + 1), v(T1 + 2)))
        S(1, 1); vxrd(1)
        A.wait_ds(('kx', 1, 3))
        S(1, 2); pub(VACC + 4, 768)
        A("v_max3_f32 %s, %s, %s, %s" % (v(m1), v(VACC + 2), v(T1 + 3), v(T0)))
        S(1, 3); land(('o', 0), 0)
        land(('o', 0), 1)
        A("s_cbranch_scc1 %s" % lexit)
        A("s_add_u32 %s, %s, %d" % (s(sKM), s(sKM), 32 * 4096))
        stamp()
        sv = [T1, T1 + 1, T1 + 2, T1 + 3, T2, T2 + 1, T2 + 2, T2 + 3, T0, T0 + 1]
        A("v_max_f32 %s, %s, %s" % (v(m1), v(m1), v(T0 + 1)))
        A("s_nop 0")
        A("v_mov_b32 %s, 0x3f803f80" % v(ONES))
        A("v_mov_b32 %s, 0x3f803f80" % v(ONES + 1))
        A("v_max3_f32 %s, %s, %s, %s" % (v(m1), v(m1), v(sv[4]), v(sv[5])))
        A("v_max3_f32 %s, %s, %s, %s" % (v(m2), v(m1), v(sv[6]), v(sv[7])))
        A("v_max3_f32 %s, %s, %s, %s" % (v(m1), v(m1), v(sv[6]), v(sv[7])))
        A("v_mov_b32 %s, 0x3f803f80" % v(ONES + 2))
        A("v_mov_b32 %s, 0x3f803f80" % v(ONES + 3))
        A("v_permlane32_swap_b32 %s, %s" % (v(m1), v(m2)))
        A("v_max_f32 %s, %s, %s" % (v(m1), v(m1), v(m2)))
        A("v_mov_b32 %s, %s" % (v(m2), v(m1)))
        A("s_nop 1")
        A("v_permlane16_swap_b32 %s, %s" % (v(m1), v(m2)))
        A("v_max_f32 %s, %s, %s" % (v(m1), v(m1), v(m2)))
        A("v_mul_f32 %s, %s, %s" % (v(m1), s(sC), v(m1)))
        for x in sv:
            A("v_fma_f32 %s, %s, %s, -%s" % (v(x), v(x), s(sC), v(m1)))
        P, Pm = T1, T0
        for x in sv[:8]:
            A("v_exp_f32 %s, %s" % (v(x), v(x)))
        A("v_cvt_pk_bf16_f32 %s, %s, %s" % (v(P), v(T1), v(T1 + 1)))
        A("v_cvt_pk_bf16_f32 %s, %s, %s" % (v(P + 1), v(T1 + 2), v(T1 + 3)))
        A("v_cvt_pk_bf16_f32 %s, %s, %s" % (v(P + 2), v(T2), v(T2 + 1)))
        A("v_cvt_pk_bf16_f32 %s, %s, %s" % (v(P + 3), v(T2 + 2), v(T2 + 3)))
        A("v_exp_f32 %s, %s" % (v(T0), v(T0)))
        A.wait_ds('vx')
        A("v_exp_f32 %s, %s" % (v(T0 + 1), v(T0 + 1)))
        MF(LACC, ONES, P, "0")
        A("v_cvt_pk_bf16_f32 %s, %s, %s" % (v(Pm), v(T0), v(T0 + 1)))
        A("v_mov_b32 %s, 0" % v(Pm + 1))
        MF(OACC, QK, P, "0")
        MF(OACC + 4, QK + 4, P, "0")
        A("v_mfma_f32_16x16x16_bf16 %s, %s, %s, %s" % (v(LACC, 4), v(ONES, 2), v(Pm, 2), v(LACC, 4)))
        for t in range(2):
            A("v_mfma_f32_16x16x16_bf16 %s, %s, %s, %s" % (v(OACC + 4 * t, 4), v(VACC + 4 * t, 2), v(Pm, 2), v(OACC + 4 * t, 4)))
        zero(12, 24)
        A("v_rcp_f32 %s, %s" % (v(vTmp), v(LACC)))
        A("v_mov_b64 %s, 0" % v(24, 2))
        for i in range(8):
            A("v_mul_f32 %s, %s, %s" % (v(OACC + i), v(OACC + i), v(vTmp)))
        OP = T2
        for i in range(4):
            A("v_cvt_pk_bf16_f32 %s, %s, %s" % (v(OP + i), v(OACC + 2 * i), v(OACC + 2 * i + 1)))
        A.ds("ds_write_b128 %s, %s" % (v(vOw), v(OP, 4)), 'ow')
        A("v_mov_b64 %s, -1" % v(36, 2))
        A("v_cndmask_b32 %s, 0, 1, %s" % (v(vTmp), s(sTagM, 2)))
        A.vmem("buffer_store_dwordx2 %s, %s, %s, %s offen%s" % (v(36, 2), v(vRst), s(sWS, 4), s(sX2), SC), 'rst')
        zero(26, 36)
        A.wait_ds('ow')
        A("s_barrier")
        OF = LND + 16
        for c2 in range(2):
            A.ds("ds_read_b128 %s, %s offset:%d" % (v(OF + 4 * c2, 4), v(vL16), L_O + c2 * 1024), ('of', c2))
        stamp()
        zero(36, 48)
        def wacc(tile):
            return 12 + 4 * tile
        def W(p, c2):
            key = ('o', 2 * p + c2)
            wait_many([('of', c2), key])
            SM(wacc(p), OF + 4 * c2, R(WREGS[key], 8) if key in WREGS else v(LND + 8 * SLOT[key], 8))
        def e1(tile):
            b = wacc(tile)
            A("v_add_f32 %s, %s, %s" % (v(b + 1), v(b), v(b + 1)))
            A("v_add_f32 %s, %s, %s" % (v(b + 3), v(b + 2), v(b + 3)))
        def e2(tile):
            b = wacc(tile)
            A("v_cvt_pk_bf16_f32 %s, %s, %s" % (v(b), v(b + 1), v(b + 3)))
            A("v_bfi_b32 %s, %s, %s, %s" % (v(b), v(vTmp), s(sPh), v(b)))
        def e3(tile):
            A("buffer_store_dword %s, %s, %s, %s offen%s" % (v(wacc(tile)), v(vPst), s(sWS, 4), s(sPt + tile), SC))
        LO = lambda n, hh: land(('o', n), hh)
        W(0, 0); LO(8, 0)
        W(0, 1); LO(8, 1)
        W(1, 0); LO(9, 0)
        W(1, 1); LO(9, 1)
        W(2, 0); A("s_add_u32 %s, %s, %d" % (s(sKV), s(sKV), KVINC))
        A("s_add_u32 %s, %s, %d" % (s(sKVv), s(sKVv), KVINC))
        e1(0)
        W(2, 1); e2(0)
        for p in range(3, 9):
            W(p, 0); e3(p - 3)
            if p == 5:
                LO(16, 0)
            e1(p - 2)
            W(p, 1)
            if p == 4:
                LO(16, 1)
            if p == 5:
                LO(17, 0)
            if p == 6:
                LO(17, 1)
            if p == 7:
                A("s_cmp_ge_u32 %s, 32" % s(sUnit))
            e2(p - 2)
        EP = optval("ep", 0)
        def wtail(early):
            if early and EP == 3:
                poll1_issue(PLA)
            e3(6)
            if early and EP == 2:
                poll1_issue(PLA)
            e1(7); e2(7); e3(7)
            if early and EP == 1:
                poll1_issue(PLA)
            e1(8); e2(8); e3(8)
            if stamps:
                A("s_memrealtime %s" % s(sStamp + 16, 2))
        if EP:
            lw = A.new("wt")
            A("s_cbranch_scc0 %s" % lw)
            wtail(False)
            A("s_branch %s" % lnored)
            A.label(lw)
            wtail(True)
        else:
            wtail(False)
            A("s_cbranch_scc1 %s" % lnored)
        def prep():
            mksel()
            rotate()
            for i in range(0, 8, 2):
                A("v_mov_b64 %s, -1" % v(RING + i, 2))
            A("v_mov_b32 %s, %d" % (v(46), L_FLAG))
            A("v_mov_b32 %s, %s" % (v(47), s(sStep)))
        l1b = A.new("p1b")
        if EP:
            if "eb2" in opt:
                prep()
                poll1_issue(PLB)
            else:
                poll1_issue(PLB)
                prep()
            reduce_body(PLA, 4 + EP)
            A("s_cbranch_vccz %s" % lok1)
            A("s_branch %s" % l1b)
        A.label(lgo1)
        poll1_issue(PLA)
        stamp()
        prep()
        poll1_issue(PLB)
        A.label(l1a)
        reduce_body(PLA, 4)
        A("s_cbranch_vccz %s" % lok1)
        A.label(l1b)
        if "tt" in opt:
            A("s_add_u32 s87, s87, 1")
        poll1_issue(PLA)
        reduce_body(PLB, 4)
        A("s_cbranch_vccz %s" % lok1)
        if "tt" in opt:
            A("s_add_u32 s87, s87, 1")
        poll1_issue(PLB)
        A("s_sub_u32 %s, %s, 1" % (s(sBud), s(sBud)))
        A("s_cbranch_scc0 %s" % l1a)
        A("s_mov_b32 %s, 0" % s(sBud))
        A.label(lok1)
        def finish(nop):
            A("s_nop %d" % nop)
            for i in range(4):
                A("v_add_f32_dpp %s, %s, %s row_ror:8 row_mask:0xf bank_mask:0xf" % (v(RACC + i), v(RACC + i), v(RACC + i)))
            A("v_cvt_pk_bf16_f32 %s, %s, %s" % (v(44), v(RACC), v(RACC + 1)))
            A("v_cvt_pk_bf16_f32 %s, %s, %s" % (v(45), v(RACC + 2), v(RACC + 3)))
            A("buffer_store_dwordx2 %s, %s, %s, %s offen%s" % (v(44, 2), v(vRst), s(sWS, 4), s(sX0), SC))
        if "lsep" in opt:
            le = A.new("efin")
            A("s_cmp_lt_u32 %s, 32" % s(sUnit))
            A("s_cbranch_scc1 %s" % le)
            s1load(RING)
            finish(0)
            A("s_waitcnt vmcnt(3)")
            for ch in QK_CHAIN:
                land(ch[0])
            zero(VACC, RING)
            A("s_xor_b32 %s, %s, 1" % (s(sPh), s(sPh)))
            if "l2nd" in opt:
                s1load(RING)
                A("s_waitcnt vmcnt(3) lgkmcnt(0)")
            else:
                A("s_waitcnt vmcnt(1) lgkmcnt(0)")
            A("s_branch %s" % ls1w)
            A.label(le)
            A("ds_write_b32 %s, %s" % (v(46), v(47)))
            finish(0)
        else:
            A("ds_write_b32 %s, %s" % (v(46), v(47)))
            finish(2)
        stamp()
        A.label(lb4)
        if "late" in opt:
            A("s_waitcnt vmcnt(1)")
        else:
            s1load(RING)
            A("s_waitcnt vmcnt(%d)" % (5 if "early1" in opt else 3))
        for ch in QK_CHAIN:
            land(ch[0])
        zero(VACC, RING)
        A("s_xor_b32 %s, %s, 1" % (s(sPh), s(sPh)))
        if "late" in opt:
            s1load(RING)
        if "first0" in opt:
            A("s_waitcnt vmcnt(0)")
        A("s_waitcnt lgkmcnt(0)")
        if stamps and "rt" not in opt:
            ldump = A.new("dump")
            A("s_cmp_eq_u32 %s, 41" % s(sStep))
            A("s_cbranch_scc1 %s" % ldump)
            A("s_cmp_eq_u32 %s, 42" % s(sStep))
            A("s_cbranch_scc0 %s" % ls1w)
            A.label(ldump)
            for i in range(10):
                A("v_writelane_b32 %s, %s, %d" % (v(vTmp), s(sStamp + 2 * i), i))
            A("v_writelane_b32 %s, %s, %d" % (v(vTmp), s(sBud), 15))
            A("s_lshl_b32 %s, %s, 2" % (s(sT), s(sCU)))
            A("s_add_u32 %s, %s, %s" % (s(sT), s(sT), s(sW)))
            A("s_lshl_b32 %s, %s, 1" % (s(sT), s(sT)))
            A("s_add_u32 %s, %s, %s" % (s(sT), s(sT), s(sStep)))
            A("s_sub_u32 %s, %s, 41" % (s(sT), s(sT)))
            A("s_lshl_b32 %s, %s, 10" % (s(sT), s(sT)))
            A("s_add_u32 %s, %s, %d" % (s(sT), s(sT), WS_DBG + (3 << 18 if "mega" in opt else 0)))
            A("buffer_store_dword %s, %s, %s, %s offen" % (v(vTmp), v(vL16), s(sWS, 4), s(sT)))
            A("s_waitcnt vmcnt(0)")
        A("s_branch %s" % ls1w)
        A.label(ls1r + "_give")
        A("s_mov_b32 %s, 0" % s(sBud))
        A("s_branch %s" % lentry)
        A.label(lexit)
        if "mega" in opt:
            A("s_waitcnt vmcnt(0)")
            A("s_barrier")
            A("v_cndmask_b32 %s, 2.0, 0, %s" % (v(vTmp), s(sOne, 2)))
            A("buffer_store_dword %s, %s, %s, %s offen sc1" % (v(vIdx), v(vTmp), s(sWS, 4), s(sFlg)))
        if "tt" in opt:
            A("s_memtime s[94:95]")
            A("s_memrealtime s[70:71]")
            A("s_waitcnt lgkmcnt(0)")
            A("s_sub_u32 s94, s94, s92")
            A("s_sub_u32 s92, s92, s90")
            A("v_writelane_b32 %s, s92, 0" % v(vTmp))
            A("v_writelane_b32 %s, s94, 1" % v(vTmp))
            A("v_writelane_b32 %s, %s, 2" % (v(vTmp), s(sBud)))
            for i in range(3):
                A("v_writelane_b32 %s, s%d, %d" % (v(vTmp), 87 + i, 3 + i))
            for i in range(4):
                A("v_writelane_b32 %s, s%d, %d" % (v(vTmp), 64 + 2 * i, 6 + i))
            A("s_lshl_b32 %s, %s, 2" % (s(sT), s(sCU)))
            A("s_add_u32 %s, %s, %s" % (s(sT), s(sT), s(sW)))
            A("s_lshl_b32 %s, %s, 10" % (s(sT), s(sT)))
            A("s_add_u32 %s, %s, %d" % (s(sT), s(sT), WS_DBG + (1 << 19)))
            A("buffer_store_dword %s, %s, %s, %s offen" % (v(vTmp), v(vL16), s(sWS, 4), s(sT)))
            if "dbgout" in opt:
                for i, o in enumerate((4, 8, 12, 20)):
                    A("v_mov_b32 %s, s%d" % (v(vTmp), 64 + 2 * i))
                    A("buffer_atomic_umax %s, off, %s, 0 offset:%d" % (v(vTmp), s(sDBG, 4), o))
        A("s_waitcnt vmcnt(0)")

    loop(" sc1" if "forcesc1" in opt else "")
    A("s_endpgm")
    A.label(lslow)
    nst[0] = 0
    loop(" sc1")
```

```python
from asmlib import *
from layout import *
import struct, math

def f32bits(x):
    return struct.unpack("<I", struct.pack("<f", x))[0]

sWS, sW1, sW2, sW3, sWO, sXS, sDBG = 4, 8, 12, 16, 20, 24, 28
sWid, sW, sSl, sRep, sSeg, sBud = 32, 33, 34, 35, 36, 37
sA0 = 38
sT = 60
sMask = 64
sSel = 80
vL16, vLane, vG, vC, vX, vTmp, vFl = 0, 1, 2, 3, 4, 5, 6
NSLOT = 9
L_SCR = 147456

TS = {'on': False, 'reg': 15}
sTsI = 98
def ts(A, idx=None):
    if not TS['on'] or (TS.get('fine') and idx is None):
        return
    A("s_memrealtime s[96:97]")
    A("s_waitcnt lgkmcnt(0)")
    A.lds = []
    if idx is None:
        A("s_mov_b32 m0, %s" % s(sTsI))
        A("s_add_u32 %s, %s, 1" % (s(sTsI), s(sTsI)))
        A("v_writelane_b32 %s, s96, m0" % v(TS['reg']))
    else:
        A("v_writelane_b32 %s, s96, %d" % (v(TS['reg']), idx))
def fs(A, idx):
    if TS.get('fine'):
        A("s_memtime s[96:97]")
        A("s_waitcnt lgkmcnt(0)")
        A.lds = []
        A("v_writelane_b32 %s, s96, %d" % (v(TS['reg']), idx))
def ts_dump(A, part):
    if not TS['on']:
        return
    A("s_lshl_b32 s96, %s, 2" % s(sWid))
    A("s_add_u32 s96, s96, %s" % s(sW))
    A("s_lshl_b32 s96, s96, 9")
    A("s_add_u32 s96, s96, %d" % (WS_DBG + part * 256))
    A("v_lshlrev_b32 %s, 2, %s" % (v(vTmp), v(vLane)))
    A("buffer_store_dword %s, %s, %s, s96 offen" % (v(TS['reg']), v(vTmp), s(sWS, 4)))
    A("s_waitcnt vmcnt(0)")
    A("s_mov_b32 %s, 0" % s(sTsI))

def build_srd(A, d, karg, nbytes):
    A("s_load_dwordx2 %s, s[0:1], %d" % (s(d, 2), karg))
    A("s_waitcnt lgkmcnt(0)")
    A("s_and_b32 %s, %s, 0xffff" % (s(d + 1), s(d + 1)))
    A("s_mov_b32 %s, %d" % (s(d + 2), nbytes))
    A("s_mov_b32 %s, 0x20000" % s(d + 3))

def wait_flags(A, voff, soff, srd=sWS, cmp_ge=None, imm=0):
    lp, ok = A.new("wf"), A.new("wfok")
    A.label(lp)
    if voff is None:
        A("buffer_load_dword %s, off, %s, %s offset:%d sc1" % (v(vTmp), s(srd, 4), soff, imm))
    else:
        A("buffer_load_dword %s, %s, %s, %s offen offset:%d sc1" % (v(vTmp), v(voff), s(srd, 4), soff, imm))
    A("s_waitcnt vmcnt(0)")
    if cmp_ge is None:
        A("v_cmp_eq_u32 vcc, 0, %s" % v(vTmp))
    else:
        A("v_cmp_gt_u32 vcc, %d, %s" % (cmp_ge, v(vTmp)))
    A("s_cbranch_vccz %s" % ok)
    A("s_sleep 2")
    A("s_sub_u32 %s, %s, 1" % (s(sBud), s(sBud)))
    A("s_cbranch_scc0 %s" % lp)
    A("s_mov_b32 %s, 0" % s(sBud))
    A.label(ok)
    A.vm = []

def wait_ready(A, soff, n):
    if TS.get('cnt') and n != 128:
        wait_flags(A, None, soff, cmp_ge=n)
    else:
        wait_flags(A, None, soff, imm=128)

def set_flag(A, soff, wave0_only=True):
    sk = A.new("sf")
    if wave0_only:
        A("s_cmp_lg_u32 %s, 0" % s(sW))
        A("s_cbranch_scc1 %s" % sk)
    A("s_mov_b64 exec, 1")
    A("v_mov_b32 %s, 1" % v(vTmp))
    A("buffer_store_dword %s, off, %s, %s sc1" % (v(vTmp), s(sWS, 4), soff))
    A("s_mov_b64 exec, -1")
    A.label(sk)

def arrive(A, soff, n, wave0_only=True):
    sk = A.new("ar")
    if wave0_only:
        A("s_cmp_lg_u32 %s, 0" % s(sW))
        A("s_cbranch_scc1 %s" % sk)
    A("s_mov_b64 exec, 1")
    A("v_mov_b32 %s, 1" % v(vTmp))
    if TS.get('cnt') and n != 128:
        A("buffer_atomic_add %s, off, %s, %s" % (v(vTmp), s(sWS, 4), soff))
        A("s_mov_b64 exec, -1")
        A.label(sk)
        return
    A("buffer_atomic_add %s, off, %s, %s sc0" % (v(vTmp), s(sWS, 4), soff))
    A("s_waitcnt vmcnt(0)")
    A("v_cmpx_eq_u32 vcc, %d, %s" % (n - 1, v(vTmp)))
    A("s_cbranch_execz %s_x" % sk)
    A("buffer_store_dword %s, off, %s, %s offset:128 sc1" % (v(vTmp), s(sWS, 4), soff))
    A.label(sk + "_x")
    A("s_mov_b64 exec, -1")
    A.label(sk)

def MF(A, d, a_, b_, c_):
    A("v_mfma_f32_16x16x32_bf16 %s, %s, %s, %s" % (d, a_, b_, c_))

sLW = 99
def stage_issue(A, chunks, c):
    srd, voff, so, _ = chunks[c]
    for j in range(4):
        A("s_add_u32 m0, %s, %d" % (s(sLW), (c % NSLOT) * 16384 + j * 1024))
        A("s_mov_b32 %s, %d" % (s(sT + 2), so[j]))
        A.vmem("buffer_load_dwordx4 %s, %s, %s offen lds" % (v(voff), s(srd, 4), s(sT + 2)), ('c', c))
def stage_start(A, chunks):
    A("s_lshl_b32 %s, %s, 12" % (s(sLW), s(sW)))
    for c in range(min(NSLOT - 1, len(chunks))):
        stage_issue(A, chunks, c)
def stage(A, chunks, started=False):
    if not started:
        stage_start(A, chunks)
    n = len(chunks)
    for c in range(n):
        A.wait_vm(('c', c))
        A("s_barrier")
        if c + NSLOT - 1 < n:
            stage_issue(A, chunks, c + NSLOT - 1)
        chunks[c][3]((c % NSLOT) * 16384)
        A.wait_ds()
    A("s_barrier")

def wide_off(A, dst, t1, rowstride, s_extra):
    A("v_lshlrev_b32 %s, 2, %s" % (v(t1), v(vG)))
    A("v_sub_u32 %s, %s, %s" % (v(t1), v(vLane), v(t1)))
    A("v_and_b32 %s, 15, %s" % (v(t1), v(t1)))
    A("v_lshlrev_b32 %s, 4, %s" % (v(t1), v(t1)))
    A("v_mul_u32_u24 %s, %d, %s" % (v(dst), rowstride, v(vG)))
    A("v_add_u32 %s, %s, %s" % (v(dst), v(dst), v(t1)))
    A("s_mul_i32 %s, %s, %d" % (s(sT + 3), s(sW), 16 * rowstride))
    A("s_add_u32 %s, %s, %s" % (s(sT + 3), s(sT + 3), s_extra))
    A("v_add_u32 %s, %s, %s" % (v(dst), s(sT + 3), v(dst)))

def wide_tr(A, dst, t1, s_col, ccmul):
    A("v_mul_u32_u24 %s, %d, %s" % (v(t1), ccmul, v(vX)))
    A("v_lshl_add_u32 %s, %s, 2, %s" % (v(t1), v(vC), v(t1)))
    A("v_add_u32 %s, %s, %s" % (v(t1), s_col, v(t1)))
    A("v_and_b32 %s, 15, %s" % (v(t1), v(t1)))
    A("v_lshlrev_b32 %s, 4, %s" % (v(t1), v(t1)))
    A("v_lshl_add_u32 %s, %s, 3, %s" % (v(dst), v(vG), v(vC)))
    A("v_lshl_add_u32 %s, %s, 8, %s" % (v(dst), v(dst), v(t1)))

def tall_off(A, dst, t1, s_extra):
    A("v_lshrrev_b32 %s, 3, %s" % (v(t1), v(vLane)))
    A("v_mul_u32_u24 %s, 1152, %s" % (v(dst), v(t1)))
    A("v_and_b32 %s, 7, %s" % (v(t1), v(vLane)))
    A("v_lshl_add_u32 %s, %s, 4, %s" % (v(dst), v(t1), v(dst)))
    A("s_mul_i32 %s, %s, %d" % (s(sT + 3), s(sW), 32 * 1152))
    A("s_add_u32 %s, %s, %s" % (s(sT + 3), s(sT + 3), s_extra))
    A("v_add_u32 %s, %s, %s" % (v(dst), s(sT + 3), v(dst)))

def tall_tr(A, dst, kbshift):
    A("v_lshl_add_u32 %s, %s, %d, %s" % (v(dst), v(vG), kbshift, v(vC)))
    A("v_lshlrev_b32 %s, 7, %s" % (v(dst), v(dst)))
    A("v_lshl_add_u32 %s, %s, 3, %s" % (v(dst), v(vX), v(dst)))
    A("s_lshl_b32 %s, %s, 5" % (s(sT + 3), s(sW)))
    A("v_add_u32 %s, %s, %s" % (v(dst), s(sT + 3), v(dst)))

def tr2(A, reg, addr, imm0, imm1):
    A.ds("ds_read_b64_tr_b16 %s, %s offset:%d" % (R(reg, 2), v(addr), imm0))
    A.ds("ds_read_b64_tr_b16 %s, %s offset:%d" % (R(reg + 2, 2), v(addr), imm1))

def x_dma(A, vXo, sSrc, sM0):
    for i in range(9):
        A("s_add_u32 m0, %s, %d" % (s(sM0), 896 * i))
        A("s_nop 0")
        A.vmem("buffer_load_dwordx4 %s, %s, %s offen offset:%d sc1 lds" % (v(vXo), s(sWS, 4), s(sSrc), 128 * i), 'x')

def gemm576(A, vXa, LAND, wreg, acc, ntile, swap, mid=None):
    def rd(ks):
        for tt in range(2):
            A.ds("ds_read_b128 %s, %s offset:%d" % (v(LAND + 8 * (ks & 1) + 4 * tt, 4), v(vXa + (ks & 1)), 18432 * tt + (ks >> 1) * 1024), ('x', ks))
    rd(0)
    for ks in range(18):
        A.wait_ds(('x', ks))
        n = 0
        for t in range(ntile):
            for tt in range(2):
                x = v(LAND + 8 * (ks & 1) + 4 * tt, 4)
                w = R(wreg(t, ks), 4)
                d = v(acc(t, tt), 4)
                if swap(t):
                    MF(A, d, x, w, "0" if ks == 0 else d)
                else:
                    MF(A, d, w, x, "0" if ks == 0 else d)
                n += 1
                if n == 1 and ks + 1 < 18:
                    rd(ks + 1)
        if mid and ks == 4:
            mid()

def wave_sum(A, r, t):
    for k in (8, 4, 2, 1):
        A("s_nop 1")
        A("v_add_f32_dpp %s, %s, %s row_ror:%d row_mask:0xf bank_mask:0xf" % (v(r), v(r), v(r), k))
    for op in ("v_permlane16_swap_b32", "v_permlane32_swap_b32"):
        A("v_mov_b32 %s, %s" % (v(t), v(r)))
        A("s_nop 1")
        A("%s %s, %s" % (op, v(r), v(t)))
        A("v_add_f32 %s, %s, %s" % (v(r), v(r), v(t)))

def rnd2(A, a, b):
    A("v_cvt_pk_bf16_f32 %s, %s, %s" % (v(b), v(a), v(b)))
    A("v_lshlrev_b32 %s, 16, %s" % (v(a), v(b)))
    A("v_and_b32 %s, 0xffff0000, %s" % (v(b), v(b)))
def rnd1(A, a):
    A("v_cvt_pk_bf16_f32 %s, %s, %s" % (v(a), v(a), v(a)))
    A("v_and_b32 %s, 0xffff0000, %s" % (v(a), v(a)))
def unpack(A, lo, hi, src):
    A("v_and_b32 %s, 0xffff0000, %s" % (v(hi), v(src))) if hi != src else None
    A("v_lshlrev_b32 %s, 16, %s" % (v(lo), v(src)))
    if hi == src:
        A("v_and_b32 %s, 0xffff0000, %s" % (v(hi), v(src)))

def row_offsets(A, vRow, vRow2, svalid, t):
    A("v_and_b32 %s, 7, %s" % (v(t), v(vLane)))
    A("v_lshlrev_b32 %s, 4, %s" % (v(vRow), v(t)))
    A("v_bfe_u32 %s, %s, 3, 1" % (v(t), v(vLane)))
    A("v_lshl_add_u32 %s, %s, 8, %s" % (v(vRow), v(t), v(vRow)))
    A("v_lshrrev_b32 %s, 1, %s" % (v(t), v(vG)))
    A("v_lshl_add_u32 %s, %s, 7, %s" % (v(vRow), v(t), v(vRow)))
    A("v_and_b32 %s, 1, %s" % (v(t), v(vG)))
    A("v_lshl_add_u32 %s, %s, 3, %s" % (v(vRow), v(t), v(vRow)))
    A("s_mov_b32 %s, 0x00ff00ff" % s(svalid))
    A("s_mov_b32 %s, 0" % s(svalid + 1))
    A("v_mov_b32 %s, 0x%x" % (v(t), OOB >> 1))
    A("v_cndmask_b32 %s, %s, %s, %s" % (v(vRow2), v(t), v(vRow), s(svalid, 2)))

def load_mod(A, dst, which, vRow, vRow2, t1, t2):
    A("v_lshlrev_b32 %s, 1, %s" % (v(t1), v(vRow)))
    A("v_lshlrev_b32 %s, 1, %s" % (v(t2), v(vRow2)))
    A("s_mov_b32 %s, %d" % (s(sT + 2), WS_MOD + which * 2304))
    for U in range(3):
        A.vmem("buffer_load_dwordx4 %s, %s, %s, %s offen offset:%d sc1" % (v(dst + 4 * U, 4), v(t1 if U < 2 else t2), s(sWS, 4), s(sT + 2), 1024 * U), 'mod')

def ln_stats(A, X, D, svalid, m, rs, t):
    A("v_add_f32 %s, %s, %s" % (v(m), v(X), v(X + 1)))
    for i in range(2, 12):
        A("v_add_f32 %s, %s, %s" % (v(m), v(m), v(X + i)))
    wave_sum(A, m, t)
    A("v_mul_f32 %s, 0x%x, %s" % (v(m), f32bits(1.0 / 576), v(m)))
    for i in range(12):
        A("v_sub_f32 %s, %s, %s" % (v(D + i), v(X + i), v(m)))
    A("v_mul_f32 %s, %s, %s" % (v(rs), v(D + 8), v(D + 8)))
    for i in range(9, 12):
        A("v_fmac_f32 %s, %s, %s" % (v(rs), v(D + i), v(D + i)))
    A("v_cndmask_b32 %s, 0, %s, %s" % (v(rs), v(rs), s(svalid, 2)))
    for i in range(8):
        A("v_fmac_f32 %s, %s, %s" % (v(rs), v(D + i), v(D + i)))
    wave_sum(A, rs, t)
    A("v_mul_f32 %s, 0x%x, %s" % (v(rs), f32bits(1.0 / 576), v(rs)))
    rnd2(A, m, rs)
    A("v_add_f32 %s, 0x%x, %s" % (v(rs), f32bits(1e-5), v(rs)))
    rnd1(A, rs)
    A("v_sqrt_f32 %s, %s" % (v(rs), v(rs)))
    A("s_nop 0")
    rnd1(A, rs)
    A("v_rcp_f32 %s, %s" % (v(rs), v(rs)))
    A("s_nop 0")

def ln_apply(A, X, m, rs, C1, SH, out):
    for i in range(12):
        A("v_sub_f32 %s, %s, %s" % (v(X + i), v(X + i), v(m)))
    for i in range(0, 12, 2):
        rnd2(A, X + i, X + i + 1)
    for i in range(12):
        A("v_mul_f32 %s, %s, %s" % (v(X + i), v(X + i), v(rs)))
    for i in range(0, 12, 2):
        rnd2(A, X + i, X + i + 1)
    for i in range(12):
        A("v_mul_f32 %s, %s, %s" % (v(X + i), v(X + i), v(C1 + i)))
    for i in range(0, 12, 2):
        rnd2(A, X + i, X + i + 1)
    for i in range(12):
        A("v_add_f32 %s, %s, %s" % (v(X + i), v(X + i), v(SH + i)))
    for i in range(6):
        A("v_cvt_pk_bf16_f32 %s, %s, %s" % (v(out + i), v(X + 2 * i), v(X + 2 * i + 1)))

def one_plus(A, C):
    for i in range(12):
        A("v_add_f32 %s, 1.0, %s" % (v(C + i), v(C + i)))
    for i in range(0, 12, 2):
        rnd2(A, C + i, C + i + 1)

def row_io(A, op, reg, vRow, vRow2, srd, soff, flags=""):
    for U in range(3):
        A.vmem("buffer_%s_dwordx2 %s, %s, %s, %s offen offset:%d%s" % (op, v(reg + 2 * U, 2), v(vRow if U < 2 else vRow2), s(srd, 4), soff, 512 * U, flags), 'row')

def sel_masks(A):
    for hi in range(2):
        for u in range(4):
            m16 = (3 << (2 * u)) << (8 * hi)
            m32 = m16 | (m16 << 16)
            A("s_mov_b32 %s, 0x%x" % (s(sSel + 8 * hi + 2 * u), m32))
            A("s_mov_b32 %s, 0x%x" % (s(sSel + 8 * hi + 2 * u + 1), m32))
def make_sel(A, dst, hi, t):
    A("v_and_b32 %s, 1, %s" % (v(t), v(vLane)))
    A("v_lshlrev_b32 %s, 4, %s" % (v(t), v(t)))
    A("v_mov_b32 %s, 0x3f80" % v(dst))
    A("v_lshlrev_b32 %s, %s, %s" % (v(t), v(t), v(dst)))
    for u in range(4):
        A("v_cndmask_b32 %s, 0, %s, %s" % (v(dst + u), v(t), s(sSel + 8 * hi + 2 * u, 2)))

def emit_worker(A, opt=()):
    A.c("=========== worker ===========")
    A("v_mov_b32 %s, v0" % v(vLane))
    A("v_lshlrev_b32 %s, 4, %s" % (v(vL16), v(vLane)))
    A("v_lshrrev_b32 %s, 4, %s" % (v(vG), v(vLane)))
    A("v_bfe_u32 %s, %s, 2, 2" % (v(vC), v(vLane)))
    A("v_and_b32 %s, 3, %s" % (v(vX), v(vLane)))
    A("s_mov_b32 %s, 400000" % s(sBud))
    TS['on'], TS['reg'], TS['fine'] = "ts" in opt, 79, "fs" in opt
    TS['cnt'] = "cnt" in opt
    ts(A, 0)
    sel_masks(A)
    build_srd(A, sXS, 0, 2359296)
    vRow, vRow2 = 7, 8
    sValid = sMask
    row_offsets(A, vRow, vRow2, sValid, vTmp)
    A("s_mul_i32 %s, %s, 9363" % (s(sSl), s(sWid)))
    A("s_lshr_b32 %s, %s, 16" % (s(sSl), s(sSl)))
    A("s_mul_i32 %s, %s, 7" % (s(sT), s(sSl)))
    A("s_sub_u32 %s, %s, %s" % (s(sRep), s(sWid), s(sT)))
    vOffW, vTr, vAd = 77, 78, 11
    A("s_lshl_b32 %s, %s, 8" % (s(sT + 1), s(sSl)))
    wide_off(A, vOffW, vTmp, 8192, s(sT + 1))
    A("s_lshr_b32 %s, %s, 1" % (s(sT + 1), s(sW)))
    A("s_lshl_b32 %s, %s, 3" % (s(sT + 1), s(sT + 1)))
    A("s_and_b32 %s, %s, 1" % (s(sT + 2), s(sW)))
    A("s_add_u32 %s, %s, %s" % (s(sT + 1), s(sT + 1), s(sT + 2)))
    wide_tr(A, vTr, vTmp, s(sT + 1), 2)
    W0 = 80
    def wq(t, ks):
        return W0 + 4 * (6 * ks + t)
    def wide_chunks(mats, rowstride, wreg, vOffW=vOffW, vTr=vTr):
        out = []
        for G in range(9):
            for m, srd in enumerate(mats):
                def consume(base, m=m, G=G):
                    A("v_add_u32 %s, %d, %s" % (v(vAd), base, v(vTr)))
                    for k2 in range(2):
                        for t in range(2):
                            tr2(A, wreg(2 * m + t, 2 * G + k2), vAd, 32 * k2 * 256 + 8 * t, (32 * k2 + 4) * 256 + 8 * t)
                out.append((srd, vOffW, [(64 * G + 4 * j) * rowstride for j in range(4)], consume))
        return out
    qchunks = wide_chunks((sW1, sW2, sW3), 8192, wq)
    lmod, lpre_done, lidle = A.new("mod"), A.new("predone"), A.new("idle")
    XR = 16
    A("s_cmp_lt_u32 %s, 3" % s(sRep))
    A("s_cbranch_scc1 %s" % lmod)
    A("s_lshl_b32 %s, %s, 2" % (s(sT), s(sSl)))
    A("s_add_u32 %s, %s, %s" % (s(sT), s(sT), s(sRep)))
    A("s_sub_u32 %s, %s, 3" % (s(sT), s(sT)))
    A("s_lshl_b32 %s, %s, 2" % (s(sT), s(sT)))
    A("s_add_u32 %s, %s, %s" % (s(sT), s(sT), s(sW)))
    A("s_mul_i32 %s, %s, %d" % (s(sA0), s(sT), 4 * 1152))
    for r in range(4):
        A("s_add_u32 %s, %s, %d" % (s(sT), s(sA0), r * 1152))
        row_io(A, "load", XR + 6 * r, vRow, vRow2, sXS, s(sT))
    stage_start(A, qchunks)
    A("s_waitcnt vmcnt(%d)" % (4 * (NSLOT - 1)))
    SH, C1, XF = 40, 52, 100
    for r in range(4):
        for i in range(6):
            unpack(A, XF + 12 * r + 2 * i, XF + 12 * r + 2 * i + 1, XR + 6 * r + i)
        ln_stats(A, XF + 12 * r, 160, sValid, 64 + 2 * r, 65 + 2 * r, 11)
    wait_flags(A, None, "0", srd=sDBG, imm=DBG_MOD)
    load_mod(A, SH, 0, vRow, vRow2, 9, 10)
    load_mod(A, C1, 1, vRow, vRow2, 9, 10)
    A("s_waitcnt vmcnt(0)")
    one_plus(A, C1)
    for r in range(4):
        ln_apply(A, XF + 12 * r, 64 + 2 * r, 65 + 2 * r, C1, SH, XR + 6 * r)
        A("s_add_u32 %s, %s, %d" % (s(sT), s(sA0), WS_H + r * 1152))
        row_io(A, "store", XR + 6 * r, vRow, vRow2, sWS, s(sT), " sc1")
    A("s_waitcnt vmcnt(0)")
    A("s_barrier")
    A("s_mov_b32 %s, %d" % (s(sT), FL_H))
    arrive(A, s(sT), 128)
    A("s_branch %s" % lpre_done)

    A.label(lmod)
    A("s_cmp_eq_u32 %s, 0" % s(sRep))
    A("s_cbranch_scc1 %s" % lidle)
    A("s_cmp_ge_u32 %s, 27" % s(sSl))
    A("s_cbranch_scc1 %s" % lidle)
    build_srd(A, sA0 + 2, 88, 1152)
    build_srd(A, sA0 + 6, 96, 3981312)
    sCs, sWm = sA0 + 2, sA0 + 6
    A("s_lshl_b32 %s, %s, 1" % (s(sA0), s(sSl)))
    A("s_add_u32 %s, %s, %s" % (s(sA0), s(sA0), s(sRep)))
    A("s_sub_u32 %s, %s, 1" % (s(sA0), s(sA0)))
    for i in range(4):
        A("v_mov_b32 %s, 0" % v(12 + i))
    A("s_lshl_b32 %s, %s, 2" % (s(sT), s(sA0)))
    A("s_add_u32 %s, %s, %s" % (s(sT), s(sT), s(sW)))
    A("s_lshl_b32 %s, %s, 11" % (s(sT), s(sT)))
    A("s_add_u32 %s, %s, %d" % (s(sT), s(sT), WS_FL))
    assert FL_END - WS_FL <= 54 * 8192
    A("buffer_store_dwordx4 %s, %s, %s, %s offen sc1" % (v(12, 4), v(vL16), s(sWS, 4), s(sT)))
    A("buffer_store_dwordx4 %s, %s, %s, %s offen offset:1024 sc1" % (v(12, 4), v(vL16), s(sWS, 4), s(sT)))
    A("v_lshrrev_b32 %s, 3, %s" % (v(9), v(vLane)))
    A("s_mul_i32 %s, %s, 144" % (s(sT), s(sW)))
    A("v_add_u32 %s, %s, %s" % (v(9), s(sT), v(9)))
    A("v_lshlrev_b32 %s, 1, %s" % (v(10), v(9)))
    A("v_mul_u32_u24 %s, 6912, %s" % (v(9), v(9)))
    A("v_and_b32 %s, 7, %s" % (v(11), v(vLane)))
    A("v_lshl_add_u32 %s, %s, 4, %s" % (v(9), v(11), v(9)))
    A("s_lshl_b32 %s, %s, 7" % (s(sT), s(sA0)))
    CV, WV, ACC = 100, 120, 200
    for i in range(18):
        A("buffer_load_ushort %s, %s, %s, 0 offen offset:%d" % (v(CV + i), v(10), s(sCs, 4), 16 * i))
    for i in range(18):
        A("s_add_u32 %s, %s, %d" % (s(sT + 1), s(sT), i * 55296))
        A("buffer_load_dwordx4 %s, %s, %s, %s offen" % (v(WV + 4 * i, 4), v(9), s(sWm, 4), s(sT + 1)))
    A("s_waitcnt vmcnt(18)")
    for i in range(18):
        c = CV + i
        A("v_lshlrev_b32 %s, 16, %s" % (v(c), v(c)))
        A("v_mul_f32 %s, 0x%x, %s" % (v(12), f32bits(-math.log2(math.e)), v(c)))
        A("v_exp_f32 %s, %s" % (v(12), v(12)))
        A("s_nop 0")
        A("v_add_f32 %s, 1.0, %s" % (v(12), v(12)))
        A("v_rcp_f32 %s, %s" % (v(12), v(12)))
        A("s_nop 0")
        A("v_mul_f32 %s, %s, %s" % (v(c), v(c), v(12)))
        rnd1(A, c)
    for j in range(8):
        A("v_mov_b32 %s, 0" % v(ACC + j))
    A("s_waitcnt vmcnt(0)")
    for i in range(18):
        for j in range(4):
            unpack(A, 12, 13, WV + 4 * i + j)
            A("v_fmac_f32 %s, %s, %s" % (v(ACC + 2 * j), v(12), v(CV + i)))
            A("v_fmac_f32 %s, %s, %s" % (v(ACC + 2 * j + 1), v(13), v(CV + i)))
    for j in range(8):
        r = ACC + j
        A("s_nop 1")
        A("v_add_f32_dpp %s, %s, %s row_ror:8 row_mask:0xf bank_mask:0xf" % (v(r), v(r), v(r)))
        for op in ("v_permlane16_swap_b32", "v_permlane32_swap_b32"):
            A("v_mov_b32 %s, %s" % (v(12), v(r)))
            A("s_nop 1")
            A("%s %s, %s" % (op, v(r), v(12)))
            A("v_add_f32 %s, %s, %s" % (v(r), v(r), v(12)))
    A("s_lshl_b32 %s, %s, 8" % (s(sT + 1), s(sW)))
    A("s_add_u32 %s, %s, %d" % (s(sT + 1), s(sT + 1), L_SCR))
    A("v_lshlrev_b32 %s, 5, %s" % (v(11), v(11)))
    A("v_add_u32 %s, %s, %s" % (v(11), s(sT + 1), v(11)))
    A("ds_write_b128 %s, %s" % (v(11), v(ACC, 4)))
    A("ds_write_b128 %s, %s offset:16" % (v(11), v(ACC + 4, 4)))
    A("s_waitcnt lgkmcnt(0)")
    A("s_barrier")
    A("v_lshlrev_b32 %s, 2, %s" % (v(10), v(vLane)))
    A("v_add_u32 %s, %d, %s" % (v(11), L_SCR, v(10)))
    for i in range(4):
        A("ds_read_b32 %s, %s offset:%d" % (v(12 + i), v(11), 256 * i))
    A("s_waitcnt lgkmcnt(0)")
    A("v_add_f32 %s, %s, %s" % (v(12), v(12), v(13)))
    A("v_add_f32 %s, %s, %s" % (v(14), v(14), v(15)))
    A("v_add_f32 %s, %s, %s" % (v(12), v(12), v(14)))
    rnd1(A, 12)
    A("s_lshl_b32 %s, %s, 8" % (s(sT), s(sA0)))
    A("s_add_u32 %s, %s, %d" % (s(sT), s(sT), WS_MOD))
    sk = A.new("modw")
    A("s_cmp_lg_u32 %s, 0" % s(sW))
    A("s_cbranch_scc1 %s" % sk)
    A("buffer_store_dword %s, %s, %s, %s offen sc1" % (v(12), v(10), s(sWS, 4), s(sT)))
    A("s_waitcnt vmcnt(0)")
    A("s_mov_b64 exec, 1")
    A("v_mov_b32 %s, 1" % v(12))
    A("buffer_atomic_add %s, off, %s, 0 offset:%d sc0" % (v(12), s(sDBG, 4), DBG_MODC))
    A("s_waitcnt vmcnt(0)")
    A("v_cmpx_eq_u32 vcc, 53, %s" % v(12))
    A("s_cbranch_execz %s_x" % sk)
    A("buffer_store_dword %s, off, %s, 0 offset:%d sc1" % (v(12), s(sDBG, 4), DBG_MOD))
    A.label(sk + "_x")
    A("s_mov_b64 exec, -1")
    A.label(sk)
    A.label(lidle)
    stage_start(A, qchunks)
    A.label(lpre_done)
    ts(A, 1)

    A.vm, A.lds = [('c', c) for c in range(NSLOT - 1) for j in range(4)], []
    stage(A, qchunks, started=True)
    ts(A, 2)
    wait_flags(A, None, "0", srd=sDBG, imm=DBG_MOD)
    ts(A, 3)
    ts(A, 4)
    if TS['on']:
        A("v_mov_b32 v15, v79")
        A("s_mov_b32 %s, 8" % s(sTsI))
        TS['reg'] = 15
    A("s_mov_b32 %s, %d" % (s(sT), FL_H))
    wait_flags(A, None, s(sT), imm=128)
    ts(A, 5)
    vXo, vXa = 9, 10
    LAND, ACC = 16, 32
    sSrc, sM0x, sQo, sKo, sFlag, sBuf = sA0, sA0 + 1, sA0 + 2, sA0 + 3, sA0 + 4, sA0 + 5
    def xsetup(vXa):
        A("v_lshrrev_b32 %s, 3, %s" % (v(vTmp), v(vLane)))
        A("v_xor_b32 %s, %s, %s" % (v(vXa), v(vTmp), v(vLane)))
        A("v_and_b32 %s, 7, %s" % (v(vXa), v(vXa)))
        A("v_mul_u32_u24 %s, 1152, %s" % (v(vXo), v(vTmp)))
        A("v_lshl_add_u32 %s, %s, 4, %s" % (v(vXo), v(vXa), v(vXo)))
        A("s_mul_i32 %s, %s, 9216" % (s(sM0x), s(sW)))
        A("v_add_u32 %s, %s, %s" % (v(vXo), s(sM0x), v(vXo)))
        A("v_and_b32 %s, 7, %s" % (v(vTmp), v(vLane)))
        A("v_xor_b32 %s, %s, %s" % (v(vXa), v(vG), v(vTmp)))
        A("v_lshlrev_b32 %s, 4, %s" % (v(vXa), v(vXa)))
        A("v_lshl_add_u32 %s, %s, 7, %s" % (v(vXa), v(vTmp), v(vXa)))
        A("v_bfe_u32 %s, %s, 3, 1" % (v(vTmp), v(vLane)))
        A("v_mul_u32_u24 %s, 9216, %s" % (v(vTmp), v(vTmp)))
        A("v_add_u32 %s, %s, %s" % (v(vXa), v(vXa), v(vTmp)))
        A("v_xor_b32 %s, 64, %s" % (v(vXa + 1), v(vXa)))
    xsetup(vXa)
    A("s_mov_b32 %s, %s" % (s(sSeg), s(sRep)))
    A("s_mul_i32 %s, %s, 36864" % (s(sSrc), s(sSeg)))
    A("s_add_u32 %s, %s, %d" % (s(sSrc), s(sSrc), WS_H))
    A("s_lshl_b32 %s, %s, 5" % (s(sT), s(sSeg)))
    A("s_add_u32 %s, %s, %s" % (s(sT), s(sT), s(sSl)))
    A("s_lshl_b32 %s, %s, 10" % (s(sT + 1), s(sW)))
    A("s_lshl_b32 %s, %s, 13" % (s(sQo), s(sT)))
    A("s_add_u32 %s, %s, %s" % (s(sQo), s(sQo), s(sT + 1)))
    A("s_add_u32 %s, %s, %d" % (s(sQo), s(sQo), WS_Q))
    A("s_lshl_b32 %s, %s, 14" % (s(sKo), s(sT)))
    A("s_add_u32 %s, %s, %s" % (s(sKo), s(sKo), s(sT + 1)))
    if WS_KV:
        A("s_add_u32 %s, %s, %d" % (s(sKo), s(sKo), WS_KV))
    A("s_mov_b32 %s, 0x%x" % (s(sFlag), OOB))
    A.vm = []
    x_dma(A, vXo, sSrc, sM0x)
    A("s_waitcnt vmcnt(0)")
    ltop, lend = A.new("qkv"), A.new("qkvend")
    A.label(ltop)
    A("s_waitcnt vmcnt(6)")
    A("s_barrier")
    ts(A)
    fs(A, 20)
    A("s_xor_b32 %s, %s, 0x10000" % (s(sM0x), s(sM0x)))
    A("s_add_u32 %s, %s, %d" % (s(sSrc), s(sSrc), 7 * 36864))
    x_dma(A, vXo, sSrc, sM0x)
    def mid():
        A("s_waitcnt vmcnt(9)")
        A("s_barrier")
        set_flag(A, s(sFlag))
    fs(A, 21)
    A.lds = []
    gemm576(A, vXa, LAND, wq, lambda t, tt: ACC + 8 * t + 4 * tt, 6, lambda t: t >= 4, mid)
    fs(A, 22)
    A("v_xor_b32 %s, 0x10000, %s" % (v(vXa), v(vXa)))
    A("v_xor_b32 %s, 0x10000, %s" % (v(vXa + 1), v(vXa + 1)))
    A("s_lshl_b32 %s, %s, 8" % (s(sFlag), s(sSl)))
    A("s_lshl_b32 %s, %s, 2" % (s(sT), s(sSeg)))
    A("s_add_u32 %s, %s, %s" % (s(sFlag), s(sFlag), s(sT)))
    A("s_add_u32 %s, %s, %d" % (s(sFlag), s(sFlag), FL_KV))
    A("s_add_u32 %s, %s, 4096" % (s(sT), s(sQo)))
    A("s_add_u32 %s, %s, 4096" % (s(sT + 1), s(sKo)))
    A("s_lshl_b32 %s, %s, 10" % (s(sT + 2), s(sW)))
    A("s_add_u32 %s, %s, %s" % (s(sT + 2), s(sT + 2), s(sKo)))
    A("s_add_u32 %s, %s, 8192" % (s(sT + 2), s(sT + 2)))
    for m in range(2):
        for tt in range(2):
            a0, a1 = ACC + 16 * m + 4 * tt, ACC + 16 * m + 8 + 4 * tt
            for x in range(4):
                A("v_cvt_pk_bf16_f32 %s, %s, %s" % (v(a0 + x), v(a0 + x), v(a1 + x)))
            so = (sQo, sT, sKo, sT + 1)[2 * m + tt]
            A("buffer_store_dwordx4 %s, %s, %s, %s offen sc1" % (v(a0, 4), v(vL16), s(sWS, 4), s(so)))
    for t in range(2):
        a0 = ACC + 32 + 8 * t
        A("v_cvt_pk_bf16_f32 %s, %s, %s" % (v(a0), v(a0), v(a0 + 1)))
        A("v_cvt_pk_bf16_f32 %s, %s, %s" % (v(a0 + 1), v(a0 + 2), v(a0 + 3)))
        A("v_cvt_pk_bf16_f32 %s, %s, %s" % (v(a0 + 2), v(a0 + 4), v(a0 + 5)))
        A("v_cvt_pk_bf16_f32 %s, %s, %s" % (v(a0 + 3), v(a0 + 6), v(a0 + 7)))
        A("buffer_store_dwordx4 %s, %s, %s, %s offen offset:%d sc1" % (v(a0, 4), v(vL16), s(sWS, 4), s(sT + 2), 1024 * t))
    fs(A, 23)
    A("s_add_u32 %s, %s, %d" % (s(sQo), s(sQo), 7 * 32 * 8192))
    A("s_add_u32 %s, %s, %d" % (s(sKo), s(sKo), 7 * 32 * 16384))
    A("s_add_u32 %s, %s, 7" % (s(sSeg), s(sSeg)))
    A("s_cmp_lt_u32 %s, 64" % s(sSeg))
    A("s_cbranch_scc1 %s" % ltop)
    A("s_waitcnt vmcnt(0)")
    A("s_barrier")
    set_flag(A, s(sFlag))
    ts(A, 6)
    ts_dump(A, 0)
    if "p1only" in opt:
        return
    lC = A.new("roleC")
    A("s_cmp_ge_u32 %s, 80" % s(sWid))
    A("s_cbranch_scc1 %s" % lC)
    lB = A.new("roleB")
    A("s_cmp_ge_u32 %s, 64" % s(sWid))
    A("s_cbranch_scc1 %s" % lB)
    emit_roleA(A, opt)
    A("s_endpgm")
    A.label(lB)
    emit_roleB(A, vRow, vRow2, sValid, opt)
    A("s_endpgm")
    A.label(lC)
    emit_roleC(A, xsetup, wide_chunks, opt)

def emit_roleA(A, opt):
    A.c("=========== role A: attention + Wo partial ===========")
    A("s_lshr_b32 %s, %s, 2" % (s(sSl), s(sWid)))
    A("s_and_b32 %s, %s, 3" % (s(sRep), s(sWid)))
    vOff, vTr, vAd = 9, 10, 11
    A("s_mul_i32 %s, %s, %d" % (s(sT + 1), s(sSl), 2 * 147456))
    tall_off(A, vOff, vTmp, s(sT + 1))
    tall_tr(A, vTr, 4)
    W0 = 224
    def wo(G, K):
        return W0 + 4 * (8 * G + K)
    chunks = []
    for hd in range(2):
        for G in range(9):
            def consume(base, hd=hd, G=G):
                A("v_add_u32 %s, %d, %s" % (v(vAd), base, v(vTr)))
                for ks in range(4):
                    r0 = 64 * (ks >> 1) + 8 * (ks & 1)
                    tr2(A, wo(G, 4 * hd + ks), vAd, r0 * 128, (r0 + 4) * 128)
            chunks.append((sWO, vOff, [hd * 147456 + 8 * j * 1152 + 128 * G for j in range(4)], consume))
    A.vm, A.lds = ['old'] * 2, []
    stage(A, chunks)
    TS['reg'] = 19
    ts(A)
    vKM, vL4, vOwr, vTw, vTrd, vPst, vPld, vNEG = 9, 10, 11, 12, 13, 14, 15, 16
    GA, SB, CB = 20, 32, 44
    SEL0, SEL1 = 56, 60
    QF, KX, VX, KM, VM = 64, 80, 112, 144, 160
    S_, OA = 176, 188
    WACC, LAND = 144, 216
    L_OT, L_PT = 0, 16384
    PSTR = 1168
    A("v_lshlrev_b32 %s, 2, %s" % (v(vL4), v(vLane)))
    A("v_lshrrev_b32 %s, 1, %s" % (v(vTmp), v(vG)))
    A("v_lshlrev_b32 %s, 10, %s" % (v(vKM), v(vTmp)))
    A("v_and_b32 %s, 1, %s" % (v(vTmp), v(vX)))
    A("v_lshl_add_u32 %s, %s, 8, %s" % (v(vKM), v(vTmp), v(vKM)))
    A("v_lshl_add_u32 %s, %s, 6, %s" % (v(vKM), v(vC), v(vKM)))
    A("v_and_b32 %s, 1, %s" % (v(vTmp), v(vG)))
    A("v_lshl_add_u32 %s, %s, 5, %s" % (v(vKM), v(vTmp), v(vKM)))
    A("s_and_b32 %s, %s, 1" % (s(sT), s(sW)))
    A("s_lshl_b32 %s, %s, 13" % (s(sT + 1), s(sT)))
    A("s_lshr_b32 %s, %s, 1" % (s(sT + 2), s(sW)))
    A("s_lshl_b32 %s, %s, 12" % (s(sT + 3), s(sT + 2)))
    A("s_add_u32 %s, %s, %s" % (s(sT + 1), s(sT + 1), s(sT + 3)))
    A("v_add_u32 %s, %s, %s" % (v(vOwr), s(sT + 1), v(vL16)))
    A("v_and_b32 %s, 15, %s" % (v(17), v(vLane)))
    A("s_lshl_b32 %s, %s, 4" % (s(sT + 1), s(sT)))
    A("v_add_u32 %s, %s, %s" % (v(17), s(sT + 1), v(17)))
    A("v_lshlrev_b32 %s, 2, %s" % (v(18), v(vG)))
    A("v_sub_u32 %s, %s, %s" % (v(17), v(17), v(18)))
    sCM = sA0 + 6
    for i in range(8):
        A("v_cmp_le_i32 %s, %d, %s" % (s(sCM + 2 * i, 2), 16 * (i >> 2) + (i & 3), v(17)))
    A("v_mov_b32 %s, 0x%x" % (v(vNEG), f32bits(-1e9)))
    A("v_and_b32 %s, 15, %s" % (v(vTmp), v(vLane)))
    A("v_mul_u32_u24 %s, %d, %s" % (v(vTw), PSTR, v(vTmp)))
    A("v_lshl_add_u32 %s, %s, 3, %s" % (v(vTw), v(vG), v(vTw)))
    A("s_lshl_b32 %s, %s, 5" % (s(sT + 1), s(sW)))
    A("s_add_u32 %s, %s, %d" % (s(sT + 1), s(sT + 1), L_PT))
    A("v_add_u32 %s, %s, %s" % (v(vTw), s(sT + 1), v(vTw)))
    A("v_lshrrev_b32 %s, 3, %s" % (v(17), v(vLane)))
    A("v_and_b32 %s, 7, %s" % (v(18), v(vLane)))
    A("v_lshlrev_b32 %s, 4, %s" % (v(18), v(18)))
    A("s_lshl_b32 %s, %s, 3" % (s(sT + 1), s(sW)))
    A("v_add_u32 %s, %s, %s" % (v(17), s(sT + 1), v(17)))
    A("v_mul_u32_u24 %s, %d, %s" % (v(vTrd), PSTR, v(17)))
    A("v_add_u32 %s, %s, %s" % (v(vTrd), v(vTrd), v(18)))
    A("v_add_u32 %s, %d, %s" % (v(vTrd), L_PT, v(vTrd)))
    A("v_mul_u32_u24 %s, 18432, %s" % (v(vPst), v(17)))
    A("v_add_u32 %s, %s, %s" % (v(vPst), v(vPst), v(18)))
    A("s_mul_i32 %s, %s, 1152" % (s(sT + 1), s(sSl)))
    A("v_add_u32 %s, %s, %s" % (v(vPst), s(sT + 1), v(vPst)))
    sHead, sSH, sPAo, sRowo = sA0, sA0 + 1, sA0 + 2, sA0 + 3
    A("s_lshl_b32 %s, %s, 1" % (s(sHead), s(sSl)))
    A("s_lshr_b32 %s, %s, 1" % (s(sT), s(sW)))
    A("s_add_u32 %s, %s, %s" % (s(sHead), s(sHead), s(sT)))
    A("s_mov_b32 %s, %s" % (s(sSeg), s(sRep)))
    A("s_lshl_b32 %s, %s, 8" % (s(sT), s(sHead)))
    A("s_add_u32 %s, %s, %d" % (s(sT), s(sT), FL_KV))
    wait_flags(A, vL4, s(sT))
    A("s_lshl_b32 %s, %s, 5" % (s(sSH), s(sSeg)))
    A("s_add_u32 %s, %s, %s" % (s(sSH), s(sSH), s(sHead)))
    def prefetch():
        A("s_lshl_b32 %s, %s, 13" % (s(sT), s(sSH)))
        A("s_and_b32 %s, %s, 1" % (s(sT + 1), s(sW)))
        A("s_lshl_b32 %s, %s, 12" % (s(sT + 1), s(sT + 1)))
        A("s_add_u32 %s, %s, %s" % (s(sT), s(sT), s(sT + 1)))
        A("s_add_u32 %s, %s, %d" % (s(sT), s(sT), WS_Q))
        for i in range(4):
            A("buffer_load_dwordx4 %s, %s, %s, %s offen offset:%d sc1" % (v(QF + 4 * i, 4), v(vL16), s(sWS, 4), s(sT), 1024 * i))
        A("s_lshl_b32 %s, %s, 14" % (s(sT), s(sSH)))
        if WS_KV:
            A("s_add_u32 %s, %s, %d" % (s(sT), s(sT), WS_KV))
        for b in range(4):
            for i in range(4):
                A("buffer_load_dwordx4 %s, %s, %s, %s offen offset:%d sc1" % (v(KX + 16 * b + 4 * i, 4), v(vL16), s(sWS, 4), s(sT), 1024 * i))
            if b < 3:
                A("s_add_u32 %s, %s, 4096" % (s(sT), s(sT)))
    prefetch()
    ltop = A.new("atop")
    A.label(ltop)
    A("s_lshl_b32 %s, %s, 7" % (s(sT), s(sSH)))
    A("s_add_u32 %s, %s, %d" % (s(sT), s(sT), FL_PUB))
    wait_flags(A, None, s(sT))
    ts(A)
    fs(A, 0)
    A("s_lshl_b32 %s, %s, 12" % (s(sT), s(sSH)))
    A("s_add_u32 %s, %s, %d" % (s(sT), s(sT), WS_KM))
    for ks in range(4):
        A("buffer_load_dwordx4 %s, %s, %s, %s offen offset:%d sc1" % (v(KM + 4 * ks, 4), v(vKM), s(sWS, 4), s(sT), (ks >> 1) * 2048 + (ks & 1) * 16))
    for T in range(8):
        A("buffer_load_dword %s, %s, %s, %s offen offset:%d sc1" % (v(VM + 2 * T), v(vL4), s(sWS, 4), s(sT), (T >> 1) * 1024 + 512 + (T & 1) * 256))
    for T in range(8):
        A("v_mov_b32 %s, 0" % v(VM + 2 * T + 1))
    T1, T2, T0 = S_, S_ + 4, S_ + 8
    for ks in range(4):
        MF(A, v(T1, 4), v(KX + 4 * ks, 4), v(QF + 4 * ks, 4), "0" if ks == 0 else v(T1, 4))
        MF(A, v(T2, 4), v(KX + 16 + 4 * ks, 4), v(QF + 4 * ks, 4), "0" if ks == 0 else v(T2, 4))
    A("s_waitcnt vmcnt(8)")
    fs(A, 1)
    for ks in range(4):
        MF(A, v(T0, 4), v(KM + 4 * ks, 4), v(QF + 4 * ks, 4), "0" if ks == 0 else v(T0, 4))
    A("s_nop 7")
    sv = [S_ + i for i in range(10)]
    for i in range(0, 10, 2):
        rnd2(A, sv[i], sv[i + 1])
    for x in sv:
        A("v_mul_f32 %s, 0x%x, %s" % (v(x), f32bits(128 ** -0.5), v(x)))
    for i in range(0, 10, 2):
        rnd2(A, sv[i], sv[i + 1])
    for i in range(8):
        A("v_cndmask_b32 %s, %s, %s, %s" % (v(sv[i]), v(vNEG), v(sv[i]), s(sCM + 2 * i, 2)))
    m1, m2 = S_ + 10, S_ + 11
    A("v_max3_f32 %s, %s, %s, %s" % (v(m1), v(sv[0]), v(sv[1]), v(sv[2])))
    for i in (3, 5, 7):
        A("v_max3_f32 %s, %s, %s, %s" % (v(m1), v(m1), v(sv[i]), v(sv[i + 1])))
    A("v_max_f32 %s, %s, %s" % (v(m1), v(m1), v(sv[9])))
    def xl(op):
        for sw in ("v_permlane32_swap_b32", "v_permlane16_swap_b32"):
            A("v_mov_b32 %s, %s" % (v(m2), v(m1)))
            A("s_nop 1")
            A("%s %s, %s" % (sw, v(m1), v(m2)))
            A("%s %s, %s, %s" % (op, v(m1), v(m1), v(m2)))
    xl("v_max_f32")
    for x in sv:
        A("v_sub_f32 %s, %s, %s" % (v(x), v(x), v(m1)))
    for x in sv:
        A("v_mul_f32 %s, 0x%x, %s" % (v(x), f32bits(math.log2(math.e)), v(x)))
    for x in sv:
        A("v_exp_f32 %s, %s" % (v(x), v(x)))
    A("v_add_f32 %s, %s, %s" % (v(m1), v(sv[0]), v(sv[1])))
    for x in sv[2:]:
        A("v_add_f32 %s, %s, %s" % (v(m1), v(m1), v(x)))
    xl("v_add_f32")
    A("v_rcp_f32 %s, %s" % (v(m1), v(m1)))
    A("s_nop 0")
    for x in sv:
        A("v_mul_f32 %s, %s, %s" % (v(x), v(x), v(m1)))
    for i in range(4):
        A("v_cvt_pk_bf16_f32 %s, %s, %s" % (v(S_ + i), v(sv[2 * i]), v(sv[2 * i + 1])))
    A("v_cvt_pk_bf16_f32 %s, %s, %s" % (v(T0), v(T0), v(T0 + 1)))
    A("v_mov_b32 %s, 0" % v(T0 + 1))
    A("s_waitcnt vmcnt(0)")
    A("s_nop 0")
    for T in range(8):
        MF(A, v(OA + 4 * T, 4), v(VX + 4 * T, 4), v(S_, 4), "0")
    for T in range(8):
        A("v_mfma_f32_16x16x16_bf16 %s, %s, %s, %s" % (v(OA + 4 * T, 4), v(VM + 2 * T, 2), v(T0, 2), v(OA + 4 * T, 4)))
    A("s_nop 1")
    A.lds = []
    for c in range(4):
        b = OA + 8 * c
        if c == 3:
            A("s_nop 0")
        for i in range(4):
            A("v_cvt_pk_bf16_f32 %s, %s, %s" % (v(b + i), v(b + 2 * i), v(b + 2 * i + 1)))
        A.ds("ds_write_b128 %s, %s offset:%d" % (v(vOwr), v(b, 4), L_OT + 1024 * c))
    fs(A, 2)
    lnp = A.new("nopf")
    A("s_add_u32 %s, %s, 128" % (s(sSH), s(sSH)))
    A("s_cmp_ge_u32 %s, 2048" % s(sSH))
    A("s_cbranch_scc1 %s" % lnp)
    prefetch()
    A.label(lnp)
    A.wait_ds()
    A("s_barrier")
    fs(A, 3)
    def rd(n):
        A.ds("ds_read_b128 %s, %s offset:%d" % (v(LAND + 4 * (n & 1), 4), v(vL16), L_OT + (n & 1) * 8192 + (n >> 1) * 1024), ('o', n))
    rd(0)
    rd(1)
    for n in range(16):
        K, tt = n >> 1, n & 1
        A.wait_ds(('o', n))
        for G in range(9):
            d = v(WACC + 8 * G + 4 * tt, 4)
            MF(A, d, R(wo(G, K), 4), v(LAND + 4 * tt, 4), "0" if K == 0 else d)
        if n + 2 < 16:
            rd(n + 2)
    fs(A, 4)
    for tt in range(2):
        for G in range(9):
            b = WACC + 8 * G + 4 * tt
            A("v_cvt_pk_bf16_f32 %s, %s, %s" % (v(b), v(b), v(b + 1)))
            A("v_cvt_pk_bf16_f32 %s, %s, %s" % (v(b + 1), v(b + 2), v(b + 3)))
            A.ds("ds_write_b64 %s, %s offset:%d" % (v(vTw), v(b, 2), tt * 16 * PSTR + 128 * G))
    A.wait_ds()
    A("s_barrier")
    fs(A, 5)
    A("s_mul_i32 %s, %s, %d" % (s(sPAo), s(sSeg), PA_SEG))
    A("s_add_u32 %s, %s, %d" % (s(sPAo), s(sPAo), WS_PA))
    for i in range(9):
        A.ds("ds_read_b128 %s, %s offset:%d" % (v(WACC + 4 * i, 4), v(vTrd), 128 * i), ('t', i))
    for i in range(9):
        A.wait_ds(('t', i))
        A("buffer_store_dwordx4 %s, %s, %s, %s offen offset:%d sc1" % (v(WACC + 4 * i, 4), v(vPst), s(sWS, 4), s(sPAo), 128 * i))
    fs(A, 6)
    A("s_waitcnt vmcnt(0)")
    A("s_barrier")
    fs(A, 7)
    A("s_lshl_b32 %s, %s, 8" % (s(sT), s(sSeg)))
    A("s_add_u32 %s, %s, %d" % (s(sT), s(sT), FL_PA))
    arrive(A, s(sT), 16)
    fs(A, 8)
    ts(A)
    A("s_add_u32 %s, %s, 4" % (s(sSeg), s(sSeg)))
    A("s_cmp_lt_u32 %s, 64" % s(sSeg))
    A("s_cbranch_scc1 %s" % ltop)
    ts_dump(A, 1)

def emit_roleB(A, vRow, vRow2, sValid, opt):
    A.c("=========== role B: reduce + residual + LN2, one row per wave ===========")
    TS['reg'] = 19
    GA, SB, CB = 20, 32, 44
    SEL0, SEL1 = 56, 60
    vPld = 15
    load_mod(A, GA, 2, vRow, vRow2, 17, 18)
    load_mod(A, SB, 3, vRow, vRow2, 17, 18)
    load_mod(A, CB, 4, vRow, vRow2, 17, 18)
    make_sel(A, SEL0, 0, vTmp)
    make_sel(A, SEL1, 1, vTmp)
    A("v_lshrrev_b32 %s, 3, %s" % (v(17), v(vLane)))
    A("v_and_b32 %s, 7, %s" % (v(18), v(vLane)))
    A("v_lshlrev_b32 %s, 4, %s" % (v(18), v(18)))
    A("v_mul_u32_u24 %s, 1152, %s" % (v(vPld), v(17)))
    A("v_add_u32 %s, %s, %s" % (v(vPld), v(vPld), v(18)))
    A("s_waitcnt vmcnt(0)")
    one_plus(A, CB)
    sRow, sRowo = sA0 + 5, sA0 + 3
    A("s_sub_u32 %s, %s, 64" % (s(sRow), s(sWid)))
    A("s_lshl_b32 %s, %s, 1" % (s(sRow), s(sRow)))
    A("s_and_b32 %s, %s, 1" % (s(sT), s(sW)))
    A("s_add_u32 %s, %s, %s" % (s(sRow), s(sRow), s(sT)))
    A("s_lshr_b32 %s, %s, 1" % (s(sSeg), s(sW)))
    A("v_and_b32 %s, 15, %s" % (v(vFl), v(vLane)))
    A("v_lshlrev_b32 %s, 2, %s" % (v(vFl), v(vFl)))
    ltop = A.new("btop")
    A.label(ltop)
    A("s_lshl_b32 %s, %s, 5" % (s(sT), s(sSeg)))
    A("s_add_u32 %s, %s, %s" % (s(sA0 + 2), s(sT), s(sRow)))
    A("s_mul_i32 %s, %s, 1152" % (s(sRowo), s(sA0 + 2)))
    XR, RD, XF, DD = 216, 176, 196, 144
    row_io(A, "load", XR, vRow, vRow2, sXS, s(sRowo))
    A("s_lshl_b32 %s, %s, 8" % (s(sT), s(sSeg)))
    A("s_add_u32 %s, %s, %d" % (s(sT), s(sT), FL_PA))
    wait_ready(A, s(sT), 16)
    ts(A)
    A("s_mul_i32 %s, %s, 18432" % (s(sT), s(sA0 + 2)))
    A("s_add_u32 %s, %s, %d" % (s(sT), s(sT), WS_PA))
    A("s_add_u32 %s, %s, 9216" % (s(sT + 1), s(sT)))
    LD = 64
    A.vm = []
    for i in range(9):
        for h in range(2):
            A.vmem("buffer_load_dwordx4 %s, %s, %s, %s offen offset:%d sc1" % (v(LD + 8 * i + 4 * h, 4), v(vPld), s(sWS, 4), s(sT + h), 128 * i), ('p', i))
    for i in range(9):
        A.wait_vm(('p', i))
        d = v(RD + 4 * (i >> 1), 4)
        sel = v(SEL1 if i & 1 else SEL0, 4)
        MF(A, d, sel, v(LD + 8 * i, 4), "0" if not (i & 1) else d)
        MF(A, d, sel, v(LD + 8 * i + 4, 4), d)
    for i in range(4):
        A("v_mov_b32 %s, 0" % v(XF + 8 + i))
    A("s_nop 3")
    for T in range(5):
        for jj in range(4):
            A("v_add_f32_dpp %s, %s, %s row_ror:8 row_mask:0xf bank_mask:0x%x" % (v(XF + 4 * (T >> 1) + jj), v(RD + 4 * T + jj), v(RD + 4 * T + jj), 0xc if T & 1 else 0x3))
    for i in range(0, 12, 2):
        rnd2(A, XF + i, XF + i + 1)
    for i in range(12):
        A("v_mul_f32 %s, %s, %s" % (v(XF + i), v(XF + i), v(GA + i)))
    for i in range(0, 12, 2):
        rnd2(A, XF + i, XF + i + 1)
    for i in range(6):
        unpack(A, DD, DD + 1, XR + i)
        A("v_add_f32 %s, %s, %s" % (v(XF + 2 * i), v(XF + 2 * i), v(DD)))
        A("v_add_f32 %s, %s, %s" % (v(XF + 2 * i + 1), v(XF + 2 * i + 1), v(DD + 1)))
        A("v_cvt_pk_bf16_f32 %s, %s, %s" % (v(XR + i), v(XF + 2 * i), v(XF + 2 * i + 1)))
        unpack(A, XF + 2 * i, XF + 2 * i + 1, XR + i)
    A("s_add_u32 %s, %s, %d" % (s(sT), s(sRowo), WS_X1))
    row_io(A, "store", XR, vRow, vRow2, sWS, s(sT), " sc1")
    ln_stats(A, XF, DD, sValid, 160, 161, 162)
    ln_apply(A, XF, 160, 161, CB, SB, 164)
    A("s_add_u32 %s, %s, %d" % (s(sT), s(sRowo), WS_H2))
    row_io(A, "store", 164, vRow, vRow2, sWS, s(sT), " sc1")
    A("s_waitcnt vmcnt(0)")
    A("s_lshl_b32 %s, %s, 8" % (s(sT), s(sSeg)))
    A("s_add_u32 %s, %s, %d" % (s(sT), s(sT), FL_H2))
    arrive(A, s(sT), 32, wave0_only=False)
    ts(A)
    A("s_add_u32 %s, %s, 2" % (s(sSeg), s(sSeg)))
    A("s_cmp_lt_u32 %s, 64" % s(sSeg))
    A("s_cbranch_scc1 %s" % ltop)
    ts_dump(A, 1)

def emit_roleC(A, xsetup, wide_chunks, opt):
    A.c("=========== role C: gate/up + down partial + output ===========")
    A("s_sub_u32 %s, %s, 80" % (s(sT), s(sWid)))
    A("s_lshr_b32 %s, %s, 2" % (s(sSl), s(sT)))
    A("s_and_b32 %s, %s, 3" % (s(sRep), s(sT)))
    build_srd(A, sW1, 64, 5308416)
    build_srd(A, sW2, 72, 5308416)
    build_srd(A, sW3, 80, 5308416)
    build_srd(A, sWO, 104, 2359296)
    vOffW, vTr, vAd, vOffD, vTrD = 9, 10, 11, 12, 13
    A("s_lshl_b32 %s, %s, 8" % (s(sT + 1), s(sSl)))
    wide_off(A, vOffW, vTmp, 9216, s(sT + 1))
    A("s_lshl_b32 %s, %s, 2" % (s(sT + 1), s(sW)))
    wide_tr(A, vTr, vTmp, s(sT + 1), 1)
    A("s_mul_i32 %s, %s, 147456" % (s(sT + 1), s(sSl)))
    tall_off(A, vOffD, vTmp, s(sT + 1))
    tall_tr(A, vTrD, 3)
    W0 = 80
    def wg(t, ks):
        return W0 + 4 * (4 * ks + t)
    def wd(G, ks):
        return W0 + 288 + 4 * (4 * G + ks)
    chunks = wide_chunks((sW1, sW2), 9216, wg, vOffW, vTr)
    for G in range(9):
        def consume(base, G=G):
            A("v_add_u32 %s, %d, %s" % (v(vAd), base, v(vTrD)))
            for ks in range(4):
                tr2(A, wd(G, ks), vAd, 32 * ks * 128, (32 * ks + 4) * 128)
        chunks.append((sW3, vOffD, [8 * j * 1152 + 128 * G for j in range(4)], consume))
    A.vm, A.lds = ['old'] * 2, []
    stage(A, chunks)
    vXo = 9
    sSrc, sM0x = sA0, sA0 + 1
    vXa = 7
    xsetup(vXa)
    vHw, vRl, vOo = 6, 2, 3
    LAND, ACC, PK = 10, 26, 62
    L_HH = 40960
    A("s_lshl_b32 %s, %s, 10" % (s(sT), s(sW)))
    A("s_add_u32 %s, %s, %d" % (s(sT), s(sT), L_HH))
    A("v_add_u32 %s, %s, %s" % (v(vHw), s(sT), v(vL16)))
    A("v_and_b32 %s, 15, %s" % (v(vTmp), v(vLane)))
    A("v_lshlrev_b32 %s, 4, %s" % (v(vTmp), v(vTmp)))
    A("v_lshl_add_u32 %s, %s, 10, %s" % (v(vRl), v(vG), v(vTmp)))
    A("s_lshl_b32 %s, %s, 8" % (s(sT), s(sW)))
    A("v_add_u32 %s, %s, %s" % (v(vRl), s(sT), v(vRl)))
    A("v_mul_u32_u24 %s, 1152, %s" % (v(vOo), v(vLane)))
    A("s_lshl_b32 %s, %s, 5" % (s(sT), s(sSl)))
    A("s_lshl_b32 %s, %s, 3" % (s(sT + 1), s(sW)))
    A("s_add_u32 %s, %s, %s" % (s(sT), s(sT), s(sT + 1)))
    A("v_add_u32 %s, %s, %s" % (v(vOo), s(sT), v(vOo)))
    A("v_mov_b32 %s, 0x%x" % (v(vTmp), OOB))
    A("v_cmp_gt_u32 vcc, 32, %s" % v(vLane))
    A("s_nop 1")
    A("v_cndmask_b32 %s, %s, %s, vcc" % (v(vOo), v(vTmp), v(vOo)))
    A("s_lshl_b32 %s, %s, 1" % (s(sT), s(sT)))
    A("s_add_u32 %s, %s, %d" % (s(sT), s(sT), WS_MOD + 5 * 2304))
    A("buffer_load_dwordx4 %s, off, %s, %s sc1" % (v(ACC, 4), s(sWS, 4), s(sT)))
    A("s_waitcnt vmcnt(0)")
    sGB = sA0 + 8
    for i in range(4):
        A("v_readfirstlane_b32 %s, %s" % (s(sGB + i), v(ACC + i)))
    A("s_mov_b32 %s, %s" % (s(sSeg), s(sRep)))
    sPCo, sFl = sA0 + 2, sA0 + 3
    TS['reg'] = 4
    sPrev = sA0 + 5
    def reduce_out():
        A("s_mul_i32 %s, %s, 36864" % (s(sA0 + 6), s(sPrev)))
        A("s_add_u32 %s, %s, %d" % (s(sT), s(sA0 + 6), WS_X1))
        A("buffer_load_dwordx2 %s, %s, %s, %s offen sc1" % (v(LAND + 8, 2), v(vOo), s(sWS, 4), s(sT)))
        make_sel(A, LAND, 0, vTmp)
        A("s_lshl_b32 %s, %s, 8" % (s(sFl), s(sPrev)))
        A("s_add_u32 %s, %s, %d" % (s(sFl), s(sFl), FL_PC))
        wait_ready(A, s(sFl), 36)
        ts(A)
        A("s_mul_i32 %s, %s, %d" % (s(sT), s(sSl), 36 * 1024))
        A("s_add_u32 %s, %s, %s" % (s(sT), s(sT), s(sPCo)))
        A.vm = []
        for i in range(9):
            A.vmem("buffer_load_dwordx4 %s, %s, %s, %s offen sc1" % (v(ACC + 4 * i, 4), v(vRl), s(sWS, 4), s(sT)), ('p', i))
            if i < 8:
                A("s_add_u32 %s, %s, 4096" % (s(sT), s(sT)))
    def reduce_fin():
        D = LAND + 4
        for i in range(9):
            A.wait_vm(('p', i))
            MF(A, v(D, 4), v(LAND, 4), v(ACC + 4 * i, 4), "0" if i == 0 else v(D, 4))
        unpack(A, LAND + 10, LAND + 11, LAND + 8)
        unpack(A, LAND + 12, LAND + 13, LAND + 9)
        A("s_nop 3")
        rnd2(A, D, D + 1)
        rnd2(A, D + 2, D + 3)
        for i in range(4):
            A("v_mul_f32 %s, %s, %s" % (v(D + i), s(sGB + i), v(D + i)))
        rnd2(A, D, D + 1)
        rnd2(A, D + 2, D + 3)
        for i in range(4):
            A("v_add_f32 %s, %s, %s" % (v(D + i), v(D + i), v(LAND + 10 + i)))
        A("v_cvt_pk_bf16_f32 %s, %s, %s" % (v(D), v(D), v(D + 1)))
        A("v_cvt_pk_bf16_f32 %s, %s, %s" % (v(D + 1), v(D + 2), v(D + 3)))
        A("buffer_store_dwordx2 %s, %s, %s, %s offen%s" % (v(D, 2), v(vOo), s(sWO, 4), s(sA0 + 6), " sc1" if "outsc1" in opt else " nt" if "outnt" in opt else ""))
        ts(A)
    ltop, lfirst = A.new("ctop"), A.new("cfirst")
    def h2wait():
        A("s_lshl_b32 %s, %s, 8" % (s(sT), s(sSeg)))
        A("s_add_u32 %s, %s, %d" % (s(sT), s(sT), FL_H2))
        wait_ready(A, s(sT), 32)
        ts(A)
        fs(A, 0)
        A("s_mul_i32 %s, %s, 36864" % (s(sSrc), s(sSeg)))
        A("s_add_u32 %s, %s, %d" % (s(sSrc), s(sSrc), WS_H2))
        x_dma(A, vXo, sSrc, sM0x)
    A.label(ltop)
    h2wait()
    fs(A, 1)
    A("s_waitcnt vmcnt(0)")
    A("s_barrier")
    fs(A, 2)
    A.lds = []
    gemm576(A, vXa, LAND, wg, lambda t, tt: ACC + 8 * t + 4 * tt, 4, lambda t: False)
    fs(A, 3)
    A("s_nop 5")
    for tt in range(2):
        for t in range(2):
            g_, u_ = ACC + 8 * t + 4 * tt, ACC + 16 + 8 * t + 4 * tt
            for jj in range(4):
                rnd2(A, g_ + jj, u_ + jj)
                A("v_mul_f32 %s, %s, %s" % (v(g_ + jj), v(g_ + jj), v(u_ + jj)))
            A("v_cvt_pk_bf16_f32 %s, %s, %s" % (v(LAND + 4 * tt + 2 * t), v(g_), v(g_ + 1)))
            A("v_cvt_pk_bf16_f32 %s, %s, %s" % (v(LAND + 4 * tt + 2 * t + 1), v(g_ + 2), v(g_ + 3)))
        A.ds("ds_write_b128 %s, %s offset:%d" % (v(vHw), v(LAND + 4 * tt, 4), 4096 * tt))
    A.wait_ds()
    A("s_barrier")
    fs(A, 4)
    A("s_mul_i32 %s, %s, %d" % (s(sA0 + 4), s(sSeg), PC_SEG))
    A("s_add_u32 %s, %s, %d" % (s(sA0 + 4), s(sA0 + 4), WS_PC))
    A("s_mul_i32 %s, %s, 36" % (s(sT), s(sW)))
    A("s_add_u32 %s, %s, %s" % (s(sT), s(sT), s(sSl)))
    A("s_lshl_b32 %s, %s, 10" % (s(sT), s(sT)))
    A("s_add_u32 %s, %s, %s" % (s(sT), s(sT), s(sA0 + 4)))
    for tt in range(2):
        for ks in range(4):
            A.ds("ds_read_b128 %s, %s offset:%d" % (v(LAND + 4 * ks, 4), v(vL16), L_HH + 4096 * tt + 1024 * ks), ('h', ks))
        for ks in range(4):
            A.wait_ds(('h', ks))
            for G in range(9):
                d = v(ACC + 4 * G, 4)
                MF(A, d, R(wd(G, ks), 4), v(LAND + 4 * ks, 4), "0" if ks == 0 else d)
        for G in range(9):
            b = ACC + 4 * G
            if tt == 0:
                A("v_cvt_pk_bf16_f32 %s, %s, %s" % (v(PK + 2 * G), v(b), v(b + 1)))
                A("v_cvt_pk_bf16_f32 %s, %s, %s" % (v(PK + 2 * G + 1), v(b + 2), v(b + 3)))
            else:
                A("v_cvt_pk_bf16_f32 %s, %s, %s" % (v(b + 3), v(b + 2), v(b + 3)))
                A("v_cvt_pk_bf16_f32 %s, %s, %s" % (v(b + 2), v(b), v(b + 1)))
                A("v_mov_b64 %s, %s" % (v(b, 2), v(PK + 2 * G, 2)))
                A("buffer_store_dwordx4 %s, %s, %s, %s offen sc1" % (v(b, 4), v(vL16), s(sWS, 4), s(sT)))
                if G < 8:
                    A("s_add_u32 %s, %s, %d" % (s(sT), s(sT), 4 * 36 * 1024))
    fs(A, 5)
    A("s_waitcnt vmcnt(0)")
    A("s_barrier")
    fs(A, 6)
    A("s_lshl_b32 %s, %s, 8" % (s(sT), s(sSeg)))
    A("s_add_u32 %s, %s, %d" % (s(sT), s(sT), FL_PC))
    arrive(A, s(sT), 36)
    fs(A, 7)
    ts(A)
    A("s_cmp_lt_u32 %s, 4" % s(sSeg))
    A("s_cbranch_scc1 %s" % lfirst)
    reduce_out()
    reduce_fin()
    A.label(lfirst)
    A("s_mov_b32 %s, %s" % (s(sPrev), s(sSeg)))
    A("s_mov_b32 %s, %s" % (s(sPCo), s(sA0 + 4)))
    A("s_add_u32 %s, %s, 4" % (s(sSeg), s(sSeg)))
    A("s_cmp_lt_u32 %s, 64" % s(sSeg))
    A("s_cbranch_scc1 %s" % ltop)
    reduce_out()
    reduce_fin()
    if "dbgout" in opt:
        A("s_memrealtime s[96:97]")
        A("s_waitcnt lgkmcnt(0)")
        A("s_mov_b64 exec, 1")
        A("v_mov_b32 %s, s96" % v(vTmp))
        A("buffer_atomic_umax %s, off, %s, 0 offset:24" % (v(vTmp), s(sDBG, 4)))
    ts_dump(A, 1)
```

```python
import sys
from asmlib import *
from layout import *
import team, worker
from gen_rec import kd

NAME = "adaLN_cond__memory_aug_recurrent_mem_tr__glu_gated_bilinear__prompt_kernel"
HDR = open("adaLN_cond__memory_aug_recurrent_mem_tr__glu_gated_bilinear__prompt.s.ref").read().split("; Override launch")[0]

def main(opt):
    A = Asm()
    as_list = "list" in opt
    A.lines.append(HDR.rstrip())
    if as_list:
        A.lines.append("; @launch kernel=%s grid=(256,1,1) block=(256,1,1) lds=163840" % NAME)
    else:
        A.lines.append("; @launch grid=(256,1,1) block=(256,1,1) lds=163840")
    A.lines.append('.amdgcn_target "amdgcn-amd-amdhsa--gfx950"')
    A.lines.append(".text\n.globl %s\n.p2align 8\n.type %s,@function" % (NAME, NAME))
    A.label(NAME)
    A("s_cmp_ge_u32 s2, 256")
    A("s_cbranch_scc1 L_end")
    if "empty" in opt:
        A("s_endpgm")
    T = team
    if "dbgout" in opt:
        A("s_memrealtime s[96:97]")
    bufs = [(T.sWS, 120, WS_BYTES), (T.sWQ, 16, 4718592), (T.sWK, 24, 4718592), (T.sWV, 32, 4718592), (T.sWO, 40, 4718592), (T.sM0, 8, 9216), (T.sDBG, 112, 256)]
    for d, o, n in bufs:
        A("s_load_dwordx2 %s, s[0:1], %d" % (s(d, 2), o))
    A("s_getreg_b32 s3, hwreg(HW_REG_XCC_ID)")
    A("s_and_b32 s3, s3, 15")
    A("v_lshrrev_b32 v1, 6, v0")
    A("v_and_b32 v0, 63, v0")
    A("v_readfirstlane_b32 %s, v1" % s(T.sW))
    A("s_waitcnt lgkmcnt(0)")
    for d, o, n in bufs:
        A("s_and_b32 %s, %s, 0xffff" % (s(d + 1), s(d + 1)))
        A("s_mov_b32 %s, %d" % (s(d + 2), n))
        A("s_mov_b32 %s, 0x20000" % s(d + 3))
    A("v_mov_b32 v2, 0")
    A("s_cmp_lg_u32 %s, 0" % s(T.sW))
    A("s_cbranch_scc1 L_norank")
    if "dbgout" in opt:
        A("s_cmp_lg_u32 s2, 0")
        A("s_cbranch_scc1 L_nod")
        A("v_mov_b32 v1, s96")
        A("buffer_store_dword v1, off, %s, 0 offset:28 sc1" % s(T.sDBG, 4))
        A.label("L_nod")
    if "fakexcc" in opt:
        A("s_lshr_b32 s60, s2, 5")
    else:
        A("s_and_b32 s60, s3, 7")
    A("s_mov_b32 s62, 8")
    A("s_mov_b64 exec, 1")
    A.label("L_claim")
    A("s_lshl_b32 s61, s60, 5")
    A("v_mov_b32 v1, 1")
    A("buffer_atomic_add v1, off, %s, s61 offset:%d sc0" % (s(T.sDBG, 4), DBG_XCC))
    A("s_waitcnt vmcnt(0)")
    A("v_readfirstlane_b32 s61, v1")
    A("s_nop 3")
    A("s_cmp_lt_u32 s61, 32")
    A("s_cbranch_scc1 L_got")
    A("s_add_u32 s60, s60, 1")
    A("s_and_b32 s60, s60, 7")
    A("s_sub_u32 s62, s62, 1")
    A("s_cmp_lg_u32 s62, 0")
    A("s_cbranch_scc1 L_claim")
    A("s_mov_b32 s60, 8")
    A.label("L_got")
    A("s_lshl_b32 s60, s60, 5")
    A("s_add_u32 s60, s60, s61")
    A("v_mov_b32 v1, s60")
    A("ds_write_b32 v2, v1")
    A("s_mov_b64 exec, -1")
    A.label("L_norank")
    A("s_waitcnt lgkmcnt(0)")
    A("s_barrier")
    A("ds_read_b32 v1, v2")
    A("s_waitcnt lgkmcnt(0)")
    A("v_readfirstlane_b32 %s, v1" % s(T.sCU))
    A("s_barrier")
    A("s_cmp_ge_u32 %s, 256" % s(T.sCU))
    A("s_cbranch_scc1 L_end")
    A("s_cmp_ge_u32 %s, 32" % s(T.sCU))
    A("s_cbranch_scc1 L_worker")
    def kv_wait0(A):
        for (voff, soff, srd, ge, imm) in ((None, "0", T.sDBG, None, DBG_MOD),):
            lp, ok = A.new("tw"), A.new("twok")
            A.label(lp)
            if voff is None:
                A("buffer_load_dword %s, off, %s, 0 offset:%d sc1" % (v(T.vTmp), s(srd, 4), imm))
            else:
                A("buffer_load_dword %s, v12, %s, %s offen sc1" % (v(T.vTmp), s(srd, 4), soff))
            A("s_waitcnt vmcnt(0)")
            if ge:
                A("v_cmp_gt_u32 vcc, %d, %s" % (ge, v(T.vTmp)))
            else:
                A("v_cmp_eq_u32 vcc, 0, %s" % v(T.vTmp))
            A("s_cbranch_vccz %s" % ok)
            A("s_sleep 2")
            A("s_sub_u32 %s, %s, 1" % (s(T.sBud), s(T.sBud)))
            A("s_cbranch_scc0 %s" % lp)
            A("s_mov_b32 %s, 0" % s(T.sBud))
            A.label(ok)
    if "p1only" not in opt:
        team.emit_team(A, stamps="stamps" in opt, hooks={'kv_wait0': kv_wait0}, opt=list(opt) + ["mega", "prog", "mask", "qf", "oex", "f8l"])
    A("s_endpgm")
    A.label("L_worker")
    A("s_sub_u32 %s, %s, 32" % (s(worker.sWid), s(T.sCU)))
    worker.emit_worker(A, list(opt) + ["ann", "cx1"])
    A.label("L_end")
    A("s_endpgm")
    return A.text() + kd(NAME)

if __name__ == "__main__":
    open(sys.argv[1], "w").write(main(sys.argv[2:]))
```

```python
from asmlib import *
from layout import *
import struct, math

L_MEM, L_KX, L_F, L_O, L_SCR, L_W = 0, 9216, 17408, 21632, 23680, 24576
FSTR = 1056
L_FLAG = L_SCR + 892
L_WSTRIDE = 34816
vL16, vIdx, vWL, vFw, vOw, vPst, vRst, vSelV, vT0, vT1, vT2, vTmp = range(12)
VACC, QK, RING, LND = 12, 20, 36, 48
WREG0 = 72
KVSTEP = 32 * 16384
NSPILL = 17
sWS, sWQ, sWK, sWV, sWO, sM0, sDBG = 4, 8, 12, 16, 20, 24, 28
sCU, sW, sWC, sUnit, sStep, sBud = 32, 33, 34, 35, 36, 37
sP0, sP1, sP2, sRd, sX0, sX1, sX2, sKV, sKM, sPh, sWF, sC, sVX, sKXm = range(38, 52)
sL2a, sKVv, sKVt = 96, 97, 98
sPt = 8
sTagM = 100
sFlg, sFlgN, sOne, sKF, sRdy, sRdE = 17, 18, 20, 19, 22, 24
sSel = 52
sT = 60
sStamp = 64

def f32bits(x):
    return struct.unpack("<I", struct.pack("<f", x))[0]

WO_ORDER = [0, 1, 2, 3, 4, 5, 6, 7, 8]
QK_CHAIN = [[('qk', 0, 1), ('qk', 2, 0), ('qk', 4, 0), ('qk', 6, 0), ('qk', 7, 3)],
            [('qk', 0, 2), ('qk', 2, 1), ('qk', 4, 1), ('qk', 6, 1)],
            [('qk', 0, 0), ('v', 8, 1)]]
def GOF(j, w):
    if j == 8:
        return 8
    o = 2 * (1 - (w >> 1))
    return (j & 4) + (w, w ^ 1, o, o + 1)[j & 3]
WO_CHAIN = [[('o', 0), ('o', 8), ('o', 16)], [('o', 1), ('o', 9), ('o', 17)]]
L2KEY = ('v', 8, 1)
def placement():
    spill, regs, slot, nxt = {}, {}, {}, {}
    nonreg = []
    for chains in (QK_CHAIN, WO_CHAIN):
        for si, ch in enumerate(chains):
            for i, k in enumerate(ch):
                slot[k] = si
                nxt[k] = ch[i + 1] if i + 1 < len(ch) else None
                if k != L2KEY:
                    nonreg.append(k)
    nonreg.append(L2KEY)
    assert len(nonreg) == NSPILL
    for i, k in enumerate(nonreg):
        spill[k] = i
    allk = [('qk', j, t) for j in range(9) for t in range(4)] + [('v', j, t) for j in range(9) for t in range(2)] + \
           [('o', n) for n in range(18)]
    r = WREG0
    for k in allk:
        if k not in spill:
            regs[k] = r
            r += 8
    assert r == 512, r
    return spill, regs, slot, nxt
SPILL, WREGS, SLOT, NXT = placement()

def emit_team(A, stamps=False, nsteps=64, sc="", hooks=None, opt=()):
    nst = [0]
    def stamp():
        if stamps:
            if "rt" in opt and nst[0] in (2, 4):
                pass
            else:
                A("%s %s" % ("s_memrealtime" if "rt" in opt else "s_memtime", s(sStamp + 2 * nst[0], 2)))
            nst[0] += 1
    SC = " sc1"
    lane = 71
    t1, t2, t3, t4, t5, t6 = 64, 65, 66, 67, 68, 69
    vOffW, vOffO, vTrQK, vTrV, vTrO, vAd, vTr8, vAd2 = 56, 57, 58, 59, 60, 61, 62, 63
    vColQK, vColV = 54, 55
    A.c("=========== team setup ===========")
    if "tt" in opt:
        A("s_memtime s[90:91]")
        A("s_memrealtime s[64:65]")
        A("s_mov_b32 s87, 0")
        A("s_mov_b32 s88, 0")
        A("s_mov_b32 s89, 0")
    A("v_mov_b32 %s, v0" % v(lane))
    A("v_lshrrev_b32 %s, 4, %s" % (v(t2), v(lane)))
    A("v_lshlrev_b32 %s, 2, %s" % (v(t1), v(t2)))
    A("v_sub_u32 %s, %s, %s" % (v(t1), v(lane), v(t1)))
    A("v_and_b32 %s, 15, %s" % (v(t1), v(t1)))
    A("v_lshlrev_b32 %s, 4, %s" % (v(t1), v(t1)))
    A("v_lshl_add_u32 %s, %s, 13, %s" % (v(vOffW), v(t2), v(t1)))
    A("s_lshl_b32 %s, %s, 8" % (s(sT + 2), s(sCU)))
    A("s_lshl_b32 %s, %s, 17" % (s(sT + 3), s(sW)))
    A("s_add_u32 %s, %s, %s" % (s(sT + 2), s(sT + 2), s(sT + 3)))
    A("v_add_u32 %s, %s, %s" % (v(vOffW), s(sT + 2), v(vOffW)))
    A("v_lshrrev_b32 %s, 3, %s" % (v(t1), v(lane)))
    A("v_mul_u32_u24 %s, 1152, %s" % (v(vOffO), v(t1)))
    A("v_and_b32 %s, 7, %s" % (v(t1), v(lane)))
    A("v_lshl_add_u32 %s, %s, 4, %s" % (v(vOffO), v(t1), v(vOffO)))
    A("s_mul_i32 %s, %s, 147456" % (s(sT + 2), s(sCU)))
    A("s_mul_i32 %s, %s, %d" % (s(sT + 3), s(sW), 32 * 1152))
    A("s_add_u32 %s, %s, %s" % (s(sT + 2), s(sT + 2), s(sT + 3)))
    A("v_add_u32 %s, %s, %s" % (v(vOffO), s(sT + 2), v(vOffO)))
    sLW = 99
    RING0 = L_W + 14336
    A("s_mul_i32 %s, %s, %d" % (s(sLW), s(sW), L_WSTRIDE))
    chunks = [(3, G) for G in range(9)] + [(m, G) for G in range(9) for m in range(2)] + [(2, G) for G in (4, 5, 6, 7, 8, 0, 1, 2, 3)]
    VLAST = (1, 2, 3)
    NSLOT = 5
    NT = " nt" if "nt" in opt else ""
    def issue_chunk(c):
        m, G = chunks[c]
        slot = c % NSLOT
        for j in range(4):
            A("s_add_u32 m0, %s, %d" % (s(sLW), RING0 + slot * 4096 + j * 1024))
            if m < 3:
                A("s_mov_b32 %s, %d" % (s(sT + 2), (64 * G + 4 * j) * 8192))
                A.vmem("buffer_load_dwordx4 %s, %s, %s offen%s lds" % (v(vOffW), s((sWQ, sWK, sWV)[m], 4), s(sT + 2), NT), ('c', c))
            else:
                A("s_mov_b32 %s, %d" % (s(sT + 2), 8 * j * 1152 + 128 * G))
                A.vmem("buffer_load_dwordx4 %s, %s, %s offen%s lds" % (v(vOffO), s(sWO, 4), s(sT + 2), NT), ('c', c))
    A.vm, A.lds = [], []
    for c in range(NSLOT - 1):
        issue_chunk(c)
    A("s_lshl_b32 %s, %s, 5" % (s(sT), s(sW)))
    A("s_add_u32 %s, %s, %s" % (s(sUnit), s(sT), s(sCU)))
    A("s_cmp_lt_u32 %s, 72" % s(sUnit))
    A("s_cselect_b32 %s, %s, -1" % (s(sUnit), s(sUnit)))
    A("v_lshlrev_b32 %s, 4, %s" % (v(vL16), v(lane)))
    A("v_and_b32 %s, 1, %s" % (v(t1), v(lane)))
    A("v_mul_u32_u24 %s, 0xaaaa, %s" % (v(t1), v(t1)))
    A("v_add_u32 %s, 0x4444, %s" % (v(vIdx), v(t1)))
    A("s_mul_i32 %s, %s, %d" % (s(sT), s(sW), L_WSTRIDE))
    A("s_add_u32 %s, %s, %d" % (s(sT), s(sT), L_W))
    A("v_add_u32 %s, %s, %s" % (v(vWL), s(sT), v(vL16)))
    A("s_add_u32 %s, %s, 32768" % (s(sVX), s(sT)))
    A("s_lshl_b32 %s, %s, 11" % (s(sKXm), s(sW)))
    A("s_add_u32 %s, %s, %d" % (s(sKXm), s(sKXm), L_KX))
    A("v_lshrrev_b32 %s, 4, %s" % (v(t2), v(lane)))
    A("v_bfe_u32 %s, %s, 2, 2" % (v(t3), v(lane)))
    A("v_and_b32 %s, 3, %s" % (v(t4), v(lane)))
    A("v_and_b32 %s, 1, %s" % (v(t1), v(t3)))
    A("v_mul_u32_u24 %s, %d, %s" % (v(vFw), FSTR, v(t1)))
    A("v_lshrrev_b32 %s, 1, %s" % (v(t1), v(t3)))
    A("v_lshl_add_u32 %s, %s, 8, %s" % (v(vFw), v(t1), v(vFw)))
    A("v_lshl_add_u32 %s, %s, 6, %s" % (v(vFw), v(t2), v(vFw)))
    A("v_lshl_add_u32 %s, %s, 2, %s" % (v(vFw), v(t4), v(vFw)))
    A("s_lshr_b32 %s, %s, 1" % (s(sT), s(sW)))
    A("s_and_b32 %s, %s, 1" % (s(sT + 1), s(sW)))
    A("s_mul_i32 %s, %s, %d" % (s(sT + 2), s(sT), 2 * FSTR))
    A("s_lshl_b32 %s, %s, 9" % (s(sT + 3), s(sT + 1)))
    A("s_add_u32 %s, %s, %s" % (s(sT + 2), s(sT + 2), s(sT + 3)))
    A("s_add_u32 %s, %s, %d" % (s(sT + 2), s(sT + 2), L_F))
    A("v_add_u32 %s, %s, %s" % (v(vFw), s(sT + 2), v(vFw)))
    A("v_and_b32 %s, 1, %s" % (v(t1), v(t4)))
    A("v_lshl_add_u32 %s, %s, 1, %s" % (v(t1), v(t3), v(t1)))
    A("v_lshlrev_b32 %s, 5, %s" % (v(t5), v(t1)))
    A("v_lshl_add_u32 %s, %s, 8, %s" % (v(t5), v(t2), v(t5)))
    A("s_lshl_b32 %s, %s, 10" % (s(sT + 2), s(sT)))
    A("s_lshl_b32 %s, %s, 4" % (s(sT + 3), s(sT + 1)))
    A("s_add_u32 %s, %s, %s" % (s(sT + 2), s(sT + 2), s(sT + 3)))
    A("s_add_u32 %s, %s, %d" % (s(sT + 2), s(sT + 2), L_O))
    A("v_add_u32 %s, %s, %s" % (v(t5), s(sT + 2), v(t5)))
    A("v_lshl_add_u32 %s, %s, 3, %s" % (v(t6), v(t2), v(t1)))
    A("v_lshlrev_b32 %s, 4, %s" % (v(t6), v(t6)))
    A("v_add_u32 %s, %d, %s" % (v(t6), L_SCR, v(t6)))
    A("v_cmp_le_u32 vcc, 2, %s" % v(t4))
    A("s_nop 1")
    A("v_cndmask_b32 %s, %s, %s, vcc" % (v(vOw), v(t6), v(t5)))
    A("v_lshrrev_b32 %s, 5, %s" % (v(t1), v(lane)))
    A("v_lshlrev_b32 %s, 12, %s" % (v(vPst), v(t1)))
    A("v_and_b32 %s, 31, %s" % (v(t1), v(lane)))
    A("v_lshl_add_u32 %s, %s, 2, %s" % (v(vPst), v(t1), v(vPst)))
    A("v_lshlrev_b32 %s, 6, %s" % (v(t5), v(t3)))
    A("v_lshl_add_u32 %s, %s, 3, %s" % (v(t5), v(t4), v(t5)))
    A("v_lshl_add_u32 %s, %s, 5, %s" % (v(t5), v(t2), v(t5)))
    A("s_lshl_b32 %s, %s, 7" % (s(sT + 2), s(sUnit)))
    A("s_and_b32 %s, %s, 0x3fff" % (s(sT + 2), s(sT + 2)))
    A("v_add_u32 %s, %s, %s" % (v(t5), s(sT + 2), v(t5)))
    A("v_and_b32 %s, 0x28, %s" % (v(t1), v(lane)))
    A("v_mov_b32 %s, 0x%x" % (v(t6), OOB))
    A("v_cmp_eq_u32 vcc, 0, %s" % v(t1))
    A("s_nop 1")
    A("v_cndmask_b32 %s, %s, %s, vcc" % (v(vRst), v(t6), v(t5)))
    A("s_mov_b32 %s, 0x11111111" % s(sTagM))
    A("s_mov_b32 %s, 0x11111111" % s(sTagM + 1))
    A("v_and_b32 %s, 1, %s" % (v(t1), v(t3)))
    A("v_lshlrev_b32 %s, 4, %s" % (v(t1), v(t1)))
    A("v_mov_b32 %s, 0x3f80" % v(t5))
    A("v_lshlrev_b32 %s, %s, %s" % (v(vSelV), v(t1), v(t5)))
    for u in range(4):
        m16 = (1 << u) | (1 << (u + 4))
        m32 = m16 | (m16 << 16)
        A("s_mov_b32 %s, 0x%x" % (s(sSel + 2 * u), m32))
        A("s_mov_b32 %s, 0x%x" % (s(sSel + 2 * u + 1), m32))
    A("s_lshl_b32 %s, %s, 10" % (s(sT + 2), s(sW)))
    A("v_add_u32 %s, %s, %s" % (v(vT0), s(sT + 2), v(vL16)))
    A("v_xor_b32 %s, 0x400, %s" % (v(vT1), v(vT0)))
    A("s_and_b32 %s, %s, 0x800" % (s(sT + 2), s(sT + 2)))
    A("s_xor_b32 %s, %s, 0x800" % (s(sT + 2), s(sT + 2)))
    A("v_add_u32 %s, %s, %s" % (v(vT2), s(sT + 2), v(vL16)))
    A("s_mov_b32 %s, 0" % s(sStep))
    A("s_mov_b32 %s, 0" % s(sPh))
    A("s_mov_b32 %s, 200000" % s(sBud))
    A("s_lshl_b32 %s, %s, 7" % (s(sT + 3), s(sCU)))
    A("s_add_u32 %s, %s, %d" % (s(sT + 3), s(sT + 3), WS_PB))
    A("s_lshl_b32 %s, %s, 13" % (s(sT + 2), s(sW)))
    A("s_add_u32 %s, %s, %s" % (s(sP0), s(sT + 2), s(sT + 3)))
    A("s_lshl_b32 %s, %s, 12" % (s(sT + 2), s(sUnit)))
    A("s_add_u32 %s, %s, %d" % (s(sRd), s(sT + 2), WS_PB))
    A("s_cmp_eq_u32 %s, -1" % s(sUnit))
    A("s_cselect_b32 %s, 0x%x, %s" % (s(sRd), OOB, s(sRd)))
    A("s_cselect_b32 %s, 0x%x, 0" % (s(sT + 2), OOB))
    A("v_or_b32 %s, %s, %s" % (v(vRst), s(sT + 2), v(vRst)))
    for i, r in enumerate((sX0, sX1, sX2)):
        A("s_mov_b32 %s, %d" % (s(r), WS_MBX + i * MBX_STRIDE))
    A("s_lshl_b32 %s, %s, 14" % (s(sKV), s(sCU)))
    A("s_lshl_b32 %s, %s, 11" % (s(sT + 2), s(sW)))
    A("s_add_u32 %s, %s, %s" % (s(sKV), s(sKV), s(sT + 2)))
    A("s_add_u32 %s, %s, %d" % (s(sKVv), s(sKV), WS_KV + 8192))
    A("s_lshl_b32 %s, %s, 14" % (s(sKVt), s(sCU)))
    A("s_and_b32 %s, %s, 1" % (s(sT + 2), s(sW)))
    A("s_lshl_b32 %s, %s, 13" % (s(sT + 2), s(sT + 2)))
    A("s_add_u32 %s, %s, %s" % (s(sKVt), s(sKVt), s(sT + 2)))
    A("s_add_u32 %s, %s, %d" % (s(sKVt), s(sKVt), WS_KV + 1 * KVSTEP))
    A("s_cmp_lt_u32 %s, 2" % s(sW))
    A("s_cselect_b32 %s, 0x%x, %s" % (s(sKVt), OOB, s(sKVt)))
    if WS_KV:
        A("s_add_u32 %s, %s, %d" % (s(sKV), s(sKV), WS_KV))
    A("s_lshl_b32 %s, %s, 12" % (s(sKM), s(sCU)))
    A("s_lshl_b32 %s, %s, 10" % (s(sT + 2), s(sW)))
    A("s_add_u32 %s, %s, %s" % (s(sKM), s(sKM), s(sT + 2)))
    A("s_add_u32 %s, %s, %d" % (s(sKM), s(sKM), WS_KM))
    A("s_lshl_b32 %s, %s, 2" % (s(sT + 2), s(sCU)))
    A("s_add_u32 %s, %s, %s" % (s(sT + 2), s(sT + 2), s(sW)))
    A("s_mul_i32 %s, %s, %d" % (s(sWF), s(sT + 2), 18 * 2048))
    A("s_add_u32 %s, %s, %d" % (s(sWF), s(sWF), WS_WF))
    A("s_add_u32 %s, %s, %d" % (s(sL2a), s(sWF), 16 * 2048))
    A("s_mov_b32 %s, 0x%x" % (s(sC), f32bits(128 ** -0.5 * math.log2(math.e))))

    A("s_lshl_b32 %s, %s, 2" % (s(sT + 2), s(sW)))
    A("v_add_u32 %s, %s, %s" % (v(vColQK), s(sT + 2), v(t4)))
    A("s_lshl_b32 %s, %s, 3" % (s(sT + 2), s(sT)))
    A("s_add_u32 %s, %s, %s" % (s(sT + 2), s(sT + 2), s(sT + 1)))
    A("v_lshl_add_u32 %s, %s, 1, %s" % (v(vColV), v(t4), s(sT + 2)))
    A("v_and_b32 %s, 1, %s" % (v(t5), v(t2)))
    A("v_lshlrev_b32 %s, 2, %s" % (v(t5), v(t5)))
    A("v_lshrrev_b32 %s, 1, %s" % (v(t6), v(t3)))
    A("v_lshl_add_u32 %s, %s, 3, %s" % (v(t5), v(t6), v(t5)))
    A("v_and_b32 %s, 1, %s" % (v(t6), v(t3)))
    A("v_add_u32 %s, %s, %s" % (v(t5), v(t5), v(t6)))
    A("v_lshrrev_b32 %s, 1, %s" % (v(t1), v(t2)))
    A("v_lshl_add_u32 %s, %s, 4, %s" % (v(vTrO), v(t1), v(t5)))
    A("v_lshlrev_b32 %s, 7, %s" % (v(vTrO), v(vTrO)))
    A("v_lshl_add_u32 %s, %s, 3, %s" % (v(vTrO), v(t4), v(vTrO)))
    A("s_lshl_b32 %s, %s, 5" % (s(sT + 2), s(sW)))
    A("s_add_u32 %s, %s, %d" % (s(sT + 2), s(sT + 2), RING0))
    A("v_add_u32 %s, %s, %s" % (v(vTrO), s(sT + 2), v(vTrO)))
    A("v_mul_u32_u24 %s, %d, %s" % (v(t1), L_WSTRIDE, v(t1)))
    A("v_lshl_add_u32 %s, %s, 8, %s" % (v(t1), v(t5), v(t1)))
    A("v_add_u32 %s, %d, %s" % (v(t1), RING0, v(t1)))
    for col in (vColQK, vColV):
        A("v_lshl_add_u32 %s, %s, 2, %s" % (v(col), v(t6), v(col)))
        A("v_and_b32 %s, 15, %s" % (v(col), v(col)))
        A("v_lshl_add_u32 %s, %s, 4, %s" % (v(col), v(col), v(t1)))
    AD = [58, 59, 61, 62]
    def addr_wo():
        for i in range(4):
            A("v_add_u32 %s, %d, %s" % (v(AD[i]), i * L_WSTRIDE, v(vTrO)))
    def addr_wide(col):
        A("v_mov_b32 %s, %s" % (v(AD[0]), v(col)))
        A("v_xor_b32 %s, 0x80, %s" % (v(AD[1]), v(col)))
        A("v_add_u32 %s, %d, %s" % (v(AD[2]), 2 * L_WSTRIDE, v(AD[0])))
        A("v_add_u32 %s, %d, %s" % (v(AD[3]), 2 * L_WSTRIDE, v(AD[1])))
    TMPF = [12, 20]
    tmpi = [0]
    park = {}
    def get_frag(key, addrs, imms):
        out = None
        if key in WREGS:
            r = WREGS[key]
        elif SPILL[key] in park:
            r = park[SPILL[key]]
        else:
            r = TMPF[tmpi[0] % 2]
            tmpi[0] += 1
            out = (r, SPILL[key])
        for q in range(4):
            A.ds("ds_read_b64_tr_b16 %s, %s offset:%d" % (R(r + 2 * q, 2), v(addrs[q]), imms[q]))
        return out
    def put(r, idx):
        if idx < 16:
            for hh in range(2):
                A.ds("ds_write_b128 %s, %s offset:%d" % (v(vWL), R(r + 4 * hh, 4), idx * 2048 + hh * 1024))
        else:
            for hh in range(2):
                A.vmem("buffer_store_dwordx4 %s, %s, %s, %s offen offset:%d" % (v(r + 4 * hh, 4), v(vL16), s(sWS, 4), s(sL2a), 1024 * hh), 'sp')

    A("v_lshl_add_u32 %s, %s, 1, %s" % (v(t5), v(t3), v(t2)))
    A("v_mul_u32_u24 %s, 1152, %s" % (v(t5), v(t5)))
    A("v_lshl_add_u32 %s, %s, 3, %s" % (v(t5), v(t4), v(t5)))
    A("s_and_b32 %s, %s, 1" % (s(sT + 2), s(sUnit)))
    A("s_mul_i32 %s, %s, 4608" % (s(sT + 2), s(sT + 2)))
    A("s_bfe_u32 %s, %s, 0x60001" % (s(sT + 3), s(sUnit)))
    A("s_lshl_b32 %s, %s, 5" % (s(sT + 3), s(sT + 3)))
    A("s_add_u32 %s, %s, %s" % (s(sT + 2), s(sT + 2), s(sT + 3)))
    A.vmem("buffer_load_dwordx2 %s, %s, %s, %s offen" % (v(52, 2), v(t5), s(sM0, 4), s(sT + 2)), 'm0')
    for i in range(4):
        A("v_mov_b32 %s, -1" % v(64 + i))
    for i in range(4):
        A.vmem("buffer_store_dwordx4 %s, %s, %s, %s offen offset:%d%s" % (v(64, 4), v(vL16), s(sWS, 4), s(sRd), 1024 * i, SC), 'mb')
    for so in (sX1, sX2):
        A.vmem("buffer_store_dwordx2 %s, %s, %s, %s offen%s" % (v(64, 2), v(vRst), s(sWS, 4), s(so), SC), 'mb')
    vm0 = list(A.vm)
    ljoin = A.new("initjoin")
    lcls = [A.new("cls%d" % i) for i in range(4)]
    for i in (1, 2, 3):
        A("s_cmp_eq_u32 %s, %d" % (s(sW), i))
        A("s_cbranch_scc1 %s" % lcls[i])
    for wc in range(4):
        A.label(lcls[wc])
        A.vm, A.lds = list(vm0), []
        tmpi[0] = 0
        pos = [GOF(jj, wc) for jj in range(9)]
        park.clear()
        park.update({15: 28, 7: 36, 8: 44})
        for i, G in enumerate(VLAST):
            for t in range(2):
                park[9 + 2 * i + t] = WREGS[('v', pos.index(G), t)]
        flush = {32: (9, 10), 33: (11, 12), 34: (13, 14), 35: (15,)}
        for c in range(36):
            m, G = chunks[c]
            if c == 0:
                addr_wo()
            if c == 9:
                addr_wide(vColQK)
            if c == 27:
                addr_wide(vColV)
            A.wait_vm(('c', c))
            A("s_barrier")
            if c + NSLOT - 1 < 36:
                issue_chunk(c + NSLOT - 1)
            if c == NSLOT:
                A.vmem("buffer_store_dwordx2 %s, %s, %s, %s offen%s" % (v(52, 2), v(vRst), s(sWS, 4), s(sX0), SC), 'mb')
            if c == 20 and wc == 0:
                A("s_mov_b64 exec, 1")
                A("s_lshl_b32 %s, 1, s3" % s(sT + 2))
                A("s_lshl_b32 %s, %s, 8" % (s(sT + 2), s(sT + 2)))
                A("v_mov_b32 %s, %s" % (v(52), s(sT + 2)))
                A("v_mov_b32 %s, 1" % v(53))
                A.vmem("buffer_atomic_or %s, off, %s, 0 offset:%d" % (v(52), s(sDBG, 4), DBG_TEAM), 'at')
                A.vmem("buffer_atomic_add %s, off, %s, 0 offset:%d" % (v(53), s(sDBG, 4), DBG_TEAM), 'at')
                A("s_mov_b64 exec, -1")
            for idx in flush.get(c, ()):
                put(park[idx], idx)
            so = (c % NSLOT) * 4096
            sp = []
            if m == 3:
                for c2 in range(2):
                    sp.append(get_frag(('o', 2 * G + c2), [AD[2 * c2 + (q >> 1)] for q in range(4)], [so + 2 * (q & 1) * 128 for q in range(4)]))
            else:
                j = pos.index(G)
                for t in range(2):
                    key = ('qk', j, 2 * m + t) if m < 2 else ('v', j, t)
                    sp.append(get_frag(key, AD, [so + 2 * (q & 1) * 256 + 8 * t for q in range(4)]))
            A.wait_ds()
            for x in sp:
                if x:
                    put(*x)
        A("s_barrier")
        put(park[7], 7)
        put(park[8], 8)
        if wc < 3:
            A("s_branch %s" % ljoin)
    A.label(ljoin)
    for G in range(9):
        A("s_add_u32 %s, %s, %d" % (s(sPt + G), s(sP0), G * 32768))
    A("s_mov_b32 %s, 0x%x" % (s(sFlg), OOB))
    A("s_lshl_b32 %s, %s, 7" % (s(sFlgN), s(sCU)))
    A("s_add_u32 %s, %s, %d" % (s(sFlgN), s(sFlgN), FL_PUB))
    A("s_cmp_eq_u32 %s, 3" % s(sW))
    A("s_cselect_b32 %s, %s, 0x%x" % (s(sFlgN), s(sFlgN), OOB))
    A("s_mov_b64 %s, 1" % s(sOne, 2))
    A("s_cmp_lt_u32 %s, 32" % s(sUnit))
    A("s_cselect_b32 %s, %s, 0x%x" % (s(sRdE), s(sRd), OOB))
    A("s_lshl_b32 %s, %s, 8" % (s(sKF), s(sCU)))
    A("s_add_u32 %s, %s, %d" % (s(sKF), s(sKF), FL_KV))
    A("s_waitcnt vmcnt(0) lgkmcnt(0)")
    A.vm, A.lds = [], []

    def kv_dma():
        return ["s_mov_b32 m0, %s" % s(sKXm),
                "buffer_load_dwordx4 %s, %s, %s offen sc1 lds" % (v(vL16), s(sWS, 4), s(sKV)),
                "buffer_load_dwordx4 %s, %s, %s offen offset:1024 sc1 lds" % (v(vL16), s(sWS, 4), s(sKV)),
                "s_mov_b32 m0, %s" % s(sVX),
                "buffer_load_dwordx4 %s, %s, %s offen sc1 lds" % (v(vL16), s(sWS, 4), s(sKVv)),
                "buffer_load_dwordx4 %s, %s, %s offen offset:1024 sc1 lds" % (v(vL16), s(sWS, 4), s(sKVv))]
    def land(key, half=None):
        sp = SPILL[key]
        for hh in ((0, 1) if half is None else (half,)):
            if sp < 16:
                A.ds("ds_read_b128 %s, %s offset:%d" % (v(LND + 8 * SLOT[key] + 4 * hh, 4), v(vWL), sp * 2048 + 1024 * hh), key)
            else:
                A.vmem("buffer_load_dwordx4 %s, %s, %s, %s offen offset:%d" % (v(LND + 8 * SLOT[key] + 4 * hh, 4), v(vL16), s(sWS, 4), s(sL2a), 1024 * hh), key)
    def zero(lo, hi):
        for r in range(lo, hi, 2):
            A("v_mov_b64 %s, 0" % v(r, 2))
    KVINC = 0 if "samekv" in opt else KVSTEP
    NDMA = "ndma" in opt
    def kv_all():
        for i in range(2):
            A("s_mov_b32 m0, %d" % (L_KX + 4096 * i))
            A("s_add_u32 %s, %s, %d" % (s(sT + 2), s(sKV), 4096 * i))
            for j in range(4):
                A("buffer_load_dwordx4 %s, %s, %s offen offset:%d sc1 lds" % (v(vL16), s(sWS, 4), s(sT + 2), 1024 * j))
        for i in range(4):
            A("s_mov_b32 m0, %d" % (L_W + i * L_WSTRIDE + 32768))
            A("s_add_u32 %s, %s, %d" % (s(sT + 2), s(sKV), 8192 + 2048 * i))
            for j in range(2):
                A("buffer_load_dwordx4 %s, %s, %s offen offset:%d sc1 lds" % (v(vL16), s(sWS, 4), s(sT + 2), 1024 * j))
    def kv_refresh(lback):
        lp = A.new("kvr")
        A.label(lp)
        A("v_lshrrev_b32 %s, 2, %s" % (v(vTmp), v(vL16)))
        A("buffer_load_dword %s, %s, %s, %s offen sc1" % (v(vTmp), v(vTmp), s(sWS, 4), s(sKF)))
        A("s_waitcnt vmcnt(0)")
        A("v_cmp_ne_u32 %s, 0, %s" % (s(sRdy, 2), v(vTmp)))
        A("s_nop 3")
        A("s_bitcmp1_b64 %s, %s" % (s(sRdy, 2), s(sStep)))
        A("s_cbranch_scc1 %s" % lback)
        A("s_sub_u32 %s, %s, 1" % (s(sBud), s(sBud)))
        A("s_cbranch_scc0 %s" % lp)
        A("s_mov_b32 %s, 0" % s(sBud))
        A("s_branch %s" % lback)
    if "tt" in opt:
        A("s_memrealtime s[66:67]")
    if hooks and 'kv_wait0' in hooks:
        hooks['kv_wait0'](A)
        l0 = A.new("kv0")
        kv_refresh(l0)
        A.label(l0)
    if "tt" in opt:
        A("s_memrealtime s[68:69]")
    if NDMA:
        l3 = A.new("n3")
        A("s_lshl_b32 %s, %s, 14" % (s(sKV), s(sCU)))
        if WS_KV:
            A("s_add_u32 %s, %s, %d" % (s(sKV), s(sKV), WS_KV))
        A("s_add_u32 %s, %s, %d" % (s(sKVt), s(sKVt), KVSTEP))
        A("s_barrier")
        A("s_cmp_lg_u32 %s, 3" % s(sW))
        A("s_cbranch_scc1 %s" % l3)
        kv_all()
        A.label(l3)
    A("s_waitcnt vmcnt(0)")
    for ch in QK_CHAIN:
        land(ch[0])
    zero(VACC, RING)
    lp, lo = A.new("tb"), A.new("tbok")
    A.label(lp)
    A("buffer_load_dword %s, off, %s, 0 offset:%d sc1" % (v(vTmp), s(sDBG, 4), DBG_TEAM))
    A("s_waitcnt vmcnt(0)")
    A("v_readfirstlane_b32 %s, %s" % (s(sT), v(vTmp)))
    A("s_nop 3")
    A("s_bitcmp1_b32 %s, 5" % s(sT))
    A("s_cbranch_scc1 %s" % lo)
    A("s_sub_u32 %s, %s, 1" % (s(sBud), s(sBud)))
    A("s_cbranch_scc0 %s" % lp)
    A("s_mov_b32 %s, 0" % s(sBud))
    A.label(lo)
    A("s_waitcnt lgkmcnt(0)")
    A("s_lshr_b32 %s, %s, 8" % (s(sT), s(sT)))
    A("s_bcnt1_i32_b32 %s, %s" % (s(sT), s(sT)))
    lslow = A.new("slow")
    A("s_cmp_lg_u32 %s, 1" % s(sT))
    A("s_cbranch_scc1 %s" % lslow)
    def loop(SC):
        lentry, lexit = A.new("entry"), A.new("exit")
        lok1, lnored, lb4 = A.new("ok1"), A.new("nored"), A.new("b4")
        ls1, ls1w, l1a = A.new("s1"), A.new("s1w"), A.new("p1a")
        ls1r, ls2r, ls2ok, ls3r, ls3ok, l1r = A.new("s1r"), A.new("s2r"), A.new("s2ok"), A.new("s3r"), A.new("s3ok"), A.new("p1r")
        A("s_branch %s" % ls1)

        def SM(acc, afr, breg):
            A("v_smfmac_f32_16x16x64_bf16 %s, %s, %s, %s" % (v(acc, 4), v(afr, 4), breg, v(vIdx)))
        def MF(d, a_, b_, c_):
            A("v_mfma_f32_16x16x32_bf16 %s, %s, %s, %s" % (v(d, 4), v(a_, 4), v(b_, 4), c_))
        def fragaddr(j):
            if j == 8:
                return vL16, 8192
            return (vT0, vT1, vT2, vT2)[j & 3], (j & 4) * 1024 + (1024 if (j & 3) == 3 else 0)
        def ringrd(j, slot):
            b, o = fragaddr(j)
            A.ds("ds_read_b128 %s, %s offset:%d" % (v(RING + 4 * slot, 4), v(b), L_MEM + o), ('ring', j))
        def mbload(dst, j):
            if j == 8:
                A("buffer_load_dwordx4 %s, %s, %s, %s offen sc1" % (v(dst, 4), v(vL16), s(sWS, 4), s(sX8)))
            else:
                A("buffer_load_dwordx4 %s, %s, %s, %s offen sc1" % (v(dst, 4), v(fragaddr(j)[0]), s(sWS, 4), s(sX4 if j & 4 else sX0)))
        def check(base, n):
            A("v_max3_u32 %s, %s, %s, %s" % (v(vTmp), v(base), v(base + 1), v(base + 2)))
            for i in range(3, n - 1, 2):
                A("v_max3_u32 %s, %s, %s, %s" % (v(vTmp), v(vTmp), v(base + i), v(base + i + 1)))
            A("v_max_u32 %s, %s, %s" % (v(vTmp), v(vTmp), v(base + n - 1)))
            A("v_cmp_eq_u32 vcc, -1, %s" % v(vTmp))
        def budget(lagain, lgiveup):
            A("s_sub_u32 %s, %s, 1" % (s(sBud), s(sBud)))
            A("s_cbranch_scc0 %s" % lagain)
            A("s_mov_b32 %s, 0" % s(sBud))
            A("s_branch %s" % lgiveup)
        PLA = [12, 16, 20, 24]
        RACC, SEL = 28, 32
        def poll1_issue(PL, so=sRd, which=range(4)):
            for i in which:
                A("buffer_load_dwordx4 %s, %s, %s, %s offen offset:%d sc1" % (v(PL[i], 4), v(vL16), s(sWS, 4), s(so), 1024 * i))
        def wait_many(keys):
            idx = [i for i, t in enumerate(A.lds) if t in keys]
            if idx:
                A.wait_ds(A.lds[idx[-1]])
        def endstep():
            for ch in QK_CHAIN:
                land(ch[0])
            A("s_mov_b32 %s, %s" % (s(sT), s(sX0)))
            A("s_mov_b32 %s, %s" % (s(sX0), s(sX1)))
            A("s_mov_b32 %s, %s" % (s(sX1), s(sX2)))
            A("s_mov_b32 %s, %s" % (s(sX2), s(sT)))
        PUB = "" if "pubplain" in opt else " sc1"
        def optval(name, dflt):
            for o in opt:
                if o.startswith(name + "="):
                    return int(o.split("=")[1])
            return dflt
        LWAIT, S1DEPTH = optval("lwait", 3), optval("s1d", 2)
        sX4, sX8 = sP1, sP2
        F8 = RING + 4
        PLB = [LND, LND + 4, LND + 8, LND + 12]
        def reduce_body(PL, n_after):
            if "prog" in opt:
                A("s_waitcnt vmcnt(%d)" % (n_after + 3))
                MF(RACC, SEL, PL[0], "0")
                A("s_waitcnt vmcnt(%d)" % (n_after + 2))
                MF(RACC, SEL, PL[1], v(RACC, 4))
                A("v_bitop3_b32 %s, %s, %s, %s bitop3:0x7e" % (v(vTmp), v(PL[0]), v(PL[1]), s(sPh)))
                A("s_waitcnt vmcnt(%d)" % (n_after + 1))
                MF(RACC, SEL, PL[2], v(RACC, 4))
                A("s_waitcnt vmcnt(%d)" % n_after)
                MF(RACC, SEL, PL[3], v(RACC, 4))
                A("v_bitop3_b32 %s, %s, %s, %s bitop3:0x7e" % (v(45), v(PL[2]), v(PL[3]), s(sPh)))
                A("v_bitop3_b32 %s, %s, %s, 1 bitop3:0xa8" % (v(vTmp), v(vTmp), v(45)))
                A("v_cmp_ne_u32 vcc, 0, %s" % v(vTmp))
                return
            A("s_waitcnt vmcnt(%d)" % n_after)
            MF(RACC, SEL, PL[0], "0")
            A("v_bitop3_b32 %s, %s, %s, %s bitop3:0x7e" % (v(vTmp), v(PL[0]), v(PL[1]), s(sPh)))
            A("v_bitop3_b32 %s, %s, %s, %s bitop3:0x7e" % (v(45), v(PL[2]), v(PL[3]), s(sPh)))
            MF(RACC, SEL, PL[1], v(RACC, 4))
            A("v_bitop3_b32 %s, %s, %s, 1 bitop3:0xa8" % (v(vTmp), v(vTmp), v(45)))
            A("v_cmp_ne_u32 vcc, 0, %s" % v(vTmp))
            MF(RACC, SEL, PL[2], v(RACC, 4))
            MF(RACC, SEL, PL[3], v(RACC, 4))
        def mksel():
            for u in range(4):
                A("v_cndmask_b32 %s, 0, %s, %s" % (v(SEL + u), v(vSelV), s(sSel + 2 * u, 2)))
        def s1load(base):
            mbload(base, 0)
            mbload(base + 4, 1)
        def rotate():
            A("s_mov_b32 %s, %s" % (s(sT), s(sX0)))
            A("s_mov_b32 %s, %s" % (s(sX0), s(sX1)))
            A("s_mov_b32 %s, %s" % (s(sX1), s(sX2)))
            A("s_mov_b32 %s, %s" % (s(sX2), s(sT)))
            A("s_add_u32 %s, %s, 4096" % (s(sX4), s(sX0)))
            A("s_add_u32 %s, %s, 8192" % (s(sX8), s(sX0)))
        lgo1 = A.new("go1")
        lkvr, lkvok = A.new("kvrf"), A.new("kvok")
        if "mega" in opt:
            A.label(lkvr)
            kv_refresh(lkvok)
        A.label(lnored)
        A("s_cmp_eq_u32 %s, -1" % s(sUnit))
        A("s_cbranch_scc1 %s_n" % lnored)
        A("s_waitcnt vmcnt(%d)" % LWAIT)
        A("s_branch %s" % lgo1)
        A.label(lnored + "_n")
        if "ps" in opt:
            A("s_memtime s[72:73]")
            A("s_memrealtime s[74:75]")
            A("s_lshl_b32 %s, %s, 9" % (s(sT), s(sCU)))
            A("s_lshl_b32 %s, %s, 3" % (s(sT + 1), s(sStep)))
            A("s_add_u32 %s, %s, %s" % (s(sT), s(sT), s(sT + 1)))
            A("s_add_u32 %s, %s, %d" % (s(sT), s(sT), WS_DBG + (7 << 17)))
            A("s_waitcnt lgkmcnt(0)")
            A("v_mov_b32 v46, s72")
            A("v_mov_b32 v47, s74")
            A("s_mov_b64 exec, 1")
            A("buffer_store_dwordx2 v[46:47], off, %s, %s" % (s(sWS, 4), s(sT)))
            A("s_mov_b64 exec, -1")
        rotate()
        for i in range(0, 8, 2):
            A("v_mov_b64 %s, -1" % v(RING + i, 2))
        if NDMA:
            l3 = A.new("n3l")
            A("s_cmp_lg_u32 %s, 3" % s(sW))
            A("s_cbranch_scc1 %s" % l3)
            kv_all()
            A.label(l3)
        if "noflag" in opt:
            A("s_waitcnt vmcnt(0)")
        else:
            lf = A.new("flag")
            A("v_mov_b32 %s, %d" % (v(46), L_FLAG))
            A.label(lf)
            A("ds_read_b32 %s, %s" % (v(vTmp), v(46)))
            A("s_waitcnt lgkmcnt(0)")
            A("v_cmp_eq_u32 vcc, %s, %s" % (s(sStep), v(vTmp)))
            A("s_cbranch_vccnz %s" % lb4)
            budget(lf, lb4)
        A("s_branch %s" % lb4)
        X2 = LND + 16
        def f8load():
            A("buffer_load_dword %s, %s, %s, %s offen sc1" % (v(X2 + 4), v(X2 + 5), s(sWS, 4), s(sX8)))
        def s2load():
            mbload(X2, 4)
            f8load()
        def s2check():
            A("v_max3_u32 %s, %s, %s, %s" % (v(vTmp), v(X2), v(X2 + 1), v(X2 + 2)))
            A("v_max3_u32 %s, %s, %s, %s" % (v(vTmp), v(vTmp), v(X2 + 3), v(X2 + 4)))
            A("v_cmp_eq_u32 vcc, -1, %s" % v(vTmp))
        A.label(ls2r)
        if "tt" in opt:
            A("s_add_u32 s88, s88, 1")
        s2load()
        A("s_waitcnt vmcnt(2)")
        s2check()
        A("s_cbranch_vccz %s_d" % ls2r)
        budget(ls2r, ls2r + "_d")
        A.label(ls2r + "_d")
        A("s_waitcnt vmcnt(0)")
        A("s_branch %s" % ls2ok)
        A.label(ls1)
        A("s_add_u32 %s, %s, 4096" % (s(sX4), s(sX0)))
        A("s_add_u32 %s, %s, 8192" % (s(sX8), s(sX0)))
        s1load(RING)
        A("s_waitcnt vmcnt(0)")
        A("s_branch %s" % ls1w)
        A(".p2align 6")
        A.label(ls1r)
        A("s_sub_u32 %s, %s, 1" % (s(sBud), s(sBud)))
        A("s_cbranch_scc1 %s_give" % ls1r)
        if "mask" in opt:
            A("s_mov_b64 exec, vcc")
        s1load(RING)
        if "mask" in opt:
            A("s_mov_b64 exec, -1")
        A("s_waitcnt vmcnt(%d)" % S1DEPTH)
        A.label(ls1w)
        check(RING, 8)
        A("s_cbranch_vccnz %s" % ls1r)
        A.label(lentry)
        A.lds, A.vm = [], []
        if "tt" in opt:
            lt = A.new("tt")
            A("s_cmp_lg_u32 %s, 3" % s(sStep))
            A("s_cbranch_scc1 %s" % lt)
            A("s_memtime s[92:93]")
            A.label(lt)
        if stamps and "rt" in opt:
            lq = A.new("q")
            A("s_memrealtime %s" % s(sStamp + 18, 2))
            A("s_cmp_lg_u32 %s, 41" % s(sStep))
            A("s_cbranch_scc1 %s" % lq)
            A("s_waitcnt lgkmcnt(0)")
            for i in range(10):
                A("v_writelane_b32 %s, %s, %d" % (v(vTmp), s(sStamp + 2 * i), i))
            A("s_lshl_b32 %s, %s, 2" % (s(sT), s(sCU)))
            A("s_add_u32 %s, %s, %s" % (s(sT), s(sT), s(sW)))
            A("s_lshl_b32 %s, %s, 11" % (s(sT), s(sT)))
            A("s_add_u32 %s, %s, %d" % (s(sT), s(sT), WS_DBG))
            A("buffer_store_dword %s, %s, %s, %s offen" % (v(vTmp), v(vL16), s(sWS, 4), s(sT)))
            A.label(lq)
        stamp()
        KXR = {(0, 0): LND, (0, 1): LND + 4, (0, 2): LND + 8, (0, 3): LND + 12, (1, 0): LND + 16, (1, 1): LND + 20, (1, 2): LND, (1, 3): LND + 4}
        def kxrd(tl, ks):
            A.ds("ds_read_b128 %s, %s offset:%d" % (v(KXR[(tl, ks)], 4), v(vL16), L_KX + (4 * tl + ks) * 1024), ('kx', tl, ks))
        AREG = {0: RING, 1: RING + 4, 2: RING + 8, 3: RING, 4: X2, 5: RING + 4, 6: RING + 8, 7: RING, 8: RING + 4}
        def Q(j, t):
            key = ('qk', j, t)
            SM(QK + 4 * t, AREG[j], R(WREGS[key], 8) if key in WREGS else v(LND + 8 * SLOT[key], 8))
        def VS(j, t, a_=None):
            key = ('v', j, t)
            SM(VACC + 4 * t, AREG[j] if a_ is None else a_, R(WREGS[key], 8) if key in WREGS else v(LND + 8 * SLOT[key], 8))
        L = lambda j, t, hh: land(('qk', j, t), hh)
        kd = kv_dma()
        mega = "mega" in opt
        ND = 0 if NDMA else 2
        def dma(i, tag):
            if not NDMA:
                A.vmem(kd[i], tag) if tag else A(kd[i])
        A.ds("ds_write_b128 %s, %s offset:%d" % (v(vT0), v(RING, 4), L_MEM), 'w1')
        Q(0, 0); mbload(X2, 4)
        Q(0, 1); A("v_lshrrev_b32 %s, 2, %s" % (v(X2 + 5), v(vT0)))
        Q(0, 2); f8load()
        Q(0, 3); L(2, 0, 0)
        VS(0, 0); L(2, 0, 1)
        A.wait_ds('w1')
        VS(0, 1)
        A("s_barrier")
        ringrd(2, 2)
        stamp()
        Q(1, 0); L(2, 1, 0)
        dma(0, None)
        Q(1, 1); L(2, 1, 1)
        Q(1, 2); dma(1, 'kdma')
        Q(1, 3); A("s_add_u32 %s, %s, 1" % (s(sStep), s(sStep)))
        VS(1, 0); dma(2, 'kdma')
        VS(1, 1); A("s_waitcnt vmcnt(%d)" % (2 + ND))
        ringrd(3, 0)
        A.wait_ds(('qk', 2, 1))
        Q(2, 0); L(4, 0, 0)
        Q(2, 1); L(4, 0, 1)
        Q(2, 2); L(4, 1, 0)
        Q(2, 3); L(4, 1, 1)
        VS(2, 0); dma(3, None)
        VS(2, 1)
        A.wait_ds(('ring', 3))
        Q(3, 0); A("s_waitcnt vmcnt(%d)" % ND)
        s2check()
        Q(3, 1)
        Q(3, 2)
        A("s_cbranch_vccnz %s" % ls2r)
        A.label(ls2ok)
        A.ds("ds_write_b128 %s, %s offset:%d" % (v(vT0), v(X2, 4), L_MEM + 4096), 'w2')
        Q(3, 3)
        A.ds("ds_write_b32 %s, %s offset:%d" % (v(X2 + 5), v(X2 + 4), L_MEM + 8192), 'w2')
        VS(3, 0); dma(4, 'vdma')
        VS(3, 1); dma(5, 'vdma')
        A.wait_ds(('qk', 4, 1))
        Q(4, 0); L(6, 0, 0)
        Q(4, 1)
        A("s_waitcnt vmcnt(%d) lgkmcnt(1)" % ND)
        A.vm, A.lds = A.vm[len(A.vm) - ND:], A.lds[-1:]
        A("s_barrier")
        ringrd(5, 1)
        Q(4, 2); ringrd(6, 2)
        Q(4, 3); ringrd(7, 0)
        VS(4, 0); L(6, 0, 1)
        VS(4, 1); L(6, 1, 0)
        A.wait_ds(('ring', 5))
        Q(5, 0); land(L2KEY, 0)
        Q(5, 1); land(L2KEY, 1)
        if mega:
            A("s_bitcmp1_b64 %s, %s" % (s(sRdy, 2), s(sStep)))
        Q(5, 2); L(6, 1, 1)
        A("s_mov_b32 m0, %d" % (L_SCR + 512))
        Q(5, 3); ringrd(8, 1)
        if mega:
            A("s_cbranch_scc0 %s" % lkvr)
            A.label(lkvok)
        A.wait_ds(('qk', 6, 0))
        Q(6, 0); L(7, 3, 0)
        A.wait_ds(('qk', 6, 1))
        Q(6, 1); L(7, 3, 1)
        A("v_lshlrev_b32 %s, 3, %s" % (v(vTmp), v(vL16)))
        Q(6, 2)
        if "notouch" not in opt:
            A.vmem("buffer_load_dword %s, %s, %s offen sc1 lds" % (v(vTmp), s(sWS, 4), s(sKVt)), 'touch')
        Q(6, 3); kxrd(0, 2)
        Q(7, 0); kxrd(0, 3)
        Q(7, 1)
        Q(7, 2); A("s_add_u32 %s, %s, %d" % (s(sKVt), s(sKVt), KVINC))
        A.wait_ds(('qk', 7, 3))
        Q(7, 3); kxrd(0, 0)
        Q(8, 0); kxrd(0, 1)
        Q(8, 1); A("s_nop 0")
        Q(8, 2); A("v_lshrrev_b32 %s, 2, %s" % (v(vTmp), v(vL16)))
        Q(8, 3); A("s_nop 0")
        stamp()
        VS(7, 0); A("s_cmp_eq_u32 %s, %d" % (s(sStep), nsteps))
        VS(7, 1); ringrd(5, 0)
        def fin(base):
            A("v_add_f32 %s, %s, %s" % (v(base), v(base), v(base + 1)))
            A("v_add_f32 %s, %s, %s" % (v(base + 2), v(base + 2), v(base + 3)))
            A("v_add_f32 %s, %s, %s" % (v(base + 4), v(base + 4), v(base + 5)))
            A("v_add_f32 %s, %s, %s" % (v(base + 6), v(base + 6), v(base + 7)))
            A("v_cvt_pk_bf16_f32 %s, %s, %s" % (v(base), v(base), v(base + 4)))
            A("v_cvt_pk_bf16_f32 %s, %s, %s" % (v(base + 1), v(base + 2), v(base + 6)))
        def finw(base):
            o = 8 if base == QK else 0
            A.ds("ds_write2_b32 %s, %s, %s offset0:%d offset1:%d" % (v(vFw), v(base), v(base + 1), o, o + 4), 'fw')
        def pub(reg, off):
            A.vmem("buffer_store_dword %s, %s, %s, %s offen offset:%d%s" % (v(reg), v(vTmp), s(sWS, 4), s(sKM), off, PUB), 'pub')
        fin(QK)
        fin(QK + 8)
        finw(QK)
        finw(QK + 8)
        A.wait_vm(L2KEY)
        VS(8, 1); pub(QK + 8, 0)
        VS(8, 0); kxrd(1, 0)
        VS(6, 1); kxrd(1, 1)
        VS(6, 0); pub(QK + 9, 256)
        A.wait_ds('fw')
        A("s_barrier")
        for ks in range(4):
            A.ds("ds_read_b128 %s, %s offset:%d" % (v(QK + 4 * ks, 4), v(vL16), L_F + ks * FSTR), ('f', ks))
        stamp()
        VS(5, 0, RING)
        VS(5, 1, RING)
        T1, T2, T0 = RING, RING + 4, RING + 8
        ONES, LACC, OACC = QK + 8, QK + 12, LND + 16
        def S(i, ks):
            d, a_ = ((T1, KXR[(0, ks)]), (T2, KXR[(1, ks)]), (T0, QK + 4 * ks))[i]
            MF(d, a_, QK + 4 * ks, "0" if ks == 0 else v(d, 4))
        def vfin(t, part):
            b = VACC + 4 * t
            if part == 0:
                A("v_add_f32 %s, %s, %s" % (v(b), v(b), v(b + 1)))
                A("v_add_f32 %s, %s, %s" % (v(b + 2), v(b + 2), v(b + 3)))
            else:
                A("v_cvt_pk_bf16_f32 %s, %s, %s" % (v(b), v(b), v(b + 2)))
                A("v_mov_b32 %s, 0" % v(b + 1))
        def vxrd(t):
            A.ds("ds_read_b128 %s, %s offset:%d" % (v(QK + 4 * t, 4), v(vWL), 32768 + t * 1024), 'vx')
        m1, m2 = T0 + 2, T0 + 3
        A.wait_ds(('f', 0))
        S(0, 0); A.wait_ds(('f', 1))
        S(0, 1); kxrd(1, 2)
        kxrd(1, 3)
        A.wait_ds(('f', 3))
        S(0, 2)
        S(0, 3); land(('o', 1), 0)
        land(('o', 1), 1)
        S(2, 0); vfin(0, 0)
        S(2, 1); vfin(0, 1)
        S(2, 2); vfin(1, 0)
        S(2, 3); pub(VACC, 512)
        vfin(1, 1)
        S(1, 0); vxrd(0)
        A("v_max3_f32 %s, %s, %s, %s" % (v(VACC + 2), v(T1), v(T1 + 1), v(T1 + 2)))
        S(1, 1); vxrd(1)
        A.wait_ds(('kx', 1, 3))
        S(1, 2); pub(VACC + 4, 768)
        A("v_max3_f32 %s, %s, %s, %s" % (v(m1), v(VACC + 2), v(T1 + 3), v(T0)))
        S(1, 3); land(('o', 0), 0)
        land(('o', 0), 1)
        A("s_cbranch_scc1 %s" % lexit)
        A("s_add_u32 %s, %s, %d" % (s(sKM), s(sKM), 32 * 4096))
        stamp()
        sv = [T1, T1 + 1, T1 + 2, T1 + 3, T2, T2 + 1, T2 + 2, T2 + 3, T0, T0 + 1]
        A("v_max_f32 %s, %s, %s" % (v(m1), v(m1), v(T0 + 1)))
        A("s_nop 0")
        A("v_mov_b32 %s, 0x3f803f80" % v(ONES))
        A("v_mov_b32 %s, 0x3f803f80" % v(ONES + 1))
        A("v_max3_f32 %s, %s, %s, %s" % (v(m1), v(m1), v(sv[4]), v(sv[5])))
        A("v_max3_f32 %s, %s, %s, %s" % (v(m2), v(m1), v(sv[6]), v(sv[7])))
        A("v_max3_f32 %s, %s, %s, %s" % (v(m1), v(m1), v(sv[6]), v(sv[7])))
        A("v_mov_b32 %s, 0x3f803f80" % v(ONES + 2))
        A("v_mov_b32 %s, 0x3f803f80" % v(ONES + 3))
        A("v_permlane32_swap_b32 %s, %s" % (v(m1), v(m2)))
        A("v_max_f32 %s, %s, %s" % (v(m1), v(m1), v(m2)))
        A("v_mov_b32 %s, %s" % (v(m2), v(m1)))
        A("s_nop 1")
        A("v_permlane16_swap_b32 %s, %s" % (v(m1), v(m2)))
        A("v_max_f32 %s, %s, %s" % (v(m1), v(m1), v(m2)))
        A("v_mul_f32 %s, %s, %s" % (v(m1), s(sC), v(m1)))
        for x in sv:
            A("v_fma_f32 %s, %s, %s, -%s" % (v(x), v(x), s(sC), v(m1)))
        P, Pm = T1, T0
        for x in sv[:8]:
            A("v_exp_f32 %s, %s" % (v(x), v(x)))
        A("v_cvt_pk_bf16_f32 %s, %s, %s" % (v(P), v(T1), v(T1 + 1)))
        A("v_cvt_pk_bf16_f32 %s, %s, %s" % (v(P + 1), v(T1 + 2), v(T1 + 3)))
        A("v_cvt_pk_bf16_f32 %s, %s, %s" % (v(P + 2), v(T2), v(T2 + 1)))
        A("v_cvt_pk_bf16_f32 %s, %s, %s" % (v(P + 3), v(T2 + 2), v(T2 + 3)))
        A("v_exp_f32 %s, %s" % (v(T0), v(T0)))
        A.wait_ds('vx')
        A("v_exp_f32 %s, %s" % (v(T0 + 1), v(T0 + 1)))
        MF(LACC, ONES, P, "0")
        A("v_cvt_pk_bf16_f32 %s, %s, %s" % (v(Pm), v(T0), v(T0 + 1)))
        A("v_mov_b32 %s, 0" % v(Pm + 1))
        MF(OACC, QK, P, "0")
        MF(OACC + 4, QK + 4, P, "0")
        A("v_mfma_f32_16x16x16_bf16 %s, %s, %s, %s" % (v(LACC, 4), v(ONES, 2), v(Pm, 2), v(LACC, 4)))
        for t in range(2):
            A("v_mfma_f32_16x16x16_bf16 %s, %s, %s, %s" % (v(OACC + 4 * t, 4), v(VACC + 4 * t, 2), v(Pm, 2), v(OACC + 4 * t, 4)))
        zero(12, 24)
        A("v_rcp_f32 %s, %s" % (v(vTmp), v(LACC)))
        A("v_mov_b64 %s, 0" % v(24, 2))
        for i in range(8):
            A("v_mul_f32 %s, %s, %s" % (v(OACC + i), v(OACC + i), v(vTmp)))
        OP = T2
        for i in range(4):
            A("v_cvt_pk_bf16_f32 %s, %s, %s" % (v(OP + i), v(OACC + 2 * i), v(OACC + 2 * i + 1)))
        A.ds("ds_write_b128 %s, %s" % (v(vOw), v(OP, 4)), 'ow')
        A("v_mov_b64 %s, -1" % v(36, 2))
        A("v_cndmask_b32 %s, 0, 1, %s" % (v(vTmp), s(sTagM, 2)))
        A.vmem("buffer_store_dwordx2 %s, %s, %s, %s offen%s" % (v(36, 2), v(vRst), s(sWS, 4), s(sX2), SC), 'rst')
        zero(26, 36)
        A.wait_ds('ow')
        A("s_barrier")
        OF = LND + 16
        for c2 in range(2):
            A.ds("ds_read_b128 %s, %s offset:%d" % (v(OF + 4 * c2, 4), v(vL16), L_O + c2 * 1024), ('of', c2))
        stamp()
        zero(36, 48)
        def wacc(tile):
            return 12 + 4 * tile
        def W(p, c2):
            key = ('o', 2 * p + c2)
            wait_many([('of', c2), key])
            SM(wacc(p), OF + 4 * c2, R(WREGS[key], 8) if key in WREGS else v(LND + 8 * SLOT[key], 8))
        def e1(tile):
            b = wacc(tile)
            A("v_add_f32 %s, %s, %s" % (v(b + 1), v(b), v(b + 1)))
            A("v_add_f32 %s, %s, %s" % (v(b + 3), v(b + 2), v(b + 3)))
        def e2(tile):
            b = wacc(tile)
            A("v_cvt_pk_bf16_f32 %s, %s, %s" % (v(b), v(b + 1), v(b + 3)))
            A("v_bfi_b32 %s, %s, %s, %s" % (v(b), v(vTmp), s(sPh), v(b)))
        def e3(tile):
            A("buffer_store_dword %s, %s, %s, %s offen%s" % (v(wacc(tile)), v(vPst), s(sWS, 4), s(sPt + tile), SC))
        LO = lambda n, hh: land(('o', n), hh)
        W(0, 0); LO(8, 0)
        W(0, 1); LO(8, 1)
        W(1, 0); LO(9, 0)
        W(1, 1); LO(9, 1)
        W(2, 0); A("s_add_u32 %s, %s, %d" % (s(sKV), s(sKV), KVINC))
        A("s_add_u32 %s, %s, %d" % (s(sKVv), s(sKVv), KVINC))
        e1(0)
        W(2, 1); e2(0)
        for p in range(3, 9):
            W(p, 0); e3(p - 3)
            if p == 5:
                LO(16, 0)
            e1(p - 2)
            W(p, 1)
            if p == 4:
                LO(16, 1)
            if p == 5:
                LO(17, 0)
            if p == 6:
                LO(17, 1)
            if p == 7:
                A("s_cmp_ge_u32 %s, 32" % s(sUnit))
            e2(p - 2)
        EP = optval("ep", 0)
        def wtail(early):
            if early and EP == 3:
                poll1_issue(PLA)
            e3(6)
            if early and EP == 2:
                poll1_issue(PLA)
            e1(7); e2(7); e3(7)
            if early and EP == 1:
                poll1_issue(PLA)
            e1(8); e2(8); e3(8)
            if stamps:
                A("s_memrealtime %s" % s(sStamp + 16, 2))
        if EP:
            lw = A.new("wt")
            A("s_cbranch_scc0 %s" % lw)
            wtail(False)
            A("s_branch %s" % lnored)
            A.label(lw)
            wtail(True)
        else:
            wtail(False)
            A("s_cbranch_scc1 %s" % lnored)
        def prep():
            mksel()
            rotate()
            for i in range(0, 8, 2):
                A("v_mov_b64 %s, -1" % v(RING + i, 2))
            A("v_mov_b32 %s, %d" % (v(46), L_FLAG))
            A("v_mov_b32 %s, %s" % (v(47), s(sStep)))
        l1b = A.new("p1b")
        if EP:
            if "eb2" in opt:
                prep()
                poll1_issue(PLB)
            else:
                poll1_issue(PLB)
                prep()
            reduce_body(PLA, 4 + EP)
            A("s_cbranch_vccz %s" % lok1)
            A("s_branch %s" % l1b)
        A.label(lgo1)
        poll1_issue(PLA)
        stamp()
        prep()
        poll1_issue(PLB)
        A.label(l1a)
        reduce_body(PLA, 4)
        A("s_cbranch_vccz %s" % lok1)
        A.label(l1b)
        if "tt" in opt:
            A("s_add_u32 s87, s87, 1")
        poll1_issue(PLA)
        reduce_body(PLB, 4)
        A("s_cbranch_vccz %s" % lok1)
        if "tt" in opt:
            A("s_add_u32 s87, s87, 1")
        poll1_issue(PLB)
        A("s_sub_u32 %s, %s, 1" % (s(sBud), s(sBud)))
        A("s_cbranch_scc0 %s" % l1a)
        A("s_mov_b32 %s, 0" % s(sBud))
        A.label(lok1)
        def finish(nop):
            A("s_nop %d" % nop)
            for i in range(4):
                A("v_add_f32_dpp %s, %s, %s row_ror:8 row_mask:0xf bank_mask:0xf" % (v(RACC + i), v(RACC + i), v(RACC + i)))
            A("v_cvt_pk_bf16_f32 %s, %s, %s" % (v(44), v(RACC), v(RACC + 1)))
            A("v_cvt_pk_bf16_f32 %s, %s, %s" % (v(45), v(RACC + 2), v(RACC + 3)))
            A("buffer_store_dwordx2 %s, %s, %s, %s offen%s" % (v(44, 2), v(vRst), s(sWS, 4), s(sX0), SC))
        if "lsep" in opt:
            le = A.new("efin")
            A("s_cmp_lt_u32 %s, 32" % s(sUnit))
            A("s_cbranch_scc1 %s" % le)
            s1load(RING)
            finish(0)
            A("s_waitcnt vmcnt(3)")
            for ch in QK_CHAIN:
                land(ch[0])
            zero(VACC, RING)
            A("s_xor_b32 %s, %s, 1" % (s(sPh), s(sPh)))
            if "l2nd" in opt:
                s1load(RING)
                A("s_waitcnt vmcnt(3) lgkmcnt(0)")
            else:
                A("s_waitcnt vmcnt(1) lgkmcnt(0)")
            A("s_branch %s" % ls1w)
            A.label(le)
            A("ds_write_b32 %s, %s" % (v(46), v(47)))
            finish(0)
        else:
            A("ds_write_b32 %s, %s" % (v(46), v(47)))
            finish(2)
        stamp()
        A.label(lb4)
        if "late" in opt:
            A("s_waitcnt vmcnt(1)")
        else:
            s1load(RING)
            A("s_waitcnt vmcnt(%d)" % (5 if "early1" in opt else 3))
        for ch in QK_CHAIN:
            land(ch[0])
        zero(VACC, RING)
        A("s_xor_b32 %s, %s, 1" % (s(sPh), s(sPh)))
        if "late" in opt:
            s1load(RING)
        if "first0" in opt:
            A("s_waitcnt vmcnt(0)")
        A("s_waitcnt lgkmcnt(0)")
        if stamps and "rt" not in opt:
            ldump = A.new("dump")
            A("s_cmp_eq_u32 %s, 41" % s(sStep))
            A("s_cbranch_scc1 %s" % ldump)
            A("s_cmp_eq_u32 %s, 42" % s(sStep))
            A("s_cbranch_scc0 %s" % ls1w)
            A.label(ldump)
            for i in range(10):
                A("v_writelane_b32 %s, %s, %d" % (v(vTmp), s(sStamp + 2 * i), i))
            A("v_writelane_b32 %s, %s, %d" % (v(vTmp), s(sBud), 15))
            A("s_lshl_b32 %s, %s, 2" % (s(sT), s(sCU)))
            A("s_add_u32 %s, %s, %s" % (s(sT), s(sT), s(sW)))
            A("s_lshl_b32 %s, %s, 1" % (s(sT), s(sT)))
            A("s_add_u32 %s, %s, %s" % (s(sT), s(sT), s(sStep)))
            A("s_sub_u32 %s, %s, 41" % (s(sT), s(sT)))
            A("s_lshl_b32 %s, %s, 10" % (s(sT), s(sT)))
            A("s_add_u32 %s, %s, %d" % (s(sT), s(sT), WS_DBG + (3 << 18 if "mega" in opt else 0)))
            A("buffer_store_dword %s, %s, %s, %s offen" % (v(vTmp), v(vL16), s(sWS, 4), s(sT)))
            A("s_waitcnt vmcnt(0)")
        A("s_branch %s" % ls1w)
        A.label(ls1r + "_give")
        A("s_mov_b32 %s, 0" % s(sBud))
        A("s_branch %s" % lentry)
        A.label(lexit)
        if "tt" in opt:
            A("s_memtime s[94:95]")
            A("s_memrealtime s[70:71]")
            A("s_waitcnt lgkmcnt(0)")
            A("s_sub_u32 s94, s94, s92")
            A("s_sub_u32 s92, s92, s90")
            A("v_writelane_b32 %s, s92, 0" % v(vTmp))
            A("v_writelane_b32 %s, s94, 1" % v(vTmp))
            A("v_writelane_b32 %s, %s, 2" % (v(vTmp), s(sBud)))
            for i in range(3):
                A("v_writelane_b32 %s, s%d, %d" % (v(vTmp), 87 + i, 3 + i))
            for i in range(4):
                A("v_writelane_b32 %s, s%d, %d" % (v(vTmp), 64 + 2 * i, 6 + i))
            A("s_lshl_b32 %s, %s, 2" % (s(sT), s(sCU)))
            A("s_add_u32 %s, %s, %s" % (s(sT), s(sT), s(sW)))
            A("s_lshl_b32 %s, %s, 10" % (s(sT), s(sT)))
            A("s_add_u32 %s, %s, %d" % (s(sT), s(sT), WS_DBG + (1 << 19)))
            A("buffer_store_dword %s, %s, %s, %s offen" % (v(vTmp), v(vL16), s(sWS, 4), s(sT)))
            if "dbgout" in opt:
                for i, o in enumerate((4, 8, 12, 20)):
                    A("v_mov_b32 %s, s%d" % (v(vTmp), 64 + 2 * i))
                    A("buffer_atomic_umax %s, off, %s, 0 offset:%d" % (v(vTmp), s(sDBG, 4), o))
        A("s_waitcnt vmcnt(0)")

    loop(" sc1" if "forcesc1" in opt else "")
    A("s_endpgm")
    A.label(lslow)
    nst[0] = 0
    loop(" sc1")
```

```python
from asmlib import *
from layout import *
import struct, math

def f32bits(x):
    return struct.unpack("<I", struct.pack("<f", x))[0]

sWS, sW1, sW2, sW3, sWO, sXS, sDBG = 4, 8, 12, 16, 20, 24, 28
sWid, sW, sSl, sRep, sSeg, sBud = 32, 33, 34, 35, 36, 37
sA0 = 38
sT = 60
sMask = 64
sSel = 80
vL16, vLane, vG, vC, vX, vTmp, vFl = 0, 1, 2, 3, 4, 5, 6
NSLOT = 9
L_SCR = 147456

TS = {'on': False, 'reg': 15}
sTsI = 98
def ts(A, idx=None):
    if not TS['on'] or (TS.get('fine') and idx is None):
        return
    A("s_memrealtime s[96:97]")
    A("s_waitcnt lgkmcnt(0)")
    A.lds = []
    if idx is None:
        A("s_mov_b32 m0, %s" % s(sTsI))
        A("s_add_u32 %s, %s, 1" % (s(sTsI), s(sTsI)))
        A("v_writelane_b32 %s, s96, m0" % v(TS['reg']))
    else:
        A("v_writelane_b32 %s, s96, %d" % (v(TS['reg']), idx))
def fs(A, idx):
    if TS.get('fine'):
        A("s_memtime s[96:97]")
        A("s_waitcnt lgkmcnt(0)")
        A.lds = []
        A("v_writelane_b32 %s, s96, %d" % (v(TS['reg']), idx))
def ts_dump(A, part):
    if not TS['on']:
        return
    A("s_lshl_b32 s96, %s, 2" % s(sWid))
    A("s_add_u32 s96, s96, %s" % s(sW))
    A("s_lshl_b32 s96, s96, 9")
    A("s_add_u32 s96, s96, %d" % (WS_DBG + part * 256))
    A("v_lshlrev_b32 %s, 2, %s" % (v(vTmp), v(vLane)))
    A("buffer_store_dword %s, %s, %s, s96 offen" % (v(TS['reg']), v(vTmp), s(sWS, 4)))
    A("s_waitcnt vmcnt(0)")
    A("s_mov_b32 %s, 0" % s(sTsI))

def build_srd(A, d, karg, nbytes):
    A("s_load_dwordx2 %s, s[0:1], %d" % (s(d, 2), karg))
    A("s_waitcnt lgkmcnt(0)")
    A("s_and_b32 %s, %s, 0xffff" % (s(d + 1), s(d + 1)))
    A("s_mov_b32 %s, %d" % (s(d + 2), nbytes))
    A("s_mov_b32 %s, 0x20000" % s(d + 3))

def wait_flags(A, voff, soff, srd=sWS, cmp_ge=None, imm=0):
    lp, ok = A.new("wf"), A.new("wfok")
    A.label(lp)
    if voff is None:
        A("buffer_load_dword %s, off, %s, %s offset:%d sc1" % (v(vTmp), s(srd, 4), soff, imm))
    else:
        A("buffer_load_dword %s, %s, %s, %s offen offset:%d sc1" % (v(vTmp), v(voff), s(srd, 4), soff, imm))
    A("s_waitcnt vmcnt(0)")
    if cmp_ge is None:
        A("v_cmp_eq_u32 vcc, 0, %s" % v(vTmp))
    else:
        A("v_cmp_gt_u32 vcc, %d, %s" % (cmp_ge, v(vTmp)))
    A("s_cbranch_vccz %s" % ok)
    A("s_sleep 2")
    A("s_sub_u32 %s, %s, 1" % (s(sBud), s(sBud)))
    A("s_cbranch_scc0 %s" % lp)
    A("s_mov_b32 %s, 0" % s(sBud))
    A.label(ok)
    A.vm = []

def wait_ready(A, soff, n):
    if TS.get('cnt') and n != 128:
        wait_flags(A, None, soff, cmp_ge=n)
    else:
        wait_flags(A, None, soff, imm=128)

def set_flag(A, soff, wave0_only=True):
    sk = A.new("sf")
    if wave0_only:
        A("s_cmp_lg_u32 %s, 0" % s(sW))
        A("s_cbranch_scc1 %s" % sk)
    A("s_mov_b64 exec, 1")
    A("v_mov_b32 %s, 1" % v(vTmp))
    A("buffer_store_dword %s, off, %s, %s sc1" % (v(vTmp), s(sWS, 4), soff))
    A("s_mov_b64 exec, -1")
    A.label(sk)

def arrive(A, soff, n, wave0_only=True):
    sk = A.new("ar")
    if wave0_only:
        A("s_cmp_lg_u32 %s, 0" % s(sW))
        A("s_cbranch_scc1 %s" % sk)
    A("s_mov_b64 exec, 1")
    A("v_mov_b32 %s, 1" % v(vTmp))
    if TS.get('cnt') and n != 128:
        A("buffer_atomic_add %s, off, %s, %s" % (v(vTmp), s(sWS, 4), soff))
        A("s_mov_b64 exec, -1")
        A.label(sk)
        return
    A("buffer_atomic_add %s, off, %s, %s sc0" % (v(vTmp), s(sWS, 4), soff))
    A("s_waitcnt vmcnt(0)")
    A("v_cmpx_eq_u32 vcc, %d, %s" % (n - 1, v(vTmp)))
    A("s_cbranch_execz %s_x" % sk)
    A("buffer_store_dword %s, off, %s, %s offset:128 sc1" % (v(vTmp), s(sWS, 4), soff))
    A.label(sk + "_x")
    A("s_mov_b64 exec, -1")
    A.label(sk)

def canary(A, soff, imm=0, voff=None):
    lp, ok = A.new("cn"), A.new("cnok")
    A.label(lp)
    if voff is None:
        A("buffer_load_dword %s, off, %s, %s offset:%d sc1" % (v(vTmp), s(sWS, 4), soff, imm))
    else:
        A("buffer_load_dword %s, %s, %s, %s offen offset:%d sc1" % (v(vTmp), v(voff), s(sWS, 4), soff, imm))
    A("s_waitcnt vmcnt(0)")
    A("v_cmp_eq_u32 vcc, -1, %s" % v(vTmp))
    A("s_cbranch_vccz %s" % ok)
    A("s_sleep 1")
    A("s_sub_u32 %s, %s, 1" % (s(sBud), s(sBud)))
    A("s_cbranch_scc0 %s" % lp)
    A("s_mov_b32 %s, 0" % s(sBud))
    A.label(ok)
def maxchain(A, regs, first):
    regs = list(regs)
    if first:
        A("v_max_u32 %s, %s, %s" % (v(vTmp), v(regs[0]), v(regs[1])))
        regs = regs[2:]
    for i in range(0, len(regs), 2):
        A("v_max3_u32 %s, %s, %s, %s" % (v(vTmp), v(vTmp), v(regs[i]), v(regs[i + 1])))
def retry_if_sentinel(A, lagain):
    ok = A.new("sok")
    A("v_cmp_eq_u32 vcc, -1, %s" % v(vTmp))
    A("s_cbranch_vccz %s" % ok)
    A("s_sub_u32 %s, %s, 1" % (s(sBud), s(sBud)))
    A("s_cbranch_scc0 %s" % lagain)
    A("s_mov_b32 %s, 0" % s(sBud))
    A.label(ok)

def MF(A, d, a_, b_, c_):
    A("v_mfma_f32_16x16x32_bf16 %s, %s, %s, %s" % (d, a_, b_, c_))

sLW = 99
def stage_issue(A, chunks, c):
    srd, voff, so, _ = chunks[c]
    for j in range(4):
        A("s_add_u32 m0, %s, %d" % (s(sLW), (c % NSLOT) * 16384 + j * 1024))
        A("s_mov_b32 %s, %d" % (s(sT + 2), so[j]))
        A.vmem("buffer_load_dwordx4 %s, %s, %s offen lds" % (v(voff), s(srd, 4), s(sT + 2)), ('c', c))
def stage_start(A, chunks):
    A("s_lshl_b32 %s, %s, 12" % (s(sLW), s(sW)))
    for c in range(min(NSLOT - 1, len(chunks))):
        stage_issue(A, chunks, c)
def stage(A, chunks, started=False):
    if not started:
        stage_start(A, chunks)
    n = len(chunks)
    for c in range(n):
        A.wait_vm(('c', c))
        A("s_barrier")
        if c + NSLOT - 1 < n:
            stage_issue(A, chunks, c + NSLOT - 1)
        chunks[c][3]((c % NSLOT) * 16384)
        A.wait_ds()
    A("s_barrier")

def wide_off(A, dst, t1, rowstride, s_extra):
    A("v_lshlrev_b32 %s, 2, %s" % (v(t1), v(vG)))
    A("v_sub_u32 %s, %s, %s" % (v(t1), v(vLane), v(t1)))
    A("v_and_b32 %s, 15, %s" % (v(t1), v(t1)))
    A("v_lshlrev_b32 %s, 4, %s" % (v(t1), v(t1)))
    A("v_mul_u32_u24 %s, %d, %s" % (v(dst), rowstride, v(vG)))
    A("v_add_u32 %s, %s, %s" % (v(dst), v(dst), v(t1)))
    A("s_mul_i32 %s, %s, %d" % (s(sT + 3), s(sW), 16 * rowstride))
    A("s_add_u32 %s, %s, %s" % (s(sT + 3), s(sT + 3), s_extra))
    A("v_add_u32 %s, %s, %s" % (v(dst), s(sT + 3), v(dst)))

def wide_tr(A, dst, t1, s_col, ccmul):
    A("v_mul_u32_u24 %s, %d, %s" % (v(t1), ccmul, v(vX)))
    A("v_lshl_add_u32 %s, %s, 2, %s" % (v(t1), v(vC), v(t1)))
    A("v_add_u32 %s, %s, %s" % (v(t1), s_col, v(t1)))
    A("v_and_b32 %s, 15, %s" % (v(t1), v(t1)))
    A("v_lshlrev_b32 %s, 4, %s" % (v(t1), v(t1)))
    A("v_lshl_add_u32 %s, %s, 3, %s" % (v(dst), v(vG), v(vC)))
    A("v_lshl_add_u32 %s, %s, 8, %s" % (v(dst), v(dst), v(t1)))

def tall_off(A, dst, t1, s_extra):
    A("v_lshrrev_b32 %s, 3, %s" % (v(t1), v(vLane)))
    A("v_mul_u32_u24 %s, 1152, %s" % (v(dst), v(t1)))
    A("v_and_b32 %s, 7, %s" % (v(t1), v(vLane)))
    A("v_lshl_add_u32 %s, %s, 4, %s" % (v(dst), v(t1), v(dst)))
    A("s_mul_i32 %s, %s, %d" % (s(sT + 3), s(sW), 32 * 1152))
    A("s_add_u32 %s, %s, %s" % (s(sT + 3), s(sT + 3), s_extra))
    A("v_add_u32 %s, %s, %s" % (v(dst), s(sT + 3), v(dst)))

def tall_tr(A, dst, kbshift):
    A("v_lshl_add_u32 %s, %s, %d, %s" % (v(dst), v(vG), kbshift, v(vC)))
    A("v_lshlrev_b32 %s, 7, %s" % (v(dst), v(dst)))
    A("v_lshl_add_u32 %s, %s, 3, %s" % (v(dst), v(vX), v(dst)))
    A("s_lshl_b32 %s, %s, 5" % (s(sT + 3), s(sW)))
    A("v_add_u32 %s, %s, %s" % (v(dst), s(sT + 3), v(dst)))

def tr2(A, reg, addr, imm0, imm1):
    A.ds("ds_read_b64_tr_b16 %s, %s offset:%d" % (R(reg, 2), v(addr), imm0))
    A.ds("ds_read_b64_tr_b16 %s, %s offset:%d" % (R(reg + 2, 2), v(addr), imm1))

def x_dma(A, vXo, sSrc, sM0):
    for i in range(9):
        A("s_add_u32 m0, %s, %d" % (s(sM0), 896 * i))
        A("s_nop 0")
        A.vmem("buffer_load_dwordx4 %s, %s, %s offen offset:%d sc1 lds" % (v(vXo), s(sWS, 4), s(sSrc), 128 * i), 'x')

def gemm576(A, vXa, LAND, wreg, acc, ntile, swap, mid=None):
    def rd(ks):
        for tt in range(2):
            A.ds("ds_read_b128 %s, %s offset:%d" % (v(LAND + 8 * (ks & 1) + 4 * tt, 4), v(vXa + (ks & 1)), 18432 * tt + (ks >> 1) * 1024), ('x', ks))
    rd(0)
    for ks in range(18):
        A.wait_ds(('x', ks))
        n = 0
        for t in range(ntile):
            for tt in range(2):
                x = v(LAND + 8 * (ks & 1) + 4 * tt, 4)
                w = R(wreg(t, ks), 4)
                d = v(acc(t, tt), 4)
                if swap(t):
                    MF(A, d, x, w, "0" if ks == 0 else d)
                else:
                    MF(A, d, w, x, "0" if ks == 0 else d)
                n += 1
                if n == 1 and ks + 1 < 18:
                    rd(ks + 1)
        if mid and ks == 4:
            mid()

def wave_sum(A, r, t):
    for k in (8, 4, 2, 1):
        A("s_nop 1")
        A("v_add_f32_dpp %s, %s, %s row_ror:%d row_mask:0xf bank_mask:0xf" % (v(r), v(r), v(r), k))
    for op in ("v_permlane16_swap_b32", "v_permlane32_swap_b32"):
        A("v_mov_b32 %s, %s" % (v(t), v(r)))
        A("s_nop 1")
        A("%s %s, %s" % (op, v(r), v(t)))
        A("v_add_f32 %s, %s, %s" % (v(r), v(r), v(t)))

def rnd2(A, a, b):
    A("v_cvt_pk_bf16_f32 %s, %s, %s" % (v(b), v(a), v(b)))
    A("v_lshlrev_b32 %s, 16, %s" % (v(a), v(b)))
    A("v_and_b32 %s, 0xffff0000, %s" % (v(b), v(b)))
def rnd1(A, a):
    A("v_cvt_pk_bf16_f32 %s, %s, %s" % (v(a), v(a), v(a)))
    A("v_and_b32 %s, 0xffff0000, %s" % (v(a), v(a)))
def unpack(A, lo, hi, src):
    A("v_and_b32 %s, 0xffff0000, %s" % (v(hi), v(src))) if hi != src else None
    A("v_lshlrev_b32 %s, 16, %s" % (v(lo), v(src)))
    if hi == src:
        A("v_and_b32 %s, 0xffff0000, %s" % (v(hi), v(src)))

def row_offsets(A, vRow, vRow2, svalid, t):
    A("v_and_b32 %s, 7, %s" % (v(t), v(vLane)))
    A("v_lshlrev_b32 %s, 4, %s" % (v(vRow), v(t)))
    A("v_bfe_u32 %s, %s, 3, 1" % (v(t), v(vLane)))
    A("v_lshl_add_u32 %s, %s, 8, %s" % (v(vRow), v(t), v(vRow)))
    A("v_lshrrev_b32 %s, 1, %s" % (v(t), v(vG)))
    A("v_lshl_add_u32 %s, %s, 7, %s" % (v(vRow), v(t), v(vRow)))
    A("v_and_b32 %s, 1, %s" % (v(t), v(vG)))
    A("v_lshl_add_u32 %s, %s, 3, %s" % (v(vRow), v(t), v(vRow)))
    A("s_mov_b32 %s, 0x00ff00ff" % s(svalid))
    A("s_mov_b32 %s, 0" % s(svalid + 1))
    A("v_mov_b32 %s, 0x%x" % (v(t), OOB >> 1))
    A("v_cndmask_b32 %s, %s, %s, %s" % (v(vRow2), v(t), v(vRow), s(svalid, 2)))

def load_mod(A, dst, which, vRow, vRow2, t1, t2):
    A("v_lshlrev_b32 %s, 1, %s" % (v(t1), v(vRow)))
    A("v_lshlrev_b32 %s, 1, %s" % (v(t2), v(vRow2)))
    A("s_mov_b32 %s, %d" % (s(sT + 2), WS_MOD + which * 2304))
    for U in range(3):
        A.vmem("buffer_load_dwordx4 %s, %s, %s, %s offen offset:%d sc1" % (v(dst + 4 * U, 4), v(t1 if U < 2 else t2), s(sWS, 4), s(sT + 2), 1024 * U), 'mod')

def ln_stats(A, X, D, svalid, m, rs, t):
    A("v_add_f32 %s, %s, %s" % (v(m), v(X), v(X + 1)))
    for i in range(2, 12):
        A("v_add_f32 %s, %s, %s" % (v(m), v(m), v(X + i)))
    wave_sum(A, m, t)
    A("v_mul_f32 %s, 0x%x, %s" % (v(m), f32bits(1.0 / 576), v(m)))
    for i in range(12):
        A("v_sub_f32 %s, %s, %s" % (v(D + i), v(X + i), v(m)))
    A("v_mul_f32 %s, %s, %s" % (v(rs), v(D + 8), v(D + 8)))
    for i in range(9, 12):
        A("v_fmac_f32 %s, %s, %s" % (v(rs), v(D + i), v(D + i)))
    A("v_cndmask_b32 %s, 0, %s, %s" % (v(rs), v(rs), s(svalid, 2)))
    for i in range(8):
        A("v_fmac_f32 %s, %s, %s" % (v(rs), v(D + i), v(D + i)))
    wave_sum(A, rs, t)
    A("v_mul_f32 %s, 0x%x, %s" % (v(rs), f32bits(1.0 / 576), v(rs)))
    rnd2(A, m, rs)
    A("v_add_f32 %s, 0x%x, %s" % (v(rs), f32bits(1e-5), v(rs)))
    rnd1(A, rs)
    A("v_sqrt_f32 %s, %s" % (v(rs), v(rs)))
    A("s_nop 0")
    rnd1(A, rs)
    A("v_rcp_f32 %s, %s" % (v(rs), v(rs)))
    A("s_nop 0")

def ln_apply(A, X, m, rs, C1, SH, out):
    for i in range(12):
        A("v_sub_f32 %s, %s, %s" % (v(X + i), v(X + i), v(m)))
    for i in range(0, 12, 2):
        rnd2(A, X + i, X + i + 1)
    for i in range(12):
        A("v_mul_f32 %s, %s, %s" % (v(X + i), v(X + i), v(rs)))
    for i in range(0, 12, 2):
        rnd2(A, X + i, X + i + 1)
    for i in range(12):
        A("v_mul_f32 %s, %s, %s" % (v(X + i), v(X + i), v(C1 + i)))
    for i in range(0, 12, 2):
        rnd2(A, X + i, X + i + 1)
    for i in range(12):
        A("v_add_f32 %s, %s, %s" % (v(X + i), v(X + i), v(SH + i)))
    for i in range(6):
        A("v_cvt_pk_bf16_f32 %s, %s, %s" % (v(out + i), v(X + 2 * i), v(X + 2 * i + 1)))

def one_plus(A, C):
    for i in range(12):
        A("v_add_f32 %s, 1.0, %s" % (v(C + i), v(C + i)))
    for i in range(0, 12, 2):
        rnd2(A, C + i, C + i + 1)

def row_io(A, op, reg, vRow, vRow2, srd, soff, flags=""):
    for U in range(3):
        A.vmem("buffer_%s_dwordx2 %s, %s, %s, %s offen offset:%d%s" % (op, v(reg + 2 * U, 2), v(vRow if U < 2 else vRow2), s(srd, 4), soff, 512 * U, flags), 'row')

def sel_masks(A):
    for hi in range(2):
        for u in range(4):
            m16 = (3 << (2 * u)) << (8 * hi)
            m32 = m16 | (m16 << 16)
            A("s_mov_b32 %s, 0x%x" % (s(sSel + 8 * hi + 2 * u), m32))
            A("s_mov_b32 %s, 0x%x" % (s(sSel + 8 * hi + 2 * u + 1), m32))
def make_sel(A, dst, hi, t):
    A("v_and_b32 %s, 1, %s" % (v(t), v(vLane)))
    A("v_lshlrev_b32 %s, 4, %s" % (v(t), v(t)))
    A("v_mov_b32 %s, 0x3f80" % v(dst))
    A("v_lshlrev_b32 %s, %s, %s" % (v(t), v(t), v(dst)))
    for u in range(4):
        A("v_cndmask_b32 %s, 0, %s, %s" % (v(dst + u), v(t), s(sSel + 8 * hi + 2 * u, 2)))

def emit_worker(A, opt=()):
    A.c("=========== worker ===========")
    A("v_mov_b32 %s, v0" % v(vLane))
    A("v_lshlrev_b32 %s, 4, %s" % (v(vL16), v(vLane)))
    A("v_lshrrev_b32 %s, 4, %s" % (v(vG), v(vLane)))
    A("v_bfe_u32 %s, %s, 2, 2" % (v(vC), v(vLane)))
    A("v_and_b32 %s, 3, %s" % (v(vX), v(vLane)))
    A("s_mov_b32 %s, 400000" % s(sBud))
    TS['on'], TS['reg'], TS['fine'] = "ts" in opt, 79, "fs" in opt
    TS['cnt'] = "cnt" in opt
    ts(A, 0)
    sel_masks(A)
    build_srd(A, sXS, 0, 2359296)
    vRow, vRow2 = 7, 8
    sValid = sMask
    row_offsets(A, vRow, vRow2, sValid, vTmp)
    A("s_mul_i32 %s, %s, 9363" % (s(sSl), s(sWid)))
    A("s_lshr_b32 %s, %s, 16" % (s(sSl), s(sSl)))
    A("s_mul_i32 %s, %s, 7" % (s(sT), s(sSl)))
    A("s_sub_u32 %s, %s, %s" % (s(sRep), s(sWid), s(sT)))
    vOffW, vTr, vAd = 77, 78, 11
    A("s_lshl_b32 %s, %s, 8" % (s(sT + 1), s(sSl)))
    wide_off(A, vOffW, vTmp, 8192, s(sT + 1))
    A("s_lshr_b32 %s, %s, 1" % (s(sT + 1), s(sW)))
    A("s_lshl_b32 %s, %s, 3" % (s(sT + 1), s(sT + 1)))
    A("s_and_b32 %s, %s, 1" % (s(sT + 2), s(sW)))
    A("s_add_u32 %s, %s, %s" % (s(sT + 1), s(sT + 1), s(sT + 2)))
    wide_tr(A, vTr, vTmp, s(sT + 1), 2)
    W0 = 80
    def wq(t, ks):
        return W0 + 4 * (6 * ks + t)
    def wide_chunks(mats, rowstride, wreg, vOffW=vOffW, vTr=vTr):
        out = []
        for G in range(9):
            for m, srd in enumerate(mats):
                def consume(base, m=m, G=G):
                    A("v_add_u32 %s, %d, %s" % (v(vAd), base, v(vTr)))
                    for k2 in range(2):
                        for t in range(2):
                            tr2(A, wreg(2 * m + t, 2 * G + k2), vAd, 32 * k2 * 256 + 8 * t, (32 * k2 + 4) * 256 + 8 * t)
                out.append((srd, vOffW, [(64 * G + 4 * j) * rowstride for j in range(4)], consume))
        return out
    qchunks = wide_chunks((sW1, sW2, sW3), 8192, wq)
    lmod, lpre_done, lidle = A.new("mod"), A.new("predone"), A.new("idle")
    XR = 16
    A("s_cmp_lt_u32 %s, 3" % s(sRep))
    A("s_cbranch_scc1 %s" % lmod)
    A("s_lshl_b32 %s, %s, 2" % (s(sT), s(sSl)))
    A("s_add_u32 %s, %s, %s" % (s(sT), s(sT), s(sRep)))
    A("s_sub_u32 %s, %s, 3" % (s(sT), s(sT)))
    A("s_lshl_b32 %s, %s, 2" % (s(sT), s(sT)))
    A("s_add_u32 %s, %s, %s" % (s(sT), s(sT), s(sW)))
    A("s_mul_i32 %s, %s, %d" % (s(sA0), s(sT), 4 * 1152))
    for r in range(4):
        A("s_add_u32 %s, %s, %d" % (s(sT), s(sA0), r * 1152))
        row_io(A, "load", XR + 6 * r, vRow, vRow2, sXS, s(sT))
    stage_start(A, qchunks)
    A("s_waitcnt vmcnt(%d)" % (4 * (NSLOT - 1)))
    SH, C1, XF = 40, 52, 100
    for r in range(4):
        for i in range(6):
            unpack(A, XF + 12 * r + 2 * i, XF + 12 * r + 2 * i + 1, XR + 6 * r + i)
        ln_stats(A, XF + 12 * r, 160, sValid, 64 + 2 * r, 65 + 2 * r, 11)
    wait_flags(A, None, "0", srd=sDBG, imm=DBG_MOD)
    load_mod(A, SH, 0, vRow, vRow2, 9, 10)
    load_mod(A, C1, 1, vRow, vRow2, 9, 10)
    A("s_waitcnt vmcnt(0)")
    one_plus(A, C1)
    for r in range(4):
        ln_apply(A, XF + 12 * r, 64 + 2 * r, 65 + 2 * r, C1, SH, XR + 6 * r)
        A("s_add_u32 %s, %s, %d" % (s(sT), s(sA0), WS_H + r * 1152))
        row_io(A, "store", XR + 6 * r, vRow, vRow2, sWS, s(sT), " sc1")
    A("s_waitcnt vmcnt(0)")
    A("s_barrier")
    A("s_mov_b32 %s, %d" % (s(sT), FL_H))
    arrive(A, s(sT), 128)
    A("s_branch %s" % lpre_done)

    A.label(lmod)
    A("s_cmp_eq_u32 %s, 0" % s(sRep))
    A("s_cbranch_scc1 %s" % lidle)
    A("s_cmp_ge_u32 %s, 27" % s(sSl))
    A("s_cbranch_scc1 %s" % lidle)
    build_srd(A, sA0 + 2, 88, 1152)
    build_srd(A, sA0 + 6, 96, 3981312)
    sCs, sWm = sA0 + 2, sA0 + 6
    A("s_lshl_b32 %s, %s, 1" % (s(sA0), s(sSl)))
    A("s_add_u32 %s, %s, %s" % (s(sA0), s(sA0), s(sRep)))
    A("s_sub_u32 %s, %s, 1" % (s(sA0), s(sA0)))
    for i in range(4):
        A("v_mov_b32 %s, 0" % v(12 + i))
    A("s_lshl_b32 %s, %s, 2" % (s(sT), s(sA0)))
    A("s_add_u32 %s, %s, %s" % (s(sT), s(sT), s(sW)))
    A("s_lshl_b32 %s, %s, 11" % (s(sT), s(sT)))
    A("s_add_u32 %s, %s, %d" % (s(sT), s(sT), WS_FL))
    assert FL_END - WS_FL <= 54 * 8192
    A("buffer_store_dwordx4 %s, %s, %s, %s offen sc1" % (v(12, 4), v(vL16), s(sWS, 4), s(sT)))
    A("buffer_store_dwordx4 %s, %s, %s, %s offen offset:1024 sc1" % (v(12, 4), v(vL16), s(sWS, 4), s(sT)))
    A("v_lshrrev_b32 %s, 3, %s" % (v(9), v(vLane)))
    A("s_mul_i32 %s, %s, 144" % (s(sT), s(sW)))
    A("v_add_u32 %s, %s, %s" % (v(9), s(sT), v(9)))
    A("v_lshlrev_b32 %s, 1, %s" % (v(10), v(9)))
    A("v_mul_u32_u24 %s, 6912, %s" % (v(9), v(9)))
    A("v_and_b32 %s, 7, %s" % (v(11), v(vLane)))
    A("v_lshl_add_u32 %s, %s, 4, %s" % (v(9), v(11), v(9)))
    A("s_lshl_b32 %s, %s, 7" % (s(sT), s(sA0)))
    CV, WV, ACC = 100, 120, 200
    for i in range(18):
        A("buffer_load_ushort %s, %s, %s, 0 offen offset:%d" % (v(CV + i), v(10), s(sCs, 4), 16 * i))
    for i in range(18):
        A("s_add_u32 %s, %s, %d" % (s(sT + 1), s(sT), i * 55296))
        A("buffer_load_dwordx4 %s, %s, %s, %s offen" % (v(WV + 4 * i, 4), v(9), s(sWm, 4), s(sT + 1)))
    A("s_waitcnt vmcnt(18)")
    for i in range(18):
        c = CV + i
        A("v_lshlrev_b32 %s, 16, %s" % (v(c), v(c)))
        A("v_mul_f32 %s, 0x%x, %s" % (v(12), f32bits(-math.log2(math.e)), v(c)))
        A("v_exp_f32 %s, %s" % (v(12), v(12)))
        A("s_nop 0")
        A("v_add_f32 %s, 1.0, %s" % (v(12), v(12)))
        A("v_rcp_f32 %s, %s" % (v(12), v(12)))
        A("s_nop 0")
        A("v_mul_f32 %s, %s, %s" % (v(c), v(c), v(12)))
        rnd1(A, c)
    for j in range(8):
        A("v_mov_b32 %s, 0" % v(ACC + j))
    A("s_waitcnt vmcnt(0)")
    for i in range(18):
        for j in range(4):
            unpack(A, 12, 13, WV + 4 * i + j)
            A("v_fmac_f32 %s, %s, %s" % (v(ACC + 2 * j), v(12), v(CV + i)))
            A("v_fmac_f32 %s, %s, %s" % (v(ACC + 2 * j + 1), v(13), v(CV + i)))
    for j in range(8):
        r = ACC + j
        A("s_nop 1")
        A("v_add_f32_dpp %s, %s, %s row_ror:8 row_mask:0xf bank_mask:0xf" % (v(r), v(r), v(r)))
        for op in ("v_permlane16_swap_b32", "v_permlane32_swap_b32"):
            A("v_mov_b32 %s, %s" % (v(12), v(r)))
            A("s_nop 1")
            A("%s %s, %s" % (op, v(r), v(12)))
            A("v_add_f32 %s, %s, %s" % (v(r), v(r), v(12)))
    A("s_lshl_b32 %s, %s, 8" % (s(sT + 1), s(sW)))
    A("s_add_u32 %s, %s, %d" % (s(sT + 1), s(sT + 1), L_SCR))
    A("v_lshlrev_b32 %s, 5, %s" % (v(11), v(11)))
    A("v_add_u32 %s, %s, %s" % (v(11), s(sT + 1), v(11)))
    A("ds_write_b128 %s, %s" % (v(11), v(ACC, 4)))
    A("ds_write_b128 %s, %s offset:16" % (v(11), v(ACC + 4, 4)))
    A("s_waitcnt lgkmcnt(0)")
    A("s_barrier")
    A("v_lshlrev_b32 %s, 2, %s" % (v(10), v(vLane)))
    A("v_add_u32 %s, %d, %s" % (v(11), L_SCR, v(10)))
    for i in range(4):
        A("ds_read_b32 %s, %s offset:%d" % (v(12 + i), v(11), 256 * i))
    A("s_waitcnt lgkmcnt(0)")
    A("v_add_f32 %s, %s, %s" % (v(12), v(12), v(13)))
    A("v_add_f32 %s, %s, %s" % (v(14), v(14), v(15)))
    A("v_add_f32 %s, %s, %s" % (v(12), v(12), v(14)))
    rnd1(A, 12)
    A("s_lshl_b32 %s, %s, 8" % (s(sT), s(sA0)))
    A("s_add_u32 %s, %s, %d" % (s(sT), s(sT), WS_MOD))
    sk = A.new("modw")
    A("s_cmp_lg_u32 %s, 0" % s(sW))
    A("s_cbranch_scc1 %s" % sk)
    A("buffer_store_dword %s, %s, %s, %s offen sc1" % (v(12), v(10), s(sWS, 4), s(sT)))
    A("s_waitcnt vmcnt(0)")
    A("s_mov_b64 exec, 1")
    A("v_mov_b32 %s, 1" % v(12))
    A("buffer_atomic_add %s, off, %s, 0 offset:%d sc0" % (v(12), s(sDBG, 4), DBG_MODC))
    A("s_waitcnt vmcnt(0)")
    A("v_cmpx_eq_u32 vcc, 53, %s" % v(12))
    A("s_cbranch_execz %s_x" % sk)
    A("buffer_store_dword %s, off, %s, 0 offset:%d sc1" % (v(12), s(sDBG, 4), DBG_MOD))
    A.label(sk + "_x")
    A("s_mov_b64 exec, -1")
    A.label(sk)
    A.label(lidle)
    stage_start(A, qchunks)
    A.label(lpre_done)
    ts(A, 1)

    A.vm, A.lds = [('c', c) for c in range(NSLOT - 1) for j in range(4)], []
    stage(A, qchunks, started=True)
    ts(A, 2)
    wait_flags(A, None, "0", srd=sDBG, imm=DBG_MOD)
    ts(A, 3)
    ts(A, 4)
    if TS['on']:
        A("v_mov_b32 v15, v79")
        A("s_mov_b32 %s, 8" % s(sTsI))
        TS['reg'] = 15
    A("s_mov_b32 %s, %d" % (s(sT), FL_H))
    wait_flags(A, None, s(sT), imm=128)
    ts(A, 5)
    vXo, vXa = 9, 10
    LAND, ACC = 16, 32
    sSrc, sM0x, sQo, sKo, sFlag, sBuf = sA0, sA0 + 1, sA0 + 2, sA0 + 3, sA0 + 4, sA0 + 5
    def xsetup(vXa):
        A("v_lshrrev_b32 %s, 3, %s" % (v(vTmp), v(vLane)))
        A("v_xor_b32 %s, %s, %s" % (v(vXa), v(vTmp), v(vLane)))
        A("v_and_b32 %s, 7, %s" % (v(vXa), v(vXa)))
        A("v_mul_u32_u24 %s, 1152, %s" % (v(vXo), v(vTmp)))
        A("v_lshl_add_u32 %s, %s, 4, %s" % (v(vXo), v(vXa), v(vXo)))
        A("s_mul_i32 %s, %s, 9216" % (s(sM0x), s(sW)))
        A("v_add_u32 %s, %s, %s" % (v(vXo), s(sM0x), v(vXo)))
        A("v_and_b32 %s, 7, %s" % (v(vTmp), v(vLane)))
        A("v_xor_b32 %s, %s, %s" % (v(vXa), v(vG), v(vTmp)))
        A("v_lshlrev_b32 %s, 4, %s" % (v(vXa), v(vXa)))
        A("v_lshl_add_u32 %s, %s, 7, %s" % (v(vXa), v(vTmp), v(vXa)))
        A("v_bfe_u32 %s, %s, 3, 1" % (v(vTmp), v(vLane)))
        A("v_mul_u32_u24 %s, 9216, %s" % (v(vTmp), v(vTmp)))
        A("v_add_u32 %s, %s, %s" % (v(vXa), v(vXa), v(vTmp)))
        A("v_xor_b32 %s, 64, %s" % (v(vXa + 1), v(vXa)))
    xsetup(vXa)
    A("s_mov_b32 %s, %s" % (s(sSeg), s(sRep)))
    A("s_mul_i32 %s, %s, 36864" % (s(sSrc), s(sSeg)))
    A("s_add_u32 %s, %s, %d" % (s(sSrc), s(sSrc), WS_H))
    A("s_lshl_b32 %s, %s, 5" % (s(sT), s(sSeg)))
    A("s_add_u32 %s, %s, %s" % (s(sT), s(sT), s(sSl)))
    A("s_lshl_b32 %s, %s, 10" % (s(sT + 1), s(sW)))
    A("s_lshl_b32 %s, %s, 13" % (s(sQo), s(sT)))
    A("s_add_u32 %s, %s, %s" % (s(sQo), s(sQo), s(sT + 1)))
    A("s_add_u32 %s, %s, %d" % (s(sQo), s(sQo), WS_Q))
    A("s_lshl_b32 %s, %s, 14" % (s(sKo), s(sT)))
    A("s_add_u32 %s, %s, %s" % (s(sKo), s(sKo), s(sT + 1)))
    if WS_KV:
        A("s_add_u32 %s, %s, %d" % (s(sKo), s(sKo), WS_KV))
    A("s_mov_b32 %s, 0x%x" % (s(sFlag), OOB))
    A.vm = []
    x_dma(A, vXo, sSrc, sM0x)
    A("s_waitcnt vmcnt(0)")
    ltop, lend = A.new("qkv"), A.new("qkvend")
    A.label(ltop)
    A("s_waitcnt vmcnt(7)")
    A("s_barrier")
    ts(A)
    fs(A, 20)
    A("s_xor_b32 %s, %s, 0x10000" % (s(sM0x), s(sM0x)))
    A("s_add_u32 %s, %s, %d" % (s(sSrc), s(sSrc), 7 * 36864))
    x_dma(A, vXo, sSrc, sM0x)
    def mid():
        A("s_waitcnt vmcnt(9)")
        A("s_barrier")
        set_flag(A, s(sFlag))
    fs(A, 21)
    A.lds = []
    gemm576(A, vXa, LAND, wq, lambda t, tt: ACC + 8 * t + 4 * tt, 6, lambda t: t >= 4, mid)
    fs(A, 22)
    A("v_xor_b32 %s, 0x10000, %s" % (v(vXa), v(vXa)))
    A("v_xor_b32 %s, 0x10000, %s" % (v(vXa + 1), v(vXa + 1)))
    A("s_lshl_b32 %s, %s, 8" % (s(sFlag), s(sSl)))
    A("s_lshl_b32 %s, %s, 2" % (s(sT), s(sSeg)))
    A("s_add_u32 %s, %s, %s" % (s(sFlag), s(sFlag), s(sT)))
    A("s_add_u32 %s, %s, %d" % (s(sFlag), s(sFlag), FL_KV))
    A("s_add_u32 %s, %s, 4096" % (s(sT), s(sQo)))
    A("s_add_u32 %s, %s, 4096" % (s(sT + 1), s(sKo)))
    A("s_lshl_b32 %s, %s, 10" % (s(sT + 2), s(sW)))
    A("s_add_u32 %s, %s, %s" % (s(sT + 2), s(sT + 2), s(sKo)))
    A("s_add_u32 %s, %s, 8192" % (s(sT + 2), s(sT + 2)))
    for m in range(2):
        for tt in range(2):
            a0, a1 = ACC + 16 * m + 4 * tt, ACC + 16 * m + 8 + 4 * tt
            for x in range(4):
                A("v_cvt_pk_bf16_f32 %s, %s, %s" % (v(a0 + x), v(a0 + x), v(a1 + x)))
            so = (sQo, sT, sKo, sT + 1)[2 * m + tt]
            A("buffer_store_dwordx4 %s, %s, %s, %s offen sc1" % (v(a0, 4), v(vL16), s(sWS, 4), s(so)))
    for t in range(2):
        a0 = ACC + 32 + 8 * t
        A("v_cvt_pk_bf16_f32 %s, %s, %s" % (v(a0), v(a0), v(a0 + 1)))
        A("v_cvt_pk_bf16_f32 %s, %s, %s" % (v(a0 + 1), v(a0 + 2), v(a0 + 3)))
        A("v_cvt_pk_bf16_f32 %s, %s, %s" % (v(a0 + 2), v(a0 + 4), v(a0 + 5)))
        A("v_cvt_pk_bf16_f32 %s, %s, %s" % (v(a0 + 3), v(a0 + 6), v(a0 + 7)))
        A("buffer_store_dwordx4 %s, %s, %s, %s offen offset:%d sc1" % (v(a0, 4), v(vL16), s(sWS, 4), s(sT + 2), 1024 * t))
    A("v_mov_b64 %s, -1" % v(LAND, 2))
    A("v_mov_b64 %s, -1" % v(LAND + 2, 2))
    A("s_sub_u32 %s, %s, %d" % (s(sT), s(sQo), WS_Q))
    A("s_lshl_b32 %s, %s, 10" % (s(sT + 1), s(sW)))
    A("s_add_u32 %s, %s, %s" % (s(sT), s(sT), s(sT + 1)))
    A("s_lshr_b32 %s, %s, 1" % (s(sT), s(sT)))
    A("s_add_u32 %s, %s, %d" % (s(sT), s(sT), WS_KM))
    A("buffer_store_dwordx4 %s, %s, %s, %s offen sc1" % (v(LAND, 4), v(vL16), s(sWS, 4), s(sT)))
    fs(A, 23)
    A("s_add_u32 %s, %s, %d" % (s(sQo), s(sQo), 7 * 32 * 8192))
    A("s_add_u32 %s, %s, %d" % (s(sKo), s(sKo), 7 * 32 * 16384))
    A("s_add_u32 %s, %s, 7" % (s(sSeg), s(sSeg)))
    A("s_cmp_lt_u32 %s, 64" % s(sSeg))
    A("s_cbranch_scc1 %s" % ltop)
    A("s_waitcnt vmcnt(0)")
    A("s_barrier")
    set_flag(A, s(sFlag))
    ts(A, 6)
    ts_dump(A, 0)
    if "p1only" in opt:
        return
    lC = A.new("roleC")
    A("s_cmp_ge_u32 %s, 80" % s(sWid))
    A("s_cbranch_scc1 %s" % lC)
    lB = A.new("roleB")
    A("s_cmp_ge_u32 %s, 64" % s(sWid))
    A("s_cbranch_scc1 %s" % lB)
    emit_roleA(A, opt)
    A("s_endpgm")
    A.label(lB)
    emit_roleB(A, vRow, vRow2, sValid, opt)
    A("s_endpgm")
    A.label(lC)
    emit_roleC(A, xsetup, wide_chunks, opt)

def emit_roleA(A, opt):
    A.c("=========== role A: attention + Wo partial ===========")
    A("s_lshr_b32 %s, %s, 2" % (s(sSl), s(sWid)))
    A("s_and_b32 %s, %s, 3" % (s(sRep), s(sWid)))
    vOff, vTr, vAd = 9, 10, 11
    A("s_mul_i32 %s, %s, %d" % (s(sT + 1), s(sSl), 2 * 147456))
    tall_off(A, vOff, vTmp, s(sT + 1))
    tall_tr(A, vTr, 4)
    W0 = 224
    def wo(G, K):
        return W0 + 4 * (8 * G + K)
    chunks = []
    for hd in range(2):
        for G in range(9):
            def consume(base, hd=hd, G=G):
                A("v_add_u32 %s, %d, %s" % (v(vAd), base, v(vTr)))
                for ks in range(4):
                    r0 = 64 * (ks >> 1) + 8 * (ks & 1)
                    tr2(A, wo(G, 4 * hd + ks), vAd, r0 * 128, (r0 + 4) * 128)
            chunks.append((sWO, vOff, [hd * 147456 + 8 * j * 1152 + 128 * G for j in range(4)], consume))
    A.vm, A.lds = ['old'] * 2, []
    stage(A, chunks)
    TS['reg'] = 19
    ts(A)
    vKM, vL4, vOwr, vTw, vTrd, vPst, vPld, vNEG = 9, 10, 11, 12, 13, 14, 15, 16
    GA, SB, CB = 20, 32, 44
    SEL0, SEL1 = 56, 60
    QF, KX, VX, KM, VM = 64, 80, 112, 144, 160
    S_, OA = 176, 188
    WACC, LAND = 144, 216
    L_OT, L_PT = 0, 16384
    PSTR = 1168
    A("v_lshlrev_b32 %s, 2, %s" % (v(vL4), v(vLane)))
    A("v_lshrrev_b32 %s, 1, %s" % (v(vTmp), v(vG)))
    A("v_lshlrev_b32 %s, 10, %s" % (v(vKM), v(vTmp)))
    A("v_and_b32 %s, 1, %s" % (v(vTmp), v(vX)))
    A("v_lshl_add_u32 %s, %s, 8, %s" % (v(vKM), v(vTmp), v(vKM)))
    A("v_lshl_add_u32 %s, %s, 6, %s" % (v(vKM), v(vC), v(vKM)))
    A("v_and_b32 %s, 1, %s" % (v(vTmp), v(vG)))
    A("v_lshl_add_u32 %s, %s, 5, %s" % (v(vKM), v(vTmp), v(vKM)))
    A("s_and_b32 %s, %s, 1" % (s(sT), s(sW)))
    A("s_lshl_b32 %s, %s, 13" % (s(sT + 1), s(sT)))
    A("s_lshr_b32 %s, %s, 1" % (s(sT + 2), s(sW)))
    A("s_lshl_b32 %s, %s, 12" % (s(sT + 3), s(sT + 2)))
    A("s_add_u32 %s, %s, %s" % (s(sT + 1), s(sT + 1), s(sT + 3)))
    A("v_add_u32 %s, %s, %s" % (v(vOwr), s(sT + 1), v(vL16)))
    A("v_and_b32 %s, 15, %s" % (v(17), v(vLane)))
    A("s_lshl_b32 %s, %s, 4" % (s(sT + 1), s(sT)))
    A("v_add_u32 %s, %s, %s" % (v(17), s(sT + 1), v(17)))
    A("v_lshlrev_b32 %s, 2, %s" % (v(18), v(vG)))
    A("v_sub_u32 %s, %s, %s" % (v(17), v(17), v(18)))
    sCM = sA0 + 6
    for i in range(8):
        A("v_cmp_le_i32 %s, %d, %s" % (s(sCM + 2 * i, 2), 16 * (i >> 2) + (i & 3), v(17)))
    A("v_mov_b32 %s, 0x%x" % (v(vNEG), f32bits(-1e9)))
    A("v_and_b32 %s, 15, %s" % (v(vTmp), v(vLane)))
    A("v_mul_u32_u24 %s, %d, %s" % (v(vTw), PSTR, v(vTmp)))
    A("v_lshl_add_u32 %s, %s, 3, %s" % (v(vTw), v(vG), v(vTw)))
    A("s_lshl_b32 %s, %s, 5" % (s(sT + 1), s(sW)))
    A("s_add_u32 %s, %s, %d" % (s(sT + 1), s(sT + 1), L_PT))
    A("v_add_u32 %s, %s, %s" % (v(vTw), s(sT + 1), v(vTw)))
    A("v_lshrrev_b32 %s, 3, %s" % (v(17), v(vLane)))
    A("v_and_b32 %s, 7, %s" % (v(18), v(vLane)))
    A("v_lshlrev_b32 %s, 4, %s" % (v(18), v(18)))
    A("s_lshl_b32 %s, %s, 3" % (s(sT + 1), s(sW)))
    A("v_add_u32 %s, %s, %s" % (v(17), s(sT + 1), v(17)))
    A("v_mul_u32_u24 %s, %d, %s" % (v(vTrd), PSTR, v(17)))
    A("v_add_u32 %s, %s, %s" % (v(vTrd), v(vTrd), v(18)))
    A("v_add_u32 %s, %d, %s" % (v(vTrd), L_PT, v(vTrd)))
    A("v_mul_u32_u24 %s, 18432, %s" % (v(vPst), v(17)))
    A("v_add_u32 %s, %s, %s" % (v(vPst), v(vPst), v(18)))
    A("s_mul_i32 %s, %s, 1152" % (s(sT + 1), s(sSl)))
    A("v_add_u32 %s, %s, %s" % (v(vPst), s(sT + 1), v(vPst)))
    sHead, sSH, sPAo, sRowo = sA0, sA0 + 1, sA0 + 2, sA0 + 3
    A("s_lshl_b32 %s, %s, 1" % (s(sHead), s(sSl)))
    A("s_lshr_b32 %s, %s, 1" % (s(sT), s(sW)))
    A("s_add_u32 %s, %s, %s" % (s(sHead), s(sHead), s(sT)))
    A("s_mov_b32 %s, %s" % (s(sSeg), s(sRep)))
    A("s_lshl_b32 %s, %s, 8" % (s(sT), s(sHead)))
    A("s_add_u32 %s, %s, %d" % (s(sT), s(sT), FL_KV))
    wait_flags(A, vL4, s(sT))
    A("s_lshl_b32 %s, %s, 5" % (s(sSH), s(sSeg)))
    A("s_add_u32 %s, %s, %s" % (s(sSH), s(sSH), s(sHead)))
    def prefetch():
        A("s_lshl_b32 %s, %s, 13" % (s(sT), s(sSH)))
        A("s_and_b32 %s, %s, 1" % (s(sT + 1), s(sW)))
        A("s_lshl_b32 %s, %s, 12" % (s(sT + 1), s(sT + 1)))
        A("s_add_u32 %s, %s, %s" % (s(sT), s(sT), s(sT + 1)))
        A("s_add_u32 %s, %s, %d" % (s(sT), s(sT), WS_Q))
        for i in range(4):
            A("buffer_load_dwordx4 %s, %s, %s, %s offen offset:%d sc1" % (v(QF + 4 * i, 4), v(vL16), s(sWS, 4), s(sT), 1024 * i))
        A("s_lshl_b32 %s, %s, 14" % (s(sT), s(sSH)))
        if WS_KV:
            A("s_add_u32 %s, %s, %d" % (s(sT), s(sT), WS_KV))
        for b in range(4):
            for i in range(4):
                A("buffer_load_dwordx4 %s, %s, %s, %s offen offset:%d sc1" % (v(KX + 16 * b + 4 * i, 4), v(vL16), s(sWS, 4), s(sT), 1024 * i))
            if b < 3:
                A("s_add_u32 %s, %s, 4096" % (s(sT), s(sT)))
    A("s_add_u32 %s, %s, 60" % (s(sT), s(sRep)))
    A("s_mul_i32 %s, %s, %d" % (s(sT), s(sT), PA_SEG))
    A("s_add_u32 %s, %s, %d" % (s(sT), s(sT), WS_PA))
    A("v_mov_b64 %s, -1" % v(20, 2))
    A("v_mov_b64 %s, -1" % v(22, 2))
    for G in range(9):
        A("buffer_store_dwordx4 %s, %s, %s, %s offen offset:%d sc1" % (v(20, 4), v(vPst), s(sWS, 4), s(sT), 128 * G))
    prefetch()
    ltop = A.new("atop")
    A.label(ltop)
    T1, T2, T0 = S_, S_ + 4, S_ + 8
    sv = [S_ + i for i in range(10)]
    m1, m2 = 17, 18
    def prep_scores(vals):
        for i in range(0, len(vals), 2):
            rnd2(A, vals[i], vals[i + 1])
        for x in vals:
            A("v_mul_f32 %s, 0x%x, %s" % (v(x), f32bits(128 ** -0.5), v(x)))
        for i in range(0, len(vals), 2):
            rnd2(A, vals[i], vals[i + 1])
    A("s_waitcnt vmcnt(0)")
    for ks in range(4):
        MF(A, v(T1, 4), v(KX + 4 * ks, 4), v(QF + 4 * ks, 4), "0" if ks == 0 else v(T1, 4))
        MF(A, v(T2, 4), v(KX + 16 + 4 * ks, 4), v(QF + 4 * ks, 4), "0" if ks == 0 else v(T2, 4))
    for T in range(8):
        A("v_mov_b32 %s, 0" % v(VM + 2 * T + 1))
    A("s_lshl_b32 %s, %s, 12" % (s(sRowo), s(sSH)))
    A("s_add_u32 %s, %s, %d" % (s(sRowo), s(sRowo), WS_KM))
    prep_scores(sv[:8])
    for i in range(8):
        A("v_cndmask_b32 %s, %s, %s, %s" % (v(sv[i]), v(vNEG), v(sv[i]), s(sCM + 2 * i, 2)))
    A("v_max3_f32 %s, %s, %s, %s" % (v(m1), v(sv[0]), v(sv[1]), v(sv[2])))
    for i in (3, 5):
        A("v_max3_f32 %s, %s, %s, %s" % (v(m1), v(m1), v(sv[i]), v(sv[i + 1])))
    A("v_max_f32 %s, %s, %s" % (v(m1), v(m1), v(sv[7])))
    lc, lf, lok = A.new("can"), A.new("full"), A.new("pubok")
    A.label(lc)
    A("buffer_load_dword %s, off, %s, %s offset:4092 sc1" % (v(vTmp), s(sWS, 4), s(sRowo)))
    A("s_waitcnt vmcnt(0)")
    A("v_cmp_eq_u32 vcc, -1, %s" % v(vTmp))
    A("s_cbranch_vccz %s" % lf)
    A("s_sleep 1")
    A("s_sub_u32 %s, %s, 1" % (s(sBud), s(sBud)))
    A("s_cbranch_scc0 %s" % lc)
    A("s_mov_b32 %s, 0" % s(sBud))
    A.label(lf)
    ts(A)
    fs(A, 0)
    A.label(lf + "_r")
    for ks in range(4):
        A("buffer_load_dwordx4 %s, %s, %s, %s offen offset:%d sc1" % (v(KM + 4 * ks, 4), v(vKM), s(sWS, 4), s(sRowo), (ks >> 1) * 2048 + (ks & 1) * 16))
    for T in range(8):
        A("buffer_load_dword %s, %s, %s, %s offen offset:%d sc1" % (v(VM + 2 * T), v(vL4), s(sWS, 4), s(sRowo), (T >> 1) * 1024 + 512 + (T & 1) * 256))
    A("s_waitcnt vmcnt(8)")
    fs(A, 1)
    for ks in range(4):
        MF(A, v(T0, 4), v(KM + 4 * ks, 4), v(QF + 4 * ks, 4), "0" if ks == 0 else v(T0, 4))
        for h in range(2):
            r = KM + 4 * ks + 2 * h
            if ks == 0 and h == 0:
                A("v_max_u32 %s, %s, %s" % (v(vTmp), v(r), v(r + 1)))
            else:
                A("v_max3_u32 %s, %s, %s, %s" % (v(vTmp), v(vTmp), v(r), v(r + 1)))
    A("s_waitcnt vmcnt(0)")
    for T in range(0, 8, 2):
        A("v_max3_u32 %s, %s, %s, %s" % (v(vTmp), v(vTmp), v(VM + 2 * T), v(VM + 2 * T + 2)))
    A("v_cmp_eq_u32 vcc, -1, %s" % v(vTmp))
    A("s_cbranch_vccz %s" % lok)
    A("s_sub_u32 %s, %s, 1" % (s(sBud), s(sBud)))
    A("s_cbranch_scc0 %s_r" % lf)
    A("s_mov_b32 %s, 0" % s(sBud))
    A.label(lok)
    prep_scores(sv[8:])
    A("v_max3_f32 %s, %s, %s, %s" % (v(m1), v(m1), v(sv[8]), v(sv[9])))
    def xl(op):
        for sw in ("v_permlane32_swap_b32", "v_permlane16_swap_b32"):
            A("v_mov_b32 %s, %s" % (v(m2), v(m1)))
            A("s_nop 1")
            A("%s %s, %s" % (sw, v(m1), v(m2)))
            A("%s %s, %s, %s" % (op, v(m1), v(m1), v(m2)))
    xl("v_max_f32")
    for x in sv:
        A("v_sub_f32 %s, %s, %s" % (v(x), v(x), v(m1)))
    for x in sv:
        A("v_mul_f32 %s, 0x%x, %s" % (v(x), f32bits(math.log2(math.e)), v(x)))
    for x in sv:
        A("v_exp_f32 %s, %s" % (v(x), v(x)))
    A("v_add_f32 %s, %s, %s" % (v(m1), v(sv[0]), v(sv[1])))
    for x in sv[2:]:
        A("v_add_f32 %s, %s, %s" % (v(m1), v(m1), v(x)))
    xl("v_add_f32")
    A("v_rcp_f32 %s, %s" % (v(m1), v(m1)))
    A("s_nop 0")
    for x in sv:
        A("v_mul_f32 %s, %s, %s" % (v(x), v(x), v(m1)))
    for i in range(4):
        A("v_cvt_pk_bf16_f32 %s, %s, %s" % (v(S_ + i), v(sv[2 * i]), v(sv[2 * i + 1])))
    A("v_cvt_pk_bf16_f32 %s, %s, %s" % (v(T0), v(T0), v(T0 + 1)))
    A("v_mov_b32 %s, 0" % v(T0 + 1))
    A("s_nop 1")
    A.lds = []
    def opack(c):
        b = OA + 8 * c
        for i in range(4):
            A("v_cvt_pk_bf16_f32 %s, %s, %s" % (v(b + i), v(b + 2 * i), v(b + 2 * i + 1)))
        A.ds("ds_write_b128 %s, %s offset:%d" % (v(vOwr), v(b, 4), L_OT + 1024 * c))
    for c in range(4):
        for T in (2 * c, 2 * c + 1):
            MF(A, v(OA + 4 * T, 4), v(VX + 4 * T, 4), v(S_, 4), "0")
        for T in (2 * c, 2 * c + 1):
            A("v_mfma_f32_16x16x16_bf16 %s, %s, %s, %s" % (v(OA + 4 * T, 4), v(VM + 2 * T, 2), v(T0, 2), v(OA + 4 * T, 4)))
        if c >= 2:
            opack(c - 2)
    opack(2)
    opack(3)
    fs(A, 2)
    A("s_mul_i32 %s, %s, %d" % (s(sPAo), s(sSeg), PA_SEG))
    A("s_add_u32 %s, %s, %d" % (s(sPAo), s(sPAo), WS_PA))
    A.wait_ds()
    A("s_barrier")
    fs(A, 3)
    OFR, WA, TB = 144, 20, 44
    for n in range(16):
        A.ds("ds_read_b128 %s, %s offset:%d" % (v(OFR + 4 * n, 4), v(vL16), L_OT + (n & 1) * 8192 + (n >> 1) * 1024), ('o', n))
    lnp = A.new("nopf")
    A("s_add_u32 %s, %s, 128" % (s(sSH), s(sSH)))
    def epi(G, tt):
        b = WA + 8 * (G % 3) + 4 * tt
        A("v_cvt_pk_bf16_f32 %s, %s, %s" % (v(b), v(b), v(b + 1)))
        A("v_cvt_pk_bf16_f32 %s, %s, %s" % (v(b + 1), v(b + 2), v(b + 3)))
    def epw(G, tt):
        A.ds("ds_write_b64 %s, %s offset:%d" % (v(vTw), v(WA + 8 * (G % 3) + 4 * tt, 2), tt * 16 * PSTR + 128 * G), ('w', G))
    def lrd(G):
        A.ds("ds_read_b128 %s, %s offset:%d" % (v(TB + 4 * (G & 1), 4), v(vTrd), 128 * G), ('t', G))
    def lst(G):
        A.wait_ds(('t', G))
        A("buffer_store_dwordx4 %s, %s, %s, %s offen offset:%d sc1" % (v(TB + 4 * (G & 1), 4), v(vPst), s(sWS, 4), s(sPAo), 128 * G))
    for G in range(9):
        for n in range(16):
            K, tt = n >> 1, n & 1
            if G == 0:
                A.wait_ds(('o', n))
            d = v(WA + 8 * (G % 3) + 4 * tt, 4)
            MF(A, d, R(wo(G, K), 4), v(OFR + 4 * n, 4), "0" if K == 0 else d)
            if G >= 1:
                if n == 5 and G >= 2:
                    lst(G - 2)
                if n == 7:
                    epi(G - 1, 0)
                if n == 8:
                    epw(G - 1, 0)
                    epi(G - 1, 1)
                if n == 9:
                    epw(G - 1, 1)
                if n == 15:
                    A.wait_ds(('w', G - 1))
                    A("s_barrier")
                    lrd(G - 1)
        if G == 0:
            A("s_cmp_ge_u32 %s, 2048" % s(sSH))
            A("s_cbranch_scc1 %s" % lnp)
            prefetch()
            A.label(lnp)
    fs(A, 4)
    A("s_nop 3")
    epi(8, 0)
    epi(8, 1)
    epw(8, 0)
    epw(8, 1)
    lst(7)
    A.wait_ds()
    A("s_barrier")
    lrd(8)
    lst(8)
    fs(A, 6)
    A("s_waitcnt vmcnt(0)")
    A("s_barrier")
    fs(A, 7)
    A("s_lshl_b32 %s, %s, 8" % (s(sT), s(sSeg)))
    A("s_add_u32 %s, %s, %d" % (s(sT), s(sT), FL_PA))
    arrive(A, s(sT), 16)
    fs(A, 8)
    ts(A)
    A("s_add_u32 %s, %s, 4" % (s(sSeg), s(sSeg)))
    A("s_cmp_lt_u32 %s, 64" % s(sSeg))
    A("s_cbranch_scc1 %s" % ltop)
    ts_dump(A, 1)

def emit_roleB(A, vRow, vRow2, sValid, opt):
    A.c("=========== role B: reduce + residual + LN2, one row per wave ===========")
    TS['reg'] = 19
    GA, SB, CB = 20, 32, 44
    SEL0, SEL1 = 56, 60
    vPld = 15
    load_mod(A, GA, 2, vRow, vRow2, 17, 18)
    load_mod(A, SB, 3, vRow, vRow2, 17, 18)
    load_mod(A, CB, 4, vRow, vRow2, 17, 18)
    make_sel(A, SEL0, 0, vTmp)
    make_sel(A, SEL1, 1, vTmp)
    A("v_lshrrev_b32 %s, 3, %s" % (v(17), v(vLane)))
    A("v_and_b32 %s, 7, %s" % (v(18), v(vLane)))
    A("v_lshlrev_b32 %s, 4, %s" % (v(18), v(18)))
    A("v_mul_u32_u24 %s, 1152, %s" % (v(vPld), v(17)))
    A("v_add_u32 %s, %s, %s" % (v(vPld), v(vPld), v(18)))
    A("s_waitcnt vmcnt(0)")
    one_plus(A, CB)
    sRow, sRowo = sA0 + 5, sA0 + 3
    A("s_sub_u32 %s, %s, 64" % (s(sRow), s(sWid)))
    A("s_lshl_b32 %s, %s, 1" % (s(sRow), s(sRow)))
    A("s_and_b32 %s, %s, 1" % (s(sT), s(sW)))
    A("s_add_u32 %s, %s, %s" % (s(sRow), s(sRow), s(sT)))
    A("s_lshr_b32 %s, %s, 1" % (s(sSeg), s(sW)))
    A("v_and_b32 %s, 15, %s" % (v(vFl), v(vLane)))
    A("v_lshlrev_b32 %s, 2, %s" % (v(vFl), v(vFl)))
    for i in range(6):
        A("v_mov_b32 %s, -1" % v(64 + i))
    for k in range(2):
        A("s_add_u32 %s, %s, %d" % (s(sT), s(sSeg), 60 + 2 * k))
        A("s_lshl_b32 %s, %s, 5" % (s(sT), s(sT)))
        A("s_add_u32 %s, %s, %s" % (s(sT), s(sT), s(sRow)))
        A("s_mul_i32 %s, %s, 1152" % (s(sT), s(sT)))
        A("s_add_u32 %s, %s, %d" % (s(sT), s(sT), WS_H2))
        row_io(A, "store", 64, vRow, vRow2, sWS, s(sT), " sc1")
        A("s_add_u32 %s, %s, %d" % (s(sT), s(sT), WS_X1 - WS_H2))
        row_io(A, "store", 64, vRow, vRow2, sWS, s(sT), " sc1")
    A("v_and_b32 %s, 15, %s" % (v(vFl), v(vLane)))
    A("v_mul_u32_u24 %s, 1152, %s" % (v(vFl), v(vFl)))
    ltop = A.new("btop")
    A.label(ltop)
    A("s_lshl_b32 %s, %s, 5" % (s(sT), s(sSeg)))
    A("s_add_u32 %s, %s, %s" % (s(sA0 + 2), s(sT), s(sRow)))
    A("s_mul_i32 %s, %s, 1152" % (s(sRowo), s(sA0 + 2)))
    XR, RD, XF, DD = 216, 176, 196, 144
    row_io(A, "load", XR, vRow, vRow2, sXS, s(sRowo))
    A("s_lshl_b32 %s, %s, 8" % (s(sT), s(sSeg)))
    A("s_add_u32 %s, %s, %d" % (s(sT), s(sT), FL_PA))
    lcan, lgo, lre = A.new("bcan"), A.new("bgo"), A.new("bre")
    A("s_mul_i32 %s, %s, 18432" % (s(sA0), s(sA0 + 2)))
    A("s_add_u32 %s, %s, %d" % (s(sA0), s(sA0), WS_PA))
    A("s_add_u32 %s, %s, 9216" % (s(sA0 + 1), s(sA0)))
    A("s_cmp_ge_u32 %s, 60" % s(sSeg))
    A("s_cbranch_scc1 %s" % lcan)
    wait_ready(A, s(sT), 16)
    A("s_branch %s" % lgo)
    A.label(lcan)
    canary(A, s(sA0), imm=1148 - 256, voff=vFl)
    A.label(lgo)
    ts(A)
    A.label(lre)
    LD = 64
    A.vm = []
    for i in range(9):
        for h in range(2):
            A.vmem("buffer_load_dwordx4 %s, %s, %s, %s offen offset:%d sc1" % (v(LD + 8 * i + 4 * h, 4), v(vPld), s(sWS, 4), s(sA0 + h), 128 * i), ('p', i))
    for i in range(9):
        A.wait_vm(('p', i))
        d = v(RD + 4 * (i >> 1), 4)
        sel = v(SEL1 if i & 1 else SEL0, 4)
        MF(A, d, sel, v(LD + 8 * i, 4), "0" if not (i & 1) else d)
        maxchain(A, range(LD + 8 * i, LD + 8 * i + 4), i == 0)
        MF(A, d, sel, v(LD + 8 * i + 4, 4), d)
        maxchain(A, range(LD + 8 * i + 4, LD + 8 * i + 8), False)
    retry_if_sentinel(A, lre)
    for i in range(4):
        A("v_mov_b32 %s, 0" % v(XF + 8 + i))
    A("s_nop 3")
    for T in range(5):
        for jj in range(4):
            A("v_add_f32_dpp %s, %s, %s row_ror:8 row_mask:0xf bank_mask:0x%x" % (v(XF + 4 * (T >> 1) + jj), v(RD + 4 * T + jj), v(RD + 4 * T + jj), 0xc if T & 1 else 0x3))
    for i in range(0, 12, 2):
        rnd2(A, XF + i, XF + i + 1)
    for i in range(12):
        A("v_mul_f32 %s, %s, %s" % (v(XF + i), v(XF + i), v(GA + i)))
    for i in range(0, 12, 2):
        rnd2(A, XF + i, XF + i + 1)
    for i in range(6):
        unpack(A, DD, DD + 1, XR + i)
        A("v_add_f32 %s, %s, %s" % (v(XF + 2 * i), v(XF + 2 * i), v(DD)))
        A("v_add_f32 %s, %s, %s" % (v(XF + 2 * i + 1), v(XF + 2 * i + 1), v(DD + 1)))
        A("v_cvt_pk_bf16_f32 %s, %s, %s" % (v(XR + i), v(XF + 2 * i), v(XF + 2 * i + 1)))
        unpack(A, XF + 2 * i, XF + 2 * i + 1, XR + i)
    A("s_add_u32 %s, %s, %d" % (s(sT), s(sRowo), WS_X1))
    row_io(A, "store", XR, vRow, vRow2, sWS, s(sT), " sc1")
    ln_stats(A, XF, DD, sValid, 160, 161, 162)
    ln_apply(A, XF, 160, 161, CB, SB, 164)
    A("s_add_u32 %s, %s, %d" % (s(sT), s(sRowo), WS_H2))
    row_io(A, "store", 164, vRow, vRow2, sWS, s(sT), " sc1")
    A("s_waitcnt vmcnt(0)")
    A("s_lshl_b32 %s, %s, 8" % (s(sT), s(sSeg)))
    A("s_add_u32 %s, %s, %d" % (s(sT), s(sT), FL_H2))
    arrive(A, s(sT), 32, wave0_only=False)
    ts(A)
    A("s_add_u32 %s, %s, 2" % (s(sSeg), s(sSeg)))
    A("s_cmp_lt_u32 %s, 64" % s(sSeg))
    A("s_cbranch_scc1 %s" % ltop)
    ts_dump(A, 1)

def emit_roleC(A, xsetup, wide_chunks, opt):
    A.c("=========== role C: gate/up + down partial + output ===========")
    A("s_sub_u32 %s, %s, 80" % (s(sT), s(sWid)))
    A("s_lshr_b32 %s, %s, 2" % (s(sSl), s(sT)))
    A("s_and_b32 %s, %s, 3" % (s(sRep), s(sT)))
    build_srd(A, sW1, 64, 5308416)
    build_srd(A, sW2, 72, 5308416)
    build_srd(A, sW3, 80, 5308416)
    build_srd(A, sWO, 104, 2359296)
    vOffW, vTr, vAd, vOffD, vTrD = 9, 10, 11, 12, 13
    A("s_lshl_b32 %s, %s, 8" % (s(sT + 1), s(sSl)))
    wide_off(A, vOffW, vTmp, 9216, s(sT + 1))
    A("s_lshl_b32 %s, %s, 2" % (s(sT + 1), s(sW)))
    wide_tr(A, vTr, vTmp, s(sT + 1), 1)
    A("s_mul_i32 %s, %s, 147456" % (s(sT + 1), s(sSl)))
    tall_off(A, vOffD, vTmp, s(sT + 1))
    tall_tr(A, vTrD, 3)
    W0 = 80
    def wg(t, ks):
        return W0 + 4 * (4 * ks + t)
    def wd(G, ks):
        return W0 + 288 + 4 * (4 * G + ks)
    chunks = wide_chunks((sW1, sW2), 9216, wg, vOffW, vTr)
    for G in range(9):
        def consume(base, G=G):
            A("v_add_u32 %s, %d, %s" % (v(vAd), base, v(vTrD)))
            for ks in range(4):
                tr2(A, wd(G, ks), vAd, 32 * ks * 128, (32 * ks + 4) * 128)
        chunks.append((sW3, vOffD, [8 * j * 1152 + 128 * G for j in range(4)], consume))
    A.vm, A.lds = ['old'] * 2, []
    stage(A, chunks)
    vXo = 9
    sSrc, sM0x = sA0, sA0 + 1
    vXa = 7
    xsetup(vXa)
    vHw, vRl, vOo = 6, 2, 3
    LAND, ACC, PK = 10, 26, 62
    L_HH = 40960
    A("s_lshl_b32 %s, %s, 10" % (s(sT), s(sW)))
    A("s_add_u32 %s, %s, %d" % (s(sT), s(sT), L_HH))
    A("v_add_u32 %s, %s, %s" % (v(vHw), s(sT), v(vL16)))
    A("v_and_b32 %s, 15, %s" % (v(vTmp), v(vLane)))
    A("v_lshlrev_b32 %s, 4, %s" % (v(vTmp), v(vTmp)))
    A("v_lshl_add_u32 %s, %s, 10, %s" % (v(vRl), v(vG), v(vTmp)))
    A("s_lshl_b32 %s, %s, 8" % (s(sT), s(sW)))
    A("v_add_u32 %s, %s, %s" % (v(vRl), s(sT), v(vRl)))
    A("v_mul_u32_u24 %s, 1152, %s" % (v(vOo), v(vLane)))
    A("s_lshl_b32 %s, %s, 5" % (s(sT), s(sSl)))
    A("s_lshl_b32 %s, %s, 3" % (s(sT + 1), s(sW)))
    A("s_add_u32 %s, %s, %s" % (s(sT), s(sT), s(sT + 1)))
    A("v_add_u32 %s, %s, %s" % (v(vOo), s(sT), v(vOo)))
    A("v_mov_b32 %s, 0x%x" % (v(vTmp), OOB))
    A("v_cmp_gt_u32 vcc, 32, %s" % v(vLane))
    A("s_nop 1")
    A("v_cndmask_b32 %s, %s, %s, vcc" % (v(vOo), v(vTmp), v(vOo)))
    A("s_lshl_b32 %s, %s, 1" % (s(sT), s(sT)))
    A("s_add_u32 %s, %s, %d" % (s(sT), s(sT), WS_MOD + 5 * 2304))
    A("buffer_load_dwordx4 %s, off, %s, %s sc1" % (v(ACC, 4), s(sWS, 4), s(sT)))
    A("s_waitcnt vmcnt(0)")
    sGB = sA0 + 8
    for i in range(4):
        A("v_readfirstlane_b32 %s, %s" % (s(sGB + i), v(ACC + i)))
    A("s_mov_b32 %s, %s" % (s(sSeg), s(sRep)))
    sPCo, sFl = sA0 + 2, sA0 + 3
    TS['reg'] = 4
    sPrev = sA0 + 5
    A("s_add_u32 %s, %s, 60" % (s(sT), s(sRep)))
    A("s_mul_i32 %s, %s, %d" % (s(sT), s(sT), PC_SEG))
    A("s_mul_i32 %s, %s, 36" % (s(sT + 1), s(sW)))
    A("s_add_u32 %s, %s, %s" % (s(sT + 1), s(sT + 1), s(sSl)))
    A("s_lshl_b32 %s, %s, 10" % (s(sT + 1), s(sT + 1)))
    A("s_add_u32 %s, %s, %s" % (s(sT), s(sT), s(sT + 1)))
    A("s_add_u32 %s, %s, %d" % (s(sT), s(sT), WS_PC))
    A("v_mov_b64 %s, -1" % v(ACC, 2))
    A("v_mov_b64 %s, -1" % v(ACC + 2, 2))
    for G in range(9):
        A("buffer_store_dwordx4 %s, %s, %s, %s offen sc1" % (v(ACC, 4), v(vL16), s(sWS, 4), s(sT)))
        A("s_add_u32 %s, %s, %d" % (s(sT), s(sT), 4 * 36 * 1024))
    def reduce_out(last=False):
        A("s_lshl_b32 %s, %s, 8" % (s(sFl), s(sPrev)))
        A("s_mul_i32 %s, %s, 36864" % (s(sA0 + 6), s(sPrev)))
        make_sel(A, LAND, 0, vTmp)
        if not last:
            A("s_add_u32 %s, %s, %d" % (s(sFl), s(sFl), FL_PC))
            wait_ready(A, s(sFl), 36)
        ts(A)
        lre = A.new("cre")
        A.label(lre)
        A("s_add_u32 %s, %s, %d" % (s(sT), s(sA0 + 6), WS_X1))
        A("buffer_load_dwordx2 %s, %s, %s, %s offen sc1" % (v(LAND + 8, 2), v(vOo), s(sWS, 4), s(sT)))
        A("s_mul_i32 %s, %s, %d" % (s(sT), s(sSl), 36 * 1024))
        A("s_add_u32 %s, %s, %s" % (s(sT), s(sT), s(sPCo)))
        A.vm = []
        for i in range(9):
            A.vmem("buffer_load_dwordx4 %s, %s, %s, %s offen sc1" % (v(ACC + 4 * i, 4), v(vRl), s(sWS, 4), s(sT)), ('p', i))
            if i < 8:
                A("s_add_u32 %s, %s, 4096" % (s(sT), s(sT)))
        D = LAND + 4
        for i in range(9):
            A.wait_vm(('p', i))
            MF(A, v(D, 4), v(LAND, 4), v(ACC + 4 * i, 4), "0" if i == 0 else v(D, 4))
            if last:
                maxchain(A, range(ACC + 4 * i, ACC + 4 * i + 4), i == 0)
        if last:
            maxchain(A, (LAND + 8, LAND + 9), False)
            retry_if_sentinel(A, lre)
    def reduce_fin():
        D = LAND + 4
        unpack(A, LAND + 10, LAND + 11, LAND + 8)
        unpack(A, LAND + 12, LAND + 13, LAND + 9)
        A("s_nop 3")
        rnd2(A, D, D + 1)
        rnd2(A, D + 2, D + 3)
        for i in range(4):
            A("v_mul_f32 %s, %s, %s" % (v(D + i), s(sGB + i), v(D + i)))
        rnd2(A, D, D + 1)
        rnd2(A, D + 2, D + 3)
        for i in range(4):
            A("v_add_f32 %s, %s, %s" % (v(D + i), v(D + i), v(LAND + 10 + i)))
        A("v_cvt_pk_bf16_f32 %s, %s, %s" % (v(D), v(D), v(D + 1)))
        A("v_cvt_pk_bf16_f32 %s, %s, %s" % (v(D + 1), v(D + 2), v(D + 3)))
        A("buffer_store_dwordx2 %s, %s, %s, %s offen%s" % (v(D, 2), v(vOo), s(sWO, 4), s(sA0 + 6), " sc1" if "outsc1" in opt else " nt" if "outnt" in opt else ""))
        ts(A)
    ltop, lfirst = A.new("ctop"), A.new("cfirst")
    def h2wait():
        A("s_lshl_b32 %s, %s, 8" % (s(sT), s(sSeg)))
        A("s_add_u32 %s, %s, %d" % (s(sT), s(sT), FL_H2))
        A("s_mul_i32 %s, %s, 36864" % (s(sSrc), s(sSeg)))
        A("s_add_u32 %s, %s, %d" % (s(sSrc), s(sSrc), WS_H2))
        lcan, lj, lre = A.new("ccan"), A.new("cj"), A.new("cxre")
        A("s_cmp_ge_u32 %s, 60" % s(sSeg))
        A("s_cbranch_scc1 %s" % lcan)
        wait_ready(A, s(sT), 32)
        ts(A)
        fs(A, 0)
        x_dma(A, vXo, sSrc, sM0x)
        A("s_branch %s" % lj)
        A.label(lcan)
        canary(A, s(sSrc), imm=1024, voff=vXo)
        ts(A)
        fs(A, 0)
        A.label(lre)
        for i in range(9):
            A("buffer_load_dwordx4 %s, %s, %s, %s offen offset:%d sc1" % (v(ACC + 4 * i, 4), v(vXo), s(sWS, 4), s(sSrc), 128 * i))
        A("v_add_u32 %s, %s, %s" % (v(LAND), s(sM0x), v(vL16)))
        for i in range(9):
            A("s_waitcnt vmcnt(%d)" % (8 - i))
            A("ds_write_b128 %s, %s offset:%d" % (v(LAND), v(ACC + 4 * i, 4), 1024 * i))
            maxchain(A, range(ACC + 4 * i, ACC + 4 * i + 4), i == 0)
        retry_if_sentinel(A, lre)
        A("s_waitcnt lgkmcnt(0)")
        A.label(lj)
    A.label(ltop)
    h2wait()
    fs(A, 1)
    A("s_waitcnt vmcnt(0)")
    A("s_barrier")
    fs(A, 2)
    A.lds = []
    GAC = [ACC, ACC + 16]
    HP = ACC + 32
    fill = []
    def F(n):
        for _ in range(n):
            if fill:
                fill.pop(0)()
    def gu_epi(tt):
        for t in range(2):
            g_, u_ = GAC[tt] + 4 * t, GAC[tt] + 8 + 4 * t
            for jj in range(4):
                fill.append(lambda a=g_ + jj, b=u_ + jj: A("v_cvt_pk_bf16_f32 %s, %s, %s" % (v(b), v(a), v(b))))
                fill.append(lambda a=g_ + jj, b=u_ + jj: A("v_lshlrev_b32 %s, 16, %s" % (v(a), v(b))))
                fill.append(lambda b=u_ + jj: A("v_and_b32 %s, 0xffff0000, %s" % (v(b), v(b))))
                fill.append(lambda a=g_ + jj, b=u_ + jj: A("v_mul_f32 %s, %s, %s" % (v(a), v(a), v(b))))
            fill.append(lambda t=t, g_=g_: A("v_cvt_pk_bf16_f32 %s, %s, %s" % (v(HP + 2 * t), v(g_), v(g_ + 1))))
            fill.append(lambda t=t, g_=g_: A("v_cvt_pk_bf16_f32 %s, %s, %s" % (v(HP + 2 * t + 1), v(g_ + 2), v(g_ + 3))))
        fill.append(lambda: A.ds("ds_write_b128 %s, %s offset:%d" % (v(vHw), v(HP, 4), 4096 * tt), ('hw', tt)))
    def xrd(n):
        tt, ks = n // 18, n % 18
        A.ds("ds_read_b128 %s, %s offset:%d" % (v(LAND + 4 * (n % 4), 4), v(vXa + (ks & 1)), 18432 * tt + (ks >> 1) * 1024), ('x', n))
    def hrd(tt, ks):
        A.ds("ds_read_b128 %s, %s offset:%d" % (v(LAND + 4 * ks, 4), v(vL16), L_HH + 4096 * tt + 1024 * ks), ('h', tt, ks))
    for n in range(3):
        xrd(n)
    for n in range(36):
        tt, ks = n // 18, n % 18
        A.wait_ds(('x', n))
        for t in range(4):
            d = v(GAC[tt] + 4 * t, 4)
            MF(A, d, R(wg(t, ks), 4), v(LAND + 4 * (n % 4), 4), "0" if ks == 0 else d)
            if t == 0 and n + 3 < 36:
                xrd(n + 3)
            elif t == 0:
                hrd(0, n - 33)
            else:
                F(2)
        if n == 19:
            gu_epi(0)
        if n == 31:
            assert not fill
            A.wait_ds(('hw', 0))
            A("s_barrier")
    fs(A, 3)
    hrd(0, 3)
    A("s_mul_i32 %s, %s, %d" % (s(sA0 + 4), s(sSeg), PC_SEG))
    A("s_add_u32 %s, %s, %d" % (s(sA0 + 4), s(sA0 + 4), WS_PC))
    A("s_mul_i32 %s, %s, 36" % (s(sT), s(sW)))
    A("s_add_u32 %s, %s, %s" % (s(sT), s(sT), s(sSl)))
    A("s_lshl_b32 %s, %s, 10" % (s(sT), s(sT)))
    A("s_add_u32 %s, %s, %s" % (s(sT), s(sT), s(sA0 + 4)))
    DA = lambda G: ACC + 4 * (G % 4)
    def dn_epi(tt, G):
        b = DA(G + 9 * tt)
        if tt == 0:
            fill.append(lambda: A("v_cvt_pk_bf16_f32 %s, %s, %s" % (v(PK + 2 * G), v(b), v(b + 1))))
            fill.append(lambda: A("v_cvt_pk_bf16_f32 %s, %s, %s" % (v(PK + 2 * G + 1), v(b + 2), v(b + 3))))
        else:
            fill.append(lambda: A("v_cvt_pk_bf16_f32 %s, %s, %s" % (v(b + 3), v(b + 2), v(b + 3))))
            fill.append(lambda: A("v_cvt_pk_bf16_f32 %s, %s, %s" % (v(b + 2), v(b), v(b + 1))))
            fill.append(lambda: A("v_mov_b64 %s, %s" % (v(b, 2), v(PK + 2 * G, 2))))
            fill.append(lambda: A("buffer_store_dwordx4 %s, %s, %s, %s offen sc1" % (v(b, 4), v(vL16), s(sWS, 4), s(sT))))
            fill.append(lambda: A("s_add_u32 %s, %s, %d" % (s(sT), s(sT), 4 * 36 * 1024)))
    H1 = GAC[1]
    gu_epi(1)
    gl = list(fill)
    del fill[:]
    for N in range(18):
        tt, G = N // 9, N % 9
        if N >= 2:
            dn_epi((N - 2) // 9, (N - 2) % 9)
            pend = list(fill)
            del fill[:]
        else:
            pend = []
        for ks in range(4):
            if G == 0:
                A.wait_ds(('h', tt, ks))
            d = v(DA(N), 4)
            MF(A, d, R(wd(G, ks), 4), v((LAND if tt == 0 else H1) + 4 * ks, 4), "0" if ks == 0 else d)
            k = 0
            if ks >= 1 or len(pend) > 4:
                while pend and k < 2:
                    pend.pop(0)()
                    k += 1
            while gl and k < 2:
                gl.pop(0)()
                k += 1
            while k < 1:
                A("s_nop 0")
                k += 1
        assert not pend
        if N == 6:
            assert not gl
            A.wait_ds(('hw', 1))
            A("s_barrier")
            for ks in range(4):
                A.ds("ds_read_b128 %s, %s offset:%d" % (v(H1 + 4 * ks, 4), v(vL16), L_HH + 4096 + 1024 * ks), ('h', 1, ks))
    dn_epi(1, 7)
    F(len(fill))
    A("s_nop 1")
    dn_epi(1, 8)
    F(len(fill))
    fs(A, 5)
    llast = A.new("clast")
    A("s_cmp_ge_u32 %s, 60" % s(sSeg))
    A("s_cbranch_scc1 %s" % llast)
    A("s_waitcnt vmcnt(0)")
    A("s_barrier")
    fs(A, 6)
    A("s_lshl_b32 %s, %s, 8" % (s(sT), s(sSeg)))
    A("s_add_u32 %s, %s, %d" % (s(sT), s(sT), FL_PC))
    arrive(A, s(sT), 36)
    fs(A, 7)
    ts(A)
    A("s_cmp_lt_u32 %s, 4" % s(sSeg))
    A("s_cbranch_scc1 %s" % lfirst)
    reduce_out()
    reduce_fin()
    A.label(lfirst)
    A("s_mov_b32 %s, %s" % (s(sPrev), s(sSeg)))
    A("s_mov_b32 %s, %s" % (s(sPCo), s(sA0 + 4)))
    A("s_add_u32 %s, %s, 4" % (s(sSeg), s(sSeg)))
    A("s_branch %s" % ltop)
    A.label(llast)
    ts(A)
    reduce_out()
    reduce_fin()
    A("s_mov_b32 %s, %s" % (s(sPrev), s(sSeg)))
    A("s_mov_b32 %s, %s" % (s(sPCo), s(sA0 + 4)))
    reduce_out(last=True)
    reduce_fin()
    if "dbgout" in opt:
        A("s_memrealtime s[96:97]")
        A("s_waitcnt lgkmcnt(0)")
        A("s_mov_b64 exec, 1")
        A("v_mov_b32 %s, s96" % v(vTmp))
        A("buffer_atomic_umax %s, off, %s, 0 offset:24" % (v(vTmp), s(sDBG, 4)))
    ts_dump(A, 1)
```

```python
from asmlib import *
from layout import *
import struct, math

L_MEM, L_KX, L_F, L_O, L_SCR, L_W = 0, 9216, 17408, 21632, 23680, 24576
FSTR = 1056
L_FLAG = L_F + 1024
L_WSTRIDE = 34816
vL16, vIdx, vWL, vFw, vOw, vPst, vRst, vSelV, vT0, vT1, vT2, vTmp = range(12)
VACC, QK, RING, LND = 12, 20, 36, 48
WREG0 = 72
KVSTEP = 32 * 16384
NSPILL = 17
sWS, sWQ, sWK, sWV, sWO, sM0, sDBG = 4, 8, 12, 16, 20, 24, 28
sCU, sW, sWC, sUnit, sStep, sBud = 32, 33, 34, 35, 36, 37
sP0, sP1, sP2, sRd, sX0, sX1, sX2, sKV, sKM, sPh, sWF, sC, sVX, sKXm = range(38, 52)
sL2a, sKVv, sKVt = 96, 97, 98
sPt = 8
sTagM = 100
sFlg, sFlgN, sOne, sKF, sRdy, sRdE = 17, 18, 20, 19, 22, 24
sSel = 52
sT = 60
sStamp = 64

def f32bits(x):
    return struct.unpack("<I", struct.pack("<f", x))[0]

WO_ORDER = [0, 1, 2, 3, 4, 5, 6, 7, 8]
QK_CHAIN = [[('qk', 0, 1), ('qk', 2, 0), ('qk', 4, 0), ('qk', 6, 0), ('qk', 7, 3)],
            [('qk', 0, 2), ('qk', 2, 1), ('qk', 4, 1), ('qk', 6, 1)],
            [('qk', 0, 0), ('v', 8, 1)]]
def GOF(j, w):
    if j == 8:
        return 8
    o = 2 * (1 - (w >> 1))
    return (j & 4) + (w, w ^ 1, o, o + 1)[j & 3]
WO_CHAIN = [[('o', 0), ('o', 8), ('o', 16)], [('o', 1), ('o', 9), ('o', 17)]]
L2KEY = ('v', 8, 1)
def placement():
    spill, regs, slot, nxt = {}, {}, {}, {}
    nonreg = []
    for chains in (QK_CHAIN, WO_CHAIN):
        for si, ch in enumerate(chains):
            for i, k in enumerate(ch):
                slot[k] = si
                nxt[k] = ch[i + 1] if i + 1 < len(ch) else None
                if k != L2KEY:
                    nonreg.append(k)
    nonreg.append(L2KEY)
    assert len(nonreg) == NSPILL
    for i, k in enumerate(nonreg):
        spill[k] = i
    allk = [('qk', j, t) for j in range(9) for t in range(4)] + [('v', j, t) for j in range(9) for t in range(2)] + \
           [('o', n) for n in range(18)]
    r = WREG0
    for k in allk:
        if k not in spill:
            regs[k] = r
            r += 8
    assert r == 512, r
    return spill, regs, slot, nxt
SPILL, WREGS, SLOT, NXT = placement()

def emit_team(A, stamps=False, nsteps=64, sc="", hooks=None, opt=()):
    nst = [0]
    def stamp():
        if stamps:
            if "rt" in opt and nst[0] in (2, 4):
                pass
            else:
                A("%s %s" % ("s_memrealtime" if "rt" in opt else "s_memtime", s(sStamp + 2 * nst[0], 2)))
            nst[0] += 1
    SC = " sc1"
    lane = 71
    t1, t2, t3, t4, t5, t6 = 64, 65, 66, 67, 68, 69
    vOffW, vOffO, vTrQK, vTrV, vTrO, vAd, vTr8, vAd2 = 56, 57, 58, 59, 60, 61, 62, 63
    vColQK, vColV = 54, 55
    A.c("=========== team setup ===========")
    if "tt" in opt:
        A("s_memtime s[90:91]")
        A("s_memrealtime s[64:65]")
        A("s_mov_b32 s87, 0")
        A("s_mov_b32 s88, 0")
        A("s_mov_b32 s89, 0")
    A("v_mov_b32 %s, v0" % v(lane))
    A("v_lshrrev_b32 %s, 4, %s" % (v(t2), v(lane)))
    A("v_lshlrev_b32 %s, 2, %s" % (v(t1), v(t2)))
    A("v_sub_u32 %s, %s, %s" % (v(t1), v(lane), v(t1)))
    A("v_and_b32 %s, 15, %s" % (v(t1), v(t1)))
    A("v_lshlrev_b32 %s, 4, %s" % (v(t1), v(t1)))
    A("v_lshl_add_u32 %s, %s, 13, %s" % (v(vOffW), v(t2), v(t1)))
    A("s_lshl_b32 %s, %s, 8" % (s(sT + 2), s(sCU)))
    A("s_lshl_b32 %s, %s, 17" % (s(sT + 3), s(sW)))
    A("s_add_u32 %s, %s, %s" % (s(sT + 2), s(sT + 2), s(sT + 3)))
    A("v_add_u32 %s, %s, %s" % (v(vOffW), s(sT + 2), v(vOffW)))
    A("v_lshrrev_b32 %s, 3, %s" % (v(t1), v(lane)))
    A("v_mul_u32_u24 %s, 1152, %s" % (v(vOffO), v(t1)))
    A("v_and_b32 %s, 7, %s" % (v(t1), v(lane)))
    A("v_lshl_add_u32 %s, %s, 4, %s" % (v(vOffO), v(t1), v(vOffO)))
    A("s_mul_i32 %s, %s, 147456" % (s(sT + 2), s(sCU)))
    A("s_mul_i32 %s, %s, %d" % (s(sT + 3), s(sW), 32 * 1152))
    A("s_add_u32 %s, %s, %s" % (s(sT + 2), s(sT + 2), s(sT + 3)))
    A("v_add_u32 %s, %s, %s" % (v(vOffO), s(sT + 2), v(vOffO)))
    sLW = 99
    RING0 = L_W + 14336
    A("s_mul_i32 %s, %s, %d" % (s(sLW), s(sW), L_WSTRIDE))
    chunks = [(3, G) for G in range(9)] + [(m, G) for G in range(9) for m in range(2)] + [(2, G) for G in (4, 5, 6, 7, 8, 0, 1, 2, 3)]
    VLAST = (1, 2, 3)
    NSLOT = 5
    NT = " nt" if "nt" in opt else ""
    def issue_chunk(c):
        m, G = chunks[c]
        slot = c % NSLOT
        for j in range(4):
            A("s_add_u32 m0, %s, %d" % (s(sLW), RING0 + slot * 4096 + j * 1024))
            if m < 3:
                A("s_mov_b32 %s, %d" % (s(sT + 2), (64 * G + 4 * j) * 8192))
                A.vmem("buffer_load_dwordx4 %s, %s, %s offen%s lds" % (v(vOffW), s((sWQ, sWK, sWV)[m], 4), s(sT + 2), NT), ('c', c))
            else:
                A("s_mov_b32 %s, %d" % (s(sT + 2), 8 * j * 1152 + 128 * G))
                A.vmem("buffer_load_dwordx4 %s, %s, %s offen%s lds" % (v(vOffO), s(sWO, 4), s(sT + 2), NT), ('c', c))
    A.vm, A.lds = [], []
    for c in range(NSLOT - 1):
        issue_chunk(c)
    A("s_lshl_b32 %s, %s, 5" % (s(sT), s(sW)))
    A("s_add_u32 %s, %s, %s" % (s(sUnit), s(sT), s(sCU)))
    A("s_cmp_lt_u32 %s, 72" % s(sUnit))
    A("s_cselect_b32 %s, %s, -1" % (s(sUnit), s(sUnit)))
    if "dup" in opt:
        A("s_xor_b32 %s, %s, 16" % (s(sT), s(sCU)))
        A("s_cmp_eq_u32 %s, 3" % s(sW))
        A("s_cselect_b32 %s, %s, %s" % (s(sUnit), s(sT), s(sUnit)))
    A("v_lshlrev_b32 %s, 4, %s" % (v(vL16), v(lane)))
    A("v_and_b32 %s, 1, %s" % (v(t1), v(lane)))
    A("v_mul_u32_u24 %s, 0xaaaa, %s" % (v(t1), v(t1)))
    A("v_add_u32 %s, 0x4444, %s" % (v(vIdx), v(t1)))
    A("s_mul_i32 %s, %s, %d" % (s(sT), s(sW), L_WSTRIDE))
    A("s_add_u32 %s, %s, %d" % (s(sT), s(sT), L_W))
    A("v_add_u32 %s, %s, %s" % (v(vWL), s(sT), v(vL16)))
    A("s_add_u32 %s, %s, 32768" % (s(sVX), s(sT)))
    A("s_lshl_b32 %s, %s, 11" % (s(sKXm), s(sW)))
    A("s_add_u32 %s, %s, %d" % (s(sKXm), s(sKXm), L_KX))
    A("v_lshrrev_b32 %s, 4, %s" % (v(t2), v(lane)))
    A("v_bfe_u32 %s, %s, 2, 2" % (v(t3), v(lane)))
    A("v_and_b32 %s, 3, %s" % (v(t4), v(lane)))
    A("v_and_b32 %s, 1, %s" % (v(t1), v(t3)))
    A("v_mul_u32_u24 %s, %d, %s" % (v(vFw), FSTR, v(t1)))
    A("v_lshrrev_b32 %s, 1, %s" % (v(t1), v(t3)))
    A("v_lshl_add_u32 %s, %s, 8, %s" % (v(vFw), v(t1), v(vFw)))
    A("v_lshl_add_u32 %s, %s, 6, %s" % (v(vFw), v(t2), v(vFw)))
    A("v_lshl_add_u32 %s, %s, 2, %s" % (v(vFw), v(t4), v(vFw)))
    A("s_lshr_b32 %s, %s, 1" % (s(sT), s(sW)))
    A("s_and_b32 %s, %s, 1" % (s(sT + 1), s(sW)))
    A("s_mul_i32 %s, %s, %d" % (s(sT + 2), s(sT), 2 * FSTR))
    A("s_lshl_b32 %s, %s, 9" % (s(sT + 3), s(sT + 1)))
    A("s_add_u32 %s, %s, %s" % (s(sT + 2), s(sT + 2), s(sT + 3)))
    A("s_add_u32 %s, %s, %d" % (s(sT + 2), s(sT + 2), L_F))
    A("v_add_u32 %s, %s, %s" % (v(vFw), s(sT + 2), v(vFw)))
    A("v_and_b32 %s, 1, %s" % (v(t1), v(t4)))
    A("v_lshl_add_u32 %s, %s, 1, %s" % (v(t1), v(t3), v(t1)))
    A("v_lshlrev_b32 %s, 5, %s" % (v(t5), v(t1)))
    A("v_lshl_add_u32 %s, %s, 8, %s" % (v(t5), v(t2), v(t5)))
    A("s_lshl_b32 %s, %s, 10" % (s(sT + 2), s(sT)))
    A("s_lshl_b32 %s, %s, 4" % (s(sT + 3), s(sT + 1)))
    A("s_add_u32 %s, %s, %s" % (s(sT + 2), s(sT + 2), s(sT + 3)))
    A("s_add_u32 %s, %s, %d" % (s(sT + 2), s(sT + 2), L_O))
    A("v_add_u32 %s, %s, %s" % (v(t5), s(sT + 2), v(t5)))
    A("v_lshl_add_u32 %s, %s, 3, %s" % (v(t6), v(t2), v(t1)))
    A("v_lshlrev_b32 %s, 4, %s" % (v(t6), v(t6)))
    A("v_add_u32 %s, %d, %s" % (v(t6), L_SCR, v(t6)))
    A("v_cmp_le_u32 vcc, 2, %s" % v(t4))
    A("s_nop 1")
    A("v_cndmask_b32 %s, %s, %s, vcc" % (v(vOw), v(t6), v(t5)))
    A("v_lshrrev_b32 %s, 5, %s" % (v(t1), v(lane)))
    A("v_lshlrev_b32 %s, 12, %s" % (v(vPst), v(t1)))
    A("v_and_b32 %s, 31, %s" % (v(t1), v(lane)))
    A("v_lshl_add_u32 %s, %s, 2, %s" % (v(vPst), v(t1), v(vPst)))
    A("v_lshlrev_b32 %s, 6, %s" % (v(t5), v(t3)))
    A("v_lshl_add_u32 %s, %s, 3, %s" % (v(t5), v(t4), v(t5)))
    A("v_lshl_add_u32 %s, %s, 5, %s" % (v(t5), v(t2), v(t5)))
    A("s_lshl_b32 %s, %s, 7" % (s(sT + 2), s(sUnit)))
    A("s_and_b32 %s, %s, 0x3fff" % (s(sT + 2), s(sT + 2)))
    A("v_add_u32 %s, %s, %s" % (v(t5), s(sT + 2), v(t5)))
    A("v_and_b32 %s, 0x28, %s" % (v(t1), v(lane)))
    A("v_mov_b32 %s, 0x%x" % (v(t6), OOB))
    A("v_cmp_eq_u32 vcc, 0, %s" % v(t1))
    A("s_nop 1")
    A("v_cndmask_b32 %s, %s, %s, vcc" % (v(vRst), v(t6), v(t5)))
    A("s_mov_b32 %s, 0x11111111" % s(sTagM))
    A("s_mov_b32 %s, 0x11111111" % s(sTagM + 1))
    A("v_and_b32 %s, 1, %s" % (v(t1), v(t3)))
    A("v_lshlrev_b32 %s, 4, %s" % (v(t1), v(t1)))
    A("v_mov_b32 %s, 0x3f80" % v(t5))
    A("v_lshlrev_b32 %s, %s, %s" % (v(vSelV), v(t1), v(t5)))
    for u in range(4):
        m16 = (1 << u) | (1 << (u + 4))
        m32 = m16 | (m16 << 16)
        A("s_mov_b32 %s, 0x%x" % (s(sSel + 2 * u), m32))
        A("s_mov_b32 %s, 0x%x" % (s(sSel + 2 * u + 1), m32))
    A("s_lshl_b32 %s, %s, 10" % (s(sT + 2), s(sW)))
    A("v_add_u32 %s, %s, %s" % (v(vT0), s(sT + 2), v(vL16)))
    A("v_xor_b32 %s, 0x400, %s" % (v(vT1), v(vT0)))
    A("s_and_b32 %s, %s, 0x800" % (s(sT + 2), s(sT + 2)))
    A("s_xor_b32 %s, %s, 0x800" % (s(sT + 2), s(sT + 2)))
    A("v_add_u32 %s, %s, %s" % (v(vT2), s(sT + 2), v(vL16)))
    A("s_mov_b32 %s, 0" % s(sStep))
    A("s_mov_b32 %s, 0" % s(sPh))
    A("s_mov_b32 %s, 200000" % s(sBud))
    A("s_lshl_b32 %s, %s, 7" % (s(sT + 3), s(sCU)))
    A("s_add_u32 %s, %s, %d" % (s(sT + 3), s(sT + 3), WS_PB))
    A("s_lshl_b32 %s, %s, 13" % (s(sT + 2), s(sW)))
    A("s_add_u32 %s, %s, %s" % (s(sP0), s(sT + 2), s(sT + 3)))
    A("s_lshl_b32 %s, %s, 12" % (s(sT + 2), s(sUnit)))
    A("s_add_u32 %s, %s, %d" % (s(sRd), s(sT + 2), WS_PB))
    A("s_cmp_eq_u32 %s, -1" % s(sUnit))
    A("s_cselect_b32 %s, 0x%x, %s" % (s(sRd), OOB, s(sRd)))
    A("s_cselect_b32 %s, 0x%x, 0" % (s(sT + 2), OOB))
    A("v_or_b32 %s, %s, %s" % (v(vRst), s(sT + 2), v(vRst)))
    for i, r in enumerate((sX0, sX1, sX2)):
        A("s_mov_b32 %s, %d" % (s(r), WS_MBX + i * MBX_STRIDE))
    A("s_lshl_b32 %s, %s, 14" % (s(sKV), s(sCU)))
    A("s_lshl_b32 %s, %s, 11" % (s(sT + 2), s(sW)))
    A("s_add_u32 %s, %s, %s" % (s(sKV), s(sKV), s(sT + 2)))
    A("s_add_u32 %s, %s, %d" % (s(sKVv), s(sKV), WS_KV + 8192))
    A("s_lshl_b32 %s, %s, 14" % (s(sKVt), s(sCU)))
    A("s_add_u32 %s, %s, %d" % (s(sKVt), s(sKVt), WS_KV + 1 * KVSTEP))
    A("s_cmp_lt_u32 %s, 3" % s(sW))
    A("s_cselect_b32 %s, 0x%x, %s" % (s(sKVt), OOB, s(sKVt)))
    if WS_KV:
        A("s_add_u32 %s, %s, %d" % (s(sKV), s(sKV), WS_KV))
    A("s_lshl_b32 %s, %s, 12" % (s(sKM), s(sCU)))
    A("s_lshl_b32 %s, %s, 10" % (s(sT + 2), s(sW)))
    A("s_add_u32 %s, %s, %s" % (s(sKM), s(sKM), s(sT + 2)))
    A("s_add_u32 %s, %s, %d" % (s(sKM), s(sKM), WS_KM))
    A("s_lshl_b32 %s, %s, 2" % (s(sT + 2), s(sCU)))
    A("s_add_u32 %s, %s, %s" % (s(sT + 2), s(sT + 2), s(sW)))
    A("s_mul_i32 %s, %s, %d" % (s(sWF), s(sT + 2), 18 * 2048))
    A("s_add_u32 %s, %s, %d" % (s(sWF), s(sWF), WS_WF))
    A("s_add_u32 %s, %s, %d" % (s(sL2a), s(sWF), 16 * 2048))
    A("s_mov_b32 %s, 0x%x" % (s(sC), f32bits(128 ** -0.5 * math.log2(math.e))))

    A("s_lshl_b32 %s, %s, 2" % (s(sT + 2), s(sW)))
    A("v_add_u32 %s, %s, %s" % (v(vColQK), s(sT + 2), v(t4)))
    A("s_lshl_b32 %s, %s, 3" % (s(sT + 2), s(sT)))
    A("s_add_u32 %s, %s, %s" % (s(sT + 2), s(sT + 2), s(sT + 1)))
    A("v_lshl_add_u32 %s, %s, 1, %s" % (v(vColV), v(t4), s(sT + 2)))
    A("v_and_b32 %s, 1, %s" % (v(t5), v(t2)))
    A("v_lshlrev_b32 %s, 2, %s" % (v(t5), v(t5)))
    A("v_lshrrev_b32 %s, 1, %s" % (v(t6), v(t3)))
    A("v_lshl_add_u32 %s, %s, 3, %s" % (v(t5), v(t6), v(t5)))
    A("v_and_b32 %s, 1, %s" % (v(t6), v(t3)))
    A("v_add_u32 %s, %s, %s" % (v(t5), v(t5), v(t6)))
    A("v_lshrrev_b32 %s, 1, %s" % (v(t1), v(t2)))
    A("v_lshl_add_u32 %s, %s, 4, %s" % (v(vTrO), v(t1), v(t5)))
    A("v_lshlrev_b32 %s, 7, %s" % (v(vTrO), v(vTrO)))
    A("v_lshl_add_u32 %s, %s, 3, %s" % (v(vTrO), v(t4), v(vTrO)))
    A("s_lshl_b32 %s, %s, 5" % (s(sT + 2), s(sW)))
    A("s_add_u32 %s, %s, %d" % (s(sT + 2), s(sT + 2), RING0))
    A("v_add_u32 %s, %s, %s" % (v(vTrO), s(sT + 2), v(vTrO)))
    A("v_mul_u32_u24 %s, %d, %s" % (v(t1), L_WSTRIDE, v(t1)))
    A("v_lshl_add_u32 %s, %s, 8, %s" % (v(t1), v(t5), v(t1)))
    A("v_add_u32 %s, %d, %s" % (v(t1), RING0, v(t1)))
    for col in (vColQK, vColV):
        A("v_lshl_add_u32 %s, %s, 2, %s" % (v(col), v(t6), v(col)))
        A("v_and_b32 %s, 15, %s" % (v(col), v(col)))
        A("v_lshl_add_u32 %s, %s, 4, %s" % (v(col), v(col), v(t1)))
    AD = [58, 59, 61, 62]
    def addr_wo():
        for i in range(4):
            A("v_add_u32 %s, %d, %s" % (v(AD[i]), i * L_WSTRIDE, v(vTrO)))
    def addr_wide(col):
        A("v_mov_b32 %s, %s" % (v(AD[0]), v(col)))
        A("v_xor_b32 %s, 0x80, %s" % (v(AD[1]), v(col)))
        A("v_add_u32 %s, %d, %s" % (v(AD[2]), 2 * L_WSTRIDE, v(AD[0])))
        A("v_add_u32 %s, %d, %s" % (v(AD[3]), 2 * L_WSTRIDE, v(AD[1])))
    TMPF = [12, 20]
    tmpi = [0]
    park = {}
    def get_frag(key, addrs, imms):
        out = None
        if key in WREGS:
            r = WREGS[key]
        elif SPILL[key] in park:
            r = park[SPILL[key]]
        else:
            r = TMPF[tmpi[0] % 2]
            tmpi[0] += 1
            out = (r, SPILL[key])
        for q in range(4):
            A.ds("ds_read_b64_tr_b16 %s, %s offset:%d" % (R(r + 2 * q, 2), v(addrs[q]), imms[q]))
        return out
    def put(r, idx):
        if idx < 16:
            for hh in range(2):
                A.ds("ds_write_b128 %s, %s offset:%d" % (v(vWL), R(r + 4 * hh, 4), idx * 2048 + hh * 1024))
        else:
            for hh in range(2):
                A.vmem("buffer_store_dwordx4 %s, %s, %s, %s offen offset:%d" % (v(r + 4 * hh, 4), v(vL16), s(sWS, 4), s(sL2a), 1024 * hh), 'sp')

    A("v_lshl_add_u32 %s, %s, 1, %s" % (v(t5), v(t3), v(t2)))
    A("v_mul_u32_u24 %s, 1152, %s" % (v(t5), v(t5)))
    A("v_lshl_add_u32 %s, %s, 3, %s" % (v(t5), v(t4), v(t5)))
    A("s_and_b32 %s, %s, 1" % (s(sT + 2), s(sUnit)))
    A("s_mul_i32 %s, %s, 4608" % (s(sT + 2), s(sT + 2)))
    A("s_bfe_u32 %s, %s, 0x60001" % (s(sT + 3), s(sUnit)))
    A("s_lshl_b32 %s, %s, 5" % (s(sT + 3), s(sT + 3)))
    A("s_add_u32 %s, %s, %s" % (s(sT + 2), s(sT + 2), s(sT + 3)))
    A.vmem("buffer_load_dwordx2 %s, %s, %s, %s offen" % (v(52, 2), v(t5), s(sM0, 4), s(sT + 2)), 'm0')
    for i in range(4):
        A("v_mov_b32 %s, -1" % v(64 + i))
    for i in range(4):
        A.vmem("buffer_store_dwordx4 %s, %s, %s, %s offen offset:%d%s" % (v(64, 4), v(vL16), s(sWS, 4), s(sRd), 1024 * i, SC), 'mb')
    for so in (sX1, sX2):
        A.vmem("buffer_store_dwordx2 %s, %s, %s, %s offen%s" % (v(64, 2), v(vRst), s(sWS, 4), s(so), SC), 'mb')
    vm0 = list(A.vm)
    ljoin = A.new("initjoin")
    lcls = [A.new("cls%d" % i) for i in range(4)]
    for i in (1, 2, 3):
        A("s_cmp_eq_u32 %s, %d" % (s(sW), i))
        A("s_cbranch_scc1 %s" % lcls[i])
    for wc in range(4):
        A.label(lcls[wc])
        A.vm, A.lds = list(vm0), []
        tmpi[0] = 0
        pos = [GOF(jj, wc) for jj in range(9)]
        park.clear()
        park.update({15: 28, 7: 36, 8: 44})
        for i, G in enumerate(VLAST):
            for t in range(2):
                park[9 + 2 * i + t] = WREGS[('v', pos.index(G), t)]
        flush = {32: (9, 10), 33: (11, 12), 34: (13, 14), 35: (15,)}
        for c in range(36):
            m, G = chunks[c]
            if c == 0:
                addr_wo()
            if c == 9:
                addr_wide(vColQK)
            if c == 27:
                addr_wide(vColV)
            A.wait_vm(('c', c))
            A("s_barrier")
            if c + NSLOT - 1 < 36:
                issue_chunk(c + NSLOT - 1)
            if c == NSLOT:
                A.vmem("buffer_store_dwordx2 %s, %s, %s, %s offen%s" % (v(52, 2), v(vRst), s(sWS, 4), s(sX0), SC), 'mb')
            if c == 20 and wc == 0:
                A("s_mov_b64 exec, 1")
                A("s_lshl_b32 %s, 1, s3" % s(sT + 2))
                A("s_lshl_b32 %s, %s, 8" % (s(sT + 2), s(sT + 2)))
                A("v_mov_b32 %s, %s" % (v(52), s(sT + 2)))
                A("v_mov_b32 %s, 1" % v(53))
                A.vmem("buffer_atomic_or %s, off, %s, 0 offset:%d" % (v(52), s(sDBG, 4), DBG_TEAM), 'at')
                A.vmem("buffer_atomic_add %s, off, %s, 0 offset:%d" % (v(53), s(sDBG, 4), DBG_TEAM), 'at')
                A("s_mov_b64 exec, -1")
            if "mega" in opt and c == 24:
                A.vmem("buffer_load_dword %s, off, %s, 0 offset:%d sc1" % (v(64), s(sDBG, 4), DBG_MOD), 'e')
            if "mega" in opt and c == 34:
                A("v_lshrrev_b32 %s, 2, %s" % (v(65), v(vL16)))
                A("s_lshl_b32 %s, %s, 8" % (s(sT + 2), s(sCU)))
                A("s_add_u32 %s, %s, %d" % (s(sT + 2), s(sT + 2), FL_KV))
                A.vmem("buffer_load_dword %s, %s, %s, %s offen sc1" % (v(65), v(65), s(sWS, 4), s(sT + 2)), 'e')
                A.vmem("buffer_load_dword %s, off, %s, 0 offset:%d sc1" % (v(66), s(sDBG, 4), DBG_TEAM), 'e')
            for idx in flush.get(c, ()):
                put(park[idx], idx)
            so = (c % NSLOT) * 4096
            sp = []
            if m == 3:
                for c2 in range(2):
                    sp.append(get_frag(('o', 2 * G + c2), [AD[2 * c2 + (q >> 1)] for q in range(4)], [so + 2 * (q & 1) * 128 for q in range(4)]))
            else:
                j = pos.index(G)
                for t in range(2):
                    key = ('qk', j, 2 * m + t) if m < 2 else ('v', j, t)
                    sp.append(get_frag(key, AD, [so + 2 * (q & 1) * 256 + 8 * t for q in range(4)]))
            A.wait_ds()
            for x in sp:
                if x:
                    put(*x)
        A("s_barrier")
        put(park[7], 7)
        put(park[8], 8)
        if wc < 3:
            A("s_branch %s" % ljoin)
    A.label(ljoin)
    for G in range(9):
        A("s_add_u32 %s, %s, %d" % (s(sPt + G), s(sP0), G * 32768))
    A("s_lshl_b32 %s, %s, 7" % (s(sFlg), s(sCU)))
    A("s_add_u32 %s, %s, %d" % (s(sFlg), s(sFlg), FL_PUB - 4096))
    A("s_cmp_eq_u32 %s, %d" % (s(sW), 3 if "mega" in opt else 7))
    A("s_cselect_b32 %s, %s, 0x%x" % (s(sFlg), s(sFlg), OOB))
    A("s_mov_b64 %s, 1" % s(sOne, 2))
    A("s_cmp_lt_u32 %s, 32" % s(sUnit))
    A("s_cselect_b32 %s, %s, 0x%x" % (s(sRdE), s(sRd), OOB))
    A("s_lshl_b32 %s, %s, 8" % (s(sKF), s(sCU)))
    A("s_add_u32 %s, %s, %d" % (s(sKF), s(sKF), FL_KV))
    A("s_waitcnt vmcnt(0) lgkmcnt(0)")
    A.vm, A.lds = [], []

    def kv_dma():
        return ["s_mov_b32 m0, %s" % s(sKXm),
                "buffer_load_dwordx4 %s, %s, %s offen sc1 lds" % (v(vL16), s(sWS, 4), s(sKV)),
                "buffer_load_dwordx4 %s, %s, %s offen offset:1024 sc1 lds" % (v(vL16), s(sWS, 4), s(sKV)),
                "s_mov_b32 m0, %s" % s(sVX),
                "buffer_load_dwordx4 %s, %s, %s offen sc1 lds" % (v(vL16), s(sWS, 4), s(sKVv)),
                "buffer_load_dwordx4 %s, %s, %s offen offset:1024 sc1 lds" % (v(vL16), s(sWS, 4), s(sKVv))]
    def land(key, half=None):
        sp = SPILL[key]
        for hh in ((0, 1) if half is None else (half,)):
            if sp < 16:
                A.ds("ds_read_b128 %s, %s offset:%d" % (v(LND + 8 * SLOT[key] + 4 * hh, 4), v(vWL), sp * 2048 + 1024 * hh), key)
            else:
                A.vmem("buffer_load_dwordx4 %s, %s, %s, %s offen offset:%d" % (v(LND + 8 * SLOT[key] + 4 * hh, 4), v(vL16), s(sWS, 4), s(sL2a), 1024 * hh), key)
    def zero(lo, hi):
        for r in range(lo, hi, 2):
            A("v_mov_b64 %s, 0" % v(r, 2))
    KVINC = 0 if "samekv" in opt else KVSTEP
    NDMA = "ndma" in opt
    def kv_all():
        for i in range(2):
            A("s_mov_b32 m0, %d" % (L_KX + 4096 * i))
            A("s_add_u32 %s, %s, %d" % (s(sT + 2), s(sKV), 4096 * i))
            for j in range(4):
                A("buffer_load_dwordx4 %s, %s, %s offen offset:%d sc1 lds" % (v(vL16), s(sWS, 4), s(sT + 2), 1024 * j))
        for i in range(4):
            A("s_mov_b32 m0, %d" % (L_W + i * L_WSTRIDE + 32768))
            A("s_add_u32 %s, %s, %d" % (s(sT + 2), s(sKV), 8192 + 2048 * i))
            for j in range(2):
                A("buffer_load_dwordx4 %s, %s, %s offen offset:%d sc1 lds" % (v(vL16), s(sWS, 4), s(sT + 2), 1024 * j))
    def kv_refresh(lback):
        lp = A.new("kvr")
        A.label(lp)
        A("v_lshrrev_b32 %s, 2, %s" % (v(vTmp), v(vL16)))
        A("buffer_load_dword %s, %s, %s, %s offen sc1" % (v(vTmp), v(vTmp), s(sWS, 4), s(sKF)))
        A("s_waitcnt vmcnt(0)")
        A("v_cmp_ne_u32 %s, 0, %s" % (s(sRdy, 2), v(vTmp)))
        A("s_nop 3")
        A("s_bitcmp1_b64 %s, %s" % (s(sRdy, 2), s(sStep)))
        A("s_cbranch_scc1 %s" % lback)
        A("s_sub_u32 %s, %s, 1" % (s(sBud), s(sBud)))
        A("s_cbranch_scc0 %s" % lp)
        A("s_mov_b32 %s, 0" % s(sBud))
        A("s_branch %s" % lback)
    if "tt" in opt:
        A("s_memrealtime s[66:67]")
    lfast = A.new("fast0")
    if "mega" in opt:
        lsl = A.new("slow0")
        A("v_readfirstlane_b32 %s, %s" % (s(sT + 1), v(64)))
        A("v_readfirstlane_b32 %s, %s" % (s(sT), v(66)))
        A("v_cmp_ne_u32 %s, 0, %s" % (s(sRdy, 2), v(65)))
        A("s_nop 3")
        lk, lt = A.new("needkv"), A.new("needteam")
        A("s_cmp_eq_u32 %s, 0" % s(sT + 1))
        A("s_cbranch_scc1 %s" % lsl)
        A("s_bitcmp1_b32 %s, 0" % s(sRdy))
        A("s_cbranch_scc1 %s" % lt)
        A("s_branch %s" % lk)
        A.label(lsl)
        hooks['kv_wait0'](A)
        A.label(lk)
        kv_refresh(lt)
        A.label(lt)
        A("s_bitcmp1_b32 %s, 5" % s(sT))
        A("s_cbranch_scc1 %s" % lfast)
    lp = A.new("tb")
    A.label(lp)
    A("buffer_load_dword %s, off, %s, 0 offset:%d sc1" % (v(vTmp), s(sDBG, 4), DBG_TEAM))
    A("s_waitcnt vmcnt(0)")
    A("v_readfirstlane_b32 %s, %s" % (s(sT), v(vTmp)))
    A("s_nop 3")
    A("s_bitcmp1_b32 %s, 5" % s(sT))
    A("s_cbranch_scc1 %s" % lfast)
    A("s_sub_u32 %s, %s, 1" % (s(sBud), s(sBud)))
    A("s_cbranch_scc0 %s" % lp)
    A("s_mov_b32 %s, 0" % s(sBud))
    A.label(lfast)
    if "mega" in opt:
        A("s_cmp_lt_u32 %s, 3" % s(sW))
        A("s_cselect_b64 %s, -1, %s" % (s(sRdy, 2), s(sRdy, 2)))
    if "tt" in opt:
        A("s_memrealtime s[68:69]")
    for ch in QK_CHAIN:
        land(ch[0])
    zero(VACC, RING)
    A("s_waitcnt lgkmcnt(0)")
    A("s_lshr_b32 %s, %s, 8" % (s(sT), s(sT)))
    A("s_bcnt1_i32_b32 %s, %s" % (s(sT), s(sT)))
    lslow = A.new("slow")
    A("s_cmp_lg_u32 %s, 1" % s(sT))
    A("s_cbranch_scc1 %s" % lslow)
    def loop(SC):
        lentry, lexit = A.new("entry"), A.new("exit")
        lok1, lnored, lb4 = A.new("ok1"), A.new("nored"), A.new("b4")
        ls1, ls1w, l1a = A.new("s1"), A.new("s1w"), A.new("p1a")
        ls1r, ls2r, ls2ok, ls3r, ls3ok, l1r = A.new("s1r"), A.new("s2r"), A.new("s2ok"), A.new("s3r"), A.new("s3ok"), A.new("p1r")
        A("s_branch %s" % ls1)

        def SM(acc, afr, breg):
            A("v_smfmac_f32_16x16x64_bf16 %s, %s, %s, %s" % (v(acc, 4), v(afr, 4), breg, v(vIdx)))
        def MF(d, a_, b_, c_):
            A("v_mfma_f32_16x16x32_bf16 %s, %s, %s, %s" % (v(d, 4), v(a_, 4), v(b_, 4), c_))
        def fragaddr(j):
            if j == 8:
                return vL16, 8192
            return (vT0, vT1, vT2, vT2)[j & 3], (j & 4) * 1024 + (1024 if (j & 3) == 3 else 0)
        def ringrd(j, slot):
            b, o = fragaddr(j)
            A.ds("ds_read_b128 %s, %s offset:%d" % (v(RING + 4 * slot, 4), v(b), L_MEM + o), ('ring', j))
        def mbload(dst, j):
            if j == 8:
                A("buffer_load_dwordx4 %s, %s, %s, %s offen sc1" % (v(dst, 4), v(vL16), s(sWS, 4), s(sX8)))
            else:
                A("buffer_load_dwordx4 %s, %s, %s, %s offen sc1" % (v(dst, 4), v(fragaddr(j)[0]), s(sWS, 4), s(sX4 if j & 4 else sX0)))
        def check(base, n):
            A("v_max3_u32 %s, %s, %s, %s" % (v(vTmp), v(base), v(base + 1), v(base + 2)))
            for i in range(3, n - 1, 2):
                A("v_max3_u32 %s, %s, %s, %s" % (v(vTmp), v(vTmp), v(base + i), v(base + i + 1)))
            A("v_max_u32 %s, %s, %s" % (v(vTmp), v(vTmp), v(base + n - 1)))
            A("v_cmp_eq_u32 vcc, -1, %s" % v(vTmp))
        def budget(lagain, lgiveup):
            A("s_sub_u32 %s, %s, 1" % (s(sBud), s(sBud)))
            A("s_cbranch_scc0 %s" % lagain)
            A("s_mov_b32 %s, 0" % s(sBud))
            A("s_branch %s" % lgiveup)
        PLA = [12, 16, 20, 24]
        RACC, SEL = 28, 32
        def poll1_issue(PL, so=sRd, which=range(4)):
            for i in which:
                A("buffer_load_dwordx4 %s, %s, %s, %s offen offset:%d sc1" % (v(PL[i], 4), v(vL16), s(sWS, 4), s(so), 1024 * i))
        def wait_many(keys):
            idx = [i for i, t in enumerate(A.lds) if t in keys]
            if idx:
                A.wait_ds(A.lds[idx[-1]])
        def endstep():
            for ch in QK_CHAIN:
                land(ch[0])
            A("s_mov_b32 %s, %s" % (s(sT), s(sX0)))
            A("s_mov_b32 %s, %s" % (s(sX0), s(sX1)))
            A("s_mov_b32 %s, %s" % (s(sX1), s(sX2)))
            A("s_mov_b32 %s, %s" % (s(sX2), s(sT)))
        PUB = "" if "pubplain" in opt else " sc1"
        def optval(name, dflt):
            for o in opt:
                if o.startswith(name + "="):
                    return int(o.split("=")[1])
            return dflt
        LWAIT, S1DEPTH = optval("lwait", 3), optval("s1d", 2)
        sX4, sX8 = sP1, sP2
        F8 = RING + 4
        PLB = [LND, LND + 4, LND + 8, LND + 12]
        def reduce_body(PL, n_after):
            if "prog" in opt:
                A("s_waitcnt vmcnt(%d)" % (n_after + 3))
                MF(RACC, SEL, PL[0], "0")
                A("s_waitcnt vmcnt(%d)" % (n_after + 2))
                MF(RACC, SEL, PL[1], v(RACC, 4))
                A("v_bitop3_b32 %s, %s, %s, %s bitop3:0x7e" % (v(vTmp), v(PL[0]), v(PL[1]), s(sPh)))
                A("s_waitcnt vmcnt(%d)" % (n_after + 1))
                MF(RACC, SEL, PL[2], v(RACC, 4))
                A("s_waitcnt vmcnt(%d)" % n_after)
                MF(RACC, SEL, PL[3], v(RACC, 4))
                A("v_bitop3_b32 %s, %s, %s, %s bitop3:0x7e" % (v(45), v(PL[2]), v(PL[3]), s(sPh)))
                A("v_bitop3_b32 %s, %s, %s, 1 bitop3:0xa8" % (v(vTmp), v(vTmp), v(45)))
                A("v_cmp_ne_u32 vcc, 0, %s" % v(vTmp))
                return
            A("s_waitcnt vmcnt(%d)" % n_after)
            MF(RACC, SEL, PL[0], "0")
            A("v_bitop3_b32 %s, %s, %s, %s bitop3:0x7e" % (v(vTmp), v(PL[0]), v(PL[1]), s(sPh)))
            A("v_bitop3_b32 %s, %s, %s, %s bitop3:0x7e" % (v(45), v(PL[2]), v(PL[3]), s(sPh)))
            MF(RACC, SEL, PL[1], v(RACC, 4))
            A("v_bitop3_b32 %s, %s, %s, 1 bitop3:0xa8" % (v(vTmp), v(vTmp), v(45)))
            A("v_cmp_ne_u32 vcc, 0, %s" % v(vTmp))
            MF(RACC, SEL, PL[2], v(RACC, 4))
            MF(RACC, SEL, PL[3], v(RACC, 4))
        def mksel():
            for u in range(4):
                A("v_cndmask_b32 %s, 0, %s, %s" % (v(SEL + u), v(vSelV), s(sSel + 2 * u, 2)))
        def s1load(base):
            mbload(base, 0)
            mbload(base + 4, 1)
        def rotate():
            A("s_mov_b32 %s, %s" % (s(sT), s(sX0)))
            A("s_mov_b32 %s, %s" % (s(sX0), s(sX1)))
            A("s_mov_b32 %s, %s" % (s(sX1), s(sX2)))
            A("s_mov_b32 %s, %s" % (s(sX2), s(sT)))
            A("s_add_u32 %s, %s, 4096" % (s(sX4), s(sX0)))
            A("s_add_u32 %s, %s, 8192" % (s(sX8), s(sX0)))
        lgo1 = A.new("go1")
        lkvr, lkvok = A.new("kvrf"), A.new("kvok")
        if "mega" in opt:
            A.label(lkvr)
            kv_refresh(lkvok)
        A.label(lnored)
        A("s_cmp_eq_u32 %s, -1" % s(sUnit))
        A("s_cbranch_scc1 %s_n" % lnored)
        A("s_waitcnt vmcnt(%d)" % LWAIT)
        A("s_branch %s" % lgo1)
        A.label(lnored + "_n")
        if "ps" in opt:
            A("s_memtime s[72:73]")
            A("s_memrealtime s[74:75]")
            A("s_lshl_b32 %s, %s, 9" % (s(sT), s(sCU)))
            A("s_lshl_b32 %s, %s, 3" % (s(sT + 1), s(sStep)))
            A("s_add_u32 %s, %s, %s" % (s(sT), s(sT), s(sT + 1)))
            A("s_add_u32 %s, %s, %d" % (s(sT), s(sT), WS_DBG + (7 << 17)))
            A("s_waitcnt lgkmcnt(0)")
            A("v_mov_b32 v46, s72")
            A("v_mov_b32 v47, s74")
            A("s_mov_b64 exec, 1")
            A("buffer_store_dwordx2 v[46:47], off, %s, %s" % (s(sWS, 4), s(sT)))
            A("s_mov_b64 exec, -1")
        rotate()
        for i in range(0, 8, 2):
            A("v_mov_b64 %s, -1" % v(RING + i, 2))
        if NDMA:
            l3 = A.new("n3l")
            A("s_cmp_lg_u32 %s, 3" % s(sW))
            A("s_cbranch_scc1 %s" % l3)
            kv_all()
            A.label(l3)
        if "mega" in opt:
            lfull = A.new("full")
            A("s_add_u32 %s, %s, 1" % (s(sT + 1), s(sStep)))
            A("s_bitcmp1_b64 %s, %s" % (s(sRdy, 2), s(sT + 1)))
            A("s_cbranch_scc1 %s" % lfull)
            A("v_lshrrev_b32 %s, 2, %s" % (v(vTmp), v(vL16)))
            A("buffer_load_dword %s, %s, %s, %s offen sc1" % (v(vTmp), v(vTmp), s(sWS, 4), s(sKF)))
            A("s_waitcnt vmcnt(0)")
            A("v_cmp_ne_u32 %s, 0, %s" % (s(sRdy, 2), v(vTmp)))
            A.label(lfull)
        if "noflag" in opt:
            A("s_waitcnt vmcnt(0)")
        else:
            lf = A.new("flag")
            A("v_mov_b32 %s, %d" % (v(46), L_FLAG))
            A.label(lf)
            A("ds_read_b32 %s, %s" % (v(vTmp), v(46)))
            A("s_waitcnt lgkmcnt(0)")
            A("v_cmp_eq_u32 vcc, %s, %s" % (s(sStep), v(vTmp)))
            A("s_cbranch_vccnz %s" % lb4)
            budget(lf, lb4)
        A("s_branch %s" % lb4)
        X2 = LND + 16
        def f8load():
            A("buffer_load_dword %s, %s, %s, %s offen sc1" % (v(X2 + 4), v(X2 + 5), s(sWS, 4), s(sX8)))
        def s2load():
            mbload(X2, 4)
            f8load()
        def s2check():
            A("v_max3_u32 %s, %s, %s, %s" % (v(vTmp), v(X2), v(X2 + 1), v(X2 + 2)))
            A("v_max3_u32 %s, %s, %s, %s" % (v(vTmp), v(vTmp), v(X2 + 3), v(X2 + 4)))
            A("v_cmp_eq_u32 vcc, -1, %s" % v(vTmp))
        A.label(ls2r)
        if "tt" in opt:
            A("s_add_u32 s88, s88, 1")
        s2load()
        A("s_waitcnt vmcnt(2)")
        s2check()
        A("s_cbranch_vccz %s_d" % ls2r)
        budget(ls2r, ls2r + "_d")
        A.label(ls2r + "_d")
        A("s_waitcnt vmcnt(0)")
        A("s_branch %s" % ls2ok)
        A.label(ls1)
        A("s_add_u32 %s, %s, 4096" % (s(sX4), s(sX0)))
        A("s_add_u32 %s, %s, 8192" % (s(sX8), s(sX0)))
        s1load(RING)
        A("s_waitcnt vmcnt(0)")
        A("s_branch %s" % ls1w)
        A(".p2align 6")
        A.label(ls1r)
        A("s_sub_u32 %s, %s, 1" % (s(sBud), s(sBud)))
        A("s_cbranch_scc1 %s_give" % ls1r)
        if "mask" in opt:
            A("s_mov_b64 exec, vcc")
        s1load(RING)
        if "mask" in opt:
            A("s_mov_b64 exec, -1")
        A("s_waitcnt vmcnt(%d)" % S1DEPTH)
        A.label(ls1w)
        check(RING, 8)
        A("s_cbranch_vccnz %s" % ls1r)
        A.label(lentry)
        A.lds, A.vm = [], []
        if "tt" in opt:
            lt = A.new("tt")
            A("s_cmp_lg_u32 %s, 3" % s(sStep))
            A("s_cbranch_scc1 %s" % lt)
            A("s_memtime s[92:93]")
            A.label(lt)
        if stamps and "rt" in opt:
            lq = A.new("q")
            A("s_memrealtime %s" % s(sStamp + 18, 2))
            A("s_cmp_lg_u32 %s, 41" % s(sStep))
            A("s_cbranch_scc1 %s" % lq)
            A("s_waitcnt lgkmcnt(0)")
            for i in range(10):
                A("v_writelane_b32 %s, %s, %d" % (v(vTmp), s(sStamp + 2 * i), i))
            A("s_lshl_b32 %s, %s, 2" % (s(sT), s(sCU)))
            A("s_add_u32 %s, %s, %s" % (s(sT), s(sT), s(sW)))
            A("s_lshl_b32 %s, %s, 11" % (s(sT), s(sT)))
            A("s_add_u32 %s, %s, %d" % (s(sT), s(sT), WS_DBG))
            A("buffer_store_dword %s, %s, %s, %s offen" % (v(vTmp), v(vL16), s(sWS, 4), s(sT)))
            A.label(lq)
        stamp()
        KXR = {(0, 0): LND, (0, 1): LND + 4, (0, 2): LND + 8, (0, 3): LND + 12, (1, 0): LND + 16, (1, 1): LND + 20, (1, 2): LND, (1, 3): LND + 4}
        def kxrd(tl, ks):
            A.ds("ds_read_b128 %s, %s offset:%d" % (v(KXR[(tl, ks)], 4), v(vL16), L_KX + (4 * tl + ks) * 1024), ('kx', tl, ks))
        AREG = {0: RING, 1: RING + 4, 2: RING + 8, 3: RING, 4: X2, 5: RING + 4, 6: RING + 8, 7: RING, 8: RING + 4}
        def Q(j, t):
            key = ('qk', j, t)
            SM(QK + 4 * t, AREG[j], R(WREGS[key], 8) if key in WREGS else v(LND + 8 * SLOT[key], 8))
        def VS(j, t, a_=None):
            key = ('v', j, t)
            SM(VACC + 4 * t, AREG[j] if a_ is None else a_, R(WREGS[key], 8) if key in WREGS else v(LND + 8 * SLOT[key], 8))
        L = lambda j, t, hh: land(('qk', j, t), hh)
        kd = kv_dma()
        mega = "mega" in opt
        ND = 0 if NDMA else 2
        def dma(i, tag):
            if not NDMA:
                A.vmem(kd[i], tag) if tag else A(kd[i])
        A.ds("ds_write_b128 %s, %s offset:%d" % (v(vT0), v(RING, 4), L_MEM), 'w1')
        if "s2l" not in opt:
            Q(0, 0); mbload(X2, 4)
            Q(0, 1); A("v_lshrrev_b32 %s, 2, %s" % (v(X2 + 5), v(vT0)))
            Q(0, 2); f8load()
            Q(0, 3); L(2, 0, 0)
            VS(0, 0); L(2, 0, 1)
            A.wait_ds('w1')
            VS(0, 1)
            A("s_barrier")
            ringrd(2, 2)
            stamp()
            Q(1, 0); L(2, 1, 0)
            dma(0, None)
            Q(1, 1); L(2, 1, 1)
            Q(1, 2); dma(1, 'kdma')
            Q(1, 3); A("s_add_u32 %s, %s, 1" % (s(sStep), s(sStep)))
            VS(1, 0); dma(2, 'kdma')
            VS(1, 1); A("s_waitcnt vmcnt(%d)" % (2 + ND))
            ringrd(3, 0)
            A.wait_ds(('qk', 2, 1))
            Q(2, 0); L(4, 0, 0)
            Q(2, 1); L(4, 0, 1)
            Q(2, 2); L(4, 1, 0)
            Q(2, 3); L(4, 1, 1)
            VS(2, 0); dma(3, None)
            VS(2, 1)
            A.wait_ds(('ring', 3))
            Q(3, 0); A("s_waitcnt vmcnt(%d)" % ND)
            s2check()
            Q(3, 1)
            Q(3, 2)
            A("s_cbranch_vccnz %s" % ls2r)
            A.label(ls2ok)
            A.ds("ds_write_b128 %s, %s offset:%d" % (v(vT0), v(X2, 4), L_MEM + 4096), 'w2')
            Q(3, 3)
            A.ds("ds_write_b32 %s, %s offset:%d" % (v(X2 + 5), v(X2 + 4), L_MEM + 8192), 'w2')
            VS(3, 0); dma(4, 'vdma')
            VS(3, 1); dma(5, 'vdma')
            A.wait_ds(('qk', 4, 1))
            Q(4, 0); L(6, 0, 0)
            Q(4, 1)
            A("s_waitcnt vmcnt(%d) lgkmcnt(1)" % ND)
            A.vm, A.lds = A.vm[len(A.vm) - ND:], A.lds[-1:]
            A("s_barrier")
            ringrd(5, 1)
            Q(4, 2); ringrd(6, 2)
            Q(4, 3); ringrd(7, 0)

        else:
            Q(0, 0)
            Q(0, 1); A("v_lshrrev_b32 %s, 2, %s" % (v(X2 + 5), v(vT0)))
            Q(0, 2); dma(0, None)
            Q(0, 3); L(2, 0, 0)
            VS(0, 0); L(2, 0, 1)
            A.wait_ds('w1')
            VS(0, 1)
            A("s_barrier")
            ringrd(2, 2)
            stamp()
            Q(1, 0); mbload(X2, 4)
            Q(1, 1); f8load()
            Q(1, 2); L(2, 1, 0)
            Q(1, 3); L(2, 1, 1)
            VS(1, 0); dma(1, 'kdma')
            VS(1, 1); A("s_waitcnt vmcnt(3)")
            ringrd(3, 0)
            A.wait_ds(('qk', 2, 1))
            Q(2, 0); dma(2, 'kdma')
            Q(2, 1); L(4, 0, 0)
            Q(2, 2); L(4, 0, 1)
            Q(2, 3); L(4, 1, 0)
            VS(2, 0); L(4, 1, 1)
            VS(2, 1); dma(3, None)
            A.wait_ds(('ring', 3))
            Q(3, 0); A("s_add_u32 %s, %s, 1" % (s(sStep), s(sStep)))
            Q(3, 1)
            Q(3, 2)
            Q(3, 3); A("s_waitcnt vmcnt(2)")
            s2check()
            VS(3, 0)
            VS(3, 1)
            A("s_cbranch_vccnz %s" % ls2r)
            A.label(ls2ok)
            A.wait_ds(('qk', 4, 1))
            A.ds("ds_write_b128 %s, %s offset:%d" % (v(vT0), v(X2, 4), L_MEM + 4096), 'w2')
            Q(4, 0)
            A.ds("ds_write_b32 %s, %s offset:%d" % (v(X2 + 5), v(X2 + 4), L_MEM + 8192), 'w2')
            Q(4, 1); L(6, 0, 0)
            Q(4, 2); dma(4, 'vdma')
            Q(4, 3); dma(5, 'vdma')
            A("s_waitcnt vmcnt(2) lgkmcnt(1)")
            A.vm, A.lds = A.vm[len(A.vm) - 2:], A.lds[-1:]
            A("s_barrier")
            ringrd(5, 1)
            ringrd(6, 2)
            ringrd(7, 0)
        VS(4, 0); L(6, 0, 1)
        VS(4, 1); L(6, 1, 0)
        A.wait_ds(('ring', 5))
        Q(5, 0); land(L2KEY, 0)
        Q(5, 1); land(L2KEY, 1)
        if mega:
            A("s_bitcmp1_b64 %s, %s" % (s(sRdy, 2), s(sStep)))
        Q(5, 2); L(6, 1, 1)
        A("s_mov_b32 m0, %d" % (L_SCR + 512))
        Q(5, 3); ringrd(8, 1)
        if mega:
            A("s_cbranch_scc0 %s" % lkvr)
            A.label(lkvok)
        A.wait_ds(('qk', 6, 0))
        Q(6, 0); L(7, 3, 0)
        A.wait_ds(('qk', 6, 1))
        Q(6, 1); L(7, 3, 1)
        A("v_lshlrev_b32 %s, 4, %s" % (v(vTmp), v(vL16)))
        Q(6, 2)
        if "notouch" not in opt:
            A.vmem("buffer_load_dword %s, %s, %s offen sc1 lds" % (v(vTmp), s(sWS, 4), s(sKVt)), 'touch')
        Q(6, 3); kxrd(0, 2)
        Q(7, 0); kxrd(0, 3)
        Q(7, 1)
        if "notouch" not in opt:
            A.vmem("buffer_load_dword %s, %s, %s offen offset:128 sc1 lds" % (v(vTmp), s(sWS, 4), s(sKVt)), 'touch')
        Q(7, 2); A("v_cndmask_b32 %s, 2.0, 0, %s" % (v(vTmp), s(sOne, 2)))
        A.wait_ds(('qk', 7, 3))
        Q(7, 3); kxrd(0, 0)
        Q(8, 0); kxrd(0, 1)
        Q(8, 1)
        A.vmem("buffer_store_dword %s, %s, %s, %s offen sc1" % (v(vIdx), v(vTmp), s(sWS, 4), s(sFlg)), 'flag')
        Q(8, 2); A("v_lshrrev_b32 %s, 2, %s" % (v(vTmp), v(vL16)))
        Q(8, 3); A("s_add_u32 %s, %s, 4096" % (s(sFlg), s(sFlg)))
        stamp()
        VS(7, 0); A("s_cmp_eq_u32 %s, %d" % (s(sStep), nsteps))
        VS(7, 1); ringrd(5, 0)
        def fin(base):
            A("v_add_f32 %s, %s, %s" % (v(base), v(base), v(base + 1)))
            A("v_add_f32 %s, %s, %s" % (v(base + 2), v(base + 2), v(base + 3)))
            A("v_add_f32 %s, %s, %s" % (v(base + 4), v(base + 4), v(base + 5)))
            A("v_add_f32 %s, %s, %s" % (v(base + 6), v(base + 6), v(base + 7)))
            A("v_cvt_pk_bf16_f32 %s, %s, %s" % (v(base), v(base), v(base + 4)))
            A("v_cvt_pk_bf16_f32 %s, %s, %s" % (v(base + 1), v(base + 2), v(base + 6)))
        def finw(base):
            o = 8 if base == QK else 0
            A.ds("ds_write2_b32 %s, %s, %s offset0:%d offset1:%d" % (v(vFw), v(base), v(base + 1), o, o + 4), 'fw')
        def pub(reg, off):
            A.vmem("buffer_store_dword %s, %s, %s, %s offen offset:%d%s" % (v(reg), v(vTmp), s(sWS, 4), s(sKM), off, PUB), 'pub')
        fin(QK)
        fin(QK + 8)
        finw(QK)
        finw(QK + 8)
        A.wait_vm(L2KEY)
        VS(8, 1); pub(QK + 8, 0)
        VS(8, 0); kxrd(1, 0)
        VS(6, 1); kxrd(1, 1)
        VS(6, 0); pub(QK + 9, 256)
        A.wait_ds('fw')
        A("s_barrier")
        for ks in range(4):
            A.ds("ds_read_b128 %s, %s offset:%d" % (v(QK + 4 * ks, 4), v(vL16), L_F + ks * FSTR), ('f', ks))
        stamp()
        VS(5, 0, RING)
        VS(5, 1, RING)
        T1, T2, T0 = RING, RING + 4, RING + 8
        ONES, LACC, OACC = QK + 8, QK + 12, LND + 16
        def S(i, ks):
            d, a_ = ((T1, KXR[(0, ks)]), (T2, KXR[(1, ks)]), (T0, QK + 4 * ks))[i]
            MF(d, a_, QK + 4 * ks, "0" if ks == 0 else v(d, 4))
        def vfin(t, part):
            b = VACC + 4 * t
            if part == 0:
                A("v_add_f32 %s, %s, %s" % (v(b), v(b), v(b + 1)))
                A("v_add_f32 %s, %s, %s" % (v(b + 2), v(b + 2), v(b + 3)))
            else:
                A("v_cvt_pk_bf16_f32 %s, %s, %s" % (v(b), v(b), v(b + 2)))
                A("v_mov_b32 %s, 0" % v(b + 1))
        def vxrd(t):
            A.ds("ds_read_b128 %s, %s offset:%d" % (v(QK + 4 * t, 4), v(vWL), 32768 + t * 1024), 'vx')
        m1, m2 = T0 + 2, T0 + 3
        A.wait_ds(('f', 0))
        S(0, 0); A.wait_ds(('f', 1))
        S(0, 1); kxrd(1, 2)
        kxrd(1, 3)
        A.wait_ds(('f', 3))
        S(0, 2)
        S(0, 3); land(('o', 1), 0)
        land(('o', 1), 1)
        S(2, 0); vfin(0, 0)
        S(2, 1); vfin(0, 1)
        S(2, 2); vfin(1, 0)
        S(2, 3); pub(VACC, 512)
        vfin(1, 1)
        S(1, 0); vxrd(0)
        A("v_max3_f32 %s, %s, %s, %s" % (v(VACC + 2), v(T1), v(T1 + 1), v(T1 + 2)))
        S(1, 1); vxrd(1)
        A.wait_ds(('kx', 1, 3))
        S(1, 2); pub(VACC + 4, 768)
        A("v_max3_f32 %s, %s, %s, %s" % (v(m1), v(VACC + 2), v(T1 + 3), v(T0)))
        S(1, 3); land(('o', 0), 0)
        land(('o', 0), 1)
        A("s_cbranch_scc1 %s" % lexit)
        A("s_add_u32 %s, %s, %d" % (s(sKM), s(sKM), 32 * 4096))
        stamp()
        sv = [T1, T1 + 1, T1 + 2, T1 + 3, T2, T2 + 1, T2 + 2, T2 + 3, T0, T0 + 1]
        A("v_max_f32 %s, %s, %s" % (v(m1), v(m1), v(T0 + 1)))
        A("s_nop 0")
        A("v_mov_b32 %s, 0x3f803f80" % v(ONES))
        A("v_mov_b32 %s, 0x3f803f80" % v(ONES + 1))
        A("v_max3_f32 %s, %s, %s, %s" % (v(m1), v(m1), v(sv[4]), v(sv[5])))
        A("v_max3_f32 %s, %s, %s, %s" % (v(m2), v(m1), v(sv[6]), v(sv[7])))
        A("v_max3_f32 %s, %s, %s, %s" % (v(m1), v(m1), v(sv[6]), v(sv[7])))
        A("v_mov_b32 %s, 0x3f803f80" % v(ONES + 2))
        A("v_mov_b32 %s, 0x3f803f80" % v(ONES + 3))
        A("v_permlane32_swap_b32 %s, %s" % (v(m1), v(m2)))
        A("v_max_f32 %s, %s, %s" % (v(m1), v(m1), v(m2)))
        A("v_mov_b32 %s, %s" % (v(m2), v(m1)))
        A("s_nop 1")
        A("v_permlane16_swap_b32 %s, %s" % (v(m1), v(m2)))
        A("v_max_f32 %s, %s, %s" % (v(m1), v(m1), v(m2)))
        A("v_mul_f32 %s, %s, %s" % (v(m1), s(sC), v(m1)))
        for x in sv:
            A("v_fma_f32 %s, %s, %s, -%s" % (v(x), v(x), s(sC), v(m1)))
        P, Pm = T1, T0
        for x in sv[:8]:
            A("v_exp_f32 %s, %s" % (v(x), v(x)))
        A("v_cvt_pk_bf16_f32 %s, %s, %s" % (v(P), v(T1), v(T1 + 1)))
        A("v_cvt_pk_bf16_f32 %s, %s, %s" % (v(P + 1), v(T1 + 2), v(T1 + 3)))
        A("v_cvt_pk_bf16_f32 %s, %s, %s" % (v(P + 2), v(T2), v(T2 + 1)))
        A("v_cvt_pk_bf16_f32 %s, %s, %s" % (v(P + 3), v(T2 + 2), v(T2 + 3)))
        A("v_exp_f32 %s, %s" % (v(T0), v(T0)))
        A.wait_ds('vx')
        A("v_exp_f32 %s, %s" % (v(T0 + 1), v(T0 + 1)))
        MF(LACC, ONES, P, "0")
        A("v_cvt_pk_bf16_f32 %s, %s, %s" % (v(Pm), v(T0), v(T0 + 1)))
        A("v_mov_b32 %s, 0" % v(Pm + 1))
        MF(OACC, QK, P, "0")
        MF(OACC + 4, QK + 4, P, "0")
        A("v_mfma_f32_16x16x16_bf16 %s, %s, %s, %s" % (v(LACC, 4), v(ONES, 2), v(Pm, 2), v(LACC, 4)))
        for t in range(2):
            A("v_mfma_f32_16x16x16_bf16 %s, %s, %s, %s" % (v(OACC + 4 * t, 4), v(VACC + 4 * t, 2), v(Pm, 2), v(OACC + 4 * t, 4)))
        zero(12, 24)
        A("v_rcp_f32 %s, %s" % (v(vTmp), v(LACC)))
        A("v_mov_b64 %s, 0" % v(24, 2))
        for i in range(8):
            A("v_mul_f32 %s, %s, %s" % (v(OACC + i), v(OACC + i), v(vTmp)))
        OP = T2
        for i in range(4):
            A("v_cvt_pk_bf16_f32 %s, %s, %s" % (v(OP + i), v(OACC + 2 * i), v(OACC + 2 * i + 1)))
        A.ds("ds_write_b128 %s, %s" % (v(vOw), v(OP, 4)), 'ow')
        A("v_mov_b64 %s, -1" % v(36, 2))
        A("v_cndmask_b32 %s, 0, 1, %s" % (v(vTmp), s(sTagM, 2)))
        A.vmem("buffer_store_dwordx2 %s, %s, %s, %s offen%s" % (v(36, 2), v(vRst), s(sWS, 4), s(sX2), SC), 'rst')
        zero(26, 36)
        A.wait_ds('ow')
        A("s_barrier")
        OF = LND + 16
        for c2 in range(2):
            A.ds("ds_read_b128 %s, %s offset:%d" % (v(OF + 4 * c2, 4), v(vL16), L_O + c2 * 1024), ('of', c2))
        stamp()
        zero(36, 48)
        def wacc(tile):
            return 12 + 4 * tile
        def W(p, c2):
            key = ('o', 2 * p + c2)
            wait_many([('of', c2), key])
            SM(wacc(p), OF + 4 * c2, R(WREGS[key], 8) if key in WREGS else v(LND + 8 * SLOT[key], 8))
        def e1(tile):
            b = wacc(tile)
            A("v_add_f32 %s, %s, %s" % (v(b + 1), v(b), v(b + 1)))
            A("v_add_f32 %s, %s, %s" % (v(b + 3), v(b + 2), v(b + 3)))
        def e2(tile):
            b = wacc(tile)
            A("v_cvt_pk_bf16_f32 %s, %s, %s" % (v(b), v(b + 1), v(b + 3)))
            A("v_bfi_b32 %s, %s, %s, %s" % (v(b), v(vTmp), s(sPh), v(b)))
        def e3(tile):
            A("buffer_store_dword %s, %s, %s, %s offen%s" % (v(wacc(tile)), v(vPst), s(sWS, 4), s(sPt + tile), SC))
        LO = lambda n, hh: land(('o', n), hh)
        W(0, 0); LO(8, 0)
        W(0, 1); LO(8, 1)
        W(1, 0); LO(9, 0)
        W(1, 1); LO(9, 1)
        A("s_add_u32 %s, %s, %d" % (s(sKVt), s(sKVt), KVINC))
        W(2, 0); A("s_add_u32 %s, %s, %d" % (s(sKV), s(sKV), KVINC))
        A("s_add_u32 %s, %s, %d" % (s(sKVv), s(sKVv), KVINC))
        e1(0)
        W(2, 1); e2(0)
        for p in range(3, 9):
            W(p, 0); e3(p - 3)
            if p == 5:
                LO(16, 0)
            e1(p - 2)
            W(p, 1)
            if p == 4:
                LO(16, 1)
            if p == 5:
                LO(17, 0)
            if p == 6:
                LO(17, 1)
            if p == 7:
                A("s_cmp_ge_u32 %s, 32" % s(sUnit))
            e2(p - 2)
        EP = optval("ep", 0)
        def wtail(early):
            if early and EP == 3:
                poll1_issue(PLA)
            e3(6)
            if early and EP == 2:
                poll1_issue(PLA)
            e1(7); e2(7); e3(7)
            if early and EP == 1:
                poll1_issue(PLA)
            e1(8); e2(8); e3(8)
            if stamps:
                A("s_memrealtime %s" % s(sStamp + 16, 2))
        if EP:
            lw = A.new("wt")
            A("s_cbranch_scc0 %s" % lw)
            wtail(False)
            A("s_branch %s" % lnored)
            A.label(lw)
            wtail(True)
        else:
            wtail(False)
            A("s_cbranch_scc1 %s" % lnored)
        def prep():
            mksel()
            rotate()
            for i in range(0, 8, 2):
                A("v_mov_b64 %s, -1" % v(RING + i, 2))
            A("v_mov_b32 %s, %d" % (v(46), L_FLAG))
            A("v_mov_b32 %s, %s" % (v(47), s(sStep)))
        l1b = A.new("p1b")
        if EP:
            if "eb2" in opt:
                prep()
                poll1_issue(PLB)
            else:
                poll1_issue(PLB)
                prep()
            reduce_body(PLA, 4 + EP)
            A("s_cbranch_vccz %s" % lok1)
            A("s_branch %s" % l1b)
        A.label(lgo1)
        poll1_issue(PLA)
        stamp()
        prep()
        poll1_issue(PLB)
        A.label(l1a)
        reduce_body(PLA, 4)
        A("s_cbranch_vccz %s" % lok1)
        A.label(l1b)
        if "tt" in opt:
            A("s_add_u32 s87, s87, 1")
        poll1_issue(PLA)
        reduce_body(PLB, 4)
        A("s_cbranch_vccz %s" % lok1)
        if "tt" in opt:
            A("s_add_u32 s87, s87, 1")
        poll1_issue(PLB)
        A("s_sub_u32 %s, %s, 1" % (s(sBud), s(sBud)))
        A("s_cbranch_scc0 %s" % l1a)
        A("s_mov_b32 %s, 0" % s(sBud))
        A.label(lok1)
        def finish(nop):
            A("s_nop %d" % nop)
            for i in range(4):
                A("v_add_f32_dpp %s, %s, %s row_ror:8 row_mask:0xf bank_mask:0xf" % (v(RACC + i), v(RACC + i), v(RACC + i)))
            A("v_cvt_pk_bf16_f32 %s, %s, %s" % (v(44), v(RACC), v(RACC + 1)))
            A("v_cvt_pk_bf16_f32 %s, %s, %s" % (v(45), v(RACC + 2), v(RACC + 3)))
            A("buffer_store_dwordx2 %s, %s, %s, %s offen%s" % (v(44, 2), v(vRst), s(sWS, 4), s(sX0), SC))
        if "lsep" in opt:
            le = A.new("efin")
            A("s_cmp_lt_u32 %s, 32" % s(sUnit))
            A("s_cbranch_scc1 %s" % le)
            s1load(RING)
            finish(0)
            A("s_waitcnt vmcnt(3)")
            for ch in QK_CHAIN:
                land(ch[0])
            zero(VACC, RING)
            A("s_xor_b32 %s, %s, 1" % (s(sPh), s(sPh)))
            if "l2nd" in opt:
                s1load(RING)
                A("s_waitcnt vmcnt(3) lgkmcnt(0)")
            else:
                A("s_waitcnt vmcnt(1) lgkmcnt(0)")
            A("s_branch %s" % ls1w)
            A.label(le)
            A("ds_write_b32 %s, %s" % (v(46), v(47)))
            finish(0)
        else:
            A("ds_write_b32 %s, %s" % (v(46), v(47)))
            finish(2)
        stamp()
        A.label(lb4)
        for i in range(optval("g1", 0)):
            A("s_nop 7")
        if "late" in opt:
            A("s_waitcnt vmcnt(1)")
        else:
            s1load(RING)
            A("s_waitcnt vmcnt(%d)" % (5 if "early1" in opt else 3))
        for ch in QK_CHAIN:
            land(ch[0])
        zero(VACC, RING)
        A("s_xor_b32 %s, %s, 1" % (s(sPh), s(sPh)))
        if "late" in opt:
            s1load(RING)
        for i in range(optval("g2", 0)):
            A("s_nop 7")
        if "first0" in opt:
            A("s_waitcnt vmcnt(0)")
        A("s_waitcnt lgkmcnt(0)")
        if stamps and "rt" not in opt:
            ldump = A.new("dump")
            A("s_cmp_eq_u32 %s, 41" % s(sStep))
            A("s_cbranch_scc1 %s" % ldump)
            A("s_cmp_eq_u32 %s, 42" % s(sStep))
            A("s_cbranch_scc0 %s" % ls1w)
            A.label(ldump)
            for i in range(10):
                A("v_writelane_b32 %s, %s, %d" % (v(vTmp), s(sStamp + 2 * i), i))
            A("v_writelane_b32 %s, %s, %d" % (v(vTmp), s(sBud), 15))
            A("s_lshl_b32 %s, %s, 2" % (s(sT), s(sCU)))
            A("s_add_u32 %s, %s, %s" % (s(sT), s(sT), s(sW)))
            A("s_lshl_b32 %s, %s, 1" % (s(sT), s(sT)))
            A("s_add_u32 %s, %s, %s" % (s(sT), s(sT), s(sStep)))
            A("s_sub_u32 %s, %s, 41" % (s(sT), s(sT)))
            A("s_lshl_b32 %s, %s, 10" % (s(sT), s(sT)))
            A("s_add_u32 %s, %s, %d" % (s(sT), s(sT), WS_DBG + (3 << 18 if "mega" in opt else 0)))
            A("buffer_store_dword %s, %s, %s, %s offen" % (v(vTmp), v(vL16), s(sWS, 4), s(sT)))
            A("s_waitcnt vmcnt(0)")
        A("s_branch %s" % ls1w)
        A.label(ls1r + "_give")
        A("s_mov_b32 %s, 0" % s(sBud))
        A("s_branch %s" % lentry)
        A.label(lexit)
        if "tt" in opt:
            A("s_memtime s[94:95]")
            A("s_memrealtime s[70:71]")
            A("s_waitcnt lgkmcnt(0)")
            A("s_sub_u32 s94, s94, s92")
            A("s_sub_u32 s92, s92, s90")
            A("v_writelane_b32 %s, s92, 0" % v(vTmp))
            A("v_writelane_b32 %s, s94, 1" % v(vTmp))
            A("v_writelane_b32 %s, %s, 2" % (v(vTmp), s(sBud)))
            for i in range(3):
                A("v_writelane_b32 %s, s%d, %d" % (v(vTmp), 87 + i, 3 + i))
            for i in range(4):
                A("v_writelane_b32 %s, s%d, %d" % (v(vTmp), 64 + 2 * i, 6 + i))
            A("s_lshl_b32 %s, %s, 2" % (s(sT), s(sCU)))
            A("s_add_u32 %s, %s, %s" % (s(sT), s(sT), s(sW)))
            A("s_lshl_b32 %s, %s, 10" % (s(sT), s(sT)))
            A("s_add_u32 %s, %s, %d" % (s(sT), s(sT), WS_DBG + (1 << 19)))
            A("buffer_store_dword %s, %s, %s, %s offen" % (v(vTmp), v(vL16), s(sWS, 4), s(sT)))
            if "dbgout" in opt:
                for i, o in enumerate((4, 8, 12, 20)):
                    A("v_mov_b32 %s, s%d" % (v(vTmp), 64 + 2 * i))
                    A("buffer_atomic_umax %s, off, %s, 0 offset:%d" % (v(vTmp), s(sDBG, 4), o))
        A("s_waitcnt vmcnt(0)")

    loop(" sc1" if "forcesc1" in opt else "")
    A("s_endpgm")
    A.label(lslow)
    nst[0] = 0
    loop(" sc1")
```

```python
from asmlib import *
from layout import *
import struct, math

def f32bits(x):
    return struct.unpack("<I", struct.pack("<f", x))[0]

sWS, sW1, sW2, sW3, sWO, sXS, sDBG = 4, 8, 12, 16, 20, 24, 28
sWid, sW, sSl, sRep, sSeg, sBud = 32, 33, 34, 35, 36, 37
sA0 = 38
sT = 60
sMask = 64
sSel = 80
vL16, vLane, vG, vC, vX, vTmp, vFl = 0, 1, 2, 3, 4, 5, 6
NSLOT = 9
L_SCR = 147456

TS = {'on': False, 'reg': 15}
sTsI = 98
def ts(A, idx=None):
    if not TS['on'] or (TS.get('fine') and idx is None):
        return
    A("s_memrealtime s[96:97]")
    A("s_waitcnt lgkmcnt(0)")
    A.lds = []
    if idx is None:
        A("s_mov_b32 m0, %s" % s(sTsI))
        A("s_add_u32 %s, %s, 1" % (s(sTsI), s(sTsI)))
        A("v_writelane_b32 %s, s96, m0" % v(TS['reg']))
    else:
        A("v_writelane_b32 %s, s96, %d" % (v(TS['reg']), idx))
def fs(A, idx):
    if TS.get('fine'):
        A("s_memtime s[96:97]")
        A("s_waitcnt lgkmcnt(0)")
        A.lds = []
        A("v_writelane_b32 %s, s96, %d" % (v(TS['reg']), idx))
def ts_dump(A, part):
    if not TS['on']:
        return
    A("s_lshl_b32 s96, %s, 2" % s(sWid))
    A("s_add_u32 s96, s96, %s" % s(sW))
    A("s_lshl_b32 s96, s96, 9")
    A("s_add_u32 s96, s96, %d" % (WS_DBG + part * 256))
    A("v_lshlrev_b32 %s, 2, %s" % (v(vTmp), v(vLane)))
    A("buffer_store_dword %s, %s, %s, s96 offen" % (v(TS['reg']), v(vTmp), s(sWS, 4)))
    A("s_waitcnt vmcnt(0)")
    A("s_mov_b32 %s, 0" % s(sTsI))

def build_srd(A, d, karg, nbytes):
    A("s_load_dwordx2 %s, s[0:1], %d" % (s(d, 2), karg))
    A("s_waitcnt lgkmcnt(0)")
    A("s_and_b32 %s, %s, 0xffff" % (s(d + 1), s(d + 1)))
    A("s_mov_b32 %s, %d" % (s(d + 2), nbytes))
    A("s_mov_b32 %s, 0x20000" % s(d + 3))

def wait_flags(A, voff, soff, srd=sWS, cmp_ge=None, imm=0):
    lp, ok = A.new("wf"), A.new("wfok")
    A.label(lp)
    if voff is None:
        A("buffer_load_dword %s, off, %s, %s offset:%d sc1" % (v(vTmp), s(srd, 4), soff, imm))
    else:
        A("buffer_load_dword %s, %s, %s, %s offen offset:%d sc1" % (v(vTmp), v(voff), s(srd, 4), soff, imm))
    A("s_waitcnt vmcnt(0)")
    if cmp_ge is None:
        A("v_cmp_eq_u32 vcc, 0, %s" % v(vTmp))
    else:
        A("v_cmp_gt_u32 vcc, %d, %s" % (cmp_ge, v(vTmp)))
    A("s_cbranch_vccz %s" % ok)
    A("s_sleep 2")
    A("s_sub_u32 %s, %s, 1" % (s(sBud), s(sBud)))
    A("s_cbranch_scc0 %s" % lp)
    A("s_mov_b32 %s, 0" % s(sBud))
    A.label(ok)
    A.vm = []

def wait_ready(A, soff, n):
    if TS.get('cnt') and n != 128:
        wait_flags(A, None, soff, cmp_ge=n)
    else:
        wait_flags(A, None, soff, imm=128)

def set_flag(A, soff, wave0_only=True):
    sk = A.new("sf")
    if wave0_only:
        A("s_cmp_lg_u32 %s, 0" % s(sW))
        A("s_cbranch_scc1 %s" % sk)
    A("s_mov_b64 exec, 1")
    A("v_mov_b32 %s, 1" % v(vTmp))
    A("buffer_store_dword %s, off, %s, %s sc1" % (v(vTmp), s(sWS, 4), soff))
    A("s_mov_b64 exec, -1")
    A.label(sk)

def arrive(A, soff, n, wave0_only=True):
    sk = A.new("ar")
    if wave0_only:
        A("s_cmp_lg_u32 %s, 0" % s(sW))
        A("s_cbranch_scc1 %s" % sk)
    A("s_mov_b64 exec, 1")
    A("v_mov_b32 %s, 1" % v(vTmp))
    if TS.get('cnt') and n != 128:
        A("buffer_atomic_add %s, off, %s, %s" % (v(vTmp), s(sWS, 4), soff))
        A("s_mov_b64 exec, -1")
        A.label(sk)
        return
    A("buffer_atomic_add %s, off, %s, %s sc0" % (v(vTmp), s(sWS, 4), soff))
    A("s_waitcnt vmcnt(0)")
    A("v_cmpx_eq_u32 vcc, %d, %s" % (n - 1, v(vTmp)))
    A("s_cbranch_execz %s_x" % sk)
    A("buffer_store_dword %s, off, %s, %s offset:128 sc1" % (v(vTmp), s(sWS, 4), soff))
    A.label(sk + "_x")
    A("s_mov_b64 exec, -1")
    A.label(sk)

def canary(A, soff, imm=0, voff=None):
    lp, ok = A.new("cn"), A.new("cnok")
    A.label(lp)
    if voff is None:
        A("buffer_load_dword %s, off, %s, %s offset:%d sc1" % (v(vTmp), s(sWS, 4), soff, imm))
    else:
        A("buffer_load_dword %s, %s, %s, %s offen offset:%d sc1" % (v(vTmp), v(voff), s(sWS, 4), soff, imm))
    A("s_waitcnt vmcnt(0)")
    A("v_cmp_eq_u32 vcc, -1, %s" % v(vTmp))
    A("s_cbranch_vccz %s" % ok)
    A("s_sleep 1")
    A("s_sub_u32 %s, %s, 1" % (s(sBud), s(sBud)))
    A("s_cbranch_scc0 %s" % lp)
    A("s_mov_b32 %s, 0" % s(sBud))
    A.label(ok)
def maxchain(A, regs, first):
    regs = list(regs)
    if first:
        A("v_max_u32 %s, %s, %s" % (v(vTmp), v(regs[0]), v(regs[1])))
        regs = regs[2:]
    for i in range(0, len(regs), 2):
        A("v_max3_u32 %s, %s, %s, %s" % (v(vTmp), v(vTmp), v(regs[i]), v(regs[i + 1])))
def retry_if_sentinel(A, lagain):
    ok = A.new("sok")
    A("v_cmp_eq_u32 vcc, -1, %s" % v(vTmp))
    A("s_cbranch_vccz %s" % ok)
    A("s_sub_u32 %s, %s, 1" % (s(sBud), s(sBud)))
    A("s_cbranch_scc0 %s" % lagain)
    A("s_mov_b32 %s, 0" % s(sBud))
    A.label(ok)

def MF(A, d, a_, b_, c_):
    A("v_mfma_f32_16x16x32_bf16 %s, %s, %s, %s" % (d, a_, b_, c_))

sLW = 99
def stage_issue(A, chunks, c):
    srd, voff, so, _ = chunks[c]
    for j in range(4):
        A("s_add_u32 m0, %s, %d" % (s(sLW), (c % NSLOT) * 16384 + j * 1024))
        A("s_mov_b32 %s, %d" % (s(sT + 2), so[j]))
        A.vmem("buffer_load_dwordx4 %s, %s, %s offen lds" % (v(voff), s(srd, 4), s(sT + 2)), ('c', c))
def stage_start(A, chunks, depth=NSLOT - 1):
    A("s_lshl_b32 %s, %s, 12" % (s(sLW), s(sW)))
    for c in range(min(depth, len(chunks))):
        stage_issue(A, chunks, c)
def stage(A, chunks, started=False, depth=NSLOT - 1):
    if not started:
        stage_start(A, chunks, depth)
    n = len(chunks)
    for c in range(n):
        A.wait_vm(('c', c))
        A("s_barrier")
        if c + depth < n:
            stage_issue(A, chunks, c + depth)
        chunks[c][3]((c % NSLOT) * 16384)
        A.wait_ds()
    A("s_barrier")

def wide_off(A, dst, t1, rowstride, s_extra):
    A("v_lshlrev_b32 %s, 2, %s" % (v(t1), v(vG)))
    A("v_sub_u32 %s, %s, %s" % (v(t1), v(vLane), v(t1)))
    A("v_and_b32 %s, 15, %s" % (v(t1), v(t1)))
    A("v_lshlrev_b32 %s, 4, %s" % (v(t1), v(t1)))
    A("v_mul_u32_u24 %s, %d, %s" % (v(dst), rowstride, v(vG)))
    A("v_add_u32 %s, %s, %s" % (v(dst), v(dst), v(t1)))
    A("s_mul_i32 %s, %s, %d" % (s(sT + 3), s(sW), 16 * rowstride))
    A("s_add_u32 %s, %s, %s" % (s(sT + 3), s(sT + 3), s_extra))
    A("v_add_u32 %s, %s, %s" % (v(dst), s(sT + 3), v(dst)))

def wide_tr(A, dst, t1, s_col, ccmul):
    A("v_mul_u32_u24 %s, %d, %s" % (v(t1), ccmul, v(vX)))
    A("v_lshl_add_u32 %s, %s, 2, %s" % (v(t1), v(vC), v(t1)))
    A("v_add_u32 %s, %s, %s" % (v(t1), s_col, v(t1)))
    A("v_and_b32 %s, 15, %s" % (v(t1), v(t1)))
    A("v_lshlrev_b32 %s, 4, %s" % (v(t1), v(t1)))
    A("v_lshl_add_u32 %s, %s, 3, %s" % (v(dst), v(vG), v(vC)))
    A("v_lshl_add_u32 %s, %s, 8, %s" % (v(dst), v(dst), v(t1)))

def tall_off(A, dst, t1, s_extra):
    A("v_lshrrev_b32 %s, 3, %s" % (v(t1), v(vLane)))
    A("v_mul_u32_u24 %s, 1152, %s" % (v(dst), v(t1)))
    A("v_and_b32 %s, 7, %s" % (v(t1), v(vLane)))
    A("v_lshl_add_u32 %s, %s, 4, %s" % (v(dst), v(t1), v(dst)))
    A("s_mul_i32 %s, %s, %d" % (s(sT + 3), s(sW), 32 * 1152))
    A("s_add_u32 %s, %s, %s" % (s(sT + 3), s(sT + 3), s_extra))
    A("v_add_u32 %s, %s, %s" % (v(dst), s(sT + 3), v(dst)))

def tall_tr(A, dst, kbshift):
    A("v_lshl_add_u32 %s, %s, %d, %s" % (v(dst), v(vG), kbshift, v(vC)))
    A("v_lshlrev_b32 %s, 7, %s" % (v(dst), v(dst)))
    A("v_lshl_add_u32 %s, %s, 3, %s" % (v(dst), v(vX), v(dst)))
    A("s_lshl_b32 %s, %s, 5" % (s(sT + 3), s(sW)))
    A("v_add_u32 %s, %s, %s" % (v(dst), s(sT + 3), v(dst)))

def tr2(A, reg, addr, imm0, imm1):
    A.ds("ds_read_b64_tr_b16 %s, %s offset:%d" % (R(reg, 2), v(addr), imm0))
    A.ds("ds_read_b64_tr_b16 %s, %s offset:%d" % (R(reg + 2, 2), v(addr), imm1))

def x_dma(A, vXo, sSrc, sM0):
    for i in range(9):
        A("s_add_u32 m0, %s, %d" % (s(sM0), 896 * i))
        A("s_nop 0")
        A.vmem("buffer_load_dwordx4 %s, %s, %s offen offset:%d sc1 lds" % (v(vXo), s(sWS, 4), s(sSrc), 128 * i), 'x')

def gemm576(A, vXa, LAND, wreg, acc, ntile, swap, mid=None):
    def rd(ks):
        for tt in range(2):
            A.ds("ds_read_b128 %s, %s offset:%d" % (v(LAND + 8 * (ks & 1) + 4 * tt, 4), v(vXa + (ks & 1)), 18432 * tt + (ks >> 1) * 1024), ('x', ks))
    rd(0)
    for ks in range(18):
        A.wait_ds(('x', ks))
        n = 0
        for t in range(ntile):
            for tt in range(2):
                x = v(LAND + 8 * (ks & 1) + 4 * tt, 4)
                w = R(wreg(t, ks), 4)
                d = v(acc(t, tt), 4)
                if swap(t):
                    MF(A, d, x, w, "0" if ks == 0 else d)
                else:
                    MF(A, d, w, x, "0" if ks == 0 else d)
                n += 1
                if n == 1 and ks + 1 < 18:
                    rd(ks + 1)
        if mid and ks == 4:
            mid()

def wave_sum(A, r, t):
    for k in (8, 4, 2, 1):
        A("s_nop 1")
        A("v_add_f32_dpp %s, %s, %s row_ror:%d row_mask:0xf bank_mask:0xf" % (v(r), v(r), v(r), k))
    for op in ("v_permlane16_swap_b32", "v_permlane32_swap_b32"):
        A("v_mov_b32 %s, %s" % (v(t), v(r)))
        A("s_nop 1")
        A("%s %s, %s" % (op, v(r), v(t)))
        A("v_add_f32 %s, %s, %s" % (v(r), v(r), v(t)))

def rnd2(A, a, b):
    A("v_cvt_pk_bf16_f32 %s, %s, %s" % (v(b), v(a), v(b)))
    A("v_lshlrev_b32 %s, 16, %s" % (v(a), v(b)))
    A("v_and_b32 %s, 0xffff0000, %s" % (v(b), v(b)))
def rnd1(A, a):
    A("v_cvt_pk_bf16_f32 %s, %s, %s" % (v(a), v(a), v(a)))
    A("v_and_b32 %s, 0xffff0000, %s" % (v(a), v(a)))
def unpack(A, lo, hi, src):
    A("v_and_b32 %s, 0xffff0000, %s" % (v(hi), v(src))) if hi != src else None
    A("v_lshlrev_b32 %s, 16, %s" % (v(lo), v(src)))
    if hi == src:
        A("v_and_b32 %s, 0xffff0000, %s" % (v(hi), v(src)))

def row_offsets(A, vRow, vRow2, svalid, t):
    A("v_and_b32 %s, 7, %s" % (v(t), v(vLane)))
    A("v_lshlrev_b32 %s, 4, %s" % (v(vRow), v(t)))
    A("v_bfe_u32 %s, %s, 3, 1" % (v(t), v(vLane)))
    A("v_lshl_add_u32 %s, %s, 8, %s" % (v(vRow), v(t), v(vRow)))
    A("v_lshrrev_b32 %s, 1, %s" % (v(t), v(vG)))
    A("v_lshl_add_u32 %s, %s, 7, %s" % (v(vRow), v(t), v(vRow)))
    A("v_and_b32 %s, 1, %s" % (v(t), v(vG)))
    A("v_lshl_add_u32 %s, %s, 3, %s" % (v(vRow), v(t), v(vRow)))
    A("s_mov_b32 %s, 0x00ff00ff" % s(svalid))
    A("s_mov_b32 %s, 0" % s(svalid + 1))
    A("v_mov_b32 %s, 0x%x" % (v(t), OOB >> 1))
    A("v_cndmask_b32 %s, %s, %s, %s" % (v(vRow2), v(t), v(vRow), s(svalid, 2)))

def load_mod(A, dst, which, vRow, vRow2, t1, t2):
    A("v_lshlrev_b32 %s, 1, %s" % (v(t1), v(vRow)))
    A("v_lshlrev_b32 %s, 1, %s" % (v(t2), v(vRow2)))
    A("s_mov_b32 %s, %d" % (s(sT + 2), WS_MOD + which * 2304))
    for U in range(3):
        A.vmem("buffer_load_dwordx4 %s, %s, %s, %s offen offset:%d sc1" % (v(dst + 4 * U, 4), v(t1 if U < 2 else t2), s(sWS, 4), s(sT + 2), 1024 * U), 'mod')

def ln_stats(A, X, D, svalid, m, rs, t):
    A("v_add_f32 %s, %s, %s" % (v(m), v(X), v(X + 1)))
    for i in range(2, 12):
        A("v_add_f32 %s, %s, %s" % (v(m), v(m), v(X + i)))
    wave_sum(A, m, t)
    A("v_mul_f32 %s, 0x%x, %s" % (v(m), f32bits(1.0 / 576), v(m)))
    for i in range(12):
        A("v_sub_f32 %s, %s, %s" % (v(D + i), v(X + i), v(m)))
    A("v_mul_f32 %s, %s, %s" % (v(rs), v(D + 8), v(D + 8)))
    for i in range(9, 12):
        A("v_fmac_f32 %s, %s, %s" % (v(rs), v(D + i), v(D + i)))
    A("v_cndmask_b32 %s, 0, %s, %s" % (v(rs), v(rs), s(svalid, 2)))
    for i in range(8):
        A("v_fmac_f32 %s, %s, %s" % (v(rs), v(D + i), v(D + i)))
    wave_sum(A, rs, t)
    A("v_mul_f32 %s, 0x%x, %s" % (v(rs), f32bits(1.0 / 576), v(rs)))
    rnd2(A, m, rs)
    A("v_add_f32 %s, 0x%x, %s" % (v(rs), f32bits(1e-5), v(rs)))
    rnd1(A, rs)
    A("v_sqrt_f32 %s, %s" % (v(rs), v(rs)))
    A("s_nop 0")
    rnd1(A, rs)
    A("v_rcp_f32 %s, %s" % (v(rs), v(rs)))
    A("s_nop 0")

def ln_apply(A, X, m, rs, C1, SH, out):
    for i in range(12):
        A("v_sub_f32 %s, %s, %s" % (v(X + i), v(X + i), v(m)))
    for i in range(0, 12, 2):
        rnd2(A, X + i, X + i + 1)
    for i in range(12):
        A("v_mul_f32 %s, %s, %s" % (v(X + i), v(X + i), v(rs)))
    for i in range(0, 12, 2):
        rnd2(A, X + i, X + i + 1)
    for i in range(12):
        A("v_mul_f32 %s, %s, %s" % (v(X + i), v(X + i), v(C1 + i)))
    for i in range(0, 12, 2):
        rnd2(A, X + i, X + i + 1)
    for i in range(12):
        A("v_add_f32 %s, %s, %s" % (v(X + i), v(X + i), v(SH + i)))
    for i in range(6):
        A("v_cvt_pk_bf16_f32 %s, %s, %s" % (v(out + i), v(X + 2 * i), v(X + 2 * i + 1)))

def one_plus(A, C):
    for i in range(12):
        A("v_add_f32 %s, 1.0, %s" % (v(C + i), v(C + i)))
    for i in range(0, 12, 2):
        rnd2(A, C + i, C + i + 1)

def row_io(A, op, reg, vRow, vRow2, srd, soff, flags=""):
    for U in range(3):
        A.vmem("buffer_%s_dwordx2 %s, %s, %s, %s offen offset:%d%s" % (op, v(reg + 2 * U, 2), v(vRow if U < 2 else vRow2), s(srd, 4), soff, 512 * U, flags), 'row')

def sel_masks(A):
    for hi in range(2):
        for u in range(4):
            m16 = (3 << (2 * u)) << (8 * hi)
            m32 = m16 | (m16 << 16)
            A("s_mov_b32 %s, 0x%x" % (s(sSel + 8 * hi + 2 * u), m32))
            A("s_mov_b32 %s, 0x%x" % (s(sSel + 8 * hi + 2 * u + 1), m32))
def make_sel(A, dst, hi, t):
    A("v_and_b32 %s, 1, %s" % (v(t), v(vLane)))
    A("v_lshlrev_b32 %s, 4, %s" % (v(t), v(t)))
    A("v_mov_b32 %s, 0x3f80" % v(dst))
    A("v_lshlrev_b32 %s, %s, %s" % (v(t), v(t), v(dst)))
    for u in range(4):
        A("v_cndmask_b32 %s, 0, %s, %s" % (v(dst + u), v(t), s(sSel + 8 * hi + 2 * u, 2)))

def emit_worker(A, opt=()):
    A.c("=========== worker ===========")
    A("v_mov_b32 %s, v0" % v(vLane))
    A("v_lshlrev_b32 %s, 4, %s" % (v(vL16), v(vLane)))
    A("v_lshrrev_b32 %s, 4, %s" % (v(vG), v(vLane)))
    A("v_bfe_u32 %s, %s, 2, 2" % (v(vC), v(vLane)))
    A("v_and_b32 %s, 3, %s" % (v(vX), v(vLane)))
    A("s_mov_b32 %s, 400000" % s(sBud))
    TS['on'], TS['reg'], TS['fine'] = "ts" in opt, 79, "fs" in opt
    TS['cnt'] = "cnt" in opt
    TS['d2'] = ([int(o[3:]) for o in opt if o.startswith("d2=")] + [8])[0]
    ts(A, 0)
    sel_masks(A)
    build_srd(A, sXS, 0, 2359296)
    vRow, vRow2 = 7, 8
    sValid = sMask
    row_offsets(A, vRow, vRow2, sValid, vTmp)
    A("s_mul_i32 %s, %s, 9363" % (s(sSl), s(sWid)))
    A("s_lshr_b32 %s, %s, 16" % (s(sSl), s(sSl)))
    A("s_mul_i32 %s, %s, 7" % (s(sT), s(sSl)))
    A("s_sub_u32 %s, %s, %s" % (s(sRep), s(sWid), s(sT)))
    vOffW, vTr, vAd = 77, 78, 11
    A("s_lshl_b32 %s, %s, 8" % (s(sT + 1), s(sSl)))
    wide_off(A, vOffW, vTmp, 8192, s(sT + 1))
    A("s_lshr_b32 %s, %s, 1" % (s(sT + 1), s(sW)))
    A("s_lshl_b32 %s, %s, 3" % (s(sT + 1), s(sT + 1)))
    A("s_and_b32 %s, %s, 1" % (s(sT + 2), s(sW)))
    A("s_add_u32 %s, %s, %s" % (s(sT + 1), s(sT + 1), s(sT + 2)))
    wide_tr(A, vTr, vTmp, s(sT + 1), 2)
    W0 = 80
    def wq(t, ks):
        return W0 + 4 * (6 * ks + t)
    def wide_chunks(mats, rowstride, wreg, vOffW=vOffW, vTr=vTr):
        out = []
        for G in range(9):
            for m, srd in enumerate(mats):
                def consume(base, m=m, G=G):
                    A("v_add_u32 %s, %d, %s" % (v(vAd), base, v(vTr)))
                    for k2 in range(2):
                        for t in range(2):
                            tr2(A, wreg(2 * m + t, 2 * G + k2), vAd, 32 * k2 * 256 + 8 * t, (32 * k2 + 4) * 256 + 8 * t)
                out.append((srd, vOffW, [(64 * G + 4 * j) * rowstride for j in range(4)], consume))
        return out
    qchunks = wide_chunks((sW1, sW2, sW3), 8192, wq)
    lmod, lpre_done, lidle = A.new("mod"), A.new("predone"), A.new("idle")
    XR = 16
    A("s_cmp_lt_u32 %s, 3" % s(sRep))
    A("s_cbranch_scc1 %s" % lmod)
    A("s_lshl_b32 %s, %s, 2" % (s(sT), s(sSl)))
    A("s_add_u32 %s, %s, %s" % (s(sT), s(sT), s(sRep)))
    A("s_sub_u32 %s, %s, 3" % (s(sT), s(sT)))
    A("s_lshl_b32 %s, %s, 2" % (s(sT), s(sT)))
    A("s_add_u32 %s, %s, %s" % (s(sT), s(sT), s(sW)))
    A("s_mul_i32 %s, %s, %d" % (s(sA0), s(sT), 4 * 1152))
    for r in range(4):
        A("s_add_u32 %s, %s, %d" % (s(sT), s(sA0), r * 1152))
        row_io(A, "load", XR + 6 * r, vRow, vRow2, sXS, s(sT))
    stage_start(A, qchunks)
    A("s_waitcnt vmcnt(%d)" % (4 * (NSLOT - 1)))
    SH, C1, XF = 40, 52, 100
    for r in range(4):
        for i in range(6):
            unpack(A, XF + 12 * r + 2 * i, XF + 12 * r + 2 * i + 1, XR + 6 * r + i)
        ln_stats(A, XF + 12 * r, 160, sValid, 64 + 2 * r, 65 + 2 * r, 11)
    wait_flags(A, None, "0", srd=sDBG, imm=DBG_MOD)
    load_mod(A, SH, 0, vRow, vRow2, 9, 10)
    load_mod(A, C1, 1, vRow, vRow2, 9, 10)
    A("s_waitcnt vmcnt(0)")
    one_plus(A, C1)
    for r in range(4):
        ln_apply(A, XF + 12 * r, 64 + 2 * r, 65 + 2 * r, C1, SH, XR + 6 * r)
        A("s_add_u32 %s, %s, %d" % (s(sT), s(sA0), WS_H + r * 1152))
        row_io(A, "store", XR + 6 * r, vRow, vRow2, sWS, s(sT), " sc1")
    A("s_waitcnt vmcnt(0)")
    A("s_barrier")
    A("s_mov_b32 %s, %d" % (s(sT), FL_H))
    arrive(A, s(sT), 128)
    A("s_branch %s" % lpre_done)

    A.label(lmod)
    A("s_cmp_eq_u32 %s, 0" % s(sRep))
    A("s_cbranch_scc1 %s" % lidle)
    A("s_cmp_ge_u32 %s, 27" % s(sSl))
    A("s_cbranch_scc1 %s" % lidle)
    build_srd(A, sA0 + 2, 88, 1152)
    build_srd(A, sA0 + 6, 96, 3981312)
    sCs, sWm = sA0 + 2, sA0 + 6
    A("s_lshl_b32 %s, %s, 1" % (s(sA0), s(sSl)))
    A("s_add_u32 %s, %s, %s" % (s(sA0), s(sA0), s(sRep)))
    A("s_sub_u32 %s, %s, 1" % (s(sA0), s(sA0)))
    for i in range(4):
        A("v_mov_b32 %s, 0" % v(12 + i))
    A("s_lshl_b32 %s, %s, 2" % (s(sT), s(sA0)))
    A("s_add_u32 %s, %s, %s" % (s(sT), s(sT), s(sW)))
    A("s_lshl_b32 %s, %s, 11" % (s(sT), s(sT)))
    A("s_add_u32 %s, %s, %d" % (s(sT), s(sT), WS_FL))
    assert FL_END - WS_FL <= 54 * 8192
    A("buffer_store_dwordx4 %s, %s, %s, %s offen sc1" % (v(12, 4), v(vL16), s(sWS, 4), s(sT)))
    A("buffer_store_dwordx4 %s, %s, %s, %s offen offset:1024 sc1" % (v(12, 4), v(vL16), s(sWS, 4), s(sT)))
    A("v_lshrrev_b32 %s, 3, %s" % (v(9), v(vLane)))
    A("s_mul_i32 %s, %s, 144" % (s(sT), s(sW)))
    A("v_add_u32 %s, %s, %s" % (v(9), s(sT), v(9)))
    A("v_lshlrev_b32 %s, 1, %s" % (v(10), v(9)))
    A("v_mul_u32_u24 %s, 6912, %s" % (v(9), v(9)))
    A("v_and_b32 %s, 7, %s" % (v(11), v(vLane)))
    A("v_lshl_add_u32 %s, %s, 4, %s" % (v(9), v(11), v(9)))
    A("s_lshl_b32 %s, %s, 7" % (s(sT), s(sA0)))
    CV, WV, ACC = 100, 120, 200
    for i in range(18):
        A("buffer_load_ushort %s, %s, %s, 0 offen offset:%d" % (v(CV + i), v(10), s(sCs, 4), 16 * i))
    for i in range(18):
        A("s_add_u32 %s, %s, %d" % (s(sT + 1), s(sT), i * 55296))
        A("buffer_load_dwordx4 %s, %s, %s, %s offen" % (v(WV + 4 * i, 4), v(9), s(sWm, 4), s(sT + 1)))
    A("s_waitcnt vmcnt(18)")
    for i in range(18):
        c = CV + i
        A("v_lshlrev_b32 %s, 16, %s" % (v(c), v(c)))
        A("v_mul_f32 %s, 0x%x, %s" % (v(12), f32bits(-math.log2(math.e)), v(c)))
        A("v_exp_f32 %s, %s" % (v(12), v(12)))
        A("s_nop 0")
        A("v_add_f32 %s, 1.0, %s" % (v(12), v(12)))
        A("v_rcp_f32 %s, %s" % (v(12), v(12)))
        A("s_nop 0")
        A("v_mul_f32 %s, %s, %s" % (v(c), v(c), v(12)))
        rnd1(A, c)
    for j in range(8):
        A("v_mov_b32 %s, 0" % v(ACC + j))
    A("s_waitcnt vmcnt(0)")
    for i in range(18):
        for j in range(4):
            unpack(A, 12, 13, WV + 4 * i + j)
            A("v_fmac_f32 %s, %s, %s" % (v(ACC + 2 * j), v(12), v(CV + i)))
            A("v_fmac_f32 %s, %s, %s" % (v(ACC + 2 * j + 1), v(13), v(CV + i)))
    for j in range(8):
        r = ACC + j
        A("s_nop 1")
        A("v_add_f32_dpp %s, %s, %s row_ror:8 row_mask:0xf bank_mask:0xf" % (v(r), v(r), v(r)))
        for op in ("v_permlane16_swap_b32", "v_permlane32_swap_b32"):
            A("v_mov_b32 %s, %s" % (v(12), v(r)))
            A("s_nop 1")
            A("%s %s, %s" % (op, v(r), v(12)))
            A("v_add_f32 %s, %s, %s" % (v(r), v(r), v(12)))
    A("s_lshl_b32 %s, %s, 8" % (s(sT + 1), s(sW)))
    A("s_add_u32 %s, %s, %d" % (s(sT + 1), s(sT + 1), L_SCR))
    A("v_lshlrev_b32 %s, 5, %s" % (v(11), v(11)))
    A("v_add_u32 %s, %s, %s" % (v(11), s(sT + 1), v(11)))
    A("ds_write_b128 %s, %s" % (v(11), v(ACC, 4)))
    A("ds_write_b128 %s, %s offset:16" % (v(11), v(ACC + 4, 4)))
    A("s_waitcnt lgkmcnt(0)")
    A("s_barrier")
    A("v_lshlrev_b32 %s, 2, %s" % (v(10), v(vLane)))
    A("v_add_u32 %s, %d, %s" % (v(11), L_SCR, v(10)))
    for i in range(4):
        A("ds_read_b32 %s, %s offset:%d" % (v(12 + i), v(11), 256 * i))
    A("s_waitcnt lgkmcnt(0)")
    A("v_add_f32 %s, %s, %s" % (v(12), v(12), v(13)))
    A("v_add_f32 %s, %s, %s" % (v(14), v(14), v(15)))
    A("v_add_f32 %s, %s, %s" % (v(12), v(12), v(14)))
    rnd1(A, 12)
    A("s_lshl_b32 %s, %s, 8" % (s(sT), s(sA0)))
    A("s_add_u32 %s, %s, %d" % (s(sT), s(sT), WS_MOD))
    sk = A.new("modw")
    A("s_cmp_lg_u32 %s, 0" % s(sW))
    A("s_cbranch_scc1 %s" % sk)
    A("buffer_store_dword %s, %s, %s, %s offen sc1" % (v(12), v(10), s(sWS, 4), s(sT)))
    A("s_waitcnt vmcnt(0)")
    A("s_mov_b64 exec, 1")
    A("v_mov_b32 %s, 1" % v(12))
    A("buffer_atomic_add %s, off, %s, 0 offset:%d sc0" % (v(12), s(sDBG, 4), DBG_MODC))
    A("s_waitcnt vmcnt(0)")
    A("v_cmpx_eq_u32 vcc, 53, %s" % v(12))
    A("s_cbranch_execz %s_x" % sk)
    A("buffer_store_dword %s, off, %s, 0 offset:%d sc1" % (v(12), s(sDBG, 4), DBG_MOD))
    A.label(sk + "_x")
    A("s_mov_b64 exec, -1")
    A.label(sk)
    A.label(lidle)
    stage_start(A, qchunks)
    A.label(lpre_done)
    ts(A, 1)

    A.vm, A.lds = [('c', c) for c in range(NSLOT - 1) for j in range(4)], []
    stage(A, qchunks, started=True)
    ts(A, 2)
    wait_flags(A, None, "0", srd=sDBG, imm=DBG_MOD)
    ts(A, 3)
    ts(A, 4)
    if TS['on']:
        A("v_mov_b32 v15, v79")
        A("s_mov_b32 %s, 8" % s(sTsI))
        TS['reg'] = 15
    A("s_mov_b32 %s, %d" % (s(sT), FL_H))
    wait_flags(A, None, s(sT), imm=128)
    ts(A, 5)
    vXo, vXa = 9, 10
    LAND, ACC = 16, 32
    sSrc, sM0x, sQo, sKo, sFlag, sBuf = sA0, sA0 + 1, sA0 + 2, sA0 + 3, sA0 + 4, sA0 + 5
    def xsetup(vXa):
        A("v_lshrrev_b32 %s, 3, %s" % (v(vTmp), v(vLane)))
        A("v_xor_b32 %s, %s, %s" % (v(vXa), v(vTmp), v(vLane)))
        A("v_and_b32 %s, 7, %s" % (v(vXa), v(vXa)))
        A("v_mul_u32_u24 %s, 1152, %s" % (v(vXo), v(vTmp)))
        A("v_lshl_add_u32 %s, %s, 4, %s" % (v(vXo), v(vXa), v(vXo)))
        A("s_mul_i32 %s, %s, 9216" % (s(sM0x), s(sW)))
        A("v_add_u32 %s, %s, %s" % (v(vXo), s(sM0x), v(vXo)))
        A("v_and_b32 %s, 7, %s" % (v(vTmp), v(vLane)))
        A("v_xor_b32 %s, %s, %s" % (v(vXa), v(vG), v(vTmp)))
        A("v_lshlrev_b32 %s, 4, %s" % (v(vXa), v(vXa)))
        A("v_lshl_add_u32 %s, %s, 7, %s" % (v(vXa), v(vTmp), v(vXa)))
        A("v_bfe_u32 %s, %s, 3, 1" % (v(vTmp), v(vLane)))
        A("v_mul_u32_u24 %s, 9216, %s" % (v(vTmp), v(vTmp)))
        A("v_add_u32 %s, %s, %s" % (v(vXa), v(vXa), v(vTmp)))
        A("v_xor_b32 %s, 64, %s" % (v(vXa + 1), v(vXa)))
    xsetup(vXa)
    A("s_mov_b32 %s, %s" % (s(sSeg), s(sRep)))
    A("s_mul_i32 %s, %s, 36864" % (s(sSrc), s(sSeg)))
    A("s_add_u32 %s, %s, %d" % (s(sSrc), s(sSrc), WS_H))
    A("s_lshl_b32 %s, %s, 5" % (s(sT), s(sSeg)))
    A("s_add_u32 %s, %s, %s" % (s(sT), s(sT), s(sSl)))
    A("s_lshl_b32 %s, %s, 10" % (s(sT + 1), s(sW)))
    A("s_lshl_b32 %s, %s, 13" % (s(sQo), s(sT)))
    A("s_add_u32 %s, %s, %s" % (s(sQo), s(sQo), s(sT + 1)))
    A("s_add_u32 %s, %s, %d" % (s(sQo), s(sQo), WS_Q))
    A("s_lshl_b32 %s, %s, 14" % (s(sKo), s(sT)))
    A("s_add_u32 %s, %s, %s" % (s(sKo), s(sKo), s(sT + 1)))
    if WS_KV:
        A("s_add_u32 %s, %s, %d" % (s(sKo), s(sKo), WS_KV))
    A("s_mov_b32 %s, 0x%x" % (s(sFlag), OOB))
    A.vm = []
    x_dma(A, vXo, sSrc, sM0x)
    A("s_waitcnt vmcnt(0)")
    ltop, lend = A.new("qkv"), A.new("qkvend")
    A.label(ltop)
    A("s_waitcnt vmcnt(7)")
    A("s_barrier")
    ts(A)
    fs(A, 20)
    A("s_xor_b32 %s, %s, 0x10000" % (s(sM0x), s(sM0x)))
    A("s_add_u32 %s, %s, %d" % (s(sSrc), s(sSrc), 7 * 36864))
    x_dma(A, vXo, sSrc, sM0x)
    def mid():
        A("s_waitcnt vmcnt(9)")
        A("s_barrier")
        set_flag(A, s(sFlag))
    fs(A, 21)
    A.lds = []
    gemm576(A, vXa, LAND, wq, lambda t, tt: ACC + 8 * t + 4 * tt, 6, lambda t: t >= 4, mid)
    fs(A, 22)
    A("v_xor_b32 %s, 0x10000, %s" % (v(vXa), v(vXa)))
    A("v_xor_b32 %s, 0x10000, %s" % (v(vXa + 1), v(vXa + 1)))
    A("s_lshl_b32 %s, %s, 8" % (s(sFlag), s(sSl)))
    A("s_lshl_b32 %s, %s, 2" % (s(sT), s(sSeg)))
    A("s_add_u32 %s, %s, %s" % (s(sFlag), s(sFlag), s(sT)))
    A("s_add_u32 %s, %s, %d" % (s(sFlag), s(sFlag), FL_KV))
    A("s_add_u32 %s, %s, 4096" % (s(sT), s(sQo)))
    A("s_add_u32 %s, %s, 4096" % (s(sT + 1), s(sKo)))
    A("s_lshl_b32 %s, %s, 10" % (s(sT + 2), s(sW)))
    A("s_add_u32 %s, %s, %s" % (s(sT + 2), s(sT + 2), s(sKo)))
    A("s_add_u32 %s, %s, 8192" % (s(sT + 2), s(sT + 2)))
    for m in range(2):
        for tt in range(2):
            a0, a1 = ACC + 16 * m + 4 * tt, ACC + 16 * m + 8 + 4 * tt
            for x in range(4):
                A("v_cvt_pk_bf16_f32 %s, %s, %s" % (v(a0 + x), v(a0 + x), v(a1 + x)))
            so = (sQo, sT, sKo, sT + 1)[2 * m + tt]
            A("buffer_store_dwordx4 %s, %s, %s, %s offen sc1" % (v(a0, 4), v(vL16), s(sWS, 4), s(so)))
    for t in range(2):
        a0 = ACC + 32 + 8 * t
        A("v_cvt_pk_bf16_f32 %s, %s, %s" % (v(a0), v(a0), v(a0 + 1)))
        A("v_cvt_pk_bf16_f32 %s, %s, %s" % (v(a0 + 1), v(a0 + 2), v(a0 + 3)))
        A("v_cvt_pk_bf16_f32 %s, %s, %s" % (v(a0 + 2), v(a0 + 4), v(a0 + 5)))
        A("v_cvt_pk_bf16_f32 %s, %s, %s" % (v(a0 + 3), v(a0 + 6), v(a0 + 7)))
        A("buffer_store_dwordx4 %s, %s, %s, %s offen offset:%d sc1" % (v(a0, 4), v(vL16), s(sWS, 4), s(sT + 2), 1024 * t))
    A("v_mov_b64 %s, -1" % v(LAND, 2))
    A("v_mov_b64 %s, -1" % v(LAND + 2, 2))
    A("s_sub_u32 %s, %s, %d" % (s(sT), s(sQo), WS_Q))
    A("s_lshl_b32 %s, %s, 10" % (s(sT + 1), s(sW)))
    A("s_add_u32 %s, %s, %s" % (s(sT), s(sT), s(sT + 1)))
    A("s_lshr_b32 %s, %s, 1" % (s(sT), s(sT)))
    A("s_add_u32 %s, %s, %d" % (s(sT), s(sT), WS_KM))
    A("buffer_store_dwordx4 %s, %s, %s, %s offen sc1" % (v(LAND, 4), v(vL16), s(sWS, 4), s(sT)))
    fs(A, 23)
    A("s_add_u32 %s, %s, %d" % (s(sQo), s(sQo), 7 * 32 * 8192))
    A("s_add_u32 %s, %s, %d" % (s(sKo), s(sKo), 7 * 32 * 16384))
    A("s_add_u32 %s, %s, 7" % (s(sSeg), s(sSeg)))
    A("s_cmp_lt_u32 %s, 64" % s(sSeg))
    A("s_cbranch_scc1 %s" % ltop)
    A("s_waitcnt vmcnt(0)")
    A("s_barrier")
    set_flag(A, s(sFlag))
    ts(A, 6)
    ts_dump(A, 0)
    if "p1only" in opt:
        return
    lC = A.new("roleC")
    A("s_cmp_ge_u32 %s, 80" % s(sWid))
    A("s_cbranch_scc1 %s" % lC)
    lB = A.new("roleB")
    A("s_cmp_ge_u32 %s, 64" % s(sWid))
    A("s_cbranch_scc1 %s" % lB)
    emit_roleA(A, opt)
    A("s_endpgm")
    A.label(lB)
    emit_roleB(A, vRow, vRow2, sValid, opt)
    A("s_endpgm")
    A.label(lC)
    emit_roleC(A, xsetup, wide_chunks, opt)

def emit_roleA(A, opt):
    A.c("=========== role A: attention + Wo partial ===========")
    A("s_lshr_b32 %s, %s, 2" % (s(sSl), s(sWid)))
    A("s_and_b32 %s, %s, 3" % (s(sRep), s(sWid)))
    vOff, vTr, vAd = 9, 10, 11
    A("s_mul_i32 %s, %s, %d" % (s(sT + 1), s(sSl), 2 * 147456))
    tall_off(A, vOff, vTmp, s(sT + 1))
    tall_tr(A, vTr, 4)
    W0 = 224
    def wo(G, K):
        return W0 + 4 * (8 * G + K)
    chunks = []
    for hd in range(2):
        for G in range(9):
            def consume(base, hd=hd, G=G):
                A("v_add_u32 %s, %d, %s" % (v(vAd), base, v(vTr)))
                for ks in range(4):
                    r0 = 64 * (ks >> 1) + 8 * (ks & 1)
                    tr2(A, wo(G, 4 * hd + ks), vAd, r0 * 128, (r0 + 4) * 128)
            chunks.append((sWO, vOff, [hd * 147456 + 8 * j * 1152 + 128 * G for j in range(4)], consume))
    A.vm, A.lds = ['old'] * 2, []
    stage(A, chunks, depth=TS['d2'])
    TS['reg'] = 19
    ts(A)
    vKM, vL4, vOwr, vTw, vTrd, vPst, vPld, vNEG = 9, 10, 11, 12, 13, 14, 15, 16
    GA, SB, CB = 20, 32, 44
    SEL0, SEL1 = 56, 60
    QF, KX, VX, KM, VM = 64, 80, 112, 144, 160
    S_, OA = 176, 188
    WACC, LAND = 144, 216
    L_OT, L_PT = 0, 16384
    PSTR = 1168
    A("v_lshlrev_b32 %s, 2, %s" % (v(vL4), v(vLane)))
    A("v_lshrrev_b32 %s, 1, %s" % (v(vTmp), v(vG)))
    A("v_lshlrev_b32 %s, 10, %s" % (v(vKM), v(vTmp)))
    A("v_and_b32 %s, 1, %s" % (v(vTmp), v(vX)))
    A("v_lshl_add_u32 %s, %s, 8, %s" % (v(vKM), v(vTmp), v(vKM)))
    A("v_lshl_add_u32 %s, %s, 6, %s" % (v(vKM), v(vC), v(vKM)))
    A("v_and_b32 %s, 1, %s" % (v(vTmp), v(vG)))
    A("v_lshl_add_u32 %s, %s, 5, %s" % (v(vKM), v(vTmp), v(vKM)))
    A("s_and_b32 %s, %s, 1" % (s(sT), s(sW)))
    A("s_lshl_b32 %s, %s, 13" % (s(sT + 1), s(sT)))
    A("s_lshr_b32 %s, %s, 1" % (s(sT + 2), s(sW)))
    A("s_lshl_b32 %s, %s, 12" % (s(sT + 3), s(sT + 2)))
    A("s_add_u32 %s, %s, %s" % (s(sT + 1), s(sT + 1), s(sT + 3)))
    A("v_add_u32 %s, %s, %s" % (v(vOwr), s(sT + 1), v(vL16)))
    A("v_and_b32 %s, 15, %s" % (v(17), v(vLane)))
    A("s_lshl_b32 %s, %s, 4" % (s(sT + 1), s(sT)))
    A("v_add_u32 %s, %s, %s" % (v(17), s(sT + 1), v(17)))
    A("v_lshlrev_b32 %s, 2, %s" % (v(18), v(vG)))
    A("v_sub_u32 %s, %s, %s" % (v(17), v(17), v(18)))
    sCM = sA0 + 6
    for i in range(8):
        A("v_cmp_le_i32 %s, %d, %s" % (s(sCM + 2 * i, 2), 16 * (i >> 2) + (i & 3), v(17)))
    A("v_mov_b32 %s, 0x%x" % (v(vNEG), f32bits(-1e9)))
    A("v_and_b32 %s, 15, %s" % (v(vTmp), v(vLane)))
    A("v_mul_u32_u24 %s, %d, %s" % (v(vTw), PSTR, v(vTmp)))
    A("v_lshl_add_u32 %s, %s, 3, %s" % (v(vTw), v(vG), v(vTw)))
    A("s_lshl_b32 %s, %s, 5" % (s(sT + 1), s(sW)))
    A("s_add_u32 %s, %s, %d" % (s(sT + 1), s(sT + 1), L_PT))
    A("v_add_u32 %s, %s, %s" % (v(vTw), s(sT + 1), v(vTw)))
    A("v_lshrrev_b32 %s, 3, %s" % (v(17), v(vLane)))
    A("v_and_b32 %s, 7, %s" % (v(18), v(vLane)))
    A("v_lshlrev_b32 %s, 4, %s" % (v(18), v(18)))
    A("s_lshl_b32 %s, %s, 3" % (s(sT + 1), s(sW)))
    A("v_add_u32 %s, %s, %s" % (v(17), s(sT + 1), v(17)))
    A("v_mul_u32_u24 %s, %d, %s" % (v(vTrd), PSTR, v(17)))
    A("v_add_u32 %s, %s, %s" % (v(vTrd), v(vTrd), v(18)))
    A("v_add_u32 %s, %d, %s" % (v(vTrd), L_PT, v(vTrd)))
    A("v_mul_u32_u24 %s, 18432, %s" % (v(vPst), v(17)))
    A("v_add_u32 %s, %s, %s" % (v(vPst), v(vPst), v(18)))
    A("s_mul_i32 %s, %s, 1152" % (s(sT + 1), s(sSl)))
    A("v_add_u32 %s, %s, %s" % (v(vPst), s(sT + 1), v(vPst)))
    sHead, sSH, sPAo, sRowo = sA0, sA0 + 1, sA0 + 2, sA0 + 3
    A("s_lshl_b32 %s, %s, 1" % (s(sHead), s(sSl)))
    A("s_lshr_b32 %s, %s, 1" % (s(sT), s(sW)))
    A("s_add_u32 %s, %s, %s" % (s(sHead), s(sHead), s(sT)))
    A("s_mov_b32 %s, %s" % (s(sSeg), s(sRep)))
    A("s_lshl_b32 %s, %s, 8" % (s(sT), s(sHead)))
    A("s_add_u32 %s, %s, %d" % (s(sT), s(sT), FL_KV))
    wait_flags(A, vL4, s(sT))
    A("s_lshl_b32 %s, %s, 5" % (s(sSH), s(sSeg)))
    A("s_add_u32 %s, %s, %s" % (s(sSH), s(sSH), s(sHead)))
    def prefetch():
        A("s_lshl_b32 %s, %s, 13" % (s(sT), s(sSH)))
        A("s_and_b32 %s, %s, 1" % (s(sT + 1), s(sW)))
        A("s_lshl_b32 %s, %s, 12" % (s(sT + 1), s(sT + 1)))
        A("s_add_u32 %s, %s, %s" % (s(sT), s(sT), s(sT + 1)))
        A("s_add_u32 %s, %s, %d" % (s(sT), s(sT), WS_Q))
        for i in range(4):
            A("buffer_load_dwordx4 %s, %s, %s, %s offen offset:%d sc1" % (v(QF + 4 * i, 4), v(vL16), s(sWS, 4), s(sT), 1024 * i))
        A("s_lshl_b32 %s, %s, 14" % (s(sT), s(sSH)))
        if WS_KV:
            A("s_add_u32 %s, %s, %d" % (s(sT), s(sT), WS_KV))
        for b in range(4):
            for i in range(4):
                A("buffer_load_dwordx4 %s, %s, %s, %s offen offset:%d sc1" % (v(KX + 16 * b + 4 * i, 4), v(vL16), s(sWS, 4), s(sT), 1024 * i))
            if b < 3:
                A("s_add_u32 %s, %s, 4096" % (s(sT), s(sT)))
    A("s_add_u32 %s, %s, 60" % (s(sT), s(sRep)))
    A("s_mul_i32 %s, %s, %d" % (s(sT), s(sT), PA_SEG))
    A("s_add_u32 %s, %s, %d" % (s(sT), s(sT), WS_PA))
    A("v_mov_b64 %s, -1" % v(20, 2))
    A("v_mov_b64 %s, -1" % v(22, 2))
    for G in range(9):
        A("buffer_store_dwordx4 %s, %s, %s, %s offen offset:%d sc1" % (v(20, 4), v(vPst), s(sWS, 4), s(sT), 128 * G))
    prefetch()
    ltop = A.new("atop")
    A.label(ltop)
    T1, T2, T0 = S_, S_ + 4, S_ + 8
    sv = [S_ + i for i in range(10)]
    m1, m2 = 17, 18
    def prep_scores(vals):
        for i in range(0, len(vals), 2):
            rnd2(A, vals[i], vals[i + 1])
        for x in vals:
            A("v_mul_f32 %s, 0x%x, %s" % (v(x), f32bits(128 ** -0.5), v(x)))
        for i in range(0, len(vals), 2):
            rnd2(A, vals[i], vals[i + 1])
    A("s_waitcnt vmcnt(0)")
    for ks in range(4):
        MF(A, v(T1, 4), v(KX + 4 * ks, 4), v(QF + 4 * ks, 4), "0" if ks == 0 else v(T1, 4))
        MF(A, v(T2, 4), v(KX + 16 + 4 * ks, 4), v(QF + 4 * ks, 4), "0" if ks == 0 else v(T2, 4))
    for T in range(8):
        A("v_mov_b32 %s, 0" % v(VM + 2 * T + 1))
    A("s_lshl_b32 %s, %s, 12" % (s(sRowo), s(sSH)))
    A("s_add_u32 %s, %s, %d" % (s(sRowo), s(sRowo), WS_KM))
    prep_scores(sv[:8])
    for i in range(8):
        A("v_cndmask_b32 %s, %s, %s, %s" % (v(sv[i]), v(vNEG), v(sv[i]), s(sCM + 2 * i, 2)))
    A("v_max3_f32 %s, %s, %s, %s" % (v(m1), v(sv[0]), v(sv[1]), v(sv[2])))
    for i in (3, 5):
        A("v_max3_f32 %s, %s, %s, %s" % (v(m1), v(m1), v(sv[i]), v(sv[i + 1])))
    A("v_max_f32 %s, %s, %s" % (v(m1), v(m1), v(sv[7])))
    lc, lf, lok = A.new("can"), A.new("full"), A.new("pubok")
    A("s_cmp_ge_u32 %s, %d" % (s(sSeg), ([int(o[4:]) for o in opt if o.startswith("can=")] + [63])[0]))
    A("s_cbranch_scc1 %s" % lc)
    A("s_lshl_b32 %s, %s, 7" % (s(sT), s(sSH)))
    A("s_add_u32 %s, %s, %d" % (s(sT), s(sT), FL_PUB))
    wait_flags(A, None, s(sT))
    A("s_branch %s" % lf)
    A.label(lc)
    A("buffer_load_dword %s, off, %s, %s offset:4092 sc1" % (v(vTmp), s(sWS, 4), s(sRowo)))
    A("s_waitcnt vmcnt(0)")
    A("v_cmp_eq_u32 vcc, -1, %s" % v(vTmp))
    A("s_cbranch_vccz %s" % lf)
    A("s_sleep 1")
    A("s_sub_u32 %s, %s, 1" % (s(sBud), s(sBud)))
    A("s_cbranch_scc0 %s" % lc)
    A("s_mov_b32 %s, 0" % s(sBud))
    A.label(lf)
    ts(A)
    fs(A, 0)
    A.label(lf + "_r")
    for ks in range(4):
        A("buffer_load_dwordx4 %s, %s, %s, %s offen offset:%d sc1" % (v(KM + 4 * ks, 4), v(vKM), s(sWS, 4), s(sRowo), (ks >> 1) * 2048 + (ks & 1) * 16))
    for T in range(8):
        A("buffer_load_dword %s, %s, %s, %s offen offset:%d sc1" % (v(VM + 2 * T), v(vL4), s(sWS, 4), s(sRowo), (T >> 1) * 1024 + 512 + (T & 1) * 256))
    A("s_waitcnt vmcnt(8)")
    fs(A, 1)
    for ks in range(4):
        MF(A, v(T0, 4), v(KM + 4 * ks, 4), v(QF + 4 * ks, 4), "0" if ks == 0 else v(T0, 4))
        for h in range(2):
            r = KM + 4 * ks + 2 * h
            if ks == 0 and h == 0:
                A("v_max_u32 %s, %s, %s" % (v(vTmp), v(r), v(r + 1)))
            else:
                A("v_max3_u32 %s, %s, %s, %s" % (v(vTmp), v(vTmp), v(r), v(r + 1)))
    A("s_waitcnt vmcnt(0)")
    for T in range(0, 8, 2):
        A("v_max3_u32 %s, %s, %s, %s" % (v(vTmp), v(vTmp), v(VM + 2 * T), v(VM + 2 * T + 2)))
    A("v_cmp_eq_u32 vcc, -1, %s" % v(vTmp))
    A("s_cbranch_vccz %s" % lok)
    A("s_sub_u32 %s, %s, 1" % (s(sBud), s(sBud)))
    A("s_cbranch_scc0 %s_r" % lf)
    A("s_mov_b32 %s, 0" % s(sBud))
    A.label(lok)
    prep_scores(sv[8:])
    A("v_max3_f32 %s, %s, %s, %s" % (v(m1), v(m1), v(sv[8]), v(sv[9])))
    def xl(op):
        for sw in ("v_permlane32_swap_b32", "v_permlane16_swap_b32"):
            A("v_mov_b32 %s, %s" % (v(m2), v(m1)))
            A("s_nop 1")
            A("%s %s, %s" % (sw, v(m1), v(m2)))
            A("%s %s, %s, %s" % (op, v(m1), v(m1), v(m2)))
    xl("v_max_f32")
    for x in sv:
        A("v_sub_f32 %s, %s, %s" % (v(x), v(x), v(m1)))
    for x in sv:
        A("v_mul_f32 %s, 0x%x, %s" % (v(x), f32bits(math.log2(math.e)), v(x)))
    for x in sv:
        A("v_exp_f32 %s, %s" % (v(x), v(x)))
    A("v_add_f32 %s, %s, %s" % (v(m1), v(sv[0]), v(sv[1])))
    for x in sv[2:]:
        A("v_add_f32 %s, %s, %s" % (v(m1), v(m1), v(x)))
    xl("v_add_f32")
    A("v_rcp_f32 %s, %s" % (v(m1), v(m1)))
    A("s_nop 0")
    for x in sv:
        A("v_mul_f32 %s, %s, %s" % (v(x), v(x), v(m1)))
    for i in range(4):
        A("v_cvt_pk_bf16_f32 %s, %s, %s" % (v(S_ + i), v(sv[2 * i]), v(sv[2 * i + 1])))
    A("v_cvt_pk_bf16_f32 %s, %s, %s" % (v(T0), v(T0), v(T0 + 1)))
    A("v_mov_b32 %s, 0" % v(T0 + 1))
    A("s_nop 1")
    A.lds = []
    def opack(c):
        b = OA + 8 * c
        for i in range(4):
            A("v_cvt_pk_bf16_f32 %s, %s, %s" % (v(b + i), v(b + 2 * i), v(b + 2 * i + 1)))
        A.ds("ds_write_b128 %s, %s offset:%d" % (v(vOwr), v(b, 4), L_OT + 1024 * c))
    for c in range(4):
        for T in (2 * c, 2 * c + 1):
            MF(A, v(OA + 4 * T, 4), v(VX + 4 * T, 4), v(S_, 4), "0")
        for T in (2 * c, 2 * c + 1):
            A("v_mfma_f32_16x16x16_bf16 %s, %s, %s, %s" % (v(OA + 4 * T, 4), v(VM + 2 * T, 2), v(T0, 2), v(OA + 4 * T, 4)))
        if c >= 2:
            opack(c - 2)
    opack(2)
    opack(3)
    fs(A, 2)
    A("s_mul_i32 %s, %s, %d" % (s(sPAo), s(sSeg), PA_SEG))
    A("s_add_u32 %s, %s, %d" % (s(sPAo), s(sPAo), WS_PA))
    A.wait_ds()
    A("s_barrier")
    fs(A, 3)
    OFR, WA, TB = 144, 20, 44
    for n in range(16):
        A.ds("ds_read_b128 %s, %s offset:%d" % (v(OFR + 4 * n, 4), v(vL16), L_OT + (n & 1) * 8192 + (n >> 1) * 1024), ('o', n))
    lnp = A.new("nopf")
    A("s_add_u32 %s, %s, 128" % (s(sSH), s(sSH)))
    def epi(G, tt):
        b = WA + 8 * (G % 3) + 4 * tt
        A("v_cvt_pk_bf16_f32 %s, %s, %s" % (v(b), v(b), v(b + 1)))
        A("v_cvt_pk_bf16_f32 %s, %s, %s" % (v(b + 1), v(b + 2), v(b + 3)))
    def epw(G, tt):
        A.ds("ds_write_b64 %s, %s offset:%d" % (v(vTw), v(WA + 8 * (G % 3) + 4 * tt, 2), tt * 16 * PSTR + 128 * G), ('w', G))
    def lrd(G):
        A.ds("ds_read_b128 %s, %s offset:%d" % (v(TB + 4 * (G & 1), 4), v(vTrd), 128 * G), ('t', G))
    def lst(G):
        A.wait_ds(('t', G))
        A("buffer_store_dwordx4 %s, %s, %s, %s offen offset:%d sc1" % (v(TB + 4 * (G & 1), 4), v(vPst), s(sWS, 4), s(sPAo), 128 * G))
    for G in range(9):
        for n in range(16):
            K, tt = n >> 1, n & 1
            if G == 0:
                A.wait_ds(('o', n))
            d = v(WA + 8 * (G % 3) + 4 * tt, 4)
            MF(A, d, R(wo(G, K), 4), v(OFR + 4 * n, 4), "0" if K == 0 else d)
            if G >= 1:
                if n == 5 and G >= 2:
                    lst(G - 2)
                if n == 7:
                    epi(G - 1, 0)
                if n == 8:
                    epw(G - 1, 0)
                    epi(G - 1, 1)
                if n == 9:
                    epw(G - 1, 1)
                if n == 15:
                    A.wait_ds(('w', G - 1))
                    A("s_barrier")
                    lrd(G - 1)
        if G == 0:
            A("s_cmp_ge_u32 %s, 2048" % s(sSH))
            A("s_cbranch_scc1 %s" % lnp)
            prefetch()
            A.label(lnp)
    fs(A, 4)
    A("s_nop 3")
    epi(8, 0)
    epi(8, 1)
    epw(8, 0)
    epw(8, 1)
    lst(7)
    A.wait_ds()
    A("s_barrier")
    lrd(8)
    lst(8)
    fs(A, 6)
    A("s_waitcnt vmcnt(0)")
    A("s_barrier")
    fs(A, 7)
    A("s_lshl_b32 %s, %s, 8" % (s(sT), s(sSeg)))
    A("s_add_u32 %s, %s, %d" % (s(sT), s(sT), FL_PA))
    arrive(A, s(sT), 16)
    fs(A, 8)
    ts(A)
    A("s_add_u32 %s, %s, 4" % (s(sSeg), s(sSeg)))
    A("s_cmp_lt_u32 %s, 64" % s(sSeg))
    A("s_cbranch_scc1 %s" % ltop)
    ts_dump(A, 1)

def emit_roleB(A, vRow, vRow2, sValid, opt):
    A.c("=========== role B: reduce + residual + LN2, one row per wave ===========")
    TS['reg'] = 19
    GA, SB, CB = 20, 32, 44
    SEL0, SEL1 = 56, 60
    vPld = 15
    load_mod(A, GA, 2, vRow, vRow2, 17, 18)
    load_mod(A, SB, 3, vRow, vRow2, 17, 18)
    load_mod(A, CB, 4, vRow, vRow2, 17, 18)
    make_sel(A, SEL0, 0, vTmp)
    make_sel(A, SEL1, 1, vTmp)
    A("v_lshrrev_b32 %s, 3, %s" % (v(17), v(vLane)))
    A("v_and_b32 %s, 7, %s" % (v(18), v(vLane)))
    A("v_lshlrev_b32 %s, 4, %s" % (v(18), v(18)))
    A("v_mul_u32_u24 %s, 1152, %s" % (v(vPld), v(17)))
    A("v_add_u32 %s, %s, %s" % (v(vPld), v(vPld), v(18)))
    A("s_waitcnt vmcnt(0)")
    one_plus(A, CB)
    sRow, sRowo = sA0 + 5, sA0 + 3
    A("s_sub_u32 %s, %s, 64" % (s(sRow), s(sWid)))
    A("s_lshl_b32 %s, %s, 1" % (s(sRow), s(sRow)))
    A("s_and_b32 %s, %s, 1" % (s(sT), s(sW)))
    A("s_add_u32 %s, %s, %s" % (s(sRow), s(sRow), s(sT)))
    A("s_lshr_b32 %s, %s, 1" % (s(sSeg), s(sW)))
    A("v_and_b32 %s, 15, %s" % (v(vFl), v(vLane)))
    A("v_lshlrev_b32 %s, 2, %s" % (v(vFl), v(vFl)))
    for i in range(6):
        A("v_mov_b32 %s, -1" % v(64 + i))
    for k in range(2):
        A("s_add_u32 %s, %s, %d" % (s(sT), s(sSeg), 60 + 2 * k))
        A("s_lshl_b32 %s, %s, 5" % (s(sT), s(sT)))
        A("s_add_u32 %s, %s, %s" % (s(sT), s(sT), s(sRow)))
        A("s_mul_i32 %s, %s, 1152" % (s(sT), s(sT)))
        A("s_add_u32 %s, %s, %d" % (s(sT), s(sT), WS_H2))
        row_io(A, "store", 64, vRow, vRow2, sWS, s(sT), " sc1")
        A("s_add_u32 %s, %s, %d" % (s(sT), s(sT), WS_X1 - WS_H2))
        row_io(A, "store", 64, vRow, vRow2, sWS, s(sT), " sc1")
    A("v_and_b32 %s, 15, %s" % (v(vFl), v(vLane)))
    A("v_mul_u32_u24 %s, 1152, %s" % (v(vFl), v(vFl)))
    ltop = A.new("btop")
    A.label(ltop)
    A("s_lshl_b32 %s, %s, 5" % (s(sT), s(sSeg)))
    A("s_add_u32 %s, %s, %s" % (s(sA0 + 2), s(sT), s(sRow)))
    A("s_mul_i32 %s, %s, 1152" % (s(sRowo), s(sA0 + 2)))
    XR, RD, XF, DD = 216, 176, 196, 144
    row_io(A, "load", XR, vRow, vRow2, sXS, s(sRowo))
    A("s_lshl_b32 %s, %s, 8" % (s(sT), s(sSeg)))
    A("s_add_u32 %s, %s, %d" % (s(sT), s(sT), FL_PA))
    lcan, lgo, lre = A.new("bcan"), A.new("bgo"), A.new("bre")
    A("s_mul_i32 %s, %s, 18432" % (s(sA0), s(sA0 + 2)))
    A("s_add_u32 %s, %s, %d" % (s(sA0), s(sA0), WS_PA))
    A("s_add_u32 %s, %s, 9216" % (s(sA0 + 1), s(sA0)))
    A("s_cmp_ge_u32 %s, 60" % s(sSeg))
    A("s_cbranch_scc1 %s" % lcan)
    wait_ready(A, s(sT), 16)
    A("s_branch %s" % lgo)
    A.label(lcan)
    canary(A, s(sA0), imm=1148 - 256, voff=vFl)
    A.label(lgo)
    ts(A)
    A.label(lre)
    LD = 64
    A.vm = []
    for i in range(9):
        for h in range(2):
            A.vmem("buffer_load_dwordx4 %s, %s, %s, %s offen offset:%d sc1" % (v(LD + 8 * i + 4 * h, 4), v(vPld), s(sWS, 4), s(sA0 + h), 128 * i), ('p', i))
    for i in range(9):
        A.wait_vm(('p', i))
        d = v(RD + 4 * (i >> 1), 4)
        sel = v(SEL1 if i & 1 else SEL0, 4)
        MF(A, d, sel, v(LD + 8 * i, 4), "0" if not (i & 1) else d)
        maxchain(A, range(LD + 8 * i, LD + 8 * i + 4), i == 0)
        MF(A, d, sel, v(LD + 8 * i + 4, 4), d)
        maxchain(A, range(LD + 8 * i + 4, LD + 8 * i + 8), False)
    retry_if_sentinel(A, lre)
    for i in range(4):
        A("v_mov_b32 %s, 0" % v(XF + 8 + i))
    A("s_nop 3")
    for T in range(5):
        for jj in range(4):
            A("v_add_f32_dpp %s, %s, %s row_ror:8 row_mask:0xf bank_mask:0x%x" % (v(XF + 4 * (T >> 1) + jj), v(RD + 4 * T + jj), v(RD + 4 * T + jj), 0xc if T & 1 else 0x3))
    for i in range(0, 12, 2):
        rnd2(A, XF + i, XF + i + 1)
    for i in range(12):
        A("v_mul_f32 %s, %s, %s" % (v(XF + i), v(XF + i), v(GA + i)))
    for i in range(0, 12, 2):
        rnd2(A, XF + i, XF + i + 1)
    for i in range(6):
        unpack(A, DD, DD + 1, XR + i)
        A("v_add_f32 %s, %s, %s" % (v(XF + 2 * i), v(XF + 2 * i), v(DD)))
        A("v_add_f32 %s, %s, %s" % (v(XF + 2 * i + 1), v(XF + 2 * i + 1), v(DD + 1)))
        A("v_cvt_pk_bf16_f32 %s, %s, %s" % (v(XR + i), v(XF + 2 * i), v(XF + 2 * i + 1)))
        unpack(A, XF + 2 * i, XF + 2 * i + 1, XR + i)
    A("s_add_u32 %s, %s, %d" % (s(sT), s(sRowo), WS_X1))
    row_io(A, "store", XR, vRow, vRow2, sWS, s(sT), " sc1")
    ln_stats(A, XF, DD, sValid, 160, 161, 162)
    ln_apply(A, XF, 160, 161, CB, SB, 164)
    A("s_add_u32 %s, %s, %d" % (s(sT), s(sRowo), WS_H2))
    row_io(A, "store", 164, vRow, vRow2, sWS, s(sT), " sc1")
    A("s_waitcnt vmcnt(0)")
    A("s_lshl_b32 %s, %s, 8" % (s(sT), s(sSeg)))
    A("s_add_u32 %s, %s, %d" % (s(sT), s(sT), FL_H2))
    arrive(A, s(sT), 32, wave0_only=False)
    ts(A)
    A("s_add_u32 %s, %s, 2" % (s(sSeg), s(sSeg)))
    A("s_cmp_lt_u32 %s, 64" % s(sSeg))
    A("s_cbranch_scc1 %s" % ltop)
    ts_dump(A, 1)

def emit_roleC(A, xsetup, wide_chunks, opt):
    A.c("=========== role C: gate/up + down partial + output ===========")
    A("s_sub_u32 %s, %s, 80" % (s(sT), s(sWid)))
    A("s_lshr_b32 %s, %s, 2" % (s(sSl), s(sT)))
    A("s_and_b32 %s, %s, 3" % (s(sRep), s(sT)))
    build_srd(A, sW1, 64, 5308416)
    build_srd(A, sW2, 72, 5308416)
    build_srd(A, sW3, 80, 5308416)
    build_srd(A, sWO, 104, 2359296)
    vOffW, vTr, vAd, vOffD, vTrD = 9, 10, 11, 12, 13
    A("s_lshl_b32 %s, %s, 8" % (s(sT + 1), s(sSl)))
    wide_off(A, vOffW, vTmp, 9216, s(sT + 1))
    A("s_lshl_b32 %s, %s, 2" % (s(sT + 1), s(sW)))
    wide_tr(A, vTr, vTmp, s(sT + 1), 1)
    A("s_mul_i32 %s, %s, 147456" % (s(sT + 1), s(sSl)))
    tall_off(A, vOffD, vTmp, s(sT + 1))
    tall_tr(A, vTrD, 3)
    W0 = 80
    def wg(t, ks):
        return W0 + 4 * (4 * ks + t)
    def wd(G, ks):
        return W0 + 288 + 4 * (4 * G + ks)
    chunks = wide_chunks((sW1, sW2), 9216, wg, vOffW, vTr)
    for G in range(9):
        def consume(base, G=G):
            A("v_add_u32 %s, %d, %s" % (v(vAd), base, v(vTrD)))
            for ks in range(4):
                tr2(A, wd(G, ks), vAd, 32 * ks * 128, (32 * ks + 4) * 128)
        chunks.append((sW3, vOffD, [8 * j * 1152 + 128 * G for j in range(4)], consume))
    A.vm, A.lds = ['old'] * 2, []
    stage(A, chunks, depth=TS['d2'])
    vXo = 9
    sSrc, sM0x = sA0, sA0 + 1
    vXa = 7
    xsetup(vXa)
    vHw, vRl, vOo = 6, 2, 3
    LAND, ACC, PK = 10, 26, 62
    L_HH = 40960
    A("s_lshl_b32 %s, %s, 10" % (s(sT), s(sW)))
    A("s_add_u32 %s, %s, %d" % (s(sT), s(sT), L_HH))
    A("v_add_u32 %s, %s, %s" % (v(vHw), s(sT), v(vL16)))
    A("v_and_b32 %s, 15, %s" % (v(vTmp), v(vLane)))
    A("v_lshlrev_b32 %s, 4, %s" % (v(vTmp), v(vTmp)))
    A("v_lshl_add_u32 %s, %s, 10, %s" % (v(vRl), v(vG), v(vTmp)))
    A("s_lshl_b32 %s, %s, 8" % (s(sT), s(sW)))
    A("v_add_u32 %s, %s, %s" % (v(vRl), s(sT), v(vRl)))
    A("v_mul_u32_u24 %s, 1152, %s" % (v(vOo), v(vLane)))
    A("s_lshl_b32 %s, %s, 5" % (s(sT), s(sSl)))
    A("s_lshl_b32 %s, %s, 3" % (s(sT + 1), s(sW)))
    A("s_add_u32 %s, %s, %s" % (s(sT), s(sT), s(sT + 1)))
    A("v_add_u32 %s, %s, %s" % (v(vOo), s(sT), v(vOo)))
    A("v_mov_b32 %s, 0x%x" % (v(vTmp), OOB))
    A("v_cmp_gt_u32 vcc, 32, %s" % v(vLane))
    A("s_nop 1")
    A("v_cndmask_b32 %s, %s, %s, vcc" % (v(vOo), v(vTmp), v(vOo)))
    A("s_lshl_b32 %s, %s, 1" % (s(sT), s(sT)))
    A("s_add_u32 %s, %s, %d" % (s(sT), s(sT), WS_MOD + 5 * 2304))
    A("buffer_load_dwordx4 %s, off, %s, %s sc1" % (v(ACC, 4), s(sWS, 4), s(sT)))
    A("s_waitcnt vmcnt(0)")
    sGB = sA0 + 8
    for i in range(4):
        A("v_readfirstlane_b32 %s, %s" % (s(sGB + i), v(ACC + i)))
    A("s_mov_b32 %s, %s" % (s(sSeg), s(sRep)))
    sPCo, sFl = sA0 + 2, sA0 + 3
    TS['reg'] = 4
    sPrev = sA0 + 5
    A("s_add_u32 %s, %s, 60" % (s(sT), s(sRep)))
    A("s_mul_i32 %s, %s, %d" % (s(sT), s(sT), PC_SEG))
    A("s_mul_i32 %s, %s, 36" % (s(sT + 1), s(sW)))
    A("s_add_u32 %s, %s, %s" % (s(sT + 1), s(sT + 1), s(sSl)))
    A("s_lshl_b32 %s, %s, 10" % (s(sT + 1), s(sT + 1)))
    A("s_add_u32 %s, %s, %s" % (s(sT), s(sT), s(sT + 1)))
    A("s_add_u32 %s, %s, %d" % (s(sT), s(sT), WS_PC))
    A("v_mov_b64 %s, -1" % v(ACC, 2))
    A("v_mov_b64 %s, -1" % v(ACC + 2, 2))
    for G in range(9):
        A("buffer_store_dwordx4 %s, %s, %s, %s offen sc1" % (v(ACC, 4), v(vL16), s(sWS, 4), s(sT)))
        A("s_add_u32 %s, %s, %d" % (s(sT), s(sT), 4 * 36 * 1024))
    def reduce_out(last=False):
        A("s_lshl_b32 %s, %s, 8" % (s(sFl), s(sPrev)))
        A("s_mul_i32 %s, %s, 36864" % (s(sA0 + 6), s(sPrev)))
        make_sel(A, LAND, 0, vTmp)
        if not last:
            A("s_add_u32 %s, %s, %d" % (s(sFl), s(sFl), FL_PC))
            wait_ready(A, s(sFl), 36)
        ts(A)
        lre = A.new("cre")
        A.label(lre)
        A("s_add_u32 %s, %s, %d" % (s(sT), s(sA0 + 6), WS_X1))
        A("buffer_load_dwordx2 %s, %s, %s, %s offen sc1" % (v(LAND + 8, 2), v(vOo), s(sWS, 4), s(sT)))
        A("s_mul_i32 %s, %s, %d" % (s(sT), s(sSl), 36 * 1024))
        A("s_add_u32 %s, %s, %s" % (s(sT), s(sT), s(sPCo)))
        A.vm = []
        for i in range(9):
            A.vmem("buffer_load_dwordx4 %s, %s, %s, %s offen sc1" % (v(ACC + 4 * i, 4), v(vRl), s(sWS, 4), s(sT)), ('p', i))
            if i < 8:
                A("s_add_u32 %s, %s, 4096" % (s(sT), s(sT)))
        D = LAND + 4
        for i in range(9):
            A.wait_vm(('p', i))
            MF(A, v(D, 4), v(LAND, 4), v(ACC + 4 * i, 4), "0" if i == 0 else v(D, 4))
            if last:
                maxchain(A, range(ACC + 4 * i, ACC + 4 * i + 4), i == 0)
        if last:
            maxchain(A, (LAND + 8, LAND + 9), False)
            retry_if_sentinel(A, lre)
    def reduce_fin():
        D = LAND + 4
        unpack(A, LAND + 10, LAND + 11, LAND + 8)
        unpack(A, LAND + 12, LAND + 13, LAND + 9)
        A("s_nop 3")
        rnd2(A, D, D + 1)
        rnd2(A, D + 2, D + 3)
        for i in range(4):
            A("v_mul_f32 %s, %s, %s" % (v(D + i), s(sGB + i), v(D + i)))
        rnd2(A, D, D + 1)
        rnd2(A, D + 2, D + 3)
        for i in range(4):
            A("v_add_f32 %s, %s, %s" % (v(D + i), v(D + i), v(LAND + 10 + i)))
        A("v_cvt_pk_bf16_f32 %s, %s, %s" % (v(D), v(D), v(D + 1)))
        A("v_cvt_pk_bf16_f32 %s, %s, %s" % (v(D + 1), v(D + 2), v(D + 3)))
        A("buffer_store_dwordx2 %s, %s, %s, %s offen%s" % (v(D, 2), v(vOo), s(sWO, 4), s(sA0 + 6), " sc1" if "outsc1" in opt else " nt" if "outnt" in opt else ""))
        ts(A)
    ltop, lfirst = A.new("ctop"), A.new("cfirst")
    def h2wait():
        A("s_lshl_b32 %s, %s, 8" % (s(sT), s(sSeg)))
        A("s_add_u32 %s, %s, %d" % (s(sT), s(sT), FL_H2))
        A("s_mul_i32 %s, %s, 36864" % (s(sSrc), s(sSeg)))
        A("s_add_u32 %s, %s, %d" % (s(sSrc), s(sSrc), WS_H2))
        lcan, lj, lre = A.new("ccan"), A.new("cj"), A.new("cxre")
        A("s_cmp_ge_u32 %s, 60" % s(sSeg))
        A("s_cbranch_scc1 %s" % lcan)
        wait_ready(A, s(sT), 32)
        ts(A)
        fs(A, 0)
        x_dma(A, vXo, sSrc, sM0x)
        A("s_branch %s" % lj)
        A.label(lcan)
        canary(A, s(sSrc), imm=1024, voff=vXo)
        ts(A)
        fs(A, 0)
        A.label(lre)
        for i in range(9):
            A("buffer_load_dwordx4 %s, %s, %s, %s offen offset:%d sc1" % (v(ACC + 4 * i, 4), v(vXo), s(sWS, 4), s(sSrc), 128 * i))
        A("v_add_u32 %s, %s, %s" % (v(LAND), s(sM0x), v(vL16)))
        for i in range(9):
            A("s_waitcnt vmcnt(%d)" % (8 - i))
            A("ds_write_b128 %s, %s offset:%d" % (v(LAND), v(ACC + 4 * i, 4), 1024 * i))
            maxchain(A, range(ACC + 4 * i, ACC + 4 * i + 4), i == 0)
        retry_if_sentinel(A, lre)
        A("s_waitcnt lgkmcnt(0)")
        A.label(lj)
    A.label(ltop)
    h2wait()
    fs(A, 1)
    A("s_waitcnt vmcnt(0)")
    A("s_barrier")
    fs(A, 2)
    A.lds = []
    GAC = [ACC, ACC + 16]
    HP = ACC + 32
    fill = []
    def F(n):
        for _ in range(n):
            if fill:
                fill.pop(0)()
    def gu_epi(tt):
        for t in range(2):
            g_, u_ = GAC[tt] + 4 * t, GAC[tt] + 8 + 4 * t
            for jj in range(4):
                fill.append(lambda a=g_ + jj, b=u_ + jj: A("v_cvt_pk_bf16_f32 %s, %s, %s" % (v(b), v(a), v(b))))
                fill.append(lambda a=g_ + jj, b=u_ + jj: A("v_lshlrev_b32 %s, 16, %s" % (v(a), v(b))))
                fill.append(lambda b=u_ + jj: A("v_and_b32 %s, 0xffff0000, %s" % (v(b), v(b))))
                fill.append(lambda a=g_ + jj, b=u_ + jj: A("v_mul_f32 %s, %s, %s" % (v(a), v(a), v(b))))
            fill.append(lambda t=t, g_=g_: A("v_cvt_pk_bf16_f32 %s, %s, %s" % (v(HP + 2 * t), v(g_), v(g_ + 1))))
            fill.append(lambda t=t, g_=g_: A("v_cvt_pk_bf16_f32 %s, %s, %s" % (v(HP + 2 * t + 1), v(g_ + 2), v(g_ + 3))))
        fill.append(lambda: A.ds("ds_write_b128 %s, %s offset:%d" % (v(vHw), v(HP, 4), 4096 * tt), ('hw', tt)))
    def xrd(n):
        tt, ks = n // 18, n % 18
        A.ds("ds_read_b128 %s, %s offset:%d" % (v(LAND + 4 * (n % 4), 4), v(vXa + (ks & 1)), 18432 * tt + (ks >> 1) * 1024), ('x', n))
    def hrd(tt, ks):
        A.ds("ds_read_b128 %s, %s offset:%d" % (v(LAND + 4 * ks, 4), v(vL16), L_HH + 4096 * tt + 1024 * ks), ('h', tt, ks))
    for n in range(3):
        xrd(n)
    for n in range(36):
        tt, ks = n // 18, n % 18
        A.wait_ds(('x', n))
        for t in range(4):
            d = v(GAC[tt] + 4 * t, 4)
            MF(A, d, R(wg(t, ks), 4), v(LAND + 4 * (n % 4), 4), "0" if ks == 0 else d)
            if t == 0 and n + 3 < 36:
                xrd(n + 3)
            elif t == 0:
                hrd(0, n - 33)
            else:
                F(2)
        if n == 19:
            gu_epi(0)
        if n == 31:
            assert not fill
            A.wait_ds(('hw', 0))
            A("s_barrier")
    fs(A, 3)
    hrd(0, 3)
    A("s_mul_i32 %s, %s, %d" % (s(sA0 + 4), s(sSeg), PC_SEG))
    A("s_add_u32 %s, %s, %d" % (s(sA0 + 4), s(sA0 + 4), WS_PC))
    A("s_mul_i32 %s, %s, 36" % (s(sT), s(sW)))
    A("s_add_u32 %s, %s, %s" % (s(sT), s(sT), s(sSl)))
    A("s_lshl_b32 %s, %s, 10" % (s(sT), s(sT)))
    A("s_add_u32 %s, %s, %s" % (s(sT), s(sT), s(sA0 + 4)))
    DA = lambda G: ACC + 4 * (G % 4)
    def dn_epi(tt, G):
        b = DA(G + 9 * tt)
        if tt == 0:
            fill.append(lambda: A("v_cvt_pk_bf16_f32 %s, %s, %s" % (v(PK + 2 * G), v(b), v(b + 1))))
            fill.append(lambda: A("v_cvt_pk_bf16_f32 %s, %s, %s" % (v(PK + 2 * G + 1), v(b + 2), v(b + 3))))
        else:
            fill.append(lambda: A("v_cvt_pk_bf16_f32 %s, %s, %s" % (v(b + 3), v(b + 2), v(b + 3))))
            fill.append(lambda: A("v_cvt_pk_bf16_f32 %s, %s, %s" % (v(b + 2), v(b), v(b + 1))))
            fill.append(lambda: A("v_mov_b64 %s, %s" % (v(b, 2), v(PK + 2 * G, 2))))
            fill.append(lambda: A("buffer_store_dwordx4 %s, %s, %s, %s offen sc1" % (v(b, 4), v(vL16), s(sWS, 4), s(sT))))
            fill.append(lambda: A("s_add_u32 %s, %s, %d" % (s(sT), s(sT), 4 * 36 * 1024)))
    H1 = GAC[1]
    gu_epi(1)
    gl = list(fill)
    del fill[:]
    for N in range(18):
        tt, G = N // 9, N % 9
        if N >= 2:
            dn_epi((N - 2) // 9, (N - 2) % 9)
            pend = list(fill)
            del fill[:]
        else:
            pend = []
        for ks in range(4):
            if G == 0:
                A.wait_ds(('h', tt, ks))
            d = v(DA(N), 4)
            MF(A, d, R(wd(G, ks), 4), v((LAND if tt == 0 else H1) + 4 * ks, 4), "0" if ks == 0 else d)
            k = 0
            if ks >= 1 or len(pend) > 4:
                while pend and k < 2:
                    pend.pop(0)()
                    k += 1
            while gl and k < 2:
                gl.pop(0)()
                k += 1
            while k < 1:
                A("s_nop 0")
                k += 1
        assert not pend
        if N == 6:
            assert not gl
            A.wait_ds(('hw', 1))
            A("s_barrier")
            for ks in range(4):
                A.ds("ds_read_b128 %s, %s offset:%d" % (v(H1 + 4 * ks, 4), v(vL16), L_HH + 4096 + 1024 * ks), ('h', 1, ks))
    dn_epi(1, 7)
    F(len(fill))
    A("s_nop 1")
    dn_epi(1, 8)
    F(len(fill))
    fs(A, 5)
    llast = A.new("clast")
    A("s_cmp_ge_u32 %s, 60" % s(sSeg))
    A("s_cbranch_scc1 %s" % llast)
    A("s_waitcnt vmcnt(0)")
    A("s_barrier")
    fs(A, 6)
    A("s_lshl_b32 %s, %s, 8" % (s(sT), s(sSeg)))
    A("s_add_u32 %s, %s, %d" % (s(sT), s(sT), FL_PC))
    arrive(A, s(sT), 36)
    fs(A, 7)
    ts(A)
    A("s_cmp_lt_u32 %s, 4" % s(sSeg))
    A("s_cbranch_scc1 %s" % lfirst)
    reduce_out()
    reduce_fin()
    A.label(lfirst)
    A("s_mov_b32 %s, %s" % (s(sPrev), s(sSeg)))
    A("s_mov_b32 %s, %s" % (s(sPCo), s(sA0 + 4)))
    A("s_add_u32 %s, %s, 4" % (s(sSeg), s(sSeg)))
    A("s_branch %s" % ltop)
    A.label(llast)
    ts(A)
    reduce_out()
    reduce_fin()
    A("s_mov_b32 %s, %s" % (s(sPrev), s(sSeg)))
    A("s_mov_b32 %s, %s" % (s(sPCo), s(sA0 + 4)))
    reduce_out(last=True)
    reduce_fin()
    if "dbgout" in opt:
        A("s_memrealtime s[96:97]")
        A("s_waitcnt lgkmcnt(0)")
        A("s_mov_b64 exec, 1")
        A("v_mov_b32 %s, s96" % v(vTmp))
        A("buffer_atomic_umax %s, off, %s, 0 offset:24" % (v(vTmp), s(sDBG, 4)))
    ts_dump(A, 1)
```

```python
from asmlib import *
from layout import *
import struct, math

L_MEM, L_KX, L_F, L_O, L_SCR, L_W = 0, 9216, 17408, 21632, 23680, 24576
FSTR = 1056
L_FLAG = L_F + 1024
L_WSTRIDE = 34816
vL16, vIdx, vWL, vFw, vOw, vPst, vRst, vSelV, vT0, vT1, vT2, vTmp = range(12)
VACC, QK, RING, LND = 12, 20, 36, 48
WREG0 = 72
KVSTEP = 32 * 16384
NSPILL = 17
sWS, sWQ, sWK, sWV, sWO, sM0, sDBG = 4, 8, 12, 16, 20, 24, 28
sCU, sW, sWC, sUnit, sStep, sBud = 32, 33, 34, 35, 36, 37
sP0, sP1, sP2, sRd, sX0, sX1, sX2, sKV, sKM, sPh, sWF, sC, sVX, sKXm = range(38, 52)
sL2a, sKVv, sKVt = 96, 97, 98
sPt = 8
sTagM = 100
sFlg, sFlgN, sOne, sKF, sRdy, sRdE = 17, 18, 20, 19, 22, 24
sSel = 52
sT = 60
sStamp = 64

def f32bits(x):
    return struct.unpack("<I", struct.pack("<f", x))[0]

WO_ORDER = [0, 1, 2, 3, 4, 5, 6, 7, 8]
QK_CHAIN = [[('qk', 0, 1), ('qk', 2, 0), ('qk', 4, 0), ('qk', 6, 0), ('qk', 7, 3)],
            [('qk', 0, 2), ('qk', 2, 1), ('qk', 4, 1), ('qk', 6, 1)],
            [('qk', 0, 0), ('v', 8, 1)]]
def GOF(j, w):
    if j == 8:
        return 8
    o = 2 * (1 - (w >> 1))
    return (j & 4) + (w, w ^ 1, o, o + 1)[j & 3]
WO_CHAIN = [[('o', 0), ('o', 8), ('o', 16)], [('o', 1), ('o', 9), ('o', 17)]]
L2KEY = ('v', 8, 1)
def placement():
    spill, regs, slot, nxt = {}, {}, {}, {}
    nonreg = []
    for chains in (QK_CHAIN, WO_CHAIN):
        for si, ch in enumerate(chains):
            for i, k in enumerate(ch):
                slot[k] = si
                nxt[k] = ch[i + 1] if i + 1 < len(ch) else None
                if k != L2KEY:
                    nonreg.append(k)
    nonreg.append(L2KEY)
    assert len(nonreg) == NSPILL
    for i, k in enumerate(nonreg):
        spill[k] = i
    allk = [('qk', j, t) for j in range(9) for t in range(4)] + [('v', j, t) for j in range(9) for t in range(2)] + \
           [('o', n) for n in range(18)]
    r = WREG0
    for k in allk:
        if k not in spill:
            regs[k] = r
            r += 8
    assert r == 512, r
    return spill, regs, slot, nxt
SPILL, WREGS, SLOT, NXT = placement()

def emit_team(A, stamps=False, nsteps=64, sc="", hooks=None, opt=()):
    nst = [0]
    def stamp():
        if stamps:
            if "rt" in opt and nst[0] in (2, 4):
                pass
            else:
                A("%s %s" % ("s_memrealtime" if "rt" in opt else "s_memtime", s(sStamp + 2 * nst[0], 2)))
            nst[0] += 1
    SC = " sc1"
    lane = 71
    t1, t2, t3, t4, t5, t6 = 64, 65, 66, 67, 68, 69
    vOffW, vOffO, vTrQK, vTrV, vTrO, vAd, vTr8, vAd2 = 56, 57, 58, 59, 60, 61, 62, 63
    vColQK, vColV = 54, 55
    A.c("=========== team setup ===========")
    if "tt" in opt:
        A("s_memtime s[90:91]")
        A("s_memrealtime s[64:65]")
        A("s_mov_b32 s87, 0")
        A("s_mov_b32 s88, 0")
        A("s_mov_b32 s89, 0")
    A("v_mov_b32 %s, v0" % v(lane))
    A("v_lshrrev_b32 %s, 4, %s" % (v(t2), v(lane)))
    A("v_lshlrev_b32 %s, 2, %s" % (v(t1), v(t2)))
    A("v_sub_u32 %s, %s, %s" % (v(t1), v(lane), v(t1)))
    A("v_and_b32 %s, 15, %s" % (v(t1), v(t1)))
    A("v_lshlrev_b32 %s, 4, %s" % (v(t1), v(t1)))
    A("v_lshl_add_u32 %s, %s, 13, %s" % (v(vOffW), v(t2), v(t1)))
    A("s_lshl_b32 %s, %s, 8" % (s(sT + 2), s(sCU)))
    A("s_lshl_b32 %s, %s, 17" % (s(sT + 3), s(sW)))
    A("s_add_u32 %s, %s, %s" % (s(sT + 2), s(sT + 2), s(sT + 3)))
    A("v_add_u32 %s, %s, %s" % (v(vOffW), s(sT + 2), v(vOffW)))
    A("v_lshrrev_b32 %s, 3, %s" % (v(t1), v(lane)))
    A("v_mul_u32_u24 %s, 1152, %s" % (v(vOffO), v(t1)))
    A("v_and_b32 %s, 7, %s" % (v(t1), v(lane)))
    A("v_lshl_add_u32 %s, %s, 4, %s" % (v(vOffO), v(t1), v(vOffO)))
    A("s_mul_i32 %s, %s, 147456" % (s(sT + 2), s(sCU)))
    A("s_mul_i32 %s, %s, %d" % (s(sT + 3), s(sW), 32 * 1152))
    A("s_add_u32 %s, %s, %s" % (s(sT + 2), s(sT + 2), s(sT + 3)))
    A("v_add_u32 %s, %s, %s" % (v(vOffO), s(sT + 2), v(vOffO)))
    sLW = 99
    RING0 = L_W + 14336
    A("s_mul_i32 %s, %s, %d" % (s(sLW), s(sW), L_WSTRIDE))
    wide = [(m, G) for G in range(9) for m in range(2)] + [(2, G) for G in (4, 5, 6, 7, 8, 0, 1, 2, 3)]
    chunks = []
    for i, x in enumerate(wide):
        chunks.append(x)
        if i % 5 in (1, 3) and len(chunks) - i - 1 < 9:
            chunks.append((3, len(chunks) - i - 1))
    assert len(chunks) == 36 and chunks[-3:] == [(2, 1), (2, 2), (2, 3)] and all(m != 3 for m, G in chunks[31:])
    VLAST = (1, 2, 3)
    NSLOT = 5
    NT = " nt" if "nt" in opt else ""
    TD = ([int(o[3:]) for o in opt if o.startswith("td=")] + [0])[0]
    vTch = 67
    if TD:
        A("v_bfe_u32 %s, %s, 1, 4" % (v(t1), v(lane)))
        A("v_lshlrev_b32 %s, 13, %s" % (v(53), v(t1)))
        A("v_and_b32 %s, 1, %s" % (v(t1), v(lane)))
        A("v_lshl_add_u32 %s, %s, 7, %s" % (v(53), v(t1), v(53)))
        A("s_lshl_b32 %s, %s, 8" % (s(sT + 2), s(sCU)))
        A("s_lshl_b32 %s, %s, 17" % (s(sT + 3), s(sW)))
        A("s_add_u32 %s, %s, %s" % (s(sT + 2), s(sT + 2), s(sT + 3)))
        A("v_add_u32 %s, %s, %s" % (v(11), s(sT + 2), v(53)))
    def touch_chunk(c):
        if not TD or c >= 36 or chunks[c][0] == 3:
            return
        m, G = chunks[c]
        A("s_mov_b32 %s, %d" % (s(sT + 2), 64 * G * 8192))
        A.vmem("buffer_load_dword %s, %s, %s, %s offen" % (v(71), v(11), s((sWQ, sWK, sWV)[m], 4), s(sT + 2)), 't')
    def issue_chunk(c):
        _issue(c)
        if c >= NSLOT - 1:
            if c == NSLOT - 1:
                for k in range(1, TD):
                    touch_chunk(c + k)
            touch_chunk(c + TD)
    def _issue(c):
        m, G = chunks[c]
        slot = c % NSLOT
        for j in range(4):
            A("s_add_u32 m0, %s, %d" % (s(sLW), RING0 + slot * 4096 + j * 1024))
            if m < 3:
                A("s_mov_b32 %s, %d" % (s(sT + 2), (64 * G + 4 * j) * 8192))
                A.vmem("buffer_load_dwordx4 %s, %s, %s offen%s lds" % (v(vOffW), s((sWQ, sWK, sWV)[m], 4), s(sT + 2), NT), ('c', c))
            else:
                A("s_mov_b32 %s, %d" % (s(sT + 2), 8 * j * 1152 + 128 * G))
                A.vmem("buffer_load_dwordx4 %s, %s, %s offen%s lds" % (v(vOffO), s(sWO, 4), s(sT + 2), NT), ('c', c))
    A.vm, A.lds = [], []
    for c in range(NSLOT - 1):
        issue_chunk(c)
    A("s_lshl_b32 %s, %s, 5" % (s(sT), s(sW)))
    A("s_add_u32 %s, %s, %s" % (s(sUnit), s(sT), s(sCU)))
    A("s_cmp_lt_u32 %s, 72" % s(sUnit))
    A("s_cselect_b32 %s, %s, -1" % (s(sUnit), s(sUnit)))
    if "dup" in opt:
        A("s_xor_b32 %s, %s, 16" % (s(sT), s(sCU)))
        A("s_cmp_eq_u32 %s, 3" % s(sW))
        A("s_cselect_b32 %s, %s, %s" % (s(sUnit), s(sT), s(sUnit)))
    A("v_lshlrev_b32 %s, 4, %s" % (v(vL16), v(lane)))
    A("v_and_b32 %s, 1, %s" % (v(t1), v(lane)))
    A("v_mul_u32_u24 %s, 0xaaaa, %s" % (v(t1), v(t1)))
    A("v_add_u32 %s, 0x4444, %s" % (v(vIdx), v(t1)))
    A("s_mul_i32 %s, %s, %d" % (s(sT), s(sW), L_WSTRIDE))
    A("s_add_u32 %s, %s, %d" % (s(sT), s(sT), L_W))
    A("v_add_u32 %s, %s, %s" % (v(vWL), s(sT), v(vL16)))
    A("s_add_u32 %s, %s, 32768" % (s(sVX), s(sT)))
    A("s_lshl_b32 %s, %s, 11" % (s(sKXm), s(sW)))
    A("s_add_u32 %s, %s, %d" % (s(sKXm), s(sKXm), L_KX))
    A("v_lshrrev_b32 %s, 4, %s" % (v(t2), v(lane)))
    A("v_bfe_u32 %s, %s, 2, 2" % (v(t3), v(lane)))
    A("v_and_b32 %s, 3, %s" % (v(t4), v(lane)))
    A("v_and_b32 %s, 1, %s" % (v(t1), v(t3)))
    A("v_mul_u32_u24 %s, %d, %s" % (v(vFw), FSTR, v(t1)))
    A("v_lshrrev_b32 %s, 1, %s" % (v(t1), v(t3)))
    A("v_lshl_add_u32 %s, %s, 8, %s" % (v(vFw), v(t1), v(vFw)))
    A("v_lshl_add_u32 %s, %s, 6, %s" % (v(vFw), v(t2), v(vFw)))
    A("v_lshl_add_u32 %s, %s, 2, %s" % (v(vFw), v(t4), v(vFw)))
    A("s_lshr_b32 %s, %s, 1" % (s(sT), s(sW)))
    A("s_and_b32 %s, %s, 1" % (s(sT + 1), s(sW)))
    A("s_mul_i32 %s, %s, %d" % (s(sT + 2), s(sT), 2 * FSTR))
    A("s_lshl_b32 %s, %s, 9" % (s(sT + 3), s(sT + 1)))
    A("s_add_u32 %s, %s, %s" % (s(sT + 2), s(sT + 2), s(sT + 3)))
    A("s_add_u32 %s, %s, %d" % (s(sT + 2), s(sT + 2), L_F))
    A("v_add_u32 %s, %s, %s" % (v(vFw), s(sT + 2), v(vFw)))
    A("v_and_b32 %s, 1, %s" % (v(t1), v(t4)))
    A("v_lshl_add_u32 %s, %s, 1, %s" % (v(t1), v(t3), v(t1)))
    A("v_lshlrev_b32 %s, 5, %s" % (v(t5), v(t1)))
    A("v_lshl_add_u32 %s, %s, 8, %s" % (v(t5), v(t2), v(t5)))
    A("s_lshl_b32 %s, %s, 10" % (s(sT + 2), s(sT)))
    A("s_lshl_b32 %s, %s, 4" % (s(sT + 3), s(sT + 1)))
    A("s_add_u32 %s, %s, %s" % (s(sT + 2), s(sT + 2), s(sT + 3)))
    A("s_add_u32 %s, %s, %d" % (s(sT + 2), s(sT + 2), L_O))
    A("v_add_u32 %s, %s, %s" % (v(t5), s(sT + 2), v(t5)))
    A("v_lshl_add_u32 %s, %s, 3, %s" % (v(t6), v(t2), v(t1)))
    A("v_lshlrev_b32 %s, 4, %s" % (v(t6), v(t6)))
    A("v_add_u32 %s, %d, %s" % (v(t6), L_SCR, v(t6)))
    A("v_cmp_le_u32 vcc, 2, %s" % v(t4))
    A("s_nop 1")
    A("v_cndmask_b32 %s, %s, %s, vcc" % (v(vOw), v(t6), v(t5)))
    A("v_lshrrev_b32 %s, 5, %s" % (v(t1), v(lane)))
    A("v_lshlrev_b32 %s, 12, %s" % (v(vPst), v(t1)))
    A("v_and_b32 %s, 31, %s" % (v(t1), v(lane)))
    A("v_lshl_add_u32 %s, %s, 2, %s" % (v(vPst), v(t1), v(vPst)))
    A("v_lshlrev_b32 %s, 6, %s" % (v(t5), v(t3)))
    A("v_lshl_add_u32 %s, %s, 3, %s" % (v(t5), v(t4), v(t5)))
    A("v_lshl_add_u32 %s, %s, 5, %s" % (v(t5), v(t2), v(t5)))
    A("s_lshl_b32 %s, %s, 7" % (s(sT + 2), s(sUnit)))
    A("s_and_b32 %s, %s, 0x3fff" % (s(sT + 2), s(sT + 2)))
    A("v_add_u32 %s, %s, %s" % (v(t5), s(sT + 2), v(t5)))
    A("v_and_b32 %s, 0x28, %s" % (v(t1), v(lane)))
    A("v_mov_b32 %s, 0x%x" % (v(t6), OOB))
    A("v_cmp_eq_u32 vcc, 0, %s" % v(t1))
    A("s_nop 1")
    A("v_cndmask_b32 %s, %s, %s, vcc" % (v(vRst), v(t6), v(t5)))
    A("s_mov_b32 %s, 0x11111111" % s(sTagM))
    A("s_mov_b32 %s, 0x11111111" % s(sTagM + 1))
    A("v_and_b32 %s, 1, %s" % (v(t1), v(t3)))
    A("v_lshlrev_b32 %s, 4, %s" % (v(t1), v(t1)))
    A("v_mov_b32 %s, 0x3f80" % v(t5))
    A("v_lshlrev_b32 %s, %s, %s" % (v(vSelV), v(t1), v(t5)))
    for u in range(4):
        m16 = (1 << u) | (1 << (u + 4))
        m32 = m16 | (m16 << 16)
        A("s_mov_b32 %s, 0x%x" % (s(sSel + 2 * u), m32))
        A("s_mov_b32 %s, 0x%x" % (s(sSel + 2 * u + 1), m32))
    A("s_lshl_b32 %s, %s, 10" % (s(sT + 2), s(sW)))
    A("v_add_u32 %s, %s, %s" % (v(vT0), s(sT + 2), v(vL16)))
    A("v_xor_b32 %s, 0x400, %s" % (v(vT1), v(vT0)))
    A("s_and_b32 %s, %s, 0x800" % (s(sT + 2), s(sT + 2)))
    A("s_xor_b32 %s, %s, 0x800" % (s(sT + 2), s(sT + 2)))
    A("v_add_u32 %s, %s, %s" % (v(vT2), s(sT + 2), v(vL16)))
    A("s_mov_b32 %s, 0" % s(sStep))
    A("s_mov_b32 %s, 0" % s(sPh))
    A("s_mov_b32 %s, 200000" % s(sBud))
    A("s_lshl_b32 %s, %s, 7" % (s(sT + 3), s(sCU)))
    A("s_add_u32 %s, %s, %d" % (s(sT + 3), s(sT + 3), WS_PB))
    A("s_lshl_b32 %s, %s, 13" % (s(sT + 2), s(sW)))
    A("s_add_u32 %s, %s, %s" % (s(sP0), s(sT + 2), s(sT + 3)))
    A("s_lshl_b32 %s, %s, 12" % (s(sT + 2), s(sUnit)))
    A("s_add_u32 %s, %s, %d" % (s(sRd), s(sT + 2), WS_PB))
    A("s_cmp_eq_u32 %s, -1" % s(sUnit))
    A("s_cselect_b32 %s, 0x%x, %s" % (s(sRd), OOB, s(sRd)))
    A("s_cselect_b32 %s, 0x%x, 0" % (s(sT + 2), OOB))
    A("v_or_b32 %s, %s, %s" % (v(vRst), s(sT + 2), v(vRst)))
    for i, r in enumerate((sX0, sX1, sX2)):
        A("s_mov_b32 %s, %d" % (s(r), WS_MBX + i * MBX_STRIDE))
    A("s_lshl_b32 %s, %s, 14" % (s(sKV), s(sCU)))
    A("s_lshl_b32 %s, %s, 11" % (s(sT + 2), s(sW)))
    A("s_add_u32 %s, %s, %s" % (s(sKV), s(sKV), s(sT + 2)))
    A("s_add_u32 %s, %s, %d" % (s(sKVv), s(sKV), WS_KV + 8192))
    A("s_lshl_b32 %s, %s, 14" % (s(sKVt), s(sCU)))
    A("s_add_u32 %s, %s, %d" % (s(sKVt), s(sKVt), WS_KV + 1 * KVSTEP))
    A("s_cmp_lt_u32 %s, 3" % s(sW))
    A("s_cselect_b32 %s, 0x%x, %s" % (s(sKVt), OOB, s(sKVt)))
    if WS_KV:
        A("s_add_u32 %s, %s, %d" % (s(sKV), s(sKV), WS_KV))
    A("s_lshl_b32 %s, %s, 12" % (s(sKM), s(sCU)))
    A("s_lshl_b32 %s, %s, 10" % (s(sT + 2), s(sW)))
    A("s_add_u32 %s, %s, %s" % (s(sKM), s(sKM), s(sT + 2)))
    A("s_add_u32 %s, %s, %d" % (s(sKM), s(sKM), WS_KM))
    A("s_lshl_b32 %s, %s, 2" % (s(sT + 2), s(sCU)))
    A("s_add_u32 %s, %s, %s" % (s(sT + 2), s(sT + 2), s(sW)))
    A("s_mul_i32 %s, %s, %d" % (s(sWF), s(sT + 2), 18 * 2048))
    A("s_add_u32 %s, %s, %d" % (s(sWF), s(sWF), WS_WF))
    A("s_add_u32 %s, %s, %d" % (s(sL2a), s(sWF), 16 * 2048))
    A("s_mov_b32 %s, 0x%x" % (s(sC), f32bits(128 ** -0.5 * math.log2(math.e))))

    A("s_lshl_b32 %s, %s, 2" % (s(sT + 2), s(sW)))
    A("v_add_u32 %s, %s, %s" % (v(vColQK), s(sT + 2), v(t4)))
    A("s_lshl_b32 %s, %s, 3" % (s(sT + 2), s(sT)))
    A("s_add_u32 %s, %s, %s" % (s(sT + 2), s(sT + 2), s(sT + 1)))
    A("v_lshl_add_u32 %s, %s, 1, %s" % (v(vColV), v(t4), s(sT + 2)))
    A("v_and_b32 %s, 1, %s" % (v(t5), v(t2)))
    A("v_lshlrev_b32 %s, 2, %s" % (v(t5), v(t5)))
    A("v_lshrrev_b32 %s, 1, %s" % (v(t6), v(t3)))
    A("v_lshl_add_u32 %s, %s, 3, %s" % (v(t5), v(t6), v(t5)))
    A("v_and_b32 %s, 1, %s" % (v(t6), v(t3)))
    A("v_add_u32 %s, %s, %s" % (v(t5), v(t5), v(t6)))
    A("v_lshrrev_b32 %s, 1, %s" % (v(t1), v(t2)))
    A("v_lshl_add_u32 %s, %s, 4, %s" % (v(vTrO), v(t1), v(t5)))
    A("v_lshlrev_b32 %s, 7, %s" % (v(vTrO), v(vTrO)))
    A("v_lshl_add_u32 %s, %s, 3, %s" % (v(vTrO), v(t4), v(vTrO)))
    A("s_lshl_b32 %s, %s, 5" % (s(sT + 2), s(sW)))
    A("s_add_u32 %s, %s, %d" % (s(sT + 2), s(sT + 2), RING0))
    A("v_add_u32 %s, %s, %s" % (v(vTrO), s(sT + 2), v(vTrO)))
    A("v_mul_u32_u24 %s, %d, %s" % (v(t1), L_WSTRIDE, v(t1)))
    A("v_lshl_add_u32 %s, %s, 8, %s" % (v(t1), v(t5), v(t1)))
    A("v_add_u32 %s, %d, %s" % (v(t1), RING0, v(t1)))
    for col in (vColQK, vColV):
        A("v_lshl_add_u32 %s, %s, 2, %s" % (v(col), v(t6), v(col)))
        A("v_and_b32 %s, 15, %s" % (v(col), v(col)))
        A("v_lshl_add_u32 %s, %s, 4, %s" % (v(col), v(col), v(t1)))
    AD = [58, 59, 61, 62]
    ADO = [vTrO, 63, 69, 70]
    def addr_wo():
        for i in range(1, 4):
            A("v_add_u32 %s, %d, %s" % (v(ADO[i]), i * L_WSTRIDE, v(vTrO)))
    def addr_wide(col):
        A("v_mov_b32 %s, %s" % (v(AD[0]), v(col)))
        A("v_xor_b32 %s, 0x80, %s" % (v(AD[1]), v(col)))
        A("v_add_u32 %s, %d, %s" % (v(AD[2]), 2 * L_WSTRIDE, v(AD[0])))
        A("v_add_u32 %s, %d, %s" % (v(AD[3]), 2 * L_WSTRIDE, v(AD[1])))
    TMPF = [12, 20]
    tmpi = [0]
    park = {}
    def get_frag(key, addrs, imms):
        out = None
        if key in WREGS:
            r = WREGS[key]
        elif SPILL[key] in park:
            r = park[SPILL[key]]
        else:
            r = TMPF[tmpi[0] % 2]
            tmpi[0] += 1
            out = (r, SPILL[key])
        for q in range(4):
            A.ds("ds_read_b64_tr_b16 %s, %s offset:%d" % (R(r + 2 * q, 2), v(addrs[q]), imms[q]))
        return out
    def put(r, idx):
        if idx < 16:
            for hh in range(2):
                A.ds("ds_write_b128 %s, %s offset:%d" % (v(vWL), R(r + 4 * hh, 4), idx * 2048 + hh * 1024))
        else:
            for hh in range(2):
                A.vmem("buffer_store_dwordx4 %s, %s, %s, %s offen offset:%d" % (v(r + 4 * hh, 4), v(vL16), s(sWS, 4), s(sL2a), 1024 * hh), 'sp')

    A("v_lshl_add_u32 %s, %s, 1, %s" % (v(t5), v(t3), v(t2)))
    A("v_mul_u32_u24 %s, 1152, %s" % (v(t5), v(t5)))
    A("v_lshl_add_u32 %s, %s, 3, %s" % (v(t5), v(t4), v(t5)))
    A("s_and_b32 %s, %s, 1" % (s(sT + 2), s(sUnit)))
    A("s_mul_i32 %s, %s, 4608" % (s(sT + 2), s(sT + 2)))
    A("s_bfe_u32 %s, %s, 0x60001" % (s(sT + 3), s(sUnit)))
    A("s_lshl_b32 %s, %s, 5" % (s(sT + 3), s(sT + 3)))
    A("s_add_u32 %s, %s, %s" % (s(sT + 2), s(sT + 2), s(sT + 3)))
    A.vmem("buffer_load_dwordx2 %s, %s, %s, %s offen" % (v(52, 2), v(t5), s(sM0, 4), s(sT + 2)), 'm0')
    for i in range(4):
        A("v_mov_b32 %s, -1" % v(64 + i))
    for i in range(4):
        A.vmem("buffer_store_dwordx4 %s, %s, %s, %s offen offset:%d%s" % (v(64, 4), v(vL16), s(sWS, 4), s(sRd), 1024 * i, SC), 'mb')
    for so in (sX1, sX2):
        A.vmem("buffer_store_dwordx2 %s, %s, %s, %s offen%s" % (v(64, 2), v(vRst), s(sWS, 4), s(so), SC), 'mb')
    vm0 = list(A.vm)
    ljoin = A.new("initjoin")
    lcls = [A.new("cls%d" % i) for i in range(4)]
    for i in (1, 2, 3):
        A("s_cmp_eq_u32 %s, %d" % (s(sW), i))
        A("s_cbranch_scc1 %s" % lcls[i])
    for wc in range(4):
        A.label(lcls[wc])
        A.vm, A.lds = list(vm0), []
        tmpi[0] = 0
        pos = [GOF(jj, wc) for jj in range(9)]
        park.clear()
        park.update({15: 28, 7: 36, 8: 44})
        for i, G in enumerate(VLAST):
            for t in range(2):
                park[9 + 2 * i + t] = WREGS[('v', pos.index(G), t)]
        flush = {32: (9, 10), 33: (11, 12), 34: (13, 14), 35: (15,)}
        for c in range(36):
            m, G = chunks[c]
            if c == 0:
                addr_wo()
                addr_wide(vColQK)
            if chunks[c] == (2, 4):
                addr_wide(vColV)
            A.wait_vm(('c', c))
            A("s_barrier")
            if c + NSLOT - 1 < 36:
                issue_chunk(c + NSLOT - 1)
            if c == NSLOT:
                A.vmem("buffer_store_dwordx2 %s, %s, %s, %s offen%s" % (v(52, 2), v(vRst), s(sWS, 4), s(sX0), SC), 'mb')
            if c == 20 and wc == 0:
                A("s_mov_b64 exec, 1")
                A("s_lshl_b32 %s, 1, s3" % s(sT + 2))
                A("s_lshl_b32 %s, %s, 8" % (s(sT + 2), s(sT + 2)))
                A("v_mov_b32 %s, %s" % (v(52), s(sT + 2)))
                A("v_mov_b32 %s, 1" % v(53))
                A.vmem("buffer_atomic_or %s, off, %s, 0 offset:%d" % (v(52), s(sDBG, 4), DBG_TEAM), 'at')
                A.vmem("buffer_atomic_add %s, off, %s, 0 offset:%d" % (v(53), s(sDBG, 4), DBG_TEAM), 'at')
                A("s_mov_b64 exec, -1")
            if "mega" in opt and c == 24:
                A.vmem("buffer_load_dword %s, off, %s, 0 offset:%d sc1" % (v(64), s(sDBG, 4), DBG_MOD), 'e')
            if "mega" in opt and c == 34:
                A("v_lshrrev_b32 %s, 2, %s" % (v(65), v(vL16)))
                A("s_lshl_b32 %s, %s, 8" % (s(sT + 2), s(sCU)))
                A("s_add_u32 %s, %s, %d" % (s(sT + 2), s(sT + 2), FL_KV))
                A.vmem("buffer_load_dword %s, %s, %s, %s offen sc1" % (v(65), v(65), s(sWS, 4), s(sT + 2)), 'e')
                A.vmem("buffer_load_dword %s, off, %s, 0 offset:%d sc1" % (v(66), s(sDBG, 4), DBG_TEAM), 'e')
            for idx in flush.get(c, ()):
                put(park[idx], idx)
            so = (c % NSLOT) * 4096
            sp = []
            if m == 3:
                for c2 in range(2):
                    sp.append(get_frag(('o', 2 * G + c2), [ADO[2 * c2 + (q >> 1)] for q in range(4)], [so + 2 * (q & 1) * 128 for q in range(4)]))
            else:
                j = pos.index(G)
                for t in range(2):
                    key = ('qk', j, 2 * m + t) if m < 2 else ('v', j, t)
                    sp.append(get_frag(key, AD, [so + 2 * (q & 1) * 256 + 8 * t for q in range(4)]))
            A.wait_ds()
            for x in sp:
                if x:
                    put(*x)
        A("s_barrier")
        put(park[7], 7)
        put(park[8], 8)
        if wc < 3:
            A("s_branch %s" % ljoin)
    A.label(ljoin)
    for G in range(9):
        A("s_add_u32 %s, %s, %d" % (s(sPt + G), s(sP0), G * 32768))
    A("s_lshl_b32 %s, %s, 7" % (s(sFlg), s(sCU)))
    A("s_add_u32 %s, %s, %d" % (s(sFlg), s(sFlg), FL_PUB - 4096))
    A("s_cmp_eq_u32 %s, %d" % (s(sW), 3 if "mega" in opt else 7))
    A("s_cselect_b32 %s, %s, 0x%x" % (s(sFlg), s(sFlg), OOB))
    A("s_mov_b64 %s, 1" % s(sOne, 2))
    A("s_cmp_lt_u32 %s, 32" % s(sUnit))
    A("s_cselect_b32 %s, %s, 0x%x" % (s(sRdE), s(sRd), OOB))
    A("s_lshl_b32 %s, %s, 8" % (s(sKF), s(sCU)))
    A("s_add_u32 %s, %s, %d" % (s(sKF), s(sKF), FL_KV))
    A("s_waitcnt vmcnt(0) lgkmcnt(0)")
    A.vm, A.lds = [], []

    def kv_dma():
        return ["s_mov_b32 m0, %s" % s(sKXm),
                "buffer_load_dwordx4 %s, %s, %s offen sc1 lds" % (v(vL16), s(sWS, 4), s(sKV)),
                "buffer_load_dwordx4 %s, %s, %s offen offset:1024 sc1 lds" % (v(vL16), s(sWS, 4), s(sKV)),
                "s_mov_b32 m0, %s" % s(sVX),
                "buffer_load_dwordx4 %s, %s, %s offen sc1 lds" % (v(vL16), s(sWS, 4), s(sKVv)),
                "buffer_load_dwordx4 %s, %s, %s offen offset:1024 sc1 lds" % (v(vL16), s(sWS, 4), s(sKVv))]
    def land(key, half=None):
        sp = SPILL[key]
        for hh in ((0, 1) if half is None else (half,)):
            if sp < 16:
                A.ds("ds_read_b128 %s, %s offset:%d" % (v(LND + 8 * SLOT[key] + 4 * hh, 4), v(vWL), sp * 2048 + 1024 * hh), key)
            else:
                A.vmem("buffer_load_dwordx4 %s, %s, %s, %s offen offset:%d" % (v(LND + 8 * SLOT[key] + 4 * hh, 4), v(vL16), s(sWS, 4), s(sL2a), 1024 * hh), key)
    def zero(lo, hi):
        for r in range(lo, hi, 2):
            A("v_mov_b64 %s, 0" % v(r, 2))
    KVINC = 0 if "samekv" in opt else KVSTEP
    NDMA = "ndma" in opt
    def kv_all():
        for i in range(2):
            A("s_mov_b32 m0, %d" % (L_KX + 4096 * i))
            A("s_add_u32 %s, %s, %d" % (s(sT + 2), s(sKV), 4096 * i))
            for j in range(4):
                A("buffer_load_dwordx4 %s, %s, %s offen offset:%d sc1 lds" % (v(vL16), s(sWS, 4), s(sT + 2), 1024 * j))
        for i in range(4):
            A("s_mov_b32 m0, %d" % (L_W + i * L_WSTRIDE + 32768))
            A("s_add_u32 %s, %s, %d" % (s(sT + 2), s(sKV), 8192 + 2048 * i))
            for j in range(2):
                A("buffer_load_dwordx4 %s, %s, %s offen offset:%d sc1 lds" % (v(vL16), s(sWS, 4), s(sT + 2), 1024 * j))
    def kv_refresh(lback):
        lp = A.new("kvr")
        A.label(lp)
        A("v_lshrrev_b32 %s, 2, %s" % (v(vTmp), v(vL16)))
        A("buffer_load_dword %s, %s, %s, %s offen sc1" % (v(vTmp), v(vTmp), s(sWS, 4), s(sKF)))
        A("s_waitcnt vmcnt(0)")
        A("v_cmp_ne_u32 %s, 0, %s" % (s(sRdy, 2), v(vTmp)))
        A("s_nop 3")
        A("s_bitcmp1_b64 %s, %s" % (s(sRdy, 2), s(sStep)))
        A("s_cbranch_scc1 %s" % lback)
        A("s_sub_u32 %s, %s, 1" % (s(sBud), s(sBud)))
        A("s_cbranch_scc0 %s" % lp)
        A("s_mov_b32 %s, 0" % s(sBud))
        A("s_branch %s" % lback)
    if "tt" in opt:
        A("s_memrealtime s[66:67]")
    lfast = A.new("fast0")
    if "mega" in opt:
        lsl = A.new("slow0")
        A("v_readfirstlane_b32 %s, %s" % (s(sT + 1), v(64)))
        A("v_readfirstlane_b32 %s, %s" % (s(sT), v(66)))
        A("v_cmp_ne_u32 %s, 0, %s" % (s(sRdy, 2), v(65)))
        A("s_nop 3")
        lk, lt = A.new("needkv"), A.new("needteam")
        A("s_cmp_eq_u32 %s, 0" % s(sT + 1))
        A("s_cbranch_scc1 %s" % lsl)
        A("s_bitcmp1_b32 %s, 0" % s(sRdy))
        A("s_cbranch_scc1 %s" % lt)
        A("s_branch %s" % lk)
        A.label(lsl)
        hooks['kv_wait0'](A)
        A.label(lk)
        kv_refresh(lt)
        A.label(lt)
        A("s_bitcmp1_b32 %s, 5" % s(sT))
        A("s_cbranch_scc1 %s" % lfast)
    lp = A.new("tb")
    A.label(lp)
    A("buffer_load_dword %s, off, %s, 0 offset:%d sc1" % (v(vTmp), s(sDBG, 4), DBG_TEAM))
    A("s_waitcnt vmcnt(0)")
    A("v_readfirstlane_b32 %s, %s" % (s(sT), v(vTmp)))
    A("s_nop 3")
    A("s_bitcmp1_b32 %s, 5" % s(sT))
    A("s_cbranch_scc1 %s" % lfast)
    A("s_sub_u32 %s, %s, 1" % (s(sBud), s(sBud)))
    A("s_cbranch_scc0 %s" % lp)
    A("s_mov_b32 %s, 0" % s(sBud))
    A.label(lfast)
    if "mega" in opt:
        A("s_cmp_lt_u32 %s, 3" % s(sW))
        A("s_cselect_b64 %s, -1, %s" % (s(sRdy, 2), s(sRdy, 2)))
    if "tt" in opt:
        A("s_memrealtime s[68:69]")
    for ch in QK_CHAIN:
        land(ch[0])
    zero(VACC, RING)
    A("s_waitcnt lgkmcnt(0)")
    A("s_lshr_b32 %s, %s, 8" % (s(sT), s(sT)))
    A("s_bcnt1_i32_b32 %s, %s" % (s(sT), s(sT)))
    lslow = A.new("slow")
    A("s_cmp_lg_u32 %s, 1" % s(sT))
    A("s_cbranch_scc1 %s" % lslow)
    def loop(SC):
        lentry, lexit = A.new("entry"), A.new("exit")
        lok1, lnored, lb4 = A.new("ok1"), A.new("nored"), A.new("b4")
        ls1, ls1w, l1a = A.new("s1"), A.new("s1w"), A.new("p1a")
        ls1r, ls2r, ls2ok, ls3r, ls3ok, l1r = A.new("s1r"), A.new("s2r"), A.new("s2ok"), A.new("s3r"), A.new("s3ok"), A.new("p1r")
        A("s_branch %s" % ls1)

        def SM(acc, afr, breg):
            A("v_smfmac_f32_16x16x64_bf16 %s, %s, %s, %s" % (v(acc, 4), v(afr, 4), breg, v(vIdx)))
        def MF(d, a_, b_, c_):
            A("v_mfma_f32_16x16x32_bf16 %s, %s, %s, %s" % (v(d, 4), v(a_, 4), v(b_, 4), c_))
        def fragaddr(j):
            if j == 8:
                return vL16, 8192
            return (vT0, vT1, vT2, vT2)[j & 3], (j & 4) * 1024 + (1024 if (j & 3) == 3 else 0)
        def ringrd(j, slot):
            b, o = fragaddr(j)
            A.ds("ds_read_b128 %s, %s offset:%d" % (v(RING + 4 * slot, 4), v(b), L_MEM + o), ('ring', j))
        def mbload(dst, j):
            if j == 8:
                A("buffer_load_dwordx4 %s, %s, %s, %s offen sc1" % (v(dst, 4), v(vL16), s(sWS, 4), s(sX8)))
            else:
                A("buffer_load_dwordx4 %s, %s, %s, %s offen sc1" % (v(dst, 4), v(fragaddr(j)[0]), s(sWS, 4), s(sX4 if j & 4 else sX0)))
        def check(base, n):
            A("v_max3_u32 %s, %s, %s, %s" % (v(vTmp), v(base), v(base + 1), v(base + 2)))
            for i in range(3, n - 1, 2):
                A("v_max3_u32 %s, %s, %s, %s" % (v(vTmp), v(vTmp), v(base + i), v(base + i + 1)))
            A("v_max_u32 %s, %s, %s" % (v(vTmp), v(vTmp), v(base + n - 1)))
            A("v_cmp_eq_u32 vcc, -1, %s" % v(vTmp))
        def budget(lagain, lgiveup):
            A("s_sub_u32 %s, %s, 1" % (s(sBud), s(sBud)))
            A("s_cbranch_scc0 %s" % lagain)
            A("s_mov_b32 %s, 0" % s(sBud))
            A("s_branch %s" % lgiveup)
        PLA = [12, 16, 20, 24]
        RACC, SEL = 28, 32
        def poll1_issue(PL, so=sRd, which=range(4)):
            for i in which:
                A("buffer_load_dwordx4 %s, %s, %s, %s offen offset:%d sc1" % (v(PL[i], 4), v(vL16), s(sWS, 4), s(so), 1024 * i))
        def wait_many(keys):
            idx = [i for i, t in enumerate(A.lds) if t in keys]
            if idx:
                A.wait_ds(A.lds[idx[-1]])
        def endstep():
            for ch in QK_CHAIN:
                land(ch[0])
            A("s_mov_b32 %s, %s" % (s(sT), s(sX0)))
            A("s_mov_b32 %s, %s" % (s(sX0), s(sX1)))
            A("s_mov_b32 %s, %s" % (s(sX1), s(sX2)))
            A("s_mov_b32 %s, %s" % (s(sX2), s(sT)))
        PUB = "" if "pubplain" in opt else " sc1"
        def optval(name, dflt):
            for o in opt:
                if o.startswith(name + "="):
                    return int(o.split("=")[1])
            return dflt
        LWAIT, S1DEPTH = optval("lwait", 3), optval("s1d", 2)
        sX4, sX8 = sP1, sP2
        F8 = RING + 4
        PLB = [LND, LND + 4, LND + 8, LND + 12]
        def reduce_body(PL, n_after):
            if "prog" in opt:
                A("s_waitcnt vmcnt(%d)" % (n_after + 3))
                MF(RACC, SEL, PL[0], "0")
                A("s_waitcnt vmcnt(%d)" % (n_after + 2))
                MF(RACC, SEL, PL[1], v(RACC, 4))
                A("v_bitop3_b32 %s, %s, %s, %s bitop3:0x7e" % (v(vTmp), v(PL[0]), v(PL[1]), s(sPh)))
                A("s_waitcnt vmcnt(%d)" % (n_after + 1))
                MF(RACC, SEL, PL[2], v(RACC, 4))
                A("s_waitcnt vmcnt(%d)" % n_after)
                MF(RACC, SEL, PL[3], v(RACC, 4))
                A("v_bitop3_b32 %s, %s, %s, %s bitop3:0x7e" % (v(45), v(PL[2]), v(PL[3]), s(sPh)))
                A("v_bitop3_b32 %s, %s, %s, 1 bitop3:0xa8" % (v(vTmp), v(vTmp), v(45)))
                A("v_cmp_ne_u32 vcc, 0, %s" % v(vTmp))
                return
            A("s_waitcnt vmcnt(%d)" % n_after)
            MF(RACC, SEL, PL[0], "0")
            A("v_bitop3_b32 %s, %s, %s, %s bitop3:0x7e" % (v(vTmp), v(PL[0]), v(PL[1]), s(sPh)))
            A("v_bitop3_b32 %s, %s, %s, %s bitop3:0x7e" % (v(45), v(PL[2]), v(PL[3]), s(sPh)))
            MF(RACC, SEL, PL[1], v(RACC, 4))
            A("v_bitop3_b32 %s, %s, %s, 1 bitop3:0xa8" % (v(vTmp), v(vTmp), v(45)))
            A("v_cmp_ne_u32 vcc, 0, %s" % v(vTmp))
            MF(RACC, SEL, PL[2], v(RACC, 4))
            MF(RACC, SEL, PL[3], v(RACC, 4))
        def mksel():
            for u in range(4):
                A("v_cndmask_b32 %s, 0, %s, %s" % (v(SEL + u), v(vSelV), s(sSel + 2 * u, 2)))
        def s1load(base):
            mbload(base, 0)
            mbload(base + 4, 1)
        def rotate():
            A("s_mov_b32 %s, %s" % (s(sT), s(sX0)))
            A("s_mov_b32 %s, %s" % (s(sX0), s(sX1)))
            A("s_mov_b32 %s, %s" % (s(sX1), s(sX2)))
            A("s_mov_b32 %s, %s" % (s(sX2), s(sT)))
            A("s_add_u32 %s, %s, 4096" % (s(sX4), s(sX0)))
            A("s_add_u32 %s, %s, 8192" % (s(sX8), s(sX0)))
        lgo1 = A.new("go1")
        lkvr, lkvok = A.new("kvrf"), A.new("kvok")
        if "mega" in opt:
            A.label(lkvr)
            kv_refresh(lkvok)
        A.label(lnored)
        A("s_cmp_eq_u32 %s, -1" % s(sUnit))
        A("s_cbranch_scc1 %s_n" % lnored)
        A("s_waitcnt vmcnt(%d)" % LWAIT)
        A("s_branch %s" % lgo1)
        A.label(lnored + "_n")
        if "ps" in opt:
            A("s_memtime s[72:73]")
            A("s_memrealtime s[74:75]")
            A("s_lshl_b32 %s, %s, 9" % (s(sT), s(sCU)))
            A("s_lshl_b32 %s, %s, 3" % (s(sT + 1), s(sStep)))
            A("s_add_u32 %s, %s, %s" % (s(sT), s(sT), s(sT + 1)))
            A("s_add_u32 %s, %s, %d" % (s(sT), s(sT), WS_DBG + (7 << 17)))
            A("s_waitcnt lgkmcnt(0)")
            A("v_mov_b32 v46, s72")
            A("v_mov_b32 v47, s74")
            A("s_mov_b64 exec, 1")
            A("buffer_store_dwordx2 v[46:47], off, %s, %s" % (s(sWS, 4), s(sT)))
            A("s_mov_b64 exec, -1")
        rotate()
        for i in range(0, 8, 2):
            A("v_mov_b64 %s, -1" % v(RING + i, 2))
        if NDMA:
            l3 = A.new("n3l")
            A("s_cmp_lg_u32 %s, 3" % s(sW))
            A("s_cbranch_scc1 %s" % l3)
            kv_all()
            A.label(l3)
        if "mega" in opt:
            lfull = A.new("full")
            A("s_add_u32 %s, %s, 1" % (s(sT + 1), s(sStep)))
            A("s_bitcmp1_b64 %s, %s" % (s(sRdy, 2), s(sT + 1)))
            A("s_cbranch_scc1 %s" % lfull)
            A("v_lshrrev_b32 %s, 2, %s" % (v(vTmp), v(vL16)))
            A("buffer_load_dword %s, %s, %s, %s offen sc1" % (v(vTmp), v(vTmp), s(sWS, 4), s(sKF)))
            A("s_waitcnt vmcnt(0)")
            A("v_cmp_ne_u32 %s, 0, %s" % (s(sRdy, 2), v(vTmp)))
            A.label(lfull)
        if "noflag" in opt:
            A("s_waitcnt vmcnt(0)")
        else:
            lf = A.new("flag")
            A("v_mov_b32 %s, %d" % (v(46), L_FLAG))
            A.label(lf)
            A("ds_read_b32 %s, %s" % (v(vTmp), v(46)))
            A("s_waitcnt lgkmcnt(0)")
            A("v_cmp_eq_u32 vcc, %s, %s" % (s(sStep), v(vTmp)))
            A("s_cbranch_vccnz %s" % lb4)
            budget(lf, lb4)
        A("s_branch %s" % lb4)
        X2 = LND + 16
        def f8load():
            A("buffer_load_dword %s, %s, %s, %s offen sc1" % (v(X2 + 4), v(X2 + 5), s(sWS, 4), s(sX8)))
        def s2load():
            mbload(X2, 4)
            f8load()
        def s2check():
            A("v_max3_u32 %s, %s, %s, %s" % (v(vTmp), v(X2), v(X2 + 1), v(X2 + 2)))
            A("v_max3_u32 %s, %s, %s, %s" % (v(vTmp), v(vTmp), v(X2 + 3), v(X2 + 4)))
            A("v_cmp_eq_u32 vcc, -1, %s" % v(vTmp))
        A.label(ls2r)
        if "tt" in opt:
            A("s_add_u32 s88, s88, 1")
        s2load()
        A("s_waitcnt vmcnt(2)")
        s2check()
        A("s_cbranch_vccz %s_d" % ls2r)
        budget(ls2r, ls2r + "_d")
        A.label(ls2r + "_d")
        A("s_waitcnt vmcnt(0)")
        A("s_branch %s" % ls2ok)
        A.label(ls1)
        A("s_add_u32 %s, %s, 4096" % (s(sX4), s(sX0)))
        A("s_add_u32 %s, %s, 8192" % (s(sX8), s(sX0)))
        s1load(RING)
        A("s_waitcnt vmcnt(0)")
        A("s_branch %s" % ls1w)
        A(".p2align 6")
        A.label(ls1r)
        A("s_sub_u32 %s, %s, 1" % (s(sBud), s(sBud)))
        A("s_cbranch_scc1 %s_give" % ls1r)
        if "mask" in opt:
            A("s_mov_b64 exec, vcc")
        s1load(RING)
        if "mask" in opt:
            A("s_mov_b64 exec, -1")
        A("s_waitcnt vmcnt(%d)" % S1DEPTH)
        A.label(ls1w)
        check(RING, 8)
        A("s_cbranch_vccnz %s" % ls1r)
        A.label(lentry)
        A.lds, A.vm = [], []
        if "tt" in opt:
            lt = A.new("tt")
            A("s_cmp_lg_u32 %s, 3" % s(sStep))
            A("s_cbranch_scc1 %s" % lt)
            A("s_memtime s[92:93]")
            A.label(lt)
        if stamps and "rt" in opt:
            lq = A.new("q")
            A("s_memrealtime %s" % s(sStamp + 18, 2))
            A("s_cmp_lg_u32 %s, 41" % s(sStep))
            A("s_cbranch_scc1 %s" % lq)
            A("s_waitcnt lgkmcnt(0)")
            for i in range(10):
                A("v_writelane_b32 %s, %s, %d" % (v(vTmp), s(sStamp + 2 * i), i))
            A("s_lshl_b32 %s, %s, 2" % (s(sT), s(sCU)))
            A("s_add_u32 %s, %s, %s" % (s(sT), s(sT), s(sW)))
            A("s_lshl_b32 %s, %s, 11" % (s(sT), s(sT)))
            A("s_add_u32 %s, %s, %d" % (s(sT), s(sT), WS_DBG))
            A("buffer_store_dword %s, %s, %s, %s offen" % (v(vTmp), v(vL16), s(sWS, 4), s(sT)))
            A.label(lq)
        stamp()
        KXR = {(0, 0): LND, (0, 1): LND + 4, (0, 2): LND + 8, (0, 3): LND + 12, (1, 0): LND + 16, (1, 1): LND + 20, (1, 2): LND, (1, 3): LND + 4}
        def kxrd(tl, ks):
            A.ds("ds_read_b128 %s, %s offset:%d" % (v(KXR[(tl, ks)], 4), v(vL16), L_KX + (4 * tl + ks) * 1024), ('kx', tl, ks))
        AREG = {0: RING, 1: RING + 4, 2: RING + 8, 3: RING, 4: X2, 5: RING + 4, 6: RING + 8, 7: RING, 8: RING + 4}
        def Q(j, t):
            key = ('qk', j, t)
            SM(QK + 4 * t, AREG[j], R(WREGS[key], 8) if key in WREGS else v(LND + 8 * SLOT[key], 8))
        def VS(j, t, a_=None):
            key = ('v', j, t)
            SM(VACC + 4 * t, AREG[j] if a_ is None else a_, R(WREGS[key], 8) if key in WREGS else v(LND + 8 * SLOT[key], 8))
        L = lambda j, t, hh: land(('qk', j, t), hh)
        kd = kv_dma()
        mega = "mega" in opt
        ND = 0 if NDMA else 2
        def dma(i, tag):
            if not NDMA:
                A.vmem(kd[i], tag) if tag else A(kd[i])
        A.ds("ds_write_b128 %s, %s offset:%d" % (v(vT0), v(RING, 4), L_MEM), 'w1')
        if "s2l" not in opt:
            Q(0, 0); mbload(X2, 4)
            Q(0, 1); A("v_lshrrev_b32 %s, 2, %s" % (v(X2 + 5), v(vT0)))
            Q(0, 2); f8load()
            Q(0, 3); L(2, 0, 0)
            VS(0, 0); L(2, 0, 1)
            A.wait_ds('w1')
            VS(0, 1)
            A("s_barrier")
            ringrd(2, 2)
            stamp()
            Q(1, 0); L(2, 1, 0)
            dma(0, None)
            Q(1, 1); L(2, 1, 1)
            Q(1, 2); dma(1, 'kdma')
            Q(1, 3); A("s_add_u32 %s, %s, 1" % (s(sStep), s(sStep)))
            VS(1, 0); dma(2, 'kdma')
            VS(1, 1); A("s_waitcnt vmcnt(%d)" % (2 + ND))
            ringrd(3, 0)
            A.wait_ds(('qk', 2, 1))
            Q(2, 0); L(4, 0, 0)
            Q(2, 1); L(4, 0, 1)
            Q(2, 2); L(4, 1, 0)
            Q(2, 3); L(4, 1, 1)
            VS(2, 0); dma(3, None)
            VS(2, 1)
            A.wait_ds(('ring', 3))
            Q(3, 0); A("s_waitcnt vmcnt(%d)" % ND)
            s2check()
            Q(3, 1)
            Q(3, 2)
            A("s_cbranch_vccnz %s" % ls2r)
            A.label(ls2ok)
            A.ds("ds_write_b128 %s, %s offset:%d" % (v(vT0), v(X2, 4), L_MEM + 4096), 'w2')
            Q(3, 3)
            A.ds("ds_write_b32 %s, %s offset:%d" % (v(X2 + 5), v(X2 + 4), L_MEM + 8192), 'w2')
            VS(3, 0); dma(4, 'vdma')
            VS(3, 1); dma(5, 'vdma')
            A.wait_ds(('qk', 4, 1))
            Q(4, 0); L(6, 0, 0)
            Q(4, 1)
            A("s_waitcnt vmcnt(%d) lgkmcnt(1)" % ND)
            A.vm, A.lds = A.vm[len(A.vm) - ND:], A.lds[-1:]
            A("s_barrier")
            ringrd(5, 1)
            Q(4, 2); ringrd(6, 2)
            Q(4, 3); ringrd(7, 0)

        else:
            Q(0, 0)
            Q(0, 1); A("v_lshrrev_b32 %s, 2, %s" % (v(X2 + 5), v(vT0)))
            Q(0, 2); dma(0, None)
            Q(0, 3); L(2, 0, 0)
            VS(0, 0); L(2, 0, 1)
            A.wait_ds('w1')
            VS(0, 1)
            A("s_barrier")
            ringrd(2, 2)
            stamp()
            Q(1, 0); mbload(X2, 4)
            Q(1, 1); f8load()
            Q(1, 2); L(2, 1, 0)
            Q(1, 3); L(2, 1, 1)
            VS(1, 0); dma(1, 'kdma')
            VS(1, 1); A("s_waitcnt vmcnt(3)")
            ringrd(3, 0)
            A.wait_ds(('qk', 2, 1))
            Q(2, 0); dma(2, 'kdma')
            Q(2, 1); L(4, 0, 0)
            Q(2, 2); L(4, 0, 1)
            Q(2, 3); L(4, 1, 0)
            VS(2, 0); L(4, 1, 1)
            VS(2, 1); dma(3, None)
            A.wait_ds(('ring', 3))
            Q(3, 0); A("s_add_u32 %s, %s, 1" % (s(sStep), s(sStep)))
            Q(3, 1)
            Q(3, 2)
            Q(3, 3); A("s_waitcnt vmcnt(2)")
            s2check()
            VS(3, 0)
            VS(3, 1)
            A("s_cbranch_vccnz %s" % ls2r)
            A.label(ls2ok)
            A.wait_ds(('qk', 4, 1))
            A.ds("ds_write_b128 %s, %s offset:%d" % (v(vT0), v(X2, 4), L_MEM + 4096), 'w2')
            Q(4, 0)
            A.ds("ds_write_b32 %s, %s offset:%d" % (v(X2 + 5), v(X2 + 4), L_MEM + 8192), 'w2')
            Q(4, 1); L(6, 0, 0)
            Q(4, 2); dma(4, 'vdma')
            Q(4, 3); dma(5, 'vdma')
            A("s_waitcnt vmcnt(2) lgkmcnt(1)")
            A.vm, A.lds = A.vm[len(A.vm) - 2:], A.lds[-1:]
            A("s_barrier")
            ringrd(5, 1)
            ringrd(6, 2)
            ringrd(7, 0)
        VS(4, 0); L(6, 0, 1)
        VS(4, 1); L(6, 1, 0)
        A.wait_ds(('ring', 5))
        Q(5, 0); land(L2KEY, 0)
        Q(5, 1); land(L2KEY, 1)
        if mega:
            A("s_bitcmp1_b64 %s, %s" % (s(sRdy, 2), s(sStep)))
        Q(5, 2); L(6, 1, 1)
        A("s_mov_b32 m0, %d" % (L_SCR + 512))
        Q(5, 3); ringrd(8, 1)
        if mega:
            A("s_cbranch_scc0 %s" % lkvr)
            A.label(lkvok)
        A.wait_ds(('qk', 6, 0))
        Q(6, 0); L(7, 3, 0)
        A.wait_ds(('qk', 6, 1))
        Q(6, 1); L(7, 3, 1)
        A("v_lshlrev_b32 %s, 4, %s" % (v(vTmp), v(vL16)))
        Q(6, 2)
        if "notouch" not in opt:
            A.vmem("buffer_load_dword %s, %s, %s offen sc1 lds" % (v(vTmp), s(sWS, 4), s(sKVt)), 'touch')
        Q(6, 3); kxrd(0, 2)
        Q(7, 0); kxrd(0, 3)
        Q(7, 1)
        if "notouch" not in opt:
            A.vmem("buffer_load_dword %s, %s, %s offen offset:128 sc1 lds" % (v(vTmp), s(sWS, 4), s(sKVt)), 'touch')
        Q(7, 2); A("v_cndmask_b32 %s, 2.0, 0, %s" % (v(vTmp), s(sOne, 2)))
        A.wait_ds(('qk', 7, 3))
        Q(7, 3); kxrd(0, 0)
        Q(8, 0); kxrd(0, 1)
        Q(8, 1)
        A.vmem("buffer_store_dword %s, %s, %s, %s offen sc1" % (v(vIdx), v(vTmp), s(sWS, 4), s(sFlg)), 'flag')
        Q(8, 2); A("v_lshrrev_b32 %s, 2, %s" % (v(vTmp), v(vL16)))
        Q(8, 3); A("s_add_u32 %s, %s, 4096" % (s(sFlg), s(sFlg)))
        stamp()
        VS(7, 0); A("s_cmp_eq_u32 %s, %d" % (s(sStep), nsteps))
        VS(7, 1); ringrd(5, 0)
        def fin(base):
            A("v_add_f32 %s, %s, %s" % (v(base), v(base), v(base + 1)))
            A("v_add_f32 %s, %s, %s" % (v(base + 2), v(base + 2), v(base + 3)))
            A("v_add_f32 %s, %s, %s" % (v(base + 4), v(base + 4), v(base + 5)))
            A("v_add_f32 %s, %s, %s" % (v(base + 6), v(base + 6), v(base + 7)))
            A("v_cvt_pk_bf16_f32 %s, %s, %s" % (v(base), v(base), v(base + 4)))
            A("v_cvt_pk_bf16_f32 %s, %s, %s" % (v(base + 1), v(base + 2), v(base + 6)))
        def finw(base):
            o = 8 if base == QK else 0
            A.ds("ds_write2_b32 %s, %s, %s offset0:%d offset1:%d" % (v(vFw), v(base), v(base + 1), o, o + 4), 'fw')
        def pub(reg, off):
            A.vmem("buffer_store_dword %s, %s, %s, %s offen offset:%d%s" % (v(reg), v(vTmp), s(sWS, 4), s(sKM), off, PUB), 'pub')
        fin(QK)
        fin(QK + 8)
        finw(QK)
        finw(QK + 8)
        A.wait_vm(L2KEY)
        VS(8, 1); pub(QK + 8, 0)
        VS(8, 0); kxrd(1, 0)
        VS(6, 1); kxrd(1, 1)
        VS(6, 0); pub(QK + 9, 256)
        A.wait_ds('fw')
        A("s_barrier")
        for ks in range(4):
            A.ds("ds_read_b128 %s, %s offset:%d" % (v(QK + 4 * ks, 4), v(vL16), L_F + ks * FSTR), ('f', ks))
        stamp()
        VS(5, 0, RING)
        VS(5, 1, RING)
        T1, T2, T0 = RING, RING + 4, RING + 8
        ONES, LACC, OACC = QK + 8, QK + 12, LND + 16
        def S(i, ks):
            d, a_ = ((T1, KXR[(0, ks)]), (T2, KXR[(1, ks)]), (T0, QK + 4 * ks))[i]
            MF(d, a_, QK + 4 * ks, "0" if ks == 0 else v(d, 4))
        def vfin(t, part):
            b = VACC + 4 * t
            if part == 0:
                A("v_add_f32 %s, %s, %s" % (v(b), v(b), v(b + 1)))
                A("v_add_f32 %s, %s, %s" % (v(b + 2), v(b + 2), v(b + 3)))
            else:
                A("v_cvt_pk_bf16_f32 %s, %s, %s" % (v(b), v(b), v(b + 2)))
                A("v_mov_b32 %s, 0" % v(b + 1))
        def vxrd(t):
            A.ds("ds_read_b128 %s, %s offset:%d" % (v(QK + 4 * t, 4), v(vWL), 32768 + t * 1024), 'vx')
        m1, m2 = T0 + 2, T0 + 3
        A.wait_ds(('f', 0))
        S(0, 0); A.wait_ds(('f', 1))
        S(0, 1); kxrd(1, 2)
        kxrd(1, 3)
        A.wait_ds(('f', 3))
        S(0, 2)
        S(0, 3); land(('o', 1), 0)
        land(('o', 1), 1)
        S(2, 0); vfin(0, 0)
        S(2, 1); vfin(0, 1)
        S(2, 2); vfin(1, 0)
        S(2, 3); pub(VACC, 512)
        vfin(1, 1)
        S(1, 0); vxrd(0)
        A("v_max3_f32 %s, %s, %s, %s" % (v(VACC + 2), v(T1), v(T1 + 1), v(T1 + 2)))
        S(1, 1); vxrd(1)
        A.wait_ds(('kx', 1, 3))
        S(1, 2); pub(VACC + 4, 768)
        A("v_max3_f32 %s, %s, %s, %s" % (v(m1), v(VACC + 2), v(T1 + 3), v(T0)))
        S(1, 3); land(('o', 0), 0)
        land(('o', 0), 1)
        A("s_cbranch_scc1 %s" % lexit)
        A("s_add_u32 %s, %s, %d" % (s(sKM), s(sKM), 32 * 4096))
        stamp()
        sv = [T1, T1 + 1, T1 + 2, T1 + 3, T2, T2 + 1, T2 + 2, T2 + 3, T0, T0 + 1]
        A("v_max_f32 %s, %s, %s" % (v(m1), v(m1), v(T0 + 1)))
        A("s_nop 0")
        A("v_mov_b32 %s, 0x3f803f80" % v(ONES))
        A("v_mov_b32 %s, 0x3f803f80" % v(ONES + 1))
        A("v_max3_f32 %s, %s, %s, %s" % (v(m1), v(m1), v(sv[4]), v(sv[5])))
        A("v_max3_f32 %s, %s, %s, %s" % (v(m2), v(m1), v(sv[6]), v(sv[7])))
        A("v_max3_f32 %s, %s, %s, %s" % (v(m1), v(m1), v(sv[6]), v(sv[7])))
        A("v_mov_b32 %s, 0x3f803f80" % v(ONES + 2))
        A("v_mov_b32 %s, 0x3f803f80" % v(ONES + 3))
        A("v_permlane32_swap_b32 %s, %s" % (v(m1), v(m2)))
        A("v_max_f32 %s, %s, %s" % (v(m1), v(m1), v(m2)))
        A("v_mov_b32 %s, %s" % (v(m2), v(m1)))
        A("s_nop 1")
        A("v_permlane16_swap_b32 %s, %s" % (v(m1), v(m2)))
        A("v_max_f32 %s, %s, %s" % (v(m1), v(m1), v(m2)))
        A("v_mul_f32 %s, %s, %s" % (v(m1), s(sC), v(m1)))
        for x in sv:
            A("v_fma_f32 %s, %s, %s, -%s" % (v(x), v(x), s(sC), v(m1)))
        P, Pm = T1, T0
        for x in sv[:8]:
            A("v_exp_f32 %s, %s" % (v(x), v(x)))
        A("v_cvt_pk_bf16_f32 %s, %s, %s" % (v(P), v(T1), v(T1 + 1)))
        A("v_cvt_pk_bf16_f32 %s, %s, %s" % (v(P + 1), v(T1 + 2), v(T1 + 3)))
        A("v_cvt_pk_bf16_f32 %s, %s, %s" % (v(P + 2), v(T2), v(T2 + 1)))
        A("v_cvt_pk_bf16_f32 %s, %s, %s" % (v(P + 3), v(T2 + 2), v(T2 + 3)))
        A("v_exp_f32 %s, %s" % (v(T0), v(T0)))
        A.wait_ds('vx')
        A("v_exp_f32 %s, %s" % (v(T0 + 1), v(T0 + 1)))
        MF(LACC, ONES, P, "0")
        A("v_cvt_pk_bf16_f32 %s, %s, %s" % (v(Pm), v(T0), v(T0 + 1)))
        A("v_mov_b32 %s, 0" % v(Pm + 1))
        MF(OACC, QK, P, "0")
        MF(OACC + 4, QK + 4, P, "0")
        A("v_mfma_f32_16x16x16_bf16 %s, %s, %s, %s" % (v(LACC, 4), v(ONES, 2), v(Pm, 2), v(LACC, 4)))
        for t in range(2):
            A("v_mfma_f32_16x16x16_bf16 %s, %s, %s, %s" % (v(OACC + 4 * t, 4), v(VACC + 4 * t, 2), v(Pm, 2), v(OACC + 4 * t, 4)))
        zero(12, 24)
        A("v_rcp_f32 %s, %s" % (v(vTmp), v(LACC)))
        A("v_mov_b64 %s, 0" % v(24, 2))
        for i in range(8):
            A("v_mul_f32 %s, %s, %s" % (v(OACC + i), v(OACC + i), v(vTmp)))
        OP = T2
        for i in range(4):
            A("v_cvt_pk_bf16_f32 %s, %s, %s" % (v(OP + i), v(OACC + 2 * i), v(OACC + 2 * i + 1)))
        A.ds("ds_write_b128 %s, %s" % (v(vOw), v(OP, 4)), 'ow')
        A("v_mov_b64 %s, -1" % v(36, 2))
        A("v_cndmask_b32 %s, 0, 1, %s" % (v(vTmp), s(sTagM, 2)))
        A.vmem("buffer_store_dwordx2 %s, %s, %s, %s offen%s" % (v(36, 2), v(vRst), s(sWS, 4), s(sX2), SC), 'rst')
        zero(26, 36)
        A.wait_ds('ow')
        A("s_barrier")
        OF = LND + 16
        for c2 in range(2):
            A.ds("ds_read_b128 %s, %s offset:%d" % (v(OF + 4 * c2, 4), v(vL16), L_O + c2 * 1024), ('of', c2))
        stamp()
        zero(36, 48)
        def wacc(tile):
            return 12 + 4 * tile
        def W(p, c2):
            key = ('o', 2 * p + c2)
            wait_many([('of', c2), key])
            SM(wacc(p), OF + 4 * c2, R(WREGS[key], 8) if key in WREGS else v(LND + 8 * SLOT[key], 8))
        def e1(tile):
            b = wacc(tile)
            A("v_add_f32 %s, %s, %s" % (v(b + 1), v(b), v(b + 1)))
            A("v_add_f32 %s, %s, %s" % (v(b + 3), v(b + 2), v(b + 3)))
        def e2(tile):
            b = wacc(tile)
            A("v_cvt_pk_bf16_f32 %s, %s, %s" % (v(b), v(b + 1), v(b + 3)))
            A("v_bfi_b32 %s, %s, %s, %s" % (v(b), v(vTmp), s(sPh), v(b)))
        def e3(tile):
            A("buffer_store_dword %s, %s, %s, %s offen%s" % (v(wacc(tile)), v(vPst), s(sWS, 4), s(sPt + tile), SC))
        LO = lambda n, hh: land(('o', n), hh)
        W(0, 0); LO(8, 0)
        W(0, 1); LO(8, 1)
        W(1, 0); LO(9, 0)
        W(1, 1); LO(9, 1)
        A("s_add_u32 %s, %s, %d" % (s(sKVt), s(sKVt), KVINC))
        W(2, 0); A("s_add_u32 %s, %s, %d" % (s(sKV), s(sKV), KVINC))
        A("s_add_u32 %s, %s, %d" % (s(sKVv), s(sKVv), KVINC))
        e1(0)
        W(2, 1); e2(0)
        for p in range(3, 9):
            W(p, 0); e3(p - 3)
            if p == 5:
                LO(16, 0)
            e1(p - 2)
            W(p, 1)
            if p == 4:
                LO(16, 1)
            if p == 5:
                LO(17, 0)
            if p == 6:
                LO(17, 1)
            if p == 7:
                A("s_cmp_ge_u32 %s, 32" % s(sUnit))
            e2(p - 2)
        EP = optval("ep", 0)
        def wtail(early):
            if early and EP == 3:
                poll1_issue(PLA)
            e3(6)
            if early and EP == 2:
                poll1_issue(PLA)
            e1(7); e2(7); e3(7)
            if early and EP == 1:
                poll1_issue(PLA)
            e1(8); e2(8); e3(8)
            if stamps:
                A("s_memrealtime %s" % s(sStamp + 16, 2))
        if EP:
            lw = A.new("wt")
            A("s_cbranch_scc0 %s" % lw)
            wtail(False)
            A("s_branch %s" % lnored)
            A.label(lw)
            wtail(True)
        else:
            wtail(False)
            A("s_cbranch_scc1 %s" % lnored)
        def prep():
            mksel()
            rotate()
            for i in range(0, 8, 2):
                A("v_mov_b64 %s, -1" % v(RING + i, 2))
            A("v_mov_b32 %s, %d" % (v(46), L_FLAG))
            A("v_mov_b32 %s, %s" % (v(47), s(sStep)))
        l1b = A.new("p1b")
        if EP:
            if "eb2" in opt:
                prep()
                poll1_issue(PLB)
            else:
                poll1_issue(PLB)
                prep()
            reduce_body(PLA, 4 + EP)
            A("s_cbranch_vccz %s" % lok1)
            A("s_branch %s" % l1b)
        A.label(lgo1)
        poll1_issue(PLA)
        stamp()
        prep()
        poll1_issue(PLB)
        A.label(l1a)
        reduce_body(PLA, 4)
        A("s_cbranch_vccz %s" % lok1)
        A.label(l1b)
        if "tt" in opt:
            A("s_add_u32 s87, s87, 1")
        poll1_issue(PLA)
        reduce_body(PLB, 4)
        A("s_cbranch_vccz %s" % lok1)
        if "tt" in opt:
            A("s_add_u32 s87, s87, 1")
        poll1_issue(PLB)
        A("s_sub_u32 %s, %s, 1" % (s(sBud), s(sBud)))
        A("s_cbranch_scc0 %s" % l1a)
        A("s_mov_b32 %s, 0" % s(sBud))
        A.label(lok1)
        def finish(nop):
            A("s_nop %d" % nop)
            for i in range(4):
                A("v_add_f32_dpp %s, %s, %s row_ror:8 row_mask:0xf bank_mask:0xf" % (v(RACC + i), v(RACC + i), v(RACC + i)))
            A("v_cvt_pk_bf16_f32 %s, %s, %s" % (v(44), v(RACC), v(RACC + 1)))
            A("v_cvt_pk_bf16_f32 %s, %s, %s" % (v(45), v(RACC + 2), v(RACC + 3)))
            A("buffer_store_dwordx2 %s, %s, %s, %s offen%s" % (v(44, 2), v(vRst), s(sWS, 4), s(sX0), SC))
        if "lsep" in opt:
            le = A.new("efin")
            A("s_cmp_lt_u32 %s, 32" % s(sUnit))
            A("s_cbranch_scc1 %s" % le)
            s1load(RING)
            finish(0)
            A("s_waitcnt vmcnt(3)")
            for ch in QK_CHAIN:
                land(ch[0])
            zero(VACC, RING)
            A("s_xor_b32 %s, %s, 1" % (s(sPh), s(sPh)))
            if "l2nd" in opt:
                s1load(RING)
                A("s_waitcnt vmcnt(3) lgkmcnt(0)")
            else:
                A("s_waitcnt vmcnt(1) lgkmcnt(0)")
            A("s_branch %s" % ls1w)
            A.label(le)
            A("ds_write_b32 %s, %s" % (v(46), v(47)))
            finish(0)
        else:
            A("ds_write_b32 %s, %s" % (v(46), v(47)))
            finish(2)
        stamp()
        A.label(lb4)
        for i in range(optval("g1", 0)):
            A("s_nop 7")
        if "late" in opt:
            A("s_waitcnt vmcnt(1)")
        else:
            s1load(RING)
            A("s_waitcnt vmcnt(%d)" % (5 if "early1" in opt else 3))
        for ch in QK_CHAIN:
            land(ch[0])
        zero(VACC, RING)
        A("s_xor_b32 %s, %s, 1" % (s(sPh), s(sPh)))
        if "late" in opt:
            s1load(RING)
        for i in range(optval("g2", 0)):
            A("s_nop 7")
        if "first0" in opt:
            A("s_waitcnt vmcnt(0)")
        A("s_waitcnt lgkmcnt(0)")
        if stamps and "rt" not in opt:
            ldump = A.new("dump")
            A("s_cmp_eq_u32 %s, 41" % s(sStep))
            A("s_cbranch_scc1 %s" % ldump)
            A("s_cmp_eq_u32 %s, 42" % s(sStep))
            A("s_cbranch_scc0 %s" % ls1w)
            A.label(ldump)
            for i in range(10):
                A("v_writelane_b32 %s, %s, %d" % (v(vTmp), s(sStamp + 2 * i), i))
            A("v_writelane_b32 %s, %s, %d" % (v(vTmp), s(sBud), 15))
            A("s_lshl_b32 %s, %s, 2" % (s(sT), s(sCU)))
            A("s_add_u32 %s, %s, %s" % (s(sT), s(sT), s(sW)))
            A("s_lshl_b32 %s, %s, 1" % (s(sT), s(sT)))
            A("s_add_u32 %s, %s, %s" % (s(sT), s(sT), s(sStep)))
            A("s_sub_u32 %s, %s, 41" % (s(sT), s(sT)))
            A("s_lshl_b32 %s, %s, 10" % (s(sT), s(sT)))
            A("s_add_u32 %s, %s, %d" % (s(sT), s(sT), WS_DBG + (3 << 18 if "mega" in opt else 0)))
            A("buffer_store_dword %s, %s, %s, %s offen" % (v(vTmp), v(vL16), s(sWS, 4), s(sT)))
            A("s_waitcnt vmcnt(0)")
        A("s_branch %s" % ls1w)
        A.label(ls1r + "_give")
        A("s_mov_b32 %s, 0" % s(sBud))
        A("s_branch %s" % lentry)
        A.label(lexit)
        if "tt" in opt:
            A("s_memtime s[94:95]")
            A("s_memrealtime s[70:71]")
            A("s_waitcnt lgkmcnt(0)")
            A("s_sub_u32 s94, s94, s92")
            A("s_sub_u32 s92, s92, s90")
            A("v_writelane_b32 %s, s92, 0" % v(vTmp))
            A("v_writelane_b32 %s, s94, 1" % v(vTmp))
            A("v_writelane_b32 %s, %s, 2" % (v(vTmp), s(sBud)))
            for i in range(3):
                A("v_writelane_b32 %s, s%d, %d" % (v(vTmp), 87 + i, 3 + i))
            for i in range(4):
                A("v_writelane_b32 %s, s%d, %d" % (v(vTmp), 64 + 2 * i, 6 + i))
            A("s_lshl_b32 %s, %s, 2" % (s(sT), s(sCU)))
            A("s_add_u32 %s, %s, %s" % (s(sT), s(sT), s(sW)))
            A("s_lshl_b32 %s, %s, 10" % (s(sT), s(sT)))
            A("s_add_u32 %s, %s, %d" % (s(sT), s(sT), WS_DBG + (1 << 19)))
            A("buffer_store_dword %s, %s, %s, %s offen" % (v(vTmp), v(vL16), s(sWS, 4), s(sT)))
            if "dbgout" in opt:
                for i, o in enumerate((4, 8, 12, 20)):
                    A("v_mov_b32 %s, s%d" % (v(vTmp), 64 + 2 * i))
                    A("buffer_atomic_umax %s, off, %s, 0 offset:%d" % (v(vTmp), s(sDBG, 4), o))
        A("s_waitcnt vmcnt(0)")

    loop(" sc1" if "forcesc1" in opt else "")
    A("s_endpgm")
    A.label(lslow)
    nst[0] = 0
    loop(" sc1")
```

```python
from asmlib import *
from layout import *
import struct, math

def f32bits(x):
    return struct.unpack("<I", struct.pack("<f", x))[0]

sWS, sW1, sW2, sW3, sWO, sXS, sDBG = 4, 8, 12, 16, 20, 24, 28
sWid, sW, sSl, sRep, sSeg, sBud = 32, 33, 34, 35, 36, 37
sA0 = 38
sT = 60
sMask = 64
sSel = 80
vL16, vLane, vG, vC, vX, vTmp, vFl = 0, 1, 2, 3, 4, 5, 6
NSLOT = 9
L_SCR = 147456

TS = {'on': False, 'reg': 15}
sTsI = 98
def ts(A, idx=None):
    if not TS['on'] or (TS.get('fine') and idx is None):
        return
    A("s_memrealtime s[96:97]")
    A("s_waitcnt lgkmcnt(0)")
    A.lds = []
    if idx is None:
        A("s_mov_b32 m0, %s" % s(sTsI))
        A("s_add_u32 %s, %s, 1" % (s(sTsI), s(sTsI)))
        A("v_writelane_b32 %s, s96, m0" % v(TS['reg']))
    else:
        A("v_writelane_b32 %s, s96, %d" % (v(TS['reg']), idx))
def fs(A, idx):
    if TS.get('fine'):
        A("s_memtime s[96:97]")
        A("s_waitcnt lgkmcnt(0)")
        A.lds = []
        A("v_writelane_b32 %s, s96, %d" % (v(TS['reg']), idx))
def ts_dump(A, part):
    if not TS['on']:
        return
    A("s_lshl_b32 s96, %s, 2" % s(sWid))
    A("s_add_u32 s96, s96, %s" % s(sW))
    A("s_lshl_b32 s96, s96, 9")
    A("s_add_u32 s96, s96, %d" % (WS_DBG + part * 256))
    A("v_lshlrev_b32 %s, 2, %s" % (v(vTmp), v(vLane)))
    A("buffer_store_dword %s, %s, %s, s96 offen" % (v(TS['reg']), v(vTmp), s(sWS, 4)))
    A("s_waitcnt vmcnt(0)")
    A("s_mov_b32 %s, 0" % s(sTsI))

def build_srd(A, d, karg, nbytes):
    A("s_load_dwordx2 %s, s[0:1], %d" % (s(d, 2), karg))
    A("s_waitcnt lgkmcnt(0)")
    A("s_and_b32 %s, %s, 0xffff" % (s(d + 1), s(d + 1)))
    A("s_mov_b32 %s, %d" % (s(d + 2), nbytes))
    A("s_mov_b32 %s, 0x20000" % s(d + 3))

def wait_flags(A, voff, soff, srd=sWS, cmp_ge=None, imm=0):
    lp, ok = A.new("wf"), A.new("wfok")
    A.label(lp)
    if voff is None:
        A("buffer_load_dword %s, off, %s, %s offset:%d sc1" % (v(vTmp), s(srd, 4), soff, imm))
    else:
        A("buffer_load_dword %s, %s, %s, %s offen offset:%d sc1" % (v(vTmp), v(voff), s(srd, 4), soff, imm))
    A("s_waitcnt vmcnt(0)")
    if cmp_ge is None:
        A("v_cmp_eq_u32 vcc, 0, %s" % v(vTmp))
    else:
        A("v_cmp_gt_u32 vcc, %d, %s" % (cmp_ge, v(vTmp)))
    A("s_cbranch_vccz %s" % ok)
    A("s_sleep 2")
    A("s_sub_u32 %s, %s, 1" % (s(sBud), s(sBud)))
    A("s_cbranch_scc0 %s" % lp)
    A("s_mov_b32 %s, 0" % s(sBud))
    A.label(ok)
    A.vm = []

def wait_ready(A, soff, n):
    if TS.get('cnt') and n != 128:
        wait_flags(A, None, soff, cmp_ge=n)
    else:
        wait_flags(A, None, soff, imm=128)

def set_flag(A, soff, wave0_only=True):
    sk = A.new("sf")
    if wave0_only:
        A("s_cmp_lg_u32 %s, 0" % s(sW))
        A("s_cbranch_scc1 %s" % sk)
    A("s_mov_b64 exec, 1")
    A("v_mov_b32 %s, 1" % v(vTmp))
    A("buffer_store_dword %s, off, %s, %s sc1" % (v(vTmp), s(sWS, 4), soff))
    A("s_mov_b64 exec, -1")
    A.label(sk)

def arrive(A, soff, n, wave0_only=True):
    sk = A.new("ar")
    if wave0_only:
        A("s_cmp_lg_u32 %s, 0" % s(sW))
        A("s_cbranch_scc1 %s" % sk)
    A("s_mov_b64 exec, 1")
    A("v_mov_b32 %s, 1" % v(vTmp))
    if TS.get('cnt') and n != 128:
        A("buffer_atomic_add %s, off, %s, %s" % (v(vTmp), s(sWS, 4), soff))
        A("s_mov_b64 exec, -1")
        A.label(sk)
        return
    A("buffer_atomic_add %s, off, %s, %s sc0" % (v(vTmp), s(sWS, 4), soff))
    A("s_waitcnt vmcnt(0)")
    A("v_cmpx_eq_u32 vcc, %d, %s" % (n - 1, v(vTmp)))
    A("s_cbranch_execz %s_x" % sk)
    A("buffer_store_dword %s, off, %s, %s offset:128 sc1" % (v(vTmp), s(sWS, 4), soff))
    A.label(sk + "_x")
    A("s_mov_b64 exec, -1")
    A.label(sk)

def canary(A, soff, imm=0, voff=None):
    lp, ok = A.new("cn"), A.new("cnok")
    A.label(lp)
    if voff is None:
        A("buffer_load_dword %s, off, %s, %s offset:%d sc1" % (v(vTmp), s(sWS, 4), soff, imm))
    else:
        A("buffer_load_dword %s, %s, %s, %s offen offset:%d sc1" % (v(vTmp), v(voff), s(sWS, 4), soff, imm))
    A("s_waitcnt vmcnt(0)")
    A("v_cmp_eq_u32 vcc, -1, %s" % v(vTmp))
    A("s_cbranch_vccz %s" % ok)
    A("s_sleep 1")
    A("s_sub_u32 %s, %s, 1" % (s(sBud), s(sBud)))
    A("s_cbranch_scc0 %s" % lp)
    A("s_mov_b32 %s, 0" % s(sBud))
    A.label(ok)
def maxchain(A, regs, first):
    regs = list(regs)
    if first:
        A("v_max_u32 %s, %s, %s" % (v(vTmp), v(regs[0]), v(regs[1])))
        regs = regs[2:]
    for i in range(0, len(regs), 2):
        A("v_max3_u32 %s, %s, %s, %s" % (v(vTmp), v(vTmp), v(regs[i]), v(regs[i + 1])))
def retry_if_sentinel(A, lagain):
    ok = A.new("sok")
    A("v_cmp_eq_u32 vcc, -1, %s" % v(vTmp))
    A("s_cbranch_vccz %s" % ok)
    A("s_sub_u32 %s, %s, 1" % (s(sBud), s(sBud)))
    A("s_cbranch_scc0 %s" % lagain)
    A("s_mov_b32 %s, 0" % s(sBud))
    A.label(ok)

def MF(A, d, a_, b_, c_):
    A("v_mfma_f32_16x16x32_bf16 %s, %s, %s, %s" % (d, a_, b_, c_))

sLW = 99
def stage_issue(A, chunks, c):
    srd, voff, so, _ = chunks[c]
    for j in range(4):
        A("s_add_u32 m0, %s, %d" % (s(sLW), (c % NSLOT) * 16384 + j * 1024))
        A("s_mov_b32 %s, %d" % (s(sT + 2), so[j]))
        A.vmem("buffer_load_dwordx4 %s, %s, %s offen lds" % (v(voff), s(srd, 4), s(sT + 2)), ('c', c))
def stage_start(A, chunks, depth=NSLOT - 1):
    A("s_lshl_b32 %s, %s, 12" % (s(sLW), s(sW)))
    for c in range(min(depth, len(chunks))):
        stage_issue(A, chunks, c)
def stage(A, chunks, started=False, depth=NSLOT - 1):
    if not started:
        stage_start(A, chunks, depth)
    n = len(chunks)
    for c in range(n):
        A.wait_vm(('c', c))
        A("s_barrier")
        if c + depth < n:
            stage_issue(A, chunks, c + depth)
        chunks[c][3]((c % NSLOT) * 16384)
        A.wait_ds()
    A("s_barrier")

def wide_off(A, dst, t1, rowstride, s_extra):
    A("v_lshlrev_b32 %s, 2, %s" % (v(t1), v(vG)))
    A("v_sub_u32 %s, %s, %s" % (v(t1), v(vLane), v(t1)))
    A("v_and_b32 %s, 15, %s" % (v(t1), v(t1)))
    A("v_lshlrev_b32 %s, 4, %s" % (v(t1), v(t1)))
    A("v_mul_u32_u24 %s, %d, %s" % (v(dst), rowstride, v(vG)))
    A("v_add_u32 %s, %s, %s" % (v(dst), v(dst), v(t1)))
    A("s_mul_i32 %s, %s, %d" % (s(sT + 3), s(sW), 16 * rowstride))
    A("s_add_u32 %s, %s, %s" % (s(sT + 3), s(sT + 3), s_extra))
    A("v_add_u32 %s, %s, %s" % (v(dst), s(sT + 3), v(dst)))

def wide_tr(A, dst, t1, s_col, ccmul):
    A("v_mul_u32_u24 %s, %d, %s" % (v(t1), ccmul, v(vX)))
    A("v_lshl_add_u32 %s, %s, 2, %s" % (v(t1), v(vC), v(t1)))
    A("v_add_u32 %s, %s, %s" % (v(t1), s_col, v(t1)))
    A("v_and_b32 %s, 15, %s" % (v(t1), v(t1)))
    A("v_lshlrev_b32 %s, 4, %s" % (v(t1), v(t1)))
    A("v_lshl_add_u32 %s, %s, 3, %s" % (v(dst), v(vG), v(vC)))
    A("v_lshl_add_u32 %s, %s, 8, %s" % (v(dst), v(dst), v(t1)))

def tall_off(A, dst, t1, s_extra):
    A("v_lshrrev_b32 %s, 3, %s" % (v(t1), v(vLane)))
    A("v_mul_u32_u24 %s, 1152, %s" % (v(dst), v(t1)))
    A("v_and_b32 %s, 7, %s" % (v(t1), v(vLane)))
    A("v_lshl_add_u32 %s, %s, 4, %s" % (v(dst), v(t1), v(dst)))
    A("s_mul_i32 %s, %s, %d" % (s(sT + 3), s(sW), 32 * 1152))
    A("s_add_u32 %s, %s, %s" % (s(sT + 3), s(sT + 3), s_extra))
    A("v_add_u32 %s, %s, %s" % (v(dst), s(sT + 3), v(dst)))

def tall_tr(A, dst, kbshift):
    A("v_lshl_add_u32 %s, %s, %d, %s" % (v(dst), v(vG), kbshift, v(vC)))
    A("v_lshlrev_b32 %s, 7, %s" % (v(dst), v(dst)))
    A("v_lshl_add_u32 %s, %s, 3, %s" % (v(dst), v(vX), v(dst)))
    A("s_lshl_b32 %s, %s, 5" % (s(sT + 3), s(sW)))
    A("v_add_u32 %s, %s, %s" % (v(dst), s(sT + 3), v(dst)))

def tr2(A, reg, addr, imm0, imm1):
    A.ds("ds_read_b64_tr_b16 %s, %s offset:%d" % (R(reg, 2), v(addr), imm0))
    A.ds("ds_read_b64_tr_b16 %s, %s offset:%d" % (R(reg + 2, 2), v(addr), imm1))

def x_dma(A, vXo, sSrc, sM0):
    for i in range(9):
        A("s_add_u32 m0, %s, %d" % (s(sM0), 896 * i))
        A("s_nop 0")
        A.vmem("buffer_load_dwordx4 %s, %s, %s offen offset:%d sc1 lds" % (v(vXo), s(sWS, 4), s(sSrc), 128 * i), 'x')

def gemm576(A, vXa, LAND, wreg, acc, ntile, swap, mid=None):
    def rd(ks):
        for tt in range(2):
            A.ds("ds_read_b128 %s, %s offset:%d" % (v(LAND + 8 * (ks & 1) + 4 * tt, 4), v(vXa + (ks & 1)), 18432 * tt + (ks >> 1) * 1024), ('x', ks))
    rd(0)
    for ks in range(18):
        A.wait_ds(('x', ks))
        n = 0
        for t in range(ntile):
            for tt in range(2):
                x = v(LAND + 8 * (ks & 1) + 4 * tt, 4)
                w = R(wreg(t, ks), 4)
                d = v(acc(t, tt), 4)
                if swap(t):
                    MF(A, d, x, w, "0" if ks == 0 else d)
                else:
                    MF(A, d, w, x, "0" if ks == 0 else d)
                n += 1
                if n == 1 and ks + 1 < 18:
                    rd(ks + 1)
        if mid and ks == 4:
            mid()

def wave_sum(A, r, t):
    for k in (8, 4, 2, 1):
        A("s_nop 1")
        A("v_add_f32_dpp %s, %s, %s row_ror:%d row_mask:0xf bank_mask:0xf" % (v(r), v(r), v(r), k))
    for op in ("v_permlane16_swap_b32", "v_permlane32_swap_b32"):
        A("v_mov_b32 %s, %s" % (v(t), v(r)))
        A("s_nop 1")
        A("%s %s, %s" % (op, v(r), v(t)))
        A("v_add_f32 %s, %s, %s" % (v(r), v(r), v(t)))

def rnd2(A, a, b):
    A("v_cvt_pk_bf16_f32 %s, %s, %s" % (v(b), v(a), v(b)))
    A("v_lshlrev_b32 %s, 16, %s" % (v(a), v(b)))
    A("v_and_b32 %s, 0xffff0000, %s" % (v(b), v(b)))
def rnd1(A, a):
    A("v_cvt_pk_bf16_f32 %s, %s, %s" % (v(a), v(a), v(a)))
    A("v_and_b32 %s, 0xffff0000, %s" % (v(a), v(a)))
def unpack(A, lo, hi, src):
    A("v_and_b32 %s, 0xffff0000, %s" % (v(hi), v(src))) if hi != src else None
    A("v_lshlrev_b32 %s, 16, %s" % (v(lo), v(src)))
    if hi == src:
        A("v_and_b32 %s, 0xffff0000, %s" % (v(hi), v(src)))

def row_offsets(A, vRow, vRow2, svalid, t):
    A("v_and_b32 %s, 7, %s" % (v(t), v(vLane)))
    A("v_lshlrev_b32 %s, 4, %s" % (v(vRow), v(t)))
    A("v_bfe_u32 %s, %s, 3, 1" % (v(t), v(vLane)))
    A("v_lshl_add_u32 %s, %s, 8, %s" % (v(vRow), v(t), v(vRow)))
    A("v_lshrrev_b32 %s, 1, %s" % (v(t), v(vG)))
    A("v_lshl_add_u32 %s, %s, 7, %s" % (v(vRow), v(t), v(vRow)))
    A("v_and_b32 %s, 1, %s" % (v(t), v(vG)))
    A("v_lshl_add_u32 %s, %s, 3, %s" % (v(vRow), v(t), v(vRow)))
    A("s_mov_b32 %s, 0x00ff00ff" % s(svalid))
    A("s_mov_b32 %s, 0" % s(svalid + 1))
    A("v_mov_b32 %s, 0x%x" % (v(t), OOB >> 1))
    A("v_cndmask_b32 %s, %s, %s, %s" % (v(vRow2), v(t), v(vRow), s(svalid, 2)))

def load_mod(A, dst, which, vRow, vRow2, t1, t2):
    A("v_lshlrev_b32 %s, 1, %s" % (v(t1), v(vRow)))
    A("v_lshlrev_b32 %s, 1, %s" % (v(t2), v(vRow2)))
    A("s_mov_b32 %s, %d" % (s(sT + 2), WS_MOD + which * 2304))
    for U in range(3):
        A.vmem("buffer_load_dwordx4 %s, %s, %s, %s offen offset:%d sc1" % (v(dst + 4 * U, 4), v(t1 if U < 2 else t2), s(sWS, 4), s(sT + 2), 1024 * U), 'mod')

def ln_stats(A, X, D, svalid, m, rs, t):
    A("v_add_f32 %s, %s, %s" % (v(m), v(X), v(X + 1)))
    for i in range(2, 12):
        A("v_add_f32 %s, %s, %s" % (v(m), v(m), v(X + i)))
    wave_sum(A, m, t)
    A("v_mul_f32 %s, 0x%x, %s" % (v(m), f32bits(1.0 / 576), v(m)))
    for i in range(12):
        A("v_sub_f32 %s, %s, %s" % (v(D + i), v(X + i), v(m)))
    A("v_mul_f32 %s, %s, %s" % (v(rs), v(D + 8), v(D + 8)))
    for i in range(9, 12):
        A("v_fmac_f32 %s, %s, %s" % (v(rs), v(D + i), v(D + i)))
    A("v_cndmask_b32 %s, 0, %s, %s" % (v(rs), v(rs), s(svalid, 2)))
    for i in range(8):
        A("v_fmac_f32 %s, %s, %s" % (v(rs), v(D + i), v(D + i)))
    wave_sum(A, rs, t)
    A("v_mul_f32 %s, 0x%x, %s" % (v(rs), f32bits(1.0 / 576), v(rs)))
    rnd2(A, m, rs)
    A("v_add_f32 %s, 0x%x, %s" % (v(rs), f32bits(1e-5), v(rs)))
    rnd1(A, rs)
    A("v_sqrt_f32 %s, %s" % (v(rs), v(rs)))
    A("s_nop 0")
    rnd1(A, rs)
    A("v_rcp_f32 %s, %s" % (v(rs), v(rs)))
    A("s_nop 0")

def ln_apply(A, X, m, rs, C1, SH, out):
    for i in range(12):
        A("v_sub_f32 %s, %s, %s" % (v(X + i), v(X + i), v(m)))
    for i in range(0, 12, 2):
        rnd2(A, X + i, X + i + 1)
    for i in range(12):
        A("v_mul_f32 %s, %s, %s" % (v(X + i), v(X + i), v(rs)))
    for i in range(0, 12, 2):
        rnd2(A, X + i, X + i + 1)
    for i in range(12):
        A("v_mul_f32 %s, %s, %s" % (v(X + i), v(X + i), v(C1 + i)))
    for i in range(0, 12, 2):
        rnd2(A, X + i, X + i + 1)
    for i in range(12):
        A("v_add_f32 %s, %s, %s" % (v(X + i), v(X + i), v(SH + i)))
    for i in range(6):
        A("v_cvt_pk_bf16_f32 %s, %s, %s" % (v(out + i), v(X + 2 * i), v(X + 2 * i + 1)))

def one_plus(A, C):
    for i in range(12):
        A("v_add_f32 %s, 1.0, %s" % (v(C + i), v(C + i)))
    for i in range(0, 12, 2):
        rnd2(A, C + i, C + i + 1)

def row_io(A, op, reg, vRow, vRow2, srd, soff, flags=""):
    for U in range(3):
        A.vmem("buffer_%s_dwordx2 %s, %s, %s, %s offen offset:%d%s" % (op, v(reg + 2 * U, 2), v(vRow if U < 2 else vRow2), s(srd, 4), soff, 512 * U, flags), 'row')

def sel_masks(A):
    for hi in range(2):
        for u in range(4):
            m16 = (3 << (2 * u)) << (8 * hi)
            m32 = m16 | (m16 << 16)
            A("s_mov_b32 %s, 0x%x" % (s(sSel + 8 * hi + 2 * u), m32))
            A("s_mov_b32 %s, 0x%x" % (s(sSel + 8 * hi + 2 * u + 1), m32))
def make_sel(A, dst, hi, t):
    A("v_and_b32 %s, 1, %s" % (v(t), v(vLane)))
    A("v_lshlrev_b32 %s, 4, %s" % (v(t), v(t)))
    A("v_mov_b32 %s, 0x3f80" % v(dst))
    A("v_lshlrev_b32 %s, %s, %s" % (v(t), v(t), v(dst)))
    for u in range(4):
        A("v_cndmask_b32 %s, 0, %s, %s" % (v(dst + u), v(t), s(sSel + 8 * hi + 2 * u, 2)))

def emit_worker(A, opt=()):
    A.c("=========== worker ===========")
    A("v_mov_b32 %s, v0" % v(vLane))
    A("v_lshlrev_b32 %s, 4, %s" % (v(vL16), v(vLane)))
    A("v_lshrrev_b32 %s, 4, %s" % (v(vG), v(vLane)))
    A("v_bfe_u32 %s, %s, 2, 2" % (v(vC), v(vLane)))
    A("v_and_b32 %s, 3, %s" % (v(vX), v(vLane)))
    A("s_mov_b32 %s, 400000" % s(sBud))
    TS['on'], TS['reg'], TS['fine'] = "ts" in opt, 79, "fs" in opt
    TS['cnt'] = "cnt" in opt
    TS['d2'] = ([int(o[3:]) for o in opt if o.startswith("d2=")] + [2])[0]
    ts(A, 0)
    sel_masks(A)
    build_srd(A, sXS, 0, 2359296)
    vRow, vRow2 = 7, 8
    sValid = sMask
    row_offsets(A, vRow, vRow2, sValid, vTmp)
    A("s_mul_i32 %s, %s, 9363" % (s(sSl), s(sWid)))
    A("s_lshr_b32 %s, %s, 16" % (s(sSl), s(sSl)))
    A("s_mul_i32 %s, %s, 7" % (s(sT), s(sSl)))
    A("s_sub_u32 %s, %s, %s" % (s(sRep), s(sWid), s(sT)))
    vOffW, vTr, vAd = 77, 78, 11
    A("s_lshl_b32 %s, %s, 8" % (s(sT + 1), s(sSl)))
    wide_off(A, vOffW, vTmp, 8192, s(sT + 1))
    A("s_lshr_b32 %s, %s, 1" % (s(sT + 1), s(sW)))
    A("s_lshl_b32 %s, %s, 3" % (s(sT + 1), s(sT + 1)))
    A("s_and_b32 %s, %s, 1" % (s(sT + 2), s(sW)))
    A("s_add_u32 %s, %s, %s" % (s(sT + 1), s(sT + 1), s(sT + 2)))
    wide_tr(A, vTr, vTmp, s(sT + 1), 2)
    W0 = 80
    def wq(t, ks):
        return W0 + 4 * (6 * ks + t)
    def wide_chunks(mats, rowstride, wreg, vOffW=vOffW, vTr=vTr):
        out = []
        for G in range(9):
            for m, srd in enumerate(mats):
                def consume(base, m=m, G=G):
                    A("v_add_u32 %s, %d, %s" % (v(vAd), base, v(vTr)))
                    for k2 in range(2):
                        for t in range(2):
                            tr2(A, wreg(2 * m + t, 2 * G + k2), vAd, 32 * k2 * 256 + 8 * t, (32 * k2 + 4) * 256 + 8 * t)
                out.append((srd, vOffW, [(64 * G + 4 * j) * rowstride for j in range(4)], consume))
        return out
    qchunks = wide_chunks((sW1, sW2, sW3), 8192, wq)
    lmod, lpre_done, lidle = A.new("mod"), A.new("predone"), A.new("idle")
    XR = 16
    A("s_cmp_lt_u32 %s, 3" % s(sRep))
    A("s_cbranch_scc1 %s" % lmod)
    A("s_lshl_b32 %s, %s, 2" % (s(sT), s(sSl)))
    A("s_add_u32 %s, %s, %s" % (s(sT), s(sT), s(sRep)))
    A("s_sub_u32 %s, %s, 3" % (s(sT), s(sT)))
    A("s_lshl_b32 %s, %s, 2" % (s(sT), s(sT)))
    A("s_add_u32 %s, %s, %s" % (s(sT), s(sT), s(sW)))
    A("s_mul_i32 %s, %s, %d" % (s(sA0), s(sT), 4 * 1152))
    for r in range(4):
        A("s_add_u32 %s, %s, %d" % (s(sT), s(sA0), r * 1152))
        row_io(A, "load", XR + 6 * r, vRow, vRow2, sXS, s(sT))
    stage_start(A, qchunks)
    A("s_waitcnt vmcnt(%d)" % (4 * (NSLOT - 1)))
    SH, C1, XF = 40, 52, 100
    for r in range(4):
        for i in range(6):
            unpack(A, XF + 12 * r + 2 * i, XF + 12 * r + 2 * i + 1, XR + 6 * r + i)
        ln_stats(A, XF + 12 * r, 160, sValid, 64 + 2 * r, 65 + 2 * r, 11)
    wait_flags(A, None, "0", srd=sDBG, imm=DBG_MOD)
    load_mod(A, SH, 0, vRow, vRow2, 9, 10)
    load_mod(A, C1, 1, vRow, vRow2, 9, 10)
    A("s_waitcnt vmcnt(0)")
    one_plus(A, C1)
    for r in range(4):
        ln_apply(A, XF + 12 * r, 64 + 2 * r, 65 + 2 * r, C1, SH, XR + 6 * r)
        A("s_add_u32 %s, %s, %d" % (s(sT), s(sA0), WS_H + r * 1152))
        row_io(A, "store", XR + 6 * r, vRow, vRow2, sWS, s(sT), " sc1")
    A("s_waitcnt vmcnt(0)")
    A("s_barrier")
    A("s_mov_b32 %s, %d" % (s(sT), FL_H))
    arrive(A, s(sT), 128)
    A("s_branch %s" % lpre_done)

    A.label(lmod)
    A("s_cmp_eq_u32 %s, 0" % s(sRep))
    A("s_cbranch_scc1 %s" % lidle)
    A("s_cmp_ge_u32 %s, 27" % s(sSl))
    A("s_cbranch_scc1 %s" % lidle)
    build_srd(A, sA0 + 2, 88, 1152)
    build_srd(A, sA0 + 6, 96, 3981312)
    sCs, sWm = sA0 + 2, sA0 + 6
    A("s_lshl_b32 %s, %s, 1" % (s(sA0), s(sSl)))
    A("s_add_u32 %s, %s, %s" % (s(sA0), s(sA0), s(sRep)))
    A("s_sub_u32 %s, %s, 1" % (s(sA0), s(sA0)))
    for i in range(4):
        A("v_mov_b32 %s, 0" % v(12 + i))
    A("s_lshl_b32 %s, %s, 2" % (s(sT), s(sA0)))
    A("s_add_u32 %s, %s, %s" % (s(sT), s(sT), s(sW)))
    A("s_lshl_b32 %s, %s, 11" % (s(sT), s(sT)))
    A("s_add_u32 %s, %s, %d" % (s(sT), s(sT), WS_FL))
    assert FL_END - WS_FL <= 54 * 8192
    A("buffer_store_dwordx4 %s, %s, %s, %s offen sc1" % (v(12, 4), v(vL16), s(sWS, 4), s(sT)))
    A("buffer_store_dwordx4 %s, %s, %s, %s offen offset:1024 sc1" % (v(12, 4), v(vL16), s(sWS, 4), s(sT)))
    A("v_lshrrev_b32 %s, 3, %s" % (v(9), v(vLane)))
    A("s_mul_i32 %s, %s, 144" % (s(sT), s(sW)))
    A("v_add_u32 %s, %s, %s" % (v(9), s(sT), v(9)))
    A("v_lshlrev_b32 %s, 1, %s" % (v(10), v(9)))
    A("v_mul_u32_u24 %s, 6912, %s" % (v(9), v(9)))
    A("v_and_b32 %s, 7, %s" % (v(11), v(vLane)))
    A("v_lshl_add_u32 %s, %s, 4, %s" % (v(9), v(11), v(9)))
    A("s_lshl_b32 %s, %s, 7" % (s(sT), s(sA0)))
    CV, WV, ACC = 100, 120, 200
    for i in range(18):
        A("buffer_load_ushort %s, %s, %s, 0 offen offset:%d" % (v(CV + i), v(10), s(sCs, 4), 16 * i))
    for i in range(18):
        A("s_add_u32 %s, %s, %d" % (s(sT + 1), s(sT), i * 55296))
        A("buffer_load_dwordx4 %s, %s, %s, %s offen" % (v(WV + 4 * i, 4), v(9), s(sWm, 4), s(sT + 1)))
    A("s_waitcnt vmcnt(18)")
    for i in range(18):
        c = CV + i
        A("v_lshlrev_b32 %s, 16, %s" % (v(c), v(c)))
        A("v_mul_f32 %s, 0x%x, %s" % (v(12), f32bits(-math.log2(math.e)), v(c)))
        A("v_exp_f32 %s, %s" % (v(12), v(12)))
        A("s_nop 0")
        A("v_add_f32 %s, 1.0, %s" % (v(12), v(12)))
        A("v_rcp_f32 %s, %s" % (v(12), v(12)))
        A("s_nop 0")
        A("v_mul_f32 %s, %s, %s" % (v(c), v(c), v(12)))
        rnd1(A, c)
    for j in range(8):
        A("v_mov_b32 %s, 0" % v(ACC + j))
    A("s_waitcnt vmcnt(0)")
    for i in range(18):
        for j in range(4):
            unpack(A, 12, 13, WV + 4 * i + j)
            A("v_fmac_f32 %s, %s, %s" % (v(ACC + 2 * j), v(12), v(CV + i)))
            A("v_fmac_f32 %s, %s, %s" % (v(ACC + 2 * j + 1), v(13), v(CV + i)))
    for j in range(8):
        r = ACC + j
        A("s_nop 1")
        A("v_add_f32_dpp %s, %s, %s row_ror:8 row_mask:0xf bank_mask:0xf" % (v(r), v(r), v(r)))
        for op in ("v_permlane16_swap_b32", "v_permlane32_swap_b32"):
            A("v_mov_b32 %s, %s" % (v(12), v(r)))
            A("s_nop 1")
            A("%s %s, %s" % (op, v(r), v(12)))
            A("v_add_f32 %s, %s, %s" % (v(r), v(r), v(12)))
    A("s_lshl_b32 %s, %s, 8" % (s(sT + 1), s(sW)))
    A("s_add_u32 %s, %s, %d" % (s(sT + 1), s(sT + 1), L_SCR))
    A("v_lshlrev_b32 %s, 5, %s" % (v(11), v(11)))
    A("v_add_u32 %s, %s, %s" % (v(11), s(sT + 1), v(11)))
    A("ds_write_b128 %s, %s" % (v(11), v(ACC, 4)))
    A("ds_write_b128 %s, %s offset:16" % (v(11), v(ACC + 4, 4)))
    A("s_waitcnt lgkmcnt(0)")
    A("s_barrier")
    A("v_lshlrev_b32 %s, 2, %s" % (v(10), v(vLane)))
    A("v_add_u32 %s, %d, %s" % (v(11), L_SCR, v(10)))
    for i in range(4):
        A("ds_read_b32 %s, %s offset:%d" % (v(12 + i), v(11), 256 * i))
    A("s_waitcnt lgkmcnt(0)")
    A("v_add_f32 %s, %s, %s" % (v(12), v(12), v(13)))
    A("v_add_f32 %s, %s, %s" % (v(14), v(14), v(15)))
    A("v_add_f32 %s, %s, %s" % (v(12), v(12), v(14)))
    rnd1(A, 12)
    A("s_lshl_b32 %s, %s, 8" % (s(sT), s(sA0)))
    A("s_add_u32 %s, %s, %d" % (s(sT), s(sT), WS_MOD))
    sk = A.new("modw")
    A("s_cmp_lg_u32 %s, 0" % s(sW))
    A("s_cbranch_scc1 %s" % sk)
    A("buffer_store_dword %s, %s, %s, %s offen sc1" % (v(12), v(10), s(sWS, 4), s(sT)))
    A("s_waitcnt vmcnt(0)")
    A("s_mov_b64 exec, 1")
    A("v_mov_b32 %s, 1" % v(12))
    A("buffer_atomic_add %s, off, %s, 0 offset:%d sc0" % (v(12), s(sDBG, 4), DBG_MODC))
    A("s_waitcnt vmcnt(0)")
    A("v_cmpx_eq_u32 vcc, 53, %s" % v(12))
    A("s_cbranch_execz %s_x" % sk)
    A("buffer_store_dword %s, off, %s, 0 offset:%d sc1" % (v(12), s(sDBG, 4), DBG_MOD))
    A.label(sk + "_x")
    A("s_mov_b64 exec, -1")
    A.label(sk)
    A.label(lidle)
    stage_start(A, qchunks)
    A.label(lpre_done)
    ts(A, 1)

    A.vm, A.lds = [('c', c) for c in range(NSLOT - 1) for j in range(4)], []
    stage(A, qchunks, started=True)
    ts(A, 2)
    wait_flags(A, None, "0", srd=sDBG, imm=DBG_MOD)
    ts(A, 3)
    ts(A, 4)
    if TS['on']:
        A("v_mov_b32 v15, v79")
        A("s_mov_b32 %s, 8" % s(sTsI))
        TS['reg'] = 15
    A("s_mov_b32 %s, %d" % (s(sT), FL_H))
    wait_flags(A, None, s(sT), imm=128)
    ts(A, 5)
    vXo, vXa = 9, 10
    LAND, ACC = 16, 32
    sSrc, sM0x, sQo, sKo, sFlag, sBuf = sA0, sA0 + 1, sA0 + 2, sA0 + 3, sA0 + 4, sA0 + 5
    def xsetup(vXa):
        A("v_lshrrev_b32 %s, 3, %s" % (v(vTmp), v(vLane)))
        A("v_xor_b32 %s, %s, %s" % (v(vXa), v(vTmp), v(vLane)))
        A("v_and_b32 %s, 7, %s" % (v(vXa), v(vXa)))
        A("v_mul_u32_u24 %s, 1152, %s" % (v(vXo), v(vTmp)))
        A("v_lshl_add_u32 %s, %s, 4, %s" % (v(vXo), v(vXa), v(vXo)))
        A("s_mul_i32 %s, %s, 9216" % (s(sM0x), s(sW)))
        A("v_add_u32 %s, %s, %s" % (v(vXo), s(sM0x), v(vXo)))
        A("v_and_b32 %s, 7, %s" % (v(vTmp), v(vLane)))
        A("v_xor_b32 %s, %s, %s" % (v(vXa), v(vG), v(vTmp)))
        A("v_lshlrev_b32 %s, 4, %s" % (v(vXa), v(vXa)))
        A("v_lshl_add_u32 %s, %s, 7, %s" % (v(vXa), v(vTmp), v(vXa)))
        A("v_bfe_u32 %s, %s, 3, 1" % (v(vTmp), v(vLane)))
        A("v_mul_u32_u24 %s, 9216, %s" % (v(vTmp), v(vTmp)))
        A("v_add_u32 %s, %s, %s" % (v(vXa), v(vXa), v(vTmp)))
        A("v_xor_b32 %s, 64, %s" % (v(vXa + 1), v(vXa)))
    xsetup(vXa)
    A("s_mov_b32 %s, %s" % (s(sSeg), s(sRep)))
    A("s_mul_i32 %s, %s, 36864" % (s(sSrc), s(sSeg)))
    A("s_add_u32 %s, %s, %d" % (s(sSrc), s(sSrc), WS_H))
    A("s_lshl_b32 %s, %s, 5" % (s(sT), s(sSeg)))
    A("s_add_u32 %s, %s, %s" % (s(sT), s(sT), s(sSl)))
    A("s_lshl_b32 %s, %s, 10" % (s(sT + 1), s(sW)))
    A("s_lshl_b32 %s, %s, 13" % (s(sQo), s(sT)))
    A("s_add_u32 %s, %s, %s" % (s(sQo), s(sQo), s(sT + 1)))
    A("s_add_u32 %s, %s, %d" % (s(sQo), s(sQo), WS_Q))
    A("s_lshl_b32 %s, %s, 14" % (s(sKo), s(sT)))
    A("s_add_u32 %s, %s, %s" % (s(sKo), s(sKo), s(sT + 1)))
    if WS_KV:
        A("s_add_u32 %s, %s, %d" % (s(sKo), s(sKo), WS_KV))
    A("s_mov_b32 %s, 0x%x" % (s(sFlag), OOB))
    A.vm = []
    x_dma(A, vXo, sSrc, sM0x)
    A("s_waitcnt vmcnt(0)")
    ltop, lend = A.new("qkv"), A.new("qkvend")
    A.label(ltop)
    lq1, lq2 = A.new("q1"), A.new("q2")
    A("s_cmp_ge_u32 %s, 14" % s(sSeg))
    A("s_cbranch_scc1 %s" % lq1)
    A("s_waitcnt vmcnt(0)")
    A("s_barrier")
    set_flag(A, s(sFlag))
    A("s_branch %s" % lq2)
    A.label(lq1)
    A("s_waitcnt vmcnt(7)")
    A("s_barrier")
    A.label(lq2)
    ts(A)
    fs(A, 20)
    A("s_xor_b32 %s, %s, 0x10000" % (s(sM0x), s(sM0x)))
    A("s_add_u32 %s, %s, %d" % (s(sSrc), s(sSrc), 7 * 36864))
    x_dma(A, vXo, sSrc, sM0x)
    def mid():
        A("s_waitcnt vmcnt(9)")
        A("s_barrier")
        set_flag(A, s(sFlag))
    fs(A, 21)
    A.lds = []
    gemm576(A, vXa, LAND, wq, lambda t, tt: ACC + 8 * t + 4 * tt, 6, lambda t: t >= 4, mid)
    fs(A, 22)
    A("v_xor_b32 %s, 0x10000, %s" % (v(vXa), v(vXa)))
    A("v_xor_b32 %s, 0x10000, %s" % (v(vXa + 1), v(vXa + 1)))
    A("s_lshl_b32 %s, %s, 8" % (s(sFlag), s(sSl)))
    A("s_lshl_b32 %s, %s, 2" % (s(sT), s(sSeg)))
    A("s_add_u32 %s, %s, %s" % (s(sFlag), s(sFlag), s(sT)))
    A("s_add_u32 %s, %s, %d" % (s(sFlag), s(sFlag), FL_KV))
    A("s_add_u32 %s, %s, 4096" % (s(sT), s(sQo)))
    A("s_add_u32 %s, %s, 4096" % (s(sT + 1), s(sKo)))
    A("s_lshl_b32 %s, %s, 10" % (s(sT + 2), s(sW)))
    A("s_add_u32 %s, %s, %s" % (s(sT + 2), s(sT + 2), s(sKo)))
    A("s_add_u32 %s, %s, 8192" % (s(sT + 2), s(sT + 2)))
    for m in range(2):
        for tt in range(2):
            a0, a1 = ACC + 16 * m + 4 * tt, ACC + 16 * m + 8 + 4 * tt
            for x in range(4):
                A("v_cvt_pk_bf16_f32 %s, %s, %s" % (v(a0 + x), v(a0 + x), v(a1 + x)))
            so = (sQo, sT, sKo, sT + 1)[2 * m + tt]
            A("buffer_store_dwordx4 %s, %s, %s, %s offen sc1" % (v(a0, 4), v(vL16), s(sWS, 4), s(so)))
    for t in range(2):
        a0 = ACC + 32 + 8 * t
        A("v_cvt_pk_bf16_f32 %s, %s, %s" % (v(a0), v(a0), v(a0 + 1)))
        A("v_cvt_pk_bf16_f32 %s, %s, %s" % (v(a0 + 1), v(a0 + 2), v(a0 + 3)))
        A("v_cvt_pk_bf16_f32 %s, %s, %s" % (v(a0 + 2), v(a0 + 4), v(a0 + 5)))
        A("v_cvt_pk_bf16_f32 %s, %s, %s" % (v(a0 + 3), v(a0 + 6), v(a0 + 7)))
        A("buffer_store_dwordx4 %s, %s, %s, %s offen offset:%d sc1" % (v(a0, 4), v(vL16), s(sWS, 4), s(sT + 2), 1024 * t))
    A("v_mov_b64 %s, -1" % v(LAND, 2))
    A("v_mov_b64 %s, -1" % v(LAND + 2, 2))
    A("s_sub_u32 %s, %s, %d" % (s(sT), s(sQo), WS_Q))
    A("s_lshl_b32 %s, %s, 10" % (s(sT + 1), s(sW)))
    A("s_add_u32 %s, %s, %s" % (s(sT), s(sT), s(sT + 1)))
    A("s_lshr_b32 %s, %s, 1" % (s(sT), s(sT)))
    A("s_add_u32 %s, %s, %d" % (s(sT), s(sT), WS_KM))
    A("buffer_store_dwordx4 %s, %s, %s, %s offen sc1" % (v(LAND, 4), v(vL16), s(sWS, 4), s(sT)))
    fs(A, 23)
    A("s_add_u32 %s, %s, %d" % (s(sQo), s(sQo), 7 * 32 * 8192))
    A("s_add_u32 %s, %s, %d" % (s(sKo), s(sKo), 7 * 32 * 16384))
    A("s_add_u32 %s, %s, 7" % (s(sSeg), s(sSeg)))
    A("s_cmp_lt_u32 %s, 64" % s(sSeg))
    A("s_cbranch_scc1 %s" % ltop)
    A("s_waitcnt vmcnt(0)")
    A("s_barrier")
    set_flag(A, s(sFlag))
    ts(A, 6)
    ts_dump(A, 0)
    if "p1only" in opt:
        return
    lC = A.new("roleC")
    A("s_cmp_ge_u32 %s, 80" % s(sWid))
    A("s_cbranch_scc1 %s" % lC)
    lB = A.new("roleB")
    A("s_cmp_ge_u32 %s, 64" % s(sWid))
    A("s_cbranch_scc1 %s" % lB)
    emit_roleA(A, opt)
    A("s_endpgm")
    A.label(lB)
    emit_roleB(A, vRow, vRow2, sValid, opt)
    A("s_endpgm")
    A.label(lC)
    emit_roleC(A, xsetup, wide_chunks, opt)

def emit_roleA(A, opt):
    A.c("=========== role A: attention + Wo partial ===========")
    A("s_lshr_b32 %s, %s, 2" % (s(sSl), s(sWid)))
    A("s_and_b32 %s, %s, 3" % (s(sRep), s(sWid)))
    vOff, vTr, vAd = 9, 10, 11
    A("s_mul_i32 %s, %s, %d" % (s(sT + 1), s(sSl), 2 * 147456))
    tall_off(A, vOff, vTmp, s(sT + 1))
    tall_tr(A, vTr, 4)
    W0 = 224
    def wo(G, K):
        return W0 + 4 * (8 * G + K)
    chunks = []
    for hd in range(2):
        for G in range(9):
            def consume(base, hd=hd, G=G):
                A("v_add_u32 %s, %d, %s" % (v(vAd), base, v(vTr)))
                for ks in range(4):
                    r0 = 64 * (ks >> 1) + 8 * (ks & 1)
                    tr2(A, wo(G, 4 * hd + ks), vAd, r0 * 128, (r0 + 4) * 128)
            chunks.append((sWO, vOff, [hd * 147456 + 8 * j * 1152 + 128 * G for j in range(4)], consume))
    A.vm, A.lds = ['old'] * 2, []
    stage(A, chunks, depth=TS['d2'])
    TS['reg'] = 19
    ts(A)
    vKM, vL4, vOwr, vTw, vTrd, vPst, vPld, vNEG = 9, 10, 11, 12, 13, 14, 15, 16
    GA, SB, CB = 20, 32, 44
    SEL0, SEL1 = 56, 60
    QF, KX, VX, KM, VM = 64, 80, 112, 144, 160
    S_, OA = 176, 188
    WACC, LAND = 144, 216
    L_OT, L_PT = 0, 16384
    PSTR = 1168
    A("v_lshlrev_b32 %s, 2, %s" % (v(vL4), v(vLane)))
    A("v_lshrrev_b32 %s, 1, %s" % (v(vTmp), v(vG)))
    A("v_lshlrev_b32 %s, 10, %s" % (v(vKM), v(vTmp)))
    A("v_and_b32 %s, 1, %s" % (v(vTmp), v(vX)))
    A("v_lshl_add_u32 %s, %s, 8, %s" % (v(vKM), v(vTmp), v(vKM)))
    A("v_lshl_add_u32 %s, %s, 6, %s" % (v(vKM), v(vC), v(vKM)))
    A("v_and_b32 %s, 1, %s" % (v(vTmp), v(vG)))
    A("v_lshl_add_u32 %s, %s, 5, %s" % (v(vKM), v(vTmp), v(vKM)))
    A("s_and_b32 %s, %s, 1" % (s(sT), s(sW)))
    A("s_lshl_b32 %s, %s, 13" % (s(sT + 1), s(sT)))
    A("s_lshr_b32 %s, %s, 1" % (s(sT + 2), s(sW)))
    A("s_lshl_b32 %s, %s, 12" % (s(sT + 3), s(sT + 2)))
    A("s_add_u32 %s, %s, %s" % (s(sT + 1), s(sT + 1), s(sT + 3)))
    A("v_add_u32 %s, %s, %s" % (v(vOwr), s(sT + 1), v(vL16)))
    A("v_and_b32 %s, 15, %s" % (v(17), v(vLane)))
    A("s_lshl_b32 %s, %s, 4" % (s(sT + 1), s(sT)))
    A("v_add_u32 %s, %s, %s" % (v(17), s(sT + 1), v(17)))
    A("v_lshlrev_b32 %s, 2, %s" % (v(18), v(vG)))
    A("v_sub_u32 %s, %s, %s" % (v(17), v(17), v(18)))
    sCM = sA0 + 6
    for i in range(8):
        A("v_cmp_le_i32 %s, %d, %s" % (s(sCM + 2 * i, 2), 16 * (i >> 2) + (i & 3), v(17)))
    A("v_mov_b32 %s, 0x%x" % (v(vNEG), f32bits(-1e9)))
    A("v_and_b32 %s, 15, %s" % (v(vTmp), v(vLane)))
    A("v_mul_u32_u24 %s, %d, %s" % (v(vTw), PSTR, v(vTmp)))
    A("v_lshl_add_u32 %s, %s, 3, %s" % (v(vTw), v(vG), v(vTw)))
    A("s_lshl_b32 %s, %s, 5" % (s(sT + 1), s(sW)))
    A("s_add_u32 %s, %s, %d" % (s(sT + 1), s(sT + 1), L_PT))
    A("v_add_u32 %s, %s, %s" % (v(vTw), s(sT + 1), v(vTw)))
    A("v_lshrrev_b32 %s, 3, %s" % (v(17), v(vLane)))
    A("v_and_b32 %s, 7, %s" % (v(18), v(vLane)))
    A("v_lshlrev_b32 %s, 4, %s" % (v(18), v(18)))
    A("s_lshl_b32 %s, %s, 3" % (s(sT + 1), s(sW)))
    A("v_add_u32 %s, %s, %s" % (v(17), s(sT + 1), v(17)))
    A("v_mul_u32_u24 %s, %d, %s" % (v(vTrd), PSTR, v(17)))
    A("v_add_u32 %s, %s, %s" % (v(vTrd), v(vTrd), v(18)))
    A("v_add_u32 %s, %d, %s" % (v(vTrd), L_PT, v(vTrd)))
    A("v_mul_u32_u24 %s, 18432, %s" % (v(vPst), v(17)))
    A("v_add_u32 %s, %s, %s" % (v(vPst), v(vPst), v(18)))
    A("s_mul_i32 %s, %s, 1152" % (s(sT + 1), s(sSl)))
    A("v_add_u32 %s, %s, %s" % (v(vPst), s(sT + 1), v(vPst)))
    sHead, sSH, sPAo, sRowo = sA0, sA0 + 1, sA0 + 2, sA0 + 3
    A("s_lshl_b32 %s, %s, 1" % (s(sHead), s(sSl)))
    A("s_lshr_b32 %s, %s, 1" % (s(sT), s(sW)))
    A("s_add_u32 %s, %s, %s" % (s(sHead), s(sHead), s(sT)))
    A("s_mov_b32 %s, %s" % (s(sSeg), s(sRep)))
    A("s_lshl_b32 %s, %s, 8" % (s(sT), s(sHead)))
    A("s_add_u32 %s, %s, %d" % (s(sT), s(sT), FL_KV))
    wait_flags(A, vL4, s(sT))
    A("s_lshl_b32 %s, %s, 5" % (s(sSH), s(sSeg)))
    A("s_add_u32 %s, %s, %s" % (s(sSH), s(sSH), s(sHead)))
    def prefetch():
        A("s_lshl_b32 %s, %s, 13" % (s(sT), s(sSH)))
        A("s_and_b32 %s, %s, 1" % (s(sT + 1), s(sW)))
        A("s_lshl_b32 %s, %s, 12" % (s(sT + 1), s(sT + 1)))
        A("s_add_u32 %s, %s, %s" % (s(sT), s(sT), s(sT + 1)))
        A("s_add_u32 %s, %s, %d" % (s(sT), s(sT), WS_Q))
        for i in range(4):
            A("buffer_load_dwordx4 %s, %s, %s, %s offen offset:%d sc1" % (v(QF + 4 * i, 4), v(vL16), s(sWS, 4), s(sT), 1024 * i))
        A("s_lshl_b32 %s, %s, 14" % (s(sT), s(sSH)))
        if WS_KV:
            A("s_add_u32 %s, %s, %d" % (s(sT), s(sT), WS_KV))
        for b in range(4):
            for i in range(4):
                A("buffer_load_dwordx4 %s, %s, %s, %s offen offset:%d sc1" % (v(KX + 16 * b + 4 * i, 4), v(vL16), s(sWS, 4), s(sT), 1024 * i))
            if b < 3:
                A("s_add_u32 %s, %s, 4096" % (s(sT), s(sT)))
    A("s_add_u32 %s, %s, 60" % (s(sT), s(sRep)))
    A("s_mul_i32 %s, %s, %d" % (s(sT), s(sT), PA_SEG))
    A("s_add_u32 %s, %s, %d" % (s(sT), s(sT), WS_PA))
    A("v_mov_b64 %s, -1" % v(20, 2))
    A("v_mov_b64 %s, -1" % v(22, 2))
    for G in range(9):
        A("buffer_store_dwordx4 %s, %s, %s, %s offen offset:%d sc1" % (v(20, 4), v(vPst), s(sWS, 4), s(sT), 128 * G))
    prefetch()
    ltop = A.new("atop")
    A.label(ltop)
    T1, T2, T0 = S_, S_ + 4, S_ + 8
    sv = [S_ + i for i in range(10)]
    m1, m2 = 17, 18
    def prep_scores(vals):
        for i in range(0, len(vals), 2):
            rnd2(A, vals[i], vals[i + 1])
        for x in vals:
            A("v_mul_f32 %s, 0x%x, %s" % (v(x), f32bits(128 ** -0.5), v(x)))
        for i in range(0, len(vals), 2):
            rnd2(A, vals[i], vals[i + 1])
    A("s_waitcnt vmcnt(0)")
    for ks in range(4):
        MF(A, v(T1, 4), v(KX + 4 * ks, 4), v(QF + 4 * ks, 4), "0" if ks == 0 else v(T1, 4))
        MF(A, v(T2, 4), v(KX + 16 + 4 * ks, 4), v(QF + 4 * ks, 4), "0" if ks == 0 else v(T2, 4))
    for T in range(8):
        A("v_mov_b32 %s, 0" % v(VM + 2 * T + 1))
    A("s_lshl_b32 %s, %s, 12" % (s(sRowo), s(sSH)))
    A("s_add_u32 %s, %s, %d" % (s(sRowo), s(sRowo), WS_KM))
    prep_scores(sv[:8])
    for i in range(8):
        A("v_cndmask_b32 %s, %s, %s, %s" % (v(sv[i]), v(vNEG), v(sv[i]), s(sCM + 2 * i, 2)))
    A("v_max3_f32 %s, %s, %s, %s" % (v(m1), v(sv[0]), v(sv[1]), v(sv[2])))
    for i in (3, 5):
        A("v_max3_f32 %s, %s, %s, %s" % (v(m1), v(m1), v(sv[i]), v(sv[i + 1])))
    A("v_max_f32 %s, %s, %s" % (v(m1), v(m1), v(sv[7])))
    lc, lf, lok = A.new("can"), A.new("full"), A.new("pubok")
    A("s_cmp_ge_u32 %s, %d" % (s(sSeg), ([int(o[4:]) for o in opt if o.startswith("can=")] + [56])[0]))
    A("s_cbranch_scc1 %s" % lc)
    A("s_lshl_b32 %s, %s, 7" % (s(sT), s(sSH)))
    A("s_add_u32 %s, %s, %d" % (s(sT), s(sT), FL_PUB))
    wait_flags(A, None, s(sT))
    A("s_branch %s" % lf)
    A.label(lc)
    A("buffer_load_dword %s, off, %s, %s offset:4092 sc1" % (v(vTmp), s(sWS, 4), s(sRowo)))
    A("s_waitcnt vmcnt(0)")
    A("v_cmp_eq_u32 vcc, -1, %s" % v(vTmp))
    A("s_cbranch_vccz %s" % lf)
    A("s_sleep 1")
    A("s_sub_u32 %s, %s, 1" % (s(sBud), s(sBud)))
    A("s_cbranch_scc0 %s" % lc)
    A("s_mov_b32 %s, 0" % s(sBud))
    A.label(lf)
    ts(A)
    fs(A, 0)
    A.label(lf + "_r")
    for ks in range(4):
        A("buffer_load_dwordx4 %s, %s, %s, %s offen offset:%d sc1" % (v(KM + 4 * ks, 4), v(vKM), s(sWS, 4), s(sRowo), (ks >> 1) * 2048 + (ks & 1) * 16))
    for T in range(8):
        A("buffer_load_dword %s, %s, %s, %s offen offset:%d sc1" % (v(VM + 2 * T), v(vL4), s(sWS, 4), s(sRowo), (T >> 1) * 1024 + 512 + (T & 1) * 256))
    A("s_waitcnt vmcnt(8)")
    fs(A, 1)
    for ks in range(4):
        MF(A, v(T0, 4), v(KM + 4 * ks, 4), v(QF + 4 * ks, 4), "0" if ks == 0 else v(T0, 4))
        for h in range(2):
            r = KM + 4 * ks + 2 * h
            if ks == 0 and h == 0:
                A("v_max_u32 %s, %s, %s" % (v(vTmp), v(r), v(r + 1)))
            else:
                A("v_max3_u32 %s, %s, %s, %s" % (v(vTmp), v(vTmp), v(r), v(r + 1)))
    A("s_waitcnt vmcnt(0)")
    for T in range(0, 8, 2):
        A("v_max3_u32 %s, %s, %s, %s" % (v(vTmp), v(vTmp), v(VM + 2 * T), v(VM + 2 * T + 2)))
    A("v_cmp_eq_u32 vcc, -1, %s" % v(vTmp))
    A("s_cbranch_vccz %s" % lok)
    A("s_sub_u32 %s, %s, 1" % (s(sBud), s(sBud)))
    A("s_cbranch_scc0 %s_r" % lf)
    A("s_mov_b32 %s, 0" % s(sBud))
    A.label(lok)
    prep_scores(sv[8:])
    A("v_max3_f32 %s, %s, %s, %s" % (v(m1), v(m1), v(sv[8]), v(sv[9])))
    def xl(op):
        for sw in ("v_permlane32_swap_b32", "v_permlane16_swap_b32"):
            A("v_mov_b32 %s, %s" % (v(m2), v(m1)))
            A("s_nop 1")
            A("%s %s, %s" % (sw, v(m1), v(m2)))
            A("%s %s, %s, %s" % (op, v(m1), v(m1), v(m2)))
    xl("v_max_f32")
    for x in sv:
        A("v_sub_f32 %s, %s, %s" % (v(x), v(x), v(m1)))
    for x in sv:
        A("v_mul_f32 %s, 0x%x, %s" % (v(x), f32bits(math.log2(math.e)), v(x)))
    for x in sv:
        A("v_exp_f32 %s, %s" % (v(x), v(x)))
    A("v_add_f32 %s, %s, %s" % (v(m1), v(sv[0]), v(sv[1])))
    for x in sv[2:]:
        A("v_add_f32 %s, %s, %s" % (v(m1), v(m1), v(x)))
    xl("v_add_f32")
    A("v_rcp_f32 %s, %s" % (v(m1), v(m1)))
    A("s_nop 0")
    for x in sv:
        A("v_mul_f32 %s, %s, %s" % (v(x), v(x), v(m1)))
    for i in range(4):
        A("v_cvt_pk_bf16_f32 %s, %s, %s" % (v(S_ + i), v(sv[2 * i]), v(sv[2 * i + 1])))
    A("v_cvt_pk_bf16_f32 %s, %s, %s" % (v(T0), v(T0), v(T0 + 1)))
    A("v_mov_b32 %s, 0" % v(T0 + 1))
    A("s_nop 1")
    A.lds = []
    def opack(c):
        b = OA + 8 * c
        for i in range(4):
            A("v_cvt_pk_bf16_f32 %s, %s, %s" % (v(b + i), v(b + 2 * i), v(b + 2 * i + 1)))
        A.ds("ds_write_b128 %s, %s offset:%d" % (v(vOwr), v(b, 4), L_OT + 1024 * c))
    for c in range(4):
        for T in (2 * c, 2 * c + 1):
            MF(A, v(OA + 4 * T, 4), v(VX + 4 * T, 4), v(S_, 4), "0")
        for T in (2 * c, 2 * c + 1):
            A("v_mfma_f32_16x16x16_bf16 %s, %s, %s, %s" % (v(OA + 4 * T, 4), v(VM + 2 * T, 2), v(T0, 2), v(OA + 4 * T, 4)))
        if c >= 2:
            opack(c - 2)
    opack(2)
    opack(3)
    fs(A, 2)
    A("s_mul_i32 %s, %s, %d" % (s(sPAo), s(sSeg), PA_SEG))
    A("s_add_u32 %s, %s, %d" % (s(sPAo), s(sPAo), WS_PA))
    A.wait_ds()
    A("s_barrier")
    fs(A, 3)
    OFR, WA, TB = 144, 20, 44
    for n in range(16):
        A.ds("ds_read_b128 %s, %s offset:%d" % (v(OFR + 4 * n, 4), v(vL16), L_OT + (n & 1) * 8192 + (n >> 1) * 1024), ('o', n))
    lnp = A.new("nopf")
    A("s_add_u32 %s, %s, 128" % (s(sSH), s(sSH)))
    def epi(G, tt):
        b = WA + 8 * (G % 3) + 4 * tt
        A("v_cvt_pk_bf16_f32 %s, %s, %s" % (v(b), v(b), v(b + 1)))
        A("v_cvt_pk_bf16_f32 %s, %s, %s" % (v(b + 1), v(b + 2), v(b + 3)))
    def epw(G, tt):
        A.ds("ds_write_b64 %s, %s offset:%d" % (v(vTw), v(WA + 8 * (G % 3) + 4 * tt, 2), tt * 16 * PSTR + 128 * G), ('w', G))
    def lrd(G):
        A.ds("ds_read_b128 %s, %s offset:%d" % (v(TB + 4 * (G & 1), 4), v(vTrd), 128 * G), ('t', G))
    def lst(G):
        A.wait_ds(('t', G))
        A("buffer_store_dwordx4 %s, %s, %s, %s offen offset:%d sc1" % (v(TB + 4 * (G & 1), 4), v(vPst), s(sWS, 4), s(sPAo), 128 * G))
    for G in range(9):
        for n in range(16):
            K, tt = n >> 1, n & 1
            if G == 0:
                A.wait_ds(('o', n))
            d = v(WA + 8 * (G % 3) + 4 * tt, 4)
            MF(A, d, R(wo(G, K), 4), v(OFR + 4 * n, 4), "0" if K == 0 else d)
            if G >= 1:
                if n == 5 and G >= 2:
                    lst(G - 2)
                if n == 7:
                    epi(G - 1, 0)
                if n == 8:
                    epw(G - 1, 0)
                    epi(G - 1, 1)
                if n == 9:
                    epw(G - 1, 1)
                if n == 15:
                    A.wait_ds(('w', G - 1))
                    A("s_barrier")
                    lrd(G - 1)
        if G == 0:
            A("s_cmp_ge_u32 %s, 2048" % s(sSH))
            A("s_cbranch_scc1 %s" % lnp)
            prefetch()
            A.label(lnp)
    fs(A, 4)
    A("s_nop 3")
    epi(8, 0)
    epi(8, 1)
    epw(8, 0)
    epw(8, 1)
    lst(7)
    A.wait_ds()
    A("s_barrier")
    lrd(8)
    lst(8)
    fs(A, 6)
    A("s_waitcnt vmcnt(0)")
    A("s_barrier")
    fs(A, 7)
    A("s_lshl_b32 %s, %s, 8" % (s(sT), s(sSeg)))
    A("s_add_u32 %s, %s, %d" % (s(sT), s(sT), FL_PA))
    arrive(A, s(sT), 16)
    fs(A, 8)
    ts(A)
    A("s_add_u32 %s, %s, 4" % (s(sSeg), s(sSeg)))
    A("s_cmp_lt_u32 %s, 64" % s(sSeg))
    A("s_cbranch_scc1 %s" % ltop)
    ts_dump(A, 1)

def emit_roleB(A, vRow, vRow2, sValid, opt):
    A.c("=========== role B: reduce + residual + LN2, one row per wave ===========")
    TS['reg'] = 19
    GA, SB, CB = 20, 32, 44
    SEL0, SEL1 = 56, 60
    vPld = 15
    load_mod(A, GA, 2, vRow, vRow2, 17, 18)
    load_mod(A, SB, 3, vRow, vRow2, 17, 18)
    load_mod(A, CB, 4, vRow, vRow2, 17, 18)
    make_sel(A, SEL0, 0, vTmp)
    make_sel(A, SEL1, 1, vTmp)
    A("v_lshrrev_b32 %s, 3, %s" % (v(17), v(vLane)))
    A("v_and_b32 %s, 7, %s" % (v(18), v(vLane)))
    A("v_lshlrev_b32 %s, 4, %s" % (v(18), v(18)))
    A("v_mul_u32_u24 %s, 1152, %s" % (v(vPld), v(17)))
    A("v_add_u32 %s, %s, %s" % (v(vPld), v(vPld), v(18)))
    A("s_waitcnt vmcnt(0)")
    one_plus(A, CB)
    sRow, sRowo = sA0 + 5, sA0 + 3
    A("s_sub_u32 %s, %s, 64" % (s(sRow), s(sWid)))
    A("s_lshl_b32 %s, %s, 1" % (s(sRow), s(sRow)))
    A("s_and_b32 %s, %s, 1" % (s(sT), s(sW)))
    A("s_add_u32 %s, %s, %s" % (s(sRow), s(sRow), s(sT)))
    A("s_lshr_b32 %s, %s, 1" % (s(sSeg), s(sW)))
    A("v_and_b32 %s, 15, %s" % (v(vFl), v(vLane)))
    A("v_lshlrev_b32 %s, 2, %s" % (v(vFl), v(vFl)))
    for i in range(6):
        A("v_mov_b32 %s, -1" % v(64 + i))
    for k in range(2):
        A("s_add_u32 %s, %s, %d" % (s(sT), s(sSeg), 60 + 2 * k))
        A("s_lshl_b32 %s, %s, 5" % (s(sT), s(sT)))
        A("s_add_u32 %s, %s, %s" % (s(sT), s(sT), s(sRow)))
        A("s_mul_i32 %s, %s, 1152" % (s(sT), s(sT)))
        A("s_add_u32 %s, %s, %d" % (s(sT), s(sT), WS_H2))
        row_io(A, "store", 64, vRow, vRow2, sWS, s(sT), " sc1")
        A("s_add_u32 %s, %s, %d" % (s(sT), s(sT), WS_X1 - WS_H2))
        row_io(A, "store", 64, vRow, vRow2, sWS, s(sT), " sc1")
    A("v_and_b32 %s, 15, %s" % (v(vFl), v(vLane)))
    A("v_mul_u32_u24 %s, 1152, %s" % (v(vFl), v(vFl)))
    ltop = A.new("btop")
    A.label(ltop)
    A("s_lshl_b32 %s, %s, 5" % (s(sT), s(sSeg)))
    A("s_add_u32 %s, %s, %s" % (s(sA0 + 2), s(sT), s(sRow)))
    A("s_mul_i32 %s, %s, 1152" % (s(sRowo), s(sA0 + 2)))
    XR, RD, XF, DD = 216, 176, 196, 144
    row_io(A, "load", XR, vRow, vRow2, sXS, s(sRowo))
    A("s_lshl_b32 %s, %s, 8" % (s(sT), s(sSeg)))
    A("s_add_u32 %s, %s, %d" % (s(sT), s(sT), FL_PA))
    lcan, lgo, lre = A.new("bcan"), A.new("bgo"), A.new("bre")
    A("s_mul_i32 %s, %s, 18432" % (s(sA0), s(sA0 + 2)))
    A("s_add_u32 %s, %s, %d" % (s(sA0), s(sA0), WS_PA))
    A("s_add_u32 %s, %s, 9216" % (s(sA0 + 1), s(sA0)))
    A("s_cmp_ge_u32 %s, 60" % s(sSeg))
    A("s_cbranch_scc1 %s" % lcan)
    wait_ready(A, s(sT), 16)
    A("s_branch %s" % lgo)
    A.label(lcan)
    canary(A, s(sA0), imm=1148 - 256, voff=vFl)
    A.label(lgo)
    ts(A)
    A.label(lre)
    LD = 64
    A.vm = []
    for i in range(9):
        for h in range(2):
            A.vmem("buffer_load_dwordx4 %s, %s, %s, %s offen offset:%d sc1" % (v(LD + 8 * i + 4 * h, 4), v(vPld), s(sWS, 4), s(sA0 + h), 128 * i), ('p', i))
    for i in range(9):
        A.wait_vm(('p', i))
        d = v(RD + 4 * (i >> 1), 4)
        sel = v(SEL1 if i & 1 else SEL0, 4)
        MF(A, d, sel, v(LD + 8 * i, 4), "0" if not (i & 1) else d)
        maxchain(A, range(LD + 8 * i, LD + 8 * i + 4), i == 0)
        MF(A, d, sel, v(LD + 8 * i + 4, 4), d)
        maxchain(A, range(LD + 8 * i + 4, LD + 8 * i + 8), False)
    retry_if_sentinel(A, lre)
    for i in range(4):
        A("v_mov_b32 %s, 0" % v(XF + 8 + i))
    A("s_nop 3")
    for T in range(5):
        for jj in range(4):
            A("v_add_f32_dpp %s, %s, %s row_ror:8 row_mask:0xf bank_mask:0x%x" % (v(XF + 4 * (T >> 1) + jj), v(RD + 4 * T + jj), v(RD + 4 * T + jj), 0xc if T & 1 else 0x3))
    for i in range(0, 12, 2):
        rnd2(A, XF + i, XF + i + 1)
    for i in range(12):
        A("v_mul_f32 %s, %s, %s" % (v(XF + i), v(XF + i), v(GA + i)))
    for i in range(0, 12, 2):
        rnd2(A, XF + i, XF + i + 1)
    for i in range(6):
        unpack(A, DD, DD + 1, XR + i)
        A("v_add_f32 %s, %s, %s" % (v(XF + 2 * i), v(XF + 2 * i), v(DD)))
        A("v_add_f32 %s, %s, %s" % (v(XF + 2 * i + 1), v(XF + 2 * i + 1), v(DD + 1)))
        A("v_cvt_pk_bf16_f32 %s, %s, %s" % (v(XR + i), v(XF + 2 * i), v(XF + 2 * i + 1)))
        unpack(A, XF + 2 * i, XF + 2 * i + 1, XR + i)
    A("s_add_u32 %s, %s, %d" % (s(sT), s(sRowo), WS_X1))
    row_io(A, "store", XR, vRow, vRow2, sWS, s(sT), " sc1")
    ln_stats(A, XF, DD, sValid, 160, 161, 162)
    ln_apply(A, XF, 160, 161, CB, SB, 164)
    A("s_add_u32 %s, %s, %d" % (s(sT), s(sRowo), WS_H2))
    row_io(A, "store", 164, vRow, vRow2, sWS, s(sT), " sc1")
    A("s_waitcnt vmcnt(0)")
    A("s_lshl_b32 %s, %s, 8" % (s(sT), s(sSeg)))
    A("s_add_u32 %s, %s, %d" % (s(sT), s(sT), FL_H2))
    arrive(A, s(sT), 32, wave0_only=False)
    ts(A)
    A("s_add_u32 %s, %s, 2" % (s(sSeg), s(sSeg)))
    A("s_cmp_lt_u32 %s, 64" % s(sSeg))
    A("s_cbranch_scc1 %s" % ltop)
    ts_dump(A, 1)

def emit_roleC(A, xsetup, wide_chunks, opt):
    A.c("=========== role C: gate/up + down partial + output ===========")
    A("s_sub_u32 %s, %s, 80" % (s(sT), s(sWid)))
    A("s_lshr_b32 %s, %s, 2" % (s(sSl), s(sT)))
    A("s_and_b32 %s, %s, 3" % (s(sRep), s(sT)))
    build_srd(A, sW1, 64, 5308416)
    build_srd(A, sW2, 72, 5308416)
    build_srd(A, sW3, 80, 5308416)
    build_srd(A, sWO, 104, 2359296)
    vOffW, vTr, vAd, vOffD, vTrD = 9, 10, 11, 12, 13
    A("s_lshl_b32 %s, %s, 8" % (s(sT + 1), s(sSl)))
    wide_off(A, vOffW, vTmp, 9216, s(sT + 1))
    A("s_lshl_b32 %s, %s, 2" % (s(sT + 1), s(sW)))
    wide_tr(A, vTr, vTmp, s(sT + 1), 1)
    A("s_mul_i32 %s, %s, 147456" % (s(sT + 1), s(sSl)))
    tall_off(A, vOffD, vTmp, s(sT + 1))
    tall_tr(A, vTrD, 3)
    W0 = 80
    def wg(t, ks):
        return W0 + 4 * (4 * ks + t)
    def wd(G, ks):
        return W0 + 288 + 4 * (4 * G + ks)
    chunks = wide_chunks((sW1, sW2), 9216, wg, vOffW, vTr)
    for G in range(9):
        def consume(base, G=G):
            A("v_add_u32 %s, %d, %s" % (v(vAd), base, v(vTrD)))
            for ks in range(4):
                tr2(A, wd(G, ks), vAd, 32 * ks * 128, (32 * ks + 4) * 128)
        chunks.append((sW3, vOffD, [8 * j * 1152 + 128 * G for j in range(4)], consume))
    A.vm, A.lds = ['old'] * 2, []
    stage(A, chunks, depth=TS['d2'])
    vXo = 9
    sSrc, sM0x = sA0, sA0 + 1
    vXa = 7
    xsetup(vXa)
    vHw, vRl, vOo = 6, 2, 3
    LAND, ACC, PK = 10, 26, 62
    L_HH = 40960
    A("s_lshl_b32 %s, %s, 10" % (s(sT), s(sW)))
    A("s_add_u32 %s, %s, %d" % (s(sT), s(sT), L_HH))
    A("v_add_u32 %s, %s, %s" % (v(vHw), s(sT), v(vL16)))
    A("v_and_b32 %s, 15, %s" % (v(vTmp), v(vLane)))
    A("v_lshlrev_b32 %s, 4, %s" % (v(vTmp), v(vTmp)))
    A("v_lshl_add_u32 %s, %s, 10, %s" % (v(vRl), v(vG), v(vTmp)))
    A("s_lshl_b32 %s, %s, 8" % (s(sT), s(sW)))
    A("v_add_u32 %s, %s, %s" % (v(vRl), s(sT), v(vRl)))
    A("v_mul_u32_u24 %s, 1152, %s" % (v(vOo), v(vLane)))
    A("s_lshl_b32 %s, %s, 5" % (s(sT), s(sSl)))
    A("s_lshl_b32 %s, %s, 3" % (s(sT + 1), s(sW)))
    A("s_add_u32 %s, %s, %s" % (s(sT), s(sT), s(sT + 1)))
    A("v_add_u32 %s, %s, %s" % (v(vOo), s(sT), v(vOo)))
    A("v_mov_b32 %s, 0x%x" % (v(vTmp), OOB))
    A("v_cmp_gt_u32 vcc, 32, %s" % v(vLane))
    A("s_nop 1")
    A("v_cndmask_b32 %s, %s, %s, vcc" % (v(vOo), v(vTmp), v(vOo)))
    A("s_lshl_b32 %s, %s, 1" % (s(sT), s(sT)))
    A("s_add_u32 %s, %s, %d" % (s(sT), s(sT), WS_MOD + 5 * 2304))
    A("buffer_load_dwordx4 %s, off, %s, %s sc1" % (v(ACC, 4), s(sWS, 4), s(sT)))
    A("s_waitcnt vmcnt(0)")
    sGB = sA0 + 8
    for i in range(4):
        A("v_readfirstlane_b32 %s, %s" % (s(sGB + i), v(ACC + i)))
    A("s_mov_b32 %s, %s" % (s(sSeg), s(sRep)))
    sPCo, sFl = sA0 + 2, sA0 + 3
    TS['reg'] = 4
    sPrev = sA0 + 5
    A("s_add_u32 %s, %s, 60" % (s(sT), s(sRep)))
    A("s_mul_i32 %s, %s, %d" % (s(sT), s(sT), PC_SEG))
    A("s_mul_i32 %s, %s, 36" % (s(sT + 1), s(sW)))
    A("s_add_u32 %s, %s, %s" % (s(sT + 1), s(sT + 1), s(sSl)))
    A("s_lshl_b32 %s, %s, 10" % (s(sT + 1), s(sT + 1)))
    A("s_add_u32 %s, %s, %s" % (s(sT), s(sT), s(sT + 1)))
    A("s_add_u32 %s, %s, %d" % (s(sT), s(sT), WS_PC))
    A("v_mov_b64 %s, -1" % v(ACC, 2))
    A("v_mov_b64 %s, -1" % v(ACC + 2, 2))
    for G in range(9):
        A("buffer_store_dwordx4 %s, %s, %s, %s offen sc1" % (v(ACC, 4), v(vL16), s(sWS, 4), s(sT)))
        A("s_add_u32 %s, %s, %d" % (s(sT), s(sT), 4 * 36 * 1024))
    def reduce_out(last=False):
        A("s_lshl_b32 %s, %s, 8" % (s(sFl), s(sPrev)))
        A("s_mul_i32 %s, %s, 36864" % (s(sA0 + 6), s(sPrev)))
        make_sel(A, LAND, 0, vTmp)
        if not last:
            A("s_add_u32 %s, %s, %d" % (s(sFl), s(sFl), FL_PC))
            wait_ready(A, s(sFl), 36)
        ts(A)
        lre = A.new("cre")
        A.label(lre)
        A("s_add_u32 %s, %s, %d" % (s(sT), s(sA0 + 6), WS_X1))
        A("buffer_load_dwordx2 %s, %s, %s, %s offen sc1" % (v(LAND + 8, 2), v(vOo), s(sWS, 4), s(sT)))
        A("s_mul_i32 %s, %s, %d" % (s(sT), s(sSl), 36 * 1024))
        A("s_add_u32 %s, %s, %s" % (s(sT), s(sT), s(sPCo)))
        A.vm = []
        for i in range(9):
            A.vmem("buffer_load_dwordx4 %s, %s, %s, %s offen sc1" % (v(ACC + 4 * i, 4), v(vRl), s(sWS, 4), s(sT)), ('p', i))
            if i < 8:
                A("s_add_u32 %s, %s, 4096" % (s(sT), s(sT)))
        D = LAND + 4
        for i in range(9):
            A.wait_vm(('p', i))
            MF(A, v(D, 4), v(LAND, 4), v(ACC + 4 * i, 4), "0" if i == 0 else v(D, 4))
            if last:
                maxchain(A, range(ACC + 4 * i, ACC + 4 * i + 4), i == 0)
        if last:
            maxchain(A, (LAND + 8, LAND + 9), False)
            retry_if_sentinel(A, lre)
    def reduce_fin():
        D = LAND + 4
        unpack(A, LAND + 10, LAND + 11, LAND + 8)
        unpack(A, LAND + 12, LAND + 13, LAND + 9)
        A("s_nop 3")
        rnd2(A, D, D + 1)
        rnd2(A, D + 2, D + 3)
        for i in range(4):
            A("v_mul_f32 %s, %s, %s" % (v(D + i), s(sGB + i), v(D + i)))
        rnd2(A, D, D + 1)
        rnd2(A, D + 2, D + 3)
        for i in range(4):
            A("v_add_f32 %s, %s, %s" % (v(D + i), v(D + i), v(LAND + 10 + i)))
        A("v_cvt_pk_bf16_f32 %s, %s, %s" % (v(D), v(D), v(D + 1)))
        A("v_cvt_pk_bf16_f32 %s, %s, %s" % (v(D + 1), v(D + 2), v(D + 3)))
        A("buffer_store_dwordx2 %s, %s, %s, %s offen%s" % (v(D, 2), v(vOo), s(sWO, 4), s(sA0 + 6), " sc1" if "outsc1" in opt else " nt" if "outnt" in opt else ""))
        ts(A)
    ltop, lfirst = A.new("ctop"), A.new("cfirst")
    def h2wait():
        A("s_lshl_b32 %s, %s, 8" % (s(sT), s(sSeg)))
        A("s_add_u32 %s, %s, %d" % (s(sT), s(sT), FL_H2))
        A("s_mul_i32 %s, %s, 36864" % (s(sSrc), s(sSeg)))
        A("s_add_u32 %s, %s, %d" % (s(sSrc), s(sSrc), WS_H2))
        lcan, lj, lre = A.new("ccan"), A.new("cj"), A.new("cxre")
        A("s_cmp_ge_u32 %s, 60" % s(sSeg))
        A("s_cbranch_scc1 %s" % lcan)
        wait_ready(A, s(sT), 32)
        ts(A)
        fs(A, 0)
        x_dma(A, vXo, sSrc, sM0x)
        A("s_branch %s" % lj)
        A.label(lcan)
        canary(A, s(sSrc), imm=1024, voff=vXo)
        ts(A)
        fs(A, 0)
        A.label(lre)
        for i in range(9):
            A("buffer_load_dwordx4 %s, %s, %s, %s offen offset:%d sc1" % (v(ACC + 4 * i, 4), v(vXo), s(sWS, 4), s(sSrc), 128 * i))
        A("v_add_u32 %s, %s, %s" % (v(LAND), s(sM0x), v(vL16)))
        for i in range(9):
            A("s_waitcnt vmcnt(%d)" % (8 - i))
            A("ds_write_b128 %s, %s offset:%d" % (v(LAND), v(ACC + 4 * i, 4), 1024 * i))
            maxchain(A, range(ACC + 4 * i, ACC + 4 * i + 4), i == 0)
        retry_if_sentinel(A, lre)
        A("s_waitcnt lgkmcnt(0)")
        A.label(lj)
    A.label(ltop)
    h2wait()
    fs(A, 1)
    A("s_waitcnt vmcnt(0)")
    A("s_barrier")
    fs(A, 2)
    A.lds = []
    GAC = [ACC, ACC + 16]
    HP = ACC + 32
    fill = []
    def F(n):
        for _ in range(n):
            if fill:
                fill.pop(0)()
    def gu_epi(tt):
        for t in range(2):
            g_, u_ = GAC[tt] + 4 * t, GAC[tt] + 8 + 4 * t
            for jj in range(4):
                fill.append(lambda a=g_ + jj, b=u_ + jj: A("v_cvt_pk_bf16_f32 %s, %s, %s" % (v(b), v(a), v(b))))
                fill.append(lambda a=g_ + jj, b=u_ + jj: A("v_lshlrev_b32 %s, 16, %s" % (v(a), v(b))))
                fill.append(lambda b=u_ + jj: A("v_and_b32 %s, 0xffff0000, %s" % (v(b), v(b))))
                fill.append(lambda a=g_ + jj, b=u_ + jj: A("v_mul_f32 %s, %s, %s" % (v(a), v(a), v(b))))
            fill.append(lambda t=t, g_=g_: A("v_cvt_pk_bf16_f32 %s, %s, %s" % (v(HP + 2 * t), v(g_), v(g_ + 1))))
            fill.append(lambda t=t, g_=g_: A("v_cvt_pk_bf16_f32 %s, %s, %s" % (v(HP + 2 * t + 1), v(g_ + 2), v(g_ + 3))))
        fill.append(lambda: A.ds("ds_write_b128 %s, %s offset:%d" % (v(vHw), v(HP, 4), 4096 * tt), ('hw', tt)))
    def xrd(n):
        tt, ks = n // 18, n % 18
        A.ds("ds_read_b128 %s, %s offset:%d" % (v(LAND + 4 * (n % 4), 4), v(vXa + (ks & 1)), 18432 * tt + (ks >> 1) * 1024), ('x', n))
    def hrd(tt, ks):
        A.ds("ds_read_b128 %s, %s offset:%d" % (v(LAND + 4 * ks, 4), v(vL16), L_HH + 4096 * tt + 1024 * ks), ('h', tt, ks))
    for n in range(3):
        xrd(n)
    for n in range(36):
        tt, ks = n // 18, n % 18
        A.wait_ds(('x', n))
        for t in range(4):
            d = v(GAC[tt] + 4 * t, 4)
            MF(A, d, R(wg(t, ks), 4), v(LAND + 4 * (n % 4), 4), "0" if ks == 0 else d)
            if t == 0 and n + 3 < 36:
                xrd(n + 3)
            elif t == 0:
                hrd(0, n - 33)
            else:
                F(2)
        if n == 19:
            gu_epi(0)
        if n == 31:
            assert not fill
            A.wait_ds(('hw', 0))
            A("s_barrier")
    fs(A, 3)
    hrd(0, 3)
    A("s_mul_i32 %s, %s, %d" % (s(sA0 + 4), s(sSeg), PC_SEG))
    A("s_add_u32 %s, %s, %d" % (s(sA0 + 4), s(sA0 + 4), WS_PC))
    A("s_mul_i32 %s, %s, 36" % (s(sT), s(sW)))
    A("s_add_u32 %s, %s, %s" % (s(sT), s(sT), s(sSl)))
    A("s_lshl_b32 %s, %s, 10" % (s(sT), s(sT)))
    A("s_add_u32 %s, %s, %s" % (s(sT), s(sT), s(sA0 + 4)))
    DA = lambda G: ACC + 4 * (G % 4)
    def dn_epi(tt, G):
        b = DA(G + 9 * tt)
        if tt == 0:
            fill.append(lambda: A("v_cvt_pk_bf16_f32 %s, %s, %s" % (v(PK + 2 * G), v(b), v(b + 1))))
            fill.append(lambda: A("v_cvt_pk_bf16_f32 %s, %s, %s" % (v(PK + 2 * G + 1), v(b + 2), v(b + 3))))
        else:
            fill.append(lambda: A("v_cvt_pk_bf16_f32 %s, %s, %s" % (v(b + 3), v(b + 2), v(b + 3))))
            fill.append(lambda: A("v_cvt_pk_bf16_f32 %s, %s, %s" % (v(b + 2), v(b), v(b + 1))))
            fill.append(lambda: A("v_mov_b64 %s, %s" % (v(b, 2), v(PK + 2 * G, 2))))
            fill.append(lambda: A("buffer_store_dwordx4 %s, %s, %s, %s offen sc1" % (v(b, 4), v(vL16), s(sWS, 4), s(sT))))
            fill.append(lambda: A("s_add_u32 %s, %s, %d" % (s(sT), s(sT), 4 * 36 * 1024)))
    H1 = GAC[1]
    gu_epi(1)
    gl = list(fill)
    del fill[:]
    for N in range(18):
        tt, G = N // 9, N % 9
        if N >= 2:
            dn_epi((N - 2) // 9, (N - 2) % 9)
            pend = list(fill)
            del fill[:]
        else:
            pend = []
        for ks in range(4):
            if G == 0:
                A.wait_ds(('h', tt, ks))
            d = v(DA(N), 4)
            MF(A, d, R(wd(G, ks), 4), v((LAND if tt == 0 else H1) + 4 * ks, 4), "0" if ks == 0 else d)
            k = 0
            if ks >= 1 or len(pend) > 4:
                while pend and k < 2:
                    pend.pop(0)()
                    k += 1
            while gl and k < 2:
                gl.pop(0)()
                k += 1
            while k < 1:
                A("s_nop 0")
                k += 1
        assert not pend
        if N == 6:
            assert not gl
            A.wait_ds(('hw', 1))
            A("s_barrier")
            for ks in range(4):
                A.ds("ds_read_b128 %s, %s offset:%d" % (v(H1 + 4 * ks, 4), v(vL16), L_HH + 4096 + 1024 * ks), ('h', 1, ks))
    dn_epi(1, 7)
    F(len(fill))
    A("s_nop 1")
    dn_epi(1, 8)
    F(len(fill))
    fs(A, 5)
    llast = A.new("clast")
    A("s_cmp_ge_u32 %s, 60" % s(sSeg))
    A("s_cbranch_scc1 %s" % llast)
    A("s_waitcnt vmcnt(0)")
    A("s_barrier")
    fs(A, 6)
    A("s_lshl_b32 %s, %s, 8" % (s(sT), s(sSeg)))
    A("s_add_u32 %s, %s, %d" % (s(sT), s(sT), FL_PC))
    arrive(A, s(sT), 36)
    fs(A, 7)
    ts(A)
    A("s_cmp_lt_u32 %s, 4" % s(sSeg))
    A("s_cbranch_scc1 %s" % lfirst)
    reduce_out()
    reduce_fin()
    A.label(lfirst)
    A("s_mov_b32 %s, %s" % (s(sPrev), s(sSeg)))
    A("s_mov_b32 %s, %s" % (s(sPCo), s(sA0 + 4)))
    A("s_add_u32 %s, %s, 4" % (s(sSeg), s(sSeg)))
    A("s_branch %s" % ltop)
    A.label(llast)
    ts(A)
    reduce_out()
    reduce_fin()
    A("s_mov_b32 %s, %s" % (s(sPrev), s(sSeg)))
    A("s_mov_b32 %s, %s" % (s(sPCo), s(sA0 + 4)))
    reduce_out(last=True)
    reduce_fin()
    if "dbgout" in opt:
        A("s_memrealtime s[96:97]")
        A("s_waitcnt lgkmcnt(0)")
        A("s_mov_b64 exec, 1")
        A("v_mov_b32 %s, s96" % v(vTmp))
        A("buffer_atomic_umax %s, off, %s, 0 offset:24" % (v(vTmp), s(sDBG, 4)))
    ts_dump(A, 1)
```

```python
from asmlib import *
from layout import *
import struct, math

L_MEM, L_KX, L_F, L_O, L_SCR, L_W = 0, 9216, 17408, 21632, 23680, 24576
FSTR = 1056
L_FLAG = L_F + 1024
L_WSTRIDE = 34816
vL16, vIdx, vWL, vFw, vOw, vPst, vRst, vSelV, vT0, vT1, vT2, vTmp = range(12)
VACC, QK, RING, LND = 12, 20, 36, 48
WREG0 = 72
KVSTEP = 32 * 16384
NSPILL = 17
sWS, sWQ, sWK, sWV, sWO, sM0, sDBG = 4, 8, 12, 16, 20, 24, 28
sCU, sW, sWC, sUnit, sStep, sBud = 32, 33, 34, 35, 36, 37
sP0, sP1, sP2, sRd, sX0, sX1, sX2, sKV, sKM, sPh, sWF, sC, sVX, sKXm = range(38, 52)
sL2a, sKVv, sKVt = 96, 97, 98
sPt = 8
sTagM = 100
sFlg, sFlgN, sOne, sKF, sRdy, sRdE = 17, 18, 20, 19, 22, 24
sSel = 52
sT = 60
sStamp = 64

def f32bits(x):
    return struct.unpack("<I", struct.pack("<f", x))[0]

WO_ORDER = [0, 1, 2, 3, 4, 5, 6, 7, 8]
QK_CHAIN = [[('qk', 0, 1), ('qk', 2, 0), ('qk', 4, 0), ('qk', 6, 0), ('qk', 7, 3)],
            [('qk', 0, 2), ('qk', 2, 1), ('qk', 4, 1), ('qk', 6, 1)],
            [('qk', 0, 0), ('v', 8, 1)]]
def GOF(j, w):
    if j == 8:
        return 8
    o = 2 * (1 - (w >> 1))
    return (j & 4) + (w, w ^ 1, o, o + 1)[j & 3]
WO_CHAIN = [[('o', 0), ('o', 8), ('o', 16)], [('o', 1), ('o', 9), ('o', 17)]]
L2KEY = ('v', 8, 1)
def placement():
    spill, regs, slot, nxt = {}, {}, {}, {}
    nonreg = []
    for chains in (QK_CHAIN, WO_CHAIN):
        for si, ch in enumerate(chains):
            for i, k in enumerate(ch):
                slot[k] = si
                nxt[k] = ch[i + 1] if i + 1 < len(ch) else None
                if k != L2KEY:
                    nonreg.append(k)
    nonreg.append(L2KEY)
    assert len(nonreg) == NSPILL
    for i, k in enumerate(nonreg):
        spill[k] = i
    allk = [('qk', j, t) for j in range(9) for t in range(4)] + [('v', j, t) for j in range(9) for t in range(2)] + \
           [('o', n) for n in range(18)]
    r = WREG0
    for k in allk:
        if k not in spill:
            regs[k] = r
            r += 8
    assert r == 512, r
    return spill, regs, slot, nxt
SPILL, WREGS, SLOT, NXT = placement()

def emit_team(A, stamps=False, nsteps=64, sc="", hooks=None, opt=()):
    nst = [0]
    def stamp():
        if stamps:
            if "rt" in opt and nst[0] in (2, 4):
                pass
            else:
                A("%s %s" % ("s_memrealtime" if "rt" in opt else "s_memtime", s(sStamp + 2 * nst[0], 2)))
            nst[0] += 1
    SC = " sc1"
    lane = 71
    t1, t2, t3, t4, t5, t6 = 64, 65, 66, 67, 68, 69
    vOffW, vOffO, vTrQK, vTrV, vTrO, vAd, vTr8, vAd2 = 56, 57, 58, 59, 60, 61, 62, 63
    vColQK, vColV = 54, 55
    A.c("=========== team setup ===========")
    if "tt" in opt:
        A("s_memtime s[90:91]")
        A("s_memrealtime s[64:65]")
        A("s_mov_b32 s87, 0")
        A("s_mov_b32 s88, 0")
        A("s_mov_b32 s89, 0")
    A("v_mov_b32 %s, v0" % v(lane))
    A("v_lshrrev_b32 %s, 4, %s" % (v(t2), v(lane)))
    A("v_lshlrev_b32 %s, 2, %s" % (v(t1), v(t2)))
    A("v_sub_u32 %s, %s, %s" % (v(t1), v(lane), v(t1)))
    A("v_and_b32 %s, 15, %s" % (v(t1), v(t1)))
    A("v_lshlrev_b32 %s, 4, %s" % (v(t1), v(t1)))
    A("v_lshl_add_u32 %s, %s, 13, %s" % (v(vOffW), v(t2), v(t1)))
    A("s_lshl_b32 %s, %s, 8" % (s(sT + 2), s(sCU)))
    A("s_lshl_b32 %s, %s, 17" % (s(sT + 3), s(sW)))
    A("s_add_u32 %s, %s, %s" % (s(sT + 2), s(sT + 2), s(sT + 3)))
    A("v_add_u32 %s, %s, %s" % (v(vOffW), s(sT + 2), v(vOffW)))
    A("v_lshrrev_b32 %s, 3, %s" % (v(t1), v(lane)))
    A("v_mul_u32_u24 %s, 1152, %s" % (v(vOffO), v(t1)))
    A("v_and_b32 %s, 7, %s" % (v(t1), v(lane)))
    A("v_lshl_add_u32 %s, %s, 4, %s" % (v(vOffO), v(t1), v(vOffO)))
    A("s_mul_i32 %s, %s, 147456" % (s(sT + 2), s(sCU)))
    A("s_mul_i32 %s, %s, %d" % (s(sT + 3), s(sW), 32 * 1152))
    A("s_add_u32 %s, %s, %s" % (s(sT + 2), s(sT + 2), s(sT + 3)))
    A("v_add_u32 %s, %s, %s" % (v(vOffO), s(sT + 2), v(vOffO)))
    sLW = 99
    RING0 = L_W + 14336
    A("s_mul_i32 %s, %s, %d" % (s(sLW), s(sW), L_WSTRIDE))
    wide = [(m, G) for G in range(9) for m in range(2)] + [(2, G) for G in (4, 5, 6, 7, 8, 0, 1, 2, 3)]
    chunks = []
    for i, x in enumerate(wide):
        chunks.append(x)
        if i % 5 in (1, 3) and len(chunks) - i - 1 < 9:
            chunks.append((3, len(chunks) - i - 1))
    assert len(chunks) == 36 and chunks[-3:] == [(2, 1), (2, 2), (2, 3)] and all(m != 3 for m, G in chunks[31:])
    VLAST = (1, 2, 3)
    NSLOT = 5
    NT = " nt" if "nt" in opt else ""
    TD = ([int(o[3:]) for o in opt if o.startswith("td=")] + [0])[0]
    vTch = 67
    if TD:
        A("v_bfe_u32 %s, %s, 1, 4" % (v(t1), v(lane)))
        A("v_lshlrev_b32 %s, 13, %s" % (v(53), v(t1)))
        A("v_and_b32 %s, 1, %s" % (v(t1), v(lane)))
        A("v_lshl_add_u32 %s, %s, 7, %s" % (v(53), v(t1), v(53)))
        A("s_lshl_b32 %s, %s, 8" % (s(sT + 2), s(sCU)))
        A("s_lshl_b32 %s, %s, 17" % (s(sT + 3), s(sW)))
        A("s_add_u32 %s, %s, %s" % (s(sT + 2), s(sT + 2), s(sT + 3)))
        A("v_add_u32 %s, %s, %s" % (v(11), s(sT + 2), v(53)))
    def touch_chunk(c):
        if not TD or c >= 36 or chunks[c][0] == 3:
            return
        m, G = chunks[c]
        A("s_mov_b32 %s, %d" % (s(sT + 2), 64 * G * 8192))
        A.vmem("buffer_load_dword %s, %s, %s, %s offen" % (v(71), v(11), s((sWQ, sWK, sWV)[m], 4), s(sT + 2)), 't')
    def issue_chunk(c):
        _issue(c)
        if c >= NSLOT - 1:
            if c == NSLOT - 1:
                for k in range(1, TD):
                    touch_chunk(c + k)
            touch_chunk(c + TD)
    def _issue(c):
        m, G = chunks[c]
        slot = c % NSLOT
        for j in range(4):
            A("s_add_u32 m0, %s, %d" % (s(sLW), RING0 + slot * 4096 + j * 1024))
            if m < 3:
                A("s_mov_b32 %s, %d" % (s(sT + 2), (64 * G + 4 * j) * 8192))
                A.vmem("buffer_load_dwordx4 %s, %s, %s offen%s lds" % (v(vOffW), s((sWQ, sWK, sWV)[m], 4), s(sT + 2), NT), ('c', c))
            else:
                A("s_mov_b32 %s, %d" % (s(sT + 2), 8 * j * 1152 + 128 * G))
                A.vmem("buffer_load_dwordx4 %s, %s, %s offen%s lds" % (v(vOffO), s(sWO, 4), s(sT + 2), NT), ('c', c))
    A.vm, A.lds = [], []
    for c in range(NSLOT - 1):
        issue_chunk(c)
    A("s_lshl_b32 %s, %s, 5" % (s(sT), s(sW)))
    A("s_add_u32 %s, %s, %s" % (s(sUnit), s(sT), s(sCU)))
    A("s_cmp_lt_u32 %s, 72" % s(sUnit))
    A("s_cselect_b32 %s, %s, -1" % (s(sUnit), s(sUnit)))
    if "dup" in opt:
        A("s_xor_b32 %s, %s, 16" % (s(sT), s(sCU)))
        A("s_cmp_eq_u32 %s, 3" % s(sW))
        A("s_cselect_b32 %s, %s, %s" % (s(sUnit), s(sT), s(sUnit)))
    A("v_lshlrev_b32 %s, 4, %s" % (v(vL16), v(lane)))
    A("v_and_b32 %s, 1, %s" % (v(t1), v(lane)))
    A("v_mul_u32_u24 %s, 0xaaaa, %s" % (v(t1), v(t1)))
    A("v_add_u32 %s, 0x4444, %s" % (v(vIdx), v(t1)))
    A("s_mul_i32 %s, %s, %d" % (s(sT), s(sW), L_WSTRIDE))
    A("s_add_u32 %s, %s, %d" % (s(sT), s(sT), L_W))
    A("v_add_u32 %s, %s, %s" % (v(vWL), s(sT), v(vL16)))
    A("s_add_u32 %s, %s, 32768" % (s(sVX), s(sT)))
    A("s_lshl_b32 %s, %s, 11" % (s(sKXm), s(sW)))
    A("s_add_u32 %s, %s, %d" % (s(sKXm), s(sKXm), L_KX))
    A("v_lshrrev_b32 %s, 4, %s" % (v(t2), v(lane)))
    A("v_bfe_u32 %s, %s, 2, 2" % (v(t3), v(lane)))
    A("v_and_b32 %s, 3, %s" % (v(t4), v(lane)))
    A("v_and_b32 %s, 1, %s" % (v(t1), v(t3)))
    A("v_mul_u32_u24 %s, %d, %s" % (v(vFw), FSTR, v(t1)))
    A("v_lshrrev_b32 %s, 1, %s" % (v(t1), v(t3)))
    A("v_lshl_add_u32 %s, %s, 8, %s" % (v(vFw), v(t1), v(vFw)))
    A("v_lshl_add_u32 %s, %s, 6, %s" % (v(vFw), v(t2), v(vFw)))
    A("v_lshl_add_u32 %s, %s, 2, %s" % (v(vFw), v(t4), v(vFw)))
    A("s_lshr_b32 %s, %s, 1" % (s(sT), s(sW)))
    A("s_and_b32 %s, %s, 1" % (s(sT + 1), s(sW)))
    A("s_mul_i32 %s, %s, %d" % (s(sT + 2), s(sT), 2 * FSTR))
    A("s_lshl_b32 %s, %s, 9" % (s(sT + 3), s(sT + 1)))
    A("s_add_u32 %s, %s, %s" % (s(sT + 2), s(sT + 2), s(sT + 3)))
    A("s_add_u32 %s, %s, %d" % (s(sT + 2), s(sT + 2), L_F))
    A("v_add_u32 %s, %s, %s" % (v(vFw), s(sT + 2), v(vFw)))
    A("v_and_b32 %s, 1, %s" % (v(t1), v(t4)))
    A("v_lshl_add_u32 %s, %s, 1, %s" % (v(t1), v(t3), v(t1)))
    A("v_lshlrev_b32 %s, 5, %s" % (v(t5), v(t1)))
    A("v_lshl_add_u32 %s, %s, 8, %s" % (v(t5), v(t2), v(t5)))
    A("s_lshl_b32 %s, %s, 10" % (s(sT + 2), s(sT)))
    A("s_lshl_b32 %s, %s, 4" % (s(sT + 3), s(sT + 1)))
    A("s_add_u32 %s, %s, %s" % (s(sT + 2), s(sT + 2), s(sT + 3)))
    A("s_add_u32 %s, %s, %d" % (s(sT + 2), s(sT + 2), L_O))
    A("v_add_u32 %s, %s, %s" % (v(t5), s(sT + 2), v(t5)))
    A("v_lshl_add_u32 %s, %s, 3, %s" % (v(t6), v(t2), v(t1)))
    A("v_lshlrev_b32 %s, 4, %s" % (v(t6), v(t6)))
    A("v_add_u32 %s, %d, %s" % (v(t6), L_SCR, v(t6)))
    A("v_cmp_le_u32 vcc, 2, %s" % v(t4))
    A("s_nop 1")
    A("v_cndmask_b32 %s, %s, %s, vcc" % (v(vOw), v(t6), v(t5)))
    A("v_lshrrev_b32 %s, 5, %s" % (v(t1), v(lane)))
    A("v_lshlrev_b32 %s, 12, %s" % (v(vPst), v(t1)))
    A("v_and_b32 %s, 31, %s" % (v(t1), v(lane)))
    A("v_lshl_add_u32 %s, %s, 2, %s" % (v(vPst), v(t1), v(vPst)))
    A("v_lshlrev_b32 %s, 6, %s" % (v(t5), v(t3)))
    A("v_lshl_add_u32 %s, %s, 3, %s" % (v(t5), v(t4), v(t5)))
    A("v_lshl_add_u32 %s, %s, 5, %s" % (v(t5), v(t2), v(t5)))
    A("s_lshl_b32 %s, %s, 7" % (s(sT + 2), s(sUnit)))
    A("s_and_b32 %s, %s, 0x3fff" % (s(sT + 2), s(sT + 2)))
    A("v_add_u32 %s, %s, %s" % (v(t5), s(sT + 2), v(t5)))
    A("v_and_b32 %s, 0x28, %s" % (v(t1), v(lane)))
    A("v_mov_b32 %s, 0x%x" % (v(t6), OOB))
    A("v_cmp_eq_u32 vcc, 0, %s" % v(t1))
    A("s_nop 1")
    A("v_cndmask_b32 %s, %s, %s, vcc" % (v(vRst), v(t6), v(t5)))
    A("s_mov_b32 %s, 0x11111111" % s(sTagM))
    A("s_mov_b32 %s, 0x11111111" % s(sTagM + 1))
    A("v_and_b32 %s, 1, %s" % (v(t1), v(t3)))
    A("v_lshlrev_b32 %s, 4, %s" % (v(t1), v(t1)))
    A("v_mov_b32 %s, 0x3f80" % v(t5))
    A("v_lshlrev_b32 %s, %s, %s" % (v(vSelV), v(t1), v(t5)))
    for u in range(4):
        m16 = (1 << u) | (1 << (u + 4))
        m32 = m16 | (m16 << 16)
        A("s_mov_b32 %s, 0x%x" % (s(sSel + 2 * u), m32))
        A("s_mov_b32 %s, 0x%x" % (s(sSel + 2 * u + 1), m32))
    A("s_lshl_b32 %s, %s, 10" % (s(sT + 2), s(sW)))
    A("v_add_u32 %s, %s, %s" % (v(vT0), s(sT + 2), v(vL16)))
    A("v_xor_b32 %s, 0x400, %s" % (v(vT1), v(vT0)))
    A("s_and_b32 %s, %s, 0x800" % (s(sT + 2), s(sT + 2)))
    A("s_xor_b32 %s, %s, 0x800" % (s(sT + 2), s(sT + 2)))
    A("v_add_u32 %s, %s, %s" % (v(vT2), s(sT + 2), v(vL16)))
    A("s_mov_b32 %s, 0" % s(sStep))
    A("s_mov_b32 %s, 0" % s(sPh))
    A("s_mov_b32 %s, %d" % (s(sBud), 200000 if "tt" in opt or "stamps" in opt else 2000000))
    A("s_lshl_b32 %s, %s, 7" % (s(sT + 3), s(sCU)))
    A("s_add_u32 %s, %s, %d" % (s(sT + 3), s(sT + 3), WS_PB))
    A("s_lshl_b32 %s, %s, 13" % (s(sT + 2), s(sW)))
    A("s_add_u32 %s, %s, %s" % (s(sP0), s(sT + 2), s(sT + 3)))
    A("s_lshl_b32 %s, %s, 12" % (s(sT + 2), s(sUnit)))
    A("s_add_u32 %s, %s, %d" % (s(sRd), s(sT + 2), WS_PB))
    A("s_cmp_eq_u32 %s, -1" % s(sUnit))
    A("s_cselect_b32 %s, 0x%x, %s" % (s(sRd), OOB, s(sRd)))
    A("s_cselect_b32 %s, 0x%x, 0" % (s(sT + 2), OOB))
    A("v_or_b32 %s, %s, %s" % (v(vRst), s(sT + 2), v(vRst)))
    for i, r in enumerate((sX0, sX1, sX2)):
        A("s_mov_b32 %s, %d" % (s(r), WS_MBX + i * MBX_STRIDE))
    A("s_lshl_b32 %s, %s, 14" % (s(sKV), s(sCU)))
    A("s_lshl_b32 %s, %s, 11" % (s(sT + 2), s(sW)))
    A("s_add_u32 %s, %s, %s" % (s(sKV), s(sKV), s(sT + 2)))
    A("s_add_u32 %s, %s, %d" % (s(sKVv), s(sKV), WS_KV + 8192))
    A("s_lshl_b32 %s, %s, 14" % (s(sKVt), s(sCU)))
    A("s_add_u32 %s, %s, %d" % (s(sKVt), s(sKVt), WS_KV + 1 * KVSTEP))
    A("s_cmp_lt_u32 %s, 3" % s(sW))
    A("s_cselect_b32 %s, 0x%x, %s" % (s(sKVt), OOB, s(sKVt)))
    if WS_KV:
        A("s_add_u32 %s, %s, %d" % (s(sKV), s(sKV), WS_KV))
    A("s_lshl_b32 %s, %s, 12" % (s(sKM), s(sCU)))
    A("s_lshl_b32 %s, %s, 10" % (s(sT + 2), s(sW)))
    A("s_add_u32 %s, %s, %s" % (s(sKM), s(sKM), s(sT + 2)))
    A("s_add_u32 %s, %s, %d" % (s(sKM), s(sKM), WS_KM))
    A("s_lshl_b32 %s, %s, 2" % (s(sT + 2), s(sCU)))
    A("s_add_u32 %s, %s, %s" % (s(sT + 2), s(sT + 2), s(sW)))
    A("s_mul_i32 %s, %s, %d" % (s(sWF), s(sT + 2), 18 * 2048))
    A("s_add_u32 %s, %s, %d" % (s(sWF), s(sWF), WS_WF))
    A("s_add_u32 %s, %s, %d" % (s(sL2a), s(sWF), 16 * 2048))
    A("s_mov_b32 %s, 0x%x" % (s(sC), f32bits(128 ** -0.5 * math.log2(math.e))))

    A("s_lshl_b32 %s, %s, 2" % (s(sT + 2), s(sW)))
    A("v_add_u32 %s, %s, %s" % (v(vColQK), s(sT + 2), v(t4)))
    A("s_lshl_b32 %s, %s, 3" % (s(sT + 2), s(sT)))
    A("s_add_u32 %s, %s, %s" % (s(sT + 2), s(sT + 2), s(sT + 1)))
    A("v_lshl_add_u32 %s, %s, 1, %s" % (v(vColV), v(t4), s(sT + 2)))
    A("v_and_b32 %s, 1, %s" % (v(t5), v(t2)))
    A("v_lshlrev_b32 %s, 2, %s" % (v(t5), v(t5)))
    A("v_lshrrev_b32 %s, 1, %s" % (v(t6), v(t3)))
    A("v_lshl_add_u32 %s, %s, 3, %s" % (v(t5), v(t6), v(t5)))
    A("v_and_b32 %s, 1, %s" % (v(t6), v(t3)))
    A("v_add_u32 %s, %s, %s" % (v(t5), v(t5), v(t6)))
    A("v_lshrrev_b32 %s, 1, %s" % (v(t1), v(t2)))
    A("v_lshl_add_u32 %s, %s, 4, %s" % (v(vTrO), v(t1), v(t5)))
    A("v_lshlrev_b32 %s, 7, %s" % (v(vTrO), v(vTrO)))
    A("v_lshl_add_u32 %s, %s, 3, %s" % (v(vTrO), v(t4), v(vTrO)))
    A("s_lshl_b32 %s, %s, 5" % (s(sT + 2), s(sW)))
    A("s_add_u32 %s, %s, %d" % (s(sT + 2), s(sT + 2), RING0))
    A("v_add_u32 %s, %s, %s" % (v(vTrO), s(sT + 2), v(vTrO)))
    A("v_mul_u32_u24 %s, %d, %s" % (v(t1), L_WSTRIDE, v(t1)))
    A("v_lshl_add_u32 %s, %s, 8, %s" % (v(t1), v(t5), v(t1)))
    A("v_add_u32 %s, %d, %s" % (v(t1), RING0, v(t1)))
    for col in (vColQK, vColV):
        A("v_lshl_add_u32 %s, %s, 2, %s" % (v(col), v(t6), v(col)))
        A("v_and_b32 %s, 15, %s" % (v(col), v(col)))
        A("v_lshl_add_u32 %s, %s, 4, %s" % (v(col), v(col), v(t1)))
    AD = [58, 59, 61, 62]
    ADO = [vTrO, 63, 69, 70]
    def addr_wo():
        for i in range(1, 4):
            A("v_add_u32 %s, %d, %s" % (v(ADO[i]), i * L_WSTRIDE, v(vTrO)))
    def addr_wide(col):
        A("v_mov_b32 %s, %s" % (v(AD[0]), v(col)))
        A("v_xor_b32 %s, 0x80, %s" % (v(AD[1]), v(col)))
        A("v_add_u32 %s, %d, %s" % (v(AD[2]), 2 * L_WSTRIDE, v(AD[0])))
        A("v_add_u32 %s, %d, %s" % (v(AD[3]), 2 * L_WSTRIDE, v(AD[1])))
    TMPF = [12, 20]
    tmpi = [0]
    park = {}
    def get_frag(key, addrs, imms):
        out = None
        if key in WREGS:
            r = WREGS[key]
        elif SPILL[key] in park:
            r = park[SPILL[key]]
        else:
            r = TMPF[tmpi[0] % 2]
            tmpi[0] += 1
            out = (r, SPILL[key])
        for q in range(4):
            A.ds("ds_read_b64_tr_b16 %s, %s offset:%d" % (R(r + 2 * q, 2), v(addrs[q]), imms[q]))
        return out
    def put(r, idx):
        if idx < 16:
            for hh in range(2):
                A.ds("ds_write_b128 %s, %s offset:%d" % (v(vWL), R(r + 4 * hh, 4), idx * 2048 + hh * 1024))
        else:
            for hh in range(2):
                A.vmem("buffer_store_dwordx4 %s, %s, %s, %s offen offset:%d" % (v(r + 4 * hh, 4), v(vL16), s(sWS, 4), s(sL2a), 1024 * hh), 'sp')

    A("v_lshl_add_u32 %s, %s, 1, %s" % (v(t5), v(t3), v(t2)))
    A("v_mul_u32_u24 %s, 1152, %s" % (v(t5), v(t5)))
    A("v_lshl_add_u32 %s, %s, 3, %s" % (v(t5), v(t4), v(t5)))
    A("s_and_b32 %s, %s, 1" % (s(sT + 2), s(sUnit)))
    A("s_mul_i32 %s, %s, 4608" % (s(sT + 2), s(sT + 2)))
    A("s_bfe_u32 %s, %s, 0x60001" % (s(sT + 3), s(sUnit)))
    A("s_lshl_b32 %s, %s, 5" % (s(sT + 3), s(sT + 3)))
    A("s_add_u32 %s, %s, %s" % (s(sT + 2), s(sT + 2), s(sT + 3)))
    A.vmem("buffer_load_dwordx2 %s, %s, %s, %s offen" % (v(52, 2), v(t5), s(sM0, 4), s(sT + 2)), 'm0')
    for i in range(4):
        A("v_mov_b32 %s, -1" % v(64 + i))
    for i in range(4):
        A.vmem("buffer_store_dwordx4 %s, %s, %s, %s offen offset:%d%s" % (v(64, 4), v(vL16), s(sWS, 4), s(sRd), 1024 * i, SC), 'mb')
    for so in (sX1, sX2):
        A.vmem("buffer_store_dwordx2 %s, %s, %s, %s offen%s" % (v(64, 2), v(vRst), s(sWS, 4), s(so), SC), 'mb')
    vm0 = list(A.vm)
    ljoin = A.new("initjoin")
    lcls = [A.new("cls%d" % i) for i in range(4)]
    for i in (1, 2, 3):
        A("s_cmp_eq_u32 %s, %d" % (s(sW), i))
        A("s_cbranch_scc1 %s" % lcls[i])
    for wc in range(4):
        A.label(lcls[wc])
        A.vm, A.lds = list(vm0), []
        tmpi[0] = 0
        pos = [GOF(jj, wc) for jj in range(9)]
        park.clear()
        park.update({15: 28, 7: 36, 8: 44})
        for i, G in enumerate(VLAST):
            for t in range(2):
                park[9 + 2 * i + t] = WREGS[('v', pos.index(G), t)]
        flush = {32: (9, 10), 33: (11, 12), 34: (13, 14), 35: (15,)}
        for c in range(36):
            m, G = chunks[c]
            if c == 0:
                addr_wo()
                addr_wide(vColQK)
            if chunks[c] == (2, 4):
                addr_wide(vColV)
            A.wait_vm(('c', c))
            A("s_barrier")
            if c + NSLOT - 1 < 36:
                issue_chunk(c + NSLOT - 1)
            if c == NSLOT:
                A.vmem("buffer_store_dwordx2 %s, %s, %s, %s offen%s" % (v(52, 2), v(vRst), s(sWS, 4), s(sX0), SC), 'mb')
            if c == 20 and wc == 0:
                A("s_mov_b64 exec, 1")
                A("s_lshl_b32 %s, 1, s3" % s(sT + 2))
                A("s_lshl_b32 %s, %s, 8" % (s(sT + 2), s(sT + 2)))
                A("v_mov_b32 %s, %s" % (v(52), s(sT + 2)))
                A("v_mov_b32 %s, 1" % v(53))
                A.vmem("buffer_atomic_or %s, off, %s, 0 offset:%d" % (v(52), s(sDBG, 4), DBG_TEAM), 'at')
                A.vmem("buffer_atomic_add %s, off, %s, 0 offset:%d" % (v(53), s(sDBG, 4), DBG_TEAM), 'at')
                A("s_mov_b64 exec, -1")
            if "mega" in opt and c == 24:
                A.vmem("buffer_load_dword %s, off, %s, 0 offset:%d sc1" % (v(64), s(sDBG, 4), DBG_MOD), 'e')
            if "mega" in opt and c == 34:
                A("v_lshrrev_b32 %s, 2, %s" % (v(65), v(vL16)))
                A("s_lshl_b32 %s, %s, 8" % (s(sT + 2), s(sCU)))
                A("s_add_u32 %s, %s, %d" % (s(sT + 2), s(sT + 2), FL_KV))
                A.vmem("buffer_load_dword %s, %s, %s, %s offen sc1" % (v(65), v(65), s(sWS, 4), s(sT + 2)), 'e')
                A.vmem("buffer_load_dword %s, off, %s, 0 offset:%d sc1" % (v(66), s(sDBG, 4), DBG_TEAM), 'e')
            for idx in flush.get(c, ()):
                put(park[idx], idx)
            so = (c % NSLOT) * 4096
            sp = []
            if m == 3:
                for c2 in range(2):
                    sp.append(get_frag(('o', 2 * G + c2), [ADO[2 * c2 + (q >> 1)] for q in range(4)], [so + 2 * (q & 1) * 128 for q in range(4)]))
            else:
                j = pos.index(G)
                for t in range(2):
                    key = ('qk', j, 2 * m + t) if m < 2 else ('v', j, t)
                    sp.append(get_frag(key, AD, [so + 2 * (q & 1) * 256 + 8 * t for q in range(4)]))
            A.wait_ds()
            for x in sp:
                if x:
                    put(*x)
        A("s_barrier")
        put(park[7], 7)
        put(park[8], 8)
        if wc < 3:
            A("s_branch %s" % ljoin)
    A.label(ljoin)
    ROT = ([int(o[4:]) for o in opt if o.startswith("rot=")] + [0])[0]
    ROTW = ([int(o[5:]) for o in opt if o.startswith("rotw=")] + [0])[0]
    for G in range(9):
        if ROT or ROTW:
            A("s_mul_i32 %s, %s, %d" % (s(sT + 2), s(sW), ROTW))
            A("s_add_u32 %s, %s, %s" % (s(sT + 2), s(sT + 2), s(sCU)))
            A("s_add_u32 %s, %s, %d" % (s(sT + 2), s(sT + 2), ROT * G))
            A("s_and_b32 %s, %s, 31" % (s(sT + 2), s(sT + 2)))
            A("s_sub_u32 %s, %s, %s" % (s(sT + 2), s(sT + 2), s(sCU)))
            A("s_lshl_b32 %s, %s, 7" % (s(sT + 2), s(sT + 2)))
            A("s_add_u32 %s, %s, %s" % (s(sPt + G), s(sP0), s(sT + 2)))
            A("s_add_u32 %s, %s, %d" % (s(sPt + G), s(sPt + G), G * 32768))
        else:
            A("s_add_u32 %s, %s, %d" % (s(sPt + G), s(sP0), G * 32768))
    A("s_lshl_b32 %s, %s, 7" % (s(sFlg), s(sCU)))
    A("s_add_u32 %s, %s, %d" % (s(sFlg), s(sFlg), FL_PUB - 4096))
    A("s_cmp_eq_u32 %s, %d" % (s(sW), 3 if "mega" in opt else 7))
    A("s_cselect_b32 %s, %s, 0x%x" % (s(sFlg), s(sFlg), OOB))
    A("s_mov_b64 %s, 1" % s(sOne, 2))
    A("s_cmp_lt_u32 %s, 32" % s(sUnit))
    A("s_cselect_b32 %s, %s, 0x%x" % (s(sRdE), s(sRd), OOB))
    A("s_lshl_b32 %s, %s, 8" % (s(sKF), s(sCU)))
    A("s_add_u32 %s, %s, %d" % (s(sKF), s(sKF), FL_KV))
    A("s_waitcnt vmcnt(0) lgkmcnt(0)")
    A.vm, A.lds = [], []

    def kv_dma():
        return ["s_mov_b32 m0, %s" % s(sKXm),
                "buffer_load_dwordx4 %s, %s, %s offen sc1 lds" % (v(vL16), s(sWS, 4), s(sKV)),
                "buffer_load_dwordx4 %s, %s, %s offen offset:1024 sc1 lds" % (v(vL16), s(sWS, 4), s(sKV)),
                "s_mov_b32 m0, %s" % s(sVX),
                "buffer_load_dwordx4 %s, %s, %s offen sc1 lds" % (v(vL16), s(sWS, 4), s(sKVv)),
                "buffer_load_dwordx4 %s, %s, %s offen offset:1024 sc1 lds" % (v(vL16), s(sWS, 4), s(sKVv))]
    def land(key, half=None):
        sp = SPILL[key]
        for hh in ((0, 1) if half is None else (half,)):
            if sp < 16:
                A.ds("ds_read_b128 %s, %s offset:%d" % (v(LND + 8 * SLOT[key] + 4 * hh, 4), v(vWL), sp * 2048 + 1024 * hh), key)
            else:
                A.vmem("buffer_load_dwordx4 %s, %s, %s, %s offen offset:%d" % (v(LND + 8 * SLOT[key] + 4 * hh, 4), v(vL16), s(sWS, 4), s(sL2a), 1024 * hh), key)
    def zero(lo, hi):
        for r in range(lo, hi, 2):
            A("v_mov_b64 %s, 0" % v(r, 2))
    KVINC = 0 if "samekv" in opt else KVSTEP
    NDMA = "ndma" in opt
    def kv_all():
        for i in range(2):
            A("s_mov_b32 m0, %d" % (L_KX + 4096 * i))
            A("s_add_u32 %s, %s, %d" % (s(sT + 2), s(sKV), 4096 * i))
            for j in range(4):
                A("buffer_load_dwordx4 %s, %s, %s offen offset:%d sc1 lds" % (v(vL16), s(sWS, 4), s(sT + 2), 1024 * j))
        for i in range(4):
            A("s_mov_b32 m0, %d" % (L_W + i * L_WSTRIDE + 32768))
            A("s_add_u32 %s, %s, %d" % (s(sT + 2), s(sKV), 8192 + 2048 * i))
            for j in range(2):
                A("buffer_load_dwordx4 %s, %s, %s offen offset:%d sc1 lds" % (v(vL16), s(sWS, 4), s(sT + 2), 1024 * j))
    def kv_refresh(lback):
        lp = A.new("kvr")
        A.label(lp)
        A("v_lshrrev_b32 %s, 2, %s" % (v(vTmp), v(vL16)))
        A("buffer_load_dword %s, %s, %s, %s offen sc1" % (v(vTmp), v(vTmp), s(sWS, 4), s(sKF)))
        A("s_waitcnt vmcnt(0)")
        A("v_cmp_ne_u32 %s, 0, %s" % (s(sRdy, 2), v(vTmp)))
        A("s_nop 3")
        A("s_bitcmp1_b64 %s, %s" % (s(sRdy, 2), s(sStep)))
        A("s_cbranch_scc1 %s" % lback)
        A("s_sub_u32 %s, %s, 1" % (s(sBud), s(sBud)))
        A("s_cbranch_scc0 %s" % lp)
        A("s_mov_b32 %s, 0" % s(sBud))
        A("s_branch %s" % lback)
    if "tt" in opt:
        A("s_memrealtime s[66:67]")
    lfast = A.new("fast0")
    if "mega" in opt:
        lsl = A.new("slow0")
        A("v_readfirstlane_b32 %s, %s" % (s(sT + 1), v(64)))
        A("v_readfirstlane_b32 %s, %s" % (s(sT), v(66)))
        A("v_cmp_ne_u32 %s, 0, %s" % (s(sRdy, 2), v(65)))
        A("s_nop 3")
        lk, lt = A.new("needkv"), A.new("needteam")
        A("s_cmp_eq_u32 %s, 0" % s(sT + 1))
        A("s_cbranch_scc1 %s" % lsl)
        A("s_bitcmp1_b32 %s, 0" % s(sRdy))
        A("s_cbranch_scc1 %s" % lt)
        A("s_branch %s" % lk)
        A.label(lsl)
        hooks['kv_wait0'](A)
        A.label(lk)
        kv_refresh(lt)
        A.label(lt)
        A("s_bitcmp1_b32 %s, 5" % s(sT))
        A("s_cbranch_scc1 %s" % lfast)
    lp = A.new("tb")
    A.label(lp)
    A("buffer_load_dword %s, off, %s, 0 offset:%d sc1" % (v(vTmp), s(sDBG, 4), DBG_TEAM))
    A("s_waitcnt vmcnt(0)")
    A("v_readfirstlane_b32 %s, %s" % (s(sT), v(vTmp)))
    A("s_nop 3")
    A("s_bitcmp1_b32 %s, 5" % s(sT))
    A("s_cbranch_scc1 %s" % lfast)
    A("s_sub_u32 %s, %s, 1" % (s(sBud), s(sBud)))
    A("s_cbranch_scc0 %s" % lp)
    A("s_mov_b32 %s, 0" % s(sBud))
    A.label(lfast)
    if "mega" in opt:
        A("s_cmp_lt_u32 %s, 3" % s(sW))
        A("s_cselect_b64 %s, -1, %s" % (s(sRdy, 2), s(sRdy, 2)))
    if "tt" in opt:
        A("s_memrealtime s[68:69]")
    for ch in QK_CHAIN:
        land(ch[0])
    zero(VACC, RING)
    A("s_waitcnt lgkmcnt(0)")
    A("s_lshr_b32 %s, %s, 8" % (s(sT), s(sT)))
    A("s_bcnt1_i32_b32 %s, %s" % (s(sT), s(sT)))
    lslow = A.new("slow")
    A("s_cmp_lg_u32 %s, 1" % s(sT))
    A("s_cbranch_scc1 %s" % lslow)
    def loop(SC):
        lentry, lexit = A.new("entry"), A.new("exit")
        lok1, lnored, lb4 = A.new("ok1"), A.new("nored"), A.new("b4")
        ls1, ls1w, l1a = A.new("s1"), A.new("s1w"), A.new("p1a")
        ls1r, ls2r, ls2ok, ls3r, ls3ok, l1r = A.new("s1r"), A.new("s2r"), A.new("s2ok"), A.new("s3r"), A.new("s3ok"), A.new("p1r")
        A("s_branch %s" % ls1)

        def SM(acc, afr, breg):
            A("v_smfmac_f32_16x16x64_bf16 %s, %s, %s, %s" % (v(acc, 4), v(afr, 4), breg, v(vIdx)))
        def MF(d, a_, b_, c_):
            A("v_mfma_f32_16x16x32_bf16 %s, %s, %s, %s" % (v(d, 4), v(a_, 4), v(b_, 4), c_))
        def fragaddr(j):
            if j == 8:
                return vL16, 8192
            return (vT0, vT1, vT2, vT2)[j & 3], (j & 4) * 1024 + (1024 if (j & 3) == 3 else 0)
        def ringrd(j, slot):
            b, o = fragaddr(j)
            A.ds("ds_read_b128 %s, %s offset:%d" % (v(RING + 4 * slot, 4), v(b), L_MEM + o), ('ring', j))
        def mbload(dst, j):
            if j == 8:
                A("buffer_load_dwordx4 %s, %s, %s, %s offen sc1" % (v(dst, 4), v(vL16), s(sWS, 4), s(sX8)))
            else:
                A("buffer_load_dwordx4 %s, %s, %s, %s offen sc1" % (v(dst, 4), v(fragaddr(j)[0]), s(sWS, 4), s(sX4 if j & 4 else sX0)))
        def check(base, n):
            A("v_max3_u32 %s, %s, %s, %s" % (v(vTmp), v(base), v(base + 1), v(base + 2)))
            for i in range(3, n - 1, 2):
                A("v_max3_u32 %s, %s, %s, %s" % (v(vTmp), v(vTmp), v(base + i), v(base + i + 1)))
            A("v_max_u32 %s, %s, %s" % (v(vTmp), v(vTmp), v(base + n - 1)))
            A("v_cmp_eq_u32 vcc, -1, %s" % v(vTmp))
        def budget(lagain, lgiveup):
            A("s_sub_u32 %s, %s, 1" % (s(sBud), s(sBud)))
            A("s_cbranch_scc0 %s" % lagain)
            A("s_mov_b32 %s, 0" % s(sBud))
            A("s_branch %s" % lgiveup)
        PLA = [12, 16, 20, 24]
        RACC, SEL = 28, 32
        def poll1_issue(PL, so=sRd, which=range(4)):
            for i in which:
                A("buffer_load_dwordx4 %s, %s, %s, %s offen offset:%d sc1" % (v(PL[i], 4), v(vL16), s(sWS, 4), s(so), 1024 * i))
        def wait_many(keys):
            idx = [i for i, t in enumerate(A.lds) if t in keys]
            if idx:
                A.wait_ds(A.lds[idx[-1]])
        def endstep():
            for ch in QK_CHAIN:
                land(ch[0])
            A("s_mov_b32 %s, %s" % (s(sT), s(sX0)))
            A("s_mov_b32 %s, %s" % (s(sX0), s(sX1)))
            A("s_mov_b32 %s, %s" % (s(sX1), s(sX2)))
            A("s_mov_b32 %s, %s" % (s(sX2), s(sT)))
        PUB = "" if "pubplain" in opt else " sc1"
        def optval(name, dflt):
            for o in opt:
                if o.startswith(name + "="):
                    return int(o.split("=")[1])
            return dflt
        LWAIT, S1DEPTH = optval("lwait", 3), optval("s1d", 2)
        sX4, sX8 = sP1, sP2
        F8 = RING + 4
        PLB = [LND, LND + 4, LND + 8, LND + 12]
        def reduce_body(PL, n_after):
            if "prog" in opt:
                A("s_waitcnt vmcnt(%d)" % (n_after + 3))
                MF(RACC, SEL, PL[0], "0")
                A("s_waitcnt vmcnt(%d)" % (n_after + 2))
                MF(RACC, SEL, PL[1], v(RACC, 4))
                A("v_bitop3_b32 %s, %s, %s, %s bitop3:0x7e" % (v(vTmp), v(PL[0]), v(PL[1]), s(sPh)))
                A("s_waitcnt vmcnt(%d)" % (n_after + 1))
                MF(RACC, SEL, PL[2], v(RACC, 4))
                A("s_waitcnt vmcnt(%d)" % n_after)
                MF(RACC, SEL, PL[3], v(RACC, 4))
                A("v_bitop3_b32 %s, %s, %s, %s bitop3:0x7e" % (v(45), v(PL[2]), v(PL[3]), s(sPh)))
                A("v_bitop3_b32 %s, %s, %s, 1 bitop3:0xa8" % (v(vTmp), v(vTmp), v(45)))
                A("v_cmp_ne_u32 vcc, 0, %s" % v(vTmp))
                return
            A("s_waitcnt vmcnt(%d)" % n_after)
            MF(RACC, SEL, PL[0], "0")
            A("v_bitop3_b32 %s, %s, %s, %s bitop3:0x7e" % (v(vTmp), v(PL[0]), v(PL[1]), s(sPh)))
            A("v_bitop3_b32 %s, %s, %s, %s bitop3:0x7e" % (v(45), v(PL[2]), v(PL[3]), s(sPh)))
            MF(RACC, SEL, PL[1], v(RACC, 4))
            A("v_bitop3_b32 %s, %s, %s, 1 bitop3:0xa8" % (v(vTmp), v(vTmp), v(45)))
            A("v_cmp_ne_u32 vcc, 0, %s" % v(vTmp))
            MF(RACC, SEL, PL[2], v(RACC, 4))
            MF(RACC, SEL, PL[3], v(RACC, 4))
        def mksel():
            for u in range(4):
                A("v_cndmask_b32 %s, 0, %s, %s" % (v(SEL + u), v(vSelV), s(sSel + 2 * u, 2)))
        def s1load(base):
            mbload(base, 0)
            mbload(base + 4, 1)
        def rotate():
            A("s_mov_b32 %s, %s" % (s(sT), s(sX0)))
            A("s_mov_b32 %s, %s" % (s(sX0), s(sX1)))
            A("s_mov_b32 %s, %s" % (s(sX1), s(sX2)))
            A("s_mov_b32 %s, %s" % (s(sX2), s(sT)))
            A("s_add_u32 %s, %s, 4096" % (s(sX4), s(sX0)))
            A("s_add_u32 %s, %s, 8192" % (s(sX8), s(sX0)))
        lgo1 = A.new("go1")
        lkvr, lkvok = A.new("kvrf"), A.new("kvok")
        if "mega" in opt:
            A.label(lkvr)
            kv_refresh(lkvok)
        A.label(lnored)
        A("s_cmp_eq_u32 %s, -1" % s(sUnit))
        A("s_cbranch_scc1 %s_n" % lnored)
        A("s_waitcnt vmcnt(%d)" % LWAIT)
        A("s_branch %s" % lgo1)
        A.label(lnored + "_n")
        if "ps" in opt:
            A("s_memtime s[72:73]")
            A("s_memrealtime s[74:75]")
            A("s_lshl_b32 %s, %s, 9" % (s(sT), s(sCU)))
            A("s_lshl_b32 %s, %s, 3" % (s(sT + 1), s(sStep)))
            A("s_add_u32 %s, %s, %s" % (s(sT), s(sT), s(sT + 1)))
            A("s_add_u32 %s, %s, %d" % (s(sT), s(sT), WS_DBG + (7 << 17)))
            A("s_waitcnt lgkmcnt(0)")
            A("v_mov_b32 v46, s72")
            A("v_mov_b32 v47, s74")
            A("s_mov_b64 exec, 1")
            A("buffer_store_dwordx2 v[46:47], off, %s, %s" % (s(sWS, 4), s(sT)))
            A("s_mov_b64 exec, -1")
        rotate()
        for i in range(0, 8, 2):
            A("v_mov_b64 %s, -1" % v(RING + i, 2))
        if NDMA:
            l3 = A.new("n3l")
            A("s_cmp_lg_u32 %s, 3" % s(sW))
            A("s_cbranch_scc1 %s" % l3)
            kv_all()
            A.label(l3)
        if "mega" in opt:
            lfull = A.new("full")
            A("s_add_u32 %s, %s, 1" % (s(sT + 1), s(sStep)))
            A("s_bitcmp1_b64 %s, %s" % (s(sRdy, 2), s(sT + 1)))
            A("s_cbranch_scc1 %s" % lfull)
            A("v_lshrrev_b32 %s, 2, %s" % (v(vTmp), v(vL16)))
            A("buffer_load_dword %s, %s, %s, %s offen sc1" % (v(vTmp), v(vTmp), s(sWS, 4), s(sKF)))
            A("s_waitcnt vmcnt(0)")
            A("v_cmp_ne_u32 %s, 0, %s" % (s(sRdy, 2), v(vTmp)))
            A.label(lfull)
        if "noflag" in opt:
            A("s_waitcnt vmcnt(0)")
        else:
            lf = A.new("flag")
            A("v_mov_b32 %s, %d" % (v(46), L_FLAG))
            A.label(lf)
            A("ds_read_b32 %s, %s" % (v(vTmp), v(46)))
            A("s_waitcnt lgkmcnt(0)")
            A("v_cmp_eq_u32 vcc, %s, %s" % (s(sStep), v(vTmp)))
            A("s_cbranch_vccnz %s" % lb4)
            budget(lf, lb4)
        A("s_branch %s" % lb4)
        X2 = LND + 16
        def f8load():
            A("buffer_load_dword %s, %s, %s, %s offen sc1" % (v(X2 + 4), v(X2 + 5), s(sWS, 4), s(sX8)))
        def s2load():
            mbload(X2, 4)
            f8load()
        def s2check():
            A("v_max3_u32 %s, %s, %s, %s" % (v(vTmp), v(X2), v(X2 + 1), v(X2 + 2)))
            A("v_max3_u32 %s, %s, %s, %s" % (v(vTmp), v(vTmp), v(X2 + 3), v(X2 + 4)))
            A("v_cmp_eq_u32 vcc, -1, %s" % v(vTmp))
        A.label(ls2r)
        if "tt" in opt:
            A("s_add_u32 s88, s88, 1")
        s2load()
        A("s_waitcnt vmcnt(2)")
        s2check()
        A("s_cbranch_vccz %s_d" % ls2r)
        budget(ls2r, ls2r + "_d")
        A.label(ls2r + "_d")
        A("s_waitcnt vmcnt(0)")
        A("s_branch %s" % ls2ok)
        A.label(ls1)
        A("s_add_u32 %s, %s, 4096" % (s(sX4), s(sX0)))
        A("s_add_u32 %s, %s, 8192" % (s(sX8), s(sX0)))
        s1load(RING)
        A("s_waitcnt vmcnt(0)")
        A("s_branch %s" % ls1w)
        A(".p2align 6")
        A.label(ls1r)
        A("s_sub_u32 %s, %s, 1" % (s(sBud), s(sBud)))
        A("s_cbranch_scc1 %s_give" % ls1r)
        if "mask" in opt:
            A("s_mov_b64 exec, vcc")
        s1load(RING)
        if "mask" in opt:
            A("s_mov_b64 exec, -1")
        A("s_waitcnt vmcnt(%d)" % S1DEPTH)
        A.label(ls1w)
        check(RING, 8)
        A("s_cbranch_vccnz %s" % ls1r)
        A.label(lentry)
        A.lds, A.vm = [], []
        if "tt" in opt:
            lt = A.new("tt")
            A("s_cmp_lg_u32 %s, 3" % s(sStep))
            A("s_cbranch_scc1 %s" % lt)
            A("s_memtime s[92:93]")
            A.label(lt)
        if stamps and "rt" in opt:
            lq = A.new("q")
            A("s_memrealtime %s" % s(sStamp + 18, 2))
            A("s_cmp_lg_u32 %s, 41" % s(sStep))
            A("s_cbranch_scc1 %s" % lq)
            A("s_waitcnt lgkmcnt(0)")
            for i in range(10):
                A("v_writelane_b32 %s, %s, %d" % (v(vTmp), s(sStamp + 2 * i), i))
            A("s_lshl_b32 %s, %s, 2" % (s(sT), s(sCU)))
            A("s_add_u32 %s, %s, %s" % (s(sT), s(sT), s(sW)))
            A("s_lshl_b32 %s, %s, 11" % (s(sT), s(sT)))
            A("s_add_u32 %s, %s, %d" % (s(sT), s(sT), WS_DBG))
            A("buffer_store_dword %s, %s, %s, %s offen" % (v(vTmp), v(vL16), s(sWS, 4), s(sT)))
            A.label(lq)
        stamp()
        KXR = {(0, 0): LND, (0, 1): LND + 4, (0, 2): LND + 8, (0, 3): LND + 12, (1, 0): LND + 16, (1, 1): LND + 20, (1, 2): LND, (1, 3): LND + 4}
        def kxrd(tl, ks):
            A.ds("ds_read_b128 %s, %s offset:%d" % (v(KXR[(tl, ks)], 4), v(vL16), L_KX + (4 * tl + ks) * 1024), ('kx', tl, ks))
        AREG = {0: RING, 1: RING + 4, 2: RING + 8, 3: RING, 4: X2, 5: RING + 4, 6: RING + 8, 7: RING, 8: RING + 4}
        def Q(j, t):
            key = ('qk', j, t)
            SM(QK + 4 * t, AREG[j], R(WREGS[key], 8) if key in WREGS else v(LND + 8 * SLOT[key], 8))
        def VS(j, t, a_=None):
            key = ('v', j, t)
            SM(VACC + 4 * t, AREG[j] if a_ is None else a_, R(WREGS[key], 8) if key in WREGS else v(LND + 8 * SLOT[key], 8))
        L = lambda j, t, hh: land(('qk', j, t), hh)
        kd = kv_dma()
        mega = "mega" in opt
        ND = 0 if NDMA else 2
        def dma(i, tag):
            if not NDMA:
                A.vmem(kd[i], tag) if tag else A(kd[i])
        A.ds("ds_write_b128 %s, %s offset:%d" % (v(vT0), v(RING, 4), L_MEM), 'w1')
        if "s2l" not in opt:
            Q(0, 0); mbload(X2, 4)
            Q(0, 1); A("v_lshrrev_b32 %s, 2, %s" % (v(X2 + 5), v(vT0)))
            Q(0, 2); f8load()
            Q(0, 3); L(2, 0, 0)
            VS(0, 0); L(2, 0, 1)
            A.wait_ds('w1')
            VS(0, 1)
            A("s_barrier")
            ringrd(2, 2)
            stamp()
            Q(1, 0); L(2, 1, 0)
            dma(0, None)
            Q(1, 1); L(2, 1, 1)
            Q(1, 2); dma(1, 'kdma')
            Q(1, 3); A("s_add_u32 %s, %s, 1" % (s(sStep), s(sStep)))
            VS(1, 0); dma(2, 'kdma')
            VS(1, 1); A("s_waitcnt vmcnt(%d)" % (2 + ND))
            ringrd(3, 0)
            A.wait_ds(('qk', 2, 1))
            Q(2, 0); L(4, 0, 0)
            Q(2, 1); L(4, 0, 1)
            Q(2, 2); L(4, 1, 0)
            Q(2, 3); L(4, 1, 1)
            VS(2, 0); dma(3, None)
            VS(2, 1)
            A.wait_ds(('ring', 3))
            Q(3, 0); A("s_waitcnt vmcnt(%d)" % ND)
            s2check()
            Q(3, 1)
            Q(3, 2)
            A("s_cbranch_vccnz %s" % ls2r)
            A.label(ls2ok)
            A.ds("ds_write_b128 %s, %s offset:%d" % (v(vT0), v(X2, 4), L_MEM + 4096), 'w2')
            Q(3, 3)
            A.ds("ds_write_b32 %s, %s offset:%d" % (v(X2 + 5), v(X2 + 4), L_MEM + 8192), 'w2')
            VS(3, 0); dma(4, 'vdma')
            VS(3, 1); dma(5, 'vdma')
            A.wait_ds(('qk', 4, 1))
            Q(4, 0); L(6, 0, 0)
            Q(4, 1)
            A("s_waitcnt vmcnt(%d) lgkmcnt(1)" % ND)
            A.vm, A.lds = A.vm[len(A.vm) - ND:], A.lds[-1:]
            A("s_barrier")
            ringrd(5, 1)
            Q(4, 2); ringrd(6, 2)
            Q(4, 3); ringrd(7, 0)

        else:
            Q(0, 0)
            Q(0, 1); A("v_lshrrev_b32 %s, 2, %s" % (v(X2 + 5), v(vT0)))
            Q(0, 2); dma(0, None)
            Q(0, 3); L(2, 0, 0)
            VS(0, 0); L(2, 0, 1)
            A.wait_ds('w1')
            VS(0, 1)
            A("s_barrier")
            ringrd(2, 2)
            stamp()
            Q(1, 0); mbload(X2, 4)
            Q(1, 1); f8load()
            Q(1, 2); L(2, 1, 0)
            Q(1, 3); L(2, 1, 1)
            VS(1, 0); dma(1, 'kdma')
            VS(1, 1); A("s_waitcnt vmcnt(3)")
            ringrd(3, 0)
            A.wait_ds(('qk', 2, 1))
            Q(2, 0); dma(2, 'kdma')
            Q(2, 1); L(4, 0, 0)
            Q(2, 2); L(4, 0, 1)
            Q(2, 3); L(4, 1, 0)
            VS(2, 0); L(4, 1, 1)
            VS(2, 1); dma(3, None)
            A.wait_ds(('ring', 3))
            Q(3, 0); A("s_add_u32 %s, %s, 1" % (s(sStep), s(sStep)))
            Q(3, 1)
            Q(3, 2)
            Q(3, 3); A("s_waitcnt vmcnt(2)")
            s2check()
            VS(3, 0)
            VS(3, 1)
            A("s_cbranch_vccnz %s" % ls2r)
            A.label(ls2ok)
            A.wait_ds(('qk', 4, 1))
            A.ds("ds_write_b128 %s, %s offset:%d" % (v(vT0), v(X2, 4), L_MEM + 4096), 'w2')
            Q(4, 0)
            A.ds("ds_write_b32 %s, %s offset:%d" % (v(X2 + 5), v(X2 + 4), L_MEM + 8192), 'w2')
            Q(4, 1); L(6, 0, 0)
            Q(4, 2); dma(4, 'vdma')
            Q(4, 3); dma(5, 'vdma')
            A("s_waitcnt vmcnt(2) lgkmcnt(1)")
            A.vm, A.lds = A.vm[len(A.vm) - 2:], A.lds[-1:]
            A("s_barrier")
            ringrd(5, 1)
            ringrd(6, 2)
            ringrd(7, 0)
        VS(4, 0); L(6, 0, 1)
        VS(4, 1); L(6, 1, 0)
        A.wait_ds(('ring', 5))
        Q(5, 0); land(L2KEY, 0)
        Q(5, 1); land(L2KEY, 1)
        if mega:
            A("s_bitcmp1_b64 %s, %s" % (s(sRdy, 2), s(sStep)))
        Q(5, 2); L(6, 1, 1)
        A("s_mov_b32 m0, %d" % (L_SCR + 512))
        Q(5, 3); ringrd(8, 1)
        if mega:
            A("s_cbranch_scc0 %s" % lkvr)
            A.label(lkvok)
        A.wait_ds(('qk', 6, 0))
        Q(6, 0); L(7, 3, 0)
        A.wait_ds(('qk', 6, 1))
        Q(6, 1); L(7, 3, 1)
        A("v_lshlrev_b32 %s, 4, %s" % (v(vTmp), v(vL16)))
        Q(6, 2)
        if "notouch" not in opt:
            A.vmem("buffer_load_dword %s, %s, %s offen sc1 lds" % (v(vTmp), s(sWS, 4), s(sKVt)), 'touch')
        Q(6, 3); kxrd(0, 2)
        Q(7, 0); kxrd(0, 3)
        Q(7, 1)
        if "notouch" not in opt:
            A.vmem("buffer_load_dword %s, %s, %s offen offset:128 sc1 lds" % (v(vTmp), s(sWS, 4), s(sKVt)), 'touch')
        Q(7, 2); A("v_cndmask_b32 %s, 2.0, 0, %s" % (v(vTmp), s(sOne, 2)))
        A.wait_ds(('qk', 7, 3))
        Q(7, 3); kxrd(0, 0)
        Q(8, 0); kxrd(0, 1)
        Q(8, 1)
        A.vmem("buffer_store_dword %s, %s, %s, %s offen sc1" % (v(vIdx), v(vTmp), s(sWS, 4), s(sFlg)), 'flag')
        Q(8, 2); A("v_lshrrev_b32 %s, 2, %s" % (v(vTmp), v(vL16)))
        Q(8, 3); A("s_add_u32 %s, %s, 4096" % (s(sFlg), s(sFlg)))
        stamp()
        VS(7, 0); A("s_cmp_eq_u32 %s, %d" % (s(sStep), nsteps))
        VS(7, 1); ringrd(5, 0)
        def fin(base):
            A("v_add_f32 %s, %s, %s" % (v(base), v(base), v(base + 1)))
            A("v_add_f32 %s, %s, %s" % (v(base + 2), v(base + 2), v(base + 3)))
            A("v_add_f32 %s, %s, %s" % (v(base + 4), v(base + 4), v(base + 5)))
            A("v_add_f32 %s, %s, %s" % (v(base + 6), v(base + 6), v(base + 7)))
            A("v_cvt_pk_bf16_f32 %s, %s, %s" % (v(base), v(base), v(base + 4)))
            A("v_cvt_pk_bf16_f32 %s, %s, %s" % (v(base + 1), v(base + 2), v(base + 6)))
        def finw(base):
            o = 8 if base == QK else 0
            A.ds("ds_write2_b32 %s, %s, %s offset0:%d offset1:%d" % (v(vFw), v(base), v(base + 1), o, o + 4), 'fw')
        def pub(reg, off):
            A.vmem("buffer_store_dword %s, %s, %s, %s offen offset:%d%s" % (v(reg), v(vTmp), s(sWS, 4), s(sKM), off, PUB), 'pub')
        fin(QK)
        fin(QK + 8)
        finw(QK)
        finw(QK + 8)
        A.wait_vm(L2KEY)
        VS(8, 1); pub(QK + 8, 0)
        VS(8, 0); kxrd(1, 0)
        VS(6, 1); kxrd(1, 1)
        VS(6, 0); pub(QK + 9, 256)
        A.wait_ds('fw')
        A("s_barrier")
        for ks in range(4):
            A.ds("ds_read_b128 %s, %s offset:%d" % (v(QK + 4 * ks, 4), v(vL16), L_F + ks * FSTR), ('f', ks))
        stamp()
        VS(5, 0, RING)
        VS(5, 1, RING)
        T1, T2, T0 = RING, RING + 4, RING + 8
        ONES, LACC, OACC = QK + 8, QK + 12, LND + 16
        def S(i, ks):
            d, a_ = ((T1, KXR[(0, ks)]), (T2, KXR[(1, ks)]), (T0, QK + 4 * ks))[i]
            MF(d, a_, QK + 4 * ks, "0" if ks == 0 else v(d, 4))
        def vfin(t, part):
            b = VACC + 4 * t
            if part == 0:
                A("v_add_f32 %s, %s, %s" % (v(b), v(b), v(b + 1)))
                A("v_add_f32 %s, %s, %s" % (v(b + 2), v(b + 2), v(b + 3)))
            else:
                A("v_cvt_pk_bf16_f32 %s, %s, %s" % (v(b), v(b), v(b + 2)))
                A("v_mov_b32 %s, 0" % v(b + 1))
        def vxrd(t):
            A.ds("ds_read_b128 %s, %s offset:%d" % (v(QK + 4 * t, 4), v(vWL), 32768 + t * 1024), 'vx')
        m1, m2 = T0 + 2, T0 + 3
        A.wait_ds(('f', 0))
        S(0, 0); A.wait_ds(('f', 1))
        S(0, 1); kxrd(1, 2)
        kxrd(1, 3)
        A.wait_ds(('f', 3))
        S(0, 2)
        S(0, 3); land(('o', 1), 0)
        land(('o', 1), 1)
        S(2, 0); vfin(0, 0)
        S(2, 1); vfin(0, 1)
        S(2, 2); vfin(1, 0)
        S(2, 3); pub(VACC, 512)
        vfin(1, 1)
        S(1, 0); vxrd(0)
        A("v_max3_f32 %s, %s, %s, %s" % (v(VACC + 2), v(T1), v(T1 + 1), v(T1 + 2)))
        S(1, 1); vxrd(1)
        A.wait_ds(('kx', 1, 3))
        S(1, 2); pub(VACC + 4, 768)
        A("v_max3_f32 %s, %s, %s, %s" % (v(m1), v(VACC + 2), v(T1 + 3), v(T0)))
        S(1, 3); land(('o', 0), 0)
        land(('o', 0), 1)
        A("s_cbranch_scc1 %s" % lexit)
        A("s_add_u32 %s, %s, %d" % (s(sKM), s(sKM), 32 * 4096))
        stamp()
        sv = [T1, T1 + 1, T1 + 2, T1 + 3, T2, T2 + 1, T2 + 2, T2 + 3, T0, T0 + 1]
        A("v_max_f32 %s, %s, %s" % (v(m1), v(m1), v(T0 + 1)))
        A("s_nop 0")
        A("v_mov_b32 %s, 0x3f803f80" % v(ONES))
        A("v_mov_b32 %s, 0x3f803f80" % v(ONES + 1))
        A("v_max3_f32 %s, %s, %s, %s" % (v(m1), v(m1), v(sv[4]), v(sv[5])))
        A("v_max3_f32 %s, %s, %s, %s" % (v(m2), v(m1), v(sv[6]), v(sv[7])))
        A("v_max3_f32 %s, %s, %s, %s" % (v(m1), v(m1), v(sv[6]), v(sv[7])))
        A("v_mov_b32 %s, 0x3f803f80" % v(ONES + 2))
        A("v_mov_b32 %s, 0x3f803f80" % v(ONES + 3))
        A("v_permlane32_swap_b32 %s, %s" % (v(m1), v(m2)))
        A("v_max_f32 %s, %s, %s" % (v(m1), v(m1), v(m2)))
        A("v_mov_b32 %s, %s" % (v(m2), v(m1)))
        A("s_nop 1")
        A("v_permlane16_swap_b32 %s, %s" % (v(m1), v(m2)))
        A("v_max_f32 %s, %s, %s" % (v(m1), v(m1), v(m2)))
        A("v_mul_f32 %s, %s, %s" % (v(m1), s(sC), v(m1)))
        for x in sv:
            A("v_fma_f32 %s, %s, %s, -%s" % (v(x), v(x), s(sC), v(m1)))
        P, Pm = T1, T0
        for x in sv[:8]:
            A("v_exp_f32 %s, %s" % (v(x), v(x)))
        A("v_cvt_pk_bf16_f32 %s, %s, %s" % (v(P), v(T1), v(T1 + 1)))
        A("v_cvt_pk_bf16_f32 %s, %s, %s" % (v(P + 1), v(T1 + 2), v(T1 + 3)))
        A("v_cvt_pk_bf16_f32 %s, %s, %s" % (v(P + 2), v(T2), v(T2 + 1)))
        A("v_cvt_pk_bf16_f32 %s, %s, %s" % (v(P + 3), v(T2 + 2), v(T2 + 3)))
        A("v_exp_f32 %s, %s" % (v(T0), v(T0)))
        A.wait_ds('vx')
        A("v_exp_f32 %s, %s" % (v(T0 + 1), v(T0 + 1)))
        MF(LACC, ONES, P, "0")
        A("v_cvt_pk_bf16_f32 %s, %s, %s" % (v(Pm), v(T0), v(T0 + 1)))
        A("v_mov_b32 %s, 0" % v(Pm + 1))
        MF(OACC, QK, P, "0")
        MF(OACC + 4, QK + 4, P, "0")
        A("v_mfma_f32_16x16x16_bf16 %s, %s, %s, %s" % (v(LACC, 4), v(ONES, 2), v(Pm, 2), v(LACC, 4)))
        for t in range(2):
            A("v_mfma_f32_16x16x16_bf16 %s, %s, %s, %s" % (v(OACC + 4 * t, 4), v(VACC + 4 * t, 2), v(Pm, 2), v(OACC + 4 * t, 4)))
        zero(12, 24)
        A("v_rcp_f32 %s, %s" % (v(vTmp), v(LACC)))
        A("v_mov_b64 %s, 0" % v(24, 2))
        for i in range(8):
            A("v_mul_f32 %s, %s, %s" % (v(OACC + i), v(OACC + i), v(vTmp)))
        OP = T2
        for i in range(4):
            A("v_cvt_pk_bf16_f32 %s, %s, %s" % (v(OP + i), v(OACC + 2 * i), v(OACC + 2 * i + 1)))
        A.ds("ds_write_b128 %s, %s" % (v(vOw), v(OP, 4)), 'ow')
        A("v_mov_b64 %s, -1" % v(36, 2))
        A("v_cndmask_b32 %s, 0, 1, %s" % (v(vTmp), s(sTagM, 2)))
        A.vmem("buffer_store_dwordx2 %s, %s, %s, %s offen%s" % (v(36, 2), v(vRst), s(sWS, 4), s(sX2), SC), 'rst')
        zero(26, 36)
        A.wait_ds('ow')
        A("s_barrier")
        OF = LND + 16
        for c2 in range(2):
            A.ds("ds_read_b128 %s, %s offset:%d" % (v(OF + 4 * c2, 4), v(vL16), L_O + c2 * 1024), ('of', c2))
        stamp()
        zero(36, 48)
        def wacc(tile):
            return 12 + 4 * tile
        def W(p, c2):
            key = ('o', 2 * p + c2)
            wait_many([('of', c2), key])
            SM(wacc(p), OF + 4 * c2, R(WREGS[key], 8) if key in WREGS else v(LND + 8 * SLOT[key], 8))
        def e1(tile):
            b = wacc(tile)
            A("v_add_f32 %s, %s, %s" % (v(b + 1), v(b), v(b + 1)))
            A("v_add_f32 %s, %s, %s" % (v(b + 3), v(b + 2), v(b + 3)))
        def e2(tile):
            b = wacc(tile)
            A("v_cvt_pk_bf16_f32 %s, %s, %s" % (v(b), v(b + 1), v(b + 3)))
            A("v_bfi_b32 %s, %s, %s, %s" % (v(b), v(vTmp), s(sPh), v(b)))
        def e3(tile):
            A("buffer_store_dword %s, %s, %s, %s offen%s" % (v(wacc(tile)), v(vPst), s(sWS, 4), s(sPt + tile), SC))
        LO = lambda n, hh: land(('o', n), hh)
        W(0, 0); LO(8, 0)
        W(0, 1); LO(8, 1)
        W(1, 0); LO(9, 0)
        W(1, 1); LO(9, 1)
        A("s_add_u32 %s, %s, %d" % (s(sKVt), s(sKVt), KVINC))
        W(2, 0); A("s_add_u32 %s, %s, %d" % (s(sKV), s(sKV), KVINC))
        A("s_add_u32 %s, %s, %d" % (s(sKVv), s(sKVv), KVINC))
        e1(0)
        W(2, 1); e2(0)
        for p in range(3, 9):
            W(p, 0); e3(p - 3)
            if p == 5:
                LO(16, 0)
            e1(p - 2)
            W(p, 1)
            if p == 4:
                LO(16, 1)
            if p == 5:
                LO(17, 0)
            if p == 6:
                LO(17, 1)
            if p == 7:
                A("s_cmp_ge_u32 %s, 32" % s(sUnit))
            e2(p - 2)
        EP = optval("ep", 0)
        def wtail(early):
            if early and EP == 3:
                poll1_issue(PLA)
            e3(6)
            if early and EP == 2:
                poll1_issue(PLA)
            e1(7); e2(7); e3(7)
            if early and EP == 1:
                poll1_issue(PLA)
            e1(8); e2(8); e3(8)
            if stamps:
                A("s_memrealtime %s" % s(sStamp + 16, 2))
        if EP:
            lw = A.new("wt")
            A("s_cbranch_scc0 %s" % lw)
            wtail(False)
            A("s_branch %s" % lnored)
            A.label(lw)
            wtail(True)
        else:
            wtail(False)
            A("s_cbranch_scc1 %s" % lnored)
        def prep():
            mksel()
            rotate()
            for i in range(0, 8, 2):
                A("v_mov_b64 %s, -1" % v(RING + i, 2))
            A("v_mov_b32 %s, %d" % (v(46), L_FLAG))
            A("v_mov_b32 %s, %s" % (v(47), s(sStep)))
        l1b = A.new("p1b")
        if EP:
            if "eb2" in opt:
                prep()
                poll1_issue(PLB)
            else:
                poll1_issue(PLB)
                prep()
            reduce_body(PLA, 4 + EP)
            A("s_cbranch_vccz %s" % lok1)
            A("s_branch %s" % l1b)
        A.label(lgo1)
        poll1_issue(PLA)
        stamp()
        prep()
        poll1_issue(PLB)
        A.label(l1a)
        reduce_body(PLA, 4)
        A("s_cbranch_vccz %s" % lok1)
        A.label(l1b)
        if "tt" in opt:
            A("s_add_u32 s87, s87, 1")
        poll1_issue(PLA)
        reduce_body(PLB, 4)
        A("s_cbranch_vccz %s" % lok1)
        if "tt" in opt:
            A("s_add_u32 s87, s87, 1")
        poll1_issue(PLB)
        A("s_sub_u32 %s, %s, 1" % (s(sBud), s(sBud)))
        A("s_cbranch_scc0 %s" % l1a)
        A("s_mov_b32 %s, 0" % s(sBud))
        A.label(lok1)
        def finish(nop):
            A("s_nop %d" % nop)
            for i in range(4):
                A("v_add_f32_dpp %s, %s, %s row_ror:8 row_mask:0xf bank_mask:0xf" % (v(RACC + i), v(RACC + i), v(RACC + i)))
            A("v_cvt_pk_bf16_f32 %s, %s, %s" % (v(44), v(RACC), v(RACC + 1)))
            A("v_cvt_pk_bf16_f32 %s, %s, %s" % (v(45), v(RACC + 2), v(RACC + 3)))
            A("buffer_store_dwordx2 %s, %s, %s, %s offen%s" % (v(44, 2), v(vRst), s(sWS, 4), s(sX0), SC))
        if "lsep" in opt:
            le = A.new("efin")
            A("s_cmp_lt_u32 %s, 32" % s(sUnit))
            A("s_cbranch_scc1 %s" % le)
            s1load(RING)
            finish(0)
            A("s_waitcnt vmcnt(3)")
            for ch in QK_CHAIN:
                land(ch[0])
            zero(VACC, RING)
            A("s_xor_b32 %s, %s, 1" % (s(sPh), s(sPh)))
            if "l2nd" in opt:
                s1load(RING)
                A("s_waitcnt vmcnt(3) lgkmcnt(0)")
            else:
                A("s_waitcnt vmcnt(1) lgkmcnt(0)")
            A("s_branch %s" % ls1w)
            A.label(le)
            A("ds_write_b32 %s, %s" % (v(46), v(47)))
            finish(0)
        else:
            A("ds_write_b32 %s, %s" % (v(46), v(47)))
            finish(2)
        stamp()
        A.label(lb4)
        for i in range(optval("g1", 0)):
            A("s_nop 7")
        if "late" in opt:
            A("s_waitcnt vmcnt(1)")
        else:
            s1load(RING)
            A("s_waitcnt vmcnt(%d)" % (5 if "early1" in opt else 3))
        for ch in QK_CHAIN:
            land(ch[0])
        zero(VACC, RING)
        A("s_xor_b32 %s, %s, 1" % (s(sPh), s(sPh)))
        if "late" in opt:
            s1load(RING)
        for i in range(optval("g2", 0)):
            A("s_nop 7")
        if "first0" in opt:
            A("s_waitcnt vmcnt(0)")
        A("s_waitcnt lgkmcnt(0)")
        if stamps and "rt" not in opt:
            ldump = A.new("dump")
            A("s_cmp_eq_u32 %s, 41" % s(sStep))
            A("s_cbranch_scc1 %s" % ldump)
            A("s_cmp_eq_u32 %s, 42" % s(sStep))
            A("s_cbranch_scc0 %s" % ls1w)
            A.label(ldump)
            for i in range(10):
                A("v_writelane_b32 %s, %s, %d" % (v(vTmp), s(sStamp + 2 * i), i))
            A("v_writelane_b32 %s, %s, %d" % (v(vTmp), s(sBud), 15))
            A("s_lshl_b32 %s, %s, 2" % (s(sT), s(sCU)))
            A("s_add_u32 %s, %s, %s" % (s(sT), s(sT), s(sW)))
            A("s_lshl_b32 %s, %s, 1" % (s(sT), s(sT)))
            A("s_add_u32 %s, %s, %s" % (s(sT), s(sT), s(sStep)))
            A("s_sub_u32 %s, %s, 41" % (s(sT), s(sT)))
            A("s_lshl_b32 %s, %s, 10" % (s(sT), s(sT)))
            A("s_add_u32 %s, %s, %d" % (s(sT), s(sT), WS_DBG + (3 << 18 if "mega" in opt else 0)))
            A("buffer_store_dword %s, %s, %s, %s offen" % (v(vTmp), v(vL16), s(sWS, 4), s(sT)))
            A("s_waitcnt vmcnt(0)")
        A("s_branch %s" % ls1w)
        A.label(ls1r + "_give")
        A("s_mov_b32 %s, 0" % s(sBud))
        A("s_branch %s" % lentry)
        A.label(lexit)
        if "tt" in opt:
            A("s_memtime s[94:95]")
            A("s_memrealtime s[70:71]")
            A("s_waitcnt lgkmcnt(0)")
            A("s_sub_u32 s94, s94, s92")
            A("s_sub_u32 s92, s92, s90")
            A("v_writelane_b32 %s, s92, 0" % v(vTmp))
            A("v_writelane_b32 %s, s94, 1" % v(vTmp))
            A("v_writelane_b32 %s, %s, 2" % (v(vTmp), s(sBud)))
            for i in range(3):
                A("v_writelane_b32 %s, s%d, %d" % (v(vTmp), 87 + i, 3 + i))
            for i in range(4):
                A("v_writelane_b32 %s, s%d, %d" % (v(vTmp), 64 + 2 * i, 6 + i))
            A("s_lshl_b32 %s, %s, 2" % (s(sT), s(sCU)))
            A("s_add_u32 %s, %s, %s" % (s(sT), s(sT), s(sW)))
            A("s_lshl_b32 %s, %s, 10" % (s(sT), s(sT)))
            A("s_add_u32 %s, %s, %d" % (s(sT), s(sT), WS_DBG + (1 << 19)))
            A("buffer_store_dword %s, %s, %s, %s offen" % (v(vTmp), v(vL16), s(sWS, 4), s(sT)))
            if "dbgout" in opt:
                for i, o in enumerate((4, 8, 12, 20)):
                    A("v_mov_b32 %s, s%d" % (v(vTmp), 64 + 2 * i))
                    A("buffer_atomic_umax %s, off, %s, 0 offset:%d" % (v(vTmp), s(sDBG, 4), o))
        A("s_waitcnt vmcnt(0)")

    loop(" sc1" if "forcesc1" in opt else "")
    A("s_endpgm")
    A.label(lslow)
    nst[0] = 0
    loop(" sc1")
```

```python
from asmlib import *
from layout import *
import struct, math

def f32bits(x):
    return struct.unpack("<I", struct.pack("<f", x))[0]

sWS, sW1, sW2, sW3, sWO, sXS, sDBG = 4, 8, 12, 16, 20, 24, 28
sWid, sW, sSl, sRep, sSeg, sBud = 32, 33, 34, 35, 36, 37
sA0 = 38
sT = 60
sMask = 64
sSel = 80
vL16, vLane, vG, vC, vX, vTmp, vFl = 0, 1, 2, 3, 4, 5, 6
NSLOT = 9
L_SCR = 147456

TS = {'on': False, 'reg': 15}
sTsI = 98
def ts(A, idx=None):
    if not TS['on'] or (TS.get('fine') and idx is None):
        return
    A("s_memrealtime s[96:97]")
    A("s_waitcnt lgkmcnt(0)")
    A.lds = []
    if idx is None:
        A("s_mov_b32 m0, %s" % s(sTsI))
        A("s_add_u32 %s, %s, 1" % (s(sTsI), s(sTsI)))
        A("v_writelane_b32 %s, s96, m0" % v(TS['reg']))
    else:
        A("v_writelane_b32 %s, s96, %d" % (v(TS['reg']), idx))
def fs(A, idx):
    if TS.get('fine'):
        A("s_memtime s[96:97]")
        A("s_waitcnt lgkmcnt(0)")
        A.lds = []
        A("v_writelane_b32 %s, s96, %d" % (v(TS['reg']), idx))
def ts_dump(A, part):
    if not TS['on']:
        return
    A("s_lshl_b32 s96, %s, 2" % s(sWid))
    A("s_add_u32 s96, s96, %s" % s(sW))
    A("s_lshl_b32 s96, s96, 9")
    A("s_add_u32 s96, s96, %d" % (WS_DBG + part * 256))
    A("v_lshlrev_b32 %s, 2, %s" % (v(vTmp), v(vLane)))
    A("buffer_store_dword %s, %s, %s, s96 offen" % (v(TS['reg']), v(vTmp), s(sWS, 4)))
    A("s_waitcnt vmcnt(0)")
    A("s_mov_b32 %s, 0" % s(sTsI))

def build_srd(A, d, karg, nbytes):
    A("s_load_dwordx2 %s, s[0:1], %d" % (s(d, 2), karg))
    A("s_waitcnt lgkmcnt(0)")
    A("s_and_b32 %s, %s, 0xffff" % (s(d + 1), s(d + 1)))
    A("s_mov_b32 %s, %d" % (s(d + 2), nbytes))
    A("s_mov_b32 %s, 0x20000" % s(d + 3))

def wait_flags(A, voff, soff, srd=sWS, cmp_ge=None, imm=0):
    lp, ok = A.new("wf"), A.new("wfok")
    A.label(lp)
    if voff is None:
        A("buffer_load_dword %s, off, %s, %s offset:%d sc1" % (v(vTmp), s(srd, 4), soff, imm))
    else:
        A("buffer_load_dword %s, %s, %s, %s offen offset:%d sc1" % (v(vTmp), v(voff), s(srd, 4), soff, imm))
    A("s_waitcnt vmcnt(0)")
    if cmp_ge is None:
        A("v_cmp_eq_u32 vcc, 0, %s" % v(vTmp))
    else:
        A("v_cmp_gt_u32 vcc, %d, %s" % (cmp_ge, v(vTmp)))
    A("s_cbranch_vccz %s" % ok)
    A("s_sleep %d" % TS.get('slp', 2))
    A("s_sub_u32 %s, %s, 1" % (s(sBud), s(sBud)))
    A("s_cbranch_scc0 %s" % lp)
    A("s_mov_b32 %s, 0" % s(sBud))
    A.label(ok)
    A.vm = []

def wait_ready(A, soff, n):
    if TS.get('cnt') and n != 128:
        wait_flags(A, None, soff, cmp_ge=n)
    else:
        wait_flags(A, None, soff, imm=128)

def set_flag(A, soff, wave0_only=True):
    sk = A.new("sf")
    if wave0_only:
        A("s_cmp_lg_u32 %s, 0" % s(sW))
        A("s_cbranch_scc1 %s" % sk)
    A("s_mov_b64 exec, 1")
    A("v_mov_b32 %s, 1" % v(vTmp))
    A("buffer_store_dword %s, off, %s, %s sc1" % (v(vTmp), s(sWS, 4), soff))
    A("s_mov_b64 exec, -1")
    A.label(sk)

def arrive(A, soff, n, wave0_only=True):
    sk = A.new("ar")
    if wave0_only:
        A("s_cmp_lg_u32 %s, 0" % s(sW))
        A("s_cbranch_scc1 %s" % sk)
    A("s_mov_b64 exec, 1")
    A("v_mov_b32 %s, 1" % v(vTmp))
    if TS.get('cnt') and n != 128:
        A("buffer_atomic_add %s, off, %s, %s" % (v(vTmp), s(sWS, 4), soff))
        A("s_mov_b64 exec, -1")
        A.label(sk)
        return
    A("buffer_atomic_add %s, off, %s, %s sc0" % (v(vTmp), s(sWS, 4), soff))
    A("s_waitcnt vmcnt(0)")
    A("v_cmpx_eq_u32 vcc, %d, %s" % (n - 1, v(vTmp)))
    A("s_cbranch_execz %s_x" % sk)
    A("buffer_store_dword %s, off, %s, %s offset:128 sc1" % (v(vTmp), s(sWS, 4), soff))
    A.label(sk + "_x")
    A("s_mov_b64 exec, -1")
    A.label(sk)

def canary(A, soff, imm=0, voff=None):
    lp, ok = A.new("cn"), A.new("cnok")
    A.label(lp)
    if voff is None:
        A("buffer_load_dword %s, off, %s, %s offset:%d sc1" % (v(vTmp), s(sWS, 4), soff, imm))
    else:
        A("buffer_load_dword %s, %s, %s, %s offen offset:%d sc1" % (v(vTmp), v(voff), s(sWS, 4), soff, imm))
    A("s_waitcnt vmcnt(0)")
    A("v_cmp_eq_u32 vcc, -1, %s" % v(vTmp))
    A("s_cbranch_vccz %s" % ok)
    A("s_sleep 1")
    A("s_sub_u32 %s, %s, 1" % (s(sBud), s(sBud)))
    A("s_cbranch_scc0 %s" % lp)
    A("s_mov_b32 %s, 0" % s(sBud))
    A.label(ok)
def maxchain(A, regs, first):
    regs = list(regs)
    if first:
        A("v_max_u32 %s, %s, %s" % (v(vTmp), v(regs[0]), v(regs[1])))
        regs = regs[2:]
    for i in range(0, len(regs), 2):
        A("v_max3_u32 %s, %s, %s, %s" % (v(vTmp), v(vTmp), v(regs[i]), v(regs[i + 1])))
def retry_if_sentinel(A, lagain):
    ok = A.new("sok")
    A("v_cmp_eq_u32 vcc, -1, %s" % v(vTmp))
    A("s_cbranch_vccz %s" % ok)
    A("s_sub_u32 %s, %s, 1" % (s(sBud), s(sBud)))
    A("s_cbranch_scc0 %s" % lagain)
    A("s_mov_b32 %s, 0" % s(sBud))
    A.label(ok)

def MF(A, d, a_, b_, c_):
    A("v_mfma_f32_16x16x32_bf16 %s, %s, %s, %s" % (d, a_, b_, c_))

sLW = 99
def stage_issue(A, chunks, c):
    srd, voff, so, _ = chunks[c]
    for j in range(4):
        A("s_add_u32 m0, %s, %d" % (s(sLW), (c % NSLOT) * 16384 + j * 1024))
        A("s_mov_b32 %s, %d" % (s(sT + 2), so[j]))
        A.vmem("buffer_load_dwordx4 %s, %s, %s offen lds" % (v(voff), s(srd, 4), s(sT + 2)), ('c', c))
def stage_start(A, chunks, depth=NSLOT - 1):
    A("s_lshl_b32 %s, %s, 12" % (s(sLW), s(sW)))
    for c in range(min(depth, len(chunks))):
        stage_issue(A, chunks, c)
def stage(A, chunks, started=False, depth=NSLOT - 1):
    if not started:
        stage_start(A, chunks, depth)
    n = len(chunks)
    for c in range(n):
        A.wait_vm(('c', c))
        A("s_barrier")
        if c + depth < n:
            stage_issue(A, chunks, c + depth)
        chunks[c][3]((c % NSLOT) * 16384)
        A.wait_ds()
    A("s_barrier")

def wide_off(A, dst, t1, rowstride, s_extra):
    A("v_lshlrev_b32 %s, 2, %s" % (v(t1), v(vG)))
    A("v_sub_u32 %s, %s, %s" % (v(t1), v(vLane), v(t1)))
    A("v_and_b32 %s, 15, %s" % (v(t1), v(t1)))
    A("v_lshlrev_b32 %s, 4, %s" % (v(t1), v(t1)))
    A("v_mul_u32_u24 %s, %d, %s" % (v(dst), rowstride, v(vG)))
    A("v_add_u32 %s, %s, %s" % (v(dst), v(dst), v(t1)))
    A("s_mul_i32 %s, %s, %d" % (s(sT + 3), s(sW), 16 * rowstride))
    A("s_add_u32 %s, %s, %s" % (s(sT + 3), s(sT + 3), s_extra))
    A("v_add_u32 %s, %s, %s" % (v(dst), s(sT + 3), v(dst)))

def wide_tr(A, dst, t1, s_col, ccmul):
    A("v_mul_u32_u24 %s, %d, %s" % (v(t1), ccmul, v(vX)))
    A("v_lshl_add_u32 %s, %s, 2, %s" % (v(t1), v(vC), v(t1)))
    A("v_add_u32 %s, %s, %s" % (v(t1), s_col, v(t1)))
    A("v_and_b32 %s, 15, %s" % (v(t1), v(t1)))
    A("v_lshlrev_b32 %s, 4, %s" % (v(t1), v(t1)))
    A("v_lshl_add_u32 %s, %s, 3, %s" % (v(dst), v(vG), v(vC)))
    A("v_lshl_add_u32 %s, %s, 8, %s" % (v(dst), v(dst), v(t1)))

def tall_off(A, dst, t1, s_extra):
    A("v_lshrrev_b32 %s, 3, %s" % (v(t1), v(vLane)))
    A("v_mul_u32_u24 %s, 1152, %s" % (v(dst), v(t1)))
    A("v_and_b32 %s, 7, %s" % (v(t1), v(vLane)))
    A("v_lshl_add_u32 %s, %s, 4, %s" % (v(dst), v(t1), v(dst)))
    A("s_mul_i32 %s, %s, %d" % (s(sT + 3), s(sW), 32 * 1152))
    A("s_add_u32 %s, %s, %s" % (s(sT + 3), s(sT + 3), s_extra))
    A("v_add_u32 %s, %s, %s" % (v(dst), s(sT + 3), v(dst)))

def tall_tr(A, dst, kbshift):
    A("v_lshl_add_u32 %s, %s, %d, %s" % (v(dst), v(vG), kbshift, v(vC)))
    A("v_lshlrev_b32 %s, 7, %s" % (v(dst), v(dst)))
    A("v_lshl_add_u32 %s, %s, 3, %s" % (v(dst), v(vX), v(dst)))
    A("s_lshl_b32 %s, %s, 5" % (s(sT + 3), s(sW)))
    A("v_add_u32 %s, %s, %s" % (v(dst), s(sT + 3), v(dst)))

def tr2(A, reg, addr, imm0, imm1):
    A.ds("ds_read_b64_tr_b16 %s, %s offset:%d" % (R(reg, 2), v(addr), imm0))
    A.ds("ds_read_b64_tr_b16 %s, %s offset:%d" % (R(reg + 2, 2), v(addr), imm1))

def x_dma(A, vXo, sSrc, sM0):
    for i in range(9):
        A("s_add_u32 m0, %s, %d" % (s(sM0), 896 * i))
        A("s_nop 0")
        A.vmem("buffer_load_dwordx4 %s, %s, %s offen offset:%d sc1 lds" % (v(vXo), s(sWS, 4), s(sSrc), 128 * i), 'x')

def gemm576(A, vXa, LAND, wreg, acc, ntile, swap, mid=None):
    def rd(ks):
        for tt in range(2):
            A.ds("ds_read_b128 %s, %s offset:%d" % (v(LAND + 8 * (ks & 1) + 4 * tt, 4), v(vXa + (ks & 1)), 18432 * tt + (ks >> 1) * 1024), ('x', ks))
    rd(0)
    for ks in range(18):
        A.wait_ds(('x', ks))
        n = 0
        for t in range(ntile):
            for tt in range(2):
                x = v(LAND + 8 * (ks & 1) + 4 * tt, 4)
                w = R(wreg(t, ks), 4)
                d = v(acc(t, tt), 4)
                if swap(t):
                    MF(A, d, x, w, "0" if ks == 0 else d)
                else:
                    MF(A, d, w, x, "0" if ks == 0 else d)
                n += 1
                if n == 1 and ks + 1 < 18:
                    rd(ks + 1)
        if mid and ks == 4:
            mid()

def wave_sum(A, r, t):
    for k in (8, 4, 2, 1):
        A("s_nop 1")
        A("v_add_f32_dpp %s, %s, %s row_ror:%d row_mask:0xf bank_mask:0xf" % (v(r), v(r), v(r), k))
    for op in ("v_permlane16_swap_b32", "v_permlane32_swap_b32"):
        A("v_mov_b32 %s, %s" % (v(t), v(r)))
        A("s_nop 1")
        A("%s %s, %s" % (op, v(r), v(t)))
        A("v_add_f32 %s, %s, %s" % (v(r), v(r), v(t)))

def rnd2(A, a, b):
    A("v_cvt_pk_bf16_f32 %s, %s, %s" % (v(b), v(a), v(b)))
    A("v_lshlrev_b32 %s, 16, %s" % (v(a), v(b)))
    A("v_and_b32 %s, 0xffff0000, %s" % (v(b), v(b)))
def rnd1(A, a):
    A("v_cvt_pk_bf16_f32 %s, %s, %s" % (v(a), v(a), v(a)))
    A("v_and_b32 %s, 0xffff0000, %s" % (v(a), v(a)))
def unpack(A, lo, hi, src):
    A("v_and_b32 %s, 0xffff0000, %s" % (v(hi), v(src))) if hi != src else None
    A("v_lshlrev_b32 %s, 16, %s" % (v(lo), v(src)))
    if hi == src:
        A("v_and_b32 %s, 0xffff0000, %s" % (v(hi), v(src)))

def row_offsets(A, vRow, vRow2, svalid, t):
    A("v_and_b32 %s, 7, %s" % (v(t), v(vLane)))
    A("v_lshlrev_b32 %s, 4, %s" % (v(vRow), v(t)))
    A("v_bfe_u32 %s, %s, 3, 1" % (v(t), v(vLane)))
    A("v_lshl_add_u32 %s, %s, 8, %s" % (v(vRow), v(t), v(vRow)))
    A("v_lshrrev_b32 %s, 1, %s" % (v(t), v(vG)))
    A("v_lshl_add_u32 %s, %s, 7, %s" % (v(vRow), v(t), v(vRow)))
    A("v_and_b32 %s, 1, %s" % (v(t), v(vG)))
    A("v_lshl_add_u32 %s, %s, 3, %s" % (v(vRow), v(t), v(vRow)))
    A("s_mov_b32 %s, 0x00ff00ff" % s(svalid))
    A("s_mov_b32 %s, 0" % s(svalid + 1))
    A("v_mov_b32 %s, 0x%x" % (v(t), OOB >> 1))
    A("v_cndmask_b32 %s, %s, %s, %s" % (v(vRow2), v(t), v(vRow), s(svalid, 2)))

def load_mod(A, dst, which, vRow, vRow2, t1, t2):
    A("v_lshlrev_b32 %s, 1, %s" % (v(t1), v(vRow)))
    A("v_lshlrev_b32 %s, 1, %s" % (v(t2), v(vRow2)))
    A("s_mov_b32 %s, %d" % (s(sT + 2), WS_MOD + which * 2304))
    for U in range(3):
        A.vmem("buffer_load_dwordx4 %s, %s, %s, %s offen offset:%d sc1" % (v(dst + 4 * U, 4), v(t1 if U < 2 else t2), s(sWS, 4), s(sT + 2), 1024 * U), 'mod')

def ln_stats(A, X, D, svalid, m, rs, t):
    A("v_add_f32 %s, %s, %s" % (v(m), v(X), v(X + 1)))
    for i in range(2, 12):
        A("v_add_f32 %s, %s, %s" % (v(m), v(m), v(X + i)))
    wave_sum(A, m, t)
    A("v_mul_f32 %s, 0x%x, %s" % (v(m), f32bits(1.0 / 576), v(m)))
    for i in range(12):
        A("v_sub_f32 %s, %s, %s" % (v(D + i), v(X + i), v(m)))
    A("v_mul_f32 %s, %s, %s" % (v(rs), v(D + 8), v(D + 8)))
    for i in range(9, 12):
        A("v_fmac_f32 %s, %s, %s" % (v(rs), v(D + i), v(D + i)))
    A("v_cndmask_b32 %s, 0, %s, %s" % (v(rs), v(rs), s(svalid, 2)))
    for i in range(8):
        A("v_fmac_f32 %s, %s, %s" % (v(rs), v(D + i), v(D + i)))
    wave_sum(A, rs, t)
    A("v_mul_f32 %s, 0x%x, %s" % (v(rs), f32bits(1.0 / 576), v(rs)))
    rnd2(A, m, rs)
    A("v_add_f32 %s, 0x%x, %s" % (v(rs), f32bits(1e-5), v(rs)))
    rnd1(A, rs)
    A("v_sqrt_f32 %s, %s" % (v(rs), v(rs)))
    A("s_nop 0")
    rnd1(A, rs)
    A("v_rcp_f32 %s, %s" % (v(rs), v(rs)))
    A("s_nop 0")

def ln_apply(A, X, m, rs, C1, SH, out):
    for i in range(12):
        A("v_sub_f32 %s, %s, %s" % (v(X + i), v(X + i), v(m)))
    for i in range(0, 12, 2):
        rnd2(A, X + i, X + i + 1)
    for i in range(12):
        A("v_mul_f32 %s, %s, %s" % (v(X + i), v(X + i), v(rs)))
    for i in range(0, 12, 2):
        rnd2(A, X + i, X + i + 1)
    for i in range(12):
        A("v_mul_f32 %s, %s, %s" % (v(X + i), v(X + i), v(C1 + i)))
    for i in range(0, 12, 2):
        rnd2(A, X + i, X + i + 1)
    for i in range(12):
        A("v_add_f32 %s, %s, %s" % (v(X + i), v(X + i), v(SH + i)))
    for i in range(6):
        A("v_cvt_pk_bf16_f32 %s, %s, %s" % (v(out + i), v(X + 2 * i), v(X + 2 * i + 1)))

def one_plus(A, C):
    for i in range(12):
        A("v_add_f32 %s, 1.0, %s" % (v(C + i), v(C + i)))
    for i in range(0, 12, 2):
        rnd2(A, C + i, C + i + 1)

def row_io(A, op, reg, vRow, vRow2, srd, soff, flags=""):
    for U in range(3):
        A.vmem("buffer_%s_dwordx2 %s, %s, %s, %s offen offset:%d%s" % (op, v(reg + 2 * U, 2), v(vRow if U < 2 else vRow2), s(srd, 4), soff, 512 * U, flags), 'row')

def sel_masks(A):
    for hi in range(2):
        for u in range(4):
            m16 = (3 << (2 * u)) << (8 * hi)
            m32 = m16 | (m16 << 16)
            A("s_mov_b32 %s, 0x%x" % (s(sSel + 8 * hi + 2 * u), m32))
            A("s_mov_b32 %s, 0x%x" % (s(sSel + 8 * hi + 2 * u + 1), m32))
def make_sel(A, dst, hi, t):
    A("v_and_b32 %s, 1, %s" % (v(t), v(vLane)))
    A("v_lshlrev_b32 %s, 4, %s" % (v(t), v(t)))
    A("v_mov_b32 %s, 0x3f80" % v(dst))
    A("v_lshlrev_b32 %s, %s, %s" % (v(t), v(t), v(dst)))
    for u in range(4):
        A("v_cndmask_b32 %s, 0, %s, %s" % (v(dst + u), v(t), s(sSel + 8 * hi + 2 * u, 2)))

def emit_worker(A, opt=()):
    A.c("=========== worker ===========")
    A("v_mov_b32 %s, v0" % v(vLane))
    A("v_lshlrev_b32 %s, 4, %s" % (v(vL16), v(vLane)))
    A("v_lshrrev_b32 %s, 4, %s" % (v(vG), v(vLane)))
    A("v_bfe_u32 %s, %s, 2, 2" % (v(vC), v(vLane)))
    A("v_and_b32 %s, 3, %s" % (v(vX), v(vLane)))
    A("s_mov_b32 %s, 1000000" % s(sBud))
    TS['on'], TS['reg'], TS['fine'] = "ts" in opt, 79, "fs" in opt
    TS['cnt'] = "cnt" in opt
    TS['slp'] = ([int(o[4:]) for o in opt if o.startswith("slp=")] + [2])[0]
    TS['d2'] = ([int(o[3:]) for o in opt if o.startswith("d2=")] + [2])[0]
    ts(A, 0)
    sel_masks(A)
    build_srd(A, sXS, 0, 2359296)
    vRow, vRow2 = 7, 8
    sValid = sMask
    row_offsets(A, vRow, vRow2, sValid, vTmp)
    A("s_mul_i32 %s, %s, 9363" % (s(sSl), s(sWid)))
    A("s_lshr_b32 %s, %s, 16" % (s(sSl), s(sSl)))
    A("s_mul_i32 %s, %s, 7" % (s(sT), s(sSl)))
    A("s_sub_u32 %s, %s, %s" % (s(sRep), s(sWid), s(sT)))
    vOffW, vTr, vAd = 77, 78, 11
    A("s_lshl_b32 %s, %s, 8" % (s(sT + 1), s(sSl)))
    wide_off(A, vOffW, vTmp, 8192, s(sT + 1))
    A("s_lshr_b32 %s, %s, 1" % (s(sT + 1), s(sW)))
    A("s_lshl_b32 %s, %s, 3" % (s(sT + 1), s(sT + 1)))
    A("s_and_b32 %s, %s, 1" % (s(sT + 2), s(sW)))
    A("s_add_u32 %s, %s, %s" % (s(sT + 1), s(sT + 1), s(sT + 2)))
    wide_tr(A, vTr, vTmp, s(sT + 1), 2)
    W0 = 80
    def wq(t, ks):
        return W0 + 4 * (6 * ks + t)
    def wide_chunks(mats, rowstride, wreg, vOffW=vOffW, vTr=vTr):
        out = []
        for G in range(9):
            for m, srd in enumerate(mats):
                def consume(base, m=m, G=G):
                    A("v_add_u32 %s, %d, %s" % (v(vAd), base, v(vTr)))
                    for k2 in range(2):
                        for t in range(2):
                            tr2(A, wreg(2 * m + t, 2 * G + k2), vAd, 32 * k2 * 256 + 8 * t, (32 * k2 + 4) * 256 + 8 * t)
                out.append((srd, vOffW, [(64 * G + 4 * j) * rowstride for j in range(4)], consume))
        return out
    qchunks = wide_chunks((sW1, sW2, sW3), 8192, wq)
    lmod, lpre_done, lidle = A.new("mod"), A.new("predone"), A.new("idle")
    XR = 16
    A("s_cmp_lt_u32 %s, 3" % s(sRep))
    A("s_cbranch_scc1 %s" % lmod)
    A("s_lshl_b32 %s, %s, 2" % (s(sT), s(sSl)))
    A("s_add_u32 %s, %s, %s" % (s(sT), s(sT), s(sRep)))
    A("s_sub_u32 %s, %s, 3" % (s(sT), s(sT)))
    A("s_lshl_b32 %s, %s, 2" % (s(sT), s(sT)))
    A("s_add_u32 %s, %s, %s" % (s(sT), s(sT), s(sW)))
    A("s_mul_i32 %s, %s, %d" % (s(sA0), s(sT), 4 * 1152))
    for r in range(4):
        A("s_add_u32 %s, %s, %d" % (s(sT), s(sA0), r * 1152))
        row_io(A, "load", XR + 6 * r, vRow, vRow2, sXS, s(sT))
    stage_start(A, qchunks)
    A("s_waitcnt vmcnt(%d)" % (4 * (NSLOT - 1)))
    SH, C1, XF = 40, 52, 100
    for r in range(4):
        for i in range(6):
            unpack(A, XF + 12 * r + 2 * i, XF + 12 * r + 2 * i + 1, XR + 6 * r + i)
        ln_stats(A, XF + 12 * r, 160, sValid, 64 + 2 * r, 65 + 2 * r, 11)
    wait_flags(A, None, "0", srd=sDBG, imm=DBG_MOD)
    load_mod(A, SH, 0, vRow, vRow2, 9, 10)
    load_mod(A, C1, 1, vRow, vRow2, 9, 10)
    A("s_waitcnt vmcnt(0)")
    one_plus(A, C1)
    for r in range(4):
        ln_apply(A, XF + 12 * r, 64 + 2 * r, 65 + 2 * r, C1, SH, XR + 6 * r)
        A("s_add_u32 %s, %s, %d" % (s(sT), s(sA0), WS_H + r * 1152))
        row_io(A, "store", XR + 6 * r, vRow, vRow2, sWS, s(sT), " sc1")
    A("s_waitcnt vmcnt(0)")
    A("s_barrier")
    A("s_mov_b32 %s, %d" % (s(sT), FL_H))
    arrive(A, s(sT), 128)
    A("s_branch %s" % lpre_done)

    A.label(lmod)
    A("s_cmp_eq_u32 %s, 0" % s(sRep))
    A("s_cbranch_scc1 %s" % lidle)
    A("s_cmp_ge_u32 %s, 27" % s(sSl))
    A("s_cbranch_scc1 %s" % lidle)
    build_srd(A, sA0 + 2, 88, 1152)
    build_srd(A, sA0 + 6, 96, 3981312)
    sCs, sWm = sA0 + 2, sA0 + 6
    A("s_lshl_b32 %s, %s, 1" % (s(sA0), s(sSl)))
    A("s_add_u32 %s, %s, %s" % (s(sA0), s(sA0), s(sRep)))
    A("s_sub_u32 %s, %s, 1" % (s(sA0), s(sA0)))
    for i in range(4):
        A("v_mov_b32 %s, 0" % v(12 + i))
    A("s_lshl_b32 %s, %s, 2" % (s(sT), s(sA0)))
    A("s_add_u32 %s, %s, %s" % (s(sT), s(sT), s(sW)))
    A("s_lshl_b32 %s, %s, 11" % (s(sT), s(sT)))
    A("s_add_u32 %s, %s, %d" % (s(sT), s(sT), WS_FL))
    assert FL_END - WS_FL <= 54 * 8192
    A("buffer_store_dwordx4 %s, %s, %s, %s offen sc1" % (v(12, 4), v(vL16), s(sWS, 4), s(sT)))
    A("buffer_store_dwordx4 %s, %s, %s, %s offen offset:1024 sc1" % (v(12, 4), v(vL16), s(sWS, 4), s(sT)))
    A("v_lshrrev_b32 %s, 3, %s" % (v(9), v(vLane)))
    A("s_mul_i32 %s, %s, 144" % (s(sT), s(sW)))
    A("v_add_u32 %s, %s, %s" % (v(9), s(sT), v(9)))
    A("v_lshlrev_b32 %s, 1, %s" % (v(10), v(9)))
    A("v_mul_u32_u24 %s, 6912, %s" % (v(9), v(9)))
    A("v_and_b32 %s, 7, %s" % (v(11), v(vLane)))
    A("v_lshl_add_u32 %s, %s, 4, %s" % (v(9), v(11), v(9)))
    A("s_lshl_b32 %s, %s, 7" % (s(sT), s(sA0)))
    CV, WV, ACC = 100, 120, 200
    for i in range(18):
        A("buffer_load_ushort %s, %s, %s, 0 offen offset:%d" % (v(CV + i), v(10), s(sCs, 4), 16 * i))
    for i in range(18):
        A("s_add_u32 %s, %s, %d" % (s(sT + 1), s(sT), i * 55296))
        A("buffer_load_dwordx4 %s, %s, %s, %s offen" % (v(WV + 4 * i, 4), v(9), s(sWm, 4), s(sT + 1)))
    A("s_waitcnt vmcnt(18)")
    for i in range(18):
        c = CV + i
        A("v_lshlrev_b32 %s, 16, %s" % (v(c), v(c)))
        A("v_mul_f32 %s, 0x%x, %s" % (v(12), f32bits(-math.log2(math.e)), v(c)))
        A("v_exp_f32 %s, %s" % (v(12), v(12)))
        A("s_nop 0")
        A("v_add_f32 %s, 1.0, %s" % (v(12), v(12)))
        A("v_rcp_f32 %s, %s" % (v(12), v(12)))
        A("s_nop 0")
        A("v_mul_f32 %s, %s, %s" % (v(c), v(c), v(12)))
        rnd1(A, c)
    for j in range(8):
        A("v_mov_b32 %s, 0" % v(ACC + j))
    A("s_waitcnt vmcnt(0)")
    for i in range(18):
        for j in range(4):
            unpack(A, 12, 13, WV + 4 * i + j)
            A("v_fmac_f32 %s, %s, %s" % (v(ACC + 2 * j), v(12), v(CV + i)))
            A("v_fmac_f32 %s, %s, %s" % (v(ACC + 2 * j + 1), v(13), v(CV + i)))
    for j in range(8):
        r = ACC + j
        A("s_nop 1")
        A("v_add_f32_dpp %s, %s, %s row_ror:8 row_mask:0xf bank_mask:0xf" % (v(r), v(r), v(r)))
        for op in ("v_permlane16_swap_b32", "v_permlane32_swap_b32"):
            A("v_mov_b32 %s, %s" % (v(12), v(r)))
            A("s_nop 1")
            A("%s %s, %s" % (op, v(r), v(12)))
            A("v_add_f32 %s, %s, %s" % (v(r), v(r), v(12)))
    A("s_lshl_b32 %s, %s, 8" % (s(sT + 1), s(sW)))
    A("s_add_u32 %s, %s, %d" % (s(sT + 1), s(sT + 1), L_SCR))
    A("v_lshlrev_b32 %s, 5, %s" % (v(11), v(11)))
    A("v_add_u32 %s, %s, %s" % (v(11), s(sT + 1), v(11)))
    A("ds_write_b128 %s, %s" % (v(11), v(ACC, 4)))
    A("ds_write_b128 %s, %s offset:16" % (v(11), v(ACC + 4, 4)))
    A("s_waitcnt lgkmcnt(0)")
    A("s_barrier")
    A("v_lshlrev_b32 %s, 2, %s" % (v(10), v(vLane)))
    A("v_add_u32 %s, %d, %s" % (v(11), L_SCR, v(10)))
    for i in range(4):
        A("ds_read_b32 %s, %s offset:%d" % (v(12 + i), v(11), 256 * i))
    A("s_waitcnt lgkmcnt(0)")
    A("v_add_f32 %s, %s, %s" % (v(12), v(12), v(13)))
    A("v_add_f32 %s, %s, %s" % (v(14), v(14), v(15)))
    A("v_add_f32 %s, %s, %s" % (v(12), v(12), v(14)))
    rnd1(A, 12)
    A("s_lshl_b32 %s, %s, 8" % (s(sT), s(sA0)))
    A("s_add_u32 %s, %s, %d" % (s(sT), s(sT), WS_MOD))
    sk = A.new("modw")
    A("s_cmp_lg_u32 %s, 0" % s(sW))
    A("s_cbranch_scc1 %s" % sk)
    A("buffer_store_dword %s, %s, %s, %s offen sc1" % (v(12), v(10), s(sWS, 4), s(sT)))
    A("s_waitcnt vmcnt(0)")
    A("s_mov_b64 exec, 1")
    A("v_mov_b32 %s, 1" % v(12))
    A("buffer_atomic_add %s, off, %s, 0 offset:%d sc0" % (v(12), s(sDBG, 4), DBG_MODC))
    A("s_waitcnt vmcnt(0)")
    A("v_cmpx_eq_u32 vcc, 53, %s" % v(12))
    A("s_cbranch_execz %s_x" % sk)
    A("buffer_store_dword %s, off, %s, 0 offset:%d sc1" % (v(12), s(sDBG, 4), DBG_MOD))
    A.label(sk + "_x")
    A("s_mov_b64 exec, -1")
    A.label(sk)
    A.label(lidle)
    stage_start(A, qchunks)
    A.label(lpre_done)
    ts(A, 1)

    A.vm, A.lds = [('c', c) for c in range(NSLOT - 1) for j in range(4)], []
    stage(A, qchunks, started=True)
    ts(A, 2)
    wait_flags(A, None, "0", srd=sDBG, imm=DBG_MOD)
    ts(A, 3)
    ts(A, 4)
    if TS['on']:
        A("v_mov_b32 v15, v79")
        A("s_mov_b32 %s, 8" % s(sTsI))
        TS['reg'] = 15
    A("s_mov_b32 %s, %d" % (s(sT), FL_H))
    wait_flags(A, None, s(sT), imm=128)
    ts(A, 5)
    vXo, vXa = 9, 10
    LAND, ACC = 16, 32
    sSrc, sM0x, sQo, sKo, sFlag, sBuf = sA0, sA0 + 1, sA0 + 2, sA0 + 3, sA0 + 4, sA0 + 5
    def xsetup(vXa):
        A("v_lshrrev_b32 %s, 3, %s" % (v(vTmp), v(vLane)))
        A("v_xor_b32 %s, %s, %s" % (v(vXa), v(vTmp), v(vLane)))
        A("v_and_b32 %s, 7, %s" % (v(vXa), v(vXa)))
        A("v_mul_u32_u24 %s, 1152, %s" % (v(vXo), v(vTmp)))
        A("v_lshl_add_u32 %s, %s, 4, %s" % (v(vXo), v(vXa), v(vXo)))
        A("s_mul_i32 %s, %s, 9216" % (s(sM0x), s(sW)))
        A("v_add_u32 %s, %s, %s" % (v(vXo), s(sM0x), v(vXo)))
        A("v_and_b32 %s, 7, %s" % (v(vTmp), v(vLane)))
        A("v_xor_b32 %s, %s, %s" % (v(vXa), v(vG), v(vTmp)))
        A("v_lshlrev_b32 %s, 4, %s" % (v(vXa), v(vXa)))
        A("v_lshl_add_u32 %s, %s, 7, %s" % (v(vXa), v(vTmp), v(vXa)))
        A("v_bfe_u32 %s, %s, 3, 1" % (v(vTmp), v(vLane)))
        A("v_mul_u32_u24 %s, 9216, %s" % (v(vTmp), v(vTmp)))
        A("v_add_u32 %s, %s, %s" % (v(vXa), v(vXa), v(vTmp)))
        A("v_xor_b32 %s, 64, %s" % (v(vXa + 1), v(vXa)))
    xsetup(vXa)
    A("s_mov_b32 %s, %s" % (s(sSeg), s(sRep)))
    A("s_mul_i32 %s, %s, 36864" % (s(sSrc), s(sSeg)))
    A("s_add_u32 %s, %s, %d" % (s(sSrc), s(sSrc), WS_H))
    A("s_lshl_b32 %s, %s, 5" % (s(sT), s(sSeg)))
    A("s_add_u32 %s, %s, %s" % (s(sT), s(sT), s(sSl)))
    A("s_lshl_b32 %s, %s, 10" % (s(sT + 1), s(sW)))
    A("s_lshl_b32 %s, %s, 13" % (s(sQo), s(sT)))
    A("s_add_u32 %s, %s, %s" % (s(sQo), s(sQo), s(sT + 1)))
    A("s_add_u32 %s, %s, %d" % (s(sQo), s(sQo), WS_Q))
    A("s_lshl_b32 %s, %s, 14" % (s(sKo), s(sT)))
    A("s_add_u32 %s, %s, %s" % (s(sKo), s(sKo), s(sT + 1)))
    if WS_KV:
        A("s_add_u32 %s, %s, %d" % (s(sKo), s(sKo), WS_KV))
    A("s_mov_b32 %s, 0x%x" % (s(sFlag), OOB))
    A.vm = []
    x_dma(A, vXo, sSrc, sM0x)
    A("s_waitcnt vmcnt(0)")
    ltop, lend = A.new("qkv"), A.new("qkvend")
    A.label(ltop)
    lq1, lq2 = A.new("q1"), A.new("q2")
    A("s_cmp_ge_u32 %s, 14" % s(sSeg))
    A("s_cbranch_scc1 %s" % lq1)
    A("s_waitcnt vmcnt(0)")
    A("s_barrier")
    set_flag(A, s(sFlag))
    A("s_branch %s" % lq2)
    A.label(lq1)
    A("s_waitcnt vmcnt(7)")
    A("s_barrier")
    A.label(lq2)
    ts(A)
    fs(A, 20)
    A("s_xor_b32 %s, %s, 0x10000" % (s(sM0x), s(sM0x)))
    A("s_add_u32 %s, %s, %d" % (s(sSrc), s(sSrc), 7 * 36864))
    x_dma(A, vXo, sSrc, sM0x)
    def mid():
        A("s_waitcnt vmcnt(9)")
        A("s_barrier")
        set_flag(A, s(sFlag))
    fs(A, 21)
    A.lds = []
    gemm576(A, vXa, LAND, wq, lambda t, tt: ACC + 8 * t + 4 * tt, 6, lambda t: t >= 4, mid)
    fs(A, 22)
    A("v_xor_b32 %s, 0x10000, %s" % (v(vXa), v(vXa)))
    A("v_xor_b32 %s, 0x10000, %s" % (v(vXa + 1), v(vXa + 1)))
    A("s_lshl_b32 %s, %s, 8" % (s(sFlag), s(sSl)))
    A("s_lshl_b32 %s, %s, 2" % (s(sT), s(sSeg)))
    A("s_add_u32 %s, %s, %s" % (s(sFlag), s(sFlag), s(sT)))
    A("s_add_u32 %s, %s, %d" % (s(sFlag), s(sFlag), FL_KV))
    A("s_add_u32 %s, %s, 4096" % (s(sT), s(sQo)))
    A("s_add_u32 %s, %s, 4096" % (s(sT + 1), s(sKo)))
    A("s_lshl_b32 %s, %s, 10" % (s(sT + 2), s(sW)))
    A("s_add_u32 %s, %s, %s" % (s(sT + 2), s(sT + 2), s(sKo)))
    A("s_add_u32 %s, %s, 8192" % (s(sT + 2), s(sT + 2)))
    for m in range(2):
        for tt in range(2):
            a0, a1 = ACC + 16 * m + 4 * tt, ACC + 16 * m + 8 + 4 * tt
            for x in range(4):
                A("v_cvt_pk_bf16_f32 %s, %s, %s" % (v(a0 + x), v(a0 + x), v(a1 + x)))
            so = (sQo, sT, sKo, sT + 1)[2 * m + tt]
            A("buffer_store_dwordx4 %s, %s, %s, %s offen sc1" % (v(a0, 4), v(vL16), s(sWS, 4), s(so)))
    for t in range(2):
        a0 = ACC + 32 + 8 * t
        A("v_cvt_pk_bf16_f32 %s, %s, %s" % (v(a0), v(a0), v(a0 + 1)))
        A("v_cvt_pk_bf16_f32 %s, %s, %s" % (v(a0 + 1), v(a0 + 2), v(a0 + 3)))
        A("v_cvt_pk_bf16_f32 %s, %s, %s" % (v(a0 + 2), v(a0 + 4), v(a0 + 5)))
        A("v_cvt_pk_bf16_f32 %s, %s, %s" % (v(a0 + 3), v(a0 + 6), v(a0 + 7)))
        A("buffer_store_dwordx4 %s, %s, %s, %s offen offset:%d sc1" % (v(a0, 4), v(vL16), s(sWS, 4), s(sT + 2), 1024 * t))
    A("v_mov_b64 %s, -1" % v(LAND, 2))
    A("v_mov_b64 %s, -1" % v(LAND + 2, 2))
    A("s_sub_u32 %s, %s, %d" % (s(sT), s(sQo), WS_Q))
    A("s_lshl_b32 %s, %s, 10" % (s(sT + 1), s(sW)))
    A("s_add_u32 %s, %s, %s" % (s(sT), s(sT), s(sT + 1)))
    A("s_lshr_b32 %s, %s, 1" % (s(sT), s(sT)))
    A("s_add_u32 %s, %s, %d" % (s(sT), s(sT), WS_KM))
    A("buffer_store_dwordx4 %s, %s, %s, %s offen sc1" % (v(LAND, 4), v(vL16), s(sWS, 4), s(sT)))
    fs(A, 23)
    A("s_add_u32 %s, %s, %d" % (s(sQo), s(sQo), 7 * 32 * 8192))
    A("s_add_u32 %s, %s, %d" % (s(sKo), s(sKo), 7 * 32 * 16384))
    A("s_add_u32 %s, %s, 7" % (s(sSeg), s(sSeg)))
    A("s_cmp_lt_u32 %s, 64" % s(sSeg))
    A("s_cbranch_scc1 %s" % ltop)
    A("s_waitcnt vmcnt(0)")
    A("s_barrier")
    set_flag(A, s(sFlag))
    ts(A, 6)
    ts_dump(A, 0)
    if "p1only" in opt:
        return
    lC = A.new("roleC")
    A("s_cmp_ge_u32 %s, 80" % s(sWid))
    A("s_cbranch_scc1 %s" % lC)
    lB = A.new("roleB")
    A("s_cmp_ge_u32 %s, 64" % s(sWid))
    A("s_cbranch_scc1 %s" % lB)
    emit_roleA(A, opt)
    A("s_endpgm")
    A.label(lB)
    emit_roleB(A, vRow, vRow2, sValid, opt)
    A("s_endpgm")
    A.label(lC)
    emit_roleC(A, xsetup, wide_chunks, opt)

def emit_roleA(A, opt):
    A.c("=========== role A: attention + Wo partial ===========")
    A("s_lshr_b32 %s, %s, 2" % (s(sSl), s(sWid)))
    A("s_and_b32 %s, %s, 3" % (s(sRep), s(sWid)))
    vOff, vTr, vAd = 9, 10, 11
    A("s_mul_i32 %s, %s, %d" % (s(sT + 1), s(sSl), 2 * 147456))
    tall_off(A, vOff, vTmp, s(sT + 1))
    tall_tr(A, vTr, 4)
    W0 = 224
    def wo(G, K):
        return W0 + 4 * (8 * G + K)
    chunks = []
    for hd in range(2):
        for G in range(9):
            def consume(base, hd=hd, G=G):
                A("v_add_u32 %s, %d, %s" % (v(vAd), base, v(vTr)))
                for ks in range(4):
                    r0 = 64 * (ks >> 1) + 8 * (ks & 1)
                    tr2(A, wo(G, 4 * hd + ks), vAd, r0 * 128, (r0 + 4) * 128)
            chunks.append((sWO, vOff, [hd * 147456 + 8 * j * 1152 + 128 * G for j in range(4)], consume))
    A.vm, A.lds = ['old'] * 2, []
    stage(A, chunks, depth=TS['d2'])
    TS['reg'] = 19
    ts(A)
    vKM, vL4, vOwr, vTw, vTrd, vPst, vPld, vNEG = 9, 10, 11, 12, 13, 14, 15, 16
    GA, SB, CB = 20, 32, 44
    SEL0, SEL1 = 56, 60
    QF, KX, VX, KM, VM = 64, 80, 112, 144, 160
    S_, OA = 176, 188
    WACC, LAND = 144, 216
    L_OT, L_PT = 0, 16384
    PSTR = 1168
    A("v_lshlrev_b32 %s, 2, %s" % (v(vL4), v(vLane)))
    A("v_lshrrev_b32 %s, 1, %s" % (v(vTmp), v(vG)))
    A("v_lshlrev_b32 %s, 10, %s" % (v(vKM), v(vTmp)))
    A("v_and_b32 %s, 1, %s" % (v(vTmp), v(vX)))
    A("v_lshl_add_u32 %s, %s, 8, %s" % (v(vKM), v(vTmp), v(vKM)))
    A("v_lshl_add_u32 %s, %s, 6, %s" % (v(vKM), v(vC), v(vKM)))
    A("v_and_b32 %s, 1, %s" % (v(vTmp), v(vG)))
    A("v_lshl_add_u32 %s, %s, 5, %s" % (v(vKM), v(vTmp), v(vKM)))
    A("s_and_b32 %s, %s, 1" % (s(sT), s(sW)))
    A("s_lshl_b32 %s, %s, 13" % (s(sT + 1), s(sT)))
    A("s_lshr_b32 %s, %s, 1" % (s(sT + 2), s(sW)))
    A("s_lshl_b32 %s, %s, 12" % (s(sT + 3), s(sT + 2)))
    A("s_add_u32 %s, %s, %s" % (s(sT + 1), s(sT + 1), s(sT + 3)))
    A("v_add_u32 %s, %s, %s" % (v(vOwr), s(sT + 1), v(vL16)))
    A("v_and_b32 %s, 15, %s" % (v(17), v(vLane)))
    A("s_lshl_b32 %s, %s, 4" % (s(sT + 1), s(sT)))
    A("v_add_u32 %s, %s, %s" % (v(17), s(sT + 1), v(17)))
    A("v_lshlrev_b32 %s, 2, %s" % (v(18), v(vG)))
    A("v_sub_u32 %s, %s, %s" % (v(17), v(17), v(18)))
    sCM = sA0 + 6
    for i in range(8):
        A("v_cmp_le_i32 %s, %d, %s" % (s(sCM + 2 * i, 2), 16 * (i >> 2) + (i & 3), v(17)))
    A("v_mov_b32 %s, 0x%x" % (v(vNEG), f32bits(-1e9)))
    A("v_and_b32 %s, 15, %s" % (v(vTmp), v(vLane)))
    A("v_mul_u32_u24 %s, %d, %s" % (v(vTw), PSTR, v(vTmp)))
    A("v_lshl_add_u32 %s, %s, 3, %s" % (v(vTw), v(vG), v(vTw)))
    A("s_lshl_b32 %s, %s, 5" % (s(sT + 1), s(sW)))
    A("s_add_u32 %s, %s, %d" % (s(sT + 1), s(sT + 1), L_PT))
    A("v_add_u32 %s, %s, %s" % (v(vTw), s(sT + 1), v(vTw)))
    A("v_lshrrev_b32 %s, 3, %s" % (v(17), v(vLane)))
    A("v_and_b32 %s, 7, %s" % (v(18), v(vLane)))
    A("v_lshlrev_b32 %s, 4, %s" % (v(18), v(18)))
    A("s_lshl_b32 %s, %s, 3" % (s(sT + 1), s(sW)))
    A("v_add_u32 %s, %s, %s" % (v(17), s(sT + 1), v(17)))
    A("v_mul_u32_u24 %s, %d, %s" % (v(vTrd), PSTR, v(17)))
    A("v_add_u32 %s, %s, %s" % (v(vTrd), v(vTrd), v(18)))
    A("v_add_u32 %s, %d, %s" % (v(vTrd), L_PT, v(vTrd)))
    A("v_mul_u32_u24 %s, 18432, %s" % (v(vPst), v(17)))
    A("v_add_u32 %s, %s, %s" % (v(vPst), v(vPst), v(18)))
    A("s_mul_i32 %s, %s, 1152" % (s(sT + 1), s(sSl)))
    A("v_add_u32 %s, %s, %s" % (v(vPst), s(sT + 1), v(vPst)))
    sHead, sSH, sPAo, sRowo = sA0, sA0 + 1, sA0 + 2, sA0 + 3
    A("s_lshl_b32 %s, %s, 1" % (s(sHead), s(sSl)))
    A("s_lshr_b32 %s, %s, 1" % (s(sT), s(sW)))
    A("s_add_u32 %s, %s, %s" % (s(sHead), s(sHead), s(sT)))
    A("s_mov_b32 %s, %s" % (s(sSeg), s(sRep)))
    A("s_lshl_b32 %s, %s, 8" % (s(sT), s(sHead)))
    A("s_add_u32 %s, %s, %d" % (s(sT), s(sT), FL_KV))
    wait_flags(A, vL4, s(sT))
    A("s_lshl_b32 %s, %s, 5" % (s(sSH), s(sSeg)))
    A("s_add_u32 %s, %s, %s" % (s(sSH), s(sSH), s(sHead)))
    def prefetch():
        A("s_lshl_b32 %s, %s, 13" % (s(sT), s(sSH)))
        A("s_and_b32 %s, %s, 1" % (s(sT + 1), s(sW)))
        A("s_lshl_b32 %s, %s, 12" % (s(sT + 1), s(sT + 1)))
        A("s_add_u32 %s, %s, %s" % (s(sT), s(sT), s(sT + 1)))
        A("s_add_u32 %s, %s, %d" % (s(sT), s(sT), WS_Q))
        for i in range(4):
            A("buffer_load_dwordx4 %s, %s, %s, %s offen offset:%d sc1" % (v(QF + 4 * i, 4), v(vL16), s(sWS, 4), s(sT), 1024 * i))
        A("s_lshl_b32 %s, %s, 14" % (s(sT), s(sSH)))
        if WS_KV:
            A("s_add_u32 %s, %s, %d" % (s(sT), s(sT), WS_KV))
        for b in range(4):
            for i in range(4):
                A("buffer_load_dwordx4 %s, %s, %s, %s offen offset:%d sc1" % (v(KX + 16 * b + 4 * i, 4), v(vL16), s(sWS, 4), s(sT), 1024 * i))
            if b < 3:
                A("s_add_u32 %s, %s, 4096" % (s(sT), s(sT)))
    A("s_add_u32 %s, %s, 60" % (s(sT), s(sRep)))
    A("s_mul_i32 %s, %s, %d" % (s(sT), s(sT), PA_SEG))
    A("s_add_u32 %s, %s, %d" % (s(sT), s(sT), WS_PA))
    A("v_mov_b64 %s, -1" % v(20, 2))
    A("v_mov_b64 %s, -1" % v(22, 2))
    for G in range(9):
        A("buffer_store_dwordx4 %s, %s, %s, %s offen offset:%d sc1" % (v(20, 4), v(vPst), s(sWS, 4), s(sT), 128 * G))
    PFL = ([int(o[4:]) for o in opt if o.startswith("pfl=")] + [32])[0]
    lpf = A.new("apf")
    A.label(lpf)
    prefetch()
    ltop = A.new("atop")
    A.label(ltop)
    T1, T2, T0 = S_, S_ + 4, S_ + 8
    sv = [S_ + i for i in range(10)]
    m1, m2 = 17, 18
    def prep_scores(vals):
        for i in range(0, len(vals), 2):
            rnd2(A, vals[i], vals[i + 1])
        for x in vals:
            A("v_mul_f32 %s, 0x%x, %s" % (v(x), f32bits(128 ** -0.5), v(x)))
        for i in range(0, len(vals), 2):
            rnd2(A, vals[i], vals[i + 1])
    A("s_waitcnt vmcnt(0)")
    for ks in range(4):
        MF(A, v(T1, 4), v(KX + 4 * ks, 4), v(QF + 4 * ks, 4), "0" if ks == 0 else v(T1, 4))
        MF(A, v(T2, 4), v(KX + 16 + 4 * ks, 4), v(QF + 4 * ks, 4), "0" if ks == 0 else v(T2, 4))
    for T in range(8):
        A("v_mov_b32 %s, 0" % v(VM + 2 * T + 1))
    A("s_lshl_b32 %s, %s, 12" % (s(sRowo), s(sSH)))
    A("s_add_u32 %s, %s, %d" % (s(sRowo), s(sRowo), WS_KM))
    prep_scores(sv[:8])
    for i in range(8):
        A("v_cndmask_b32 %s, %s, %s, %s" % (v(sv[i]), v(vNEG), v(sv[i]), s(sCM + 2 * i, 2)))
    A("v_max3_f32 %s, %s, %s, %s" % (v(m1), v(sv[0]), v(sv[1]), v(sv[2])))
    for i in (3, 5):
        A("v_max3_f32 %s, %s, %s, %s" % (v(m1), v(m1), v(sv[i]), v(sv[i + 1])))
    A("v_max_f32 %s, %s, %s" % (v(m1), v(m1), v(sv[7])))
    lc, lf, lok = A.new("can"), A.new("full"), A.new("pubok")
    A("s_cmp_ge_u32 %s, %d" % (s(sSeg), ([int(o[4:]) for o in opt if o.startswith("can=")] + [56])[0]))
    A("s_cbranch_scc1 %s" % lc)
    A("s_lshl_b32 %s, %s, 7" % (s(sT), s(sSH)))
    A("s_add_u32 %s, %s, %d" % (s(sT), s(sT), FL_PUB))
    wait_flags(A, None, s(sT))
    A("s_branch %s" % lf)
    A.label(lc)
    A("buffer_load_dword %s, off, %s, %s offset:4092 sc1" % (v(vTmp), s(sWS, 4), s(sRowo)))
    A("s_waitcnt vmcnt(0)")
    A("v_cmp_eq_u32 vcc, -1, %s" % v(vTmp))
    A("s_cbranch_vccz %s" % lf)
    A("s_sleep 1")
    A("s_sub_u32 %s, %s, 1" % (s(sBud), s(sBud)))
    A("s_cbranch_scc0 %s" % lc)
    A("s_mov_b32 %s, 0" % s(sBud))
    A.label(lf)
    ts(A)
    fs(A, 0)
    A.label(lf + "_r")
    for ks in range(4):
        A("buffer_load_dwordx4 %s, %s, %s, %s offen offset:%d sc1" % (v(KM + 4 * ks, 4), v(vKM), s(sWS, 4), s(sRowo), (ks >> 1) * 2048 + (ks & 1) * 16))
    for T in range(8):
        A("buffer_load_dword %s, %s, %s, %s offen offset:%d sc1" % (v(VM + 2 * T), v(vL4), s(sWS, 4), s(sRowo), (T >> 1) * 1024 + 512 + (T & 1) * 256))
    A("s_waitcnt vmcnt(8)")
    fs(A, 1)
    for ks in range(4):
        MF(A, v(T0, 4), v(KM + 4 * ks, 4), v(QF + 4 * ks, 4), "0" if ks == 0 else v(T0, 4))
        for h in range(2):
            r = KM + 4 * ks + 2 * h
            if ks == 0 and h == 0:
                A("v_max_u32 %s, %s, %s" % (v(vTmp), v(r), v(r + 1)))
            else:
                A("v_max3_u32 %s, %s, %s, %s" % (v(vTmp), v(vTmp), v(r), v(r + 1)))
    A("s_waitcnt vmcnt(0)")
    for T in range(0, 8, 2):
        A("v_max3_u32 %s, %s, %s, %s" % (v(vTmp), v(vTmp), v(VM + 2 * T), v(VM + 2 * T + 2)))
    A("v_cmp_eq_u32 vcc, -1, %s" % v(vTmp))
    A("s_cbranch_vccz %s" % lok)
    A("s_sub_u32 %s, %s, 1" % (s(sBud), s(sBud)))
    A("s_cbranch_scc0 %s_r" % lf)
    A("s_mov_b32 %s, 0" % s(sBud))
    A.label(lok)
    prep_scores(sv[8:])
    A("v_max3_f32 %s, %s, %s, %s" % (v(m1), v(m1), v(sv[8]), v(sv[9])))
    def xl(op):
        for sw in ("v_permlane32_swap_b32", "v_permlane16_swap_b32"):
            A("v_mov_b32 %s, %s" % (v(m2), v(m1)))
            A("s_nop 1")
            A("%s %s, %s" % (sw, v(m1), v(m2)))
            A("%s %s, %s, %s" % (op, v(m1), v(m1), v(m2)))
    xl("v_max_f32")
    for x in sv:
        A("v_sub_f32 %s, %s, %s" % (v(x), v(x), v(m1)))
    for x in sv:
        A("v_mul_f32 %s, 0x%x, %s" % (v(x), f32bits(math.log2(math.e)), v(x)))
    for x in sv:
        A("v_exp_f32 %s, %s" % (v(x), v(x)))
    A("v_add_f32 %s, %s, %s" % (v(m1), v(sv[0]), v(sv[1])))
    for x in sv[2:]:
        A("v_add_f32 %s, %s, %s" % (v(m1), v(m1), v(x)))
    xl("v_add_f32")
    A("v_rcp_f32 %s, %s" % (v(m1), v(m1)))
    A("s_nop 0")
    for x in sv:
        A("v_mul_f32 %s, %s, %s" % (v(x), v(x), v(m1)))
    for i in range(4):
        A("v_cvt_pk_bf16_f32 %s, %s, %s" % (v(S_ + i), v(sv[2 * i]), v(sv[2 * i + 1])))
    A("v_cvt_pk_bf16_f32 %s, %s, %s" % (v(T0), v(T0), v(T0 + 1)))
    A("v_mov_b32 %s, 0" % v(T0 + 1))
    A("s_nop 1")
    A.lds = []
    def opack(c):
        b = OA + 8 * c
        for i in range(4):
            A("v_cvt_pk_bf16_f32 %s, %s, %s" % (v(b + i), v(b + 2 * i), v(b + 2 * i + 1)))
        A.ds("ds_write_b128 %s, %s offset:%d" % (v(vOwr), v(b, 4), L_OT + 1024 * c))
    for c in range(4):
        for T in (2 * c, 2 * c + 1):
            MF(A, v(OA + 4 * T, 4), v(VX + 4 * T, 4), v(S_, 4), "0")
        for T in (2 * c, 2 * c + 1):
            A("v_mfma_f32_16x16x16_bf16 %s, %s, %s, %s" % (v(OA + 4 * T, 4), v(VM + 2 * T, 2), v(T0, 2), v(OA + 4 * T, 4)))
        if c >= 2:
            opack(c - 2)
    opack(2)
    opack(3)
    fs(A, 2)
    A("s_mul_i32 %s, %s, %d" % (s(sPAo), s(sSeg), PA_SEG))
    A("s_add_u32 %s, %s, %d" % (s(sPAo), s(sPAo), WS_PA))
    A.wait_ds()
    A("s_barrier")
    fs(A, 3)
    OFR, WA, TB = 144, 20, 44
    for n in range(16):
        A.ds("ds_read_b128 %s, %s offset:%d" % (v(OFR + 4 * n, 4), v(vL16), L_OT + (n & 1) * 8192 + (n >> 1) * 1024), ('o', n))
    lnp = A.new("nopf")
    A("s_add_u32 %s, %s, 128" % (s(sSH), s(sSH)))
    def epi(G, tt):
        b = WA + 8 * (G % 3) + 4 * tt
        A("v_cvt_pk_bf16_f32 %s, %s, %s" % (v(b), v(b), v(b + 1)))
        A("v_cvt_pk_bf16_f32 %s, %s, %s" % (v(b + 1), v(b + 2), v(b + 3)))
    def epw(G, tt):
        A.ds("ds_write_b64 %s, %s offset:%d" % (v(vTw), v(WA + 8 * (G % 3) + 4 * tt, 2), tt * 16 * PSTR + 128 * G), ('w', G))
    def lrd(G):
        A.ds("ds_read_b128 %s, %s offset:%d" % (v(TB + 4 * (G & 1), 4), v(vTrd), 128 * G), ('t', G))
    def lst(G):
        A.wait_ds(('t', G))
        A("buffer_store_dwordx4 %s, %s, %s, %s offen offset:%d sc1" % (v(TB + 4 * (G & 1), 4), v(vPst), s(sWS, 4), s(sPAo), 128 * G))
    for G in range(9):
        for n in range(16):
            K, tt = n >> 1, n & 1
            if G == 0:
                A.wait_ds(('o', n))
            d = v(WA + 8 * (G % 3) + 4 * tt, 4)
            MF(A, d, R(wo(G, K), 4), v(OFR + 4 * n, 4), "0" if K == 0 else d)
            if G >= 1:
                if n == 5 and G >= 2:
                    lst(G - 2)
                if n == 7:
                    epi(G - 1, 0)
                if n == 8:
                    epw(G - 1, 0)
                    epi(G - 1, 1)
                if n == 9:
                    epw(G - 1, 1)
                if n == 15:
                    A.wait_ds(('w', G - 1))
                    A("s_barrier")
                    lrd(G - 1)
        if G == 0:
            A("s_cmp_ge_u32 %s, %d" % (s(sSeg), PFL))
            A("s_cbranch_scc1 %s" % lnp)
            prefetch()
            A.label(lnp)
    fs(A, 4)
    A("s_nop 3")
    epi(8, 0)
    epi(8, 1)
    epw(8, 0)
    epw(8, 1)
    lst(7)
    A.wait_ds()
    A("s_barrier")
    lrd(8)
    lst(8)
    fs(A, 6)
    A("s_waitcnt vmcnt(0)")
    A("s_barrier")
    fs(A, 7)
    A("s_lshl_b32 %s, %s, 8" % (s(sT), s(sSeg)))
    A("s_add_u32 %s, %s, %d" % (s(sT), s(sT), FL_PA))
    arrive(A, s(sT), 16)
    fs(A, 8)
    ts(A)
    A("s_add_u32 %s, %s, 4" % (s(sSeg), s(sSeg)))
    A("s_cmp_lt_u32 %s, %d" % (s(sSeg), PFL + 4))
    A("s_cbranch_scc1 %s" % ltop)
    A("s_cmp_lt_u32 %s, 64" % s(sSeg))
    A("s_cbranch_scc1 %s" % lpf)
    ts_dump(A, 1)

def emit_roleB(A, vRow, vRow2, sValid, opt):
    A.c("=========== role B: reduce + residual + LN2, one row per wave ===========")
    TS['reg'] = 19
    GA, SB, CB = 20, 32, 44
    SEL0, SEL1 = 56, 60
    vPld = 15
    load_mod(A, GA, 2, vRow, vRow2, 17, 18)
    load_mod(A, SB, 3, vRow, vRow2, 17, 18)
    load_mod(A, CB, 4, vRow, vRow2, 17, 18)
    make_sel(A, SEL0, 0, vTmp)
    make_sel(A, SEL1, 1, vTmp)
    A("v_lshrrev_b32 %s, 3, %s" % (v(17), v(vLane)))
    A("v_and_b32 %s, 7, %s" % (v(18), v(vLane)))
    A("v_lshlrev_b32 %s, 4, %s" % (v(18), v(18)))
    A("v_mul_u32_u24 %s, 1152, %s" % (v(vPld), v(17)))
    A("v_add_u32 %s, %s, %s" % (v(vPld), v(vPld), v(18)))
    A("s_waitcnt vmcnt(0)")
    one_plus(A, CB)
    sRow, sRowo = sA0 + 5, sA0 + 3
    A("s_sub_u32 %s, %s, 64" % (s(sRow), s(sWid)))
    A("s_lshl_b32 %s, %s, 1" % (s(sRow), s(sRow)))
    A("s_and_b32 %s, %s, 1" % (s(sT), s(sW)))
    A("s_add_u32 %s, %s, %s" % (s(sRow), s(sRow), s(sT)))
    A("s_lshr_b32 %s, %s, 1" % (s(sSeg), s(sW)))
    A("v_and_b32 %s, 15, %s" % (v(vFl), v(vLane)))
    A("v_lshlrev_b32 %s, 2, %s" % (v(vFl), v(vFl)))
    for i in range(6):
        A("v_mov_b32 %s, -1" % v(64 + i))
    for k in range(2):
        A("s_add_u32 %s, %s, %d" % (s(sT), s(sSeg), 60 + 2 * k))
        A("s_lshl_b32 %s, %s, 5" % (s(sT), s(sT)))
        A("s_add_u32 %s, %s, %s" % (s(sT), s(sT), s(sRow)))
        A("s_mul_i32 %s, %s, 1152" % (s(sT), s(sT)))
        A("s_add_u32 %s, %s, %d" % (s(sT), s(sT), WS_H2))
        row_io(A, "store", 64, vRow, vRow2, sWS, s(sT), " sc1")
        A("s_add_u32 %s, %s, %d" % (s(sT), s(sT), WS_X1 - WS_H2))
        row_io(A, "store", 64, vRow, vRow2, sWS, s(sT), " sc1")
    A("v_and_b32 %s, 15, %s" % (v(vFl), v(vLane)))
    A("v_mul_u32_u24 %s, 1152, %s" % (v(vFl), v(vFl)))
    ltop = A.new("btop")
    A.label(ltop)
    A("s_lshl_b32 %s, %s, 5" % (s(sT), s(sSeg)))
    A("s_add_u32 %s, %s, %s" % (s(sA0 + 2), s(sT), s(sRow)))
    A("s_mul_i32 %s, %s, 1152" % (s(sRowo), s(sA0 + 2)))
    XR, RD, XF, DD = 216, 176, 196, 144
    row_io(A, "load", XR, vRow, vRow2, sXS, s(sRowo))
    A("s_lshl_b32 %s, %s, 8" % (s(sT), s(sSeg)))
    A("s_add_u32 %s, %s, %d" % (s(sT), s(sT), FL_PA))
    lcan, lgo, lre = A.new("bcan"), A.new("bgo"), A.new("bre")
    A("s_mul_i32 %s, %s, 18432" % (s(sA0), s(sA0 + 2)))
    A("s_add_u32 %s, %s, %d" % (s(sA0), s(sA0), WS_PA))
    A("s_add_u32 %s, %s, 9216" % (s(sA0 + 1), s(sA0)))
    A("s_cmp_ge_u32 %s, 60" % s(sSeg))
    A("s_cbranch_scc1 %s" % lcan)
    wait_ready(A, s(sT), 16)
    A("s_branch %s" % lgo)
    A.label(lcan)
    canary(A, s(sA0), imm=124 + 128 * ([int(o[4:]) for o in opt if o.startswith("bim=")] + [4])[0], voff=vFl)
    A.label(lgo)
    ts(A)
    A.label(lre)
    LD = 64
    A.vm = []
    for i in range(9):
        for h in range(2):
            A.vmem("buffer_load_dwordx4 %s, %s, %s, %s offen offset:%d sc1" % (v(LD + 8 * i + 4 * h, 4), v(vPld), s(sWS, 4), s(sA0 + h), 128 * i), ('p', i))
    for i in range(9):
        A.wait_vm(('p', i))
        d = v(RD + 4 * (i >> 1), 4)
        sel = v(SEL1 if i & 1 else SEL0, 4)
        MF(A, d, sel, v(LD + 8 * i, 4), "0" if not (i & 1) else d)
        maxchain(A, range(LD + 8 * i, LD + 8 * i + 4), i == 0)
        MF(A, d, sel, v(LD + 8 * i + 4, 4), d)
        maxchain(A, range(LD + 8 * i + 4, LD + 8 * i + 8), False)
    retry_if_sentinel(A, lre)
    for i in range(4):
        A("v_mov_b32 %s, 0" % v(XF + 8 + i))
    A("s_nop 3")
    for T in range(5):
        for jj in range(4):
            A("v_add_f32_dpp %s, %s, %s row_ror:8 row_mask:0xf bank_mask:0x%x" % (v(XF + 4 * (T >> 1) + jj), v(RD + 4 * T + jj), v(RD + 4 * T + jj), 0xc if T & 1 else 0x3))
    for i in range(0, 12, 2):
        rnd2(A, XF + i, XF + i + 1)
    for i in range(12):
        A("v_mul_f32 %s, %s, %s" % (v(XF + i), v(XF + i), v(GA + i)))
    for i in range(0, 12, 2):
        rnd2(A, XF + i, XF + i + 1)
    for i in range(6):
        unpack(A, DD, DD + 1, XR + i)
        A("v_add_f32 %s, %s, %s" % (v(XF + 2 * i), v(XF + 2 * i), v(DD)))
        A("v_add_f32 %s, %s, %s" % (v(XF + 2 * i + 1), v(XF + 2 * i + 1), v(DD + 1)))
        A("v_cvt_pk_bf16_f32 %s, %s, %s" % (v(XR + i), v(XF + 2 * i), v(XF + 2 * i + 1)))
        unpack(A, XF + 2 * i, XF + 2 * i + 1, XR + i)
    A("s_add_u32 %s, %s, %d" % (s(sT), s(sRowo), WS_X1))
    row_io(A, "store", XR, vRow, vRow2, sWS, s(sT), " sc1")
    ln_stats(A, XF, DD, sValid, 160, 161, 162)
    ln_apply(A, XF, 160, 161, CB, SB, 164)
    A("s_add_u32 %s, %s, %d" % (s(sT), s(sRowo), WS_H2))
    row_io(A, "store", 164, vRow, vRow2, sWS, s(sT), " sc1")
    A("s_waitcnt vmcnt(0)")
    A("s_lshl_b32 %s, %s, 8" % (s(sT), s(sSeg)))
    A("s_add_u32 %s, %s, %d" % (s(sT), s(sT), FL_H2))
    arrive(A, s(sT), 32, wave0_only=False)
    ts(A)
    A("s_add_u32 %s, %s, 2" % (s(sSeg), s(sSeg)))
    A("s_cmp_lt_u32 %s, 64" % s(sSeg))
    A("s_cbranch_scc1 %s" % ltop)
    ts_dump(A, 1)

def emit_roleC(A, xsetup, wide_chunks, opt):
    A.c("=========== role C: gate/up + down partial + output ===========")
    A("s_sub_u32 %s, %s, 80" % (s(sT), s(sWid)))
    A("s_lshr_b32 %s, %s, 2" % (s(sSl), s(sT)))
    A("s_and_b32 %s, %s, 3" % (s(sRep), s(sT)))
    build_srd(A, sW1, 64, 5308416)
    build_srd(A, sW2, 72, 5308416)
    build_srd(A, sW3, 80, 5308416)
    build_srd(A, sWO, 104, 2359296)
    vOffW, vTr, vAd, vOffD, vTrD = 9, 10, 11, 12, 13
    A("s_lshl_b32 %s, %s, 8" % (s(sT + 1), s(sSl)))
    wide_off(A, vOffW, vTmp, 9216, s(sT + 1))
    A("s_lshl_b32 %s, %s, 2" % (s(sT + 1), s(sW)))
    wide_tr(A, vTr, vTmp, s(sT + 1), 1)
    A("s_mul_i32 %s, %s, 147456" % (s(sT + 1), s(sSl)))
    tall_off(A, vOffD, vTmp, s(sT + 1))
    tall_tr(A, vTrD, 3)
    W0 = 80
    def wg(t, ks):
        return W0 + 4 * (4 * ks + t)
    def wd(G, ks):
        return W0 + 288 + 4 * (4 * G + ks)
    chunks = wide_chunks((sW1, sW2), 9216, wg, vOffW, vTr)
    for G in range(9):
        def consume(base, G=G):
            A("v_add_u32 %s, %d, %s" % (v(vAd), base, v(vTrD)))
            for ks in range(4):
                tr2(A, wd(G, ks), vAd, 32 * ks * 128, (32 * ks + 4) * 128)
        chunks.append((sW3, vOffD, [8 * j * 1152 + 128 * G for j in range(4)], consume))
    A.vm, A.lds = ['old'] * 2, []
    stage(A, chunks, depth=TS['d2'])
    vXo = 9
    sSrc, sM0x = sA0, sA0 + 1
    vXa = 7
    xsetup(vXa)
    vHw, vRl, vOo = 6, 2, 3
    LAND, ACC, PK = 10, 26, 62
    L_HH = 40960
    A("s_lshl_b32 %s, %s, 10" % (s(sT), s(sW)))
    A("s_add_u32 %s, %s, %d" % (s(sT), s(sT), L_HH))
    A("v_add_u32 %s, %s, %s" % (v(vHw), s(sT), v(vL16)))
    A("v_and_b32 %s, 15, %s" % (v(vTmp), v(vLane)))
    A("v_lshlrev_b32 %s, 4, %s" % (v(vTmp), v(vTmp)))
    A("v_lshl_add_u32 %s, %s, 10, %s" % (v(vRl), v(vG), v(vTmp)))
    A("s_lshl_b32 %s, %s, 8" % (s(sT), s(sW)))
    A("v_add_u32 %s, %s, %s" % (v(vRl), s(sT), v(vRl)))
    A("v_mul_u32_u24 %s, 1152, %s" % (v(vOo), v(vLane)))
    A("s_lshl_b32 %s, %s, 5" % (s(sT), s(sSl)))
    A("s_lshl_b32 %s, %s, 3" % (s(sT + 1), s(sW)))
    A("s_add_u32 %s, %s, %s" % (s(sT), s(sT), s(sT + 1)))
    A("v_add_u32 %s, %s, %s" % (v(vOo), s(sT), v(vOo)))
    A("v_mov_b32 %s, 0x%x" % (v(vTmp), OOB))
    A("v_cmp_gt_u32 vcc, 32, %s" % v(vLane))
    A("s_nop 1")
    A("v_cndmask_b32 %s, %s, %s, vcc" % (v(vOo), v(vTmp), v(vOo)))
    A("s_lshl_b32 %s, %s, 1" % (s(sT), s(sT)))
    A("s_add_u32 %s, %s, %d" % (s(sT), s(sT), WS_MOD + 5 * 2304))
    A("buffer_load_dwordx4 %s, off, %s, %s sc1" % (v(ACC, 4), s(sWS, 4), s(sT)))
    A("s_waitcnt vmcnt(0)")
    sGB = sA0 + 8
    for i in range(4):
        A("v_readfirstlane_b32 %s, %s" % (s(sGB + i), v(ACC + i)))
    A("s_mov_b32 %s, %s" % (s(sSeg), s(sRep)))
    sPCo, sFl = sA0 + 2, sA0 + 3
    TS['reg'] = 4
    sPrev = sA0 + 5
    CIM = ([int(o[4:]) for o in opt if o.startswith("cim=")] + [1024])[0]
    A("s_add_u32 %s, %s, 60" % (s(sT), s(sRep)))
    A("s_mul_i32 %s, %s, %d" % (s(sT), s(sT), PC_SEG))
    A("s_mul_i32 %s, %s, 36" % (s(sT + 1), s(sW)))
    A("s_add_u32 %s, %s, %s" % (s(sT + 1), s(sT + 1), s(sSl)))
    A("s_lshl_b32 %s, %s, 10" % (s(sT + 1), s(sT + 1)))
    A("s_add_u32 %s, %s, %s" % (s(sT), s(sT), s(sT + 1)))
    A("s_add_u32 %s, %s, %d" % (s(sT), s(sT), WS_PC))
    A("v_mov_b64 %s, -1" % v(ACC, 2))
    A("v_mov_b64 %s, -1" % v(ACC + 2, 2))
    for G in range(9):
        A("buffer_store_dwordx4 %s, %s, %s, %s offen sc1" % (v(ACC, 4), v(vL16), s(sWS, 4), s(sT)))
        A("s_add_u32 %s, %s, %d" % (s(sT), s(sT), 4 * 36 * 1024))
    def reduce_out(last=False):
        A("s_lshl_b32 %s, %s, 8" % (s(sFl), s(sPrev)))
        A("s_mul_i32 %s, %s, 36864" % (s(sA0 + 6), s(sPrev)))
        make_sel(A, LAND, 0, vTmp)
        if not last:
            A("s_add_u32 %s, %s, %d" % (s(sFl), s(sFl), FL_PC))
            wait_ready(A, s(sFl), 36)
        ts(A)
        lre = A.new("cre")
        A.label(lre)
        A("s_add_u32 %s, %s, %d" % (s(sT), s(sA0 + 6), WS_X1))
        A("buffer_load_dwordx2 %s, %s, %s, %s offen sc1" % (v(LAND + 8, 2), v(vOo), s(sWS, 4), s(sT)))
        A("s_mul_i32 %s, %s, %d" % (s(sT), s(sSl), 36 * 1024))
        A("s_add_u32 %s, %s, %s" % (s(sT), s(sT), s(sPCo)))
        A.vm = []
        for i in range(9):
            A.vmem("buffer_load_dwordx4 %s, %s, %s, %s offen sc1" % (v(ACC + 4 * i, 4), v(vRl), s(sWS, 4), s(sT)), ('p', i))
            if i < 8:
                A("s_add_u32 %s, %s, 4096" % (s(sT), s(sT)))
        D = LAND + 4
        for i in range(9):
            A.wait_vm(('p', i))
            MF(A, v(D, 4), v(LAND, 4), v(ACC + 4 * i, 4), "0" if i == 0 else v(D, 4))
            if last:
                maxchain(A, range(ACC + 4 * i, ACC + 4 * i + 4), i == 0)
        if last:
            maxchain(A, (LAND + 8, LAND + 9), False)
            retry_if_sentinel(A, lre)
    def reduce_fin():
        D = LAND + 4
        unpack(A, LAND + 10, LAND + 11, LAND + 8)
        unpack(A, LAND + 12, LAND + 13, LAND + 9)
        A("s_nop 3")
        rnd2(A, D, D + 1)
        rnd2(A, D + 2, D + 3)
        for i in range(4):
            A("v_mul_f32 %s, %s, %s" % (v(D + i), s(sGB + i), v(D + i)))
        rnd2(A, D, D + 1)
        rnd2(A, D + 2, D + 3)
        for i in range(4):
            A("v_add_f32 %s, %s, %s" % (v(D + i), v(D + i), v(LAND + 10 + i)))
        A("v_cvt_pk_bf16_f32 %s, %s, %s" % (v(D), v(D), v(D + 1)))
        A("v_cvt_pk_bf16_f32 %s, %s, %s" % (v(D + 1), v(D + 2), v(D + 3)))
        A("buffer_store_dwordx2 %s, %s, %s, %s offen%s" % (v(D, 2), v(vOo), s(sWO, 4), s(sA0 + 6), " sc1" if "outsc1" in opt else " nt" if "outnt" in opt else ""))
        ts(A)
    ltop, lfirst = A.new("ctop"), A.new("cfirst")
    def h2wait():
        A("s_lshl_b32 %s, %s, 8" % (s(sT), s(sSeg)))
        A("s_add_u32 %s, %s, %d" % (s(sT), s(sT), FL_H2))
        A("s_mul_i32 %s, %s, 36864" % (s(sSrc), s(sSeg)))
        A("s_add_u32 %s, %s, %d" % (s(sSrc), s(sSrc), WS_H2))
        lcan, lj, lre = A.new("ccan"), A.new("cj"), A.new("cxre")
        A("s_cmp_ge_u32 %s, 60" % s(sSeg))
        A("s_cbranch_scc1 %s" % lcan)
        wait_ready(A, s(sT), 32)
        ts(A)
        fs(A, 0)
        x_dma(A, vXo, sSrc, sM0x)
        A("s_branch %s" % lj)
        A.label(lcan)
        lnow = A.new("cnow")
        A("buffer_load_dword %s, %s, %s, %s offen offset:1024 sc1" % (v(vTmp), v(vXo), s(sWS, 4), s(sSrc)))
        A("s_waitcnt vmcnt(0)")
        A("v_cmp_eq_u32 vcc, -1, %s" % v(vTmp))
        A("s_cbranch_vccz %s" % lnow)
        reduce_out()
        reduce_fin()
        A("s_mov_b32 %s, -1" % s(sPrev))
        A.label(lnow)
        canary(A, s(sSrc), imm=CIM, voff=vXo)
        ts(A)
        fs(A, 0)
        A.label(lre)
        for i in range(9):
            A("buffer_load_dwordx4 %s, %s, %s, %s offen offset:%d sc1" % (v(ACC + 4 * i, 4), v(vXo), s(sWS, 4), s(sSrc), 128 * i))
        A("v_add_u32 %s, %s, %s" % (v(LAND), s(sM0x), v(vL16)))
        for i in range(9):
            A("s_waitcnt vmcnt(%d)" % (8 - i))
            A("ds_write_b128 %s, %s offset:%d" % (v(LAND), v(ACC + 4 * i, 4), 1024 * i))
            maxchain(A, range(ACC + 4 * i, ACC + 4 * i + 4), i == 0)
        retry_if_sentinel(A, lre)
        A("s_waitcnt lgkmcnt(0)")
        A.label(lj)
    A.label(ltop)
    h2wait()
    fs(A, 1)
    A("s_waitcnt vmcnt(0)")
    A("s_barrier")
    fs(A, 2)
    A.lds = []
    GAC = [ACC, ACC + 16]
    HP = ACC + 32
    fill = []
    def F(n):
        for _ in range(n):
            if fill:
                fill.pop(0)()
    def gu_epi(tt):
        for t in range(2):
            g_, u_ = GAC[tt] + 4 * t, GAC[tt] + 8 + 4 * t
            for jj in range(4):
                fill.append(lambda a=g_ + jj, b=u_ + jj: A("v_cvt_pk_bf16_f32 %s, %s, %s" % (v(b), v(a), v(b))))
                fill.append(lambda a=g_ + jj, b=u_ + jj: A("v_lshlrev_b32 %s, 16, %s" % (v(a), v(b))))
                fill.append(lambda b=u_ + jj: A("v_and_b32 %s, 0xffff0000, %s" % (v(b), v(b))))
                fill.append(lambda a=g_ + jj, b=u_ + jj: A("v_mul_f32 %s, %s, %s" % (v(a), v(a), v(b))))
            fill.append(lambda t=t, g_=g_: A("v_cvt_pk_bf16_f32 %s, %s, %s" % (v(HP + 2 * t), v(g_), v(g_ + 1))))
            fill.append(lambda t=t, g_=g_: A("v_cvt_pk_bf16_f32 %s, %s, %s" % (v(HP + 2 * t + 1), v(g_ + 2), v(g_ + 3))))
        fill.append(lambda: A.ds("ds_write_b128 %s, %s offset:%d" % (v(vHw), v(HP, 4), 4096 * tt), ('hw', tt)))
    def xrd(n):
        tt, ks = n // 18, n % 18
        A.ds("ds_read_b128 %s, %s offset:%d" % (v(LAND + 4 * (n % 4), 4), v(vXa + (ks & 1)), 18432 * tt + (ks >> 1) * 1024), ('x', n))
    def hrd(tt, ks):
        A.ds("ds_read_b128 %s, %s offset:%d" % (v(LAND + 4 * ks, 4), v(vL16), L_HH + 4096 * tt + 1024 * ks), ('h', tt, ks))
    for n in range(3):
        xrd(n)
    for n in range(36):
        tt, ks = n // 18, n % 18
        A.wait_ds(('x', n))
        for t in range(4):
            d = v(GAC[tt] + 4 * t, 4)
            MF(A, d, R(wg(t, ks), 4), v(LAND + 4 * (n % 4), 4), "0" if ks == 0 else d)
            if t == 0 and n + 3 < 36:
                xrd(n + 3)
            elif t == 0:
                hrd(0, n - 33)
            else:
                F(2)
        if n == 19:
            gu_epi(0)
        if n == 31:
            assert not fill
            A.wait_ds(('hw', 0))
            A("s_barrier")
    fs(A, 3)
    hrd(0, 3)
    A("s_mul_i32 %s, %s, %d" % (s(sA0 + 4), s(sSeg), PC_SEG))
    A("s_add_u32 %s, %s, %d" % (s(sA0 + 4), s(sA0 + 4), WS_PC))
    A("s_mul_i32 %s, %s, 36" % (s(sT), s(sW)))
    A("s_add_u32 %s, %s, %s" % (s(sT), s(sT), s(sSl)))
    A("s_lshl_b32 %s, %s, 10" % (s(sT), s(sT)))
    A("s_add_u32 %s, %s, %s" % (s(sT), s(sT), s(sA0 + 4)))
    DA = lambda G: ACC + 4 * (G % 4)
    def dn_epi(tt, G):
        b = DA(G + 9 * tt)
        if tt == 0:
            fill.append(lambda: A("v_cvt_pk_bf16_f32 %s, %s, %s" % (v(PK + 2 * G), v(b), v(b + 1))))
            fill.append(lambda: A("v_cvt_pk_bf16_f32 %s, %s, %s" % (v(PK + 2 * G + 1), v(b + 2), v(b + 3))))
        else:
            fill.append(lambda: A("v_cvt_pk_bf16_f32 %s, %s, %s" % (v(b + 3), v(b + 2), v(b + 3))))
            fill.append(lambda: A("v_cvt_pk_bf16_f32 %s, %s, %s" % (v(b + 2), v(b), v(b + 1))))
            fill.append(lambda: A("v_mov_b64 %s, %s" % (v(b, 2), v(PK + 2 * G, 2))))
            fill.append(lambda: A("buffer_store_dwordx4 %s, %s, %s, %s offen sc1" % (v(b, 4), v(vL16), s(sWS, 4), s(sT))))
            fill.append(lambda: A("s_add_u32 %s, %s, %d" % (s(sT), s(sT), 4 * 36 * 1024)))
    H1 = GAC[1]
    gu_epi(1)
    gl = list(fill)
    del fill[:]
    for N in range(18):
        tt, G = N // 9, N % 9
        if N >= 2:
            dn_epi((N - 2) // 9, (N - 2) % 9)
            pend = list(fill)
            del fill[:]
        else:
            pend = []
        for ks in range(4):
            if G == 0:
                A.wait_ds(('h', tt, ks))
            d = v(DA(N), 4)
            MF(A, d, R(wd(G, ks), 4), v((LAND if tt == 0 else H1) + 4 * ks, 4), "0" if ks == 0 else d)
            k = 0
            if ks >= 1 or len(pend) > 4:
                while pend and k < 2:
                    pend.pop(0)()
                    k += 1
            while gl and k < 2:
                gl.pop(0)()
                k += 1
            while k < 1:
                A("s_nop 0")
                k += 1
        assert not pend
        if N == 6:
            assert not gl
            A.wait_ds(('hw', 1))
            A("s_barrier")
            for ks in range(4):
                A.ds("ds_read_b128 %s, %s offset:%d" % (v(H1 + 4 * ks, 4), v(vL16), L_HH + 4096 + 1024 * ks), ('h', 1, ks))
    dn_epi(1, 7)
    F(len(fill))
    A("s_nop 1")
    dn_epi(1, 8)
    F(len(fill))
    fs(A, 5)
    llast = A.new("clast")
    A("s_cmp_ge_u32 %s, 60" % s(sSeg))
    A("s_cbranch_scc1 %s" % llast)
    A("s_waitcnt vmcnt(0)")
    A("s_barrier")
    fs(A, 6)
    A("s_lshl_b32 %s, %s, 8" % (s(sT), s(sSeg)))
    A("s_add_u32 %s, %s, %d" % (s(sT), s(sT), FL_PC))
    arrive(A, s(sT), 36)
    fs(A, 7)
    ts(A)
    A("s_cmp_lt_u32 %s, 4" % s(sSeg))
    A("s_cbranch_scc1 %s" % lfirst)
    reduce_out()
    reduce_fin()
    A.label(lfirst)
    A("s_mov_b32 %s, %s" % (s(sPrev), s(sSeg)))
    A("s_mov_b32 %s, %s" % (s(sPCo), s(sA0 + 4)))
    A("s_add_u32 %s, %s, 4" % (s(sSeg), s(sSeg)))
    A("s_branch %s" % ltop)
    A.label(llast)
    ts(A)
    ldn = A.new("cdn")
    A("s_cmp_eq_u32 %s, -1" % s(sPrev))
    A("s_cbranch_scc1 %s" % ldn)
    reduce_out()
    reduce_fin()
    A.label(ldn)
    A("s_mov_b32 %s, %s" % (s(sPrev), s(sSeg)))
    A("s_mov_b32 %s, %s" % (s(sPCo), s(sA0 + 4)))
    reduce_out(last=True)
    reduce_fin()
    if "dbgout" in opt:
        A("s_memrealtime s[96:97]")
        A("s_waitcnt lgkmcnt(0)")
        A("s_mov_b64 exec, 1")
        A("v_mov_b32 %s, s96" % v(vTmp))
        A("buffer_atomic_umax %s, off, %s, 0 offset:24" % (v(vTmp), s(sDBG, 4)))
    ts_dump(A, 1)
```

```python
from asmlib import *
from layout import *
import struct, math

L_MEM, L_KX, L_F, L_O, L_SCR, L_W = 0, 9216, 17408, 21632, 23680, 24576
FSTR = 1056
L_FLAG = L_F + 1024
L_WSTRIDE = 34816
vL16, vIdx, vWL, vFw, vOw, vPst, vRst, vSelV, vT0, vT1, vT2, vTmp = range(12)
VACC, QK, RING, LND = 12, 20, 36, 48
WREG0 = 72
KVSTEP = 32 * 16384
NSPILL = 17
sWS, sWQ, sWK, sWV, sWO, sM0, sDBG = 4, 8, 12, 16, 20, 24, 28
sCU, sW, sWC, sUnit, sStep, sBud = 32, 33, 34, 35, 36, 37
sP0, sP1, sP2, sRd, sX0, sX1, sX2, sKV, sKM, sPh, sWF, sC, sVX, sKXm = range(38, 52)
sL2a, sKVv, sKVt = 96, 97, 98
sPt = 8
sTagM = 100
sFlg, sFlgN, sOne, sKF, sRdy, sRdE = 17, 18, 20, 19, 22, 24
sSel = 52
sT = 60
sStamp = 64

def f32bits(x):
    return struct.unpack("<I", struct.pack("<f", x))[0]

WO_ORDER = [0, 1, 2, 3, 4, 5, 6, 7, 8]
QK_CHAIN = [[('qk', 0, 1), ('qk', 2, 0), ('qk', 4, 0), ('qk', 6, 0), ('qk', 7, 3)],
            [('qk', 0, 2), ('qk', 2, 1), ('qk', 4, 1), ('qk', 6, 1)],
            [('qk', 0, 0), ('v', 8, 1)]]
def GOF(j, w):
    if j == 8:
        return 8
    o = 2 * (1 - (w >> 1))
    return (j & 4) + (w, w ^ 1, o, o + 1)[j & 3]
WO_CHAIN = [[('o', 0), ('o', 8), ('o', 16)], [('o', 1), ('o', 9), ('o', 17)]]
L2KEY = ('v', 8, 1)
def placement():
    spill, regs, slot, nxt = {}, {}, {}, {}
    nonreg = []
    for chains in (QK_CHAIN, WO_CHAIN):
        for si, ch in enumerate(chains):
            for i, k in enumerate(ch):
                slot[k] = si
                nxt[k] = ch[i + 1] if i + 1 < len(ch) else None
                if k != L2KEY:
                    nonreg.append(k)
    nonreg.append(L2KEY)
    assert len(nonreg) == NSPILL
    for i, k in enumerate(nonreg):
        spill[k] = i
    allk = [('qk', j, t) for j in range(9) for t in range(4)] + [('v', j, t) for j in range(9) for t in range(2)] + \
           [('o', n) for n in range(18)]
    r = WREG0
    for k in allk:
        if k not in spill:
            regs[k] = r
            r += 8
    assert r == 512, r
    return spill, regs, slot, nxt
SPILL, WREGS, SLOT, NXT = placement()

def emit_team(A, stamps=False, nsteps=64, sc="", hooks=None, opt=()):
    nst = [0]
    def stamp(fine=False):
        if stamps and fine != ("fine" in opt):
            return
        if stamps:
            if "rt" in opt and nst[0] in (2, 4):
                pass
            else:
                A("%s %s" % ("s_memrealtime" if "rt" in opt else "s_memtime", s(sStamp + 2 * nst[0], 2)))
            nst[0] += 1
    SC = " sc1"
    lane = 71
    t1, t2, t3, t4, t5, t6 = 64, 65, 66, 67, 68, 69
    vOffW, vOffO, vTrQK, vTrV, vTrO, vAd, vTr8, vAd2 = 56, 57, 58, 59, 60, 61, 62, 63
    vColQK, vColV = 54, 55
    A.c("=========== team setup ===========")
    if "tt" in opt:
        A("s_memtime s[90:91]")
        A("s_memrealtime s[64:65]")
        A("s_mov_b32 s87, 0")
        A("s_mov_b32 s88, 0")
        A("s_mov_b32 s89, 0")
    A("v_mov_b32 %s, v0" % v(lane))
    A("v_lshrrev_b32 %s, 4, %s" % (v(t2), v(lane)))
    A("v_lshlrev_b32 %s, 2, %s" % (v(t1), v(t2)))
    A("v_sub_u32 %s, %s, %s" % (v(t1), v(lane), v(t1)))
    A("v_and_b32 %s, 15, %s" % (v(t1), v(t1)))
    A("v_lshlrev_b32 %s, 4, %s" % (v(t1), v(t1)))
    A("v_lshl_add_u32 %s, %s, 13, %s" % (v(vOffW), v(t2), v(t1)))
    A("s_lshl_b32 %s, %s, 8" % (s(sT + 2), s(sCU)))
    A("s_lshl_b32 %s, %s, 17" % (s(sT + 3), s(sW)))
    A("s_add_u32 %s, %s, %s" % (s(sT + 2), s(sT + 2), s(sT + 3)))
    A("v_add_u32 %s, %s, %s" % (v(vOffW), s(sT + 2), v(vOffW)))
    A("v_lshrrev_b32 %s, 3, %s" % (v(t1), v(lane)))
    A("v_mul_u32_u24 %s, 1152, %s" % (v(vOffO), v(t1)))
    A("v_and_b32 %s, 7, %s" % (v(t1), v(lane)))
    A("v_lshl_add_u32 %s, %s, 4, %s" % (v(vOffO), v(t1), v(vOffO)))
    A("s_mul_i32 %s, %s, 147456" % (s(sT + 2), s(sCU)))
    A("s_mul_i32 %s, %s, %d" % (s(sT + 3), s(sW), 32 * 1152))
    A("s_add_u32 %s, %s, %s" % (s(sT + 2), s(sT + 2), s(sT + 3)))
    A("v_add_u32 %s, %s, %s" % (v(vOffO), s(sT + 2), v(vOffO)))
    sLW = 99
    RING0 = L_W + 14336
    A("s_mul_i32 %s, %s, %d" % (s(sLW), s(sW), L_WSTRIDE))
    wide = [(m, G) for G in range(9) for m in range(2)] + [(2, G) for G in (4, 5, 6, 7, 8, 0, 1, 2, 3)]
    chunks = []
    for i, x in enumerate(wide):
        chunks.append(x)
        if i % 5 in (1, 3) and len(chunks) - i - 1 < 9:
            chunks.append((3, len(chunks) - i - 1))
    assert len(chunks) == 36 and chunks[-3:] == [(2, 1), (2, 2), (2, 3)] and all(m != 3 for m, G in chunks[31:])
    VLAST = (1, 2, 3)
    NSLOT = 5
    NT = " nt" if "nt" in opt else ""
    TD = ([int(o[3:]) for o in opt if o.startswith("td=")] + [0])[0]
    vTch = 67
    if TD:
        A("v_bfe_u32 %s, %s, 1, 4" % (v(t1), v(lane)))
        A("v_lshlrev_b32 %s, 13, %s" % (v(53), v(t1)))
        A("v_and_b32 %s, 1, %s" % (v(t1), v(lane)))
        A("v_lshl_add_u32 %s, %s, 7, %s" % (v(53), v(t1), v(53)))
        A("s_lshl_b32 %s, %s, 8" % (s(sT + 2), s(sCU)))
        A("s_lshl_b32 %s, %s, 17" % (s(sT + 3), s(sW)))
        A("s_add_u32 %s, %s, %s" % (s(sT + 2), s(sT + 2), s(sT + 3)))
        A("v_add_u32 %s, %s, %s" % (v(11), s(sT + 2), v(53)))
    def touch_chunk(c):
        if not TD or c >= 36 or chunks[c][0] == 3:
            return
        m, G = chunks[c]
        A("s_mov_b32 %s, %d" % (s(sT + 2), 64 * G * 8192))
        A.vmem("buffer_load_dword %s, %s, %s, %s offen" % (v(71), v(11), s((sWQ, sWK, sWV)[m], 4), s(sT + 2)), 't')
    def issue_chunk(c):
        _issue(c)
        if c >= NSLOT - 1:
            if c == NSLOT - 1:
                for k in range(1, TD):
                    touch_chunk(c + k)
            touch_chunk(c + TD)
    def _issue(c):
        m, G = chunks[c]
        slot = c % NSLOT
        for j in range(4):
            A("s_add_u32 m0, %s, %d" % (s(sLW), RING0 + slot * 4096 + j * 1024))
            if m < 3:
                A("s_mov_b32 %s, %d" % (s(sT + 2), (64 * G + 4 * j) * 8192))
                A.vmem("buffer_load_dwordx4 %s, %s, %s offen%s lds" % (v(vOffW), s((sWQ, sWK, sWV)[m], 4), s(sT + 2), NT), ('c', c))
            else:
                A("s_mov_b32 %s, %d" % (s(sT + 2), 8 * j * 1152 + 128 * G))
                A.vmem("buffer_load_dwordx4 %s, %s, %s offen%s lds" % (v(vOffO), s(sWO, 4), s(sT + 2), NT), ('c', c))
    A.vm, A.lds = [], []
    for c in range(NSLOT - 1):
        issue_chunk(c)
    A("s_lshl_b32 %s, %s, 5" % (s(sT), s(sW)))
    A("s_add_u32 %s, %s, %s" % (s(sUnit), s(sT), s(sCU)))
    A("s_cmp_lt_u32 %s, 72" % s(sUnit))
    A("s_cselect_b32 %s, %s, -1" % (s(sUnit), s(sUnit)))
    if "dup" in opt:
        A("s_xor_b32 %s, %s, 16" % (s(sT), s(sCU)))
        A("s_cmp_eq_u32 %s, 3" % s(sW))
        A("s_cselect_b32 %s, %s, %s" % (s(sUnit), s(sT), s(sUnit)))
    A("v_lshlrev_b32 %s, 4, %s" % (v(vL16), v(lane)))
    A("v_and_b32 %s, 1, %s" % (v(t1), v(lane)))
    A("v_mul_u32_u24 %s, 0xaaaa, %s" % (v(t1), v(t1)))
    A("v_add_u32 %s, 0x4444, %s" % (v(vIdx), v(t1)))
    A("s_mul_i32 %s, %s, %d" % (s(sT), s(sW), L_WSTRIDE))
    A("s_add_u32 %s, %s, %d" % (s(sT), s(sT), L_W))
    A("v_add_u32 %s, %s, %s" % (v(vWL), s(sT), v(vL16)))
    A("s_add_u32 %s, %s, 32768" % (s(sVX), s(sT)))
    A("s_lshl_b32 %s, %s, 11" % (s(sKXm), s(sW)))
    A("s_add_u32 %s, %s, %d" % (s(sKXm), s(sKXm), L_KX))
    A("v_lshrrev_b32 %s, 4, %s" % (v(t2), v(lane)))
    A("v_bfe_u32 %s, %s, 2, 2" % (v(t3), v(lane)))
    A("v_and_b32 %s, 3, %s" % (v(t4), v(lane)))
    A("v_and_b32 %s, 1, %s" % (v(t1), v(t3)))
    A("v_mul_u32_u24 %s, %d, %s" % (v(vFw), FSTR, v(t1)))
    A("v_lshrrev_b32 %s, 1, %s" % (v(t1), v(t3)))
    A("v_lshl_add_u32 %s, %s, 8, %s" % (v(vFw), v(t1), v(vFw)))
    A("v_lshl_add_u32 %s, %s, 6, %s" % (v(vFw), v(t2), v(vFw)))
    A("v_lshl_add_u32 %s, %s, 2, %s" % (v(vFw), v(t4), v(vFw)))
    A("s_lshr_b32 %s, %s, 1" % (s(sT), s(sW)))
    A("s_and_b32 %s, %s, 1" % (s(sT + 1), s(sW)))
    A("s_mul_i32 %s, %s, %d" % (s(sT + 2), s(sT), 2 * FSTR))
    A("s_lshl_b32 %s, %s, 9" % (s(sT + 3), s(sT + 1)))
    A("s_add_u32 %s, %s, %s" % (s(sT + 2), s(sT + 2), s(sT + 3)))
    A("s_add_u32 %s, %s, %d" % (s(sT + 2), s(sT + 2), L_F))
    A("v_add_u32 %s, %s, %s" % (v(vFw), s(sT + 2), v(vFw)))
    A("v_and_b32 %s, 1, %s" % (v(t1), v(t4)))
    A("v_lshl_add_u32 %s, %s, 1, %s" % (v(t1), v(t3), v(t1)))
    A("v_lshlrev_b32 %s, 5, %s" % (v(t5), v(t1)))
    A("v_lshl_add_u32 %s, %s, 8, %s" % (v(t5), v(t2), v(t5)))
    A("s_lshl_b32 %s, %s, 10" % (s(sT + 2), s(sT)))
    A("s_lshl_b32 %s, %s, 4" % (s(sT + 3), s(sT + 1)))
    A("s_add_u32 %s, %s, %s" % (s(sT + 2), s(sT + 2), s(sT + 3)))
    A("s_add_u32 %s, %s, %d" % (s(sT + 2), s(sT + 2), L_O))
    A("v_add_u32 %s, %s, %s" % (v(t5), s(sT + 2), v(t5)))
    A("v_lshl_add_u32 %s, %s, 3, %s" % (v(t6), v(t2), v(t1)))
    A("v_lshlrev_b32 %s, 4, %s" % (v(t6), v(t6)))
    A("v_add_u32 %s, %d, %s" % (v(t6), L_SCR, v(t6)))
    A("v_cmp_le_u32 vcc, 2, %s" % v(t4))
    A("s_nop 1")
    A("v_cndmask_b32 %s, %s, %s, vcc" % (v(vOw), v(t6), v(t5)))
    A("v_lshrrev_b32 %s, 5, %s" % (v(t1), v(lane)))
    A("v_lshlrev_b32 %s, 12, %s" % (v(vPst), v(t1)))
    A("v_and_b32 %s, 31, %s" % (v(t1), v(lane)))
    A("v_lshl_add_u32 %s, %s, 2, %s" % (v(vPst), v(t1), v(vPst)))
    A("v_lshlrev_b32 %s, 6, %s" % (v(t5), v(t3)))
    A("v_lshl_add_u32 %s, %s, 3, %s" % (v(t5), v(t4), v(t5)))
    A("v_lshl_add_u32 %s, %s, 5, %s" % (v(t5), v(t2), v(t5)))
    A("s_lshl_b32 %s, %s, 7" % (s(sT + 2), s(sUnit)))
    A("s_and_b32 %s, %s, 0x3fff" % (s(sT + 2), s(sT + 2)))
    A("v_add_u32 %s, %s, %s" % (v(t5), s(sT + 2), v(t5)))
    A("v_and_b32 %s, 0x28, %s" % (v(t1), v(lane)))
    A("v_mov_b32 %s, 0x%x" % (v(t6), OOB))
    A("v_cmp_eq_u32 vcc, 0, %s" % v(t1))
    A("s_nop 1")
    A("v_cndmask_b32 %s, %s, %s, vcc" % (v(vRst), v(t6), v(t5)))
    A("s_mov_b32 %s, 0x11111111" % s(sTagM))
    A("s_mov_b32 %s, 0x11111111" % s(sTagM + 1))
    A("v_and_b32 %s, 1, %s" % (v(t1), v(t3)))
    A("v_lshlrev_b32 %s, 4, %s" % (v(t1), v(t1)))
    A("v_mov_b32 %s, 0x3f80" % v(t5))
    A("v_lshlrev_b32 %s, %s, %s" % (v(vSelV), v(t1), v(t5)))
    for u in range(4):
        m16 = (1 << u) | (1 << (u + 4))
        m32 = m16 | (m16 << 16)
        A("s_mov_b32 %s, 0x%x" % (s(sSel + 2 * u), m32))
        A("s_mov_b32 %s, 0x%x" % (s(sSel + 2 * u + 1), m32))
    A("s_lshl_b32 %s, %s, 10" % (s(sT + 2), s(sW)))
    A("v_add_u32 %s, %s, %s" % (v(vT0), s(sT + 2), v(vL16)))
    A("v_xor_b32 %s, 0x400, %s" % (v(vT1), v(vT0)))
    A("s_and_b32 %s, %s, 0x800" % (s(sT + 2), s(sT + 2)))
    A("s_xor_b32 %s, %s, 0x800" % (s(sT + 2), s(sT + 2)))
    A("v_add_u32 %s, %s, %s" % (v(vT2), s(sT + 2), v(vL16)))
    A("s_mov_b32 %s, 0" % s(sStep))
    A("s_mov_b32 %s, 0" % s(sPh))
    A("s_mov_b32 %s, %d" % (s(sBud), 200000 if "tt" in opt or "stamps" in opt else 2000000))
    A("s_lshl_b32 %s, %s, 7" % (s(sT + 3), s(sCU)))
    A("s_add_u32 %s, %s, %d" % (s(sT + 3), s(sT + 3), WS_PB))
    A("s_lshl_b32 %s, %s, 13" % (s(sT + 2), s(sW)))
    A("s_add_u32 %s, %s, %s" % (s(sP0), s(sT + 2), s(sT + 3)))
    A("s_lshl_b32 %s, %s, 12" % (s(sT + 2), s(sUnit)))
    A("s_add_u32 %s, %s, %d" % (s(sRd), s(sT + 2), WS_PB))
    A("s_cmp_eq_u32 %s, -1" % s(sUnit))
    A("s_cselect_b32 %s, 0x%x, %s" % (s(sRd), OOB, s(sRd)))
    A("s_cselect_b32 %s, 0x%x, 0" % (s(sT + 2), OOB))
    A("v_or_b32 %s, %s, %s" % (v(vRst), s(sT + 2), v(vRst)))
    for i, r in enumerate((sX0, sX1, sX2)):
        A("s_mov_b32 %s, %d" % (s(r), WS_MBX + i * MBX_STRIDE))
    A("s_lshl_b32 %s, %s, 14" % (s(sKV), s(sCU)))
    A("s_lshl_b32 %s, %s, 11" % (s(sT + 2), s(sW)))
    A("s_add_u32 %s, %s, %s" % (s(sKV), s(sKV), s(sT + 2)))
    A("s_add_u32 %s, %s, %d" % (s(sKVv), s(sKV), WS_KV + 8192))
    A("s_lshl_b32 %s, %s, 14" % (s(sKVt), s(sCU)))
    A("s_add_u32 %s, %s, %d" % (s(sKVt), s(sKVt), WS_KV + 1 * KVSTEP))
    A("s_cmp_lt_u32 %s, 3" % s(sW))
    A("s_cselect_b32 %s, 0x%x, %s" % (s(sKVt), OOB, s(sKVt)))
    if WS_KV:
        A("s_add_u32 %s, %s, %d" % (s(sKV), s(sKV), WS_KV))
    A("s_lshl_b32 %s, %s, 12" % (s(sKM), s(sCU)))
    A("s_lshl_b32 %s, %s, 10" % (s(sT + 2), s(sW)))
    A("s_add_u32 %s, %s, %s" % (s(sKM), s(sKM), s(sT + 2)))
    A("s_add_u32 %s, %s, %d" % (s(sKM), s(sKM), WS_KM))
    A("s_lshl_b32 %s, %s, 2" % (s(sT + 2), s(sCU)))
    A("s_add_u32 %s, %s, %s" % (s(sT + 2), s(sT + 2), s(sW)))
    A("s_mul_i32 %s, %s, %d" % (s(sWF), s(sT + 2), 18 * 2048))
    A("s_add_u32 %s, %s, %d" % (s(sWF), s(sWF), WS_WF))
    A("s_add_u32 %s, %s, %d" % (s(sL2a), s(sWF), 16 * 2048))
    A("s_mov_b32 %s, 0x%x" % (s(sC), f32bits(128 ** -0.5 * math.log2(math.e))))

    A("s_lshl_b32 %s, %s, 2" % (s(sT + 2), s(sW)))
    A("v_add_u32 %s, %s, %s" % (v(vColQK), s(sT + 2), v(t4)))
    A("s_lshl_b32 %s, %s, 3" % (s(sT + 2), s(sT)))
    A("s_add_u32 %s, %s, %s" % (s(sT + 2), s(sT + 2), s(sT + 1)))
    A("v_lshl_add_u32 %s, %s, 1, %s" % (v(vColV), v(t4), s(sT + 2)))
    A("v_and_b32 %s, 1, %s" % (v(t5), v(t2)))
    A("v_lshlrev_b32 %s, 2, %s" % (v(t5), v(t5)))
    A("v_lshrrev_b32 %s, 1, %s" % (v(t6), v(t3)))
    A("v_lshl_add_u32 %s, %s, 3, %s" % (v(t5), v(t6), v(t5)))
    A("v_and_b32 %s, 1, %s" % (v(t6), v(t3)))
    A("v_add_u32 %s, %s, %s" % (v(t5), v(t5), v(t6)))
    A("v_lshrrev_b32 %s, 1, %s" % (v(t1), v(t2)))
    A("v_lshl_add_u32 %s, %s, 4, %s" % (v(vTrO), v(t1), v(t5)))
    A("v_lshlrev_b32 %s, 7, %s" % (v(vTrO), v(vTrO)))
    A("v_lshl_add_u32 %s, %s, 3, %s" % (v(vTrO), v(t4), v(vTrO)))
    A("s_lshl_b32 %s, %s, 5" % (s(sT + 2), s(sW)))
    A("s_add_u32 %s, %s, %d" % (s(sT + 2), s(sT + 2), RING0))
    A("v_add_u32 %s, %s, %s" % (v(vTrO), s(sT + 2), v(vTrO)))
    A("v_mul_u32_u24 %s, %d, %s" % (v(t1), L_WSTRIDE, v(t1)))
    A("v_lshl_add_u32 %s, %s, 8, %s" % (v(t1), v(t5), v(t1)))
    A("v_add_u32 %s, %d, %s" % (v(t1), RING0, v(t1)))
    for col in (vColQK, vColV):
        A("v_lshl_add_u32 %s, %s, 2, %s" % (v(col), v(t6), v(col)))
        A("v_and_b32 %s, 15, %s" % (v(col), v(col)))
        A("v_lshl_add_u32 %s, %s, 4, %s" % (v(col), v(col), v(t1)))
    AD = [58, 59, 61, 62]
    ADO = [vTrO, 63, 69, 70]
    def addr_wo():
        for i in range(1, 4):
            A("v_add_u32 %s, %d, %s" % (v(ADO[i]), i * L_WSTRIDE, v(vTrO)))
    def addr_wide(col):
        A("v_mov_b32 %s, %s" % (v(AD[0]), v(col)))
        A("v_xor_b32 %s, 0x80, %s" % (v(AD[1]), v(col)))
        A("v_add_u32 %s, %d, %s" % (v(AD[2]), 2 * L_WSTRIDE, v(AD[0])))
        A("v_add_u32 %s, %d, %s" % (v(AD[3]), 2 * L_WSTRIDE, v(AD[1])))
    TMPF = [12, 20]
    tmpi = [0]
    park = {}
    def get_frag(key, addrs, imms):
        out = None
        if key in WREGS:
            r = WREGS[key]
        elif SPILL[key] in park:
            r = park[SPILL[key]]
        else:
            r = TMPF[tmpi[0] % 2]
            tmpi[0] += 1
            out = (r, SPILL[key])
        for q in range(4):
            A.ds("ds_read_b64_tr_b16 %s, %s offset:%d" % (R(r + 2 * q, 2), v(addrs[q]), imms[q]))
        return out
    def put(r, idx):
        if idx < 16:
            for hh in range(2):
                A.ds("ds_write_b128 %s, %s offset:%d" % (v(vWL), R(r + 4 * hh, 4), idx * 2048 + hh * 1024))
        else:
            for hh in range(2):
                A.vmem("buffer_store_dwordx4 %s, %s, %s, %s offen offset:%d" % (v(r + 4 * hh, 4), v(vL16), s(sWS, 4), s(sL2a), 1024 * hh), 'sp')

    A("v_lshl_add_u32 %s, %s, 1, %s" % (v(t5), v(t3), v(t2)))
    A("v_mul_u32_u24 %s, 1152, %s" % (v(t5), v(t5)))
    A("v_lshl_add_u32 %s, %s, 3, %s" % (v(t5), v(t4), v(t5)))
    A("s_and_b32 %s, %s, 1" % (s(sT + 2), s(sUnit)))
    A("s_mul_i32 %s, %s, 4608" % (s(sT + 2), s(sT + 2)))
    A("s_bfe_u32 %s, %s, 0x60001" % (s(sT + 3), s(sUnit)))
    A("s_lshl_b32 %s, %s, 5" % (s(sT + 3), s(sT + 3)))
    A("s_add_u32 %s, %s, %s" % (s(sT + 2), s(sT + 2), s(sT + 3)))
    A.vmem("buffer_load_dwordx2 %s, %s, %s, %s offen" % (v(52, 2), v(t5), s(sM0, 4), s(sT + 2)), 'm0')
    for i in range(4):
        A("v_mov_b32 %s, -1" % v(64 + i))
    for i in range(4):
        A.vmem("buffer_store_dwordx4 %s, %s, %s, %s offen offset:%d%s" % (v(64, 4), v(vL16), s(sWS, 4), s(sRd), 1024 * i, SC), 'mb')
    for so in (sX1, sX2):
        A.vmem("buffer_store_dwordx2 %s, %s, %s, %s offen%s" % (v(64, 2), v(vRst), s(sWS, 4), s(so), SC), 'mb')
    vm0 = list(A.vm)
    ljoin = A.new("initjoin")
    lcls = [A.new("cls%d" % i) for i in range(4)]
    for i in (1, 2, 3):
        A("s_cmp_eq_u32 %s, %d" % (s(sW), i))
        A("s_cbranch_scc1 %s" % lcls[i])
    for wc in range(4):
        A.label(lcls[wc])
        A.vm, A.lds = list(vm0), []
        tmpi[0] = 0
        pos = [GOF(jj, wc) for jj in range(9)]
        park.clear()
        park.update({15: 28, 7: 36, 8: 44})
        for i, G in enumerate(VLAST):
            for t in range(2):
                park[9 + 2 * i + t] = WREGS[('v', pos.index(G), t)]
        flush = {32: (9, 10), 33: (11, 12), 34: (13, 14), 35: (15,)}
        for c in range(36):
            m, G = chunks[c]
            if c == 0:
                addr_wo()
                addr_wide(vColQK)
            if chunks[c] == (2, 4):
                addr_wide(vColV)
            A.wait_vm(('c', c))
            A("s_barrier")
            if c + NSLOT - 1 < 36:
                issue_chunk(c + NSLOT - 1)
            if c == NSLOT:
                A.vmem("buffer_store_dwordx2 %s, %s, %s, %s offen%s" % (v(52, 2), v(vRst), s(sWS, 4), s(sX0), SC), 'mb')
            if c == 20 and wc == 0:
                A("s_mov_b64 exec, 1")
                A("s_lshl_b32 %s, 1, s3" % s(sT + 2))
                A("s_lshl_b32 %s, %s, 8" % (s(sT + 2), s(sT + 2)))
                A("v_mov_b32 %s, %s" % (v(52), s(sT + 2)))
                A("v_mov_b32 %s, 1" % v(53))
                A.vmem("buffer_atomic_or %s, off, %s, 0 offset:%d" % (v(52), s(sDBG, 4), DBG_TEAM), 'at')
                A.vmem("buffer_atomic_add %s, off, %s, 0 offset:%d" % (v(53), s(sDBG, 4), DBG_TEAM), 'at')
                A("s_mov_b64 exec, -1")
            if "mega" in opt and c == 24:
                A.vmem("buffer_load_dword %s, off, %s, 0 offset:%d sc1" % (v(64), s(sDBG, 4), DBG_MOD), 'e')
            if "mega" in opt and c == 34:
                A("v_lshrrev_b32 %s, 2, %s" % (v(65), v(vL16)))
                A("s_lshl_b32 %s, %s, 8" % (s(sT + 2), s(sCU)))
                A("s_add_u32 %s, %s, %d" % (s(sT + 2), s(sT + 2), FL_KV))
                A.vmem("buffer_load_dword %s, %s, %s, %s offen sc1" % (v(65), v(65), s(sWS, 4), s(sT + 2)), 'e')
                A.vmem("buffer_load_dword %s, off, %s, 0 offset:%d sc1" % (v(66), s(sDBG, 4), DBG_TEAM), 'e')
            for idx in flush.get(c, ()):
                put(park[idx], idx)
            so = (c % NSLOT) * 4096
            sp = []
            if m == 3:
                for c2 in range(2):
                    sp.append(get_frag(('o', 2 * G + c2), [ADO[2 * c2 + (q >> 1)] for q in range(4)], [so + 2 * (q & 1) * 128 for q in range(4)]))
            else:
                j = pos.index(G)
                for t in range(2):
                    key = ('qk', j, 2 * m + t) if m < 2 else ('v', j, t)
                    sp.append(get_frag(key, AD, [so + 2 * (q & 1) * 256 + 8 * t for q in range(4)]))
            A.wait_ds()
            for x in sp:
                if x:
                    put(*x)
        A("s_barrier")
        put(park[7], 7)
        put(park[8], 8)
        if wc < 3:
            A("s_branch %s" % ljoin)
    A.label(ljoin)
    ROT = ([int(o[4:]) for o in opt if o.startswith("rot=")] + [0])[0]
    ROTW = ([int(o[5:]) for o in opt if o.startswith("rotw=")] + [0])[0]
    for G in range(9):
        if ROT or ROTW:
            A("s_mul_i32 %s, %s, %d" % (s(sT + 2), s(sW), ROTW))
            A("s_add_u32 %s, %s, %s" % (s(sT + 2), s(sT + 2), s(sCU)))
            A("s_add_u32 %s, %s, %d" % (s(sT + 2), s(sT + 2), ROT * G))
            A("s_and_b32 %s, %s, 31" % (s(sT + 2), s(sT + 2)))
            A("s_sub_u32 %s, %s, %s" % (s(sT + 2), s(sT + 2), s(sCU)))
            A("s_lshl_b32 %s, %s, 7" % (s(sT + 2), s(sT + 2)))
            A("s_add_u32 %s, %s, %s" % (s(sPt + G), s(sP0), s(sT + 2)))
            A("s_add_u32 %s, %s, %d" % (s(sPt + G), s(sPt + G), G * 32768))
        else:
            A("s_add_u32 %s, %s, %d" % (s(sPt + G), s(sP0), G * 32768))
    A("s_lshl_b32 %s, %s, 7" % (s(sFlg), s(sCU)))
    A("s_add_u32 %s, %s, %d" % (s(sFlg), s(sFlg), FL_PUB - 4096))
    A("s_cmp_eq_u32 %s, %d" % (s(sW), 3 if "mega" in opt else 7))
    A("s_cselect_b32 %s, %s, 0x%x" % (s(sFlg), s(sFlg), OOB))
    A("s_mov_b64 %s, 1" % s(sOne, 2))
    A("s_lshl_b32 %s, %s, 8" % (s(sFlgN), s(sW)))
    A("s_add_u32 %s, %s, %d" % (s(sFlgN), s(sFlgN), L_MEM + 8192))
    A("s_cmp_lt_u32 %s, 32" % s(sUnit))
    A("s_cselect_b32 %s, %s, 0x%x" % (s(sRdE), s(sRd), OOB))
    A("s_lshl_b32 %s, %s, 8" % (s(sKF), s(sCU)))
    A("s_add_u32 %s, %s, %d" % (s(sKF), s(sKF), FL_KV))
    A("s_waitcnt vmcnt(0) lgkmcnt(0)")
    A.vm, A.lds = [], []

    def kv_dma():
        return ["s_mov_b32 m0, %s" % s(sKXm),
                "buffer_load_dwordx4 %s, %s, %s offen sc1 lds" % (v(vL16), s(sWS, 4), s(sKV)),
                "buffer_load_dwordx4 %s, %s, %s offen offset:1024 sc1 lds" % (v(vL16), s(sWS, 4), s(sKV)),
                "s_mov_b32 m0, %s" % s(sVX),
                "buffer_load_dwordx4 %s, %s, %s offen sc1 lds" % (v(vL16), s(sWS, 4), s(sKVv)),
                "buffer_load_dwordx4 %s, %s, %s offen offset:1024 sc1 lds" % (v(vL16), s(sWS, 4), s(sKVv))]
    def land(key, half=None):
        sp = SPILL[key]
        for hh in ((0, 1) if half is None else (half,)):
            if sp < 16:
                A.ds("ds_read_b128 %s, %s offset:%d" % (v(LND + 8 * SLOT[key] + 4 * hh, 4), v(vWL), sp * 2048 + 1024 * hh), key)
            else:
                A.vmem("buffer_load_dwordx4 %s, %s, %s, %s offen offset:%d" % (v(LND + 8 * SLOT[key] + 4 * hh, 4), v(vL16), s(sWS, 4), s(sL2a), 1024 * hh), key)
    def zero(lo, hi):
        for r in range(lo, hi, 2):
            A("v_mov_b64 %s, 0" % v(r, 2))
    KVINC = 0 if "samekv" in opt else KVSTEP
    NDMA = "ndma" in opt
    def kv_all():
        for i in range(2):
            A("s_mov_b32 m0, %d" % (L_KX + 4096 * i))
            A("s_add_u32 %s, %s, %d" % (s(sT + 2), s(sKV), 4096 * i))
            for j in range(4):
                A("buffer_load_dwordx4 %s, %s, %s offen offset:%d sc1 lds" % (v(vL16), s(sWS, 4), s(sT + 2), 1024 * j))
        for i in range(4):
            A("s_mov_b32 m0, %d" % (L_W + i * L_WSTRIDE + 32768))
            A("s_add_u32 %s, %s, %d" % (s(sT + 2), s(sKV), 8192 + 2048 * i))
            for j in range(2):
                A("buffer_load_dwordx4 %s, %s, %s offen offset:%d sc1 lds" % (v(vL16), s(sWS, 4), s(sT + 2), 1024 * j))
    def kv_refresh(lback):
        lp = A.new("kvr")
        A.label(lp)
        A("v_lshrrev_b32 %s, 2, %s" % (v(vTmp), v(vL16)))
        A("buffer_load_dword %s, %s, %s, %s offen sc1" % (v(vTmp), v(vTmp), s(sWS, 4), s(sKF)))
        A("s_waitcnt vmcnt(0)")
        A("v_cmp_ne_u32 %s, 0, %s" % (s(sRdy, 2), v(vTmp)))
        A("s_nop 3")
        A("s_bitcmp1_b64 %s, %s" % (s(sRdy, 2), s(sStep)))
        A("s_cbranch_scc1 %s" % lback)
        A("s_sub_u32 %s, %s, 1" % (s(sBud), s(sBud)))
        A("s_cbranch_scc0 %s" % lp)
        A("s_mov_b32 %s, 0" % s(sBud))
        A("s_branch %s" % lback)
    if "tt" in opt:
        A("s_memrealtime s[66:67]")
    lfast = A.new("fast0")
    if "mega" in opt:
        lsl = A.new("slow0")
        A("v_readfirstlane_b32 %s, %s" % (s(sT + 1), v(64)))
        A("v_readfirstlane_b32 %s, %s" % (s(sT), v(66)))
        A("v_cmp_ne_u32 %s, 0, %s" % (s(sRdy, 2), v(65)))
        A("s_nop 3")
        lk, lt = A.new("needkv"), A.new("needteam")
        A("s_cmp_eq_u32 %s, 0" % s(sT + 1))
        A("s_cbranch_scc1 %s" % lsl)
        A("s_bitcmp1_b32 %s, 0" % s(sRdy))
        A("s_cbranch_scc1 %s" % lt)
        A("s_branch %s" % lk)
        A.label(lsl)
        hooks['kv_wait0'](A)
        A.label(lk)
        kv_refresh(lt)
        A.label(lt)
        A("s_bitcmp1_b32 %s, 5" % s(sT))
        A("s_cbranch_scc1 %s" % lfast)
    lp = A.new("tb")
    A.label(lp)
    A("buffer_load_dword %s, off, %s, 0 offset:%d sc1" % (v(vTmp), s(sDBG, 4), DBG_TEAM))
    A("s_waitcnt vmcnt(0)")
    A("v_readfirstlane_b32 %s, %s" % (s(sT), v(vTmp)))
    A("s_nop 3")
    A("s_bitcmp1_b32 %s, 5" % s(sT))
    A("s_cbranch_scc1 %s" % lfast)
    A("s_sub_u32 %s, %s, 1" % (s(sBud), s(sBud)))
    A("s_cbranch_scc0 %s" % lp)
    A("s_mov_b32 %s, 0" % s(sBud))
    A.label(lfast)
    if "mega" in opt:
        A("s_cmp_lt_u32 %s, 3" % s(sW))
        A("s_cselect_b64 %s, -1, %s" % (s(sRdy, 2), s(sRdy, 2)))
    if "tt" in opt:
        A("s_memrealtime s[68:69]")
    if "vn" in opt:
        for x in kv_dma()[3:]:
            A(x)
            A("s_nop 0")
        A("s_add_u32 %s, %s, %d" % (s(sKVv), s(sKVv), KVSTEP))
    for ch in QK_CHAIN:
        land(ch[0])
    zero(VACC, RING)
    A("s_waitcnt lgkmcnt(0)")
    A("s_lshr_b32 %s, %s, 8" % (s(sT), s(sT)))
    A("s_bcnt1_i32_b32 %s, %s" % (s(sT), s(sT)))
    lslow = A.new("slow")
    A("s_cmp_lg_u32 %s, 1" % s(sT))
    A("s_cbranch_scc1 %s" % lslow)
    def loop(SC):
        lentry, lexit = A.new("entry"), A.new("exit")
        lok1, lnored, lb4 = A.new("ok1"), A.new("nored"), A.new("b4")
        ls1, ls1w, l1a = A.new("s1"), A.new("s1w"), A.new("p1a")
        ls1r, ls2r, ls2ok, ls3r, ls3ok, l1r = A.new("s1r"), A.new("s2r"), A.new("s2ok"), A.new("s3r"), A.new("s3ok"), A.new("p1r")
        A("s_branch %s" % ls1)

        def SM(acc, afr, breg):
            A("v_smfmac_f32_16x16x64_bf16 %s, %s, %s, %s" % (v(acc, 4), v(afr, 4), breg, v(vIdx)))
        def MF(d, a_, b_, c_):
            A("v_mfma_f32_16x16x32_bf16 %s, %s, %s, %s" % (v(d, 4), v(a_, 4), v(b_, 4), c_))
        def fragaddr(j):
            if j == 8:
                return vL16, 8192
            return (vT0, vT1, vT2, vT2)[j & 3], (j & 4) * 1024 + (1024 if (j & 3) == 3 else 0)
        def ringrd(j, slot):
            b, o = fragaddr(j)
            A.ds("ds_read_b128 %s, %s offset:%d" % (v(RING + 4 * slot, 4), v(b), L_MEM + o), ('ring', j))
        def mbload(dst, j):
            if j == 8:
                A("buffer_load_dwordx4 %s, %s, %s, %s offen sc1" % (v(dst, 4), v(vL16), s(sWS, 4), s(sX8)))
            else:
                A("buffer_load_dwordx4 %s, %s, %s, %s offen sc1" % (v(dst, 4), v(fragaddr(j)[0]), s(sWS, 4), s(sX4 if j & 4 else sX0)))
        def check(base, n):
            A("v_max3_u32 %s, %s, %s, %s" % (v(vTmp), v(base), v(base + 1), v(base + 2)))
            for i in range(3, n - 1, 2):
                A("v_max3_u32 %s, %s, %s, %s" % (v(vTmp), v(vTmp), v(base + i), v(base + i + 1)))
            A("v_max_u32 %s, %s, %s" % (v(vTmp), v(vTmp), v(base + n - 1)))
            A("v_cmp_eq_u32 vcc, -1, %s" % v(vTmp))
        def budget(lagain, lgiveup):
            A("s_sub_u32 %s, %s, 1" % (s(sBud), s(sBud)))
            A("s_cbranch_scc0 %s" % lagain)
            A("s_mov_b32 %s, 0" % s(sBud))
            A("s_branch %s" % lgiveup)
        PLA = [12, 16, 20, 24]
        RACC, SEL = 28, 32
        def poll1_issue(PL, so=sRd, which=range(4)):
            for i in which:
                A("buffer_load_dwordx4 %s, %s, %s, %s offen offset:%d sc1" % (v(PL[i], 4), v(vL16), s(sWS, 4), s(so), 1024 * i))
        def wait_many(keys):
            idx = [i for i, t in enumerate(A.lds) if t in keys]
            if idx:
                A.wait_ds(A.lds[idx[-1]])
        def endstep():
            for ch in QK_CHAIN:
                land(ch[0])
            A("s_mov_b32 %s, %s" % (s(sT), s(sX0)))
            A("s_mov_b32 %s, %s" % (s(sX0), s(sX1)))
            A("s_mov_b32 %s, %s" % (s(sX1), s(sX2)))
            A("s_mov_b32 %s, %s" % (s(sX2), s(sT)))
        PUB = "" if "pubplain" in opt else " sc1"
        def optval(name, dflt):
            for o in opt:
                if o.startswith(name + "="):
                    return int(o.split("=")[1])
            return dflt
        LWAIT, S1DEPTH = optval("lwait", 2), optval("s1d", 2)
        sX4, sX8 = sP1, sP2
        F8 = RING + 4
        PLB = [LND, LND + 4, LND + 8, LND + 12]
        def reduce_body(PL, n_after):
            if "prog" in opt:
                A("s_waitcnt vmcnt(%d)" % (n_after + 3))
                MF(RACC, SEL, PL[0], "0")
                A("s_waitcnt vmcnt(%d)" % (n_after + 2))
                MF(RACC, SEL, PL[1], v(RACC, 4))
                A("v_bitop3_b32 %s, %s, %s, %s bitop3:0x7e" % (v(vTmp), v(PL[0]), v(PL[1]), s(sPh)))
                A("s_waitcnt vmcnt(%d)" % (n_after + 1))
                MF(RACC, SEL, PL[2], v(RACC, 4))
                A("s_waitcnt vmcnt(%d)" % n_after)
                MF(RACC, SEL, PL[3], v(RACC, 4))
                A("v_bitop3_b32 %s, %s, %s, %s bitop3:0x7e" % (v(45), v(PL[2]), v(PL[3]), s(sPh)))
                A("v_bitop3_b32 %s, %s, %s, 1 bitop3:0xa8" % (v(vTmp), v(vTmp), v(45)))
                A("v_cmp_ne_u32 vcc, 0, %s" % v(vTmp))
                return
            A("s_waitcnt vmcnt(%d)" % n_after)
            MF(RACC, SEL, PL[0], "0")
            A("v_bitop3_b32 %s, %s, %s, %s bitop3:0x7e" % (v(vTmp), v(PL[0]), v(PL[1]), s(sPh)))
            A("v_bitop3_b32 %s, %s, %s, %s bitop3:0x7e" % (v(45), v(PL[2]), v(PL[3]), s(sPh)))
            MF(RACC, SEL, PL[1], v(RACC, 4))
            A("v_bitop3_b32 %s, %s, %s, 1 bitop3:0xa8" % (v(vTmp), v(vTmp), v(45)))
            A("v_cmp_ne_u32 vcc, 0, %s" % v(vTmp))
            MF(RACC, SEL, PL[2], v(RACC, 4))
            MF(RACC, SEL, PL[3], v(RACC, 4))
        def mksel():
            for u in range(4):
                A("v_cndmask_b32 %s, 0, %s, %s" % (v(SEL + u), v(vSelV), s(sSel + 2 * u, 2)))
        def s1load(base):
            mbload(base, 0)
            mbload(base + 4, 1)
        def rotate():
            A("s_mov_b32 %s, %s" % (s(sT), s(sX0)))
            A("s_mov_b32 %s, %s" % (s(sX0), s(sX1)))
            A("s_mov_b32 %s, %s" % (s(sX1), s(sX2)))
            A("s_mov_b32 %s, %s" % (s(sX2), s(sT)))
            A("s_add_u32 %s, %s, 4096" % (s(sX4), s(sX0)))
            A("s_add_u32 %s, %s, 8192" % (s(sX8), s(sX0)))
            A("s_mov_b32 m0, %s" % s(sFlgN))
        lgo1 = A.new("go1")
        lkvr, lkvok = A.new("kvrf"), A.new("kvok")
        if "mega" in opt:
            A.label(lkvr)
            kv_refresh(lkvok)
        A.label(lnored)
        A("s_cmp_eq_u32 %s, -1" % s(sUnit))
        A("s_cbranch_scc1 %s_n" % lnored)
        A("s_waitcnt vmcnt(%d)" % LWAIT)
        A("s_branch %s" % lgo1)
        A.label(lnored + "_n")
        if "ps" in opt:
            A("s_memtime s[72:73]")
            A("s_memrealtime s[74:75]")
            A("s_lshl_b32 %s, %s, 9" % (s(sT), s(sCU)))
            A("s_lshl_b32 %s, %s, 3" % (s(sT + 1), s(sStep)))
            A("s_add_u32 %s, %s, %s" % (s(sT), s(sT), s(sT + 1)))
            A("s_add_u32 %s, %s, %d" % (s(sT), s(sT), WS_DBG + (7 << 17)))
            A("s_waitcnt lgkmcnt(0)")
            A("v_mov_b32 v46, s72")
            A("v_mov_b32 v47, s74")
            A("s_mov_b64 exec, 1")
            A("buffer_store_dwordx2 v[46:47], off, %s, %s" % (s(sWS, 4), s(sT)))
            A("s_mov_b64 exec, -1")
        rotate()
        for i in range(0, 8, 2):
            A("v_mov_b64 %s, -1" % v(RING + i, 2))
        if NDMA:
            l3 = A.new("n3l")
            A("s_cmp_lg_u32 %s, 3" % s(sW))
            A("s_cbranch_scc1 %s" % l3)
            kv_all()
            A.label(l3)
        if "mega" in opt:
            lfull = A.new("full")
            A("s_add_u32 %s, %s, 1" % (s(sT + 1), s(sStep)))
            A("s_bitcmp1_b64 %s, %s" % (s(sRdy, 2), s(sT + 1)))
            A("s_cbranch_scc1 %s" % lfull)
            A("v_lshrrev_b32 %s, 2, %s" % (v(vTmp), v(vL16)))
            A("buffer_load_dword %s, %s, %s, %s offen sc1" % (v(vTmp), v(vTmp), s(sWS, 4), s(sKF)))
            A("s_waitcnt vmcnt(0)")
            A("v_cmp_ne_u32 %s, 0, %s" % (s(sRdy, 2), v(vTmp)))
            A.label(lfull)
        if "noflag" in opt:
            A("s_waitcnt vmcnt(0)")
        else:
            lf = A.new("flag")
            A("v_mov_b32 %s, %d" % (v(46), L_FLAG))
            A.label(lf)
            A("ds_read_b32 %s, %s" % (v(vTmp), v(46)))
            A("s_waitcnt lgkmcnt(0)")
            A("v_cmp_eq_u32 vcc, %s, %s" % (s(sStep), v(vTmp)))
            A("s_cbranch_vccnz %s" % lb4)
            budget(lf, lb4)
        A("s_branch %s" % lb4)
        X2 = LND + 16
        def f8load():
            A("buffer_load_dword %s, %s, %s offen sc1 lds" % (v(X2 + 5), s(sWS, 4), s(sX8)))
        def s2check():
            check(X2, 4)
        A.label(ls2r)
        if "tt" in opt:
            A("s_add_u32 s88, s88, 1")
        mbload(X2, 4)
        A("s_waitcnt vmcnt(1)")
        s2check()
        A("s_cbranch_vccz %s_d" % ls2r)
        budget(ls2r, ls2r + "_d")
        A.label(ls2r + "_d")
        A("s_waitcnt vmcnt(0)")
        A("s_branch %s" % ls2ok)
        A.label(ls3r)
        if "tt" in opt:
            A("s_add_u32 s89, s89, 1")
        mbload(RING + 4, 8)
        A("s_waitcnt vmcnt(0)")
        A("v_max3_u32 %s, %s, %s, %s" % (v(LND + 4), v(RING + 4), v(RING + 5), v(RING + 6)))
        A("v_max_u32 %s, %s, %s" % (v(LND + 4), v(LND + 4), v(RING + 7)))
        A("v_cmp_eq_u32 vcc, -1, %s" % v(LND + 4))
        A("s_cbranch_vccz %s" % ls3ok)
        budget(ls3r, ls3ok)
        A.label(ls1)
        A("s_add_u32 %s, %s, 4096" % (s(sX4), s(sX0)))
        A("s_add_u32 %s, %s, 8192" % (s(sX8), s(sX0)))
        A("s_mov_b32 m0, %s" % s(sFlgN))
        s1load(RING)
        A("s_waitcnt vmcnt(0)")
        A("s_branch %s" % ls1w)
        A(".p2align 6")
        A.label(ls1r)
        A("s_sub_u32 %s, %s, 1" % (s(sBud), s(sBud)))
        A("s_cbranch_scc1 %s_give" % ls1r)
        if "mask" in opt:
            A("s_mov_b64 exec, vcc")
        s1load(RING)
        if "mask" in opt:
            A("s_mov_b64 exec, -1")
        A("s_waitcnt vmcnt(%d)" % S1DEPTH)
        A.label(ls1w)
        check(RING, 8)
        A("s_cbranch_vccnz %s" % ls1r)
        A.label(lentry)
        A.lds, A.vm = [], []
        if "tt" in opt:
            lt = A.new("tt")
            A("s_cmp_lg_u32 %s, 3" % s(sStep))
            A("s_cbranch_scc1 %s" % lt)
            A("s_memtime s[92:93]")
            A.label(lt)
        if stamps and "rt" in opt:
            lq = A.new("q")
            A("s_memrealtime %s" % s(sStamp + 18, 2))
            A("s_cmp_lg_u32 %s, 41" % s(sStep))
            A("s_cbranch_scc1 %s" % lq)
            A("s_waitcnt lgkmcnt(0)")
            for i in range(10):
                A("v_writelane_b32 %s, %s, %d" % (v(vTmp), s(sStamp + 2 * i), i))
            A("s_lshl_b32 %s, %s, 2" % (s(sT), s(sCU)))
            A("s_add_u32 %s, %s, %s" % (s(sT), s(sT), s(sW)))
            A("s_lshl_b32 %s, %s, 11" % (s(sT), s(sT)))
            A("s_add_u32 %s, %s, %d" % (s(sT), s(sT), WS_DBG))
            A("buffer_store_dword %s, %s, %s, %s offen" % (v(vTmp), v(vL16), s(sWS, 4), s(sT)))
            A.label(lq)
        stamp()
        KXR = {(0, 0): LND, (0, 1): LND + 4, (0, 2): LND + 8, (0, 3): LND + 12, (1, 0): LND + 16, (1, 1): LND + 20, (1, 2): LND, (1, 3): LND + 4}
        def kxrd(tl, ks):
            A.ds("ds_read_b128 %s, %s offset:%d" % (v(KXR[(tl, ks)], 4), v(vL16), L_KX + (4 * tl + ks) * 1024), ('kx', tl, ks))
        AREG = {0: RING, 1: RING + 4, 2: RING + 8, 3: RING, 4: X2, 5: RING + 4, 6: RING + 8, 7: RING, 8: RING + 4}
        FP = optval("fp", 0)
        def Q(j, t):
            key = ('qk', j, t)
            SM(QK + 4 * t, AREG[j], R(WREGS[key], 8) if key in WREGS else v(LND + 8 * SLOT[key], 8))
            if t == 0 and FP == 0:
                stamp(True)
        def VS(j, t, a_=None):
            key = ('v', j, t)
            SM(VACC + 4 * t, AREG[j] if a_ is None else a_, R(WREGS[key], 8) if key in WREGS else v(LND + 8 * SLOT[key], 8))
        L = lambda j, t, hh: land(('qk', j, t), hh)
        kd = kv_dma()
        mega = "mega" in opt
        ND = 0 if NDMA else 2
        def dma(i, tag):
            if not NDMA:
                A.vmem(kd[i], tag) if tag else A(kd[i])
        A.ds("ds_write_b128 %s, %s offset:%d" % (v(vT0), v(RING, 4), L_MEM), 'w1')
        if "s2l" not in opt:
            Q(0, 0); mbload(X2, 4)
            Q(0, 1); A("v_lshrrev_b32 %s, 2, %s" % (v(X2 + 5), v(vT0)))
            Q(0, 2)
            if "f8l" not in opt:
                f8load()
            else:
                L(2, 1, 0)
            if "kearly" in opt:
                dma(0, None)
                Q(0, 3); dma(1, 'kdma')
                VS(0, 0); dma(2, 'kdma')
                A.wait_ds('w1')
                VS(0, 1)
                A("s_barrier")
                ringrd(2, 2)
                stamp()
                Q(1, 0); L(2, 0, 0)
                Q(1, 1); L(2, 0, 1)
                Q(1, 2); L(2, 1, 0)
                Q(1, 3); L(2, 1, 1)
                VS(1, 0); A("s_add_u32 %s, %s, 1" % (s(sStep), s(sStep)))
            else:
                Q(0, 3); L(2, 0, 0)
                VS(0, 0); L(2, 0, 1)
                A.wait_ds('w1')
                VS(0, 1)
                A("s_barrier")
                ringrd(2, 2)
                stamp()
                Q(1, 0)
                if "f8l" in opt:
                    f8load()
                else:
                    L(2, 1, 0)
                dma(0, None)
                Q(1, 1); L(2, 1, 1)
                Q(1, 2); dma(1, 'kdma')
                Q(1, 3); A("s_add_u32 %s, %s, 1" % (s(sStep), s(sStep)))
                VS(1, 0); dma(2, 'kdma')
            VS(1, 1); A("s_waitcnt vmcnt(%d)" % (2 + ND))
            ringrd(3, 0)
            A.wait_ds(('qk', 2, 1))
            Q(2, 0); L(4, 0, 0)
            Q(2, 1); L(4, 0, 1)
            Q(2, 2); L(4, 1, 0)
            Q(2, 3); L(4, 1, 1)
            if "v2" in opt:
                dma(3, None)
                VS(2, 0); dma(4, 'vdma')
                VS(2, 1); dma(5, 'vdma')
            else:
                VS(2, 0)
                if "vn" in opt:
                    A("s_add_u32 %s, %s, %d" % (s(sRdE), s(sKVt), KVSTEP + 8192))
                else:
                    dma(3, None)
                VS(2, 1)
            A.wait_ds(('ring', 3))
            Q(3, 0); A("s_waitcnt vmcnt(%d)" % ((5 if "v2" in opt else 3) if "f8l" in opt else (4 if "v2" in opt else 2)))
            s2check()
            Q(3, 1)
            Q(3, 2)
            A("s_cbranch_vccnz %s" % ls2r)
            A.label(ls2ok)
            A.ds("ds_write_b128 %s, %s offset:%d" % (v(vT0), v(X2, 4), L_MEM + 4096), 'w2')
            Q(3, 3)
            if "b1c" in opt:
                VS(3, 0)
                VS(3, 1)
                A.wait_ds(('qk', 4, 1))
                Q(4, 0); L(6, 0, 0)
                Q(4, 1)
                A.wait_ds('w2')
            else:
                VS(3, 0)
                if "v2" not in opt and "v5" not in opt and "vn" not in opt:
                    dma(4, 'vdma')
                VS(3, 1)
                if "v2" not in opt and "v5" not in opt and "vn" not in opt:
                    dma(5, 'vdma')
                if "v5" in opt or "vn" in opt:
                    ND = 0
                A.wait_ds(('qk', 4, 1))
                Q(4, 0); L(6, 0, 0)
                Q(4, 1)
                A("s_waitcnt vmcnt(%d) lgkmcnt(1)" % ND)
                A.vm, A.lds = A.vm[len(A.vm) - ND:], A.lds[-1:]
            A("s_barrier")
            ringrd(5, 1)
            Q(4, 2); ringrd(6, 2)
            Q(4, 3); ringrd(7, 0)
        else:
            Q(0, 0)
            Q(0, 1); A("v_lshrrev_b32 %s, 2, %s" % (v(X2 + 5), v(vT0)))
            Q(0, 2); dma(0, None)
            Q(0, 3); L(2, 0, 0)
            VS(0, 0); L(2, 0, 1)
            A.wait_ds('w1')
            VS(0, 1)
            A("s_barrier")
            ringrd(2, 2)
            stamp()
            Q(1, 0); mbload(X2, 4)
            Q(1, 1); f8load()
            Q(1, 2); L(2, 1, 0)
            Q(1, 3); L(2, 1, 1)
            VS(1, 0); dma(1, 'kdma')
            VS(1, 1); A("s_waitcnt vmcnt(3)")
            ringrd(3, 0)
            A.wait_ds(('qk', 2, 1))
            Q(2, 0); dma(2, 'kdma')
            Q(2, 1); L(4, 0, 0)
            Q(2, 2); L(4, 0, 1)
            Q(2, 3); L(4, 1, 0)
            VS(2, 0); L(4, 1, 1)
            VS(2, 1); dma(3, None)
            A.wait_ds(('ring', 3))
            Q(3, 0); A("s_add_u32 %s, %s, 1" % (s(sStep), s(sStep)))
            Q(3, 1)
            Q(3, 2)
            Q(3, 3); A("s_waitcnt vmcnt(2)")
            s2check()
            VS(3, 0)
            VS(3, 1)
            A("s_cbranch_vccnz %s" % ls2r)
            A.label(ls2ok)
            A.wait_ds(('qk', 4, 1))
            A.ds("ds_write_b128 %s, %s offset:%d" % (v(vT0), v(X2, 4), L_MEM + 4096), 'w2')
            Q(4, 0)
            A.ds("ds_write_b32 %s, %s offset:%d" % (v(X2 + 5), v(X2 + 4), L_MEM + 8192), 'w2')
            Q(4, 1); L(6, 0, 0)
            Q(4, 2); dma(4, 'vdma')
            Q(4, 3); dma(5, 'vdma')
            A("s_waitcnt vmcnt(2) lgkmcnt(1)")
            A.vm, A.lds = A.vm[len(A.vm) - 2:], A.lds[-1:]
            A("s_barrier")
            ringrd(5, 1)
            ringrd(6, 2)
            ringrd(7, 0)
        VS(4, 0); L(6, 0, 1)
        VS(4, 1); L(6, 1, 0)
        A.wait_ds(('ring', 5))
        Q(5, 0); land(L2KEY, 0)
        Q(5, 1); land(L2KEY, 1)
        if mega:
            A("s_bitcmp1_b64 %s, %s" % (s(sRdy, 2), s(sStep)))
        def touch(o):
            if "notouch" not in opt and "vn" in opt:
                A.vmem("buffer_load_dword %s, %s, %s offen sc1 lds" % (v(vTmp), s(sWS, 4), s(sRdE if o else sKVt)), 'touch')
            elif "notouch" not in opt:
                A.vmem("buffer_load_dword %s, %s, %s offen offset:%d sc1 lds" % (v(vTmp), s(sWS, 4), s(sKVt), o), 'touch')
        def kvbranch():
            if mega:
                A("s_cbranch_scc0 %s" % lkvr)
                A.label(lkvok)
        if "b1c" in opt:
            Q(5, 2); L(6, 1, 1)
            Q(5, 3); ringrd(8, 1)
            kvbranch()
            A.wait_ds(('qk', 6, 1))
            Q(6, 0); dma(4, 'vdma')
            Q(6, 1); L(7, 3, 0)
            Q(6, 2); dma(5, 'vdma')
            A("s_mov_b32 m0, %d" % (L_SCR + 512))
            Q(6, 3); L(7, 3, 1)
            A("v_lshlrev_b32 %s, 4, %s" % (v(vTmp), v(vL16)))
            A.wait_vm('kdma')
            A("s_barrier")
            Q(7, 0); touch(0)
            kxrd(0, 2)
            Q(7, 1); touch(128)
            kxrd(0, 3)
        else:
            Q(5, 2)
            if "v5" in opt:
                dma(4, 'vdma')
            L(6, 1, 1)
            Q(5, 3)
            if "v5" in opt:
                dma(5, 'vdma')
            ringrd(8, 1)
            A("s_mov_b32 m0, %d" % (L_SCR + 512))
            kvbranch()
            A.wait_ds(('qk', 6, 0))
            Q(6, 0); L(7, 3, 0)
            A.wait_ds(('qk', 6, 1))
            Q(6, 1); L(7, 3, 1)
            A("v_lshlrev_b32 %s, %d, %s" % (v(vTmp), 3 if "vn" in opt else 4, v(vL16)))
            Q(6, 2); touch(0)
            A.wait_ds(('ring', 8))
            Q(6, 3); A("v_max3_u32 %s, %s, %s, %s" % (v(LND + 8), v(RING + 4), v(RING + 5), v(RING + 6)))
            A("v_max_u32 %s, %s, %s" % (v(LND + 8), v(LND + 8), v(RING + 7)))
            Q(7, 0); touch(128)
            A("v_cmp_eq_u32 vcc, -1, %s" % v(LND + 8))
            Q(7, 1); kxrd(0, 2)
            kxrd(0, 3)
        Q(7, 2); A("v_cndmask_b32 %s, 2.0, 0, %s" % (v(vTmp), s(sOne, 2)))
        A.wait_ds(('qk', 7, 3))
        Q(7, 3); kxrd(0, 0)
        A("s_cbranch_vccnz %s" % ls3r)
        A.label(ls3ok)
        Q(8, 0); kxrd(0, 1)
        Q(8, 1)
        A.vmem("buffer_store_dword %s, %s, %s, %s offen sc1" % (v(vIdx), v(vTmp), s(sWS, 4), s(sFlg)), 'flag')
        Q(8, 2); A("v_lshrrev_b32 %s, 2, %s" % (v(vTmp), v(vL16)))
        Q(8, 3); A("s_add_u32 %s, %s, 4096" % (s(sFlg), s(sFlg)))
        stamp()
        VS(7, 0); A("s_cmp_eq_u32 %s, %d" % (s(sStep), nsteps))
        VS(7, 1); ringrd(5, 0)
        def fin(base):
            A("v_add_f32 %s, %s, %s" % (v(base), v(base), v(base + 1)))
            A("v_add_f32 %s, %s, %s" % (v(base + 2), v(base + 2), v(base + 3)))
            A("v_add_f32 %s, %s, %s" % (v(base + 4), v(base + 4), v(base + 5)))
            A("v_add_f32 %s, %s, %s" % (v(base + 6), v(base + 6), v(base + 7)))
            A("v_cvt_pk_bf16_f32 %s, %s, %s" % (v(base), v(base), v(base + 4)))
            A("v_cvt_pk_bf16_f32 %s, %s, %s" % (v(base + 1), v(base + 2), v(base + 6)))
        def finw(base):
            o = 8 if base == QK else 0
            A.ds("ds_write2_b32 %s, %s, %s offset0:%d offset1:%d" % (v(vFw), v(base), v(base + 1), o, o + 4), 'fw')
        def pub(reg, off):
            A.vmem("buffer_store_dword %s, %s, %s, %s offen offset:%d%s" % (v(reg), v(vTmp), s(sWS, 4), s(sKM), off, PUB), 'pub')
        fin(QK)
        fin(QK + 8)
        finw(QK)
        finw(QK + 8)
        A.wait_vm(L2KEY)
        VS(8, 1); pub(QK + 8, 0)
        VS(8, 0); kxrd(1, 0)
        VS(6, 1); kxrd(1, 1)
        VS(6, 0); pub(QK + 9, 256)
        A.wait_ds('fw')
        A("s_barrier")
        if FP == 2:
            stamp(True)
        for ks in range(4):
            A.ds("ds_read_b128 %s, %s offset:%d" % (v(QK + 4 * ks, 4), v(vL16), L_F + ks * FSTR), ('f', ks))
        stamp()
        VS(5, 0, RING)
        VS(5, 1, RING)
        T1, T2, T0 = RING, RING + 4, RING + 8
        ONES, LACC, OACC = QK + 8, QK + 12, LND + 16
        def S(i, ks):
            d, a_ = ((T1, KXR[(0, ks)]), (T2, KXR[(1, ks)]), (T0, QK + 4 * ks))[i]
            MF(d, a_, QK + 4 * ks, "0" if ks == 0 else v(d, 4))
        def vfin(t, part):
            b = VACC + 4 * t
            if part == 0:
                A("v_add_f32 %s, %s, %s" % (v(b), v(b), v(b + 1)))
                A("v_add_f32 %s, %s, %s" % (v(b + 2), v(b + 2), v(b + 3)))
            else:
                A("v_cvt_pk_bf16_f32 %s, %s, %s" % (v(b), v(b), v(b + 2)))
                A("v_mov_b32 %s, 0" % v(b + 1))
        def vxrd(t):
            A.ds("ds_read_b128 %s, %s offset:%d" % (v(QK + 4 * t, 4), v(vWL), 32768 + t * 1024), 'vx')
        m1, m2 = T0 + 2, T0 + 3
        A.wait_ds(('f', 0))
        S(0, 0)
        if FP == 2:
            stamp(True)
        A.wait_ds(('f', 1))
        S(0, 1); kxrd(1, 2)
        kxrd(1, 3)
        A.wait_ds(('f', 3))
        S(0, 2)
        S(0, 3); land(('o', 1), 0)
        land(('o', 1), 1)
        S(2, 0); vfin(0, 0)
        S(2, 1); vfin(0, 1)
        S(2, 2); vfin(1, 0)
        S(2, 3); pub(VACC, 512)
        vfin(1, 1)
        A.wait_vm('vdma')
        S(1, 0); vxrd(0)
        A("v_max3_f32 %s, %s, %s, %s" % (v(VACC + 2), v(T1), v(T1 + 1), v(T1 + 2)))
        S(1, 1); vxrd(1)
        A.wait_ds(('kx', 1, 3))
        S(1, 2); pub(VACC + 4, 768)
        A("v_max3_f32 %s, %s, %s, %s" % (v(m1), v(VACC + 2), v(T1 + 3), v(T0)))
        S(1, 3)
        if FP == 2:
            stamp(True)
        land(('o', 0), 0)
        land(('o', 0), 1)
        A("s_cbranch_scc1 %s" % lexit)
        A("s_add_u32 %s, %s, %d" % (s(sKM), s(sKM), 32 * 4096))
        stamp()
        sv = [T1, T1 + 1, T1 + 2, T1 + 3, T2, T2 + 1, T2 + 2, T2 + 3, T0, T0 + 1]
        A("v_max_f32 %s, %s, %s" % (v(m1), v(m1), v(T0 + 1)))
        A("s_nop 0")
        A("v_mov_b32 %s, 0x3f803f80" % v(ONES))
        A("v_mov_b32 %s, 0x3f803f80" % v(ONES + 1))
        A("v_max3_f32 %s, %s, %s, %s" % (v(m1), v(m1), v(sv[4]), v(sv[5])))
        A("v_max3_f32 %s, %s, %s, %s" % (v(m2), v(m1), v(sv[6]), v(sv[7])))
        A("v_max3_f32 %s, %s, %s, %s" % (v(m1), v(m1), v(sv[6]), v(sv[7])))
        A("v_mov_b32 %s, 0x3f803f80" % v(ONES + 2))
        A("v_mov_b32 %s, 0x3f803f80" % v(ONES + 3))
        A("v_permlane32_swap_b32 %s, %s" % (v(m1), v(m2)))
        A("v_max_f32 %s, %s, %s" % (v(m1), v(m1), v(m2)))
        A("v_mov_b32 %s, %s" % (v(m2), v(m1)))
        A("s_nop 1")
        A("v_permlane16_swap_b32 %s, %s" % (v(m1), v(m2)))
        A("v_max_f32 %s, %s, %s" % (v(m1), v(m1), v(m2)))
        A("v_mul_f32 %s, %s, %s" % (v(m1), s(sC), v(m1)))
        if FP == 2:
            stamp(True)
        P, Pm = T1, T0
        def fma(x):
            A("v_fma_f32 %s, %s, %s, -%s" % (v(x), v(x), s(sC), v(m1)))
        def ex(x):
            A("v_exp_f32 %s, %s" % (v(x), v(x)))
        def M16(d, a_):
            A("v_mfma_f32_16x16x16_bf16 %s, %s, %s, 0" % (v(d, 4), v(a_, 2), v(Pm, 2)))
        fma(T0); fma(T0 + 1); ex(T0); ex(T0 + 1)
        fma(sv[0])
        A("v_cvt_pk_bf16_f32 %s, %s, %s" % (v(Pm), v(T0), v(T0 + 1)))
        A("v_mov_b32 %s, 0" % v(Pm + 1))
        fma(sv[1]); fma(sv[2])
        M16(LACC, ONES)
        fma(sv[3]); fma(sv[4])
        M16(OACC, VACC)
        fma(sv[5]); fma(sv[6])
        M16(OACC + 4, VACC + 4)
        fma(sv[7])
        for x in sv[:8]:
            ex(x)
        A("v_cvt_pk_bf16_f32 %s, %s, %s" % (v(P), v(T1), v(T1 + 1)))
        A("v_cvt_pk_bf16_f32 %s, %s, %s" % (v(P + 1), v(T1 + 2), v(T1 + 3)))
        A("v_cvt_pk_bf16_f32 %s, %s, %s" % (v(P + 2), v(T2), v(T2 + 1)))
        A("v_cvt_pk_bf16_f32 %s, %s, %s" % (v(P + 3), v(T2 + 2), v(T2 + 3)))
        A.wait_ds('vx')
        A("v_mov_b64 %s, 0" % v(44, 2))
        MF(LACC, ONES, P, v(LACC, 4))
        if FP == 2:
            stamp(True)
        if "vn" in opt:
            A(kd[3])
        MF(OACC, QK, P, v(OACC, 4))
        if "vn" in opt:
            A.vmem(kd[4], 'vdma')
        MF(OACC + 4, QK + 4, P, v(OACC + 4, 4))
        if "vn" in opt:
            A.vmem(kd[5], 'vdma')
        zero(12, 24)
        A("v_rcp_f32 %s, %s" % (v(vTmp), v(LACC)))
        if FP == 2:
            stamp(True)
        A("v_mov_b64 %s, 0" % v(24, 2))
        for i in range(8):
            A("v_mul_f32 %s, %s, %s" % (v(OACC + i), v(OACC + i), v(vTmp)))
        OP = T2
        for i in range(4):
            A("v_cvt_pk_bf16_f32 %s, %s, %s" % (v(OP + i), v(OACC + 2 * i), v(OACC + 2 * i + 1)))
        A.ds("ds_write_b128 %s, %s" % (v(vOw), v(OP, 4)), 'ow')
        if FP == 2:
            stamp(True)
        A("v_mov_b64 %s, -1" % v(36, 2))
        A("v_cndmask_b32 %s, 0, 1, %s" % (v(vTmp), s(sTagM, 2)))
        A.vmem("buffer_store_dwordx2 %s, %s, %s, %s offen%s" % (v(36, 2), v(vRst), s(sWS, 4), s(sX2), SC), 'rst')
        zero(26, 36)
        A.wait_ds('ow')
        A("s_barrier")
        if FP == 2:
            stamp(True)
        OF = LND + 16
        for c2 in range(2):
            A.ds("ds_read_b128 %s, %s offset:%d" % (v(OF + 4 * c2, 4), v(vL16), L_O + c2 * 1024), ('of', c2))
        stamp()
        zero(36, 44)
        zero(46, 48)
        def wacc(tile):
            return 12 + 4 * tile
        def W(p, c2):
            key = ('o', 2 * p + c2)
            wait_many([('of', c2), key])
            SM(wacc(p), OF + 4 * c2, R(WREGS[key], 8) if key in WREGS else v(LND + 8 * SLOT[key], 8))
            if c2 == 0 and FP == 1:
                stamp(True)
        def e1(tile):
            b = wacc(tile)
            A("v_add_f32 %s, %s, %s" % (v(b + 1), v(b), v(b + 1)))
            A("v_add_f32 %s, %s, %s" % (v(b + 3), v(b + 2), v(b + 3)))
        def e2(tile):
            b = wacc(tile)
            A("v_cvt_pk_bf16_f32 %s, %s, %s" % (v(b), v(b + 1), v(b + 3)))
            A("v_bfi_b32 %s, %s, %s, %s" % (v(b), v(vTmp), s(sPh), v(b)))
        def e3(tile):
            A("buffer_store_dword %s, %s, %s, %s offen%s" % (v(wacc(tile)), v(vPst), s(sWS, 4), s(sPt + tile), SC))
        LO = lambda n, hh: land(('o', n), hh)
        W(0, 0)
        if FP == 2:
            stamp(True)
        LO(8, 0)
        W(0, 1); LO(8, 1)
        A("s_add_u32 %s, %s, %d" % (s(sKVt), s(sKVt), KVINC))
        W(1, 0); LO(9, 0)
        A("s_add_u32 %s, %s, %d" % (s(sKV), s(sKV), KVINC))
        W(1, 1); LO(9, 1)
        A("s_add_u32 %s, %s, %d" % (s(sKVv), s(sKVv), KVINC))
        e1(0)
        for p in range(2, 9):
            W(p, 0)
            if p == 5:
                LO(16, 0)
            if p == 6:
                LO(17, 0)
            if p == 2:
                A("s_cmp_ge_u32 %s, 32" % s(sUnit))
            e2(p - 2)
            W(p, 1); e3(p - 2)
            if p == 5:
                LO(16, 1)
            if p == 6:
                LO(17, 1)
            e1(p - 1)
        EP = optval("ep", 0)
        def wtail(early):
            if early and EP == 3:
                poll1_issue(PLA)
            e2(7); e3(7)
            if early and EP == 1:
                poll1_issue(PLA)
            A("s_nop 1")
            e1(8); e2(8); e3(8)
            if stamps and "fine" not in opt:
                A("s_memrealtime %s" % s(sStamp + 16, 2))
            if FP == 1:
                stamp(True)
        if EP:
            lw = A.new("wt")
            A("s_cbranch_scc0 %s" % lw)
            wtail(False)
            A("s_branch %s" % lnored)
            A.label(lw)
            wtail(True)
        else:
            wtail(False)
            A("s_cbranch_scc1 %s" % lnored)
        def prep():
            mksel()
            rotate()
            for i in range(0, 8, 2):
                A("v_mov_b64 %s, -1" % v(RING + i, 2))
            A("v_mov_b32 %s, %d" % (v(46), L_FLAG))
            A("v_mov_b32 %s, %s" % (v(47), s(sStep)))
        l1b = A.new("p1b")
        if EP:
            if "eb2" in opt:
                prep()
                poll1_issue(PLB)
            else:
                poll1_issue(PLB)
                prep()
            reduce_body(PLA, 4 + EP)
            A("s_cbranch_vccz %s" % lok1)
            A("s_branch %s" % l1b)
        A.label(lgo1)
        poll1_issue(PLA)
        stamp()
        prep()
        poll1_issue(PLB)
        A.label(l1a)
        reduce_body(PLA, 4)
        A("s_cbranch_vccz %s" % lok1)
        A.label(l1b)
        if "tt" in opt:
            A("s_add_u32 s87, s87, 1")
        poll1_issue(PLA)
        reduce_body(PLB, 4)
        A("s_cbranch_vccz %s" % lok1)
        if "tt" in opt:
            A("s_add_u32 s87, s87, 1")
        poll1_issue(PLB)
        A("s_sub_u32 %s, %s, 1" % (s(sBud), s(sBud)))
        A("s_cbranch_scc0 %s" % l1a)
        A("s_mov_b32 %s, 0" % s(sBud))
        A.label(lok1)
        def finish(nop):
            A("s_nop %d" % nop)
            for i in range(4):
                A("v_add_f32_dpp %s, %s, %s row_ror:8 row_mask:0xf bank_mask:0xf" % (v(RACC + i), v(RACC + i), v(RACC + i)))
            A("v_cvt_pk_bf16_f32 %s, %s, %s" % (v(44), v(RACC), v(RACC + 1)))
            A("v_cvt_pk_bf16_f32 %s, %s, %s" % (v(45), v(RACC + 2), v(RACC + 3)))
            A("buffer_store_dwordx2 %s, %s, %s, %s offen%s" % (v(44, 2), v(vRst), s(sWS, 4), s(sX0), SC))
        if "lsep" in opt:
            le = A.new("efin")
            A("s_cmp_lt_u32 %s, 32" % s(sUnit))
            A("s_cbranch_scc1 %s" % le)
            s1load(RING)
            finish(0)
            A("s_waitcnt vmcnt(3)")
            for ch in QK_CHAIN:
                land(ch[0])
            zero(VACC, RING)
            A("s_xor_b32 %s, %s, 1" % (s(sPh), s(sPh)))
            if "l2nd" in opt:
                s1load(RING)
                A("s_waitcnt vmcnt(3) lgkmcnt(0)")
            else:
                A("s_waitcnt vmcnt(1) lgkmcnt(0)")
            A("s_branch %s" % ls1w)
            A.label(le)
            A("ds_write_b32 %s, %s" % (v(46), v(47)))
            finish(0)
        else:
            A("ds_write_b32 %s, %s" % (v(46), v(47)))
            finish(2)
        stamp()
        A.label(lb4)
        for i in range(optval("g1", 0)):
            A("s_nop 7")
        if "late" in opt:
            A("s_waitcnt vmcnt(1)")
        else:
            s1load(RING)
            A("s_waitcnt vmcnt(%d)" % (5 if "early1" in opt else 3))
        for ch in QK_CHAIN:
            land(ch[0])
        zero(VACC, RING)
        A("s_xor_b32 %s, %s, 1" % (s(sPh), s(sPh)))
        if "late" in opt:
            s1load(RING)
        for i in range(optval("g2", 0)):
            A("s_nop 7")
        if "first0" in opt:
            A("s_waitcnt vmcnt(0)")
        A("s_waitcnt lgkmcnt(0)")
        if stamps and "rt" not in opt:
            ldump = A.new("dump")
            A("s_cmp_eq_u32 %s, 41" % s(sStep))
            A("s_cbranch_scc1 %s" % ldump)
            A("s_cmp_eq_u32 %s, 42" % s(sStep))
            A("s_cbranch_scc0 %s" % ls1w)
            A.label(ldump)
            for i in range(10):
                A("v_writelane_b32 %s, %s, %d" % (v(vTmp), s(sStamp + 2 * i), i))
            A("v_writelane_b32 %s, %s, %d" % (v(vTmp), s(sBud), 15))
            A("s_lshl_b32 %s, %s, 2" % (s(sT), s(sCU)))
            A("s_add_u32 %s, %s, %s" % (s(sT), s(sT), s(sW)))
            A("s_lshl_b32 %s, %s, 1" % (s(sT), s(sT)))
            A("s_add_u32 %s, %s, %s" % (s(sT), s(sT), s(sStep)))
            A("s_sub_u32 %s, %s, 41" % (s(sT), s(sT)))
            A("s_lshl_b32 %s, %s, 10" % (s(sT), s(sT)))
            A("s_add_u32 %s, %s, %d" % (s(sT), s(sT), WS_DBG + (3 << 18 if "mega" in opt else 0)))
            A("buffer_store_dword %s, %s, %s, %s offen" % (v(vTmp), v(vL16), s(sWS, 4), s(sT)))
            A("s_waitcnt vmcnt(0)")
        A("s_branch %s" % ls1w)
        A.label(ls1r + "_give")
        A("s_mov_b32 %s, 0" % s(sBud))
        A("s_branch %s" % lentry)
        A.label(lexit)
        if "tt" in opt:
            A("s_memtime s[94:95]")
            A("s_memrealtime s[70:71]")
            A("s_waitcnt lgkmcnt(0)")
            A("s_sub_u32 s94, s94, s92")
            A("s_sub_u32 s92, s92, s90")
            A("v_writelane_b32 %s, s92, 0" % v(vTmp))
            A("v_writelane_b32 %s, s94, 1" % v(vTmp))
            A("v_writelane_b32 %s, %s, 2" % (v(vTmp), s(sBud)))
            for i in range(3):
                A("v_writelane_b32 %s, s%d, %d" % (v(vTmp), 87 + i, 3 + i))
            for i in range(4):
                A("v_writelane_b32 %s, s%d, %d" % (v(vTmp), 64 + 2 * i, 6 + i))
            A("s_lshl_b32 %s, %s, 2" % (s(sT), s(sCU)))
            A("s_add_u32 %s, %s, %s" % (s(sT), s(sT), s(sW)))
            A("s_lshl_b32 %s, %s, 10" % (s(sT), s(sT)))
            A("s_add_u32 %s, %s, %d" % (s(sT), s(sT), WS_DBG + (1 << 19)))
            A("buffer_store_dword %s, %s, %s, %s offen" % (v(vTmp), v(vL16), s(sWS, 4), s(sT)))
            if "dbgout" in opt:
                for i, o in enumerate((4, 8, 12, 20)):
                    A("v_mov_b32 %s, s%d" % (v(vTmp), 64 + 2 * i))
                    A("buffer_atomic_umax %s, off, %s, 0 offset:%d" % (v(vTmp), s(sDBG, 4), o))
        A("s_waitcnt vmcnt(0)")

    loop(" sc1" if "forcesc1" in opt else "")
    A("s_endpgm")
    A.label(lslow)
    nst[0] = 0
    loop(" sc1")
```

```python
from asmlib import *
from layout import *
import struct, math

L_MEM, L_KX, L_F, L_O, L_SCR, L_W = 0, 9216, 17408, 21632, 23680, 24576
FSTR = 1056
L_FLAG = L_F + 1024
L_WSTRIDE = 34816
vL16, vIdx, vWL, vFw, vOw, vPst, vRst, vSelV, vT0, vT1, vT2, vTmp = range(12)
VACC, QK, RING, LND = 12, 20, 36, 48
WREG0 = 72
KVSTEP = 32 * 16384
NSPILL = 17
sWS, sWQ, sWK, sWV, sWO, sM0, sDBG = 4, 8, 12, 16, 20, 24, 28
sCU, sW, sWC, sUnit, sStep, sBud = 32, 33, 34, 35, 36, 37
sP0, sP1, sP2, sRd, sX0, sX1, sX2, sKV, sKM, sPh, sWF, sC, sVX, sKXm = range(38, 52)
sL2a, sKVv, sKVt = 96, 97, 98
sPt = 8
sTagM = 100
sOex = 26
sFlg, sFlgN, sOne, sKF, sRdy, sRdE = 17, 18, 20, 19, 22, 24
sSel = 52
sT = 60
sStamp = 64

def f32bits(x):
    return struct.unpack("<I", struct.pack("<f", x))[0]

WO_ORDER = [0, 1, 2, 3, 4, 5, 6, 7, 8]
QK_CHAIN = [[('qk', 0, 1), ('qk', 2, 0), ('qk', 4, 0), ('qk', 6, 0), ('qk', 7, 3)],
            [('qk', 0, 2), ('qk', 2, 1), ('qk', 4, 1), ('qk', 6, 1)],
            [('qk', 0, 0), ('v', 5, 1)]]
def GOF(j, w):
    if j == 8:
        return 8
    o = 2 * (1 - (w >> 1))
    return (j & 4) + (w, w ^ 1, o, o + 1)[j & 3]
WO_CHAIN = [[('o', 0), ('o', 8), ('o', 16)], [('o', 1), ('o', 9), ('o', 17)]]
L2KEY = ('v', 5, 1)
def placement():
    spill, regs, slot, nxt = {}, {}, {}, {}
    nonreg = []
    for chains in (QK_CHAIN, WO_CHAIN):
        for si, ch in enumerate(chains):
            for i, k in enumerate(ch):
                slot[k] = si
                nxt[k] = ch[i + 1] if i + 1 < len(ch) else None
                if k != L2KEY:
                    nonreg.append(k)
    nonreg.append(L2KEY)
    assert len(nonreg) == NSPILL
    for i, k in enumerate(nonreg):
        spill[k] = i
    allk = [('qk', j, t) for j in range(9) for t in range(4)] + [('v', j, t) for j in range(9) for t in range(2)] + \
           [('o', n) for n in range(18)]
    r = WREG0
    for k in allk:
        if k not in spill:
            regs[k] = r
            r += 8
    assert r == 512, r
    return spill, regs, slot, nxt
SPILL, WREGS, SLOT, NXT = placement()

def emit_team(A, stamps=False, nsteps=64, sc="", hooks=None, opt=()):
    nst = [0]
    def stamp(fine=False):
        if stamps and fine != ("fine" in opt):
            return
        if stamps:
            if "rt" in opt and nst[0] in (2, 4):
                pass
            else:
                A("%s %s" % ("s_memrealtime" if "rt" in opt else "s_memtime", s(sStamp + 2 * nst[0], 2)))
            nst[0] += 1
    SC = " sc1"
    lane = 71
    t1, t2, t3, t4, t5, t6 = 64, 65, 66, 67, 68, 69
    vOffW, vOffO, vTrQK, vTrV, vTrO, vAd, vTr8, vAd2 = 56, 57, 58, 59, 60, 61, 62, 63
    vColQK, vColV = 54, 55
    A.c("=========== team setup ===========")
    if "tt" in opt:
        A("s_memtime s[90:91]")
        A("s_memrealtime s[64:65]")
        A("s_mov_b32 s87, 0")
        A("s_mov_b32 s88, 0")
        A("s_mov_b32 s89, 0")
    A("v_mov_b32 %s, v0" % v(lane))
    A("v_lshrrev_b32 %s, 4, %s" % (v(t2), v(lane)))
    A("v_lshlrev_b32 %s, 2, %s" % (v(t1), v(t2)))
    A("v_sub_u32 %s, %s, %s" % (v(t1), v(lane), v(t1)))
    A("v_and_b32 %s, 15, %s" % (v(t1), v(t1)))
    A("v_lshlrev_b32 %s, 4, %s" % (v(t1), v(t1)))
    A("v_lshl_add_u32 %s, %s, 13, %s" % (v(vOffW), v(t2), v(t1)))
    A("s_lshl_b32 %s, %s, 8" % (s(sT + 2), s(sCU)))
    A("s_lshl_b32 %s, %s, 17" % (s(sT + 3), s(sW)))
    A("s_add_u32 %s, %s, %s" % (s(sT + 2), s(sT + 2), s(sT + 3)))
    A("v_add_u32 %s, %s, %s" % (v(vOffW), s(sT + 2), v(vOffW)))
    A("v_lshrrev_b32 %s, 3, %s" % (v(t1), v(lane)))
    A("v_mul_u32_u24 %s, 1152, %s" % (v(vOffO), v(t1)))
    A("v_and_b32 %s, 7, %s" % (v(t1), v(lane)))
    A("v_lshl_add_u32 %s, %s, 4, %s" % (v(vOffO), v(t1), v(vOffO)))
    A("s_mul_i32 %s, %s, 147456" % (s(sT + 2), s(sCU)))
    A("s_mul_i32 %s, %s, %d" % (s(sT + 3), s(sW), 32 * 1152))
    A("s_add_u32 %s, %s, %s" % (s(sT + 2), s(sT + 2), s(sT + 3)))
    A("v_add_u32 %s, %s, %s" % (v(vOffO), s(sT + 2), v(vOffO)))
    sLW = 99
    RING0 = L_W + 14336
    A("s_mul_i32 %s, %s, %d" % (s(sLW), s(sW), L_WSTRIDE))
    wide = [(m, G) for G in range(9) for m in range(2)] + [(2, G) for G in (4, 5, 6, 7, 8, 0, 1, 2, 3)]
    chunks = []
    for i, x in enumerate(wide):
        chunks.append(x)
        if i % 5 in (1, 3) and len(chunks) - i - 1 < 9:
            chunks.append((3, len(chunks) - i - 1))
    assert len(chunks) == 36 and chunks[-3:] == [(2, 1), (2, 2), (2, 3)] and all(m != 3 for m, G in chunks[31:])
    VLAST = (1, 2, 3)
    NSLOT = 5
    NT = " nt" if "nt" in opt else ""
    TD = ([int(o[3:]) for o in opt if o.startswith("td=")] + [0])[0]
    vTch = 67
    if TD:
        A("v_bfe_u32 %s, %s, 1, 4" % (v(t1), v(lane)))
        A("v_lshlrev_b32 %s, 13, %s" % (v(53), v(t1)))
        A("v_and_b32 %s, 1, %s" % (v(t1), v(lane)))
        A("v_lshl_add_u32 %s, %s, 7, %s" % (v(53), v(t1), v(53)))
        A("s_lshl_b32 %s, %s, 8" % (s(sT + 2), s(sCU)))
        A("s_lshl_b32 %s, %s, 17" % (s(sT + 3), s(sW)))
        A("s_add_u32 %s, %s, %s" % (s(sT + 2), s(sT + 2), s(sT + 3)))
        A("v_add_u32 %s, %s, %s" % (v(11), s(sT + 2), v(53)))
    def touch_chunk(c):
        if not TD or c >= 36 or chunks[c][0] == 3:
            return
        m, G = chunks[c]
        A("s_mov_b32 %s, %d" % (s(sT + 2), 64 * G * 8192))
        A.vmem("buffer_load_dword %s, %s, %s, %s offen" % (v(71), v(11), s((sWQ, sWK, sWV)[m], 4), s(sT + 2)), 't')
    def issue_chunk(c):
        _issue(c)
        if c >= NSLOT - 1:
            if c == NSLOT - 1:
                for k in range(1, TD):
                    touch_chunk(c + k)
            touch_chunk(c + TD)
    def _issue(c):
        m, G = chunks[c]
        slot = c % NSLOT
        for j in range(4):
            A("s_add_u32 m0, %s, %d" % (s(sLW), RING0 + slot * 4096 + j * 1024))
            if m < 3:
                A("s_mov_b32 %s, %d" % (s(sT + 2), (64 * G + 4 * j) * 8192))
                A.vmem("buffer_load_dwordx4 %s, %s, %s offen%s lds" % (v(vOffW), s((sWQ, sWK, sWV)[m], 4), s(sT + 2), NT), ('c', c))
            else:
                A("s_mov_b32 %s, %d" % (s(sT + 2), 8 * j * 1152 + 128 * G))
                A.vmem("buffer_load_dwordx4 %s, %s, %s offen%s lds" % (v(vOffO), s(sWO, 4), s(sT + 2), NT), ('c', c))
    A.vm, A.lds = [], []
    for c in range(NSLOT - 1):
        issue_chunk(c)
    A("s_lshl_b32 %s, %s, 5" % (s(sT), s(sW)))
    A("s_add_u32 %s, %s, %s" % (s(sUnit), s(sT), s(sCU)))
    A("s_cmp_lt_u32 %s, 72" % s(sUnit))
    A("s_cselect_b32 %s, %s, -1" % (s(sUnit), s(sUnit)))
    if "dup" in opt:
        A("s_xor_b32 %s, %s, 16" % (s(sT), s(sCU)))
        A("s_cmp_eq_u32 %s, 3" % s(sW))
        A("s_cselect_b32 %s, %s, %s" % (s(sUnit), s(sT), s(sUnit)))
    A("v_lshlrev_b32 %s, 4, %s" % (v(vL16), v(lane)))
    A("v_and_b32 %s, 1, %s" % (v(t1), v(lane)))
    A("v_mul_u32_u24 %s, 0xaaaa, %s" % (v(t1), v(t1)))
    A("v_add_u32 %s, 0x4444, %s" % (v(vIdx), v(t1)))
    A("s_mul_i32 %s, %s, %d" % (s(sT), s(sW), L_WSTRIDE))
    A("s_add_u32 %s, %s, %d" % (s(sT), s(sT), L_W))
    A("v_add_u32 %s, %s, %s" % (v(vWL), s(sT), v(vL16)))
    A("s_add_u32 %s, %s, 32768" % (s(sVX), s(sT)))
    A("s_lshl_b32 %s, %s, 11" % (s(sKXm), s(sW)))
    A("s_add_u32 %s, %s, %d" % (s(sKXm), s(sKXm), L_KX))
    A("v_lshrrev_b32 %s, 4, %s" % (v(t2), v(lane)))
    A("v_bfe_u32 %s, %s, 2, 2" % (v(t3), v(lane)))
    A("v_and_b32 %s, 3, %s" % (v(t4), v(lane)))
    A("v_and_b32 %s, 1, %s" % (v(t1), v(t3)))
    A("v_mul_u32_u24 %s, %d, %s" % (v(vFw), FSTR, v(t1)))
    A("v_lshrrev_b32 %s, 1, %s" % (v(t1), v(t3)))
    A("v_lshl_add_u32 %s, %s, 8, %s" % (v(vFw), v(t1), v(vFw)))
    A("v_lshl_add_u32 %s, %s, 6, %s" % (v(vFw), v(t2), v(vFw)))
    A("v_lshl_add_u32 %s, %s, 2, %s" % (v(vFw), v(t4), v(vFw)))
    A("s_lshr_b32 %s, %s, 1" % (s(sT), s(sW)))
    A("s_and_b32 %s, %s, 1" % (s(sT + 1), s(sW)))
    A("s_mul_i32 %s, %s, %d" % (s(sT + 2), s(sT), 2 * FSTR))
    A("s_lshl_b32 %s, %s, 9" % (s(sT + 3), s(sT + 1)))
    A("s_add_u32 %s, %s, %s" % (s(sT + 2), s(sT + 2), s(sT + 3)))
    A("s_add_u32 %s, %s, %d" % (s(sT + 2), s(sT + 2), L_F))
    A("v_add_u32 %s, %s, %s" % (v(vFw), s(sT + 2), v(vFw)))
    A("v_and_b32 %s, 1, %s" % (v(t1), v(t4)))
    A("v_lshl_add_u32 %s, %s, 1, %s" % (v(t1), v(t3), v(t1)))
    A("v_lshlrev_b32 %s, 5, %s" % (v(t5), v(t1)))
    A("v_lshl_add_u32 %s, %s, 8, %s" % (v(t5), v(t2), v(t5)))
    A("s_lshl_b32 %s, %s, 10" % (s(sT + 2), s(sT)))
    A("s_lshl_b32 %s, %s, 4" % (s(sT + 3), s(sT + 1)))
    A("s_add_u32 %s, %s, %s" % (s(sT + 2), s(sT + 2), s(sT + 3)))
    A("s_add_u32 %s, %s, %d" % (s(sT + 2), s(sT + 2), L_O))
    A("v_add_u32 %s, %s, %s" % (v(t5), s(sT + 2), v(t5)))
    A("v_lshl_add_u32 %s, %s, 3, %s" % (v(t6), v(t2), v(t1)))
    A("v_lshlrev_b32 %s, 4, %s" % (v(t6), v(t6)))
    A("v_add_u32 %s, %d, %s" % (v(t6), L_SCR, v(t6)))
    A("v_cmp_le_u32 vcc, 2, %s" % v(t4))
    A("s_nop 1")
    A("v_cndmask_b32 %s, %s, %s, vcc" % (v(vOw), v(t6), v(t5)))
    A("v_lshrrev_b32 %s, 5, %s" % (v(t1), v(lane)))
    A("v_lshlrev_b32 %s, 12, %s" % (v(vPst), v(t1)))
    A("v_and_b32 %s, 31, %s" % (v(t1), v(lane)))
    A("v_lshl_add_u32 %s, %s, 2, %s" % (v(vPst), v(t1), v(vPst)))
    A("v_lshlrev_b32 %s, 6, %s" % (v(t5), v(t3)))
    A("v_lshl_add_u32 %s, %s, 3, %s" % (v(t5), v(t4), v(t5)))
    A("v_lshl_add_u32 %s, %s, 5, %s" % (v(t5), v(t2), v(t5)))
    A("s_lshl_b32 %s, %s, 7" % (s(sT + 2), s(sUnit)))
    A("s_and_b32 %s, %s, 0x3fff" % (s(sT + 2), s(sT + 2)))
    A("v_add_u32 %s, %s, %s" % (v(t5), s(sT + 2), v(t5)))
    A("v_and_b32 %s, 0x28, %s" % (v(t1), v(lane)))
    A("v_mov_b32 %s, 0x%x" % (v(t6), OOB))
    A("v_cmp_eq_u32 vcc, 0, %s" % v(t1))
    A("s_nop 1")
    A("v_cndmask_b32 %s, %s, %s, vcc" % (v(vRst), v(t6), v(t5)))
    A("s_mov_b32 %s, 0x11111111" % s(sTagM))
    A("s_mov_b32 %s, 0x11111111" % s(sTagM + 1))
    A("v_and_b32 %s, 1, %s" % (v(t1), v(t3)))
    A("v_lshlrev_b32 %s, 4, %s" % (v(t1), v(t1)))
    A("v_mov_b32 %s, 0x3f80" % v(t5))
    A("v_lshlrev_b32 %s, %s, %s" % (v(vSelV), v(t1), v(t5)))
    for u in range(4):
        m16 = (1 << u) | (1 << (u + 4))
        m32 = m16 | (m16 << 16)
        A("s_mov_b32 %s, 0x%x" % (s(sSel + 2 * u), m32))
        A("s_mov_b32 %s, 0x%x" % (s(sSel + 2 * u + 1), m32))
    A("s_lshl_b32 %s, %s, 10" % (s(sT + 2), s(sW)))
    A("v_add_u32 %s, %s, %s" % (v(vT0), s(sT + 2), v(vL16)))
    A("v_xor_b32 %s, 0x400, %s" % (v(vT1), v(vT0)))
    A("s_and_b32 %s, %s, 0x800" % (s(sT + 2), s(sT + 2)))
    A("s_xor_b32 %s, %s, 0x800" % (s(sT + 2), s(sT + 2)))
    A("v_add_u32 %s, %s, %s" % (v(vT2), s(sT + 2), v(vL16)))
    A("s_mov_b32 %s, 0" % s(sStep))
    A("s_mov_b32 %s, 0" % s(sPh))
    A("s_mov_b32 %s, %d" % (s(sBud), 200000 if "tt" in opt or "stamps" in opt else 2000000))
    A("s_lshl_b32 %s, %s, 7" % (s(sT + 3), s(sCU)))
    A("s_add_u32 %s, %s, %d" % (s(sT + 3), s(sT + 3), WS_PB))
    A("s_lshl_b32 %s, %s, 13" % (s(sT + 2), s(sW)))
    A("s_add_u32 %s, %s, %s" % (s(sP0), s(sT + 2), s(sT + 3)))
    A("s_lshl_b32 %s, %s, 12" % (s(sT + 2), s(sUnit)))
    A("s_add_u32 %s, %s, %d" % (s(sRd), s(sT + 2), WS_PB))
    A("s_cmp_eq_u32 %s, -1" % s(sUnit))
    A("s_cselect_b32 %s, 0x%x, %s" % (s(sRd), OOB, s(sRd)))
    A("s_cselect_b32 %s, 0x%x, 0" % (s(sT + 2), OOB))
    A("v_or_b32 %s, %s, %s" % (v(vRst), s(sT + 2), v(vRst)))
    for i, r in enumerate((sX0, sX1, sX2)):
        A("s_mov_b32 %s, %d" % (s(r), WS_MBX + i * MBX_STRIDE))
    A("s_lshl_b32 %s, %s, 14" % (s(sKV), s(sCU)))
    A("s_lshl_b32 %s, %s, 11" % (s(sT + 2), s(sW)))
    A("s_add_u32 %s, %s, %s" % (s(sKV), s(sKV), s(sT + 2)))
    A("s_add_u32 %s, %s, %d" % (s(sKVv), s(sKV), WS_KV + 8192))
    A("s_lshl_b32 %s, %s, 14" % (s(sKVt), s(sCU)))
    A("s_add_u32 %s, %s, %d" % (s(sKVt), s(sKVt), WS_KV + 1 * KVSTEP))
    A("s_cmp_lt_u32 %s, 3" % s(sW))
    A("s_cselect_b32 %s, 0x%x, %s" % (s(sKVt), OOB, s(sKVt)))
    if WS_KV:
        A("s_add_u32 %s, %s, %d" % (s(sKV), s(sKV), WS_KV))
    A("s_lshl_b32 %s, %s, 12" % (s(sKM), s(sCU)))
    A("s_lshl_b32 %s, %s, 10" % (s(sT + 2), s(sW)))
    A("s_add_u32 %s, %s, %s" % (s(sKM), s(sKM), s(sT + 2)))
    A("s_add_u32 %s, %s, %d" % (s(sKM), s(sKM), WS_KM))
    A("s_lshl_b32 %s, %s, 2" % (s(sT + 2), s(sCU)))
    A("s_add_u32 %s, %s, %s" % (s(sT + 2), s(sT + 2), s(sW)))
    A("s_mul_i32 %s, %s, %d" % (s(sWF), s(sT + 2), 18 * 2048))
    A("s_add_u32 %s, %s, %d" % (s(sWF), s(sWF), WS_WF))
    A("s_add_u32 %s, %s, %d" % (s(sL2a), s(sWF), 16 * 2048))
    A("s_mov_b32 %s, 0x%x" % (s(sC), f32bits(128 ** -0.5 * math.log2(math.e))))

    A("s_lshl_b32 %s, %s, 2" % (s(sT + 2), s(sW)))
    A("v_add_u32 %s, %s, %s" % (v(vColQK), s(sT + 2), v(t4)))
    A("s_lshl_b32 %s, %s, 3" % (s(sT + 2), s(sT)))
    A("s_add_u32 %s, %s, %s" % (s(sT + 2), s(sT + 2), s(sT + 1)))
    A("v_lshl_add_u32 %s, %s, 1, %s" % (v(vColV), v(t4), s(sT + 2)))
    A("v_and_b32 %s, 1, %s" % (v(t5), v(t2)))
    A("v_lshlrev_b32 %s, 2, %s" % (v(t5), v(t5)))
    A("v_lshrrev_b32 %s, 1, %s" % (v(t6), v(t3)))
    A("v_lshl_add_u32 %s, %s, 3, %s" % (v(t5), v(t6), v(t5)))
    A("v_and_b32 %s, 1, %s" % (v(t6), v(t3)))
    A("v_add_u32 %s, %s, %s" % (v(t5), v(t5), v(t6)))
    A("v_lshrrev_b32 %s, 1, %s" % (v(t1), v(t2)))
    A("v_lshl_add_u32 %s, %s, 4, %s" % (v(vTrO), v(t1), v(t5)))
    A("v_lshlrev_b32 %s, 7, %s" % (v(vTrO), v(vTrO)))
    A("v_lshl_add_u32 %s, %s, 3, %s" % (v(vTrO), v(t4), v(vTrO)))
    A("s_lshl_b32 %s, %s, 5" % (s(sT + 2), s(sW)))
    A("s_add_u32 %s, %s, %d" % (s(sT + 2), s(sT + 2), RING0))
    A("v_add_u32 %s, %s, %s" % (v(vTrO), s(sT + 2), v(vTrO)))
    A("v_mul_u32_u24 %s, %d, %s" % (v(t1), L_WSTRIDE, v(t1)))
    A("v_lshl_add_u32 %s, %s, 8, %s" % (v(t1), v(t5), v(t1)))
    A("v_add_u32 %s, %d, %s" % (v(t1), RING0, v(t1)))
    for col in (vColQK, vColV):
        A("v_lshl_add_u32 %s, %s, 2, %s" % (v(col), v(t6), v(col)))
        A("v_and_b32 %s, 15, %s" % (v(col), v(col)))
        A("v_lshl_add_u32 %s, %s, 4, %s" % (v(col), v(col), v(t1)))
    AD = [58, 59, 61, 62]
    ADO = [vTrO, 63, 69, 70]
    def addr_wo():
        for i in range(1, 4):
            A("v_add_u32 %s, %d, %s" % (v(ADO[i]), i * L_WSTRIDE, v(vTrO)))
    def addr_wide(col):
        A("v_mov_b32 %s, %s" % (v(AD[0]), v(col)))
        A("v_xor_b32 %s, 0x80, %s" % (v(AD[1]), v(col)))
        A("v_add_u32 %s, %d, %s" % (v(AD[2]), 2 * L_WSTRIDE, v(AD[0])))
        A("v_add_u32 %s, %d, %s" % (v(AD[3]), 2 * L_WSTRIDE, v(AD[1])))
    TMPF = [12, 20]
    tmpi = [0]
    park = {}
    def get_frag(key, addrs, imms):
        out = None
        if key in WREGS:
            r = WREGS[key]
        elif SPILL[key] in park:
            r = park[SPILL[key]]
        else:
            r = TMPF[tmpi[0] % 2]
            tmpi[0] += 1
            out = (r, SPILL[key])
        for q in range(4):
            A.ds("ds_read_b64_tr_b16 %s, %s offset:%d" % (R(r + 2 * q, 2), v(addrs[q]), imms[q]))
        return out
    def put(r, idx):
        if idx < 16:
            for hh in range(2):
                A.ds("ds_write_b128 %s, %s offset:%d" % (v(vWL), R(r + 4 * hh, 4), idx * 2048 + hh * 1024))
        else:
            for hh in range(2):
                A.vmem("buffer_store_dwordx4 %s, %s, %s, %s offen offset:%d" % (v(r + 4 * hh, 4), v(vL16), s(sWS, 4), s(sL2a), 1024 * hh), 'sp')

    A("v_lshl_add_u32 %s, %s, 1, %s" % (v(t5), v(t3), v(t2)))
    A("v_mul_u32_u24 %s, 1152, %s" % (v(t5), v(t5)))
    A("v_lshl_add_u32 %s, %s, 3, %s" % (v(t5), v(t4), v(t5)))
    A("s_and_b32 %s, %s, 1" % (s(sT + 2), s(sUnit)))
    A("s_mul_i32 %s, %s, 4608" % (s(sT + 2), s(sT + 2)))
    A("s_bfe_u32 %s, %s, 0x60001" % (s(sT + 3), s(sUnit)))
    A("s_lshl_b32 %s, %s, 5" % (s(sT + 3), s(sT + 3)))
    A("s_add_u32 %s, %s, %s" % (s(sT + 2), s(sT + 2), s(sT + 3)))
    A.vmem("buffer_load_dwordx2 %s, %s, %s, %s offen" % (v(52, 2), v(t5), s(sM0, 4), s(sT + 2)), 'm0')
    for i in range(4):
        A("v_mov_b32 %s, -1" % v(64 + i))
    for i in range(4):
        A.vmem("buffer_store_dwordx4 %s, %s, %s, %s offen offset:%d%s" % (v(64, 4), v(vL16), s(sWS, 4), s(sRd), 1024 * i, SC), 'mb')
    for so in (sX1, sX2):
        A.vmem("buffer_store_dwordx2 %s, %s, %s, %s offen%s" % (v(64, 2), v(vRst), s(sWS, 4), s(so), SC), 'mb')
    vm0 = list(A.vm)
    ljoin = A.new("initjoin")
    lcls = [A.new("cls%d" % i) for i in range(4)]
    for i in (1, 2, 3):
        A("s_cmp_eq_u32 %s, %d" % (s(sW), i))
        A("s_cbranch_scc1 %s" % lcls[i])
    for wc in range(4):
        A.label(lcls[wc])
        A.vm, A.lds = list(vm0), []
        tmpi[0] = 0
        pos = [GOF(jj, wc) for jj in range(9)]
        park.clear()
        park.update({15: 28, 7: 36, 8: 44})
        for i, G in enumerate(VLAST):
            for t in range(2):
                park[9 + 2 * i + t] = WREGS[('v', pos.index(G), t)]
        flush = {32: (9, 10), 33: (11, 12), 34: (13, 14), 35: (15,)}
        for c in range(36):
            m, G = chunks[c]
            if c == 0:
                addr_wo()
                addr_wide(vColQK)
            if chunks[c] == (2, 4):
                addr_wide(vColV)
            A.wait_vm(('c', c))
            A("s_barrier")
            if c + NSLOT - 1 < 36:
                issue_chunk(c + NSLOT - 1)
            if c == NSLOT:
                A.vmem("buffer_store_dwordx2 %s, %s, %s, %s offen%s" % (v(52, 2), v(vRst), s(sWS, 4), s(sX0), SC), 'mb')
            if c == 20 and wc == 0:
                A("s_mov_b64 exec, 1")
                A("s_lshl_b32 %s, 1, s3" % s(sT + 2))
                A("s_lshl_b32 %s, %s, 8" % (s(sT + 2), s(sT + 2)))
                A("v_mov_b32 %s, %s" % (v(52), s(sT + 2)))
                A("v_mov_b32 %s, 1" % v(53))
                A.vmem("buffer_atomic_or %s, off, %s, 0 offset:%d" % (v(52), s(sDBG, 4), DBG_TEAM), 'at')
                A.vmem("buffer_atomic_add %s, off, %s, 0 offset:%d" % (v(53), s(sDBG, 4), DBG_TEAM), 'at')
                A("s_mov_b64 exec, -1")
            if "mega" in opt and c == 24:
                A.vmem("buffer_load_dword %s, off, %s, 0 offset:%d sc1" % (v(64), s(sDBG, 4), DBG_MOD), 'e')
            if "mega" in opt and c == 34:
                A("v_lshrrev_b32 %s, 2, %s" % (v(65), v(vL16)))
                A("s_lshl_b32 %s, %s, 8" % (s(sT + 2), s(sCU)))
                A("s_add_u32 %s, %s, %d" % (s(sT + 2), s(sT + 2), FL_KV))
                A.vmem("buffer_load_dword %s, %s, %s, %s offen sc1" % (v(65), v(65), s(sWS, 4), s(sT + 2)), 'e')
                A.vmem("buffer_load_dword %s, off, %s, 0 offset:%d sc1" % (v(66), s(sDBG, 4), DBG_TEAM), 'e')
            for idx in flush.get(c, ()):
                put(park[idx], idx)
            so = (c % NSLOT) * 4096
            sp = []
            if m == 3:
                for c2 in range(2):
                    sp.append(get_frag(('o', 2 * G + c2), [ADO[2 * c2 + (q >> 1)] for q in range(4)], [so + 2 * (q & 1) * 128 for q in range(4)]))
            else:
                j = pos.index(G)
                for t in range(2):
                    key = ('qk', j, 2 * m + t) if m < 2 else ('v', j, t)
                    sp.append(get_frag(key, AD, [so + 2 * (q & 1) * 256 + 8 * t for q in range(4)]))
            A.wait_ds()
            for x in sp:
                if x:
                    put(*x)
        A("s_barrier")
        put(park[7], 7)
        put(park[8], 8)
        if wc < 3:
            A("s_branch %s" % ljoin)
    A.label(ljoin)
    ROT = ([int(o[4:]) for o in opt if o.startswith("rot=")] + [0])[0]
    ROTW = ([int(o[5:]) for o in opt if o.startswith("rotw=")] + [0])[0]
    for G in range(9):
        if ROT or ROTW:
            A("s_mul_i32 %s, %s, %d" % (s(sT + 2), s(sW), ROTW))
            A("s_add_u32 %s, %s, %s" % (s(sT + 2), s(sT + 2), s(sCU)))
            A("s_add_u32 %s, %s, %d" % (s(sT + 2), s(sT + 2), ROT * G))
            A("s_and_b32 %s, %s, 31" % (s(sT + 2), s(sT + 2)))
            A("s_sub_u32 %s, %s, %s" % (s(sT + 2), s(sT + 2), s(sCU)))
            A("s_lshl_b32 %s, %s, 7" % (s(sT + 2), s(sT + 2)))
            A("s_add_u32 %s, %s, %s" % (s(sPt + G), s(sP0), s(sT + 2)))
            A("s_add_u32 %s, %s, %d" % (s(sPt + G), s(sPt + G), G * 32768))
        else:
            A("s_add_u32 %s, %s, %d" % (s(sPt + G), s(sP0), G * 32768))
    A("s_lshl_b32 %s, %s, 7" % (s(sFlg), s(sCU)))
    A("s_add_u32 %s, %s, %d" % (s(sFlg), s(sFlg), FL_PUB - 4096))
    A("s_cmp_eq_u32 %s, %d" % (s(sW), 3 if "mega" in opt else 7))
    A("s_cselect_b32 %s, %s, 0x%x" % (s(sFlg), s(sFlg), OOB))
    A("s_mov_b64 %s, 1" % s(sOne, 2))
    A("s_mov_b32 %s, 0xcccccccc" % s(sOex))
    A("s_mov_b32 %s, 0xcccccccc" % s(sOex + 1))
    A("s_lshl_b32 %s, %s, 8" % (s(sFlgN), s(sW)))
    A("s_add_u32 %s, %s, %d" % (s(sFlgN), s(sFlgN), L_MEM + 8192))
    A("s_cmp_lt_u32 %s, 32" % s(sUnit))
    A("s_cselect_b32 %s, %s, 0x%x" % (s(sRdE), s(sRd), OOB))
    A("s_lshl_b32 %s, %s, 8" % (s(sKF), s(sCU)))
    A("s_add_u32 %s, %s, %d" % (s(sKF), s(sKF), FL_KV))
    A("s_waitcnt vmcnt(0) lgkmcnt(0)")
    A.vm, A.lds = [], []

    def kv_dma():
        return ["s_mov_b32 m0, %s" % s(sKXm),
                "buffer_load_dwordx4 %s, %s, %s offen sc1 lds" % (v(vL16), s(sWS, 4), s(sKV)),
                "buffer_load_dwordx4 %s, %s, %s offen offset:1024 sc1 lds" % (v(vL16), s(sWS, 4), s(sKV)),
                "s_mov_b32 m0, %s" % s(sVX),
                "buffer_load_dwordx4 %s, %s, %s offen sc1 lds" % (v(vL16), s(sWS, 4), s(sKVv)),
                "buffer_load_dwordx4 %s, %s, %s offen offset:1024 sc1 lds" % (v(vL16), s(sWS, 4), s(sKVv))]
    def land(key, half=None):
        sp = SPILL[key]
        for hh in ((0, 1) if half is None else (half,)):
            if sp < 16:
                A.ds("ds_read_b128 %s, %s offset:%d" % (v(LND + 8 * SLOT[key] + 4 * hh, 4), v(vWL), sp * 2048 + 1024 * hh), key)
            else:
                A.vmem("buffer_load_dwordx4 %s, %s, %s, %s offen offset:%d" % (v(LND + 8 * SLOT[key] + 4 * hh, 4), v(vL16), s(sWS, 4), s(sL2a), 1024 * hh), key)
    def zero(lo, hi):
        for r in range(lo, hi, 2):
            A("v_mov_b64 %s, 0" % v(r, 2))
    KVINC = 0 if "samekv" in opt else KVSTEP
    NDMA = "ndma" in opt
    def kv_all():
        for i in range(2):
            A("s_mov_b32 m0, %d" % (L_KX + 4096 * i))
            A("s_add_u32 %s, %s, %d" % (s(sT + 2), s(sKV), 4096 * i))
            for j in range(4):
                A("buffer_load_dwordx4 %s, %s, %s offen offset:%d sc1 lds" % (v(vL16), s(sWS, 4), s(sT + 2), 1024 * j))
        for i in range(4):
            A("s_mov_b32 m0, %d" % (L_W + i * L_WSTRIDE + 32768))
            A("s_add_u32 %s, %s, %d" % (s(sT + 2), s(sKV), 8192 + 2048 * i))
            for j in range(2):
                A("buffer_load_dwordx4 %s, %s, %s offen offset:%d sc1 lds" % (v(vL16), s(sWS, 4), s(sT + 2), 1024 * j))
    def kv_refresh(lback):
        lp = A.new("kvr")
        A.label(lp)
        A("v_lshrrev_b32 %s, 2, %s" % (v(vTmp), v(vL16)))
        A("buffer_load_dword %s, %s, %s, %s offen sc1" % (v(vTmp), v(vTmp), s(sWS, 4), s(sKF)))
        A("s_waitcnt vmcnt(0)")
        A("v_cmp_ne_u32 %s, 0, %s" % (s(sRdy, 2), v(vTmp)))
        A("s_nop 3")
        A("s_bitcmp1_b64 %s, %s" % (s(sRdy, 2), s(sStep)))
        A("s_cbranch_scc1 %s" % lback)
        A("s_sub_u32 %s, %s, 1" % (s(sBud), s(sBud)))
        A("s_cbranch_scc0 %s" % lp)
        A("s_mov_b32 %s, 0" % s(sBud))
        A("s_branch %s" % lback)
    if "tt" in opt:
        A("s_memrealtime s[66:67]")
    lfast = A.new("fast0")
    if "mega" in opt:
        lsl = A.new("slow0")
        A("v_readfirstlane_b32 %s, %s" % (s(sT + 1), v(64)))
        A("v_readfirstlane_b32 %s, %s" % (s(sT), v(66)))
        A("v_cmp_ne_u32 %s, 0, %s" % (s(sRdy, 2), v(65)))
        A("s_nop 3")
        lk, lt = A.new("needkv"), A.new("needteam")
        A("s_cmp_eq_u32 %s, 0" % s(sT + 1))
        A("s_cbranch_scc1 %s" % lsl)
        A("s_bitcmp1_b32 %s, 0" % s(sRdy))
        A("s_cbranch_scc1 %s" % lt)
        A("s_branch %s" % lk)
        A.label(lsl)
        hooks['kv_wait0'](A)
        A.label(lk)
        kv_refresh(lt)
        A.label(lt)
        A("s_bitcmp1_b32 %s, 5" % s(sT))
        A("s_cbranch_scc1 %s" % lfast)
    lp = A.new("tb")
    A.label(lp)
    A("buffer_load_dword %s, off, %s, 0 offset:%d sc1" % (v(vTmp), s(sDBG, 4), DBG_TEAM))
    A("s_waitcnt vmcnt(0)")
    A("v_readfirstlane_b32 %s, %s" % (s(sT), v(vTmp)))
    A("s_nop 3")
    A("s_bitcmp1_b32 %s, 5" % s(sT))
    A("s_cbranch_scc1 %s" % lfast)
    A("s_sub_u32 %s, %s, 1" % (s(sBud), s(sBud)))
    A("s_cbranch_scc0 %s" % lp)
    A("s_mov_b32 %s, 0" % s(sBud))
    A.label(lfast)
    if "mega" in opt:
        A("s_cmp_lt_u32 %s, 3" % s(sW))
        A("s_cselect_b64 %s, -1, %s" % (s(sRdy, 2), s(sRdy, 2)))
    if "tt" in opt:
        A("s_memrealtime s[68:69]")
    if "vn" in opt:
        for x in kv_dma()[3:]:
            A(x)
            A("s_nop 0")
        A("s_add_u32 %s, %s, %d" % (s(sKVv), s(sKVv), KVSTEP))
    for ch in QK_CHAIN:
        land(ch[0])
    zero(VACC, RING)
    A("s_waitcnt lgkmcnt(0)")
    A("s_lshr_b32 %s, %s, 8" % (s(sT), s(sT)))
    A("s_bcnt1_i32_b32 %s, %s" % (s(sT), s(sT)))
    lslow = A.new("slow")
    A("s_cmp_lg_u32 %s, 1" % s(sT))
    A("s_cbranch_scc1 %s" % lslow)
    def loop(SC):
        lentry, lexit = A.new("entry"), A.new("exit")
        lok1, lnored, lb4 = A.new("ok1"), A.new("nored"), A.new("b4")
        ls1, ls1w, l1a = A.new("s1"), A.new("s1w"), A.new("p1a")
        ls1r, ls2r, ls2ok, ls3r, ls3ok, l1r = A.new("s1r"), A.new("s2r"), A.new("s2ok"), A.new("s3r"), A.new("s3ok"), A.new("p1r")
        A("s_branch %s" % ls1)

        def SM(acc, afr, breg):
            A("v_smfmac_f32_16x16x64_bf16 %s, %s, %s, %s" % (v(acc, 4), v(afr, 4), breg, v(vIdx)))
        def MF(d, a_, b_, c_):
            A("v_mfma_f32_16x16x32_bf16 %s, %s, %s, %s" % (v(d, 4), v(a_, 4), v(b_, 4), c_))
        def fragaddr(j):
            if j == 8:
                return vL16, 8192
            return (vT0, vT1, vT2, vT2)[j & 3], (j & 4) * 1024 + (1024 if (j & 3) == 3 else 0)
        def ringrd(j, slot):
            b, o = fragaddr(j)
            A.ds("ds_read_b128 %s, %s offset:%d" % (v(RING + 4 * slot, 4), v(b), L_MEM + o), ('ring', j))
        def mbload(dst, j):
            if j == 8:
                A("buffer_load_dwordx4 %s, %s, %s, %s offen sc1" % (v(dst, 4), v(vL16), s(sWS, 4), s(sX8)))
            else:
                A("buffer_load_dwordx4 %s, %s, %s, %s offen sc1" % (v(dst, 4), v(fragaddr(j)[0]), s(sWS, 4), s(sX4 if j & 4 else sX0)))
        def check(base, n):
            A("v_max3_u32 %s, %s, %s, %s" % (v(vTmp), v(base), v(base + 1), v(base + 2)))
            for i in range(3, n - 1, 2):
                A("v_max3_u32 %s, %s, %s, %s" % (v(vTmp), v(vTmp), v(base + i), v(base + i + 1)))
            A("v_max_u32 %s, %s, %s" % (v(vTmp), v(vTmp), v(base + n - 1)))
            A("v_cmp_eq_u32 vcc, -1, %s" % v(vTmp))
        def budget(lagain, lgiveup):
            A("s_sub_u32 %s, %s, 1" % (s(sBud), s(sBud)))
            A("s_cbranch_scc0 %s" % lagain)
            A("s_mov_b32 %s, 0" % s(sBud))
            A("s_branch %s" % lgiveup)
        PLA = [12, 16, 20, 24]
        RACC, SEL = 28, 32
        def poll1_issue(PL, so=sRd, which=range(4)):
            for i in which:
                A("buffer_load_dwordx4 %s, %s, %s, %s offen offset:%d sc1" % (v(PL[i], 4), v(vL16), s(sWS, 4), s(so), 1024 * i))
        def wait_many(keys):
            idx = [i for i, t in enumerate(A.lds) if t in keys]
            if idx:
                A.wait_ds(A.lds[idx[-1]])
        def endstep():
            for ch in QK_CHAIN:
                land(ch[0])
            A("s_mov_b32 %s, %s" % (s(sT), s(sX0)))
            A("s_mov_b32 %s, %s" % (s(sX0), s(sX1)))
            A("s_mov_b32 %s, %s" % (s(sX1), s(sX2)))
            A("s_mov_b32 %s, %s" % (s(sX2), s(sT)))
        PUB = "" if "pubplain" in opt else " sc1"
        def optval(name, dflt):
            for o in opt:
                if o.startswith(name + "="):
                    return int(o.split("=")[1])
            return dflt
        LWAIT, S1DEPTH = optval("lwait", 2), optval("s1d", 2)
        sX4, sX8 = sP1, sP2
        F8 = RING + 4
        PLB = [LND, LND + 4, LND + 8, LND + 12]
        def reduce_body(PL, n_after):
            if "prog" in opt:
                A("s_waitcnt vmcnt(%d)" % (n_after + 3))
                MF(RACC, SEL, PL[0], "0")
                A("s_waitcnt vmcnt(%d)" % (n_after + 2))
                MF(RACC, SEL, PL[1], v(RACC, 4))
                A("v_bitop3_b32 %s, %s, %s, %s bitop3:0x7e" % (v(vTmp), v(PL[0]), v(PL[1]), s(sPh)))
                A("s_waitcnt vmcnt(%d)" % (n_after + 1))
                MF(RACC, SEL, PL[2], v(RACC, 4))
                A("s_waitcnt vmcnt(%d)" % n_after)
                MF(RACC, SEL, PL[3], v(RACC, 4))
                A("v_bitop3_b32 %s, %s, %s, %s bitop3:0x7e" % (v(45), v(PL[2]), v(PL[3]), s(sPh)))
                A("v_bitop3_b32 %s, %s, %s, 1 bitop3:0xa8" % (v(vTmp), v(vTmp), v(45)))
                A("v_cmp_ne_u32 vcc, 0, %s" % v(vTmp))
                return
            A("s_waitcnt vmcnt(%d)" % n_after)
            MF(RACC, SEL, PL[0], "0")
            A("v_bitop3_b32 %s, %s, %s, %s bitop3:0x7e" % (v(vTmp), v(PL[0]), v(PL[1]), s(sPh)))
            A("v_bitop3_b32 %s, %s, %s, %s bitop3:0x7e" % (v(45), v(PL[2]), v(PL[3]), s(sPh)))
            MF(RACC, SEL, PL[1], v(RACC, 4))
            A("v_bitop3_b32 %s, %s, %s, 1 bitop3:0xa8" % (v(vTmp), v(vTmp), v(45)))
            A("v_cmp_ne_u32 vcc, 0, %s" % v(vTmp))
            MF(RACC, SEL, PL[2], v(RACC, 4))
            MF(RACC, SEL, PL[3], v(RACC, 4))
        def mksel():
            for u in range(4):
                A("v_cndmask_b32 %s, 0, %s, %s" % (v(SEL + u), v(vSelV), s(sSel + 2 * u, 2)))
        def s1load(base):
            mbload(base, 0)
            mbload(base + 4, 1)
        def rotate():
            A("s_mov_b32 %s, %s" % (s(sT), s(sX0)))
            A("s_mov_b32 %s, %s" % (s(sX0), s(sX1)))
            A("s_mov_b32 %s, %s" % (s(sX1), s(sX2)))
            A("s_mov_b32 %s, %s" % (s(sX2), s(sT)))
            A("s_add_u32 %s, %s, 4096" % (s(sX4), s(sX0)))
            A("s_add_u32 %s, %s, 8192" % (s(sX8), s(sX0)))
            A("s_mov_b32 m0, %s" % s(sFlgN))
        lgo1 = A.new("go1")
        lkvr, lkvok = A.new("kvrf"), A.new("kvok")
        if "mega" in opt:
            A.label(lkvr)
            kv_refresh(lkvok)
        A.label(lnored)
        A("s_cmp_eq_u32 %s, -1" % s(sUnit))
        A("s_cbranch_scc1 %s_n" % lnored)
        A("s_waitcnt vmcnt(%d)" % LWAIT)
        A("s_branch %s" % lgo1)
        A.label(lnored + "_n")
        if "ps" in opt:
            A("s_memtime s[72:73]")
            A("s_memrealtime s[74:75]")
            A("s_lshl_b32 %s, %s, 9" % (s(sT), s(sCU)))
            A("s_lshl_b32 %s, %s, 3" % (s(sT + 1), s(sStep)))
            A("s_add_u32 %s, %s, %s" % (s(sT), s(sT), s(sT + 1)))
            A("s_add_u32 %s, %s, %d" % (s(sT), s(sT), WS_DBG + (7 << 17)))
            A("s_waitcnt lgkmcnt(0)")
            A("v_mov_b32 v46, s72")
            A("v_mov_b32 v47, s74")
            A("s_mov_b64 exec, 1")
            A("buffer_store_dwordx2 v[46:47], off, %s, %s" % (s(sWS, 4), s(sT)))
            A("s_mov_b64 exec, -1")
        rotate()
        for i in range(0, 8, 2):
            A("v_mov_b64 %s, -1" % v(RING + i, 2))
        if NDMA:
            l3 = A.new("n3l")
            A("s_cmp_lg_u32 %s, 3" % s(sW))
            A("s_cbranch_scc1 %s" % l3)
            kv_all()
            A.label(l3)
        if "mega" in opt:
            lfull = A.new("full")
            A("s_add_u32 %s, %s, 1" % (s(sT + 1), s(sStep)))
            A("s_bitcmp1_b64 %s, %s" % (s(sRdy, 2), s(sT + 1)))
            A("s_cbranch_scc1 %s" % lfull)
            A("v_lshrrev_b32 %s, 2, %s" % (v(vTmp), v(vL16)))
            A("buffer_load_dword %s, %s, %s, %s offen sc1" % (v(vTmp), v(vTmp), s(sWS, 4), s(sKF)))
            A("s_waitcnt vmcnt(0)")
            A("v_cmp_ne_u32 %s, 0, %s" % (s(sRdy, 2), v(vTmp)))
            A.label(lfull)
        if "noflag" in opt:
            A("s_waitcnt vmcnt(0)")
        else:
            lf = A.new("flag")
            A("v_mov_b32 %s, %d" % (v(46), L_FLAG))
            A.label(lf)
            A("ds_read_b32 %s, %s" % (v(vTmp), v(46)))
            A("s_waitcnt lgkmcnt(0)")
            A("v_cmp_eq_u32 vcc, %s, %s" % (s(sStep), v(vTmp)))
            A("s_cbranch_vccnz %s" % lb4)
            budget(lf, lb4)
        A("s_branch %s" % lb4)
        X2 = LND + 16
        def f8load():
            A("buffer_load_dword %s, %s, %s offen sc1 lds" % (v(X2 + 5), s(sWS, 4), s(sX8)))
        def s2check():
            check(X2, 4)
        A.label(ls2r)
        if "tt" in opt:
            A("s_add_u32 s88, s88, 1")
        mbload(X2, 4)
        A("s_waitcnt vmcnt(1)")
        s2check()
        A("s_cbranch_vccz %s_d" % ls2r)
        budget(ls2r, ls2r + "_d")
        A.label(ls2r + "_d")
        A("s_waitcnt vmcnt(0)")
        A("s_branch %s" % ls2ok)
        A.label(ls3r)
        if "tt" in opt:
            A("s_add_u32 s89, s89, 1")
        mbload(RING + 4, 8)
        A("s_waitcnt vmcnt(0)")
        A("v_max3_u32 %s, %s, %s, %s" % (v(LND + 4), v(RING + 4), v(RING + 5), v(RING + 6)))
        A("v_max_u32 %s, %s, %s" % (v(LND + 4), v(LND + 4), v(RING + 7)))
        A("v_cmp_eq_u32 vcc, -1, %s" % v(LND + 4))
        A("s_cbranch_vccz %s" % ls3ok)
        budget(ls3r, ls3ok)
        A.label(ls1)
        A("s_add_u32 %s, %s, 4096" % (s(sX4), s(sX0)))
        A("s_add_u32 %s, %s, 8192" % (s(sX8), s(sX0)))
        A("s_mov_b32 m0, %s" % s(sFlgN))
        s1load(RING)
        A("s_waitcnt vmcnt(0)")
        A("s_branch %s" % ls1w)
        A(".p2align 6")
        A.label(ls1r)
        A("s_sub_u32 %s, %s, 1" % (s(sBud), s(sBud)))
        A("s_cbranch_scc1 %s_give" % ls1r)
        if "mask" in opt:
            A("s_mov_b64 exec, vcc")
        s1load(RING)
        if "mask" in opt:
            A("s_mov_b64 exec, -1")
        A("s_waitcnt vmcnt(%d)" % S1DEPTH)
        A.label(ls1w)
        check(RING, 8)
        A("s_cbranch_vccnz %s" % ls1r)
        A.label(lentry)
        A.lds, A.vm = [], []
        if "tt" in opt:
            lt = A.new("tt")
            A("s_cmp_lg_u32 %s, 3" % s(sStep))
            A("s_cbranch_scc1 %s" % lt)
            A("s_memtime s[92:93]")
            A.label(lt)
        if stamps and "rt" in opt:
            lq = A.new("q")
            A("s_memrealtime %s" % s(sStamp + 18, 2))
            A("s_cmp_lg_u32 %s, 41" % s(sStep))
            A("s_cbranch_scc1 %s" % lq)
            A("s_waitcnt lgkmcnt(0)")
            for i in range(10):
                A("v_writelane_b32 %s, %s, %d" % (v(vTmp), s(sStamp + 2 * i), i))
            A("s_lshl_b32 %s, %s, 2" % (s(sT), s(sCU)))
            A("s_add_u32 %s, %s, %s" % (s(sT), s(sT), s(sW)))
            A("s_lshl_b32 %s, %s, 11" % (s(sT), s(sT)))
            A("s_add_u32 %s, %s, %d" % (s(sT), s(sT), WS_DBG))
            A("buffer_store_dword %s, %s, %s, %s offen" % (v(vTmp), v(vL16), s(sWS, 4), s(sT)))
            A.label(lq)
        stamp()
        KXR = {(0, 0): LND, (0, 1): LND + 4, (0, 2): LND + 8, (0, 3): LND + 12, (1, 0): LND + 16, (1, 1): LND + 20, (1, 2): LND, (1, 3): LND + 4}
        def kxrd(tl, ks):
            A.ds("ds_read_b128 %s, %s offset:%d" % (v(KXR[(tl, ks)], 4), v(vL16), L_KX + (4 * tl + ks) * 1024), ('kx', tl, ks))
        AREG = {0: RING, 1: RING + 4, 2: RING + 8, 3: RING, 4: X2, 5: RING + 4, 6: RING + 8, 7: RING, 8: RING + 4}
        FP = optval("fp", 0)
        def Q(j, t):
            key = ('qk', j, t)
            SM(QK + 4 * t, AREG[j], R(WREGS[key], 8) if key in WREGS else v(LND + 8 * SLOT[key], 8))
            if t == 0 and FP == 0:
                stamp(True)
        def VS(j, t, a_=None):
            key = ('v', j, t)
            SM(VACC + 4 * t, AREG[j] if a_ is None else a_, R(WREGS[key], 8) if key in WREGS else v(LND + 8 * SLOT[key], 8))
        L = lambda j, t, hh: land(('qk', j, t), hh)
        kd = kv_dma()
        mega = "mega" in opt
        ND = 0 if NDMA else 2
        def dma(i, tag):
            if not NDMA:
                A.vmem(kd[i], tag) if tag else A(kd[i])
        A.ds("ds_write_b128 %s, %s offset:%d" % (v(vT0), v(RING, 4), L_MEM), 'w1')
        if "s2l" not in opt:
            Q(0, 0); mbload(X2, 4)
            Q(0, 1); A("v_lshrrev_b32 %s, 2, %s" % (v(X2 + 5), v(vT0)))
            Q(0, 2)
            if "f8l" not in opt:
                f8load()
            else:
                L(2, 1, 0)
            if "kearly" in opt:
                dma(0, None)
                Q(0, 3); dma(1, 'kdma')
                VS(0, 0); dma(2, 'kdma')
                A.wait_ds('w1')
                VS(0, 1)
                A("s_barrier")
                ringrd(2, 2)
                stamp()
                Q(1, 0); L(2, 0, 0)
                Q(1, 1); L(2, 0, 1)
                Q(1, 2); L(2, 1, 0)
                Q(1, 3); L(2, 1, 1)
                VS(1, 0); A("s_add_u32 %s, %s, 1" % (s(sStep), s(sStep)))
            else:
                Q(0, 3); L(2, 0, 0)
                VS(0, 0); L(2, 0, 1)
                A.wait_ds('w1')
                VS(0, 1)
                A("s_barrier")
                ringrd(2, 2)
                stamp()
                Q(1, 0)
                if "f8l" in opt:
                    f8load()
                else:
                    L(2, 1, 0)
                dma(0, None)
                Q(1, 1); L(2, 1, 1)
                Q(1, 2); dma(1, 'kdma')
                Q(1, 3); A("s_add_u32 %s, %s, 1" % (s(sStep), s(sStep)))
                VS(1, 0); dma(2, 'kdma')
            VS(1, 1); A("s_waitcnt vmcnt(%d)" % (2 + ND))
            ringrd(3, 0)
            A.wait_ds(('qk', 2, 1))
            Q(2, 0); L(4, 0, 0)
            Q(2, 1); L(4, 0, 1)
            Q(2, 2); L(4, 1, 0)
            Q(2, 3); L(4, 1, 1)
            if "v2" in opt:
                dma(3, None)
                VS(2, 0); dma(4, 'vdma')
                VS(2, 1); dma(5, 'vdma')
            else:
                VS(2, 0)
                if "vn" in opt:
                    A("s_add_u32 %s, %s, %d" % (s(sRdE), s(sKVt), KVSTEP + 8192))
                else:
                    dma(3, None)
                VS(2, 1)
            A.wait_ds(('ring', 3))
            Q(3, 0); A("s_waitcnt vmcnt(%d)" % ((5 if "v2" in opt else 3) if "f8l" in opt else (4 if "v2" in opt else 2)))
            s2check()
            Q(3, 1)
            Q(3, 2)
            A("s_cbranch_vccnz %s" % ls2r)
            A.label(ls2ok)
            A.ds("ds_write_b128 %s, %s offset:%d" % (v(vT0), v(X2, 4), L_MEM + 4096), 'w2')
            Q(3, 3)
            if "b1c" in opt:
                VS(3, 0)
                VS(3, 1)
                A.wait_ds(('qk', 4, 1))
                Q(4, 0); L(6, 0, 0)
                Q(4, 1)
                A.wait_ds('w2')
            else:
                VS(3, 0)
                if "v2" not in opt and "v5" not in opt and "vn" not in opt:
                    dma(4, 'vdma')
                VS(3, 1)
                if "v2" not in opt and "v5" not in opt and "vn" not in opt:
                    dma(5, 'vdma')
                if "v5" in opt or "vn" in opt:
                    ND = 0
                A.wait_ds(('qk', 4, 1))
                Q(4, 0); L(6, 0, 0)
                Q(4, 1)
                A("s_waitcnt vmcnt(%d) lgkmcnt(1)" % ND)
                A.vm, A.lds = A.vm[len(A.vm) - ND:], A.lds[-1:]
            A("s_barrier")
            ringrd(5, 1)
            Q(4, 2); ringrd(6, 2)
            Q(4, 3); ringrd(7, 0)
        else:
            Q(0, 0)
            Q(0, 1); A("v_lshrrev_b32 %s, 2, %s" % (v(X2 + 5), v(vT0)))
            Q(0, 2); dma(0, None)
            Q(0, 3); L(2, 0, 0)
            VS(0, 0); L(2, 0, 1)
            A.wait_ds('w1')
            VS(0, 1)
            A("s_barrier")
            ringrd(2, 2)
            stamp()
            Q(1, 0); mbload(X2, 4)
            Q(1, 1); f8load()
            Q(1, 2); L(2, 1, 0)
            Q(1, 3); L(2, 1, 1)
            VS(1, 0); dma(1, 'kdma')
            VS(1, 1); A("s_waitcnt vmcnt(3)")
            ringrd(3, 0)
            A.wait_ds(('qk', 2, 1))
            Q(2, 0); dma(2, 'kdma')
            Q(2, 1); L(4, 0, 0)
            Q(2, 2); L(4, 0, 1)
            Q(2, 3); L(4, 1, 0)
            VS(2, 0); L(4, 1, 1)
            VS(2, 1); dma(3, None)
            A.wait_ds(('ring', 3))
            Q(3, 0); A("s_add_u32 %s, %s, 1" % (s(sStep), s(sStep)))
            Q(3, 1)
            Q(3, 2)
            Q(3, 3); A("s_waitcnt vmcnt(2)")
            s2check()
            VS(3, 0)
            VS(3, 1)
            A("s_cbranch_vccnz %s" % ls2r)
            A.label(ls2ok)
            A.wait_ds(('qk', 4, 1))
            A.ds("ds_write_b128 %s, %s offset:%d" % (v(vT0), v(X2, 4), L_MEM + 4096), 'w2')
            Q(4, 0)
            A.ds("ds_write_b32 %s, %s offset:%d" % (v(X2 + 5), v(X2 + 4), L_MEM + 8192), 'w2')
            Q(4, 1); L(6, 0, 0)
            Q(4, 2); dma(4, 'vdma')
            Q(4, 3); dma(5, 'vdma')
            A("s_waitcnt vmcnt(2) lgkmcnt(1)")
            A.vm, A.lds = A.vm[len(A.vm) - 2:], A.lds[-1:]
            A("s_barrier")
            ringrd(5, 1)
            ringrd(6, 2)
            ringrd(7, 0)
        VS(4, 0); L(6, 0, 1)
        VS(4, 1); L(6, 1, 0)
        A.wait_ds(('ring', 5))
        Q(5, 0); land(L2KEY, 0)
        Q(5, 1); land(L2KEY, 1)
        if mega:
            A("s_bitcmp1_b64 %s, %s" % (s(sRdy, 2), s(sStep)))
        def touch(o):
            if "notouch" not in opt and "vn" in opt:
                A.vmem("buffer_load_dword %s, %s, %s offen sc1 lds" % (v(vTmp), s(sWS, 4), s(sRdE if o else sKVt)), 'touch')
            elif "notouch" not in opt:
                A.vmem("buffer_load_dword %s, %s, %s offen offset:%d sc1 lds" % (v(vTmp), s(sWS, 4), s(sKVt), o), 'touch')
        def kvbranch():
            if mega:
                A("s_cbranch_scc0 %s" % lkvr)
                A.label(lkvok)
        if "b1c" in opt:
            Q(5, 2); L(6, 1, 1)
            Q(5, 3); ringrd(8, 1)
            kvbranch()
            A.wait_ds(('qk', 6, 1))
            Q(6, 0); dma(4, 'vdma')
            Q(6, 1); L(7, 3, 0)
            Q(6, 2); dma(5, 'vdma')
            A("s_mov_b32 m0, %d" % (L_SCR + 512))
            Q(6, 3); L(7, 3, 1)
            A("v_lshlrev_b32 %s, 4, %s" % (v(vTmp), v(vL16)))
            A.wait_vm('kdma')
            A("s_barrier")
            Q(7, 0); touch(0)
            kxrd(0, 2)
            Q(7, 1); touch(128)
            kxrd(0, 3)
        else:
            Q(5, 2)
            if "v5" in opt:
                dma(4, 'vdma')
            L(6, 1, 1)
            Q(5, 3)
            if "v5" in opt:
                dma(5, 'vdma')
            ringrd(8, 1)
            A("s_mov_b32 m0, %d" % (L_SCR + 512))
            kvbranch()
            A.wait_ds(('qk', 6, 0))
            Q(6, 0); L(7, 3, 0)
            A.wait_ds(('qk', 6, 1))
            Q(6, 1); L(7, 3, 1)
            A("v_lshlrev_b32 %s, %d, %s" % (v(vTmp), 3 if "vn" in opt else 4, v(vL16)))
            Q(6, 2); touch(0)
            A.wait_ds(('ring', 8))
            Q(6, 3); A("v_max3_u32 %s, %s, %s, %s" % (v(LND + 8), v(RING + 4), v(RING + 5), v(RING + 6)))
            A("v_max_u32 %s, %s, %s" % (v(LND + 8), v(LND + 8), v(RING + 7)))
            Q(7, 0); touch(128)
            A("v_cmp_eq_u32 vcc, -1, %s" % v(LND + 8))
            Q(7, 1); kxrd(0, 2)
            kxrd(0, 3)
        Q(7, 2); A("v_cndmask_b32 %s, 2.0, 0, %s" % (v(vTmp), s(sOne, 2)))
        A.wait_ds(('qk', 7, 3))
        Q(7, 3); kxrd(0, 0)
        A("s_cbranch_vccnz %s" % ls3r)
        A.label(ls3ok)
        Q(8, 0); kxrd(0, 1)
        Q(8, 1)
        A.vmem("buffer_store_dword %s, %s, %s, %s offen sc1" % (v(vIdx), v(vTmp), s(sWS, 4), s(sFlg)), 'flag')
        if "qf" not in opt:
            Q(8, 2); A("v_lshrrev_b32 %s, 2, %s" % (v(vTmp), v(vL16)))
            Q(8, 3); A("s_add_u32 %s, %s, 4096" % (s(sFlg), s(sFlg)))
            stamp()
            VS(7, 0); A("s_cmp_eq_u32 %s, %d" % (s(sStep), nsteps))
            VS(7, 1); ringrd(5, 0)
        def fin(base):
            A("v_add_f32 %s, %s, %s" % (v(base), v(base), v(base + 1)))
            A("v_add_f32 %s, %s, %s" % (v(base + 2), v(base + 2), v(base + 3)))
            A("v_add_f32 %s, %s, %s" % (v(base + 4), v(base + 4), v(base + 5)))
            A("v_add_f32 %s, %s, %s" % (v(base + 6), v(base + 6), v(base + 7)))
            A("v_cvt_pk_bf16_f32 %s, %s, %s" % (v(base), v(base), v(base + 4)))
            A("v_cvt_pk_bf16_f32 %s, %s, %s" % (v(base + 1), v(base + 2), v(base + 6)))
        def finw(base):
            o = 8 if base == QK else 0
            A.ds("ds_write2_b32 %s, %s, %s offset0:%d offset1:%d" % (v(vFw), v(base), v(base + 1), o, o + 4), 'fw')
        def pub(reg, off):
            A.vmem("buffer_store_dword %s, %s, %s, %s offen offset:%d%s" % (v(reg), v(vTmp), s(sWS, 4), s(sKM), off, PUB), 'pub')
        if "qf" in opt:
            b = QK
            VS(7, 0); A("v_lshrrev_b32 %s, 2, %s" % (v(vTmp), v(vL16)))
            A("s_add_u32 %s, %s, 4096" % (s(sFlg), s(sFlg)))
            VS(7, 1); ringrd(5, 0)
            A("s_cmp_eq_u32 %s, %d" % (s(sStep), nsteps))
            Q(8, 2); A("v_add_f32 %s, %s, %s" % (v(b), v(b), v(b + 1)))
            Q(8, 3); A("v_add_f32 %s, %s, %s" % (v(b + 2), v(b + 2), v(b + 3)))
            A("v_add_f32 %s, %s, %s" % (v(b + 4), v(b + 4), v(b + 5)))
            A("v_add_f32 %s, %s, %s" % (v(b + 6), v(b + 6), v(b + 7)))
            A("v_cvt_pk_bf16_f32 %s, %s, %s" % (v(b), v(b), v(b + 4)))
            A("v_cvt_pk_bf16_f32 %s, %s, %s" % (v(b + 1), v(b + 2), v(b + 6)))
            finw(QK)
            fin(QK + 8)
            finw(QK + 8)
        else:
            fin(QK)
            fin(QK + 8)
            finw(QK)
            finw(QK + 8)
        VS(8, 1); pub(QK + 8, 0)
        VS(8, 0)
        VS(6, 1); pub(QK + 9, 256)
        VS(6, 0)
        A.wait_ds('fw')
        A("s_barrier")
        if FP == 2:
            stamp(True)
        for ks in range(4):
            A.ds("ds_read_b128 %s, %s offset:%d" % (v(QK + 4 * ks, 4), v(vL16), L_F + ks * FSTR), ('f', ks))
        stamp()
        VS(5, 0, RING); A.wait_vm(L2KEY)
        VS(5, 1, RING); kxrd(1, 0)
        kxrd(1, 1)
        T1, T2, T0 = RING, RING + 4, RING + 8
        ONES, LACC, OACC = QK + 8, QK + 12, LND + 16
        def S(i, ks):
            d, a_ = ((T1, KXR[(0, ks)]), (T2, KXR[(1, ks)]), (T0, QK + 4 * ks))[i]
            MF(d, a_, QK + 4 * ks, "0" if ks == 0 else v(d, 4))
        def vfin(t, part):
            b = VACC + 4 * t
            if part == 0:
                A("v_add_f32 %s, %s, %s" % (v(b), v(b), v(b + 1)))
                A("v_add_f32 %s, %s, %s" % (v(b + 2), v(b + 2), v(b + 3)))
            else:
                A("v_cvt_pk_bf16_f32 %s, %s, %s" % (v(b), v(b), v(b + 2)))
                A("v_mov_b32 %s, 0" % v(b + 1))
        def vxrd(t):
            A.ds("ds_read_b128 %s, %s offset:%d" % (v(QK + 4 * t, 4), v(vWL), 32768 + t * 1024), 'vx')
        m1, m2 = T0 + 2, T0 + 3
        A.wait_ds(('f', 0))
        S(0, 0)
        if FP == 2:
            stamp(True)
        A.wait_ds(('f', 1))
        S(0, 1); kxrd(1, 2)
        kxrd(1, 3)
        A.wait_ds(('f', 3))
        S(0, 2)
        S(0, 3); land(('o', 1), 0)
        land(('o', 1), 1)
        S(2, 0); vfin(0, 0)
        S(2, 1); vfin(0, 1)
        S(2, 2); vfin(1, 0)
        S(2, 3); pub(VACC, 512)
        vfin(1, 1)
        A.wait_vm('vdma')
        A.wait_ds(('kx', 1, 1))
        S(1, 0); vxrd(0)
        A("v_max3_f32 %s, %s, %s, %s" % (v(VACC + 2), v(T1), v(T1 + 1), v(T1 + 2)))
        S(1, 1); vxrd(1)
        A.wait_ds(('kx', 1, 3))
        S(1, 2); pub(VACC + 4, 768)
        A("v_max3_f32 %s, %s, %s, %s" % (v(m1), v(VACC + 2), v(T1 + 3), v(T0)))
        S(1, 3)
        if FP == 2:
            stamp(True)
        land(('o', 0), 0)
        land(('o', 0), 1)
        A("s_cbranch_scc1 %s" % lexit)
        A("s_add_u32 %s, %s, %d" % (s(sKM), s(sKM), 32 * 4096))
        stamp()
        sv = [T1, T1 + 1, T1 + 2, T1 + 3, T2, T2 + 1, T2 + 2, T2 + 3, T0, T0 + 1]
        A("v_max_f32 %s, %s, %s" % (v(m1), v(m1), v(T0 + 1)))
        A("s_nop 0")
        A("v_mov_b32 %s, 0x3f803f80" % v(ONES))
        A("v_mov_b32 %s, 0x3f803f80" % v(ONES + 1))
        A("v_max3_f32 %s, %s, %s, %s" % (v(m1), v(m1), v(sv[4]), v(sv[5])))
        A("v_max3_f32 %s, %s, %s, %s" % (v(m2), v(m1), v(sv[6]), v(sv[7])))
        A("v_max3_f32 %s, %s, %s, %s" % (v(m1), v(m1), v(sv[6]), v(sv[7])))
        A("v_mov_b32 %s, 0x3f803f80" % v(ONES + 2))
        A("v_mov_b32 %s, 0x3f803f80" % v(ONES + 3))
        A("v_permlane32_swap_b32 %s, %s" % (v(m1), v(m2)))
        A("v_max_f32 %s, %s, %s" % (v(m1), v(m1), v(m2)))
        A("v_mov_b32 %s, %s" % (v(m2), v(m1)))
        A("s_nop 1")
        A("v_permlane16_swap_b32 %s, %s" % (v(m1), v(m2)))
        A("v_max_f32 %s, %s, %s" % (v(m1), v(m1), v(m2)))
        A("v_mul_f32 %s, %s, %s" % (v(m1), s(sC), v(m1)))
        if FP == 2:
            stamp(True)
        P, Pm = T1, T0
        def fma(x):
            A("v_fma_f32 %s, %s, %s, -%s" % (v(x), v(x), s(sC), v(m1)))
        def ex(x):
            A("v_exp_f32 %s, %s" % (v(x), v(x)))
        def M16(d, a_):
            A("v_mfma_f32_16x16x16_bf16 %s, %s, %s, 0" % (v(d, 4), v(a_, 2), v(Pm, 2)))
        fma(T0); fma(T0 + 1); ex(T0); ex(T0 + 1)
        fma(sv[0])
        A("v_cvt_pk_bf16_f32 %s, %s, %s" % (v(Pm), v(T0), v(T0 + 1)))
        A("v_mov_b32 %s, 0" % v(Pm + 1))
        fma(sv[1]); fma(sv[2])
        M16(LACC, ONES)
        fma(sv[3]); fma(sv[4])
        M16(OACC, VACC)
        fma(sv[5]); fma(sv[6])
        M16(OACC + 4, VACC + 4)
        fma(sv[7])
        for x in sv[:8]:
            ex(x)
        A("v_cvt_pk_bf16_f32 %s, %s, %s" % (v(P), v(T1), v(T1 + 1)))
        A("v_cvt_pk_bf16_f32 %s, %s, %s" % (v(P + 1), v(T1 + 2), v(T1 + 3)))
        A("v_cvt_pk_bf16_f32 %s, %s, %s" % (v(P + 2), v(T2), v(T2 + 1)))
        A("v_cvt_pk_bf16_f32 %s, %s, %s" % (v(P + 3), v(T2 + 2), v(T2 + 3)))
        A.wait_ds('vx')
        A("v_mov_b64 %s, 0" % v(44, 2))
        MF(LACC, ONES, P, v(LACC, 4))
        if FP == 2:
            stamp(True)
        if "vn" in opt:
            A(kd[3])
        MF(OACC, QK, P, v(OACC, 4))
        if "vn" in opt:
            A.vmem(kd[4], 'vdma')
        MF(OACC + 4, QK + 4, P, v(OACC + 4, 4))
        if "vn" in opt:
            A.vmem(kd[5], 'vdma')
        zero(12, 24)
        A("v_rcp_f32 %s, %s" % (v(vTmp), v(LACC)))
        if FP == 2:
            stamp(True)
        A("v_mov_b64 %s, 0" % v(24, 2))
        for i in range(8):
            A("v_mul_f32 %s, %s, %s" % (v(OACC + i), v(OACC + i), v(vTmp)))
        OP = T2
        for i in range(4):
            A("v_cvt_pk_bf16_f32 %s, %s, %s" % (v(OP + i), v(OACC + 2 * i), v(OACC + 2 * i + 1)))
        if "oex" in opt:
            A("s_mov_b64 exec, %s" % s(sOex, 2))
        A.ds("ds_write_b128 %s, %s" % (v(vOw), v(OP, 4)), 'ow')
        if "oex" in opt:
            A("s_mov_b64 exec, -1")
        if FP == 2:
            stamp(True)
        A("v_mov_b64 %s, -1" % v(36, 2))
        A("v_cndmask_b32 %s, 0, 1, %s" % (v(vTmp), s(sTagM, 2)))
        A.vmem("buffer_store_dwordx2 %s, %s, %s, %s offen%s" % (v(36, 2), v(vRst), s(sWS, 4), s(sX2), SC), 'rst')
        zero(26, 36)
        A.wait_ds('ow')
        A("s_barrier")
        if FP == 2:
            stamp(True)
        OF = LND + 16
        for c2 in range(2):
            A.ds("ds_read_b128 %s, %s offset:%d" % (v(OF + 4 * c2, 4), v(vL16), L_O + c2 * 1024), ('of', c2))
        stamp()
        zero(36, 44)
        zero(46, 48)
        def wacc(tile):
            return 12 + 4 * tile
        def W(p, c2):
            key = ('o', 2 * p + c2)
            wait_many([('of', c2), key])
            SM(wacc(p), OF + 4 * c2, R(WREGS[key], 8) if key in WREGS else v(LND + 8 * SLOT[key], 8))
            if c2 == 0 and FP == 1:
                stamp(True)
        def e1(tile):
            b = wacc(tile)
            A("v_add_f32 %s, %s, %s" % (v(b + 1), v(b), v(b + 1)))
            A("v_add_f32 %s, %s, %s" % (v(b + 3), v(b + 2), v(b + 3)))
        def e2(tile):
            b = wacc(tile)
            A("v_cvt_pk_bf16_f32 %s, %s, %s" % (v(b), v(b + 1), v(b + 3)))
            A("v_bfi_b32 %s, %s, %s, %s" % (v(b), v(vTmp), s(sPh), v(b)))
        def e3(tile):
            A("buffer_store_dword %s, %s, %s, %s offen%s" % (v(wacc(tile)), v(vPst), s(sWS, 4), s(sPt + tile), SC))
        LO = lambda n, hh: land(('o', n), hh)
        W(0, 0)
        if FP == 2:
            stamp(True)
        LO(8, 0)
        W(0, 1); LO(8, 1)
        A("s_add_u32 %s, %s, %d" % (s(sKVt), s(sKVt), KVINC))
        W(1, 0); LO(9, 0)
        A("s_add_u32 %s, %s, %d" % (s(sKV), s(sKV), KVINC))
        W(1, 1); LO(9, 1)
        A("s_add_u32 %s, %s, %d" % (s(sKVv), s(sKVv), KVINC))
        e1(0)
        for p in range(2, 9):
            W(p, 0)
            if p == 5:
                LO(16, 0)
            if p == 6:
                LO(17, 0)
            if p == 2:
                A("s_cmp_ge_u32 %s, 32" % s(sUnit))
            e2(p - 2)
            W(p, 1); e3(p - 2)
            if p == 5:
                LO(16, 1)
            if p == 6:
                LO(17, 1)
            e1(p - 1)
        EP = optval("ep", 0)
        def wtail(early):
            if early and EP == 3:
                poll1_issue(PLA)
            e2(7); e3(7)
            if early and EP == 1:
                poll1_issue(PLA)
            A("s_nop 1")
            e1(8); e2(8); e3(8)
            if stamps and "fine" not in opt:
                A("s_memrealtime %s" % s(sStamp + 16, 2))
            if FP == 1:
                stamp(True)
        if EP:
            lw = A.new("wt")
            A("s_cbranch_scc0 %s" % lw)
            wtail(False)
            A("s_branch %s" % lnored)
            A.label(lw)
            wtail(True)
        else:
            wtail(False)
            A("s_cbranch_scc1 %s" % lnored)
        def prep():
            mksel()
            rotate()
            for i in range(0, 8, 2):
                A("v_mov_b64 %s, -1" % v(RING + i, 2))
            A("v_mov_b32 %s, %d" % (v(46), L_FLAG))
            A("v_mov_b32 %s, %s" % (v(47), s(sStep)))
        l1b = A.new("p1b")
        if EP:
            if "eb2" in opt:
                prep()
                poll1_issue(PLB)
            else:
                poll1_issue(PLB)
                prep()
            reduce_body(PLA, 4 + EP)
            A("s_cbranch_vccz %s" % lok1)
            A("s_branch %s" % l1b)
        A.label(lgo1)
        poll1_issue(PLA)
        stamp()
        prep()
        poll1_issue(PLB)
        A.label(l1a)
        reduce_body(PLA, 4)
        A("s_cbranch_vccz %s" % lok1)
        A.label(l1b)
        if "tt" in opt:
            A("s_add_u32 s87, s87, 1")
        poll1_issue(PLA)
        reduce_body(PLB, 4)
        A("s_cbranch_vccz %s" % lok1)
        if "tt" in opt:
            A("s_add_u32 s87, s87, 1")
        poll1_issue(PLB)
        A("s_sub_u32 %s, %s, 1" % (s(sBud), s(sBud)))
        A("s_cbranch_scc0 %s" % l1a)
        A("s_mov_b32 %s, 0" % s(sBud))
        A.label(lok1)
        def finish(nop):
            A("s_nop %d" % nop)
            for i in range(4):
                A("v_add_f32_dpp %s, %s, %s row_ror:8 row_mask:0xf bank_mask:0xf" % (v(RACC + i), v(RACC + i), v(RACC + i)))
            A("v_cvt_pk_bf16_f32 %s, %s, %s" % (v(44), v(RACC), v(RACC + 1)))
            A("v_cvt_pk_bf16_f32 %s, %s, %s" % (v(45), v(RACC + 2), v(RACC + 3)))
            A("buffer_store_dwordx2 %s, %s, %s, %s offen%s" % (v(44, 2), v(vRst), s(sWS, 4), s(sX0), SC))
        if "lsep" in opt:
            le = A.new("efin")
            A("s_cmp_lt_u32 %s, 32" % s(sUnit))
            A("s_cbranch_scc1 %s" % le)
            s1load(RING)
            finish(0)
            A("s_waitcnt vmcnt(3)")
            for ch in QK_CHAIN:
                land(ch[0])
            zero(VACC, RING)
            A("s_xor_b32 %s, %s, 1" % (s(sPh), s(sPh)))
            if "l2nd" in opt:
                s1load(RING)
                A("s_waitcnt vmcnt(3) lgkmcnt(0)")
            else:
                A("s_waitcnt vmcnt(1) lgkmcnt(0)")
            A("s_branch %s" % ls1w)
            A.label(le)
            A("ds_write_b32 %s, %s" % (v(46), v(47)))
            finish(0)
        else:
            A("ds_write_b32 %s, %s" % (v(46), v(47)))
            finish(2)
        stamp()
        A.label(lb4)
        for i in range(optval("g1", 0)):
            A("s_nop 7")
        if "late" in opt:
            A("s_waitcnt vmcnt(1)")
        else:
            s1load(RING)
            A("s_waitcnt vmcnt(%d)" % (5 if "early1" in opt else 3))
        for ch in QK_CHAIN:
            land(ch[0])
        zero(VACC, RING)
        A("s_xor_b32 %s, %s, 1" % (s(sPh), s(sPh)))
        if "late" in opt:
            s1load(RING)
        for i in range(optval("g2", 0)):
            A("s_nop 7")
        if "r2" in opt:
            s1load(RING)
            A("s_waitcnt vmcnt(2)")
        if "first0" in opt:
            A("s_waitcnt vmcnt(0)")
        A("s_waitcnt lgkmcnt(0)")
        if stamps and "rt" not in opt:
            ldump = A.new("dump")
            A("s_cmp_eq_u32 %s, 41" % s(sStep))
            A("s_cbranch_scc1 %s" % ldump)
            A("s_cmp_eq_u32 %s, 42" % s(sStep))
            A("s_cbranch_scc0 %s" % ls1w)
            A.label(ldump)
            for i in range(10):
                A("v_writelane_b32 %s, %s, %d" % (v(vTmp), s(sStamp + 2 * i), i))
            A("v_writelane_b32 %s, %s, %d" % (v(vTmp), s(sBud), 15))
            A("s_lshl_b32 %s, %s, 2" % (s(sT), s(sCU)))
            A("s_add_u32 %s, %s, %s" % (s(sT), s(sT), s(sW)))
            A("s_lshl_b32 %s, %s, 1" % (s(sT), s(sT)))
            A("s_add_u32 %s, %s, %s" % (s(sT), s(sT), s(sStep)))
            A("s_sub_u32 %s, %s, 41" % (s(sT), s(sT)))
            A("s_lshl_b32 %s, %s, 10" % (s(sT), s(sT)))
            A("s_add_u32 %s, %s, %d" % (s(sT), s(sT), WS_DBG + (3 << 18 if "mega" in opt else 0)))
            A("buffer_store_dword %s, %s, %s, %s offen" % (v(vTmp), v(vL16), s(sWS, 4), s(sT)))
            A("s_waitcnt vmcnt(0)")
        A("s_branch %s" % ls1w)
        A.label(ls1r + "_give")
        A("s_mov_b32 %s, 0" % s(sBud))
        A("s_branch %s" % lentry)
        A.label(lexit)
        if "tt" in opt:
            A("s_memtime s[94:95]")
            A("s_memrealtime s[70:71]")
            A("s_waitcnt lgkmcnt(0)")
            A("s_sub_u32 s94, s94, s92")
            A("s_sub_u32 s92, s92, s90")
            A("v_writelane_b32 %s, s92, 0" % v(vTmp))
            A("v_writelane_b32 %s, s94, 1" % v(vTmp))
            A("v_writelane_b32 %s, %s, 2" % (v(vTmp), s(sBud)))
            for i in range(3):
                A("v_writelane_b32 %s, s%d, %d" % (v(vTmp), 87 + i, 3 + i))
            for i in range(4):
                A("v_writelane_b32 %s, s%d, %d" % (v(vTmp), 64 + 2 * i, 6 + i))
            A("s_lshl_b32 %s, %s, 2" % (s(sT), s(sCU)))
            A("s_add_u32 %s, %s, %s" % (s(sT), s(sT), s(sW)))
            A("s_lshl_b32 %s, %s, 10" % (s(sT), s(sT)))
            A("s_add_u32 %s, %s, %d" % (s(sT), s(sT), WS_DBG + (1 << 19)))
            A("buffer_store_dword %s, %s, %s, %s offen" % (v(vTmp), v(vL16), s(sWS, 4), s(sT)))
            if "dbgout" in opt:
                for i, o in enumerate((4, 8, 12, 20)):
                    A("v_mov_b32 %s, s%d" % (v(vTmp), 64 + 2 * i))
                    A("buffer_atomic_umax %s, off, %s, 0 offset:%d" % (v(vTmp), s(sDBG, 4), o))
        A("s_waitcnt vmcnt(0)")

    loop(" sc1" if "forcesc1" in opt else "")
    A("s_endpgm")
    A.label(lslow)
    nst[0] = 0
    loop(" sc1")
```

```python
from asmlib import *
from layout import *
import struct, math

def f32bits(x):
    return struct.unpack("<I", struct.pack("<f", x))[0]

sWS, sW1, sW2, sW3, sWO, sXS, sDBG = 4, 8, 12, 16, 20, 24, 28
sWid, sW, sSl, sRep, sSeg, sBud = 32, 33, 34, 35, 36, 37
sA0 = 38
sT = 60
sMask = 64
sSel = 80
vL16, vLane, vG, vC, vX, vTmp, vFl = 0, 1, 2, 3, 4, 5, 6
NSLOT = 9
L_SCR = 147456

TS = {'on': False, 'reg': 15}
sTsI = 98
def ts(A, idx=None):
    if not TS['on'] or (TS.get('fine') and idx is None):
        return
    A("s_memrealtime s[96:97]")
    A("s_waitcnt lgkmcnt(0)")
    A.lds = []
    if idx is None:
        A("s_mov_b32 m0, %s" % s(sTsI))
        A("s_add_u32 %s, %s, 1" % (s(sTsI), s(sTsI)))
        A("v_writelane_b32 %s, s96, m0" % v(TS['reg']))
    else:
        A("v_writelane_b32 %s, s96, %d" % (v(TS['reg']), idx))
def fs(A, idx):
    if TS.get('fine'):
        A("s_memtime s[96:97]")
        A("s_waitcnt lgkmcnt(0)")
        A.lds = []
        A("v_writelane_b32 %s, s96, %d" % (v(TS['reg']), idx))
def ts_dump(A, part):
    if not TS['on']:
        return
    A("s_lshl_b32 s96, %s, 2" % s(sWid))
    A("s_add_u32 s96, s96, %s" % s(sW))
    A("s_lshl_b32 s96, s96, 9")
    A("s_add_u32 s96, s96, %d" % (WS_DBG + part * 256))
    A("v_lshlrev_b32 %s, 2, %s" % (v(vTmp), v(vLane)))
    A("buffer_store_dword %s, %s, %s, s96 offen" % (v(TS['reg']), v(vTmp), s(sWS, 4)))
    A("s_waitcnt vmcnt(0)")
    A("s_mov_b32 %s, 0" % s(sTsI))

def build_srd(A, d, karg, nbytes):
    A("s_load_dwordx2 %s, s[0:1], %d" % (s(d, 2), karg))
    A("s_waitcnt lgkmcnt(0)")
    A("s_and_b32 %s, %s, 0xffff" % (s(d + 1), s(d + 1)))
    A("s_mov_b32 %s, %d" % (s(d + 2), nbytes))
    A("s_mov_b32 %s, 0x20000" % s(d + 3))

def wait_flags(A, voff, soff, srd=sWS, cmp_ge=None, imm=0):
    lp, ok = A.new("wf"), A.new("wfok")
    A.label(lp)
    if voff is None:
        A("buffer_load_dword %s, off, %s, %s offset:%d sc1" % (v(vTmp), s(srd, 4), soff, imm))
    else:
        A("buffer_load_dword %s, %s, %s, %s offen offset:%d sc1" % (v(vTmp), v(voff), s(srd, 4), soff, imm))
    A("s_waitcnt vmcnt(0)")
    if cmp_ge is None:
        A("v_cmp_eq_u32 vcc, 0, %s" % v(vTmp))
    else:
        A("v_cmp_gt_u32 vcc, %d, %s" % (cmp_ge, v(vTmp)))
    A("s_cbranch_vccz %s" % ok)
    A("s_sleep %d" % TS.get('slp', 2))
    A("s_sub_u32 %s, %s, 1" % (s(sBud), s(sBud)))
    A("s_cbranch_scc0 %s" % lp)
    A("s_mov_b32 %s, 0" % s(sBud))
    A.label(ok)
    A.vm = []

def wait_ready(A, soff, n):
    if TS.get('cnt') and n != 128:
        wait_flags(A, None, soff, cmp_ge=n)
    else:
        wait_flags(A, None, soff, imm=128)

def set_flag(A, soff, wave0_only=True):
    sk = A.new("sf")
    if wave0_only:
        A("s_cmp_lg_u32 %s, 0" % s(sW))
        A("s_cbranch_scc1 %s" % sk)
    A("s_mov_b64 exec, 1")
    A("v_mov_b32 %s, 1" % v(vTmp))
    A("buffer_store_dword %s, off, %s, %s sc1" % (v(vTmp), s(sWS, 4), soff))
    A("s_mov_b64 exec, -1")
    A.label(sk)

def arrive(A, soff, n, wave0_only=True):
    sk = A.new("ar")
    if wave0_only:
        A("s_cmp_lg_u32 %s, 0" % s(sW))
        A("s_cbranch_scc1 %s" % sk)
    A("s_mov_b64 exec, 1")
    A("v_mov_b32 %s, 1" % v(vTmp))
    if TS.get('cnt') and n != 128:
        A("buffer_atomic_add %s, off, %s, %s" % (v(vTmp), s(sWS, 4), soff))
        A("s_mov_b64 exec, -1")
        A.label(sk)
        return
    A("buffer_atomic_add %s, off, %s, %s sc0" % (v(vTmp), s(sWS, 4), soff))
    A("s_waitcnt vmcnt(0)")
    A("v_cmpx_eq_u32 vcc, %d, %s" % (n - 1, v(vTmp)))
    A("s_cbranch_execz %s_x" % sk)
    A("buffer_store_dword %s, off, %s, %s offset:128 sc1" % (v(vTmp), s(sWS, 4), soff))
    A.label(sk + "_x")
    A("s_mov_b64 exec, -1")
    A.label(sk)

def canary(A, soff, imm=0, voff=None):
    lp, ok = A.new("cn"), A.new("cnok")
    A.label(lp)
    if voff is None:
        A("buffer_load_dword %s, off, %s, %s offset:%d sc1" % (v(vTmp), s(sWS, 4), soff, imm))
    else:
        A("buffer_load_dword %s, %s, %s, %s offen offset:%d sc1" % (v(vTmp), v(voff), s(sWS, 4), soff, imm))
    A("s_waitcnt vmcnt(0)")
    A("v_cmp_eq_u32 vcc, -1, %s" % v(vTmp))
    A("s_cbranch_vccz %s" % ok)
    A("s_sleep 1")
    A("s_sub_u32 %s, %s, 1" % (s(sBud), s(sBud)))
    A("s_cbranch_scc0 %s" % lp)
    A("s_mov_b32 %s, 0" % s(sBud))
    A.label(ok)
def maxchain(A, regs, first):
    regs = list(regs)
    if first:
        A("v_max_u32 %s, %s, %s" % (v(vTmp), v(regs[0]), v(regs[1])))
        regs = regs[2:]
    for i in range(0, len(regs), 2):
        A("v_max3_u32 %s, %s, %s, %s" % (v(vTmp), v(vTmp), v(regs[i]), v(regs[i + 1])))
def retry_if_sentinel(A, lagain):
    ok = A.new("sok")
    A("v_cmp_eq_u32 vcc, -1, %s" % v(vTmp))
    A("s_cbranch_vccz %s" % ok)
    A("s_sub_u32 %s, %s, 1" % (s(sBud), s(sBud)))
    A("s_cbranch_scc0 %s" % lagain)
    A("s_mov_b32 %s, 0" % s(sBud))
    A.label(ok)

def MF(A, d, a_, b_, c_):
    A("v_mfma_f32_16x16x32_bf16 %s, %s, %s, %s" % (d, a_, b_, c_))

sLW = 99
def stage_issue(A, chunks, c):
    srd, voff, so, _ = chunks[c]
    for j in range(4):
        A("s_add_u32 m0, %s, %d" % (s(sLW), (c % NSLOT) * 16384 + j * 1024))
        A("s_mov_b32 %s, %d" % (s(sT + 2), so[j]))
        A.vmem("buffer_load_dwordx4 %s, %s, %s offen lds" % (v(voff), s(srd, 4), s(sT + 2)), ('c', c))
def stage_start(A, chunks, depth=NSLOT - 1):
    A("s_lshl_b32 %s, %s, 12" % (s(sLW), s(sW)))
    for c in range(min(depth, len(chunks))):
        stage_issue(A, chunks, c)
def stage(A, chunks, started=False, depth=NSLOT - 1):
    if not started:
        stage_start(A, chunks, depth)
    n = len(chunks)
    for c in range(n):
        A.wait_vm(('c', c))
        A("s_barrier")
        if c + depth < n:
            stage_issue(A, chunks, c + depth)
        chunks[c][3]((c % NSLOT) * 16384)
        A.wait_ds()
    A("s_barrier")

def wide_off(A, dst, t1, rowstride, s_extra):
    A("v_lshlrev_b32 %s, 2, %s" % (v(t1), v(vG)))
    A("v_sub_u32 %s, %s, %s" % (v(t1), v(vLane), v(t1)))
    A("v_and_b32 %s, 15, %s" % (v(t1), v(t1)))
    A("v_lshlrev_b32 %s, 4, %s" % (v(t1), v(t1)))
    A("v_mul_u32_u24 %s, %d, %s" % (v(dst), rowstride, v(vG)))
    A("v_add_u32 %s, %s, %s" % (v(dst), v(dst), v(t1)))
    A("s_mul_i32 %s, %s, %d" % (s(sT + 3), s(sW), 16 * rowstride))
    A("s_add_u32 %s, %s, %s" % (s(sT + 3), s(sT + 3), s_extra))
    A("v_add_u32 %s, %s, %s" % (v(dst), s(sT + 3), v(dst)))

def wide_tr(A, dst, t1, s_col, ccmul):
    A("v_mul_u32_u24 %s, %d, %s" % (v(t1), ccmul, v(vX)))
    A("v_lshl_add_u32 %s, %s, 2, %s" % (v(t1), v(vC), v(t1)))
    A("v_add_u32 %s, %s, %s" % (v(t1), s_col, v(t1)))
    A("v_and_b32 %s, 15, %s" % (v(t1), v(t1)))
    A("v_lshlrev_b32 %s, 4, %s" % (v(t1), v(t1)))
    A("v_lshl_add_u32 %s, %s, 3, %s" % (v(dst), v(vG), v(vC)))
    A("v_lshl_add_u32 %s, %s, 8, %s" % (v(dst), v(dst), v(t1)))

def tall_off(A, dst, t1, s_extra):
    A("v_lshrrev_b32 %s, 3, %s" % (v(t1), v(vLane)))
    A("v_mul_u32_u24 %s, 1152, %s" % (v(dst), v(t1)))
    A("v_and_b32 %s, 7, %s" % (v(t1), v(vLane)))
    A("v_lshl_add_u32 %s, %s, 4, %s" % (v(dst), v(t1), v(dst)))
    A("s_mul_i32 %s, %s, %d" % (s(sT + 3), s(sW), 32 * 1152))
    A("s_add_u32 %s, %s, %s" % (s(sT + 3), s(sT + 3), s_extra))
    A("v_add_u32 %s, %s, %s" % (v(dst), s(sT + 3), v(dst)))

def tall_tr(A, dst, kbshift):
    A("v_lshl_add_u32 %s, %s, %d, %s" % (v(dst), v(vG), kbshift, v(vC)))
    A("v_lshlrev_b32 %s, 7, %s" % (v(dst), v(dst)))
    A("v_lshl_add_u32 %s, %s, 3, %s" % (v(dst), v(vX), v(dst)))
    A("s_lshl_b32 %s, %s, 5" % (s(sT + 3), s(sW)))
    A("v_add_u32 %s, %s, %s" % (v(dst), s(sT + 3), v(dst)))

def tr2(A, reg, addr, imm0, imm1):
    A.ds("ds_read_b64_tr_b16 %s, %s offset:%d" % (R(reg, 2), v(addr), imm0))
    A.ds("ds_read_b64_tr_b16 %s, %s offset:%d" % (R(reg + 2, 2), v(addr), imm1))

def x_dma(A, vXo, sSrc, sM0):
    for i in range(9):
        A("s_add_u32 m0, %s, %d" % (s(sM0), 896 * i))
        A("s_nop 0")
        A.vmem("buffer_load_dwordx4 %s, %s, %s offen offset:%d sc1 lds" % (v(vXo), s(sWS, 4), s(sSrc), 128 * i), 'x')

def gemm576(A, vXa, LAND, wreg, acc, ntile, swap, mid=None):
    def rd(ks):
        for tt in range(2):
            A.ds("ds_read_b128 %s, %s offset:%d" % (v(LAND + 8 * (ks & 1) + 4 * tt, 4), v(vXa + (ks & 1)), 18432 * tt + (ks >> 1) * 1024), ('x', ks))
    rd(0)
    for ks in range(18):
        A.wait_ds(('x', ks))
        n = 0
        for t in range(ntile):
            for tt in range(2):
                x = v(LAND + 8 * (ks & 1) + 4 * tt, 4)
                w = R(wreg(t, ks), 4)
                d = v(acc(t, tt), 4)
                if swap(t):
                    MF(A, d, x, w, "0" if ks == 0 else d)
                else:
                    MF(A, d, w, x, "0" if ks == 0 else d)
                n += 1
                if n == 1 and ks + 1 < 18:
                    rd(ks + 1)
        if mid and ks == 4:
            mid()

def wave_sum(A, r, t):
    for k in (8, 4, 2, 1):
        A("s_nop 1")
        A("v_add_f32_dpp %s, %s, %s row_ror:%d row_mask:0xf bank_mask:0xf" % (v(r), v(r), v(r), k))
    for op in ("v_permlane16_swap_b32", "v_permlane32_swap_b32"):
        A("v_mov_b32 %s, %s" % (v(t), v(r)))
        A("s_nop 1")
        A("%s %s, %s" % (op, v(r), v(t)))
        A("v_add_f32 %s, %s, %s" % (v(r), v(r), v(t)))

def rnd2(A, a, b):
    A("v_cvt_pk_bf16_f32 %s, %s, %s" % (v(b), v(a), v(b)))
    A("v_lshlrev_b32 %s, 16, %s" % (v(a), v(b)))
    A("v_and_b32 %s, 0xffff0000, %s" % (v(b), v(b)))
def rnd1(A, a):
    A("v_cvt_pk_bf16_f32 %s, %s, %s" % (v(a), v(a), v(a)))
    A("v_and_b32 %s, 0xffff0000, %s" % (v(a), v(a)))
def unpack(A, lo, hi, src):
    A("v_and_b32 %s, 0xffff0000, %s" % (v(hi), v(src))) if hi != src else None
    A("v_lshlrev_b32 %s, 16, %s" % (v(lo), v(src)))
    if hi == src:
        A("v_and_b32 %s, 0xffff0000, %s" % (v(hi), v(src)))

def row_offsets(A, vRow, vRow2, svalid, t):
    A("v_and_b32 %s, 7, %s" % (v(t), v(vLane)))
    A("v_lshlrev_b32 %s, 4, %s" % (v(vRow), v(t)))
    A("v_bfe_u32 %s, %s, 3, 1" % (v(t), v(vLane)))
    A("v_lshl_add_u32 %s, %s, 8, %s" % (v(vRow), v(t), v(vRow)))
    A("v_lshrrev_b32 %s, 1, %s" % (v(t), v(vG)))
    A("v_lshl_add_u32 %s, %s, 7, %s" % (v(vRow), v(t), v(vRow)))
    A("v_and_b32 %s, 1, %s" % (v(t), v(vG)))
    A("v_lshl_add_u32 %s, %s, 3, %s" % (v(vRow), v(t), v(vRow)))
    A("s_mov_b32 %s, 0x00ff00ff" % s(svalid))
    A("s_mov_b32 %s, 0" % s(svalid + 1))
    A("v_mov_b32 %s, 0x%x" % (v(t), OOB >> 1))
    A("v_cndmask_b32 %s, %s, %s, %s" % (v(vRow2), v(t), v(vRow), s(svalid, 2)))

def load_mod(A, dst, which, vRow, vRow2, t1, t2):
    A("v_lshlrev_b32 %s, 1, %s" % (v(t1), v(vRow)))
    A("v_lshlrev_b32 %s, 1, %s" % (v(t2), v(vRow2)))
    A("s_mov_b32 %s, %d" % (s(sT + 2), WS_MOD + which * 2304))
    for U in range(3):
        A.vmem("buffer_load_dwordx4 %s, %s, %s, %s offen offset:%d sc1" % (v(dst + 4 * U, 4), v(t1 if U < 2 else t2), s(sWS, 4), s(sT + 2), 1024 * U), 'mod')

def ln_stats(A, X, D, svalid, m, rs, t):
    A("v_add_f32 %s, %s, %s" % (v(m), v(X), v(X + 1)))
    for i in range(2, 12):
        A("v_add_f32 %s, %s, %s" % (v(m), v(m), v(X + i)))
    wave_sum(A, m, t)
    A("v_mul_f32 %s, 0x%x, %s" % (v(m), f32bits(1.0 / 576), v(m)))
    for i in range(12):
        A("v_sub_f32 %s, %s, %s" % (v(D + i), v(X + i), v(m)))
    A("v_mul_f32 %s, %s, %s" % (v(rs), v(D + 8), v(D + 8)))
    for i in range(9, 12):
        A("v_fmac_f32 %s, %s, %s" % (v(rs), v(D + i), v(D + i)))
    A("v_cndmask_b32 %s, 0, %s, %s" % (v(rs), v(rs), s(svalid, 2)))
    for i in range(8):
        A("v_fmac_f32 %s, %s, %s" % (v(rs), v(D + i), v(D + i)))
    wave_sum(A, rs, t)
    A("v_mul_f32 %s, 0x%x, %s" % (v(rs), f32bits(1.0 / 576), v(rs)))
    rnd2(A, m, rs)
    A("v_add_f32 %s, 0x%x, %s" % (v(rs), f32bits(1e-5), v(rs)))
    rnd1(A, rs)
    A("v_sqrt_f32 %s, %s" % (v(rs), v(rs)))
    A("s_nop 0")
    rnd1(A, rs)
    A("v_rcp_f32 %s, %s" % (v(rs), v(rs)))
    A("s_nop 0")

def ln_apply(A, X, m, rs, C1, SH, out):
    for i in range(12):
        A("v_sub_f32 %s, %s, %s" % (v(X + i), v(X + i), v(m)))
    for i in range(0, 12, 2):
        rnd2(A, X + i, X + i + 1)
    for i in range(12):
        A("v_mul_f32 %s, %s, %s" % (v(X + i), v(X + i), v(rs)))
    for i in range(0, 12, 2):
        rnd2(A, X + i, X + i + 1)
    for i in range(12):
        A("v_mul_f32 %s, %s, %s" % (v(X + i), v(X + i), v(C1 + i)))
    for i in range(0, 12, 2):
        rnd2(A, X + i, X + i + 1)
    for i in range(12):
        A("v_add_f32 %s, %s, %s" % (v(X + i), v(X + i), v(SH + i)))
    for i in range(6):
        A("v_cvt_pk_bf16_f32 %s, %s, %s" % (v(out + i), v(X + 2 * i), v(X + 2 * i + 1)))

def one_plus(A, C):
    for i in range(12):
        A("v_add_f32 %s, 1.0, %s" % (v(C + i), v(C + i)))
    for i in range(0, 12, 2):
        rnd2(A, C + i, C + i + 1)

def row_io(A, op, reg, vRow, vRow2, srd, soff, flags=""):
    for U in range(3):
        A.vmem("buffer_%s_dwordx2 %s, %s, %s, %s offen offset:%d%s" % (op, v(reg + 2 * U, 2), v(vRow if U < 2 else vRow2), s(srd, 4), soff, 512 * U, flags), 'row')

def sel_masks(A):
    for hi in range(2):
        for u in range(4):
            m16 = (3 << (2 * u)) << (8 * hi)
            m32 = m16 | (m16 << 16)
            A("s_mov_b32 %s, 0x%x" % (s(sSel + 8 * hi + 2 * u), m32))
            A("s_mov_b32 %s, 0x%x" % (s(sSel + 8 * hi + 2 * u + 1), m32))
def make_sel(A, dst, hi, t):
    A("v_and_b32 %s, 1, %s" % (v(t), v(vLane)))
    A("v_lshlrev_b32 %s, 4, %s" % (v(t), v(t)))
    A("v_mov_b32 %s, 0x3f80" % v(dst))
    A("v_lshlrev_b32 %s, %s, %s" % (v(t), v(t), v(dst)))
    for u in range(4):
        A("v_cndmask_b32 %s, 0, %s, %s" % (v(dst + u), v(t), s(sSel + 8 * hi + 2 * u, 2)))

def emit_worker(A, opt=()):
    A.c("=========== worker ===========")
    A("v_mov_b32 %s, v0" % v(vLane))
    A("v_lshlrev_b32 %s, 4, %s" % (v(vL16), v(vLane)))
    A("v_lshrrev_b32 %s, 4, %s" % (v(vG), v(vLane)))
    A("v_bfe_u32 %s, %s, 2, 2" % (v(vC), v(vLane)))
    A("v_and_b32 %s, 3, %s" % (v(vX), v(vLane)))
    A("s_mov_b32 %s, 1000000" % s(sBud))
    TS['on'], TS['reg'], TS['fine'] = "ts" in opt, 79, "fs" in opt
    TS['cnt'] = "cnt" in opt
    TS['slp'] = ([int(o[4:]) for o in opt if o.startswith("slp=")] + [2])[0]
    TS['d2'] = ([int(o[3:]) for o in opt if o.startswith("d2=")] + [2])[0]
    ts(A, 0)
    sel_masks(A)
    build_srd(A, sXS, 0, 2359296)
    vRow, vRow2 = 7, 8
    sValid = sMask
    row_offsets(A, vRow, vRow2, sValid, vTmp)
    A("s_mul_i32 %s, %s, 9363" % (s(sSl), s(sWid)))
    A("s_lshr_b32 %s, %s, 16" % (s(sSl), s(sSl)))
    A("s_mul_i32 %s, %s, 7" % (s(sT), s(sSl)))
    A("s_sub_u32 %s, %s, %s" % (s(sRep), s(sWid), s(sT)))
    vOffW, vTr, vAd = 77, 78, 11
    A("s_lshl_b32 %s, %s, 8" % (s(sT + 1), s(sSl)))
    wide_off(A, vOffW, vTmp, 8192, s(sT + 1))
    A("s_lshr_b32 %s, %s, 1" % (s(sT + 1), s(sW)))
    A("s_lshl_b32 %s, %s, 3" % (s(sT + 1), s(sT + 1)))
    A("s_and_b32 %s, %s, 1" % (s(sT + 2), s(sW)))
    A("s_add_u32 %s, %s, %s" % (s(sT + 1), s(sT + 1), s(sT + 2)))
    wide_tr(A, vTr, vTmp, s(sT + 1), 2)
    W0 = 80
    def wq(t, ks):
        return W0 + 4 * (6 * ks + t)
    def wide_chunks(mats, rowstride, wreg, vOffW=vOffW, vTr=vTr):
        out = []
        for G in range(9):
            for m, srd in enumerate(mats):
                def consume(base, m=m, G=G):
                    A("v_add_u32 %s, %d, %s" % (v(vAd), base, v(vTr)))
                    for k2 in range(2):
                        for t in range(2):
                            tr2(A, wreg(2 * m + t, 2 * G + k2), vAd, 32 * k2 * 256 + 8 * t, (32 * k2 + 4) * 256 + 8 * t)
                out.append((srd, vOffW, [(64 * G + 4 * j) * rowstride for j in range(4)], consume))
        return out
    qchunks = wide_chunks((sW1, sW2, sW3), 8192, wq)
    lmod, lpre_done, lidle = A.new("mod"), A.new("predone"), A.new("idle")
    XR = 16
    A("s_cmp_lt_u32 %s, 3" % s(sRep))
    A("s_cbranch_scc1 %s" % lmod)
    A("s_lshl_b32 %s, %s, 2" % (s(sT), s(sSl)))
    A("s_add_u32 %s, %s, %s" % (s(sT), s(sT), s(sRep)))
    A("s_sub_u32 %s, %s, 3" % (s(sT), s(sT)))
    A("s_lshl_b32 %s, %s, 2" % (s(sT), s(sT)))
    A("s_add_u32 %s, %s, %s" % (s(sT), s(sT), s(sW)))
    A("s_mul_i32 %s, %s, %d" % (s(sA0), s(sT), 4 * 1152))
    for r in range(4):
        A("s_add_u32 %s, %s, %d" % (s(sT), s(sA0), r * 1152))
        row_io(A, "load", XR + 6 * r, vRow, vRow2, sXS, s(sT))
    stage_start(A, qchunks)
    A("s_waitcnt vmcnt(%d)" % (4 * (NSLOT - 1)))
    SH, C1, XF = 40, 52, 100
    for r in range(4):
        for i in range(6):
            unpack(A, XF + 12 * r + 2 * i, XF + 12 * r + 2 * i + 1, XR + 6 * r + i)
        ln_stats(A, XF + 12 * r, 160, sValid, 64 + 2 * r, 65 + 2 * r, 11)
    wait_flags(A, None, "0", srd=sDBG, imm=DBG_MOD)
    load_mod(A, SH, 0, vRow, vRow2, 9, 10)
    load_mod(A, C1, 1, vRow, vRow2, 9, 10)
    A("s_waitcnt vmcnt(0)")
    one_plus(A, C1)
    for r in range(4):
        ln_apply(A, XF + 12 * r, 64 + 2 * r, 65 + 2 * r, C1, SH, XR + 6 * r)
        A("s_add_u32 %s, %s, %d" % (s(sT), s(sA0), WS_H + r * 1152))
        row_io(A, "store", XR + 6 * r, vRow, vRow2, sWS, s(sT), " sc1")
    A("s_waitcnt vmcnt(0)")
    A("s_barrier")
    A("s_mov_b32 %s, %d" % (s(sT), FL_H))
    arrive(A, s(sT), 128)
    A("s_branch %s" % lpre_done)

    A.label(lmod)
    A("s_cmp_eq_u32 %s, 0" % s(sRep))
    A("s_cbranch_scc1 %s" % lidle)
    A("s_cmp_ge_u32 %s, 27" % s(sSl))
    A("s_cbranch_scc1 %s" % lidle)
    build_srd(A, sA0 + 2, 88, 1152)
    build_srd(A, sA0 + 6, 96, 3981312)
    sCs, sWm = sA0 + 2, sA0 + 6
    A("s_lshl_b32 %s, %s, 1" % (s(sA0), s(sSl)))
    A("s_add_u32 %s, %s, %s" % (s(sA0), s(sA0), s(sRep)))
    A("s_sub_u32 %s, %s, 1" % (s(sA0), s(sA0)))
    for i in range(4):
        A("v_mov_b32 %s, 0" % v(12 + i))
    A("s_lshl_b32 %s, %s, 2" % (s(sT), s(sA0)))
    A("s_add_u32 %s, %s, %s" % (s(sT), s(sT), s(sW)))
    A("s_lshl_b32 %s, %s, 11" % (s(sT), s(sT)))
    A("s_add_u32 %s, %s, %d" % (s(sT), s(sT), WS_FL))
    assert FL_END - WS_FL <= 54 * 8192
    A("buffer_store_dwordx4 %s, %s, %s, %s offen sc1" % (v(12, 4), v(vL16), s(sWS, 4), s(sT)))
    A("buffer_store_dwordx4 %s, %s, %s, %s offen offset:1024 sc1" % (v(12, 4), v(vL16), s(sWS, 4), s(sT)))
    A("v_lshrrev_b32 %s, 3, %s" % (v(9), v(vLane)))
    A("s_mul_i32 %s, %s, 144" % (s(sT), s(sW)))
    A("v_add_u32 %s, %s, %s" % (v(9), s(sT), v(9)))
    A("v_lshlrev_b32 %s, 1, %s" % (v(10), v(9)))
    A("v_mul_u32_u24 %s, 6912, %s" % (v(9), v(9)))
    A("v_and_b32 %s, 7, %s" % (v(11), v(vLane)))
    A("v_lshl_add_u32 %s, %s, 4, %s" % (v(9), v(11), v(9)))
    A("s_lshl_b32 %s, %s, 7" % (s(sT), s(sA0)))
    CV, WV, ACC = 100, 120, 200
    for i in range(18):
        A("buffer_load_ushort %s, %s, %s, 0 offen offset:%d" % (v(CV + i), v(10), s(sCs, 4), 16 * i))
    for i in range(18):
        A("s_add_u32 %s, %s, %d" % (s(sT + 1), s(sT), i * 55296))
        A("buffer_load_dwordx4 %s, %s, %s, %s offen" % (v(WV + 4 * i, 4), v(9), s(sWm, 4), s(sT + 1)))
    A("s_waitcnt vmcnt(18)")
    for i in range(18):
        c = CV + i
        A("v_lshlrev_b32 %s, 16, %s" % (v(c), v(c)))
        A("v_mul_f32 %s, 0x%x, %s" % (v(12), f32bits(-math.log2(math.e)), v(c)))
        A("v_exp_f32 %s, %s" % (v(12), v(12)))
        A("s_nop 0")
        A("v_add_f32 %s, 1.0, %s" % (v(12), v(12)))
        A("v_rcp_f32 %s, %s" % (v(12), v(12)))
        A("s_nop 0")
        A("v_mul_f32 %s, %s, %s" % (v(c), v(c), v(12)))
        rnd1(A, c)
    for j in range(8):
        A("v_mov_b32 %s, 0" % v(ACC + j))
    A("s_waitcnt vmcnt(0)")
    for i in range(18):
        for j in range(4):
            unpack(A, 12, 13, WV + 4 * i + j)
            A("v_fmac_f32 %s, %s, %s" % (v(ACC + 2 * j), v(12), v(CV + i)))
            A("v_fmac_f32 %s, %s, %s" % (v(ACC + 2 * j + 1), v(13), v(CV + i)))
    for j in range(8):
        r = ACC + j
        A("s_nop 1")
        A("v_add_f32_dpp %s, %s, %s row_ror:8 row_mask:0xf bank_mask:0xf" % (v(r), v(r), v(r)))
        for op in ("v_permlane16_swap_b32", "v_permlane32_swap_b32"):
            A("v_mov_b32 %s, %s" % (v(12), v(r)))
            A("s_nop 1")
            A("%s %s, %s" % (op, v(r), v(12)))
            A("v_add_f32 %s, %s, %s" % (v(r), v(r), v(12)))
    A("s_lshl_b32 %s, %s, 8" % (s(sT + 1), s(sW)))
    A("s_add_u32 %s, %s, %d" % (s(sT + 1), s(sT + 1), L_SCR))
    A("v_lshlrev_b32 %s, 5, %s" % (v(11), v(11)))
    A("v_add_u32 %s, %s, %s" % (v(11), s(sT + 1), v(11)))
    A("ds_write_b128 %s, %s" % (v(11), v(ACC, 4)))
    A("ds_write_b128 %s, %s offset:16" % (v(11), v(ACC + 4, 4)))
    A("s_waitcnt lgkmcnt(0)")
    A("s_barrier")
    A("v_lshlrev_b32 %s, 2, %s" % (v(10), v(vLane)))
    A("v_add_u32 %s, %d, %s" % (v(11), L_SCR, v(10)))
    for i in range(4):
        A("ds_read_b32 %s, %s offset:%d" % (v(12 + i), v(11), 256 * i))
    A("s_waitcnt lgkmcnt(0)")
    A("v_add_f32 %s, %s, %s" % (v(12), v(12), v(13)))
    A("v_add_f32 %s, %s, %s" % (v(14), v(14), v(15)))
    A("v_add_f32 %s, %s, %s" % (v(12), v(12), v(14)))
    rnd1(A, 12)
    A("s_lshl_b32 %s, %s, 8" % (s(sT), s(sA0)))
    A("s_add_u32 %s, %s, %d" % (s(sT), s(sT), WS_MOD))
    sk = A.new("modw")
    A("s_cmp_lg_u32 %s, 0" % s(sW))
    A("s_cbranch_scc1 %s" % sk)
    A("buffer_store_dword %s, %s, %s, %s offen sc1" % (v(12), v(10), s(sWS, 4), s(sT)))
    A("s_waitcnt vmcnt(0)")
    A("s_mov_b64 exec, 1")
    A("v_mov_b32 %s, 1" % v(12))
    A("buffer_atomic_add %s, off, %s, 0 offset:%d sc0" % (v(12), s(sDBG, 4), DBG_MODC))
    A("s_waitcnt vmcnt(0)")
    A("v_cmpx_eq_u32 vcc, 53, %s" % v(12))
    A("s_cbranch_execz %s_x" % sk)
    A("buffer_store_dword %s, off, %s, 0 offset:%d sc1" % (v(12), s(sDBG, 4), DBG_MOD))
    A.label(sk + "_x")
    A("s_mov_b64 exec, -1")
    A.label(sk)
    A.label(lidle)
    stage_start(A, qchunks)
    A.label(lpre_done)
    ts(A, 1)

    A.vm, A.lds = [('c', c) for c in range(NSLOT - 1) for j in range(4)], []
    stage(A, qchunks, started=True)
    ts(A, 2)
    wait_flags(A, None, "0", srd=sDBG, imm=DBG_MOD)
    ts(A, 3)
    ts(A, 4)
    if TS['on']:
        A("v_mov_b32 v15, v79")
        A("s_mov_b32 %s, 8" % s(sTsI))
        TS['reg'] = 15
    A("s_mov_b32 %s, %d" % (s(sT), FL_H))
    wait_flags(A, None, s(sT), imm=128)
    ts(A, 5)
    vXo, vXa = 9, 10
    LAND, ACC = 16, 32
    sSrc, sM0x, sQo, sKo, sFlag, sBuf = sA0, sA0 + 1, sA0 + 2, sA0 + 3, sA0 + 4, sA0 + 5
    def xsetup(vXa):
        A("v_lshrrev_b32 %s, 3, %s" % (v(vTmp), v(vLane)))
        A("v_xor_b32 %s, %s, %s" % (v(vXa), v(vTmp), v(vLane)))
        A("v_and_b32 %s, 7, %s" % (v(vXa), v(vXa)))
        A("v_mul_u32_u24 %s, 1152, %s" % (v(vXo), v(vTmp)))
        A("v_lshl_add_u32 %s, %s, 4, %s" % (v(vXo), v(vXa), v(vXo)))
        A("s_mul_i32 %s, %s, 9216" % (s(sM0x), s(sW)))
        A("v_add_u32 %s, %s, %s" % (v(vXo), s(sM0x), v(vXo)))
        A("v_and_b32 %s, 7, %s" % (v(vTmp), v(vLane)))
        A("v_xor_b32 %s, %s, %s" % (v(vXa), v(vG), v(vTmp)))
        A("v_lshlrev_b32 %s, 4, %s" % (v(vXa), v(vXa)))
        A("v_lshl_add_u32 %s, %s, 7, %s" % (v(vXa), v(vTmp), v(vXa)))
        A("v_bfe_u32 %s, %s, 3, 1" % (v(vTmp), v(vLane)))
        A("v_mul_u32_u24 %s, 9216, %s" % (v(vTmp), v(vTmp)))
        A("v_add_u32 %s, %s, %s" % (v(vXa), v(vXa), v(vTmp)))
        A("v_xor_b32 %s, 64, %s" % (v(vXa + 1), v(vXa)))
    xsetup(vXa)
    A("s_mov_b32 %s, %s" % (s(sSeg), s(sRep)))
    A("s_mul_i32 %s, %s, 36864" % (s(sSrc), s(sSeg)))
    A("s_add_u32 %s, %s, %d" % (s(sSrc), s(sSrc), WS_H))
    A("s_lshl_b32 %s, %s, 5" % (s(sT), s(sSeg)))
    A("s_add_u32 %s, %s, %s" % (s(sT), s(sT), s(sSl)))
    A("s_lshl_b32 %s, %s, 10" % (s(sT + 1), s(sW)))
    A("s_lshl_b32 %s, %s, 13" % (s(sQo), s(sT)))
    A("s_add_u32 %s, %s, %s" % (s(sQo), s(sQo), s(sT + 1)))
    A("s_add_u32 %s, %s, %d" % (s(sQo), s(sQo), WS_Q))
    A("s_lshl_b32 %s, %s, 14" % (s(sKo), s(sT)))
    A("s_add_u32 %s, %s, %s" % (s(sKo), s(sKo), s(sT + 1)))
    if WS_KV:
        A("s_add_u32 %s, %s, %d" % (s(sKo), s(sKo), WS_KV))
    A("s_mov_b32 %s, 0x%x" % (s(sFlag), OOB))
    A.vm = []
    x_dma(A, vXo, sSrc, sM0x)
    A("s_waitcnt vmcnt(0)")
    ltop, lend = A.new("qkv"), A.new("qkvend")
    A.label(ltop)
    lq1, lq2 = A.new("q1"), A.new("q2")
    A("s_cmp_ge_u32 %s, 14" % s(sSeg))
    A("s_cbranch_scc1 %s" % lq1)
    A("s_waitcnt vmcnt(0)")
    A("s_barrier")
    set_flag(A, s(sFlag))
    A("s_branch %s" % lq2)
    A.label(lq1)
    A("s_waitcnt vmcnt(7)")
    A("s_barrier")
    A.label(lq2)
    ts(A)
    fs(A, 20)
    A("s_xor_b32 %s, %s, 0x10000" % (s(sM0x), s(sM0x)))
    A("s_add_u32 %s, %s, %d" % (s(sSrc), s(sSrc), 7 * 36864))
    x_dma(A, vXo, sSrc, sM0x)
    def mid():
        A("s_waitcnt vmcnt(9)")
        A("s_barrier")
        set_flag(A, s(sFlag))
    fs(A, 21)
    A.lds = []
    gemm576(A, vXa, LAND, wq, lambda t, tt: ACC + 8 * t + 4 * tt, 6, lambda t: t >= 4, mid)
    fs(A, 22)
    A("v_xor_b32 %s, 0x10000, %s" % (v(vXa), v(vXa)))
    A("v_xor_b32 %s, 0x10000, %s" % (v(vXa + 1), v(vXa + 1)))
    A("s_lshl_b32 %s, %s, 8" % (s(sFlag), s(sSl)))
    A("s_lshl_b32 %s, %s, 2" % (s(sT), s(sSeg)))
    A("s_add_u32 %s, %s, %s" % (s(sFlag), s(sFlag), s(sT)))
    A("s_add_u32 %s, %s, %d" % (s(sFlag), s(sFlag), FL_KV))
    A("s_add_u32 %s, %s, 4096" % (s(sT), s(sQo)))
    A("s_add_u32 %s, %s, 4096" % (s(sT + 1), s(sKo)))
    A("s_lshl_b32 %s, %s, 10" % (s(sT + 2), s(sW)))
    A("s_add_u32 %s, %s, %s" % (s(sT + 2), s(sT + 2), s(sKo)))
    A("s_add_u32 %s, %s, 8192" % (s(sT + 2), s(sT + 2)))
    for m in range(2):
        for tt in range(2):
            a0, a1 = ACC + 16 * m + 4 * tt, ACC + 16 * m + 8 + 4 * tt
            for x in range(4):
                A("v_cvt_pk_bf16_f32 %s, %s, %s" % (v(a0 + x), v(a0 + x), v(a1 + x)))
            so = (sQo, sT, sKo, sT + 1)[2 * m + tt]
            A("buffer_store_dwordx4 %s, %s, %s, %s offen sc1" % (v(a0, 4), v(vL16), s(sWS, 4), s(so)))
    for t in range(2):
        a0 = ACC + 32 + 8 * t
        A("v_cvt_pk_bf16_f32 %s, %s, %s" % (v(a0), v(a0), v(a0 + 1)))
        A("v_cvt_pk_bf16_f32 %s, %s, %s" % (v(a0 + 1), v(a0 + 2), v(a0 + 3)))
        A("v_cvt_pk_bf16_f32 %s, %s, %s" % (v(a0 + 2), v(a0 + 4), v(a0 + 5)))
        A("v_cvt_pk_bf16_f32 %s, %s, %s" % (v(a0 + 3), v(a0 + 6), v(a0 + 7)))
        A("buffer_store_dwordx4 %s, %s, %s, %s offen offset:%d sc1" % (v(a0, 4), v(vL16), s(sWS, 4), s(sT + 2), 1024 * t))
    A("v_mov_b64 %s, -1" % v(LAND, 2))
    A("v_mov_b64 %s, -1" % v(LAND + 2, 2))
    A("s_sub_u32 %s, %s, %d" % (s(sT), s(sQo), WS_Q))
    A("s_lshl_b32 %s, %s, 10" % (s(sT + 1), s(sW)))
    A("s_add_u32 %s, %s, %s" % (s(sT), s(sT), s(sT + 1)))
    A("s_lshr_b32 %s, %s, 1" % (s(sT), s(sT)))
    A("s_add_u32 %s, %s, %d" % (s(sT), s(sT), WS_KM))
    A("buffer_store_dwordx4 %s, %s, %s, %s offen sc1" % (v(LAND, 4), v(vL16), s(sWS, 4), s(sT)))
    fs(A, 23)
    A("s_add_u32 %s, %s, %d" % (s(sQo), s(sQo), 7 * 32 * 8192))
    A("s_add_u32 %s, %s, %d" % (s(sKo), s(sKo), 7 * 32 * 16384))
    A("s_add_u32 %s, %s, 7" % (s(sSeg), s(sSeg)))
    A("s_cmp_lt_u32 %s, 64" % s(sSeg))
    A("s_cbranch_scc1 %s" % ltop)
    A("s_waitcnt vmcnt(0)")
    A("s_barrier")
    set_flag(A, s(sFlag))
    ts(A, 6)
    ts_dump(A, 0)
    if "p1only" in opt:
        return
    lC = A.new("roleC")
    A("s_cmp_ge_u32 %s, 80" % s(sWid))
    A("s_cbranch_scc1 %s" % lC)
    lB = A.new("roleB")
    A("s_cmp_ge_u32 %s, 64" % s(sWid))
    A("s_cbranch_scc1 %s" % lB)
    emit_roleA(A, opt)
    A("s_endpgm")
    A.label(lB)
    emit_roleB(A, vRow, vRow2, sValid, opt)
    A("s_endpgm")
    A.label(lC)
    emit_roleC(A, xsetup, wide_chunks, opt)

def emit_roleA(A, opt):
    A.c("=========== role A: attention + Wo partial ===========")
    A("s_lshr_b32 %s, %s, 2" % (s(sSl), s(sWid)))
    A("s_and_b32 %s, %s, 3" % (s(sRep), s(sWid)))
    vOff, vTr, vAd = 9, 10, 11
    A("s_mul_i32 %s, %s, %d" % (s(sT + 1), s(sSl), 2 * 147456))
    tall_off(A, vOff, vTmp, s(sT + 1))
    tall_tr(A, vTr, 4)
    W0 = 224
    def wo(G, K):
        return W0 + 4 * (8 * G + K)
    chunks = []
    for hd in range(2):
        for G in range(9):
            def consume(base, hd=hd, G=G):
                A("v_add_u32 %s, %d, %s" % (v(vAd), base, v(vTr)))
                for ks in range(4):
                    r0 = 64 * (ks >> 1) + 8 * (ks & 1)
                    tr2(A, wo(G, 4 * hd + ks), vAd, r0 * 128, (r0 + 4) * 128)
            chunks.append((sWO, vOff, [hd * 147456 + 8 * j * 1152 + 128 * G for j in range(4)], consume))
    A.vm, A.lds = ['old'] * 2, []
    stage(A, chunks, depth=TS['d2'])
    TS['reg'] = 19
    ts(A)
    vKM, vL4, vOwr, vTw, vTrd, vPst, vPld, vNEG = 9, 10, 11, 12, 13, 14, 15, 16
    GA, SB, CB = 20, 32, 44
    SEL0, SEL1 = 56, 60
    QF, KX, VX, KM, VM = 64, 80, 112, 144, 160
    S_, OA = 176, 188
    WACC, LAND = 144, 216
    L_OT, L_PT = 0, 16384
    PSTR = 1168
    A("v_lshlrev_b32 %s, 2, %s" % (v(vL4), v(vLane)))
    A("v_lshrrev_b32 %s, 1, %s" % (v(vTmp), v(vG)))
    A("v_lshlrev_b32 %s, 10, %s" % (v(vKM), v(vTmp)))
    A("v_and_b32 %s, 1, %s" % (v(vTmp), v(vX)))
    A("v_lshl_add_u32 %s, %s, 8, %s" % (v(vKM), v(vTmp), v(vKM)))
    A("v_lshl_add_u32 %s, %s, 6, %s" % (v(vKM), v(vC), v(vKM)))
    A("v_and_b32 %s, 1, %s" % (v(vTmp), v(vG)))
    A("v_lshl_add_u32 %s, %s, 5, %s" % (v(vKM), v(vTmp), v(vKM)))
    A("s_and_b32 %s, %s, 1" % (s(sT), s(sW)))
    A("s_lshl_b32 %s, %s, 13" % (s(sT + 1), s(sT)))
    A("s_lshr_b32 %s, %s, 1" % (s(sT + 2), s(sW)))
    A("s_lshl_b32 %s, %s, 12" % (s(sT + 3), s(sT + 2)))
    A("s_add_u32 %s, %s, %s" % (s(sT + 1), s(sT + 1), s(sT + 3)))
    A("v_add_u32 %s, %s, %s" % (v(vOwr), s(sT + 1), v(vL16)))
    A("v_and_b32 %s, 15, %s" % (v(17), v(vLane)))
    A("s_lshl_b32 %s, %s, 4" % (s(sT + 1), s(sT)))
    A("v_add_u32 %s, %s, %s" % (v(17), s(sT + 1), v(17)))
    A("v_lshlrev_b32 %s, 2, %s" % (v(18), v(vG)))
    A("v_sub_u32 %s, %s, %s" % (v(17), v(17), v(18)))
    sCM = sA0 + 6
    for i in range(8):
        A("v_cmp_le_i32 %s, %d, %s" % (s(sCM + 2 * i, 2), 16 * (i >> 2) + (i & 3), v(17)))
    A("v_mov_b32 %s, 0x%x" % (v(vNEG), f32bits(-1e9)))
    A("v_and_b32 %s, 15, %s" % (v(vTmp), v(vLane)))
    A("v_mul_u32_u24 %s, %d, %s" % (v(vTw), PSTR, v(vTmp)))
    A("v_lshl_add_u32 %s, %s, 3, %s" % (v(vTw), v(vG), v(vTw)))
    A("s_lshl_b32 %s, %s, 5" % (s(sT + 1), s(sW)))
    A("s_add_u32 %s, %s, %d" % (s(sT + 1), s(sT + 1), L_PT))
    A("v_add_u32 %s, %s, %s" % (v(vTw), s(sT + 1), v(vTw)))
    A("v_lshrrev_b32 %s, 3, %s" % (v(17), v(vLane)))
    A("v_and_b32 %s, 7, %s" % (v(18), v(vLane)))
    A("v_lshlrev_b32 %s, 4, %s" % (v(18), v(18)))
    A("s_lshl_b32 %s, %s, 3" % (s(sT + 1), s(sW)))
    A("v_add_u32 %s, %s, %s" % (v(17), s(sT + 1), v(17)))
    A("v_mul_u32_u24 %s, %d, %s" % (v(vTrd), PSTR, v(17)))
    A("v_add_u32 %s, %s, %s" % (v(vTrd), v(vTrd), v(18)))
    A("v_add_u32 %s, %d, %s" % (v(vTrd), L_PT, v(vTrd)))
    A("v_mul_u32_u24 %s, 18432, %s" % (v(vPst), v(17)))
    A("v_add_u32 %s, %s, %s" % (v(vPst), v(vPst), v(18)))
    A("s_mul_i32 %s, %s, 1152" % (s(sT + 1), s(sSl)))
    A("v_add_u32 %s, %s, %s" % (v(vPst), s(sT + 1), v(vPst)))
    sHead, sSH, sPAo, sRowo = sA0, sA0 + 1, sA0 + 2, sA0 + 3
    A("s_lshl_b32 %s, %s, 1" % (s(sHead), s(sSl)))
    A("s_lshr_b32 %s, %s, 1" % (s(sT), s(sW)))
    A("s_add_u32 %s, %s, %s" % (s(sHead), s(sHead), s(sT)))
    A("s_mov_b32 %s, %s" % (s(sSeg), s(sRep)))
    A("s_lshl_b32 %s, %s, 8" % (s(sT), s(sHead)))
    A("s_add_u32 %s, %s, %d" % (s(sT), s(sT), FL_KV))
    wait_flags(A, vL4, s(sT))
    A("s_lshl_b32 %s, %s, 5" % (s(sSH), s(sSeg)))
    A("s_add_u32 %s, %s, %s" % (s(sSH), s(sSH), s(sHead)))
    def prefetch():
        A("s_lshl_b32 %s, %s, 13" % (s(sT), s(sSH)))
        A("s_and_b32 %s, %s, 1" % (s(sT + 1), s(sW)))
        A("s_lshl_b32 %s, %s, 12" % (s(sT + 1), s(sT + 1)))
        A("s_add_u32 %s, %s, %s" % (s(sT), s(sT), s(sT + 1)))
        A("s_add_u32 %s, %s, %d" % (s(sT), s(sT), WS_Q))
        for i in range(4):
            A("buffer_load_dwordx4 %s, %s, %s, %s offen offset:%d sc1" % (v(QF + 4 * i, 4), v(vL16), s(sWS, 4), s(sT), 1024 * i))
        A("s_lshl_b32 %s, %s, 14" % (s(sT), s(sSH)))
        if WS_KV:
            A("s_add_u32 %s, %s, %d" % (s(sT), s(sT), WS_KV))
        for b in range(4):
            for i in range(4):
                A("buffer_load_dwordx4 %s, %s, %s, %s offen offset:%d sc1" % (v(KX + 16 * b + 4 * i, 4), v(vL16), s(sWS, 4), s(sT), 1024 * i))
            if b < 3:
                A("s_add_u32 %s, %s, 4096" % (s(sT), s(sT)))
    A("s_add_u32 %s, %s, 60" % (s(sT), s(sRep)))
    A("s_mul_i32 %s, %s, %d" % (s(sT), s(sT), PA_SEG))
    A("s_add_u32 %s, %s, %d" % (s(sT), s(sT), WS_PA))
    A("v_mov_b64 %s, -1" % v(20, 2))
    A("v_mov_b64 %s, -1" % v(22, 2))
    for G in range(9):
        A("buffer_store_dwordx4 %s, %s, %s, %s offen offset:%d sc1" % (v(20, 4), v(vPst), s(sWS, 4), s(sT), 128 * G))
    PFL = ([int(o[4:]) for o in opt if o.startswith("pfl=")] + [32])[0]
    lpf = A.new("apf")
    A.label(lpf)
    prefetch()
    ltop = A.new("atop")
    A.label(ltop)
    T1, T2, T0 = S_, S_ + 4, S_ + 8
    sv = [S_ + i for i in range(10)]
    m1, m2 = 17, 18
    def prep_scores(vals):
        for i in range(0, len(vals), 2):
            rnd2(A, vals[i], vals[i + 1])
        for x in vals:
            A("v_mul_f32 %s, 0x%x, %s" % (v(x), f32bits(128 ** -0.5), v(x)))
        for i in range(0, len(vals), 2):
            rnd2(A, vals[i], vals[i + 1])
    A("s_waitcnt vmcnt(0)")
    for ks in range(4):
        MF(A, v(T1, 4), v(KX + 4 * ks, 4), v(QF + 4 * ks, 4), "0" if ks == 0 else v(T1, 4))
        MF(A, v(T2, 4), v(KX + 16 + 4 * ks, 4), v(QF + 4 * ks, 4), "0" if ks == 0 else v(T2, 4))
    for T in range(8):
        A("v_mov_b32 %s, 0" % v(VM + 2 * T + 1))
    A("s_lshl_b32 %s, %s, 12" % (s(sRowo), s(sSH)))
    A("s_add_u32 %s, %s, %d" % (s(sRowo), s(sRowo), WS_KM))
    prep_scores(sv[:8])
    for i in range(8):
        A("v_cndmask_b32 %s, %s, %s, %s" % (v(sv[i]), v(vNEG), v(sv[i]), s(sCM + 2 * i, 2)))
    A("v_max3_f32 %s, %s, %s, %s" % (v(m1), v(sv[0]), v(sv[1]), v(sv[2])))
    for i in (3, 5):
        A("v_max3_f32 %s, %s, %s, %s" % (v(m1), v(m1), v(sv[i]), v(sv[i + 1])))
    A("v_max_f32 %s, %s, %s" % (v(m1), v(m1), v(sv[7])))
    lc, lf, lok = A.new("can"), A.new("full"), A.new("pubok")
    A("s_cmp_ge_u32 %s, %d" % (s(sSeg), ([int(o[4:]) for o in opt if o.startswith("can=")] + [56])[0]))
    A("s_cbranch_scc1 %s" % lc)
    A("s_lshl_b32 %s, %s, 7" % (s(sT), s(sSH)))
    A("s_add_u32 %s, %s, %d" % (s(sT), s(sT), FL_PUB))
    wait_flags(A, None, s(sT))
    A("s_branch %s" % lf)
    A.label(lc)
    A("buffer_load_dword %s, off, %s, %s offset:4092 sc1" % (v(vTmp), s(sWS, 4), s(sRowo)))
    A("s_waitcnt vmcnt(0)")
    A("v_cmp_eq_u32 vcc, -1, %s" % v(vTmp))
    A("s_cbranch_vccz %s" % lf)
    A("s_sleep 1")
    A("s_sub_u32 %s, %s, 1" % (s(sBud), s(sBud)))
    A("s_cbranch_scc0 %s" % lc)
    A("s_mov_b32 %s, 0" % s(sBud))
    A.label(lf)
    ts(A)
    fs(A, 0)
    A.label(lf + "_r")
    for ks in range(4):
        A("buffer_load_dwordx4 %s, %s, %s, %s offen offset:%d sc1" % (v(KM + 4 * ks, 4), v(vKM), s(sWS, 4), s(sRowo), (ks >> 1) * 2048 + (ks & 1) * 16))
    for T in range(8):
        A("buffer_load_dword %s, %s, %s, %s offen offset:%d sc1" % (v(VM + 2 * T), v(vL4), s(sWS, 4), s(sRowo), (T >> 1) * 1024 + 512 + (T & 1) * 256))
    A("s_waitcnt vmcnt(8)")
    fs(A, 1)
    for ks in range(4):
        MF(A, v(T0, 4), v(KM + 4 * ks, 4), v(QF + 4 * ks, 4), "0" if ks == 0 else v(T0, 4))
        for h in range(2):
            r = KM + 4 * ks + 2 * h
            if ks == 0 and h == 0:
                A("v_max_u32 %s, %s, %s" % (v(vTmp), v(r), v(r + 1)))
            else:
                A("v_max3_u32 %s, %s, %s, %s" % (v(vTmp), v(vTmp), v(r), v(r + 1)))
    A("s_waitcnt vmcnt(0)")
    for T in range(0, 8, 2):
        A("v_max3_u32 %s, %s, %s, %s" % (v(vTmp), v(vTmp), v(VM + 2 * T), v(VM + 2 * T + 2)))
    A("v_cmp_eq_u32 vcc, -1, %s" % v(vTmp))
    A("s_cbranch_vccz %s" % lok)
    A("s_sub_u32 %s, %s, 1" % (s(sBud), s(sBud)))
    A("s_cbranch_scc0 %s_r" % lf)
    A("s_mov_b32 %s, 0" % s(sBud))
    A.label(lok)
    prep_scores(sv[8:])
    A("v_max3_f32 %s, %s, %s, %s" % (v(m1), v(m1), v(sv[8]), v(sv[9])))
    def xl(op):
        for sw in ("v_permlane32_swap_b32", "v_permlane16_swap_b32"):
            A("v_mov_b32 %s, %s" % (v(m2), v(m1)))
            A("s_nop 1")
            A("%s %s, %s" % (sw, v(m1), v(m2)))
            A("%s %s, %s, %s" % (op, v(m1), v(m1), v(m2)))
    xl("v_max_f32")
    for x in sv:
        A("v_sub_f32 %s, %s, %s" % (v(x), v(x), v(m1)))
    for x in sv:
        A("v_mul_f32 %s, 0x%x, %s" % (v(x), f32bits(math.log2(math.e)), v(x)))
    for x in sv:
        A("v_exp_f32 %s, %s" % (v(x), v(x)))
    A("v_add_f32 %s, %s, %s" % (v(m1), v(sv[0]), v(sv[1])))
    for x in sv[2:]:
        A("v_add_f32 %s, %s, %s" % (v(m1), v(m1), v(x)))
    xl("v_add_f32")
    A("v_rcp_f32 %s, %s" % (v(m1), v(m1)))
    A("s_nop 0")
    for x in sv:
        A("v_mul_f32 %s, %s, %s" % (v(x), v(x), v(m1)))
    for i in range(4):
        A("v_cvt_pk_bf16_f32 %s, %s, %s" % (v(S_ + i), v(sv[2 * i]), v(sv[2 * i + 1])))
    A("v_cvt_pk_bf16_f32 %s, %s, %s" % (v(T0), v(T0), v(T0 + 1)))
    A("v_mov_b32 %s, 0" % v(T0 + 1))
    A("s_nop 1")
    A.lds = []
    def opack(c):
        b = OA + 8 * c
        for i in range(4):
            A("v_cvt_pk_bf16_f32 %s, %s, %s" % (v(b + i), v(b + 2 * i), v(b + 2 * i + 1)))
        A.ds("ds_write_b128 %s, %s offset:%d" % (v(vOwr), v(b, 4), L_OT + 1024 * c))
    for c in range(4):
        for T in (2 * c, 2 * c + 1):
            MF(A, v(OA + 4 * T, 4), v(VX + 4 * T, 4), v(S_, 4), "0")
        for T in (2 * c, 2 * c + 1):
            A("v_mfma_f32_16x16x16_bf16 %s, %s, %s, %s" % (v(OA + 4 * T, 4), v(VM + 2 * T, 2), v(T0, 2), v(OA + 4 * T, 4)))
        if c >= 2:
            opack(c - 2)
    opack(2)
    opack(3)
    fs(A, 2)
    A("s_mul_i32 %s, %s, %d" % (s(sPAo), s(sSeg), PA_SEG))
    A("s_add_u32 %s, %s, %d" % (s(sPAo), s(sPAo), WS_PA))
    A.wait_ds()
    A("s_barrier")
    fs(A, 3)
    OFR, WA, TB = 144, 20, 44
    for n in range(16):
        A.ds("ds_read_b128 %s, %s offset:%d" % (v(OFR + 4 * n, 4), v(vL16), L_OT + (n & 1) * 8192 + (n >> 1) * 1024), ('o', n))
    lnp = A.new("nopf")
    A("s_add_u32 %s, %s, 128" % (s(sSH), s(sSH)))
    def epi(G, tt):
        b = WA + 8 * (G % 3) + 4 * tt
        A("v_cvt_pk_bf16_f32 %s, %s, %s" % (v(b), v(b), v(b + 1)))
        A("v_cvt_pk_bf16_f32 %s, %s, %s" % (v(b + 1), v(b + 2), v(b + 3)))
    def epw(G, tt):
        A.ds("ds_write_b64 %s, %s offset:%d" % (v(vTw), v(WA + 8 * (G % 3) + 4 * tt, 2), tt * 16 * PSTR + 128 * G), ('w', G))
    def lrd(G):
        A.ds("ds_read_b128 %s, %s offset:%d" % (v(TB + 4 * (G & 1), 4), v(vTrd), 128 * G), ('t', G))
    def lst(G):
        A.wait_ds(('t', G))
        A("buffer_store_dwordx4 %s, %s, %s, %s offen offset:%d sc1" % (v(TB + 4 * (G & 1), 4), v(vPst), s(sWS, 4), s(sPAo), 128 * G))
    for G in range(9):
        for n in range(16):
            K, tt = n >> 1, n & 1
            if G == 0:
                A.wait_ds(('o', n))
            d = v(WA + 8 * (G % 3) + 4 * tt, 4)
            MF(A, d, R(wo(G, K), 4), v(OFR + 4 * n, 4), "0" if K == 0 else d)
            if G >= 1:
                if n == 5 and G >= 2:
                    lst(G - 2)
                if n == 7:
                    epi(G - 1, 0)
                if n == 8:
                    epw(G - 1, 0)
                    epi(G - 1, 1)
                if n == 9:
                    epw(G - 1, 1)
                if n == 15:
                    A.wait_ds(('w', G - 1))
                    A("s_barrier")
                    lrd(G - 1)
        if G == 0:
            A("s_cmp_ge_u32 %s, %d" % (s(sSeg), PFL))
            A("s_cbranch_scc1 %s" % lnp)
            prefetch()
            A.label(lnp)
    fs(A, 4)
    A("s_nop 3")
    epi(8, 0)
    epi(8, 1)
    epw(8, 0)
    epw(8, 1)
    lst(7)
    A.wait_ds()
    A("s_barrier")
    lrd(8)
    lst(8)
    fs(A, 6)
    A("s_waitcnt vmcnt(0)")
    A("s_barrier")
    fs(A, 7)
    A("s_lshl_b32 %s, %s, 8" % (s(sT), s(sSeg)))
    A("s_add_u32 %s, %s, %d" % (s(sT), s(sT), FL_PA))
    arrive(A, s(sT), 16)
    fs(A, 8)
    ts(A)
    A("s_add_u32 %s, %s, 4" % (s(sSeg), s(sSeg)))
    A("s_cmp_lt_u32 %s, %d" % (s(sSeg), PFL + 4))
    A("s_cbranch_scc1 %s" % ltop)
    A("s_cmp_lt_u32 %s, 64" % s(sSeg))
    A("s_cbranch_scc1 %s" % lpf)
    ts_dump(A, 1)

def emit_roleB(A, vRow, vRow2, sValid, opt):
    A.c("=========== role B: reduce + residual + LN2, one row per wave ===========")
    TS['reg'] = 19
    GA, SB, CB = 20, 32, 44
    SEL0, SEL1 = 56, 60
    vPld = 15
    load_mod(A, GA, 2, vRow, vRow2, 17, 18)
    load_mod(A, SB, 3, vRow, vRow2, 17, 18)
    load_mod(A, CB, 4, vRow, vRow2, 17, 18)
    make_sel(A, SEL0, 0, vTmp)
    make_sel(A, SEL1, 1, vTmp)
    A("v_lshrrev_b32 %s, 3, %s" % (v(17), v(vLane)))
    A("v_and_b32 %s, 7, %s" % (v(18), v(vLane)))
    A("v_lshlrev_b32 %s, 4, %s" % (v(18), v(18)))
    A("v_mul_u32_u24 %s, 1152, %s" % (v(vPld), v(17)))
    A("v_add_u32 %s, %s, %s" % (v(vPld), v(vPld), v(18)))
    A("s_waitcnt vmcnt(0)")
    one_plus(A, CB)
    sRow, sRowo = sA0 + 5, sA0 + 3
    A("s_sub_u32 %s, %s, 64" % (s(sRow), s(sWid)))
    A("s_lshl_b32 %s, %s, 1" % (s(sRow), s(sRow)))
    A("s_and_b32 %s, %s, 1" % (s(sT), s(sW)))
    A("s_add_u32 %s, %s, %s" % (s(sRow), s(sRow), s(sT)))
    A("s_lshr_b32 %s, %s, 1" % (s(sSeg), s(sW)))
    A("v_and_b32 %s, 15, %s" % (v(vFl), v(vLane)))
    A("v_lshlrev_b32 %s, 2, %s" % (v(vFl), v(vFl)))
    for i in range(6):
        A("v_mov_b32 %s, -1" % v(64 + i))
    for k in range(2):
        A("s_add_u32 %s, %s, %d" % (s(sT), s(sSeg), 60 + 2 * k))
        A("s_lshl_b32 %s, %s, 5" % (s(sT), s(sT)))
        A("s_add_u32 %s, %s, %s" % (s(sT), s(sT), s(sRow)))
        A("s_mul_i32 %s, %s, 1152" % (s(sT), s(sT)))
        A("s_add_u32 %s, %s, %d" % (s(sT), s(sT), WS_H2))
        row_io(A, "store", 64, vRow, vRow2, sWS, s(sT), " sc1")
        A("s_add_u32 %s, %s, %d" % (s(sT), s(sT), WS_X1 - WS_H2))
        row_io(A, "store", 64, vRow, vRow2, sWS, s(sT), " sc1")
    A("v_and_b32 %s, 15, %s" % (v(vFl), v(vLane)))
    A("v_mul_u32_u24 %s, 1152, %s" % (v(vFl), v(vFl)))
    ltop = A.new("btop")
    A.label(ltop)
    A("s_lshl_b32 %s, %s, 5" % (s(sT), s(sSeg)))
    A("s_add_u32 %s, %s, %s" % (s(sA0 + 2), s(sT), s(sRow)))
    A("s_mul_i32 %s, %s, 1152" % (s(sRowo), s(sA0 + 2)))
    XR, RD, XF, DD = 216, 176, 196, 144
    row_io(A, "load", XR, vRow, vRow2, sXS, s(sRowo))
    A("s_lshl_b32 %s, %s, 8" % (s(sT), s(sSeg)))
    A("s_add_u32 %s, %s, %d" % (s(sT), s(sT), FL_PA))
    lcan, lgo, lre = A.new("bcan"), A.new("bgo"), A.new("bre")
    A("s_mul_i32 %s, %s, 18432" % (s(sA0), s(sA0 + 2)))
    A("s_add_u32 %s, %s, %d" % (s(sA0), s(sA0), WS_PA))
    A("s_add_u32 %s, %s, 9216" % (s(sA0 + 1), s(sA0)))
    A("s_cmp_ge_u32 %s, 60" % s(sSeg))
    A("s_cbranch_scc1 %s" % lcan)
    wait_ready(A, s(sT), 16)
    A("s_branch %s" % lgo)
    A.label(lcan)
    canary(A, s(sA0), imm=124 + 128 * ([int(o[4:]) for o in opt if o.startswith("bim=")] + [4])[0], voff=vFl)
    A.label(lgo)
    ts(A)
    A.label(lre)
    LD = 64
    A.vm = []
    for i in range(9):
        for h in range(2):
            A.vmem("buffer_load_dwordx4 %s, %s, %s, %s offen offset:%d sc1" % (v(LD + 8 * i + 4 * h, 4), v(vPld), s(sWS, 4), s(sA0 + h), 128 * i), ('p', i))
    for i in range(9):
        A.wait_vm(('p', i))
        d = v(RD + 4 * (i >> 1), 4)
        sel = v(SEL1 if i & 1 else SEL0, 4)
        MF(A, d, sel, v(LD + 8 * i, 4), "0" if not (i & 1) else d)
        maxchain(A, range(LD + 8 * i, LD + 8 * i + 4), i == 0)
        MF(A, d, sel, v(LD + 8 * i + 4, 4), d)
        maxchain(A, range(LD + 8 * i + 4, LD + 8 * i + 8), False)
    retry_if_sentinel(A, lre)
    for i in range(4):
        A("v_mov_b32 %s, 0" % v(XF + 8 + i))
    A("s_nop 3")
    for T in range(5):
        for jj in range(4):
            A("v_add_f32_dpp %s, %s, %s row_ror:8 row_mask:0xf bank_mask:0x%x" % (v(XF + 4 * (T >> 1) + jj), v(RD + 4 * T + jj), v(RD + 4 * T + jj), 0xc if T & 1 else 0x3))
    for i in range(0, 12, 2):
        rnd2(A, XF + i, XF + i + 1)
    for i in range(12):
        A("v_mul_f32 %s, %s, %s" % (v(XF + i), v(XF + i), v(GA + i)))
    for i in range(0, 12, 2):
        rnd2(A, XF + i, XF + i + 1)
    for i in range(6):
        unpack(A, DD, DD + 1, XR + i)
        A("v_add_f32 %s, %s, %s" % (v(XF + 2 * i), v(XF + 2 * i), v(DD)))
        A("v_add_f32 %s, %s, %s" % (v(XF + 2 * i + 1), v(XF + 2 * i + 1), v(DD + 1)))
        A("v_cvt_pk_bf16_f32 %s, %s, %s" % (v(XR + i), v(XF + 2 * i), v(XF + 2 * i + 1)))
        unpack(A, XF + 2 * i, XF + 2 * i + 1, XR + i)
    A("s_add_u32 %s, %s, %d" % (s(sT), s(sRowo), WS_X1))
    row_io(A, "store", XR, vRow, vRow2, sWS, s(sT), " sc1")
    ln_stats(A, XF, DD, sValid, 160, 161, 162)
    ln_apply(A, XF, 160, 161, CB, SB, 164)
    A("s_add_u32 %s, %s, %d" % (s(sT), s(sRowo), WS_H2))
    row_io(A, "store", 164, vRow, vRow2, sWS, s(sT), " sc1")
    A("s_waitcnt vmcnt(0)")
    A("s_lshl_b32 %s, %s, 8" % (s(sT), s(sSeg)))
    A("s_add_u32 %s, %s, %d" % (s(sT), s(sT), FL_H2))
    arrive(A, s(sT), 32, wave0_only=False)
    ts(A)
    A("s_add_u32 %s, %s, 2" % (s(sSeg), s(sSeg)))
    A("s_cmp_lt_u32 %s, 64" % s(sSeg))
    A("s_cbranch_scc1 %s" % ltop)
    ts_dump(A, 1)

def emit_roleC(A, xsetup, wide_chunks, opt):
    A.c("=========== role C: gate/up + down partial + output ===========")
    A("s_sub_u32 %s, %s, 80" % (s(sT), s(sWid)))
    A("s_lshr_b32 %s, %s, 2" % (s(sSl), s(sT)))
    A("s_and_b32 %s, %s, 3" % (s(sRep), s(sT)))
    build_srd(A, sW1, 64, 5308416)
    build_srd(A, sW2, 72, 5308416)
    build_srd(A, sW3, 80, 5308416)
    build_srd(A, sWO, 104, 2359296)
    vOffW, vTr, vAd, vOffD, vTrD = 9, 10, 11, 12, 13
    A("s_lshl_b32 %s, %s, 8" % (s(sT + 1), s(sSl)))
    wide_off(A, vOffW, vTmp, 9216, s(sT + 1))
    A("s_lshl_b32 %s, %s, 2" % (s(sT + 1), s(sW)))
    wide_tr(A, vTr, vTmp, s(sT + 1), 1)
    A("s_mul_i32 %s, %s, 147456" % (s(sT + 1), s(sSl)))
    tall_off(A, vOffD, vTmp, s(sT + 1))
    tall_tr(A, vTrD, 3)
    W0 = 80
    def wg(t, ks):
        return W0 + 4 * (4 * ks + t)
    def wd(G, ks):
        return W0 + 288 + 4 * (4 * G + ks)
    chunks = wide_chunks((sW1, sW2), 9216, wg, vOffW, vTr)
    for G in range(9):
        def consume(base, G=G):
            A("v_add_u32 %s, %d, %s" % (v(vAd), base, v(vTrD)))
            for ks in range(4):
                tr2(A, wd(G, ks), vAd, 32 * ks * 128, (32 * ks + 4) * 128)
        chunks.append((sW3, vOffD, [8 * j * 1152 + 128 * G for j in range(4)], consume))
    A.vm, A.lds = ['old'] * 2, []
    stage(A, chunks, depth=TS['d2'])
    vXo = 9
    sSrc, sM0x = sA0, sA0 + 1
    vXa = 7
    xsetup(vXa)
    vHw, vRl, vOo = 6, 2, 3
    LAND, ACC, PK = 10, 26, 62
    L_HH = 40960
    A("s_lshl_b32 %s, %s, 10" % (s(sT), s(sW)))
    A("s_add_u32 %s, %s, %d" % (s(sT), s(sT), L_HH))
    A("v_add_u32 %s, %s, %s" % (v(vHw), s(sT), v(vL16)))
    A("v_and_b32 %s, 15, %s" % (v(vTmp), v(vLane)))
    A("v_lshlrev_b32 %s, 4, %s" % (v(vTmp), v(vTmp)))
    A("v_lshl_add_u32 %s, %s, 10, %s" % (v(vRl), v(vG), v(vTmp)))
    A("s_lshl_b32 %s, %s, 8" % (s(sT), s(sW)))
    A("v_add_u32 %s, %s, %s" % (v(vRl), s(sT), v(vRl)))
    A("v_mul_u32_u24 %s, 1152, %s" % (v(vOo), v(vLane)))
    A("s_lshl_b32 %s, %s, 5" % (s(sT), s(sSl)))
    A("s_lshl_b32 %s, %s, 3" % (s(sT + 1), s(sW)))
    A("s_add_u32 %s, %s, %s" % (s(sT), s(sT), s(sT + 1)))
    A("v_add_u32 %s, %s, %s" % (v(vOo), s(sT), v(vOo)))
    A("v_mov_b32 %s, 0x%x" % (v(vTmp), OOB))
    A("v_cmp_gt_u32 vcc, 32, %s" % v(vLane))
    A("s_nop 1")
    A("v_cndmask_b32 %s, %s, %s, vcc" % (v(vOo), v(vTmp), v(vOo)))
    A("s_lshl_b32 %s, %s, 1" % (s(sT), s(sT)))
    A("s_add_u32 %s, %s, %d" % (s(sT), s(sT), WS_MOD + 5 * 2304))
    A("buffer_load_dwordx4 %s, off, %s, %s sc1" % (v(ACC, 4), s(sWS, 4), s(sT)))
    A("s_waitcnt vmcnt(0)")
    sGB = sA0 + 8
    for i in range(4):
        A("v_readfirstlane_b32 %s, %s" % (s(sGB + i), v(ACC + i)))
    A("s_mov_b32 %s, %s" % (s(sSeg), s(sRep)))
    sPCo, sFl = sA0 + 2, sA0 + 3
    TS['reg'] = 4
    sPrev = sA0 + 5
    CIM = ([int(o[4:]) for o in opt if o.startswith("cim=")] + [1024])[0]
    A("s_add_u32 %s, %s, 60" % (s(sT), s(sRep)))
    A("s_mul_i32 %s, %s, %d" % (s(sT), s(sT), PC_SEG))
    A("s_mul_i32 %s, %s, 36" % (s(sT + 1), s(sW)))
    A("s_add_u32 %s, %s, %s" % (s(sT + 1), s(sT + 1), s(sSl)))
    A("s_lshl_b32 %s, %s, 10" % (s(sT + 1), s(sT + 1)))
    A("s_add_u32 %s, %s, %s" % (s(sT), s(sT), s(sT + 1)))
    A("s_add_u32 %s, %s, %d" % (s(sT), s(sT), WS_PC))
    A("v_mov_b64 %s, -1" % v(ACC, 2))
    A("v_mov_b64 %s, -1" % v(ACC + 2, 2))
    for G in range(9):
        A("buffer_store_dwordx4 %s, %s, %s, %s offen sc1" % (v(ACC, 4), v(vL16), s(sWS, 4), s(sT)))
        A("s_add_u32 %s, %s, %d" % (s(sT), s(sT), 4 * 36 * 1024))
    def reduce_out(last=False):
        A("s_lshl_b32 %s, %s, 8" % (s(sFl), s(sPrev)))
        A("s_mul_i32 %s, %s, 36864" % (s(sA0 + 6), s(sPrev)))
        make_sel(A, LAND, 0, vTmp)
        if not last:
            A("s_add_u32 %s, %s, %d" % (s(sFl), s(sFl), FL_PC))
            wait_ready(A, s(sFl), 36)
        ts(A)
        lre = A.new("cre")
        A.label(lre)
        A("s_add_u32 %s, %s, %d" % (s(sT), s(sA0 + 6), WS_X1))
        A("buffer_load_dwordx2 %s, %s, %s, %s offen sc1" % (v(LAND + 8, 2), v(vOo), s(sWS, 4), s(sT)))
        A("s_mul_i32 %s, %s, %d" % (s(sT), s(sSl), 36 * 1024))
        A("s_add_u32 %s, %s, %s" % (s(sT), s(sT), s(sPCo)))
        A.vm = []
        for i in range(9):
            A.vmem("buffer_load_dwordx4 %s, %s, %s, %s offen sc1" % (v(ACC + 4 * i, 4), v(vRl), s(sWS, 4), s(sT)), ('p', i))
            if i < 8:
                A("s_add_u32 %s, %s, 4096" % (s(sT), s(sT)))
        D = LAND + 4
        for i in range(9):
            A.wait_vm(('p', i))
            MF(A, v(D, 4), v(LAND, 4), v(ACC + 4 * i, 4), "0" if i == 0 else v(D, 4))
            if last:
                maxchain(A, range(ACC + 4 * i, ACC + 4 * i + 4), i == 0)
        if last:
            maxchain(A, (LAND + 8, LAND + 9), False)
            retry_if_sentinel(A, lre)
    def reduce_fin():
        D = LAND + 4
        unpack(A, LAND + 10, LAND + 11, LAND + 8)
        unpack(A, LAND + 12, LAND + 13, LAND + 9)
        A("s_nop 3")
        rnd2(A, D, D + 1)
        rnd2(A, D + 2, D + 3)
        for i in range(4):
            A("v_mul_f32 %s, %s, %s" % (v(D + i), s(sGB + i), v(D + i)))
        rnd2(A, D, D + 1)
        rnd2(A, D + 2, D + 3)
        for i in range(4):
            A("v_add_f32 %s, %s, %s" % (v(D + i), v(D + i), v(LAND + 10 + i)))
        pert = [float(o[5:]) for o in opt if o.startswith("pert=")]
        if pert:
            lpp = A.new("pert")
            A("s_or_b32 %s, %s, %s" % (s(sT), s(sSl), s(sPrev)))
            A("s_or_b32 %s, %s, %s" % (s(sT), s(sT), s(sW)))
            A("s_cmp_lg_u32 %s, 0" % s(sT))
            A("s_cbranch_scc1 %s" % lpp)
            A("s_mov_b64 exec, 1")
            A("v_add_f32 %s, 0x%x, %s" % (v(D), f32bits(pert[0]), v(D)))
            A("s_mov_b64 exec, -1")
            A.label(lpp)
        A("v_cvt_pk_bf16_f32 %s, %s, %s" % (v(D), v(D), v(D + 1)))
        A("v_cvt_pk_bf16_f32 %s, %s, %s" % (v(D + 1), v(D + 2), v(D + 3)))
        A("buffer_store_dwordx2 %s, %s, %s, %s offen%s" % (v(D, 2), v(vOo), s(sWO, 4), s(sA0 + 6), " sc1" if "outsc1" in opt else " nt" if "outnt" in opt else ""))
        ts(A)
    ltop, lfirst = A.new("ctop"), A.new("cfirst")
    def h2wait():
        A("s_lshl_b32 %s, %s, 8" % (s(sT), s(sSeg)))
        A("s_add_u32 %s, %s, %d" % (s(sT), s(sT), FL_H2))
        A("s_mul_i32 %s, %s, 36864" % (s(sSrc), s(sSeg)))
        A("s_add_u32 %s, %s, %d" % (s(sSrc), s(sSrc), WS_H2))
        lcan, lj, lre = A.new("ccan"), A.new("cj"), A.new("cxre")
        A("s_cmp_ge_u32 %s, 60" % s(sSeg))
        A("s_cbranch_scc1 %s" % lcan)
        wait_ready(A, s(sT), 32)
        ts(A)
        fs(A, 0)
        x_dma(A, vXo, sSrc, sM0x)
        A("s_branch %s" % lj)
        A.label(lcan)
        lnow = A.new("cnow")
        A("buffer_load_dword %s, %s, %s, %s offen offset:1024 sc1" % (v(vTmp), v(vXo), s(sWS, 4), s(sSrc)))
        A("s_waitcnt vmcnt(0)")
        A("v_cmp_eq_u32 vcc, -1, %s" % v(vTmp))
        A("s_cbranch_vccz %s" % lnow)
        reduce_out()
        reduce_fin()
        A("s_mov_b32 %s, -1" % s(sPrev))
        A.label(lnow)
        canary(A, s(sSrc), imm=CIM, voff=vXo)
        ts(A)
        fs(A, 0)
        A.label(lre)
        for i in range(9):
            A("buffer_load_dwordx4 %s, %s, %s, %s offen offset:%d sc1" % (v(ACC + 4 * i, 4), v(vXo), s(sWS, 4), s(sSrc), 128 * i))
        A("v_add_u32 %s, %s, %s" % (v(LAND), s(sM0x), v(vL16)))
        for i in range(9):
            A("s_waitcnt vmcnt(%d)" % (8 - i))
            A("ds_write_b128 %s, %s offset:%d" % (v(LAND), v(ACC + 4 * i, 4), 1024 * i))
            maxchain(A, range(ACC + 4 * i, ACC + 4 * i + 4), i == 0)
        retry_if_sentinel(A, lre)
        A("s_waitcnt lgkmcnt(0)")
        A.label(lj)
    A.label(ltop)
    h2wait()
    fs(A, 1)
    A("s_waitcnt vmcnt(0)")
    A("s_barrier")
    fs(A, 2)
    A.lds = []
    GAC = [ACC, ACC + 16]
    HP = ACC + 32
    fill = []
    def F(n):
        for _ in range(n):
            if fill:
                fill.pop(0)()
    def gu_epi(tt):
        for t in range(2):
            g_, u_ = GAC[tt] + 4 * t, GAC[tt] + 8 + 4 * t
            for jj in range(4):
                fill.append(lambda a=g_ + jj, b=u_ + jj: A("v_cvt_pk_bf16_f32 %s, %s, %s" % (v(b), v(a), v(b))))
                fill.append(lambda a=g_ + jj, b=u_ + jj: A("v_lshlrev_b32 %s, 16, %s" % (v(a), v(b))))
                fill.append(lambda b=u_ + jj: A("v_and_b32 %s, 0xffff0000, %s" % (v(b), v(b))))
                fill.append(lambda a=g_ + jj, b=u_ + jj: A("v_mul_f32 %s, %s, %s" % (v(a), v(a), v(b))))
            fill.append(lambda t=t, g_=g_: A("v_cvt_pk_bf16_f32 %s, %s, %s" % (v(HP + 2 * t), v(g_), v(g_ + 1))))
            fill.append(lambda t=t, g_=g_: A("v_cvt_pk_bf16_f32 %s, %s, %s" % (v(HP + 2 * t + 1), v(g_ + 2), v(g_ + 3))))
        fill.append(lambda: A.ds("ds_write_b128 %s, %s offset:%d" % (v(vHw), v(HP, 4), 4096 * tt), ('hw', tt)))
    def xrd(n):
        tt, ks = n // 18, n % 18
        A.ds("ds_read_b128 %s, %s offset:%d" % (v(LAND + 4 * (n % 4), 4), v(vXa + (ks & 1)), 18432 * tt + (ks >> 1) * 1024), ('x', n))
    def hrd(tt, ks):
        A.ds("ds_read_b128 %s, %s offset:%d" % (v(LAND + 4 * ks, 4), v(vL16), L_HH + 4096 * tt + 1024 * ks), ('h', tt, ks))
    for n in range(3):
        xrd(n)
    for n in range(36):
        tt, ks = n // 18, n % 18
        A.wait_ds(('x', n))
        for t in range(4):
            d = v(GAC[tt] + 4 * t, 4)
            MF(A, d, R(wg(t, ks), 4), v(LAND + 4 * (n % 4), 4), "0" if ks == 0 else d)
            if t == 0 and n + 3 < 36:
                xrd(n + 3)
            elif t == 0:
                hrd(0, n - 33)
            else:
                F(2)
        if n == 19:
            gu_epi(0)
        if n == 31:
            assert not fill
            A.wait_ds(('hw', 0))
            A("s_barrier")
    fs(A, 3)
    hrd(0, 3)
    A("s_mul_i32 %s, %s, %d" % (s(sA0 + 4), s(sSeg), PC_SEG))
    A("s_add_u32 %s, %s, %d" % (s(sA0 + 4), s(sA0 + 4), WS_PC))
    A("s_mul_i32 %s, %s, 36" % (s(sT), s(sW)))
    A("s_add_u32 %s, %s, %s" % (s(sT), s(sT), s(sSl)))
    A("s_lshl_b32 %s, %s, 10" % (s(sT), s(sT)))
    A("s_add_u32 %s, %s, %s" % (s(sT), s(sT), s(sA0 + 4)))
    DA = lambda G: ACC + 4 * (G % 4)
    def dn_epi(tt, G):
        b = DA(G + 9 * tt)
        if tt == 0:
            fill.append(lambda: A("v_cvt_pk_bf16_f32 %s, %s, %s" % (v(PK + 2 * G), v(b), v(b + 1))))
            fill.append(lambda: A("v_cvt_pk_bf16_f32 %s, %s, %s" % (v(PK + 2 * G + 1), v(b + 2), v(b + 3))))
        else:
            fill.append(lambda: A("v_cvt_pk_bf16_f32 %s, %s, %s" % (v(b + 3), v(b + 2), v(b + 3))))
            fill.append(lambda: A("v_cvt_pk_bf16_f32 %s, %s, %s" % (v(b + 2), v(b), v(b + 1))))
            fill.append(lambda: A("v_mov_b64 %s, %s" % (v(b, 2), v(PK + 2 * G, 2))))
            fill.append(lambda: A("buffer_store_dwordx4 %s, %s, %s, %s offen sc1" % (v(b, 4), v(vL16), s(sWS, 4), s(sT))))
            fill.append(lambda: A("s_add_u32 %s, %s, %d" % (s(sT), s(sT), 4 * 36 * 1024)))
    H1 = GAC[1]
    gu_epi(1)
    gl = list(fill)
    del fill[:]
    for N in range(18):
        tt, G = N // 9, N % 9
        if N >= 2:
            dn_epi((N - 2) // 9, (N - 2) % 9)
            pend = list(fill)
            del fill[:]
        else:
            pend = []
        for ks in range(4):
            if G == 0:
                A.wait_ds(('h', tt, ks))
            d = v(DA(N), 4)
            MF(A, d, R(wd(G, ks), 4), v((LAND if tt == 0 else H1) + 4 * ks, 4), "0" if ks == 0 else d)
            k = 0
            if ks >= 1 or len(pend) > 4:
                while pend and k < 2:
                    pend.pop(0)()
                    k += 1
            while gl and k < 2:
                gl.pop(0)()
                k += 1
            while k < 1:
                A("s_nop 0")
                k += 1
        assert not pend
        if N == 6:
            assert not gl
            A.wait_ds(('hw', 1))
            A("s_barrier")
            for ks in range(4):
                A.ds("ds_read_b128 %s, %s offset:%d" % (v(H1 + 4 * ks, 4), v(vL16), L_HH + 4096 + 1024 * ks), ('h', 1, ks))
    dn_epi(1, 7)
    F(len(fill))
    A("s_nop 1")
    dn_epi(1, 8)
    F(len(fill))
    fs(A, 5)
    llast = A.new("clast")
    A("s_cmp_ge_u32 %s, 60" % s(sSeg))
    A("s_cbranch_scc1 %s" % llast)
    A("s_waitcnt vmcnt(0)")
    A("s_barrier")
    fs(A, 6)
    A("s_lshl_b32 %s, %s, 8" % (s(sT), s(sSeg)))
    A("s_add_u32 %s, %s, %d" % (s(sT), s(sT), FL_PC))
    arrive(A, s(sT), 36)
    fs(A, 7)
    ts(A)
    A("s_cmp_lt_u32 %s, 4" % s(sSeg))
    A("s_cbranch_scc1 %s" % lfirst)
    reduce_out()
    reduce_fin()
    A.label(lfirst)
    A("s_mov_b32 %s, %s" % (s(sPrev), s(sSeg)))
    A("s_mov_b32 %s, %s" % (s(sPCo), s(sA0 + 4)))
    A("s_add_u32 %s, %s, 4" % (s(sSeg), s(sSeg)))
    A("s_branch %s" % ltop)
    A.label(llast)
    ts(A)
    ldn = A.new("cdn")
    A("s_cmp_eq_u32 %s, -1" % s(sPrev))
    A("s_cbranch_scc1 %s" % ldn)
    reduce_out()
    reduce_fin()
    A.label(ldn)
    A("s_mov_b32 %s, %s" % (s(sPrev), s(sSeg)))
    A("s_mov_b32 %s, %s" % (s(sPCo), s(sA0 + 4)))
    reduce_out(last=True)
    reduce_fin()
    if "dbgout" in opt:
        A("s_memrealtime s[96:97]")
        A("s_waitcnt lgkmcnt(0)")
        A("s_mov_b64 exec, 1")
        A("v_mov_b32 %s, s96" % v(vTmp))
        A("buffer_atomic_umax %s, off, %s, 0 offset:24" % (v(vTmp), s(sDBG, 4)))
    ts_dump(A, 1)
```

```python
from asmlib import *
from layout import *
import struct, math

L_MEM, L_KX, L_F, L_O, L_SCR, L_W = 0, 9216, 17408, 21632, 23680, 24576
FSTR = 1056
L_FLAG = L_F + 1024
L_WSTRIDE = 34816
vL16, vIdx, vWL, vFw, vOw, vPst, vRst, vSelV, vT0, vT1, vT2, vTmp = range(12)
VACC, QK, RING, LND = 12, 20, 36, 48
WREG0 = 72
KVSTEP = 32 * 16384
NSPILL = 17
sWS, sWQ, sWK, sWV, sWO, sM0, sDBG = 4, 8, 12, 16, 20, 24, 28
sCU, sW, sWC, sUnit, sStep, sBud = 32, 33, 34, 35, 36, 37
sP0, sP1, sP2, sRd, sX0, sX1, sX2, sKV, sKM, sPh, sWF, sC, sVX, sKXm = range(38, 52)
sL2a, sKVv, sKVt = 96, 97, 98
sPt = 8
sTagM = 100
sOex = 26
sFlg, sFlgN, sOne, sKF, sRdy, sRdE = 17, 18, 20, 19, 22, 24
sSel = 52
sT = 60
sStamp = 64

def f32bits(x):
    return struct.unpack("<I", struct.pack("<f", x))[0]

WO_ORDER = [0, 1, 2, 3, 4, 5, 6, 7, 8]
QK_CHAIN = [[('qk', 0, 1), ('qk', 2, 0), ('qk', 4, 0), ('qk', 6, 0), ('qk', 7, 3)],
            [('qk', 0, 2), ('qk', 2, 1), ('qk', 4, 1), ('qk', 6, 1)],
            [('qk', 0, 0), ('v', 5, 1)]]
def GOF(j, w):
    if j == 8:
        return 8
    o = 2 * (1 - (w >> 1))
    return (j & 4) + (w, w ^ 1, o, o + 1)[j & 3]
WO_CHAIN = [[('o', 0), ('o', 8), ('o', 16)], [('o', 1), ('o', 9), ('o', 17)]]
L2KEY = ('v', 5, 1)
def placement():
    spill, regs, slot, nxt = {}, {}, {}, {}
    nonreg = []
    for chains in (QK_CHAIN, WO_CHAIN):
        for si, ch in enumerate(chains):
            for i, k in enumerate(ch):
                slot[k] = si
                nxt[k] = ch[i + 1] if i + 1 < len(ch) else None
                if k != L2KEY:
                    nonreg.append(k)
    nonreg.append(L2KEY)
    assert len(nonreg) == NSPILL
    for i, k in enumerate(nonreg):
        spill[k] = i
    allk = [('qk', j, t) for j in range(9) for t in range(4)] + [('v', j, t) for j in range(9) for t in range(2)] + \
           [('o', n) for n in range(18)]
    r = WREG0
    for k in allk:
        if k not in spill:
            regs[k] = r
            r += 8
    assert r == 512, r
    return spill, regs, slot, nxt
SPILL, WREGS, SLOT, NXT = placement()

def emit_team(A, stamps=False, nsteps=64, sc="", hooks=None, opt=()):
    nst = [0]
    def stamp(fine=False):
        if stamps and fine != ("fine" in opt):
            return
        if stamps:
            if "rt" in opt and nst[0] in (2, 4):
                pass
            else:
                A("%s %s" % ("s_memrealtime" if "rt" in opt else "s_memtime", s(sStamp + 2 * nst[0], 2)))
            nst[0] += 1
    SC = " sc1"
    lane = 71
    t1, t2, t3, t4, t5, t6 = 64, 65, 66, 67, 68, 69
    vOffW, vOffO, vTrQK, vTrV, vTrO, vAd, vTr8, vAd2 = 56, 57, 58, 59, 60, 61, 62, 63
    vColQK, vColV = 54, 55
    A.c("=========== team setup ===========")
    if "tt" in opt:
        A("s_memtime s[90:91]")
        A("s_memrealtime s[64:65]")
        A("s_mov_b32 s87, 0")
        A("s_mov_b32 s88, 0")
        A("s_mov_b32 s89, 0")
    A("v_mov_b32 %s, v0" % v(lane))
    A("v_lshrrev_b32 %s, 4, %s" % (v(t2), v(lane)))
    A("v_lshlrev_b32 %s, 2, %s" % (v(t1), v(t2)))
    A("v_sub_u32 %s, %s, %s" % (v(t1), v(lane), v(t1)))
    A("v_and_b32 %s, 15, %s" % (v(t1), v(t1)))
    A("v_lshlrev_b32 %s, 4, %s" % (v(t1), v(t1)))
    A("v_lshl_add_u32 %s, %s, 13, %s" % (v(vOffW), v(t2), v(t1)))
    A("s_lshl_b32 %s, %s, 8" % (s(sT + 2), s(sCU)))
    A("s_lshl_b32 %s, %s, 17" % (s(sT + 3), s(sW)))
    A("s_add_u32 %s, %s, %s" % (s(sT + 2), s(sT + 2), s(sT + 3)))
    A("v_add_u32 %s, %s, %s" % (v(vOffW), s(sT + 2), v(vOffW)))
    A("v_lshrrev_b32 %s, 3, %s" % (v(t1), v(lane)))
    A("v_mul_u32_u24 %s, 1152, %s" % (v(vOffO), v(t1)))
    A("v_and_b32 %s, 7, %s" % (v(t1), v(lane)))
    A("v_lshl_add_u32 %s, %s, 4, %s" % (v(vOffO), v(t1), v(vOffO)))
    A("s_mul_i32 %s, %s, 147456" % (s(sT + 2), s(sCU)))
    A("s_mul_i32 %s, %s, %d" % (s(sT + 3), s(sW), 32 * 1152))
    A("s_add_u32 %s, %s, %s" % (s(sT + 2), s(sT + 2), s(sT + 3)))
    A("v_add_u32 %s, %s, %s" % (v(vOffO), s(sT + 2), v(vOffO)))
    sLW = 99
    RING0 = L_W + 14336
    A("s_mul_i32 %s, %s, %d" % (s(sLW), s(sW), L_WSTRIDE))
    wide = [(m, G) for G in range(9) for m in range(2)] + [(2, G) for G in (4, 5, 6, 7, 8, 0, 1, 2, 3)]
    chunks = []
    for i, x in enumerate(wide):
        chunks.append(x)
        if i % 5 in (1, 3) and len(chunks) - i - 1 < 9:
            chunks.append((3, len(chunks) - i - 1))
    assert len(chunks) == 36 and chunks[-3:] == [(2, 1), (2, 2), (2, 3)] and all(m != 3 for m, G in chunks[31:])
    VLAST = (1, 2, 3)
    NSLOT = 5
    NT = " nt" if "nt" in opt else ""
    TD = ([int(o[3:]) for o in opt if o.startswith("td=")] + [0])[0]
    vTch = 67
    if TD:
        A("v_bfe_u32 %s, %s, 1, 4" % (v(t1), v(lane)))
        A("v_lshlrev_b32 %s, 13, %s" % (v(53), v(t1)))
        A("v_and_b32 %s, 1, %s" % (v(t1), v(lane)))
        A("v_lshl_add_u32 %s, %s, 7, %s" % (v(53), v(t1), v(53)))
        A("s_lshl_b32 %s, %s, 8" % (s(sT + 2), s(sCU)))
        A("s_lshl_b32 %s, %s, 17" % (s(sT + 3), s(sW)))
        A("s_add_u32 %s, %s, %s" % (s(sT + 2), s(sT + 2), s(sT + 3)))
        A("v_add_u32 %s, %s, %s" % (v(11), s(sT + 2), v(53)))
    def touch_chunk(c):
        if not TD or c >= 36 or chunks[c][0] == 3:
            return
        m, G = chunks[c]
        A("s_mov_b32 %s, %d" % (s(sT + 2), 64 * G * 8192))
        A.vmem("buffer_load_dword %s, %s, %s, %s offen" % (v(71), v(11), s((sWQ, sWK, sWV)[m], 4), s(sT + 2)), 't')
    def issue_chunk(c):
        _issue(c)
        if c >= NSLOT - 1:
            if c == NSLOT - 1:
                for k in range(1, TD):
                    touch_chunk(c + k)
            touch_chunk(c + TD)
    def _issue(c):
        m, G = chunks[c]
        slot = c % NSLOT
        for j in range(4):
            A("s_add_u32 m0, %s, %d" % (s(sLW), RING0 + slot * 4096 + j * 1024))
            if m < 3:
                A("s_mov_b32 %s, %d" % (s(sT + 2), (64 * G + 4 * j) * 8192))
                A.vmem("buffer_load_dwordx4 %s, %s, %s offen%s lds" % (v(vOffW), s((sWQ, sWK, sWV)[m], 4), s(sT + 2), NT), ('c', c))
            else:
                A("s_mov_b32 %s, %d" % (s(sT + 2), 8 * j * 1152 + 128 * G))
                A.vmem("buffer_load_dwordx4 %s, %s, %s offen%s lds" % (v(vOffO), s(sWO, 4), s(sT + 2), NT), ('c', c))
    A.vm, A.lds = [], []
    for c in range(NSLOT - 1):
        issue_chunk(c)
    A("s_lshl_b32 %s, %s, 5" % (s(sT), s(sW)))
    A("s_add_u32 %s, %s, %s" % (s(sUnit), s(sT), s(sCU)))
    A("s_cmp_lt_u32 %s, 72" % s(sUnit))
    A("s_cselect_b32 %s, %s, -1" % (s(sUnit), s(sUnit)))
    if "dup" in opt:
        A("s_xor_b32 %s, %s, 16" % (s(sT), s(sCU)))
        A("s_cmp_eq_u32 %s, 3" % s(sW))
        A("s_cselect_b32 %s, %s, %s" % (s(sUnit), s(sT), s(sUnit)))
    A("v_lshlrev_b32 %s, 4, %s" % (v(vL16), v(lane)))
    A("v_and_b32 %s, 1, %s" % (v(t1), v(lane)))
    A("v_mul_u32_u24 %s, 0xaaaa, %s" % (v(t1), v(t1)))
    A("v_add_u32 %s, 0x4444, %s" % (v(vIdx), v(t1)))
    A("s_mul_i32 %s, %s, %d" % (s(sT), s(sW), L_WSTRIDE))
    A("s_add_u32 %s, %s, %d" % (s(sT), s(sT), L_W))
    A("v_add_u32 %s, %s, %s" % (v(vWL), s(sT), v(vL16)))
    A("s_add_u32 %s, %s, 32768" % (s(sVX), s(sT)))
    A("s_lshl_b32 %s, %s, 11" % (s(sKXm), s(sW)))
    A("s_add_u32 %s, %s, %d" % (s(sKXm), s(sKXm), L_KX))
    A("v_lshrrev_b32 %s, 4, %s" % (v(t2), v(lane)))
    A("v_bfe_u32 %s, %s, 2, 2" % (v(t3), v(lane)))
    A("v_and_b32 %s, 3, %s" % (v(t4), v(lane)))
    A("v_and_b32 %s, 1, %s" % (v(t1), v(t3)))
    A("v_mul_u32_u24 %s, %d, %s" % (v(vFw), FSTR, v(t1)))
    A("v_lshrrev_b32 %s, 1, %s" % (v(t1), v(t3)))
    A("v_lshl_add_u32 %s, %s, 8, %s" % (v(vFw), v(t1), v(vFw)))
    A("v_lshl_add_u32 %s, %s, 6, %s" % (v(vFw), v(t2), v(vFw)))
    A("v_lshl_add_u32 %s, %s, 2, %s" % (v(vFw), v(t4), v(vFw)))
    A("s_lshr_b32 %s, %s, 1" % (s(sT), s(sW)))
    A("s_and_b32 %s, %s, 1" % (s(sT + 1), s(sW)))
    A("s_mul_i32 %s, %s, %d" % (s(sT + 2), s(sT), 2 * FSTR))
    A("s_lshl_b32 %s, %s, 9" % (s(sT + 3), s(sT + 1)))
    A("s_add_u32 %s, %s, %s" % (s(sT + 2), s(sT + 2), s(sT + 3)))
    A("s_add_u32 %s, %s, %d" % (s(sT + 2), s(sT + 2), L_F))
    A("v_add_u32 %s, %s, %s" % (v(vFw), s(sT + 2), v(vFw)))
    A("v_and_b32 %s, 1, %s" % (v(t1), v(t4)))
    A("v_lshl_add_u32 %s, %s, 1, %s" % (v(t1), v(t3), v(t1)))
    A("v_lshlrev_b32 %s, 5, %s" % (v(t5), v(t1)))
    A("v_lshl_add_u32 %s, %s, 8, %s" % (v(t5), v(t2), v(t5)))
    A("s_lshl_b32 %s, %s, 10" % (s(sT + 2), s(sT)))
    A("s_lshl_b32 %s, %s, 4" % (s(sT + 3), s(sT + 1)))
    A("s_add_u32 %s, %s, %s" % (s(sT + 2), s(sT + 2), s(sT + 3)))
    A("s_add_u32 %s, %s, %d" % (s(sT + 2), s(sT + 2), L_O))
    A("v_add_u32 %s, %s, %s" % (v(t5), s(sT + 2), v(t5)))
    A("v_lshl_add_u32 %s, %s, 3, %s" % (v(t6), v(t2), v(t1)))
    A("v_lshlrev_b32 %s, 4, %s" % (v(t6), v(t6)))
    A("v_add_u32 %s, %d, %s" % (v(t6), L_SCR, v(t6)))
    A("v_cmp_le_u32 vcc, 2, %s" % v(t4))
    A("s_nop 1")
    A("v_cndmask_b32 %s, %s, %s, vcc" % (v(vOw), v(t6), v(t5)))
    A("v_lshrrev_b32 %s, 5, %s" % (v(t1), v(lane)))
    A("v_lshlrev_b32 %s, 12, %s" % (v(vPst), v(t1)))
    A("v_and_b32 %s, 31, %s" % (v(t1), v(lane)))
    A("v_lshl_add_u32 %s, %s, 2, %s" % (v(vPst), v(t1), v(vPst)))
    A("v_lshlrev_b32 %s, 6, %s" % (v(t5), v(t3)))
    A("v_lshl_add_u32 %s, %s, 3, %s" % (v(t5), v(t4), v(t5)))
    A("v_lshl_add_u32 %s, %s, 5, %s" % (v(t5), v(t2), v(t5)))
    A("s_lshl_b32 %s, %s, 7" % (s(sT + 2), s(sUnit)))
    A("s_and_b32 %s, %s, 0x3fff" % (s(sT + 2), s(sT + 2)))
    A("v_add_u32 %s, %s, %s" % (v(t5), s(sT + 2), v(t5)))
    A("v_and_b32 %s, 0x28, %s" % (v(t1), v(lane)))
    A("v_mov_b32 %s, 0x%x" % (v(t6), OOB))
    A("v_cmp_eq_u32 vcc, 0, %s" % v(t1))
    A("s_nop 1")
    A("v_cndmask_b32 %s, %s, %s, vcc" % (v(vRst), v(t6), v(t5)))
    A("s_mov_b32 %s, 0x11111111" % s(sTagM))
    A("s_mov_b32 %s, 0x11111111" % s(sTagM + 1))
    A("v_and_b32 %s, 1, %s" % (v(t1), v(t3)))
    A("v_lshlrev_b32 %s, 4, %s" % (v(t1), v(t1)))
    A("v_mov_b32 %s, 0x3f80" % v(t5))
    A("v_lshlrev_b32 %s, %s, %s" % (v(vSelV), v(t1), v(t5)))
    for u in range(4):
        m16 = (1 << u) | (1 << (u + 4))
        m32 = m16 | (m16 << 16)
        A("s_mov_b32 %s, 0x%x" % (s(sSel + 2 * u), m32))
        A("s_mov_b32 %s, 0x%x" % (s(sSel + 2 * u + 1), m32))
    A("s_lshl_b32 %s, %s, 10" % (s(sT + 2), s(sW)))
    A("v_add_u32 %s, %s, %s" % (v(vT0), s(sT + 2), v(vL16)))
    A("v_xor_b32 %s, 0x400, %s" % (v(vT1), v(vT0)))
    A("s_and_b32 %s, %s, 0x800" % (s(sT + 2), s(sT + 2)))
    A("s_xor_b32 %s, %s, 0x800" % (s(sT + 2), s(sT + 2)))
    A("v_add_u32 %s, %s, %s" % (v(vT2), s(sT + 2), v(vL16)))
    A("s_mov_b32 %s, 0" % s(sStep))
    A("s_mov_b32 %s, 0" % s(sPh))
    A("s_mov_b32 %s, %d" % (s(sBud), 200000 if "tt" in opt or "stamps" in opt else 2000000))
    A("s_lshl_b32 %s, %s, 7" % (s(sT + 3), s(sCU)))
    A("s_add_u32 %s, %s, %d" % (s(sT + 3), s(sT + 3), WS_PB))
    A("s_lshl_b32 %s, %s, 13" % (s(sT + 2), s(sW)))
    A("s_add_u32 %s, %s, %s" % (s(sP0), s(sT + 2), s(sT + 3)))
    A("s_lshl_b32 %s, %s, 12" % (s(sT + 2), s(sUnit)))
    A("s_add_u32 %s, %s, %d" % (s(sRd), s(sT + 2), WS_PB))
    A("s_cmp_eq_u32 %s, -1" % s(sUnit))
    A("s_cselect_b32 %s, 0x%x, %s" % (s(sRd), OOB, s(sRd)))
    A("s_cselect_b32 %s, 0x%x, 0" % (s(sT + 2), OOB))
    A("v_or_b32 %s, %s, %s" % (v(vRst), s(sT + 2), v(vRst)))
    for i, r in enumerate((sX0, sX1, sX2)):
        A("s_mov_b32 %s, %d" % (s(r), WS_MBX + i * MBX_STRIDE))
    A("s_lshl_b32 %s, %s, 14" % (s(sKV), s(sCU)))
    A("s_lshl_b32 %s, %s, 11" % (s(sT + 2), s(sW)))
    A("s_add_u32 %s, %s, %s" % (s(sKV), s(sKV), s(sT + 2)))
    A("s_add_u32 %s, %s, %d" % (s(sKVv), s(sKV), WS_KV + 8192))
    A("s_lshl_b32 %s, %s, 14" % (s(sKVt), s(sCU)))
    A("s_add_u32 %s, %s, %d" % (s(sKVt), s(sKVt), WS_KV + 1 * KVSTEP))
    A("s_cmp_lt_u32 %s, 3" % s(sW))
    A("s_cselect_b32 %s, 0x%x, %s" % (s(sKVt), OOB, s(sKVt)))
    if WS_KV:
        A("s_add_u32 %s, %s, %d" % (s(sKV), s(sKV), WS_KV))
    A("s_lshl_b32 %s, %s, 12" % (s(sKM), s(sCU)))
    A("s_lshl_b32 %s, %s, 10" % (s(sT + 2), s(sW)))
    A("s_add_u32 %s, %s, %s" % (s(sKM), s(sKM), s(sT + 2)))
    A("s_add_u32 %s, %s, %d" % (s(sKM), s(sKM), WS_KM))
    A("s_lshl_b32 %s, %s, 2" % (s(sT + 2), s(sCU)))
    A("s_add_u32 %s, %s, %s" % (s(sT + 2), s(sT + 2), s(sW)))
    A("s_mul_i32 %s, %s, %d" % (s(sWF), s(sT + 2), 18 * 2048))
    A("s_add_u32 %s, %s, %d" % (s(sWF), s(sWF), WS_WF))
    A("s_add_u32 %s, %s, %d" % (s(sL2a), s(sWF), 16 * 2048))
    A("s_mov_b32 %s, 0x%x" % (s(sC), f32bits(128 ** -0.5 * math.log2(math.e))))

    A("s_lshl_b32 %s, %s, 2" % (s(sT + 2), s(sW)))
    A("v_add_u32 %s, %s, %s" % (v(vColQK), s(sT + 2), v(t4)))
    A("s_lshl_b32 %s, %s, 3" % (s(sT + 2), s(sT)))
    A("s_add_u32 %s, %s, %s" % (s(sT + 2), s(sT + 2), s(sT + 1)))
    A("v_lshl_add_u32 %s, %s, 1, %s" % (v(vColV), v(t4), s(sT + 2)))
    A("v_and_b32 %s, 1, %s" % (v(t5), v(t2)))
    A("v_lshlrev_b32 %s, 2, %s" % (v(t5), v(t5)))
    A("v_lshrrev_b32 %s, 1, %s" % (v(t6), v(t3)))
    A("v_lshl_add_u32 %s, %s, 3, %s" % (v(t5), v(t6), v(t5)))
    A("v_and_b32 %s, 1, %s" % (v(t6), v(t3)))
    A("v_add_u32 %s, %s, %s" % (v(t5), v(t5), v(t6)))
    A("v_lshrrev_b32 %s, 1, %s" % (v(t1), v(t2)))
    A("v_lshl_add_u32 %s, %s, 4, %s" % (v(vTrO), v(t1), v(t5)))
    A("v_lshlrev_b32 %s, 7, %s" % (v(vTrO), v(vTrO)))
    A("v_lshl_add_u32 %s, %s, 3, %s" % (v(vTrO), v(t4), v(vTrO)))
    A("s_lshl_b32 %s, %s, 5" % (s(sT + 2), s(sW)))
    A("s_add_u32 %s, %s, %d" % (s(sT + 2), s(sT + 2), RING0))
    A("v_add_u32 %s, %s, %s" % (v(vTrO), s(sT + 2), v(vTrO)))
    A("v_mul_u32_u24 %s, %d, %s" % (v(t1), L_WSTRIDE, v(t1)))
    A("v_lshl_add_u32 %s, %s, 8, %s" % (v(t1), v(t5), v(t1)))
    A("v_add_u32 %s, %d, %s" % (v(t1), RING0, v(t1)))
    for col in (vColQK, vColV):
        A("v_lshl_add_u32 %s, %s, 2, %s" % (v(col), v(t6), v(col)))
        A("v_and_b32 %s, 15, %s" % (v(col), v(col)))
        A("v_lshl_add_u32 %s, %s, 4, %s" % (v(col), v(col), v(t1)))
    AD = [58, 59, 61, 62]
    ADO = [vTrO, 63, 69, 70]
    def addr_wo():
        for i in range(1, 4):
            A("v_add_u32 %s, %d, %s" % (v(ADO[i]), i * L_WSTRIDE, v(vTrO)))
    def addr_wide(col):
        A("v_mov_b32 %s, %s" % (v(AD[0]), v(col)))
        A("v_xor_b32 %s, 0x80, %s" % (v(AD[1]), v(col)))
        A("v_add_u32 %s, %d, %s" % (v(AD[2]), 2 * L_WSTRIDE, v(AD[0])))
        A("v_add_u32 %s, %d, %s" % (v(AD[3]), 2 * L_WSTRIDE, v(AD[1])))
    TMPF = [12, 20]
    tmpi = [0]
    park = {}
    def get_frag(key, addrs, imms):
        out = None
        if key in WREGS:
            r = WREGS[key]
        elif SPILL[key] in park:
            r = park[SPILL[key]]
        else:
            r = TMPF[tmpi[0] % 2]
            tmpi[0] += 1
            out = (r, SPILL[key])
        for q in range(4):
            A.ds("ds_read_b64_tr_b16 %s, %s offset:%d" % (R(r + 2 * q, 2), v(addrs[q]), imms[q]))
        return out
    def put(r, idx):
        if idx < 16:
            for hh in range(2):
                A.ds("ds_write_b128 %s, %s offset:%d" % (v(vWL), R(r + 4 * hh, 4), idx * 2048 + hh * 1024))
        else:
            for hh in range(2):
                A.vmem("buffer_store_dwordx4 %s, %s, %s, %s offen offset:%d" % (v(r + 4 * hh, 4), v(vL16), s(sWS, 4), s(sL2a), 1024 * hh), 'sp')

    A("v_lshl_add_u32 %s, %s, 1, %s" % (v(t5), v(t3), v(t2)))
    A("v_mul_u32_u24 %s, 1152, %s" % (v(t5), v(t5)))
    A("v_lshl_add_u32 %s, %s, 3, %s" % (v(t5), v(t4), v(t5)))
    A("s_and_b32 %s, %s, 1" % (s(sT + 2), s(sUnit)))
    A("s_mul_i32 %s, %s, 4608" % (s(sT + 2), s(sT + 2)))
    A("s_bfe_u32 %s, %s, 0x60001" % (s(sT + 3), s(sUnit)))
    A("s_lshl_b32 %s, %s, 5" % (s(sT + 3), s(sT + 3)))
    A("s_add_u32 %s, %s, %s" % (s(sT + 2), s(sT + 2), s(sT + 3)))
    A.vmem("buffer_load_dwordx2 %s, %s, %s, %s offen" % (v(52, 2), v(t5), s(sM0, 4), s(sT + 2)), 'm0')
    for i in range(4):
        A("v_mov_b32 %s, -1" % v(64 + i))
    for i in range(4):
        A.vmem("buffer_store_dwordx4 %s, %s, %s, %s offen offset:%d%s" % (v(64, 4), v(vL16), s(sWS, 4), s(sRd), 1024 * i, SC), 'mb')
    for so in (sX1, sX2):
        A.vmem("buffer_store_dwordx2 %s, %s, %s, %s offen%s" % (v(64, 2), v(vRst), s(sWS, 4), s(so), SC), 'mb')
    vm0 = list(A.vm)
    ljoin = A.new("initjoin")
    lcls = [A.new("cls%d" % i) for i in range(4)]
    for i in (1, 2, 3):
        A("s_cmp_eq_u32 %s, %d" % (s(sW), i))
        A("s_cbranch_scc1 %s" % lcls[i])
    for wc in range(4):
        A.label(lcls[wc])
        A.vm, A.lds = list(vm0), []
        tmpi[0] = 0
        pos = [GOF(jj, wc) for jj in range(9)]
        park.clear()
        park.update({15: 28, 7: 36, 8: 44})
        for i, G in enumerate(VLAST):
            for t in range(2):
                park[9 + 2 * i + t] = WREGS[('v', pos.index(G), t)]
        flush = {32: (9, 10), 33: (11, 12), 34: (13, 14), 35: (15,)}
        for c in range(36):
            m, G = chunks[c]
            if c == 0:
                addr_wo()
                addr_wide(vColQK)
            if chunks[c] == (2, 4):
                addr_wide(vColV)
            A.wait_vm(('c', c))
            A("s_barrier")
            if c + NSLOT - 1 < 36:
                issue_chunk(c + NSLOT - 1)
            if c == NSLOT:
                A.vmem("buffer_store_dwordx2 %s, %s, %s, %s offen%s" % (v(52, 2), v(vRst), s(sWS, 4), s(sX0), SC), 'mb')
            if c == 20 and wc == 0:
                A("s_mov_b64 exec, 1")
                A("s_lshl_b32 %s, 1, s3" % s(sT + 2))
                A("s_lshl_b32 %s, %s, 8" % (s(sT + 2), s(sT + 2)))
                A("v_mov_b32 %s, %s" % (v(52), s(sT + 2)))
                A("v_mov_b32 %s, 1" % v(53))
                A.vmem("buffer_atomic_or %s, off, %s, 0 offset:%d" % (v(52), s(sDBG, 4), DBG_TEAM), 'at')
                A.vmem("buffer_atomic_add %s, off, %s, 0 offset:%d" % (v(53), s(sDBG, 4), DBG_TEAM), 'at')
                A("s_mov_b64 exec, -1")
            if "mega" in opt and c == 24:
                A.vmem("buffer_load_dword %s, off, %s, 0 offset:%d sc1" % (v(64), s(sDBG, 4), DBG_MOD), 'e')
            if "mega" in opt and c == 34:
                A("v_lshrrev_b32 %s, 2, %s" % (v(65), v(vL16)))
                A("s_lshl_b32 %s, %s, 8" % (s(sT + 2), s(sCU)))
                A("s_add_u32 %s, %s, %d" % (s(sT + 2), s(sT + 2), FL_KV))
                A.vmem("buffer_load_dword %s, %s, %s, %s offen sc1" % (v(65), v(65), s(sWS, 4), s(sT + 2)), 'e')
                A.vmem("buffer_load_dword %s, off, %s, 0 offset:%d sc1" % (v(66), s(sDBG, 4), DBG_TEAM), 'e')
            for idx in flush.get(c, ()):
                put(park[idx], idx)
            so = (c % NSLOT) * 4096
            sp = []
            if m == 3:
                for c2 in range(2):
                    sp.append(get_frag(('o', 2 * G + c2), [ADO[2 * c2 + (q >> 1)] for q in range(4)], [so + 2 * (q & 1) * 128 for q in range(4)]))
            else:
                j = pos.index(G)
                for t in range(2):
                    key = ('qk', j, 2 * m + t) if m < 2 else ('v', j, t)
                    sp.append(get_frag(key, AD, [so + 2 * (q & 1) * 256 + 8 * t for q in range(4)]))
            A.wait_ds()
            for x in sp:
                if x:
                    put(*x)
        A("s_barrier")
        put(park[7], 7)
        put(park[8], 8)
        if wc < 3:
            A("s_branch %s" % ljoin)
    A.label(ljoin)
    ROT = ([int(o[4:]) for o in opt if o.startswith("rot=")] + [0])[0]
    ROTW = ([int(o[5:]) for o in opt if o.startswith("rotw=")] + [0])[0]
    for G in range(9):
        if ROT or ROTW:
            A("s_mul_i32 %s, %s, %d" % (s(sT + 2), s(sW), ROTW))
            A("s_add_u32 %s, %s, %s" % (s(sT + 2), s(sT + 2), s(sCU)))
            A("s_add_u32 %s, %s, %d" % (s(sT + 2), s(sT + 2), ROT * G))
            A("s_and_b32 %s, %s, 31" % (s(sT + 2), s(sT + 2)))
            A("s_sub_u32 %s, %s, %s" % (s(sT + 2), s(sT + 2), s(sCU)))
            A("s_lshl_b32 %s, %s, 7" % (s(sT + 2), s(sT + 2)))
            A("s_add_u32 %s, %s, %s" % (s(sPt + G), s(sP0), s(sT + 2)))
            A("s_add_u32 %s, %s, %d" % (s(sPt + G), s(sPt + G), G * 32768))
        else:
            A("s_add_u32 %s, %s, %d" % (s(sPt + G), s(sP0), G * 32768))
    A("s_lshl_b32 %s, %s, 7" % (s(sFlg), s(sCU)))
    A("s_add_u32 %s, %s, %d" % (s(sFlg), s(sFlg), FL_PUB - 4096))
    A("s_cmp_eq_u32 %s, %d" % (s(sW), 3 if "mega" in opt else 7))
    A("s_cselect_b32 %s, %s, 0x%x" % (s(sFlg), s(sFlg), OOB))
    A("s_mov_b64 %s, 1" % s(sOne, 2))
    A("s_mov_b32 %s, 0xcccccccc" % s(sOex))
    A("s_mov_b32 %s, 0xcccccccc" % s(sOex + 1))
    A("s_lshl_b32 %s, %s, 8" % (s(sFlgN), s(sW)))
    A("s_add_u32 %s, %s, %d" % (s(sFlgN), s(sFlgN), L_MEM + 8192))
    A("s_cmp_lt_u32 %s, 32" % s(sUnit))
    A("s_cselect_b32 %s, %s, 0x%x" % (s(sRdE), s(sRd), OOB))
    A("s_lshl_b32 %s, %s, 8" % (s(sKF), s(sCU)))
    A("s_add_u32 %s, %s, %d" % (s(sKF), s(sKF), FL_KV))
    A("s_waitcnt vmcnt(0) lgkmcnt(0)")
    A.vm, A.lds = [], []

    def kv_dma():
        return ["s_mov_b32 m0, %s" % s(sKXm),
                "buffer_load_dwordx4 %s, %s, %s offen sc1 lds" % (v(vL16), s(sWS, 4), s(sKV)),
                "buffer_load_dwordx4 %s, %s, %s offen offset:1024 sc1 lds" % (v(vL16), s(sWS, 4), s(sKV)),
                "s_mov_b32 m0, %s" % s(sVX),
                "buffer_load_dwordx4 %s, %s, %s offen sc1 lds" % (v(vL16), s(sWS, 4), s(sKVv)),
                "buffer_load_dwordx4 %s, %s, %s offen offset:1024 sc1 lds" % (v(vL16), s(sWS, 4), s(sKVv))]
    def land(key, half=None):
        sp = SPILL[key]
        for hh in ((0, 1) if half is None else (half,)):
            if sp < 16:
                A.ds("ds_read_b128 %s, %s offset:%d" % (v(LND + 8 * SLOT[key] + 4 * hh, 4), v(vWL), sp * 2048 + 1024 * hh), key)
            else:
                A.vmem("buffer_load_dwordx4 %s, %s, %s, %s offen offset:%d" % (v(LND + 8 * SLOT[key] + 4 * hh, 4), v(vL16), s(sWS, 4), s(sL2a), 1024 * hh), key)
    def zero(lo, hi):
        for r in range(lo, hi, 2):
            A("v_mov_b64 %s, 0" % v(r, 2))
    KVINC = 0 if "samekv" in opt else KVSTEP
    NDMA = "ndma" in opt
    def kv_all():
        for i in range(2):
            A("s_mov_b32 m0, %d" % (L_KX + 4096 * i))
            A("s_add_u32 %s, %s, %d" % (s(sT + 2), s(sKV), 4096 * i))
            for j in range(4):
                A("buffer_load_dwordx4 %s, %s, %s offen offset:%d sc1 lds" % (v(vL16), s(sWS, 4), s(sT + 2), 1024 * j))
        for i in range(4):
            A("s_mov_b32 m0, %d" % (L_W + i * L_WSTRIDE + 32768))
            A("s_add_u32 %s, %s, %d" % (s(sT + 2), s(sKV), 8192 + 2048 * i))
            for j in range(2):
                A("buffer_load_dwordx4 %s, %s, %s offen offset:%d sc1 lds" % (v(vL16), s(sWS, 4), s(sT + 2), 1024 * j))
    def kv_refresh(lback):
        lp = A.new("kvr")
        A.label(lp)
        A("v_lshrrev_b32 %s, 2, %s" % (v(vTmp), v(vL16)))
        A("buffer_load_dword %s, %s, %s, %s offen sc1" % (v(vTmp), v(vTmp), s(sWS, 4), s(sKF)))
        A("s_waitcnt vmcnt(0)")
        A("v_cmp_ne_u32 %s, 0, %s" % (s(sRdy, 2), v(vTmp)))
        A("s_nop 3")
        A("s_bitcmp1_b64 %s, %s" % (s(sRdy, 2), s(sStep)))
        A("s_cbranch_scc1 %s" % lback)
        A("s_sub_u32 %s, %s, 1" % (s(sBud), s(sBud)))
        A("s_cbranch_scc0 %s" % lp)
        A("s_mov_b32 %s, 0" % s(sBud))
        A("s_branch %s" % lback)
    if "tt" in opt:
        A("s_memrealtime s[66:67]")
    lfast = A.new("fast0")
    if "mega" in opt:
        lsl = A.new("slow0")
        A("v_readfirstlane_b32 %s, %s" % (s(sT + 1), v(64)))
        A("v_readfirstlane_b32 %s, %s" % (s(sT), v(66)))
        A("v_cmp_ne_u32 %s, 0, %s" % (s(sRdy, 2), v(65)))
        A("s_nop 3")
        lk, lt = A.new("needkv"), A.new("needteam")
        A("s_cmp_eq_u32 %s, 0" % s(sT + 1))
        A("s_cbranch_scc1 %s" % lsl)
        A("s_bitcmp1_b32 %s, 0" % s(sRdy))
        A("s_cbranch_scc1 %s" % lt)
        A("s_branch %s" % lk)
        A.label(lsl)
        hooks['kv_wait0'](A)
        A.label(lk)
        kv_refresh(lt)
        A.label(lt)
        A("s_bitcmp1_b32 %s, 5" % s(sT))
        A("s_cbranch_scc1 %s" % lfast)
    lp = A.new("tb")
    A.label(lp)
    A("buffer_load_dword %s, off, %s, 0 offset:%d sc1" % (v(vTmp), s(sDBG, 4), DBG_TEAM))
    A("s_waitcnt vmcnt(0)")
    A("v_readfirstlane_b32 %s, %s" % (s(sT), v(vTmp)))
    A("s_nop 3")
    A("s_bitcmp1_b32 %s, 5" % s(sT))
    A("s_cbranch_scc1 %s" % lfast)
    A("s_sub_u32 %s, %s, 1" % (s(sBud), s(sBud)))
    A("s_cbranch_scc0 %s" % lp)
    A("s_mov_b32 %s, 0" % s(sBud))
    A.label(lfast)
    if "mega" in opt:
        A("s_cmp_lt_u32 %s, 3" % s(sW))
        A("s_cselect_b64 %s, -1, %s" % (s(sRdy, 2), s(sRdy, 2)))
    if "tt" in opt:
        A("s_memrealtime s[68:69]")
    if "vn" in opt:
        for x in kv_dma()[3:]:
            A(x)
            A("s_nop 0")
        A("s_add_u32 %s, %s, %d" % (s(sKVv), s(sKVv), KVSTEP))
    for ch in QK_CHAIN:
        land(ch[0])
    zero(VACC, RING)
    A("s_waitcnt lgkmcnt(0)")
    A("s_lshr_b32 %s, %s, 8" % (s(sT), s(sT)))
    A("s_bcnt1_i32_b32 %s, %s" % (s(sT), s(sT)))
    lslow = A.new("slow")
    A("s_cmp_lg_u32 %s, 1" % s(sT))
    A("s_cbranch_scc1 %s" % lslow)
    def loop(SC):
        lentry, lexit = A.new("entry"), A.new("exit")
        lok1, lnored, lb4 = A.new("ok1"), A.new("nored"), A.new("b4")
        ls1, ls1w, l1a = A.new("s1"), A.new("s1w"), A.new("p1a")
        ls1r, ls2r, ls2ok, ls3r, ls3ok, l1r = A.new("s1r"), A.new("s2r"), A.new("s2ok"), A.new("s3r"), A.new("s3ok"), A.new("p1r")
        A("s_branch %s" % ls1)

        def SM(acc, afr, breg):
            A("v_smfmac_f32_16x16x64_bf16 %s, %s, %s, %s" % (v(acc, 4), v(afr, 4), breg, v(vIdx)))
        def MF(d, a_, b_, c_):
            A("v_mfma_f32_16x16x32_bf16 %s, %s, %s, %s" % (v(d, 4), v(a_, 4), v(b_, 4), c_))
        def fragaddr(j):
            if j == 8:
                return vL16, 8192
            return (vT0, vT1, vT2, vT2)[j & 3], (j & 4) * 1024 + (1024 if (j & 3) == 3 else 0)
        def ringrd(j, slot):
            b, o = fragaddr(j)
            A.ds("ds_read_b128 %s, %s offset:%d" % (v(RING + 4 * slot, 4), v(b), L_MEM + o), ('ring', j))
        def mbload(dst, j):
            if j == 8:
                A("buffer_load_dwordx4 %s, %s, %s, %s offen sc1" % (v(dst, 4), v(vL16), s(sWS, 4), s(sX8)))
            else:
                A("buffer_load_dwordx4 %s, %s, %s, %s offen sc1" % (v(dst, 4), v(fragaddr(j)[0]), s(sWS, 4), s(sX4 if j & 4 else sX0)))
        def check(base, n):
            A("v_max3_u32 %s, %s, %s, %s" % (v(vTmp), v(base), v(base + 1), v(base + 2)))
            for i in range(3, n - 1, 2):
                A("v_max3_u32 %s, %s, %s, %s" % (v(vTmp), v(vTmp), v(base + i), v(base + i + 1)))
            A("v_max_u32 %s, %s, %s" % (v(vTmp), v(vTmp), v(base + n - 1)))
            A("v_cmp_eq_u32 vcc, -1, %s" % v(vTmp))
        def budget(lagain, lgiveup):
            A("s_sub_u32 %s, %s, 1" % (s(sBud), s(sBud)))
            A("s_cbranch_scc0 %s" % lagain)
            A("s_mov_b32 %s, 0" % s(sBud))
            A("s_branch %s" % lgiveup)
        PLA = [12, 16, 20, 24]
        RACC, SEL = 28, 32
        def poll1_issue(PL, so=sRd, which=range(4)):
            for i in which:
                A("buffer_load_dwordx4 %s, %s, %s, %s offen offset:%d sc1" % (v(PL[i], 4), v(vL16), s(sWS, 4), s(so), 1024 * i))
        def wait_many(keys):
            idx = [i for i, t in enumerate(A.lds) if t in keys]
            if idx:
                A.wait_ds(A.lds[idx[-1]])
        def endstep():
            for ch in QK_CHAIN:
                land(ch[0])
            A("s_mov_b32 %s, %s" % (s(sT), s(sX0)))
            A("s_mov_b32 %s, %s" % (s(sX0), s(sX1)))
            A("s_mov_b32 %s, %s" % (s(sX1), s(sX2)))
            A("s_mov_b32 %s, %s" % (s(sX2), s(sT)))
        PUB = "" if "pubplain" in opt else " sc1"
        def optval(name, dflt):
            for o in opt:
                if o.startswith(name + "="):
                    return int(o.split("=")[1])
            return dflt
        LWAIT, S1DEPTH = optval("lwait", 2), optval("s1d", 2)
        sX4, sX8 = sP1, sP2
        F8 = RING + 4
        PLB = [LND, LND + 4, LND + 8, LND + 12]
        def reduce_body(PL, n_after):
            if "prog" in opt:
                A("s_waitcnt vmcnt(%d)" % (n_after + 3))
                MF(RACC, SEL, PL[0], "0")
                A("s_waitcnt vmcnt(%d)" % (n_after + 2))
                MF(RACC, SEL, PL[1], v(RACC, 4))
                A("v_bitop3_b32 %s, %s, %s, %s bitop3:0x7e" % (v(vTmp), v(PL[0]), v(PL[1]), s(sPh)))
                A("s_waitcnt vmcnt(%d)" % (n_after + 1))
                MF(RACC, SEL, PL[2], v(RACC, 4))
                A("s_waitcnt vmcnt(%d)" % n_after)
                MF(RACC, SEL, PL[3], v(RACC, 4))
                A("v_bitop3_b32 %s, %s, %s, %s bitop3:0x7e" % (v(45), v(PL[2]), v(PL[3]), s(sPh)))
                A("v_bitop3_b32 %s, %s, %s, 1 bitop3:0xa8" % (v(vTmp), v(vTmp), v(45)))
                A("v_cmp_ne_u32 vcc, 0, %s" % v(vTmp))
                return
            A("s_waitcnt vmcnt(%d)" % n_after)
            MF(RACC, SEL, PL[0], "0")
            A("v_bitop3_b32 %s, %s, %s, %s bitop3:0x7e" % (v(vTmp), v(PL[0]), v(PL[1]), s(sPh)))
            A("v_bitop3_b32 %s, %s, %s, %s bitop3:0x7e" % (v(45), v(PL[2]), v(PL[3]), s(sPh)))
            MF(RACC, SEL, PL[1], v(RACC, 4))
            A("v_bitop3_b32 %s, %s, %s, 1 bitop3:0xa8" % (v(vTmp), v(vTmp), v(45)))
            A("v_cmp_ne_u32 vcc, 0, %s" % v(vTmp))
            MF(RACC, SEL, PL[2], v(RACC, 4))
            MF(RACC, SEL, PL[3], v(RACC, 4))
        def mksel():
            for u in range(4):
                A("v_cndmask_b32 %s, 0, %s, %s" % (v(SEL + u), v(vSelV), s(sSel + 2 * u, 2)))
        def s1load(base):
            mbload(base, 0)
            mbload(base + 4, 1)
        def rotate():
            A("s_mov_b32 %s, %s" % (s(sT), s(sX0)))
            A("s_mov_b32 %s, %s" % (s(sX0), s(sX1)))
            A("s_mov_b32 %s, %s" % (s(sX1), s(sX2)))
            A("s_mov_b32 %s, %s" % (s(sX2), s(sT)))
            A("s_add_u32 %s, %s, 4096" % (s(sX4), s(sX0)))
            A("s_add_u32 %s, %s, 8192" % (s(sX8), s(sX0)))
            A("s_mov_b32 m0, %s" % s(sFlgN))
        lgo1 = A.new("go1")
        lkvr, lkvok = A.new("kvrf"), A.new("kvok")
        if "mega" in opt:
            A.label(lkvr)
            kv_refresh(lkvok)
        A.label(lnored)
        A("s_cmp_eq_u32 %s, -1" % s(sUnit))
        A("s_cbranch_scc1 %s_n" % lnored)
        A("s_waitcnt vmcnt(%d)" % LWAIT)
        A("s_branch %s" % lgo1)
        A.label(lnored + "_n")
        if "ps" in opt:
            A("s_memtime s[72:73]")
            A("s_memrealtime s[74:75]")
            A("s_lshl_b32 %s, %s, 9" % (s(sT), s(sCU)))
            A("s_lshl_b32 %s, %s, 3" % (s(sT + 1), s(sStep)))
            A("s_add_u32 %s, %s, %s" % (s(sT), s(sT), s(sT + 1)))
            A("s_add_u32 %s, %s, %d" % (s(sT), s(sT), WS_DBG + (7 << 17)))
            A("s_waitcnt lgkmcnt(0)")
            A("v_mov_b32 v46, s72")
            A("v_mov_b32 v47, s74")
            A("s_mov_b64 exec, 1")
            A("buffer_store_dwordx2 v[46:47], off, %s, %s" % (s(sWS, 4), s(sT)))
            A("s_mov_b64 exec, -1")
        rotate()
        for i in range(0, 8, 2):
            A("v_mov_b64 %s, -1" % v(RING + i, 2))
        if NDMA:
            l3 = A.new("n3l")
            A("s_cmp_lg_u32 %s, 3" % s(sW))
            A("s_cbranch_scc1 %s" % l3)
            kv_all()
            A.label(l3)
        if "mega" in opt:
            lfull = A.new("full")
            A("s_add_u32 %s, %s, 1" % (s(sT + 1), s(sStep)))
            A("s_bitcmp1_b64 %s, %s" % (s(sRdy, 2), s(sT + 1)))
            A("s_cbranch_scc1 %s" % lfull)
            A("v_lshrrev_b32 %s, 2, %s" % (v(vTmp), v(vL16)))
            A("buffer_load_dword %s, %s, %s, %s offen sc1" % (v(vTmp), v(vTmp), s(sWS, 4), s(sKF)))
            A("s_waitcnt vmcnt(0)")
            A("v_cmp_ne_u32 %s, 0, %s" % (s(sRdy, 2), v(vTmp)))
            A.label(lfull)
        if "noflag" in opt:
            A("s_waitcnt vmcnt(0)")
        else:
            lf = A.new("flag")
            A("v_mov_b32 %s, %d" % (v(46), L_FLAG))
            A.label(lf)
            A("ds_read_b32 %s, %s" % (v(vTmp), v(46)))
            A("s_waitcnt lgkmcnt(0)")
            A("v_cmp_eq_u32 vcc, %s, %s" % (s(sStep), v(vTmp)))
            A("s_cbranch_vccnz %s" % lb4)
            budget(lf, lb4)
        A("s_branch %s" % lb4)
        X2 = LND + 16
        def f8load():
            A("buffer_load_dword %s, %s, %s offen sc1 lds" % (v(X2 + 5), s(sWS, 4), s(sX8)))
        def s2check():
            check(X2, 4)
        A.label(ls2r)
        if "tt" in opt:
            A("s_add_u32 s88, s88, 1")
        mbload(X2, 4)
        A("s_waitcnt vmcnt(1)")
        s2check()
        A("s_cbranch_vccz %s_d" % ls2r)
        budget(ls2r, ls2r + "_d")
        A.label(ls2r + "_d")
        A("s_waitcnt vmcnt(0)")
        A("s_branch %s" % ls2ok)
        A.label(ls3r)
        if "tt" in opt:
            A("s_add_u32 s89, s89, 1")
        mbload(RING + 4, 8)
        A("s_waitcnt vmcnt(0)")
        A("v_max3_u32 %s, %s, %s, %s" % (v(LND + 4), v(RING + 4), v(RING + 5), v(RING + 6)))
        A("v_max_u32 %s, %s, %s" % (v(LND + 4), v(LND + 4), v(RING + 7)))
        A("v_cmp_eq_u32 vcc, -1, %s" % v(LND + 4))
        A("s_cbranch_vccz %s" % ls3ok)
        budget(ls3r, ls3ok)
        A.label(ls1)
        A("s_add_u32 %s, %s, 4096" % (s(sX4), s(sX0)))
        A("s_add_u32 %s, %s, 8192" % (s(sX8), s(sX0)))
        A("s_mov_b32 m0, %s" % s(sFlgN))
        s1load(RING)
        A("s_waitcnt vmcnt(0)")
        A("s_branch %s" % ls1w)
        A(".p2align 6")
        A.label(ls1r)
        A("s_sub_u32 %s, %s, 1" % (s(sBud), s(sBud)))
        A("s_cbranch_scc1 %s_give" % ls1r)
        if "mask" in opt:
            A("s_mov_b64 exec, vcc")
        s1load(RING)
        if "mask" in opt:
            A("s_mov_b64 exec, -1")
        A("s_waitcnt vmcnt(%d)" % S1DEPTH)
        A.label(ls1w)
        check(RING, 8)
        A("s_cbranch_vccnz %s" % ls1r)
        A.label(lentry)
        A.lds, A.vm = [], []
        if "tt" in opt:
            lt = A.new("tt")
            A("s_cmp_lg_u32 %s, 3" % s(sStep))
            A("s_cbranch_scc1 %s" % lt)
            A("s_memtime s[92:93]")
            A.label(lt)
        if stamps and "rt" in opt:
            lq = A.new("q")
            A("s_memrealtime %s" % s(sStamp + 18, 2))
            A("s_cmp_lg_u32 %s, 41" % s(sStep))
            A("s_cbranch_scc1 %s" % lq)
            A("s_waitcnt lgkmcnt(0)")
            for i in range(10):
                A("v_writelane_b32 %s, %s, %d" % (v(vTmp), s(sStamp + 2 * i), i))
            A("s_lshl_b32 %s, %s, 2" % (s(sT), s(sCU)))
            A("s_add_u32 %s, %s, %s" % (s(sT), s(sT), s(sW)))
            A("s_lshl_b32 %s, %s, 11" % (s(sT), s(sT)))
            A("s_add_u32 %s, %s, %d" % (s(sT), s(sT), WS_DBG))
            A("buffer_store_dword %s, %s, %s, %s offen" % (v(vTmp), v(vL16), s(sWS, 4), s(sT)))
            A.label(lq)
        stamp()
        KXR = {(0, 0): LND, (0, 1): LND + 4, (0, 2): LND + 8, (0, 3): LND + 12, (1, 0): LND + 16, (1, 1): LND + 20, (1, 2): LND, (1, 3): LND + 4}
        def kxrd(tl, ks):
            A.ds("ds_read_b128 %s, %s offset:%d" % (v(KXR[(tl, ks)], 4), v(vL16), L_KX + (4 * tl + ks) * 1024), ('kx', tl, ks))
        AREG = {0: RING, 1: RING + 4, 2: RING + 8, 3: RING, 4: X2, 5: RING + 4, 6: RING + 8, 7: RING, 8: RING + 4}
        FP = optval("fp", 0)
        def Q(j, t):
            key = ('qk', j, t)
            SM(QK + 4 * t, AREG[j], R(WREGS[key], 8) if key in WREGS else v(LND + 8 * SLOT[key], 8))
            if t == 0 and FP == 0:
                stamp(True)
        def VS(j, t, a_=None):
            key = ('v', j, t)
            SM(VACC + 4 * t, AREG[j] if a_ is None else a_, R(WREGS[key], 8) if key in WREGS else v(LND + 8 * SLOT[key], 8))
        L = lambda j, t, hh: land(('qk', j, t), hh)
        kd = kv_dma()
        mega = "mega" in opt
        ND = 0 if NDMA else 2
        def dma(i, tag):
            if not NDMA:
                A.vmem(kd[i], tag) if tag else A(kd[i])
        A.ds("ds_write_b128 %s, %s offset:%d" % (v(vT0), v(RING, 4), L_MEM), 'w1')
        if "s2l" not in opt:
            Q(0, 0); mbload(X2, 4)
            Q(0, 1); A("v_lshrrev_b32 %s, 2, %s" % (v(X2 + 5), v(vT0)))
            Q(0, 2)
            if "f8l" not in opt:
                f8load()
            else:
                L(2, 1, 0)
            if "kearly" in opt:
                dma(0, None)
                Q(0, 3); dma(1, 'kdma')
                VS(0, 0); dma(2, 'kdma')
                A.wait_ds('w1')
                VS(0, 1)
                A("s_barrier")
                ringrd(2, 2)
                stamp()
                Q(1, 0); L(2, 0, 0)
                Q(1, 1); L(2, 0, 1)
                Q(1, 2); L(2, 1, 0)
                Q(1, 3); L(2, 1, 1)
                VS(1, 0); A("s_add_u32 %s, %s, 1" % (s(sStep), s(sStep)))
            else:
                Q(0, 3); L(2, 0, 0)
                VS(0, 0); L(2, 0, 1)
                A.wait_ds('w1')
                VS(0, 1)
                A("s_barrier")
                ringrd(2, 2)
                stamp()
                Q(1, 0)
                if "f8l" in opt:
                    f8load()
                else:
                    L(2, 1, 0)
                dma(0, None)
                Q(1, 1); L(2, 1, 1)
                Q(1, 2); dma(1, 'kdma')
                Q(1, 3); A("s_add_u32 %s, %s, 1" % (s(sStep), s(sStep)))
                VS(1, 0); dma(2, 'kdma')
            VS(1, 1); A("s_waitcnt vmcnt(%d)" % (2 + ND))
            ringrd(3, 0)
            A.wait_ds(('qk', 2, 1))
            Q(2, 0); L(4, 0, 0)
            Q(2, 1); L(4, 0, 1)
            Q(2, 2); L(4, 1, 0)
            Q(2, 3); L(4, 1, 1)
            if "v2" in opt:
                dma(3, None)
                VS(2, 0); dma(4, 'vdma')
                VS(2, 1); dma(5, 'vdma')
            else:
                VS(2, 0)
                if "vn" in opt:
                    A("s_add_u32 %s, %s, %d" % (s(sRdE), s(sKVt), KVSTEP + 8192))
                else:
                    dma(3, None)
                VS(2, 1)
            A.wait_ds(('ring', 3))
            Q(3, 0); A("s_waitcnt vmcnt(%d)" % ((5 if "v2" in opt else 3) if "f8l" in opt else (4 if "v2" in opt else 2)))
            s2check()
            Q(3, 1)
            Q(3, 2)
            A("s_cbranch_vccnz %s" % ls2r)
            A.label(ls2ok)
            A.ds("ds_write_b128 %s, %s offset:%d" % (v(vT0), v(X2, 4), L_MEM + 4096), 'w2')
            Q(3, 3)
            if "b1c" in opt:
                VS(3, 0)
                VS(3, 1)
                A.wait_ds(('qk', 4, 1))
                Q(4, 0); L(6, 0, 0)
                Q(4, 1)
                A.wait_ds('w2')
            else:
                VS(3, 0)
                if "v2" not in opt and "v5" not in opt and "vn" not in opt:
                    dma(4, 'vdma')
                VS(3, 1)
                if "v2" not in opt and "v5" not in opt and "vn" not in opt:
                    dma(5, 'vdma')
                if "v5" in opt or "vn" in opt:
                    ND = 0
                A.wait_ds(('qk', 4, 1))
                Q(4, 0); L(6, 0, 0)
                Q(4, 1)
                A("s_waitcnt vmcnt(%d) lgkmcnt(1)" % ND)
                A.vm, A.lds = A.vm[len(A.vm) - ND:], A.lds[-1:]
            A("s_barrier")
            ringrd(5, 1)
            Q(4, 2); ringrd(6, 2)
            Q(4, 3); ringrd(7, 0)
        else:
            Q(0, 0)
            Q(0, 1); A("v_lshrrev_b32 %s, 2, %s" % (v(X2 + 5), v(vT0)))
            Q(0, 2); dma(0, None)
            Q(0, 3); L(2, 0, 0)
            VS(0, 0); L(2, 0, 1)
            A.wait_ds('w1')
            VS(0, 1)
            A("s_barrier")
            ringrd(2, 2)
            stamp()
            Q(1, 0); mbload(X2, 4)
            Q(1, 1); f8load()
            Q(1, 2); L(2, 1, 0)
            Q(1, 3); L(2, 1, 1)
            VS(1, 0); dma(1, 'kdma')
            VS(1, 1); A("s_waitcnt vmcnt(3)")
            ringrd(3, 0)
            A.wait_ds(('qk', 2, 1))
            Q(2, 0); dma(2, 'kdma')
            Q(2, 1); L(4, 0, 0)
            Q(2, 2); L(4, 0, 1)
            Q(2, 3); L(4, 1, 0)
            VS(2, 0); L(4, 1, 1)
            VS(2, 1); dma(3, None)
            A.wait_ds(('ring', 3))
            Q(3, 0); A("s_add_u32 %s, %s, 1" % (s(sStep), s(sStep)))
            Q(3, 1)
            Q(3, 2)
            Q(3, 3); A("s_waitcnt vmcnt(2)")
            s2check()
            VS(3, 0)
            VS(3, 1)
            A("s_cbranch_vccnz %s" % ls2r)
            A.label(ls2ok)
            A.wait_ds(('qk', 4, 1))
            A.ds("ds_write_b128 %s, %s offset:%d" % (v(vT0), v(X2, 4), L_MEM + 4096), 'w2')
            Q(4, 0)
            A.ds("ds_write_b32 %s, %s offset:%d" % (v(X2 + 5), v(X2 + 4), L_MEM + 8192), 'w2')
            Q(4, 1); L(6, 0, 0)
            Q(4, 2); dma(4, 'vdma')
            Q(4, 3); dma(5, 'vdma')
            A("s_waitcnt vmcnt(2) lgkmcnt(1)")
            A.vm, A.lds = A.vm[len(A.vm) - 2:], A.lds[-1:]
            A("s_barrier")
            ringrd(5, 1)
            ringrd(6, 2)
            ringrd(7, 0)
        VS(4, 0); L(6, 0, 1)
        VS(4, 1); L(6, 1, 0)
        A.wait_ds(('ring', 5))
        Q(5, 0); land(L2KEY, 0)
        Q(5, 1); land(L2KEY, 1)
        if mega:
            A("s_bitcmp1_b64 %s, %s" % (s(sRdy, 2), s(sStep)))
        def touch(o):
            if "notouch" not in opt and "vn" in opt:
                A.vmem("buffer_load_dword %s, %s, %s offen sc1 lds" % (v(vTmp), s(sWS, 4), s(sRdE if o else sKVt)), 'touch')
            elif "notouch" not in opt:
                A.vmem("buffer_load_dword %s, %s, %s offen offset:%d sc1 lds" % (v(vTmp), s(sWS, 4), s(sKVt), o), 'touch')
        def kvbranch():
            if mega:
                A("s_cbranch_scc0 %s" % lkvr)
                A.label(lkvok)
        if "b1c" in opt:
            Q(5, 2); L(6, 1, 1)
            Q(5, 3); ringrd(8, 1)
            kvbranch()
            A.wait_ds(('qk', 6, 1))
            Q(6, 0); dma(4, 'vdma')
            Q(6, 1); L(7, 3, 0)
            Q(6, 2); dma(5, 'vdma')
            A("s_mov_b32 m0, %d" % (L_SCR + 512))
            Q(6, 3); L(7, 3, 1)
            A("v_lshlrev_b32 %s, 4, %s" % (v(vTmp), v(vL16)))
            A.wait_vm('kdma')
            A("s_barrier")
            Q(7, 0); touch(0)
            kxrd(0, 2)
            Q(7, 1); touch(128)
            kxrd(0, 3)
        else:
            Q(5, 2)
            if "v5" in opt:
                dma(4, 'vdma')
            L(6, 1, 1)
            Q(5, 3)
            if "v5" in opt:
                dma(5, 'vdma')
            ringrd(8, 1)
            A("s_mov_b32 m0, %d" % (L_SCR + 512))
            kvbranch()
            A.wait_ds(('qk', 6, 0))
            Q(6, 0); L(7, 3, 0)
            A.wait_ds(('qk', 6, 1))
            Q(6, 1); L(7, 3, 1)
            A("v_lshlrev_b32 %s, %d, %s" % (v(vTmp), 3 if "vn" in opt else 4, v(vL16)))
            Q(6, 2); touch(0)
            A.wait_ds(('ring', 8))
            Q(6, 3); A("v_max3_u32 %s, %s, %s, %s" % (v(LND + 8), v(RING + 4), v(RING + 5), v(RING + 6)))
            A("v_max_u32 %s, %s, %s" % (v(LND + 8), v(LND + 8), v(RING + 7)))
            Q(7, 0); touch(128)
            A("v_cmp_eq_u32 vcc, -1, %s" % v(LND + 8))
            Q(7, 1); kxrd(0, 2)
            kxrd(0, 3)
        Q(7, 2); A("v_cndmask_b32 %s, 2.0, 0, %s" % (v(vTmp), s(sOne, 2)))
        A.wait_ds(('qk', 7, 3))
        Q(7, 3); kxrd(0, 0)
        A("s_cbranch_vccnz %s" % ls3r)
        A.label(ls3ok)
        Q(8, 0); kxrd(0, 1)
        Q(8, 1)
        A.vmem("buffer_store_dword %s, %s, %s, %s offen sc1" % (v(vIdx), v(vTmp), s(sWS, 4), s(sFlg)), 'flag')
        if "qf" not in opt:
            Q(8, 2); A("v_lshrrev_b32 %s, 2, %s" % (v(vTmp), v(vL16)))
            Q(8, 3); A("s_add_u32 %s, %s, 4096" % (s(sFlg), s(sFlg)))
            stamp()
            VS(7, 0); A("s_cmp_eq_u32 %s, %d" % (s(sStep), nsteps))
            VS(7, 1); ringrd(5, 0)
        def fin(base):
            A("v_add_f32 %s, %s, %s" % (v(base), v(base), v(base + 1)))
            A("v_add_f32 %s, %s, %s" % (v(base + 2), v(base + 2), v(base + 3)))
            A("v_add_f32 %s, %s, %s" % (v(base + 4), v(base + 4), v(base + 5)))
            A("v_add_f32 %s, %s, %s" % (v(base + 6), v(base + 6), v(base + 7)))
            A("v_cvt_pk_bf16_f32 %s, %s, %s" % (v(base), v(base), v(base + 4)))
            A("v_cvt_pk_bf16_f32 %s, %s, %s" % (v(base + 1), v(base + 2), v(base + 6)))
        def finw(base):
            o = 8 if base == QK else 0
            A.ds("ds_write2_b32 %s, %s, %s offset0:%d offset1:%d" % (v(vFw), v(base), v(base + 1), o, o + 4), 'fw')
        def pub(reg, off):
            A.vmem("buffer_store_dword %s, %s, %s, %s offen offset:%d%s" % (v(reg), v(vTmp), s(sWS, 4), s(sKM), off, PUB), 'pub')
        if "qf" in opt:
            b = QK
            VS(7, 0); A("v_lshrrev_b32 %s, 2, %s" % (v(vTmp), v(vL16)))
            A("s_add_u32 %s, %s, 4096" % (s(sFlg), s(sFlg)))
            VS(7, 1); ringrd(5, 0)
            A("s_cmp_eq_u32 %s, %d" % (s(sStep), nsteps))
            Q(8, 2); A("v_add_f32 %s, %s, %s" % (v(b), v(b), v(b + 1)))
            Q(8, 3); A("v_add_f32 %s, %s, %s" % (v(b + 2), v(b + 2), v(b + 3)))
            A("s_cbranch_scc1 %s_l" % lexit)
            last_state = (list(A.lds), list(A.vm))
            A("v_add_f32 %s, %s, %s" % (v(b + 4), v(b + 4), v(b + 5)))
            A("v_add_f32 %s, %s, %s" % (v(b + 6), v(b + 6), v(b + 7)))
            A("v_cvt_pk_bf16_f32 %s, %s, %s" % (v(b), v(b), v(b + 4)))
            A("v_cvt_pk_bf16_f32 %s, %s, %s" % (v(b + 1), v(b + 2), v(b + 6)))
            finw(QK)
            fin(QK + 8)
            finw(QK + 8)
        else:
            fin(QK)
            fin(QK + 8)
            finw(QK)
            finw(QK + 8)
        VS(8, 1); pub(QK + 8, 0)
        VS(8, 0)
        VS(6, 1); pub(QK + 9, 256)
        VS(6, 0)
        A.wait_ds('fw')
        A("s_barrier")
        if FP == 2:
            stamp(True)
        for ks in range(4):
            A.ds("ds_read_b128 %s, %s offset:%d" % (v(QK + 4 * ks, 4), v(vL16), L_F + ks * FSTR), ('f', ks))
        stamp()
        VS(5, 0, RING); A.wait_vm(L2KEY)
        VS(5, 1, RING); kxrd(1, 0)
        kxrd(1, 1)
        T1, T2, T0 = RING, RING + 4, RING + 8
        ONES, LACC, OACC = QK + 8, QK + 12, LND + 16
        def S(i, ks):
            d, a_ = ((T1, KXR[(0, ks)]), (T2, KXR[(1, ks)]), (T0, QK + 4 * ks))[i]
            MF(d, a_, QK + 4 * ks, "0" if ks == 0 else v(d, 4))
        def vfin(t, part):
            b = VACC + 4 * t
            if part == 0:
                A("v_add_f32 %s, %s, %s" % (v(b), v(b), v(b + 1)))
                A("v_add_f32 %s, %s, %s" % (v(b + 2), v(b + 2), v(b + 3)))
            else:
                A("v_cvt_pk_bf16_f32 %s, %s, %s" % (v(b), v(b), v(b + 2)))
                A("v_mov_b32 %s, 0" % v(b + 1))
        def vxrd(t):
            A.ds("ds_read_b128 %s, %s offset:%d" % (v(QK + 4 * t, 4), v(vWL), 32768 + t * 1024), 'vx')
        m1, m2 = T0 + 2, T0 + 3
        A.wait_ds(('f', 0))
        S(0, 0)
        if FP == 2:
            stamp(True)
        A.wait_ds(('f', 1))
        S(0, 1); kxrd(1, 2)
        kxrd(1, 3)
        A.wait_ds(('f', 3))
        S(0, 2)
        S(0, 3); land(('o', 1), 0)
        land(('o', 1), 1)
        S(2, 0); vfin(0, 0)
        S(2, 1); vfin(0, 1)
        S(2, 2); vfin(1, 0)
        S(2, 3); pub(VACC, 512)
        vfin(1, 1)
        A.wait_vm('vdma')
        A.wait_ds(('kx', 1, 1))
        S(1, 0); vxrd(0)
        A("v_max3_f32 %s, %s, %s, %s" % (v(VACC + 2), v(T1), v(T1 + 1), v(T1 + 2)))
        S(1, 1); vxrd(1)
        A.wait_ds(('kx', 1, 3))
        S(1, 2); pub(VACC + 4, 768)
        A("v_max3_f32 %s, %s, %s, %s" % (v(m1), v(VACC + 2), v(T1 + 3), v(T0)))
        S(1, 3)
        if FP == 2:
            stamp(True)
        land(('o', 0), 0)
        land(('o', 0), 1)
        A("s_nop 0" if "qf" in opt else "s_cbranch_scc1 %s" % lexit)
        A("s_add_u32 %s, %s, %d" % (s(sKM), s(sKM), 32 * 4096))
        stamp()
        sv = [T1, T1 + 1, T1 + 2, T1 + 3, T2, T2 + 1, T2 + 2, T2 + 3, T0, T0 + 1]
        A("v_max_f32 %s, %s, %s" % (v(m1), v(m1), v(T0 + 1)))
        A("s_nop 0")
        A("v_mov_b32 %s, 0x3f803f80" % v(ONES))
        A("v_mov_b32 %s, 0x3f803f80" % v(ONES + 1))
        A("v_max3_f32 %s, %s, %s, %s" % (v(m1), v(m1), v(sv[4]), v(sv[5])))
        A("v_max3_f32 %s, %s, %s, %s" % (v(m2), v(m1), v(sv[6]), v(sv[7])))
        A("v_max3_f32 %s, %s, %s, %s" % (v(m1), v(m1), v(sv[6]), v(sv[7])))
        A("v_mov_b32 %s, 0x3f803f80" % v(ONES + 2))
        A("v_mov_b32 %s, 0x3f803f80" % v(ONES + 3))
        A("v_permlane32_swap_b32 %s, %s" % (v(m1), v(m2)))
        A("v_max_f32 %s, %s, %s" % (v(m1), v(m1), v(m2)))
        A("v_mov_b32 %s, %s" % (v(m2), v(m1)))
        A("s_nop 1")
        A("v_permlane16_swap_b32 %s, %s" % (v(m1), v(m2)))
        A("v_max_f32 %s, %s, %s" % (v(m1), v(m1), v(m2)))
        A("v_mul_f32 %s, %s, %s" % (v(m1), s(sC), v(m1)))
        if FP == 2:
            stamp(True)
        P, Pm = T1, T0
        def fma(x):
            A("v_fma_f32 %s, %s, %s, -%s" % (v(x), v(x), s(sC), v(m1)))
        def ex(x):
            A("v_exp_f32 %s, %s" % (v(x), v(x)))
        def M16(d, a_):
            A("v_mfma_f32_16x16x16_bf16 %s, %s, %s, 0" % (v(d, 4), v(a_, 2), v(Pm, 2)))
        fma(T0); fma(T0 + 1); ex(T0); ex(T0 + 1)
        fma(sv[0])
        A("v_cvt_pk_bf16_f32 %s, %s, %s" % (v(Pm), v(T0), v(T0 + 1)))
        A("v_mov_b32 %s, 0" % v(Pm + 1))
        fma(sv[1]); fma(sv[2])
        M16(LACC, ONES)
        fma(sv[3]); fma(sv[4])
        M16(OACC, VACC)
        fma(sv[5]); fma(sv[6])
        M16(OACC + 4, VACC + 4)
        fma(sv[7])
        for x in sv[:8]:
            ex(x)
        A("v_cvt_pk_bf16_f32 %s, %s, %s" % (v(P), v(T1), v(T1 + 1)))
        A("v_cvt_pk_bf16_f32 %s, %s, %s" % (v(P + 1), v(T1 + 2), v(T1 + 3)))
        A("v_cvt_pk_bf16_f32 %s, %s, %s" % (v(P + 2), v(T2), v(T2 + 1)))
        A("v_cvt_pk_bf16_f32 %s, %s, %s" % (v(P + 3), v(T2 + 2), v(T2 + 3)))
        A.wait_ds('vx')
        A("v_mov_b64 %s, 0" % v(44, 2))
        MF(LACC, ONES, P, v(LACC, 4))
        if FP == 2:
            stamp(True)
        if "vn" in opt:
            A(kd[3])
        MF(OACC, QK, P, v(OACC, 4))
        if "vn" in opt:
            A.vmem(kd[4], 'vdma')
        MF(OACC + 4, QK + 4, P, v(OACC + 4, 4))
        if "vn" in opt:
            A.vmem(kd[5], 'vdma')
        zero(12, 24)
        A("v_rcp_f32 %s, %s" % (v(vTmp), v(LACC)))
        if FP == 2:
            stamp(True)
        A("v_mov_b64 %s, 0" % v(24, 2))
        for i in range(8):
            A("v_mul_f32 %s, %s, %s" % (v(OACC + i), v(OACC + i), v(vTmp)))
        OP = T2
        for i in range(4):
            A("v_cvt_pk_bf16_f32 %s, %s, %s" % (v(OP + i), v(OACC + 2 * i), v(OACC + 2 * i + 1)))
        if "oex" in opt:
            A("s_mov_b64 exec, %s" % s(sOex, 2))
        A.ds("ds_write_b128 %s, %s" % (v(vOw), v(OP, 4)), 'ow')
        if "oex" in opt:
            A("s_mov_b64 exec, -1")
        if FP == 2:
            stamp(True)
        A("v_mov_b64 %s, -1" % v(36, 2))
        A("v_cndmask_b32 %s, 0, 1, %s" % (v(vTmp), s(sTagM, 2)))
        A.vmem("buffer_store_dwordx2 %s, %s, %s, %s offen%s" % (v(36, 2), v(vRst), s(sWS, 4), s(sX2), SC), 'rst')
        zero(26, 36)
        A.wait_ds('ow')
        A("s_barrier")
        if FP == 2:
            stamp(True)
        OF = LND + 16
        for c2 in range(2):
            A.ds("ds_read_b128 %s, %s offset:%d" % (v(OF + 4 * c2, 4), v(vL16), L_O + c2 * 1024), ('of', c2))
        stamp()
        zero(36, 44)
        zero(46, 48)
        def wacc(tile):
            return 12 + 4 * tile
        def W(p, c2):
            key = ('o', 2 * p + c2)
            wait_many([('of', c2), key])
            SM(wacc(p), OF + 4 * c2, R(WREGS[key], 8) if key in WREGS else v(LND + 8 * SLOT[key], 8))
            if c2 == 0 and FP == 1:
                stamp(True)
        def e1(tile):
            b = wacc(tile)
            A("v_add_f32 %s, %s, %s" % (v(b + 1), v(b), v(b + 1)))
            A("v_add_f32 %s, %s, %s" % (v(b + 3), v(b + 2), v(b + 3)))
        def e2(tile):
            b = wacc(tile)
            A("v_cvt_pk_bf16_f32 %s, %s, %s" % (v(b), v(b + 1), v(b + 3)))
            A("v_bfi_b32 %s, %s, %s, %s" % (v(b), v(vTmp), s(sPh), v(b)))
        def e3(tile):
            A("buffer_store_dword %s, %s, %s, %s offen%s" % (v(wacc(tile)), v(vPst), s(sWS, 4), s(sPt + tile), SC))
        LO = lambda n, hh: land(('o', n), hh)
        W(0, 0)
        if FP == 2:
            stamp(True)
        LO(8, 0)
        W(0, 1); LO(8, 1)
        A("s_add_u32 %s, %s, %d" % (s(sKVt), s(sKVt), KVINC))
        W(1, 0); LO(9, 0)
        A("s_add_u32 %s, %s, %d" % (s(sKV), s(sKV), KVINC))
        W(1, 1); LO(9, 1)
        A("s_add_u32 %s, %s, %d" % (s(sKVv), s(sKVv), KVINC))
        e1(0)
        for p in range(2, 9):
            W(p, 0)
            if p == 5:
                LO(16, 0)
            if p == 6:
                LO(17, 0)
            if p == 2:
                A("s_cmp_ge_u32 %s, 32" % s(sUnit))
            e2(p - 2)
            W(p, 1); e3(p - 2)
            if p == 5:
                LO(16, 1)
            if p == 6:
                LO(17, 1)
            e1(p - 1)
        EP = optval("ep", 0)
        def wtail(early):
            if early and EP == 3:
                poll1_issue(PLA)
            e2(7); e3(7)
            if early and EP == 1:
                poll1_issue(PLA)
            A("s_nop 1")
            e1(8); e2(8); e3(8)
            if stamps and "fine" not in opt:
                A("s_memrealtime %s" % s(sStamp + 16, 2))
            if FP == 1:
                stamp(True)
        if EP:
            lw = A.new("wt")
            A("s_cbranch_scc0 %s" % lw)
            wtail(False)
            A("s_branch %s" % lnored)
            A.label(lw)
            wtail(True)
        else:
            wtail(False)
            A("s_cbranch_scc1 %s" % lnored)
        def prep():
            mksel()
            rotate()
            for i in range(0, 8, 2):
                A("v_mov_b64 %s, -1" % v(RING + i, 2))
            A("v_mov_b32 %s, %d" % (v(46), L_FLAG))
            A("v_mov_b32 %s, %s" % (v(47), s(sStep)))
        l1b = A.new("p1b")
        if EP:
            if "eb2" in opt:
                prep()
                poll1_issue(PLB)
            else:
                poll1_issue(PLB)
                prep()
            reduce_body(PLA, 4 + EP)
            A("s_cbranch_vccz %s" % lok1)
            A("s_branch %s" % l1b)
        A.label(lgo1)
        poll1_issue(PLA)
        stamp()
        prep()
        poll1_issue(PLB)
        A.label(l1a)
        reduce_body(PLA, 4)
        A("s_cbranch_vccz %s" % lok1)
        A.label(l1b)
        if "tt" in opt:
            A("s_add_u32 s87, s87, 1")
        poll1_issue(PLA)
        reduce_body(PLB, 4)
        A("s_cbranch_vccz %s" % lok1)
        if "tt" in opt:
            A("s_add_u32 s87, s87, 1")
        poll1_issue(PLB)
        A("s_sub_u32 %s, %s, 1" % (s(sBud), s(sBud)))
        A("s_cbranch_scc0 %s" % l1a)
        A("s_mov_b32 %s, 0" % s(sBud))
        A.label(lok1)
        def finish(nop):
            A("s_nop %d" % nop)
            for i in range(4):
                A("v_add_f32_dpp %s, %s, %s row_ror:8 row_mask:0xf bank_mask:0xf" % (v(RACC + i), v(RACC + i), v(RACC + i)))
            A("v_cvt_pk_bf16_f32 %s, %s, %s" % (v(44), v(RACC), v(RACC + 1)))
            A("v_cvt_pk_bf16_f32 %s, %s, %s" % (v(45), v(RACC + 2), v(RACC + 3)))
            A("buffer_store_dwordx2 %s, %s, %s, %s offen%s" % (v(44, 2), v(vRst), s(sWS, 4), s(sX0), SC))
        if "lsep" in opt:
            le = A.new("efin")
            A("s_cmp_lt_u32 %s, 32" % s(sUnit))
            A("s_cbranch_scc1 %s" % le)
            s1load(RING)
            finish(0)
            A("s_waitcnt vmcnt(3)")
            for ch in QK_CHAIN:
                land(ch[0])
            zero(VACC, RING)
            A("s_xor_b32 %s, %s, 1" % (s(sPh), s(sPh)))
            if "l2nd" in opt:
                s1load(RING)
                A("s_waitcnt vmcnt(3) lgkmcnt(0)")
            else:
                A("s_waitcnt vmcnt(1) lgkmcnt(0)")
            A("s_branch %s" % ls1w)
            A.label(le)
            A("ds_write_b32 %s, %s" % (v(46), v(47)))
            finish(0)
        else:
            A("ds_write_b32 %s, %s" % (v(46), v(47)))
            finish(2)
        stamp()
        A.label(lb4)
        for i in range(optval("g1", 0)):
            A("s_nop 7")
        if "late" in opt:
            A("s_waitcnt vmcnt(1)")
        else:
            s1load(RING)
            A("s_waitcnt vmcnt(%d)" % (5 if "early1" in opt else 3))
        for ch in QK_CHAIN:
            land(ch[0])
        zero(VACC, RING)
        A("s_xor_b32 %s, %s, 1" % (s(sPh), s(sPh)))
        if "late" in opt:
            s1load(RING)
        for i in range(optval("g2", 0)):
            A("s_nop 7")
        if "r2" in opt:
            s1load(RING)
            A("s_waitcnt vmcnt(2)")
        if "first0" in opt:
            A("s_waitcnt vmcnt(0)")
        A("s_waitcnt lgkmcnt(0)")
        if stamps and "rt" not in opt:
            ldump = A.new("dump")
            A("s_cmp_eq_u32 %s, 41" % s(sStep))
            A("s_cbranch_scc1 %s" % ldump)
            A("s_cmp_eq_u32 %s, 42" % s(sStep))
            A("s_cbranch_scc0 %s" % ls1w)
            A.label(ldump)
            for i in range(10):
                A("v_writelane_b32 %s, %s, %d" % (v(vTmp), s(sStamp + 2 * i), i))
            A("v_writelane_b32 %s, %s, %d" % (v(vTmp), s(sBud), 15))
            A("s_lshl_b32 %s, %s, 2" % (s(sT), s(sCU)))
            A("s_add_u32 %s, %s, %s" % (s(sT), s(sT), s(sW)))
            A("s_lshl_b32 %s, %s, 1" % (s(sT), s(sT)))
            A("s_add_u32 %s, %s, %s" % (s(sT), s(sT), s(sStep)))
            A("s_sub_u32 %s, %s, 41" % (s(sT), s(sT)))
            A("s_lshl_b32 %s, %s, 10" % (s(sT), s(sT)))
            A("s_add_u32 %s, %s, %d" % (s(sT), s(sT), WS_DBG + (3 << 18 if "mega" in opt else 0)))
            A("buffer_store_dword %s, %s, %s, %s offen" % (v(vTmp), v(vL16), s(sWS, 4), s(sT)))
            A("s_waitcnt vmcnt(0)")
        A("s_branch %s" % ls1w)
        A.label(ls1r + "_give")
        A("s_mov_b32 %s, 0" % s(sBud))
        A("s_branch %s" % lentry)
        if "qf" in opt:
            A.label(lexit + "_l")
            A.lds, A.vm = last_state
            VS(8, 0); VS(8, 1); VS(6, 0); VS(6, 1)
            A.wait_ds(('ring', 5))
            A.wait_vm(L2KEY)
            VS(5, 0, RING); VS(5, 1, RING)
            fin(QK + 8)
            pub(QK + 8, 0)
            pub(QK + 9, 256)
            vfin(0, 0); vfin(0, 1)
            pub(VACC, 512)
            vfin(1, 0); vfin(1, 1)
            pub(VACC + 4, 768)
        A.label(lexit)
        if "tt" in opt:
            A("s_memtime s[94:95]")
            A("s_memrealtime s[70:71]")
            A("s_waitcnt lgkmcnt(0)")
            A("s_sub_u32 s94, s94, s92")
            A("s_sub_u32 s92, s92, s90")
            A("v_writelane_b32 %s, s92, 0" % v(vTmp))
            A("v_writelane_b32 %s, s94, 1" % v(vTmp))
            A("v_writelane_b32 %s, %s, 2" % (v(vTmp), s(sBud)))
            for i in range(3):
                A("v_writelane_b32 %s, s%d, %d" % (v(vTmp), 87 + i, 3 + i))
            for i in range(4):
                A("v_writelane_b32 %s, s%d, %d" % (v(vTmp), 64 + 2 * i, 6 + i))
            A("s_lshl_b32 %s, %s, 2" % (s(sT), s(sCU)))
            A("s_add_u32 %s, %s, %s" % (s(sT), s(sT), s(sW)))
            A("s_lshl_b32 %s, %s, 10" % (s(sT), s(sT)))
            A("s_add_u32 %s, %s, %d" % (s(sT), s(sT), WS_DBG + (1 << 19)))
            A("buffer_store_dword %s, %s, %s, %s offen" % (v(vTmp), v(vL16), s(sWS, 4), s(sT)))
            if "dbgout" in opt:
                for i, o in enumerate((4, 8, 12, 20)):
                    A("v_mov_b32 %s, s%d" % (v(vTmp), 64 + 2 * i))
                    A("buffer_atomic_umax %s, off, %s, 0 offset:%d" % (v(vTmp), s(sDBG, 4), o))
        A("s_waitcnt vmcnt(0)")

    loop(" sc1" if "forcesc1" in opt else "")
    A("s_endpgm")
    A.label(lslow)
    nst[0] = 0
    loop(" sc1")
```

```python
from asmlib import *
from layout import *
import struct, math

def f32bits(x):
    return struct.unpack("<I", struct.pack("<f", x))[0]

sWS, sW1, sW2, sW3, sWO, sXS, sDBG = 4, 8, 12, 16, 20, 24, 28
sWid, sW, sSl, sRep, sSeg, sBud = 32, 33, 34, 35, 36, 37
sA0 = 38
sT = 60
sMask = 64
sSel = 80
vL16, vLane, vG, vC, vX, vTmp, vFl = 0, 1, 2, 3, 4, 5, 6
NSLOT = 9
L_SCR = 147456
FAST0 = 56

TS = {'on': False, 'reg': 15}
sTsI = 98
def ts(A, idx=None):
    if not TS['on'] or (TS.get('fine') and idx is None):
        return
    A("s_memrealtime s[96:97]")
    A("s_waitcnt lgkmcnt(0)")
    A.lds = []
    if idx is None:
        A("s_mov_b32 m0, %s" % s(sTsI))
        A("s_add_u32 %s, %s, 1" % (s(sTsI), s(sTsI)))
        A("v_writelane_b32 %s, s96, m0" % v(TS['reg']))
    else:
        A("v_writelane_b32 %s, s96, %d" % (v(TS['reg']), idx))
def fs(A, idx):
    if TS.get('fine'):
        A("s_memtime s[96:97]")
        A("s_waitcnt lgkmcnt(0)")
        A.lds = []
        A("v_writelane_b32 %s, s96, %d" % (v(TS['reg']), idx))
def ts_dump(A, part):
    if not TS['on']:
        return
    A("s_lshl_b32 s96, %s, 2" % s(sWid))
    A("s_add_u32 s96, s96, %s" % s(sW))
    A("s_lshl_b32 s96, s96, 9")
    A("s_add_u32 s96, s96, %d" % (WS_DBG + part * 256))
    A("v_lshlrev_b32 %s, 2, %s" % (v(vTmp), v(vLane)))
    A("buffer_store_dword %s, %s, %s, s96 offen" % (v(TS['reg']), v(vTmp), s(sWS, 4)))
    A("s_waitcnt vmcnt(0)")
    A("s_mov_b32 %s, 0" % s(sTsI))

def build_srd(A, d, karg, nbytes):
    A("s_load_dwordx2 %s, s[0:1], %d" % (s(d, 2), karg))
    A("s_waitcnt lgkmcnt(0)")
    A("s_and_b32 %s, %s, 0xffff" % (s(d + 1), s(d + 1)))
    A("s_mov_b32 %s, %d" % (s(d + 2), nbytes))
    A("s_mov_b32 %s, 0x20000" % s(d + 3))

def wait_flags(A, voff, soff, srd=sWS, cmp_ge=None, imm=0):
    lp, ok = A.new("wf"), A.new("wfok")
    A.label(lp)
    if voff is None:
        A("buffer_load_dword %s, off, %s, %s offset:%d sc1" % (v(vTmp), s(srd, 4), soff, imm))
    else:
        A("buffer_load_dword %s, %s, %s, %s offen offset:%d sc1" % (v(vTmp), v(voff), s(srd, 4), soff, imm))
    A("s_waitcnt vmcnt(0)")
    if cmp_ge is None:
        A("v_cmp_eq_u32 vcc, 0, %s" % v(vTmp))
    else:
        A("v_cmp_gt_u32 vcc, %d, %s" % (cmp_ge, v(vTmp)))
    A("s_cbranch_vccz %s" % ok)
    A("s_sleep %d" % TS.get('slp', 2))
    A("s_sub_u32 %s, %s, 1" % (s(sBud), s(sBud)))
    A("s_cbranch_scc0 %s" % lp)
    A("s_mov_b32 %s, 0" % s(sBud))
    A.label(ok)
    A.vm = []

def wait_ready(A, soff, n):
    if TS.get('cnt') and n != 128:
        wait_flags(A, None, soff, cmp_ge=n)
    else:
        wait_flags(A, None, soff, imm=128)

def set_flag(A, soff, wave0_only=True):
    sk = A.new("sf")
    if wave0_only:
        A("s_cmp_lg_u32 %s, 0" % s(sW))
        A("s_cbranch_scc1 %s" % sk)
    A("s_mov_b64 exec, 1")
    A("v_mov_b32 %s, 1" % v(vTmp))
    A("buffer_store_dword %s, off, %s, %s sc1" % (v(vTmp), s(sWS, 4), soff))
    A("s_mov_b64 exec, -1")
    A.label(sk)

def arrive(A, soff, n, wave0_only=True):
    sk = A.new("ar")
    if wave0_only:
        A("s_cmp_lg_u32 %s, 0" % s(sW))
        A("s_cbranch_scc1 %s" % sk)
    A("s_mov_b64 exec, 1")
    A("v_mov_b32 %s, 1" % v(vTmp))
    if TS.get('cnt') and n != 128:
        A("buffer_atomic_add %s, off, %s, %s" % (v(vTmp), s(sWS, 4), soff))
        A("s_mov_b64 exec, -1")
        A.label(sk)
        return
    A("buffer_atomic_add %s, off, %s, %s sc0" % (v(vTmp), s(sWS, 4), soff))
    A("s_waitcnt vmcnt(0)")
    A("v_cmpx_eq_u32 vcc, %d, %s" % (n - 1, v(vTmp)))
    A("s_cbranch_execz %s_x" % sk)
    A("buffer_store_dword %s, off, %s, %s offset:128 sc1" % (v(vTmp), s(sWS, 4), soff))
    A.label(sk + "_x")
    A("s_mov_b64 exec, -1")
    A.label(sk)

def canary(A, soff, imm=0, voff=None):
    lp, ok = A.new("cn"), A.new("cnok")
    A.label(lp)
    if voff is None:
        A("buffer_load_dword %s, off, %s, %s offset:%d sc1" % (v(vTmp), s(sWS, 4), soff, imm))
    else:
        A("buffer_load_dword %s, %s, %s, %s offen offset:%d sc1" % (v(vTmp), v(voff), s(sWS, 4), soff, imm))
    A("s_waitcnt vmcnt(0)")
    A("v_cmp_eq_u32 vcc, -1, %s" % v(vTmp))
    A("s_cbranch_vccz %s" % ok)
    A("s_sleep 1")
    A("s_sub_u32 %s, %s, 1" % (s(sBud), s(sBud)))
    A("s_cbranch_scc0 %s" % lp)
    A("s_mov_b32 %s, 0" % s(sBud))
    A.label(ok)
def maxchain(A, regs, first):
    regs = list(regs)
    if first:
        A("v_max_u32 %s, %s, %s" % (v(vTmp), v(regs[0]), v(regs[1])))
        regs = regs[2:]
    for i in range(0, len(regs), 2):
        A("v_max3_u32 %s, %s, %s, %s" % (v(vTmp), v(vTmp), v(regs[i]), v(regs[i + 1])))
def retry_if_sentinel(A, lagain):
    ok = A.new("sok")
    A("v_cmp_eq_u32 vcc, -1, %s" % v(vTmp))
    A("s_cbranch_vccz %s" % ok)
    A("s_sub_u32 %s, %s, 1" % (s(sBud), s(sBud)))
    A("s_cbranch_scc0 %s" % lagain)
    A("s_mov_b32 %s, 0" % s(sBud))
    A.label(ok)

def MF(A, d, a_, b_, c_):
    A("v_mfma_f32_16x16x32_bf16 %s, %s, %s, %s" % (d, a_, b_, c_))

sLW = 99
def stage_issue(A, chunks, c):
    srd, voff, so, _ = chunks[c]
    for j in range(4):
        A("s_add_u32 m0, %s, %d" % (s(sLW), (c % NSLOT) * 16384 + j * 1024))
        A("s_mov_b32 %s, %d" % (s(sT + 2), so[j]))
        A.vmem("buffer_load_dwordx4 %s, %s, %s offen lds" % (v(voff), s(srd, 4), s(sT + 2)), ('c', c))
def stage_start(A, chunks, depth=NSLOT - 1):
    A("s_lshl_b32 %s, %s, 12" % (s(sLW), s(sW)))
    for c in range(min(depth, len(chunks))):
        stage_issue(A, chunks, c)
def stage(A, chunks, started=False, depth=NSLOT - 1):
    if not started:
        stage_start(A, chunks, depth)
    n = len(chunks)
    for c in range(n):
        A.wait_vm(('c', c))
        A("s_barrier")
        if c + depth < n:
            stage_issue(A, chunks, c + depth)
        chunks[c][3]((c % NSLOT) * 16384)
        A.wait_ds()
    A("s_barrier")

def wide_off(A, dst, t1, rowstride, s_extra):
    A("v_lshlrev_b32 %s, 2, %s" % (v(t1), v(vG)))
    A("v_sub_u32 %s, %s, %s" % (v(t1), v(vLane), v(t1)))
    A("v_and_b32 %s, 15, %s" % (v(t1), v(t1)))
    A("v_lshlrev_b32 %s, 4, %s" % (v(t1), v(t1)))
    A("v_mul_u32_u24 %s, %d, %s" % (v(dst), rowstride, v(vG)))
    A("v_add_u32 %s, %s, %s" % (v(dst), v(dst), v(t1)))
    A("s_mul_i32 %s, %s, %d" % (s(sT + 3), s(sW), 16 * rowstride))
    A("s_add_u32 %s, %s, %s" % (s(sT + 3), s(sT + 3), s_extra))
    A("v_add_u32 %s, %s, %s" % (v(dst), s(sT + 3), v(dst)))

def wide_tr(A, dst, t1, s_col, ccmul):
    A("v_mul_u32_u24 %s, %d, %s" % (v(t1), ccmul, v(vX)))
    A("v_lshl_add_u32 %s, %s, 2, %s" % (v(t1), v(vC), v(t1)))
    A("v_add_u32 %s, %s, %s" % (v(t1), s_col, v(t1)))
    A("v_and_b32 %s, 15, %s" % (v(t1), v(t1)))
    A("v_lshlrev_b32 %s, 4, %s" % (v(t1), v(t1)))
    A("v_lshl_add_u32 %s, %s, 3, %s" % (v(dst), v(vG), v(vC)))
    A("v_lshl_add_u32 %s, %s, 8, %s" % (v(dst), v(dst), v(t1)))

def tall_off(A, dst, t1, s_extra):
    A("v_lshrrev_b32 %s, 3, %s" % (v(t1), v(vLane)))
    A("v_mul_u32_u24 %s, 1152, %s" % (v(dst), v(t1)))
    A("v_and_b32 %s, 7, %s" % (v(t1), v(vLane)))
    A("v_lshl_add_u32 %s, %s, 4, %s" % (v(dst), v(t1), v(dst)))
    A("s_mul_i32 %s, %s, %d" % (s(sT + 3), s(sW), 32 * 1152))
    A("s_add_u32 %s, %s, %s" % (s(sT + 3), s(sT + 3), s_extra))
    A("v_add_u32 %s, %s, %s" % (v(dst), s(sT + 3), v(dst)))

def tall_tr(A, dst, kbshift):
    A("v_lshl_add_u32 %s, %s, %d, %s" % (v(dst), v(vG), kbshift, v(vC)))
    A("v_lshlrev_b32 %s, 7, %s" % (v(dst), v(dst)))
    A("v_lshl_add_u32 %s, %s, 3, %s" % (v(dst), v(vX), v(dst)))
    A("s_lshl_b32 %s, %s, 5" % (s(sT + 3), s(sW)))
    A("v_add_u32 %s, %s, %s" % (v(dst), s(sT + 3), v(dst)))

def tr2(A, reg, addr, imm0, imm1):
    A.ds("ds_read_b64_tr_b16 %s, %s offset:%d" % (R(reg, 2), v(addr), imm0))
    A.ds("ds_read_b64_tr_b16 %s, %s offset:%d" % (R(reg + 2, 2), v(addr), imm1))

def x_dma(A, vXo, sSrc, sM0):
    for i in range(9):
        A("s_add_u32 m0, %s, %d" % (s(sM0), 896 * i))
        A("s_nop 0")
        A.vmem("buffer_load_dwordx4 %s, %s, %s offen offset:%d sc1 lds" % (v(vXo), s(sWS, 4), s(sSrc), 128 * i), 'x')

def gemm576(A, vXa, LAND, wreg, acc, ntile, swap, mid=None):
    def rd(ks):
        for tt in range(2):
            A.ds("ds_read_b128 %s, %s offset:%d" % (v(LAND + 8 * (ks & 1) + 4 * tt, 4), v(vXa + (ks & 1)), 18432 * tt + (ks >> 1) * 1024), ('x', ks))
    rd(0)
    for ks in range(18):
        A.wait_ds(('x', ks))
        n = 0
        for t in range(ntile):
            for tt in range(2):
                x = v(LAND + 8 * (ks & 1) + 4 * tt, 4)
                w = R(wreg(t, ks), 4)
                d = v(acc(t, tt), 4)
                if swap(t):
                    MF(A, d, x, w, "0" if ks == 0 else d)
                else:
                    MF(A, d, w, x, "0" if ks == 0 else d)
                n += 1
                if n == 1 and ks + 1 < 18:
                    rd(ks + 1)
        if mid and ks == 4:
            mid()

def wave_sum(A, r, t):
    for k in (8, 4, 2, 1):
        A("s_nop 1")
        A("v_add_f32_dpp %s, %s, %s row_ror:%d row_mask:0xf bank_mask:0xf" % (v(r), v(r), v(r), k))
    for op in ("v_permlane16_swap_b32", "v_permlane32_swap_b32"):
        A("v_mov_b32 %s, %s" % (v(t), v(r)))
        A("s_nop 1")
        A("%s %s, %s" % (op, v(r), v(t)))
        A("v_add_f32 %s, %s, %s" % (v(r), v(r), v(t)))

def rnd2(A, a, b):
    A("v_cvt_pk_bf16_f32 %s, %s, %s" % (v(b), v(a), v(b)))
    A("v_lshlrev_b32 %s, 16, %s" % (v(a), v(b)))
    A("v_and_b32 %s, 0xffff0000, %s" % (v(b), v(b)))
def rnd1(A, a):
    A("v_cvt_pk_bf16_f32 %s, %s, %s" % (v(a), v(a), v(a)))
    A("v_and_b32 %s, 0xffff0000, %s" % (v(a), v(a)))
def unpack(A, lo, hi, src):
    A("v_and_b32 %s, 0xffff0000, %s" % (v(hi), v(src))) if hi != src else None
    A("v_lshlrev_b32 %s, 16, %s" % (v(lo), v(src)))
    if hi == src:
        A("v_and_b32 %s, 0xffff0000, %s" % (v(hi), v(src)))

def row_offsets(A, vRow, vRow2, svalid, t):
    A("v_and_b32 %s, 7, %s" % (v(t), v(vLane)))
    A("v_lshlrev_b32 %s, 4, %s" % (v(vRow), v(t)))
    A("v_bfe_u32 %s, %s, 3, 1" % (v(t), v(vLane)))
    A("v_lshl_add_u32 %s, %s, 8, %s" % (v(vRow), v(t), v(vRow)))
    A("v_lshrrev_b32 %s, 1, %s" % (v(t), v(vG)))
    A("v_lshl_add_u32 %s, %s, 7, %s" % (v(vRow), v(t), v(vRow)))
    A("v_and_b32 %s, 1, %s" % (v(t), v(vG)))
    A("v_lshl_add_u32 %s, %s, 3, %s" % (v(vRow), v(t), v(vRow)))
    A("s_mov_b32 %s, 0x00ff00ff" % s(svalid))
    A("s_mov_b32 %s, 0" % s(svalid + 1))
    A("v_mov_b32 %s, 0x%x" % (v(t), OOB >> 1))
    A("v_cndmask_b32 %s, %s, %s, %s" % (v(vRow2), v(t), v(vRow), s(svalid, 2)))

def load_mod(A, dst, which, vRow, vRow2, t1, t2):
    A("v_lshlrev_b32 %s, 1, %s" % (v(t1), v(vRow)))
    A("v_lshlrev_b32 %s, 1, %s" % (v(t2), v(vRow2)))
    A("s_mov_b32 %s, %d" % (s(sT + 2), WS_MOD + which * 2304))
    for U in range(3):
        A.vmem("buffer_load_dwordx4 %s, %s, %s, %s offen offset:%d sc1" % (v(dst + 4 * U, 4), v(t1 if U < 2 else t2), s(sWS, 4), s(sT + 2), 1024 * U), 'mod')

def ln_stats(A, X, D, svalid, m, rs, t):
    A("v_add_f32 %s, %s, %s" % (v(m), v(X), v(X + 1)))
    for i in range(2, 12):
        A("v_add_f32 %s, %s, %s" % (v(m), v(m), v(X + i)))
    wave_sum(A, m, t)
    A("v_mul_f32 %s, 0x%x, %s" % (v(m), f32bits(1.0 / 576), v(m)))
    for i in range(12):
        A("v_sub_f32 %s, %s, %s" % (v(D + i), v(X + i), v(m)))
    A("v_mul_f32 %s, %s, %s" % (v(rs), v(D + 8), v(D + 8)))
    for i in range(9, 12):
        A("v_fmac_f32 %s, %s, %s" % (v(rs), v(D + i), v(D + i)))
    A("v_cndmask_b32 %s, 0, %s, %s" % (v(rs), v(rs), s(svalid, 2)))
    for i in range(8):
        A("v_fmac_f32 %s, %s, %s" % (v(rs), v(D + i), v(D + i)))
    wave_sum(A, rs, t)
    A("v_mul_f32 %s, 0x%x, %s" % (v(rs), f32bits(1.0 / 576), v(rs)))
    rnd2(A, m, rs)
    A("v_add_f32 %s, 0x%x, %s" % (v(rs), f32bits(1e-5), v(rs)))
    rnd1(A, rs)
    A("v_sqrt_f32 %s, %s" % (v(rs), v(rs)))
    A("s_nop 0")
    rnd1(A, rs)
    A("v_rcp_f32 %s, %s" % (v(rs), v(rs)))
    A("s_nop 0")

def ln_apply(A, X, m, rs, C1, SH, out):
    for i in range(12):
        A("v_sub_f32 %s, %s, %s" % (v(X + i), v(X + i), v(m)))
    for i in range(0, 12, 2):
        rnd2(A, X + i, X + i + 1)
    for i in range(12):
        A("v_mul_f32 %s, %s, %s" % (v(X + i), v(X + i), v(rs)))
    for i in range(0, 12, 2):
        rnd2(A, X + i, X + i + 1)
    for i in range(12):
        A("v_mul_f32 %s, %s, %s" % (v(X + i), v(X + i), v(C1 + i)))
    for i in range(0, 12, 2):
        rnd2(A, X + i, X + i + 1)
    for i in range(12):
        A("v_add_f32 %s, %s, %s" % (v(X + i), v(X + i), v(SH + i)))
    for i in range(6):
        A("v_cvt_pk_bf16_f32 %s, %s, %s" % (v(out + i), v(X + 2 * i), v(X + 2 * i + 1)))

def one_plus(A, C):
    for i in range(12):
        A("v_add_f32 %s, 1.0, %s" % (v(C + i), v(C + i)))
    for i in range(0, 12, 2):
        rnd2(A, C + i, C + i + 1)

def row_io(A, op, reg, vRow, vRow2, srd, soff, flags=""):
    for U in range(3):
        A.vmem("buffer_%s_dwordx2 %s, %s, %s, %s offen offset:%d%s" % (op, v(reg + 2 * U, 2), v(vRow if U < 2 else vRow2), s(srd, 4), soff, 512 * U, flags), 'row')

def sel_masks(A):
    for hi in range(2):
        for u in range(4):
            m16 = (3 << (2 * u)) << (8 * hi)
            m32 = m16 | (m16 << 16)
            A("s_mov_b32 %s, 0x%x" % (s(sSel + 8 * hi + 2 * u), m32))
            A("s_mov_b32 %s, 0x%x" % (s(sSel + 8 * hi + 2 * u + 1), m32))
def make_sel(A, dst, hi, t):
    A("v_and_b32 %s, 1, %s" % (v(t), v(vLane)))
    A("v_lshlrev_b32 %s, 4, %s" % (v(t), v(t)))
    A("v_mov_b32 %s, 0x3f80" % v(dst))
    A("v_lshlrev_b32 %s, %s, %s" % (v(t), v(t), v(dst)))
    for u in range(4):
        A("v_cndmask_b32 %s, 0, %s, %s" % (v(dst + u), v(t), s(sSel + 8 * hi + 2 * u, 2)))

def emit_worker(A, opt=()):
    A.c("=========== worker ===========")
    A("v_mov_b32 %s, v0" % v(vLane))
    A("v_lshlrev_b32 %s, 4, %s" % (v(vL16), v(vLane)))
    A("v_lshrrev_b32 %s, 4, %s" % (v(vG), v(vLane)))
    A("v_bfe_u32 %s, %s, 2, 2" % (v(vC), v(vLane)))
    A("v_and_b32 %s, 3, %s" % (v(vX), v(vLane)))
    A("s_mov_b32 %s, 1000000" % s(sBud))
    TS['on'], TS['reg'], TS['fine'] = "ts" in opt, 79, "fs" in opt
    TS['cnt'] = "cnt" in opt
    TS['slp'] = ([int(o[4:]) for o in opt if o.startswith("slp=")] + [2])[0]
    TS['d2'] = ([int(o[3:]) for o in opt if o.startswith("d2=")] + [2])[0]
    ts(A, 0)
    sel_masks(A)
    build_srd(A, sXS, 0, 2359296)
    vRow, vRow2 = 7, 8
    sValid = sMask
    row_offsets(A, vRow, vRow2, sValid, vTmp)
    A("s_mul_i32 %s, %s, 9363" % (s(sSl), s(sWid)))
    A("s_lshr_b32 %s, %s, 16" % (s(sSl), s(sSl)))
    A("s_mul_i32 %s, %s, 7" % (s(sT), s(sSl)))
    A("s_sub_u32 %s, %s, %s" % (s(sRep), s(sWid), s(sT)))
    vOffW, vTr, vAd = 77, 78, 11
    A("s_lshl_b32 %s, %s, 8" % (s(sT + 1), s(sSl)))
    wide_off(A, vOffW, vTmp, 8192, s(sT + 1))
    A("s_lshr_b32 %s, %s, 1" % (s(sT + 1), s(sW)))
    A("s_lshl_b32 %s, %s, 3" % (s(sT + 1), s(sT + 1)))
    A("s_and_b32 %s, %s, 1" % (s(sT + 2), s(sW)))
    A("s_add_u32 %s, %s, %s" % (s(sT + 1), s(sT + 1), s(sT + 2)))
    wide_tr(A, vTr, vTmp, s(sT + 1), 2)
    W0 = 80
    def wq(t, ks):
        return W0 + 4 * (6 * ks + t)
    def wide_chunks(mats, rowstride, wreg, vOffW=vOffW, vTr=vTr):
        out = []
        for G in range(9):
            for m, srd in enumerate(mats):
                def consume(base, m=m, G=G):
                    A("v_add_u32 %s, %d, %s" % (v(vAd), base, v(vTr)))
                    for k2 in range(2):
                        for t in range(2):
                            tr2(A, wreg(2 * m + t, 2 * G + k2), vAd, 32 * k2 * 256 + 8 * t, (32 * k2 + 4) * 256 + 8 * t)
                out.append((srd, vOffW, [(64 * G + 4 * j) * rowstride for j in range(4)], consume))
        return out
    qchunks = wide_chunks((sW1, sW2, sW3), 8192, wq)
    lmod, lpre_done, lidle = A.new("mod"), A.new("predone"), A.new("idle")
    XR = 16
    A("s_cmp_lt_u32 %s, 3" % s(sRep))
    A("s_cbranch_scc1 %s" % lmod)
    A("s_lshl_b32 %s, %s, 2" % (s(sT), s(sSl)))
    A("s_add_u32 %s, %s, %s" % (s(sT), s(sT), s(sRep)))
    A("s_sub_u32 %s, %s, 3" % (s(sT), s(sT)))
    A("s_lshl_b32 %s, %s, 2" % (s(sT), s(sT)))
    A("s_add_u32 %s, %s, %s" % (s(sT), s(sT), s(sW)))
    A("s_mul_i32 %s, %s, %d" % (s(sA0), s(sT), 4 * 1152))
    for r in range(4):
        A("s_add_u32 %s, %s, %d" % (s(sT), s(sA0), r * 1152))
        row_io(A, "load", XR + 6 * r, vRow, vRow2, sXS, s(sT))
    stage_start(A, qchunks)
    A("s_waitcnt vmcnt(%d)" % (4 * (NSLOT - 1)))
    SH, C1, XF = 40, 52, 100
    for r in range(4):
        for i in range(6):
            unpack(A, XF + 12 * r + 2 * i, XF + 12 * r + 2 * i + 1, XR + 6 * r + i)
        ln_stats(A, XF + 12 * r, 160, sValid, 64 + 2 * r, 65 + 2 * r, 11)
    wait_flags(A, None, "0", srd=sDBG, imm=DBG_MOD)
    load_mod(A, SH, 0, vRow, vRow2, 9, 10)
    load_mod(A, C1, 1, vRow, vRow2, 9, 10)
    A("s_waitcnt vmcnt(0)")
    one_plus(A, C1)
    for r in range(4):
        ln_apply(A, XF + 12 * r, 64 + 2 * r, 65 + 2 * r, C1, SH, XR + 6 * r)
        A("s_add_u32 %s, %s, %d" % (s(sT), s(sA0), WS_H + r * 1152))
        row_io(A, "store", XR + 6 * r, vRow, vRow2, sWS, s(sT), " sc1")
    A("s_waitcnt vmcnt(0)")
    A("s_barrier")
    A("s_mov_b32 %s, %d" % (s(sT), FL_H))
    arrive(A, s(sT), 128)
    A("s_branch %s" % lpre_done)

    A.label(lmod)
    A("s_cmp_eq_u32 %s, 0" % s(sRep))
    A("s_cbranch_scc1 %s" % lidle)
    A("s_cmp_ge_u32 %s, 27" % s(sSl))
    A("s_cbranch_scc1 %s" % lidle)
    build_srd(A, sA0 + 2, 88, 1152)
    build_srd(A, sA0 + 6, 96, 3981312)
    sCs, sWm = sA0 + 2, sA0 + 6
    A("s_lshl_b32 %s, %s, 1" % (s(sA0), s(sSl)))
    A("s_add_u32 %s, %s, %s" % (s(sA0), s(sA0), s(sRep)))
    A("s_sub_u32 %s, %s, 1" % (s(sA0), s(sA0)))
    for i in range(4):
        A("v_mov_b32 %s, 0" % v(12 + i))
    A("s_lshl_b32 %s, %s, 2" % (s(sT), s(sA0)))
    A("s_add_u32 %s, %s, %s" % (s(sT), s(sT), s(sW)))
    A("s_lshl_b32 %s, %s, 11" % (s(sT), s(sT)))
    A("s_add_u32 %s, %s, %d" % (s(sT), s(sT), WS_FL))
    assert FL_END - WS_FL <= 54 * 8192
    A("buffer_store_dwordx4 %s, %s, %s, %s offen sc1" % (v(12, 4), v(vL16), s(sWS, 4), s(sT)))
    A("buffer_store_dwordx4 %s, %s, %s, %s offen offset:1024 sc1" % (v(12, 4), v(vL16), s(sWS, 4), s(sT)))
    A("v_lshrrev_b32 %s, 3, %s" % (v(9), v(vLane)))
    A("s_mul_i32 %s, %s, 144" % (s(sT), s(sW)))
    A("v_add_u32 %s, %s, %s" % (v(9), s(sT), v(9)))
    A("v_lshlrev_b32 %s, 1, %s" % (v(10), v(9)))
    A("v_mul_u32_u24 %s, 6912, %s" % (v(9), v(9)))
    A("v_and_b32 %s, 7, %s" % (v(11), v(vLane)))
    A("v_lshl_add_u32 %s, %s, 4, %s" % (v(9), v(11), v(9)))
    A("s_lshl_b32 %s, %s, 7" % (s(sT), s(sA0)))
    CV, WV, ACC = 100, 120, 200
    for i in range(18):
        A("buffer_load_ushort %s, %s, %s, 0 offen offset:%d" % (v(CV + i), v(10), s(sCs, 4), 16 * i))
    for i in range(18):
        A("s_add_u32 %s, %s, %d" % (s(sT + 1), s(sT), i * 55296))
        A("buffer_load_dwordx4 %s, %s, %s, %s offen" % (v(WV + 4 * i, 4), v(9), s(sWm, 4), s(sT + 1)))
    A("s_waitcnt vmcnt(18)")
    for i in range(18):
        c = CV + i
        A("v_lshlrev_b32 %s, 16, %s" % (v(c), v(c)))
        A("v_mul_f32 %s, 0x%x, %s" % (v(12), f32bits(-math.log2(math.e)), v(c)))
        A("v_exp_f32 %s, %s" % (v(12), v(12)))
        A("s_nop 0")
        A("v_add_f32 %s, 1.0, %s" % (v(12), v(12)))
        A("v_rcp_f32 %s, %s" % (v(12), v(12)))
        A("s_nop 0")
        A("v_mul_f32 %s, %s, %s" % (v(c), v(c), v(12)))
        rnd1(A, c)
    for j in range(8):
        A("v_mov_b32 %s, 0" % v(ACC + j))
    A("s_waitcnt vmcnt(0)")
    for i in range(18):
        for j in range(4):
            unpack(A, 12, 13, WV + 4 * i + j)
            A("v_fmac_f32 %s, %s, %s" % (v(ACC + 2 * j), v(12), v(CV + i)))
            A("v_fmac_f32 %s, %s, %s" % (v(ACC + 2 * j + 1), v(13), v(CV + i)))
    for j in range(8):
        r = ACC + j
        A("s_nop 1")
        A("v_add_f32_dpp %s, %s, %s row_ror:8 row_mask:0xf bank_mask:0xf" % (v(r), v(r), v(r)))
        for op in ("v_permlane16_swap_b32", "v_permlane32_swap_b32"):
            A("v_mov_b32 %s, %s" % (v(12), v(r)))
            A("s_nop 1")
            A("%s %s, %s" % (op, v(r), v(12)))
            A("v_add_f32 %s, %s, %s" % (v(r), v(r), v(12)))
    A("s_lshl_b32 %s, %s, 8" % (s(sT + 1), s(sW)))
    A("s_add_u32 %s, %s, %d" % (s(sT + 1), s(sT + 1), L_SCR))
    A("v_lshlrev_b32 %s, 5, %s" % (v(11), v(11)))
    A("v_add_u32 %s, %s, %s" % (v(11), s(sT + 1), v(11)))
    A("ds_write_b128 %s, %s" % (v(11), v(ACC, 4)))
    A("ds_write_b128 %s, %s offset:16" % (v(11), v(ACC + 4, 4)))
    A("s_waitcnt lgkmcnt(0)")
    A("s_barrier")
    A("v_lshlrev_b32 %s, 2, %s" % (v(10), v(vLane)))
    A("v_add_u32 %s, %d, %s" % (v(11), L_SCR, v(10)))
    for i in range(4):
        A("ds_read_b32 %s, %s offset:%d" % (v(12 + i), v(11), 256 * i))
    A("s_waitcnt lgkmcnt(0)")
    A("v_add_f32 %s, %s, %s" % (v(12), v(12), v(13)))
    A("v_add_f32 %s, %s, %s" % (v(14), v(14), v(15)))
    A("v_add_f32 %s, %s, %s" % (v(12), v(12), v(14)))
    rnd1(A, 12)
    A("s_lshl_b32 %s, %s, 8" % (s(sT), s(sA0)))
    A("s_add_u32 %s, %s, %d" % (s(sT), s(sT), WS_MOD))
    sk = A.new("modw")
    A("s_cmp_lg_u32 %s, 0" % s(sW))
    A("s_cbranch_scc1 %s" % sk)
    A("buffer_store_dword %s, %s, %s, %s offen sc1" % (v(12), v(10), s(sWS, 4), s(sT)))
    A("s_waitcnt vmcnt(0)")
    A("s_mov_b64 exec, 1")
    A("v_mov_b32 %s, 1" % v(12))
    A("buffer_atomic_add %s, off, %s, 0 offset:%d sc0" % (v(12), s(sDBG, 4), DBG_MODC))
    A("s_waitcnt vmcnt(0)")
    A("v_cmpx_eq_u32 vcc, 53, %s" % v(12))
    A("s_cbranch_execz %s_x" % sk)
    A("buffer_store_dword %s, off, %s, 0 offset:%d sc1" % (v(12), s(sDBG, 4), DBG_MOD))
    A.label(sk + "_x")
    A("s_mov_b64 exec, -1")
    A.label(sk)
    A.label(lidle)
    stage_start(A, qchunks)
    A.label(lpre_done)
    ts(A, 1)

    A.vm, A.lds = [('c', c) for c in range(NSLOT - 1) for j in range(4)], []
    stage(A, qchunks, started=True)
    ts(A, 2)
    wait_flags(A, None, "0", srd=sDBG, imm=DBG_MOD)
    ts(A, 3)
    ts(A, 4)
    if TS['on']:
        A("v_mov_b32 v15, v79")
        A("s_mov_b32 %s, 8" % s(sTsI))
        TS['reg'] = 15
    A("s_mov_b32 %s, %d" % (s(sT), FL_H))
    wait_flags(A, None, s(sT), imm=128)
    ts(A, 5)
    vXo, vXa = 9, 10
    LAND, ACC = 16, 32
    sSrc, sM0x, sQo, sKo, sFlag, sBuf = sA0, sA0 + 1, sA0 + 2, sA0 + 3, sA0 + 4, sA0 + 5
    def xsetup(vXa):
        A("v_lshrrev_b32 %s, 3, %s" % (v(vTmp), v(vLane)))
        A("v_xor_b32 %s, %s, %s" % (v(vXa), v(vTmp), v(vLane)))
        A("v_and_b32 %s, 7, %s" % (v(vXa), v(vXa)))
        A("v_mul_u32_u24 %s, 1152, %s" % (v(vXo), v(vTmp)))
        A("v_lshl_add_u32 %s, %s, 4, %s" % (v(vXo), v(vXa), v(vXo)))
        A("s_mul_i32 %s, %s, 9216" % (s(sM0x), s(sW)))
        A("v_add_u32 %s, %s, %s" % (v(vXo), s(sM0x), v(vXo)))
        A("v_and_b32 %s, 7, %s" % (v(vTmp), v(vLane)))
        A("v_xor_b32 %s, %s, %s" % (v(vXa), v(vG), v(vTmp)))
        A("v_lshlrev_b32 %s, 4, %s" % (v(vXa), v(vXa)))
        A("v_lshl_add_u32 %s, %s, 7, %s" % (v(vXa), v(vTmp), v(vXa)))
        A("v_bfe_u32 %s, %s, 3, 1" % (v(vTmp), v(vLane)))
        A("v_mul_u32_u24 %s, 9216, %s" % (v(vTmp), v(vTmp)))
        A("v_add_u32 %s, %s, %s" % (v(vXa), v(vXa), v(vTmp)))
        A("v_xor_b32 %s, 64, %s" % (v(vXa + 1), v(vXa)))
    xsetup(vXa)
    A("s_mov_b32 %s, %s" % (s(sSeg), s(sRep)))
    A("s_mul_i32 %s, %s, 36864" % (s(sSrc), s(sSeg)))
    A("s_add_u32 %s, %s, %d" % (s(sSrc), s(sSrc), WS_H))
    A("s_lshl_b32 %s, %s, 5" % (s(sT), s(sSeg)))
    A("s_add_u32 %s, %s, %s" % (s(sT), s(sT), s(sSl)))
    A("s_lshl_b32 %s, %s, 10" % (s(sT + 1), s(sW)))
    A("s_lshl_b32 %s, %s, 13" % (s(sQo), s(sT)))
    A("s_add_u32 %s, %s, %s" % (s(sQo), s(sQo), s(sT + 1)))
    A("s_add_u32 %s, %s, %d" % (s(sQo), s(sQo), WS_Q))
    A("s_lshl_b32 %s, %s, 14" % (s(sKo), s(sT)))
    A("s_add_u32 %s, %s, %s" % (s(sKo), s(sKo), s(sT + 1)))
    if WS_KV:
        A("s_add_u32 %s, %s, %d" % (s(sKo), s(sKo), WS_KV))
    A("s_mov_b32 %s, 0x%x" % (s(sFlag), OOB))
    A.vm = []
    x_dma(A, vXo, sSrc, sM0x)
    A("s_waitcnt vmcnt(0)")
    ltop, lend = A.new("qkv"), A.new("qkvend")
    A.label(ltop)
    lq1, lq2 = A.new("q1"), A.new("q2")
    A("s_cmp_ge_u32 %s, 14" % s(sSeg))
    A("s_cbranch_scc1 %s" % lq1)
    A("s_waitcnt vmcnt(0)")
    A("s_barrier")
    set_flag(A, s(sFlag))
    A("s_branch %s" % lq2)
    A.label(lq1)
    A("s_waitcnt vmcnt(7)")
    A("s_barrier")
    A.label(lq2)
    ts(A)
    fs(A, 20)
    A("s_xor_b32 %s, %s, 0x10000" % (s(sM0x), s(sM0x)))
    A("s_add_u32 %s, %s, %d" % (s(sSrc), s(sSrc), 7 * 36864))
    x_dma(A, vXo, sSrc, sM0x)
    def mid():
        A("s_waitcnt vmcnt(9)")
        A("s_barrier")
        set_flag(A, s(sFlag))
    fs(A, 21)
    A.lds = []
    gemm576(A, vXa, LAND, wq, lambda t, tt: ACC + 8 * t + 4 * tt, 6, lambda t: t >= 4, mid)
    fs(A, 22)
    A("v_xor_b32 %s, 0x10000, %s" % (v(vXa), v(vXa)))
    A("v_xor_b32 %s, 0x10000, %s" % (v(vXa + 1), v(vXa + 1)))
    A("s_lshl_b32 %s, %s, 8" % (s(sFlag), s(sSl)))
    A("s_lshl_b32 %s, %s, 2" % (s(sT), s(sSeg)))
    A("s_add_u32 %s, %s, %s" % (s(sFlag), s(sFlag), s(sT)))
    A("s_add_u32 %s, %s, %d" % (s(sFlag), s(sFlag), FL_KV))
    A("s_add_u32 %s, %s, 4096" % (s(sT), s(sQo)))
    A("s_add_u32 %s, %s, 4096" % (s(sT + 1), s(sKo)))
    A("s_lshl_b32 %s, %s, 10" % (s(sT + 2), s(sW)))
    A("s_add_u32 %s, %s, %s" % (s(sT + 2), s(sT + 2), s(sKo)))
    A("s_add_u32 %s, %s, 8192" % (s(sT + 2), s(sT + 2)))
    for m in range(2):
        for tt in range(2):
            a0, a1 = ACC + 16 * m + 4 * tt, ACC + 16 * m + 8 + 4 * tt
            for x in range(4):
                A("v_cvt_pk_bf16_f32 %s, %s, %s" % (v(a0 + x), v(a0 + x), v(a1 + x)))
            so = (sQo, sT, sKo, sT + 1)[2 * m + tt]
            A("buffer_store_dwordx4 %s, %s, %s, %s offen sc1" % (v(a0, 4), v(vL16), s(sWS, 4), s(so)))
    for t in range(2):
        a0 = ACC + 32 + 8 * t
        A("v_cvt_pk_bf16_f32 %s, %s, %s" % (v(a0), v(a0), v(a0 + 1)))
        A("v_cvt_pk_bf16_f32 %s, %s, %s" % (v(a0 + 1), v(a0 + 2), v(a0 + 3)))
        A("v_cvt_pk_bf16_f32 %s, %s, %s" % (v(a0 + 2), v(a0 + 4), v(a0 + 5)))
        A("v_cvt_pk_bf16_f32 %s, %s, %s" % (v(a0 + 3), v(a0 + 6), v(a0 + 7)))
        A("buffer_store_dwordx4 %s, %s, %s, %s offen offset:%d sc1" % (v(a0, 4), v(vL16), s(sWS, 4), s(sT + 2), 1024 * t))
    A("v_mov_b64 %s, -1" % v(LAND, 2))
    A("v_mov_b64 %s, -1" % v(LAND + 2, 2))
    A("s_sub_u32 %s, %s, %d" % (s(sT), s(sQo), WS_Q))
    A("s_lshl_b32 %s, %s, 10" % (s(sT + 1), s(sW)))
    A("s_add_u32 %s, %s, %s" % (s(sT), s(sT), s(sT + 1)))
    A("s_lshr_b32 %s, %s, 1" % (s(sT), s(sT)))
    A("s_add_u32 %s, %s, %d" % (s(sT), s(sT), WS_KM))
    A("buffer_store_dwordx4 %s, %s, %s, %s offen sc1" % (v(LAND, 4), v(vL16), s(sWS, 4), s(sT)))
    fs(A, 23)
    A("s_add_u32 %s, %s, %d" % (s(sQo), s(sQo), 7 * 32 * 8192))
    A("s_add_u32 %s, %s, %d" % (s(sKo), s(sKo), 7 * 32 * 16384))
    A("s_add_u32 %s, %s, 7" % (s(sSeg), s(sSeg)))
    A("s_cmp_lt_u32 %s, 64" % s(sSeg))
    A("s_cbranch_scc1 %s" % ltop)
    A("s_waitcnt vmcnt(0)")
    A("s_barrier")
    set_flag(A, s(sFlag))
    ts(A, 6)
    ts_dump(A, 0)
    if "p1only" in opt:
        return
    lC = A.new("roleC")
    A("s_cmp_ge_u32 %s, 80" % s(sWid))
    A("s_cbranch_scc1 %s" % lC)
    lB = A.new("roleB")
    A("s_cmp_ge_u32 %s, 64" % s(sWid))
    A("s_cbranch_scc1 %s" % lB)
    emit_roleA(A, opt)
    A("s_endpgm")
    A.label(lB)
    emit_roleB(A, vRow, vRow2, sValid, opt)
    A("s_endpgm")
    A.label(lC)
    emit_roleC(A, xsetup, wide_chunks, opt)

def emit_roleA(A, opt):
    A.c("=========== role A: attention + Wo partial ===========")
    A("s_lshr_b32 %s, %s, 2" % (s(sSl), s(sWid)))
    A("s_and_b32 %s, %s, 3" % (s(sRep), s(sWid)))
    vOff, vTr, vAd = 9, 10, 11
    A("s_mul_i32 %s, %s, %d" % (s(sT + 1), s(sSl), 2 * 147456))
    tall_off(A, vOff, vTmp, s(sT + 1))
    tall_tr(A, vTr, 4)
    W0 = 224
    def wo(G, K):
        return W0 + 4 * (8 * G + K)
    chunks = []
    for hd in range(2):
        for G in range(9):
            def consume(base, hd=hd, G=G):
                A("v_add_u32 %s, %d, %s" % (v(vAd), base, v(vTr)))
                for ks in range(4):
                    r0 = 64 * (ks >> 1) + 8 * (ks & 1)
                    tr2(A, wo(G, 4 * hd + ks), vAd, r0 * 128, (r0 + 4) * 128)
            chunks.append((sWO, vOff, [hd * 147456 + 8 * j * 1152 + 128 * G for j in range(4)], consume))
    A.vm, A.lds = ['old'] * 2, []
    stage(A, chunks, depth=TS['d2'])
    TS['reg'] = 19
    ts(A)
    vKM, vL4, vOwr, vTw, vTrd, vPst, vPld, vNEG = 9, 10, 11, 12, 13, 14, 15, 16
    GA, SB, CB = 20, 32, 44
    SEL0, SEL1 = 56, 60
    QF, KX, VX, KM, VM = 64, 80, 112, 144, 160
    S_, OA = 176, 188
    WACC, LAND = 144, 216
    L_OT, L_PT = 0, 16384
    PSTR = 1168
    A("v_lshlrev_b32 %s, 2, %s" % (v(vL4), v(vLane)))
    A("v_lshrrev_b32 %s, 1, %s" % (v(vTmp), v(vG)))
    A("v_lshlrev_b32 %s, 10, %s" % (v(vKM), v(vTmp)))
    A("v_and_b32 %s, 1, %s" % (v(vTmp), v(vX)))
    A("v_lshl_add_u32 %s, %s, 8, %s" % (v(vKM), v(vTmp), v(vKM)))
    A("v_lshl_add_u32 %s, %s, 6, %s" % (v(vKM), v(vC), v(vKM)))
    A("v_and_b32 %s, 1, %s" % (v(vTmp), v(vG)))
    A("v_lshl_add_u32 %s, %s, 5, %s" % (v(vKM), v(vTmp), v(vKM)))
    A("s_and_b32 %s, %s, 1" % (s(sT), s(sW)))
    A("s_lshl_b32 %s, %s, 13" % (s(sT + 1), s(sT)))
    A("s_lshr_b32 %s, %s, 1" % (s(sT + 2), s(sW)))
    A("s_lshl_b32 %s, %s, 12" % (s(sT + 3), s(sT + 2)))
    A("s_add_u32 %s, %s, %s" % (s(sT + 1), s(sT + 1), s(sT + 3)))
    A("v_add_u32 %s, %s, %s" % (v(vOwr), s(sT + 1), v(vL16)))
    A("v_and_b32 %s, 15, %s" % (v(17), v(vLane)))
    A("s_lshl_b32 %s, %s, 4" % (s(sT + 1), s(sT)))
    A("v_add_u32 %s, %s, %s" % (v(17), s(sT + 1), v(17)))
    A("v_lshlrev_b32 %s, 2, %s" % (v(18), v(vG)))
    A("v_sub_u32 %s, %s, %s" % (v(17), v(17), v(18)))
    sCM = sA0 + 6
    for i in range(8):
        A("v_cmp_le_i32 %s, %d, %s" % (s(sCM + 2 * i, 2), 16 * (i >> 2) + (i & 3), v(17)))
    A("v_mov_b32 %s, 0x%x" % (v(vNEG), f32bits(-1e9)))
    A("v_and_b32 %s, 15, %s" % (v(vTmp), v(vLane)))
    A("v_mul_u32_u24 %s, %d, %s" % (v(vTw), PSTR, v(vTmp)))
    A("v_lshl_add_u32 %s, %s, 3, %s" % (v(vTw), v(vG), v(vTw)))
    A("s_lshl_b32 %s, %s, 5" % (s(sT + 1), s(sW)))
    A("s_add_u32 %s, %s, %d" % (s(sT + 1), s(sT + 1), L_PT))
    A("v_add_u32 %s, %s, %s" % (v(vTw), s(sT + 1), v(vTw)))
    A("v_lshrrev_b32 %s, 3, %s" % (v(17), v(vLane)))
    A("v_and_b32 %s, 7, %s" % (v(18), v(vLane)))
    A("v_lshlrev_b32 %s, 4, %s" % (v(18), v(18)))
    A("s_lshl_b32 %s, %s, 3" % (s(sT + 1), s(sW)))
    A("v_add_u32 %s, %s, %s" % (v(17), s(sT + 1), v(17)))
    A("v_mul_u32_u24 %s, %d, %s" % (v(vTrd), PSTR, v(17)))
    A("v_add_u32 %s, %s, %s" % (v(vTrd), v(vTrd), v(18)))
    A("v_add_u32 %s, %d, %s" % (v(vTrd), L_PT, v(vTrd)))
    A("v_mul_u32_u24 %s, 18432, %s" % (v(vPst), v(17)))
    A("v_add_u32 %s, %s, %s" % (v(vPst), v(vPst), v(18)))
    A("s_mul_i32 %s, %s, 1152" % (s(sT + 1), s(sSl)))
    A("v_add_u32 %s, %s, %s" % (v(vPst), s(sT + 1), v(vPst)))
    sHead, sSH, sPAo, sRowo = sA0, sA0 + 1, sA0 + 2, sA0 + 3
    A("s_lshl_b32 %s, %s, 1" % (s(sHead), s(sSl)))
    A("s_lshr_b32 %s, %s, 1" % (s(sT), s(sW)))
    A("s_add_u32 %s, %s, %s" % (s(sHead), s(sHead), s(sT)))
    A("s_mov_b32 %s, %s" % (s(sSeg), s(sRep)))
    A("s_lshl_b32 %s, %s, 8" % (s(sT), s(sHead)))
    A("s_add_u32 %s, %s, %d" % (s(sT), s(sT), FL_KV))
    wait_flags(A, vL4, s(sT))
    A("s_lshl_b32 %s, %s, 5" % (s(sSH), s(sSeg)))
    A("s_add_u32 %s, %s, %s" % (s(sSH), s(sSH), s(sHead)))
    def prefetch():
        A("s_lshl_b32 %s, %s, 13" % (s(sT), s(sSH)))
        A("s_and_b32 %s, %s, 1" % (s(sT + 1), s(sW)))
        A("s_lshl_b32 %s, %s, 12" % (s(sT + 1), s(sT + 1)))
        A("s_add_u32 %s, %s, %s" % (s(sT), s(sT), s(sT + 1)))
        A("s_add_u32 %s, %s, %d" % (s(sT), s(sT), WS_Q))
        for i in range(4):
            A("buffer_load_dwordx4 %s, %s, %s, %s offen offset:%d sc1" % (v(QF + 4 * i, 4), v(vL16), s(sWS, 4), s(sT), 1024 * i))
        A("s_lshl_b32 %s, %s, 14" % (s(sT), s(sSH)))
        if WS_KV:
            A("s_add_u32 %s, %s, %d" % (s(sT), s(sT), WS_KV))
        for b in range(4):
            for i in range(4):
                A("buffer_load_dwordx4 %s, %s, %s, %s offen offset:%d sc1" % (v(KX + 16 * b + 4 * i, 4), v(vL16), s(sWS, 4), s(sT), 1024 * i))
            if b < 3:
                A("s_add_u32 %s, %s, 4096" % (s(sT), s(sT)))
    A("v_mov_b64 %s, -1" % v(20, 2))
    A("v_mov_b64 %s, -1" % v(22, 2))
    for s0 in range(FAST0, 64, 4):
        A("s_add_u32 %s, %s, %d" % (s(sT), s(sRep), s0))
        A("s_mul_i32 %s, %s, %d" % (s(sT), s(sT), PA_SEG))
        A("s_add_u32 %s, %s, %d" % (s(sT), s(sT), WS_PA))
        for G in range(9):
            A("buffer_store_dwordx4 %s, %s, %s, %s offen offset:%d sc1" % (v(20, 4), v(vPst), s(sWS, 4), s(sT), 128 * G))
    PFL = ([int(o[4:]) for o in opt if o.startswith("pfl=")] + [32])[0]
    lpf = A.new("apf")
    A.label(lpf)
    prefetch()
    ltop = A.new("atop")
    A.label(ltop)
    T1, T2, T0 = S_, S_ + 4, S_ + 8
    sv = [S_ + i for i in range(10)]
    m1, m2 = 17, 18
    def prep_scores(vals):
        for i in range(0, len(vals), 2):
            rnd2(A, vals[i], vals[i + 1])
        for x in vals:
            A("v_mul_f32 %s, 0x%x, %s" % (v(x), f32bits(128 ** -0.5), v(x)))
        for i in range(0, len(vals), 2):
            rnd2(A, vals[i], vals[i + 1])
    A("s_waitcnt vmcnt(0)")
    for ks in range(4):
        MF(A, v(T1, 4), v(KX + 4 * ks, 4), v(QF + 4 * ks, 4), "0" if ks == 0 else v(T1, 4))
        MF(A, v(T2, 4), v(KX + 16 + 4 * ks, 4), v(QF + 4 * ks, 4), "0" if ks == 0 else v(T2, 4))
    for T in range(8):
        A("v_mov_b32 %s, 0" % v(VM + 2 * T + 1))
    A("s_lshl_b32 %s, %s, 12" % (s(sRowo), s(sSH)))
    A("s_add_u32 %s, %s, %d" % (s(sRowo), s(sRowo), WS_KM))
    prep_scores(sv[:8])
    for i in range(8):
        A("v_cndmask_b32 %s, %s, %s, %s" % (v(sv[i]), v(vNEG), v(sv[i]), s(sCM + 2 * i, 2)))
    A("v_max3_f32 %s, %s, %s, %s" % (v(m1), v(sv[0]), v(sv[1]), v(sv[2])))
    for i in (3, 5):
        A("v_max3_f32 %s, %s, %s, %s" % (v(m1), v(m1), v(sv[i]), v(sv[i + 1])))
    A("v_max_f32 %s, %s, %s" % (v(m1), v(m1), v(sv[7])))
    lc, lf, lok = A.new("can"), A.new("full"), A.new("pubok")
    A("s_cmp_ge_u32 %s, %d" % (s(sSeg), ([int(o[4:]) for o in opt if o.startswith("can=")] + [56])[0]))
    A("s_cbranch_scc1 %s" % lc)
    A("s_lshl_b32 %s, %s, 7" % (s(sT), s(sSH)))
    A("s_add_u32 %s, %s, %d" % (s(sT), s(sT), FL_PUB))
    wait_flags(A, None, s(sT))
    A("s_branch %s" % lf)
    A.label(lc)
    A("buffer_load_dword %s, off, %s, %s offset:4092 sc1" % (v(vTmp), s(sWS, 4), s(sRowo)))
    A("s_waitcnt vmcnt(0)")
    A("v_cmp_eq_u32 vcc, -1, %s" % v(vTmp))
    A("s_cbranch_vccz %s" % lf)
    A("s_sleep 1")
    A("s_sub_u32 %s, %s, 1" % (s(sBud), s(sBud)))
    A("s_cbranch_scc0 %s" % lc)
    A("s_mov_b32 %s, 0" % s(sBud))
    A.label(lf)
    ts(A)
    fs(A, 0)
    A.label(lf + "_r")
    for ks in range(4):
        A("buffer_load_dwordx4 %s, %s, %s, %s offen offset:%d sc1" % (v(KM + 4 * ks, 4), v(vKM), s(sWS, 4), s(sRowo), (ks >> 1) * 2048 + (ks & 1) * 16))
    for T in range(8):
        A("buffer_load_dword %s, %s, %s, %s offen offset:%d sc1" % (v(VM + 2 * T), v(vL4), s(sWS, 4), s(sRowo), (T >> 1) * 1024 + 512 + (T & 1) * 256))
    A("s_waitcnt vmcnt(8)")
    fs(A, 1)
    for ks in range(4):
        MF(A, v(T0, 4), v(KM + 4 * ks, 4), v(QF + 4 * ks, 4), "0" if ks == 0 else v(T0, 4))
        for h in range(2):
            r = KM + 4 * ks + 2 * h
            if ks == 0 and h == 0:
                A("v_max_u32 %s, %s, %s" % (v(vTmp), v(r), v(r + 1)))
            else:
                A("v_max3_u32 %s, %s, %s, %s" % (v(vTmp), v(vTmp), v(r), v(r + 1)))
    A("s_waitcnt vmcnt(0)")
    for T in range(0, 8, 2):
        A("v_max3_u32 %s, %s, %s, %s" % (v(vTmp), v(vTmp), v(VM + 2 * T), v(VM + 2 * T + 2)))
    A("v_cmp_eq_u32 vcc, -1, %s" % v(vTmp))
    A("s_cbranch_vccz %s" % lok)
    A("s_sub_u32 %s, %s, 1" % (s(sBud), s(sBud)))
    A("s_cbranch_scc0 %s_r" % lf)
    A("s_mov_b32 %s, 0" % s(sBud))
    A.label(lok)
    prep_scores(sv[8:])
    A("v_max3_f32 %s, %s, %s, %s" % (v(m1), v(m1), v(sv[8]), v(sv[9])))
    def xl(op):
        for sw in ("v_permlane32_swap_b32", "v_permlane16_swap_b32"):
            A("v_mov_b32 %s, %s" % (v(m2), v(m1)))
            A("s_nop 1")
            A("%s %s, %s" % (sw, v(m1), v(m2)))
            A("%s %s, %s, %s" % (op, v(m1), v(m1), v(m2)))
    xl("v_max_f32")
    for x in sv:
        A("v_sub_f32 %s, %s, %s" % (v(x), v(x), v(m1)))
    for x in sv:
        A("v_mul_f32 %s, 0x%x, %s" % (v(x), f32bits(math.log2(math.e)), v(x)))
    for x in sv:
        A("v_exp_f32 %s, %s" % (v(x), v(x)))
    A("v_add_f32 %s, %s, %s" % (v(m1), v(sv[0]), v(sv[1])))
    for x in sv[2:]:
        A("v_add_f32 %s, %s, %s" % (v(m1), v(m1), v(x)))
    xl("v_add_f32")
    A("v_rcp_f32 %s, %s" % (v(m1), v(m1)))
    A("s_nop 0")
    for x in sv:
        A("v_mul_f32 %s, %s, %s" % (v(x), v(x), v(m1)))
    for i in range(4):
        A("v_cvt_pk_bf16_f32 %s, %s, %s" % (v(S_ + i), v(sv[2 * i]), v(sv[2 * i + 1])))
    A("v_cvt_pk_bf16_f32 %s, %s, %s" % (v(T0), v(T0), v(T0 + 1)))
    A("v_mov_b32 %s, 0" % v(T0 + 1))
    A("s_nop 1")
    A.lds = []
    def opack(c):
        b = OA + 8 * c
        for i in range(4):
            A("v_cvt_pk_bf16_f32 %s, %s, %s" % (v(b + i), v(b + 2 * i), v(b + 2 * i + 1)))
        A.ds("ds_write_b128 %s, %s offset:%d" % (v(vOwr), v(b, 4), L_OT + 1024 * c))
    for c in range(4):
        for T in (2 * c, 2 * c + 1):
            MF(A, v(OA + 4 * T, 4), v(VX + 4 * T, 4), v(S_, 4), "0")
        for T in (2 * c, 2 * c + 1):
            A("v_mfma_f32_16x16x16_bf16 %s, %s, %s, %s" % (v(OA + 4 * T, 4), v(VM + 2 * T, 2), v(T0, 2), v(OA + 4 * T, 4)))
        if c >= 2:
            opack(c - 2)
    opack(2)
    opack(3)
    fs(A, 2)
    A("s_mul_i32 %s, %s, %d" % (s(sPAo), s(sSeg), PA_SEG))
    A("s_add_u32 %s, %s, %d" % (s(sPAo), s(sPAo), WS_PA))
    A.wait_ds()
    A("s_barrier")
    fs(A, 3)
    OFR, WA, TB = 144, 20, 44
    for n in range(16):
        A.ds("ds_read_b128 %s, %s offset:%d" % (v(OFR + 4 * n, 4), v(vL16), L_OT + (n & 1) * 8192 + (n >> 1) * 1024), ('o', n))
    lnp = A.new("nopf")
    A("s_add_u32 %s, %s, 128" % (s(sSH), s(sSH)))
    def epi(G, tt):
        b = WA + 8 * (G % 3) + 4 * tt
        A("v_cvt_pk_bf16_f32 %s, %s, %s" % (v(b), v(b), v(b + 1)))
        A("v_cvt_pk_bf16_f32 %s, %s, %s" % (v(b + 1), v(b + 2), v(b + 3)))
    def epw(G, tt):
        A.ds("ds_write_b64 %s, %s offset:%d" % (v(vTw), v(WA + 8 * (G % 3) + 4 * tt, 2), tt * 16 * PSTR + 128 * G), ('w', G))
    def lrd(G):
        A.ds("ds_read_b128 %s, %s offset:%d" % (v(TB + 4 * (G & 1), 4), v(vTrd), 128 * G), ('t', G))
    def lst(G):
        A.wait_ds(('t', G))
        A("buffer_store_dwordx4 %s, %s, %s, %s offen offset:%d sc1" % (v(TB + 4 * (G & 1), 4), v(vPst), s(sWS, 4), s(sPAo), 128 * G))
    for G in range(9):
        for n in range(16):
            K, tt = n >> 1, n & 1
            if G == 0:
                A.wait_ds(('o', n))
            d = v(WA + 8 * (G % 3) + 4 * tt, 4)
            MF(A, d, R(wo(G, K), 4), v(OFR + 4 * n, 4), "0" if K == 0 else d)
            if G >= 1:
                if n == 5 and G >= 2:
                    lst(G - 2)
                if n == 7:
                    epi(G - 1, 0)
                if n == 8:
                    epw(G - 1, 0)
                    epi(G - 1, 1)
                if n == 9:
                    epw(G - 1, 1)
                if n == 15:
                    A.wait_ds(('w', G - 1))
                    A("s_barrier")
                    lrd(G - 1)
        if G == 0:
            A("s_cmp_ge_u32 %s, %d" % (s(sSeg), PFL))
            A("s_cbranch_scc1 %s" % lnp)
            prefetch()
            A.label(lnp)
    fs(A, 4)
    A("s_nop 3")
    epi(8, 0)
    epi(8, 1)
    epw(8, 0)
    epw(8, 1)
    lst(7)
    A.wait_ds()
    A("s_barrier")
    lrd(8)
    lst(8)
    fs(A, 6)
    A("s_waitcnt vmcnt(0)")
    A("s_barrier")
    fs(A, 7)
    A("s_lshl_b32 %s, %s, 8" % (s(sT), s(sSeg)))
    A("s_add_u32 %s, %s, %d" % (s(sT), s(sT), FL_PA))
    arrive(A, s(sT), 16)
    fs(A, 8)
    ts(A)
    A("s_add_u32 %s, %s, 4" % (s(sSeg), s(sSeg)))
    A("s_cmp_lt_u32 %s, %d" % (s(sSeg), PFL + 4))
    A("s_cbranch_scc1 %s" % ltop)
    A("s_cmp_lt_u32 %s, 64" % s(sSeg))
    A("s_cbranch_scc1 %s" % lpf)
    ts_dump(A, 1)

def emit_roleB(A, vRow, vRow2, sValid, opt):
    A.c("=========== role B: reduce + residual + LN2, one row per wave ===========")
    TS['reg'] = 19
    GA, SB, CB = 20, 32, 44
    SEL0, SEL1 = 56, 60
    vPld = 15
    load_mod(A, GA, 2, vRow, vRow2, 17, 18)
    load_mod(A, SB, 3, vRow, vRow2, 17, 18)
    load_mod(A, CB, 4, vRow, vRow2, 17, 18)
    make_sel(A, SEL0, 0, vTmp)
    make_sel(A, SEL1, 1, vTmp)
    A("v_lshrrev_b32 %s, 3, %s" % (v(17), v(vLane)))
    A("v_and_b32 %s, 7, %s" % (v(18), v(vLane)))
    A("v_lshlrev_b32 %s, 4, %s" % (v(18), v(18)))
    A("v_mul_u32_u24 %s, 1152, %s" % (v(vPld), v(17)))
    A("v_add_u32 %s, %s, %s" % (v(vPld), v(vPld), v(18)))
    A("s_waitcnt vmcnt(0)")
    one_plus(A, CB)
    sRow, sRowo = sA0 + 5, sA0 + 3
    A("s_sub_u32 %s, %s, 64" % (s(sRow), s(sWid)))
    A("s_lshl_b32 %s, %s, 1" % (s(sRow), s(sRow)))
    A("s_and_b32 %s, %s, 1" % (s(sT), s(sW)))
    A("s_add_u32 %s, %s, %s" % (s(sRow), s(sRow), s(sT)))
    A("s_lshr_b32 %s, %s, 1" % (s(sSeg), s(sW)))
    A("v_and_b32 %s, 15, %s" % (v(vFl), v(vLane)))
    A("v_lshlrev_b32 %s, 2, %s" % (v(vFl), v(vFl)))
    for i in range(6):
        A("v_mov_b32 %s, -1" % v(64 + i))
    for s0 in range(FAST0, 64, 2):
        A("s_add_u32 %s, %s, %d" % (s(sT), s(sSeg), s0))
        A("s_lshl_b32 %s, %s, 5" % (s(sT), s(sT)))
        A("s_add_u32 %s, %s, %s" % (s(sT), s(sT), s(sRow)))
        A("s_mul_i32 %s, %s, 1152" % (s(sT), s(sT)))
        A("s_add_u32 %s, %s, %d" % (s(sT), s(sT), WS_H2))
        row_io(A, "store", 64, vRow, vRow2, sWS, s(sT), " sc1")
        A("s_add_u32 %s, %s, %d" % (s(sT), s(sT), WS_X1 - WS_H2))
        row_io(A, "store", 64, vRow, vRow2, sWS, s(sT), " sc1")
    A("v_and_b32 %s, 15, %s" % (v(vFl), v(vLane)))
    A("v_mul_u32_u24 %s, 1152, %s" % (v(vFl), v(vFl)))
    ltop = A.new("btop")
    A.label(ltop)
    A("s_lshl_b32 %s, %s, 5" % (s(sT), s(sSeg)))
    A("s_add_u32 %s, %s, %s" % (s(sA0 + 2), s(sT), s(sRow)))
    A("s_mul_i32 %s, %s, 1152" % (s(sRowo), s(sA0 + 2)))
    XR, RD, XF, DD = 216, 176, 196, 144
    row_io(A, "load", XR, vRow, vRow2, sXS, s(sRowo))
    A("s_lshl_b32 %s, %s, 8" % (s(sT), s(sSeg)))
    A("s_add_u32 %s, %s, %d" % (s(sT), s(sT), FL_PA))
    lcan, lgo, lre = A.new("bcan"), A.new("bgo"), A.new("bre")
    A("s_mul_i32 %s, %s, 18432" % (s(sA0), s(sA0 + 2)))
    A("s_add_u32 %s, %s, %d" % (s(sA0), s(sA0), WS_PA))
    A("s_add_u32 %s, %s, 9216" % (s(sA0 + 1), s(sA0)))
    A("s_cmp_ge_u32 %s, %d" % (s(sSeg), FAST0))
    A("s_cbranch_scc1 %s" % lcan)
    wait_ready(A, s(sT), 16)
    A("s_branch %s" % lgo)
    A.label(lcan)
    canary(A, s(sA0), imm=124 + 128 * ([int(o[4:]) for o in opt if o.startswith("bim=")] + [4])[0], voff=vFl)
    A.label(lgo)
    ts(A)
    A.label(lre)
    LD = 64
    A.vm = []
    for i in range(9):
        for h in range(2):
            A.vmem("buffer_load_dwordx4 %s, %s, %s, %s offen offset:%d sc1" % (v(LD + 8 * i + 4 * h, 4), v(vPld), s(sWS, 4), s(sA0 + h), 128 * i), ('p', i))
    XU = 224
    if "mimic" not in opt:
        for i in range(6):
            unpack(A, XU + 2 * i, XU + 2 * i + 1, XR + i)
    for i in range(9):
        A.wait_vm(('p', i))
        d = v(RD + 4 * (i >> 1), 4)
        sel = v(SEL1 if i & 1 else SEL0, 4)
        MF(A, d, sel, v(LD + 8 * i, 4), "0" if not (i & 1) else d)
        maxchain(A, range(LD + 8 * i, LD + 8 * i + 4), i == 0)
        MF(A, d, sel, v(LD + 8 * i + 4, 4), d)
        maxchain(A, range(LD + 8 * i + 4, LD + 8 * i + 8), False)
    retry_if_sentinel(A, lre)
    for i in range(4):
        A("v_mov_b32 %s, 0" % v(XF + 8 + i))
    A("s_nop 3")
    for T in range(5):
        for jj in range(4):
            A("v_add_f32_dpp %s, %s, %s row_ror:8 row_mask:0xf bank_mask:0x%x" % (v(XF + 4 * (T >> 1) + jj), v(RD + 4 * T + jj), v(RD + 4 * T + jj), 0xc if T & 1 else 0x3))
    if "mimic" in opt:
        for i in range(0, 12, 2):
            rnd2(A, XF + i, XF + i + 1)
        for i in range(12):
            A("v_mul_f32 %s, %s, %s" % (v(XF + i), v(XF + i), v(GA + i)))
        for i in range(0, 12, 2):
            rnd2(A, XF + i, XF + i + 1)
        for i in range(6):
            unpack(A, DD, DD + 1, XR + i)
            A("v_add_f32 %s, %s, %s" % (v(XF + 2 * i), v(XF + 2 * i), v(DD)))
            A("v_add_f32 %s, %s, %s" % (v(XF + 2 * i + 1), v(XF + 2 * i + 1), v(DD + 1)))
            A("v_cvt_pk_bf16_f32 %s, %s, %s" % (v(XR + i), v(XF + 2 * i), v(XF + 2 * i + 1)))
            unpack(A, XF + 2 * i, XF + 2 * i + 1, XR + i)

    else:
        for i in range(6):
            A("v_fmac_f32 %s, %s, %s" % (v(XU + 2 * i), v(XF + 2 * i), v(GA + 2 * i)))
            A("v_fmac_f32 %s, %s, %s" % (v(XU + 2 * i + 1), v(XF + 2 * i + 1), v(GA + 2 * i + 1)))
            A("v_cvt_pk_bf16_f32 %s, %s, %s" % (v(XR + i), v(XU + 2 * i), v(XU + 2 * i + 1)))
            unpack(A, XF + 2 * i, XF + 2 * i + 1, XR + i)
    A("s_add_u32 %s, %s, %d" % (s(sT), s(sRowo), WS_X1))
    row_io(A, "store", XR, vRow, vRow2, sWS, s(sT), " sc1")
    ln_stats(A, XF, DD, sValid, 160, 161, 162)
    if "mimic" in opt:
        ln_apply(A, XF, 160, 161, CB, SB, 164)
    else:
        for i in range(12):
            A("v_sub_f32 %s, %s, %s" % (v(XF + i), v(XF + i), v(160)))
            A("v_mul_f32 %s, %s, %s" % (v(XF + i), v(XF + i), v(161)))
            A("v_fma_f32 %s, %s, %s, %s" % (v(XF + i), v(XF + i), v(CB + i), v(SB + i)))
        for i in range(6):
            A("v_cvt_pk_bf16_f32 %s, %s, %s" % (v(164 + i), v(XF + 2 * i), v(XF + 2 * i + 1)))
    A("s_add_u32 %s, %s, %d" % (s(sT), s(sRowo), WS_H2))
    row_io(A, "store", 164, vRow, vRow2, sWS, s(sT), " sc1")
    A("s_waitcnt vmcnt(0)")
    A("s_lshl_b32 %s, %s, 8" % (s(sT), s(sSeg)))
    A("s_add_u32 %s, %s, %d" % (s(sT), s(sT), FL_H2))
    arrive(A, s(sT), 32, wave0_only=False)
    ts(A)
    A("s_add_u32 %s, %s, 2" % (s(sSeg), s(sSeg)))
    A("s_cmp_lt_u32 %s, 64" % s(sSeg))
    A("s_cbranch_scc1 %s" % ltop)
    ts_dump(A, 1)

def emit_roleC(A, xsetup, wide_chunks, opt):
    A.c("=========== role C: gate/up + down partial + output ===========")
    A("s_sub_u32 %s, %s, 80" % (s(sT), s(sWid)))
    A("s_lshr_b32 %s, %s, 2" % (s(sSl), s(sT)))
    A("s_and_b32 %s, %s, 3" % (s(sRep), s(sT)))
    build_srd(A, sW1, 64, 5308416)
    build_srd(A, sW2, 72, 5308416)
    build_srd(A, sW3, 80, 5308416)
    build_srd(A, sWO, 104, 2359296)
    vOffW, vTr, vAd, vOffD, vTrD = 9, 10, 11, 12, 13
    A("s_lshl_b32 %s, %s, 8" % (s(sT + 1), s(sSl)))
    wide_off(A, vOffW, vTmp, 9216, s(sT + 1))
    A("s_lshl_b32 %s, %s, 2" % (s(sT + 1), s(sW)))
    wide_tr(A, vTr, vTmp, s(sT + 1), 1)
    A("s_mul_i32 %s, %s, 147456" % (s(sT + 1), s(sSl)))
    tall_off(A, vOffD, vTmp, s(sT + 1))
    tall_tr(A, vTrD, 3)
    W0 = 80
    def wg(t, ks):
        return W0 + 4 * (4 * ks + t)
    def wd(G, ks):
        return W0 + 288 + 4 * (4 * G + ks)
    chunks = wide_chunks((sW1, sW2), 9216, wg, vOffW, vTr)
    for G in range(9):
        def consume(base, G=G):
            A("v_add_u32 %s, %d, %s" % (v(vAd), base, v(vTrD)))
            for ks in range(4):
                tr2(A, wd(G, ks), vAd, 32 * ks * 128, (32 * ks + 4) * 128)
        chunks.append((sW3, vOffD, [8 * j * 1152 + 128 * G for j in range(4)], consume))
    A.vm, A.lds = ['old'] * 2, []
    stage(A, chunks, depth=TS['d2'])
    vXo = 9
    sSrc, sM0x = sA0, sA0 + 1
    vXa = 7
    xsetup(vXa)
    vHw, vRl, vOo = 6, 2, 3
    LAND, ACC, PK = 10, 26, 62
    L_HH = 40960
    A("s_lshl_b32 %s, %s, 10" % (s(sT), s(sW)))
    A("s_add_u32 %s, %s, %d" % (s(sT), s(sT), L_HH))
    A("v_add_u32 %s, %s, %s" % (v(vHw), s(sT), v(vL16)))
    A("v_and_b32 %s, 15, %s" % (v(vTmp), v(vLane)))
    A("v_lshlrev_b32 %s, 4, %s" % (v(vTmp), v(vTmp)))
    A("v_lshl_add_u32 %s, %s, 10, %s" % (v(vRl), v(vG), v(vTmp)))
    A("s_lshl_b32 %s, %s, 8" % (s(sT), s(sW)))
    A("v_add_u32 %s, %s, %s" % (v(vRl), s(sT), v(vRl)))
    A("v_mul_u32_u24 %s, 1152, %s" % (v(vOo), v(vLane)))
    A("s_lshl_b32 %s, %s, 5" % (s(sT), s(sSl)))
    A("s_lshl_b32 %s, %s, 3" % (s(sT + 1), s(sW)))
    A("s_add_u32 %s, %s, %s" % (s(sT), s(sT), s(sT + 1)))
    A("v_add_u32 %s, %s, %s" % (v(vOo), s(sT), v(vOo)))
    A("v_mov_b32 %s, 0x%x" % (v(vTmp), OOB))
    A("v_cmp_gt_u32 vcc, 32, %s" % v(vLane))
    A("s_nop 1")
    A("v_cndmask_b32 %s, %s, %s, vcc" % (v(vOo), v(vTmp), v(vOo)))
    A("s_lshl_b32 %s, %s, 1" % (s(sT), s(sT)))
    A("s_add_u32 %s, %s, %d" % (s(sT), s(sT), WS_MOD + 5 * 2304))
    A("buffer_load_dwordx4 %s, off, %s, %s sc1" % (v(ACC, 4), s(sWS, 4), s(sT)))
    A("s_waitcnt vmcnt(0)")
    sGB = sA0 + 8
    for i in range(4):
        A("v_readfirstlane_b32 %s, %s" % (s(sGB + i), v(ACC + i)))
    A("s_mov_b32 %s, %s" % (s(sSeg), s(sRep)))
    sPCo, sFl = sA0 + 2, sA0 + 3
    TS['reg'] = 4
    sPrev = sA0 + 5
    CIM = ([int(o[4:]) for o in opt if o.startswith("cim=")] + [1024])[0]
    A("s_add_u32 %s, %s, 60" % (s(sT), s(sRep)))
    A("s_mul_i32 %s, %s, %d" % (s(sT), s(sT), PC_SEG))
    A("s_mul_i32 %s, %s, 36" % (s(sT + 1), s(sW)))
    A("s_add_u32 %s, %s, %s" % (s(sT + 1), s(sT + 1), s(sSl)))
    A("s_lshl_b32 %s, %s, 10" % (s(sT + 1), s(sT + 1)))
    A("s_add_u32 %s, %s, %s" % (s(sT), s(sT), s(sT + 1)))
    A("s_add_u32 %s, %s, %d" % (s(sT), s(sT), WS_PC))
    A("v_mov_b64 %s, -1" % v(ACC, 2))
    A("v_mov_b64 %s, -1" % v(ACC + 2, 2))
    for G in range(9):
        A("buffer_store_dwordx4 %s, %s, %s, %s offen sc1" % (v(ACC, 4), v(vL16), s(sWS, 4), s(sT)))
        A("s_add_u32 %s, %s, %d" % (s(sT), s(sT), 4 * 36 * 1024))
    def reduce_out(last=False):
        A("s_lshl_b32 %s, %s, 8" % (s(sFl), s(sPrev)))
        A("s_mul_i32 %s, %s, 36864" % (s(sA0 + 6), s(sPrev)))
        make_sel(A, LAND, 0, vTmp)
        if not last:
            A("s_add_u32 %s, %s, %d" % (s(sFl), s(sFl), FL_PC))
            wait_ready(A, s(sFl), 36)
        ts(A)
        lre = A.new("cre")
        A.label(lre)
        A("s_add_u32 %s, %s, %d" % (s(sT), s(sA0 + 6), WS_X1))
        A("buffer_load_dwordx2 %s, %s, %s, %s offen sc1" % (v(LAND + 8, 2), v(vOo), s(sWS, 4), s(sT)))
        A("s_mul_i32 %s, %s, %d" % (s(sT), s(sSl), 36 * 1024))
        A("s_add_u32 %s, %s, %s" % (s(sT), s(sT), s(sPCo)))
        A.vm = []
        for i in range(9):
            A.vmem("buffer_load_dwordx4 %s, %s, %s, %s offen sc1" % (v(ACC + 4 * i, 4), v(vRl), s(sWS, 4), s(sT)), ('p', i))
            if i < 8:
                A("s_add_u32 %s, %s, 4096" % (s(sT), s(sT)))
        D = LAND + 4
        for i in range(9):
            A.wait_vm(('p', i))
            MF(A, v(D, 4), v(LAND, 4), v(ACC + 4 * i, 4), "0" if i == 0 else v(D, 4))
            if last:
                maxchain(A, range(ACC + 4 * i, ACC + 4 * i + 4), i == 0)
        maxchain(A, (LAND + 8, LAND + 9), not last)
        retry_if_sentinel(A, lre)
    def reduce_fin():
        D = LAND + 4
        unpack(A, LAND + 10, LAND + 11, LAND + 8)
        unpack(A, LAND + 12, LAND + 13, LAND + 9)
        A("s_nop 3")
        rnd2(A, D, D + 1)
        rnd2(A, D + 2, D + 3)
        for i in range(4):
            A("v_mul_f32 %s, %s, %s" % (v(D + i), s(sGB + i), v(D + i)))
        rnd2(A, D, D + 1)
        rnd2(A, D + 2, D + 3)
        for i in range(4):
            A("v_add_f32 %s, %s, %s" % (v(D + i), v(D + i), v(LAND + 10 + i)))
        pert = [float(o[5:]) for o in opt if o.startswith("pert=")]
        if pert:
            lpp = A.new("pert")
            A("s_or_b32 %s, %s, %s" % (s(sT), s(sSl), s(sPrev)))
            A("s_or_b32 %s, %s, %s" % (s(sT), s(sT), s(sW)))
            A("s_cmp_lg_u32 %s, 0" % s(sT))
            A("s_cbranch_scc1 %s" % lpp)
            A("s_mov_b64 exec, 1")
            A("v_add_f32 %s, 0x%x, %s" % (v(D), f32bits(pert[0]), v(D)))
            A("s_mov_b64 exec, -1")
            A.label(lpp)
        A("v_cvt_pk_bf16_f32 %s, %s, %s" % (v(D), v(D), v(D + 1)))
        A("v_cvt_pk_bf16_f32 %s, %s, %s" % (v(D + 1), v(D + 2), v(D + 3)))
        A("buffer_store_dwordx2 %s, %s, %s, %s offen%s" % (v(D, 2), v(vOo), s(sWO, 4), s(sA0 + 6), " sc1" if "outsc1" in opt else " nt" if "outnt" in opt else ""))
        ts(A)
    ltop, lfirst = A.new("ctop"), A.new("cfirst")
    def h2wait():
        A("s_lshl_b32 %s, %s, 8" % (s(sT), s(sSeg)))
        A("s_add_u32 %s, %s, %d" % (s(sT), s(sT), FL_H2))
        A("s_mul_i32 %s, %s, 36864" % (s(sSrc), s(sSeg)))
        A("s_add_u32 %s, %s, %d" % (s(sSrc), s(sSrc), WS_H2))
        lcan, lj, lre = A.new("ccan"), A.new("cj"), A.new("cxre")
        A("s_cmp_ge_u32 %s, %d" % (s(sSeg), FAST0))
        A("s_cbranch_scc1 %s" % lcan)
        wait_ready(A, s(sT), 32)
        ts(A)
        fs(A, 0)
        x_dma(A, vXo, sSrc, sM0x)
        A("s_branch %s" % lj)
        A.label(lcan)
        lnow = A.new("cnow")
        A("buffer_load_dword %s, %s, %s, %s offen offset:1024 sc1" % (v(vTmp), v(vXo), s(sWS, 4), s(sSrc)))
        A("s_waitcnt vmcnt(0)")
        A("v_cmp_eq_u32 vcc, -1, %s" % v(vTmp))
        A("s_cbranch_vccz %s" % lnow)
        reduce_out()
        reduce_fin()
        A("s_mov_b32 %s, -1" % s(sPrev))
        A.label(lnow)
        canary(A, s(sSrc), imm=CIM, voff=vXo)
        ts(A)
        fs(A, 0)
        A.label(lre)
        for i in range(9):
            A("buffer_load_dwordx4 %s, %s, %s, %s offen offset:%d sc1" % (v(ACC + 4 * i, 4), v(vXo), s(sWS, 4), s(sSrc), 128 * i))
        A("v_add_u32 %s, %s, %s" % (v(LAND), s(sM0x), v(vL16)))
        for i in range(9):
            A("s_waitcnt vmcnt(%d)" % (8 - i))
            A("ds_write_b128 %s, %s offset:%d" % (v(LAND), v(ACC + 4 * i, 4), 1024 * i))
            maxchain(A, range(ACC + 4 * i, ACC + 4 * i + 4), i == 0)
        retry_if_sentinel(A, lre)
        A("s_waitcnt lgkmcnt(0)")
        A.label(lj)
    A("s_mov_b32 %s, -1" % s(sPrev))
    A.label(ltop)
    h2wait()
    fs(A, 1)
    A("s_waitcnt vmcnt(0)")
    A("s_barrier")
    fs(A, 2)
    A.lds = []
    GAC = [ACC, ACC + 16]
    HP = ACC + 32
    fill = []
    def F(n):
        for _ in range(n):
            if fill:
                fill.pop(0)()
    def gu_epi(tt):
        for t in range(2):
            g_, u_ = GAC[tt] + 4 * t, GAC[tt] + 8 + 4 * t
            for jj in range(4):
                fill.append(lambda a=g_ + jj, b=u_ + jj: A("v_cvt_pk_bf16_f32 %s, %s, %s" % (v(b), v(a), v(b))))
                fill.append(lambda a=g_ + jj, b=u_ + jj: A("v_lshlrev_b32 %s, 16, %s" % (v(a), v(b))))
                fill.append(lambda b=u_ + jj: A("v_and_b32 %s, 0xffff0000, %s" % (v(b), v(b))))
                fill.append(lambda a=g_ + jj, b=u_ + jj: A("v_mul_f32 %s, %s, %s" % (v(a), v(a), v(b))))
            fill.append(lambda t=t, g_=g_: A("v_cvt_pk_bf16_f32 %s, %s, %s" % (v(HP + 2 * t), v(g_), v(g_ + 1))))
            fill.append(lambda t=t, g_=g_: A("v_cvt_pk_bf16_f32 %s, %s, %s" % (v(HP + 2 * t + 1), v(g_ + 2), v(g_ + 3))))
        fill.append(lambda: A.ds("ds_write_b128 %s, %s offset:%d" % (v(vHw), v(HP, 4), 4096 * tt), ('hw', tt)))
    def xrd(n):
        tt, ks = n // 18, n % 18
        A.ds("ds_read_b128 %s, %s offset:%d" % (v(LAND + 4 * (n % 4), 4), v(vXa + (ks & 1)), 18432 * tt + (ks >> 1) * 1024), ('x', n))
    def hrd(tt, ks):
        A.ds("ds_read_b128 %s, %s offset:%d" % (v(LAND + 4 * ks, 4), v(vL16), L_HH + 4096 * tt + 1024 * ks), ('h', tt, ks))
    for n in range(3):
        xrd(n)
    for n in range(36):
        tt, ks = n // 18, n % 18
        A.wait_ds(('x', n))
        for t in range(4):
            d = v(GAC[tt] + 4 * t, 4)
            MF(A, d, R(wg(t, ks), 4), v(LAND + 4 * (n % 4), 4), "0" if ks == 0 else d)
            if t == 0 and n + 3 < 36:
                xrd(n + 3)
            elif t == 0:
                hrd(0, n - 33)
            else:
                F(2)
        if n == 19:
            gu_epi(0)
        if n == 31:
            assert not fill
            A.wait_ds(('hw', 0))
            A("s_barrier")
    fs(A, 3)
    hrd(0, 3)
    A("s_mul_i32 %s, %s, %d" % (s(sA0 + 4), s(sSeg), PC_SEG))
    A("s_add_u32 %s, %s, %d" % (s(sA0 + 4), s(sA0 + 4), WS_PC))
    A("s_mul_i32 %s, %s, 36" % (s(sT), s(sW)))
    A("s_add_u32 %s, %s, %s" % (s(sT), s(sT), s(sSl)))
    A("s_lshl_b32 %s, %s, 10" % (s(sT), s(sT)))
    A("s_add_u32 %s, %s, %s" % (s(sT), s(sT), s(sA0 + 4)))
    DA = lambda G: ACC + 4 * (G % 4)
    def dn_epi(tt, G):
        b = DA(G + 9 * tt)
        if tt == 0:
            fill.append(lambda: A("v_cvt_pk_bf16_f32 %s, %s, %s" % (v(PK + 2 * G), v(b), v(b + 1))))
            fill.append(lambda: A("v_cvt_pk_bf16_f32 %s, %s, %s" % (v(PK + 2 * G + 1), v(b + 2), v(b + 3))))
        else:
            fill.append(lambda: A("v_cvt_pk_bf16_f32 %s, %s, %s" % (v(b + 3), v(b + 2), v(b + 3))))
            fill.append(lambda: A("v_cvt_pk_bf16_f32 %s, %s, %s" % (v(b + 2), v(b), v(b + 1))))
            fill.append(lambda: A("v_mov_b64 %s, %s" % (v(b, 2), v(PK + 2 * G, 2))))
            fill.append(lambda: A("buffer_store_dwordx4 %s, %s, %s, %s offen sc1" % (v(b, 4), v(vL16), s(sWS, 4), s(sT))))
            fill.append(lambda: A("s_add_u32 %s, %s, %d" % (s(sT), s(sT), 4 * 36 * 1024)))
    H1 = GAC[1]
    gu_epi(1)
    gl = list(fill)
    del fill[:]
    for N in range(18):
        tt, G = N // 9, N % 9
        if N >= 2:
            dn_epi((N - 2) // 9, (N - 2) % 9)
            pend = list(fill)
            del fill[:]
        else:
            pend = []
        for ks in range(4):
            if G == 0:
                A.wait_ds(('h', tt, ks))
            d = v(DA(N), 4)
            MF(A, d, R(wd(G, ks), 4), v((LAND if tt == 0 else H1) + 4 * ks, 4), "0" if ks == 0 else d)
            k = 0
            if ks >= 1 or len(pend) > 4:
                while pend and k < 2:
                    pend.pop(0)()
                    k += 1
            while gl and k < 2:
                gl.pop(0)()
                k += 1
            while k < 1:
                A("s_nop 0")
                k += 1
        assert not pend
        if N == 6:
            assert not gl
            A.wait_ds(('hw', 1))
            A("s_barrier")
            for ks in range(4):
                A.ds("ds_read_b128 %s, %s offset:%d" % (v(H1 + 4 * ks, 4), v(vL16), L_HH + 4096 + 1024 * ks), ('h', 1, ks))
    dn_epi(1, 7)
    F(len(fill))
    A("s_nop 1")
    dn_epi(1, 8)
    F(len(fill))
    fs(A, 5)
    llast = A.new("clast")
    A("s_cmp_ge_u32 %s, 60" % s(sSeg))
    A("s_cbranch_scc1 %s" % llast)
    A("s_waitcnt vmcnt(0)")
    A("s_barrier")
    fs(A, 6)
    A("s_lshl_b32 %s, %s, 8" % (s(sT), s(sSeg)))
    A("s_add_u32 %s, %s, %d" % (s(sT), s(sT), FL_PC))
    arrive(A, s(sT), 36)
    fs(A, 7)
    ts(A)
    A("s_cmp_eq_u32 %s, -1" % s(sPrev))
    A("s_cbranch_scc1 %s" % lfirst)
    reduce_out()
    reduce_fin()
    A.label(lfirst)
    A("s_mov_b32 %s, %s" % (s(sPrev), s(sSeg)))
    A("s_mov_b32 %s, %s" % (s(sPCo), s(sA0 + 4)))
    A("s_add_u32 %s, %s, 4" % (s(sSeg), s(sSeg)))
    A("s_branch %s" % ltop)
    A.label(llast)
    ts(A)
    ldn = A.new("cdn")
    A("s_cmp_eq_u32 %s, -1" % s(sPrev))
    A("s_cbranch_scc1 %s" % ldn)
    reduce_out()
    reduce_fin()
    A.label(ldn)
    A("s_mov_b32 %s, %s" % (s(sPrev), s(sSeg)))
    A("s_mov_b32 %s, %s" % (s(sPCo), s(sA0 + 4)))
    reduce_out(last=True)
    reduce_fin()
    if "dbgout" in opt:
        A("s_memrealtime s[96:97]")
        A("s_waitcnt lgkmcnt(0)")
        A("s_mov_b64 exec, 1")
        A("v_mov_b32 %s, s96" % v(vTmp))
        A("buffer_atomic_umax %s, off, %s, 0 offset:24" % (v(vTmp), s(sDBG, 4)))
    ts_dump(A, 1)
```

```python
from asmlib import *
from layout import *
import struct, math

def f32bits(x):
    return struct.unpack("<I", struct.pack("<f", x))[0]

sWS, sW1, sW2, sW3, sWO, sXS, sDBG = 4, 8, 12, 16, 20, 24, 28
sWid, sW, sSl, sRep, sSeg, sBud = 32, 33, 34, 35, 36, 37
sA0 = 38
sT = 60
sMask = 64
sSel = 80
vL16, vLane, vG, vC, vX, vTmp, vFl = 0, 1, 2, 3, 4, 5, 6
NSLOT = 9
L_SCR = 147456
FAST0 = 56

TS = {'on': False, 'reg': 15}
sTsI = 98
def ts(A, idx=None):
    if not TS['on'] or (TS.get('fine') and idx is None):
        return
    A("s_memrealtime s[96:97]")
    A("s_waitcnt lgkmcnt(0)")
    A.lds = []
    if idx is None:
        A("s_mov_b32 m0, %s" % s(sTsI))
        A("s_add_u32 %s, %s, 1" % (s(sTsI), s(sTsI)))
        A("v_writelane_b32 %s, s96, m0" % v(TS['reg']))
    else:
        A("v_writelane_b32 %s, s96, %d" % (v(TS['reg']), idx))
def fs(A, idx):
    if TS.get('fine'):
        A("s_memtime s[96:97]")
        A("s_waitcnt lgkmcnt(0)")
        A.lds = []
        A("v_writelane_b32 %s, s96, %d" % (v(TS['reg']), idx))
def ts_dump(A, part):
    if not TS['on']:
        return
    A("s_lshl_b32 s96, %s, 2" % s(sWid))
    A("s_add_u32 s96, s96, %s" % s(sW))
    A("s_lshl_b32 s96, s96, 9")
    A("s_add_u32 s96, s96, %d" % (WS_DBG + part * 256))
    A("v_lshlrev_b32 %s, 2, %s" % (v(vTmp), v(vLane)))
    A("buffer_store_dword %s, %s, %s, s96 offen" % (v(TS['reg']), v(vTmp), s(sWS, 4)))
    A("s_waitcnt vmcnt(0)")
    A("s_mov_b32 %s, 0" % s(sTsI))

def build_srd(A, d, karg, nbytes):
    A("s_load_dwordx2 %s, s[0:1], %d" % (s(d, 2), karg))
    A("s_waitcnt lgkmcnt(0)")
    A("s_and_b32 %s, %s, 0xffff" % (s(d + 1), s(d + 1)))
    A("s_mov_b32 %s, %d" % (s(d + 2), nbytes))
    A("s_mov_b32 %s, 0x20000" % s(d + 3))

def wait_flags(A, voff, soff, srd=sWS, cmp_ge=None, imm=0):
    lp, ok = A.new("wf"), A.new("wfok")
    A.label(lp)
    if voff is None:
        A("buffer_load_dword %s, off, %s, %s offset:%d sc1" % (v(vTmp), s(srd, 4), soff, imm))
    else:
        A("buffer_load_dword %s, %s, %s, %s offen offset:%d sc1" % (v(vTmp), v(voff), s(srd, 4), soff, imm))
    A("s_waitcnt vmcnt(0)")
    if cmp_ge is None:
        A("v_cmp_eq_u32 vcc, 0, %s" % v(vTmp))
    else:
        A("v_cmp_gt_u32 vcc, %d, %s" % (cmp_ge, v(vTmp)))
    A("s_cbranch_vccz %s" % ok)
    A("s_sleep %d" % TS.get('slp', 2))
    A("s_sub_u32 %s, %s, 1" % (s(sBud), s(sBud)))
    A("s_cbranch_scc0 %s" % lp)
    A("s_mov_b32 %s, 0" % s(sBud))
    A.label(ok)
    A.vm = []

def wait_ready(A, soff, n):
    if TS.get('cnt') and n != 128:
        wait_flags(A, None, soff, cmp_ge=n)
    else:
        wait_flags(A, None, soff, imm=128)

def set_flag(A, soff, wave0_only=True):
    sk = A.new("sf")
    if wave0_only:
        A("s_cmp_lg_u32 %s, 0" % s(sW))
        A("s_cbranch_scc1 %s" % sk)
    A("s_mov_b64 exec, 1")
    A("v_mov_b32 %s, 1" % v(vTmp))
    A("buffer_store_dword %s, off, %s, %s sc1" % (v(vTmp), s(sWS, 4), soff))
    A("s_mov_b64 exec, -1")
    A.label(sk)

def arrive(A, soff, n, wave0_only=True):
    sk = A.new("ar")
    if wave0_only:
        A("s_cmp_lg_u32 %s, 0" % s(sW))
        A("s_cbranch_scc1 %s" % sk)
    A("s_mov_b64 exec, 1")
    A("v_mov_b32 %s, 1" % v(vTmp))
    if TS.get('cnt') and n != 128:
        A("buffer_atomic_add %s, off, %s, %s" % (v(vTmp), s(sWS, 4), soff))
        A("s_mov_b64 exec, -1")
        A.label(sk)
        return
    A("buffer_atomic_add %s, off, %s, %s sc0" % (v(vTmp), s(sWS, 4), soff))
    A("s_waitcnt vmcnt(0)")
    A("v_cmpx_eq_u32 vcc, %d, %s" % (n - 1, v(vTmp)))
    A("s_cbranch_execz %s_x" % sk)
    A("buffer_store_dword %s, off, %s, %s offset:128 sc1" % (v(vTmp), s(sWS, 4), soff))
    A.label(sk + "_x")
    A("s_mov_b64 exec, -1")
    A.label(sk)

def canary(A, soff, imm=0, voff=None):
    lp, ok = A.new("cn"), A.new("cnok")
    A.label(lp)
    if voff is None:
        A("buffer_load_dword %s, off, %s, %s offset:%d sc1" % (v(vTmp), s(sWS, 4), soff, imm))
    else:
        A("buffer_load_dword %s, %s, %s, %s offen offset:%d sc1" % (v(vTmp), v(voff), s(sWS, 4), soff, imm))
    A("s_waitcnt vmcnt(0)")
    A("v_cmp_eq_u32 vcc, -1, %s" % v(vTmp))
    A("s_cbranch_vccz %s" % ok)
    A("s_sleep 1")
    A("s_sub_u32 %s, %s, 1" % (s(sBud), s(sBud)))
    A("s_cbranch_scc0 %s" % lp)
    A("s_mov_b32 %s, 0" % s(sBud))
    A.label(ok)
def maxchain(A, regs, first):
    regs = list(regs)
    if first:
        A("v_max_u32 %s, %s, %s" % (v(vTmp), v(regs[0]), v(regs[1])))
        regs = regs[2:]
    for i in range(0, len(regs), 2):
        A("v_max3_u32 %s, %s, %s, %s" % (v(vTmp), v(vTmp), v(regs[i]), v(regs[i + 1])))
def retry_if_sentinel(A, lagain):
    ok = A.new("sok")
    A("v_cmp_eq_u32 vcc, -1, %s" % v(vTmp))
    A("s_cbranch_vccz %s" % ok)
    A("s_sub_u32 %s, %s, 1" % (s(sBud), s(sBud)))
    A("s_cbranch_scc0 %s" % lagain)
    A("s_mov_b32 %s, 0" % s(sBud))
    A.label(ok)

def MF(A, d, a_, b_, c_):
    A("v_mfma_f32_16x16x32_bf16 %s, %s, %s, %s" % (d, a_, b_, c_))

sLW = 99
def stage_issue(A, chunks, c):
    srd, voff, so, _ = chunks[c]
    for j in range(4):
        A("s_add_u32 m0, %s, %d" % (s(sLW), (c % NSLOT) * 16384 + j * 1024))
        A("s_mov_b32 %s, %d" % (s(sT + 2), so[j]))
        A.vmem("buffer_load_dwordx4 %s, %s, %s offen lds" % (v(voff), s(srd, 4), s(sT + 2)), ('c', c))
def stage_start(A, chunks, depth=NSLOT - 1):
    A("s_lshl_b32 %s, %s, 12" % (s(sLW), s(sW)))
    for c in range(min(depth, len(chunks))):
        stage_issue(A, chunks, c)
def stage(A, chunks, started=False, depth=NSLOT - 1):
    if not started:
        stage_start(A, chunks, depth)
    n = len(chunks)
    for c in range(n):
        A.wait_vm(('c', c))
        A("s_barrier")
        if c + depth < n:
            stage_issue(A, chunks, c + depth)
        chunks[c][3]((c % NSLOT) * 16384)
        A.wait_ds()
    A("s_barrier")

def wide_off(A, dst, t1, rowstride, s_extra):
    A("v_lshlrev_b32 %s, 2, %s" % (v(t1), v(vG)))
    A("v_sub_u32 %s, %s, %s" % (v(t1), v(vLane), v(t1)))
    A("v_and_b32 %s, 15, %s" % (v(t1), v(t1)))
    A("v_lshlrev_b32 %s, 4, %s" % (v(t1), v(t1)))
    A("v_mul_u32_u24 %s, %d, %s" % (v(dst), rowstride, v(vG)))
    A("v_add_u32 %s, %s, %s" % (v(dst), v(dst), v(t1)))
    A("s_mul_i32 %s, %s, %d" % (s(sT + 3), s(sW), 16 * rowstride))
    A("s_add_u32 %s, %s, %s" % (s(sT + 3), s(sT + 3), s_extra))
    A("v_add_u32 %s, %s, %s" % (v(dst), s(sT + 3), v(dst)))

def wide_tr(A, dst, t1, s_col, ccmul):
    A("v_mul_u32_u24 %s, %d, %s" % (v(t1), ccmul, v(vX)))
    A("v_lshl_add_u32 %s, %s, 2, %s" % (v(t1), v(vC), v(t1)))
    A("v_add_u32 %s, %s, %s" % (v(t1), s_col, v(t1)))
    A("v_and_b32 %s, 15, %s" % (v(t1), v(t1)))
    A("v_lshlrev_b32 %s, 4, %s" % (v(t1), v(t1)))
    A("v_lshl_add_u32 %s, %s, 3, %s" % (v(dst), v(vG), v(vC)))
    A("v_lshl_add_u32 %s, %s, 8, %s" % (v(dst), v(dst), v(t1)))

def tall_off(A, dst, t1, s_extra):
    A("v_lshrrev_b32 %s, 3, %s" % (v(t1), v(vLane)))
    A("v_mul_u32_u24 %s, 1152, %s" % (v(dst), v(t1)))
    A("v_and_b32 %s, 7, %s" % (v(t1), v(vLane)))
    A("v_lshl_add_u32 %s, %s, 4, %s" % (v(dst), v(t1), v(dst)))
    A("s_mul_i32 %s, %s, %d" % (s(sT + 3), s(sW), 32 * 1152))
    A("s_add_u32 %s, %s, %s" % (s(sT + 3), s(sT + 3), s_extra))
    A("v_add_u32 %s, %s, %s" % (v(dst), s(sT + 3), v(dst)))

def tall_tr(A, dst, kbshift):
    A("v_lshl_add_u32 %s, %s, %d, %s" % (v(dst), v(vG), kbshift, v(vC)))
    A("v_lshlrev_b32 %s, 7, %s" % (v(dst), v(dst)))
    A("v_lshl_add_u32 %s, %s, 3, %s" % (v(dst), v(vX), v(dst)))
    A("s_lshl_b32 %s, %s, 5" % (s(sT + 3), s(sW)))
    A("v_add_u32 %s, %s, %s" % (v(dst), s(sT + 3), v(dst)))

def tr2(A, reg, addr, imm0, imm1):
    A.ds("ds_read_b64_tr_b16 %s, %s offset:%d" % (R(reg, 2), v(addr), imm0))
    A.ds("ds_read_b64_tr_b16 %s, %s offset:%d" % (R(reg + 2, 2), v(addr), imm1))

def x_dma(A, vXo, sSrc, sM0):
    for i in range(9):
        A("s_add_u32 m0, %s, %d" % (s(sM0), 896 * i))
        A("s_nop 0")
        A.vmem("buffer_load_dwordx4 %s, %s, %s offen offset:%d sc1 lds" % (v(vXo), s(sWS, 4), s(sSrc), 128 * i), 'x')

def gemm576(A, vXa, LAND, wreg, acc, ntile, swap, mid=None):
    def rd(ks):
        for tt in range(2):
            A.ds("ds_read_b128 %s, %s offset:%d" % (v(LAND + 8 * (ks & 1) + 4 * tt, 4), v(vXa + (ks & 1)), 18432 * tt + (ks >> 1) * 1024), ('x', ks))
    rd(0)
    for ks in range(18):
        A.wait_ds(('x', ks))
        n = 0
        for t in range(ntile):
            for tt in range(2):
                x = v(LAND + 8 * (ks & 1) + 4 * tt, 4)
                w = R(wreg(t, ks), 4)
                d = v(acc(t, tt), 4)
                if swap(t):
                    MF(A, d, x, w, "0" if ks == 0 else d)
                else:
                    MF(A, d, w, x, "0" if ks == 0 else d)
                n += 1
                if n == 1 and ks + 1 < 18:
                    rd(ks + 1)
        if mid and ks == 4:
            mid()

def wave_sum(A, r, t):
    for k in (8, 4, 2, 1):
        A("s_nop 1")
        A("v_add_f32_dpp %s, %s, %s row_ror:%d row_mask:0xf bank_mask:0xf" % (v(r), v(r), v(r), k))
    for op in ("v_permlane16_swap_b32", "v_permlane32_swap_b32"):
        A("v_mov_b32 %s, %s" % (v(t), v(r)))
        A("s_nop 1")
        A("%s %s, %s" % (op, v(r), v(t)))
        A("v_add_f32 %s, %s, %s" % (v(r), v(r), v(t)))

def rnd2(A, a, b):
    A("v_cvt_pk_bf16_f32 %s, %s, %s" % (v(b), v(a), v(b)))
    A("v_lshlrev_b32 %s, 16, %s" % (v(a), v(b)))
    A("v_and_b32 %s, 0xffff0000, %s" % (v(b), v(b)))
def rnd1(A, a):
    A("v_cvt_pk_bf16_f32 %s, %s, %s" % (v(a), v(a), v(a)))
    A("v_and_b32 %s, 0xffff0000, %s" % (v(a), v(a)))
def unpack(A, lo, hi, src):
    A("v_and_b32 %s, 0xffff0000, %s" % (v(hi), v(src))) if hi != src else None
    A("v_lshlrev_b32 %s, 16, %s" % (v(lo), v(src)))
    if hi == src:
        A("v_and_b32 %s, 0xffff0000, %s" % (v(hi), v(src)))

def row_offsets(A, vRow, vRow2, svalid, t):
    A("v_and_b32 %s, 7, %s" % (v(t), v(vLane)))
    A("v_lshlrev_b32 %s, 4, %s" % (v(vRow), v(t)))
    A("v_bfe_u32 %s, %s, 3, 1" % (v(t), v(vLane)))
    A("v_lshl_add_u32 %s, %s, 8, %s" % (v(vRow), v(t), v(vRow)))
    A("v_lshrrev_b32 %s, 1, %s" % (v(t), v(vG)))
    A("v_lshl_add_u32 %s, %s, 7, %s" % (v(vRow), v(t), v(vRow)))
    A("v_and_b32 %s, 1, %s" % (v(t), v(vG)))
    A("v_lshl_add_u32 %s, %s, 3, %s" % (v(vRow), v(t), v(vRow)))
    A("s_mov_b32 %s, 0x00ff00ff" % s(svalid))
    A("s_mov_b32 %s, 0" % s(svalid + 1))
    A("v_mov_b32 %s, 0x%x" % (v(t), OOB >> 1))
    A("v_cndmask_b32 %s, %s, %s, %s" % (v(vRow2), v(t), v(vRow), s(svalid, 2)))

def load_mod(A, dst, which, vRow, vRow2, t1, t2):
    A("v_lshlrev_b32 %s, 1, %s" % (v(t1), v(vRow)))
    A("v_lshlrev_b32 %s, 1, %s" % (v(t2), v(vRow2)))
    A("s_mov_b32 %s, %d" % (s(sT + 2), WS_MOD + which * 2304))
    for U in range(3):
        A.vmem("buffer_load_dwordx4 %s, %s, %s, %s offen offset:%d sc1" % (v(dst + 4 * U, 4), v(t1 if U < 2 else t2), s(sWS, 4), s(sT + 2), 1024 * U), 'mod')

def ln_stats(A, X, D, svalid, m, rs, t):
    A("v_add_f32 %s, %s, %s" % (v(m), v(X), v(X + 1)))
    for i in range(2, 12):
        A("v_add_f32 %s, %s, %s" % (v(m), v(m), v(X + i)))
    wave_sum(A, m, t)
    A("v_mul_f32 %s, 0x%x, %s" % (v(m), f32bits(1.0 / 576), v(m)))
    for i in range(12):
        A("v_sub_f32 %s, %s, %s" % (v(D + i), v(X + i), v(m)))
    A("v_mul_f32 %s, %s, %s" % (v(rs), v(D + 8), v(D + 8)))
    for i in range(9, 12):
        A("v_fmac_f32 %s, %s, %s" % (v(rs), v(D + i), v(D + i)))
    A("v_cndmask_b32 %s, 0, %s, %s" % (v(rs), v(rs), s(svalid, 2)))
    for i in range(8):
        A("v_fmac_f32 %s, %s, %s" % (v(rs), v(D + i), v(D + i)))
    wave_sum(A, rs, t)
    A("v_mul_f32 %s, 0x%x, %s" % (v(rs), f32bits(1.0 / 576), v(rs)))
    rnd2(A, m, rs)
    A("v_add_f32 %s, 0x%x, %s" % (v(rs), f32bits(1e-5), v(rs)))
    rnd1(A, rs)
    A("v_sqrt_f32 %s, %s" % (v(rs), v(rs)))
    A("s_nop 0")
    rnd1(A, rs)
    A("v_rcp_f32 %s, %s" % (v(rs), v(rs)))
    A("s_nop 0")

def ln_apply(A, X, m, rs, C1, SH, out):
    for i in range(12):
        A("v_sub_f32 %s, %s, %s" % (v(X + i), v(X + i), v(m)))
    for i in range(0, 12, 2):
        rnd2(A, X + i, X + i + 1)
    for i in range(12):
        A("v_mul_f32 %s, %s, %s" % (v(X + i), v(X + i), v(rs)))
    for i in range(0, 12, 2):
        rnd2(A, X + i, X + i + 1)
    for i in range(12):
        A("v_mul_f32 %s, %s, %s" % (v(X + i), v(X + i), v(C1 + i)))
    for i in range(0, 12, 2):
        rnd2(A, X + i, X + i + 1)
    for i in range(12):
        A("v_add_f32 %s, %s, %s" % (v(X + i), v(X + i), v(SH + i)))
    for i in range(6):
        A("v_cvt_pk_bf16_f32 %s, %s, %s" % (v(out + i), v(X + 2 * i), v(X + 2 * i + 1)))

def one_plus(A, C):
    for i in range(12):
        A("v_add_f32 %s, 1.0, %s" % (v(C + i), v(C + i)))
    for i in range(0, 12, 2):
        rnd2(A, C + i, C + i + 1)

def row_io(A, op, reg, vRow, vRow2, srd, soff, flags=""):
    for U in range(3):
        A.vmem("buffer_%s_dwordx2 %s, %s, %s, %s offen offset:%d%s" % (op, v(reg + 2 * U, 2), v(vRow if U < 2 else vRow2), s(srd, 4), soff, 512 * U, flags), 'row')

def sel_masks(A):
    for hi in range(2):
        for u in range(4):
            m16 = (3 << (2 * u)) << (8 * hi)
            m32 = m16 | (m16 << 16)
            A("s_mov_b32 %s, 0x%x" % (s(sSel + 8 * hi + 2 * u), m32))
            A("s_mov_b32 %s, 0x%x" % (s(sSel + 8 * hi + 2 * u + 1), m32))
def make_sel(A, dst, hi, t):
    A("v_and_b32 %s, 1, %s" % (v(t), v(vLane)))
    A("v_lshlrev_b32 %s, 4, %s" % (v(t), v(t)))
    A("v_mov_b32 %s, 0x3f80" % v(dst))
    A("v_lshlrev_b32 %s, %s, %s" % (v(t), v(t), v(dst)))
    for u in range(4):
        A("v_cndmask_b32 %s, 0, %s, %s" % (v(dst + u), v(t), s(sSel + 8 * hi + 2 * u, 2)))

def emit_worker(A, opt=()):
    A.c("=========== worker ===========")
    A("v_mov_b32 %s, v0" % v(vLane))
    A("v_lshlrev_b32 %s, 4, %s" % (v(vL16), v(vLane)))
    A("v_lshrrev_b32 %s, 4, %s" % (v(vG), v(vLane)))
    A("v_bfe_u32 %s, %s, 2, 2" % (v(vC), v(vLane)))
    A("v_and_b32 %s, 3, %s" % (v(vX), v(vLane)))
    A("s_mov_b32 %s, 1000000" % s(sBud))
    TS['on'], TS['reg'], TS['fine'] = "ts" in opt, 79, "fs" in opt
    TS['cnt'] = "cnt" in opt
    TS['slp'] = ([int(o[4:]) for o in opt if o.startswith("slp=")] + [2])[0]
    TS['d2'] = ([int(o[3:]) for o in opt if o.startswith("d2=")] + [2])[0]
    ts(A, 0)
    sel_masks(A)
    build_srd(A, sXS, 0, 2359296)
    vRow, vRow2 = 7, 8
    sValid = sMask
    row_offsets(A, vRow, vRow2, sValid, vTmp)
    A("s_mul_i32 %s, %s, 9363" % (s(sSl), s(sWid)))
    A("s_lshr_b32 %s, %s, 16" % (s(sSl), s(sSl)))
    A("s_mul_i32 %s, %s, 7" % (s(sT), s(sSl)))
    A("s_sub_u32 %s, %s, %s" % (s(sRep), s(sWid), s(sT)))
    vOffW, vTr, vAd = 77, 78, 11
    A("s_lshl_b32 %s, %s, 8" % (s(sT + 1), s(sSl)))
    wide_off(A, vOffW, vTmp, 8192, s(sT + 1))
    A("s_lshr_b32 %s, %s, 1" % (s(sT + 1), s(sW)))
    A("s_lshl_b32 %s, %s, 3" % (s(sT + 1), s(sT + 1)))
    A("s_and_b32 %s, %s, 1" % (s(sT + 2), s(sW)))
    A("s_add_u32 %s, %s, %s" % (s(sT + 1), s(sT + 1), s(sT + 2)))
    wide_tr(A, vTr, vTmp, s(sT + 1), 2)
    W0 = 80
    def wq(t, ks):
        return W0 + 4 * (6 * ks + t)
    def wide_chunks(mats, rowstride, wreg, vOffW=vOffW, vTr=vTr):
        out = []
        for G in range(9):
            for m, srd in enumerate(mats):
                def consume(base, m=m, G=G):
                    A("v_add_u32 %s, %d, %s" % (v(vAd), base, v(vTr)))
                    for k2 in range(2):
                        for t in range(2):
                            tr2(A, wreg(2 * m + t, 2 * G + k2), vAd, 32 * k2 * 256 + 8 * t, (32 * k2 + 4) * 256 + 8 * t)
                out.append((srd, vOffW, [(64 * G + 4 * j) * rowstride for j in range(4)], consume))
        return out
    qchunks = wide_chunks((sW1, sW2, sW3), 8192, wq)
    lmod, lpre_done, lidle = A.new("mod"), A.new("predone"), A.new("idle")
    XR = 16
    A("s_cmp_lt_u32 %s, 3" % s(sRep))
    A("s_cbranch_scc1 %s" % lmod)
    A("s_lshl_b32 %s, %s, 2" % (s(sT), s(sSl)))
    A("s_add_u32 %s, %s, %s" % (s(sT), s(sT), s(sRep)))
    A("s_sub_u32 %s, %s, 3" % (s(sT), s(sT)))
    A("s_lshl_b32 %s, %s, 2" % (s(sT), s(sT)))
    A("s_add_u32 %s, %s, %s" % (s(sT), s(sT), s(sW)))
    A("s_mul_i32 %s, %s, %d" % (s(sA0), s(sT), 4 * 1152))
    for r in range(4):
        A("s_add_u32 %s, %s, %d" % (s(sT), s(sA0), r * 1152))
        row_io(A, "load", XR + 6 * r, vRow, vRow2, sXS, s(sT))
    stage_start(A, qchunks)
    A("s_waitcnt vmcnt(%d)" % (4 * (NSLOT - 1)))
    SH, C1, XF = 40, 52, 100
    for r in range(4):
        for i in range(6):
            unpack(A, XF + 12 * r + 2 * i, XF + 12 * r + 2 * i + 1, XR + 6 * r + i)
        ln_stats(A, XF + 12 * r, 160, sValid, 64 + 2 * r, 65 + 2 * r, 11)
    wait_flags(A, None, "0", srd=sDBG, imm=DBG_MOD)
    load_mod(A, SH, 0, vRow, vRow2, 9, 10)
    load_mod(A, C1, 1, vRow, vRow2, 9, 10)
    A("s_waitcnt vmcnt(0)")
    one_plus(A, C1)
    for r in range(4):
        ln_apply(A, XF + 12 * r, 64 + 2 * r, 65 + 2 * r, C1, SH, XR + 6 * r)
        A("s_add_u32 %s, %s, %d" % (s(sT), s(sA0), WS_H + r * 1152))
        row_io(A, "store", XR + 6 * r, vRow, vRow2, sWS, s(sT), " sc1")
    A("s_waitcnt vmcnt(0)")
    A("s_barrier")
    A("s_mov_b32 %s, %d" % (s(sT), FL_H))
    arrive(A, s(sT), 128)
    A("s_branch %s" % lpre_done)

    A.label(lmod)
    A("s_cmp_eq_u32 %s, 0" % s(sRep))
    A("s_cbranch_scc1 %s" % lidle)
    A("s_cmp_ge_u32 %s, 27" % s(sSl))
    A("s_cbranch_scc1 %s" % lidle)
    build_srd(A, sA0 + 2, 88, 1152)
    build_srd(A, sA0 + 6, 96, 3981312)
    sCs, sWm = sA0 + 2, sA0 + 6
    A("s_lshl_b32 %s, %s, 1" % (s(sA0), s(sSl)))
    A("s_add_u32 %s, %s, %s" % (s(sA0), s(sA0), s(sRep)))
    A("s_sub_u32 %s, %s, 1" % (s(sA0), s(sA0)))
    for i in range(4):
        A("v_mov_b32 %s, 0" % v(12 + i))
    A("s_lshl_b32 %s, %s, 2" % (s(sT), s(sA0)))
    A("s_add_u32 %s, %s, %s" % (s(sT), s(sT), s(sW)))
    A("s_lshl_b32 %s, %s, 11" % (s(sT), s(sT)))
    A("s_add_u32 %s, %s, %d" % (s(sT), s(sT), WS_FL))
    assert FL_END - WS_FL <= 54 * 8192
    A("buffer_store_dwordx4 %s, %s, %s, %s offen sc1" % (v(12, 4), v(vL16), s(sWS, 4), s(sT)))
    A("buffer_store_dwordx4 %s, %s, %s, %s offen offset:1024 sc1" % (v(12, 4), v(vL16), s(sWS, 4), s(sT)))
    A("v_lshrrev_b32 %s, 3, %s" % (v(9), v(vLane)))
    A("s_mul_i32 %s, %s, 144" % (s(sT), s(sW)))
    A("v_add_u32 %s, %s, %s" % (v(9), s(sT), v(9)))
    A("v_lshlrev_b32 %s, 1, %s" % (v(10), v(9)))
    A("v_mul_u32_u24 %s, 6912, %s" % (v(9), v(9)))
    A("v_and_b32 %s, 7, %s" % (v(11), v(vLane)))
    A("v_lshl_add_u32 %s, %s, 4, %s" % (v(9), v(11), v(9)))
    A("s_lshl_b32 %s, %s, 7" % (s(sT), s(sA0)))
    CV, WV, ACC = 100, 120, 200
    for i in range(18):
        A("buffer_load_ushort %s, %s, %s, 0 offen offset:%d" % (v(CV + i), v(10), s(sCs, 4), 16 * i))
    for i in range(18):
        A("s_add_u32 %s, %s, %d" % (s(sT + 1), s(sT), i * 55296))
        A("buffer_load_dwordx4 %s, %s, %s, %s offen" % (v(WV + 4 * i, 4), v(9), s(sWm, 4), s(sT + 1)))
    A("s_waitcnt vmcnt(18)")
    for i in range(18):
        c = CV + i
        A("v_lshlrev_b32 %s, 16, %s" % (v(c), v(c)))
        A("v_mul_f32 %s, 0x%x, %s" % (v(12), f32bits(-math.log2(math.e)), v(c)))
        A("v_exp_f32 %s, %s" % (v(12), v(12)))
        A("s_nop 0")
        A("v_add_f32 %s, 1.0, %s" % (v(12), v(12)))
        A("v_rcp_f32 %s, %s" % (v(12), v(12)))
        A("s_nop 0")
        A("v_mul_f32 %s, %s, %s" % (v(c), v(c), v(12)))
        rnd1(A, c)
    for j in range(8):
        A("v_mov_b32 %s, 0" % v(ACC + j))
    A("s_waitcnt vmcnt(0)")
    for i in range(18):
        for j in range(4):
            unpack(A, 12, 13, WV + 4 * i + j)
            A("v_fmac_f32 %s, %s, %s" % (v(ACC + 2 * j), v(12), v(CV + i)))
            A("v_fmac_f32 %s, %s, %s" % (v(ACC + 2 * j + 1), v(13), v(CV + i)))
    for j in range(8):
        r = ACC + j
        A("s_nop 1")
        A("v_add_f32_dpp %s, %s, %s row_ror:8 row_mask:0xf bank_mask:0xf" % (v(r), v(r), v(r)))
        for op in ("v_permlane16_swap_b32", "v_permlane32_swap_b32"):
            A("v_mov_b32 %s, %s" % (v(12), v(r)))
            A("s_nop 1")
            A("%s %s, %s" % (op, v(r), v(12)))
            A("v_add_f32 %s, %s, %s" % (v(r), v(r), v(12)))
    A("s_lshl_b32 %s, %s, 8" % (s(sT + 1), s(sW)))
    A("s_add_u32 %s, %s, %d" % (s(sT + 1), s(sT + 1), L_SCR))
    A("v_lshlrev_b32 %s, 5, %s" % (v(11), v(11)))
    A("v_add_u32 %s, %s, %s" % (v(11), s(sT + 1), v(11)))
    A("ds_write_b128 %s, %s" % (v(11), v(ACC, 4)))
    A("ds_write_b128 %s, %s offset:16" % (v(11), v(ACC + 4, 4)))
    A("s_waitcnt lgkmcnt(0)")
    A("s_barrier")
    A("v_lshlrev_b32 %s, 2, %s" % (v(10), v(vLane)))
    A("v_add_u32 %s, %d, %s" % (v(11), L_SCR, v(10)))
    for i in range(4):
        A("ds_read_b32 %s, %s offset:%d" % (v(12 + i), v(11), 256 * i))
    A("s_waitcnt lgkmcnt(0)")
    A("v_add_f32 %s, %s, %s" % (v(12), v(12), v(13)))
    A("v_add_f32 %s, %s, %s" % (v(14), v(14), v(15)))
    A("v_add_f32 %s, %s, %s" % (v(12), v(12), v(14)))
    rnd1(A, 12)
    A("s_lshl_b32 %s, %s, 8" % (s(sT), s(sA0)))
    A("s_add_u32 %s, %s, %d" % (s(sT), s(sT), WS_MOD))
    sk = A.new("modw")
    A("s_cmp_lg_u32 %s, 0" % s(sW))
    A("s_cbranch_scc1 %s" % sk)
    A("buffer_store_dword %s, %s, %s, %s offen sc1" % (v(12), v(10), s(sWS, 4), s(sT)))
    A("s_waitcnt vmcnt(0)")
    A("s_mov_b64 exec, 1")
    A("v_mov_b32 %s, 1" % v(12))
    A("buffer_atomic_add %s, off, %s, 0 offset:%d sc0" % (v(12), s(sDBG, 4), DBG_MODC))
    A("s_waitcnt vmcnt(0)")
    A("v_cmpx_eq_u32 vcc, 53, %s" % v(12))
    A("s_cbranch_execz %s_x" % sk)
    A("buffer_store_dword %s, off, %s, 0 offset:%d sc1" % (v(12), s(sDBG, 4), DBG_MOD))
    A.label(sk + "_x")
    A("s_mov_b64 exec, -1")
    A.label(sk)
    A.label(lidle)
    stage_start(A, qchunks)
    A.label(lpre_done)
    ts(A, 1)

    A.vm, A.lds = [('c', c) for c in range(NSLOT - 1) for j in range(4)], []
    stage(A, qchunks, started=True)
    ts(A, 2)
    wait_flags(A, None, "0", srd=sDBG, imm=DBG_MOD)
    ts(A, 3)
    ts(A, 4)
    if TS['on']:
        A("v_mov_b32 v15, v79")
        A("s_mov_b32 %s, 8" % s(sTsI))
        TS['reg'] = 15
    A("s_mov_b32 %s, %d" % (s(sT), FL_H))
    wait_flags(A, None, s(sT), imm=128)
    ts(A, 5)
    vXo, vXa = 9, 10
    LAND, ACC = 16, 32
    sSrc, sM0x, sQo, sKo, sFlag, sBuf = sA0, sA0 + 1, sA0 + 2, sA0 + 3, sA0 + 4, sA0 + 5
    def xsetup(vXa):
        A("v_lshrrev_b32 %s, 3, %s" % (v(vTmp), v(vLane)))
        A("v_xor_b32 %s, %s, %s" % (v(vXa), v(vTmp), v(vLane)))
        A("v_and_b32 %s, 7, %s" % (v(vXa), v(vXa)))
        A("v_mul_u32_u24 %s, 1152, %s" % (v(vXo), v(vTmp)))
        A("v_lshl_add_u32 %s, %s, 4, %s" % (v(vXo), v(vXa), v(vXo)))
        A("s_mul_i32 %s, %s, 9216" % (s(sM0x), s(sW)))
        A("v_add_u32 %s, %s, %s" % (v(vXo), s(sM0x), v(vXo)))
        A("v_and_b32 %s, 7, %s" % (v(vTmp), v(vLane)))
        A("v_xor_b32 %s, %s, %s" % (v(vXa), v(vG), v(vTmp)))
        A("v_lshlrev_b32 %s, 4, %s" % (v(vXa), v(vXa)))
        A("v_lshl_add_u32 %s, %s, 7, %s" % (v(vXa), v(vTmp), v(vXa)))
        A("v_bfe_u32 %s, %s, 3, 1" % (v(vTmp), v(vLane)))
        A("v_mul_u32_u24 %s, 9216, %s" % (v(vTmp), v(vTmp)))
        A("v_add_u32 %s, %s, %s" % (v(vXa), v(vXa), v(vTmp)))
        A("v_xor_b32 %s, 64, %s" % (v(vXa + 1), v(vXa)))
    xsetup(vXa)
    A("s_mov_b32 %s, %s" % (s(sSeg), s(sRep)))
    A("s_mul_i32 %s, %s, 36864" % (s(sSrc), s(sSeg)))
    A("s_add_u32 %s, %s, %d" % (s(sSrc), s(sSrc), WS_H))
    A("s_lshl_b32 %s, %s, 5" % (s(sT), s(sSeg)))
    A("s_add_u32 %s, %s, %s" % (s(sT), s(sT), s(sSl)))
    A("s_lshl_b32 %s, %s, 10" % (s(sT + 1), s(sW)))
    A("s_lshl_b32 %s, %s, 13" % (s(sQo), s(sT)))
    A("s_add_u32 %s, %s, %s" % (s(sQo), s(sQo), s(sT + 1)))
    A("s_add_u32 %s, %s, %d" % (s(sQo), s(sQo), WS_Q))
    A("s_lshl_b32 %s, %s, 14" % (s(sKo), s(sT)))
    A("s_add_u32 %s, %s, %s" % (s(sKo), s(sKo), s(sT + 1)))
    if WS_KV:
        A("s_add_u32 %s, %s, %d" % (s(sKo), s(sKo), WS_KV))
    A("s_mov_b32 %s, 0x%x" % (s(sFlag), OOB))
    A.vm = []
    x_dma(A, vXo, sSrc, sM0x)
    A("s_waitcnt vmcnt(0)")
    ltop, lend = A.new("qkv"), A.new("qkvend")
    A.label(ltop)
    lq1, lq2 = A.new("q1"), A.new("q2")
    A("s_cmp_ge_u32 %s, 14" % s(sSeg))
    A("s_cbranch_scc1 %s" % lq1)
    A("s_waitcnt vmcnt(0)")
    A("s_barrier")
    set_flag(A, s(sFlag))
    A("s_branch %s" % lq2)
    A.label(lq1)
    A("s_waitcnt vmcnt(7)")
    A("s_barrier")
    A.label(lq2)
    ts(A)
    fs(A, 20)
    A("s_xor_b32 %s, %s, 0x10000" % (s(sM0x), s(sM0x)))
    A("s_add_u32 %s, %s, %d" % (s(sSrc), s(sSrc), 7 * 36864))
    x_dma(A, vXo, sSrc, sM0x)
    def mid():
        A("s_waitcnt vmcnt(9)")
        A("s_barrier")
        set_flag(A, s(sFlag))
    fs(A, 21)
    A.lds = []
    gemm576(A, vXa, LAND, wq, lambda t, tt: ACC + 8 * t + 4 * tt, 6, lambda t: t >= 4, mid)
    fs(A, 22)
    A("v_xor_b32 %s, 0x10000, %s" % (v(vXa), v(vXa)))
    A("v_xor_b32 %s, 0x10000, %s" % (v(vXa + 1), v(vXa + 1)))
    A("s_lshl_b32 %s, %s, 8" % (s(sFlag), s(sSl)))
    A("s_lshl_b32 %s, %s, 2" % (s(sT), s(sSeg)))
    A("s_add_u32 %s, %s, %s" % (s(sFlag), s(sFlag), s(sT)))
    A("s_add_u32 %s, %s, %d" % (s(sFlag), s(sFlag), FL_KV))
    A("s_add_u32 %s, %s, 4096" % (s(sT), s(sQo)))
    A("s_add_u32 %s, %s, 4096" % (s(sT + 1), s(sKo)))
    A("s_lshl_b32 %s, %s, 10" % (s(sT + 2), s(sW)))
    A("s_add_u32 %s, %s, %s" % (s(sT + 2), s(sT + 2), s(sKo)))
    A("s_add_u32 %s, %s, 8192" % (s(sT + 2), s(sT + 2)))
    for m in range(2):
        for tt in range(2):
            a0, a1 = ACC + 16 * m + 4 * tt, ACC + 16 * m + 8 + 4 * tt
            for x in range(4):
                A("v_cvt_pk_bf16_f32 %s, %s, %s" % (v(a0 + x), v(a0 + x), v(a1 + x)))
            so = (sQo, sT, sKo, sT + 1)[2 * m + tt]
            A("buffer_store_dwordx4 %s, %s, %s, %s offen sc1" % (v(a0, 4), v(vL16), s(sWS, 4), s(so)))
    for t in range(2):
        a0 = ACC + 32 + 8 * t
        A("v_cvt_pk_bf16_f32 %s, %s, %s" % (v(a0), v(a0), v(a0 + 1)))
        A("v_cvt_pk_bf16_f32 %s, %s, %s" % (v(a0 + 1), v(a0 + 2), v(a0 + 3)))
        A("v_cvt_pk_bf16_f32 %s, %s, %s" % (v(a0 + 2), v(a0 + 4), v(a0 + 5)))
        A("v_cvt_pk_bf16_f32 %s, %s, %s" % (v(a0 + 3), v(a0 + 6), v(a0 + 7)))
        A("buffer_store_dwordx4 %s, %s, %s, %s offen offset:%d sc1" % (v(a0, 4), v(vL16), s(sWS, 4), s(sT + 2), 1024 * t))
    A("v_mov_b64 %s, -1" % v(LAND, 2))
    A("v_mov_b64 %s, -1" % v(LAND + 2, 2))
    A("s_sub_u32 %s, %s, %d" % (s(sT), s(sQo), WS_Q))
    A("s_lshl_b32 %s, %s, 10" % (s(sT + 1), s(sW)))
    A("s_add_u32 %s, %s, %s" % (s(sT), s(sT), s(sT + 1)))
    A("s_lshr_b32 %s, %s, 1" % (s(sT), s(sT)))
    A("s_add_u32 %s, %s, %d" % (s(sT), s(sT), WS_KM))
    A("buffer_store_dwordx4 %s, %s, %s, %s offen sc1" % (v(LAND, 4), v(vL16), s(sWS, 4), s(sT)))
    fs(A, 23)
    A("s_add_u32 %s, %s, %d" % (s(sQo), s(sQo), 7 * 32 * 8192))
    A("s_add_u32 %s, %s, %d" % (s(sKo), s(sKo), 7 * 32 * 16384))
    A("s_add_u32 %s, %s, 7" % (s(sSeg), s(sSeg)))
    A("s_cmp_lt_u32 %s, 64" % s(sSeg))
    A("s_cbranch_scc1 %s" % ltop)
    A("s_waitcnt vmcnt(0)")
    A("s_barrier")
    set_flag(A, s(sFlag))
    ts(A, 6)
    ts_dump(A, 0)
    if "p1only" in opt:
        return
    lC = A.new("roleC")
    A("s_cmp_ge_u32 %s, 80" % s(sWid))
    A("s_cbranch_scc1 %s" % lC)
    lB = A.new("roleB")
    A("s_cmp_ge_u32 %s, 64" % s(sWid))
    A("s_cbranch_scc1 %s" % lB)
    emit_roleA(A, opt)
    A("s_endpgm")
    A.label(lB)
    emit_roleB(A, vRow, vRow2, sValid, opt)
    A("s_endpgm")
    A.label(lC)
    emit_roleC(A, xsetup, wide_chunks, opt)

def emit_roleA(A, opt):
    A.c("=========== role A: attention + Wo partial ===========")
    A("s_lshr_b32 %s, %s, 2" % (s(sSl), s(sWid)))
    A("s_and_b32 %s, %s, 3" % (s(sRep), s(sWid)))
    vOff, vTr, vAd = 9, 10, 11
    A("s_mul_i32 %s, %s, %d" % (s(sT + 1), s(sSl), 2 * 147456))
    tall_off(A, vOff, vTmp, s(sT + 1))
    tall_tr(A, vTr, 4)
    W0 = 224
    def wo(G, K):
        return W0 + 4 * (8 * G + K)
    chunks = []
    for hd in range(2):
        for G in range(9):
            def consume(base, hd=hd, G=G):
                A("v_add_u32 %s, %d, %s" % (v(vAd), base, v(vTr)))
                for ks in range(4):
                    r0 = 64 * (ks >> 1) + 8 * (ks & 1)
                    tr2(A, wo(G, 4 * hd + ks), vAd, r0 * 128, (r0 + 4) * 128)
            chunks.append((sWO, vOff, [hd * 147456 + 8 * j * 1152 + 128 * G for j in range(4)], consume))
    A.vm, A.lds = ['old'] * 2, []
    stage(A, chunks, depth=TS['d2'])
    TS['reg'] = 19
    ts(A)
    vKM, vL4, vOwr, vTw, vTrd, vPst, vPld, vNEG = 9, 10, 11, 12, 13, 14, 15, 16
    GA, SB, CB = 20, 32, 44
    SEL0, SEL1 = 56, 60
    QF, KX, VX, KM, VM = 64, 80, 112, 144, 160
    S_, OA = 176, 188
    WACC, LAND = 144, 216
    L_OT, L_PT = 0, 16384
    PSTR = 1168
    A("v_lshlrev_b32 %s, 2, %s" % (v(vL4), v(vLane)))
    A("v_lshrrev_b32 %s, 1, %s" % (v(vTmp), v(vG)))
    A("v_lshlrev_b32 %s, 10, %s" % (v(vKM), v(vTmp)))
    A("v_and_b32 %s, 1, %s" % (v(vTmp), v(vX)))
    A("v_lshl_add_u32 %s, %s, 8, %s" % (v(vKM), v(vTmp), v(vKM)))
    A("v_lshl_add_u32 %s, %s, 6, %s" % (v(vKM), v(vC), v(vKM)))
    A("v_and_b32 %s, 1, %s" % (v(vTmp), v(vG)))
    A("v_lshl_add_u32 %s, %s, 5, %s" % (v(vKM), v(vTmp), v(vKM)))
    A("s_and_b32 %s, %s, 1" % (s(sT), s(sW)))
    A("s_lshl_b32 %s, %s, 13" % (s(sT + 1), s(sT)))
    A("s_lshr_b32 %s, %s, 1" % (s(sT + 2), s(sW)))
    A("s_lshl_b32 %s, %s, 12" % (s(sT + 3), s(sT + 2)))
    A("s_add_u32 %s, %s, %s" % (s(sT + 1), s(sT + 1), s(sT + 3)))
    A("v_add_u32 %s, %s, %s" % (v(vOwr), s(sT + 1), v(vL16)))
    A("v_and_b32 %s, 15, %s" % (v(17), v(vLane)))
    A("s_lshl_b32 %s, %s, 4" % (s(sT + 1), s(sT)))
    A("v_add_u32 %s, %s, %s" % (v(17), s(sT + 1), v(17)))
    A("v_lshlrev_b32 %s, 2, %s" % (v(18), v(vG)))
    A("v_sub_u32 %s, %s, %s" % (v(17), v(17), v(18)))
    sCM = sA0 + 6
    for i in range(8):
        A("v_cmp_le_i32 %s, %d, %s" % (s(sCM + 2 * i, 2), 16 * (i >> 2) + (i & 3), v(17)))
    A("v_mov_b32 %s, 0x%x" % (v(vNEG), f32bits(-1e9)))
    A("v_and_b32 %s, 15, %s" % (v(vTmp), v(vLane)))
    A("v_mul_u32_u24 %s, %d, %s" % (v(vTw), PSTR, v(vTmp)))
    A("v_lshl_add_u32 %s, %s, 3, %s" % (v(vTw), v(vG), v(vTw)))
    A("s_lshl_b32 %s, %s, 5" % (s(sT + 1), s(sW)))
    A("s_add_u32 %s, %s, %d" % (s(sT + 1), s(sT + 1), L_PT))
    A("v_add_u32 %s, %s, %s" % (v(vTw), s(sT + 1), v(vTw)))
    A("v_lshrrev_b32 %s, 3, %s" % (v(17), v(vLane)))
    A("v_and_b32 %s, 7, %s" % (v(18), v(vLane)))
    A("v_lshlrev_b32 %s, 4, %s" % (v(18), v(18)))
    A("s_lshl_b32 %s, %s, 3" % (s(sT + 1), s(sW)))
    A("v_add_u32 %s, %s, %s" % (v(17), s(sT + 1), v(17)))
    A("v_mul_u32_u24 %s, %d, %s" % (v(vTrd), PSTR, v(17)))
    A("v_add_u32 %s, %s, %s" % (v(vTrd), v(vTrd), v(18)))
    A("v_add_u32 %s, %d, %s" % (v(vTrd), L_PT, v(vTrd)))
    A("v_mul_u32_u24 %s, 18432, %s" % (v(vPst), v(17)))
    A("v_add_u32 %s, %s, %s" % (v(vPst), v(vPst), v(18)))
    A("s_mul_i32 %s, %s, 1152" % (s(sT + 1), s(sSl)))
    A("v_add_u32 %s, %s, %s" % (v(vPst), s(sT + 1), v(vPst)))
    sHead, sSH, sPAo, sRowo = sA0, sA0 + 1, sA0 + 2, sA0 + 3
    A("s_lshl_b32 %s, %s, 1" % (s(sHead), s(sSl)))
    A("s_lshr_b32 %s, %s, 1" % (s(sT), s(sW)))
    A("s_add_u32 %s, %s, %s" % (s(sHead), s(sHead), s(sT)))
    A("s_mov_b32 %s, %s" % (s(sSeg), s(sRep)))
    A("s_lshl_b32 %s, %s, 8" % (s(sT), s(sHead)))
    A("s_add_u32 %s, %s, %d" % (s(sT), s(sT), FL_KV))
    wait_flags(A, vL4, s(sT))
    A("s_lshl_b32 %s, %s, 5" % (s(sSH), s(sSeg)))
    A("s_add_u32 %s, %s, %s" % (s(sSH), s(sSH), s(sHead)))
    def prefetch():
        A("s_lshl_b32 %s, %s, 13" % (s(sT), s(sSH)))
        A("s_and_b32 %s, %s, 1" % (s(sT + 1), s(sW)))
        A("s_lshl_b32 %s, %s, 12" % (s(sT + 1), s(sT + 1)))
        A("s_add_u32 %s, %s, %s" % (s(sT), s(sT), s(sT + 1)))
        A("s_add_u32 %s, %s, %d" % (s(sT), s(sT), WS_Q))
        for i in range(4):
            A("buffer_load_dwordx4 %s, %s, %s, %s offen offset:%d sc1" % (v(QF + 4 * i, 4), v(vL16), s(sWS, 4), s(sT), 1024 * i))
        A("s_lshl_b32 %s, %s, 14" % (s(sT), s(sSH)))
        if WS_KV:
            A("s_add_u32 %s, %s, %d" % (s(sT), s(sT), WS_KV))
        for b in range(4):
            for i in range(4):
                A("buffer_load_dwordx4 %s, %s, %s, %s offen offset:%d sc1" % (v(KX + 16 * b + 4 * i, 4), v(vL16), s(sWS, 4), s(sT), 1024 * i))
            if b < 3:
                A("s_add_u32 %s, %s, 4096" % (s(sT), s(sT)))
    A("v_mov_b64 %s, -1" % v(20, 2))
    A("v_mov_b64 %s, -1" % v(22, 2))
    for s0 in range(FAST0, 64, 4):
        A("s_add_u32 %s, %s, %d" % (s(sT), s(sRep), s0))
        A("s_mul_i32 %s, %s, %d" % (s(sT), s(sT), PA_SEG))
        A("s_add_u32 %s, %s, %d" % (s(sT), s(sT), WS_PA))
        for G in range(9):
            A("buffer_store_dwordx4 %s, %s, %s, %s offen offset:%d sc1" % (v(20, 4), v(vPst), s(sWS, 4), s(sT), 128 * G))
    PFL = ([int(o[4:]) for o in opt if o.startswith("pfl=")] + [32])[0]
    lpf = A.new("apf")
    A.label(lpf)
    prefetch()
    ltop = A.new("atop")
    A.label(ltop)
    T1, T2, T0 = S_, S_ + 4, S_ + 8
    sv = [S_ + i for i in range(10)]
    m1, m2 = 17, 18
    def prep_scores(vals):
        for i in range(0, len(vals), 2):
            rnd2(A, vals[i], vals[i + 1])
        for x in vals:
            A("v_mul_f32 %s, 0x%x, %s" % (v(x), f32bits(128 ** -0.5), v(x)))
        for i in range(0, len(vals), 2):
            rnd2(A, vals[i], vals[i + 1])
    A("s_waitcnt vmcnt(0)")
    for ks in range(4):
        MF(A, v(T1, 4), v(KX + 4 * ks, 4), v(QF + 4 * ks, 4), "0" if ks == 0 else v(T1, 4))
        MF(A, v(T2, 4), v(KX + 16 + 4 * ks, 4), v(QF + 4 * ks, 4), "0" if ks == 0 else v(T2, 4))
    for T in range(8):
        A("v_mov_b32 %s, 0" % v(VM + 2 * T + 1))
    A("s_lshl_b32 %s, %s, 12" % (s(sRowo), s(sSH)))
    A("s_add_u32 %s, %s, %d" % (s(sRowo), s(sRowo), WS_KM))
    prep_scores(sv[:8])
    for i in range(8):
        A("v_cndmask_b32 %s, %s, %s, %s" % (v(sv[i]), v(vNEG), v(sv[i]), s(sCM + 2 * i, 2)))
    A("v_max3_f32 %s, %s, %s, %s" % (v(m1), v(sv[0]), v(sv[1]), v(sv[2])))
    for i in (3, 5):
        A("v_max3_f32 %s, %s, %s, %s" % (v(m1), v(m1), v(sv[i]), v(sv[i + 1])))
    A("v_max_f32 %s, %s, %s" % (v(m1), v(m1), v(sv[7])))
    lc, lf, lok = A.new("can"), A.new("full"), A.new("pubok")
    if "ann" in opt:
        A("s_lshl_b32 %s, %s, 7" % (s(sT), s(sSH)))
        A("s_add_u32 %s, %s, %d" % (s(sT), s(sT), FL_PUB - 4096))
        wait_flags(A, None, s(sT))
    else:
        A("s_cmp_ge_u32 %s, %d" % (s(sSeg), ([int(o[4:]) for o in opt if o.startswith("can=")] + [52])[0]))
        A("s_cbranch_scc1 %s" % lc)
        A("s_lshl_b32 %s, %s, 7" % (s(sT), s(sSH)))
        A("s_add_u32 %s, %s, %d" % (s(sT), s(sT), FL_PUB))
        wait_flags(A, None, s(sT))
        A("s_branch %s" % lf)
        A.label(lc)
        A("buffer_load_dword %s, off, %s, %s offset:4092 sc1" % (v(vTmp), s(sWS, 4), s(sRowo)))
        A("s_waitcnt vmcnt(0)")
        A("v_cmp_eq_u32 vcc, -1, %s" % v(vTmp))
        A("s_cbranch_vccz %s" % lf)
        A("s_sleep 1")
        A("s_sub_u32 %s, %s, 1" % (s(sBud), s(sBud)))
        A("s_cbranch_scc0 %s" % lc)
        A("s_mov_b32 %s, 0" % s(sBud))

    A.label(lf)
    ts(A)
    fs(A, 0)
    A.label(lf + "_r")
    for ks in range(4):
        A("buffer_load_dwordx4 %s, %s, %s, %s offen offset:%d sc1" % (v(KM + 4 * ks, 4), v(vKM), s(sWS, 4), s(sRowo), (ks >> 1) * 2048 + (ks & 1) * 16))
    for T in range(8):
        A("buffer_load_dword %s, %s, %s, %s offen offset:%d sc1" % (v(VM + 2 * T), v(vL4), s(sWS, 4), s(sRowo), (T >> 1) * 1024 + 512 + (T & 1) * 256))
    A("s_waitcnt vmcnt(8)")
    fs(A, 1)
    for ks in range(4):
        MF(A, v(T0, 4), v(KM + 4 * ks, 4), v(QF + 4 * ks, 4), "0" if ks == 0 else v(T0, 4))
        for h in range(2):
            r = KM + 4 * ks + 2 * h
            if ks == 0 and h == 0:
                A("v_max_u32 %s, %s, %s" % (v(vTmp), v(r), v(r + 1)))
            else:
                A("v_max3_u32 %s, %s, %s, %s" % (v(vTmp), v(vTmp), v(r), v(r + 1)))
    A("s_waitcnt vmcnt(0)")
    for T in range(0, 8, 2):
        A("v_max3_u32 %s, %s, %s, %s" % (v(vTmp), v(vTmp), v(VM + 2 * T), v(VM + 2 * T + 2)))
    A("v_cmp_eq_u32 vcc, -1, %s" % v(vTmp))
    A("s_cbranch_vccz %s" % lok)
    A("s_sub_u32 %s, %s, 1" % (s(sBud), s(sBud)))
    A("s_cbranch_scc0 %s_r" % lf)
    A("s_mov_b32 %s, 0" % s(sBud))
    A.label(lok)
    prep_scores(sv[8:])
    A("v_max3_f32 %s, %s, %s, %s" % (v(m1), v(m1), v(sv[8]), v(sv[9])))
    def xl(op):
        for sw in ("v_permlane32_swap_b32", "v_permlane16_swap_b32"):
            A("v_mov_b32 %s, %s" % (v(m2), v(m1)))
            A("s_nop 1")
            A("%s %s, %s" % (sw, v(m1), v(m2)))
            A("%s %s, %s, %s" % (op, v(m1), v(m1), v(m2)))
    xl("v_max_f32")
    for x in sv:
        A("v_sub_f32 %s, %s, %s" % (v(x), v(x), v(m1)))
    for x in sv:
        A("v_mul_f32 %s, 0x%x, %s" % (v(x), f32bits(math.log2(math.e)), v(x)))
    for x in sv:
        A("v_exp_f32 %s, %s" % (v(x), v(x)))
    A("v_add_f32 %s, %s, %s" % (v(m1), v(sv[0]), v(sv[1])))
    for x in sv[2:]:
        A("v_add_f32 %s, %s, %s" % (v(m1), v(m1), v(x)))
    xl("v_add_f32")
    A("v_rcp_f32 %s, %s" % (v(m1), v(m1)))
    A("s_nop 0")
    for x in sv:
        A("v_mul_f32 %s, %s, %s" % (v(x), v(x), v(m1)))
    for i in range(4):
        A("v_cvt_pk_bf16_f32 %s, %s, %s" % (v(S_ + i), v(sv[2 * i]), v(sv[2 * i + 1])))
    A("v_cvt_pk_bf16_f32 %s, %s, %s" % (v(T0), v(T0), v(T0 + 1)))
    A("v_mov_b32 %s, 0" % v(T0 + 1))
    A("s_nop 1")
    A.lds = []
    def opack(c):
        b = OA + 8 * c
        for i in range(4):
            A("v_cvt_pk_bf16_f32 %s, %s, %s" % (v(b + i), v(b + 2 * i), v(b + 2 * i + 1)))
        A.ds("ds_write_b128 %s, %s offset:%d" % (v(vOwr), v(b, 4), L_OT + 1024 * c))
    for c in range(4):
        for T in (2 * c, 2 * c + 1):
            MF(A, v(OA + 4 * T, 4), v(VX + 4 * T, 4), v(S_, 4), "0")
        for T in (2 * c, 2 * c + 1):
            A("v_mfma_f32_16x16x16_bf16 %s, %s, %s, %s" % (v(OA + 4 * T, 4), v(VM + 2 * T, 2), v(T0, 2), v(OA + 4 * T, 4)))
        if c >= 2:
            opack(c - 2)
    opack(2)
    opack(3)
    fs(A, 2)
    A("s_mul_i32 %s, %s, %d" % (s(sPAo), s(sSeg), PA_SEG))
    A("s_add_u32 %s, %s, %d" % (s(sPAo), s(sPAo), WS_PA))
    A.wait_ds()
    A("s_barrier")
    fs(A, 3)
    OFR, WA, TB = 144, 20, 44
    for n in range(16):
        A.ds("ds_read_b128 %s, %s offset:%d" % (v(OFR + 4 * n, 4), v(vL16), L_OT + (n & 1) * 8192 + (n >> 1) * 1024), ('o', n))
    lnp = A.new("nopf")
    A("s_add_u32 %s, %s, 128" % (s(sSH), s(sSH)))
    def epi(G, tt):
        b = WA + 8 * (G % 3) + 4 * tt
        A("v_cvt_pk_bf16_f32 %s, %s, %s" % (v(b), v(b), v(b + 1)))
        A("v_cvt_pk_bf16_f32 %s, %s, %s" % (v(b + 1), v(b + 2), v(b + 3)))
    def epw(G, tt):
        A.ds("ds_write_b64 %s, %s offset:%d" % (v(vTw), v(WA + 8 * (G % 3) + 4 * tt, 2), tt * 16 * PSTR + 128 * G), ('w', G))
    def lrd(G):
        A.ds("ds_read_b128 %s, %s offset:%d" % (v(TB + 4 * (G & 1), 4), v(vTrd), 128 * G), ('t', G))
    def lst(G):
        A.wait_ds(('t', G))
        A("buffer_store_dwordx4 %s, %s, %s, %s offen offset:%d sc1" % (v(TB + 4 * (G & 1), 4), v(vPst), s(sWS, 4), s(sPAo), 128 * G))
    for G in range(9):
        for n in range(16):
            K, tt = n >> 1, n & 1
            if G == 0:
                A.wait_ds(('o', n))
            d = v(WA + 8 * (G % 3) + 4 * tt, 4)
            MF(A, d, R(wo(G, K), 4), v(OFR + 4 * n, 4), "0" if K == 0 else d)
            if G >= 1:
                if n == 5 and G >= 2:
                    lst(G - 2)
                if n == 7:
                    epi(G - 1, 0)
                if n == 8:
                    epw(G - 1, 0)
                    epi(G - 1, 1)
                if n == 9:
                    epw(G - 1, 1)
                if n == 15:
                    A.wait_ds(('w', G - 1))
                    A("s_barrier")
                    lrd(G - 1)
        if G == 0:
            A("s_cmp_ge_u32 %s, %d" % (s(sSeg), PFL))
            A("s_cbranch_scc1 %s" % lnp)
            prefetch()
            A.label(lnp)
    fs(A, 4)
    A("s_nop 3")
    epi(8, 0)
    epi(8, 1)
    epw(8, 0)
    epw(8, 1)
    lst(7)
    A.wait_ds()
    A("s_barrier")
    lrd(8)
    lst(8)
    fs(A, 6)
    A("s_waitcnt vmcnt(0)")
    A("s_barrier")
    fs(A, 7)
    A("s_lshl_b32 %s, %s, 8" % (s(sT), s(sSeg)))
    A("s_add_u32 %s, %s, %d" % (s(sT), s(sT), FL_PA))
    arrive(A, s(sT), 16)
    fs(A, 8)
    ts(A)
    A("s_add_u32 %s, %s, 4" % (s(sSeg), s(sSeg)))
    A("s_cmp_lt_u32 %s, %d" % (s(sSeg), PFL + 4))
    A("s_cbranch_scc1 %s" % ltop)
    A("s_cmp_lt_u32 %s, 64" % s(sSeg))
    A("s_cbranch_scc1 %s" % lpf)
    ts_dump(A, 1)

def emit_roleB(A, vRow, vRow2, sValid, opt):
    A.c("=========== role B: reduce + residual + LN2, one row per wave ===========")
    TS['reg'] = 19
    GA, SB, CB = 20, 32, 44
    SEL0, SEL1 = 56, 60
    vPld = 15
    load_mod(A, GA, 2, vRow, vRow2, 17, 18)
    load_mod(A, SB, 3, vRow, vRow2, 17, 18)
    load_mod(A, CB, 4, vRow, vRow2, 17, 18)
    make_sel(A, SEL0, 0, vTmp)
    make_sel(A, SEL1, 1, vTmp)
    A("v_lshrrev_b32 %s, 3, %s" % (v(17), v(vLane)))
    A("v_and_b32 %s, 7, %s" % (v(18), v(vLane)))
    A("v_lshlrev_b32 %s, 4, %s" % (v(18), v(18)))
    A("v_mul_u32_u24 %s, 1152, %s" % (v(vPld), v(17)))
    A("v_add_u32 %s, %s, %s" % (v(vPld), v(vPld), v(18)))
    A("s_waitcnt vmcnt(0)")
    one_plus(A, CB)
    sRow, sRowo = sA0 + 5, sA0 + 3
    A("s_sub_u32 %s, %s, 64" % (s(sRow), s(sWid)))
    A("s_lshl_b32 %s, %s, 1" % (s(sRow), s(sRow)))
    A("s_and_b32 %s, %s, 1" % (s(sT), s(sW)))
    A("s_add_u32 %s, %s, %s" % (s(sRow), s(sRow), s(sT)))
    A("s_lshr_b32 %s, %s, 1" % (s(sSeg), s(sW)))
    A("v_and_b32 %s, 15, %s" % (v(vFl), v(vLane)))
    A("v_lshlrev_b32 %s, 2, %s" % (v(vFl), v(vFl)))
    for i in range(6):
        A("v_mov_b32 %s, -1" % v(64 + i))
    for s0 in range(FAST0, 64, 2):
        A("s_add_u32 %s, %s, %d" % (s(sT), s(sSeg), s0))
        A("s_lshl_b32 %s, %s, 5" % (s(sT), s(sT)))
        A("s_add_u32 %s, %s, %s" % (s(sT), s(sT), s(sRow)))
        A("s_mul_i32 %s, %s, 1152" % (s(sT), s(sT)))
        A("s_add_u32 %s, %s, %d" % (s(sT), s(sT), WS_H2))
        row_io(A, "store", 64, vRow, vRow2, sWS, s(sT), " sc1")
        A("s_add_u32 %s, %s, %d" % (s(sT), s(sT), WS_X1 - WS_H2))
        row_io(A, "store", 64, vRow, vRow2, sWS, s(sT), " sc1")
    A("v_and_b32 %s, 15, %s" % (v(vFl), v(vLane)))
    A("v_mul_u32_u24 %s, 1152, %s" % (v(vFl), v(vFl)))
    ltop = A.new("btop")
    A.label(ltop)
    A("s_lshl_b32 %s, %s, 5" % (s(sT), s(sSeg)))
    A("s_add_u32 %s, %s, %s" % (s(sA0 + 2), s(sT), s(sRow)))
    A("s_mul_i32 %s, %s, 1152" % (s(sRowo), s(sA0 + 2)))
    XR, RD, XF, DD = 216, 176, 196, 144
    row_io(A, "load", XR, vRow, vRow2, sXS, s(sRowo))
    A("s_lshl_b32 %s, %s, 8" % (s(sT), s(sSeg)))
    A("s_add_u32 %s, %s, %d" % (s(sT), s(sT), FL_PA))
    lcan, lgo, lre = A.new("bcan"), A.new("bgo"), A.new("bre")
    A("s_mul_i32 %s, %s, 18432" % (s(sA0), s(sA0 + 2)))
    A("s_add_u32 %s, %s, %d" % (s(sA0), s(sA0), WS_PA))
    A("s_add_u32 %s, %s, 9216" % (s(sA0 + 1), s(sA0)))
    A("s_cmp_ge_u32 %s, %d" % (s(sSeg), FAST0))
    A("s_cbranch_scc1 %s" % lcan)
    wait_ready(A, s(sT), 16)
    A("s_branch %s" % lgo)
    A.label(lcan)
    canary(A, s(sA0), imm=124 + 128 * ([int(o[4:]) for o in opt if o.startswith("bim=")] + [0])[0], voff=vFl)
    A.label(lgo)
    ts(A)
    A.label(lre)
    LD = 64
    A.vm = []
    for i in range(9):
        for h in range(2):
            A.vmem("buffer_load_dwordx4 %s, %s, %s, %s offen offset:%d sc1" % (v(LD + 8 * i + 4 * h, 4), v(vPld), s(sWS, 4), s(sA0 + h), 128 * i), ('p', i))
    XU = 224
    if "mimic" not in opt:
        for i in range(6):
            unpack(A, XU + 2 * i, XU + 2 * i + 1, XR + i)
    for i in range(9):
        A.wait_vm(('p', i))
        d = v(RD + 4 * (i >> 1), 4)
        sel = v(SEL1 if i & 1 else SEL0, 4)
        MF(A, d, sel, v(LD + 8 * i, 4), "0" if not (i & 1) else d)
        maxchain(A, range(LD + 8 * i, LD + 8 * i + 4), i == 0)
        MF(A, d, sel, v(LD + 8 * i + 4, 4), d)
        maxchain(A, range(LD + 8 * i + 4, LD + 8 * i + 8), False)
    retry_if_sentinel(A, lre)
    for i in range(4):
        A("v_mov_b32 %s, 0" % v(XF + 8 + i))
    A("s_nop 3")
    for T in range(5):
        for jj in range(4):
            A("v_add_f32_dpp %s, %s, %s row_ror:8 row_mask:0xf bank_mask:0x%x" % (v(XF + 4 * (T >> 1) + jj), v(RD + 4 * T + jj), v(RD + 4 * T + jj), 0xc if T & 1 else 0x3))
    if "mimic" in opt:
        for i in range(0, 12, 2):
            rnd2(A, XF + i, XF + i + 1)
        for i in range(12):
            A("v_mul_f32 %s, %s, %s" % (v(XF + i), v(XF + i), v(GA + i)))
        for i in range(0, 12, 2):
            rnd2(A, XF + i, XF + i + 1)
        for i in range(6):
            unpack(A, DD, DD + 1, XR + i)
            A("v_add_f32 %s, %s, %s" % (v(XF + 2 * i), v(XF + 2 * i), v(DD)))
            A("v_add_f32 %s, %s, %s" % (v(XF + 2 * i + 1), v(XF + 2 * i + 1), v(DD + 1)))
            A("v_cvt_pk_bf16_f32 %s, %s, %s" % (v(XR + i), v(XF + 2 * i), v(XF + 2 * i + 1)))
            unpack(A, XF + 2 * i, XF + 2 * i + 1, XR + i)

    else:
        for i in range(6):
            A("v_fmac_f32 %s, %s, %s" % (v(XU + 2 * i), v(XF + 2 * i), v(GA + 2 * i)))
            A("v_fmac_f32 %s, %s, %s" % (v(XU + 2 * i + 1), v(XF + 2 * i + 1), v(GA + 2 * i + 1)))
            A("v_cvt_pk_bf16_f32 %s, %s, %s" % (v(XR + i), v(XU + 2 * i), v(XU + 2 * i + 1)))
            unpack(A, XF + 2 * i, XF + 2 * i + 1, XR + i)
    A("s_add_u32 %s, %s, %d" % (s(sT), s(sRowo), WS_X1))
    row_io(A, "store", XR, vRow, vRow2, sWS, s(sT), " sc1")
    ln_stats(A, XF, DD, sValid, 160, 161, 162)
    if "mimic" in opt:
        ln_apply(A, XF, 160, 161, CB, SB, 164)
    else:
        for i in range(12):
            A("v_sub_f32 %s, %s, %s" % (v(XF + i), v(XF + i), v(160)))
            A("v_mul_f32 %s, %s, %s" % (v(XF + i), v(XF + i), v(161)))
            A("v_fma_f32 %s, %s, %s, %s" % (v(XF + i), v(XF + i), v(CB + i), v(SB + i)))
        for i in range(6):
            A("v_cvt_pk_bf16_f32 %s, %s, %s" % (v(164 + i), v(XF + 2 * i), v(XF + 2 * i + 1)))
    A("s_add_u32 %s, %s, %d" % (s(sT), s(sRowo), WS_H2))
    row_io(A, "store", 164, vRow, vRow2, sWS, s(sT), " sc1")
    A("s_waitcnt vmcnt(0)")
    A("s_lshl_b32 %s, %s, 8" % (s(sT), s(sSeg)))
    A("s_add_u32 %s, %s, %d" % (s(sT), s(sT), FL_H2))
    arrive(A, s(sT), 32, wave0_only=False)
    ts(A)
    A("s_add_u32 %s, %s, 2" % (s(sSeg), s(sSeg)))
    A("s_cmp_lt_u32 %s, 64" % s(sSeg))
    A("s_cbranch_scc1 %s" % ltop)
    ts_dump(A, 1)

def emit_roleC(A, xsetup, wide_chunks, opt):
    A.c("=========== role C: gate/up + down partial + output ===========")
    A("s_sub_u32 %s, %s, 80" % (s(sT), s(sWid)))
    A("s_lshr_b32 %s, %s, 2" % (s(sSl), s(sT)))
    A("s_and_b32 %s, %s, 3" % (s(sRep), s(sT)))
    build_srd(A, sW1, 64, 5308416)
    build_srd(A, sW2, 72, 5308416)
    build_srd(A, sW3, 80, 5308416)
    build_srd(A, sWO, 104, 2359296)
    vOffW, vTr, vAd, vOffD, vTrD = 9, 10, 11, 12, 13
    A("s_lshl_b32 %s, %s, 8" % (s(sT + 1), s(sSl)))
    wide_off(A, vOffW, vTmp, 9216, s(sT + 1))
    A("s_lshl_b32 %s, %s, 2" % (s(sT + 1), s(sW)))
    wide_tr(A, vTr, vTmp, s(sT + 1), 1)
    A("s_mul_i32 %s, %s, 147456" % (s(sT + 1), s(sSl)))
    tall_off(A, vOffD, vTmp, s(sT + 1))
    tall_tr(A, vTrD, 3)
    W0 = 80
    def wg(t, ks):
        return W0 + 4 * (4 * ks + t)
    def wd(G, ks):
        return W0 + 288 + 4 * (4 * G + ks)
    chunks = wide_chunks((sW1, sW2), 9216, wg, vOffW, vTr)
    for G in range(9):
        def consume(base, G=G):
            A("v_add_u32 %s, %d, %s" % (v(vAd), base, v(vTrD)))
            for ks in range(4):
                tr2(A, wd(G, ks), vAd, 32 * ks * 128, (32 * ks + 4) * 128)
        chunks.append((sW3, vOffD, [8 * j * 1152 + 128 * G for j in range(4)], consume))
    A.vm, A.lds = ['old'] * 2, []
    stage(A, chunks, depth=TS['d2'])
    vXo = 9
    sSrc, sM0x = sA0, sA0 + 1
    vXa = 7
    xsetup(vXa)
    vHw, vRl, vOo = 6, 2, 3
    LAND, ACC, PK = 10, 26, 62
    L_HH = 40960
    A("s_lshl_b32 %s, %s, 10" % (s(sT), s(sW)))
    A("s_add_u32 %s, %s, %d" % (s(sT), s(sT), L_HH))
    A("v_add_u32 %s, %s, %s" % (v(vHw), s(sT), v(vL16)))
    A("v_and_b32 %s, 15, %s" % (v(vTmp), v(vLane)))
    A("v_lshlrev_b32 %s, 4, %s" % (v(vTmp), v(vTmp)))
    A("v_lshl_add_u32 %s, %s, 10, %s" % (v(vRl), v(vG), v(vTmp)))
    A("s_lshl_b32 %s, %s, 8" % (s(sT), s(sW)))
    A("v_add_u32 %s, %s, %s" % (v(vRl), s(sT), v(vRl)))
    A("v_mul_u32_u24 %s, 1152, %s" % (v(vOo), v(vLane)))
    A("s_lshl_b32 %s, %s, 5" % (s(sT), s(sSl)))
    A("s_lshl_b32 %s, %s, 3" % (s(sT + 1), s(sW)))
    A("s_add_u32 %s, %s, %s" % (s(sT), s(sT), s(sT + 1)))
    A("v_add_u32 %s, %s, %s" % (v(vOo), s(sT), v(vOo)))
    A("v_mov_b32 %s, 0x%x" % (v(vTmp), OOB))
    A("v_cmp_gt_u32 vcc, 32, %s" % v(vLane))
    A("s_nop 1")
    A("v_cndmask_b32 %s, %s, %s, vcc" % (v(vOo), v(vTmp), v(vOo)))
    A("s_lshl_b32 %s, %s, 1" % (s(sT), s(sT)))
    A("s_add_u32 %s, %s, %d" % (s(sT), s(sT), WS_MOD + 5 * 2304))
    A("buffer_load_dwordx4 %s, off, %s, %s sc1" % (v(ACC, 4), s(sWS, 4), s(sT)))
    A("s_waitcnt vmcnt(0)")
    sGB = sA0 + 8
    for i in range(4):
        A("v_readfirstlane_b32 %s, %s" % (s(sGB + i), v(ACC + i)))
    A("s_mov_b32 %s, %s" % (s(sSeg), s(sRep)))
    sPCo, sFl = sA0 + 2, sA0 + 3
    TS['reg'] = 4
    sPrev = sA0 + 5
    CIM = ([int(o[4:]) for o in opt if o.startswith("cim=")] + [1024])[0]
    A("s_add_u32 %s, %s, 60" % (s(sT), s(sRep)))
    A("s_mul_i32 %s, %s, %d" % (s(sT), s(sT), PC_SEG))
    A("s_mul_i32 %s, %s, 36" % (s(sT + 1), s(sW)))
    A("s_add_u32 %s, %s, %s" % (s(sT + 1), s(sT + 1), s(sSl)))
    A("s_lshl_b32 %s, %s, 10" % (s(sT + 1), s(sT + 1)))
    A("s_add_u32 %s, %s, %s" % (s(sT), s(sT), s(sT + 1)))
    A("s_add_u32 %s, %s, %d" % (s(sT), s(sT), WS_PC))
    A("v_mov_b64 %s, -1" % v(ACC, 2))
    A("v_mov_b64 %s, -1" % v(ACC + 2, 2))
    for G in range(9):
        A("buffer_store_dwordx4 %s, %s, %s, %s offen sc1" % (v(ACC, 4), v(vL16), s(sWS, 4), s(sT)))
        A("s_add_u32 %s, %s, %d" % (s(sT), s(sT), 4 * 36 * 1024))
    def reduce_out(last=False):
        A("s_lshl_b32 %s, %s, 8" % (s(sFl), s(sPrev)))
        A("s_mul_i32 %s, %s, 36864" % (s(sA0 + 6), s(sPrev)))
        make_sel(A, LAND, 0, vTmp)
        if not last:
            A("s_add_u32 %s, %s, %d" % (s(sFl), s(sFl), FL_PC))
            wait_ready(A, s(sFl), 36)
        ts(A)
        lre = A.new("cre")
        A.label(lre)
        A("s_add_u32 %s, %s, %d" % (s(sT), s(sA0 + 6), WS_X1))
        A("buffer_load_dwordx2 %s, %s, %s, %s offen sc1" % (v(LAND + 8, 2), v(vOo), s(sWS, 4), s(sT)))
        A("s_mul_i32 %s, %s, %d" % (s(sT), s(sSl), 36 * 1024))
        A("s_add_u32 %s, %s, %s" % (s(sT), s(sT), s(sPCo)))
        A.vm = []
        for i in range(9):
            A.vmem("buffer_load_dwordx4 %s, %s, %s, %s offen sc1" % (v(ACC + 4 * i, 4), v(vRl), s(sWS, 4), s(sT)), ('p', i))
            if i < 8:
                A("s_add_u32 %s, %s, 4096" % (s(sT), s(sT)))
        D = LAND + 4
        for i in range(9):
            A.wait_vm(('p', i))
            MF(A, v(D, 4), v(LAND, 4), v(ACC + 4 * i, 4), "0" if i == 0 else v(D, 4))
            if last:
                maxchain(A, range(ACC + 4 * i, ACC + 4 * i + 4), i == 0)
        maxchain(A, (LAND + 8, LAND + 9), not last)
        retry_if_sentinel(A, lre)
    def reduce_fin():
        D = LAND + 4
        unpack(A, LAND + 10, LAND + 11, LAND + 8)
        unpack(A, LAND + 12, LAND + 13, LAND + 9)
        A("s_nop 3")
        rnd2(A, D, D + 1)
        rnd2(A, D + 2, D + 3)
        for i in range(4):
            A("v_mul_f32 %s, %s, %s" % (v(D + i), s(sGB + i), v(D + i)))
        rnd2(A, D, D + 1)
        rnd2(A, D + 2, D + 3)
        for i in range(4):
            A("v_add_f32 %s, %s, %s" % (v(D + i), v(D + i), v(LAND + 10 + i)))
        pert = [float(o[5:]) for o in opt if o.startswith("pert=")]
        if pert:
            lpp = A.new("pert")
            A("s_or_b32 %s, %s, %s" % (s(sT), s(sSl), s(sPrev)))
            A("s_or_b32 %s, %s, %s" % (s(sT), s(sT), s(sW)))
            A("s_cmp_lg_u32 %s, 0" % s(sT))
            A("s_cbranch_scc1 %s" % lpp)
            A("s_mov_b64 exec, 1")
            A("v_add_f32 %s, 0x%x, %s" % (v(D), f32bits(pert[0]), v(D)))
            A("s_mov_b64 exec, -1")
            A.label(lpp)
        A("v_cvt_pk_bf16_f32 %s, %s, %s" % (v(D), v(D), v(D + 1)))
        A("v_cvt_pk_bf16_f32 %s, %s, %s" % (v(D + 1), v(D + 2), v(D + 3)))
        A("buffer_store_dwordx2 %s, %s, %s, %s offen%s" % (v(D, 2), v(vOo), s(sWO, 4), s(sA0 + 6), " sc1" if "outsc1" in opt else " nt" if "outnt" in opt else ""))
        ts(A)
    ltop, lfirst = A.new("ctop"), A.new("cfirst")
    def h2wait():
        A("s_lshl_b32 %s, %s, 8" % (s(sT), s(sSeg)))
        A("s_add_u32 %s, %s, %d" % (s(sT), s(sT), FL_H2))
        A("s_mul_i32 %s, %s, 36864" % (s(sSrc), s(sSeg)))
        A("s_add_u32 %s, %s, %d" % (s(sSrc), s(sSrc), WS_H2))
        lcan, lj, lre = A.new("ccan"), A.new("cj"), A.new("cxre")
        A("s_cmp_ge_u32 %s, %d" % (s(sSeg), FAST0))
        A("s_cbranch_scc1 %s" % lcan)
        wait_ready(A, s(sT), 32)
        ts(A)
        fs(A, 0)
        x_dma(A, vXo, sSrc, sM0x)
        A("s_branch %s" % lj)
        A.label(lcan)
        lnow = A.new("cnow")
        if "cx1" in opt:
            A("s_add_u32 %s, %s, %d" % (s(sT), s(sSrc), WS_X1 - WS_H2))
            A("buffer_load_dword %s, %s, %s, %s offen sc1" % (v(vTmp), v(vXo), s(sWS, 4), s(sT)))
        else:
            A("buffer_load_dword %s, %s, %s, %s offen offset:1024 sc1" % (v(vTmp), v(vXo), s(sWS, 4), s(sSrc)))
        A("s_waitcnt vmcnt(0)")
        A("v_cmp_eq_u32 vcc, -1, %s" % v(vTmp))
        A("s_cbranch_vccz %s" % lnow)
        reduce_out()
        reduce_fin()
        A("s_mov_b32 %s, -1" % s(sPrev))
        A.label(lnow)
        if "cx1" in opt:
            A("s_add_u32 %s, %s, %d" % (s(sT), s(sSrc), WS_X1 - WS_H2))
            canary(A, s(sT), imm=0, voff=vXo)
        else:
            canary(A, s(sSrc), imm=CIM, voff=vXo)
        ts(A)
        fs(A, 0)
        A.label(lre)
        for i in range(9):
            A("buffer_load_dwordx4 %s, %s, %s, %s offen offset:%d sc1" % (v(ACC + 4 * i, 4), v(vXo), s(sWS, 4), s(sSrc), 128 * i))
        A("v_add_u32 %s, %s, %s" % (v(LAND), s(sM0x), v(vL16)))
        for i in range(9):
            A("s_waitcnt vmcnt(%d)" % (8 - i))
            A("ds_write_b128 %s, %s offset:%d" % (v(LAND), v(ACC + 4 * i, 4), 1024 * i))
            maxchain(A, range(ACC + 4 * i, ACC + 4 * i + 4), i == 0)
        retry_if_sentinel(A, lre)
        A("s_waitcnt lgkmcnt(0)")
        A.label(lj)
    A("s_mov_b32 %s, -1" % s(sPrev))
    A.label(ltop)
    h2wait()
    fs(A, 1)
    A("s_waitcnt vmcnt(0)")
    A("s_barrier")
    fs(A, 2)
    A.lds = []
    GAC = [ACC, ACC + 16]
    HP = ACC + 32
    fill = []
    def F(n):
        for _ in range(n):
            if fill:
                fill.pop(0)()
    def gu_epi(tt):
        for t in range(2):
            g_, u_ = GAC[tt] + 4 * t, GAC[tt] + 8 + 4 * t
            for jj in range(4):
                fill.append(lambda a=g_ + jj, b=u_ + jj: A("v_cvt_pk_bf16_f32 %s, %s, %s" % (v(b), v(a), v(b))))
                fill.append(lambda a=g_ + jj, b=u_ + jj: A("v_lshlrev_b32 %s, 16, %s" % (v(a), v(b))))
                fill.append(lambda b=u_ + jj: A("v_and_b32 %s, 0xffff0000, %s" % (v(b), v(b))))
                fill.append(lambda a=g_ + jj, b=u_ + jj: A("v_mul_f32 %s, %s, %s" % (v(a), v(a), v(b))))
            fill.append(lambda t=t, g_=g_: A("v_cvt_pk_bf16_f32 %s, %s, %s" % (v(HP + 2 * t), v(g_), v(g_ + 1))))
            fill.append(lambda t=t, g_=g_: A("v_cvt_pk_bf16_f32 %s, %s, %s" % (v(HP + 2 * t + 1), v(g_ + 2), v(g_ + 3))))
        fill.append(lambda: A.ds("ds_write_b128 %s, %s offset:%d" % (v(vHw), v(HP, 4), 4096 * tt), ('hw', tt)))
    def xrd(n):
        tt, ks = n // 18, n % 18
        A.ds("ds_read_b128 %s, %s offset:%d" % (v(LAND + 4 * (n % 4), 4), v(vXa + (ks & 1)), 18432 * tt + (ks >> 1) * 1024), ('x', n))
    def hrd(tt, ks):
        A.ds("ds_read_b128 %s, %s offset:%d" % (v(LAND + 4 * ks, 4), v(vL16), L_HH + 4096 * tt + 1024 * ks), ('h', tt, ks))
    for n in range(3):
        xrd(n)
    for n in range(36):
        tt, ks = n // 18, n % 18
        A.wait_ds(('x', n))
        for t in range(4):
            d = v(GAC[tt] + 4 * t, 4)
            MF(A, d, R(wg(t, ks), 4), v(LAND + 4 * (n % 4), 4), "0" if ks == 0 else d)
            if t == 0 and n + 3 < 36:
                xrd(n + 3)
            elif t == 0:
                hrd(0, n - 33)
            else:
                F(2)
        if n == 19:
            gu_epi(0)
        if n == 31:
            assert not fill
            A.wait_ds(('hw', 0))
            A("s_barrier")
    fs(A, 3)
    hrd(0, 3)
    A("s_mul_i32 %s, %s, %d" % (s(sA0 + 4), s(sSeg), PC_SEG))
    A("s_add_u32 %s, %s, %d" % (s(sA0 + 4), s(sA0 + 4), WS_PC))
    A("s_mul_i32 %s, %s, 36" % (s(sT), s(sW)))
    A("s_add_u32 %s, %s, %s" % (s(sT), s(sT), s(sSl)))
    A("s_lshl_b32 %s, %s, 10" % (s(sT), s(sT)))
    A("s_add_u32 %s, %s, %s" % (s(sT), s(sT), s(sA0 + 4)))
    DA = lambda G: ACC + 4 * (G % 4)
    def dn_epi(tt, G):
        b = DA(G + 9 * tt)
        if tt == 0:
            fill.append(lambda: A("v_cvt_pk_bf16_f32 %s, %s, %s" % (v(PK + 2 * G), v(b), v(b + 1))))
            fill.append(lambda: A("v_cvt_pk_bf16_f32 %s, %s, %s" % (v(PK + 2 * G + 1), v(b + 2), v(b + 3))))
        else:
            fill.append(lambda: A("v_cvt_pk_bf16_f32 %s, %s, %s" % (v(b + 3), v(b + 2), v(b + 3))))
            fill.append(lambda: A("v_cvt_pk_bf16_f32 %s, %s, %s" % (v(b + 2), v(b), v(b + 1))))
            fill.append(lambda: A("v_mov_b64 %s, %s" % (v(b, 2), v(PK + 2 * G, 2))))
            fill.append(lambda: A("buffer_store_dwordx4 %s, %s, %s, %s offen sc1" % (v(b, 4), v(vL16), s(sWS, 4), s(sT))))
            fill.append(lambda: A("s_add_u32 %s, %s, %d" % (s(sT), s(sT), 4 * 36 * 1024)))
    H1 = GAC[1]
    gu_epi(1)
    gl = list(fill)
    del fill[:]
    for N in range(18):
        tt, G = N // 9, N % 9
        if N >= 2:
            dn_epi((N - 2) // 9, (N - 2) % 9)
            pend = list(fill)
            del fill[:]
        else:
            pend = []
        for ks in range(4):
            if G == 0:
                A.wait_ds(('h', tt, ks))
            d = v(DA(N), 4)
            MF(A, d, R(wd(G, ks), 4), v((LAND if tt == 0 else H1) + 4 * ks, 4), "0" if ks == 0 else d)
            k = 0
            if ks >= 1 or len(pend) > 4:
                while pend and k < 2:
                    pend.pop(0)()
                    k += 1
            while gl and k < 2:
                gl.pop(0)()
                k += 1
            while k < 1:
                A("s_nop 0")
                k += 1
        assert not pend
        if N == 6:
            assert not gl
            A.wait_ds(('hw', 1))
            A("s_barrier")
            for ks in range(4):
                A.ds("ds_read_b128 %s, %s offset:%d" % (v(H1 + 4 * ks, 4), v(vL16), L_HH + 4096 + 1024 * ks), ('h', 1, ks))
    dn_epi(1, 7)
    F(len(fill))
    A("s_nop 1")
    dn_epi(1, 8)
    F(len(fill))
    fs(A, 5)
    llast = A.new("clast")
    A("s_cmp_ge_u32 %s, 60" % s(sSeg))
    A("s_cbranch_scc1 %s" % llast)
    A("s_waitcnt vmcnt(0)")
    A("s_barrier")
    fs(A, 6)
    A("s_lshl_b32 %s, %s, 8" % (s(sT), s(sSeg)))
    A("s_add_u32 %s, %s, %d" % (s(sT), s(sT), FL_PC))
    arrive(A, s(sT), 36)
    fs(A, 7)
    ts(A)
    A("s_cmp_eq_u32 %s, -1" % s(sPrev))
    A("s_cbranch_scc1 %s" % lfirst)
    reduce_out()
    reduce_fin()
    A.label(lfirst)
    A("s_mov_b32 %s, %s" % (s(sPrev), s(sSeg)))
    A("s_mov_b32 %s, %s" % (s(sPCo), s(sA0 + 4)))
    A("s_add_u32 %s, %s, 4" % (s(sSeg), s(sSeg)))
    A("s_branch %s" % ltop)
    A.label(llast)
    ts(A)
    ldn = A.new("cdn")
    A("s_cmp_eq_u32 %s, -1" % s(sPrev))
    A("s_cbranch_scc1 %s" % ldn)
    reduce_out()
    reduce_fin()
    A.label(ldn)
    A("s_mov_b32 %s, %s" % (s(sPrev), s(sSeg)))
    A("s_mov_b32 %s, %s" % (s(sPCo), s(sA0 + 4)))
    reduce_out(last=True)
    reduce_fin()
    if "dbgout" in opt:
        A("s_memrealtime s[96:97]")
        A("s_waitcnt lgkmcnt(0)")
        A("s_mov_b64 exec, 1")
        A("v_mov_b32 %s, s96" % v(vTmp))
        A("buffer_atomic_umax %s, off, %s, 0 offset:24" % (v(vTmp), s(sDBG, 4)))
    ts_dump(A, 1)
```

```python
from asmlib import *
from layout import *
import struct, math

L_MEM, L_KX, L_F, L_O, L_SCR, L_W = 0, 9216, 17408, 21632, 23680, 24576
FSTR = 1056
L_FLAG = L_F + 1024
L_WSTRIDE = 34816
vL16, vIdx, vWL, vFw, vOw, vPst, vRst, vSelV, vT0, vT1, vT2, vTmp = range(12)
VACC, QK, RING, LND = 12, 20, 36, 48
WREG0 = 72
KVSTEP = 32 * 16384
NSPILL = 17
sWS, sWQ, sWK, sWV, sWO, sM0, sDBG = 4, 8, 12, 16, 20, 24, 28
sCU, sW, sWC, sUnit, sStep, sBud = 32, 33, 34, 35, 36, 37
sP0, sP1, sP2, sRd, sX0, sX1, sX2, sKV, sKM, sPh, sWF, sC, sVX, sKXm = range(38, 52)
sL2a, sKVv, sKVt = 96, 97, 98
sPt = 8
sTagM = 100
sOex = 26
sFlg, sFlgN, sOne, sKF, sRdy, sRdE = 17, 18, 20, 19, 22, 24
sSel = 52
sT = 60
sStamp = 64

def f32bits(x):
    return struct.unpack("<I", struct.pack("<f", x))[0]

WO_ORDER = [0, 1, 2, 3, 4, 5, 6, 7, 8]
QK_CHAIN = [[('qk', 0, 1), ('qk', 2, 0), ('qk', 4, 0), ('qk', 6, 0), ('qk', 7, 3)],
            [('qk', 0, 2), ('qk', 2, 1), ('qk', 4, 1), ('qk', 6, 1)],
            [('qk', 0, 0), ('v', 5, 1)]]
def GOF(j, w):
    if j == 8:
        return 8
    o = 2 * (1 - (w >> 1))
    return (j & 4) + (w, w ^ 1, o, o + 1)[j & 3]
WO_CHAIN = [[('o', 0), ('o', 8), ('o', 16)], [('o', 1), ('o', 9), ('o', 17)]]
L2KEY = ('v', 5, 1)
def placement():
    spill, regs, slot, nxt = {}, {}, {}, {}
    nonreg = []
    for chains in (QK_CHAIN, WO_CHAIN):
        for si, ch in enumerate(chains):
            for i, k in enumerate(ch):
                slot[k] = si
                nxt[k] = ch[i + 1] if i + 1 < len(ch) else None
                if k != L2KEY:
                    nonreg.append(k)
    nonreg.append(L2KEY)
    assert len(nonreg) == NSPILL
    for i, k in enumerate(nonreg):
        spill[k] = i
    allk = [('qk', j, t) for j in range(9) for t in range(4)] + [('v', j, t) for j in range(9) for t in range(2)] + \
           [('o', n) for n in range(18)]
    r = WREG0
    for k in allk:
        if k not in spill:
            regs[k] = r
            r += 8
    assert r == 512, r
    return spill, regs, slot, nxt
SPILL, WREGS, SLOT, NXT = placement()

def emit_team(A, stamps=False, nsteps=64, sc="", hooks=None, opt=()):
    nst = [0]
    def stamp(fine=False):
        if stamps and fine != ("fine" in opt):
            return
        if stamps:
            if "rt" in opt and nst[0] in (2, 4):
                pass
            else:
                A("%s %s" % ("s_memrealtime" if "rt" in opt else "s_memtime", s(sStamp + 2 * nst[0], 2)))
            nst[0] += 1
    SC = " sc1"
    lane = 71
    t1, t2, t3, t4, t5, t6 = 64, 65, 66, 67, 68, 69
    vOffW, vOffO, vTrQK, vTrV, vTrO, vAd, vTr8, vAd2 = 56, 57, 58, 59, 60, 61, 62, 63
    vColQK, vColV = 54, 55
    A.c("=========== team setup ===========")
    if "tt" in opt:
        A("s_memtime s[90:91]")
        A("s_memrealtime s[64:65]")
        A("s_mov_b32 s87, 0")
        A("s_mov_b32 s88, 0")
        A("s_mov_b32 s89, 0")
    A("v_mov_b32 %s, v0" % v(lane))
    A("v_lshrrev_b32 %s, 4, %s" % (v(t2), v(lane)))
    A("v_lshlrev_b32 %s, 2, %s" % (v(t1), v(t2)))
    A("v_sub_u32 %s, %s, %s" % (v(t1), v(lane), v(t1)))
    A("v_and_b32 %s, 15, %s" % (v(t1), v(t1)))
    A("v_lshlrev_b32 %s, 4, %s" % (v(t1), v(t1)))
    A("v_lshl_add_u32 %s, %s, 13, %s" % (v(vOffW), v(t2), v(t1)))
    A("s_lshl_b32 %s, %s, 8" % (s(sT + 2), s(sCU)))
    A("s_lshl_b32 %s, %s, 17" % (s(sT + 3), s(sW)))
    A("s_add_u32 %s, %s, %s" % (s(sT + 2), s(sT + 2), s(sT + 3)))
    A("v_add_u32 %s, %s, %s" % (v(vOffW), s(sT + 2), v(vOffW)))
    A("v_lshrrev_b32 %s, 3, %s" % (v(t1), v(lane)))
    A("v_mul_u32_u24 %s, 1152, %s" % (v(vOffO), v(t1)))
    A("v_and_b32 %s, 7, %s" % (v(t1), v(lane)))
    A("v_lshl_add_u32 %s, %s, 4, %s" % (v(vOffO), v(t1), v(vOffO)))
    A("s_mul_i32 %s, %s, 147456" % (s(sT + 2), s(sCU)))
    A("s_mul_i32 %s, %s, %d" % (s(sT + 3), s(sW), 32 * 1152))
    A("s_add_u32 %s, %s, %s" % (s(sT + 2), s(sT + 2), s(sT + 3)))
    A("v_add_u32 %s, %s, %s" % (v(vOffO), s(sT + 2), v(vOffO)))
    sLW = 99
    RING0 = L_W + 14336
    A("s_mul_i32 %s, %s, %d" % (s(sLW), s(sW), L_WSTRIDE))
    wide = [(m, G) for G in range(9) for m in range(2)] + [(2, G) for G in (4, 5, 6, 7, 8, 0, 1, 2, 3)]
    chunks = []
    for i, x in enumerate(wide):
        chunks.append(x)
        if i % 5 in (1, 3) and len(chunks) - i - 1 < 9:
            chunks.append((3, len(chunks) - i - 1))
    assert len(chunks) == 36 and chunks[-3:] == [(2, 1), (2, 2), (2, 3)] and all(m != 3 for m, G in chunks[31:])
    VLAST = (1, 2, 3)
    NSLOT = 5
    NT = " nt" if "nt" in opt else ""
    TD = ([int(o[3:]) for o in opt if o.startswith("td=")] + [0])[0]
    vTch = 67
    if TD:
        A("v_bfe_u32 %s, %s, 1, 4" % (v(t1), v(lane)))
        A("v_lshlrev_b32 %s, 13, %s" % (v(53), v(t1)))
        A("v_and_b32 %s, 1, %s" % (v(t1), v(lane)))
        A("v_lshl_add_u32 %s, %s, 7, %s" % (v(53), v(t1), v(53)))
        A("s_lshl_b32 %s, %s, 8" % (s(sT + 2), s(sCU)))
        A("s_lshl_b32 %s, %s, 17" % (s(sT + 3), s(sW)))
        A("s_add_u32 %s, %s, %s" % (s(sT + 2), s(sT + 2), s(sT + 3)))
        A("v_add_u32 %s, %s, %s" % (v(11), s(sT + 2), v(53)))
    def touch_chunk(c):
        if not TD or c >= 36 or chunks[c][0] == 3:
            return
        m, G = chunks[c]
        A("s_mov_b32 %s, %d" % (s(sT + 2), 64 * G * 8192))
        A.vmem("buffer_load_dword %s, %s, %s, %s offen" % (v(71), v(11), s((sWQ, sWK, sWV)[m], 4), s(sT + 2)), 't')
    def issue_chunk(c):
        _issue(c)
        if c >= NSLOT - 1:
            if c == NSLOT - 1:
                for k in range(1, TD):
                    touch_chunk(c + k)
            touch_chunk(c + TD)
    def _issue(c):
        m, G = chunks[c]
        slot = c % NSLOT
        for j in range(4):
            A("s_add_u32 m0, %s, %d" % (s(sLW), RING0 + slot * 4096 + j * 1024))
            if m < 3:
                A("s_mov_b32 %s, %d" % (s(sT + 2), (64 * G + 4 * j) * 8192))
                A.vmem("buffer_load_dwordx4 %s, %s, %s offen%s lds" % (v(vOffW), s((sWQ, sWK, sWV)[m], 4), s(sT + 2), NT), ('c', c))
            else:
                A("s_mov_b32 %s, %d" % (s(sT + 2), 8 * j * 1152 + 128 * G))
                A.vmem("buffer_load_dwordx4 %s, %s, %s offen%s lds" % (v(vOffO), s(sWO, 4), s(sT + 2), NT), ('c', c))
    A.vm, A.lds = [], []
    for c in range(NSLOT - 1):
        issue_chunk(c)
    A("s_lshl_b32 %s, %s, 5" % (s(sT), s(sW)))
    A("s_add_u32 %s, %s, %s" % (s(sUnit), s(sT), s(sCU)))
    A("s_cmp_lt_u32 %s, 72" % s(sUnit))
    A("s_cselect_b32 %s, %s, -1" % (s(sUnit), s(sUnit)))
    if "dup" in opt:
        A("s_xor_b32 %s, %s, 16" % (s(sT), s(sCU)))
        A("s_cmp_eq_u32 %s, 3" % s(sW))
        A("s_cselect_b32 %s, %s, %s" % (s(sUnit), s(sT), s(sUnit)))
    A("v_lshlrev_b32 %s, 4, %s" % (v(vL16), v(lane)))
    A("v_and_b32 %s, 1, %s" % (v(t1), v(lane)))
    A("v_mul_u32_u24 %s, 0xaaaa, %s" % (v(t1), v(t1)))
    A("v_add_u32 %s, 0x4444, %s" % (v(vIdx), v(t1)))
    A("s_mul_i32 %s, %s, %d" % (s(sT), s(sW), L_WSTRIDE))
    A("s_add_u32 %s, %s, %d" % (s(sT), s(sT), L_W))
    A("v_add_u32 %s, %s, %s" % (v(vWL), s(sT), v(vL16)))
    A("s_add_u32 %s, %s, 32768" % (s(sVX), s(sT)))
    A("s_lshl_b32 %s, %s, 11" % (s(sKXm), s(sW)))
    A("s_add_u32 %s, %s, %d" % (s(sKXm), s(sKXm), L_KX))
    A("v_lshrrev_b32 %s, 4, %s" % (v(t2), v(lane)))
    A("v_bfe_u32 %s, %s, 2, 2" % (v(t3), v(lane)))
    A("v_and_b32 %s, 3, %s" % (v(t4), v(lane)))
    A("v_and_b32 %s, 1, %s" % (v(t1), v(t3)))
    A("v_mul_u32_u24 %s, %d, %s" % (v(vFw), FSTR, v(t1)))
    A("v_lshrrev_b32 %s, 1, %s" % (v(t1), v(t3)))
    A("v_lshl_add_u32 %s, %s, 8, %s" % (v(vFw), v(t1), v(vFw)))
    A("v_lshl_add_u32 %s, %s, 6, %s" % (v(vFw), v(t2), v(vFw)))
    A("v_lshl_add_u32 %s, %s, 2, %s" % (v(vFw), v(t4), v(vFw)))
    A("s_lshr_b32 %s, %s, 1" % (s(sT), s(sW)))
    A("s_and_b32 %s, %s, 1" % (s(sT + 1), s(sW)))
    A("s_mul_i32 %s, %s, %d" % (s(sT + 2), s(sT), 2 * FSTR))
    A("s_lshl_b32 %s, %s, 9" % (s(sT + 3), s(sT + 1)))
    A("s_add_u32 %s, %s, %s" % (s(sT + 2), s(sT + 2), s(sT + 3)))
    A("s_add_u32 %s, %s, %d" % (s(sT + 2), s(sT + 2), L_F))
    A("v_add_u32 %s, %s, %s" % (v(vFw), s(sT + 2), v(vFw)))
    A("v_and_b32 %s, 1, %s" % (v(t1), v(t4)))
    A("v_lshl_add_u32 %s, %s, 1, %s" % (v(t1), v(t3), v(t1)))
    A("v_lshlrev_b32 %s, 5, %s" % (v(t5), v(t1)))
    A("v_lshl_add_u32 %s, %s, 8, %s" % (v(t5), v(t2), v(t5)))
    A("s_lshl_b32 %s, %s, 10" % (s(sT + 2), s(sT)))
    A("s_lshl_b32 %s, %s, 4" % (s(sT + 3), s(sT + 1)))
    A("s_add_u32 %s, %s, %s" % (s(sT + 2), s(sT + 2), s(sT + 3)))
    A("s_add_u32 %s, %s, %d" % (s(sT + 2), s(sT + 2), L_O))
    A("v_add_u32 %s, %s, %s" % (v(t5), s(sT + 2), v(t5)))
    A("v_lshl_add_u32 %s, %s, 3, %s" % (v(t6), v(t2), v(t1)))
    A("v_lshlrev_b32 %s, 4, %s" % (v(t6), v(t6)))
    A("v_add_u32 %s, %d, %s" % (v(t6), L_SCR, v(t6)))
    A("v_cmp_le_u32 vcc, 2, %s" % v(t4))
    A("s_nop 1")
    A("v_cndmask_b32 %s, %s, %s, vcc" % (v(vOw), v(t6), v(t5)))
    A("v_lshrrev_b32 %s, 5, %s" % (v(t1), v(lane)))
    A("v_lshlrev_b32 %s, 12, %s" % (v(vPst), v(t1)))
    A("v_and_b32 %s, 31, %s" % (v(t1), v(lane)))
    A("v_lshl_add_u32 %s, %s, 2, %s" % (v(vPst), v(t1), v(vPst)))
    A("v_lshlrev_b32 %s, 6, %s" % (v(t5), v(t3)))
    A("v_lshl_add_u32 %s, %s, 3, %s" % (v(t5), v(t4), v(t5)))
    A("v_lshl_add_u32 %s, %s, 5, %s" % (v(t5), v(t2), v(t5)))
    A("s_lshl_b32 %s, %s, 7" % (s(sT + 2), s(sUnit)))
    A("s_and_b32 %s, %s, 0x3fff" % (s(sT + 2), s(sT + 2)))
    A("v_add_u32 %s, %s, %s" % (v(t5), s(sT + 2), v(t5)))
    A("v_and_b32 %s, 0x28, %s" % (v(t1), v(lane)))
    A("v_mov_b32 %s, 0x%x" % (v(t6), OOB))
    A("v_cmp_eq_u32 vcc, 0, %s" % v(t1))
    A("s_nop 1")
    A("v_cndmask_b32 %s, %s, %s, vcc" % (v(vRst), v(t6), v(t5)))
    A("s_mov_b32 %s, 0x11111111" % s(sTagM))
    A("s_mov_b32 %s, 0x11111111" % s(sTagM + 1))
    A("v_and_b32 %s, 1, %s" % (v(t1), v(t3)))
    A("v_lshlrev_b32 %s, 4, %s" % (v(t1), v(t1)))
    A("v_mov_b32 %s, 0x3f80" % v(t5))
    A("v_lshlrev_b32 %s, %s, %s" % (v(vSelV), v(t1), v(t5)))
    for u in range(4):
        m16 = (1 << u) | (1 << (u + 4))
        m32 = m16 | (m16 << 16)
        A("s_mov_b32 %s, 0x%x" % (s(sSel + 2 * u), m32))
        A("s_mov_b32 %s, 0x%x" % (s(sSel + 2 * u + 1), m32))
    A("s_lshl_b32 %s, %s, 10" % (s(sT + 2), s(sW)))
    A("v_add_u32 %s, %s, %s" % (v(vT0), s(sT + 2), v(vL16)))
    A("v_xor_b32 %s, 0x400, %s" % (v(vT1), v(vT0)))
    A("s_and_b32 %s, %s, 0x800" % (s(sT + 2), s(sT + 2)))
    A("s_xor_b32 %s, %s, 0x800" % (s(sT + 2), s(sT + 2)))
    A("v_add_u32 %s, %s, %s" % (v(vT2), s(sT + 2), v(vL16)))
    A("s_mov_b32 %s, 0" % s(sStep))
    A("s_mov_b32 %s, 0" % s(sPh))
    A("s_mov_b32 %s, %d" % (s(sBud), 200000 if "tt" in opt or "stamps" in opt else 2000000))
    A("s_lshl_b32 %s, %s, 7" % (s(sT + 3), s(sCU)))
    A("s_add_u32 %s, %s, %d" % (s(sT + 3), s(sT + 3), WS_PB))
    A("s_lshl_b32 %s, %s, 13" % (s(sT + 2), s(sW)))
    A("s_add_u32 %s, %s, %s" % (s(sP0), s(sT + 2), s(sT + 3)))
    A("s_lshl_b32 %s, %s, 12" % (s(sT + 2), s(sUnit)))
    A("s_add_u32 %s, %s, %d" % (s(sRd), s(sT + 2), WS_PB))
    A("s_cmp_eq_u32 %s, -1" % s(sUnit))
    A("s_cselect_b32 %s, 0x%x, %s" % (s(sRd), OOB, s(sRd)))
    A("s_cselect_b32 %s, 0x%x, 0" % (s(sT + 2), OOB))
    A("v_or_b32 %s, %s, %s" % (v(vRst), s(sT + 2), v(vRst)))
    for i, r in enumerate((sX0, sX1, sX2)):
        A("s_mov_b32 %s, %d" % (s(r), WS_MBX + i * MBX_STRIDE))
    A("s_lshl_b32 %s, %s, 14" % (s(sKV), s(sCU)))
    A("s_lshl_b32 %s, %s, 11" % (s(sT + 2), s(sW)))
    A("s_add_u32 %s, %s, %s" % (s(sKV), s(sKV), s(sT + 2)))
    A("s_add_u32 %s, %s, %d" % (s(sKVv), s(sKV), WS_KV + 8192))
    A("s_lshl_b32 %s, %s, 14" % (s(sKVt), s(sCU)))
    A("s_add_u32 %s, %s, %d" % (s(sKVt), s(sKVt), WS_KV + 1 * KVSTEP))
    A("s_cmp_lt_u32 %s, 3" % s(sW))
    A("s_cselect_b32 %s, 0x%x, %s" % (s(sKVt), OOB, s(sKVt)))
    if WS_KV:
        A("s_add_u32 %s, %s, %d" % (s(sKV), s(sKV), WS_KV))
    A("s_lshl_b32 %s, %s, 12" % (s(sKM), s(sCU)))
    A("s_lshl_b32 %s, %s, 10" % (s(sT + 2), s(sW)))
    A("s_add_u32 %s, %s, %s" % (s(sKM), s(sKM), s(sT + 2)))
    A("s_add_u32 %s, %s, %d" % (s(sKM), s(sKM), WS_KM))
    A("s_lshl_b32 %s, %s, 2" % (s(sT + 2), s(sCU)))
    A("s_add_u32 %s, %s, %s" % (s(sT + 2), s(sT + 2), s(sW)))
    A("s_mul_i32 %s, %s, %d" % (s(sWF), s(sT + 2), 18 * 2048))
    A("s_add_u32 %s, %s, %d" % (s(sWF), s(sWF), WS_WF))
    A("s_add_u32 %s, %s, %d" % (s(sL2a), s(sWF), 16 * 2048))
    A("s_mov_b32 %s, 0x%x" % (s(sC), f32bits(128 ** -0.5 * math.log2(math.e))))

    A("s_lshl_b32 %s, %s, 2" % (s(sT + 2), s(sW)))
    A("v_add_u32 %s, %s, %s" % (v(vColQK), s(sT + 2), v(t4)))
    A("s_lshl_b32 %s, %s, 3" % (s(sT + 2), s(sT)))
    A("s_add_u32 %s, %s, %s" % (s(sT + 2), s(sT + 2), s(sT + 1)))
    A("v_lshl_add_u32 %s, %s, 1, %s" % (v(vColV), v(t4), s(sT + 2)))
    A("v_and_b32 %s, 1, %s" % (v(t5), v(t2)))
    A("v_lshlrev_b32 %s, 2, %s" % (v(t5), v(t5)))
    A("v_lshrrev_b32 %s, 1, %s" % (v(t6), v(t3)))
    A("v_lshl_add_u32 %s, %s, 3, %s" % (v(t5), v(t6), v(t5)))
    A("v_and_b32 %s, 1, %s" % (v(t6), v(t3)))
    A("v_add_u32 %s, %s, %s" % (v(t5), v(t5), v(t6)))
    A("v_lshrrev_b32 %s, 1, %s" % (v(t1), v(t2)))
    A("v_lshl_add_u32 %s, %s, 4, %s" % (v(vTrO), v(t1), v(t5)))
    A("v_lshlrev_b32 %s, 7, %s" % (v(vTrO), v(vTrO)))
    A("v_lshl_add_u32 %s, %s, 3, %s" % (v(vTrO), v(t4), v(vTrO)))
    A("s_lshl_b32 %s, %s, 5" % (s(sT + 2), s(sW)))
    A("s_add_u32 %s, %s, %d" % (s(sT + 2), s(sT + 2), RING0))
    A("v_add_u32 %s, %s, %s" % (v(vTrO), s(sT + 2), v(vTrO)))
    A("v_mul_u32_u24 %s, %d, %s" % (v(t1), L_WSTRIDE, v(t1)))
    A("v_lshl_add_u32 %s, %s, 8, %s" % (v(t1), v(t5), v(t1)))
    A("v_add_u32 %s, %d, %s" % (v(t1), RING0, v(t1)))
    for col in (vColQK, vColV):
        A("v_lshl_add_u32 %s, %s, 2, %s" % (v(col), v(t6), v(col)))
        A("v_and_b32 %s, 15, %s" % (v(col), v(col)))
        A("v_lshl_add_u32 %s, %s, 4, %s" % (v(col), v(col), v(t1)))
    AD = [58, 59, 61, 62]
    ADO = [vTrO, 63, 69, 70]
    def addr_wo():
        for i in range(1, 4):
            A("v_add_u32 %s, %d, %s" % (v(ADO[i]), i * L_WSTRIDE, v(vTrO)))
    def addr_wide(col):
        A("v_mov_b32 %s, %s" % (v(AD[0]), v(col)))
        A("v_xor_b32 %s, 0x80, %s" % (v(AD[1]), v(col)))
        A("v_add_u32 %s, %d, %s" % (v(AD[2]), 2 * L_WSTRIDE, v(AD[0])))
        A("v_add_u32 %s, %d, %s" % (v(AD[3]), 2 * L_WSTRIDE, v(AD[1])))
    TMPF = [12, 20]
    tmpi = [0]
    park = {}
    def get_frag(key, addrs, imms):
        out = None
        if key in WREGS:
            r = WREGS[key]
        elif SPILL[key] in park:
            r = park[SPILL[key]]
        else:
            r = TMPF[tmpi[0] % 2]
            tmpi[0] += 1
            out = (r, SPILL[key])
        for q in range(4):
            A.ds("ds_read_b64_tr_b16 %s, %s offset:%d" % (R(r + 2 * q, 2), v(addrs[q]), imms[q]))
        return out
    def put(r, idx):
        if idx < 16:
            for hh in range(2):
                A.ds("ds_write_b128 %s, %s offset:%d" % (v(vWL), R(r + 4 * hh, 4), idx * 2048 + hh * 1024))
        else:
            for hh in range(2):
                A.vmem("buffer_store_dwordx4 %s, %s, %s, %s offen offset:%d" % (v(r + 4 * hh, 4), v(vL16), s(sWS, 4), s(sL2a), 1024 * hh), 'sp')

    A("v_lshl_add_u32 %s, %s, 1, %s" % (v(t5), v(t3), v(t2)))
    A("v_mul_u32_u24 %s, 1152, %s" % (v(t5), v(t5)))
    A("v_lshl_add_u32 %s, %s, 3, %s" % (v(t5), v(t4), v(t5)))
    A("s_and_b32 %s, %s, 1" % (s(sT + 2), s(sUnit)))
    A("s_mul_i32 %s, %s, 4608" % (s(sT + 2), s(sT + 2)))
    A("s_bfe_u32 %s, %s, 0x60001" % (s(sT + 3), s(sUnit)))
    A("s_lshl_b32 %s, %s, 5" % (s(sT + 3), s(sT + 3)))
    A("s_add_u32 %s, %s, %s" % (s(sT + 2), s(sT + 2), s(sT + 3)))
    A.vmem("buffer_load_dwordx2 %s, %s, %s, %s offen" % (v(52, 2), v(t5), s(sM0, 4), s(sT + 2)), 'm0')
    for i in range(4):
        A("v_mov_b32 %s, -1" % v(64 + i))
    for i in range(4):
        A.vmem("buffer_store_dwordx4 %s, %s, %s, %s offen offset:%d%s" % (v(64, 4), v(vL16), s(sWS, 4), s(sRd), 1024 * i, SC), 'mb')
    for so in (sX1, sX2):
        A.vmem("buffer_store_dwordx2 %s, %s, %s, %s offen%s" % (v(64, 2), v(vRst), s(sWS, 4), s(so), SC), 'mb')
    vm0 = list(A.vm)
    ljoin = A.new("initjoin")
    lcls = [A.new("cls%d" % i) for i in range(4)]
    for i in (1, 2, 3):
        A("s_cmp_eq_u32 %s, %d" % (s(sW), i))
        A("s_cbranch_scc1 %s" % lcls[i])
    for wc in range(4):
        A.label(lcls[wc])
        A.vm, A.lds = list(vm0), []
        tmpi[0] = 0
        pos = [GOF(jj, wc) for jj in range(9)]
        park.clear()
        park.update({15: 28, 7: 36, 8: 44})
        for i, G in enumerate(VLAST):
            for t in range(2):
                park[9 + 2 * i + t] = WREGS[('v', pos.index(G), t)]
        flush = {32: (9, 10), 33: (11, 12), 34: (13, 14), 35: (15,)}
        for c in range(36):
            m, G = chunks[c]
            if c == 0:
                addr_wo()
                addr_wide(vColQK)
            if chunks[c] == (2, 4):
                addr_wide(vColV)
            A.wait_vm(('c', c))
            A("s_barrier")
            if c + NSLOT - 1 < 36:
                issue_chunk(c + NSLOT - 1)
            if c == NSLOT:
                A.vmem("buffer_store_dwordx2 %s, %s, %s, %s offen%s" % (v(52, 2), v(vRst), s(sWS, 4), s(sX0), SC), 'mb')
            if c == 20 and wc == 0:
                A("s_mov_b64 exec, 1")
                A("s_lshl_b32 %s, 1, s3" % s(sT + 2))
                A("s_lshl_b32 %s, %s, 8" % (s(sT + 2), s(sT + 2)))
                A("v_mov_b32 %s, %s" % (v(52), s(sT + 2)))
                A("v_mov_b32 %s, 1" % v(53))
                A.vmem("buffer_atomic_or %s, off, %s, 0 offset:%d" % (v(52), s(sDBG, 4), DBG_TEAM), 'at')
                A.vmem("buffer_atomic_add %s, off, %s, 0 offset:%d" % (v(53), s(sDBG, 4), DBG_TEAM), 'at')
                A("s_mov_b64 exec, -1")
            if "mega" in opt and c == 24:
                A.vmem("buffer_load_dword %s, off, %s, 0 offset:%d sc1" % (v(64), s(sDBG, 4), DBG_MOD), 'e')
            if "mega" in opt and c == 34:
                A("v_lshrrev_b32 %s, 2, %s" % (v(65), v(vL16)))
                A("s_lshl_b32 %s, %s, 8" % (s(sT + 2), s(sCU)))
                A("s_add_u32 %s, %s, %d" % (s(sT + 2), s(sT + 2), FL_KV))
                A.vmem("buffer_load_dword %s, %s, %s, %s offen sc1" % (v(65), v(65), s(sWS, 4), s(sT + 2)), 'e')
                A.vmem("buffer_load_dword %s, off, %s, 0 offset:%d sc1" % (v(66), s(sDBG, 4), DBG_TEAM), 'e')
            for idx in flush.get(c, ()):
                put(park[idx], idx)
            so = (c % NSLOT) * 4096
            sp = []
            if m == 3:
                for c2 in range(2):
                    sp.append(get_frag(('o', 2 * G + c2), [ADO[2 * c2 + (q >> 1)] for q in range(4)], [so + 2 * (q & 1) * 128 for q in range(4)]))
            else:
                j = pos.index(G)
                for t in range(2):
                    key = ('qk', j, 2 * m + t) if m < 2 else ('v', j, t)
                    sp.append(get_frag(key, AD, [so + 2 * (q & 1) * 256 + 8 * t for q in range(4)]))
            A.wait_ds()
            for x in sp:
                if x:
                    put(*x)
        A("s_barrier")
        put(park[7], 7)
        put(park[8], 8)
        if wc < 3:
            A("s_branch %s" % ljoin)
    A.label(ljoin)
    ROT = ([int(o[4:]) for o in opt if o.startswith("rot=")] + [0])[0]
    ROTW = ([int(o[5:]) for o in opt if o.startswith("rotw=")] + [0])[0]
    for G in range(9):
        if ROT or ROTW:
            A("s_mul_i32 %s, %s, %d" % (s(sT + 2), s(sW), ROTW))
            A("s_add_u32 %s, %s, %s" % (s(sT + 2), s(sT + 2), s(sCU)))
            A("s_add_u32 %s, %s, %d" % (s(sT + 2), s(sT + 2), ROT * G))
            A("s_and_b32 %s, %s, 31" % (s(sT + 2), s(sT + 2)))
            A("s_sub_u32 %s, %s, %s" % (s(sT + 2), s(sT + 2), s(sCU)))
            A("s_lshl_b32 %s, %s, 7" % (s(sT + 2), s(sT + 2)))
            A("s_add_u32 %s, %s, %s" % (s(sPt + G), s(sP0), s(sT + 2)))
            A("s_add_u32 %s, %s, %d" % (s(sPt + G), s(sPt + G), G * 32768))
        else:
            A("s_add_u32 %s, %s, %d" % (s(sPt + G), s(sP0), G * 32768))
    A("s_lshl_b32 %s, %s, 7" % (s(sFlg), s(sCU)))
    A("s_add_u32 %s, %s, %d" % (s(sFlg), s(sFlg), FL_PUB - 4096))
    A("s_cmp_eq_u32 %s, %d" % (s(sW), 3 if "mega" in opt else 7))
    A("s_cselect_b32 %s, %s, 0x%x" % (s(sFlg), s(sFlg), OOB))
    A("s_mov_b64 %s, 1" % s(sOne, 2))
    A("s_mov_b32 %s, 0xcccccccc" % s(sOex))
    A("s_mov_b32 %s, 0xcccccccc" % s(sOex + 1))
    A("s_lshl_b32 %s, %s, 8" % (s(sFlgN), s(sW)))
    A("s_add_u32 %s, %s, %d" % (s(sFlgN), s(sFlgN), L_MEM + 8192))
    A("s_cmp_lt_u32 %s, 32" % s(sUnit))
    A("s_cselect_b32 %s, %s, 0x%x" % (s(sRdE), s(sRd), OOB))
    A("s_lshl_b32 %s, %s, 8" % (s(sKF), s(sCU)))
    A("s_add_u32 %s, %s, %d" % (s(sKF), s(sKF), FL_KV))
    A("v_mov_b32 %s, %d" % (v(12), L_FLAG))
    A("v_mov_b32 %s, 0" % v(13))
    A("ds_write_b32 %s, %s" % (v(12), v(13)))
    A("s_waitcnt vmcnt(0) lgkmcnt(0)")
    A.vm, A.lds = [], []

    def kv_dma():
        return ["s_mov_b32 m0, %s" % s(sKXm),
                "buffer_load_dwordx4 %s, %s, %s offen sc1 lds" % (v(vL16), s(sWS, 4), s(sKV)),
                "buffer_load_dwordx4 %s, %s, %s offen offset:1024 sc1 lds" % (v(vL16), s(sWS, 4), s(sKV)),
                "s_mov_b32 m0, %s" % s(sVX),
                "buffer_load_dwordx4 %s, %s, %s offen sc1 lds" % (v(vL16), s(sWS, 4), s(sKVv)),
                "buffer_load_dwordx4 %s, %s, %s offen offset:1024 sc1 lds" % (v(vL16), s(sWS, 4), s(sKVv))]
    def land(key, half=None):
        sp = SPILL[key]
        for hh in ((0, 1) if half is None else (half,)):
            if sp < 16:
                A.ds("ds_read_b128 %s, %s offset:%d" % (v(LND + 8 * SLOT[key] + 4 * hh, 4), v(vWL), sp * 2048 + 1024 * hh), key)
            else:
                A.vmem("buffer_load_dwordx4 %s, %s, %s, %s offen offset:%d" % (v(LND + 8 * SLOT[key] + 4 * hh, 4), v(vL16), s(sWS, 4), s(sL2a), 1024 * hh), key)
    def zero(lo, hi):
        for r in range(lo, hi, 2):
            A("v_mov_b64 %s, 0" % v(r, 2))
    KVINC = 0 if "samekv" in opt else KVSTEP
    NDMA = "ndma" in opt
    def kv_all():
        for i in range(2):
            A("s_mov_b32 m0, %d" % (L_KX + 4096 * i))
            A("s_add_u32 %s, %s, %d" % (s(sT + 2), s(sKV), 4096 * i))
            for j in range(4):
                A("buffer_load_dwordx4 %s, %s, %s offen offset:%d sc1 lds" % (v(vL16), s(sWS, 4), s(sT + 2), 1024 * j))
        for i in range(4):
            A("s_mov_b32 m0, %d" % (L_W + i * L_WSTRIDE + 32768))
            A("s_add_u32 %s, %s, %d" % (s(sT + 2), s(sKV), 8192 + 2048 * i))
            for j in range(2):
                A("buffer_load_dwordx4 %s, %s, %s offen offset:%d sc1 lds" % (v(vL16), s(sWS, 4), s(sT + 2), 1024 * j))
    def kv_refresh(lback):
        lp = A.new("kvr")
        A.label(lp)
        A("v_lshrrev_b32 %s, 2, %s" % (v(vTmp), v(vL16)))
        A("buffer_load_dword %s, %s, %s, %s offen sc1" % (v(vTmp), v(vTmp), s(sWS, 4), s(sKF)))
        A("s_waitcnt vmcnt(0)")
        A("v_cmp_ne_u32 %s, 0, %s" % (s(sRdy, 2), v(vTmp)))
        A("s_nop 3")
        A("s_bitcmp1_b64 %s, %s" % (s(sRdy, 2), s(sStep)))
        A("s_cbranch_scc1 %s" % lback)
        A("s_sub_u32 %s, %s, 1" % (s(sBud), s(sBud)))
        A("s_cbranch_scc0 %s" % lp)
        A("s_mov_b32 %s, 0" % s(sBud))
        A("s_branch %s" % lback)
    if "tt" in opt:
        A("s_memrealtime s[66:67]")
    lfast = A.new("fast0")
    if "mega" in opt:
        lsl = A.new("slow0")
        A("v_readfirstlane_b32 %s, %s" % (s(sT + 1), v(64)))
        A("v_readfirstlane_b32 %s, %s" % (s(sT), v(66)))
        A("v_cmp_ne_u32 %s, 0, %s" % (s(sRdy, 2), v(65)))
        A("s_nop 3")
        lk, lt = A.new("needkv"), A.new("needteam")
        A("s_cmp_eq_u32 %s, 0" % s(sT + 1))
        A("s_cbranch_scc1 %s" % lsl)
        A("s_bitcmp1_b32 %s, 0" % s(sRdy))
        A("s_cbranch_scc1 %s" % lt)
        A("s_branch %s" % lk)
        A.label(lsl)
        hooks['kv_wait0'](A)
        A.label(lk)
        kv_refresh(lt)
        A.label(lt)
        A("s_bitcmp1_b32 %s, 5" % s(sT))
        A("s_cbranch_scc1 %s" % lfast)
    lp = A.new("tb")
    A.label(lp)
    A("buffer_load_dword %s, off, %s, 0 offset:%d sc1" % (v(vTmp), s(sDBG, 4), DBG_TEAM))
    A("s_waitcnt vmcnt(0)")
    A("v_readfirstlane_b32 %s, %s" % (s(sT), v(vTmp)))
    A("s_nop 3")
    A("s_bitcmp1_b32 %s, 5" % s(sT))
    A("s_cbranch_scc1 %s" % lfast)
    A("s_sub_u32 %s, %s, 1" % (s(sBud), s(sBud)))
    A("s_cbranch_scc0 %s" % lp)
    A("s_mov_b32 %s, 0" % s(sBud))
    A.label(lfast)
    if "mega" in opt:
        A("s_cmp_lt_u32 %s, 3" % s(sW))
        A("s_cselect_b64 %s, -1, %s" % (s(sRdy, 2), s(sRdy, 2)))
    if "tt" in opt:
        A("s_memrealtime s[68:69]")
    if "vn" in opt:
        for x in kv_dma()[3:]:
            A(x)
            A("s_nop 0")
        A("s_add_u32 %s, %s, %d" % (s(sKVv), s(sKVv), KVSTEP))
    for ch in QK_CHAIN:
        land(ch[0])
    zero(VACC, RING)
    A("s_waitcnt lgkmcnt(0)")
    A("s_lshr_b32 %s, %s, 8" % (s(sT), s(sT)))
    A("s_bcnt1_i32_b32 %s, %s" % (s(sT), s(sT)))
    lslow = A.new("slow")
    A("s_cmp_lg_u32 %s, 1" % s(sT))
    A("s_cbranch_scc1 %s" % lslow)
    def loop(SC):
        lentry, lexit = A.new("entry"), A.new("exit")
        lok1, lnored, lb4 = A.new("ok1"), A.new("nored"), A.new("b4")
        ls1, ls1w, l1a = A.new("s1"), A.new("s1w"), A.new("p1a")
        ls1r, ls2r, ls2ok, ls3r, ls3ok, l1r = A.new("s1r"), A.new("s2r"), A.new("s2ok"), A.new("s3r"), A.new("s3ok"), A.new("p1r")
        A("s_branch %s" % ls1)

        def SM(acc, afr, breg):
            A("v_smfmac_f32_16x16x64_bf16 %s, %s, %s, %s" % (v(acc, 4), v(afr, 4), breg, v(vIdx)))
        def MF(d, a_, b_, c_):
            A("v_mfma_f32_16x16x32_bf16 %s, %s, %s, %s" % (v(d, 4), v(a_, 4), v(b_, 4), c_))
        def fragaddr(j):
            if j == 8:
                return vL16, 8192
            return (vT0, vT1, vT2, vT2)[j & 3], (j & 4) * 1024 + (1024 if (j & 3) == 3 else 0)
        def ringrd(j, slot):
            b, o = fragaddr(j)
            A.ds("ds_read_b128 %s, %s offset:%d" % (v(RING + 4 * slot, 4), v(b), L_MEM + o), ('ring', j))
        def mbload(dst, j):
            if j == 8:
                A("buffer_load_dwordx4 %s, %s, %s, %s offen sc1" % (v(dst, 4), v(vL16), s(sWS, 4), s(sX8)))
            else:
                A("buffer_load_dwordx4 %s, %s, %s, %s offen sc1" % (v(dst, 4), v(fragaddr(j)[0]), s(sWS, 4), s(sX4 if j & 4 else sX0)))
        def check(base, n):
            A("v_max3_u32 %s, %s, %s, %s" % (v(vTmp), v(base), v(base + 1), v(base + 2)))
            for i in range(3, n - 1, 2):
                A("v_max3_u32 %s, %s, %s, %s" % (v(vTmp), v(vTmp), v(base + i), v(base + i + 1)))
            A("v_max_u32 %s, %s, %s" % (v(vTmp), v(vTmp), v(base + n - 1)))
            A("v_cmp_eq_u32 vcc, -1, %s" % v(vTmp))
        def budget(lagain, lgiveup):
            A("s_sub_u32 %s, %s, 1" % (s(sBud), s(sBud)))
            A("s_cbranch_scc0 %s" % lagain)
            A("s_mov_b32 %s, 0" % s(sBud))
            A("s_branch %s" % lgiveup)
        PLA = [12, 16, 20, 24]
        RACC, SEL = 28, 32
        def poll1_issue(PL, so=sRd, which=range(4)):
            for i in which:
                A("buffer_load_dwordx4 %s, %s, %s, %s offen offset:%d sc1" % (v(PL[i], 4), v(vL16), s(sWS, 4), s(so), 1024 * i))
        def wait_many(keys):
            idx = [i for i, t in enumerate(A.lds) if t in keys]
            if idx:
                A.wait_ds(A.lds[idx[-1]])
        def endstep():
            for ch in QK_CHAIN:
                land(ch[0])
            A("s_mov_b32 %s, %s" % (s(sT), s(sX0)))
            A("s_mov_b32 %s, %s" % (s(sX0), s(sX1)))
            A("s_mov_b32 %s, %s" % (s(sX1), s(sX2)))
            A("s_mov_b32 %s, %s" % (s(sX2), s(sT)))
        PUB = "" if "pubplain" in opt else " sc1"
        def optval(name, dflt):
            for o in opt:
                if o.startswith(name + "="):
                    return int(o.split("=")[1])
            return dflt
        LWAIT, S1DEPTH = optval("lwait", 2), optval("s1d", 2)
        sX4, sX8 = sP1, sP2
        F8 = RING + 4
        PLB = [LND, LND + 4, LND + 8, LND + 12]
        def reduce_body(PL, n_after):
            if "prog" in opt:
                A("s_waitcnt vmcnt(%d)" % (n_after + 3))
                MF(RACC, SEL, PL[0], "0")
                A("s_waitcnt vmcnt(%d)" % (n_after + 2))
                MF(RACC, SEL, PL[1], v(RACC, 4))
                A("v_bitop3_b32 %s, %s, %s, %s bitop3:0x7e" % (v(vTmp), v(PL[0]), v(PL[1]), s(sPh)))
                A("s_waitcnt vmcnt(%d)" % (n_after + 1))
                MF(RACC, SEL, PL[2], v(RACC, 4))
                A("s_waitcnt vmcnt(%d)" % n_after)
                MF(RACC, SEL, PL[3], v(RACC, 4))
                A("v_bitop3_b32 %s, %s, %s, %s bitop3:0x7e" % (v(45), v(PL[2]), v(PL[3]), s(sPh)))
                A("v_bitop3_b32 %s, %s, %s, 1 bitop3:0xa8" % (v(vTmp), v(vTmp), v(45)))
                A("v_cmp_ne_u32 vcc, 0, %s" % v(vTmp))
                return
            A("s_waitcnt vmcnt(%d)" % n_after)
            MF(RACC, SEL, PL[0], "0")
            A("v_bitop3_b32 %s, %s, %s, %s bitop3:0x7e" % (v(vTmp), v(PL[0]), v(PL[1]), s(sPh)))
            A("v_bitop3_b32 %s, %s, %s, %s bitop3:0x7e" % (v(45), v(PL[2]), v(PL[3]), s(sPh)))
            MF(RACC, SEL, PL[1], v(RACC, 4))
            A("v_bitop3_b32 %s, %s, %s, 1 bitop3:0xa8" % (v(vTmp), v(vTmp), v(45)))
            A("v_cmp_ne_u32 vcc, 0, %s" % v(vTmp))
            MF(RACC, SEL, PL[2], v(RACC, 4))
            MF(RACC, SEL, PL[3], v(RACC, 4))
        def mksel():
            for u in range(4):
                A("v_cndmask_b32 %s, 0, %s, %s" % (v(SEL + u), v(vSelV), s(sSel + 2 * u, 2)))
        def s1load(base):
            mbload(base, 0)
            mbload(base + 4, 1)
        def rotate():
            A("s_mov_b32 %s, %s" % (s(sT), s(sX0)))
            A("s_mov_b32 %s, %s" % (s(sX0), s(sX1)))
            A("s_mov_b32 %s, %s" % (s(sX1), s(sX2)))
            A("s_mov_b32 %s, %s" % (s(sX2), s(sT)))
            A("s_add_u32 %s, %s, 4096" % (s(sX4), s(sX0)))
            A("s_add_u32 %s, %s, 8192" % (s(sX8), s(sX0)))
            A("s_mov_b32 m0, %s" % s(sFlgN))
        lgo1 = A.new("go1")
        lkvr, lkvok = A.new("kvrf"), A.new("kvok")
        if "mega" in opt:
            A.label(lkvr)
            kv_refresh(lkvok)
        A.label(lnored)
        A("s_cmp_eq_u32 %s, -1" % s(sUnit))
        A("s_cbranch_scc1 %s_n" % lnored)
        A("s_waitcnt vmcnt(%d)" % LWAIT)
        A("s_branch %s" % lgo1)
        A.label(lnored + "_n")
        if "ps" in opt:
            A("s_memtime s[72:73]")
            A("s_memrealtime s[74:75]")
            A("s_lshl_b32 %s, %s, 9" % (s(sT), s(sCU)))
            A("s_lshl_b32 %s, %s, 3" % (s(sT + 1), s(sStep)))
            A("s_add_u32 %s, %s, %s" % (s(sT), s(sT), s(sT + 1)))
            A("s_add_u32 %s, %s, %d" % (s(sT), s(sT), WS_DBG + (7 << 17)))
            A("s_waitcnt lgkmcnt(0)")
            A("v_mov_b32 v46, s72")
            A("v_mov_b32 v47, s74")
            A("s_mov_b64 exec, 1")
            A("buffer_store_dwordx2 v[46:47], off, %s, %s" % (s(sWS, 4), s(sT)))
            A("s_mov_b64 exec, -1")
        rotate()
        for i in range(0, 8, 2):
            A("v_mov_b64 %s, -1" % v(RING + i, 2))
        if NDMA:
            l3 = A.new("n3l")
            A("s_cmp_lg_u32 %s, 3" % s(sW))
            A("s_cbranch_scc1 %s" % l3)
            kv_all()
            A.label(l3)
        if "mega" in opt:
            lfull = A.new("full")
            A("s_add_u32 %s, %s, 1" % (s(sT + 1), s(sStep)))
            A("s_bitcmp1_b64 %s, %s" % (s(sRdy, 2), s(sT + 1)))
            A("s_cbranch_scc1 %s" % lfull)
            A("v_lshrrev_b32 %s, 2, %s" % (v(vTmp), v(vL16)))
            A("buffer_load_dword %s, %s, %s, %s offen sc1" % (v(vTmp), v(vTmp), s(sWS, 4), s(sKF)))
            A("s_waitcnt vmcnt(0)")
            A("v_cmp_ne_u32 %s, 0, %s" % (s(sRdy, 2), v(vTmp)))
            A.label(lfull)
        if "noflag" in opt:
            A("s_waitcnt vmcnt(0)")
        else:
            lf = A.new("flag")
            A("v_mov_b32 %s, %d" % (v(46), L_FLAG))
            A.label(lf)
            A("ds_read_b32 %s, %s" % (v(vTmp), v(46)))
            A("s_waitcnt lgkmcnt(0)")
            A("v_cmp_eq_u32 vcc, %s, %s" % (s(sStep), v(vTmp)))
            A("s_cbranch_vccnz %s" % lb4)
            budget(lf, lb4)
        A("s_branch %s" % lb4)
        X2 = LND + 16
        def f8load():
            A("buffer_load_dword %s, %s, %s offen sc1 lds" % (v(X2 + 5), s(sWS, 4), s(sX8)))
        def s2check():
            check(X2, 4)
        A.label(ls2r)
        if "tt" in opt:
            A("s_add_u32 s88, s88, 1")
        mbload(X2, 4)
        A("s_waitcnt vmcnt(1)")
        s2check()
        A("s_cbranch_vccz %s_d" % ls2r)
        budget(ls2r, ls2r + "_d")
        A.label(ls2r + "_d")
        A("s_waitcnt vmcnt(0)")
        A("s_branch %s" % ls2ok)
        A.label(ls3r)
        if "tt" in opt:
            A("s_add_u32 s89, s89, 1")
        mbload(RING + 4, 8)
        A("s_waitcnt vmcnt(0)")
        A("v_max3_u32 %s, %s, %s, %s" % (v(LND + 4), v(RING + 4), v(RING + 5), v(RING + 6)))
        A("v_max_u32 %s, %s, %s" % (v(LND + 4), v(LND + 4), v(RING + 7)))
        A("v_cmp_eq_u32 vcc, -1, %s" % v(LND + 4))
        A("s_cbranch_vccz %s" % ls3ok)
        budget(ls3r, ls3ok)
        A.label(ls1)
        A("s_add_u32 %s, %s, 4096" % (s(sX4), s(sX0)))
        A("s_add_u32 %s, %s, 8192" % (s(sX8), s(sX0)))
        A("s_mov_b32 m0, %s" % s(sFlgN))
        s1load(RING)
        A("s_waitcnt vmcnt(0)")
        A("s_branch %s" % ls1w)
        A(".p2align 6")
        A.label(ls1r)
        A("s_sub_u32 %s, %s, 1" % (s(sBud), s(sBud)))
        A("s_cbranch_scc1 %s_give" % ls1r)
        if "mask" in opt:
            A("s_mov_b64 exec, vcc")
        s1load(RING)
        if "mask" in opt:
            A("s_mov_b64 exec, -1")
        A("s_waitcnt vmcnt(%d)" % S1DEPTH)
        A.label(ls1w)
        check(RING, 8)
        A("s_cbranch_vccnz %s" % ls1r)
        A.label(lentry)
        A.lds, A.vm = [], []
        if "tt" in opt:
            lt = A.new("tt")
            A("s_cmp_lg_u32 %s, 3" % s(sStep))
            A("s_cbranch_scc1 %s" % lt)
            A("s_memtime s[92:93]")
            A.label(lt)
        if stamps and "rt" in opt:
            lq = A.new("q")
            A("s_memrealtime %s" % s(sStamp + 18, 2))
            A("s_cmp_lg_u32 %s, 41" % s(sStep))
            A("s_cbranch_scc1 %s" % lq)
            A("s_waitcnt lgkmcnt(0)")
            for i in range(10):
                A("v_writelane_b32 %s, %s, %d" % (v(vTmp), s(sStamp + 2 * i), i))
            A("s_lshl_b32 %s, %s, 2" % (s(sT), s(sCU)))
            A("s_add_u32 %s, %s, %s" % (s(sT), s(sT), s(sW)))
            A("s_lshl_b32 %s, %s, 11" % (s(sT), s(sT)))
            A("s_add_u32 %s, %s, %d" % (s(sT), s(sT), WS_DBG))
            A("buffer_store_dword %s, %s, %s, %s offen" % (v(vTmp), v(vL16), s(sWS, 4), s(sT)))
            A.label(lq)
        stamp()
        KXR = {(0, 0): LND, (0, 1): LND + 4, (0, 2): LND + 8, (0, 3): LND + 12, (1, 0): LND + 16, (1, 1): LND + 20, (1, 2): LND, (1, 3): LND + 4}
        def kxrd(tl, ks):
            A.ds("ds_read_b128 %s, %s offset:%d" % (v(KXR[(tl, ks)], 4), v(vL16), L_KX + (4 * tl + ks) * 1024), ('kx', tl, ks))
        AREG = {0: RING, 1: RING + 4, 2: RING + 8, 3: RING, 4: X2, 5: RING + 4, 6: RING + 8, 7: RING, 8: RING + 4}
        FP = optval("fp", 0)
        def Q(j, t):
            key = ('qk', j, t)
            SM(QK + 4 * t, AREG[j], R(WREGS[key], 8) if key in WREGS else v(LND + 8 * SLOT[key], 8))
            if t == 0 and FP == 0:
                stamp(True)
        def VS(j, t, a_=None):
            key = ('v', j, t)
            SM(VACC + 4 * t, AREG[j] if a_ is None else a_, R(WREGS[key], 8) if key in WREGS else v(LND + 8 * SLOT[key], 8))
        L = lambda j, t, hh: land(('qk', j, t), hh)
        kd = kv_dma()
        mega = "mega" in opt
        ND = 0 if NDMA else 2
        def dma(i, tag):
            if not NDMA:
                A.vmem(kd[i], tag) if tag else A(kd[i])
        A.ds("ds_write_b128 %s, %s offset:%d" % (v(vT0), v(RING, 4), L_MEM), 'w1')
        if "s2l" not in opt:
            Q(0, 0); mbload(X2, 4)
            Q(0, 1); A("v_lshrrev_b32 %s, 2, %s" % (v(X2 + 5), v(vT0)))
            Q(0, 2)
            if "f8l" not in opt:
                f8load()
            else:
                L(2, 1, 0)
            if "kearly" in opt:
                dma(0, None)
                Q(0, 3); dma(1, 'kdma')
                VS(0, 0); dma(2, 'kdma')
                A.wait_ds('w1')
                VS(0, 1)
                A("s_barrier")
                ringrd(2, 2)
                stamp()
                Q(1, 0); L(2, 0, 0)
                Q(1, 1); L(2, 0, 1)
                Q(1, 2); L(2, 1, 0)
                Q(1, 3); L(2, 1, 1)
                VS(1, 0); A("s_add_u32 %s, %s, 1" % (s(sStep), s(sStep)))
            else:
                Q(0, 3); L(2, 0, 0)
                VS(0, 0); L(2, 0, 1)
                A.wait_ds('w1')
                VS(0, 1)
                A("s_barrier")
                ringrd(2, 2)
                stamp()
                Q(1, 0)
                if "f8l" in opt:
                    f8load()
                else:
                    L(2, 1, 0)
                dma(0, None)
                Q(1, 1); L(2, 1, 1)
                Q(1, 2); dma(1, 'kdma')
                Q(1, 3); A("s_add_u32 %s, %s, 1" % (s(sStep), s(sStep)))
                VS(1, 0); dma(2, 'kdma')
            VS(1, 1); A("s_waitcnt vmcnt(%d)" % (2 + ND))
            ringrd(3, 0)
            A.wait_ds(('qk', 2, 1))
            Q(2, 0); L(4, 0, 0)
            Q(2, 1); L(4, 0, 1)
            Q(2, 2); L(4, 1, 0)
            Q(2, 3); L(4, 1, 1)
            if "v2" in opt:
                dma(3, None)
                VS(2, 0); dma(4, 'vdma')
                VS(2, 1); dma(5, 'vdma')
            else:
                VS(2, 0)
                if "vn" in opt:
                    A("s_add_u32 %s, %s, %d" % (s(sRdE), s(sKVt), KVSTEP + 8192))
                else:
                    dma(3, None)
                VS(2, 1)
            A.wait_ds(('ring', 3))
            Q(3, 0); A("s_waitcnt vmcnt(%d)" % ((5 if "v2" in opt else 3) if "f8l" in opt else (4 if "v2" in opt else 2)))
            s2check()
            Q(3, 1)
            Q(3, 2)
            A("s_cbranch_vccnz %s" % ls2r)
            A.label(ls2ok)
            A.ds("ds_write_b128 %s, %s offset:%d" % (v(vT0), v(X2, 4), L_MEM + 4096), 'w2')
            Q(3, 3)
            if "b1c" in opt:
                VS(3, 0)
                VS(3, 1)
                A.wait_ds(('qk', 4, 1))
                Q(4, 0); L(6, 0, 0)
                Q(4, 1)
                A.wait_ds('w2')
            else:
                VS(3, 0)
                if "v2" not in opt and "v5" not in opt and "vn" not in opt:
                    dma(4, 'vdma')
                VS(3, 1)
                if "v2" not in opt and "v5" not in opt and "vn" not in opt:
                    dma(5, 'vdma')
                if "v5" in opt or "vn" in opt:
                    ND = 0
                A.wait_ds(('qk', 4, 1))
                Q(4, 0); L(6, 0, 0)
                Q(4, 1)
                A("s_waitcnt vmcnt(%d) lgkmcnt(1)" % ND)
                A.vm, A.lds = A.vm[len(A.vm) - ND:], A.lds[-1:]
            A("s_barrier")
            ringrd(5, 1)
            Q(4, 2); ringrd(6, 2)
            Q(4, 3); ringrd(7, 0)
        else:
            Q(0, 0)
            Q(0, 1); A("v_lshrrev_b32 %s, 2, %s" % (v(X2 + 5), v(vT0)))
            Q(0, 2); dma(0, None)
            Q(0, 3); L(2, 0, 0)
            VS(0, 0); L(2, 0, 1)
            A.wait_ds('w1')
            VS(0, 1)
            A("s_barrier")
            ringrd(2, 2)
            stamp()
            Q(1, 0); mbload(X2, 4)
            Q(1, 1); f8load()
            Q(1, 2); L(2, 1, 0)
            Q(1, 3); L(2, 1, 1)
            VS(1, 0); dma(1, 'kdma')
            VS(1, 1); A("s_waitcnt vmcnt(3)")
            ringrd(3, 0)
            A.wait_ds(('qk', 2, 1))
            Q(2, 0); dma(2, 'kdma')
            Q(2, 1); L(4, 0, 0)
            Q(2, 2); L(4, 0, 1)
            Q(2, 3); L(4, 1, 0)
            VS(2, 0); L(4, 1, 1)
            VS(2, 1); dma(3, None)
            A.wait_ds(('ring', 3))
            Q(3, 0); A("s_add_u32 %s, %s, 1" % (s(sStep), s(sStep)))
            Q(3, 1)
            Q(3, 2)
            Q(3, 3); A("s_waitcnt vmcnt(2)")
            s2check()
            VS(3, 0)
            VS(3, 1)
            A("s_cbranch_vccnz %s" % ls2r)
            A.label(ls2ok)
            A.wait_ds(('qk', 4, 1))
            A.ds("ds_write_b128 %s, %s offset:%d" % (v(vT0), v(X2, 4), L_MEM + 4096), 'w2')
            Q(4, 0)
            A.ds("ds_write_b32 %s, %s offset:%d" % (v(X2 + 5), v(X2 + 4), L_MEM + 8192), 'w2')
            Q(4, 1); L(6, 0, 0)
            Q(4, 2); dma(4, 'vdma')
            Q(4, 3); dma(5, 'vdma')
            A("s_waitcnt vmcnt(2) lgkmcnt(1)")
            A.vm, A.lds = A.vm[len(A.vm) - 2:], A.lds[-1:]
            A("s_barrier")
            ringrd(5, 1)
            ringrd(6, 2)
            ringrd(7, 0)
        VS(4, 0); L(6, 0, 1)
        VS(4, 1); L(6, 1, 0)
        A.wait_ds(('ring', 5))
        Q(5, 0); land(L2KEY, 0)
        Q(5, 1); land(L2KEY, 1)
        if mega:
            A("s_bitcmp1_b64 %s, %s" % (s(sRdy, 2), s(sStep)))
        def touch(o):
            if "notouch" not in opt and "vn" in opt:
                A.vmem("buffer_load_dword %s, %s, %s offen sc1 lds" % (v(vTmp), s(sWS, 4), s(sRdE if o else sKVt)), 'touch')
            elif "notouch" not in opt:
                A.vmem("buffer_load_dword %s, %s, %s offen offset:%d sc1 lds" % (v(vTmp), s(sWS, 4), s(sKVt), o), 'touch')
        def kvbranch():
            if mega:
                A("s_cbranch_scc0 %s" % lkvr)
                A.label(lkvok)
        if "b1c" in opt:
            Q(5, 2); L(6, 1, 1)
            Q(5, 3); ringrd(8, 1)
            kvbranch()
            A.wait_ds(('qk', 6, 1))
            Q(6, 0); dma(4, 'vdma')
            Q(6, 1); L(7, 3, 0)
            Q(6, 2); dma(5, 'vdma')
            A("s_mov_b32 m0, %d" % (L_SCR + 512))
            Q(6, 3); L(7, 3, 1)
            A("v_lshlrev_b32 %s, 4, %s" % (v(vTmp), v(vL16)))
            A.wait_vm('kdma')
            A("s_barrier")
            Q(7, 0); touch(0)
            kxrd(0, 2)
            Q(7, 1); touch(128)
            kxrd(0, 3)
        else:
            Q(5, 2)
            if "v5" in opt:
                dma(4, 'vdma')
            L(6, 1, 1)
            Q(5, 3)
            if "v5" in opt:
                dma(5, 'vdma')
            ringrd(8, 1)
            A("s_mov_b32 m0, %d" % (L_SCR + 512))
            kvbranch()
            A.wait_ds(('qk', 6, 0))
            Q(6, 0); L(7, 3, 0)
            A.wait_ds(('qk', 6, 1))
            Q(6, 1); L(7, 3, 1)
            A("v_lshlrev_b32 %s, %d, %s" % (v(vTmp), 3 if "vn" in opt else 4, v(vL16)))
            Q(6, 2); touch(0)
            A.wait_ds(('ring', 8))
            Q(6, 3); A("v_max3_u32 %s, %s, %s, %s" % (v(LND + 8), v(RING + 4), v(RING + 5), v(RING + 6)))
            A("v_max_u32 %s, %s, %s" % (v(LND + 8), v(LND + 8), v(RING + 7)))
            Q(7, 0); touch(128)
            A("v_cmp_eq_u32 vcc, -1, %s" % v(LND + 8))
            Q(7, 1); kxrd(0, 2)
            kxrd(0, 3)
        Q(7, 2); A("v_cndmask_b32 %s, 2.0, 0, %s" % (v(vTmp), s(sOne, 2)))
        A.wait_ds(('qk', 7, 3))
        Q(7, 3); kxrd(0, 0)
        A("s_cbranch_vccnz %s" % ls3r)
        A.label(ls3ok)
        Q(8, 0); kxrd(0, 1)
        Q(8, 1)
        A.vmem("buffer_store_dword %s, %s, %s, %s offen sc1" % (v(vIdx), v(vTmp), s(sWS, 4), s(sFlg)), 'flag')
        if "qf" not in opt:
            Q(8, 2); A("v_lshrrev_b32 %s, 2, %s" % (v(vTmp), v(vL16)))
            Q(8, 3); A("s_add_u32 %s, %s, 4096" % (s(sFlg), s(sFlg)))
            stamp()
            VS(7, 0); A("s_cmp_eq_u32 %s, %d" % (s(sStep), nsteps))
            VS(7, 1); ringrd(5, 0)
        def fin(base):
            A("v_add_f32 %s, %s, %s" % (v(base), v(base), v(base + 1)))
            A("v_add_f32 %s, %s, %s" % (v(base + 2), v(base + 2), v(base + 3)))
            A("v_add_f32 %s, %s, %s" % (v(base + 4), v(base + 4), v(base + 5)))
            A("v_add_f32 %s, %s, %s" % (v(base + 6), v(base + 6), v(base + 7)))
            A("v_cvt_pk_bf16_f32 %s, %s, %s" % (v(base), v(base), v(base + 4)))
            A("v_cvt_pk_bf16_f32 %s, %s, %s" % (v(base + 1), v(base + 2), v(base + 6)))
        def finw(base):
            o = 8 if base == QK else 0
            A.ds("ds_write2_b32 %s, %s, %s offset0:%d offset1:%d" % (v(vFw), v(base), v(base + 1), o, o + 4), 'fw')
        def pub(reg, off):
            A.vmem("buffer_store_dword %s, %s, %s, %s offen offset:%d%s" % (v(reg), v(vTmp), s(sWS, 4), s(sKM), off, PUB), 'pub')
        if "qf" in opt:
            b = QK
            VS(7, 0); A("v_lshrrev_b32 %s, 2, %s" % (v(vTmp), v(vL16)))
            A("s_add_u32 %s, %s, 4096" % (s(sFlg), s(sFlg)))
            VS(7, 1); ringrd(5, 0)
            A("s_cmp_eq_u32 %s, %d" % (s(sStep), nsteps))
            Q(8, 2); A("v_add_f32 %s, %s, %s" % (v(b), v(b), v(b + 1)))
            Q(8, 3); A("v_add_f32 %s, %s, %s" % (v(b + 2), v(b + 2), v(b + 3)))
            A("s_cbranch_scc1 %s_l" % lexit)
            last_state = (list(A.lds), list(A.vm))
            A("v_add_f32 %s, %s, %s" % (v(b + 4), v(b + 4), v(b + 5)))
            A("v_add_f32 %s, %s, %s" % (v(b + 6), v(b + 6), v(b + 7)))
            A("v_cvt_pk_bf16_f32 %s, %s, %s" % (v(b), v(b), v(b + 4)))
            A("v_cvt_pk_bf16_f32 %s, %s, %s" % (v(b + 1), v(b + 2), v(b + 6)))
            finw(QK)
            fin(QK + 8)
            finw(QK + 8)
        else:
            fin(QK)
            fin(QK + 8)
            finw(QK)
            finw(QK + 8)
        VS(8, 1); pub(QK + 8, 0)
        VS(8, 0)
        VS(6, 1); pub(QK + 9, 256)
        VS(6, 0)
        A.wait_ds('fw')
        A("s_barrier")
        if FP == 2:
            stamp(True)
        for ks in range(4):
            A.ds("ds_read_b128 %s, %s offset:%d" % (v(QK + 4 * ks, 4), v(vL16), L_F + ks * FSTR), ('f', ks))
        stamp()
        VS(5, 0, RING); A.wait_vm(L2KEY)
        VS(5, 1, RING); kxrd(1, 0)
        kxrd(1, 1)
        T1, T2, T0 = RING, RING + 4, RING + 8
        ONES, LACC, OACC = QK + 8, QK + 12, LND + 16
        def S(i, ks):
            d, a_ = ((T1, KXR[(0, ks)]), (T2, KXR[(1, ks)]), (T0, QK + 4 * ks))[i]
            MF(d, a_, QK + 4 * ks, "0" if ks == 0 else v(d, 4))
        def vfin(t, part):
            b = VACC + 4 * t
            if part == 0:
                A("v_add_f32 %s, %s, %s" % (v(b), v(b), v(b + 1)))
                A("v_add_f32 %s, %s, %s" % (v(b + 2), v(b + 2), v(b + 3)))
            else:
                A("v_cvt_pk_bf16_f32 %s, %s, %s" % (v(b), v(b), v(b + 2)))
                A("v_mov_b32 %s, 0" % v(b + 1))
        def vxrd(t):
            A.ds("ds_read_b128 %s, %s offset:%d" % (v(QK + 4 * t, 4), v(vWL), 32768 + t * 1024), 'vx')
        m1, m2 = T0 + 2, T0 + 3
        A.wait_ds(('f', 0))
        S(0, 0)
        if FP == 2:
            stamp(True)
        A.wait_ds(('f', 1))
        S(0, 1); kxrd(1, 2)
        kxrd(1, 3)
        A.wait_ds(('f', 3))
        S(0, 2)
        S(0, 3); land(('o', 1), 0)
        land(('o', 1), 1)
        S(2, 0); vfin(0, 0)
        S(2, 1); vfin(0, 1)
        S(2, 2); vfin(1, 0)
        S(2, 3); pub(VACC, 512)
        vfin(1, 1)
        A.wait_vm('vdma')
        A.wait_ds(('kx', 1, 1))
        S(1, 0); vxrd(0)
        A("v_max3_f32 %s, %s, %s, %s" % (v(VACC + 2), v(T1), v(T1 + 1), v(T1 + 2)))
        S(1, 1); vxrd(1)
        A.wait_ds(('kx', 1, 3))
        S(1, 2); pub(VACC + 4, 768)
        A("v_max3_f32 %s, %s, %s, %s" % (v(m1), v(VACC + 2), v(T1 + 3), v(T0)))
        S(1, 3)
        if FP == 2:
            stamp(True)
        land(('o', 0), 0)
        land(('o', 0), 1)
        A("s_nop 0" if "qf" in opt else "s_cbranch_scc1 %s" % lexit)
        A("s_add_u32 %s, %s, %d" % (s(sKM), s(sKM), 32 * 4096))
        stamp()
        sv = [T1, T1 + 1, T1 + 2, T1 + 3, T2, T2 + 1, T2 + 2, T2 + 3, T0, T0 + 1]
        A("v_max_f32 %s, %s, %s" % (v(m1), v(m1), v(T0 + 1)))
        A("s_nop 0")
        A("v_mov_b32 %s, 0x3f803f80" % v(ONES))
        A("v_mov_b32 %s, 0x3f803f80" % v(ONES + 1))
        A("v_max3_f32 %s, %s, %s, %s" % (v(m1), v(m1), v(sv[4]), v(sv[5])))
        A("v_max3_f32 %s, %s, %s, %s" % (v(m2), v(m1), v(sv[6]), v(sv[7])))
        A("v_max3_f32 %s, %s, %s, %s" % (v(m1), v(m1), v(sv[6]), v(sv[7])))
        A("v_mov_b32 %s, 0x3f803f80" % v(ONES + 2))
        A("v_mov_b32 %s, 0x3f803f80" % v(ONES + 3))
        A("v_permlane32_swap_b32 %s, %s" % (v(m1), v(m2)))
        A("v_max_f32 %s, %s, %s" % (v(m1), v(m1), v(m2)))
        A("v_mov_b32 %s, %s" % (v(m2), v(m1)))
        A("s_nop 1")
        A("v_permlane16_swap_b32 %s, %s" % (v(m1), v(m2)))
        A("v_max_f32 %s, %s, %s" % (v(m1), v(m1), v(m2)))
        A("v_mul_f32 %s, %s, %s" % (v(m1), s(sC), v(m1)))
        if FP == 2:
            stamp(True)
        P, Pm = T1, T0
        def fma(x):
            A("v_fma_f32 %s, %s, %s, -%s" % (v(x), v(x), s(sC), v(m1)))
        def ex(x):
            A("v_exp_f32 %s, %s" % (v(x), v(x)))
        def M16(d, a_):
            A("v_mfma_f32_16x16x16_bf16 %s, %s, %s, 0" % (v(d, 4), v(a_, 2), v(Pm, 2)))
        fma(T0); fma(T0 + 1); ex(T0); ex(T0 + 1)
        fma(sv[0])
        A("v_cvt_pk_bf16_f32 %s, %s, %s" % (v(Pm), v(T0), v(T0 + 1)))
        A("v_mov_b32 %s, 0" % v(Pm + 1))
        fma(sv[1]); fma(sv[2])
        M16(LACC, ONES)
        fma(sv[3]); fma(sv[4])
        M16(OACC, VACC)
        fma(sv[5]); fma(sv[6])
        M16(OACC + 4, VACC + 4)
        fma(sv[7])
        for x in sv[:8]:
            ex(x)
        A("v_cvt_pk_bf16_f32 %s, %s, %s" % (v(P), v(T1), v(T1 + 1)))
        A("v_cvt_pk_bf16_f32 %s, %s, %s" % (v(P + 1), v(T1 + 2), v(T1 + 3)))
        A("v_cvt_pk_bf16_f32 %s, %s, %s" % (v(P + 2), v(T2), v(T2 + 1)))
        A("v_cvt_pk_bf16_f32 %s, %s, %s" % (v(P + 3), v(T2 + 2), v(T2 + 3)))
        A.wait_ds('vx')
        A("v_mov_b64 %s, 0" % v(44, 2))
        MF(LACC, ONES, P, v(LACC, 4))
        if FP == 2:
            stamp(True)
        if "vn" in opt:
            A(kd[3])
        MF(OACC, QK, P, v(OACC, 4))
        if "vn" in opt:
            A.vmem(kd[4], 'vdma')
        MF(OACC + 4, QK + 4, P, v(OACC + 4, 4))
        if "vn" in opt:
            A.vmem(kd[5], 'vdma')
        zero(12, 24)
        A("v_rcp_f32 %s, %s" % (v(vTmp), v(LACC)))
        if FP == 2:
            stamp(True)
        A("v_mov_b64 %s, 0" % v(24, 2))
        for i in range(8):
            A("v_mul_f32 %s, %s, %s" % (v(OACC + i), v(OACC + i), v(vTmp)))
        OP = T2
        for i in range(4):
            A("v_cvt_pk_bf16_f32 %s, %s, %s" % (v(OP + i), v(OACC + 2 * i), v(OACC + 2 * i + 1)))
        if "oex" in opt:
            A("s_mov_b64 exec, %s" % s(sOex, 2))
        A.ds("ds_write_b128 %s, %s" % (v(vOw), v(OP, 4)), 'ow')
        if "oex" in opt:
            A("s_mov_b64 exec, -1")
        if FP == 2:
            stamp(True)
        A("v_mov_b64 %s, -1" % v(36, 2))
        A("v_cndmask_b32 %s, 0, 1, %s" % (v(vTmp), s(sTagM, 2)))
        A.vmem("buffer_store_dwordx2 %s, %s, %s, %s offen%s" % (v(36, 2), v(vRst), s(sWS, 4), s(sX2), SC), 'rst')
        zero(26, 36)
        A.wait_ds('ow')
        A("s_barrier")
        if FP == 2:
            stamp(True)
        OF = LND + 16
        for c2 in range(2):
            A.ds("ds_read_b128 %s, %s offset:%d" % (v(OF + 4 * c2, 4), v(vL16), L_O + c2 * 1024), ('of', c2))
        stamp()
        zero(36, 44)
        zero(46, 48)
        def wacc(tile):
            return 12 + 4 * tile
        def W(p, c2):
            key = ('o', 2 * p + c2)
            wait_many([('of', c2), key])
            SM(wacc(p), OF + 4 * c2, R(WREGS[key], 8) if key in WREGS else v(LND + 8 * SLOT[key], 8))
            if c2 == 0 and FP == 1:
                stamp(True)
        def e1(tile):
            b = wacc(tile)
            A("v_add_f32 %s, %s, %s" % (v(b + 1), v(b), v(b + 1)))
            A("v_add_f32 %s, %s, %s" % (v(b + 3), v(b + 2), v(b + 3)))
        def e2(tile):
            b = wacc(tile)
            A("v_cvt_pk_bf16_f32 %s, %s, %s" % (v(b), v(b + 1), v(b + 3)))
            A("v_bfi_b32 %s, %s, %s, %s" % (v(b), v(vTmp), s(sPh), v(b)))
        def e3(tile):
            A("buffer_store_dword %s, %s, %s, %s offen%s" % (v(wacc(tile)), v(vPst), s(sWS, 4), s(sPt + tile), SC))
        LO = lambda n, hh: land(('o', n), hh)
        W(0, 0)
        if FP == 2:
            stamp(True)
        LO(8, 0)
        W(0, 1); LO(8, 1)
        A("s_add_u32 %s, %s, %d" % (s(sKVt), s(sKVt), KVINC))
        W(1, 0); LO(9, 0)
        A("s_add_u32 %s, %s, %d" % (s(sKV), s(sKV), KVINC))
        W(1, 1); LO(9, 1)
        A("s_add_u32 %s, %s, %d" % (s(sKVv), s(sKVv), KVINC))
        e1(0)
        for p in range(2, 9):
            W(p, 0)
            if p == 5:
                LO(16, 0)
            if p == 6:
                LO(17, 0)
            if p == 2:
                A("s_cmp_ge_u32 %s, 32" % s(sUnit))
            e2(p - 2)
            W(p, 1); e3(p - 2)
            if p == 5:
                LO(16, 1)
            if p == 6:
                LO(17, 1)
            e1(p - 1)
        EP = optval("ep", 0)
        def wtail(early):
            if early and EP == 2:
                poll1_issue(PLA)
            e2(7); e3(7)
            if early and EP == 1:
                poll1_issue(PLA)
            A("s_nop 1")
            e1(8); e2(8); e3(8)
            if stamps and "fine" not in opt:
                A("s_memrealtime %s" % s(sStamp + 16, 2))
            if FP == 1:
                stamp(True)
        if EP:
            lw = A.new("wt")
            A("s_cbranch_scc0 %s" % lw)
            wtail(False)
            A("s_branch %s" % lnored)
            A.label(lw)
            wtail(True)
        else:
            wtail(False)
            A("s_cbranch_scc1 %s" % lnored)
        def prep():
            mksel()
            rotate()
            for i in range(0, 8, 2):
                A("v_mov_b64 %s, -1" % v(RING + i, 2))
            A("v_mov_b32 %s, %d" % (v(46), L_FLAG))
            A("v_mov_b32 %s, %s" % (v(47), s(sStep)))
        l1b = A.new("p1b")
        if EP:
            if "eb2" in opt:
                prep()
                poll1_issue(PLB)
            else:
                poll1_issue(PLB)
                prep()
            reduce_body(PLA, 4 + EP)
            A("s_cbranch_vccz %s" % lok1)
            A("s_branch %s" % l1b)
        A.label(lgo1)
        poll1_issue(PLA)
        stamp()
        prep()
        if "eone" in opt or "lone" in opt:
            lb = A.new("two")
            if not ("eone" in opt and "lone" in opt):
                A("s_cmp_ge_u32 %s, 32" % s(sUnit))
                A("s_cbranch_scc%d %s" % (1 if "eone" in opt else 0, lb))
            reduce_body(PLA, 0)
            A("s_cbranch_vccz %s" % lok1)
            poll1_issue(PLA)
            A("s_nop 15")
            A.label(lb)
        for i in range(optval("p1g", 0)):
            A("s_nop 7")
        poll1_issue(PLB)
        A.label(l1a)
        reduce_body(PLA, 4)
        A("s_cbranch_vccz %s" % lok1)
        A.label(l1b)
        if "tt" in opt:
            A("s_add_u32 s87, s87, 1")
        poll1_issue(PLA)
        reduce_body(PLB, 4)
        A("s_cbranch_vccz %s" % lok1)
        if "tt" in opt:
            A("s_add_u32 s87, s87, 1")
        poll1_issue(PLB)
        A("s_sub_u32 %s, %s, 1" % (s(sBud), s(sBud)))
        A("s_cbranch_scc0 %s" % l1a)
        A("s_mov_b32 %s, 0" % s(sBud))
        A.label(lok1)
        def finish(nop):
            A("s_nop %d" % nop)
            for i in range(4):
                A("v_add_f32_dpp %s, %s, %s row_ror:8 row_mask:0xf bank_mask:0xf" % (v(RACC + i), v(RACC + i), v(RACC + i)))
            A("v_cvt_pk_bf16_f32 %s, %s, %s" % (v(44), v(RACC), v(RACC + 1)))
            A("v_cvt_pk_bf16_f32 %s, %s, %s" % (v(45), v(RACC + 2), v(RACC + 3)))
            A("buffer_store_dwordx2 %s, %s, %s, %s offen%s" % (v(44, 2), v(vRst), s(sWS, 4), s(sX0), SC))
        if "lsep" in opt:
            le = A.new("efin")
            A("s_cmp_lt_u32 %s, 32" % s(sUnit))
            A("s_cbranch_scc1 %s" % le)
            s1load(RING)
            finish(0)
            A("s_waitcnt vmcnt(3)")
            for ch in QK_CHAIN:
                land(ch[0])
            zero(VACC, RING)
            A("s_xor_b32 %s, %s, 1" % (s(sPh), s(sPh)))
            if "l2nd" in opt:
                s1load(RING)
                A("s_waitcnt vmcnt(3) lgkmcnt(0)")
            else:
                A("s_waitcnt vmcnt(1) lgkmcnt(0)")
            A("s_branch %s" % ls1w)
            A.label(le)
            A("ds_write_b32 %s, %s" % (v(46), v(47)))
            finish(0)
        else:
            A("ds_write_b32 %s, %s" % (v(46), v(47)))
            finish(2)
        stamp()
        A.label(lb4)
        for i in range(optval("g1", 0)):
            A("s_nop 7")
        if "late" in opt:
            A("s_waitcnt vmcnt(1)")
        else:
            s1load(RING)
            A("s_waitcnt vmcnt(%d)" % (5 if "early1" in opt else 3))
        for ch in QK_CHAIN:
            land(ch[0])
        zero(VACC, RING)
        A("s_xor_b32 %s, %s, 1" % (s(sPh), s(sPh)))
        if "late" in opt:
            s1load(RING)
        for i in range(optval("g2", 0)):
            A("s_nop 7")
        if "r2" in opt:
            s1load(RING)
            A("s_waitcnt vmcnt(2)")
        if "first0" in opt:
            A("s_waitcnt vmcnt(0)")
        A("s_waitcnt lgkmcnt(0)")
        if stamps and "rt" not in opt:
            ldump = A.new("dump")
            A("s_cmp_eq_u32 %s, 41" % s(sStep))
            A("s_cbranch_scc1 %s" % ldump)
            A("s_cmp_eq_u32 %s, 42" % s(sStep))
            A("s_cbranch_scc0 %s" % ls1w)
            A.label(ldump)
            for i in range(10):
                A("v_writelane_b32 %s, %s, %d" % (v(vTmp), s(sStamp + 2 * i), i))
            A("v_writelane_b32 %s, %s, %d" % (v(vTmp), s(sBud), 15))
            A("s_lshl_b32 %s, %s, 2" % (s(sT), s(sCU)))
            A("s_add_u32 %s, %s, %s" % (s(sT), s(sT), s(sW)))
            A("s_lshl_b32 %s, %s, 1" % (s(sT), s(sT)))
            A("s_add_u32 %s, %s, %s" % (s(sT), s(sT), s(sStep)))
            A("s_sub_u32 %s, %s, 41" % (s(sT), s(sT)))
            A("s_lshl_b32 %s, %s, 10" % (s(sT), s(sT)))
            A("s_add_u32 %s, %s, %d" % (s(sT), s(sT), WS_DBG + (3 << 18 if "mega" in opt else 0)))
            A("buffer_store_dword %s, %s, %s, %s offen" % (v(vTmp), v(vL16), s(sWS, 4), s(sT)))
            A("s_waitcnt vmcnt(0)")
        A("s_branch %s" % ls1w)
        A.label(ls1r + "_give")
        A("s_mov_b32 %s, 0" % s(sBud))
        A("s_branch %s" % lentry)
        if "qf" in opt:
            A.label(lexit + "_l")
            A.lds, A.vm = last_state
            VS(8, 0); VS(8, 1); VS(6, 0); VS(6, 1)
            A.wait_ds(('ring', 5))
            A.wait_vm(L2KEY)
            VS(5, 0, RING); VS(5, 1, RING)
            fin(QK + 8)
            pub(QK + 8, 0)
            pub(QK + 9, 256)
            vfin(0, 0); vfin(0, 1)
            pub(VACC, 512)
            vfin(1, 0); vfin(1, 1)
            pub(VACC + 4, 768)
        A.label(lexit)
        if "tt" in opt:
            A("s_memtime s[94:95]")
            A("s_memrealtime s[70:71]")
            A("s_waitcnt lgkmcnt(0)")
            A("s_sub_u32 s94, s94, s92")
            A("s_sub_u32 s92, s92, s90")
            A("v_writelane_b32 %s, s92, 0" % v(vTmp))
            A("v_writelane_b32 %s, s94, 1" % v(vTmp))
            A("v_writelane_b32 %s, %s, 2" % (v(vTmp), s(sBud)))
            for i in range(3):
                A("v_writelane_b32 %s, s%d, %d" % (v(vTmp), 87 + i, 3 + i))
            for i in range(4):
                A("v_writelane_b32 %s, s%d, %d" % (v(vTmp), 64 + 2 * i, 6 + i))
            A("s_lshl_b32 %s, %s, 2" % (s(sT), s(sCU)))
            A("s_add_u32 %s, %s, %s" % (s(sT), s(sT), s(sW)))
            A("s_lshl_b32 %s, %s, 10" % (s(sT), s(sT)))
            A("s_add_u32 %s, %s, %d" % (s(sT), s(sT), WS_DBG + (1 << 19)))
            A("buffer_store_dword %s, %s, %s, %s offen" % (v(vTmp), v(vL16), s(sWS, 4), s(sT)))
            if "dbgout" in opt:
                for i, o in enumerate((4, 8, 12, 20)):
                    A("v_mov_b32 %s, s%d" % (v(vTmp), 64 + 2 * i))
                    A("buffer_atomic_umax %s, off, %s, 0 offset:%d" % (v(vTmp), s(sDBG, 4), o))
        A("s_waitcnt vmcnt(0)")

    loop(" sc1" if "forcesc1" in opt else "")
    A("s_endpgm")
    A.label(lslow)
    nst[0] = 0
    loop(" sc1")
```

```python
from asmlib import *
from layout import *
import struct, math

L_MEM, L_KX, L_F, L_O, L_SCR, L_W = 0, 9216, 17408, 21632, 23680, 24576
FSTR = 1056
L_FLAG = L_F + 1024
L_WSTRIDE = 34816
vL16, vIdx, vWL, vFw, vOw, vPst, vRst, vSelV, vT0, vT1, vT2, vTmp = range(12)
VACC, QK, RING, LND = 12, 20, 36, 48
WREG0 = 72
KVSTEP = 32 * 16384
NSPILL = 17
sWS, sWQ, sWK, sWV, sWO, sM0, sDBG = 4, 8, 12, 16, 20, 24, 28
sCU, sW, sWC, sUnit, sStep, sBud = 32, 33, 34, 35, 36, 37
sP0, sP1, sP2, sRd, sX0, sX1, sX2, sKV, sKM, sPh, sWF, sC, sVX, sKXm = range(38, 52)
sL2a, sKVv, sKVt = 96, 97, 98
sPt = 8
sTagM = 100
sOex = 26
sFlg, sFlgN, sOne, sKF, sRdy, sRdE = 17, 18, 20, 19, 22, 24
sSel = 52
sT = 60
sStamp = 64

def f32bits(x):
    return struct.unpack("<I", struct.pack("<f", x))[0]

WO_ORDER = [0, 1, 2, 3, 4, 5, 6, 7, 8]
QK_CHAIN = [[('qk', 0, 1), ('qk', 2, 0), ('qk', 4, 0), ('qk', 6, 0), ('qk', 7, 3)],
            [('qk', 0, 2), ('qk', 2, 1), ('qk', 4, 1), ('qk', 6, 1)],
            [('qk', 0, 0), ('v', 5, 1)]]
def GOF(j, w):
    if j == 8:
        return 8
    o = 2 * (1 - (w >> 1))
    return (j & 4) + (w, w ^ 1, o, o + 1)[j & 3]
WO_CHAIN = [[('o', 0), ('o', 8), ('o', 16)], [('o', 1), ('o', 9), ('o', 17)]]
L2KEY = ('v', 5, 1)
def placement():
    spill, regs, slot, nxt = {}, {}, {}, {}
    nonreg = []
    for chains in (QK_CHAIN, WO_CHAIN):
        for si, ch in enumerate(chains):
            for i, k in enumerate(ch):
                slot[k] = si
                nxt[k] = ch[i + 1] if i + 1 < len(ch) else None
                if k != L2KEY:
                    nonreg.append(k)
    nonreg.append(L2KEY)
    assert len(nonreg) == NSPILL
    for i, k in enumerate(nonreg):
        spill[k] = i
    allk = [('qk', j, t) for j in range(9) for t in range(4)] + [('v', j, t) for j in range(9) for t in range(2)] + \
           [('o', n) for n in range(18)]
    r = WREG0
    for k in allk:
        if k not in spill:
            regs[k] = r
            r += 8
    assert r == 512, r
    return spill, regs, slot, nxt
SPILL, WREGS, SLOT, NXT = placement()

def emit_team(A, stamps=False, nsteps=64, sc="", hooks=None, opt=()):
    nst = [0]
    def stamp(fine=False):
        if stamps and fine != ("fine" in opt):
            return
        if stamps:
            if "rt" in opt and nst[0] in (2, 4):
                pass
            else:
                A("%s %s" % ("s_memrealtime" if "rt" in opt else "s_memtime", s(sStamp + 2 * nst[0], 2)))
            nst[0] += 1
    SC = " sc1"
    lane = 71
    t1, t2, t3, t4, t5, t6 = 64, 65, 66, 67, 68, 69
    vOffW, vOffO, vTrQK, vTrV, vTrO, vAd, vTr8, vAd2 = 56, 57, 58, 59, 60, 61, 62, 63
    vColQK, vColV = 54, 55
    A.c("=========== team setup ===========")
    if "tt" in opt:
        A("s_memtime s[90:91]")
        A("s_memrealtime s[64:65]")
        A("s_mov_b32 s87, 0")
        A("s_mov_b32 s88, 0")
        A("s_mov_b32 s89, 0")
    A("v_mov_b32 %s, v0" % v(lane))
    A("v_lshrrev_b32 %s, 4, %s" % (v(t2), v(lane)))
    A("v_lshlrev_b32 %s, 2, %s" % (v(t1), v(t2)))
    A("v_sub_u32 %s, %s, %s" % (v(t1), v(lane), v(t1)))
    A("v_and_b32 %s, 15, %s" % (v(t1), v(t1)))
    A("v_lshlrev_b32 %s, 4, %s" % (v(t1), v(t1)))
    A("v_lshl_add_u32 %s, %s, 13, %s" % (v(vOffW), v(t2), v(t1)))
    A("s_lshl_b32 %s, %s, 8" % (s(sT + 2), s(sCU)))
    A("s_lshl_b32 %s, %s, 17" % (s(sT + 3), s(sW)))
    A("s_add_u32 %s, %s, %s" % (s(sT + 2), s(sT + 2), s(sT + 3)))
    A("v_add_u32 %s, %s, %s" % (v(vOffW), s(sT + 2), v(vOffW)))
    A("v_lshrrev_b32 %s, 3, %s" % (v(t1), v(lane)))
    A("v_mul_u32_u24 %s, 1152, %s" % (v(vOffO), v(t1)))
    A("v_and_b32 %s, 7, %s" % (v(t1), v(lane)))
    A("v_lshl_add_u32 %s, %s, 4, %s" % (v(vOffO), v(t1), v(vOffO)))
    A("s_mul_i32 %s, %s, 147456" % (s(sT + 2), s(sCU)))
    A("s_mul_i32 %s, %s, %d" % (s(sT + 3), s(sW), 32 * 1152))
    A("s_add_u32 %s, %s, %s" % (s(sT + 2), s(sT + 2), s(sT + 3)))
    A("v_add_u32 %s, %s, %s" % (v(vOffO), s(sT + 2), v(vOffO)))
    sLW = 99
    RING0 = L_W + 14336
    A("s_mul_i32 %s, %s, %d" % (s(sLW), s(sW), L_WSTRIDE))
    wide = [(m, G) for G in range(9) for m in range(2)] + [(2, G) for G in (4, 5, 6, 7, 8, 0, 1, 2, 3)]
    chunks = []
    for i, x in enumerate(wide):
        chunks.append(x)
        if i % 5 in (1, 3) and len(chunks) - i - 1 < 9:
            chunks.append((3, len(chunks) - i - 1))
    assert len(chunks) == 36 and chunks[-3:] == [(2, 1), (2, 2), (2, 3)] and all(m != 3 for m, G in chunks[31:])
    VLAST = (1, 2, 3)
    NSLOT = 5
    NT = " nt" if "nt" in opt else ""
    TD = ([int(o[3:]) for o in opt if o.startswith("td=")] + [0])[0]
    vTch = 67
    if TD:
        A("v_bfe_u32 %s, %s, 1, 4" % (v(t1), v(lane)))
        A("v_lshlrev_b32 %s, 13, %s" % (v(53), v(t1)))
        A("v_and_b32 %s, 1, %s" % (v(t1), v(lane)))
        A("v_lshl_add_u32 %s, %s, 7, %s" % (v(53), v(t1), v(53)))
        A("s_lshl_b32 %s, %s, 8" % (s(sT + 2), s(sCU)))
        A("s_lshl_b32 %s, %s, 17" % (s(sT + 3), s(sW)))
        A("s_add_u32 %s, %s, %s" % (s(sT + 2), s(sT + 2), s(sT + 3)))
        A("v_add_u32 %s, %s, %s" % (v(11), s(sT + 2), v(53)))
    def touch_chunk(c):
        if not TD or c >= 36 or chunks[c][0] == 3:
            return
        m, G = chunks[c]
        A("s_mov_b32 %s, %d" % (s(sT + 2), 64 * G * 8192))
        A.vmem("buffer_load_dword %s, %s, %s, %s offen" % (v(71), v(11), s((sWQ, sWK, sWV)[m], 4), s(sT + 2)), 't')
    def issue_chunk(c):
        _issue(c)
        if c >= NSLOT - 1:
            if c == NSLOT - 1:
                for k in range(1, TD):
                    touch_chunk(c + k)
            touch_chunk(c + TD)
    def _issue(c):
        m, G = chunks[c]
        slot = c % NSLOT
        for j in range(4):
            A("s_add_u32 m0, %s, %d" % (s(sLW), RING0 + slot * 4096 + j * 1024))
            if m < 3:
                A("s_mov_b32 %s, %d" % (s(sT + 2), (64 * G + 4 * j) * 8192))
                A.vmem("buffer_load_dwordx4 %s, %s, %s offen%s lds" % (v(vOffW), s((sWQ, sWK, sWV)[m], 4), s(sT + 2), NT), ('c', c))
            else:
                A("s_mov_b32 %s, %d" % (s(sT + 2), 8 * j * 1152 + 128 * G))
                A.vmem("buffer_load_dwordx4 %s, %s, %s offen%s lds" % (v(vOffO), s(sWO, 4), s(sT + 2), NT), ('c', c))
    A.vm, A.lds = [], []
    for c in range(NSLOT - 1):
        issue_chunk(c)
    A("s_lshl_b32 %s, %s, 5" % (s(sT), s(sW)))
    A("s_add_u32 %s, %s, %s" % (s(sUnit), s(sT), s(sCU)))
    A("s_cmp_lt_u32 %s, 72" % s(sUnit))
    A("s_cselect_b32 %s, %s, -1" % (s(sUnit), s(sUnit)))
    if "dup" in opt:
        A("s_xor_b32 %s, %s, 16" % (s(sT), s(sCU)))
        A("s_cmp_eq_u32 %s, 3" % s(sW))
        A("s_cselect_b32 %s, %s, %s" % (s(sUnit), s(sT), s(sUnit)))
    A("v_lshlrev_b32 %s, 4, %s" % (v(vL16), v(lane)))
    A("v_and_b32 %s, 1, %s" % (v(t1), v(lane)))
    A("v_mul_u32_u24 %s, 0xaaaa, %s" % (v(t1), v(t1)))
    A("v_add_u32 %s, 0x4444, %s" % (v(vIdx), v(t1)))
    A("s_mul_i32 %s, %s, %d" % (s(sT), s(sW), L_WSTRIDE))
    A("s_add_u32 %s, %s, %d" % (s(sT), s(sT), L_W))
    A("v_add_u32 %s, %s, %s" % (v(vWL), s(sT), v(vL16)))
    A("s_add_u32 %s, %s, 32768" % (s(sVX), s(sT)))
    A("s_lshl_b32 %s, %s, 11" % (s(sKXm), s(sW)))
    A("s_add_u32 %s, %s, %d" % (s(sKXm), s(sKXm), L_KX))
    A("v_lshrrev_b32 %s, 4, %s" % (v(t2), v(lane)))
    A("v_bfe_u32 %s, %s, 2, 2" % (v(t3), v(lane)))
    A("v_and_b32 %s, 3, %s" % (v(t4), v(lane)))
    A("v_and_b32 %s, 1, %s" % (v(t1), v(t3)))
    A("v_mul_u32_u24 %s, %d, %s" % (v(vFw), FSTR, v(t1)))
    A("v_lshrrev_b32 %s, 1, %s" % (v(t1), v(t3)))
    A("v_lshl_add_u32 %s, %s, 8, %s" % (v(vFw), v(t1), v(vFw)))
    A("v_lshl_add_u32 %s, %s, 6, %s" % (v(vFw), v(t2), v(vFw)))
    A("v_lshl_add_u32 %s, %s, 2, %s" % (v(vFw), v(t4), v(vFw)))
    A("s_lshr_b32 %s, %s, 1" % (s(sT), s(sW)))
    A("s_and_b32 %s, %s, 1" % (s(sT + 1), s(sW)))
    A("s_mul_i32 %s, %s, %d" % (s(sT + 2), s(sT), 2 * FSTR))
    A("s_lshl_b32 %s, %s, 9" % (s(sT + 3), s(sT + 1)))
    A("s_add_u32 %s, %s, %s" % (s(sT + 2), s(sT + 2), s(sT + 3)))
    A("s_add_u32 %s, %s, %d" % (s(sT + 2), s(sT + 2), L_F))
    A("v_add_u32 %s, %s, %s" % (v(vFw), s(sT + 2), v(vFw)))
    A("v_and_b32 %s, 1, %s" % (v(t1), v(t4)))
    A("v_lshl_add_u32 %s, %s, 1, %s" % (v(t1), v(t3), v(t1)))
    A("v_lshlrev_b32 %s, 5, %s" % (v(t5), v(t1)))
    A("v_lshl_add_u32 %s, %s, 8, %s" % (v(t5), v(t2), v(t5)))
    A("s_lshl_b32 %s, %s, 10" % (s(sT + 2), s(sT)))
    A("s_lshl_b32 %s, %s, 4" % (s(sT + 3), s(sT + 1)))
    A("s_add_u32 %s, %s, %s" % (s(sT + 2), s(sT + 2), s(sT + 3)))
    A("s_add_u32 %s, %s, %d" % (s(sT + 2), s(sT + 2), L_O))
    A("v_add_u32 %s, %s, %s" % (v(t5), s(sT + 2), v(t5)))
    A("v_lshl_add_u32 %s, %s, 3, %s" % (v(t6), v(t2), v(t1)))
    A("v_lshlrev_b32 %s, 4, %s" % (v(t6), v(t6)))
    A("v_add_u32 %s, %d, %s" % (v(t6), L_SCR, v(t6)))
    A("v_cmp_le_u32 vcc, 2, %s" % v(t4))
    A("s_nop 1")
    A("v_cndmask_b32 %s, %s, %s, vcc" % (v(vOw), v(t6), v(t5)))
    A("v_lshrrev_b32 %s, 5, %s" % (v(t1), v(lane)))
    A("v_lshlrev_b32 %s, 12, %s" % (v(vPst), v(t1)))
    A("v_and_b32 %s, 31, %s" % (v(t1), v(lane)))
    A("v_lshl_add_u32 %s, %s, 2, %s" % (v(vPst), v(t1), v(vPst)))
    A("v_lshlrev_b32 %s, 6, %s" % (v(t5), v(t3)))
    A("v_lshl_add_u32 %s, %s, 3, %s" % (v(t5), v(t4), v(t5)))
    A("v_lshl_add_u32 %s, %s, 5, %s" % (v(t5), v(t2), v(t5)))
    A("s_lshl_b32 %s, %s, 7" % (s(sT + 2), s(sUnit)))
    A("s_and_b32 %s, %s, 0x3fff" % (s(sT + 2), s(sT + 2)))
    A("v_add_u32 %s, %s, %s" % (v(t5), s(sT + 2), v(t5)))
    A("v_and_b32 %s, 0x28, %s" % (v(t1), v(lane)))
    A("v_mov_b32 %s, 0x%x" % (v(t6), OOB))
    A("v_cmp_eq_u32 vcc, 0, %s" % v(t1))
    A("s_nop 1")
    A("v_cndmask_b32 %s, %s, %s, vcc" % (v(vRst), v(t6), v(t5)))
    A("s_mov_b32 %s, 0x11111111" % s(sTagM))
    A("s_mov_b32 %s, 0x11111111" % s(sTagM + 1))
    A("v_and_b32 %s, 1, %s" % (v(t1), v(t3)))
    A("v_lshlrev_b32 %s, 4, %s" % (v(t1), v(t1)))
    A("v_mov_b32 %s, 0x3f80" % v(t5))
    A("v_lshlrev_b32 %s, %s, %s" % (v(vSelV), v(t1), v(t5)))
    for u in range(4):
        m16 = (1 << u) | (1 << (u + 4))
        m32 = m16 | (m16 << 16)
        A("s_mov_b32 %s, 0x%x" % (s(sSel + 2 * u), m32))
        A("s_mov_b32 %s, 0x%x" % (s(sSel + 2 * u + 1), m32))
    A("s_lshl_b32 %s, %s, 10" % (s(sT + 2), s(sW)))
    A("v_add_u32 %s, %s, %s" % (v(vT0), s(sT + 2), v(vL16)))
    A("v_xor_b32 %s, 0x400, %s" % (v(vT1), v(vT0)))
    A("s_and_b32 %s, %s, 0x800" % (s(sT + 2), s(sT + 2)))
    A("s_xor_b32 %s, %s, 0x800" % (s(sT + 2), s(sT + 2)))
    A("v_add_u32 %s, %s, %s" % (v(vT2), s(sT + 2), v(vL16)))
    A("s_mov_b32 %s, 0" % s(sStep))
    A("s_mov_b32 %s, 0" % s(sPh))
    A("s_mov_b32 %s, %d" % (s(sBud), 200000 if "tt" in opt or "stamps" in opt else 2000000))
    A("s_lshl_b32 %s, %s, 7" % (s(sT + 3), s(sCU)))
    A("s_add_u32 %s, %s, %d" % (s(sT + 3), s(sT + 3), WS_PB))
    A("s_lshl_b32 %s, %s, 13" % (s(sT + 2), s(sW)))
    A("s_add_u32 %s, %s, %s" % (s(sP0), s(sT + 2), s(sT + 3)))
    A("s_lshl_b32 %s, %s, 12" % (s(sT + 2), s(sUnit)))
    A("s_add_u32 %s, %s, %d" % (s(sRd), s(sT + 2), WS_PB))
    A("s_cmp_eq_u32 %s, -1" % s(sUnit))
    A("s_cselect_b32 %s, 0x%x, %s" % (s(sRd), OOB, s(sRd)))
    A("s_cselect_b32 %s, 0x%x, 0" % (s(sT + 2), OOB))
    A("v_or_b32 %s, %s, %s" % (v(vRst), s(sT + 2), v(vRst)))
    for i, r in enumerate((sX0, sX1, sX2)):
        A("s_mov_b32 %s, %d" % (s(r), WS_MBX + i * MBX_STRIDE))
    A("s_lshl_b32 %s, %s, 14" % (s(sKV), s(sCU)))
    A("s_lshl_b32 %s, %s, 11" % (s(sT + 2), s(sW)))
    A("s_add_u32 %s, %s, %s" % (s(sKV), s(sKV), s(sT + 2)))
    A("s_add_u32 %s, %s, %d" % (s(sKVv), s(sKV), WS_KV + 8192))
    A("s_lshl_b32 %s, %s, 14" % (s(sKVt), s(sCU)))
    A("s_add_u32 %s, %s, %d" % (s(sKVt), s(sKVt), WS_KV + 1 * KVSTEP))
    A("s_cmp_lt_u32 %s, 3" % s(sW))
    A("s_cselect_b32 %s, 0x%x, %s" % (s(sKVt), OOB, s(sKVt)))
    if WS_KV:
        A("s_add_u32 %s, %s, %d" % (s(sKV), s(sKV), WS_KV))
    A("s_lshl_b32 %s, %s, 12" % (s(sKM), s(sCU)))
    A("s_lshl_b32 %s, %s, 10" % (s(sT + 2), s(sW)))
    A("s_add_u32 %s, %s, %s" % (s(sKM), s(sKM), s(sT + 2)))
    A("s_add_u32 %s, %s, %d" % (s(sKM), s(sKM), WS_KM))
    A("s_lshl_b32 %s, %s, 2" % (s(sT + 2), s(sCU)))
    A("s_add_u32 %s, %s, %s" % (s(sT + 2), s(sT + 2), s(sW)))
    A("s_mul_i32 %s, %s, %d" % (s(sWF), s(sT + 2), 18 * 2048))
    A("s_add_u32 %s, %s, %d" % (s(sWF), s(sWF), WS_WF))
    A("s_add_u32 %s, %s, %d" % (s(sL2a), s(sWF), 16 * 2048))
    A("s_mov_b32 %s, 0x%x" % (s(sC), f32bits(128 ** -0.5 * math.log2(math.e))))

    A("s_lshl_b32 %s, %s, 2" % (s(sT + 2), s(sW)))
    A("v_add_u32 %s, %s, %s" % (v(vColQK), s(sT + 2), v(t4)))
    A("s_lshl_b32 %s, %s, 3" % (s(sT + 2), s(sT)))
    A("s_add_u32 %s, %s, %s" % (s(sT + 2), s(sT + 2), s(sT + 1)))
    A("v_lshl_add_u32 %s, %s, 1, %s" % (v(vColV), v(t4), s(sT + 2)))
    A("v_and_b32 %s, 1, %s" % (v(t5), v(t2)))
    A("v_lshlrev_b32 %s, 2, %s" % (v(t5), v(t5)))
    A("v_lshrrev_b32 %s, 1, %s" % (v(t6), v(t3)))
    A("v_lshl_add_u32 %s, %s, 3, %s" % (v(t5), v(t6), v(t5)))
    A("v_and_b32 %s, 1, %s" % (v(t6), v(t3)))
    A("v_add_u32 %s, %s, %s" % (v(t5), v(t5), v(t6)))
    A("v_lshrrev_b32 %s, 1, %s" % (v(t1), v(t2)))
    A("v_lshl_add_u32 %s, %s, 4, %s" % (v(vTrO), v(t1), v(t5)))
    A("v_lshlrev_b32 %s, 7, %s" % (v(vTrO), v(vTrO)))
    A("v_lshl_add_u32 %s, %s, 3, %s" % (v(vTrO), v(t4), v(vTrO)))
    A("s_lshl_b32 %s, %s, 5" % (s(sT + 2), s(sW)))
    A("s_add_u32 %s, %s, %d" % (s(sT + 2), s(sT + 2), RING0))
    A("v_add_u32 %s, %s, %s" % (v(vTrO), s(sT + 2), v(vTrO)))
    A("v_mul_u32_u24 %s, %d, %s" % (v(t1), L_WSTRIDE, v(t1)))
    A("v_lshl_add_u32 %s, %s, 8, %s" % (v(t1), v(t5), v(t1)))
    A("v_add_u32 %s, %d, %s" % (v(t1), RING0, v(t1)))
    for col in (vColQK, vColV):
        A("v_lshl_add_u32 %s, %s, 2, %s" % (v(col), v(t6), v(col)))
        A("v_and_b32 %s, 15, %s" % (v(col), v(col)))
        A("v_lshl_add_u32 %s, %s, 4, %s" % (v(col), v(col), v(t1)))
    AD = [58, 59, 61, 62]
    ADO = [vTrO, 63, 69, 70]
    def addr_wo():
        for i in range(1, 4):
            A("v_add_u32 %s, %d, %s" % (v(ADO[i]), i * L_WSTRIDE, v(vTrO)))
    def addr_wide(col):
        A("v_mov_b32 %s, %s" % (v(AD[0]), v(col)))
        A("v_xor_b32 %s, 0x80, %s" % (v(AD[1]), v(col)))
        A("v_add_u32 %s, %d, %s" % (v(AD[2]), 2 * L_WSTRIDE, v(AD[0])))
        A("v_add_u32 %s, %d, %s" % (v(AD[3]), 2 * L_WSTRIDE, v(AD[1])))
    TMPF = [12, 20]
    tmpi = [0]
    park = {}
    def get_frag(key, addrs, imms):
        out = None
        if key in WREGS:
            r = WREGS[key]
        elif SPILL[key] in park:
            r = park[SPILL[key]]
        else:
            r = TMPF[tmpi[0] % 2]
            tmpi[0] += 1
            out = (r, SPILL[key])
        for q in range(4):
            A.ds("ds_read_b64_tr_b16 %s, %s offset:%d" % (R(r + 2 * q, 2), v(addrs[q]), imms[q]))
        return out
    def put(r, idx):
        if idx < 16:
            for hh in range(2):
                A.ds("ds_write_b128 %s, %s offset:%d" % (v(vWL), R(r + 4 * hh, 4), idx * 2048 + hh * 1024))
        else:
            for hh in range(2):
                A.vmem("buffer_store_dwordx4 %s, %s, %s, %s offen offset:%d" % (v(r + 4 * hh, 4), v(vL16), s(sWS, 4), s(sL2a), 1024 * hh), 'sp')

    A("v_lshl_add_u32 %s, %s, 1, %s" % (v(t5), v(t3), v(t2)))
    A("v_mul_u32_u24 %s, 1152, %s" % (v(t5), v(t5)))
    A("v_lshl_add_u32 %s, %s, 3, %s" % (v(t5), v(t4), v(t5)))
    A("s_and_b32 %s, %s, 1" % (s(sT + 2), s(sUnit)))
    A("s_mul_i32 %s, %s, 4608" % (s(sT + 2), s(sT + 2)))
    A("s_bfe_u32 %s, %s, 0x60001" % (s(sT + 3), s(sUnit)))
    A("s_lshl_b32 %s, %s, 5" % (s(sT + 3), s(sT + 3)))
    A("s_add_u32 %s, %s, %s" % (s(sT + 2), s(sT + 2), s(sT + 3)))
    A.vmem("buffer_load_dwordx2 %s, %s, %s, %s offen" % (v(52, 2), v(t5), s(sM0, 4), s(sT + 2)), 'm0')
    for i in range(4):
        A("v_mov_b32 %s, -1" % v(64 + i))
    for i in range(4):
        A.vmem("buffer_store_dwordx4 %s, %s, %s, %s offen offset:%d%s" % (v(64, 4), v(vL16), s(sWS, 4), s(sRd), 1024 * i, SC), 'mb')
    for so in (sX1, sX2):
        A.vmem("buffer_store_dwordx2 %s, %s, %s, %s offen%s" % (v(64, 2), v(vRst), s(sWS, 4), s(so), SC), 'mb')
    vm0 = list(A.vm)
    ljoin = A.new("initjoin")
    lcls = [A.new("cls%d" % i) for i in range(4)]
    for i in (1, 2, 3):
        A("s_cmp_eq_u32 %s, %d" % (s(sW), i))
        A("s_cbranch_scc1 %s" % lcls[i])
    for wc in range(4):
        A.label(lcls[wc])
        A.vm, A.lds = list(vm0), []
        tmpi[0] = 0
        pos = [GOF(jj, wc) for jj in range(9)]
        park.clear()
        park.update({15: 28, 7: 36, 8: 44})
        for i, G in enumerate(VLAST):
            for t in range(2):
                park[9 + 2 * i + t] = WREGS[('v', pos.index(G), t)]
        flush = {32: (9, 10), 33: (11, 12), 34: (13, 14), 35: (15,)}
        for c in range(36):
            m, G = chunks[c]
            if c == 0:
                addr_wo()
                addr_wide(vColQK)
            if chunks[c] == (2, 4):
                addr_wide(vColV)
            A.wait_vm(('c', c))
            A("s_barrier")
            if c + NSLOT - 1 < 36:
                issue_chunk(c + NSLOT - 1)
            if c == NSLOT:
                A.vmem("buffer_store_dwordx2 %s, %s, %s, %s offen%s" % (v(52, 2), v(vRst), s(sWS, 4), s(sX0), SC), 'mb')
            if c == 20 and wc == 0:
                A("s_mov_b64 exec, 1")
                A("s_lshl_b32 %s, 1, s3" % s(sT + 2))
                A("s_lshl_b32 %s, %s, 8" % (s(sT + 2), s(sT + 2)))
                A("v_mov_b32 %s, %s" % (v(52), s(sT + 2)))
                A("v_mov_b32 %s, 1" % v(53))
                A.vmem("buffer_atomic_or %s, off, %s, 0 offset:%d" % (v(52), s(sDBG, 4), DBG_TEAM), 'at')
                A.vmem("buffer_atomic_add %s, off, %s, 0 offset:%d" % (v(53), s(sDBG, 4), DBG_TEAM), 'at')
                A("s_mov_b64 exec, -1")
            if "mega" in opt and c == 24:
                A.vmem("buffer_load_dword %s, off, %s, 0 offset:%d sc1" % (v(64), s(sDBG, 4), DBG_MOD), 'e')
            if "mega" in opt and c == 34:
                A("v_lshrrev_b32 %s, 2, %s" % (v(65), v(vL16)))
                A("s_lshl_b32 %s, %s, 8" % (s(sT + 2), s(sCU)))
                A("s_add_u32 %s, %s, %d" % (s(sT + 2), s(sT + 2), FL_KV))
                A.vmem("buffer_load_dword %s, %s, %s, %s offen sc1" % (v(65), v(65), s(sWS, 4), s(sT + 2)), 'e')
                A.vmem("buffer_load_dword %s, off, %s, 0 offset:%d sc1" % (v(66), s(sDBG, 4), DBG_TEAM), 'e')
            for idx in flush.get(c, ()):
                put(park[idx], idx)
            so = (c % NSLOT) * 4096
            sp = []
            if m == 3:
                for c2 in range(2):
                    sp.append(get_frag(('o', 2 * G + c2), [ADO[2 * c2 + (q >> 1)] for q in range(4)], [so + 2 * (q & 1) * 128 for q in range(4)]))
            else:
                j = pos.index(G)
                for t in range(2):
                    key = ('qk', j, 2 * m + t) if m < 2 else ('v', j, t)
                    sp.append(get_frag(key, AD, [so + 2 * (q & 1) * 256 + 8 * t for q in range(4)]))
            A.wait_ds()
            for x in sp:
                if x:
                    put(*x)
        A("s_barrier")
        put(park[7], 7)
        put(park[8], 8)
        if wc < 3:
            A("s_branch %s" % ljoin)
    A.label(ljoin)
    ROT = ([int(o[4:]) for o in opt if o.startswith("rot=")] + [0])[0]
    ROTW = ([int(o[5:]) for o in opt if o.startswith("rotw=")] + [0])[0]
    for G in range(9):
        if ROT or ROTW:
            A("s_mul_i32 %s, %s, %d" % (s(sT + 2), s(sW), ROTW))
            A("s_add_u32 %s, %s, %s" % (s(sT + 2), s(sT + 2), s(sCU)))
            A("s_add_u32 %s, %s, %d" % (s(sT + 2), s(sT + 2), ROT * G))
            A("s_and_b32 %s, %s, 31" % (s(sT + 2), s(sT + 2)))
            A("s_sub_u32 %s, %s, %s" % (s(sT + 2), s(sT + 2), s(sCU)))
            A("s_lshl_b32 %s, %s, 7" % (s(sT + 2), s(sT + 2)))
            A("s_add_u32 %s, %s, %s" % (s(sPt + G), s(sP0), s(sT + 2)))
            A("s_add_u32 %s, %s, %d" % (s(sPt + G), s(sPt + G), G * 32768))
        else:
            A("s_add_u32 %s, %s, %d" % (s(sPt + G), s(sP0), G * 32768))
    A("s_lshl_b32 %s, %s, 7" % (s(sFlg), s(sCU)))
    A("s_add_u32 %s, %s, %d" % (s(sFlg), s(sFlg), FL_PUB - 4096))
    A("s_cmp_eq_u32 %s, %d" % (s(sW), 3 if "mega" in opt else 7))
    A("s_cselect_b32 %s, %s, 0x%x" % (s(sFlg), s(sFlg), OOB))
    A("s_mov_b64 %s, 1" % s(sOne, 2))
    A("s_mov_b32 %s, 0xcccccccc" % s(sOex))
    A("s_mov_b32 %s, 0xcccccccc" % s(sOex + 1))
    A("s_lshl_b32 %s, %s, 8" % (s(sFlgN), s(sW)))
    A("s_add_u32 %s, %s, %d" % (s(sFlgN), s(sFlgN), L_MEM + 8192))
    A("s_cmp_lt_u32 %s, 32" % s(sUnit))
    A("s_cselect_b32 %s, %s, 0x%x" % (s(sRdE), s(sRd), OOB))
    A("s_lshl_b32 %s, %s, 8" % (s(sKF), s(sCU)))
    A("s_add_u32 %s, %s, %d" % (s(sKF), s(sKF), FL_KV))
    A("v_mov_b32 %s, %d" % (v(12), L_FLAG))
    A("v_mov_b32 %s, 0" % v(13))
    A("ds_write_b32 %s, %s" % (v(12), v(13)))
    A("s_waitcnt vmcnt(0) lgkmcnt(0)")
    A.vm, A.lds = [], []

    def kv_dma():
        return ["s_mov_b32 m0, %s" % s(sKXm),
                "buffer_load_dwordx4 %s, %s, %s offen sc1 lds" % (v(vL16), s(sWS, 4), s(sKV)),
                "buffer_load_dwordx4 %s, %s, %s offen offset:1024 sc1 lds" % (v(vL16), s(sWS, 4), s(sKV)),
                "s_mov_b32 m0, %s" % s(sVX),
                "buffer_load_dwordx4 %s, %s, %s offen sc1 lds" % (v(vL16), s(sWS, 4), s(sKVv)),
                "buffer_load_dwordx4 %s, %s, %s offen offset:1024 sc1 lds" % (v(vL16), s(sWS, 4), s(sKVv))]
    def land(key, half=None):
        sp = SPILL[key]
        for hh in ((0, 1) if half is None else (half,)):
            if sp < 16:
                A.ds("ds_read_b128 %s, %s offset:%d" % (v(LND + 8 * SLOT[key] + 4 * hh, 4), v(vWL), sp * 2048 + 1024 * hh), key)
            else:
                A.vmem("buffer_load_dwordx4 %s, %s, %s, %s offen offset:%d" % (v(LND + 8 * SLOT[key] + 4 * hh, 4), v(vL16), s(sWS, 4), s(sL2a), 1024 * hh), key)
    def zero(lo, hi):
        for r in range(lo, hi, 2):
            A("v_mov_b64 %s, 0" % v(r, 2))
    KVINC = 0 if "samekv" in opt else KVSTEP
    NDMA = "ndma" in opt
    def kv_all():
        for i in range(2):
            A("s_mov_b32 m0, %d" % (L_KX + 4096 * i))
            A("s_add_u32 %s, %s, %d" % (s(sT + 2), s(sKV), 4096 * i))
            for j in range(4):
                A("buffer_load_dwordx4 %s, %s, %s offen offset:%d sc1 lds" % (v(vL16), s(sWS, 4), s(sT + 2), 1024 * j))
        for i in range(4):
            A("s_mov_b32 m0, %d" % (L_W + i * L_WSTRIDE + 32768))
            A("s_add_u32 %s, %s, %d" % (s(sT + 2), s(sKV), 8192 + 2048 * i))
            for j in range(2):
                A("buffer_load_dwordx4 %s, %s, %s offen offset:%d sc1 lds" % (v(vL16), s(sWS, 4), s(sT + 2), 1024 * j))
    def kv_refresh(lback):
        lp = A.new("kvr")
        A.label(lp)
        A("v_lshrrev_b32 %s, 2, %s" % (v(vTmp), v(vL16)))
        A("buffer_load_dword %s, %s, %s, %s offen sc1" % (v(vTmp), v(vTmp), s(sWS, 4), s(sKF)))
        A("s_waitcnt vmcnt(0)")
        A("v_cmp_ne_u32 %s, 0, %s" % (s(sRdy, 2), v(vTmp)))
        A("s_nop 3")
        A("s_bitcmp1_b64 %s, %s" % (s(sRdy, 2), s(sStep)))
        A("s_cbranch_scc1 %s" % lback)
        A("s_sub_u32 %s, %s, 1" % (s(sBud), s(sBud)))
        A("s_cbranch_scc0 %s" % lp)
        A("s_mov_b32 %s, 0" % s(sBud))
        A("s_branch %s" % lback)
    if "tt" in opt:
        A("s_memrealtime s[66:67]")
    lfast = A.new("fast0")
    if "mega" in opt:
        lsl = A.new("slow0")
        A("v_readfirstlane_b32 %s, %s" % (s(sT + 1), v(64)))
        A("v_readfirstlane_b32 %s, %s" % (s(sT), v(66)))
        A("v_cmp_ne_u32 %s, 0, %s" % (s(sRdy, 2), v(65)))
        A("s_nop 3")
        lk, lt = A.new("needkv"), A.new("needteam")
        A("s_cmp_eq_u32 %s, 0" % s(sT + 1))
        A("s_cbranch_scc1 %s" % lsl)
        A("s_bitcmp1_b32 %s, 0" % s(sRdy))
        A("s_cbranch_scc1 %s" % lt)
        A("s_branch %s" % lk)
        A.label(lsl)
        hooks['kv_wait0'](A)
        A.label(lk)
        kv_refresh(lt)
        A.label(lt)
        A("s_bitcmp1_b32 %s, 5" % s(sT))
        A("s_cbranch_scc1 %s" % lfast)
    lp = A.new("tb")
    A.label(lp)
    A("buffer_load_dword %s, off, %s, 0 offset:%d sc1" % (v(vTmp), s(sDBG, 4), DBG_TEAM))
    A("s_waitcnt vmcnt(0)")
    A("v_readfirstlane_b32 %s, %s" % (s(sT), v(vTmp)))
    A("s_nop 3")
    A("s_bitcmp1_b32 %s, 5" % s(sT))
    A("s_cbranch_scc1 %s" % lfast)
    A("s_sub_u32 %s, %s, 1" % (s(sBud), s(sBud)))
    A("s_cbranch_scc0 %s" % lp)
    A("s_mov_b32 %s, 0" % s(sBud))
    A.label(lfast)
    if "mega" in opt:
        A("s_cmp_lt_u32 %s, 3" % s(sW))
        A("s_cselect_b64 %s, -1, %s" % (s(sRdy, 2), s(sRdy, 2)))
    if "tt" in opt:
        A("s_memrealtime s[68:69]")
    if "vn" in opt:
        for x in kv_dma()[3:]:
            A(x)
            A("s_nop 0")
        A("s_add_u32 %s, %s, %d" % (s(sKVv), s(sKVv), KVSTEP))
    for ch in QK_CHAIN:
        land(ch[0])
    zero(VACC, RING)
    A("s_waitcnt lgkmcnt(0)")
    A("s_lshr_b32 %s, %s, 8" % (s(sT), s(sT)))
    A("s_bcnt1_i32_b32 %s, %s" % (s(sT), s(sT)))
    lslow = A.new("slow")
    A("s_cmp_lg_u32 %s, 1" % s(sT))
    A("s_cbranch_scc1 %s" % lslow)
    def loop(SC):
        lentry, lexit = A.new("entry"), A.new("exit")
        lok1, lnored, lb4 = A.new("ok1"), A.new("nored"), A.new("b4")
        ls1, ls1w, l1a = A.new("s1"), A.new("s1w"), A.new("p1a")
        ls1r, ls2r, ls2ok, ls3r, ls3ok, l1r = A.new("s1r"), A.new("s2r"), A.new("s2ok"), A.new("s3r"), A.new("s3ok"), A.new("p1r")
        A("s_branch %s" % ls1)

        def SM(acc, afr, breg):
            A("v_smfmac_f32_16x16x64_bf16 %s, %s, %s, %s" % (v(acc, 4), v(afr, 4), breg, v(vIdx)))
        def MF(d, a_, b_, c_):
            A("v_mfma_f32_16x16x32_bf16 %s, %s, %s, %s" % (v(d, 4), v(a_, 4), v(b_, 4), c_))
        def fragaddr(j):
            if j == 8:
                return vL16, 8192
            return (vT0, vT1, vT2, vT2)[j & 3], (j & 4) * 1024 + (1024 if (j & 3) == 3 else 0)
        def ringrd(j, slot):
            b, o = fragaddr(j)
            A.ds("ds_read_b128 %s, %s offset:%d" % (v(RING + 4 * slot, 4), v(b), L_MEM + o), ('ring', j))
        def mbload(dst, j):
            if j == 8:
                A("buffer_load_dwordx4 %s, %s, %s, %s offen sc1" % (v(dst, 4), v(vL16), s(sWS, 4), s(sX8)))
            else:
                A("buffer_load_dwordx4 %s, %s, %s, %s offen sc1" % (v(dst, 4), v(fragaddr(j)[0]), s(sWS, 4), s(sX4 if j & 4 else sX0)))
        def check(base, n):
            A("v_max3_u32 %s, %s, %s, %s" % (v(vTmp), v(base), v(base + 1), v(base + 2)))
            for i in range(3, n - 1, 2):
                A("v_max3_u32 %s, %s, %s, %s" % (v(vTmp), v(vTmp), v(base + i), v(base + i + 1)))
            A("v_max_u32 %s, %s, %s" % (v(vTmp), v(vTmp), v(base + n - 1)))
            A("v_cmp_eq_u32 vcc, -1, %s" % v(vTmp))
        def budget(lagain, lgiveup):
            A("s_sub_u32 %s, %s, 1" % (s(sBud), s(sBud)))
            A("s_cbranch_scc0 %s" % lagain)
            A("s_mov_b32 %s, 0" % s(sBud))
            A("s_branch %s" % lgiveup)
        PLA = [12, 16, 20, 24]
        RACC, SEL = 28, 32
        def poll1_issue(PL, so=sRd, which=range(4)):
            for i in which:
                A("buffer_load_dwordx4 %s, %s, %s, %s offen offset:%d sc1" % (v(PL[i], 4), v(vL16), s(sWS, 4), s(so), 1024 * i))
        def wait_many(keys):
            idx = [i for i, t in enumerate(A.lds) if t in keys]
            if idx:
                A.wait_ds(A.lds[idx[-1]])
        def endstep():
            for ch in QK_CHAIN:
                land(ch[0])
            A("s_mov_b32 %s, %s" % (s(sT), s(sX0)))
            A("s_mov_b32 %s, %s" % (s(sX0), s(sX1)))
            A("s_mov_b32 %s, %s" % (s(sX1), s(sX2)))
            A("s_mov_b32 %s, %s" % (s(sX2), s(sT)))
        PUB = "" if "pubplain" in opt else " sc1"
        def optval(name, dflt):
            for o in opt:
                if o.startswith(name + "="):
                    return int(o.split("=")[1])
            return dflt
        LWAIT, S1DEPTH = optval("lwait", 2), optval("s1d", 2)
        sX4, sX8 = sP1, sP2
        F8 = RING + 4
        PLB = [LND, LND + 4, LND + 8, LND + 12]
        def reduce_body(PL, n_after):
            if "prog" in opt:
                A("s_waitcnt vmcnt(%d)" % (n_after + 3))
                MF(RACC, SEL, PL[0], "0")
                A("s_waitcnt vmcnt(%d)" % (n_after + 2))
                MF(RACC, SEL, PL[1], v(RACC, 4))
                A("v_bitop3_b32 %s, %s, %s, %s bitop3:0x7e" % (v(vTmp), v(PL[0]), v(PL[1]), s(sPh)))
                A("s_waitcnt vmcnt(%d)" % (n_after + 1))
                MF(RACC, SEL, PL[2], v(RACC, 4))
                A("s_waitcnt vmcnt(%d)" % n_after)
                MF(RACC, SEL, PL[3], v(RACC, 4))
                A("v_bitop3_b32 %s, %s, %s, %s bitop3:0x7e" % (v(45), v(PL[2]), v(PL[3]), s(sPh)))
                A("v_bitop3_b32 %s, %s, %s, 1 bitop3:0xa8" % (v(vTmp), v(vTmp), v(45)))
                A("v_cmp_ne_u32 vcc, 0, %s" % v(vTmp))
                return
            A("s_waitcnt vmcnt(%d)" % n_after)
            MF(RACC, SEL, PL[0], "0")
            A("v_bitop3_b32 %s, %s, %s, %s bitop3:0x7e" % (v(vTmp), v(PL[0]), v(PL[1]), s(sPh)))
            A("v_bitop3_b32 %s, %s, %s, %s bitop3:0x7e" % (v(45), v(PL[2]), v(PL[3]), s(sPh)))
            MF(RACC, SEL, PL[1], v(RACC, 4))
            A("v_bitop3_b32 %s, %s, %s, 1 bitop3:0xa8" % (v(vTmp), v(vTmp), v(45)))
            A("v_cmp_ne_u32 vcc, 0, %s" % v(vTmp))
            MF(RACC, SEL, PL[2], v(RACC, 4))
            MF(RACC, SEL, PL[3], v(RACC, 4))
        def mksel():
            for u in range(4):
                A("v_cndmask_b32 %s, 0, %s, %s" % (v(SEL + u), v(vSelV), s(sSel + 2 * u, 2)))
        def s1load(base):
            mbload(base, 0)
            mbload(base + 4, 1)
        def rotate():
            A("s_mov_b32 %s, %s" % (s(sT), s(sX0)))
            A("s_mov_b32 %s, %s" % (s(sX0), s(sX1)))
            A("s_mov_b32 %s, %s" % (s(sX1), s(sX2)))
            A("s_mov_b32 %s, %s" % (s(sX2), s(sT)))
            A("s_add_u32 %s, %s, 4096" % (s(sX4), s(sX0)))
            A("s_add_u32 %s, %s, 8192" % (s(sX8), s(sX0)))
            A("s_mov_b32 m0, %s" % s(sFlgN))
        lgo1 = A.new("go1")
        lkvr, lkvok = A.new("kvrf"), A.new("kvok")
        if "mega" in opt:
            A.label(lkvr)
            kv_refresh(lkvok)
        A.label(lnored)
        A("s_cmp_eq_u32 %s, -1" % s(sUnit))
        A("s_cbranch_scc1 %s_n" % lnored)
        A("s_waitcnt vmcnt(%d)" % LWAIT)
        A("s_branch %s" % lgo1)
        A.label(lnored + "_n")
        if "ps" in opt:
            A("s_memtime s[72:73]")
            A("s_memrealtime s[74:75]")
            A("s_lshl_b32 %s, %s, 9" % (s(sT), s(sCU)))
            A("s_lshl_b32 %s, %s, 3" % (s(sT + 1), s(sStep)))
            A("s_add_u32 %s, %s, %s" % (s(sT), s(sT), s(sT + 1)))
            A("s_add_u32 %s, %s, %d" % (s(sT), s(sT), WS_DBG + (7 << 17)))
            A("s_waitcnt lgkmcnt(0)")
            A("v_mov_b32 v46, s72")
            A("v_mov_b32 v47, s74")
            A("s_mov_b64 exec, 1")
            A("buffer_store_dwordx2 v[46:47], off, %s, %s" % (s(sWS, 4), s(sT)))
            A("s_mov_b64 exec, -1")
        rotate()
        for i in range(0, 8, 2):
            A("v_mov_b64 %s, -1" % v(RING + i, 2))
        if NDMA:
            l3 = A.new("n3l")
            A("s_cmp_lg_u32 %s, 3" % s(sW))
            A("s_cbranch_scc1 %s" % l3)
            kv_all()
            A.label(l3)
        if "mega" in opt:
            lfull = A.new("full")
            A("s_add_u32 %s, %s, 1" % (s(sT + 1), s(sStep)))
            A("s_bitcmp1_b64 %s, %s" % (s(sRdy, 2), s(sT + 1)))
            A("s_cbranch_scc1 %s" % lfull)
            A("v_lshrrev_b32 %s, 2, %s" % (v(vTmp), v(vL16)))
            A("buffer_load_dword %s, %s, %s, %s offen sc1" % (v(vTmp), v(vTmp), s(sWS, 4), s(sKF)))
            A("s_waitcnt vmcnt(0)")
            A("v_cmp_ne_u32 %s, 0, %s" % (s(sRdy, 2), v(vTmp)))
            A.label(lfull)
        if "noflag" in opt:
            A("s_waitcnt vmcnt(0)")
        else:
            lf = A.new("flag")
            A("v_mov_b32 %s, %d" % (v(46), L_FLAG))
            A.label(lf)
            A("ds_read_b32 %s, %s" % (v(vTmp), v(46)))
            A("s_waitcnt lgkmcnt(0)")
            A("v_cmp_eq_u32 vcc, %s, %s" % (s(sStep), v(vTmp)))
            A("s_cbranch_vccnz %s" % lb4)
            budget(lf, lb4)
        A("s_branch %s" % lb4)
        X2 = LND + 16
        def f8load():
            A("buffer_load_dword %s, %s, %s offen sc1 lds" % (v(X2 + 5), s(sWS, 4), s(sX8)))
        def s2check():
            check(X2, 4)
        A.label(ls2r)
        if "tt" in opt:
            A("s_add_u32 s88, s88, 1")
        mbload(X2, 4)
        A("s_waitcnt vmcnt(1)")
        s2check()
        A("s_cbranch_vccz %s_d" % ls2r)
        budget(ls2r, ls2r + "_d")
        A.label(ls2r + "_d")
        A("s_waitcnt vmcnt(0)")
        A("s_branch %s" % ls2ok)
        A.label(ls3r)
        if "tt" in opt:
            A("s_add_u32 s89, s89, 1")
        mbload(RING + 4, 8)
        A("s_waitcnt vmcnt(0)")
        A("v_max3_u32 %s, %s, %s, %s" % (v(LND + 4), v(RING + 4), v(RING + 5), v(RING + 6)))
        A("v_max_u32 %s, %s, %s" % (v(LND + 4), v(LND + 4), v(RING + 7)))
        A("v_cmp_eq_u32 vcc, -1, %s" % v(LND + 4))
        A("s_cbranch_vccz %s" % ls3ok)
        budget(ls3r, ls3ok)
        A.label(ls1)
        A("s_add_u32 %s, %s, 4096" % (s(sX4), s(sX0)))
        A("s_add_u32 %s, %s, 8192" % (s(sX8), s(sX0)))
        A("s_mov_b32 m0, %s" % s(sFlgN))
        s1load(RING)
        A("s_waitcnt vmcnt(0)")
        A("s_branch %s" % ls1w)
        A(".p2align 6")
        for i in range(optval("shift", 0)):
            A("s_nop 0")
        A.label(ls1r)
        if "mask" in opt:
            A("s_mov_b64 exec, vcc")
        s1load(RING)
        if "mask" in opt:
            A("s_mov_b64 exec, -1")
        A("s_sub_u32 %s, %s, 1" % (s(sBud), s(sBud)))
        A("s_cbranch_scc1 %s_give" % ls1r)
        if "sc2" in opt:
            A("s_waitcnt vmcnt(%d)" % (S1DEPTH + 1))
            A.label(ls1w)
            A("v_max3_u32 %s, %s, %s, %s" % (v(vTmp), v(RING), v(RING + 1), v(RING + 2)))
            A("s_waitcnt vmcnt(%d)" % S1DEPTH)
            A("v_max3_u32 %s, %s, %s, %s" % (v(46), v(RING + 4), v(RING + 5), v(RING + 6)))
            A("v_max3_u32 %s, %s, %s, %s" % (v(vTmp), v(vTmp), v(RING + 3), v(RING + 7)))
            A("v_max_u32 %s, %s, %s" % (v(vTmp), v(vTmp), v(46)))
            A("v_cmp_eq_u32 vcc, -1, %s" % v(vTmp))
        else:
            A("s_waitcnt vmcnt(%d)" % S1DEPTH)
            A.label(ls1w)
            check(RING, 8)
        A("s_cbranch_vccnz %s" % ls1r)
        A.label(lentry)
        A.lds, A.vm = [], []
        if "tt" in opt:
            lt = A.new("tt")
            A("s_cmp_lg_u32 %s, 3" % s(sStep))
            A("s_cbranch_scc1 %s" % lt)
            A("s_memtime s[92:93]")
            A.label(lt)
        if stamps and "rt" in opt:
            lq = A.new("q")
            A("s_memrealtime %s" % s(sStamp + 18, 2))
            A("s_cmp_lg_u32 %s, 41" % s(sStep))
            A("s_cbranch_scc1 %s" % lq)
            A("s_waitcnt lgkmcnt(0)")
            for i in range(10):
                A("v_writelane_b32 %s, %s, %d" % (v(vTmp), s(sStamp + 2 * i), i))
            A("s_lshl_b32 %s, %s, 2" % (s(sT), s(sCU)))
            A("s_add_u32 %s, %s, %s" % (s(sT), s(sT), s(sW)))
            A("s_lshl_b32 %s, %s, 11" % (s(sT), s(sT)))
            A("s_add_u32 %s, %s, %d" % (s(sT), s(sT), WS_DBG))
            A("buffer_store_dword %s, %s, %s, %s offen" % (v(vTmp), v(vL16), s(sWS, 4), s(sT)))
            A.label(lq)
        stamp()
        KXR = {(0, 0): LND, (0, 1): LND + 4, (0, 2): LND + 8, (0, 3): LND + 12, (1, 0): LND + 16, (1, 1): LND + 20, (1, 2): LND, (1, 3): LND + 4}
        def kxrd(tl, ks):
            A.ds("ds_read_b128 %s, %s offset:%d" % (v(KXR[(tl, ks)], 4), v(vL16), L_KX + (4 * tl + ks) * 1024), ('kx', tl, ks))
        AREG = {0: RING, 1: RING + 4, 2: RING + 8, 3: RING, 4: X2, 5: RING + 4, 6: RING + 8, 7: RING, 8: RING + 4}
        FP = optval("fp", 0)
        def Q(j, t):
            key = ('qk', j, t)
            SM(QK + 4 * t, AREG[j], R(WREGS[key], 8) if key in WREGS else v(LND + 8 * SLOT[key], 8))
            if t == 0 and FP == 0:
                stamp(True)
        def VS(j, t, a_=None):
            key = ('v', j, t)
            SM(VACC + 4 * t, AREG[j] if a_ is None else a_, R(WREGS[key], 8) if key in WREGS else v(LND + 8 * SLOT[key], 8))
        L = lambda j, t, hh: land(('qk', j, t), hh)
        kd = kv_dma()
        mega = "mega" in opt
        ND = 0 if NDMA else 2
        def dma(i, tag):
            if not NDMA:
                A.vmem(kd[i], tag) if tag else A(kd[i])
        A.ds("ds_write_b128 %s, %s offset:%d" % (v(vT0), v(RING, 4), L_MEM), 'w1')
        if "s2l" not in opt:
            Q(0, 0); mbload(X2, 4)
            Q(0, 1); A("v_lshrrev_b32 %s, 2, %s" % (v(X2 + 5), v(vT0)))
            Q(0, 2)
            if "f8l" not in opt:
                f8load()
            else:
                L(2, 1, 0)
            if "kearly" in opt:
                dma(0, None)
                Q(0, 3); dma(1, 'kdma')
                VS(0, 0); dma(2, 'kdma')
                A.wait_ds('w1')
                VS(0, 1)
                A("s_barrier")
                ringrd(2, 2)
                stamp()
                Q(1, 0); L(2, 0, 0)
                Q(1, 1); L(2, 0, 1)
                Q(1, 2); L(2, 1, 0)
                Q(1, 3); L(2, 1, 1)
                VS(1, 0); A("s_add_u32 %s, %s, 1" % (s(sStep), s(sStep)))
            else:
                Q(0, 3); L(2, 0, 0)
                VS(0, 0); L(2, 0, 1)
                A.wait_ds('w1')
                VS(0, 1)
                A("s_barrier")
                ringrd(2, 2)
                stamp()
                Q(1, 0)
                if "f8l" in opt:
                    f8load()
                else:
                    L(2, 1, 0)
                dma(0, None)
                Q(1, 1); L(2, 1, 1)
                Q(1, 2); dma(1, 'kdma')
                Q(1, 3); A("s_add_u32 %s, %s, 1" % (s(sStep), s(sStep)))
                VS(1, 0); dma(2, 'kdma')
            VS(1, 1); A("s_waitcnt vmcnt(%d)" % (2 + ND))
            ringrd(3, 0)
            A.wait_ds(('qk', 2, 1))
            Q(2, 0); L(4, 0, 0)
            Q(2, 1); L(4, 0, 1)
            Q(2, 2); L(4, 1, 0)
            Q(2, 3); L(4, 1, 1)
            if "v2" in opt:
                dma(3, None)
                VS(2, 0); dma(4, 'vdma')
                VS(2, 1); dma(5, 'vdma')
            else:
                VS(2, 0)
                if "vn" in opt:
                    A("s_add_u32 %s, %s, %d" % (s(sRdE), s(sKVt), KVSTEP + 8192))
                else:
                    dma(3, None)
                VS(2, 1)
            A.wait_ds(('ring', 3))
            Q(3, 0); A("s_waitcnt vmcnt(%d)" % ((5 if "v2" in opt else 3) if "f8l" in opt else (4 if "v2" in opt else 2)))
            s2check()
            Q(3, 1)
            Q(3, 2)
            A("s_cbranch_vccnz %s" % ls2r)
            A.label(ls2ok)
            A.ds("ds_write_b128 %s, %s offset:%d" % (v(vT0), v(X2, 4), L_MEM + 4096), 'w2')
            Q(3, 3)
            if "b1c" in opt:
                VS(3, 0)
                VS(3, 1)
                A.wait_ds(('qk', 4, 1))
                Q(4, 0); L(6, 0, 0)
                Q(4, 1)
                A.wait_ds('w2')
            else:
                VS(3, 0)
                if "v2" not in opt and "v5" not in opt and "vn" not in opt:
                    dma(4, 'vdma')
                VS(3, 1)
                if "v2" not in opt and "v5" not in opt and "vn" not in opt:
                    dma(5, 'vdma')
                if "v5" in opt or "vn" in opt:
                    ND = 0
                A.wait_ds(('qk', 4, 1))
                Q(4, 0); L(6, 0, 0)
                Q(4, 1)
                A("s_waitcnt vmcnt(%d) lgkmcnt(1)" % ND)
                A.vm, A.lds = A.vm[len(A.vm) - ND:], A.lds[-1:]
            A("s_barrier")
            ringrd(5, 1)
            Q(4, 2); ringrd(6, 2)
            Q(4, 3); ringrd(7, 0)
        else:
            Q(0, 0)
            Q(0, 1); A("v_lshrrev_b32 %s, 2, %s" % (v(X2 + 5), v(vT0)))
            Q(0, 2); dma(0, None)
            Q(0, 3); L(2, 0, 0)
            VS(0, 0); L(2, 0, 1)
            A.wait_ds('w1')
            VS(0, 1)
            A("s_barrier")
            ringrd(2, 2)
            stamp()
            Q(1, 0); mbload(X2, 4)
            Q(1, 1); f8load()
            Q(1, 2); L(2, 1, 0)
            Q(1, 3); L(2, 1, 1)
            VS(1, 0); dma(1, 'kdma')
            VS(1, 1); A("s_waitcnt vmcnt(3)")
            ringrd(3, 0)
            A.wait_ds(('qk', 2, 1))
            Q(2, 0); dma(2, 'kdma')
            Q(2, 1); L(4, 0, 0)
            Q(2, 2); L(4, 0, 1)
            Q(2, 3); L(4, 1, 0)
            VS(2, 0); L(4, 1, 1)
            VS(2, 1); dma(3, None)
            A.wait_ds(('ring', 3))
            Q(3, 0); A("s_add_u32 %s, %s, 1" % (s(sStep), s(sStep)))
            Q(3, 1)
            Q(3, 2)
            Q(3, 3); A("s_waitcnt vmcnt(2)")
            s2check()
            VS(3, 0)
            VS(3, 1)
            A("s_cbranch_vccnz %s" % ls2r)
            A.label(ls2ok)
            A.wait_ds(('qk', 4, 1))
            A.ds("ds_write_b128 %s, %s offset:%d" % (v(vT0), v(X2, 4), L_MEM + 4096), 'w2')
            Q(4, 0)
            A.ds("ds_write_b32 %s, %s offset:%d" % (v(X2 + 5), v(X2 + 4), L_MEM + 8192), 'w2')
            Q(4, 1); L(6, 0, 0)
            Q(4, 2); dma(4, 'vdma')
            Q(4, 3); dma(5, 'vdma')
            A("s_waitcnt vmcnt(2) lgkmcnt(1)")
            A.vm, A.lds = A.vm[len(A.vm) - 2:], A.lds[-1:]
            A("s_barrier")
            ringrd(5, 1)
            ringrd(6, 2)
            ringrd(7, 0)
        VS(4, 0); L(6, 0, 1)
        VS(4, 1); L(6, 1, 0)
        A.wait_ds(('ring', 5))
        Q(5, 0); land(L2KEY, 0)
        Q(5, 1); land(L2KEY, 1)
        if mega:
            A("s_bitcmp1_b64 %s, %s" % (s(sRdy, 2), s(sStep)))
        def touch(o):
            if "notouch" not in opt and "vn" in opt:
                A.vmem("buffer_load_dword %s, %s, %s offen sc1 lds" % (v(vTmp), s(sWS, 4), s(sRdE if o else sKVt)), 'touch')
            elif "notouch" not in opt:
                A.vmem("buffer_load_dword %s, %s, %s offen offset:%d sc1 lds" % (v(vTmp), s(sWS, 4), s(sKVt), o), 'touch')
        def kvbranch():
            if mega:
                A("s_cbranch_scc0 %s" % lkvr)
                A.label(lkvok)
        if "b1c" in opt:
            Q(5, 2); L(6, 1, 1)
            Q(5, 3); ringrd(8, 1)
            kvbranch()
            A.wait_ds(('qk', 6, 1))
            Q(6, 0); dma(4, 'vdma')
            Q(6, 1); L(7, 3, 0)
            Q(6, 2); dma(5, 'vdma')
            A("s_mov_b32 m0, %d" % (L_SCR + 512))
            Q(6, 3); L(7, 3, 1)
            A("v_lshlrev_b32 %s, 4, %s" % (v(vTmp), v(vL16)))
            A.wait_vm('kdma')
            A("s_barrier")
            Q(7, 0); touch(0)
            kxrd(0, 2)
            Q(7, 1); touch(128)
            kxrd(0, 3)
        else:
            Q(5, 2)
            if "v5" in opt:
                dma(4, 'vdma')
            L(6, 1, 1)
            Q(5, 3)
            if "v5" in opt:
                dma(5, 'vdma')
            ringrd(8, 1)
            A("s_mov_b32 m0, %d" % (L_SCR + 512))
            kvbranch()
            A.wait_ds(('qk', 6, 0))
            Q(6, 0); L(7, 3, 0)
            A.wait_ds(('qk', 6, 1))
            Q(6, 1); L(7, 3, 1)
            A("v_lshlrev_b32 %s, %d, %s" % (v(vTmp), 3 if "vn" in opt else 4, v(vL16)))
            Q(6, 2); touch(0)
            A.wait_ds(('ring', 8))
            Q(6, 3); A("v_max3_u32 %s, %s, %s, %s" % (v(LND + 8), v(RING + 4), v(RING + 5), v(RING + 6)))
            A("v_max_u32 %s, %s, %s" % (v(LND + 8), v(LND + 8), v(RING + 7)))
            Q(7, 0); touch(128)
            A("v_cmp_eq_u32 vcc, -1, %s" % v(LND + 8))
            Q(7, 1); kxrd(0, 2)
            kxrd(0, 3)
        Q(7, 2); A("v_cndmask_b32 %s, 2.0, 0, %s" % (v(vTmp), s(sOne, 2)))
        A.wait_ds(('qk', 7, 3))
        Q(7, 3); kxrd(0, 0)
        A("s_cbranch_vccnz %s" % ls3r)
        A.label(ls3ok)
        Q(8, 0); kxrd(0, 1)
        Q(8, 1)
        A.vmem("buffer_store_dword %s, %s, %s, %s offen sc1" % (v(vIdx), v(vTmp), s(sWS, 4), s(sFlg)), 'flag')
        if "qf" not in opt:
            Q(8, 2); A("v_lshrrev_b32 %s, 2, %s" % (v(vTmp), v(vL16)))
            Q(8, 3); A("s_add_u32 %s, %s, 4096" % (s(sFlg), s(sFlg)))
            stamp()
            VS(7, 0); A("s_cmp_eq_u32 %s, %d" % (s(sStep), nsteps))
            VS(7, 1); ringrd(5, 0)
        def fin(base):
            A("v_add_f32 %s, %s, %s" % (v(base), v(base), v(base + 1)))
            A("v_add_f32 %s, %s, %s" % (v(base + 2), v(base + 2), v(base + 3)))
            A("v_add_f32 %s, %s, %s" % (v(base + 4), v(base + 4), v(base + 5)))
            A("v_add_f32 %s, %s, %s" % (v(base + 6), v(base + 6), v(base + 7)))
            A("v_cvt_pk_bf16_f32 %s, %s, %s" % (v(base), v(base), v(base + 4)))
            A("v_cvt_pk_bf16_f32 %s, %s, %s" % (v(base + 1), v(base + 2), v(base + 6)))
        def finw(base):
            o = 8 if base == QK else 0
            A.ds("ds_write2_b32 %s, %s, %s offset0:%d offset1:%d" % (v(vFw), v(base), v(base + 1), o, o + 4), 'fw')
        def pub(reg, off):
            A.vmem("buffer_store_dword %s, %s, %s, %s offen offset:%d%s" % (v(reg), v(vTmp), s(sWS, 4), s(sKM), off, PUB), 'pub')
        if "qf" in opt:
            b = QK
            VS(7, 0); A("v_lshrrev_b32 %s, 2, %s" % (v(vTmp), v(vL16)))
            A("s_add_u32 %s, %s, 4096" % (s(sFlg), s(sFlg)))
            VS(7, 1); ringrd(5, 0)
            A("s_cmp_eq_u32 %s, %d" % (s(sStep), nsteps))
            Q(8, 2); A("v_add_f32 %s, %s, %s" % (v(b), v(b), v(b + 1)))
            Q(8, 3); A("s_cbranch_scc1 %s_l" % lexit)
            A("v_add_f32 %s, %s, %s" % (v(b + 2), v(b + 2), v(b + 3)))
            last_state = (list(A.lds), list(A.vm))
            A("v_add_f32 %s, %s, %s" % (v(b + 4), v(b + 4), v(b + 5)))
            A("v_add_f32 %s, %s, %s" % (v(b + 6), v(b + 6), v(b + 7)))
            A("v_cvt_pk_bf16_f32 %s, %s, %s" % (v(b), v(b), v(b + 4)))
            A("v_cvt_pk_bf16_f32 %s, %s, %s" % (v(b + 1), v(b + 2), v(b + 6)))
            finw(QK)
            fin(QK + 8)
            finw(QK + 8)
        else:
            fin(QK)
            fin(QK + 8)
            finw(QK)
            finw(QK + 8)
        VS(8, 1); pub(QK + 8, 0)
        VS(8, 0)
        VS(6, 1); pub(QK + 9, 256)
        VS(6, 0)
        A.wait_ds('fw')
        A("s_barrier")
        if FP == 2:
            stamp(True)
        for ks in range(4):
            A.ds("ds_read_b128 %s, %s offset:%d" % (v(QK + 4 * ks, 4), v(vL16), L_F + ks * FSTR), ('f', ks))
        stamp()
        VS(5, 0, RING); A.wait_vm(L2KEY)
        VS(5, 1, RING); kxrd(1, 0)
        kxrd(1, 1)
        T1, T2, T0 = RING, RING + 4, RING + 8
        ONES, LACC, OACC = QK + 8, QK + 12, LND + 16
        def S(i, ks):
            d, a_ = ((T1, KXR[(0, ks)]), (T2, KXR[(1, ks)]), (T0, QK + 4 * ks))[i]
            MF(d, a_, QK + 4 * ks, "0" if ks == 0 else v(d, 4))
        def vfin(t, part):
            b = VACC + 4 * t
            if part == 0:
                A("v_add_f32 %s, %s, %s" % (v(b), v(b), v(b + 1)))
                A("v_add_f32 %s, %s, %s" % (v(b + 2), v(b + 2), v(b + 3)))
            else:
                A("v_cvt_pk_bf16_f32 %s, %s, %s" % (v(b), v(b), v(b + 2)))
                A("v_mov_b32 %s, 0" % v(b + 1))
        def vxrd(t):
            A.ds("ds_read_b128 %s, %s offset:%d" % (v(QK + 4 * t, 4), v(vWL), 32768 + t * 1024), 'vx')
        m1, m2 = T0 + 2, T0 + 3
        A.wait_ds(('f', 0))
        S(0, 0)
        if FP == 2:
            stamp(True)
        A.wait_ds(('f', 1))
        S(0, 1); kxrd(1, 2)
        kxrd(1, 3)
        A.wait_ds(('f', 3))
        S(0, 2)
        S(0, 3); land(('o', 1), 0)
        land(('o', 1), 1)
        S(2, 0); vfin(0, 0)
        S(2, 1); vfin(0, 1)
        S(2, 2); vfin(1, 0)
        S(2, 3); pub(VACC, 512)
        vfin(1, 1)
        A.wait_vm('vdma')
        A.wait_ds(('kx', 1, 1))
        S(1, 0); vxrd(0)
        A("v_max3_f32 %s, %s, %s, %s" % (v(VACC + 2), v(T1), v(T1 + 1), v(T1 + 2)))
        S(1, 1); vxrd(1)
        A.wait_ds(('kx', 1, 3))
        S(1, 2); pub(VACC + 4, 768)
        A("v_max3_f32 %s, %s, %s, %s" % (v(m1), v(VACC + 2), v(T1 + 3), v(T0)))
        S(1, 3)
        if FP == 2:
            stamp(True)
        land(('o', 0), 0)
        land(('o', 0), 1)
        A("s_nop 0" if "qf" in opt else "s_cbranch_scc1 %s" % lexit)
        A("s_add_u32 %s, %s, %d" % (s(sKM), s(sKM), 32 * 4096))
        stamp()
        sv = [T1, T1 + 1, T1 + 2, T1 + 3, T2, T2 + 1, T2 + 2, T2 + 3, T0, T0 + 1]
        A("v_max_f32 %s, %s, %s" % (v(m1), v(m1), v(T0 + 1)))
        A("s_nop 0")
        A("v_mov_b32 %s, 0x3f803f80" % v(ONES))
        A("v_mov_b32 %s, 0x3f803f80" % v(ONES + 1))
        A("v_max3_f32 %s, %s, %s, %s" % (v(m1), v(m1), v(sv[4]), v(sv[5])))
        A("v_max3_f32 %s, %s, %s, %s" % (v(m2), v(m1), v(sv[6]), v(sv[7])))
        A("v_max3_f32 %s, %s, %s, %s" % (v(m1), v(m1), v(sv[6]), v(sv[7])))
        A("v_mov_b32 %s, 0x3f803f80" % v(ONES + 2))
        A("v_mov_b32 %s, 0x3f803f80" % v(ONES + 3))
        A("v_permlane32_swap_b32 %s, %s" % (v(m1), v(m2)))
        A("v_max_f32 %s, %s, %s" % (v(m1), v(m1), v(m2)))
        A("v_mov_b32 %s, %s" % (v(m2), v(m1)))
        A("s_nop 1")
        A("v_permlane16_swap_b32 %s, %s" % (v(m1), v(m2)))
        A("v_max_f32 %s, %s, %s" % (v(m1), v(m1), v(m2)))
        A("v_mul_f32 %s, %s, %s" % (v(m1), s(sC), v(m1)))
        if FP == 2:
            stamp(True)
        P, Pm = T1, T0
        def fma(x):
            A("v_fma_f32 %s, %s, %s, -%s" % (v(x), v(x), s(sC), v(m1)))
        def ex(x):
            A("v_exp_f32 %s, %s" % (v(x), v(x)))
        def M16(d, a_):
            A("v_mfma_f32_16x16x16_bf16 %s, %s, %s, 0" % (v(d, 4), v(a_, 2), v(Pm, 2)))
        fma(T0); fma(T0 + 1); ex(T0); ex(T0 + 1)
        fma(sv[0])
        A("v_cvt_pk_bf16_f32 %s, %s, %s" % (v(Pm), v(T0), v(T0 + 1)))
        A("v_mov_b32 %s, 0" % v(Pm + 1))
        fma(sv[1]); fma(sv[2])
        M16(LACC, ONES)
        fma(sv[3]); fma(sv[4])
        M16(OACC, VACC)
        fma(sv[5]); fma(sv[6])
        M16(OACC + 4, VACC + 4)
        fma(sv[7])
        for x in sv[:8]:
            ex(x)
        A("v_cvt_pk_bf16_f32 %s, %s, %s" % (v(P), v(T1), v(T1 + 1)))
        A("v_cvt_pk_bf16_f32 %s, %s, %s" % (v(P + 1), v(T1 + 2), v(T1 + 3)))
        A("v_cvt_pk_bf16_f32 %s, %s, %s" % (v(P + 2), v(T2), v(T2 + 1)))
        A("v_cvt_pk_bf16_f32 %s, %s, %s" % (v(P + 3), v(T2 + 2), v(T2 + 3)))
        A.wait_ds('vx')
        A("v_mov_b64 %s, 0" % v(44, 2))
        MF(LACC, ONES, P, v(LACC, 4))
        if FP == 2:
            stamp(True)
        if "vn" in opt:
            A(kd[3])
        MF(OACC, QK, P, v(OACC, 4))
        if "vn" in opt:
            A.vmem(kd[4], 'vdma')
        MF(OACC + 4, QK + 4, P, v(OACC + 4, 4))
        if "vn" in opt:
            A.vmem(kd[5], 'vdma')
        zero(12, 24)
        A("v_rcp_f32 %s, %s" % (v(vTmp), v(LACC)))
        if FP == 2:
            stamp(True)
        A("v_mov_b64 %s, 0" % v(24, 2))
        for i in range(8):
            A("v_mul_f32 %s, %s, %s" % (v(OACC + i), v(OACC + i), v(vTmp)))
        OP = T2
        for i in range(4):
            A("v_cvt_pk_bf16_f32 %s, %s, %s" % (v(OP + i), v(OACC + 2 * i), v(OACC + 2 * i + 1)))
        if "oex" in opt:
            A("s_mov_b64 exec, %s" % s(sOex, 2))
        A.ds("ds_write_b128 %s, %s" % (v(vOw), v(OP, 4)), 'ow')
        if "oex" in opt:
            A("s_mov_b64 exec, -1")
        if FP == 2:
            stamp(True)
        A("v_mov_b64 %s, -1" % v(36, 2))
        A("v_cndmask_b32 %s, 0, 1, %s" % (v(vTmp), s(sTagM, 2)))
        A.vmem("buffer_store_dwordx2 %s, %s, %s, %s offen%s" % (v(36, 2), v(vRst), s(sWS, 4), s(sX2), SC), 'rst')
        zero(26, 36)
        A.wait_ds('ow')
        for i in range(optval("idle", 0)):
            A("s_nop 15")
        A("s_barrier")
        if FP == 2:
            stamp(True)
        OF = LND + 16
        for c2 in range(2):
            A.ds("ds_read_b128 %s, %s offset:%d" % (v(OF + 4 * c2, 4), v(vL16), L_O + c2 * 1024), ('of', c2))
        stamp()
        zero(36, 44)
        zero(46, 48)
        def wacc(tile):
            return 12 + 4 * tile
        def W(p, c2):
            key = ('o', 2 * p + c2)
            wait_many([('of', c2), key] + ([('o', 2 * p + 1)] if p > 0 else []))
            SM(wacc(p), OF + 4 * c2, R(WREGS[key], 8) if key in WREGS else v(LND + 8 * SLOT[key], 8))
            if c2 == 0 and FP == 1:
                stamp(True)
        def e1(tile):
            b = wacc(tile)
            A("v_add_f32 %s, %s, %s" % (v(b + 1), v(b), v(b + 1)))
            A("v_add_f32 %s, %s, %s" % (v(b + 3), v(b + 2), v(b + 3)))
        def e2(tile):
            b = wacc(tile)
            A("v_cvt_pk_bf16_f32 %s, %s, %s" % (v(b), v(b + 1), v(b + 3)))
            A("v_bfi_b32 %s, %s, %s, %s" % (v(b), v(vTmp), s(sPh), v(b)))
        def e3(tile):
            A("buffer_store_dword %s, %s, %s, %s offen%s" % (v(wacc(tile)), v(vPst), s(sWS, 4), s(sPt + tile), SC))
        LO = lambda n, hh: land(('o', n), hh)
        W(0, 0)
        if FP == 2:
            stamp(True)
        LO(8, 0)
        W(0, 1); LO(8, 1)
        A("s_add_u32 %s, %s, %d" % (s(sKVt), s(sKVt), KVINC))
        W(1, 0); LO(9, 0)
        A("s_add_u32 %s, %s, %d" % (s(sKV), s(sKV), KVINC))
        W(1, 1); LO(9, 1)
        A("s_add_u32 %s, %s, %d" % (s(sKVv), s(sKVv), KVINC))
        e1(0)
        for p in range(2, 9):
            W(p, 0)
            if p == 5:
                LO(16, 0)
            if p == 6:
                LO(17, 0)
            if p == 2:
                A("s_cmp_ge_u32 %s, 32" % s(sUnit))
            e2(p - 2)
            W(p, 1); e3(p - 2)
            if p == 5:
                LO(16, 1)
            if p == 6:
                LO(17, 1)
            e1(p - 1)
        EP = optval("ep", 0)
        def wtail(early):
            if early and EP == 2:
                poll1_issue(PLA)
            e2(7); e3(7)
            if early and EP == 1:
                poll1_issue(PLA)
            A("s_nop 1")
            e1(8); e2(8); e3(8)
            if stamps and "fine" not in opt:
                A("s_memrealtime %s" % s(sStamp + 16, 2))
            if FP == 1:
                stamp(True)
        if EP:
            lw = A.new("wt")
            A("s_cbranch_scc0 %s" % lw)
            wtail(False)
            A("s_branch %s" % lnored)
            A.label(lw)
            wtail(True)
        else:
            wtail(False)
            A("s_cbranch_scc1 %s" % lnored)
        def prep():
            mksel()
            rotate()
            for i in range(0, 8, 2):
                A("v_mov_b64 %s, -1" % v(RING + i, 2))
            A("v_mov_b32 %s, %d" % (v(46), L_FLAG))
            A("v_mov_b32 %s, %s" % (v(47), s(sStep)))
        l1b = A.new("p1b")
        if EP:
            if "eb2" in opt:
                prep()
                poll1_issue(PLB)
            else:
                poll1_issue(PLB)
                prep()
            reduce_body(PLA, 4 + EP)
            A("s_cbranch_vccz %s" % lok1)
            A("s_branch %s" % l1b)
        A.label(lgo1)
        poll1_issue(PLA)
        stamp()
        prep()
        if "eone" in opt or "lone" in opt:
            lb = A.new("two")
            if not ("eone" in opt and "lone" in opt):
                A("s_cmp_ge_u32 %s, 32" % s(sUnit))
                A("s_cbranch_scc%d %s" % (1 if "eone" in opt else 0, lb))
            reduce_body(PLA, 0)
            A("s_cbranch_vccz %s" % lok1)
            poll1_issue(PLA)
            A("s_nop 15")
            A.label(lb)
        for i in range(optval("p1g", 0)):
            A("s_nop 7")
        poll1_issue(PLB)
        def fold():
            A("s_nop 4")
            for i in range(4):
                A("v_add_f32_dpp %s, %s, %s row_ror:8 row_mask:0xf bank_mask:0xf" % (v(RACC + i), v(RACC + i), v(RACC + i)))
            A("v_cvt_pk_bf16_f32 %s, %s, %s" % (v(44), v(RACC), v(RACC + 1)))
            A("v_cvt_pk_bf16_f32 %s, %s, %s" % (v(45), v(RACC + 2), v(RACC + 3)))
        def retry_block():
            A.label(l1b)
            if "tt" in opt:
                A("s_add_u32 s87, s87, 1")
            poll1_issue(PLA)
            reduce_body(PLB, 4)
            fold()
            A("s_cbranch_vccz %s" % lok1)
            if "tt" in opt:
                A("s_add_u32 s87, s87, 1")
            poll1_issue(PLB)
            A("s_sub_u32 %s, %s, 1" % (s(sBud), s(sBud)))
            A("s_cbranch_scc0 %s" % l1a)
            A("s_mov_b32 %s, 0" % s(sBud))
            A("s_branch %s" % lok1)
        A.label(l1a)
        reduce_body(PLA, 4)
        fold()
        A("s_cbranch_vccnz %s" % l1b)
        A.label(lok1)
        A("buffer_store_dwordx2 %s, %s, %s, %s offen%s" % (v(44, 2), v(vRst), s(sWS, 4), s(sX0), SC))
        A("ds_write_b32 %s, %s" % (v(46), v(47)))
        stamp()
        A.label(lb4)
        for i in range(optval("g1", 0)):
            A("s_nop 7")
        if "late" in opt:
            A("s_waitcnt vmcnt(1)")
        else:
            s1load(RING)
            A("s_waitcnt vmcnt(%d)" % (5 if "early1" in opt else 3))
        for ch in QK_CHAIN:
            land(ch[0])
        zero(VACC, RING)
        A("s_xor_b32 %s, %s, 1" % (s(sPh), s(sPh)))
        if "late" in opt:
            s1load(RING)
        for i in range(optval("g2", 0)):
            A("s_nop 7")
        if "r2" in opt:
            s1load(RING)
            A("s_waitcnt vmcnt(2)")
        if "first0" in opt:
            A("s_waitcnt vmcnt(0)")
        A("s_waitcnt lgkmcnt(0)")
        if stamps and "rt" not in opt:
            ldump = A.new("dump")
            A("s_cmp_eq_u32 %s, 41" % s(sStep))
            A("s_cbranch_scc1 %s" % ldump)
            A("s_cmp_eq_u32 %s, 42" % s(sStep))
            A("s_cbranch_scc0 %s" % ls1w)
            A.label(ldump)
            for i in range(10):
                A("v_writelane_b32 %s, %s, %d" % (v(vTmp), s(sStamp + 2 * i), i))
            A("v_writelane_b32 %s, %s, %d" % (v(vTmp), s(sBud), 15))
            A("s_lshl_b32 %s, %s, 2" % (s(sT), s(sCU)))
            A("s_add_u32 %s, %s, %s" % (s(sT), s(sT), s(sW)))
            A("s_lshl_b32 %s, %s, 1" % (s(sT), s(sT)))
            A("s_add_u32 %s, %s, %s" % (s(sT), s(sT), s(sStep)))
            A("s_sub_u32 %s, %s, 41" % (s(sT), s(sT)))
            A("s_lshl_b32 %s, %s, 10" % (s(sT), s(sT)))
            A("s_add_u32 %s, %s, %d" % (s(sT), s(sT), WS_DBG + (3 << 18 if "mega" in opt else 0)))
            A("buffer_store_dword %s, %s, %s, %s offen" % (v(vTmp), v(vL16), s(sWS, 4), s(sT)))
            A("s_waitcnt vmcnt(0)")
        A("s_branch %s" % ls1w)
        retry_block()
        A.label(ls1r + "_give")
        A("s_mov_b32 %s, 0" % s(sBud))
        A("s_branch %s" % lentry)
        if "qf" in opt:
            A.label(lexit + "_l")
            A.lds, A.vm = last_state
            VS(8, 0); VS(8, 1); VS(6, 0); VS(6, 1)
            A.wait_ds(('ring', 5))
            A.wait_vm(L2KEY)
            VS(5, 0, RING); VS(5, 1, RING)
            fin(QK + 8)
            pub(QK + 8, 0)
            pub(QK + 9, 256)
            vfin(0, 0); vfin(0, 1)
            pub(VACC, 512)
            vfin(1, 0); vfin(1, 1)
            pub(VACC + 4, 768)
        A.label(lexit)
        if "tt" in opt:
            A("s_memtime s[94:95]")
            A("s_memrealtime s[70:71]")
            A("s_waitcnt lgkmcnt(0)")
            A("s_sub_u32 s94, s94, s92")
            A("s_sub_u32 s92, s92, s90")
            A("v_writelane_b32 %s, s92, 0" % v(vTmp))
            A("v_writelane_b32 %s, s94, 1" % v(vTmp))
            A("v_writelane_b32 %s, %s, 2" % (v(vTmp), s(sBud)))
            for i in range(3):
                A("v_writelane_b32 %s, s%d, %d" % (v(vTmp), 87 + i, 3 + i))
            for i in range(4):
                A("v_writelane_b32 %s, s%d, %d" % (v(vTmp), 64 + 2 * i, 6 + i))
            A("s_lshl_b32 %s, %s, 2" % (s(sT), s(sCU)))
            A("s_add_u32 %s, %s, %s" % (s(sT), s(sT), s(sW)))
            A("s_lshl_b32 %s, %s, 10" % (s(sT), s(sT)))
            A("s_add_u32 %s, %s, %d" % (s(sT), s(sT), WS_DBG + (1 << 19)))
            A("buffer_store_dword %s, %s, %s, %s offen" % (v(vTmp), v(vL16), s(sWS, 4), s(sT)))
            if "dbgout" in opt:
                for i, o in enumerate((4, 8, 12, 20)):
                    A("v_mov_b32 %s, s%d" % (v(vTmp), 64 + 2 * i))
                    A("buffer_atomic_umax %s, off, %s, 0 offset:%d" % (v(vTmp), s(sDBG, 4), o))
        A("s_waitcnt vmcnt(0)")

    loop(" sc1" if "forcesc1" in opt else "")
    A("s_endpgm")
    A.label(lslow)
    nst[0] = 0
    loop(" sc1")
```

```python
import sys
from asmlib import *
from layout import *
import team, worker
from gen_rec import kd

NAME = "adaLN_cond__memory_aug_recurrent_mem_tr__glu_gated_bilinear__prompt_kernel"
HDR = open("adaLN_cond__memory_aug_recurrent_mem_tr__glu_gated_bilinear__prompt.s.ref").read().split("; Override launch")[0]

DOC = """; ---------------------------------------------------------------------------------------------------------
; ---------------------------------------------------------------------------------------------------------"""

def main(opt):
    A = Asm()
    as_list = "list" in opt
    A.lines.append(HDR.rstrip())
    if as_list:
        A.lines.append("; @launch kernel=%s grid=(256,1,1) block=(256,1,1) lds=163840" % NAME)
    else:
        A.lines.append("; @launch grid=(256,1,1) block=(256,1,1) lds=163840")
    A.lines.append('.amdgcn_target "amdgcn-amd-amdhsa--gfx950"')
    A.lines.append(DOC)
    A.lines.append(".text\n.globl %s\n.p2align 8\n.type %s,@function" % (NAME, NAME))
    A.label(NAME)
    A("s_cmp_ge_u32 s2, 256")
    A("s_cbranch_scc1 L_end")
    if "empty" in opt:
        A("s_endpgm")
    T = team
    if "dbgout" in opt:
        A("s_memrealtime s[96:97]")
    bufs = [(T.sWS, 120, WS_BYTES), (T.sWQ, 16, 4718592), (T.sWK, 24, 4718592), (T.sWV, 32, 4718592), (T.sWO, 40, 4718592), (T.sM0, 8, 9216), (T.sDBG, 112, 256)]
    for d, o, n in bufs:
        A("s_load_dwordx2 %s, s[0:1], %d" % (s(d, 2), o))
    A("s_getreg_b32 s3, hwreg(HW_REG_XCC_ID)")
    A("s_and_b32 s3, s3, 15")
    A("v_lshrrev_b32 v1, 6, v0")
    A("v_and_b32 v0, 63, v0")
    A("v_readfirstlane_b32 %s, v1" % s(T.sW))
    A("s_waitcnt lgkmcnt(0)")
    for d, o, n in bufs:
        A("s_and_b32 %s, %s, 0xffff" % (s(d + 1), s(d + 1)))
        A("s_mov_b32 %s, %d" % (s(d + 2), n))
        A("s_mov_b32 %s, 0x20000" % s(d + 3))
    A("v_mov_b32 v2, 0")
    A("s_cmp_lg_u32 %s, 0" % s(T.sW))
    A("s_cbranch_scc1 L_norank")
    if "dbgout" in opt:
        A("s_cmp_lg_u32 s2, 0")
        A("s_cbranch_scc1 L_nod")
        A("v_mov_b32 v1, s96")
        A("buffer_store_dword v1, off, %s, 0 offset:28 sc1" % s(T.sDBG, 4))
        A.label("L_nod")
    if "fakexcc" in opt:
        A("s_lshr_b32 s60, s2, 5")
    else:
        A("s_and_b32 s60, s3, 7")
    A("s_mov_b32 s62, 8")
    A("s_mov_b64 exec, 1")
    A.label("L_claim")
    A("s_lshl_b32 s61, s60, 5")
    A("v_mov_b32 v1, 1")
    A("buffer_atomic_add v1, off, %s, s61 offset:%d sc0" % (s(T.sDBG, 4), DBG_XCC))
    A("s_waitcnt vmcnt(0)")
    A("v_readfirstlane_b32 s61, v1")
    A("s_nop 3")
    A("s_cmp_lt_u32 s61, 32")
    A("s_cbranch_scc1 L_got")
    A("s_add_u32 s60, s60, 1")
    A("s_and_b32 s60, s60, 7")
    A("s_sub_u32 s62, s62, 1")
    A("s_cmp_lg_u32 s62, 0")
    A("s_cbranch_scc1 L_claim")
    A("s_mov_b32 s60, 8")
    A.label("L_got")
    A("s_lshl_b32 s60, s60, 5")
    A("s_add_u32 s60, s60, s61")
    A("v_mov_b32 v1, s60")
    A("ds_write_b32 v2, v1")
    A("s_mov_b64 exec, -1")
    A.label("L_norank")
    A("s_waitcnt lgkmcnt(0)")
    A("s_barrier")
    A("ds_read_b32 v1, v2")
    A("s_waitcnt lgkmcnt(0)")
    A("v_readfirstlane_b32 %s, v1" % s(T.sCU))
    A("s_barrier")
    A("s_cmp_ge_u32 %s, 256" % s(T.sCU))
    A("s_cbranch_scc1 L_end")
    A("s_cmp_ge_u32 %s, 32" % s(T.sCU))
    A("s_cbranch_scc1 L_worker")
    def kv_wait0(A):
        for (voff, soff, srd, ge, imm) in ((None, "0", T.sDBG, None, DBG_MOD),):
            lp, ok = A.new("tw"), A.new("twok")
            A.label(lp)
            if voff is None:
                A("buffer_load_dword %s, off, %s, 0 offset:%d sc1" % (v(T.vTmp), s(srd, 4), imm))
            else:
                A("buffer_load_dword %s, v12, %s, %s offen sc1" % (v(T.vTmp), s(srd, 4), soff))
            A("s_waitcnt vmcnt(0)")
            if ge:
                A("v_cmp_gt_u32 vcc, %d, %s" % (ge, v(T.vTmp)))
            else:
                A("v_cmp_eq_u32 vcc, 0, %s" % v(T.vTmp))
            A("s_cbranch_vccz %s" % ok)
            A("s_sleep 2")
            A("s_sub_u32 %s, %s, 1" % (s(T.sBud), s(T.sBud)))
            A("s_cbranch_scc0 %s" % lp)
            A("s_mov_b32 %s, 0" % s(T.sBud))
            A.label(ok)
    if "p1only" not in opt:
        team.emit_team(A, stamps="stamps" in opt, hooks={'kv_wait0': kv_wait0}, opt=list(opt) + ["mega", "prog", "mask", "qf", "oex", "f8l"])
    A("s_endpgm")
    A.label("L_worker")
    A("s_sub_u32 %s, %s, 32" % (s(worker.sWid), s(T.sCU)))
    worker.emit_worker(A, list(opt) + ["ann", "cx1"])
    A.label("L_end")
    A("s_endpgm")
    return A.text() + kd(NAME)

if __name__ == "__main__":
    open(sys.argv[1], "w").write(main(sys.argv[2:]))
```

```python
from asmlib import *
from layout import *
import struct, math

def f32bits(x):
    return struct.unpack("<I", struct.pack("<f", x))[0]

sWS, sW1, sW2, sW3, sWO, sXS, sDBG = 4, 8, 12, 16, 20, 24, 28
sWid, sW, sSl, sRep, sSeg, sBud = 32, 33, 34, 35, 36, 37
sA0 = 38
sT = 60
sMask = 64
sSel = 80
vL16, vLane, vG, vC, vX, vTmp, vFl = 0, 1, 2, 3, 4, 5, 6
NSLOT = 9
L_SCR = 147456
FAST0 = 56

TS = {'on': False, 'reg': 15}
sTsI = 98
def ts(A, idx=None):
    if not TS['on'] or (TS.get('fine') and idx is None):
        return
    A("s_memrealtime s[96:97]")
    A("s_waitcnt lgkmcnt(0)")
    A.lds = []
    if idx is None:
        A("s_mov_b32 m0, %s" % s(sTsI))
        A("s_add_u32 %s, %s, 1" % (s(sTsI), s(sTsI)))
        A("v_writelane_b32 %s, s96, m0" % v(TS['reg']))
    else:
        A("v_writelane_b32 %s, s96, %d" % (v(TS['reg']), idx))
def fs(A, idx):
    if TS.get('fine'):
        A("s_memtime s[96:97]")
        A("s_waitcnt lgkmcnt(0)")
        A.lds = []
        A("v_writelane_b32 %s, s96, %d" % (v(TS['reg']), idx))
def ts_dump(A, part):
    if not TS['on']:
        return
    A("s_lshl_b32 s96, %s, 2" % s(sWid))
    A("s_add_u32 s96, s96, %s" % s(sW))
    A("s_lshl_b32 s96, s96, 9")
    A("s_add_u32 s96, s96, %d" % (WS_DBG + part * 256))
    A("v_lshlrev_b32 %s, 2, %s" % (v(vTmp), v(vLane)))
    A("buffer_store_dword %s, %s, %s, s96 offen" % (v(TS['reg']), v(vTmp), s(sWS, 4)))
    A("s_waitcnt vmcnt(0)")
    A("s_mov_b32 %s, 0" % s(sTsI))

def build_srd(A, d, karg, nbytes):
    A("s_load_dwordx2 %s, s[0:1], %d" % (s(d, 2), karg))
    A("s_waitcnt lgkmcnt(0)")
    A("s_and_b32 %s, %s, 0xffff" % (s(d + 1), s(d + 1)))
    A("s_mov_b32 %s, %d" % (s(d + 2), nbytes))
    A("s_mov_b32 %s, 0x20000" % s(d + 3))

def wait_flags(A, voff, soff, srd=sWS, cmp_ge=None, imm=0):
    lp, ok = A.new("wf"), A.new("wfok")
    A.label(lp)
    if voff is None:
        A("buffer_load_dword %s, off, %s, %s offset:%d sc1" % (v(vTmp), s(srd, 4), soff, imm))
    else:
        A("buffer_load_dword %s, %s, %s, %s offen offset:%d sc1" % (v(vTmp), v(voff), s(srd, 4), soff, imm))
    A("s_waitcnt vmcnt(0)")
    if cmp_ge is None:
        A("v_cmp_eq_u32 vcc, 0, %s" % v(vTmp))
    else:
        A("v_cmp_gt_u32 vcc, %d, %s" % (cmp_ge, v(vTmp)))
    A("s_cbranch_vccz %s" % ok)
    A("s_sleep %d" % TS.get('slp', 2))
    A("s_sub_u32 %s, %s, 1" % (s(sBud), s(sBud)))
    A("s_cbranch_scc0 %s" % lp)
    A("s_mov_b32 %s, 0" % s(sBud))
    A.label(ok)
    A.vm = []

def wait_ready(A, soff, n):
    if TS.get('cnt') and n != 128:
        wait_flags(A, None, soff, cmp_ge=n)
    else:
        wait_flags(A, None, soff, imm=128)

def set_flag(A, soff, wave0_only=True):
    sk = A.new("sf")
    if wave0_only:
        A("s_cmp_lg_u32 %s, 0" % s(sW))
        A("s_cbranch_scc1 %s" % sk)
    A("s_mov_b64 exec, 1")
    A("v_mov_b32 %s, 1" % v(vTmp))
    A("buffer_store_dword %s, off, %s, %s sc1" % (v(vTmp), s(sWS, 4), soff))
    A("s_mov_b64 exec, -1")
    A.label(sk)

def arrive(A, soff, n, wave0_only=True):
    sk = A.new("ar")
    if wave0_only:
        A("s_cmp_lg_u32 %s, 0" % s(sW))
        A("s_cbranch_scc1 %s" % sk)
    A("s_mov_b64 exec, 1")
    A("v_mov_b32 %s, 1" % v(vTmp))
    if TS.get('cnt') and n != 128:
        A("buffer_atomic_add %s, off, %s, %s" % (v(vTmp), s(sWS, 4), soff))
        A("s_mov_b64 exec, -1")
        A.label(sk)
        return
    A("buffer_atomic_add %s, off, %s, %s sc0" % (v(vTmp), s(sWS, 4), soff))
    A("s_waitcnt vmcnt(0)")
    A("v_cmpx_eq_u32 vcc, %d, %s" % (n - 1, v(vTmp)))
    A("s_cbranch_execz %s_x" % sk)
    A("buffer_store_dword %s, off, %s, %s offset:128 sc1" % (v(vTmp), s(sWS, 4), soff))
    A.label(sk + "_x")
    A("s_mov_b64 exec, -1")
    A.label(sk)

def canary(A, soff, imm=0, voff=None):
    lp, ok = A.new("cn"), A.new("cnok")
    A.label(lp)
    if voff is None:
        A("buffer_load_dword %s, off, %s, %s offset:%d sc1" % (v(vTmp), s(sWS, 4), soff, imm))
    else:
        A("buffer_load_dword %s, %s, %s, %s offen offset:%d sc1" % (v(vTmp), v(voff), s(sWS, 4), soff, imm))
    A("s_waitcnt vmcnt(0)")
    A("v_cmp_eq_u32 vcc, -1, %s" % v(vTmp))
    A("s_cbranch_vccz %s" % ok)
    A("s_sleep 1")
    A("s_sub_u32 %s, %s, 1" % (s(sBud), s(sBud)))
    A("s_cbranch_scc0 %s" % lp)
    A("s_mov_b32 %s, 0" % s(sBud))
    A.label(ok)
def maxchain(A, regs, first):
    regs = list(regs)
    if first:
        A("v_max_u32 %s, %s, %s" % (v(vTmp), v(regs[0]), v(regs[1])))
        regs = regs[2:]
    for i in range(0, len(regs), 2):
        A("v_max3_u32 %s, %s, %s, %s" % (v(vTmp), v(vTmp), v(regs[i]), v(regs[i + 1])))
def retry_if_sentinel(A, lagain):
    ok = A.new("sok")
    A("v_cmp_eq_u32 vcc, -1, %s" % v(vTmp))
    A("s_cbranch_vccz %s" % ok)
    A("s_sub_u32 %s, %s, 1" % (s(sBud), s(sBud)))
    A("s_cbranch_scc0 %s" % lagain)
    A("s_mov_b32 %s, 0" % s(sBud))
    A.label(ok)

def MF(A, d, a_, b_, c_):
    A("v_mfma_f32_16x16x32_bf16 %s, %s, %s, %s" % (d, a_, b_, c_))

sLW = 99
def stage_issue(A, chunks, c):
    srd, voff, so, _ = chunks[c]
    for j in range(4):
        A("s_add_u32 m0, %s, %d" % (s(sLW), (c % NSLOT) * 16384 + j * 1024))
        A("s_mov_b32 %s, %d" % (s(sT + 2), so[j]))
        A.vmem("buffer_load_dwordx4 %s, %s, %s offen lds" % (v(voff), s(srd, 4), s(sT + 2)), ('c', c))
def stage_start(A, chunks, depth=NSLOT - 1):
    A("s_lshl_b32 %s, %s, 12" % (s(sLW), s(sW)))
    for c in range(min(depth, len(chunks))):
        stage_issue(A, chunks, c)
def stage(A, chunks, started=False, depth=NSLOT - 1):
    if not started:
        stage_start(A, chunks, depth)
    n = len(chunks)
    for c in range(n):
        A.wait_vm(('c', c))
        A("s_barrier")
        if c + depth < n:
            stage_issue(A, chunks, c + depth)
        chunks[c][3]((c % NSLOT) * 16384)
        A.wait_ds()
    A("s_barrier")

def wide_off(A, dst, t1, rowstride, s_extra):
    A("v_lshlrev_b32 %s, 2, %s" % (v(t1), v(vG)))
    A("v_sub_u32 %s, %s, %s" % (v(t1), v(vLane), v(t1)))
    A("v_and_b32 %s, 15, %s" % (v(t1), v(t1)))
    A("v_lshlrev_b32 %s, 4, %s" % (v(t1), v(t1)))
    A("v_mul_u32_u24 %s, %d, %s" % (v(dst), rowstride, v(vG)))
    A("v_add_u32 %s, %s, %s" % (v(dst), v(dst), v(t1)))
    A("s_mul_i32 %s, %s, %d" % (s(sT + 3), s(sW), 16 * rowstride))
    A("s_add_u32 %s, %s, %s" % (s(sT + 3), s(sT + 3), s_extra))
    A("v_add_u32 %s, %s, %s" % (v(dst), s(sT + 3), v(dst)))

def wide_tr(A, dst, t1, s_col, ccmul):
    A("v_mul_u32_u24 %s, %d, %s" % (v(t1), ccmul, v(vX)))
    A("v_lshl_add_u32 %s, %s, 2, %s" % (v(t1), v(vC), v(t1)))
    A("v_add_u32 %s, %s, %s" % (v(t1), s_col, v(t1)))
    A("v_and_b32 %s, 15, %s" % (v(t1), v(t1)))
    A("v_lshlrev_b32 %s, 4, %s" % (v(t1), v(t1)))
    A("v_lshl_add_u32 %s, %s, 3, %s" % (v(dst), v(vG), v(vC)))
    A("v_lshl_add_u32 %s, %s, 8, %s" % (v(dst), v(dst), v(t1)))

def tall_off(A, dst, t1, s_extra):
    A("v_lshrrev_b32 %s, 3, %s" % (v(t1), v(vLane)))
    A("v_mul_u32_u24 %s, 1152, %s" % (v(dst), v(t1)))
    A("v_and_b32 %s, 7, %s" % (v(t1), v(vLane)))
    A("v_lshl_add_u32 %s, %s, 4, %s" % (v(dst), v(t1), v(dst)))
    A("s_mul_i32 %s, %s, %d" % (s(sT + 3), s(sW), 32 * 1152))
    A("s_add_u32 %s, %s, %s" % (s(sT + 3), s(sT + 3), s_extra))
    A("v_add_u32 %s, %s, %s" % (v(dst), s(sT + 3), v(dst)))

def tall_tr(A, dst, kbshift):
    A("v_lshl_add_u32 %s, %s, %d, %s" % (v(dst), v(vG), kbshift, v(vC)))
    A("v_lshlrev_b32 %s, 7, %s" % (v(dst), v(dst)))
    A("v_lshl_add_u32 %s, %s, 3, %s" % (v(dst), v(vX), v(dst)))
    A("s_lshl_b32 %s, %s, 5" % (s(sT + 3), s(sW)))
    A("v_add_u32 %s, %s, %s" % (v(dst), s(sT + 3), v(dst)))

def tr2(A, reg, addr, imm0, imm1):
    A.ds("ds_read_b64_tr_b16 %s, %s offset:%d" % (R(reg, 2), v(addr), imm0))
    A.ds("ds_read_b64_tr_b16 %s, %s offset:%d" % (R(reg + 2, 2), v(addr), imm1))

def x_dma(A, vXo, sSrc, sM0):
    for i in range(9):
        A("s_add_u32 m0, %s, %d" % (s(sM0), 896 * i))
        A("s_nop 0")
        A.vmem("buffer_load_dwordx4 %s, %s, %s offen offset:%d sc1 lds" % (v(vXo), s(sWS, 4), s(sSrc), 128 * i), 'x')

def gemm576(A, vXa, LAND, wreg, acc, ntile, swap, mid=None):
    def rd(ks):
        for tt in range(2):
            A.ds("ds_read_b128 %s, %s offset:%d" % (v(LAND + 8 * (ks & 1) + 4 * tt, 4), v(vXa + (ks & 1)), 18432 * tt + (ks >> 1) * 1024), ('x', ks))
    rd(0)
    for ks in range(18):
        A.wait_ds(('x', ks))
        n = 0
        for t in range(ntile):
            for tt in range(2):
                x = v(LAND + 8 * (ks & 1) + 4 * tt, 4)
                w = R(wreg(t, ks), 4)
                d = v(acc(t, tt), 4)
                if swap(t):
                    MF(A, d, x, w, "0" if ks == 0 else d)
                else:
                    MF(A, d, w, x, "0" if ks == 0 else d)
                n += 1
                if n == 1 and ks + 1 < 18:
                    rd(ks + 1)
        if mid and ks == 4:
            mid()

def wave_sum(A, r, t):
    for k in (8, 4, 2, 1):
        A("s_nop 1")
        A("v_add_f32_dpp %s, %s, %s row_ror:%d row_mask:0xf bank_mask:0xf" % (v(r), v(r), v(r), k))
    for op in ("v_permlane16_swap_b32", "v_permlane32_swap_b32"):
        A("v_mov_b32 %s, %s" % (v(t), v(r)))
        A("s_nop 1")
        A("%s %s, %s" % (op, v(r), v(t)))
        A("v_add_f32 %s, %s, %s" % (v(r), v(r), v(t)))

def rnd2(A, a, b):
    A("v_cvt_pk_bf16_f32 %s, %s, %s" % (v(b), v(a), v(b)))
    A("v_lshlrev_b32 %s, 16, %s" % (v(a), v(b)))
    A("v_and_b32 %s, 0xffff0000, %s" % (v(b), v(b)))
def rnd1(A, a):
    A("v_cvt_pk_bf16_f32 %s, %s, %s" % (v(a), v(a), v(a)))
    A("v_and_b32 %s, 0xffff0000, %s" % (v(a), v(a)))
def unpack(A, lo, hi, src):
    A("v_and_b32 %s, 0xffff0000, %s" % (v(hi), v(src))) if hi != src else None
    A("v_lshlrev_b32 %s, 16, %s" % (v(lo), v(src)))
    if hi == src:
        A("v_and_b32 %s, 0xffff0000, %s" % (v(hi), v(src)))

def row_offsets(A, vRow, vRow2, svalid, t):
    A("v_and_b32 %s, 7, %s" % (v(t), v(vLane)))
    A("v_lshlrev_b32 %s, 4, %s" % (v(vRow), v(t)))
    A("v_bfe_u32 %s, %s, 3, 1" % (v(t), v(vLane)))
    A("v_lshl_add_u32 %s, %s, 8, %s" % (v(vRow), v(t), v(vRow)))
    A("v_lshrrev_b32 %s, 1, %s" % (v(t), v(vG)))
    A("v_lshl_add_u32 %s, %s, 7, %s" % (v(vRow), v(t), v(vRow)))
    A("v_and_b32 %s, 1, %s" % (v(t), v(vG)))
    A("v_lshl_add_u32 %s, %s, 3, %s" % (v(vRow), v(t), v(vRow)))
    A("s_mov_b32 %s, 0x00ff00ff" % s(svalid))
    A("s_mov_b32 %s, 0" % s(svalid + 1))
    A("v_mov_b32 %s, 0x%x" % (v(t), OOB >> 1))
    A("v_cndmask_b32 %s, %s, %s, %s" % (v(vRow2), v(t), v(vRow), s(svalid, 2)))

def load_mod(A, dst, which, vRow, vRow2, t1, t2):
    A("v_lshlrev_b32 %s, 1, %s" % (v(t1), v(vRow)))
    A("v_lshlrev_b32 %s, 1, %s" % (v(t2), v(vRow2)))
    A("s_mov_b32 %s, %d" % (s(sT + 2), WS_MOD + which * 2304))
    for U in range(3):
        A.vmem("buffer_load_dwordx4 %s, %s, %s, %s offen offset:%d sc1" % (v(dst + 4 * U, 4), v(t1 if U < 2 else t2), s(sWS, 4), s(sT + 2), 1024 * U), 'mod')

def ln_stats(A, X, D, svalid, m, rs, t):
    A("v_add_f32 %s, %s, %s" % (v(m), v(X), v(X + 1)))
    for i in range(2, 12):
        A("v_add_f32 %s, %s, %s" % (v(m), v(m), v(X + i)))
    wave_sum(A, m, t)
    A("v_mul_f32 %s, 0x%x, %s" % (v(m), f32bits(1.0 / 576), v(m)))
    for i in range(12):
        A("v_sub_f32 %s, %s, %s" % (v(D + i), v(X + i), v(m)))
    A("v_mul_f32 %s, %s, %s" % (v(rs), v(D + 8), v(D + 8)))
    for i in range(9, 12):
        A("v_fmac_f32 %s, %s, %s" % (v(rs), v(D + i), v(D + i)))
    A("v_cndmask_b32 %s, 0, %s, %s" % (v(rs), v(rs), s(svalid, 2)))
    for i in range(8):
        A("v_fmac_f32 %s, %s, %s" % (v(rs), v(D + i), v(D + i)))
    wave_sum(A, rs, t)
    A("v_mul_f32 %s, 0x%x, %s" % (v(rs), f32bits(1.0 / 576), v(rs)))
    rnd2(A, m, rs)
    A("v_add_f32 %s, 0x%x, %s" % (v(rs), f32bits(1e-5), v(rs)))
    rnd1(A, rs)
    A("v_sqrt_f32 %s, %s" % (v(rs), v(rs)))
    A("s_nop 0")
    rnd1(A, rs)
    A("v_rcp_f32 %s, %s" % (v(rs), v(rs)))
    A("s_nop 0")

def ln_apply(A, X, m, rs, C1, SH, out):
    for i in range(12):
        A("v_sub_f32 %s, %s, %s" % (v(X + i), v(X + i), v(m)))
    for i in range(0, 12, 2):
        rnd2(A, X + i, X + i + 1)
    for i in range(12):
        A("v_mul_f32 %s, %s, %s" % (v(X + i), v(X + i), v(rs)))
    for i in range(0, 12, 2):
        rnd2(A, X + i, X + i + 1)
    for i in range(12):
        A("v_mul_f32 %s, %s, %s" % (v(X + i), v(X + i), v(C1 + i)))
    for i in range(0, 12, 2):
        rnd2(A, X + i, X + i + 1)
    for i in range(12):
        A("v_add_f32 %s, %s, %s" % (v(X + i), v(X + i), v(SH + i)))
    for i in range(6):
        A("v_cvt_pk_bf16_f32 %s, %s, %s" % (v(out + i), v(X + 2 * i), v(X + 2 * i + 1)))

def one_plus(A, C):
    for i in range(12):
        A("v_add_f32 %s, 1.0, %s" % (v(C + i), v(C + i)))
    for i in range(0, 12, 2):
        rnd2(A, C + i, C + i + 1)

def row_io(A, op, reg, vRow, vRow2, srd, soff, flags=""):
    for U in range(3):
        A.vmem("buffer_%s_dwordx2 %s, %s, %s, %s offen offset:%d%s" % (op, v(reg + 2 * U, 2), v(vRow if U < 2 else vRow2), s(srd, 4), soff, 512 * U, flags), 'row')

def sel_masks(A):
    for hi in range(2):
        for u in range(4):
            m16 = (3 << (2 * u)) << (8 * hi)
            m32 = m16 | (m16 << 16)
            A("s_mov_b32 %s, 0x%x" % (s(sSel + 8 * hi + 2 * u), m32))
            A("s_mov_b32 %s, 0x%x" % (s(sSel + 8 * hi + 2 * u + 1), m32))
def make_sel(A, dst, hi, t):
    A("v_and_b32 %s, 1, %s" % (v(t), v(vLane)))
    A("v_lshlrev_b32 %s, 4, %s" % (v(t), v(t)))
    A("v_mov_b32 %s, 0x3f80" % v(dst))
    A("v_lshlrev_b32 %s, %s, %s" % (v(t), v(t), v(dst)))
    for u in range(4):
        A("v_cndmask_b32 %s, 0, %s, %s" % (v(dst + u), v(t), s(sSel + 8 * hi + 2 * u, 2)))

def emit_worker(A, opt=()):
    A.c("=========== worker ===========")
    A("v_mov_b32 %s, v0" % v(vLane))
    A("v_lshlrev_b32 %s, 4, %s" % (v(vL16), v(vLane)))
    A("v_lshrrev_b32 %s, 4, %s" % (v(vG), v(vLane)))
    A("v_bfe_u32 %s, %s, 2, 2" % (v(vC), v(vLane)))
    A("v_and_b32 %s, 3, %s" % (v(vX), v(vLane)))
    A("s_mov_b32 %s, 1000000" % s(sBud))
    TS['on'], TS['reg'], TS['fine'] = "ts" in opt, 79, "fs" in opt
    D1 = ([int(o[3:]) for o in opt if o.startswith("d1=")] + [8])[0]
    TS['cnt'] = "cnt" in opt
    TS['slp'] = ([int(o[4:]) for o in opt if o.startswith("slp=")] + [2])[0]
    TS['d2'] = ([int(o[3:]) for o in opt if o.startswith("d2=")] + [2])[0]
    ts(A, 0)
    sel_masks(A)
    build_srd(A, sXS, 0, 2359296)
    vRow, vRow2 = 7, 8
    sValid = sMask
    row_offsets(A, vRow, vRow2, sValid, vTmp)
    A("s_mul_i32 %s, %s, 9363" % (s(sSl), s(sWid)))
    A("s_lshr_b32 %s, %s, 16" % (s(sSl), s(sSl)))
    A("s_mul_i32 %s, %s, 7" % (s(sT), s(sSl)))
    A("s_sub_u32 %s, %s, %s" % (s(sRep), s(sWid), s(sT)))
    vOffW, vTr, vAd = 77, 78, 11
    A("s_lshl_b32 %s, %s, 8" % (s(sT + 1), s(sSl)))
    wide_off(A, vOffW, vTmp, 8192, s(sT + 1))
    A("s_lshr_b32 %s, %s, 1" % (s(sT + 1), s(sW)))
    A("s_lshl_b32 %s, %s, 3" % (s(sT + 1), s(sT + 1)))
    A("s_and_b32 %s, %s, 1" % (s(sT + 2), s(sW)))
    A("s_add_u32 %s, %s, %s" % (s(sT + 1), s(sT + 1), s(sT + 2)))
    wide_tr(A, vTr, vTmp, s(sT + 1), 2)
    W0 = 80
    def wq(t, ks):
        return W0 + 4 * (6 * ks + t)
    def wide_chunks(mats, rowstride, wreg, vOffW=vOffW, vTr=vTr):
        out = []
        for G in range(9):
            for m, srd in enumerate(mats):
                def consume(base, m=m, G=G):
                    A("v_add_u32 %s, %d, %s" % (v(vAd), base, v(vTr)))
                    for k2 in range(2):
                        for t in range(2):
                            tr2(A, wreg(2 * m + t, 2 * G + k2), vAd, 32 * k2 * 256 + 8 * t, (32 * k2 + 4) * 256 + 8 * t)
                out.append((srd, vOffW, [(64 * G + 4 * j) * rowstride for j in range(4)], consume))
        return out
    qchunks = wide_chunks((sW1, sW2, sW3), 8192, wq)
    lmod, lpre_done, lidle = A.new("mod"), A.new("predone"), A.new("idle")
    XR = 16
    A("s_cmp_lt_u32 %s, 3" % s(sRep))
    A("s_cbranch_scc1 %s" % lmod)
    A("s_lshl_b32 %s, %s, 2" % (s(sT), s(sSl)))
    A("s_add_u32 %s, %s, %s" % (s(sT), s(sT), s(sRep)))
    A("s_sub_u32 %s, %s, 3" % (s(sT), s(sT)))
    A("s_lshl_b32 %s, %s, 2" % (s(sT), s(sT)))
    A("s_add_u32 %s, %s, %s" % (s(sT), s(sT), s(sW)))
    A("s_mul_i32 %s, %s, %d" % (s(sA0), s(sT), 4 * 1152))
    for r in range(4):
        A("s_add_u32 %s, %s, %d" % (s(sT), s(sA0), r * 1152))
        row_io(A, "load", XR + 6 * r, vRow, vRow2, sXS, s(sT))
    stage_start(A, qchunks, D1)
    A("s_waitcnt vmcnt(%d)" % (4 * D1))
    SH, C1, XF = 40, 52, 100
    for r in range(4):
        for i in range(6):
            unpack(A, XF + 12 * r + 2 * i, XF + 12 * r + 2 * i + 1, XR + 6 * r + i)
        ln_stats(A, XF + 12 * r, 160, sValid, 64 + 2 * r, 65 + 2 * r, 11)
    wait_flags(A, None, "0", srd=sDBG, imm=DBG_MOD)
    load_mod(A, SH, 0, vRow, vRow2, 9, 10)
    load_mod(A, C1, 1, vRow, vRow2, 9, 10)
    A("s_waitcnt vmcnt(0)")
    one_plus(A, C1)
    for r in range(4):
        ln_apply(A, XF + 12 * r, 64 + 2 * r, 65 + 2 * r, C1, SH, XR + 6 * r)
        A("s_add_u32 %s, %s, %d" % (s(sT), s(sA0), WS_H + r * 1152))
        row_io(A, "store", XR + 6 * r, vRow, vRow2, sWS, s(sT), " sc1")
    A("s_waitcnt vmcnt(0)")
    A("s_barrier")
    A("s_mov_b32 %s, %d" % (s(sT), FL_H))
    arrive(A, s(sT), 128)
    A("s_branch %s" % lpre_done)

    A.label(lmod)
    A("s_cmp_eq_u32 %s, 0" % s(sRep))
    A("s_cbranch_scc1 %s" % lidle)
    A("s_cmp_ge_u32 %s, 27" % s(sSl))
    A("s_cbranch_scc1 %s" % lidle)
    build_srd(A, sA0 + 2, 88, 1152)
    build_srd(A, sA0 + 6, 96, 3981312)
    sCs, sWm = sA0 + 2, sA0 + 6
    A("s_lshl_b32 %s, %s, 1" % (s(sA0), s(sSl)))
    A("s_add_u32 %s, %s, %s" % (s(sA0), s(sA0), s(sRep)))
    A("s_sub_u32 %s, %s, 1" % (s(sA0), s(sA0)))
    for i in range(4):
        A("v_mov_b32 %s, 0" % v(12 + i))
    A("s_lshl_b32 %s, %s, 2" % (s(sT), s(sA0)))
    A("s_add_u32 %s, %s, %s" % (s(sT), s(sT), s(sW)))
    A("s_lshl_b32 %s, %s, 11" % (s(sT), s(sT)))
    A("s_add_u32 %s, %s, %d" % (s(sT), s(sT), WS_FL))
    assert FL_END - WS_FL <= 54 * 8192
    A("buffer_store_dwordx4 %s, %s, %s, %s offen sc1" % (v(12, 4), v(vL16), s(sWS, 4), s(sT)))
    A("buffer_store_dwordx4 %s, %s, %s, %s offen offset:1024 sc1" % (v(12, 4), v(vL16), s(sWS, 4), s(sT)))
    A("v_lshrrev_b32 %s, 3, %s" % (v(9), v(vLane)))
    A("s_mul_i32 %s, %s, 144" % (s(sT), s(sW)))
    A("v_add_u32 %s, %s, %s" % (v(9), s(sT), v(9)))
    A("v_lshlrev_b32 %s, 1, %s" % (v(10), v(9)))
    A("v_mul_u32_u24 %s, 6912, %s" % (v(9), v(9)))
    A("v_and_b32 %s, 7, %s" % (v(11), v(vLane)))
    A("v_lshl_add_u32 %s, %s, 4, %s" % (v(9), v(11), v(9)))
    A("s_lshl_b32 %s, %s, 7" % (s(sT), s(sA0)))
    CV, WV, ACC = 100, 120, 200
    for i in range(18):
        A("buffer_load_ushort %s, %s, %s, 0 offen offset:%d" % (v(CV + i), v(10), s(sCs, 4), 16 * i))
    for i in range(18):
        A("s_add_u32 %s, %s, %d" % (s(sT + 1), s(sT), i * 55296))
        A("buffer_load_dwordx4 %s, %s, %s, %s offen" % (v(WV + 4 * i, 4), v(9), s(sWm, 4), s(sT + 1)))
    A("s_waitcnt vmcnt(18)")
    for i in range(18):
        c = CV + i
        A("v_lshlrev_b32 %s, 16, %s" % (v(c), v(c)))
        A("v_mul_f32 %s, 0x%x, %s" % (v(12), f32bits(-math.log2(math.e)), v(c)))
        A("v_exp_f32 %s, %s" % (v(12), v(12)))
        A("s_nop 0")
        A("v_add_f32 %s, 1.0, %s" % (v(12), v(12)))
        A("v_rcp_f32 %s, %s" % (v(12), v(12)))
        A("s_nop 0")
        A("v_mul_f32 %s, %s, %s" % (v(c), v(c), v(12)))
        rnd1(A, c)
    for j in range(8):
        A("v_mov_b32 %s, 0" % v(ACC + j))
    A("s_waitcnt vmcnt(0)")
    for i in range(18):
        for j in range(4):
            unpack(A, 12, 13, WV + 4 * i + j)
            A("v_fmac_f32 %s, %s, %s" % (v(ACC + 2 * j), v(12), v(CV + i)))
            A("v_fmac_f32 %s, %s, %s" % (v(ACC + 2 * j + 1), v(13), v(CV + i)))
    for j in range(8):
        r = ACC + j
        A("s_nop 1")
        A("v_add_f32_dpp %s, %s, %s row_ror:8 row_mask:0xf bank_mask:0xf" % (v(r), v(r), v(r)))
        for op in ("v_permlane16_swap_b32", "v_permlane32_swap_b32"):
            A("v_mov_b32 %s, %s" % (v(12), v(r)))
            A("s_nop 1")
            A("%s %s, %s" % (op, v(r), v(12)))
            A("v_add_f32 %s, %s, %s" % (v(r), v(r), v(12)))
    A("s_lshl_b32 %s, %s, 8" % (s(sT + 1), s(sW)))
    A("s_add_u32 %s, %s, %d" % (s(sT + 1), s(sT + 1), L_SCR))
    A("v_lshlrev_b32 %s, 5, %s" % (v(11), v(11)))
    A("v_add_u32 %s, %s, %s" % (v(11), s(sT + 1), v(11)))
    A("ds_write_b128 %s, %s" % (v(11), v(ACC, 4)))
    A("ds_write_b128 %s, %s offset:16" % (v(11), v(ACC + 4, 4)))
    A("s_waitcnt lgkmcnt(0)")
    A("s_barrier")
    A("v_lshlrev_b32 %s, 2, %s" % (v(10), v(vLane)))
    A("v_add_u32 %s, %d, %s" % (v(11), L_SCR, v(10)))
    for i in range(4):
        A("ds_read_b32 %s, %s offset:%d" % (v(12 + i), v(11), 256 * i))
    A("s_waitcnt lgkmcnt(0)")
    A("v_add_f32 %s, %s, %s" % (v(12), v(12), v(13)))
    A("v_add_f32 %s, %s, %s" % (v(14), v(14), v(15)))
    A("v_add_f32 %s, %s, %s" % (v(12), v(12), v(14)))
    rnd1(A, 12)
    A("s_lshl_b32 %s, %s, 8" % (s(sT), s(sA0)))
    A("s_add_u32 %s, %s, %d" % (s(sT), s(sT), WS_MOD))
    sk = A.new("modw")
    A("s_cmp_lg_u32 %s, 0" % s(sW))
    A("s_cbranch_scc1 %s" % sk)
    A("buffer_store_dword %s, %s, %s, %s offen sc1" % (v(12), v(10), s(sWS, 4), s(sT)))
    A("s_waitcnt vmcnt(0)")
    A("s_mov_b64 exec, 1")
    A("v_mov_b32 %s, 1" % v(12))
    A("buffer_atomic_add %s, off, %s, 0 offset:%d sc0" % (v(12), s(sDBG, 4), DBG_MODC))
    A("s_waitcnt vmcnt(0)")
    A("v_cmpx_eq_u32 vcc, 53, %s" % v(12))
    A("s_cbranch_execz %s_x" % sk)
    A("buffer_store_dword %s, off, %s, 0 offset:%d sc1" % (v(12), s(sDBG, 4), DBG_MOD))
    A.label(sk + "_x")
    A("s_mov_b64 exec, -1")
    A.label(sk)
    A.label(lidle)
    stage_start(A, qchunks, D1)
    A.label(lpre_done)
    ts(A, 1)

    A.vm, A.lds = [('c', c) for c in range(D1) for j in range(4)], []
    stage(A, qchunks, started=True, depth=D1)
    ts(A, 2)
    wait_flags(A, None, "0", srd=sDBG, imm=DBG_MOD)
    ts(A, 3)
    ts(A, 4)
    if TS['on']:
        A("v_mov_b32 v15, v79")
        A("s_mov_b32 %s, 8" % s(sTsI))
        TS['reg'] = 15
    A("s_mov_b32 %s, %d" % (s(sT), FL_H))
    wait_flags(A, None, s(sT), imm=128)
    ts(A, 5)
    vXo, vXa = 9, 10
    LAND, ACC = 16, 32
    sSrc, sM0x, sQo, sKo, sFlag, sBuf = sA0, sA0 + 1, sA0 + 2, sA0 + 3, sA0 + 4, sA0 + 5
    def xsetup(vXa):
        A("v_lshrrev_b32 %s, 3, %s" % (v(vTmp), v(vLane)))
        A("v_xor_b32 %s, %s, %s" % (v(vXa), v(vTmp), v(vLane)))
        A("v_and_b32 %s, 7, %s" % (v(vXa), v(vXa)))
        A("v_mul_u32_u24 %s, 1152, %s" % (v(vXo), v(vTmp)))
        A("v_lshl_add_u32 %s, %s, 4, %s" % (v(vXo), v(vXa), v(vXo)))
        A("s_mul_i32 %s, %s, 9216" % (s(sM0x), s(sW)))
        A("v_add_u32 %s, %s, %s" % (v(vXo), s(sM0x), v(vXo)))
        A("v_and_b32 %s, 7, %s" % (v(vTmp), v(vLane)))
        A("v_xor_b32 %s, %s, %s" % (v(vXa), v(vG), v(vTmp)))
        A("v_lshlrev_b32 %s, 4, %s" % (v(vXa), v(vXa)))
        A("v_lshl_add_u32 %s, %s, 7, %s" % (v(vXa), v(vTmp), v(vXa)))
        A("v_bfe_u32 %s, %s, 3, 1" % (v(vTmp), v(vLane)))
        A("v_mul_u32_u24 %s, 9216, %s" % (v(vTmp), v(vTmp)))
        A("v_add_u32 %s, %s, %s" % (v(vXa), v(vXa), v(vTmp)))
        A("v_xor_b32 %s, 64, %s" % (v(vXa + 1), v(vXa)))
    xsetup(vXa)
    A("s_mov_b32 %s, %s" % (s(sSeg), s(sRep)))
    A("s_mul_i32 %s, %s, 36864" % (s(sSrc), s(sSeg)))
    A("s_add_u32 %s, %s, %d" % (s(sSrc), s(sSrc), WS_H))
    A("s_lshl_b32 %s, %s, 5" % (s(sT), s(sSeg)))
    A("s_add_u32 %s, %s, %s" % (s(sT), s(sT), s(sSl)))
    A("s_lshl_b32 %s, %s, 10" % (s(sT + 1), s(sW)))
    A("s_lshl_b32 %s, %s, 13" % (s(sQo), s(sT)))
    A("s_add_u32 %s, %s, %s" % (s(sQo), s(sQo), s(sT + 1)))
    A("s_add_u32 %s, %s, %d" % (s(sQo), s(sQo), WS_Q))
    A("s_lshl_b32 %s, %s, 14" % (s(sKo), s(sT)))
    A("s_add_u32 %s, %s, %s" % (s(sKo), s(sKo), s(sT + 1)))
    if WS_KV:
        A("s_add_u32 %s, %s, %d" % (s(sKo), s(sKo), WS_KV))
    A("s_mov_b32 %s, 0x%x" % (s(sFlag), OOB))
    A.vm = []
    x_dma(A, vXo, sSrc, sM0x)
    A("s_waitcnt vmcnt(0)")
    ltop, lend = A.new("qkv"), A.new("qkvend")
    A.label(ltop)
    lq1, lq2 = A.new("q1"), A.new("q2")
    A("s_cmp_ge_u32 %s, 14" % s(sSeg))
    A("s_cbranch_scc1 %s" % lq1)
    A("s_waitcnt vmcnt(0)")
    A("s_barrier")
    set_flag(A, s(sFlag))
    A("s_branch %s" % lq2)
    A.label(lq1)
    A("s_waitcnt vmcnt(7)")
    A("s_barrier")
    A.label(lq2)
    ts(A)
    fs(A, 20)
    A("s_xor_b32 %s, %s, 0x10000" % (s(sM0x), s(sM0x)))
    A("s_add_u32 %s, %s, %d" % (s(sSrc), s(sSrc), 7 * 36864))
    x_dma(A, vXo, sSrc, sM0x)
    def mid():
        A("s_waitcnt vmcnt(9)")
        A("s_barrier")
        set_flag(A, s(sFlag))
    fs(A, 21)
    A.lds = []
    gemm576(A, vXa, LAND, wq, lambda t, tt: ACC + 8 * t + 4 * tt, 6, lambda t: t >= 4, mid)
    fs(A, 22)
    A("v_xor_b32 %s, 0x10000, %s" % (v(vXa), v(vXa)))
    A("v_xor_b32 %s, 0x10000, %s" % (v(vXa + 1), v(vXa + 1)))
    A("s_lshl_b32 %s, %s, 8" % (s(sFlag), s(sSl)))
    A("s_lshl_b32 %s, %s, 2" % (s(sT), s(sSeg)))
    A("s_add_u32 %s, %s, %s" % (s(sFlag), s(sFlag), s(sT)))
    A("s_add_u32 %s, %s, %d" % (s(sFlag), s(sFlag), FL_KV))
    A("s_add_u32 %s, %s, 4096" % (s(sT), s(sQo)))
    A("s_add_u32 %s, %s, 4096" % (s(sT + 1), s(sKo)))
    A("s_lshl_b32 %s, %s, 10" % (s(sT + 2), s(sW)))
    A("s_add_u32 %s, %s, %s" % (s(sT + 2), s(sT + 2), s(sKo)))
    A("s_add_u32 %s, %s, 8192" % (s(sT + 2), s(sT + 2)))
    for m in range(2):
        for tt in range(2):
            a0, a1 = ACC + 16 * m + 4 * tt, ACC + 16 * m + 8 + 4 * tt
            for x in range(4):
                A("v_cvt_pk_bf16_f32 %s, %s, %s" % (v(a0 + x), v(a0 + x), v(a1 + x)))
            so = (sQo, sT, sKo, sT + 1)[2 * m + tt]
            A("buffer_store_dwordx4 %s, %s, %s, %s offen sc1" % (v(a0, 4), v(vL16), s(sWS, 4), s(so)))
    for t in range(2):
        a0 = ACC + 32 + 8 * t
        A("v_cvt_pk_bf16_f32 %s, %s, %s" % (v(a0), v(a0), v(a0 + 1)))
        A("v_cvt_pk_bf16_f32 %s, %s, %s" % (v(a0 + 1), v(a0 + 2), v(a0 + 3)))
        A("v_cvt_pk_bf16_f32 %s, %s, %s" % (v(a0 + 2), v(a0 + 4), v(a0 + 5)))
        A("v_cvt_pk_bf16_f32 %s, %s, %s" % (v(a0 + 3), v(a0 + 6), v(a0 + 7)))
        A("buffer_store_dwordx4 %s, %s, %s, %s offen offset:%d sc1" % (v(a0, 4), v(vL16), s(sWS, 4), s(sT + 2), 1024 * t))
    A("v_mov_b64 %s, -1" % v(LAND, 2))
    A("v_mov_b64 %s, -1" % v(LAND + 2, 2))
    A("s_sub_u32 %s, %s, %d" % (s(sT), s(sQo), WS_Q))
    A("s_lshl_b32 %s, %s, 10" % (s(sT + 1), s(sW)))
    A("s_add_u32 %s, %s, %s" % (s(sT), s(sT), s(sT + 1)))
    A("s_lshr_b32 %s, %s, 1" % (s(sT), s(sT)))
    A("s_add_u32 %s, %s, %d" % (s(sT), s(sT), WS_KM))
    A("buffer_store_dwordx4 %s, %s, %s, %s offen sc1" % (v(LAND, 4), v(vL16), s(sWS, 4), s(sT)))
    fs(A, 23)
    A("s_add_u32 %s, %s, %d" % (s(sQo), s(sQo), 7 * 32 * 8192))
    A("s_add_u32 %s, %s, %d" % (s(sKo), s(sKo), 7 * 32 * 16384))
    A("s_add_u32 %s, %s, 7" % (s(sSeg), s(sSeg)))
    A("s_cmp_lt_u32 %s, 64" % s(sSeg))
    A("s_cbranch_scc1 %s" % ltop)
    A("s_waitcnt vmcnt(0)")
    A("s_barrier")
    set_flag(A, s(sFlag))
    ts(A, 6)
    ts_dump(A, 0)
    if "p1only" in opt:
        return
    lC = A.new("roleC")
    A("s_cmp_ge_u32 %s, 80" % s(sWid))
    A("s_cbranch_scc1 %s" % lC)
    lB = A.new("roleB")
    A("s_cmp_ge_u32 %s, 64" % s(sWid))
    A("s_cbranch_scc1 %s" % lB)
    emit_roleA(A, opt)
    A("s_endpgm")
    A.label(lB)
    emit_roleB(A, vRow, vRow2, sValid, opt)
    A("s_endpgm")
    A.label(lC)
    emit_roleC(A, xsetup, wide_chunks, opt)

def emit_roleA(A, opt):
    A.c("=========== role A: attention + Wo partial ===========")
    A("s_lshr_b32 %s, %s, 2" % (s(sSl), s(sWid)))
    A("s_and_b32 %s, %s, 3" % (s(sRep), s(sWid)))
    vOff, vTr, vAd = 9, 10, 11
    A("s_mul_i32 %s, %s, %d" % (s(sT + 1), s(sSl), 2 * 147456))
    tall_off(A, vOff, vTmp, s(sT + 1))
    tall_tr(A, vTr, 4)
    W0 = 224
    def wo(G, K):
        return W0 + 4 * (8 * G + K)
    chunks = []
    for hd in range(2):
        for G in range(9):
            def consume(base, hd=hd, G=G):
                A("v_add_u32 %s, %d, %s" % (v(vAd), base, v(vTr)))
                for ks in range(4):
                    r0 = 64 * (ks >> 1) + 8 * (ks & 1)
                    tr2(A, wo(G, 4 * hd + ks), vAd, r0 * 128, (r0 + 4) * 128)
            chunks.append((sWO, vOff, [hd * 147456 + 8 * j * 1152 + 128 * G for j in range(4)], consume))
    A.vm, A.lds = ['old'] * 2, []
    stage(A, chunks, depth=TS['d2'])
    TS['reg'] = 19
    ts(A)
    vKM, vL4, vOwr, vTw, vTrd, vPst, vPld, vNEG = 9, 10, 11, 12, 13, 14, 15, 16
    GA, SB, CB = 20, 32, 44
    SEL0, SEL1 = 56, 60
    QF, KX, VX, KM, VM = 64, 80, 112, 144, 160
    S_, OA = 176, 188
    WACC, LAND = 144, 216
    L_OT, L_PT = 0, 16384
    PSTR = 1168
    A("v_lshlrev_b32 %s, 2, %s" % (v(vL4), v(vLane)))
    A("v_lshrrev_b32 %s, 1, %s" % (v(vTmp), v(vG)))
    A("v_lshlrev_b32 %s, 10, %s" % (v(vKM), v(vTmp)))
    A("v_and_b32 %s, 1, %s" % (v(vTmp), v(vX)))
    A("v_lshl_add_u32 %s, %s, 8, %s" % (v(vKM), v(vTmp), v(vKM)))
    A("v_lshl_add_u32 %s, %s, 6, %s" % (v(vKM), v(vC), v(vKM)))
    A("v_and_b32 %s, 1, %s" % (v(vTmp), v(vG)))
    A("v_lshl_add_u32 %s, %s, 5, %s" % (v(vKM), v(vTmp), v(vKM)))
    A("s_and_b32 %s, %s, 1" % (s(sT), s(sW)))
    A("s_lshl_b32 %s, %s, 13" % (s(sT + 1), s(sT)))
    A("s_lshr_b32 %s, %s, 1" % (s(sT + 2), s(sW)))
    A("s_lshl_b32 %s, %s, 12" % (s(sT + 3), s(sT + 2)))
    A("s_add_u32 %s, %s, %s" % (s(sT + 1), s(sT + 1), s(sT + 3)))
    A("v_add_u32 %s, %s, %s" % (v(vOwr), s(sT + 1), v(vL16)))
    A("v_and_b32 %s, 15, %s" % (v(17), v(vLane)))
    A("s_lshl_b32 %s, %s, 4" % (s(sT + 1), s(sT)))
    A("v_add_u32 %s, %s, %s" % (v(17), s(sT + 1), v(17)))
    A("v_lshlrev_b32 %s, 2, %s" % (v(18), v(vG)))
    A("v_sub_u32 %s, %s, %s" % (v(17), v(17), v(18)))
    sCM = sA0 + 6
    for i in range(8):
        A("v_cmp_le_i32 %s, %d, %s" % (s(sCM + 2 * i, 2), 16 * (i >> 2) + (i & 3), v(17)))
    A("v_mov_b32 %s, 0x%x" % (v(vNEG), f32bits(-1e9)))
    A("v_and_b32 %s, 15, %s" % (v(vTmp), v(vLane)))
    A("v_mul_u32_u24 %s, %d, %s" % (v(vTw), PSTR, v(vTmp)))
    A("v_lshl_add_u32 %s, %s, 3, %s" % (v(vTw), v(vG), v(vTw)))
    A("s_lshl_b32 %s, %s, 5" % (s(sT + 1), s(sW)))
    A("s_add_u32 %s, %s, %d" % (s(sT + 1), s(sT + 1), L_PT))
    A("v_add_u32 %s, %s, %s" % (v(vTw), s(sT + 1), v(vTw)))
    A("v_lshrrev_b32 %s, 3, %s" % (v(17), v(vLane)))
    A("v_and_b32 %s, 7, %s" % (v(18), v(vLane)))
    A("v_lshlrev_b32 %s, 4, %s" % (v(18), v(18)))
    A("s_lshl_b32 %s, %s, 3" % (s(sT + 1), s(sW)))
    A("v_add_u32 %s, %s, %s" % (v(17), s(sT + 1), v(17)))
    A("v_mul_u32_u24 %s, %d, %s" % (v(vTrd), PSTR, v(17)))
    A("v_add_u32 %s, %s, %s" % (v(vTrd), v(vTrd), v(18)))
    A("v_add_u32 %s, %d, %s" % (v(vTrd), L_PT, v(vTrd)))
    A("v_mul_u32_u24 %s, 18432, %s" % (v(vPst), v(17)))
    A("v_add_u32 %s, %s, %s" % (v(vPst), v(vPst), v(18)))
    A("s_mul_i32 %s, %s, 1152" % (s(sT + 1), s(sSl)))
    A("v_add_u32 %s, %s, %s" % (v(vPst), s(sT + 1), v(vPst)))
    sHead, sSH, sPAo, sRowo = sA0, sA0 + 1, sA0 + 2, sA0 + 3
    A("s_lshl_b32 %s, %s, 1" % (s(sHead), s(sSl)))
    A("s_lshr_b32 %s, %s, 1" % (s(sT), s(sW)))
    A("s_add_u32 %s, %s, %s" % (s(sHead), s(sHead), s(sT)))
    A("s_mov_b32 %s, %s" % (s(sSeg), s(sRep)))
    A("s_lshl_b32 %s, %s, 8" % (s(sT), s(sHead)))
    A("s_add_u32 %s, %s, %d" % (s(sT), s(sT), FL_KV))
    wait_flags(A, vL4, s(sT))
    A("s_lshl_b32 %s, %s, 5" % (s(sSH), s(sSeg)))
    A("s_add_u32 %s, %s, %s" % (s(sSH), s(sSH), s(sHead)))
    def prefetch():
        A("s_lshl_b32 %s, %s, 13" % (s(sT), s(sSH)))
        A("s_and_b32 %s, %s, 1" % (s(sT + 1), s(sW)))
        A("s_lshl_b32 %s, %s, 12" % (s(sT + 1), s(sT + 1)))
        A("s_add_u32 %s, %s, %s" % (s(sT), s(sT), s(sT + 1)))
        A("s_add_u32 %s, %s, %d" % (s(sT), s(sT), WS_Q))
        for i in range(4):
            A("buffer_load_dwordx4 %s, %s, %s, %s offen offset:%d sc1" % (v(QF + 4 * i, 4), v(vL16), s(sWS, 4), s(sT), 1024 * i))
        A("s_lshl_b32 %s, %s, 14" % (s(sT), s(sSH)))
        if WS_KV:
            A("s_add_u32 %s, %s, %d" % (s(sT), s(sT), WS_KV))
        for b in range(4):
            for i in range(4):
                A("buffer_load_dwordx4 %s, %s, %s, %s offen offset:%d sc1" % (v(KX + 16 * b + 4 * i, 4), v(vL16), s(sWS, 4), s(sT), 1024 * i))
            if b < 3:
                A("s_add_u32 %s, %s, 4096" % (s(sT), s(sT)))
    A("v_mov_b64 %s, -1" % v(20, 2))
    A("v_mov_b64 %s, -1" % v(22, 2))
    for s0 in range(FAST0, 64, 4):
        A("s_add_u32 %s, %s, %d" % (s(sT), s(sRep), s0))
        A("s_mul_i32 %s, %s, %d" % (s(sT), s(sT), PA_SEG))
        A("s_add_u32 %s, %s, %d" % (s(sT), s(sT), WS_PA))
        for G in range(9):
            A("buffer_store_dwordx4 %s, %s, %s, %s offen offset:%d sc1" % (v(20, 4), v(vPst), s(sWS, 4), s(sT), 128 * G))
    PFL = ([int(o[4:]) for o in opt if o.startswith("pfl=")] + [32])[0]
    lpf = A.new("apf")
    A.label(lpf)
    prefetch()
    ltop = A.new("atop")
    A.label(ltop)
    T1, T2, T0 = S_, S_ + 4, S_ + 8
    sv = [S_ + i for i in range(10)]
    m1, m2 = 17, 18
    def prep_scores(vals):
        for i in range(0, len(vals), 2):
            rnd2(A, vals[i], vals[i + 1])
        for x in vals:
            A("v_mul_f32 %s, 0x%x, %s" % (v(x), f32bits(128 ** -0.5), v(x)))
        for i in range(0, len(vals), 2):
            rnd2(A, vals[i], vals[i + 1])
    A("s_waitcnt vmcnt(0)")
    for ks in range(4):
        MF(A, v(T1, 4), v(KX + 4 * ks, 4), v(QF + 4 * ks, 4), "0" if ks == 0 else v(T1, 4))
        MF(A, v(T2, 4), v(KX + 16 + 4 * ks, 4), v(QF + 4 * ks, 4), "0" if ks == 0 else v(T2, 4))
    for T in range(8):
        A("v_mov_b32 %s, 0" % v(VM + 2 * T + 1))
    A("s_lshl_b32 %s, %s, 12" % (s(sRowo), s(sSH)))
    A("s_add_u32 %s, %s, %d" % (s(sRowo), s(sRowo), WS_KM))
    prep_scores(sv[:8])
    for i in range(8):
        A("v_cndmask_b32 %s, %s, %s, %s" % (v(sv[i]), v(vNEG), v(sv[i]), s(sCM + 2 * i, 2)))
    A("v_max3_f32 %s, %s, %s, %s" % (v(m1), v(sv[0]), v(sv[1]), v(sv[2])))
    for i in (3, 5):
        A("v_max3_f32 %s, %s, %s, %s" % (v(m1), v(m1), v(sv[i]), v(sv[i + 1])))
    A("v_max_f32 %s, %s, %s" % (v(m1), v(m1), v(sv[7])))
    lc, lf, lok = A.new("can"), A.new("full"), A.new("pubok")
    if "ann" in opt:
        A("s_lshl_b32 %s, %s, 7" % (s(sT), s(sSH)))
        A("s_add_u32 %s, %s, %d" % (s(sT), s(sT), FL_PUB - 4096))
        wait_flags(A, None, s(sT))
    else:
        A("s_cmp_ge_u32 %s, %d" % (s(sSeg), ([int(o[4:]) for o in opt if o.startswith("can=")] + [52])[0]))
        A("s_cbranch_scc1 %s" % lc)
        A("s_lshl_b32 %s, %s, 7" % (s(sT), s(sSH)))
        A("s_add_u32 %s, %s, %d" % (s(sT), s(sT), FL_PUB))
        wait_flags(A, None, s(sT))
        A("s_branch %s" % lf)
        A.label(lc)
        A("buffer_load_dword %s, off, %s, %s offset:4092 sc1" % (v(vTmp), s(sWS, 4), s(sRowo)))
        A("s_waitcnt vmcnt(0)")
        A("v_cmp_eq_u32 vcc, -1, %s" % v(vTmp))
        A("s_cbranch_vccz %s" % lf)
        A("s_sleep 1")
        A("s_sub_u32 %s, %s, 1" % (s(sBud), s(sBud)))
        A("s_cbranch_scc0 %s" % lc)
        A("s_mov_b32 %s, 0" % s(sBud))

    A.label(lf)
    ts(A)
    fs(A, 0)
    A.label(lf + "_r")
    for ks in range(4):
        A("buffer_load_dwordx4 %s, %s, %s, %s offen offset:%d sc1" % (v(KM + 4 * ks, 4), v(vKM), s(sWS, 4), s(sRowo), (ks >> 1) * 2048 + (ks & 1) * 16))
    for T in range(8):
        A("buffer_load_dword %s, %s, %s, %s offen offset:%d sc1" % (v(VM + 2 * T), v(vL4), s(sWS, 4), s(sRowo), (T >> 1) * 1024 + 512 + (T & 1) * 256))
    A("s_waitcnt vmcnt(8)")
    fs(A, 1)
    for ks in range(4):
        MF(A, v(T0, 4), v(KM + 4 * ks, 4), v(QF + 4 * ks, 4), "0" if ks == 0 else v(T0, 4))
        for h in range(2):
            r = KM + 4 * ks + 2 * h
            if ks == 0 and h == 0:
                A("v_max_u32 %s, %s, %s" % (v(vTmp), v(r), v(r + 1)))
            else:
                A("v_max3_u32 %s, %s, %s, %s" % (v(vTmp), v(vTmp), v(r), v(r + 1)))
    A("s_waitcnt vmcnt(0)")
    for T in range(0, 8, 2):
        A("v_max3_u32 %s, %s, %s, %s" % (v(vTmp), v(vTmp), v(VM + 2 * T), v(VM + 2 * T + 2)))
    A("v_cmp_eq_u32 vcc, -1, %s" % v(vTmp))
    A("s_cbranch_vccz %s" % lok)
    A("s_sub_u32 %s, %s, 1" % (s(sBud), s(sBud)))
    A("s_cbranch_scc0 %s_r" % lf)
    A("s_mov_b32 %s, 0" % s(sBud))
    A.label(lok)
    prep_scores(sv[8:])
    A("v_max3_f32 %s, %s, %s, %s" % (v(m1), v(m1), v(sv[8]), v(sv[9])))
    def xl(op):
        for sw in ("v_permlane32_swap_b32", "v_permlane16_swap_b32"):
            A("v_mov_b32 %s, %s" % (v(m2), v(m1)))
            A("s_nop 1")
            A("%s %s, %s" % (sw, v(m1), v(m2)))
            A("%s %s, %s, %s" % (op, v(m1), v(m1), v(m2)))
    xl("v_max_f32")
    for x in sv:
        A("v_sub_f32 %s, %s, %s" % (v(x), v(x), v(m1)))
    for x in sv:
        A("v_mul_f32 %s, 0x%x, %s" % (v(x), f32bits(math.log2(math.e)), v(x)))
    for x in sv:
        A("v_exp_f32 %s, %s" % (v(x), v(x)))
    A("v_add_f32 %s, %s, %s" % (v(m1), v(sv[0]), v(sv[1])))
    for x in sv[2:]:
        A("v_add_f32 %s, %s, %s" % (v(m1), v(m1), v(x)))
    xl("v_add_f32")
    A("v_rcp_f32 %s, %s" % (v(m1), v(m1)))
    A("s_nop 0")
    for x in sv:
        A("v_mul_f32 %s, %s, %s" % (v(x), v(x), v(m1)))
    for i in range(4):
        A("v_cvt_pk_bf16_f32 %s, %s, %s" % (v(S_ + i), v(sv[2 * i]), v(sv[2 * i + 1])))
    A("v_cvt_pk_bf16_f32 %s, %s, %s" % (v(T0), v(T0), v(T0 + 1)))
    A("v_mov_b32 %s, 0" % v(T0 + 1))
    A("s_nop 1")
    A.lds = []
    def opack(c):
        b = OA + 8 * c
        for i in range(4):
            A("v_cvt_pk_bf16_f32 %s, %s, %s" % (v(b + i), v(b + 2 * i), v(b + 2 * i + 1)))
        A.ds("ds_write_b128 %s, %s offset:%d" % (v(vOwr), v(b, 4), L_OT + 1024 * c))
    for c in range(4):
        for T in (2 * c, 2 * c + 1):
            MF(A, v(OA + 4 * T, 4), v(VX + 4 * T, 4), v(S_, 4), "0")
        for T in (2 * c, 2 * c + 1):
            A("v_mfma_f32_16x16x16_bf16 %s, %s, %s, %s" % (v(OA + 4 * T, 4), v(VM + 2 * T, 2), v(T0, 2), v(OA + 4 * T, 4)))
        if c >= 2:
            opack(c - 2)
    opack(2)
    opack(3)
    fs(A, 2)
    A("s_mul_i32 %s, %s, %d" % (s(sPAo), s(sSeg), PA_SEG))
    A("s_add_u32 %s, %s, %d" % (s(sPAo), s(sPAo), WS_PA))
    A.wait_ds()
    A("s_barrier")
    fs(A, 3)
    OFR, WA, TB = 144, 20, 44
    for n in range(16):
        A.ds("ds_read_b128 %s, %s offset:%d" % (v(OFR + 4 * n, 4), v(vL16), L_OT + (n & 1) * 8192 + (n >> 1) * 1024), ('o', n))
    lnp = A.new("nopf")
    A("s_add_u32 %s, %s, 128" % (s(sSH), s(sSH)))
    def epi(G, tt):
        b = WA + 8 * (G % 3) + 4 * tt
        A("v_cvt_pk_bf16_f32 %s, %s, %s" % (v(b), v(b), v(b + 1)))
        A("v_cvt_pk_bf16_f32 %s, %s, %s" % (v(b + 1), v(b + 2), v(b + 3)))
    def epw(G, tt):
        A.ds("ds_write_b64 %s, %s offset:%d" % (v(vTw), v(WA + 8 * (G % 3) + 4 * tt, 2), tt * 16 * PSTR + 128 * G), ('w', G))
    def lrd(G):
        A.ds("ds_read_b128 %s, %s offset:%d" % (v(TB + 4 * (G & 1), 4), v(vTrd), 128 * G), ('t', G))
    def lst(G):
        A.wait_ds(('t', G))
        A("buffer_store_dwordx4 %s, %s, %s, %s offen offset:%d sc1" % (v(TB + 4 * (G & 1), 4), v(vPst), s(sWS, 4), s(sPAo), 128 * G))
    for G in range(9):
        for n in range(16):
            K, tt = n >> 1, n & 1
            if G == 0:
                A.wait_ds(('o', n))
            d = v(WA + 8 * (G % 3) + 4 * tt, 4)
            MF(A, d, R(wo(G, K), 4), v(OFR + 4 * n, 4), "0" if K == 0 else d)
            if G >= 1:
                if n == 5 and G >= 2:
                    lst(G - 2)
                if n == 7:
                    epi(G - 1, 0)
                if n == 8:
                    epw(G - 1, 0)
                    epi(G - 1, 1)
                if n == 9:
                    epw(G - 1, 1)
                if n == 15:
                    A.wait_ds(('w', G - 1))
                    A("s_barrier")
                    lrd(G - 1)
        if G == 0:
            A("s_cmp_ge_u32 %s, %d" % (s(sSeg), PFL))
            A("s_cbranch_scc1 %s" % lnp)
            prefetch()
            A.label(lnp)
    fs(A, 4)
    A("s_nop 3")
    epi(8, 0)
    epi(8, 1)
    epw(8, 0)
    epw(8, 1)
    lst(7)
    A.wait_ds()
    A("s_barrier")
    lrd(8)
    lst(8)
    fs(A, 6)
    A("s_waitcnt vmcnt(0)")
    A("s_barrier")
    fs(A, 7)
    A("s_lshl_b32 %s, %s, 8" % (s(sT), s(sSeg)))
    A("s_add_u32 %s, %s, %d" % (s(sT), s(sT), FL_PA))
    arrive(A, s(sT), 16)
    fs(A, 8)
    ts(A)
    A("s_add_u32 %s, %s, 4" % (s(sSeg), s(sSeg)))
    A("s_cmp_lt_u32 %s, %d" % (s(sSeg), PFL + 4))
    A("s_cbranch_scc1 %s" % ltop)
    A("s_cmp_lt_u32 %s, 64" % s(sSeg))
    A("s_cbranch_scc1 %s" % lpf)
    ts_dump(A, 1)

def emit_roleB(A, vRow, vRow2, sValid, opt):
    A.c("=========== role B: reduce + residual + LN2, one row per wave ===========")
    TS['reg'] = 19
    GA, SB, CB = 20, 32, 44
    SEL0, SEL1 = 56, 60
    vPld = 15
    load_mod(A, GA, 2, vRow, vRow2, 17, 18)
    load_mod(A, SB, 3, vRow, vRow2, 17, 18)
    load_mod(A, CB, 4, vRow, vRow2, 17, 18)
    make_sel(A, SEL0, 0, vTmp)
    make_sel(A, SEL1, 1, vTmp)
    A("v_lshrrev_b32 %s, 3, %s" % (v(17), v(vLane)))
    A("v_and_b32 %s, 7, %s" % (v(18), v(vLane)))
    A("v_lshlrev_b32 %s, 4, %s" % (v(18), v(18)))
    A("v_mul_u32_u24 %s, 1152, %s" % (v(vPld), v(17)))
    A("v_add_u32 %s, %s, %s" % (v(vPld), v(vPld), v(18)))
    A("s_waitcnt vmcnt(0)")
    one_plus(A, CB)
    sRow, sRowo = sA0 + 5, sA0 + 3
    A("s_sub_u32 %s, %s, 64" % (s(sRow), s(sWid)))
    A("s_lshl_b32 %s, %s, 1" % (s(sRow), s(sRow)))
    A("s_and_b32 %s, %s, 1" % (s(sT), s(sW)))
    A("s_add_u32 %s, %s, %s" % (s(sRow), s(sRow), s(sT)))
    A("s_lshr_b32 %s, %s, 1" % (s(sSeg), s(sW)))
    A("v_and_b32 %s, 15, %s" % (v(vFl), v(vLane)))
    A("v_lshlrev_b32 %s, 2, %s" % (v(vFl), v(vFl)))
    for i in range(6):
        A("v_mov_b32 %s, -1" % v(64 + i))
    for s0 in range(FAST0, 64, 2):
        A("s_add_u32 %s, %s, %d" % (s(sT), s(sSeg), s0))
        A("s_lshl_b32 %s, %s, 5" % (s(sT), s(sT)))
        A("s_add_u32 %s, %s, %s" % (s(sT), s(sT), s(sRow)))
        A("s_mul_i32 %s, %s, 1152" % (s(sT), s(sT)))
        A("s_add_u32 %s, %s, %d" % (s(sT), s(sT), WS_H2))
        row_io(A, "store", 64, vRow, vRow2, sWS, s(sT), " sc1")
        A("s_add_u32 %s, %s, %d" % (s(sT), s(sT), WS_X1 - WS_H2))
        row_io(A, "store", 64, vRow, vRow2, sWS, s(sT), " sc1")
    A("v_and_b32 %s, 15, %s" % (v(vFl), v(vLane)))
    A("v_mul_u32_u24 %s, 1152, %s" % (v(vFl), v(vFl)))
    ltop = A.new("btop")
    A.label(ltop)
    A("s_lshl_b32 %s, %s, 5" % (s(sT), s(sSeg)))
    A("s_add_u32 %s, %s, %s" % (s(sA0 + 2), s(sT), s(sRow)))
    A("s_mul_i32 %s, %s, 1152" % (s(sRowo), s(sA0 + 2)))
    XR, RD, XF, DD = 216, 176, 196, 144
    row_io(A, "load", XR, vRow, vRow2, sXS, s(sRowo))
    A("s_lshl_b32 %s, %s, 8" % (s(sT), s(sSeg)))
    A("s_add_u32 %s, %s, %d" % (s(sT), s(sT), FL_PA))
    lcan, lgo, lre = A.new("bcan"), A.new("bgo"), A.new("bre")
    A("s_mul_i32 %s, %s, 18432" % (s(sA0), s(sA0 + 2)))
    A("s_add_u32 %s, %s, %d" % (s(sA0), s(sA0), WS_PA))
    A("s_add_u32 %s, %s, 9216" % (s(sA0 + 1), s(sA0)))
    A("s_cmp_ge_u32 %s, %d" % (s(sSeg), FAST0))
    A("s_cbranch_scc1 %s" % lcan)
    wait_ready(A, s(sT), 16)
    A("s_branch %s" % lgo)
    A.label(lcan)
    canary(A, s(sA0), imm=124 + 128 * ([int(o[4:]) for o in opt if o.startswith("bim=")] + [0])[0], voff=vFl)
    A.label(lgo)
    ts(A)
    A.label(lre)
    LD = 64
    A.vm = []
    for i in range(9):
        for h in range(2):
            A.vmem("buffer_load_dwordx4 %s, %s, %s, %s offen offset:%d sc1" % (v(LD + 8 * i + 4 * h, 4), v(vPld), s(sWS, 4), s(sA0 + h), 128 * i), ('p', i))
    XU = 224
    if "mimic" not in opt:
        for i in range(6):
            unpack(A, XU + 2 * i, XU + 2 * i + 1, XR + i)
    for i in range(9):
        A.wait_vm(('p', i))
        d = v(RD + 4 * (i >> 1), 4)
        sel = v(SEL1 if i & 1 else SEL0, 4)
        MF(A, d, sel, v(LD + 8 * i, 4), "0" if not (i & 1) else d)
        maxchain(A, range(LD + 8 * i, LD + 8 * i + 4), i == 0)
        MF(A, d, sel, v(LD + 8 * i + 4, 4), d)
        maxchain(A, range(LD + 8 * i + 4, LD + 8 * i + 8), False)
    retry_if_sentinel(A, lre)
    for i in range(4):
        A("v_mov_b32 %s, 0" % v(XF + 8 + i))
    A("s_nop 3")
    for T in range(5):
        for jj in range(4):
            A("v_add_f32_dpp %s, %s, %s row_ror:8 row_mask:0xf bank_mask:0x%x" % (v(XF + 4 * (T >> 1) + jj), v(RD + 4 * T + jj), v(RD + 4 * T + jj), 0xc if T & 1 else 0x3))
    if "mimic" in opt:
        for i in range(0, 12, 2):
            rnd2(A, XF + i, XF + i + 1)
        for i in range(12):
            A("v_mul_f32 %s, %s, %s" % (v(XF + i), v(XF + i), v(GA + i)))
        for i in range(0, 12, 2):
            rnd2(A, XF + i, XF + i + 1)
        for i in range(6):
            unpack(A, DD, DD + 1, XR + i)
            A("v_add_f32 %s, %s, %s" % (v(XF + 2 * i), v(XF + 2 * i), v(DD)))
            A("v_add_f32 %s, %s, %s" % (v(XF + 2 * i + 1), v(XF + 2 * i + 1), v(DD + 1)))
            A("v_cvt_pk_bf16_f32 %s, %s, %s" % (v(XR + i), v(XF + 2 * i), v(XF + 2 * i + 1)))
            unpack(A, XF + 2 * i, XF + 2 * i + 1, XR + i)

    else:
        for i in range(6):
            A("v_fmac_f32 %s, %s, %s" % (v(XU + 2 * i), v(XF + 2 * i), v(GA + 2 * i)))
            A("v_fmac_f32 %s, %s, %s" % (v(XU + 2 * i + 1), v(XF + 2 * i + 1), v(GA + 2 * i + 1)))
            A("v_cvt_pk_bf16_f32 %s, %s, %s" % (v(XR + i), v(XU + 2 * i), v(XU + 2 * i + 1)))
            unpack(A, XF + 2 * i, XF + 2 * i + 1, XR + i)
    A("s_add_u32 %s, %s, %d" % (s(sT), s(sRowo), WS_X1))
    row_io(A, "store", XR, vRow, vRow2, sWS, s(sT), " sc1")
    ln_stats(A, XF, DD, sValid, 160, 161, 162)
    if "mimic" in opt:
        ln_apply(A, XF, 160, 161, CB, SB, 164)
    else:
        for i in range(12):
            A("v_sub_f32 %s, %s, %s" % (v(XF + i), v(XF + i), v(160)))
            A("v_mul_f32 %s, %s, %s" % (v(XF + i), v(XF + i), v(161)))
            A("v_fma_f32 %s, %s, %s, %s" % (v(XF + i), v(XF + i), v(CB + i), v(SB + i)))
        for i in range(6):
            A("v_cvt_pk_bf16_f32 %s, %s, %s" % (v(164 + i), v(XF + 2 * i), v(XF + 2 * i + 1)))
    A("s_add_u32 %s, %s, %d" % (s(sT), s(sRowo), WS_H2))
    row_io(A, "store", 164, vRow, vRow2, sWS, s(sT), " sc1")
    A("s_waitcnt vmcnt(0)")
    A("s_lshl_b32 %s, %s, 8" % (s(sT), s(sSeg)))
    A("s_add_u32 %s, %s, %d" % (s(sT), s(sT), FL_H2))
    arrive(A, s(sT), 32, wave0_only=False)
    ts(A)
    A("s_add_u32 %s, %s, 2" % (s(sSeg), s(sSeg)))
    A("s_cmp_lt_u32 %s, 64" % s(sSeg))
    A("s_cbranch_scc1 %s" % ltop)
    ts_dump(A, 1)

def emit_roleC(A, xsetup, wide_chunks, opt):
    A.c("=========== role C: gate/up + down partial + output ===========")
    A("s_sub_u32 %s, %s, 80" % (s(sT), s(sWid)))
    A("s_lshr_b32 %s, %s, 2" % (s(sSl), s(sT)))
    A("s_and_b32 %s, %s, 3" % (s(sRep), s(sT)))
    build_srd(A, sW1, 64, 5308416)
    build_srd(A, sW2, 72, 5308416)
    build_srd(A, sW3, 80, 5308416)
    build_srd(A, sWO, 104, 2359296)
    vOffW, vTr, vAd, vOffD, vTrD = 9, 10, 11, 12, 13
    A("s_lshl_b32 %s, %s, 8" % (s(sT + 1), s(sSl)))
    wide_off(A, vOffW, vTmp, 9216, s(sT + 1))
    A("s_lshl_b32 %s, %s, 2" % (s(sT + 1), s(sW)))
    wide_tr(A, vTr, vTmp, s(sT + 1), 1)
    A("s_mul_i32 %s, %s, 147456" % (s(sT + 1), s(sSl)))
    tall_off(A, vOffD, vTmp, s(sT + 1))
    tall_tr(A, vTrD, 3)
    W0 = 80
    def wg(t, ks):
        return W0 + 4 * (4 * ks + t)
    def wd(G, ks):
        return W0 + 288 + 4 * (4 * G + ks)
    chunks = wide_chunks((sW1, sW2), 9216, wg, vOffW, vTr)
    for G in range(9):
        def consume(base, G=G):
            A("v_add_u32 %s, %d, %s" % (v(vAd), base, v(vTrD)))
            for ks in range(4):
                tr2(A, wd(G, ks), vAd, 32 * ks * 128, (32 * ks + 4) * 128)
        chunks.append((sW3, vOffD, [8 * j * 1152 + 128 * G for j in range(4)], consume))
    A.vm, A.lds = ['old'] * 2, []
    stage(A, chunks, depth=TS['d2'])
    vXo = 9
    sSrc, sM0x = sA0, sA0 + 1
    vXa = 7
    xsetup(vXa)
    vHw, vRl, vOo = 6, 2, 3
    LAND, ACC, PK = 10, 26, 62
    L_HH = 40960
    A("s_lshl_b32 %s, %s, 10" % (s(sT), s(sW)))
    A("s_add_u32 %s, %s, %d" % (s(sT), s(sT), L_HH))
    A("v_add_u32 %s, %s, %s" % (v(vHw), s(sT), v(vL16)))
    A("v_and_b32 %s, 15, %s" % (v(vTmp), v(vLane)))
    A("v_lshlrev_b32 %s, 4, %s" % (v(vTmp), v(vTmp)))
    A("v_lshl_add_u32 %s, %s, 10, %s" % (v(vRl), v(vG), v(vTmp)))
    A("s_lshl_b32 %s, %s, 8" % (s(sT), s(sW)))
    A("v_add_u32 %s, %s, %s" % (v(vRl), s(sT), v(vRl)))
    A("v_mul_u32_u24 %s, 1152, %s" % (v(vOo), v(vLane)))
    A("s_lshl_b32 %s, %s, 5" % (s(sT), s(sSl)))
    A("s_lshl_b32 %s, %s, 3" % (s(sT + 1), s(sW)))
    A("s_add_u32 %s, %s, %s" % (s(sT), s(sT), s(sT + 1)))
    A("v_add_u32 %s, %s, %s" % (v(vOo), s(sT), v(vOo)))
    A("v_mov_b32 %s, 0x%x" % (v(vTmp), OOB))
    A("v_cmp_gt_u32 vcc, 32, %s" % v(vLane))
    A("s_nop 1")
    A("v_cndmask_b32 %s, %s, %s, vcc" % (v(vOo), v(vTmp), v(vOo)))
    A("s_lshl_b32 %s, %s, 1" % (s(sT), s(sT)))
    A("s_add_u32 %s, %s, %d" % (s(sT), s(sT), WS_MOD + 5 * 2304))
    A("buffer_load_dwordx4 %s, off, %s, %s sc1" % (v(ACC, 4), s(sWS, 4), s(sT)))
    A("s_waitcnt vmcnt(0)")
    sGB = sA0 + 8
    for i in range(4):
        A("v_readfirstlane_b32 %s, %s" % (s(sGB + i), v(ACC + i)))
    A("s_mov_b32 %s, %s" % (s(sSeg), s(sRep)))
    sPCo, sFl = sA0 + 2, sA0 + 3
    TS['reg'] = 4
    sPrev = sA0 + 5
    CIM = ([int(o[4:]) for o in opt if o.startswith("cim=")] + [1024])[0]
    A("s_add_u32 %s, %s, 60" % (s(sT), s(sRep)))
    A("s_mul_i32 %s, %s, %d" % (s(sT), s(sT), PC_SEG))
    A("s_mul_i32 %s, %s, 36" % (s(sT + 1), s(sW)))
    A("s_add_u32 %s, %s, %s" % (s(sT + 1), s(sT + 1), s(sSl)))
    A("s_lshl_b32 %s, %s, 10" % (s(sT + 1), s(sT + 1)))
    A("s_add_u32 %s, %s, %s" % (s(sT), s(sT), s(sT + 1)))
    A("s_add_u32 %s, %s, %d" % (s(sT), s(sT), WS_PC))
    A("v_mov_b64 %s, -1" % v(ACC, 2))
    A("v_mov_b64 %s, -1" % v(ACC + 2, 2))
    for G in range(9):
        A("buffer_store_dwordx4 %s, %s, %s, %s offen sc1" % (v(ACC, 4), v(vL16), s(sWS, 4), s(sT)))
        A("s_add_u32 %s, %s, %d" % (s(sT), s(sT), 4 * 36 * 1024))
    def reduce_out(last=False):
        A("s_lshl_b32 %s, %s, 8" % (s(sFl), s(sPrev)))
        A("s_mul_i32 %s, %s, 36864" % (s(sA0 + 6), s(sPrev)))
        make_sel(A, LAND, 0, vTmp)
        if not last:
            A("s_add_u32 %s, %s, %d" % (s(sFl), s(sFl), FL_PC))
            wait_ready(A, s(sFl), 36)
        ts(A)
        lre = A.new("cre")
        A.label(lre)
        A("s_add_u32 %s, %s, %d" % (s(sT), s(sA0 + 6), WS_X1))
        A("buffer_load_dwordx2 %s, %s, %s, %s offen sc1" % (v(LAND + 8, 2), v(vOo), s(sWS, 4), s(sT)))
        A("s_mul_i32 %s, %s, %d" % (s(sT), s(sSl), 36 * 1024))
        A("s_add_u32 %s, %s, %s" % (s(sT), s(sT), s(sPCo)))
        A.vm = []
        for i in range(9):
            A.vmem("buffer_load_dwordx4 %s, %s, %s, %s offen sc1" % (v(ACC + 4 * i, 4), v(vRl), s(sWS, 4), s(sT)), ('p', i))
            if i < 8:
                A("s_add_u32 %s, %s, 4096" % (s(sT), s(sT)))
        D = LAND + 4
        for i in range(9):
            A.wait_vm(('p', i))
            MF(A, v(D, 4), v(LAND, 4), v(ACC + 4 * i, 4), "0" if i == 0 else v(D, 4))
            if last:
                maxchain(A, range(ACC + 4 * i, ACC + 4 * i + 4), i == 0)
        maxchain(A, (LAND + 8, LAND + 9), not last)
        retry_if_sentinel(A, lre)
    def reduce_fin():
        D = LAND + 4
        unpack(A, LAND + 10, LAND + 11, LAND + 8)
        unpack(A, LAND + 12, LAND + 13, LAND + 9)
        A("s_nop 3")
        rnd2(A, D, D + 1)
        rnd2(A, D + 2, D + 3)
        for i in range(4):
            A("v_mul_f32 %s, %s, %s" % (v(D + i), s(sGB + i), v(D + i)))
        rnd2(A, D, D + 1)
        rnd2(A, D + 2, D + 3)
        for i in range(4):
            A("v_add_f32 %s, %s, %s" % (v(D + i), v(D + i), v(LAND + 10 + i)))
        pert = [float(o[5:]) for o in opt if o.startswith("pert=")]
        if pert:
            lpp = A.new("pert")
            A("s_or_b32 %s, %s, %s" % (s(sT), s(sSl), s(sPrev)))
            A("s_or_b32 %s, %s, %s" % (s(sT), s(sT), s(sW)))
            A("s_cmp_lg_u32 %s, 0" % s(sT))
            A("s_cbranch_scc1 %s" % lpp)
            A("s_mov_b64 exec, 1")
            A("v_add_f32 %s, 0x%x, %s" % (v(D), f32bits(pert[0]), v(D)))
            A("s_mov_b64 exec, -1")
            A.label(lpp)
        A("v_cvt_pk_bf16_f32 %s, %s, %s" % (v(D), v(D), v(D + 1)))
        A("v_cvt_pk_bf16_f32 %s, %s, %s" % (v(D + 1), v(D + 2), v(D + 3)))
        A("buffer_store_dwordx2 %s, %s, %s, %s offen%s" % (v(D, 2), v(vOo), s(sWO, 4), s(sA0 + 6), " sc1" if "outsc1" in opt else " nt" if "outnt" in opt else ""))
        ts(A)
    ltop, lfirst = A.new("ctop"), A.new("cfirst")
    def h2wait():
        A("s_lshl_b32 %s, %s, 8" % (s(sT), s(sSeg)))
        A("s_add_u32 %s, %s, %d" % (s(sT), s(sT), FL_H2))
        A("s_mul_i32 %s, %s, 36864" % (s(sSrc), s(sSeg)))
        A("s_add_u32 %s, %s, %d" % (s(sSrc), s(sSrc), WS_H2))
        lcan, lj, lre = A.new("ccan"), A.new("cj"), A.new("cxre")
        A("s_cmp_ge_u32 %s, %d" % (s(sSeg), FAST0))
        A("s_cbranch_scc1 %s" % lcan)
        wait_ready(A, s(sT), 32)
        ts(A)
        fs(A, 0)
        x_dma(A, vXo, sSrc, sM0x)
        A("s_branch %s" % lj)
        A.label(lcan)
        lnow = A.new("cnow")
        if "cx1" in opt:
            A("s_add_u32 %s, %s, %d" % (s(sT), s(sSrc), WS_X1 - WS_H2))
            A("buffer_load_dword %s, %s, %s, %s offen sc1" % (v(vTmp), v(vXo), s(sWS, 4), s(sT)))
        else:
            A("buffer_load_dword %s, %s, %s, %s offen offset:1024 sc1" % (v(vTmp), v(vXo), s(sWS, 4), s(sSrc)))
        A("s_waitcnt vmcnt(0)")
        A("v_cmp_eq_u32 vcc, -1, %s" % v(vTmp))
        A("s_cbranch_vccz %s" % lnow)
        reduce_out()
        reduce_fin()
        A("s_mov_b32 %s, -1" % s(sPrev))
        A.label(lnow)
        if "cx1" in opt:
            A("s_add_u32 %s, %s, %d" % (s(sT), s(sSrc), WS_X1 - WS_H2))
            canary(A, s(sT), imm=0, voff=vXo)
        else:
            canary(A, s(sSrc), imm=CIM, voff=vXo)
        ts(A)
        fs(A, 0)
        A.label(lre)
        for i in range(9):
            A("buffer_load_dwordx4 %s, %s, %s, %s offen offset:%d sc1" % (v(ACC + 4 * i, 4), v(vXo), s(sWS, 4), s(sSrc), 128 * i))
        A("v_add_u32 %s, %s, %s" % (v(LAND), s(sM0x), v(vL16)))
        for i in range(9):
            A("s_waitcnt vmcnt(%d)" % (8 - i))
            A("ds_write_b128 %s, %s offset:%d" % (v(LAND), v(ACC + 4 * i, 4), 1024 * i))
            maxchain(A, range(ACC + 4 * i, ACC + 4 * i + 4), i == 0)
        retry_if_sentinel(A, lre)
        A("s_waitcnt lgkmcnt(0)")
        A.label(lj)
    A("s_mov_b32 %s, -1" % s(sPrev))
    A.label(ltop)
    h2wait()
    fs(A, 1)
    A("s_waitcnt vmcnt(0)")
    A("s_barrier")
    fs(A, 2)
    A.lds = []
    GAC = [ACC, ACC + 16]
    HP = ACC + 32
    fill = []
    def F(n):
        for _ in range(n):
            if fill:
                fill.pop(0)()
    def gu_epi(tt):
        for t in range(2):
            g_, u_ = GAC[tt] + 4 * t, GAC[tt] + 8 + 4 * t
            for jj in range(4):
                fill.append(lambda a=g_ + jj, b=u_ + jj: A("v_cvt_pk_bf16_f32 %s, %s, %s" % (v(b), v(a), v(b))))
                fill.append(lambda a=g_ + jj, b=u_ + jj: A("v_lshlrev_b32 %s, 16, %s" % (v(a), v(b))))
                fill.append(lambda b=u_ + jj: A("v_and_b32 %s, 0xffff0000, %s" % (v(b), v(b))))
                fill.append(lambda a=g_ + jj, b=u_ + jj: A("v_mul_f32 %s, %s, %s" % (v(a), v(a), v(b))))
            fill.append(lambda t=t, g_=g_: A("v_cvt_pk_bf16_f32 %s, %s, %s" % (v(HP + 2 * t), v(g_), v(g_ + 1))))
            fill.append(lambda t=t, g_=g_: A("v_cvt_pk_bf16_f32 %s, %s, %s" % (v(HP + 2 * t + 1), v(g_ + 2), v(g_ + 3))))
        fill.append(lambda: A.ds("ds_write_b128 %s, %s offset:%d" % (v(vHw), v(HP, 4), 4096 * tt), ('hw', tt)))
    def xrd(n):
        tt, ks = n // 18, n % 18
        A.ds("ds_read_b128 %s, %s offset:%d" % (v(LAND + 4 * (n % 4), 4), v(vXa + (ks & 1)), 18432 * tt + (ks >> 1) * 1024), ('x', n))
    def hrd(tt, ks):
        A.ds("ds_read_b128 %s, %s offset:%d" % (v(LAND + 4 * ks, 4), v(vL16), L_HH + 4096 * tt + 1024 * ks), ('h', tt, ks))
    for n in range(3):
        xrd(n)
    for n in range(36):
        tt, ks = n // 18, n % 18
        A.wait_ds(('x', n))
        for t in range(4):
            d = v(GAC[tt] + 4 * t, 4)
            MF(A, d, R(wg(t, ks), 4), v(LAND + 4 * (n % 4), 4), "0" if ks == 0 else d)
            if t == 0 and n + 3 < 36:
                xrd(n + 3)
            elif t == 0:
                hrd(0, n - 33)
            else:
                F(2)
        if n == 19:
            gu_epi(0)
        if n == 31:
            assert not fill
            A.wait_ds(('hw', 0))
            A("s_barrier")
    fs(A, 3)
    hrd(0, 3)
    A("s_mul_i32 %s, %s, %d" % (s(sA0 + 4), s(sSeg), PC_SEG))
    A("s_add_u32 %s, %s, %d" % (s(sA0 + 4), s(sA0 + 4), WS_PC))
    A("s_mul_i32 %s, %s, 36" % (s(sT), s(sW)))
    A("s_add_u32 %s, %s, %s" % (s(sT), s(sT), s(sSl)))
    A("s_lshl_b32 %s, %s, 10" % (s(sT), s(sT)))
    A("s_add_u32 %s, %s, %s" % (s(sT), s(sT), s(sA0 + 4)))
    DA = lambda G: ACC + 4 * (G % 4)
    def dn_epi(tt, G):
        b = DA(G + 9 * tt)
        if tt == 0:
            fill.append(lambda: A("v_cvt_pk_bf16_f32 %s, %s, %s" % (v(PK + 2 * G), v(b), v(b + 1))))
            fill.append(lambda: A("v_cvt_pk_bf16_f32 %s, %s, %s" % (v(PK + 2 * G + 1), v(b + 2), v(b + 3))))
        else:
            fill.append(lambda: A("v_cvt_pk_bf16_f32 %s, %s, %s" % (v(b + 3), v(b + 2), v(b + 3))))
            fill.append(lambda: A("v_cvt_pk_bf16_f32 %s, %s, %s" % (v(b + 2), v(b), v(b + 1))))
            fill.append(lambda: A("v_mov_b64 %s, %s" % (v(b, 2), v(PK + 2 * G, 2))))
            fill.append(lambda: A("buffer_store_dwordx4 %s, %s, %s, %s offen sc1" % (v(b, 4), v(vL16), s(sWS, 4), s(sT))))
            fill.append(lambda: A("s_add_u32 %s, %s, %d" % (s(sT), s(sT), 4 * 36 * 1024)))
    H1 = GAC[1]
    gu_epi(1)
    gl = list(fill)
    del fill[:]
    for N in range(18):
        tt, G = N // 9, N % 9
        if N >= 2:
            dn_epi((N - 2) // 9, (N - 2) % 9)
            pend = list(fill)
            del fill[:]
        else:
            pend = []
        for ks in range(4):
            if G == 0:
                A.wait_ds(('h', tt, ks))
            d = v(DA(N), 4)
            MF(A, d, R(wd(G, ks), 4), v((LAND if tt == 0 else H1) + 4 * ks, 4), "0" if ks == 0 else d)
            k = 0
            if ks >= 1 or len(pend) > 4:
                while pend and k < 2:
                    pend.pop(0)()
                    k += 1
            while gl and k < 2:
                gl.pop(0)()
                k += 1
            while k < 1:
                A("s_nop 0")
                k += 1
        assert not pend
        if N == 6:
            assert not gl
            A.wait_ds(('hw', 1))
            A("s_barrier")
            for ks in range(4):
                A.ds("ds_read_b128 %s, %s offset:%d" % (v(H1 + 4 * ks, 4), v(vL16), L_HH + 4096 + 1024 * ks), ('h', 1, ks))
    dn_epi(1, 7)
    F(len(fill))
    A("s_nop 1")
    dn_epi(1, 8)
    F(len(fill))
    fs(A, 5)
    llast = A.new("clast")
    A("s_cmp_ge_u32 %s, 60" % s(sSeg))
    A("s_cbranch_scc1 %s" % llast)
    A("s_waitcnt vmcnt(0)")
    A("s_barrier")
    fs(A, 6)
    A("s_lshl_b32 %s, %s, 8" % (s(sT), s(sSeg)))
    A("s_add_u32 %s, %s, %d" % (s(sT), s(sT), FL_PC))
    arrive(A, s(sT), 36)
    fs(A, 7)
    ts(A)
    A("s_cmp_eq_u32 %s, -1" % s(sPrev))
    A("s_cbranch_scc1 %s" % lfirst)
    reduce_out()
    reduce_fin()
    A.label(lfirst)
    A("s_mov_b32 %s, %s" % (s(sPrev), s(sSeg)))
    A("s_mov_b32 %s, %s" % (s(sPCo), s(sA0 + 4)))
    A("s_add_u32 %s, %s, 4" % (s(sSeg), s(sSeg)))
    A("s_branch %s" % ltop)
    A.label(llast)
    ts(A)
    ldn = A.new("cdn")
    A("s_cmp_eq_u32 %s, -1" % s(sPrev))
    A("s_cbranch_scc1 %s" % ldn)
    reduce_out()
    reduce_fin()
    A.label(ldn)
    A("s_mov_b32 %s, %s" % (s(sPrev), s(sSeg)))
    A("s_mov_b32 %s, %s" % (s(sPCo), s(sA0 + 4)))
    reduce_out(last=True)
    reduce_fin()
    if "dbgout" in opt:
        A("s_memrealtime s[96:97]")
        A("s_waitcnt lgkmcnt(0)")
        A("s_mov_b64 exec, 1")
        A("v_mov_b32 %s, s96" % v(vTmp))
        A("buffer_atomic_umax %s, off, %s, 0 offset:24" % (v(vTmp), s(sDBG, 4)))
    ts_dump(A, 1)
```

```python
import sys
from asmlib import *
from layout import *
import team, worker
from gen_rec import kd

NAME = "adaLN_cond__memory_aug_recurrent_mem_tr__glu_gated_bilinear__prompt_kernel"
HDR = open("adaLN_cond__memory_aug_recurrent_mem_tr__glu_gated_bilinear__prompt.s.ref").read().split("; Override launch")[0]

DOC = """; ---------------------------------------------------------------------------------------------------------
; ---------------------------------------------------------------------------------------------------------"""

def main(opt):
    A = Asm()
    as_list = "list" in opt
    A.lines.append(HDR.rstrip())
    if as_list:
        A.lines.append("; @launch kernel=%s grid=(256,1,1) block=(256,1,1) lds=163840" % NAME)
    else:
        A.lines.append("; @launch grid=(256,1,1) block=(256,1,1) lds=163840")
    A.lines.append('.amdgcn_target "amdgcn-amd-amdhsa--gfx950"')
    A.lines.append(DOC)
    A.lines.append(".text\n.globl %s\n.p2align 8\n.type %s,@function" % (NAME, NAME))
    A.label(NAME)
    A("s_cmp_ge_u32 s2, 256")
    A("s_cbranch_scc1 L_end")
    if "empty" in opt:
        A("s_endpgm")
    T = team
    if "dbgout" in opt:
        A("s_memrealtime s[96:97]")
    bufs = [(T.sWS, 120, WS_BYTES), (T.sWQ, 16, 4718592), (T.sWK, 24, 4718592), (T.sWV, 32, 4718592), (T.sWO, 40, 4718592), (T.sM0, 8, 9216), (T.sDBG, 112, 256)]
    for d, o, n in bufs:
        A("s_load_dwordx2 %s, s[0:1], %d" % (s(d, 2), o))
    A("s_getreg_b32 s3, hwreg(HW_REG_XCC_ID)")
    A("s_and_b32 s3, s3, 15")
    A("v_lshrrev_b32 v1, 6, v0")
    A("v_and_b32 v0, 63, v0")
    A("v_readfirstlane_b32 %s, v1" % s(T.sW))
    A("s_waitcnt lgkmcnt(0)")
    for d, o, n in bufs:
        A("s_and_b32 %s, %s, 0xffff" % (s(d + 1), s(d + 1)))
        A("s_mov_b32 %s, %d" % (s(d + 2), n))
        A("s_mov_b32 %s, 0x20000" % s(d + 3))
    A("v_mov_b32 v2, 0")
    A("s_cmp_lg_u32 %s, 0" % s(T.sW))
    A("s_cbranch_scc1 L_norank")
    if "dbgout" in opt:
        A("s_cmp_lg_u32 s2, 0")
        A("s_cbranch_scc1 L_nod")
        A("v_mov_b32 v1, s96")
        A("buffer_store_dword v1, off, %s, 0 offset:28 sc1" % s(T.sDBG, 4))
        A.label("L_nod")
    if "fakexcc" in opt:
        A("s_lshr_b32 s60, s2, 5")
    else:
        A("s_and_b32 s60, s3, 7")
    A("s_mov_b32 s62, 8")
    A("s_mov_b64 exec, 1")
    A.label("L_claim")
    A("s_lshl_b32 s61, s60, 5")
    A("v_mov_b32 v1, 1")
    A("buffer_atomic_add v1, off, %s, s61 offset:%d sc0" % (s(T.sDBG, 4), DBG_XCC))
    A("s_waitcnt vmcnt(0)")
    A("v_readfirstlane_b32 s61, v1")
    A("s_nop 3")
    A("s_cmp_lt_u32 s61, 32")
    A("s_cbranch_scc1 L_got")
    A("s_add_u32 s60, s60, 1")
    A("s_and_b32 s60, s60, 7")
    A("s_sub_u32 s62, s62, 1")
    A("s_cmp_lg_u32 s62, 0")
    A("s_cbranch_scc1 L_claim")
    A("s_mov_b32 s60, 8")
    A.label("L_got")
    A("s_lshl_b32 s60, s60, 5")
    A("s_add_u32 s60, s60, s61")
    A("v_mov_b32 v1, s60")
    A("ds_write_b32 v2, v1")
    A("s_mov_b64 exec, -1")
    if "warm" in opt:
        A("s_branch L_ranked")
    A.label("L_norank")
    if "warm" in opt:
        A("s_cmp_lg_u32 s3, 0")
        A("s_cbranch_scc1 L_ranked")
        A("v_lshrrev_b32 v3, 1, v0")
        A("v_lshlrev_b32 v3, 13, v3")
        A("v_and_b32 v4, 1, v0")
        A("v_lshl_add_u32 v3, v4, 7, v3")
        A("s_lshr_b32 s60, s2, 3")
        A("s_lshl_b32 s60, s60, 8")
        A("s_sub_u32 s61, %s, 1" % s(T.sW))
        A("s_lshl_b32 s61, s61, 19")
        A("s_add_u32 s60, s60, s61")
        A("s_add_u32 s61, s60, 0x40000")
        for srd in (T.sWQ, T.sWK):
            for so in (60, 61):
                A("buffer_load_dword v255, v3, %s, s%d offen" % (s(srd, 4), so))
        A.label("L_ranked")
    A("s_waitcnt lgkmcnt(0)")
    A("s_barrier")
    A("ds_read_b32 v1, v2")
    A("s_waitcnt lgkmcnt(0)")
    A("v_readfirstlane_b32 %s, v1" % s(T.sCU))
    A("s_barrier")
    A("s_cmp_ge_u32 %s, 256" % s(T.sCU))
    A("s_cbranch_scc1 L_end")
    A("s_cmp_ge_u32 %s, 32" % s(T.sCU))
    A("s_cbranch_scc1 L_worker")
    def kv_wait0(A):
        for (voff, soff, srd, ge, imm) in ((None, "0", T.sDBG, None, DBG_MOD),):
            lp, ok = A.new("tw"), A.new("twok")
            A.label(lp)
            if voff is None:
                A("buffer_load_dword %s, off, %s, 0 offset:%d sc1" % (v(T.vTmp), s(srd, 4), imm))
            else:
                A("buffer_load_dword %s, v12, %s, %s offen sc1" % (v(T.vTmp), s(srd, 4), soff))
            A("s_waitcnt vmcnt(0)")
            if ge:
                A("v_cmp_gt_u32 vcc, %d, %s" % (ge, v(T.vTmp)))
            else:
                A("v_cmp_eq_u32 vcc, 0, %s" % v(T.vTmp))
            A("s_cbranch_vccz %s" % ok)
            A("s_sleep 2")
            A("s_sub_u32 %s, %s, 1" % (s(T.sBud), s(T.sBud)))
            A("s_cbranch_scc0 %s" % lp)
            A("s_mov_b32 %s, 0" % s(T.sBud))
            A.label(ok)
    if "p1only" not in opt:
        team.emit_team(A, stamps="stamps" in opt, hooks={'kv_wait0': kv_wait0}, opt=list(opt) + ["mega", "prog", "mask", "qf", "oex", "f8l"])
    A("s_endpgm")
    A.label("L_worker")
    A("s_sub_u32 %s, %s, 32" % (s(worker.sWid), s(T.sCU)))
    worker.emit_worker(A, list(opt) + ["ann", "cx1"])
    A.label("L_end")
    A("s_endpgm")
    return A.text() + kd(NAME)

if __name__ == "__main__":
    open(sys.argv[1], "w").write(main(sys.argv[2:]))
```
